```python
import torch

def _softmax(x, axis=-1):
    return torch.softmax(x, dim=axis)
def _gelu(x):
    return torch.nn.functional.gelu(x, approximate="tanh")
def _silu(x):
    return torch.nn.functional.silu(x)
def _sigmoid(x):
    return torch.sigmoid(x)
def _layernorm(x, axis=-1, eps=1e-5):
    m = x.mean(dim=axis, keepdim=True)
    v = x.var(dim=axis, keepdim=True, unbiased=False)
    return (x - m) / torch.sqrt(v + eps)
def _scatter_add(tgt, idx, src, axis=0):
    return tgt.clone().index_add_(axis, idx, src)
def _segment_sum(src, seg, n):
    out = torch.zeros((n,) + src.shape[1:], dtype=src.dtype)
    return out.index_add_(0, seg, src)
def _pad(x, pw):
    flat = tuple(v for pair in reversed(pw) for v in pair)
    return torch.nn.functional.pad(x, flat)

kernel_name = 'standalone__deep_cross_xdeepfm__recsys'

def setup_inputs():

    _w = (lambda a: (lambda t: t.to(torch.bfloat16) if t.is_floating_point() else t)(torch.as_tensor(a)))
    B, F, D, L = 4096, 26, 32, 6
    V = min(100000, 100000)
    Din = F * D
    return {
        "idx": _w((lambda lo, hi, *s: torch.randint(lo, hi, s))(0, V, B, F).to(torch.int64)),
        "table": _w((lambda *s: torch.randn(*s, dtype=torch.bfloat16) * 0.8)(V, D)),
        "ws_cin": _w((lambda *s: torch.randn(*s, dtype=torch.bfloat16) * 0.2)(L, F, F, F) * (1.0 / F)),
        "w_cin_out": _w((lambda *s: torch.randn(*s, dtype=torch.bfloat16) * 0.2)(L * F) * ((L * F) ** -0.5)),
        "w_dnn1": _w((lambda *s: torch.randn(*s, dtype=torch.bfloat16) * 0.8)(Din, Din) * (Din ** -0.5)),
        "b_dnn1": _w((lambda *s: torch.randn(*s, dtype=torch.bfloat16) * 3.2)(Din) * 0.1),
        "w_dnn2": _w((lambda *s: torch.randn(*s, dtype=torch.bfloat16) * 0.2)(Din) * (Din ** -0.5)),
        "b_out": _w((lambda *s: torch.randn(*s, dtype=torch.bfloat16) * 0.2)(1)),
    }

def reference(idx, table, ws_cin, w_cin_out, w_dnn1, b_dnn1, w_dnn2, b_out):
    x0 = table[idx]
    B = x0.shape[0]
    L = ws_cin.shape[0]
    xk = x0
    pooled = []
    for l in range(L):
        xk = torch.einsum('bid,bjd,hij->bhd', xk, x0, ws_cin[l])
        pooled.append(xk.sum(axis=-1))
    p_plus = torch.stack(pooled, axis=1).reshape(B, -1)
    logit_cin = p_plus @ w_cin_out
    h = x0.reshape(B, -1)
    h = _gelu(h @ w_dnn1 + b_dnn1)
    logit_dnn = h @ w_dnn2
    return logit_cin + logit_dnn + b_out
```

```python
import re
TRANS = ("v_exp_f32", "v_log_f32", "v_rcp_f32", "v_rsq_f32", "v_sqrt_f32", "v_sin_f32", "v_cos_f32")
def regs_of(op):
    op = op.strip()
    op = op.lstrip('-')
    if op.startswith('|') and op.endswith('|'): op = op[1:-1]
    m = re.fullmatch(r'([vs])(\d+)', op)
    if m: return {(m.group(1), int(m.group(2)))}
    m = re.fullmatch(r'([vs])\[(\d+):(\d+)\]', op)
    if m: return {(m.group(1), i) for i in range(int(m.group(2)), int(m.group(3)) + 1)}
    if op in ('vcc', 'vcc_lo', 'vcc_hi'): return {('s', 'vcc')}
    if op == 'm0': return {('s', 'm0')}
    if op == 'exec': return {('s', 'exec')}
    return set()
class Ins:
    def __init__(self, text):
        self.text = text
        t = text.split(';')[0].strip()
        self.label = t.endswith(':')
        self.directive = t.startswith('.')
        self.op = t.split()[0] if t else ''
        rest = t[len(self.op):].strip()
        ops = [o.strip() for o in re.split(r',(?![^\[]*\])', rest)] if rest else []
        self.mods = ''
        if ops:
            parts = ops[-1].split(None, 1)
            ops[-1] = parts[0]
            if len(parts) > 1: self.mods = parts[1]
        self.ops = ops
        op = self.op
        self.w = set(); self.r = set(); self.rc = set()
        self.kind = 'other'
        R = [regs_of(o) for o in ops]
        if self.label or self.directive or not op: self.kind = 'none'
        elif op.startswith('v_mfma'):
            self.kind = 'mfma'; self.w = R[0]; self.r = R[1] | R[2]; self.rc = R[3]
            self.passes = 16 if '32x32x2_f32' in op else (8 if '32x32' in op else 4)
            self.sgemm = op.endswith('_f32') and ('x2_f32' in op or 'x4_f32' in op)
        elif op.startswith('v_'):
            self.kind = 'valu'
            if op.startswith('v_cmp'):
                self.w = R[0]; self.r = set().union(*R[1:])
            elif op.startswith('v_permlane') and 'swap' in op:
                self.w = R[0] | R[1]; self.r = R[0] | R[1]
            else:
                self.w = R[0]; self.r = set().union(*R[1:]) if len(R) > 1 else set()
                if op.startswith(('v_fmac', 'v_fma_mixlo', 'v_fma_mixhi', 'v_writelane', 'v_dot2c')): self.r |= R[0]
                if 'row_' in self.mods or 'quad_perm' in self.mods or '_dpp' in op: self.r |= R[0]
                if op.startswith('v_cndmask') and len(ops) == 3: self.r |= {('s', 'vcc')}
        elif op.startswith('ds_'):
            self.kind = 'ds'
            if op.startswith(('ds_read', 'ds_bpermute', 'ds_permute', 'ds_swizzle')) or '_rtn' in op:
                self.w = R[0]; self.r = set().union(*R[1:])
            else: self.r = set().union(*R)
        elif op.startswith(('buffer_', 'global_')):
            self.kind = 'vmem'
            lds = ' lds' in (' ' + self.mods) or '_lds_' in op
            self.dma = lds
            if 'load' in op and not lds: self.w = R[0]; self.r = set().union(*R[1:])
            elif 'atomic' in op and 'sc0' in self.mods: self.w = R[0]; self.r = set().union(*R)
            else: self.r = set().union(*R)
            if lds: self.r |= {('s', 'm0')}
            self.widestore = ('store' in op and ('x3' in op or 'x4' in op))
            if self.widestore: self.sdata = R[0] if op.startswith('buffer') else R[1]
        elif op.startswith('s_'):
            self.kind = 'salu'
            if op.startswith(('s_cmp', 's_cbranch', 's_branch', 's_waitcnt', 's_barrier', 's_nop', 's_setprio', 's_sleep', 's_endpgm')):
                self.r = set().union(*R) if R else set()
            else:
                self.w = R[0] if R else set(); self.r = set().union(*R[1:]) if len(R) > 1 else set()
                if 'saveexec' in op: self.w |= {('s', 'exec')}
    def states(self):
        if self.kind == 'none': return 0
        if self.op == 's_nop': return int(self.ops[0], 0) + 1
        return 1
def vonly(s): return {x for x in s if x[0] == 'v'}
def sonly(s): return {x for x in s if x[0] == 's'}
def need(p, c):
    n = 0
    if p.kind == 'valu':
        pv = vonly(p.w); ps = sonly(p.w)
        if c.kind == 'mfma' and pv & (c.r | c.rc): n = max(n, 2)
        if c.kind == 'valu':
            dpp = 'row_' in c.mods or 'quad_perm' in c.mods or '_dpp' in c.op
            if c.op.startswith('v_permlane') and pv & c.r: n = max(n, 2)
            if dpp and pv & c.r: n = max(n, 2)
            if c.op.startswith(('v_readlane', 'v_readfirstlane')) and pv & c.r: n = max(n, 1)
            if p.op in TRANS and c.op not in TRANS and pv & c.r: n = max(n, 1)
            if p.op in TRANS and c.op in TRANS and pv & c.r: n = max(n, 1)
            if (p.op.startswith(('v_fma_mixhi', 'v_fma_mixlo')) or 'sdwa' in p.op or 'dst_sel' in p.mods) and pv & (c.r | c.w): n = max(n, 1)
            if ps & c.r:
                n = max(n, 4 if c.op.startswith(('v_readlane', 'v_writelane')) else 2)
        if c.kind == 'mfma' and p.op in TRANS and pv & (c.r | c.rc): n = max(n, 2)
        if c.kind == 'vmem' and ps & c.r: n = max(n, 5)
        if c.kind == 'salu' and ps & c.r: n = max(n, 1)
        if ('s', 'exec') in ps: n = max(n, 5)
    if p.kind == 'mfma':
        P = p.passes
        if p.sgemm: tab_ab = {4: 6, 8: 10, 16: 18}; tab_c = {4: 4, 8: 8, 16: 16}
        else: tab_ab = {4: 8, 8: 12, 16: 20}; tab_c = {4: 6, 8: 10, 16: 18}
        if c.kind == 'mfma':
            if p.w & c.r: n = max(n, tab_ab[P])
            if p.w & c.rc and not (p.w == c.rc and p.op == c.op): n = max(n, tab_c[P])
            if p.w & c.w and not (p.w == c.rc and p.op == c.op): n = max(n, tab_c[P])
        elif c.kind in ('valu', 'ds', 'vmem'):
            if p.w & (c.r | c.w): n = max(n, tab_ab[P])
            if c.kind == 'valu' and p.rc & c.w and not p.sgemm: n = max(n, {4: 3, 8: 7, 16: 15}[P])
    if p.kind == 'salu':
        if ('s', 'm0') in p.w and c.kind == 'vmem' and getattr(c, 'dma', False): n = max(n, 1)
    if p.kind == 'vmem' and getattr(p, 'widestore', False):
        if p.sdata & c.w: n = max(n, 2)
    if p.kind == 'ds' and p.op in ('ds_write_b128', 'ds_write_b96') and c.kind == 'valu' and vonly(p.r) & c.w: n = max(n, 1)
    return n
def fix_hazards(lines):
    out = []; hist = []
    nops = 0
    for t in lines:
        ins = Ins(t)
        if ins.kind == 'none':
            out.append(t); continue
        req = 0; dist = 0
        for p in reversed(hist):
            k = need(p, ins) - dist
            if k > req: req = k
            dist += p.states()
            if dist > 24: break
        while req > 0:
            k = min(req, 16)
            nt = f"    s_nop {k-1}"
            out.append(nt); hist.append(Ins(nt)); req -= k; nops += 1
        out.append(t); hist.append(ins)
        if len(hist) > 40: hist = hist[-40:]
    return out, nops
```

```python
import sys, struct
from asmlib import fix_hazards
KN = "standalone__deep_cross_xdeepfm__recsys_kernel"
def f2u(f): return struct.unpack('<I', struct.pack('<f', f))[0]
OOB = 0x40000000
SPIN = 200000
LB = 35152
IMG = {}
off = 0
for name, n in (("L1", 44), ("L2", 44), ("L3", 44), ("Q4", 28)):
    IMG[name] = off; off += n * 1024
WS_PART = off
WS_STAMP = WS_PART + 16 * 13 * 1024
C_L = {1: 0, 2: 4, 3: 8}; C_Q = 12; C_CLR = 128
BUFA, BUFB = 0, 45056
D0, D1 = 90112, 118784
MISC = 147456
LDS_TOTAL = MISC + 256
S0STR = 1040
QPAIRS = [(p, q) for p in range(13) for q in range(p, 13)]
S_IDX, S_TAB, S_WS, S_W1, S_B1, S_W2, S_OUT, S_DBG, S_BO, S_WC, S_WO = 4, 8, 12, 16, 20, 24, 28, 32, 36, 40, 44
S_G, S_R, S_WAVE, S_J = 70, 71, 83, 3
S_HDR = 48
S_EX = 60
S_K = 64
S_KC = 56 + 2
S_KC = 76
S_T = 72
S_MASK = 80
S_C1 = 81
S_SB = 82
S_ST = 84
class P: pass
PAR = P()
PAR.chunks = [7, 7, 6, 6]
PAR.gsplit = 4
PAR.bar4 = 28
PAR.pload = 24
class G:
    def __init__(self, stamps=False):
        self.L = []; self.stamps = stamps; self.nst = 0; self.nl = 0
    def e(self, s): self.L.append("    " + s)
    def lab(self, s): self.L.append(s + ":")
    def newlab(self, s): self.nl += 1; return f"L_{s}_{self.nl}"
    def stamp(self):
        if self.stamps:
            assert self.nst < 8
            self.e(f"s_memrealtime s[{S_ST+2*self.nst}:{S_ST+2*self.nst+1}]"); self.nst += 1
    def flush_stamps(self, vt, va):
        if not self.stamps: return
        self.e("s_waitcnt lgkmcnt(0)")
        self.e(f"s_lshl_b32 s{S_T}, s2, 3"); self.e(f"s_add_u32 s{S_T}, s{S_T}, s{S_WAVE}"); self.e(f"s_lshl_b32 s{S_T}, s{S_T}, 6")
        self.e(f"s_add_u32 s{S_T}, s{S_T}, {WS_STAMP}")
        self.e(f"v_mov_b32 v{va}, 0")
        for i in range(self.nst):
            self.e(f"v_mov_b32 v{vt}, s{S_ST+2*i}")
            self.e(f"buffer_store_dword v{vt}, v{va}, s[{S_WS}:{S_WS+3}], s{S_T} offen offset:{4*i}")
        self.nst = 0
def vr(a, n): return f"v[{a}:{a+n-1}]"
def sr(a, n=4): return f"s[{a}:{a+n-1}]"
DPPALL = "row_mask:0xf bank_mask:0xf"

def prologue(g):
    e = g.e
    e("s_cmp_ge_u32 s2, 256")
    e("s_cbranch_scc1 L_end")
    g.stamp()
    e("s_load_dwordx16 s[48:63], s[0:1], 0")
    e("s_load_dwordx4 s[64:67], s[0:1], 64")
    e("s_load_dwordx2 s[68:69], s[0:1], 80")
    e("v_lshrrev_b32 v1, 6, v0")
    e("v_and_b32 v0, 63, v0")
    e(f"v_readfirstlane_b32 s{S_WAVE}, v1")
    e(f"s_and_b32 s{S_T}, s2, 7")
    e(f"s_lshr_b32 s{S_T+1}, s2, 3")
    e(f"s_lshr_b32 s{S_G}, s{S_T+1}, 4")
    e(f"s_lshl_b32 s{S_T}, s{S_T}, 1")
    e(f"s_add_u32 s{S_G}, s{S_G}, s{S_T}")
    e(f"s_and_b32 s{S_R}, s{S_T+1}, 15")
    e(f"s_mov_b32 s{S_MASK}, 0x7fff7fff")
    srds = ((S_IDX, 48, 4096*104), (S_TAB, 50, 6400000), (S_WC, 52, LB), (S_WO, 54, 312), (S_W1, 56, 832*1664), (S_B1, 58, 1664), (S_W2, 60, 1664),
            (S_BO, 62, 2), (S_OUT, 64, 8192), (S_DBG, 66, 256), (S_WS, 68, 1 << 28))
    for srd, src, nbytes in srds:
        e(f"s_mov_b32 s{srd+2}, {nbytes}"); e(f"s_mov_b32 s{srd+3}, 0x00020000")
    e("s_waitcnt lgkmcnt(0)")
    for srd, src, nbytes in srds:
        e(f"s_mov_b64 s[{srd}:{srd+1}], s[{src}:{src+1}]")
    e(f"s_cmp_ge_u32 s{S_WAVE}, 4")
    e("s_cbranch_scc1 L_helper")

ACC, ACC2, XR, UR, BR, AR, SC, LG, TM = 4, 68, 132, 188, 216, 232, 244, 248, 252
def X(k, p): return XR + 14 * k + p
def EV(k): return XR + 14 * k + 13
def U(k, t): return UR + 7 * k + t
def cin(g):
    e = g.e
    e("s_setprio 1")
    e(f"s_lshl_b32 s{S_T}, s{S_G}, 8"); e(f"s_lshl_b32 s{S_T+1}, s{S_R}, 4"); e(f"s_add_u32 s{S_T}, s{S_T}, s{S_T+1}")
    e(f"s_lshl_b32 s{S_T+1}, s{S_WAVE}, 2"); e(f"s_add_u32 s{S_SB}, s{S_T}, s{S_T+1}")
    e(f"s_mul_i32 s{S_T}, s{S_SB}, 104")
    e("v_lshrrev_b32 v1, 4, v0")
    e("v_bfe_u32 v2, v0, 2, 2")
    e("v_and_b32 v3, 3, v0")
    e("v_mul_u32_u24 v4, 104, v1")
    e("v_mad_u32_u24 v4, v2, 28, v4")
    I = 8
    e(f"buffer_load_dwordx4 {vr(I,4)}, v4, {sr(S_IDX)}, s{S_T} offen")
    e(f"buffer_load_dwordx3 {vr(I+4,3)}, v4, {sr(S_IDX)}, s{S_T} offen offset:16")
    e("v_lshlrev_b32 v5, 4, v3")
    e("v_cmp_eq_u32 vcc, 3, v2")
    e(f"v_mov_b32 v6, {OOB}")
    e("v_cndmask_b32 v6, 0, v6, vcc")
    e("v_add_u32 v6, v6, v5")
    e(f"s_mul_i32 s{S_T+1}, s{S_WAVE}, 7168"); e(f"s_add_u32 s{S_T+1}, s{S_T+1}, {D1}")
    e("v_mul_u32_u24 v7, 1792, v1")
    e("v_mad_u32_u24 v16, v2, 7, 0")
    e("v_lshl_add_u32 v7, v16, 6, v7")
    e(f"v_add3_u32 v7, v7, v5, s{S_T+1}")
    e("v_lshrrev_b32 v16, 1, v1")
    e("v_xor_b32 v16, v16, v2")
    e("v_lshlrev_b32 v16, 6, v16")
    e("v_and_b32 v17, 1, v1")
    e("v_lshl_add_u32 v16, v17, 5, v16")
    e("v_lshl_add_u32 v16, v3, 3, v16")
    e(f"v_add_u32 v16, s{S_T+1}, v16")
    for k in range(4): e(f"v_mov_b32 v{LG+k}, 0")
    for i in range(16): e(f"v_mov_b32 v{BR+i}, 0")
    e("v_mov_b32 v22, 0x0b000b00")
    e("s_waitcnt vmcnt(0)")
    GR, MR = 68, 96
    for t in range(7):
        e(f"v_lshl_add_u32 v{I+t}, v{I+t}, 6, v{5 if t < 5 else 6}")
        e(f"buffer_load_dwordx4 {vr(GR+4*t,4)}, v{I+t}, {sr(S_TAB)}, 0 offen")
    g.stamp()
    e("s_barrier")
    for t in range(7):
        e(f"s_waitcnt vmcnt({6-t})")
        for i in range(4): e(f"v_and_b32 v{MR+4*t+i}, s{S_MASK}, v{GR+4*t+i}")
        if t == 0:
            e(f"v_pk_max_u16 v20, v{MR}, v{MR+1}"); e(f"v_pk_max_u16 v21, v{MR+2}, v{MR+3}")
        else:
            for i in range(4): e(f"v_pk_max_u16 v{20+(i&1)}, v{20+(i&1)}, v{MR+4*t+i}")
    g.stamp()
    e("v_pk_max_u16 v20, v20, v21")
    e("v_alignbit_b32 v21, v20, v20, 16")
    e("v_pk_max_u16 v20, v20, v21")
    for sh in (8, 4, 2, 1):
        e(f"v_max_u32_dpp v20, v20, v20 row_ror:{sh} {DPPALL}")
    e("v_and_b32 v20, 0x7f807f80, v20")
    e("v_pk_sub_u16 v20, v20, v22 clamp")
    for t in range(7):
        for i in range(4): e(f"v_pk_sub_u16 v{MR+4*t+i}, v{MR+4*t+i}, v20 clamp")
        for i in range(4): e(f"v_lshlrev_b32 v{MR+4*t+i}, 3, v{MR+4*t+i}")
        for i in range(4): e(f"v_bfi_b32 v{GR+4*t+i}, s{S_MASK}, v{MR+4*t+i}, v{GR+4*t+i}")
        e(f"ds_write_b128 v7, {vr(GR+4*t,4)} offset:{64*t}")
    for k in range(4): e(f"v_readlane_b32 s{S_EX+k}, v20, {16*k}")
    e("s_waitcnt lgkmcnt(0)")
    for k in range(4):
        for t in range(7):
            e(f"ds_read_b64_tr_b16 {vr(X(k,2*t),2)}, v16 offset:{k*1792+t*256}")
    for k in range(4):
        e(f"s_bfe_u32 s{S_EX+k}, s{S_EX+k}, 0x80007")
        e(f"s_sub_u32 s{S_EX+k}, s{S_EX+k}, 112")
    e("v_lshlrev_b32 v1, 4, v0")
    e("s_waitcnt lgkmcnt(0)")
    HW = lambda l: S_HDR + 2 * l
    HD = lambda l: S_HDR + 2 * l + 1
    HQ, HL = S_HDR + 8, S_HDR + 9
    for k in range(4):
        e(f"s_lshl_b32 s{S_T}, s{S_EX+k}, 1")
        e(f"v_mov_b32 v{EV(k)}, s{S_T}")
    e("s_barrier")
    g.stamp()

    ready = set()
    def quad_prod(k, rho):
        p, q = QPAIRS[rho]
        return lambda d: f"v_pk_mul_f16 v{d}, v{X(k,p)}, v{X(k,q)} op_sel_hi:[0,1]"
    def gen_prod(l):
        def f(k, rho):
            r, p = divmod(rho, 13)
            def mk(d):
                assert ('u', l, k, r) in ready, (l, k, r)
                if r & 1: return f"v_pk_mul_f16 v{d}, v{U(k,r>>1)}, v{X(k,p)} op_sel:[1,0] op_sel_hi:[1,1]"
                return f"v_pk_mul_f16 v{d}, v{U(k,r>>1)}, v{X(k,p)} op_sel_hi:[0,1]"
            return mk
        return f
    def lin_prod(k, t):
        b = 2 * t + 1 if 2 * t + 1 < 13 else 2 * t
        return lambda d: f"v_pack_b32_f16 v{d}, v{X(k,2*t)}, v{X(k,b)}"
    def steps(nprod, prod, acc, base, first0, stride=1024, needs=None):
        out = []
        ns = (nprod + 3) // 4
        for s in range(ns):
            out.append(dict(lds=base + stride * s, needs=needs if s == 0 else None, jobs=[dict(acc=acc + 16 * k, zero=(first0 and s == 0),
                       prods=[prod(k, rho) for rho in range(4 * s, min(4 * s + 4, nprod))]) for k in range(4)]))
        return out
    def mix(acc, l, k, r):
        return (f"v_fma_mix{'hi' if r & 1 else 'lo'}_f16 v{U(k,r>>1)}, v{acc+16*k+r}, v{SC+k}, 0", ('u', l + 1, k, r))
    def head(acc, l):
        o = []
        for j in range(6):
            for k in range(4):
                a = acc + 16 * k
                if j == 0: o.append(f"v_max3_f32 v{SC+k}, |v{a}|, |v{a+1}|, |v{a+2}|")
                else: o.append(f"v_max3_f32 v{SC+k}, v{SC+k}, |v{a+2*j+1}|, |v{a+2*j+2}|")
        for k in range(4): o.append(f"v_mov_b32 v{TM+k}, v{SC+k}")
        for k in range(4): o.append(f"v_permlane32_swap_b32 v{SC+k}, v{TM+k}")
        for k in range(4): o.append(f"v_max_f32 v{SC+k}, v{SC+k}, v{TM+k}")
        for k in range(4): o.append(f"v_frexp_exp_i32_f32 v{TM+k}, v{SC+k}")
        for k in range(4): o.append(f"v_sub_u32 v{SC+k}, 8, v{TM+k}")
        for k in range(4): o.append(f"v_ldexp_f32 v{SC+k}, 1.0, v{SC+k}")
        for k in range(4): o.append(mix(acc, l, k, 0))
        return o
    def tailb(acc, l):
        o = []
        for k in range(4): o.append(mix(acc, l, k, 1))
        if l > 0:
            for k in range(4): o.append(f"v_ldexp_f32 v{acc+16*k+15}, v{acc+16*k+15}, v{EV(k)}")
        for k in range(4):
            o.append(f"v_add3_u32 v{EV(k)}, v{EV(k)}, v{TM+k}, s{S_K+k}")
            if l > 0: o.append(f"v_add_f32 v{LG+k}, v{LG+k}, v{acc+16*k+15}")
        for r in range(2, 13):
            for k in range(4): o.append(mix(acc, l, k, r))
        o.append((None, ('free', l)))
        return o
    def emit(s):
        if isinstance(s, tuple):
            ready.add(s[1]); s = s[0]
        if s: e(s)
    def kconst(l):
        if l == 0: e(f"s_add_u32 s{S_T}, s{HW(0)}, s{HD(1)}")
        else:
            e(f"s_sub_u32 s{S_T}, s{HW(l)}, s{HD(l)}"); e(f"s_add_u32 s{S_T}, s{S_T}, s{HD(l+1)}")
        e(f"s_sub_u32 s{S_T}, s{S_T}, 8")
        for k in range(4): e(f"s_add_u32 s{S_K+k}, s{S_T}, s{S_EX+k}")
    state = dict(areg=0, breg=0, base=0)
    def rel(addr):
        r = addr - state['base']
        if r < 0 or r > 65535:
            nb = max(addr - 45056, 0) if r > 0 else addr
            nb = min(nb, addr)
            e(f"v_add_u32 v1, {(nb - state['base']) & 0xffffffff}, v1"); state['base'] = nb; r = addr - nb
        return r
    def aread(st):
        st['a'] = AR + 4 * (state['areg'] % 3); state['areg'] += 1
        r = rel(st['lds'])
        e(f"ds_read_b128 {vr(st['a'],4)}, v1 offset:{r}")
    def prods(job):
        job['b'] = BR + 4 * (state['breg'] % 4); state['breg'] += 1
        return [p(job['b'] + i) for i, p in enumerate(job['prods'])]
    def run(seq, nxt, fill=None, events=None, post=None):
        jobs = [(si, j) for si, st in enumerate(seq) for j in st['jobs']]
        for j in range(2):
            for s in prods(jobs[j][1]): e(s)
        fq = []
        allst = seq + nxt
        for n, (si, job) in enumerate(jobs):
            k = n % 4
            if k == 0:
                if fill and si in fill: fq += fill[si]
                waited = False
                if events and si in events: waited = events[si]()
                pend = sum(1 for st in allst[si+1:si+2] if 'a' in st)
                if not waited: e(f"s_waitcnt lgkmcnt({pend})")
                if seq[si]['needs']: assert seq[si]['needs'] in ready, seq[si]['needs']
            c = "0" if job['zero'] else vr(job['acc'], 16)
            e(f"v_mfma_f32_32x32x16_f16 {vr(job['acc'],16)}, {vr(seq[si]['a'],4)}, {vr(job['b'],4)}, {c}")
            budget = 6
            if k == 0:
                if post and si in post: post[si]()
                if si + 2 < len(allst) and 'a' not in allst[si + 2]:
                    aread(allst[si + 2]); budget -= 1
            if k == 3: budget -= 1
            if n + 2 < len(jobs):
                ps = prods(jobs[n + 2][1])
                for s in ps: e(s)
                budget -= len(ps)
            while budget > 0 and fq:
                emit(fq.pop(0)); budget -= 1
            while fq and isinstance(fq[0], tuple) and fq[0][0] is None: emit(fq.pop(0))
        for s in fq: emit(s)
    S0 = steps(91, quad_prod, ACC, BUFA, True, stride=S0STR)
    L1 = steps(169, gen_prod(1), ACC2, BUFB, True)
    L2 = steps(169, gen_prod(2), ACC, BUFA, True, needs=('free', 0))
    LN = steps(7, lin_prod, ACC2, D0 + 24 * 1024, True, needs=('free', 1))
    Q4 = steps(91, quad_prod, ACC2, D0, False, needs='ldx')
    L3 = steps(169, gen_prod(3), ACC, BUFB, True, needs=('free', 2))
    def bar():
        e("s_waitcnt lgkmcnt(0)"); e("s_barrier"); return True
    def bar_only():
        e("s_barrier"); return False
    def hdr_read(addr, n=2):
        def f():
            r = rel(addr)
            e(f"ds_read_b64 v[2:3], v1 offset:{r}")
        return f
    def hdr_get(sa, sb):
        def f():
            e(f"v_readfirstlane_b32 s{sa}, v2")
            if sb is not None: e(f"v_readfirstlane_b32 s{sb}, v3")
        return f
    aread(S0[0]); aread(S0[1])
    run(S0, L1[:2], events={21: bar}, post={2: hdr_read(BUFA + 23 * S0STR + 512), 3: hdr_get(HW(0), None),
                                            21: hdr_read(BUFB + 43 * 1024), 22: hdr_get(HW(1), HD(1))})
    g.stamp()
    kconst(0)
    for s in head(ACC, 0): emit(s)
    run(L1, L2[:2], fill={0: tailb(ACC, 0)}, events={21: bar_only, 41: bar},
        post={41: hdr_read(BUFA + 43 * 1024), 42: hdr_get(HW(2), HD(2))})
    g.stamp()
    kconst(1)
    for s in head(ACC2, 1): emit(s)
    B4 = PAR.bar4; LNPOS = B4 + 2
    seq = L2[:LNPOS] + LN + L2[LNPOS:] + Q4 + L3
    nQ = 45; nL3 = 45 + 23
    ldx = [f"v_ldexp_f32 v{ACC2+16*k+r}, v{ACC2+16*k+r}, s{S_KC+k}" for k in range(4) for r in range(13)] + [(None, 'ldx')]
    PV, PA = 2, 3
    def pload():
        e(f"buffer_load_dword v{PV}, v{PA}, {sr(S_WS)}, s{S_T+3} offen sc1")
    def getq():
        hdr_get(HQ, HL)()
        for k in range(4):
            e(f"s_sub_u32 s{S_T}, s{HL}, s{HQ}"); e(f"s_sub_u32 s{S_T}, s{S_T}, s{S_EX+k}")
            e(f"s_min_i32 s{S_KC+k}, s{S_T}, 50")
        hdr_read(D0 + 23 * 1024 + 8)()
    def get3():
        hdr_get(HW(3), HD(3))(); kconst(2)
    pre = []
    pre.append("v_bfe_u32 v2, v0, 4, 1"); pre.append("v_lshrrev_b32 v3, 5, v0"); pre.append("v_lshl_add_u32 v2, v2, 1, v3")
    pre.append("v_and_b32 v3, 15, v0"); pre.append("v_cmp_lt_u32 vcc, 12, v3"); pre.append("v_lshlrev_b32 v3, 10, v3")
    pre.append("v_lshl_add_u32 v3, v2, 2, v3"); pre.append(f"v_mov_b32 v2, {OOB}"); pre.append("v_cndmask_b32 v3, v3, v2, vcc")
    w0 = []
    for k in range(4): w0.append(f"v_ldexp_f32 v{ACC2+16*k+15}, v{ACC2+16*k+15}, s{S_K+k}")
    for k in range(4): w0.append(f"v_add_f32 v{LG+k}, v{LG+k}, v{ACC2+16*k+15}")
    def k_w0():
        for k in range(4):
            e(f"s_lshl_b32 s{S_T}, s{S_EX+k}, 1"); e(f"s_add_u32 s{S_K+k}, s{S_T}, s{HD(0)}")
        e(f"s_mul_i32 s{S_T+3}, s{S_G}, {13*1024}"); e(f"s_and_b32 s{S_T}, s{S_SB}, 255"); e(f"s_lshl_b32 s{S_T}, s{S_T}, 2")
        e(f"s_add_u32 s{S_T+3}, s{S_T+3}, s{S_T}"); e(f"s_add_u32 s{S_T+3}, s{S_T+3}, {WS_PART}")
    def k_fin():
        for k in range(4):
            e(f"s_sub_u32 s{S_T}, s{HW(3)}, s{HD(3)}"); e(f"s_add_u32 s{S_T}, s{S_T}, s{HL}"); e(f"s_add_u32 s{S_T}, s{S_T}, s{S_EX+k}")
            e(f"s_sub_u32 s{S_K+k}, s{S_T}, s{S_KC+k}")
    BO = ACC2 + 14
    fin = [f"v_add_u32 v{TM+k}, s{S_K+k}, v{EV(k)}" for k in range(4)] + [f"v_mov_b32 v{BO-1}, 0"]
    def boload():
        e(f"buffer_load_ushort v{BO}, v{BO-1}, {sr(S_BO)}, 0 offen")
    run(seq, [], fill={0: tailb(ACC2, 1), LNPOS + 3: ldx, nQ + 1: head(ACC, 2) + tailb(ACC, 2), nL3 + 2: pre + w0, nL3 + 8: fin},
        events={B4: bar_only},
        post={B4: hdr_read(D0 + 23 * 1024), B4 + 1: getq, B4 + 2: hdr_get(HD(0), None), B4 + 3: hdr_read(BUFB + 43 * 1024), B4 + 4: get3,
              nL3 + 1: k_w0, nL3 + 7: k_fin, nL3 + 12: boload, nL3 + PAR.pload: pload})
    g.stamp()
    for r in range(13):
        for k in range(4):
            if r == 0: e(f"v_mul_f32 v{SC+k}, v{ACC+16*k}, v{ACC2+16*k}")
            else: e(f"v_fmac_f32 v{SC+k}, v{ACC+16*k+r}, v{ACC2+16*k+r}")
    for k in range(4): e(f"v_ldexp_f32 v{ACC+16*k+15}, v{ACC+16*k+15}, v{EV(k)}")
    for k in range(4): e(f"v_ldexp_f32 v{SC+k}, v{SC+k}, v{TM+k}")
    for k in range(4): e(f"v_add_f32 v{LG+k}, v{LG+k}, v{ACC+16*k+15}")
    for k in range(4): e(f"v_add_f32 v{LG+k}, v{LG+k}, v{SC+k}")
    e(f"v_permlane32_swap_b32 v{LG}, v{LG+1}"); e(f"v_permlane32_swap_b32 v{LG+2}, v{LG+3}")
    e(f"v_add_f32 v{LG}, v{LG}, v{LG+1}"); e(f"v_add_f32 v{LG+2}, v{LG+2}, v{LG+3}")
    e(f"v_permlane16_swap_b32 v{LG}, v{LG+2}")
    e(f"v_add_f32 v{LG}, v{LG}, v{LG+2}")
    e(f"s_mov_b32 s{S_T}, {SPIN}")
    g.lab("L_pcheck")
    e("s_waitcnt vmcnt(0)")
    e(f"v_cmp_eq_u32 vcc, -1, v{PV}")
    e("s_nop 1")
    e("s_cbranch_vccz L_pok")
    e("s_sleep 4")
    pload()
    e(f"s_sub_u32 s{S_T}, s{S_T}, 1")
    e("s_cbranch_scc0 L_pcheck")
    e("s_waitcnt vmcnt(0)")
    g.lab("L_pok")
    e(f"v_add_f32 v{LG}, v{LG}, v{PV}")
    for sh in (8, 4, 2, 1):
        e(f"v_add_f32_dpp v{LG}, v{LG}, v{LG} row_ror:{sh} {DPPALL}")
    e(f"v_lshlrev_b32 v{BO}, 16, v{BO}")
    e(f"v_add_f32 v{LG}, v{LG}, v{BO}")
    e(f"v_cvt_pk_bf16_f32 v{LG}, v{LG}, v{LG}")
    e(f"v_lshrrev_b32 v{PA}, 1, v{PA}")
    e(f"v_cmp_lt_u32 vcc, 7, v{PA}")
    e(f"v_mov_b32 v2, {OOB}")
    e(f"v_cndmask_b32 v{PA}, v{PA}, v2, vcc")
    e(f"s_lshl_b32 s{S_T}, s{S_SB}, 1")
    e(f"buffer_store_short v{LG}, v{PA}, {sr(S_OUT)}, s{S_T} offen")
    g.stamp()
    g.flush_stamps(4, 5)
    e("s_endpgm")

HACC, HX, HI, HW_, HT = 4, 68, 180, 208, 232
V_TR0, V_TR1, V_DMA, V_WSRC, V_H16, V_L0, V_HROW = 248, 249, 250, 251, 252, 253, 254
ID, QA, QSH, QS, W0R, PK = 4, 12, 19, 20, 180, 236
S_WP, S_L, S_FR, S_E0, S_E1, S_E2 = 48, 49, 50, 51, 52, 53
S_LC = 56
def dma_img(g, name, nfr, lds):
    e = g.e; per = nfr // 4
    e(f"s_mul_i32 s{S_T}, s{S_J}, {per*1024}")
    for i in range(per):
        if i % 4 == 0:
            e(f"s_add_u32 s{S_T+1}, s{S_T}, {IMG[name] + i*1024}")
            e(f"s_add_u32 m0, s{S_T}, {lds + i*1024}")
        e(f"buffer_load_dwordx4 v{V_DMA}, {sr(S_WS)}, s{S_T+1} offen offset:{(i%4)*1024} sc1 lds")
    return per
def poll(g, checks, only0=True, soff=None):
    e = g.e
    done = g.newlab("pd"); top = g.newlab("pt"); slp = g.newlab("ps")
    if only0:
        e(f"s_cmp_lg_u32 s{S_J}, 0"); e(f"s_cbranch_scc1 {done}")
    e("v_mov_b32 v1, 0")
    e(f"s_mov_b32 s{S_T}, {SPIN}")
    g.lab(top)
    for i, (o, n, so) in enumerate(checks):
        e(f"buffer_load_dword v{2+i}, v1, {sr(S_DBG)}, {so} offen offset:{o} sc1")
    e("s_waitcnt vmcnt(0)")
    for i, (o, n, so) in enumerate(checks):
        e(f"v_readfirstlane_b32 s{S_T+1}, v{2+i}")
        e(f"s_cmp_lt_u32 s{S_T+1}, {n}")
        e(f"s_cbranch_scc1 {slp}")
    e(f"s_branch {done}")
    g.lab(slp)
    e("s_sleep 6")
    e(f"s_sub_u32 s{S_T}, s{S_T}, 1")
    e(f"s_cbranch_scc0 {top}")
    g.lab(done)
def signal(g, off, so="0"):
    e = g.e; done = g.newlab("sg")
    e(f"s_cmp_lg_u32 s{S_J}, 0"); e(f"s_cbranch_scc1 {done}")
    e("v_mov_b32 v1, 1")
    e(f"buffer_atomic_add v1, v{V_L0}, {sr(S_DBG)}, {so} offen offset:{off} sc1")
    g.lab(done)
def rowmax(g, v, op="v_max_u32_dpp"):
    for sh in (8, 4, 2, 1): g.e(f"{op} v{v}, v{v}, v{v} row_ror:{sh} {DPPALL}")
def wavemax_exp(g, v, sdst):
    e = g.e
    rowmax(g, v)
    e(f"v_readlane_b32 s{sdst}, v{v}, 0"); e(f"v_readlane_b32 s{S_T}, v{v}, 16"); e(f"s_max_u32 s{sdst}, s{sdst}, s{S_T}")
    e(f"v_readlane_b32 s{S_T}, v{v}, 32"); e(f"s_max_u32 s{sdst}, s{sdst}, s{S_T}")
    e(f"v_readlane_b32 s{S_T}, v{v}, 48"); e(f"s_max_u32 s{sdst}, s{sdst}, s{S_T}")
    e(f"s_lshr_b32 s{sdst}, s{sdst}, 23"); e(f"s_sub_u32 s{sdst}, s{sdst}, 126")
def pack_round(g, acc, off):
    e = g.e
    for t in range(7): e(f"v_fma_mixlo_f16 v{PK+t}, v{acc+2*t}, v{QS+t}, 0")
    for t in range(7): e(f"v_fma_mixhi_f16 v{PK+t}, v{acc+2*t+1}, v{QS+t}, 0")
    for t in range(7): e(f"v_alignbit_b32 v{PK+t}, v{PK+t}, v{PK+t}, v{QSH}")
    for t in range(7): e(f"ds_write_b32 v{QA+t}, v{PK+t} offset:{off}")
def helper_common(g):
    e = g.e
    e("s_setprio 2")
    e(f"s_sub_u32 s{S_J}, s{S_WAVE}, 4")
    e("v_and_b32 v2, 31, v0"); e("v_lshrrev_b32 v3, 5, v0")
    e(f"v_lshlrev_b32 v{V_H16}, 4, v3")
    e(f"v_mad_u32_u24 v1, v2, 52, v{V_H16}")
    e(f"s_mul_i32 s{S_T}, s{S_J}, 1352")
    for t in range(7):
        if t < 6: e(f"s_add_u32 s{S_T+1}, s{S_T}, {(13*(t&1) + 4*(t>>1))*1352}")
        else:
            e(f"s_mul_i32 s{S_T+1}, s{S_J}, {13*1352}"); e(f"s_add_u32 s{S_T+1}, s{S_T+1}, {12*1352}")
        for s in range(2):
            e(f"buffer_load_dwordx4 {vr(W0R+8*t+4*s,4)}, v1, {sr(S_WC)}, s{S_T+1} offen offset:{32*s}")
    e("v_lshrrev_b32 v4, 3, v2"); e("v_and_b32 v5, 3, v2"); e("v_lshl_add_u32 v4, v4, 2, v5")
    e("v_bfe_u32 v5, v2, 2, 1"); e(f"v_mad_u32_u24 v{V_HROW}, v5, 13, v4")
    e("v_cmp_lt_u32 vcc, 12, v4"); e("v_mov_b32 v5, 0x100000"); e(f"v_cndmask_b32 v{V_HROW}, v{V_HROW}, v5, vcc")
    e("v_cmp_ne_u32 s[72:73], 31, v2"); e("s_and_b64 vcc, vcc, s[72:73]")
    e(f"v_lshlrev_b32 v{V_DMA}, 4, v0"); e(f"v_mov_b32 v5, {OOB}"); e(f"v_cndmask_b32 v{V_DMA}, v{V_DMA}, v5, vcc")
    e("v_cmp_eq_u32 vcc, 0, v0"); e(f"v_cndmask_b32 v{V_L0}, v5, 0, vcc")
    e("v_lshrrev_b32 v27, 1, v2"); e("v_and_b32 v28, 1, v2"); e(f"v_lshlrev_b32 v{QSH}, 4, v28")
    e("v_sub_u32 v29, 25, v27"); e("v_mul_u32_u24 v29, v29, v27"); e("v_lshrrev_b32 v29, 1, v29")
    e(f"s_lshl_b32 s{S_T}, s{S_J}, 4")
    e(f"v_lshl_add_u32 v28, v28, 9, s{S_T}")
    e(f"v_lshl_add_u32 v30, v0, 2, s{S_T}"); e(f"v_add_u32 v30, {BUFA + 24*S0STR}, v30")
    e("v_mov_b32 v33, 0.5")
    for t in range(7):
        qb = 4 * (t >> 1) + (t & 1)
        e(f"v_lshl_add_u32 v31, v3, 1, {qb}")
        e("v_add_u32 v32, v29, v31")
        e(f"v_lshrrev_b32 v{QA+t}, 2, v32"); e(f"v_mul_u32_u24 v{QA+t}, {S0STR}, v{QA+t}")
        e("v_and_b32 v32, 3, v32"); e("v_lshl_add_u32 v32, v32, 2, v28"); e(f"v_add_u32 v{QA+t}, v{QA+t}, v32")
        e("v_cmp_lt_u32 vcc, v31, v27")
        if t == 6:
            e("v_cmp_lt_u32 s[72:73], 12, v31"); e("s_or_b64 vcc, vcc, s[72:73]")
        e(f"v_cndmask_b32 v{QA+t}, v{QA+t}, v30, vcc")
        e("v_cmp_eq_u32 vcc, v31, v27"); e(f"v_cndmask_b32 v{QS+t}, 1.0, v33, vcc")
    e("v_lshlrev_b32 v31, 3, v3"); e("v_sub_u32 v31, v2, v31")
    e("v_mov_b32 v32, 0x3f80"); e(f"v_lshlrev_b32 v32, v{QSH}, v32")
    e("v_lshrrev_b32 v31, 1, v31")
    for s in range(2):
        for i in range(4):
            e(f"v_cmp_eq_u32 vcc, {8*s+i}, v31"); e(f"v_cndmask_b32 v{ID+4*s+i}, 0, v32, vcc")
def s0_mfma(g, after):
    e = g.e
    for t in range(7):
        e(f"s_waitcnt vmcnt({2*(6-t) + after})")
        a = HX + 16 * t; w = W0R + 8 * t
        e(f"v_mfma_f32_32x32x16_bf16 {vr(a,16)}, {vr(w,4)}, {vr(ID,4)}, 0")
        e(f"v_mfma_f32_32x32x16_bf16 {vr(a,16)}, {vr(w+4,4)}, {vr(ID+4,4)}, {vr(a,16)}")
        e(f"v_mfma_f32_32x32x16_bf16 {vr(a,16)}, {vr(ID,4)}, {vr(w,4)}, {vr(a,16)}")
        e(f"v_mfma_f32_32x32x16_bf16 {vr(a,16)}, {vr(ID+4,4)}, {vr(w+4,4)}, {vr(a,16)}")
        if t > 0: s0_max(g, t - 1)
    s0_max(g, 6)
    rowmax(g, 1)
    e("v_lshrrev_b32 v2, 4, v0"); e(f"s_lshl_b32 s{S_T}, s{S_J}, 4"); e(f"s_add_u32 s{S_T}, s{S_T}, {MISC}")
    e(f"v_lshl_add_u32 v2, v2, 2, s{S_T}")
    e("ds_write_b32 v2, v1")
def s0_max(g, t):
    a = HX + 16 * t
    for i in range(7):
        if t == 0 and i == 0: g.e(f"v_max_f32 v1, |v{a}|, |v{a+1}|")
        else: g.e(f"v_max3_f32 v1, v1, |v{a+2*i}|, |v{a+2*i+1}|")
def s0_pack(g):
    e = g.e
    e("v_and_b32 v2, 15, v0"); e("v_lshlrev_b32 v2, 2, v2"); e(f"v_add_u32 v2, {MISC}, v2")
    e("ds_read_b32 v1, v2")
    e("v_lshlrev_b32 v3, 4, v0"); e(f"v_mov_b32 v{PK}, 0")
    e(f"ds_write_b32 v3, v{PK} offset:{BUFA + 22*S0STR + 12}")
    e("s_waitcnt lgkmcnt(1)")
    rowmax(g, 1)
    e("v_lshrrev_b32 v1, 23, v1")
    e("v_max_u32 v1, 14, v1")
    e("v_sub_u32 v2, 141, v1")
    e("v_subrev_u32 v1, 141, v1")
    e(f"ds_write_b32 v3, v1 offset:{BUFA + 23*S0STR + 512}")
    for t in range(7): e(f"v_ldexp_f32 v{QS+t}, v{QS+t}, v2")
    for t in range(7):
        if t == 6:
            e(f"s_cmp_eq_u32 s{S_J}, 1"); e(f"s_cselect_b32 s{S_T}, 48, 0")
            for i in range(7): e(f"v_add_u32 v{QA+i}, s{S_T}, v{QA+i}")
        pack_round(g, HX + 16 * t, 16 * (8 * (t >> 1) + 4 * (t & 1)))

def helper_dnn(g):
    e = g.e
    CH = PAR.chunks
    f0 = [sum(CH[:c]) for c in range(5)]
    def dma_w(c):
        Dc = (D0, D1)[c & 1]
        e(f"s_lshl_b32 s{S_T}, s{S_J}, 10")
        for fl in range(CH[c]):
            e(f"s_add_u32 m0, s{S_T}, {Dc + fl*4096}")
            e(f"s_mov_b32 s{S_T+1}, {(f0[c]+fl)*53248}")
            e(f"buffer_load_dwordx4 v{V_WSRC}, {sr(S_W1)}, s{S_T+1} offen lds")
        return CH[c]
    def xb(fl, tile, t): return HX + 16 * fl + 8 * tile + 4 * t
    def gather(f, fl):
        a, b = HI + f, HT + (f & 3)
        e(f"v_mov_b32 v{b}, v{a}")
        e(f"v_permlane32_swap_b32 v{a}, v{b}")
        e(f"v_lshl_add_u32 v{a}, v{a}, 6, v{V_H16}")
        e(f"v_lshl_add_u32 v{b}, v{b}, 6, v{V_H16}")
        for tile, ad in ((0, a), (1, b)):
            for t in range(2):
                e(f"buffer_load_dwordx4 {vr(xb(fl,tile,t),4)}, v{ad}, {sr(S_TAB)}, 0 offen offset:{32*t}")
    wring = [0]
    def wread(c, ks):
        Dc = (D0, D1)[c & 1]
        base = HW_ + 8 * (wring[0] % 3); wring[0] += 1
        for a, ad in ((0, V_TR0), (1, V_TR1)):
            for rd in range(2):
                e(f"ds_read_b64_tr_b16 {vr(base+4*a+2*rd,2)}, v{ad} offset:{Dc - D0 + ks*2048 + rd*512}")
        return base
    def chunk(c, mid):
        nks = 2 * CH[c]; ng = 0
        bufs = {0: wread(c, 0), 1: wread(c, 1)}
        for ks in range(nks):
            fl, t = divmod(ks, 2)
            if mid is not None and t == 0: e(f"s_waitcnt vmcnt({min(63, 4*(CH[c]-1-fl) + mid + ng)})")
            e(f"s_waitcnt lgkmcnt({4 if ks + 1 < nks else 0})")
            for a in range(2):
                for tile in range(2):
                    acc = HACC + 32 * tile + 16 * a
                    e(f"v_mfma_f32_32x32x16_bf16 {vr(acc,16)}, {vr(bufs[ks]+4*a,4)}, {vr(xb(fl,tile,t),4)}, {vr(acc,16)}")
                if a == 0 and ks + 2 < nks: bufs[ks + 2] = wread(c, ks + 2)
            if t == 1 and c + 1 < 4 and fl < CH[c + 1]: gather(f0[c + 1] + fl, fl); ng += 4
        return ng
    e("v_lshrrev_b32 v1, 3, v0"); e(f"s_lshl_b32 s{S_T}, s{S_J}, 3"); e(f"v_add_u32 v1, s{S_T}, v1")
    e("v_mul_u32_u24 v1, 1664, v1")
    e("v_bfe_u32 v2, v0, 4, 1"); e("v_lshlrev_b32 v2, 2, v2"); e("v_and_b32 v3, 7, v0"); e("v_xor_b32 v2, v2, v3")
    e("v_lshl_add_u32 v1, v2, 4, v1"); e(f"s_lshl_b32 s{S_SB}, s{S_R}, 7"); e(f"v_add_u32 v{V_WSRC}, s{S_SB}, v1")
    e("v_lshrrev_b32 v1, 5, v0"); e("v_bfe_u32 v2, v0, 2, 2")
    e("v_lshl_add_u32 v1, v1, 3, v2"); e("v_lshlrev_b32 v1, 7, v1")
    e("v_bfe_u32 v3, v0, 4, 1"); e("v_lshl_add_u32 v1, v3, 5, v1"); e("v_and_b32 v3, 3, v0"); e("v_lshl_add_u32 v1, v3, 3, v1")
    e("v_lshrrev_b32 v2, 1, v2"); e("v_lshl_add_u32 v1, v2, 6, v1")
    e(f"v_add_u32 v{V_TR0}, {D0}, v1"); e(f"v_xor_b32 v{V_TR1}, 64, v{V_TR0}")
    s0_mfma(g, 0)
    e("s_waitcnt lgkmcnt(0)")
    e("s_barrier")
    g.stamp()
    e(f"s_lshl_b32 s{S_T}, s{S_G}, 8"); e(f"s_lshl_b32 s{S_T+1}, s{S_J}, 6"); e(f"s_add_u32 s{S_T}, s{S_T}, s{S_T+1}")
    e(f"s_mul_i32 s{S_T}, s{S_T}, 104")
    e("v_mul_u32_u24 v1, 104, v0")
    for i in range(6): e(f"buffer_load_dwordx4 {vr(HI+4*i,4)}, v1, {sr(S_IDX)}, s{S_T} offen offset:{16*i}")
    e(f"buffer_load_dwordx2 {vr(HI+24,2)}, v1, {sr(S_IDX)}, s{S_T} offen offset:96")
    n1 = dma_w(0)
    e(f"v_lshrrev_b32 v1, 1, v{V_H16}")
    BT = HW_
    for a in range(2):
        for q in range(4):
            e(f"buffer_load_dwordx2 {vr(BT+8*a+2*q,2)}, v1, {sr(S_B1)}, s{S_SB} offen offset:{64*a+16*q}")
    n1 += 8
    S_PO = 48
    e(f"s_mul_i32 s{S_PO}, s{S_G}, 13"); e(f"s_add_u32 s{S_PO}, s{S_PO}, s{S_R}"); e(f"s_lshl_b32 s{S_PO}, s{S_PO}, 2"); e(f"s_add_u32 s{S_PO}, s{S_PO}, s{S_J}")
    e(f"s_lshl_b32 s{S_PO}, s{S_PO}, 8"); e(f"s_add_u32 s{S_PO}, s{S_PO}, {WS_PART}")
    e("v_lshlrev_b32 v1, 2, v0"); e("v_mov_b32 v2, -1")
    e(f"buffer_store_dword v2, v1, {sr(S_WS)}, s{S_PO} offen sc1"); n1 += 1
    s0_pack(g)
    e(f"s_waitcnt vmcnt({n1})")
    for fl in range(CH[0]): gather(fl, fl)
    e(f"s_waitcnt vmcnt({4*CH[0]})")
    for a in range(2):
        for i in range(8):
            e(f"v_lshlrev_b32 v{HACC+16*a+2*i}, 16, v{BT+8*a+i}")
            e(f"v_and_b32 v{HACC+16*a+2*i+1}, 0xffff0000, v{BT+8*a+i}")
    e("s_waitcnt lgkmcnt(0)")
    e("s_barrier")
    g.stamp()
    for i in range(32): e(f"v_mov_b32 v{HACC+32+i}, v{HACC+i}")
    e(f"s_lshl_b32 s{S_PO+1}, s{S_G}, 2")
    poll(g, [(C_L[1], 11, "0")], only0=False)
    g.stamp()
    dma_img(g, "L1", 44, BUFB)
    dma_w(1)
    signal(g, C_CLR, f"s{S_PO+1}")
    ng = chunk(0, None)
    poll(g, [(C_L[2], 11, "0")])
    g.stamp()
    e(f"s_waitcnt vmcnt({ng})"); e("s_barrier")
    n = dma_w(2)
    n += dma_img(g, "L2", 44, BUFA)
    ng = chunk(1, n)
    e(f"s_waitcnt vmcnt({ng})"); e("s_barrier")
    n = dma_w(3)
    ng = chunk(2, n)
    poll(g, [(C_L[3], 11, "0"), (C_Q, 9, "0")])
    g.stamp()
    e(f"s_waitcnt vmcnt({ng})"); e("s_barrier")
    n = dma_img(g, "Q4", 28, D0)
    n += dma_img(g, "L3", 44, BUFB)
    W2R = HX + 96
    assert CH[3] <= 6 and CH[2] <= 6
    e(f"v_lshrrev_b32 v1, 1, v{V_H16}")
    for a in range(2):
        for q in range(4):
            e(f"buffer_load_dwordx2 {vr(W2R+8*a+2*q,2)}, v1, {sr(S_W2)}, s{S_SB} offen offset:{64*a+16*q}")
    n += 8
    chunk(3, n)
    poll(g, [(C_CLR, 13, f"s{S_PO+1}")])
    e("s_setprio 0")
    e("s_waitcnt vmcnt(0)")
    W2F = HX
    for i in range(16):
        e(f"v_lshlrev_b32 v{W2F+2*i}, 16, v{W2R+i}")
        e(f"v_and_b32 v{W2F+2*i+1}, 0xffff0000, v{W2R+i}")
    c0 = 2 * 0.7978845608028654 * 1.4426950408889634
    e(f"s_mov_b32 s{S_C1}, {f2u(c0*0.044715):#x}")
    e(f"v_mov_b32 v2, {f2u(c0):#x}")
    T = HX + 32; SUM = HX + 48
    for i in range(4): e(f"v_mov_b32 v{SUM+i}, 0")
    def gelu(blk):
        rs = [HACC + 4 * blk + i for i in range(4)]
        tile = (4 * blk) // 32
        for i, r in enumerate(rs): e(f"v_mul_f32 v{T+i}, v{r}, v{r}")
        for i, r in enumerate(rs): e(f"v_fma_f32 v{T+i}, v{T+i}, s{S_C1}, v2")
        for i, r in enumerate(rs): e(f"v_mul_f32 v{T+i}, v{T+i}, v{r}")
        for i, r in enumerate(rs): e(f"v_exp_f32 v{T+i}, -v{T+i}")
        for i, r in enumerate(rs): e(f"v_mul_f32 v{r}, v{r}, v{W2F + (r - HACC) % 32}")
        for i, r in enumerate(rs): e(f"v_add_f32 v{T+i}, 1.0, v{T+i}")
        for i, r in enumerate(rs): e(f"v_rcp_f32 v{T+i}, v{T+i}")
        for i, r in enumerate(rs): e(f"v_fmac_f32 v{SUM + 2*tile + (i&1)}, v{r}, v{T+i}")
    for blk in range(PAR.gsplit): gelu(blk)
    e("s_barrier")
    g.stamp()
    for blk in range(PAR.gsplit, 16): gelu(blk)
    e(f"v_add_f32 v{SUM}, v{SUM}, v{SUM+1}"); e(f"v_add_f32 v{SUM+2}, v{SUM+2}, v{SUM+3}")
    e(f"v_permlane32_swap_b32 v{SUM}, v{SUM+2}")
    e(f"v_add_f32 v{SUM}, v{SUM}, v{SUM+2}")
    e(f"v_min_u32 v{SUM}, -2, v{SUM}")
    e("v_lshlrev_b32 v1, 2, v0")
    e(f"buffer_store_dword v{SUM}, v1, {sr(S_WS)}, s{S_PO} offen sc1")
    g.stamp()
    g.flush_stamps(4, 5)
    e("s_endpgm")

def helper_prod(g):
    e = g.e
    SCN, FR, WV = 28, 64, 244
    e(f"s_mul_i32 s{S_WP}, s{S_G}, 3"); e(f"s_add_u32 s{S_WP}, s{S_WP}, s{S_R}"); e(f"s_sub_u32 s{S_WP}, s{S_WP}, 13")
    e(f"s_mul_i32 s{S_L}, s{S_WP}, 94"); e(f"s_lshr_b32 s{S_L}, s{S_L}, 10")
    e(f"s_mul_i32 s{S_T}, s{S_L}, 11"); e(f"s_sub_u32 s{S_FR}, s{S_WP}, s{S_T}"); e(f"s_lshl_b32 s{S_FR}, s{S_FR}, 2"); e(f"s_add_u32 s{S_FR}, s{S_FR}, s{S_J}")
    e(f"s_add_u32 s{S_L}, s{S_L}, 1")
    e(f"s_mov_b64 s[{S_LC}:{S_LC+1}], s[{S_WC}:{S_WC+1}]"); e(f"s_mov_b32 s{S_LC+3}, 0x00020000")
    e(f"s_mul_i32 s{S_E2}, s{S_L}, {LB}")
    e(f"s_add_u32 s{S_LC+2}, s{S_E2}, {LB}")
    e("v_lshlrev_b32 v1, 4, v0")
    e(f"s_mul_i32 s{S_T}, s{S_J}, 9216"); e(f"s_add_u32 s{S_T}, s{S_T}, s{S_E2}")
    for i in range(9):
        if i % 4 == 0 and i: e(f"s_add_u32 s{S_T}, s{S_T}, 4096")
        e(f"buffer_load_dwordx4 {vr(SCN+4*i,4)}, v1, {sr(S_LC)}, s{S_T} offen offset:{(i%4)*1024}")
    e("v_lshrrev_b32 v3, 5, v0"); e("v_mul_u32_u24 v3, 676, v3"); e(f"s_movk_i32 s{S_T+1}, 1352")
    e(f"v_mad_u32_u24 v1, v{V_HROW}, s{S_T+1}, v3")
    e(f"s_lshl_b32 s{S_T}, s{S_FR}, 4"); e(f"s_add_u32 s{S_T}, s{S_T}, s{S_E2}")
    e(f"buffer_load_dwordx4 {vr(FR,4)}, v1, {sr(S_LC)}, s{S_T} offen")
    e(f"v_lshlrev_b32 v1, 1, v{V_HROW}"); e(f"s_mul_i32 s{S_T}, s{S_L}, 52")
    e(f"buffer_load_ushort v{WV}, v1, {sr(S_WO)}, s{S_T} offen")
    s0_mfma(g, 11)
    e("s_waitcnt vmcnt(2)")
    for i in range(36): e(f"v_and_b32 v{SCN+i}, s{S_MASK}, v{SCN+i}")
    for i in range(2, 36): e(f"v_pk_max_u16 v{SCN+(i&1)}, v{SCN+(i&1)}, v{SCN+i}")
    e(f"v_pk_max_u16 v1, v{SCN}, v{SCN+1}"); e("v_alignbit_b32 v3, v1, v1, 16"); e("v_pk_max_u16 v1, v1, v3")
    rowmax(g, 1)
    e("ds_write_b32 v2, v1 offset:64")
    e("s_waitcnt lgkmcnt(0)")
    e("s_barrier")
    g.stamp()
    e("v_and_b32 v2, 15, v0"); e("v_lshlrev_b32 v2, 2, v2"); e(f"v_add_u32 v2, {MISC+64}, v2")
    e("ds_read_b32 v1, v2")
    e("s_waitcnt lgkmcnt(0)")
    rowmax(g, 1)
    e(f"v_readfirstlane_b32 s{S_E0}, v1")
    e(f"s_bfe_u32 s{S_E0}, s{S_E0}, 0x80007")
    e(f"s_cmp_ge_u32 s{S_WP}, 33"); e("s_cbranch_scc1 L_nog")
    e("s_waitcnt vmcnt(0)")
    e(f"s_max_u32 s{S_T+2}, s{S_E0}, 30"); e(f"s_sub_u32 s{S_T+2}, s{S_T+2}, 30")
    e(f"s_mul_i32 s{S_T+3}, s{S_T+2}, 0x800080")
    e(f"s_cmp_lt_u32 s{S_FR}, 42"); e(f"s_cselect_b32 s{S_T+1}, -1, 0")
    for i in range(1, 4): e(f"v_and_b32 v{FR+i}, s{S_T+1}, v{FR+i}")
    for i in range(4): e(f"v_alignbit_b32 v{FR+i}, v{FR+i}, v{FR+i}, v{V_H16}")
    for i in range(4): e(f"v_and_b32 v{SCN+i}, s{S_MASK}, v{FR+i}")
    for i in range(4): e(f"v_pk_sub_u16 v{SCN+i}, v{SCN+i}, s{S_T+3} clamp")
    for i in range(4): e(f"v_lshlrev_b32 v{SCN+i}, 3, v{SCN+i}")
    for i in range(4): e(f"v_bfi_b32 v{FR+i}, s{S_MASK}, v{SCN+i}, v{FR+i}")
    e(f"v_lshlrev_b32 v{WV}, 16, v{WV}")
    e(f"v_and_b32 v1, 0x7fffffff, v{WV}")
    wavemax_exp(g, 1, S_E1)
    e(f"s_add_u32 s{S_E1}, s{S_E1}, 5"); e(f"s_sub_u32 s{S_T}, 0, s{S_E1}")
    e(f"v_ldexp_f32 v{WV}, v{WV}, s{S_T}")
    for i in range(8):
        sel = "op_sel:[1,0,0] op_sel_hi:[1,0,0]" if i & 1 else "op_sel_hi:[1,0,0]"
        e(f"v_fma_mix_f32 v{SCN+i}, v{FR+(i>>1)}, v{WV}, 0 {sel}")
    for sh in (1, 2, 4, 8):
        for i in range(8): e(f"v_add_f32_dpp v{SCN+i}, v{SCN+i}, v{SCN+i} row_shr:{sh} {DPPALL} bound_ctrl:0")
    for i in range(8): e(f"v_add_f32_dpp v{SCN+i}, v{SCN+i}, v{SCN+i} row_bcast:15 row_mask:0xa bank_mask:0xf")
    for i in range(4): e(f"v_cvt_pk_f16_f32 v{SCN+2*i}, v{SCN+2*i}, v{SCN+2*i+1}")
    e("v_and_b32 v1, 31, v0"); e("v_cmp_eq_u32 vcc, 31, v1")
    for i in range(4): e(f"v_cndmask_b32 v{FR+i}, v{FR+i}, v{SCN+2*i}, vcc")
    e(f"s_cmp_lg_u32 s{S_FR}, 43"); e("s_cbranch_scc1 L_nohdr")
    e(f"s_sub_u32 s{S_T+2}, s{S_T+2}, 112"); e(f"s_add_u32 s{S_E1}, s{S_E1}, s{S_T+2}")
    e(f"v_mov_b32 v{FR}, s{S_T+2}"); e(f"v_mov_b32 v{FR+1}, s{S_E1}")
    g.lab("L_nohdr")
    e(f"s_mul_i32 s{S_T}, s{S_L}, {44*1024}"); e(f"s_lshl_b32 s{S_T+1}, s{S_FR}, 10"); e(f"s_add_u32 s{S_T}, s{S_T}, s{S_T+1}")
    e(f"s_sub_u32 s{S_T}, s{S_T}, {44*1024 - IMG['L1']}")
    e("v_lshlrev_b32 v1, 4, v0")
    e(f"buffer_store_dwordx4 {vr(FR,4)}, v1, {sr(S_WS)}, s{S_T} offen sc1")
    g.lab("L_nog")
    e("s_nop 1")
    s0_pack(g)
    e("s_waitcnt vmcnt(0) lgkmcnt(0)")
    e("s_barrier")
    g.stamp()
    e(f"s_cmp_ge_u32 s{S_WP}, 33"); e("s_cbranch_scc1 L_nog2")
    e(f"s_lshl_b32 s{S_T+2}, s{S_L}, 2"); e(f"s_sub_u32 s{S_T+2}, s{S_T+2}, 4")
    signal(g, 0, f"s{S_T+2}")
    e("s_branch L_nowc")
    g.lab("L_nog2")
    e(f"s_cmp_ge_u32 s{S_WP}, 42"); e("s_cbranch_scc1 L_nowc")
    e(f"s_cmp_eq_u32 s{S_WP}, 40"); e(f"s_cselect_b32 s{S_L}, 4, 5"); e(f"s_cmp_eq_u32 s{S_WP}, 41"); e(f"s_cselect_b32 s{S_L}, 0, s{S_L}")
    e(f"s_mul_i32 s{S_E2}, s{S_L}, {LB}"); e(f"s_add_u32 s{S_LC+2}, s{S_E2}, {LB}")
    e("v_lshlrev_b32 v1, 1, v0"); e("v_cmp_lt_u32 vcc, 25, v0"); e(f"v_mov_b32 v2, {OOB}"); e("v_cndmask_b32 v1, v1, v2, vcc")
    e(f"s_mul_i32 s{S_T}, s{S_L}, 52")
    e(f"buffer_load_ushort v{WV}, v1, {sr(S_WO)}, s{S_T} offen")
    e("v_lshlrev_b32 v1, 4, v0")
    e(f"s_mul_i32 s{S_T}, s{S_J}, 1352"); e(f"s_add_u32 s{S_T}, s{S_T}, s{S_E2}")
    RW = HX; AC = HX + 56; TU = HX + 72
    for t in range(7):
        for ps in range(2):
            e(f"buffer_load_dwordx4 {vr(RW+8*t+4*ps,4)}, v1, {sr(S_LC)}, s{S_T} offen offset:{1024*ps}")
        e(f"s_add_u32 s{S_T}, s{S_T}, {4*1352}")
    e("s_waitcnt vmcnt(14)")
    e(f"v_lshlrev_b32 v{WV}, 16, v{WV}"); e(f"v_and_b32 v1, 0x7fffffff, v{WV}")
    wavemax_exp(g, 1, S_E1)
    e(f"s_sub_u32 s{S_T}, 0, s{S_E1}"); e(f"v_ldexp_f32 v{WV}, v{WV}, s{S_T}")
    for i in range(16): e(f"v_mov_b32 v{AC+i}, 0")
    for t in range(7):
        e(f"s_add_u32 s{S_T}, s{S_J}, {4*t}")
        e(f"v_readlane_b32 s{S_T+1}, v{WV}, s{S_T}")
        e(f"s_waitcnt vmcnt({2*(6-t)})")
        for i in range(8):
            e(f"v_lshlrev_b32 v{TU+2*i}, 16, v{RW+8*t+i}"); e(f"v_and_b32 v{TU+2*i+1}, 0xffff0000, v{RW+8*t+i}")
        for i in range(16): e(f"v_fmac_f32 v{AC+i}, s{S_T+1}, v{TU+i}")
    PSTR = 4096
    e(f"s_mul_i32 s{S_T}, s{S_J}, {PSTR}"); e(f"s_add_u32 s{S_T}, s{S_T}, {D0}")
    e(f"v_lshl_add_u32 v1, v0, 5, s{S_T}")
    for ps in range(2):
        for hf in range(2): e(f"ds_write_b128 v1, {vr(AC+8*ps+4*hf,4)} offset:{2048*ps+16*hf}")
    g.lab("L_nowc")
    poll(g, [(C_L[1], 11, "0")], only0=False)
    g.stamp()
    dma_img(g, "L1", 44, BUFB)
    poll(g, [(C_L[2], 11, "0")])
    g.stamp()
    e("s_waitcnt vmcnt(0) lgkmcnt(0)"); e("s_barrier")
    dma_img(g, "L2", 44, BUFA)
    e(f"s_cmp_lt_u32 s{S_WP}, 33"); e("s_cbranch_scc1 L_noq")
    e(f"s_cmp_ge_u32 s{S_WP}, 42"); e("s_cbranch_scc1 L_noq")
    e(f"s_cmp_eq_u32 s{S_FR}, 28"); e("s_cbranch_scc1 L_lin")
    e(f"s_cmp_lt_u32 s{S_FR}, 26"); e("s_cbranch_scc1 L_q")
    e(f"s_cmp_lg_u32 s{S_FR}, 32"); e("s_cbranch_scc1 L_noq")
    g.lab("L_q")
    AQ, BQ, PT, DQ = HX, HX + 16, HX + 32, HX + 96
    e("v_and_b32 v2, 31, v0"); e("v_lshrrev_b32 v3, 5, v0")
    e(f"s_mov_b32 s{S_LC+2}, {5*LB}")
    e("v_mul_u32_u24 v1, 676, v3"); e("v_add_lshl_u32 v1, v1, v2, 1")
    e(f"s_mul_i32 s{S_T}, s{S_FR}, 52"); e(f"s_add_u32 s{S_T}, s{S_T}, {4*LB}")
    for s in range(13):
        e(f"buffer_load_ushort v{AQ+s}, v1, {sr(S_LC)}, s{S_T} offen")
        e(f"s_add_u32 s{S_T}, s{S_T}, 2704")
    e("v_mad_u32_u24 v1, v3, 26, v2"); e("v_lshlrev_b32 v1, 2, v1"); e(f"v_add_u32 v1, {D0}, v1")
    def readsum(stride):
        for pj in range(4):
            for s in range(13): e(f"ds_read_b32 v{PT+13*pj+s}, v1 offset:{PSTR*pj + stride*s}")
            if pj: e("s_waitcnt lgkmcnt(13)")
        e("s_waitcnt lgkmcnt(0)")
        for s in range(13):
            e(f"v_add_f32 v{PT+s}, v{PT+s}, v{PT+13+s}"); e(f"v_add_f32 v{PT+26+s}, v{PT+26+s}, v{PT+39+s}")
        for s in range(13): e(f"v_add_f32 v{BQ+s}, v{PT+s}, v{PT+26+s}")
    def max13():
        e(f"v_max3_f32 v1, |v{BQ}|, |v{BQ+1}|, |v{BQ+2}|")
        for s in range(3, 13, 2): e(f"v_max3_f32 v1, v1, |v{BQ+s}|, |v{BQ+s+1}|")
    readsum(208)
    e("v_cmp_gt_u32 vcc, 26, v2")
    for s in range(13): e(f"v_cndmask_b32 v{BQ+s}, 0, v{BQ+s}, vcc")
    max13()
    wavemax_exp(g, 1, S_E2)
    e(f"s_sub_u32 s{S_T}, 0, s{S_E2}")
    for s in range(13): e(f"v_ldexp_f32 v{BQ+s}, v{BQ+s}, s{S_T}")
    e("s_waitcnt vmcnt(0)")
    e(f"s_sub_u32 s{S_E0}, s{S_E0}, 126")
    e(f"s_sub_u32 s{S_T}, 0, s{S_E0}")
    for s in range(13): e(f"v_lshlrev_b32 v{AQ+s}, 16, v{AQ+s}")
    for s in range(13): e(f"v_ldexp_f32 v{AQ+s}, v{AQ+s}, s{S_T}")
    e(f"s_cmp_ge_u32 s{S_FR}, 13"); e(f"s_cselect_b32 s{S_T+1}, 13, 0"); e(f"s_cselect_b32 s{S_T+2}, 4, 0")
    e(f"s_sub_u32 s{S_T+1}, s{S_FR}, s{S_T+1}"); e(f"s_and_b32 s{S_T+3}, s{S_T+1}, 3"); e(f"s_add_u32 s{S_T+2}, s{S_T+2}, s{S_T+3}")
    e(f"s_lshr_b32 s{S_T+1}, s{S_T+1}, 2"); e(f"s_lshl_b32 s{S_T+1}, s{S_T+1}, 3"); e(f"s_add_u32 s{S_SB}, s{S_T+2}, s{S_T+1}")
    e(f"s_mov_b32 s{S_L}, 0")
    e(f"s_cmp_lg_u32 s{S_FR}, 32"); e("s_cbranch_scc1 L_q2")
    e("v_sub_u32 v1, v2, v3")
    for s in range(13):
        e(f"v_cmp_eq_u32 vcc, {2*s}, v1"); e(f"v_cndmask_b32 v{AQ+s}, 0, 1.0, vcc")
    e(f"s_mov_b32 s{S_E0}, 0"); e(f"s_mov_b32 s{S_SB}, 31"); e(f"s_mov_b32 s{S_L}, 8")
    g.lab("L_q2")
    e("s_nop 1")
    for s in range(13):
        e(f"v_mfma_f32_32x32x2_f32 {vr(DQ,16)}, v{AQ+s}, v{BQ+s}, {'0' if s == 0 else vr(DQ,16)}")
        e(f"v_mfma_f32_32x32x2_f32 {vr(DQ,16)}, v{BQ+s}, v{AQ+s}, {vr(DQ,16)}")
    e(f"v_max_f32 v1, v{QS}, v{QS+1}")
    e("v_mov_b32 v30, 0x44800000"); e("v_mov_b32 v31, 0x44000000")
    for t in range(7):
        e(f"v_cmp_eq_f32 vcc, v1, v{QS+t}"); e(f"v_cndmask_b32 v{QS+t}, v31, v30, vcc")
    e(f"s_cmp_eq_u32 s{S_J}, 1"); e(f"s_cselect_b32 s{S_T}, 48, 0"); e(f"s_sub_u32 s{S_T}, {D1 - BUFA}, s{S_T}")
    for t in range(7): e(f"v_add_u32 v{QA+t}, s{S_T}, v{QA+t}")
    e(f"v_mul_u32_u24 v1, {S0STR}, v2"); e("v_lshl_add_u32 v1, v3, 9, v1"); e(f"s_lshl_b32 s{S_T}, s{S_J}, 4"); e(f"s_add_u32 s{S_T}, s{S_T}, {D1}")
    e(f"v_min_u32 v1, {22*S0STR+512}, v1")
    e(f"v_add_u32 v1, s{S_T}, v1")
    e(f"v_lshl_add_u32 v28, v3, 9, s{S_T}"); e("v_mov_b32 v29, 0")
    e(f"ds_write_b32 v28, v29 offset:{22*S0STR+12}")
    pack_round(g, DQ, 0)
    e("s_waitcnt lgkmcnt(0)")
    e(f"ds_read_b128 {vr(AQ,4)}, v1")
    e("v_lshlrev_b32 v1, 10, v2"); e("v_lshl_add_u32 v1, v3, 9, v1"); e("v_cmp_lt_u32 vcc, 22, v2"); e(f"v_mov_b32 v28, {OOB}"); e("v_cndmask_b32 v1, v1, v28, vcc")
    e(f"s_lshl_b32 s{S_T}, s{S_SB}, 4"); e(f"s_add_u32 s{S_T}, s{S_T}, {IMG['Q4']}")
    e("s_waitcnt lgkmcnt(0)")
    e(f"buffer_store_dwordx4 {vr(AQ,4)}, v1, {sr(S_WS)}, s{S_T} offen sc1")
    e(f"s_add_u32 s{S_E0}, s{S_E0}, s{S_E2}"); e(f"s_add_u32 s{S_E0}, s{S_E0}, s{S_E1}"); e(f"s_sub_u32 s{S_E0}, s{S_E0}, 10")
    e(f"s_and_b32 s{S_T}, s{S_FR}, 31"); e(f"s_cmp_lg_u32 s{S_T}, 0"); e("s_cbranch_scc1 L_noq")
    g.lab("L_qh")
    e(f"v_mov_b32 v1, s{S_E0}"); e(f"s_add_u32 s{S_T}, s{S_L}, {IMG['Q4'] + 23*1024}")
    e(f"buffer_store_dword v1, v{V_L0}, {sr(S_WS)}, s{S_T} offen sc1")
    e("s_branch L_noq")
    g.lab("L_lin")
    e("v_lshrrev_b32 v3, 5, v0"); e(f"v_min_u32 v2, 25, v{V_HROW}")
    e("v_mad_u32_u24 v1, v2, 26, v3"); e("v_lshlrev_b32 v1, 2, v1"); e(f"v_add_u32 v1, {D0}, v1")
    readsum(8)
    e(f"v_cmp_gt_u32 vcc, 26, v{V_HROW}")
    for s in range(13): e(f"v_cndmask_b32 v{BQ+s}, 0, v{BQ+s}, vcc")
    max13()
    wavemax_exp(g, 1, S_E2)
    e(f"s_sub_u32 s{S_T}, 15, s{S_E2}")
    for s in range(13): e(f"v_ldexp_f32 v{BQ+s}, v{BQ+s}, s{S_T}")
    e(f"v_mov_b32 v{BQ+13}, 0"); e(f"v_mov_b32 v{AQ+7}, 0")
    for t in range(7): e(f"v_cvt_pk_f16_f32 v{AQ+t}, v{BQ+2*t}, v{BQ+2*t+1}")
    e("v_lshlrev_b32 v1, 4, v0"); e(f"s_mov_b32 s{S_T}, {IMG['Q4'] + 24*1024}")
    for s in range(2): e(f"buffer_store_dwordx4 {vr(AQ+4*s,4)}, v1, {sr(S_WS)}, s{S_T} offen offset:{1024*s} sc1")
    e(f"s_add_u32 s{S_E0}, s{S_E2}, s{S_E1}"); e(f"s_sub_u32 s{S_E0}, s{S_E0}, 15"); e(f"s_mov_b32 s{S_L}, 4")
    e("s_branch L_qh")
    g.lab("L_noq")
    e("s_waitcnt vmcnt(0) lgkmcnt(0)"); e("s_barrier")
    e(f"s_cmp_lt_u32 s{S_WP}, 33"); e("s_cbranch_scc1 L_noq2")
    e(f"s_cmp_ge_u32 s{S_WP}, 42"); e("s_cbranch_scc1 L_noq2")
    signal(g, C_Q)
    g.lab("L_noq2")
    poll(g, [(C_L[3], 11, "0"), (C_Q, 9, "0")])
    g.stamp()
    e("s_barrier")
    dma_img(g, "Q4", 28, D0)
    dma_img(g, "L3", 44, BUFB)
    e(f"s_lshl_b32 s{S_T+2}, s{S_G}, 2")
    poll(g, [(C_CLR, 13, f"s{S_T+2}")])
    e("s_waitcnt vmcnt(0)")
    e("s_barrier")
    g.stamp()
    g.flush_stamps(4, 5)
    e("s_endpgm")

def build(stamps=False):
    g = G(stamps)
    prologue(g); n0 = g.nst
    cin(g)
    g.lab("L_helper"); g.nst = n0
    helper_common(g)
    g.e(f"s_cmp_ge_u32 s{S_R}, 13"); g.e("s_cbranch_scc1 L_helper_n")
    helper_dnn(g)
    g.lab("L_helper_n"); g.nst = n0
    helper_prod(g)
    g.lab("L_end"); g.e("s_endpgm")
    body, nops = fix_hazards(g.L)
    ref = open("standalone__deep_cross_xdeepfm__recsys.s.ref").read().split("\n")
    hdr = [l for l in ref if l.startswith(";") and "@launch" not in l and "Override" not in l and "grid=ceil" not in l]
    txt = "\n".join(hdr) + f"\n; @launch grid=(256,1,1) block=(512,1,1) lds={LDS_TOTAL}\n"
    txt += f'.amdgcn_target "amdgcn-amd-amdhsa--gfx950"\n.text\n.globl {KN}\n.p2align 8\n.type {KN},@function\n{KN}:\n'
    txt += "\n".join(body) + "\n"
    txt += f""".section .rodata,"a"
.p2align 6
.amdhsa_kernel {KN}
  .amdhsa_next_free_vgpr 256
  .amdhsa_next_free_sgpr 102
  .amdhsa_accum_offset 256
  .amdhsa_group_segment_fixed_size 0
  .amdhsa_kernarg_size 88
  .amdhsa_user_sgpr_count 2
  .amdhsa_user_sgpr_kernarg_segment_ptr 1
  .amdhsa_system_sgpr_workgroup_id_x 1
.end_amdhsa_kernel
"""
    return txt, nops
if __name__ == "__main__":
    for a in sys.argv[2:]:
        if "=" in a:
            k, v = a.split("="); setattr(PAR, k, eval(v))
    txt, nops = build(stamps="stamps" in sys.argv)
    open(sys.argv[1], "w").write(txt)
    print("nops inserted", nops, "lines", txt.count("\n"))
```

```python
import sys, struct
from asmlib import fix_hazards
KN = "standalone__deep_cross_xdeepfm__recsys_kernel"
def f2u(f): return struct.unpack('<I', struct.pack('<f', f))[0]
OOB = 0x40000000
SPIN = 200000
LB = 35152
IMG = {}
off = 0
for name, n in (("L2", 44), ("L3", 44), ("Q4", 28)):
    IMG[name] = off; off += n * 1024
WS_PART = off
WS_CNT = WS_PART + 16 * 13 * 1024
WS_STAMP = WS_CNT + 4096
WS_X = WS_STAMP + 256 * 8 * 64
C_L = {2: 0, 3: 4}; C_Q = 8; C_RDY = 128
BUFA, BUFB = 0, 45056
D0, D1 = 90112, 118784
MISC = 147456
LDS_TOTAL = MISC + 1536
M_S0, M_L1, M_SC, M_EW1, M_CNT = MISC, MISC + 64, MISC + 128, MISC + 192, MISC + 256
CNT = {n: M_CNT + 4 * i for i, n in enumerate(["XST", "L1M", "L1OK", "AFREE", "L2OK", "BFREE", "L3OK", "QOK", "W01", "C0", "C1", "C2", "SCM", "GST", "WC", "QST"])}
S0STR = 1040
QPAIRS = [(p, q) for p in range(13) for q in range(p, 13)]
S_IDX, S_TAB, S_WS, S_W1, S_B1, S_W2, S_OUT, S_DBG, S_BO, S_WC, S_WO = 4, 8, 12, 16, 20, 24, 28, 32, 36, 40, 44
S_G, S_R, S_WAVE, S_J = 70, 71, 83, 3
S_HDR = 48
S_EX = 60
S_K = 64
S_K1 = 4
S_KC = 76
S_T = 72
S_MASK = 80
S_C1 = 81
S_SB = 82
S_ST = 84
class P: pass
PAR = P()
PAR.chunks = [7, 7, 6, 6]
PAR.gsplit = 4
PAR.gsplit2 = 8
PAR.lnpos = 30
PAR.pload = 30
PAR.xst = 12
PAR.l2pos = 7
PAR.nslot = 8
PAR.st = 'ad'
PAR.ld = 'sc1'
PAR.inv = 0
class G:
    def __init__(self, stamps=False):
        self.L = []; self.stamps = stamps; self.nst = 0; self.nl = 0; self.vmq = []; self.tail = []
    def e(self, s): self.L.append("    " + s)
    def lab(self, s): self.L.append(s + ":")
    def vm(self, s, tag): self.e(s); self.vmq.append(tag)
    def vmwait(self, *tags):
        idx = max(i for i, t in enumerate(self.vmq) if t in tags)
        n = len(self.vmq) - 1 - idx
        self.e(f"s_waitcnt vmcnt({min(n, 63)})")
    def newlab(self, s): self.nl += 1; return f"L_{s}_{self.nl}"
    def stamp(self, name=None):
        if self.stamps and (name or "d") in PAR.st:
            assert self.nst < 8
            self.e(f"s_memrealtime s[{S_ST+2*self.nst}:{S_ST+2*self.nst+1}]"); self.nst += 1
    def flush_stamps(self, vt, va):
        if not self.stamps: return
        self.e("s_waitcnt lgkmcnt(0)")
        self.e(f"s_lshl_b32 s{S_T}, s2, 3"); self.e(f"s_add_u32 s{S_T}, s{S_T}, s{S_WAVE}"); self.e(f"s_lshl_b32 s{S_T}, s{S_T}, 6")
        self.e(f"s_add_u32 s{S_T}, s{S_T}, {WS_STAMP}")
        self.e(f"v_mov_b32 v{va}, 0")
        for i in range(self.nst):
            self.e(f"v_mov_b32 v{vt}, s{S_ST+2*i}")
            self.e(f"buffer_store_dword v{vt}, v{va}, s[{S_WS}:{S_WS+3}], s{S_T} offen offset:{4*i}")
        self.nst = 0
def vr(a, n): return f"v[{a}:{a+n-1}]"
def sr(a, n=4): return f"s[{a}:{a+n-1}]"
DPPALL = "row_mask:0xf bank_mask:0xf"

def prologue(g):
    e = g.e
    e("s_cmp_ge_u32 s2, 256")
    e("s_cbranch_scc1 L_end")
    g.stamp("a")
    e("s_load_dwordx16 s[48:63], s[0:1], 0")
    e("s_load_dwordx4 s[64:67], s[0:1], 64")
    e("s_load_dwordx2 s[68:69], s[0:1], 80")
    e("v_lshrrev_b32 v1, 6, v0")
    e("v_and_b32 v0, 63, v0")
    e(f"v_readfirstlane_b32 s{S_WAVE}, v1")
    e(f"s_and_b32 s{S_T}, s2, 7")
    e(f"s_lshr_b32 s{S_T+1}, s2, 3")
    e(f"s_lshr_b32 s{S_G}, s{S_T+1}, 4")
    e(f"s_lshl_b32 s{S_T}, s{S_T}, 1")
    e(f"s_add_u32 s{S_G}, s{S_G}, s{S_T}")
    e(f"s_and_b32 s{S_R}, s{S_T+1}, 15")
    e(f"s_mov_b32 s{S_MASK}, 0x7fff7fff")
    srds = ((S_IDX, 48, 4096*104), (S_TAB, 50, 6400000), (S_WC, 52, LB), (S_WO, 54, 312), (S_W1, 56, 832*1664), (S_B1, 58, 1664), (S_W2, 60, 1664),
            (S_BO, 62, 2), (S_OUT, 64, 8192), (S_DBG, 66, 256), (S_WS, 68, 1 << 28))
    for srd, src, nbytes in srds:
        e(f"s_mov_b32 s{srd+2}, {nbytes}"); e(f"s_mov_b32 s{srd+3}, 0x00020000")
    e("s_waitcnt lgkmcnt(0)")
    for srd, src, nbytes in srds:
        e(f"s_mov_b64 s[{srd}:{srd+1}], s[{src}:{src+1}]")
    e(f"s_cmp_ge_u32 s{S_WAVE}, 4")
    e("s_cbranch_scc1 L_helper")

ACC, ACC2, XR, UR, BR, AR, SC, LG, TM = 4, 68, 132, 188, 216, 232, 244, 248, 252
def X(k, p): return XR + 14 * k + p
def EV(k): return XR + 14 * k + 13
def U(k, t): return UR + 7 * k + t
def cin(g):
    e = g.e
    e("s_setprio 1")
    e(f"s_lshl_b32 s{S_T}, s{S_G}, 8"); e(f"s_lshl_b32 s{S_T+1}, s{S_R}, 4"); e(f"s_add_u32 s{S_T}, s{S_T}, s{S_T+1}")
    e(f"s_lshl_b32 s{S_T+1}, s{S_WAVE}, 2"); e(f"s_add_u32 s{S_SB}, s{S_T}, s{S_T+1}")
    e(f"s_mul_i32 s{S_T}, s{S_SB}, 104")
    e("v_lshrrev_b32 v1, 4, v0")
    e("v_bfe_u32 v2, v0, 2, 2")
    e("v_and_b32 v3, 3, v0")
    e("v_mul_u32_u24 v4, 104, v1")
    e("v_mad_u32_u24 v4, v2, 28, v4")
    I = 8
    e(f"buffer_load_dwordx4 {vr(I,4)}, v4, {sr(S_IDX)}, s{S_T} offen")
    e(f"buffer_load_dwordx3 {vr(I+4,3)}, v4, {sr(S_IDX)}, s{S_T} offen offset:16")
    e("v_lshlrev_b32 v5, 4, v3")
    e("v_cmp_eq_u32 vcc, 3, v2")
    e(f"v_mov_b32 v6, {OOB}")
    e("v_cndmask_b32 v6, 0, v6, vcc")
    e("v_add_u32 v6, v6, v5")
    e(f"s_mul_i32 s{S_T+1}, s{S_WAVE}, 7168"); e(f"s_add_u32 s{S_T+1}, s{S_T+1}, {D1}")
    e("v_mul_u32_u24 v7, 1792, v1")
    e("v_mad_u32_u24 v16, v2, 7, 0")
    e("v_lshl_add_u32 v7, v16, 6, v7")
    e(f"v_add3_u32 v7, v7, v5, s{S_T+1}")
    e("v_lshrrev_b32 v16, 1, v1")
    e("v_xor_b32 v16, v16, v2")
    e("v_lshlrev_b32 v16, 6, v16")
    e("v_and_b32 v17, 1, v1")
    e("v_lshl_add_u32 v16, v17, 5, v16")
    e("v_lshl_add_u32 v16, v3, 3, v16")
    e(f"v_add_u32 v16, s{S_T+1}, v16")
    for k in range(4): e(f"v_mov_b32 v{LG+k}, 0")
    for i in range(16): e(f"v_mov_b32 v{BR+i}, 0")
    e("v_mov_b32 v22, 0x0b000b00")
    for k in range(4): e(f"v_mov_b32 v{U(k,6)}, 0")
    e("v_mul_u32_u24 v124, 28672, v2"); e("v_lshrrev_b32 v125, 1, v3"); e("v_lshl_add_u32 v124, v125, 10, v124")
    e("v_and_b32 v125, 1, v3"); e("v_lshl_add_u32 v124, v125, 6, v124"); e("v_lshl_add_u32 v124, v1, 4, v124")
    e("v_sub_u32 v125, v6, v5"); e("v_add_u32 v125, v125, v124")
    SX = S_K
    e(f"s_lshr_b32 s{S_T+2}, s{S_SB}, 6"); e(f"s_mul_i32 s{SX}, s{S_T+2}, 106496")
    e(f"s_bfe_u32 s{S_T+2}, s{S_SB}, 0x10005"); e(f"s_lshl_b32 s{S_T+2}, s{S_T+2}, 11"); e(f"s_add_u32 s{SX}, s{SX}, s{S_T+2}")
    e(f"s_bfe_u32 s{S_T+2}, s{S_SB}, 0x30002"); e(f"s_lshl_b32 s{S_T+2}, s{S_T+2}, 7"); e(f"s_add_u32 s{SX}, s{SX}, s{S_T+2}")
    e(f"s_add_u32 s{SX}, s{SX}, {WS_X}")
    e("v_and_b32 v25, 15, v0"); e("v_lshlrev_b32 v25, 2, v25"); e(f"v_add_u32 v25, {M_CNT}, v25")
    e(f"ds_write_b32 v25, v{LG}")
    e("s_waitcnt vmcnt(0) lgkmcnt(0)")
    GR, MR = 68, 96
    for t in range(7):
        e(f"v_lshl_add_u32 v{I+t}, v{I+t}, 6, v{5 if t < 5 else 6}")
        e(f"buffer_load_dwordx4 {vr(GR+4*t,4)}, v{I+t}, {sr(S_TAB)}, 0 offen")
    g.stamp()
    e("s_barrier")
    for t in range(7):
        e(f"s_waitcnt vmcnt({6-t})")
        for i in range(4): e(f"v_and_b32 v{MR+4*t+i}, s{S_MASK}, v{GR+4*t+i}")
        if t == 0:
            e(f"v_pk_max_u16 v20, v{MR}, v{MR+1}"); e(f"v_pk_max_u16 v21, v{MR+2}, v{MR+3}")
        else:
            for i in range(4): e(f"v_pk_max_u16 v{20+(i&1)}, v{20+(i&1)}, v{MR+4*t+i}")
    g.stamp()
    e("v_pk_max_u16 v20, v20, v21")
    e("v_alignbit_b32 v21, v20, v20, 16")
    e("v_pk_max_u16 v20, v20, v21")
    for sh in (8, 4, 2, 1):
        e(f"v_max_u32_dpp v20, v20, v20 row_ror:{sh} {DPPALL}")
    e("v_and_b32 v20, 0x7f807f80, v20")
    e("v_pk_sub_u16 v20, v20, v22 clamp")
    for t in range(7):
        for i in range(4): e(f"v_pk_sub_u16 v{MR+4*t+i}, v{MR+4*t+i}, v20 clamp")
        for i in range(4): e(f"v_lshlrev_b32 v{MR+4*t+i}, 3, v{MR+4*t+i}")
        for i in range(4): e(f"v_bfi_b32 v{MR+4*t+i}, s{S_MASK}, v{MR+4*t+i}, v{GR+4*t+i}")
        e(f"ds_write_b128 v7, {vr(MR+4*t,4)} offset:{64*t}")
    for k in range(4): e(f"v_readlane_b32 s{S_EX+k}, v20, {16*k}")
    e("s_waitcnt lgkmcnt(0)")
    for k in range(4):
        for t in range(7):
            e(f"ds_read_b64_tr_b16 {vr(X(k,2*t),2)}, v16 offset:{k*1792+t*256}")
    for k in range(4):
        e(f"s_bfe_u32 s{S_EX+k}, s{S_EX+k}, 0x80007")
        e(f"s_sub_u32 s{S_EX+k}, s{S_EX+k}, 112")
    e("v_lshlrev_b32 v1, 4, v0")
    e("s_waitcnt lgkmcnt(0)")
    HW = lambda l: S_HDR + 2 * l
    HD = lambda l: S_HDR + 2 * l + 1
    HQ, HL = S_HDR + 8, S_HDR + 9
    for k in range(4):
        e(f"s_lshl_b32 s{S_T}, s{S_EX+k}, 1")
        e(f"v_mov_b32 v{EV(k)}, s{S_T}")
    e("s_barrier")
    g.stamp(); g.stamp("s")

    ready = set()
    def quad_prod(k, rho):
        p, q = QPAIRS[rho]
        return lambda d: f"v_pk_mul_f16 v{d}, v{X(k,p)}, v{X(k,q)} op_sel_hi:[0,1]"
    def gen_prod(l):
        def f(k, rho):
            r, p = divmod(rho, 13)
            def mk(d):
                if r == 13: return f"v_mov_b32 v{d}, v{U(k,p)}"
                assert ('u', l, k, r) in ready, (l, k, r)
                if r & 1: return f"v_pk_mul_f16 v{d}, v{U(k,r>>1)}, v{X(k,p)} op_sel:[1,0] op_sel_hi:[1,1]"
                return f"v_pk_mul_f16 v{d}, v{U(k,r>>1)}, v{X(k,p)} op_sel_hi:[0,1]"
            return mk
        return f
    def lin_prod(k, t):
        b = 2 * t + 1 if 2 * t + 1 < 13 else 2 * t
        return lambda d: f"v_pack_b32_f16 v{d}, v{X(k,2*t)}, v{X(k,b)}"
    def steps(nprod, prod, acc, base, first0, stride=1024, needs=None):
        out = []
        ns = (nprod + 3) // 4
        for s in range(ns):
            out.append(dict(lds=base + stride * s, needs=needs if s == 0 else None, jobs=[dict(acc=acc + 16 * k, zero=(first0 and s == 0),
                       prods=[prod(k, rho) for rho in range(4 * s, min(4 * s + 4, nprod))]) for k in range(4)]))
        return out
    def mix(acc, l, k, r):
        return (f"v_fma_mix{'hi' if r & 1 else 'lo'}_f16 v{U(k,r>>1)}, v{acc+16*k+r}, v{SC+k}, 0", ('u', l + 1, k, r))
    def head(acc, l):
        o = []
        for j in range(6):
            for k in range(4):
                a = acc + 16 * k
                if j == 0: o.append(f"v_max3_f32 v{SC+k}, |v{a}|, |v{a+1}|, |v{a+2}|")
                else: o.append(f"v_max3_f32 v{SC+k}, v{SC+k}, |v{a+2*j+1}|, |v{a+2*j+2}|")
        for k in range(4): o.append(f"v_mov_b32 v{TM+k}, v{SC+k}")
        for k in range(4): o.append(f"v_permlane32_swap_b32 v{SC+k}, v{TM+k}")
        for k in range(4): o.append(f"v_max_f32 v{SC+k}, v{SC+k}, v{TM+k}")
        for k in range(4): o.append(f"v_frexp_exp_i32_f32 v{TM+k}, v{SC+k}")
        for k in range(4): o.append(f"v_sub_u32 v{SC+k}, 8, v{TM+k}")
        for k in range(4): o.append(f"v_ldexp_f32 v{SC+k}, 1.0, v{SC+k}")
        for k in range(4): o.append(mix(acc, l, k, 0))
        return o
    def tailb(acc, l):
        o = []
        for k in range(4): o.append(mix(acc, l, k, 1))
        if l == 2:
            o.append((None, 'x', 'k2'))
            for k in range(4): o.append(f"v_ldexp_f32 v{acc+16*k+15}, v{acc+16*k+15}, v{EV(k)}")
            for k in range(4): o.append(f"v_add_u32 v{acc+16*k+13}, s{S_K1+k}, v{EV(k)}")
            for k in range(4): o.append(f"v_ldexp_f32 v{acc+16*k+14}, v{acc+16*k+14}, v{acc+16*k+13}")
            for k in range(4): o.append(f"v_add_f32 v{LG+k}, v{acc+16*k+14}, v{acc+16*k+15}")
        for k in range(4):
            o.append(f"v_add3_u32 v{EV(k)}, v{EV(k)}, v{TM+k}, s{S_K+k}")
        for r in range(2, 13):
            for k in range(4): o.append(mix(acc, l, k, r))
        o.append((None, ('free', l)))
        return o
    def emit(s):
        if isinstance(s, tuple):
            if len(s) == 3: assert s[2] in ready, s
            ready.add(s[1]); s = s[0]
        if s: e(s)
    def kconst(l):
        if l == 0: e(f"s_mov_b32 s{S_T}, s{HW(0)}")
        elif l == 1: e(f"s_add_u32 s{S_T}, s{HW(1)}, s{HD(2)}")
        else:
            e(f"s_sub_u32 s{S_T}, s{HD(1)}, s{HD(2)}")
            for k in range(4): e(f"s_sub_u32 s{S_K1+k}, s{S_T}, s{S_EX+k}")
            e(f"s_sub_u32 s{S_T}, s{HW(l)}, s{HD(l)}"); e(f"s_add_u32 s{S_T}, s{S_T}, s{HD(l+1)}")
        e(f"s_sub_u32 s{S_T}, s{S_T}, 8")
        for k in range(4): e(f"s_add_u32 s{S_K+k}, s{S_T}, s{S_EX+k}")
    state = dict(areg=0, breg=0, base=0)
    def rel(addr):
        r = addr - state['base']
        if r < 0 or r > 65535:
            nb = max(addr - 45056, 0) if r > 0 else addr
            nb = min(nb, addr)
            e(f"v_add_u32 v1, {(nb - state['base']) & 0xffffffff}, v1"); state['base'] = nb; r = addr - nb
        return r
    def aread(st):
        st['a'] = AR + 4 * (state['areg'] % 3); state['areg'] += 1
        r = rel(st['lds'])
        e(f"ds_read_b128 {vr(st['a'],4)}, v1 offset:{r}")
    def prods(job):
        job['b'] = BR + 4 * (state['breg'] % 4); state['breg'] += 1
        return [p(job['b'] + i) for i, p in enumerate(job['prods'])]
    def run(seq, nxt, fill=None, events=None, post=None):
        jobs = [(si, j) for si, st in enumerate(seq) for j in st['jobs']]
        for j in range(2):
            for s in prods(jobs[j][1]): e(s)
        fq = []
        allst = seq + nxt
        for n, (si, job) in enumerate(jobs):
            k = n % 4
            if k == 0:
                if fill and si in fill: fq += fill[si]
                waited = False
                if events and si in events: waited = events[si]()
                pend = sum(1 for st in allst[si+1:si+2] if 'a' in st)
                if not waited: e(f"s_waitcnt lgkmcnt({pend})")
                if seq[si]['needs']: assert seq[si]['needs'] in ready, seq[si]['needs']
            c = "0" if job['zero'] else vr(job['acc'], 16)
            e(f"v_mfma_f32_32x32x16_f16 {vr(job['acc'],16)}, {vr(seq[si]['a'],4)}, {vr(job['b'],4)}, {c}")
            budget = 6
            if k == 0:
                if post and si in post: post[si]()
                if si + 2 < len(allst) and 'a' not in allst[si + 2]:
                    aread(allst[si + 2]); budget -= 1
            if k == 3: budget -= 1
            if n + 2 < len(jobs):
                ps = prods(jobs[n + 2][1])
                for s in ps: e(s)
                budget -= len(ps)
            while budget > 0 and fq:
                emit(fq.pop(0)); budget -= 1
            while fq and isinstance(fq[0], tuple) and fq[0][0] is None: emit(fq.pop(0))
        for s in fq: emit(s)
    S0 = steps(91, quad_prod, ACC, BUFA, True, stride=S0STR)
    L1 = steps(169, gen_prod(1), ACC2, BUFB, True, stride=S0STR)
    L2 = steps(176, gen_prod(2), ACC, BUFA, True, needs=('free', 0))
    LN = steps(7, lin_prod, ACC2, D0 + 24 * 1024, True, needs=('free', 1))
    Q4 = steps(91, quad_prod, ACC2, D0, False, needs='ldx')
    L3 = steps(169, gen_prod(3), ACC, BUFB, True, needs=('free', 2))
    def hdr_read(addr):
        def f():
            r = rel(addr)
            e(f"ds_read_b64 v[2:3], v1 offset:{r}")
        return f
    def hdr_get(sa, sb):
        def f():
            e(f"v_readfirstlane_b32 s{sa}, v2")
            if sb is not None: e(f"v_readfirstlane_b32 s{sb}, v3")
        return f
    def arrive(c, pre=None):
        def f():
            if pre: g.stamp("s"); e(pre); g.stamp("s")
            r = rel(CNT[c])
            e("v_mov_b32 v2, 1"); e("s_mov_b64 exec, 1"); e(f"ds_add_u32 v1, v2 offset:{r}"); e("s_mov_b64 exec, -1")
        return f
    def chk_read(c):
        def f():
            r = rel(CNT[c]); e(f"ds_read_b32 v2, v1 offset:{r}")
        return f
    def chk_test(c):
        def f():
            slow = g.newlab("cs"); back = g.newlab("cb"); top = g.newlab("ct")
            e(f"v_readfirstlane_b32 s{S_T}, v2"); e(f"s_cmp_lt_u32 s{S_T}, 4"); e(f"s_cbranch_scc1 {slow}")
            g.lab(back)
            g.tail += [slow + ":", f"    s_mov_b32 s{S_T+1}, {SPIN*8}", f"    v_mov_b32 v3, {CNT[c]}", top + ":", "    s_sleep 1", "    ds_read_b32 v2, v3", "    s_waitcnt lgkmcnt(0)",
                       f"    v_readfirstlane_b32 s{S_T}, v2", f"    s_cmp_ge_u32 s{S_T}, 4", f"    s_cbranch_scc1 {back}",
                       f"    s_sub_u32 s{S_T+1}, s{S_T+1}, 1", f"    s_cbranch_scc0 {top}", f"    s_branch {back}"]
        return f
    def seqf(*fs):
        def f():
            for x in fs: x()
        return f
    HOFF = 29 * 16
    aread(S0[0]); aread(S0[1])
    def xstore(t):
        def f():
            e(f"buffer_store_dwordx4 {vr(GR+4*t,4)}, v{124 if t < 5 else 125}, {sr(S_WS)}, s{SX} offen sc1")
            e(f"s_add_u32 s{SX}, s{SX}, 4096")
        return f
    run(S0, L1[:2], post={0: seqf(xstore(0), xstore(1)), 1: seqf(xstore(2), xstore(3)), 2: seqf(xstore(4), xstore(5)), 3: seqf(xstore(6), lambda: g.stamp("s")),
                          4: hdr_read(BUFA + 23 * S0STR + 512), 5: hdr_get(HW(0), None), PAR.xst: arrive("XST", "s_waitcnt vmcnt(0)"),
                          19: chk_read("L1OK"), 20: seqf(lambda: g.stamp("s"), chk_test("L1OK"), lambda: g.stamp("s"), hdr_read(M_EW1)), 21: hdr_get(HW(1), None), 22: arrive("AFREE")})
    g.stamp()
    kconst(0)
    for s in head(ACC, 0): emit(s)
    run(L1, L2[:2], fill={0: tailb(ACC, 0)},
        post={39: chk_read("L2OK"), 40: seqf(chk_test("L2OK"), hdr_read(BUFA + HOFF)), 41: hdr_get(HW(2), HD(2)), 42: arrive("BFREE")})
    g.stamp()
    kconst(1)
    for s in head(ACC2, 1): emit(s)
    LNPOS = PAR.lnpos; B4 = LNPOS - 3
    seq = L2[:LNPOS] + LN + L2[LNPOS:] + Q4 + L3
    nQ = 46; nL3 = nQ + 23
    ldx = [f"v_ldexp_f32 v{ACC2+16*k+r}, v{ACC2+16*k+r}, s{S_KC+k}" for k in range(4) for r in range(13)] + [(None, 'ldx')]
    PV, PA = 2, 3
    def pload():
        e(f"buffer_load_dword v{PV}, v{PA}, {sr(S_WS)}, s{S_T+3} offen sc1")
    def getq():
        hdr_get(HQ, HL)()
        for k in range(4):
            e(f"s_sub_u32 s{S_T}, s{HL}, s{HQ}"); e(f"s_sub_u32 s{S_T}, s{S_T}, s{S_EX+k}")
            e(f"s_min_i32 s{S_KC+k}, s{S_T}, 50")
        hdr_read(D0 + 23 * 1024 + 8)()
    def get3():
        hdr_get(HW(3), HD(3))(); kconst(2); ready.add('k2')
    pre = []
    pre.append("v_bfe_u32 v2, v0, 4, 1"); pre.append("v_lshrrev_b32 v3, 5, v0"); pre.append("v_lshl_add_u32 v2, v2, 1, v3")
    pre.append("v_and_b32 v3, 15, v0"); pre.append("v_cmp_lt_u32 vcc, 12, v3"); pre.append("v_lshlrev_b32 v3, 10, v3")
    pre.append("v_lshl_add_u32 v3, v2, 2, v3"); pre.append(f"v_mov_b32 v2, {OOB}"); pre.append("v_cndmask_b32 v3, v3, v2, vcc")
    w0 = []
    for k in range(4): w0.append(f"v_ldexp_f32 v{ACC2+16*k+15}, v{ACC2+16*k+15}, s{S_K+k}")
    for k in range(4): w0.append(f"v_add_f32 v{LG+k}, v{LG+k}, v{ACC2+16*k+15}")
    def k_w0():
        for k in range(4):
            e(f"s_lshl_b32 s{S_T}, s{S_EX+k}, 1"); e(f"s_add_u32 s{S_K+k}, s{S_T}, s{HD(0)}")
        e(f"s_mul_i32 s{S_T+3}, s{S_G}, {13*1024}"); e(f"s_and_b32 s{S_T}, s{S_SB}, 255"); e(f"s_lshl_b32 s{S_T}, s{S_T}, 2")
        e(f"s_add_u32 s{S_T+3}, s{S_T+3}, s{S_T}"); e(f"s_add_u32 s{S_T+3}, s{S_T+3}, {WS_PART}")
    def k_fin():
        for k in range(4):
            e(f"s_sub_u32 s{S_T}, s{HW(3)}, s{HD(3)}"); e(f"s_add_u32 s{S_T}, s{S_T}, s{HL}"); e(f"s_add_u32 s{S_T}, s{S_T}, s{S_EX+k}")
            e(f"s_sub_u32 s{S_K+k}, s{S_T}, s{S_KC+k}")
    BO = ACC2 + 14
    fin = [f"v_add_u32 v{TM+k}, s{S_K+k}, v{EV(k)}" for k in range(4)] + [f"v_mov_b32 v{BO-1}, 0"]
    def boload():
        e(f"buffer_load_ushort v{BO}, v{BO-1}, {sr(S_BO)}, 0 offen")
    run(seq, [], fill={0: tailb(ACC2, 1), LNPOS + 3: ldx, nQ + 1: head(ACC, 2) + tailb(ACC, 2), nL3 + 2: pre + w0, nL3 + 8: fin},
        post={2: hdr_read(BUFA + HOFF + 8), 3: hdr_get(HD(1), None),
              B4 - 1: chk_read("QOK"), B4: seqf(chk_test("QOK"), hdr_read(D0 + 23 * 1024)), B4 + 1: getq, B4 + 2: hdr_get(HD(0), None),
              nQ + 5: chk_read("L3OK"), nQ + 6: seqf(chk_test("L3OK"), hdr_read(BUFB + HOFF)), nQ + 7: get3,
              nL3 + 1: k_w0, nL3 + 7: k_fin, nL3 + 12: boload, nL3 + PAR.pload: pload})
    g.stamp()
    for r in range(13):
        for k in range(4):
            if r == 0: e(f"v_mul_f32 v{SC+k}, v{ACC+16*k}, v{ACC2+16*k}")
            else: e(f"v_fmac_f32 v{SC+k}, v{ACC+16*k+r}, v{ACC2+16*k+r}")
    for k in range(4): e(f"v_ldexp_f32 v{ACC+16*k+15}, v{ACC+16*k+15}, v{EV(k)}")
    for k in range(4): e(f"v_ldexp_f32 v{SC+k}, v{SC+k}, v{TM+k}")
    for k in range(4): e(f"v_add_f32 v{LG+k}, v{LG+k}, v{ACC+16*k+15}")
    for k in range(4): e(f"v_add_f32 v{LG+k}, v{LG+k}, v{SC+k}")
    e(f"v_permlane32_swap_b32 v{LG}, v{LG+1}"); e(f"v_permlane32_swap_b32 v{LG+2}, v{LG+3}")
    e(f"v_add_f32 v{LG}, v{LG}, v{LG+1}"); e(f"v_add_f32 v{LG+2}, v{LG+2}, v{LG+3}")
    e(f"v_permlane16_swap_b32 v{LG}, v{LG+2}")
    e(f"v_add_f32 v{LG}, v{LG}, v{LG+2}")
    e(f"s_mov_b32 s{S_T}, {SPIN}")
    g.lab("L_pcheck")
    e("s_waitcnt vmcnt(0)")
    e(f"v_cmp_eq_u32 vcc, -1, v{PV}")
    e("s_nop 1")
    e("s_cbranch_vccz L_pok")
    e("s_sleep 4")
    pload()
    e(f"s_sub_u32 s{S_T}, s{S_T}, 1")
    e("s_cbranch_scc0 L_pcheck")
    e("s_waitcnt vmcnt(0)")
    g.lab("L_pok")
    e(f"v_add_f32 v{LG}, v{LG}, v{PV}")
    for sh in (8, 4, 2, 1):
        e(f"v_add_f32_dpp v{LG}, v{LG}, v{LG} row_ror:{sh} {DPPALL}")
    e(f"v_lshlrev_b32 v{BO}, 16, v{BO}")
    e(f"v_add_f32 v{LG}, v{LG}, v{BO}")
    e(f"v_cvt_pk_bf16_f32 v{LG}, v{LG}, v{LG}")
    e(f"v_lshrrev_b32 v{PA}, 1, v{PA}")
    e(f"v_cmp_lt_u32 vcc, 7, v{PA}")
    e(f"v_mov_b32 v2, {OOB}")
    e(f"v_cndmask_b32 v{PA}, v{PA}, v2, vcc")
    e(f"s_lshl_b32 s{S_T}, s{S_SB}, 1")
    e(f"buffer_store_short v{LG}, v{PA}, {sr(S_OUT)}, s{S_T} offen")
    g.stamp()
    g.flush_stamps(4, 5)
    e("s_endpgm")

HACC, HX, HW_ = 4, 68, 208
V_TR0, V_TR1, V_DMA, V_WSRC, V_H16, V_L0, V_HROW, V_CNT = 248, 249, 250, 251, 252, 253, 254, 255
ID, QA, QSH, QS, W0R, PK = 4, 12, 19, 20, 180, 236
L1R, BT = 180, 36
S_WP, S_L, S_FR, S_E0, S_E1, S_E2, S_PO, S_CX = 48, 49, 50, 51, 52, 53, 54, 55
S_LC = 56
S_E3, S_XB = 60, 61
def dma_img(g, name, nfr, lds):
    e = g.e; per = nfr // 4
    e(f"s_mul_i32 s{S_T}, s{S_J}, {per*1024}")
    for i in range(per):
        if i % 4 == 0:
            e(f"s_add_u32 s{S_T+1}, s{S_T}, {IMG[name] + i*1024}")
            e(f"s_add_u32 m0, s{S_T}, {lds + i*1024}")
        g.vm(f"buffer_load_dwordx4 v{V_DMA}, {sr(S_WS)}, s{S_T+1} offen offset:{(i%4)*1024} {PAR.ld} lds", name)
def poll(g, checks, pre=None):
    e = g.e
    done = g.newlab("pd"); top = g.newlab("pt"); slp = g.newlab("ps"); tst = g.newlab("pc")
    regs = pre or [2 + i for i in range(len(checks))]
    e(f"s_mov_b32 s{S_T}, {SPIN}")
    if pre: e(f"s_branch {tst}")
    g.lab(top)
    for r, (srd, so, o, n) in zip(regs, checks):
        e(f"buffer_load_dword v{r}, v{V_L0}, {sr(srd)}, {so} offen offset:{o} sc1")
    e("s_waitcnt vmcnt(0)")
    g.lab(tst)
    for r, (srd, so, o, n) in zip(regs, checks):
        e(f"v_readfirstlane_b32 s{S_T+1}, v{r}")
        e(f"s_cmp_lt_u32 s{S_T+1}, {n}")
        e(f"s_cbranch_scc1 {slp}")
    g.lab(done)
    g.tail += [slp + ":", "    s_sleep 4", f"    s_sub_u32 s{S_T}, s{S_T}, 1", f"    s_cbranch_scc0 {top}", f"    s_branch {done}"]
def presample(g, checks, regs, tag):
    for r, (srd, so, o, n) in zip(regs, checks):
        g.vm(f"buffer_load_dword v{r}, v{V_L0}, {sr(srd)}, {so} offen offset:{o} sc1", tag)
def arrive(g, *cs):
    e = g.e
    e("v_mov_b32 v1, 1"); e("s_mov_b64 exec, 1")
    for c in cs: e(f"ds_add_u32 v{V_CNT}, v1 offset:{CNT[c]-M_CNT}")
    e("s_mov_b64 exec, -1")
def lwait(g, c, n=4):
    e = g.e; top = g.newlab("lw"); done = g.newlab("ld")
    e(f"s_mov_b32 s{S_T}, {SPIN*8}")
    g.lab(top)
    e(f"ds_read_b32 v1, v{V_CNT} offset:{CNT[c]-M_CNT}"); e("s_waitcnt lgkmcnt(0)")
    e(f"v_readfirstlane_b32 s{S_T+1}, v1"); e(f"s_cmp_ge_u32 s{S_T+1}, {n}"); e(f"s_cbranch_scc1 {done}")
    e("s_sleep 1"); e(f"s_sub_u32 s{S_T}, s{S_T}, 1"); e(f"s_cbranch_scc0 {top}")
    g.lab(done)
def rowmax(g, v, op="v_max_u32_dpp"):
    for sh in (8, 4, 2, 1): g.e(f"{op} v{v}, v{v}, v{v} row_ror:{sh} {DPPALL}")
def wavemax_exp(g, v, sdst):
    e = g.e
    rowmax(g, v)
    e(f"v_readlane_b32 s{sdst}, v{v}, 0"); e(f"v_readlane_b32 s{S_T}, v{v}, 16"); e(f"s_max_u32 s{sdst}, s{sdst}, s{S_T}")
    e(f"v_readlane_b32 s{S_T}, v{v}, 32"); e(f"s_max_u32 s{sdst}, s{sdst}, s{S_T}")
    e(f"v_readlane_b32 s{S_T}, v{v}, 48"); e(f"s_max_u32 s{sdst}, s{sdst}, s{S_T}")
    e(f"s_lshr_b32 s{sdst}, s{sdst}, 23"); e(f"s_sub_u32 s{sdst}, s{sdst}, 126")
def put_max(g, slot):
    e = g.e
    rowmax(g, 1)
    e("v_lshrrev_b32 v2, 4, v0"); e(f"s_lshl_b32 s{S_T}, s{S_J}, 4"); e(f"s_add_u32 s{S_T}, s{S_T}, {slot}")
    e(f"v_lshl_add_u32 v2, v2, 2, s{S_T}")
    e("ds_write_b32 v2, v1")
def get_max(g, slot):
    e = g.e
    e("v_and_b32 v2, 15, v0"); e("v_lshlrev_b32 v2, 2, v2"); e(f"v_add_u32 v2, {slot}, v2")
    e("ds_read_b32 v1, v2"); e("s_waitcnt lgkmcnt(0)")
    rowmax(g, 1)
def pkmax(g, regs):
    e = g.e
    e(f"v_pk_max_u16 v1, v{regs[0]}, v{regs[1]}"); e(f"v_pk_max_u16 v3, v{regs[2]}, v{regs[3]}")
    for i, r in enumerate(regs[4:]): e(f"v_pk_max_u16 v{1 + 2*(i&1)}, v{1 + 2*(i&1)}, v{r}")
    e("v_pk_max_u16 v1, v1, v3"); e("v_alignbit_b32 v3, v1, v1, 16"); e("v_pk_max_u16 v1, v1, v3")
def pack_round(g, acc, off):
    e = g.e
    for t in range(7): e(f"v_fma_mixlo_f16 v{PK+t}, v{acc+2*t}, v{QS+t}, 0")
    for t in range(7): e(f"v_fma_mixhi_f16 v{PK+t}, v{acc+2*t+1}, v{QS+t}, 0")
    for t in range(7): e(f"v_alignbit_b32 v{PK+t}, v{PK+t}, v{PK+t}, v{QSH}")
    for t in range(7): e(f"ds_write_b32 v{QA+t}, v{PK+t} offset:{off}")
def s0_max(g, t):
    a = HX + 16 * t
    for i in range(7):
        if t == 0 and i == 0: g.e(f"v_max_f32 v1, |v{a}|, |v{a+1}|")
        else: g.e(f"v_max3_f32 v1, v1, |v{a+2*i}|, |v{a+2*i+1}|")
F0 = lambda c: sum(PAR.chunks[:c])
def dma_w(g, c):
    e = g.e
    Dc = (D0, D1)[c & 1]
    e(f"s_lshl_b32 s{S_T}, s{S_J}, 10")
    for fl in range(PAR.chunks[c]):
        e(f"s_add_u32 m0, s{S_T}, {Dc + fl*4096}")
        e(f"s_mov_b32 s{S_T+1}, {(F0(c)+fl)*53248}")
        g.vm(f"buffer_load_dwordx4 v{V_WSRC}, {sr(S_W1)}, s{S_T+1} offen lds", f"W{c}")
CHK_X = lambda: (S_WS, f"s{S_CX}", 0, 16)
def helper_common(g):
    e = g.e
    e("s_setprio 2")
    e(f"s_sub_u32 s{S_J}, s{S_WAVE}, 4")
    e("v_and_b32 v2, 31, v0"); e("v_lshrrev_b32 v3, 5, v0")
    e(f"v_lshlrev_b32 v{V_H16}, 4, v3")
    e(f"v_mad_u32_u24 v1, v2, 52, v{V_H16}")
    e(f"s_mul_i32 s{S_T}, s{S_J}, 1352")
    for t in range(7):
        if t < 6: e(f"s_add_u32 s{S_T+1}, s{S_T}, {(13*(t&1) + 4*(t>>1))*1352}")
        else:
            e(f"s_mul_i32 s{S_T+1}, s{S_J}, {13*1352}"); e(f"s_add_u32 s{S_T+1}, s{S_T+1}, {12*1352}")
        for s in range(2):
            g.vm(f"buffer_load_dwordx4 {vr(W0R+8*t+4*s,4)}, v1, {sr(S_WC)}, s{S_T+1} offen offset:{32*s}", f"w0_{t}")
    e(f"v_mov_b32 v5, {OOB}"); e("v_cmp_eq_u32 vcc, 0, v0"); e(f"v_cndmask_b32 v{V_L0}, v5, 0, vcc")
    e(f"s_lshl_b32 s{S_CX}, s{S_G}, 8"); e(f"s_add_u32 s{S_CX}, s{S_CX}, {WS_CNT}")
    e(f"s_add_u32 s{S_T}, s{S_R}, s{S_J}"); e(f"s_cmp_eq_u32 s{S_T}, 0"); e(f"s_cselect_b32 s{S_E3}, 0, {OOB}")
    e(f"v_add_u32 v34, s{S_E3}, v{V_L0}"); e("v_mov_b32 v35, 0")
    g.vm(f"buffer_store_dword v35, v34, {sr(S_WS)}, s{S_CX} offen sc1", "rst")
    e(f"v_mov_b32 v{V_CNT}, {M_CNT}")
    e("v_lshrrev_b32 v4, 3, v2"); e("v_and_b32 v6, 3, v2"); e("v_lshl_add_u32 v4, v4, 2, v6")
    e("v_bfe_u32 v6, v2, 2, 1"); e(f"v_mad_u32_u24 v{V_HROW}, v6, 13, v4")
    e("v_cmp_lt_u32 vcc, 12, v4"); e("v_mov_b32 v7, 0x100000"); e(f"v_cndmask_b32 v{V_HROW}, v{V_HROW}, v7, vcc")
    e("v_cmp_eq_u32 s[72:73], 0, v6"); e("s_and_b64 vcc, vcc, s[72:73]")
    e(f"v_lshlrev_b32 v{V_DMA}, 4, v0"); e(f"v_cndmask_b32 v{V_DMA}, v{V_DMA}, v5, vcc")
    e("v_lshrrev_b32 v27, 1, v2"); e("v_and_b32 v28, 1, v2"); e(f"v_lshlrev_b32 v{QSH}, 4, v28")
    e("v_sub_u32 v29, 25, v27"); e("v_mul_u32_u24 v29, v29, v27"); e("v_lshrrev_b32 v29, 1, v29")
    e(f"s_lshl_b32 s{S_T}, s{S_J}, 4")
    e(f"v_lshl_add_u32 v28, v28, 9, s{S_T}")
    e(f"v_lshl_add_u32 v30, v0, 2, s{S_T}"); e(f"v_add_u32 v30, {BUFA + 24*S0STR}, v30")
    e("v_mov_b32 v33, 0.5")
    for t in range(7):
        qb = 4 * (t >> 1) + (t & 1)
        e(f"v_lshl_add_u32 v31, v3, 1, {qb}")
        e("v_add_u32 v32, v29, v31")
        e(f"v_lshrrev_b32 v{QA+t}, 2, v32"); e(f"v_mul_u32_u24 v{QA+t}, {S0STR}, v{QA+t}")
        e("v_and_b32 v32, 3, v32"); e("v_lshl_add_u32 v32, v32, 2, v28"); e(f"v_add_u32 v{QA+t}, v{QA+t}, v32")
        e("v_cmp_lt_u32 vcc, v31, v27")
        if t == 6:
            e("v_cmp_lt_u32 s[72:73], 12, v31"); e("s_or_b64 vcc, vcc, s[72:73]")
        e(f"v_cndmask_b32 v{QA+t}, v{QA+t}, v30, vcc")
        e("v_cmp_eq_u32 vcc, v31, v27"); e(f"v_cndmask_b32 v{QS+t}, 1.0, v33, vcc")
    e("v_lshlrev_b32 v31, 3, v3"); e("v_sub_u32 v31, v2, v31")
    e("v_mov_b32 v32, 0x3f80"); e(f"v_lshlrev_b32 v32, v{QSH}, v32")
    e("v_lshrrev_b32 v31, 1, v31")
    for s in range(2):
        for i in range(4):
            e(f"v_cmp_eq_u32 vcc, {8*s+i}, v31"); e(f"v_cndmask_b32 v{ID+4*s+i}, 0, v32, vcc")
    e("v_mul_u32_u24 v3, 676, v3"); e(f"s_movk_i32 s{S_T+1}, 1352"); e(f"v_mad_u32_u24 v27, v{V_HROW}, s{S_T+1}, v3")
    e(f"s_mov_b64 s[{S_LC}:{S_LC+1}], s[{S_WC}:{S_WC+1}]"); e(f"s_mov_b32 s{S_LC+3}, 0x00020000"); e(f"s_mov_b32 s{S_LC+2}, {2*LB}")
    e("v_lshrrev_b32 v1, 3, v0"); e(f"s_lshl_b32 s{S_T}, s{S_J}, 3"); e(f"v_add_u32 v1, s{S_T}, v1")
    e("v_mul_u32_u24 v1, 1664, v1")
    e("v_bfe_u32 v2, v0, 4, 1"); e("v_lshlrev_b32 v2, 2, v2"); e("v_and_b32 v3, 7, v0"); e("v_xor_b32 v2, v2, v3")
    e("v_lshl_add_u32 v1, v2, 4, v1"); e(f"s_lshl_b32 s{S_SB}, s{S_R}, 7"); e(f"v_add_u32 v{V_WSRC}, s{S_SB}, v1")
    e("v_lshrrev_b32 v1, 5, v0"); e("v_bfe_u32 v2, v0, 2, 2")
    e("v_lshl_add_u32 v1, v1, 3, v2"); e("v_lshlrev_b32 v1, 7, v1")
    e("v_bfe_u32 v3, v0, 4, 1"); e("v_lshl_add_u32 v1, v3, 5, v1"); e("v_and_b32 v3, 3, v0"); e("v_lshl_add_u32 v1, v3, 3, v1")
    e("v_lshrrev_b32 v2, 1, v2"); e("v_lshl_add_u32 v1, v2, 6, v1")
    e(f"v_add_u32 v{V_TR0}, {D0}, v1"); e(f"v_xor_b32 v{V_TR1}, 64, v{V_TR0}")
    e(f"s_mul_i32 s{S_PO}, s{S_G}, 13"); e(f"s_add_u32 s{S_PO}, s{S_PO}, s{S_R}"); e(f"s_lshl_b32 s{S_PO}, s{S_PO}, 2"); e(f"s_add_u32 s{S_PO}, s{S_PO}, s{S_J}")
    e(f"s_lshl_b32 s{S_PO}, s{S_PO}, 8"); e(f"s_add_u32 s{S_PO}, s{S_PO}, {WS_PART}")
    for t in range(7):
        g.vmwait(f"w0_{t}")
        a = HX + 16 * t; w = W0R + 8 * t
        e(f"v_mfma_f32_32x32x16_bf16 {vr(a,16)}, {vr(w,4)}, {vr(ID,4)}, 0")
        e(f"v_mfma_f32_32x32x16_bf16 {vr(a,16)}, {vr(w+4,4)}, {vr(ID+4,4)}, {vr(a,16)}")
        e(f"v_mfma_f32_32x32x16_bf16 {vr(a,16)}, {vr(ID,4)}, {vr(w,4)}, {vr(a,16)}")
        e(f"v_mfma_f32_32x32x16_bf16 {vr(a,16)}, {vr(ID+4,4)}, {vr(w+4,4)}, {vr(a,16)}")
        if t > 0: s0_max(g, t - 1)
    s0_max(g, 6)
    put_max(g, M_S0)
    e("s_waitcnt lgkmcnt(0)")
    e("s_barrier")
    g.stamp()
    g.vmwait("rst")
    e("v_mov_b32 v35, 1"); e(f"s_lshl_b32 s{S_E3}, s{S_G}, 2")
    g.vm(f"buffer_store_dword v35, v34, {sr(S_DBG)}, s{S_E3} offen offset:{C_RDY} sc1", "rdy")
    e(f"s_cmp_ge_u32 s{S_R}, 13"); e("s_cbranch_scc1 L_pe1")
    g.lab("L_pe1r")
    e(f"s_mov_b32 s{S_WC+2}, {2*LB}")
    e("v_lshlrev_b32 v243, 4, v0"); e("v_cmp_lt_u32 vcc, 42, v0"); e(f"v_mov_b32 v2, {OOB}"); e("v_cndmask_b32 v243, v243, v2, vcc")
    def l1load(i):
        if i < 12:
            t = i >> 1
            if i & 1 == 0:
                e(f"s_mul_i32 s{S_T+1}, s{S_J}, 1352"); e(f"s_add_u32 s{S_T+1}, s{S_T+1}, {LB + (13*(t&1) + 4*(t>>1))*1352}")
            g.vm(f"buffer_load_dwordx4 {vr(L1R+4*i,4)}, v243, {sr(S_WC)}, s{S_T+1} offen offset:{676*(i&1)}", "l1r")
        else:
            e(f"s_lshr_b32 s{S_T+1}, s{S_J}, 1"); e(f"s_mul_i32 s{S_T+1}, s{S_T+1}, {13*1352}"); e(f"s_and_b32 s{S_T+2}, s{S_J}, 1"); e(f"s_mul_i32 s{S_T+2}, s{S_T+2}, 676")
            e(f"s_add_u32 s{S_T+1}, s{S_T+1}, s{S_T+2}"); e(f"s_add_u32 s{S_T+1}, s{S_T+1}, {LB + 12*1352}")
            g.vm(f"buffer_load_dwordx4 {vr(L1R+4*i,4)}, v243, {sr(S_WC)}, s{S_T+1} offen", "l1r")
    get_max(g, M_S0)
    e("v_lshlrev_b32 v3, 4, v0"); e(f"v_mov_b32 v{PK}, 0")
    e(f"ds_write_b32 v3, v{PK} offset:{BUFA + 22*S0STR + 12}")
    e("v_lshrrev_b32 v1, 23, v1")
    e("v_max_u32 v1, 14, v1")
    e("v_sub_u32 v2, 141, v1")
    e("v_subrev_u32 v1, 141, v1")
    e(f"ds_write_b32 v3, v1 offset:{BUFA + 23*S0STR + 512}")
    for t in range(7): e(f"v_ldexp_f32 v{QS+t}, v{QS+t}, v2")
    for t in range(7):
        if t == 6:
            e(f"s_cmp_eq_u32 s{S_J}, 1"); e(f"s_cselect_b32 s{S_T}, 48, 0")
            for i in range(7): e(f"v_add_u32 v{QA+i}, s{S_T}, v{QA+i}")
        l1load(2 * t)
        if t < 6: l1load(2 * t + 1)
        pack_round(g, HX + 16 * t, 16 * (8 * (t >> 1) + 4 * (t & 1)))
    e("s_waitcnt lgkmcnt(0)")
    g.stamp()
    e("s_barrier")
    e(f"s_cmp_ge_u32 s{S_R}, 13"); e("s_cbranch_scc1 L_pe2")
    e("v_lshlrev_b32 v1, 2, v0"); e("v_mov_b32 v2, -1")
    g.vm(f"buffer_store_dword v2, v1, {sr(S_WS)}, s{S_PO} offen sc1", "sent")
    dma_w(g, 0)
    dma_w(g, 1)
    e(f"v_lshrrev_b32 v1, 1, v{V_H16}")
    for a in range(2):
        for q in range(4):
            g.vm(f"buffer_load_dwordx2 {vr(BT+8*a+2*q,2)}, v1, {sr(S_B1)}, s{S_SB} offen offset:{64*a+16*q}", "bias")
    g.stamp("s")
    g.vmwait("l1r")
    g.lab("L_pe2r")
    g.stamp("s")
    presample(g, [(S_DBG, f"s{S_E3}", C_RDY, 1)], [232], "rdyl")
    e(f"v_mov_b32 v235, s{S_MASK}"); e("v_cmp_eq_u32 vcc, 42, v0"); e("v_cndmask_b32 v235, v235, 0, vcc")
    e(f"s_and_b32 s{S_T}, s{S_J}, 1"); e(f"s_lshl_b32 s{S_T}, s{S_T}, 4")
    for i in range(13):
        for r in range(4):
            x = L1R + 4 * i + r
            if i == 12: e(f"v_alignbit_b32 v{x}, v{x}, v{x}, s{S_T}")
            elif i & 1: e(f"v_alignbit_b32 v{x}, v{x}, v{x}, 16")
        for r in range(4): e(f"v_and_b32 v{HX+4*i+r}, {'v235' if r else f's{S_MASK}'}, v{L1R+4*i+r}")
    pkmax(g, [HX + i for i in range(52)])
    put_max(g, M_L1)
    arrive(g, "L1M")
    lwait(g, "L1M")
    g.stamp("s")
    get_max(g, M_L1)
    e("v_and_b32 v1, 0x7f807f80, v1"); e("v_mov_b32 v2, 0x0f000f00"); e("v_pk_sub_u16 v233, v1, v2 clamp")
    e("v_bfe_u32 v1, v233, 7, 8"); e("v_subrev_u32 v1, 112, v1")
    e(f"v_mov_b32 v2, {M_EW1}"); e("ds_write_b32 v2, v1")
    e(f"s_lshl_b32 s{S_T}, s{S_J}, 4"); e(f"s_add_u32 s{S_T}, s{S_T}, {BUFB}")
    e(f"v_mul_u32_u24 v234, {S0STR}, v0"); e(f"v_add_u32 v234, s{S_T}, v234")
    e("s_mov_b32 exec_hi, 0x7ff")
    for i in range(13):
        for r in range(4): e(f"v_pk_sub_u16 v{HX+4*i+r}, v{HX+4*i+r}, v233 clamp")
        for r in range(4): e(f"v_lshlrev_b32 v{HX+4*i+r}, 3, v{HX+4*i+r}")
        for r in range(4): e(f"v_bfi_b32 v{L1R+4*i+r}, s{S_MASK}, v{HX+4*i+r}, v{L1R+4*i+r}")
        if i < 12:
            t = i >> 1; o = 16 * (8 * (t >> 1) + 4 * (t & 1)) + 512 * (i & 1)
        else:
            e(f"s_lshr_b32 s{S_T}, s{S_J}, 1"); e(f"s_lshl_b32 s{S_T}, s{S_T}, 5"); e(f"s_and_b32 s{S_T+1}, s{S_J}, 1"); e(f"s_mul_i32 s{S_T+1}, s{S_T+1}, 496")
            e(f"s_add_u32 s{S_T}, s{S_T}, s{S_T+1}"); e(f"v_add_u32 v234, s{S_T}, v234"); o = 24 * 16
        e(f"ds_write_b128 v234, {vr(L1R+4*i,4)} offset:{o}")
    arrive(g, "L1OK")
    g.stamp(); g.stamp("s")
    e("s_waitcnt vmcnt(0)")
    g.stamp("s")
    arrive(g, "XST")
    poll(g, [(S_DBG, f"s{S_E3}", C_RDY, 1)], pre=[232])
    e(f"s_cmp_lg_u32 s{S_J}, 0"); e("s_cbranch_scc1 L_nosig")
    lwait(g, "XST", 8)
    e("v_mov_b32 v1, 1")
    e(f"buffer_atomic_add v1, v{V_L0}, {sr(S_WS)}, s{S_CX} offen sc1")
    g.lab("L_nosig")
    g.stamp("s")

def helper_dnn(g):
    e = g.e
    CH = PAR.chunks; NS = PAR.nslot
    def xb(f, tile, t): return HX + 16 * (f % NS) + 8 * tile + 4 * t
    def xload(f):
        e(f"s_add_u32 s{S_T+2}, s{S_XB}, {f*4096}")
        for tile in range(2):
            for t in range(2):
                g.vm(f"buffer_load_dwordx4 {vr(xb(f,tile,t),4)}, v2, {sr(S_WS)}, s{S_T+2} offen offset:{2048*tile+1024*t} {PAR.ld}", f"x{f}")
    for a in range(2):
        for i in range(8):
            e(f"v_lshlrev_b32 v{HACC+16*a+2*i}, 16, v{BT+8*a+i}")
            e(f"v_and_b32 v{HACC+16*a+2*i+1}, 0xffff0000, v{BT+8*a+i}")
    for i in range(32): e(f"v_mov_b32 v{HACC+32+i}, v{HACC+i}")
    arrive(g, "W01")
    e(f"s_lshl_b32 s{S_XB}, s{S_G}, 2"); e(f"s_add_u32 s{S_XB}, s{S_XB}, s{S_J}"); e(f"s_mul_i32 s{S_XB}, s{S_XB}, 106496"); e(f"s_add_u32 s{S_XB}, s{S_XB}, {WS_X}")
    poll(g, [CHK_X()]); g.vmq = []
    g.stamp("s")
    g.stamp()
    e("v_bfe_u32 v2, v0, 2, 3"); e("v_lshlrev_b32 v2, 7, v2"); e(f"v_lshl_add_u32 v2, v{V_H16}, 2, v2"); e("v_and_b32 v3, 3, v0"); e("v_lshl_add_u32 v2, v3, 4, v2")
    for f in range(NS): xload(f)
    FL = 232
    W2R = 232 + 0
    wring = [0]
    def loc(ks):
        f = ks // 2; c = max(i for i in range(4) if F0(i) <= f)
        return c, ks - 2 * F0(c)
    def wread(ks):
        c, kl = loc(ks)
        Dc = (D0, D1)[c & 1]
        base = HW_ + 8 * (wring[0] % 3); wring[0] += 1
        for a, ad in ((0, V_TR0), (1, V_TR1)):
            for rd in range(2):
                e(f"ds_read_b64_tr_b16 {vr(base+4*a+2*rd,2)}, v{ad} offset:{Dc - D0 + kl*2048 + rd*512}")
        return base
    CK2 = [(S_DBG, "0", C_L[2], 11)]; CKQ = [(S_DBG, "0", C_Q, 9)]; CK3 = [(S_DBG, "0", C_L[3], 11)]
    def act_l2():
        lwait(g, "AFREE"); g.vmwait("f2"); poll(g, CK2, pre=[196]); dma_img(g, "L2", 44, BUFA)
    after = {}
    def add(f, fn): after.setdefault(f, []).append(fn)
    add(PAR.l2pos - 2, lambda: presample(g, CK2, [196], "f2"))
    add(PAR.l2pos, act_l2)
    add(PAR.l2pos + 4, lambda: (g.vmwait("L2"), arrive(g, "L2OK")))
    add(F0(1), lambda: (lwait(g, "C0"), dma_w(g, 2)))
    add(F0(3) - 3, lambda: presample(g, CKQ + CK3, [196, 197], "fq"))
    lwait(g, "W01")
    for c in range(4):
        k0 = 2 * F0(c); k1 = 2 * F0(c + 1)
        bufs = {k0: wread(k0), k0 + 1: wread(k0 + 1)}
        for ks in range(k0, k1):
            f, t = divmod(ks, 2)
            if t == 0: g.vmwait(f"x{f}")
            e(f"s_waitcnt lgkmcnt({4 if ks + 1 < k1 else 0})")
            for a in range(2):
                for tile in range(2):
                    acc = HACC + 32 * tile + 16 * a
                    e(f"v_mfma_f32_32x32x16_bf16 {vr(acc,16)}, {vr(bufs[ks]+4*a,4)}, {vr(xb(f,tile,t),4)}, {vr(acc,16)}")
                if a == 0 and ks + 2 < k1: bufs[ks + 2] = wread(ks + 2)
            if t == 1:
                if f + NS < 26: xload(f + NS)
                for fn in after.get(f, []): fn()
        if c == 0: arrive(g, "C0"); g.stamp()
        if c == 1:
            g.vmwait("W2"); arrive(g, "C1"); lwait(g, "C1"); dma_w(g, 3)
        if c == 2:
            g.vmwait("W3"); arrive(g, "C2"); lwait(g, "C2")
            g.vmwait("fq"); poll(g, CKQ, pre=[196]); dma_img(g, "Q4", 28, D0)
            e(f"v_lshrrev_b32 v1, 1, v{V_H16}")
            for a in range(2):
                for q in range(4):
                    g.vm(f"buffer_load_dwordx2 {vr(W2R+8*a+2*q,2)}, v1, {sr(S_W2)}, s{S_SB} offen offset:{64*a+16*q}", "w2")
    e("s_waitcnt vmcnt(0)"); arrive(g, "QOK")
    g.stamp()
    e("s_setprio 0")
    W2F = HX
    for i in range(16):
        e(f"v_lshlrev_b32 v{W2F+2*i}, 16, v{W2R+i}")
        e(f"v_and_b32 v{W2F+2*i+1}, 0xffff0000, v{W2R+i}")
    c0 = 2 * 0.7978845608028654 * 1.4426950408889634
    e(f"s_mov_b32 s{S_C1}, {f2u(c0*0.044715):#x}")
    e(f"v_mov_b32 v2, {f2u(c0):#x}")
    T = HX + 32; SUM = HX + 48
    for i in range(4): e(f"v_mov_b32 v{SUM+i}, 0")
    def gelu(blk):
        rs = [HACC + 4 * blk + i for i in range(4)]
        tile = (4 * blk) // 32
        for i, r in enumerate(rs): e(f"v_mul_f32 v{T+i}, v{r}, v{r}")
        for i, r in enumerate(rs): e(f"v_fma_f32 v{T+i}, v{T+i}, s{S_C1}, v2")
        for i, r in enumerate(rs): e(f"v_mul_f32 v{T+i}, v{T+i}, v{r}")
        for i, r in enumerate(rs): e(f"v_exp_f32 v{T+i}, -v{T+i}")
        for i, r in enumerate(rs): e(f"v_mul_f32 v{r}, v{r}, v{W2F + (r - HACC) % 32}")
        for i, r in enumerate(rs): e(f"v_add_f32 v{T+i}, 1.0, v{T+i}")
        for i, r in enumerate(rs): e(f"v_rcp_f32 v{T+i}, v{T+i}")
        for i, r in enumerate(rs): e(f"v_fmac_f32 v{SUM + 2*tile + (i&1)}, v{r}, v{T+i}")
    for blk in range(16):
        if blk == PAR.gsplit:
            lwait(g, "BFREE"); poll(g, CK3, pre=[197]); dma_img(g, "L3", 44, BUFB)
        if blk == PAR.gsplit2:
            e("s_waitcnt vmcnt(0)"); arrive(g, "L3OK")
        gelu(blk)
    e(f"v_add_f32 v{SUM}, v{SUM}, v{SUM+1}"); e(f"v_add_f32 v{SUM+2}, v{SUM+2}, v{SUM+3}")
    e(f"v_permlane32_swap_b32 v{SUM}, v{SUM+2}")
    e(f"v_add_f32 v{SUM}, v{SUM}, v{SUM+2}")
    e(f"v_min_u32 v{SUM}, -2, v{SUM}")
    e("v_lshlrev_b32 v1, 2, v0")
    e(f"buffer_store_dword v{SUM}, v1, {sr(S_WS)}, s{S_PO} offen sc1")
    g.stamp()
    g.flush_stamps(4, 5)
    e("s_endpgm")

def gsignal(g, c, off, so="0"):
    e = g.e; done = g.newlab("sg")
    e("s_waitcnt vmcnt(0)"); arrive(g, c)
    e(f"s_cmp_lg_u32 s{S_J}, 0"); e(f"s_cbranch_scc1 {done}")
    lwait(g, c)
    e("v_mov_b32 v1, 1")
    e(f"buffer_atomic_add v1, v{V_L0}, {sr(S_DBG)}, {so} offen offset:{off} sc1")
    g.lab(done)
SCN, FR, WV, WP, W1V, AQ, RW = 28, 64, 244, 245, 160, 44, 120
S_E4, S_LW = 62, 63
def prod_early1(g):
    e = g.e
    g.lab("L_pe1")
    e(f"s_mul_i32 s{S_WP}, s{S_G}, 3"); e(f"s_add_u32 s{S_WP}, s{S_WP}, s{S_R}"); e(f"s_sub_u32 s{S_WP}, s{S_WP}, 13")
    e(f"s_cmp_ge_u32 s{S_WP}, 31"); e("s_cbranch_scc1 L_pe1r")
    e(f"s_mul_i32 s{S_L}, s{S_WP}, 94"); e(f"s_lshr_b32 s{S_L}, s{S_L}, 10")
    e(f"s_mul_i32 s{S_T}, s{S_L}, 11"); e(f"s_sub_u32 s{S_FR}, s{S_WP}, s{S_T}"); e(f"s_lshl_b32 s{S_FR}, s{S_FR}, 2"); e(f"s_add_u32 s{S_FR}, s{S_FR}, s{S_J}")
    e(f"s_add_u32 s{S_L}, s{S_L}, 2")
    e(f"s_mul_i32 s{S_E2}, s{S_L}, {LB}")
    e(f"s_add_u32 s{S_LC+2}, s{S_E2}, {LB}")
    e("v_lshlrev_b32 v1, 4, v0")
    e(f"s_mul_i32 s{S_T}, s{S_J}, 9216"); e(f"s_add_u32 s{S_T}, s{S_T}, s{S_E2}")
    for i in range(9):
        if i % 4 == 0 and i: e(f"s_add_u32 s{S_T}, s{S_T}, 4096")
        e(f"buffer_load_dwordx4 {vr(SCN+4*i,4)}, v1, {sr(S_LC)}, s{S_T} offen offset:{(i%4)*1024}")
    e(f"s_cmp_ge_u32 s{S_WP}, 22"); e("s_cbranch_scc1 L_pe1r")
    e(f"s_lshl_b32 s{S_T}, s{S_FR}, 4"); e(f"s_add_u32 s{S_T}, s{S_T}, s{S_E2}")
    e(f"buffer_load_dwordx4 {vr(FR,4)}, v27, {sr(S_LC)}, s{S_T} offen")
    e(f"v_lshlrev_b32 v1, 1, v{V_HROW}"); e(f"s_mul_i32 s{S_T}, s{S_L}, 52")
    e(f"buffer_load_ushort v{WV}, v1, {sr(S_WO)}, s{S_T} offen")
    e(f"buffer_load_ushort v{WP}, v1, {sr(S_WO)}, 52 offen")
    e("s_branch L_pe1r")
def prod_early2(g):
    e = g.e
    g.lab("L_pe2")
    e("s_waitcnt vmcnt(0)")
    e(f"s_cmp_ge_u32 s{S_WP}, 31"); e("s_cbranch_scc1 L_pe2r")
    e(f"s_cmp_ge_u32 s{S_WP}, 22"); e("s_cbranch_scc1 L_pe2q")
    e("v_lshrrev_b32 v3, 5, v0"); e("v_mul_u32_u24 v3, 26, v3")
    for i in range(8):
        e(f"s_lshl_b32 s{S_T}, s{S_FR}, 3"); e(f"s_sub_u32 s{S_T}, s{S_T}, {8*42 + 2 - i}")
        e(f"s_lshl_b32 s{S_T+1}, s{S_T}, 1"); e(f"s_add_u32 s{S_T+1}, s{S_T+1}, 52")
        e(f"s_cmp_lt_u32 s{S_T}, 13"); e(f"s_cselect_b32 s{S_T+1}, s{S_T+1}, {OOB}")
        e(f"v_add_u32 v2, s{S_T+1}, v3")
        e(f"buffer_load_ushort v{W1V+i}, v2, {sr(S_WO)}, 0 offen")
    e("s_branch L_pe2m")
    g.lab("L_pe2q")
    e(f"s_cmp_eq_u32 s{S_WP}, 29"); e(f"s_cselect_b32 s{S_LW}, 4, 5"); e(f"s_cmp_eq_u32 s{S_WP}, 30"); e(f"s_cselect_b32 s{S_LW}, 0, s{S_LW}")
    e(f"s_mul_i32 s{S_E2}, s{S_LW}, {LB}"); e(f"s_add_u32 s{S_LC+2}, s{S_E2}, {LB}")
    e("v_lshlrev_b32 v1, 1, v0"); e("v_cmp_lt_u32 vcc, 25, v0"); e(f"v_mov_b32 v2, {OOB}"); e("v_cndmask_b32 v1, v1, v2, vcc")
    e(f"s_mul_i32 s{S_T}, s{S_LW}, 52")
    e(f"buffer_load_ushort v{WV}, v1, {sr(S_WO)}, s{S_T} offen")
    e("v_lshlrev_b32 v1, 4, v0")
    e(f"s_mul_i32 s{S_T}, s{S_J}, 1352"); e(f"s_add_u32 s{S_T}, s{S_T}, s{S_E2}")
    for t in range(7):
        for ps in range(2):
            e(f"buffer_load_dwordx4 {vr(RW+8*t+4*ps,4)}, v1, {sr(S_LC)}, s{S_T} offen offset:{1024*ps}")
        e(f"s_add_u32 s{S_T}, s{S_T}, {4*1352}")
    g.lab("L_pe2m")
    for i in range(36): e(f"v_and_b32 v{SCN+i}, s{S_MASK}, v{SCN+i}")
    pkmax(g, [SCN + i for i in range(36)])
    put_max(g, M_SC)
    arrive(g, "SCM"); lwait(g, "SCM")
    get_max(g, M_SC)
    e(f"v_readfirstlane_b32 s{S_E0}, v1")
    e(f"s_bfe_u32 s{S_E0}, s{S_E0}, 0x80007")
    e(f"s_cmp_lt_u32 s{S_WP}, 22"); e("s_cbranch_scc1 L_gjob")
    e("v_and_b32 v2, 31, v0"); e("v_lshrrev_b32 v3, 5, v0")
    e("v_mul_u32_u24 v1, 676, v3"); e("v_add_lshl_u32 v1, v1, v2, 1")
    e(f"s_mul_i32 s{S_T}, s{S_FR}, 52"); e(f"s_add_u32 s{S_T}, s{S_T}, {4*LB}")
    for s in range(13):
        e(f"buffer_load_ushort v{AQ+s}, v1, {sr(S_LC)}, s{S_T} offen")
        e(f"s_add_u32 s{S_T}, s{S_T}, 2704")
    e("s_branch L_pe2r")
    g.lab("L_gjob")
    e(f"s_max_u32 s{S_T+2}, s{S_E0}, 30"); e(f"s_sub_u32 s{S_T+2}, s{S_T+2}, 30")
    e(f"s_mul_i32 s{S_T+3}, s{S_T+2}, 0x800080")
    e(f"s_cmp_lt_u32 s{S_FR}, 42"); e(f"s_cselect_b32 s{S_T+1}, -1, 0")
    for i in range(1, 4): e(f"v_and_b32 v{FR+i}, s{S_T+1}, v{FR+i}")
    e(f"s_cmp_lt_u32 s{S_FR}, 43"); e(f"s_cselect_b32 s{S_T+1}, -1, 0"); e(f"v_and_b32 v{FR}, s{S_T+1}, v{FR}")
    for i in range(4): e(f"v_alignbit_b32 v{FR+i}, v{FR+i}, v{FR+i}, v{V_H16}")
    for i in range(4): e(f"v_and_b32 v{SCN+i}, s{S_MASK}, v{FR+i}")
    for i in range(4): e(f"v_pk_sub_u16 v{SCN+i}, v{SCN+i}, s{S_T+3} clamp")
    for i in range(4): e(f"v_lshlrev_b32 v{SCN+i}, 3, v{SCN+i}")
    for i in range(4): e(f"v_bfi_b32 v{FR+i}, s{S_MASK}, v{SCN+i}, v{FR+i}")
    e(f"v_lshlrev_b32 v{WV}, 16, v{WV}")
    e(f"v_and_b32 v1, 0x7fffffff, v{WV}")
    wavemax_exp(g, 1, S_E1)
    e(f"s_add_u32 s{S_E1}, s{S_E1}, 5"); e(f"s_sub_u32 s{S_T}, 0, s{S_E1}")
    e(f"v_ldexp_f32 v{WV}, v{WV}, s{S_T}")
    for i in range(8):
        sel = "op_sel:[1,0,0] op_sel_hi:[1,0,0]" if i & 1 else "op_sel_hi:[1,0,0]"
        e(f"v_fma_mix_f32 v{SCN+i}, v{FR+(i>>1)}, v{WV}, 0 {sel}")
    for sh in (1, 2, 4, 8):
        for i in range(8): e(f"v_add_f32_dpp v{SCN+i}, v{SCN+i}, v{SCN+i} row_shr:{sh} {DPPALL} bound_ctrl:0")
    for i in range(8): e(f"v_add_f32_dpp v{SCN+i}, v{SCN+i}, v{SCN+i} row_bcast:15 row_mask:0xa bank_mask:0xf")
    for i in range(4): e(f"v_cvt_pk_f16_f32 v{SCN+2*i}, v{SCN+2*i}, v{SCN+2*i+1}")
    e("v_and_b32 v2, 31, v0"); e("v_cmp_eq_u32 vcc, 31, v2")
    for i in range(4): e(f"v_cndmask_b32 v{FR+i}, v{FR+i}, v{SCN+2*i}, vcc")
    e(f"v_lshlrev_b32 v1, 16, v{WP}"); e("v_and_b32 v1, 0x7fffffff, v1")
    wavemax_exp(g, 1, S_E4)
    e(f"s_sub_u32 s{S_T}, 15, s{S_E4}")
    e("s_waitcnt vmcnt(0)")
    for i in range(8): e(f"v_lshlrev_b32 v{W1V+i}, 16, v{W1V+i}")
    for i in range(8): e(f"v_ldexp_f32 v{W1V+i}, v{W1V+i}, s{S_T}")
    for i in range(4): e(f"v_cvt_pk_f16_f32 v{W1V+2*i}, v{W1V+2*i}, v{W1V+2*i+1}")
    e("v_cmp_eq_u32 vcc, 30, v2")
    for i in range(4): e(f"v_cndmask_b32 v{FR+i}, v{FR+i}, v{W1V+2*i}, vcc")
    e(f"s_cmp_lg_u32 s{S_FR}, 0"); e("s_cbranch_scc1 L_nohdr")
    e(f"s_sub_u32 s{S_T+2}, s{S_T+2}, 112"); e(f"s_add_u32 s{S_E1}, s{S_E1}, s{S_T+2}"); e(f"s_sub_u32 s{S_E4}, s{S_E4}, 15")
    e(f"v_writelane_b32 v{FR}, s{S_T+2}, 29"); e(f"v_writelane_b32 v{FR+1}, s{S_E1}, 29"); e(f"v_writelane_b32 v{FR+2}, s{S_E4}, 29")
    g.lab("L_nohdr")
    e(f"s_mul_i32 s{S_T}, s{S_L}, {44*1024}"); e(f"s_lshl_b32 s{S_T+1}, s{S_FR}, 10"); e(f"s_add_u32 s{S_T}, s{S_T}, s{S_T+1}")
    e(f"s_sub_u32 s{S_T}, s{S_T}, {88*1024 - IMG['L2']}")
    e("v_lshlrev_b32 v1, 4, v0")
    e(f"buffer_store_dwordx4 {vr(FR,4)}, v1, {sr(S_WS)}, s{S_T} offen sc1")
    e("s_nop 1")
    e("s_branch L_pe2r")
def helper_prod(g):
    e = g.e
    e(f"s_cmp_ge_u32 s{S_WP}, 31"); e("s_cbranch_scc1 L_idle")
    e(f"s_cmp_ge_u32 s{S_WP}, 22"); e("s_cbranch_scc1 L_nog")
    e(f"s_lshl_b32 s{S_T+2}, s{S_L}, 2"); e(f"s_sub_u32 s{S_T+2}, s{S_T+2}, 8")
    gsignal(g, "GST", 0, f"s{S_T+2}")
    e("s_branch L_idle")
    g.lab("L_nog")
    AC = HX; TU = HX + 16
    g.stamp("q")
    e(f"v_lshlrev_b32 v{WV}, 16, v{WV}"); e(f"v_and_b32 v1, 0x7fffffff, v{WV}")
    wavemax_exp(g, 1, S_E1)
    e(f"s_sub_u32 s{S_T}, 0, s{S_E1}"); e(f"v_ldexp_f32 v{WV}, v{WV}, s{S_T}")
    for i in range(16): e(f"v_mov_b32 v{AC+i}, 0")
    for t in range(7):
        e(f"s_add_u32 s{S_T}, s{S_J}, {4*t}")
        e(f"v_readlane_b32 s{S_T+1}, v{WV}, s{S_T}")
        for i in range(8):
            e(f"v_lshlrev_b32 v{TU+2*i}, 16, v{RW+8*t+i}"); e(f"v_and_b32 v{TU+2*i+1}, 0xffff0000, v{RW+8*t+i}")
        for i in range(16): e(f"v_fmac_f32 v{AC+i}, s{S_T+1}, v{TU+i}")
    PSTR = 4096
    e(f"s_mul_i32 s{S_T}, s{S_J}, {PSTR}"); e(f"s_add_u32 s{S_T}, s{S_T}, {D0}")
    e(f"v_lshl_add_u32 v1, v0, 5, s{S_T}")
    for ps in range(2):
        for hf in range(2): e(f"ds_write_b128 v1, {vr(AC+8*ps+4*hf,4)} offset:{2048*ps+16*hf}")
    g.stamp("q"); arrive(g, "WC"); lwait(g, "WC"); g.stamp("q")
    e(f"s_cmp_eq_u32 s{S_FR}, 28"); e("s_cbranch_scc1 L_lin")
    e(f"s_cmp_lt_u32 s{S_FR}, 26"); e("s_cbranch_scc1 L_q")
    e(f"s_cmp_lg_u32 s{S_FR}, 32"); e("s_cbranch_scc1 L_noq")
    g.lab("L_q")
    BQ, PT, DQ = HX + 16, HX + 32, HX + 96
    e("v_and_b32 v2, 31, v0"); e("v_lshrrev_b32 v3, 5, v0")
    e("v_mad_u32_u24 v1, v3, 26, v2"); e("v_lshlrev_b32 v1, 2, v1"); e(f"v_add_u32 v1, {D0}, v1")
    def readsum(stride):
        for pj in range(4):
            for s in range(13): e(f"ds_read_b32 v{PT+13*pj+s}, v1 offset:{PSTR*pj + stride*s}")
            if pj: e("s_waitcnt lgkmcnt(13)")
        e("s_waitcnt lgkmcnt(0)")
        for s in range(13):
            e(f"v_add_f32 v{PT+s}, v{PT+s}, v{PT+13+s}"); e(f"v_add_f32 v{PT+26+s}, v{PT+26+s}, v{PT+39+s}")
        for s in range(13): e(f"v_add_f32 v{BQ+s}, v{PT+s}, v{PT+26+s}")
    def max13():
        e(f"v_max3_f32 v1, |v{BQ}|, |v{BQ+1}|, |v{BQ+2}|")
        for s in range(3, 13, 2): e(f"v_max3_f32 v1, v1, |v{BQ+s}|, |v{BQ+s+1}|")
    readsum(208)
    e("v_cmp_gt_u32 vcc, 26, v2")
    for s in range(13): e(f"v_cndmask_b32 v{BQ+s}, 0, v{BQ+s}, vcc")
    max13()
    wavemax_exp(g, 1, S_E2)
    e(f"s_sub_u32 s{S_T}, 0, s{S_E2}")
    for s in range(13): e(f"v_ldexp_f32 v{BQ+s}, v{BQ+s}, s{S_T}")
    e("s_waitcnt vmcnt(0)")
    e(f"s_sub_u32 s{S_E0}, s{S_E0}, 126")
    e(f"s_sub_u32 s{S_T}, 0, s{S_E0}")
    for s in range(13): e(f"v_lshlrev_b32 v{AQ+s}, 16, v{AQ+s}")
    for s in range(13): e(f"v_ldexp_f32 v{AQ+s}, v{AQ+s}, s{S_T}")
    e(f"s_cmp_ge_u32 s{S_FR}, 13"); e(f"s_cselect_b32 s{S_T+1}, 13, 0"); e(f"s_cselect_b32 s{S_T+2}, 4, 0")
    e(f"s_sub_u32 s{S_T+1}, s{S_FR}, s{S_T+1}"); e(f"s_and_b32 s{S_T+3}, s{S_T+1}, 3"); e(f"s_add_u32 s{S_T+2}, s{S_T+2}, s{S_T+3}")
    e(f"s_lshr_b32 s{S_T+1}, s{S_T+1}, 2"); e(f"s_lshl_b32 s{S_T+1}, s{S_T+1}, 3"); e(f"s_add_u32 s{S_SB}, s{S_T+2}, s{S_T+1}")
    e(f"s_mov_b32 s{S_L}, 0")
    e(f"s_cmp_lg_u32 s{S_FR}, 32"); e("s_cbranch_scc1 L_q2")
    e("v_sub_u32 v1, v2, v3")
    for s in range(13):
        e(f"v_cmp_eq_u32 vcc, {2*s}, v1"); e(f"v_cndmask_b32 v{AQ+s}, 0, 1.0, vcc")
    e(f"s_mov_b32 s{S_E0}, 0"); e(f"s_mov_b32 s{S_SB}, 31"); e(f"s_mov_b32 s{S_L}, 8")
    g.lab("L_q2")
    g.stamp("q")
    e("s_nop 1")
    for s in range(13):
        e(f"v_mfma_f32_32x32x2_f32 {vr(DQ,16)}, v{AQ+s}, v{BQ+s}, {'0' if s == 0 else vr(DQ,16)}")
        e(f"v_mfma_f32_32x32x2_f32 {vr(DQ,16)}, v{BQ+s}, v{AQ+s}, {vr(DQ,16)}")
    e(f"v_max_f32 v1, v{QS}, v{QS+1}")
    e("v_mov_b32 v30, 0x44800000"); e("v_mov_b32 v31, 0x44000000")
    for t in range(7):
        e(f"v_cmp_eq_f32 vcc, v1, v{QS+t}"); e(f"v_cndmask_b32 v{QS+t}, v31, v30, vcc")
    e(f"s_cmp_eq_u32 s{S_J}, 1"); e(f"s_cselect_b32 s{S_T}, 48, 0"); e(f"s_sub_u32 s{S_T}, {D1 - BUFA}, s{S_T}")
    for t in range(7): e(f"v_add_u32 v{QA+t}, s{S_T}, v{QA+t}")
    e(f"v_mul_u32_u24 v1, {S0STR}, v2"); e("v_lshl_add_u32 v1, v3, 9, v1"); e(f"s_lshl_b32 s{S_T}, s{S_J}, 4"); e(f"s_add_u32 s{S_T}, s{S_T}, {D1}")
    e(f"v_min_u32 v1, {22*S0STR+512}, v1")
    e(f"v_add_u32 v1, s{S_T}, v1")
    e(f"v_lshl_add_u32 v28, v3, 9, s{S_T}"); e("v_mov_b32 v29, 0")
    e(f"ds_write_b32 v28, v29 offset:{22*S0STR+12}")
    pack_round(g, DQ, 0)
    g.stamp("q")
    e("s_waitcnt lgkmcnt(0)")
    e(f"ds_read_b128 {vr(AQ,4)}, v1")
    e("v_lshlrev_b32 v1, 10, v2"); e("v_lshl_add_u32 v1, v3, 9, v1"); e("v_cmp_lt_u32 vcc, 22, v2"); e(f"v_mov_b32 v28, {OOB}"); e("v_cndmask_b32 v1, v1, v28, vcc")
    e(f"s_lshl_b32 s{S_T}, s{S_SB}, 4"); e(f"s_add_u32 s{S_T}, s{S_T}, {IMG['Q4']}")
    e("s_waitcnt lgkmcnt(0)")
    e(f"buffer_store_dwordx4 {vr(AQ,4)}, v1, {sr(S_WS)}, s{S_T} offen sc1")
    e(f"s_add_u32 s{S_E0}, s{S_E0}, s{S_E2}"); e(f"s_add_u32 s{S_E0}, s{S_E0}, s{S_E1}"); e(f"s_sub_u32 s{S_E0}, s{S_E0}, 10")
    e(f"s_and_b32 s{S_T}, s{S_FR}, 31"); e(f"s_cmp_lg_u32 s{S_T}, 0"); e("s_cbranch_scc1 L_noq")
    g.lab("L_qh")
    e(f"v_mov_b32 v1, s{S_E0}"); e(f"s_add_u32 s{S_T}, s{S_L}, {IMG['Q4'] + 23*1024}")
    e(f"buffer_store_dword v1, v{V_L0}, {sr(S_WS)}, s{S_T} offen sc1")
    e("s_branch L_noq")
    g.lab("L_lin")
    e("v_lshrrev_b32 v3, 5, v0"); e(f"v_min_u32 v2, 25, v{V_HROW}")
    e("v_mad_u32_u24 v1, v2, 26, v3"); e("v_lshlrev_b32 v1, 2, v1"); e(f"v_add_u32 v1, {D0}, v1")
    readsum(8)
    e(f"v_cmp_gt_u32 vcc, 26, v{V_HROW}")
    for s in range(13): e(f"v_cndmask_b32 v{BQ+s}, 0, v{BQ+s}, vcc")
    max13()
    wavemax_exp(g, 1, S_E2)
    e(f"s_sub_u32 s{S_T}, 15, s{S_E2}")
    for s in range(13): e(f"v_ldexp_f32 v{BQ+s}, v{BQ+s}, s{S_T}")
    e(f"v_mov_b32 v{BQ+13}, 0"); e(f"v_mov_b32 v{AQ+7}, 0")
    for t in range(7): e(f"v_cvt_pk_f16_f32 v{AQ+t}, v{BQ+2*t}, v{BQ+2*t+1}")
    e("v_lshlrev_b32 v1, 4, v0"); e(f"s_mov_b32 s{S_T}, {IMG['Q4'] + 24*1024}")
    for s in range(2): e(f"buffer_store_dwordx4 {vr(AQ+4*s,4)}, v1, {sr(S_WS)}, s{S_T} offen offset:{1024*s} sc1")
    e(f"s_add_u32 s{S_E0}, s{S_E2}, s{S_E1}"); e(f"s_sub_u32 s{S_E0}, s{S_E0}, 15"); e(f"s_mov_b32 s{S_L}, 4")
    e("s_branch L_qh")
    g.lab("L_noq")
    g.stamp("q")
    gsignal(g, "QST", C_Q)
    g.stamp("q")
    lwait(g, "QST")
    g.lab("L_idle")
    g.stamp()
    lwait(g, "AFREE")
    poll(g, [(S_DBG, "0", C_L[2], 11), CHK_X()])
    dma_img(g, "L2", 44, BUFA)
    e("s_waitcnt vmcnt(0)"); arrive(g, "L2OK")
    g.stamp()
    lwait(g, "L2OK")
    poll(g, [(S_DBG, "0", C_Q, 9)])
    dma_img(g, "Q4", 28, D0)
    e("s_waitcnt vmcnt(0)"); arrive(g, "QOK")
    g.stamp()
    lwait(g, "BFREE")
    poll(g, [(S_DBG, "0", C_L[3], 11)])
    dma_img(g, "L3", 44, BUFB)
    e("s_waitcnt vmcnt(0)"); arrive(g, "L3OK")
    g.stamp()
    g.flush_stamps(4, 5)
    e("s_endpgm")

def build(stamps=False):
    g = G(stamps)
    prologue(g); n0 = g.nst
    cin(g)
    g.lab("L_helper"); g.nst = n0
    helper_common(g); n1 = g.nst
    g.e(f"s_cmp_ge_u32 s{S_R}, 13"); g.e("s_cbranch_scc1 L_helper_n")
    helper_dnn(g)
    g.lab("L_helper_n"); g.nst = n1
    helper_prod(g)
    prod_early1(g); prod_early2(g)
    g.L += g.tail
    g.lab("L_end"); g.e("s_endpgm")
    body, nops = fix_hazards(g.L)
    ref = open("standalone__deep_cross_xdeepfm__recsys.s.ref").read().split("\n")
    hdr = [l for l in ref if l.startswith(";") and "@launch" not in l and "Override" not in l and "grid=ceil" not in l]
    txt = "\n".join(hdr) + f"\n; @launch grid=(256,1,1) block=(512,1,1) lds={LDS_TOTAL}\n"
    txt += f'.amdgcn_target "amdgcn-amd-amdhsa--gfx950"\n.text\n.globl {KN}\n.p2align 8\n.type {KN},@function\n{KN}:\n'
    txt += "\n".join(body) + "\n"
    txt += f""".section .rodata,"a"
.p2align 6
.amdhsa_kernel {KN}
  .amdhsa_next_free_vgpr 256
  .amdhsa_next_free_sgpr 102
  .amdhsa_accum_offset 256
  .amdhsa_group_segment_fixed_size 0
  .amdhsa_kernarg_size 88
  .amdhsa_user_sgpr_count 2
  .amdhsa_user_sgpr_kernarg_segment_ptr 1
  .amdhsa_system_sgpr_workgroup_id_x 1
.end_amdhsa_kernel
"""
    return txt, nops
if __name__ == "__main__":
    for a in sys.argv[2:]:
        if "=" in a:
            k, v = a.split("="); setattr(PAR, k, eval(v))
    txt, nops = build(stamps="stamps" in sys.argv)
    open(sys.argv[1], "w").write(txt)
    print("nops inserted", nops, "lines", txt.count("\n"))
```

```python
import sys, struct
from asmlib import fix_hazards
KN = "standalone__deep_cross_xdeepfm__recsys_kernel"
def f2u(f): return struct.unpack('<I', struct.pack('<f', f))[0]
OOB = 0x40000000
SPIN = 200000
LB = 35152
IMG = {}
off = 0
for name, n in (("L2", 44), ("L3", 44), ("Q4", 28)):
    IMG[name] = off; off += n * 1024
WS_PART = off
WS_CNT = WS_PART + 16 * 13 * 1024
WS_STAMP = WS_CNT + 4096
WS_X = WS_STAMP + 256 * 8 * 64
C_L = {2: 0, 3: 4}; C_Q = 8; C_RDY = 128
BUFA, BUFB = 0, 45056
D0, D1 = 90112, 118784
MISC = 147456
LDS_TOTAL = MISC + 1536
M_S0, M_L1, M_SC, M_EW1, M_CNT = MISC, MISC + 64, MISC + 128, MISC + 192, MISC + 256
CNT = {n: M_CNT + 4 * i for i, n in enumerate(["XST", "L1M", "L1OK", "AFREE", "L2OK", "BFREE", "L3OK", "QOK", "W01", "C0", "C1", "C2", "SCM", "GST", "WC", "QST"])}
S0STR = 1040
QPAIRS = [(p, q) for p in range(13) for q in range(p, 13)]
S_IDX, S_TAB, S_WS, S_W1, S_B1, S_W2, S_OUT, S_DBG, S_BO, S_WC, S_WO = 4, 8, 12, 16, 20, 24, 28, 32, 36, 40, 44
S_G, S_R, S_WAVE, S_J = 70, 71, 83, 3
S_HDR = 48
S_EX = 60
S_K = 64
S_K1 = 4
S_KC = 76
S_T = 72
S_MASK = 80
S_C1 = 81
S_SB = 82
S_ST = 84
class P: pass
PAR = P()
PAR.chunks = [7, 7, 6, 6]
PAR.gsplit = 4
PAR.gsplit2 = 8
PAR.lnpos = 30
PAR.pload = 30
PAR.xst = 12
PAR.l2pos = 7
PAR.nslot = 8
PAR.st = 'ad'
PAR.ld = 'sc1'
PAR.inv = 0
PAR.dbg = None
class G:
    def __init__(self, stamps=False):
        self.L = []; self.stamps = stamps; self.nst = 0; self.nl = 0; self.vmq = []; self.tail = []
    def e(self, s): self.L.append("    " + s)
    def lab(self, s): self.L.append(s + ":")
    def vm(self, s, tag): self.e(s); self.vmq.append(tag)
    def vmwait(self, *tags):
        idx = max(i for i, t in enumerate(self.vmq) if t in tags)
        n = len(self.vmq) - 1 - idx
        self.e(f"s_waitcnt vmcnt({min(n, 63)})")
    def newlab(self, s): self.nl += 1; return f"L_{s}_{self.nl}"
    def stamp(self, name=None):
        if self.stamps and (name or "d") in PAR.st:
            assert self.nst < 8
            self.e(f"s_memrealtime s[{S_ST+2*self.nst}:{S_ST+2*self.nst+1}]"); self.nst += 1
    def flush_stamps(self, vt, va):
        if not self.stamps: return
        self.e("s_waitcnt lgkmcnt(0)")
        self.e(f"s_lshl_b32 s{S_T}, s2, 3"); self.e(f"s_add_u32 s{S_T}, s{S_T}, s{S_WAVE}"); self.e(f"s_lshl_b32 s{S_T}, s{S_T}, 6")
        self.e(f"s_add_u32 s{S_T}, s{S_T}, {WS_STAMP}")
        self.e(f"v_mov_b32 v{va}, 0")
        if PAR.dbg is not None:
            lb = self.newlab("nd")
            self.e(f"s_cmp_lg_u32 s{S_T}, {WS_STAMP + PAR.dbg*64}"); self.e(f"s_cbranch_scc1 {lb}")
            for i in range(self.nst):
                self.e(f"s_sub_u32 s{S_T+1}, s{S_ST+2*i}, s{S_ST}")
                self.e(f"v_mov_b32 v{vt}, s{S_T+1}")
                self.e(f"buffer_store_dword v{vt}, v{va}, s[{S_DBG}:{S_DBG+3}], 0 offen offset:{16+4*i}")
            self.lab(lb)
        for i in range(self.nst):
            self.e(f"v_mov_b32 v{vt}, s{S_ST+2*i}")
            self.e(f"buffer_store_dword v{vt}, v{va}, s[{S_WS}:{S_WS+3}], s{S_T} offen offset:{4*i}")
        self.nst = 0
def vr(a, n): return f"v[{a}:{a+n-1}]"
def sr(a, n=4): return f"s[{a}:{a+n-1}]"
DPPALL = "row_mask:0xf bank_mask:0xf"

def prologue(g):
    e = g.e
    e("s_cmp_ge_u32 s2, 256")
    e("s_cbranch_scc1 L_end")
    g.stamp("a")
    e("s_load_dwordx16 s[48:63], s[0:1], 0")
    e("s_load_dwordx4 s[64:67], s[0:1], 64")
    e("s_load_dwordx2 s[68:69], s[0:1], 80")
    e("v_lshrrev_b32 v1, 6, v0")
    e("v_and_b32 v0, 63, v0")
    e(f"v_readfirstlane_b32 s{S_WAVE}, v1")
    e(f"s_and_b32 s{S_T}, s2, 7")
    e(f"s_lshr_b32 s{S_T+1}, s2, 3")
    e(f"s_lshr_b32 s{S_G}, s{S_T+1}, 4")
    e(f"s_lshl_b32 s{S_T}, s{S_T}, 1")
    e(f"s_add_u32 s{S_G}, s{S_G}, s{S_T}")
    e(f"s_and_b32 s{S_R}, s{S_T+1}, 15")
    e(f"s_mov_b32 s{S_MASK}, 0x7fff7fff")
    srds = ((S_IDX, 48, 4096*104), (S_TAB, 50, 6400000), (S_WC, 52, LB), (S_WO, 54, 312), (S_W1, 56, 832*1664), (S_B1, 58, 1664), (S_W2, 60, 1664),
            (S_BO, 62, 2), (S_OUT, 64, 8192), (S_DBG, 66, 256), (S_WS, 68, 1 << 28))
    for srd, src, nbytes in srds:
        e(f"s_mov_b32 s{srd+2}, {nbytes}"); e(f"s_mov_b32 s{srd+3}, 0x00020000")
    e("s_waitcnt lgkmcnt(0)")
    for srd, src, nbytes in srds:
        e(f"s_mov_b64 s[{srd}:{srd+1}], s[{src}:{src+1}]")
    e(f"s_cmp_ge_u32 s{S_WAVE}, 4")
    e("s_cbranch_scc1 L_helper")

ACC, ACC2, XR, UR, BR, AR, SC, LG, TM = 4, 68, 132, 188, 216, 232, 244, 248, 252
def X(k, p): return XR + 14 * k + p
def EV(k): return XR + 14 * k + 13
def U(k, t): return UR + 7 * k + t
def cin(g):
    e = g.e
    e("s_setprio 1")
    e(f"s_lshl_b32 s{S_T}, s{S_G}, 8"); e(f"s_lshl_b32 s{S_T+1}, s{S_R}, 4"); e(f"s_add_u32 s{S_T}, s{S_T}, s{S_T+1}")
    e(f"s_lshl_b32 s{S_T+1}, s{S_WAVE}, 2"); e(f"s_add_u32 s{S_SB}, s{S_T}, s{S_T+1}")
    e(f"s_mul_i32 s{S_T}, s{S_SB}, 104")
    e("v_lshrrev_b32 v1, 4, v0")
    e("v_bfe_u32 v2, v0, 2, 2")
    e("v_and_b32 v3, 3, v0")
    e("v_mul_u32_u24 v4, 104, v1")
    e("v_mad_u32_u24 v4, v2, 28, v4")
    I = 8
    e(f"buffer_load_dwordx4 {vr(I,4)}, v4, {sr(S_IDX)}, s{S_T} offen")
    e(f"buffer_load_dwordx3 {vr(I+4,3)}, v4, {sr(S_IDX)}, s{S_T} offen offset:16")
    e("v_lshlrev_b32 v5, 4, v3")
    e("v_cmp_eq_u32 vcc, 3, v2")
    e(f"v_mov_b32 v6, {OOB}")
    e("v_cndmask_b32 v6, 0, v6, vcc")
    e("v_add_u32 v6, v6, v5")
    e(f"s_mul_i32 s{S_T+1}, s{S_WAVE}, 7168"); e(f"s_add_u32 s{S_T+1}, s{S_T+1}, {D1}")
    e("v_mul_u32_u24 v7, 1792, v1")
    e("v_mad_u32_u24 v16, v2, 7, 0")
    e("v_lshl_add_u32 v7, v16, 6, v7")
    e(f"v_add3_u32 v7, v7, v5, s{S_T+1}")
    e("v_lshrrev_b32 v16, 1, v1")
    e("v_xor_b32 v16, v16, v2")
    e("v_lshlrev_b32 v16, 6, v16")
    e("v_and_b32 v17, 1, v1")
    e("v_lshl_add_u32 v16, v17, 5, v16")
    e("v_lshl_add_u32 v16, v3, 3, v16")
    e(f"v_add_u32 v16, s{S_T+1}, v16")
    for k in range(4): e(f"v_mov_b32 v{LG+k}, 0")
    for i in range(16): e(f"v_mov_b32 v{BR+i}, 0")
    e("v_mov_b32 v22, 0x0b000b00")
    for k in range(4): e(f"v_mov_b32 v{U(k,6)}, 0")
    e("v_mul_u32_u24 v124, 28672, v2"); e("v_lshrrev_b32 v125, 1, v3"); e("v_lshl_add_u32 v124, v125, 10, v124")
    e("v_and_b32 v125, 1, v3"); e("v_lshl_add_u32 v124, v125, 6, v124"); e("v_lshl_add_u32 v124, v1, 4, v124")
    e("v_sub_u32 v125, v6, v5"); e("v_add_u32 v125, v125, v124")
    SX = S_K
    e(f"s_lshr_b32 s{S_T+2}, s{S_SB}, 6"); e(f"s_mul_i32 s{SX}, s{S_T+2}, 106496")
    e(f"s_bfe_u32 s{S_T+2}, s{S_SB}, 0x10005"); e(f"s_lshl_b32 s{S_T+2}, s{S_T+2}, 11"); e(f"s_add_u32 s{SX}, s{SX}, s{S_T+2}")
    e(f"s_bfe_u32 s{S_T+2}, s{S_SB}, 0x30002"); e(f"s_lshl_b32 s{S_T+2}, s{S_T+2}, 7"); e(f"s_add_u32 s{SX}, s{SX}, s{S_T+2}")
    e(f"s_add_u32 s{SX}, s{SX}, {WS_X}")
    e("v_and_b32 v25, 15, v0"); e("v_lshlrev_b32 v25, 2, v25"); e(f"v_add_u32 v25, {M_CNT}, v25")
    e(f"ds_write_b32 v25, v{LG}")
    e("s_waitcnt vmcnt(0) lgkmcnt(0)")
    GR, MR = 68, 96
    for t in range(7):
        e(f"v_lshl_add_u32 v{I+t}, v{I+t}, 6, v{5 if t < 5 else 6}")
        e(f"buffer_load_dwordx4 {vr(GR+4*t,4)}, v{I+t}, {sr(S_TAB)}, 0 offen")
    g.stamp()
    e("s_barrier")
    for t in range(7):
        e(f"s_waitcnt vmcnt({6-t})")
        for i in range(4): e(f"v_and_b32 v{MR+4*t+i}, s{S_MASK}, v{GR+4*t+i}")
        if t == 0:
            e(f"v_pk_max_u16 v20, v{MR}, v{MR+1}"); e(f"v_pk_max_u16 v21, v{MR+2}, v{MR+3}")
        else:
            for i in range(4): e(f"v_pk_max_u16 v{20+(i&1)}, v{20+(i&1)}, v{MR+4*t+i}")
    g.stamp()
    e("v_pk_max_u16 v20, v20, v21")
    e("v_alignbit_b32 v21, v20, v20, 16")
    e("v_pk_max_u16 v20, v20, v21")
    for sh in (8, 4, 2, 1):
        e(f"v_max_u32_dpp v20, v20, v20 row_ror:{sh} {DPPALL}")
    e("v_and_b32 v20, 0x7f807f80, v20")
    e("v_pk_sub_u16 v20, v20, v22 clamp")
    for t in range(7):
        for i in range(4): e(f"v_pk_sub_u16 v{MR+4*t+i}, v{MR+4*t+i}, v20 clamp")
        for i in range(4): e(f"v_lshlrev_b32 v{MR+4*t+i}, 3, v{MR+4*t+i}")
        for i in range(4): e(f"v_bfi_b32 v{MR+4*t+i}, s{S_MASK}, v{MR+4*t+i}, v{GR+4*t+i}")
        e(f"ds_write_b128 v7, {vr(MR+4*t,4)} offset:{64*t}")
    for k in range(4): e(f"v_readlane_b32 s{S_EX+k}, v20, {16*k}")
    e("s_waitcnt lgkmcnt(0)")
    for k in range(4):
        for t in range(7):
            e(f"ds_read_b64_tr_b16 {vr(X(k,2*t),2)}, v16 offset:{k*1792+t*256}")
    for k in range(4):
        e(f"s_bfe_u32 s{S_EX+k}, s{S_EX+k}, 0x80007")
        e(f"s_sub_u32 s{S_EX+k}, s{S_EX+k}, 112")
    e("v_lshlrev_b32 v1, 4, v0")
    e("s_waitcnt lgkmcnt(0)")
    HW = lambda l: S_HDR + 2 * l
    HD = lambda l: S_HDR + 2 * l + 1
    HQ, HL = S_HDR + 8, S_HDR + 9
    for k in range(4):
        e(f"s_lshl_b32 s{S_T}, s{S_EX+k}, 1")
        e(f"v_mov_b32 v{EV(k)}, s{S_T}")
    e("s_barrier")
    g.stamp(); g.stamp("s")

    ready = set()
    def quad_prod(k, rho):
        p, q = QPAIRS[rho]
        return lambda d: f"v_pk_mul_f16 v{d}, v{X(k,p)}, v{X(k,q)} op_sel_hi:[0,1]"
    def gen_prod(l):
        def f(k, rho):
            r, p = divmod(rho, 13)
            def mk(d):
                if r == 13: return f"v_mov_b32 v{d}, v{U(k,p)}"
                assert ('u', l, k, r) in ready, (l, k, r)
                if r & 1: return f"v_pk_mul_f16 v{d}, v{U(k,r>>1)}, v{X(k,p)} op_sel:[1,0] op_sel_hi:[1,1]"
                return f"v_pk_mul_f16 v{d}, v{U(k,r>>1)}, v{X(k,p)} op_sel_hi:[0,1]"
            return mk
        return f
    def lin_prod(k, t):
        b = 2 * t + 1 if 2 * t + 1 < 13 else 2 * t
        return lambda d: f"v_pack_b32_f16 v{d}, v{X(k,2*t)}, v{X(k,b)}"
    def steps(nprod, prod, acc, base, first0, stride=1024, needs=None):
        out = []
        ns = (nprod + 3) // 4
        for s in range(ns):
            out.append(dict(lds=base + stride * s, needs=needs if s == 0 else None, jobs=[dict(acc=acc + 16 * k, zero=(first0 and s == 0),
                       prods=[prod(k, rho) for rho in range(4 * s, min(4 * s + 4, nprod))]) for k in range(4)]))
        return out
    def mix(acc, l, k, r):
        return (f"v_fma_mix{'hi' if r & 1 else 'lo'}_f16 v{U(k,r>>1)}, v{acc+16*k+r}, v{SC+k}, 0", ('u', l + 1, k, r))
    def head(acc, l):
        o = []
        for j in range(6):
            for k in range(4):
                a = acc + 16 * k
                if j == 0: o.append(f"v_max3_f32 v{SC+k}, |v{a}|, |v{a+1}|, |v{a+2}|")
                else: o.append(f"v_max3_f32 v{SC+k}, v{SC+k}, |v{a+2*j+1}|, |v{a+2*j+2}|")
        for k in range(4): o.append(f"v_mov_b32 v{TM+k}, v{SC+k}")
        for k in range(4): o.append(f"v_permlane32_swap_b32 v{SC+k}, v{TM+k}")
        for k in range(4): o.append(f"v_max_f32 v{SC+k}, v{SC+k}, v{TM+k}")
        for k in range(4): o.append(f"v_frexp_exp_i32_f32 v{TM+k}, v{SC+k}")
        for k in range(4): o.append(f"v_sub_u32 v{SC+k}, 8, v{TM+k}")
        for k in range(4): o.append(f"v_ldexp_f32 v{SC+k}, 1.0, v{SC+k}")
        for k in range(4): o.append(mix(acc, l, k, 0))
        return o
    def tailb(acc, l):
        o = []
        for k in range(4): o.append(mix(acc, l, k, 1))
        if l == 2:
            o.append((None, 'x', 'k2'))
            for k in range(4): o.append(f"v_ldexp_f32 v{acc+16*k+15}, v{acc+16*k+15}, v{EV(k)}")
            for k in range(4): o.append(f"v_add_u32 v{acc+16*k+13}, s{S_K1+k}, v{EV(k)}")
            for k in range(4): o.append(f"v_ldexp_f32 v{acc+16*k+14}, v{acc+16*k+14}, v{acc+16*k+13}")
            for k in range(4): o.append(f"v_add_f32 v{LG+k}, v{acc+16*k+14}, v{acc+16*k+15}")
        for k in range(4):
            o.append(f"v_add3_u32 v{EV(k)}, v{EV(k)}, v{TM+k}, s{S_K+k}")
        for r in range(2, 13):
            for k in range(4): o.append(mix(acc, l, k, r))
        o.append((None, ('free', l)))
        return o
    def emit(s):
        if isinstance(s, tuple):
            if len(s) == 3: assert s[2] in ready, s
            ready.add(s[1]); s = s[0]
        if s: e(s)
    def kconst(l):
        if l == 0: e(f"s_mov_b32 s{S_T}, s{HW(0)}")
        elif l == 1: e(f"s_add_u32 s{S_T}, s{HW(1)}, s{HD(2)}")
        else:
            e(f"s_sub_u32 s{S_T}, s{HD(1)}, s{HD(2)}")
            for k in range(4): e(f"s_sub_u32 s{S_K1+k}, s{S_T}, s{S_EX+k}")
            e(f"s_sub_u32 s{S_T}, s{HW(l)}, s{HD(l)}"); e(f"s_add_u32 s{S_T}, s{S_T}, s{HD(l+1)}")
        e(f"s_sub_u32 s{S_T}, s{S_T}, 8")
        for k in range(4): e(f"s_add_u32 s{S_K+k}, s{S_T}, s{S_EX+k}")
    state = dict(areg=0, breg=0, base=0)
    def rel(addr):
        r = addr - state['base']
        if r < 0 or r > 65535:
            nb = max(addr - 45056, 0) if r > 0 else addr
            nb = min(nb, addr)
            e(f"v_add_u32 v1, {(nb - state['base']) & 0xffffffff}, v1"); state['base'] = nb; r = addr - nb
        return r
    def aread(st):
        st['a'] = AR + 4 * (state['areg'] % 3); state['areg'] += 1
        r = rel(st['lds'])
        e(f"ds_read_b128 {vr(st['a'],4)}, v1 offset:{r}")
    def prods(job):
        job['b'] = BR + 4 * (state['breg'] % 4); state['breg'] += 1
        return [p(job['b'] + i) for i, p in enumerate(job['prods'])]
    def run(seq, nxt, fill=None, events=None, post=None):
        jobs = [(si, j) for si, st in enumerate(seq) for j in st['jobs']]
        for j in range(2):
            for s in prods(jobs[j][1]): e(s)
        fq = []
        allst = seq + nxt
        for n, (si, job) in enumerate(jobs):
            k = n % 4
            if k == 0:
                if fill and si in fill: fq += fill[si]
                waited = False
                if events and si in events: waited = events[si]()
                pend = sum(1 for st in allst[si+1:si+2] if 'a' in st)
                if not waited: e(f"s_waitcnt lgkmcnt({pend})")
                if seq[si]['needs']: assert seq[si]['needs'] in ready, seq[si]['needs']
            c = "0" if job['zero'] else vr(job['acc'], 16)
            e(f"v_mfma_f32_32x32x16_f16 {vr(job['acc'],16)}, {vr(seq[si]['a'],4)}, {vr(job['b'],4)}, {c}")
            budget = 6
            if k == 0:
                if post and si in post: post[si]()
                if si + 2 < len(allst) and 'a' not in allst[si + 2]:
                    aread(allst[si + 2]); budget -= 1
            if k == 3: budget -= 1
            if n + 2 < len(jobs):
                ps = prods(jobs[n + 2][1])
                for s in ps: e(s)
                budget -= len(ps)
            while budget > 0 and fq:
                emit(fq.pop(0)); budget -= 1
            while fq and isinstance(fq[0], tuple) and fq[0][0] is None: emit(fq.pop(0))
        for s in fq: emit(s)
    S0 = steps(91, quad_prod, ACC, BUFA, True, stride=S0STR)
    L1 = steps(169, gen_prod(1), ACC2, BUFB, True, stride=S0STR)
    L2 = steps(176, gen_prod(2), ACC, BUFA, True, needs=('free', 0))
    LN = steps(7, lin_prod, ACC2, D0 + 24 * 1024, True, needs=('free', 1))
    Q4 = steps(91, quad_prod, ACC2, D0, False, needs='ldx')
    L3 = steps(169, gen_prod(3), ACC, BUFB, True, needs=('free', 2))
    def hdr_read(addr):
        def f():
            r = rel(addr)
            e(f"ds_read_b64 v[2:3], v1 offset:{r}")
        return f
    def hdr_get(sa, sb):
        def f():
            e(f"v_readfirstlane_b32 s{sa}, v2")
            if sb is not None: e(f"v_readfirstlane_b32 s{sb}, v3")
        return f
    def arrive(c, pre=None):
        def f():
            if pre: g.stamp("s"); e(pre); g.stamp("s")
            r = rel(CNT[c])
            e("v_mov_b32 v2, 1"); e("s_mov_b64 exec, 1"); e(f"ds_add_u32 v1, v2 offset:{r}"); e("s_mov_b64 exec, -1")
        return f
    def chk_read(c):
        def f():
            r = rel(CNT[c]); e(f"ds_read_b32 v2, v1 offset:{r}")
        return f
    def chk_test(c):
        def f():
            slow = g.newlab("cs"); back = g.newlab("cb"); top = g.newlab("ct")
            e(f"v_readfirstlane_b32 s{S_T}, v2"); e(f"s_cmp_lt_u32 s{S_T}, 4"); e(f"s_cbranch_scc1 {slow}")
            g.lab(back)
            g.tail += [slow + ":", f"    s_mov_b32 s{S_T+1}, {SPIN*8}", f"    v_mov_b32 v3, {CNT[c]}", top + ":", "    s_sleep 1", "    ds_read_b32 v2, v3", "    s_waitcnt lgkmcnt(0)",
                       f"    v_readfirstlane_b32 s{S_T}, v2", f"    s_cmp_ge_u32 s{S_T}, 4", f"    s_cbranch_scc1 {back}",
                       f"    s_sub_u32 s{S_T+1}, s{S_T+1}, 1", f"    s_cbranch_scc0 {top}", f"    s_branch {back}"]
        return f
    def seqf(*fs):
        def f():
            for x in fs: x()
        return f
    HOFF = 29 * 16
    aread(S0[0]); aread(S0[1])
    def xstore(t):
        def f():
            e(f"buffer_store_dwordx4 {vr(GR+4*t,4)}, v{124 if t < 5 else 125}, {sr(S_WS)}, s{SX} offen sc1")
            e(f"s_add_u32 s{SX}, s{SX}, 4096")
        return f
    run(S0, L1[:2], post={0: seqf(xstore(0), xstore(1)), 1: seqf(xstore(2), xstore(3)), 2: seqf(xstore(4), xstore(5)), 3: seqf(xstore(6), lambda: g.stamp("s")),
                          4: hdr_read(BUFA + 23 * S0STR + 512), 5: hdr_get(HW(0), None), PAR.xst: arrive("XST", "s_waitcnt vmcnt(0)"),
                          19: chk_read("L1OK"), 20: seqf(lambda: g.stamp("s"), chk_test("L1OK"), lambda: g.stamp("s"), hdr_read(M_EW1)), 21: hdr_get(HW(1), None), 22: arrive("AFREE")})
    g.stamp()
    kconst(0)
    for s in head(ACC, 0): emit(s)
    run(L1, L2[:2], fill={0: tailb(ACC, 0)},
        post={39: chk_read("L2OK"), 40: seqf(chk_test("L2OK"), hdr_read(BUFA + HOFF)), 41: hdr_get(HW(2), HD(2)), 42: arrive("BFREE")})
    g.stamp()
    kconst(1)
    for s in head(ACC2, 1): emit(s)
    LNPOS = PAR.lnpos; B4 = LNPOS - 3
    seq = L2[:LNPOS] + LN + L2[LNPOS:] + Q4 + L3
    nQ = 46; nL3 = nQ + 23
    ldx = [f"v_ldexp_f32 v{ACC2+16*k+r}, v{ACC2+16*k+r}, s{S_KC+k}" for k in range(4) for r in range(13)] + [(None, 'ldx')]
    PV, PA = 2, 3
    def pload():
        e(f"buffer_load_dword v{PV}, v{PA}, {sr(S_WS)}, s{S_T+3} offen sc1")
    def getq():
        hdr_get(HQ, HL)()
        for k in range(4):
            e(f"s_sub_u32 s{S_T}, s{HL}, s{HQ}"); e(f"s_sub_u32 s{S_T}, s{S_T}, s{S_EX+k}")
            e(f"s_min_i32 s{S_KC+k}, s{S_T}, 50")
        hdr_read(D0 + 23 * 1024 + 8)()
    def get3():
        hdr_get(HW(3), HD(3))(); kconst(2); ready.add('k2')
    pre = []
    pre.append("v_bfe_u32 v2, v0, 4, 1"); pre.append("v_lshrrev_b32 v3, 5, v0"); pre.append("v_lshl_add_u32 v2, v2, 1, v3")
    pre.append("v_and_b32 v3, 15, v0"); pre.append("v_cmp_lt_u32 vcc, 12, v3"); pre.append("v_lshlrev_b32 v3, 10, v3")
    pre.append("v_lshl_add_u32 v3, v2, 2, v3"); pre.append(f"v_mov_b32 v2, {OOB}"); pre.append("v_cndmask_b32 v3, v3, v2, vcc")
    w0 = []
    for k in range(4): w0.append(f"v_ldexp_f32 v{ACC2+16*k+15}, v{ACC2+16*k+15}, s{S_K+k}")
    for k in range(4): w0.append(f"v_add_f32 v{LG+k}, v{LG+k}, v{ACC2+16*k+15}")
    def k_w0():
        for k in range(4):
            e(f"s_lshl_b32 s{S_T}, s{S_EX+k}, 1"); e(f"s_add_u32 s{S_K+k}, s{S_T}, s{HD(0)}")
        e(f"s_mul_i32 s{S_T+3}, s{S_G}, {13*1024}"); e(f"s_and_b32 s{S_T}, s{S_SB}, 255"); e(f"s_lshl_b32 s{S_T}, s{S_T}, 2")
        e(f"s_add_u32 s{S_T+3}, s{S_T+3}, s{S_T}"); e(f"s_add_u32 s{S_T+3}, s{S_T+3}, {WS_PART}")
    def k_fin():
        for k in range(4):
            e(f"s_sub_u32 s{S_T}, s{HW(3)}, s{HD(3)}"); e(f"s_add_u32 s{S_T}, s{S_T}, s{HL}"); e(f"s_add_u32 s{S_T}, s{S_T}, s{S_EX+k}")
            e(f"s_sub_u32 s{S_K+k}, s{S_T}, s{S_KC+k}")
    BO = ACC2 + 14
    fin = [f"v_add_u32 v{TM+k}, s{S_K+k}, v{EV(k)}" for k in range(4)] + [f"v_mov_b32 v{BO-1}, 0"]
    def boload():
        e(f"buffer_load_ushort v{BO}, v{BO-1}, {sr(S_BO)}, 0 offen")
    run(seq, [], fill={0: tailb(ACC2, 1), LNPOS + 3: ldx, nQ + 1: head(ACC, 2) + tailb(ACC, 2), nL3 + 2: pre + w0, nL3 + 8: fin},
        post={2: hdr_read(BUFA + HOFF + 8), 3: hdr_get(HD(1), None),
              B4 - 1: chk_read("QOK"), B4: seqf(chk_test("QOK"), hdr_read(D0 + 23 * 1024)), B4 + 1: getq, B4 + 2: hdr_get(HD(0), None),
              nQ + 5: chk_read("L3OK"), nQ + 6: seqf(chk_test("L3OK"), hdr_read(BUFB + HOFF)), nQ + 7: get3,
              nL3 + 1: k_w0, nL3 + 7: k_fin, nL3 + 12: boload, nL3 + PAR.pload: pload})
    g.stamp()
    for r in range(13):
        for k in range(4):
            if r == 0: e(f"v_mul_f32 v{SC+k}, v{ACC+16*k}, v{ACC2+16*k}")
            else: e(f"v_fmac_f32 v{SC+k}, v{ACC+16*k+r}, v{ACC2+16*k+r}")
    for k in range(4): e(f"v_ldexp_f32 v{ACC+16*k+15}, v{ACC+16*k+15}, v{EV(k)}")
    for k in range(4): e(f"v_ldexp_f32 v{SC+k}, v{SC+k}, v{TM+k}")
    for k in range(4): e(f"v_add_f32 v{LG+k}, v{LG+k}, v{ACC+16*k+15}")
    for k in range(4): e(f"v_add_f32 v{LG+k}, v{LG+k}, v{SC+k}")
    e(f"v_permlane32_swap_b32 v{LG}, v{LG+1}"); e(f"v_permlane32_swap_b32 v{LG+2}, v{LG+3}")
    e(f"v_add_f32 v{LG}, v{LG}, v{LG+1}"); e(f"v_add_f32 v{LG+2}, v{LG+2}, v{LG+3}")
    e(f"v_permlane16_swap_b32 v{LG}, v{LG+2}")
    e(f"v_add_f32 v{LG}, v{LG}, v{LG+2}")
    e(f"s_mov_b32 s{S_T}, {SPIN}")
    g.lab("L_pcheck")
    e("s_waitcnt vmcnt(0)")
    e(f"v_cmp_eq_u32 vcc, -1, v{PV}")
    e("s_nop 1")
    e("s_cbranch_vccz L_pok")
    e("s_sleep 4")
    pload()
    e(f"s_sub_u32 s{S_T}, s{S_T}, 1")
    e("s_cbranch_scc0 L_pcheck")
    e("s_waitcnt vmcnt(0)")
    g.lab("L_pok")
    e(f"v_add_f32 v{LG}, v{LG}, v{PV}")
    for sh in (8, 4, 2, 1):
        e(f"v_add_f32_dpp v{LG}, v{LG}, v{LG} row_ror:{sh} {DPPALL}")
    e(f"v_lshlrev_b32 v{BO}, 16, v{BO}")
    e(f"v_add_f32 v{LG}, v{LG}, v{BO}")
    e(f"v_cvt_pk_bf16_f32 v{LG}, v{LG}, v{LG}")
    e(f"v_lshrrev_b32 v{PA}, 1, v{PA}")
    e(f"v_cmp_lt_u32 vcc, 7, v{PA}")
    e(f"v_mov_b32 v2, {OOB}")
    e(f"v_cndmask_b32 v{PA}, v{PA}, v2, vcc")
    e(f"s_lshl_b32 s{S_T}, s{S_SB}, 1")
    e(f"buffer_store_short v{LG}, v{PA}, {sr(S_OUT)}, s{S_T} offen")
    g.stamp()
    g.flush_stamps(4, 5)
    e("s_endpgm")

HACC, HX, HW_ = 4, 68, 208
V_TR0, V_TR1, V_DMA, V_WSRC, V_H16, V_L0, V_HROW, V_CNT = 248, 249, 250, 251, 252, 253, 254, 255
ID, QA, QSH, QS, W0R, PK = 4, 12, 19, 20, 180, 236
L1R, BT = 180, 36
S_WP, S_L, S_FR, S_E0, S_E1, S_E2, S_PO, S_CX = 48, 49, 50, 51, 52, 53, 54, 55
S_LC = 56
S_E3, S_XB = 60, 61
def dma_img(g, name, nfr, lds):
    e = g.e; per = nfr // 4
    e(f"s_mul_i32 s{S_T}, s{S_J}, {per*1024}")
    for i in range(per):
        if i % 4 == 0:
            e(f"s_add_u32 s{S_T+1}, s{S_T}, {IMG[name] + i*1024}")
            e(f"s_add_u32 m0, s{S_T}, {lds + i*1024}")
        g.vm(f"buffer_load_dwordx4 v{V_DMA}, {sr(S_WS)}, s{S_T+1} offen offset:{(i%4)*1024} {PAR.ld} lds", name)
def poll(g, checks, pre=None):
    e = g.e
    done = g.newlab("pd"); top = g.newlab("pt"); slp = g.newlab("ps"); tst = g.newlab("pc")
    regs = pre or [2 + i for i in range(len(checks))]
    e(f"s_mov_b32 s{S_T}, {SPIN}")
    if pre: e(f"s_branch {tst}")
    g.lab(top)
    for r, (srd, so, o, n) in zip(regs, checks):
        e(f"buffer_load_dword v{r}, v{V_L0}, {sr(srd)}, {so} offen offset:{o} sc1")
    e("s_waitcnt vmcnt(0)")
    g.lab(tst)
    for r, (srd, so, o, n) in zip(regs, checks):
        e(f"v_readfirstlane_b32 s{S_T+1}, v{r}")
        e(f"s_cmp_lt_u32 s{S_T+1}, {n}")
        e(f"s_cbranch_scc1 {slp}")
    g.lab(done)
    g.tail += [slp + ":", "    s_sleep 4", f"    s_sub_u32 s{S_T}, s{S_T}, 1", f"    s_cbranch_scc0 {top}", f"    s_branch {done}"]
def presample(g, checks, regs, tag):
    for r, (srd, so, o, n) in zip(regs, checks):
        g.vm(f"buffer_load_dword v{r}, v{V_L0}, {sr(srd)}, {so} offen offset:{o} sc1", tag)
def arrive(g, *cs):
    e = g.e
    e("v_mov_b32 v1, 1"); e("s_mov_b64 exec, 1")
    for c in cs: e(f"ds_add_u32 v{V_CNT}, v1 offset:{CNT[c]-M_CNT}")
    e("s_mov_b64 exec, -1")
def lwait(g, c, n=4):
    e = g.e; top = g.newlab("lw"); done = g.newlab("ld")
    e(f"s_mov_b32 s{S_T}, {SPIN*8}")
    g.lab(top)
    e(f"ds_read_b32 v1, v{V_CNT} offset:{CNT[c]-M_CNT}"); e("s_waitcnt lgkmcnt(0)")
    e(f"v_readfirstlane_b32 s{S_T+1}, v1"); e(f"s_cmp_ge_u32 s{S_T+1}, {n}"); e(f"s_cbranch_scc1 {done}")
    e("s_sleep 1"); e(f"s_sub_u32 s{S_T}, s{S_T}, 1"); e(f"s_cbranch_scc0 {top}")
    g.lab(done)
def rowmax(g, v, op="v_max_u32_dpp"):
    for sh in (8, 4, 2, 1): g.e(f"{op} v{v}, v{v}, v{v} row_ror:{sh} {DPPALL}")
def wavemax_exp(g, v, sdst):
    e = g.e
    rowmax(g, v)
    e(f"v_readlane_b32 s{sdst}, v{v}, 0"); e(f"v_readlane_b32 s{S_T}, v{v}, 16"); e(f"s_max_u32 s{sdst}, s{sdst}, s{S_T}")
    e(f"v_readlane_b32 s{S_T}, v{v}, 32"); e(f"s_max_u32 s{sdst}, s{sdst}, s{S_T}")
    e(f"v_readlane_b32 s{S_T}, v{v}, 48"); e(f"s_max_u32 s{sdst}, s{sdst}, s{S_T}")
    e(f"s_lshr_b32 s{sdst}, s{sdst}, 23"); e(f"s_sub_u32 s{sdst}, s{sdst}, 126")
def put_max(g, slot):
    e = g.e
    rowmax(g, 1)
    e("v_lshrrev_b32 v2, 4, v0"); e(f"s_lshl_b32 s{S_T}, s{S_J}, 4"); e(f"s_add_u32 s{S_T}, s{S_T}, {slot}")
    e(f"v_lshl_add_u32 v2, v2, 2, s{S_T}")
    e("ds_write_b32 v2, v1")
def get_max(g, slot):
    e = g.e
    e("v_and_b32 v2, 15, v0"); e("v_lshlrev_b32 v2, 2, v2"); e(f"v_add_u32 v2, {slot}, v2")
    e("ds_read_b32 v1, v2"); e("s_waitcnt lgkmcnt(0)")
    rowmax(g, 1)
def pkmax(g, regs):
    e = g.e
    e(f"v_pk_max_u16 v1, v{regs[0]}, v{regs[1]}"); e(f"v_pk_max_u16 v3, v{regs[2]}, v{regs[3]}")
    for i, r in enumerate(regs[4:]): e(f"v_pk_max_u16 v{1 + 2*(i&1)}, v{1 + 2*(i&1)}, v{r}")
    e("v_pk_max_u16 v1, v1, v3"); e("v_alignbit_b32 v3, v1, v1, 16"); e("v_pk_max_u16 v1, v1, v3")
def pack_round(g, acc, off):
    e = g.e
    for t in range(7): e(f"v_fma_mixlo_f16 v{PK+t}, v{acc+2*t}, v{QS+t}, 0")
    for t in range(7): e(f"v_fma_mixhi_f16 v{PK+t}, v{acc+2*t+1}, v{QS+t}, 0")
    for t in range(7): e(f"v_alignbit_b32 v{PK+t}, v{PK+t}, v{PK+t}, v{QSH}")
    for t in range(7): e(f"ds_write_b32 v{QA+t}, v{PK+t} offset:{off}")
def s0_max(g, t):
    a = HX + 16 * t
    for i in range(7):
        if t == 0 and i == 0: g.e(f"v_max_f32 v1, |v{a}|, |v{a+1}|")
        else: g.e(f"v_max3_f32 v1, v1, |v{a+2*i}|, |v{a+2*i+1}|")
F0 = lambda c: sum(PAR.chunks[:c])
def dma_w(g, c):
    e = g.e
    Dc = (D0, D1)[c & 1]
    e(f"s_lshl_b32 s{S_T}, s{S_J}, 10")
    for fl in range(PAR.chunks[c]):
        e(f"s_add_u32 m0, s{S_T}, {Dc + fl*4096}")
        e(f"s_mov_b32 s{S_T+1}, {(F0(c)+fl)*53248}")
        g.vm(f"buffer_load_dwordx4 v{V_WSRC}, {sr(S_W1)}, s{S_T+1} offen lds", f"W{c}")
CHK_X = lambda: (S_WS, f"s{S_CX}", 0, 16)
def helper_common(g):
    e = g.e
    e("s_setprio 2")
    e(f"s_sub_u32 s{S_J}, s{S_WAVE}, 4")
    e("v_and_b32 v2, 31, v0"); e("v_lshrrev_b32 v3, 5, v0")
    e(f"v_lshlrev_b32 v{V_H16}, 4, v3")
    e(f"v_mad_u32_u24 v1, v2, 52, v{V_H16}")
    e(f"s_mul_i32 s{S_T}, s{S_J}, 1352")
    for t in range(7):
        if t < 6: e(f"s_add_u32 s{S_T+1}, s{S_T}, {(13*(t&1) + 4*(t>>1))*1352}")
        else:
            e(f"s_mul_i32 s{S_T+1}, s{S_J}, {13*1352}"); e(f"s_add_u32 s{S_T+1}, s{S_T+1}, {12*1352}")
        for s in range(2):
            g.vm(f"buffer_load_dwordx4 {vr(W0R+8*t+4*s,4)}, v1, {sr(S_WC)}, s{S_T+1} offen offset:{32*s}", f"w0_{t}")
    e(f"v_mov_b32 v5, {OOB}"); e("v_cmp_eq_u32 vcc, 0, v0"); e(f"v_cndmask_b32 v{V_L0}, v5, 0, vcc")
    e(f"s_lshl_b32 s{S_CX}, s{S_G}, 8"); e(f"s_add_u32 s{S_CX}, s{S_CX}, {WS_CNT}")
    e(f"s_add_u32 s{S_T}, s{S_R}, s{S_J}"); e(f"s_cmp_eq_u32 s{S_T}, 0"); e(f"s_cselect_b32 s{S_E3}, 0, {OOB}")
    e(f"v_add_u32 v34, s{S_E3}, v{V_L0}"); e("v_mov_b32 v35, 0")
    g.vm(f"buffer_store_dword v35, v34, {sr(S_WS)}, s{S_CX} offen sc1", "rst")
    e(f"v_mov_b32 v{V_CNT}, {M_CNT}")
    e("v_lshrrev_b32 v4, 3, v2"); e("v_and_b32 v6, 3, v2"); e("v_lshl_add_u32 v4, v4, 2, v6")
    e("v_bfe_u32 v6, v2, 2, 1"); e(f"v_mad_u32_u24 v{V_HROW}, v6, 13, v4")
    e("v_cmp_lt_u32 vcc, 12, v4"); e("v_mov_b32 v7, 0x100000"); e(f"v_cndmask_b32 v{V_HROW}, v{V_HROW}, v7, vcc")
    e("v_cmp_eq_u32 s[72:73], 0, v6"); e("s_and_b64 vcc, vcc, s[72:73]")
    e(f"v_lshlrev_b32 v{V_DMA}, 4, v0"); e(f"v_cndmask_b32 v{V_DMA}, v{V_DMA}, v5, vcc")
    e("v_lshrrev_b32 v27, 1, v2"); e("v_and_b32 v28, 1, v2"); e(f"v_lshlrev_b32 v{QSH}, 4, v28")
    e("v_sub_u32 v29, 25, v27"); e("v_mul_u32_u24 v29, v29, v27"); e("v_lshrrev_b32 v29, 1, v29")
    e(f"s_lshl_b32 s{S_T}, s{S_J}, 4")
    e(f"v_lshl_add_u32 v28, v28, 9, s{S_T}")
    e(f"v_lshl_add_u32 v30, v0, 2, s{S_T}"); e(f"v_add_u32 v30, {BUFA + 24*S0STR}, v30")
    e("v_mov_b32 v33, 0.5")
    for t in range(7):
        qb = 4 * (t >> 1) + (t & 1)
        e(f"v_lshl_add_u32 v31, v3, 1, {qb}")
        e("v_add_u32 v32, v29, v31")
        e(f"v_lshrrev_b32 v{QA+t}, 2, v32"); e(f"v_mul_u32_u24 v{QA+t}, {S0STR}, v{QA+t}")
        e("v_and_b32 v32, 3, v32"); e("v_lshl_add_u32 v32, v32, 2, v28"); e(f"v_add_u32 v{QA+t}, v{QA+t}, v32")
        e("v_cmp_lt_u32 vcc, v31, v27")
        if t == 6:
            e("v_cmp_lt_u32 s[72:73], 12, v31"); e("s_or_b64 vcc, vcc, s[72:73]")
        e(f"v_cndmask_b32 v{QA+t}, v{QA+t}, v30, vcc")
        e("v_cmp_eq_u32 vcc, v31, v27"); e(f"v_cndmask_b32 v{QS+t}, 1.0, v33, vcc")
    e("v_lshlrev_b32 v31, 3, v3"); e("v_sub_u32 v31, v2, v31")
    e("v_mov_b32 v32, 0x3f80"); e(f"v_lshlrev_b32 v32, v{QSH}, v32")
    e("v_lshrrev_b32 v31, 1, v31")
    for s in range(2):
        for i in range(4):
            e(f"v_cmp_eq_u32 vcc, {8*s+i}, v31"); e(f"v_cndmask_b32 v{ID+4*s+i}, 0, v32, vcc")
    e("v_mul_u32_u24 v3, 676, v3"); e(f"s_movk_i32 s{S_T+1}, 1352"); e(f"v_mad_u32_u24 v27, v{V_HROW}, s{S_T+1}, v3")
    e(f"s_mov_b64 s[{S_LC}:{S_LC+1}], s[{S_WC}:{S_WC+1}]"); e(f"s_mov_b32 s{S_LC+3}, 0x00020000"); e(f"s_mov_b32 s{S_LC+2}, {2*LB}")
    e("v_lshrrev_b32 v1, 3, v0"); e(f"s_lshl_b32 s{S_T}, s{S_J}, 3"); e(f"v_add_u32 v1, s{S_T}, v1")
    e("v_mul_u32_u24 v1, 1664, v1")
    e("v_bfe_u32 v2, v0, 4, 1"); e("v_lshlrev_b32 v2, 2, v2"); e("v_and_b32 v3, 7, v0"); e("v_xor_b32 v2, v2, v3")
    e("v_lshl_add_u32 v1, v2, 4, v1"); e(f"s_lshl_b32 s{S_SB}, s{S_R}, 7"); e(f"v_add_u32 v{V_WSRC}, s{S_SB}, v1")
    e("v_lshrrev_b32 v1, 5, v0"); e("v_bfe_u32 v2, v0, 2, 2")
    e("v_lshl_add_u32 v1, v1, 3, v2"); e("v_lshlrev_b32 v1, 7, v1")
    e("v_bfe_u32 v3, v0, 4, 1"); e("v_lshl_add_u32 v1, v3, 5, v1"); e("v_and_b32 v3, 3, v0"); e("v_lshl_add_u32 v1, v3, 3, v1")
    e("v_lshrrev_b32 v2, 1, v2"); e("v_lshl_add_u32 v1, v2, 6, v1")
    e(f"v_add_u32 v{V_TR0}, {D0}, v1"); e(f"v_xor_b32 v{V_TR1}, 64, v{V_TR0}")
    e(f"s_mul_i32 s{S_PO}, s{S_G}, 13"); e(f"s_add_u32 s{S_PO}, s{S_PO}, s{S_R}"); e(f"s_lshl_b32 s{S_PO}, s{S_PO}, 2"); e(f"s_add_u32 s{S_PO}, s{S_PO}, s{S_J}")
    e(f"s_lshl_b32 s{S_PO}, s{S_PO}, 8"); e(f"s_add_u32 s{S_PO}, s{S_PO}, {WS_PART}")
    for t in range(7):
        g.vmwait(f"w0_{t}")
        a = HX + 16 * t; w = W0R + 8 * t
        e(f"v_mfma_f32_32x32x16_bf16 {vr(a,16)}, {vr(w,4)}, {vr(ID,4)}, 0")
        e(f"v_mfma_f32_32x32x16_bf16 {vr(a,16)}, {vr(w+4,4)}, {vr(ID+4,4)}, {vr(a,16)}")
        e(f"v_mfma_f32_32x32x16_bf16 {vr(a,16)}, {vr(ID,4)}, {vr(w,4)}, {vr(a,16)}")
        e(f"v_mfma_f32_32x32x16_bf16 {vr(a,16)}, {vr(ID+4,4)}, {vr(w+4,4)}, {vr(a,16)}")
        if t > 0: s0_max(g, t - 1)
    s0_max(g, 6)
    put_max(g, M_S0)
    e("s_waitcnt lgkmcnt(0)")
    e("s_barrier")
    g.stamp()
    g.vmwait("rst")
    e("v_mov_b32 v35, 1"); e(f"s_lshl_b32 s{S_E3}, s{S_G}, 2")
    g.vm(f"buffer_store_dword v35, v34, {sr(S_DBG)}, s{S_E3} offen offset:{C_RDY} sc1", "rdy")
    e(f"s_cmp_ge_u32 s{S_R}, 13"); e("s_cbranch_scc1 L_pe1")
    g.lab("L_pe1r")
    e(f"s_mov_b32 s{S_WC+2}, {2*LB}")
    e("v_lshlrev_b32 v243, 4, v0"); e("v_cmp_lt_u32 vcc, 42, v0"); e(f"v_mov_b32 v2, {OOB}"); e("v_cndmask_b32 v243, v243, v2, vcc")
    def l1load(i):
        if i < 12:
            t = i >> 1
            if i & 1 == 0:
                e(f"s_mul_i32 s{S_T+1}, s{S_J}, 1352"); e(f"s_add_u32 s{S_T+1}, s{S_T+1}, {LB + (13*(t&1) + 4*(t>>1))*1352}")
            g.vm(f"buffer_load_dwordx4 {vr(L1R+4*i,4)}, v243, {sr(S_WC)}, s{S_T+1} offen offset:{676*(i&1)}", "l1r")
        else:
            e(f"s_lshr_b32 s{S_T+1}, s{S_J}, 1"); e(f"s_mul_i32 s{S_T+1}, s{S_T+1}, {13*1352}"); e(f"s_and_b32 s{S_T+2}, s{S_J}, 1"); e(f"s_mul_i32 s{S_T+2}, s{S_T+2}, 676")
            e(f"s_add_u32 s{S_T+1}, s{S_T+1}, s{S_T+2}"); e(f"s_add_u32 s{S_T+1}, s{S_T+1}, {LB + 12*1352}")
            g.vm(f"buffer_load_dwordx4 {vr(L1R+4*i,4)}, v243, {sr(S_WC)}, s{S_T+1} offen", "l1r")
    get_max(g, M_S0)
    e("v_lshlrev_b32 v3, 4, v0"); e(f"v_mov_b32 v{PK}, 0")
    e(f"ds_write_b32 v3, v{PK} offset:{BUFA + 22*S0STR + 12}")
    e("v_lshrrev_b32 v1, 23, v1")
    e("v_max_u32 v1, 14, v1")
    e("v_sub_u32 v2, 141, v1")
    e("v_subrev_u32 v1, 141, v1")
    e(f"ds_write_b32 v3, v1 offset:{BUFA + 23*S0STR + 512}")
    for t in range(7): e(f"v_ldexp_f32 v{QS+t}, v{QS+t}, v2")
    for t in range(7):
        if t == 6:
            e(f"s_cmp_eq_u32 s{S_J}, 1"); e(f"s_cselect_b32 s{S_T}, 48, 0")
            for i in range(7): e(f"v_add_u32 v{QA+i}, s{S_T}, v{QA+i}")
        l1load(2 * t)
        if t < 6: l1load(2 * t + 1)
        pack_round(g, HX + 16 * t, 16 * (8 * (t >> 1) + 4 * (t & 1)))
    e("s_waitcnt lgkmcnt(0)")
    g.stamp()
    e("s_barrier")
    e(f"s_cmp_ge_u32 s{S_R}, 13"); e("s_cbranch_scc1 L_pe2")
    e("v_lshlrev_b32 v1, 2, v0"); e("v_mov_b32 v2, -1")
    g.vm(f"buffer_store_dword v2, v1, {sr(S_WS)}, s{S_PO} offen sc1", "sent")
    dma_w(g, 0)
    dma_w(g, 1)
    e(f"v_lshrrev_b32 v1, 1, v{V_H16}")
    for a in range(2):
        for q in range(4):
            g.vm(f"buffer_load_dwordx2 {vr(BT+8*a+2*q,2)}, v1, {sr(S_B1)}, s{S_SB} offen offset:{64*a+16*q}", "bias")
    g.stamp("s")
    g.vmwait("l1r")
    g.lab("L_pe2r")
    g.stamp("s")
    presample(g, [(S_DBG, f"s{S_E3}", C_RDY, 1)], [232], "rdyl")
    e(f"v_mov_b32 v235, s{S_MASK}"); e("v_cmp_eq_u32 vcc, 42, v0"); e("v_cndmask_b32 v235, v235, 0, vcc")
    e(f"s_and_b32 s{S_T}, s{S_J}, 1"); e(f"s_lshl_b32 s{S_T}, s{S_T}, 4")
    for i in range(13):
        for r in range(4):
            x = L1R + 4 * i + r
            if i == 12: e(f"v_alignbit_b32 v{x}, v{x}, v{x}, s{S_T}")
            elif i & 1: e(f"v_alignbit_b32 v{x}, v{x}, v{x}, 16")
        for r in range(4): e(f"v_and_b32 v{HX+4*i+r}, {'v235' if r else f's{S_MASK}'}, v{L1R+4*i+r}")
    pkmax(g, [HX + i for i in range(52)])
    put_max(g, M_L1)
    arrive(g, "L1M")
    lwait(g, "L1M")
    g.stamp("s")
    get_max(g, M_L1)
    e("v_and_b32 v1, 0x7f807f80, v1"); e("v_mov_b32 v2, 0x0f000f00"); e("v_pk_sub_u16 v233, v1, v2 clamp")
    e("v_bfe_u32 v1, v233, 7, 8"); e("v_subrev_u32 v1, 112, v1")
    e(f"v_mov_b32 v2, {M_EW1}"); e("ds_write_b32 v2, v1")
    e(f"s_lshl_b32 s{S_T}, s{S_J}, 4"); e(f"s_add_u32 s{S_T}, s{S_T}, {BUFB}")
    e(f"v_mul_u32_u24 v234, {S0STR}, v0"); e(f"v_add_u32 v234, s{S_T}, v234")
    e("s_mov_b32 exec_hi, 0x7ff")
    for i in range(13):
        for r in range(4): e(f"v_pk_sub_u16 v{HX+4*i+r}, v{HX+4*i+r}, v233 clamp")
        for r in range(4): e(f"v_lshlrev_b32 v{HX+4*i+r}, 3, v{HX+4*i+r}")
        for r in range(4): e(f"v_bfi_b32 v{L1R+4*i+r}, s{S_MASK}, v{HX+4*i+r}, v{L1R+4*i+r}")
        if i < 12:
            t = i >> 1; o = 16 * (8 * (t >> 1) + 4 * (t & 1)) + 512 * (i & 1)
        else:
            e(f"s_lshr_b32 s{S_T}, s{S_J}, 1"); e(f"s_lshl_b32 s{S_T}, s{S_T}, 5"); e(f"s_and_b32 s{S_T+1}, s{S_J}, 1"); e(f"s_mul_i32 s{S_T+1}, s{S_T+1}, 496")
            e(f"s_add_u32 s{S_T}, s{S_T}, s{S_T+1}"); e(f"v_add_u32 v234, s{S_T}, v234"); o = 24 * 16
        e(f"ds_write_b128 v234, {vr(L1R+4*i,4)} offset:{o}")
    arrive(g, "L1OK")
    g.stamp(); g.stamp("s")
    e("s_waitcnt vmcnt(0)")
    g.stamp("s")
    arrive(g, "XST")
    poll(g, [(S_DBG, f"s{S_E3}", C_RDY, 1)], pre=[232])
    e(f"s_cmp_lg_u32 s{S_J}, 0"); e("s_cbranch_scc1 L_nosig")
    lwait(g, "XST", 8)
    e("v_mov_b32 v1, 1")
    e(f"buffer_atomic_add v1, v{V_L0}, {sr(S_WS)}, s{S_CX} offen sc1")
    g.lab("L_nosig")
    g.stamp("s")

def helper_dnn(g):
    e = g.e
    CH = PAR.chunks; NS = PAR.nslot
    def xb(f, tile, t): return HX + 16 * (f % NS) + 8 * tile + 4 * t
    def xload(f):
        e(f"s_add_u32 s{S_T+2}, s{S_XB}, {f*4096}")
        for tile in range(2):
            for t in range(2):
                g.vm(f"buffer_load_dwordx4 {vr(xb(f,tile,t),4)}, v2, {sr(S_WS)}, s{S_T+2} offen offset:{2048*tile+1024*t} {PAR.ld}", f"x{f}")
    for a in range(2):
        for i in range(8):
            e(f"v_lshlrev_b32 v{HACC+16*a+2*i}, 16, v{BT+8*a+i}")
            e(f"v_and_b32 v{HACC+16*a+2*i+1}, 0xffff0000, v{BT+8*a+i}")
    for i in range(32): e(f"v_mov_b32 v{HACC+32+i}, v{HACC+i}")
    arrive(g, "W01")
    e(f"s_lshl_b32 s{S_XB}, s{S_G}, 2"); e(f"s_add_u32 s{S_XB}, s{S_XB}, s{S_J}"); e(f"s_mul_i32 s{S_XB}, s{S_XB}, 106496"); e(f"s_add_u32 s{S_XB}, s{S_XB}, {WS_X}")
    poll(g, [CHK_X()]); g.vmq = []
    g.stamp("s")
    g.stamp()
    e("v_bfe_u32 v2, v0, 2, 3"); e("v_lshlrev_b32 v2, 7, v2"); e(f"v_lshl_add_u32 v2, v{V_H16}, 2, v2"); e("v_and_b32 v3, 3, v0"); e("v_lshl_add_u32 v2, v3, 4, v2")
    for f in range(NS): xload(f)
    FL = 232
    W2R = 232 + 0
    wring = [0]
    def loc(ks):
        f = ks // 2; c = max(i for i in range(4) if F0(i) <= f)
        return c, ks - 2 * F0(c)
    def wread(ks):
        c, kl = loc(ks)
        Dc = (D0, D1)[c & 1]
        base = HW_ + 8 * (wring[0] % 3); wring[0] += 1
        for a, ad in ((0, V_TR0), (1, V_TR1)):
            for rd in range(2):
                e(f"ds_read_b64_tr_b16 {vr(base+4*a+2*rd,2)}, v{ad} offset:{Dc - D0 + kl*2048 + rd*512}")
        return base
    CK2 = [(S_DBG, "0", C_L[2], 11)]; CKQ = [(S_DBG, "0", C_Q, 9)]; CK3 = [(S_DBG, "0", C_L[3], 11)]
    def act_l2():
        lwait(g, "AFREE"); g.vmwait("f2"); poll(g, CK2, pre=[196]); dma_img(g, "L2", 44, BUFA)
    after = {}
    def add(f, fn): after.setdefault(f, []).append(fn)
    add(PAR.l2pos - 2, lambda: presample(g, CK2, [196], "f2"))
    add(PAR.l2pos, act_l2)
    add(PAR.l2pos + 4, lambda: (g.vmwait("L2"), arrive(g, "L2OK")))
    add(F0(1), lambda: (lwait(g, "C0"), dma_w(g, 2)))
    add(F0(3) - 3, lambda: presample(g, CKQ + CK3, [196, 197], "fq"))
    lwait(g, "W01")
    for c in range(4):
        k0 = 2 * F0(c); k1 = 2 * F0(c + 1)
        bufs = {k0: wread(k0), k0 + 1: wread(k0 + 1)}
        for ks in range(k0, k1):
            f, t = divmod(ks, 2)
            if t == 0: g.vmwait(f"x{f}")
            e(f"s_waitcnt lgkmcnt({4 if ks + 1 < k1 else 0})")
            for a in range(2):
                for tile in range(2):
                    acc = HACC + 32 * tile + 16 * a
                    e(f"v_mfma_f32_32x32x16_bf16 {vr(acc,16)}, {vr(bufs[ks]+4*a,4)}, {vr(xb(f,tile,t),4)}, {vr(acc,16)}")
                if a == 0 and ks + 2 < k1: bufs[ks + 2] = wread(ks + 2)
            if t == 1:
                if f + NS < 26: xload(f + NS)
                for fn in after.get(f, []): fn()
        if c == 0: arrive(g, "C0"); g.stamp()
        if c == 1:
            g.vmwait("W2"); arrive(g, "C1"); lwait(g, "C1"); dma_w(g, 3)
        if c == 2:
            g.vmwait("W3"); arrive(g, "C2"); lwait(g, "C2")
            g.vmwait("fq"); poll(g, CKQ, pre=[196]); dma_img(g, "Q4", 28, D0)
            e(f"v_lshrrev_b32 v1, 1, v{V_H16}")
            for a in range(2):
                for q in range(4):
                    g.vm(f"buffer_load_dwordx2 {vr(W2R+8*a+2*q,2)}, v1, {sr(S_W2)}, s{S_SB} offen offset:{64*a+16*q}", "w2")
    e("s_waitcnt vmcnt(0)"); arrive(g, "QOK")
    g.stamp()
    e("s_setprio 0")
    W2F = HX
    for i in range(16):
        e(f"v_lshlrev_b32 v{W2F+2*i}, 16, v{W2R+i}")
        e(f"v_and_b32 v{W2F+2*i+1}, 0xffff0000, v{W2R+i}")
    c0 = 2 * 0.7978845608028654 * 1.4426950408889634
    e(f"s_mov_b32 s{S_C1}, {f2u(c0*0.044715):#x}")
    e(f"v_mov_b32 v2, {f2u(c0):#x}")
    T = HX + 32; SUM = HX + 48
    for i in range(4): e(f"v_mov_b32 v{SUM+i}, 0")
    def gelu(blk):
        rs = [HACC + 4 * blk + i for i in range(4)]
        tile = (4 * blk) // 32
        for i, r in enumerate(rs): e(f"v_mul_f32 v{T+i}, v{r}, v{r}")
        for i, r in enumerate(rs): e(f"v_fma_f32 v{T+i}, v{T+i}, s{S_C1}, v2")
        for i, r in enumerate(rs): e(f"v_mul_f32 v{T+i}, v{T+i}, v{r}")
        for i, r in enumerate(rs): e(f"v_exp_f32 v{T+i}, -v{T+i}")
        for i, r in enumerate(rs): e(f"v_mul_f32 v{r}, v{r}, v{W2F + (r - HACC) % 32}")
        for i, r in enumerate(rs): e(f"v_add_f32 v{T+i}, 1.0, v{T+i}")
        for i, r in enumerate(rs): e(f"v_rcp_f32 v{T+i}, v{T+i}")
        for i, r in enumerate(rs): e(f"v_fmac_f32 v{SUM + 2*tile + (i&1)}, v{r}, v{T+i}")
    for blk in range(16):
        if blk == PAR.gsplit:
            lwait(g, "BFREE"); poll(g, CK3, pre=[197]); dma_img(g, "L3", 44, BUFB)
        if blk == PAR.gsplit2:
            e("s_waitcnt vmcnt(0)"); arrive(g, "L3OK")
        gelu(blk)
    e(f"v_add_f32 v{SUM}, v{SUM}, v{SUM+1}"); e(f"v_add_f32 v{SUM+2}, v{SUM+2}, v{SUM+3}")
    e(f"v_permlane32_swap_b32 v{SUM}, v{SUM+2}")
    e(f"v_add_f32 v{SUM}, v{SUM}, v{SUM+2}")
    e(f"v_min_u32 v{SUM}, -2, v{SUM}")
    e("v_lshlrev_b32 v1, 2, v0")
    e(f"buffer_store_dword v{SUM}, v1, {sr(S_WS)}, s{S_PO} offen sc1")
    g.stamp()
    g.flush_stamps(4, 5)
    e("s_endpgm")

def gsignal(g, c, off, so="0"):
    e = g.e; done = g.newlab("sg")
    e("s_waitcnt vmcnt(0)"); arrive(g, c)
    e(f"s_cmp_lg_u32 s{S_J}, 0"); e(f"s_cbranch_scc1 {done}")
    lwait(g, c)
    e("v_mov_b32 v1, 1")
    e(f"buffer_atomic_add v1, v{V_L0}, {sr(S_DBG)}, {so} offen offset:{off} sc1")
    g.lab(done)
SCN, FR, WV, WP, W1V, AQ, RW = 28, 64, 244, 245, 160, 44, 120
S_E4, S_LW = 62, 63
def prod_early1(g):
    e = g.e
    g.lab("L_pe1")
    e(f"s_mul_i32 s{S_WP}, s{S_G}, 3"); e(f"s_add_u32 s{S_WP}, s{S_WP}, s{S_R}"); e(f"s_sub_u32 s{S_WP}, s{S_WP}, 13")
    e(f"s_cmp_ge_u32 s{S_WP}, 31"); e("s_cbranch_scc1 L_pe1r")
    e(f"s_mul_i32 s{S_L}, s{S_WP}, 94"); e(f"s_lshr_b32 s{S_L}, s{S_L}, 10")
    e(f"s_mul_i32 s{S_T}, s{S_L}, 11"); e(f"s_sub_u32 s{S_FR}, s{S_WP}, s{S_T}"); e(f"s_lshl_b32 s{S_FR}, s{S_FR}, 2"); e(f"s_add_u32 s{S_FR}, s{S_FR}, s{S_J}")
    e(f"s_add_u32 s{S_L}, s{S_L}, 2")
    e(f"s_mul_i32 s{S_E2}, s{S_L}, {LB}")
    e(f"s_add_u32 s{S_LC+2}, s{S_E2}, {LB}")
    e("v_lshlrev_b32 v1, 4, v0")
    e(f"s_mul_i32 s{S_T}, s{S_J}, 9216"); e(f"s_add_u32 s{S_T}, s{S_T}, s{S_E2}")
    for i in range(9):
        if i % 4 == 0 and i: e(f"s_add_u32 s{S_T}, s{S_T}, 4096")
        e(f"buffer_load_dwordx4 {vr(SCN+4*i,4)}, v1, {sr(S_LC)}, s{S_T} offen offset:{(i%4)*1024}")
    e(f"s_cmp_ge_u32 s{S_WP}, 22"); e("s_cbranch_scc1 L_pe1r")
    e(f"s_lshl_b32 s{S_T}, s{S_FR}, 4"); e(f"s_add_u32 s{S_T}, s{S_T}, s{S_E2}")
    e(f"buffer_load_dwordx4 {vr(FR,4)}, v27, {sr(S_LC)}, s{S_T} offen")
    e(f"v_lshlrev_b32 v1, 1, v{V_HROW}"); e(f"s_mul_i32 s{S_T}, s{S_L}, 52")
    e(f"buffer_load_ushort v{WV}, v1, {sr(S_WO)}, s{S_T} offen")
    e(f"buffer_load_ushort v{WP}, v1, {sr(S_WO)}, 52 offen")
    e("s_branch L_pe1r")
def prod_early2(g):
    e = g.e
    g.lab("L_pe2")
    e("s_waitcnt vmcnt(0)")
    e(f"s_cmp_ge_u32 s{S_WP}, 31"); e("s_cbranch_scc1 L_pe2r")
    e(f"s_cmp_ge_u32 s{S_WP}, 22"); e("s_cbranch_scc1 L_pe2q")
    e("v_lshrrev_b32 v3, 5, v0"); e("v_mul_u32_u24 v3, 26, v3")
    for i in range(8):
        e(f"s_lshl_b32 s{S_T}, s{S_FR}, 3"); e(f"s_sub_u32 s{S_T}, s{S_T}, {8*42 + 2 - i}")
        e(f"s_lshl_b32 s{S_T+1}, s{S_T}, 1"); e(f"s_add_u32 s{S_T+1}, s{S_T+1}, 52")
        e(f"s_cmp_lt_u32 s{S_T}, 13"); e(f"s_cselect_b32 s{S_T+1}, s{S_T+1}, {OOB}")
        e(f"v_add_u32 v2, s{S_T+1}, v3")
        e(f"buffer_load_ushort v{W1V+i}, v2, {sr(S_WO)}, 0 offen")
    e("s_branch L_pe2m")
    g.lab("L_pe2q")
    e(f"s_cmp_eq_u32 s{S_WP}, 29"); e(f"s_cselect_b32 s{S_LW}, 4, 5"); e(f"s_cmp_eq_u32 s{S_WP}, 30"); e(f"s_cselect_b32 s{S_LW}, 0, s{S_LW}")
    e(f"s_mul_i32 s{S_E2}, s{S_LW}, {LB}"); e(f"s_add_u32 s{S_LC+2}, s{S_E2}, {LB}")
    e("v_lshlrev_b32 v1, 1, v0"); e("v_cmp_lt_u32 vcc, 25, v0"); e(f"v_mov_b32 v2, {OOB}"); e("v_cndmask_b32 v1, v1, v2, vcc")
    e(f"s_mul_i32 s{S_T}, s{S_LW}, 52")
    e(f"buffer_load_ushort v{WV}, v1, {sr(S_WO)}, s{S_T} offen")
    e("v_lshlrev_b32 v1, 4, v0")
    e(f"s_mul_i32 s{S_T}, s{S_J}, 1352"); e(f"s_add_u32 s{S_T}, s{S_T}, s{S_E2}")
    for t in range(7):
        for ps in range(2):
            e(f"buffer_load_dwordx4 {vr(RW+8*t+4*ps,4)}, v1, {sr(S_LC)}, s{S_T} offen offset:{1024*ps}")
        e(f"s_add_u32 s{S_T}, s{S_T}, {4*1352}")
    g.lab("L_pe2m")
    for i in range(36): e(f"v_and_b32 v{SCN+i}, s{S_MASK}, v{SCN+i}")
    pkmax(g, [SCN + i for i in range(36)])
    put_max(g, M_SC)
    arrive(g, "SCM"); lwait(g, "SCM")
    get_max(g, M_SC)
    e(f"v_readfirstlane_b32 s{S_E0}, v1")
    e(f"s_bfe_u32 s{S_E0}, s{S_E0}, 0x80007")
    e(f"s_cmp_lt_u32 s{S_WP}, 22"); e("s_cbranch_scc1 L_gjob")
    e("v_and_b32 v2, 31, v0"); e("v_lshrrev_b32 v3, 5, v0")
    e("v_mul_u32_u24 v1, 676, v3"); e("v_add_lshl_u32 v1, v1, v2, 1")
    e(f"s_mul_i32 s{S_T}, s{S_FR}, 52"); e(f"s_add_u32 s{S_T}, s{S_T}, {4*LB}")
    for s in range(13):
        e(f"buffer_load_ushort v{AQ+s}, v1, {sr(S_LC)}, s{S_T} offen")
        e(f"s_add_u32 s{S_T}, s{S_T}, 2704")
    e("s_branch L_pe2r")
    g.lab("L_gjob")
    e(f"s_max_u32 s{S_T+2}, s{S_E0}, 30"); e(f"s_sub_u32 s{S_T+2}, s{S_T+2}, 30")
    e(f"s_mul_i32 s{S_T+3}, s{S_T+2}, 0x800080")
    e(f"s_cmp_lt_u32 s{S_FR}, 42"); e(f"s_cselect_b32 s{S_T+1}, -1, 0")
    for i in range(1, 4): e(f"v_and_b32 v{FR+i}, s{S_T+1}, v{FR+i}")
    e(f"s_cmp_lt_u32 s{S_FR}, 43"); e(f"s_cselect_b32 s{S_T+1}, -1, 0"); e(f"v_and_b32 v{FR}, s{S_T+1}, v{FR}")
    for i in range(4): e(f"v_alignbit_b32 v{FR+i}, v{FR+i}, v{FR+i}, v{V_H16}")
    for i in range(4): e(f"v_and_b32 v{SCN+i}, s{S_MASK}, v{FR+i}")
    for i in range(4): e(f"v_pk_sub_u16 v{SCN+i}, v{SCN+i}, s{S_T+3} clamp")
    for i in range(4): e(f"v_lshlrev_b32 v{SCN+i}, 3, v{SCN+i}")
    for i in range(4): e(f"v_bfi_b32 v{FR+i}, s{S_MASK}, v{SCN+i}, v{FR+i}")
    e(f"v_lshlrev_b32 v{WV}, 16, v{WV}")
    e(f"v_and_b32 v1, 0x7fffffff, v{WV}")
    wavemax_exp(g, 1, S_E1)
    e(f"s_add_u32 s{S_E1}, s{S_E1}, 5"); e(f"s_sub_u32 s{S_T}, 0, s{S_E1}")
    e(f"v_ldexp_f32 v{WV}, v{WV}, s{S_T}")
    for i in range(8):
        sel = "op_sel:[1,0,0] op_sel_hi:[1,0,0]" if i & 1 else "op_sel_hi:[1,0,0]"
        e(f"v_fma_mix_f32 v{SCN+i}, v{FR+(i>>1)}, v{WV}, 0 {sel}")
    for sh in (1, 2, 4, 8):
        for i in range(8): e(f"v_add_f32_dpp v{SCN+i}, v{SCN+i}, v{SCN+i} row_shr:{sh} {DPPALL} bound_ctrl:0")
    for i in range(8): e(f"v_add_f32_dpp v{SCN+i}, v{SCN+i}, v{SCN+i} row_bcast:15 row_mask:0xa bank_mask:0xf")
    for i in range(4): e(f"v_cvt_pk_f16_f32 v{SCN+2*i}, v{SCN+2*i}, v{SCN+2*i+1}")
    e("v_and_b32 v2, 31, v0"); e("v_cmp_eq_u32 vcc, 31, v2")
    for i in range(4): e(f"v_cndmask_b32 v{FR+i}, v{FR+i}, v{SCN+2*i}, vcc")
    e(f"v_lshlrev_b32 v1, 16, v{WP}"); e("v_and_b32 v1, 0x7fffffff, v1")
    wavemax_exp(g, 1, S_E4)
    e(f"s_sub_u32 s{S_T}, 15, s{S_E4}")
    e("s_waitcnt vmcnt(0)")
    for i in range(8): e(f"v_lshlrev_b32 v{W1V+i}, 16, v{W1V+i}")
    for i in range(8): e(f"v_ldexp_f32 v{W1V+i}, v{W1V+i}, s{S_T}")
    for i in range(4): e(f"v_cvt_pk_f16_f32 v{W1V+2*i}, v{W1V+2*i}, v{W1V+2*i+1}")
    e("v_cmp_eq_u32 vcc, 30, v2")
    for i in range(4): e(f"v_cndmask_b32 v{FR+i}, v{FR+i}, v{W1V+2*i}, vcc")
    e(f"s_cmp_lg_u32 s{S_FR}, 0"); e("s_cbranch_scc1 L_nohdr")
    e(f"s_sub_u32 s{S_T+2}, s{S_T+2}, 112"); e(f"s_add_u32 s{S_E1}, s{S_E1}, s{S_T+2}"); e(f"s_sub_u32 s{S_E4}, s{S_E4}, 15")
    e(f"v_writelane_b32 v{FR}, s{S_T+2}, 29"); e(f"v_writelane_b32 v{FR+1}, s{S_E1}, 29"); e(f"v_writelane_b32 v{FR+2}, s{S_E4}, 29")
    g.lab("L_nohdr")
    e(f"s_mul_i32 s{S_T}, s{S_L}, {44*1024}"); e(f"s_lshl_b32 s{S_T+1}, s{S_FR}, 10"); e(f"s_add_u32 s{S_T}, s{S_T}, s{S_T+1}")
    e(f"s_sub_u32 s{S_T}, s{S_T}, {88*1024 - IMG['L2']}")
    e("v_lshlrev_b32 v1, 4, v0")
    e(f"buffer_store_dwordx4 {vr(FR,4)}, v1, {sr(S_WS)}, s{S_T} offen sc1")
    e("s_nop 1")
    e("s_branch L_pe2r")
def helper_prod(g):
    e = g.e
    e(f"s_cmp_ge_u32 s{S_WP}, 31"); e("s_cbranch_scc1 L_idle")
    e(f"s_cmp_ge_u32 s{S_WP}, 22"); e("s_cbranch_scc1 L_nog")
    e(f"s_lshl_b32 s{S_T+2}, s{S_L}, 2"); e(f"s_sub_u32 s{S_T+2}, s{S_T+2}, 8")
    gsignal(g, "GST", 0, f"s{S_T+2}")
    e("s_branch L_idle")
    g.lab("L_nog")
    AC = HX; TU = HX + 16
    g.stamp("q")
    e(f"v_lshlrev_b32 v{WV}, 16, v{WV}"); e(f"v_and_b32 v1, 0x7fffffff, v{WV}")
    wavemax_exp(g, 1, S_E1)
    e(f"s_sub_u32 s{S_T}, 0, s{S_E1}"); e(f"v_ldexp_f32 v{WV}, v{WV}, s{S_T}")
    for i in range(16): e(f"v_mov_b32 v{AC+i}, 0")
    for t in range(7):
        e(f"s_add_u32 s{S_T}, s{S_J}, {4*t}")
        e(f"v_readlane_b32 s{S_T+1}, v{WV}, s{S_T}")
        for i in range(8):
            e(f"v_lshlrev_b32 v{TU+2*i}, 16, v{RW+8*t+i}"); e(f"v_and_b32 v{TU+2*i+1}, 0xffff0000, v{RW+8*t+i}")
        for i in range(16): e(f"v_fmac_f32 v{AC+i}, s{S_T+1}, v{TU+i}")
    PSTR = 4096
    e(f"s_mul_i32 s{S_T}, s{S_J}, {PSTR}"); e(f"s_add_u32 s{S_T}, s{S_T}, {D0}")
    e(f"v_lshl_add_u32 v1, v0, 5, s{S_T}")
    for ps in range(2):
        for hf in range(2): e(f"ds_write_b128 v1, {vr(AC+8*ps+4*hf,4)} offset:{2048*ps+16*hf}")
    g.stamp("q"); arrive(g, "WC"); lwait(g, "WC"); g.stamp("q")
    e(f"s_cmp_eq_u32 s{S_FR}, 28"); e("s_cbranch_scc1 L_lin")
    e(f"s_cmp_lt_u32 s{S_FR}, 26"); e("s_cbranch_scc1 L_q")
    e(f"s_cmp_lg_u32 s{S_FR}, 32"); e("s_cbranch_scc1 L_noq")
    g.lab("L_q")
    BQ, PT, DQ = HX + 16, HX + 32, HX + 96
    e("v_and_b32 v2, 31, v0"); e("v_lshrrev_b32 v3, 5, v0")
    e("v_mad_u32_u24 v1, v3, 26, v2"); e("v_lshlrev_b32 v1, 2, v1"); e(f"v_add_u32 v1, {D0}, v1")
    def readsum(stride):
        for pj in range(4):
            for s in range(13): e(f"ds_read_b32 v{PT+13*pj+s}, v1 offset:{PSTR*pj + stride*s}")
            if pj: e("s_waitcnt lgkmcnt(13)")
        e("s_waitcnt lgkmcnt(0)")
        for s in range(13):
            e(f"v_add_f32 v{PT+s}, v{PT+s}, v{PT+13+s}"); e(f"v_add_f32 v{PT+26+s}, v{PT+26+s}, v{PT+39+s}")
        for s in range(13): e(f"v_add_f32 v{BQ+s}, v{PT+s}, v{PT+26+s}")
    def max13():
        e(f"v_max3_f32 v1, |v{BQ}|, |v{BQ+1}|, |v{BQ+2}|")
        for s in range(3, 13, 2): e(f"v_max3_f32 v1, v1, |v{BQ+s}|, |v{BQ+s+1}|")
    readsum(208)
    e("v_cmp_gt_u32 vcc, 26, v2")
    for s in range(13): e(f"v_cndmask_b32 v{BQ+s}, 0, v{BQ+s}, vcc")
    max13()
    wavemax_exp(g, 1, S_E2)
    e(f"s_sub_u32 s{S_T}, 0, s{S_E2}")
    for s in range(13): e(f"v_ldexp_f32 v{BQ+s}, v{BQ+s}, s{S_T}")
    e("s_waitcnt vmcnt(0)")
    e(f"s_sub_u32 s{S_E0}, s{S_E0}, 126")
    e(f"s_sub_u32 s{S_T}, 0, s{S_E0}")
    for s in range(13): e(f"v_lshlrev_b32 v{AQ+s}, 16, v{AQ+s}")
    for s in range(13): e(f"v_ldexp_f32 v{AQ+s}, v{AQ+s}, s{S_T}")
    e(f"s_cmp_ge_u32 s{S_FR}, 13"); e(f"s_cselect_b32 s{S_T+1}, 13, 0"); e(f"s_cselect_b32 s{S_T+2}, 4, 0")
    e(f"s_sub_u32 s{S_T+1}, s{S_FR}, s{S_T+1}"); e(f"s_and_b32 s{S_T+3}, s{S_T+1}, 3"); e(f"s_add_u32 s{S_T+2}, s{S_T+2}, s{S_T+3}")
    e(f"s_lshr_b32 s{S_T+1}, s{S_T+1}, 2"); e(f"s_lshl_b32 s{S_T+1}, s{S_T+1}, 3"); e(f"s_add_u32 s{S_SB}, s{S_T+2}, s{S_T+1}")
    e(f"s_mov_b32 s{S_L}, 0")
    e(f"s_cmp_lg_u32 s{S_FR}, 32"); e("s_cbranch_scc1 L_q2")
    e("v_sub_u32 v1, v2, v3")
    for s in range(13):
        e(f"v_cmp_eq_u32 vcc, {2*s}, v1"); e(f"v_cndmask_b32 v{AQ+s}, 0, 1.0, vcc")
    e(f"s_mov_b32 s{S_E0}, 0"); e(f"s_mov_b32 s{S_SB}, 31"); e(f"s_mov_b32 s{S_L}, 8")
    g.lab("L_q2")
    g.stamp("q")
    e("s_nop 1")
    for s in range(13):
        e(f"v_mfma_f32_32x32x2_f32 {vr(DQ,16)}, v{AQ+s}, v{BQ+s}, {'0' if s == 0 else vr(DQ,16)}")
        e(f"v_mfma_f32_32x32x2_f32 {vr(DQ,16)}, v{BQ+s}, v{AQ+s}, {vr(DQ,16)}")
    e(f"v_max_f32 v1, v{QS}, v{QS+1}")
    e("v_mov_b32 v30, 0x44800000"); e("v_mov_b32 v31, 0x44000000")
    for t in range(7):
        e(f"v_cmp_eq_f32 vcc, v1, v{QS+t}"); e(f"v_cndmask_b32 v{QS+t}, v31, v30, vcc")
    e(f"s_cmp_eq_u32 s{S_J}, 1"); e(f"s_cselect_b32 s{S_T}, 48, 0"); e(f"s_sub_u32 s{S_T}, {D1 - BUFA}, s{S_T}")
    for t in range(7): e(f"v_add_u32 v{QA+t}, s{S_T}, v{QA+t}")
    e(f"v_mul_u32_u24 v1, {S0STR}, v2"); e("v_lshl_add_u32 v1, v3, 9, v1"); e(f"s_lshl_b32 s{S_T}, s{S_J}, 4"); e(f"s_add_u32 s{S_T}, s{S_T}, {D1}")
    e(f"v_min_u32 v1, {22*S0STR+512}, v1")
    e(f"v_add_u32 v1, s{S_T}, v1")
    e(f"v_lshl_add_u32 v28, v3, 9, s{S_T}"); e("v_mov_b32 v29, 0")
    e(f"ds_write_b32 v28, v29 offset:{22*S0STR+12}")
    pack_round(g, DQ, 0)
    g.stamp("q")
    e("s_waitcnt lgkmcnt(0)")
    e(f"ds_read_b128 {vr(AQ,4)}, v1")
    e("v_lshlrev_b32 v1, 10, v2"); e("v_lshl_add_u32 v1, v3, 9, v1"); e("v_cmp_lt_u32 vcc, 22, v2"); e(f"v_mov_b32 v28, {OOB}"); e("v_cndmask_b32 v1, v1, v28, vcc")
    e(f"s_lshl_b32 s{S_T}, s{S_SB}, 4"); e(f"s_add_u32 s{S_T}, s{S_T}, {IMG['Q4']}")
    e("s_waitcnt lgkmcnt(0)")
    e(f"buffer_store_dwordx4 {vr(AQ,4)}, v1, {sr(S_WS)}, s{S_T} offen sc1")
    e(f"s_add_u32 s{S_E0}, s{S_E0}, s{S_E2}"); e(f"s_add_u32 s{S_E0}, s{S_E0}, s{S_E1}"); e(f"s_sub_u32 s{S_E0}, s{S_E0}, 10")
    e(f"s_and_b32 s{S_T}, s{S_FR}, 31"); e(f"s_cmp_lg_u32 s{S_T}, 0"); e("s_cbranch_scc1 L_noq")
    g.lab("L_qh")
    e(f"v_mov_b32 v1, s{S_E0}"); e(f"s_add_u32 s{S_T}, s{S_L}, {IMG['Q4'] + 23*1024}")
    e(f"buffer_store_dword v1, v{V_L0}, {sr(S_WS)}, s{S_T} offen sc1")
    e("s_branch L_noq")
    g.lab("L_lin")
    e("v_lshrrev_b32 v3, 5, v0"); e(f"v_min_u32 v2, 25, v{V_HROW}")
    e("v_mad_u32_u24 v1, v2, 26, v3"); e("v_lshlrev_b32 v1, 2, v1"); e(f"v_add_u32 v1, {D0}, v1")
    readsum(8)
    e(f"v_cmp_gt_u32 vcc, 26, v{V_HROW}")
    for s in range(13): e(f"v_cndmask_b32 v{BQ+s}, 0, v{BQ+s}, vcc")
    max13()
    wavemax_exp(g, 1, S_E2)
    e(f"s_sub_u32 s{S_T}, 15, s{S_E2}")
    for s in range(13): e(f"v_ldexp_f32 v{BQ+s}, v{BQ+s}, s{S_T}")
    e(f"v_mov_b32 v{BQ+13}, 0"); e(f"v_mov_b32 v{AQ+7}, 0")
    for t in range(7): e(f"v_cvt_pk_f16_f32 v{AQ+t}, v{BQ+2*t}, v{BQ+2*t+1}")
    e("v_lshlrev_b32 v1, 4, v0"); e(f"s_mov_b32 s{S_T}, {IMG['Q4'] + 24*1024}")
    for s in range(2): e(f"buffer_store_dwordx4 {vr(AQ+4*s,4)}, v1, {sr(S_WS)}, s{S_T} offen offset:{1024*s} sc1")
    e(f"s_add_u32 s{S_E0}, s{S_E2}, s{S_E1}"); e(f"s_sub_u32 s{S_E0}, s{S_E0}, 15"); e(f"s_mov_b32 s{S_L}, 4")
    e("s_branch L_qh")
    g.lab("L_noq")
    g.stamp("q")
    gsignal(g, "QST", C_Q)
    g.stamp("q")
    lwait(g, "QST")
    g.lab("L_idle")
    g.stamp()
    lwait(g, "AFREE")
    poll(g, [(S_DBG, "0", C_L[2], 11), CHK_X()])
    dma_img(g, "L2", 44, BUFA)
    e("s_waitcnt vmcnt(0)"); arrive(g, "L2OK")
    g.stamp()
    lwait(g, "L2OK")
    poll(g, [(S_DBG, "0", C_Q, 9)])
    dma_img(g, "Q4", 28, D0)
    e("s_waitcnt vmcnt(0)"); arrive(g, "QOK")
    g.stamp()
    lwait(g, "BFREE")
    poll(g, [(S_DBG, "0", C_L[3], 11)])
    dma_img(g, "L3", 44, BUFB)
    e("s_waitcnt vmcnt(0)"); arrive(g, "L3OK")
    g.stamp()
    g.flush_stamps(4, 5)
    e("s_endpgm")

def build(stamps=False):
    g = G(stamps)
    prologue(g); n0 = g.nst
    cin(g)
    g.lab("L_helper"); g.nst = n0
    helper_common(g); n1 = g.nst
    g.e(f"s_cmp_ge_u32 s{S_R}, 13"); g.e("s_cbranch_scc1 L_helper_n")
    helper_dnn(g)
    g.lab("L_helper_n"); g.nst = n1
    helper_prod(g)
    prod_early1(g); prod_early2(g)
    g.L += g.tail
    g.lab("L_end"); g.e("s_endpgm")
    body, nops = fix_hazards(g.L)
    ref = open("standalone__deep_cross_xdeepfm__recsys.s.ref").read().split("\n")
    hdr = [l for l in ref if l.startswith(";") and "@launch" not in l and "Override" not in l and "grid=ceil" not in l]
    txt = "\n".join(hdr) + f"\n; @launch grid=(256,1,1) block=(512,1,1) lds={LDS_TOTAL}\n"
    txt += f'.amdgcn_target "amdgcn-amd-amdhsa--gfx950"\n.text\n.globl {KN}\n.p2align 8\n.type {KN},@function\n{KN}:\n'
    txt += "\n".join(body) + "\n"
    txt += f""".section .rodata,"a"
.p2align 6
.amdhsa_kernel {KN}
  .amdhsa_next_free_vgpr 256
  .amdhsa_next_free_sgpr 102
  .amdhsa_accum_offset 256
  .amdhsa_group_segment_fixed_size 0
  .amdhsa_kernarg_size 88
  .amdhsa_user_sgpr_count 2
  .amdhsa_user_sgpr_kernarg_segment_ptr 1
  .amdhsa_system_sgpr_workgroup_id_x 1
.end_amdhsa_kernel
"""
    return txt, nops
if __name__ == "__main__":
    for a in sys.argv[2:]:
        if "=" in a:
            k, v = a.split("="); setattr(PAR, k, eval(v))
    txt, nops = build(stamps="stamps" in sys.argv)
    open(sys.argv[1], "w").write(txt)
    print("nops inserted", nops, "lines", txt.count("\n"))
```

```python
import sys, struct
from asmlib import fix_hazards
KN = "standalone__deep_cross_xdeepfm__recsys_kernel"
def f2u(f): return struct.unpack('<I', struct.pack('<f', f))[0]
OOB = 0x40000000
SPIN = 200000
LB = 35152
IMG = {}
off = 0
for name, n in (("L2", 44), ("L3", 44), ("Q4", 28)):
    IMG[name] = off; off += n * 1024
WS_PART = off
WS_CNT = WS_PART + 16 * 13 * 1024
WS_STAMP = WS_CNT + 4096
WS_X = WS_STAMP + 256 * 8 * 64
C_L = {2: 0, 3: 4}; C_Q = 8; C_RDY = 128
BUFA, BUFB = 0, 45056
D0, D1 = 90112, 118784
MISC = 147456
LDS_TOTAL = MISC + 1536
M_S0, M_L1, M_SC, M_EW1, M_CNT = MISC, MISC + 64, MISC + 128, MISC + 192, MISC + 256
CNT = {n: M_CNT + 4 * i for i, n in enumerate(["XST", "L1M", "L1OK", "AFREE", "L2OK", "BFREE", "L3OK", "QOK", "W01", "C0", "C1", "C2", "SCM", "GST", "WC", "QST", "FX", "F2", "F3", "FQ", "S0OK", "S0M", "RAW"])}
S0STR = 1040
QPAIRS = [(p, q) for p in range(13) for q in range(p, 13)]
S_IDX, S_TAB, S_WS, S_W1, S_B1, S_W2, S_OUT, S_DBG, S_BO, S_WC, S_WO = 4, 8, 12, 16, 20, 24, 28, 32, 36, 40, 44
S_G, S_R, S_WAVE, S_J = 70, 71, 83, 3
S_HDR = 48
S_EX = 60
S_K = 64
S_K1 = 4
S_KC = 76
S_T = 72
S_MASK = 80
S_C1 = 81
S_SB = 82
S_ST = 84
class P: pass
PAR = P()
PAR.chunks = [7, 7, 6, 6]
PAR.gsplit = 4
PAR.gsplit2 = 8
PAR.lnpos = 29
PAR.pload = 30
PAR.xst = 2
PAR.l2pos = 2
PAR.nslot = 8
PAR.st = 'ad'
PAR.ld = 'sc1'
PAR.inv = 0
PAR.rate = 1
PAR.clk = 0
PAR.hp = 0
PAR.nost = 0
PAR.wpf = 1
PAR.rot = 2
PAR.pf = 4
PAR.qlate = 0
PAR.slp = 8
PAR.de = 2
PAR.touch = 0
PAR.dbg = None
class G:
    def __init__(self, stamps=False):
        self.L = []; self.stamps = stamps; self.nst = 0; self.nl = 0; self.vmq = []; self.tail = []
    def e(self, s): self.L.append("    " + s)
    def lab(self, s): self.L.append(s + ":")
    def vm(self, s, tag): self.e(s); self.vmq.append(tag)
    def vmwait(self, *tags):
        idx = max(i for i, t in enumerate(self.vmq) if t in tags)
        n = len(self.vmq) - 1 - idx
        self.e(f"s_waitcnt vmcnt({min(n, 63)})")
    def newlab(self, s): self.nl += 1; return f"L_{s}_{self.nl}"
    def stamp(self, name=None):
        if self.stamps and (name or "d") in PAR.st:
            assert self.nst < 8
            self.e(f"{'s_memtime' if PAR.clk else 's_memrealtime'} s[{S_ST+2*self.nst}:{S_ST+2*self.nst+1}]"); self.nst += 1
    def flush_stamps(self, vt, va):
        if not self.stamps: return
        self.e("s_waitcnt lgkmcnt(0)")
        self.e(f"s_lshl_b32 s{S_T}, s2, 3"); self.e(f"s_add_u32 s{S_T}, s{S_T}, s{S_WAVE}"); self.e(f"s_lshl_b32 s{S_T}, s{S_T}, 6")
        self.e(f"s_add_u32 s{S_T}, s{S_T}, {WS_STAMP}")
        self.e(f"v_mov_b32 v{va}, 0")
        if PAR.dbg is not None:
            lb = self.newlab("nd")
            self.e(f"s_cmp_lg_u32 s{S_T}, {WS_STAMP + PAR.dbg*64}"); self.e(f"s_cbranch_scc1 {lb}")
            for i in range(self.nst):
                self.e(f"s_sub_u32 s{S_T+1}, s{S_ST+2*i}, s{S_ST}")
                self.e(f"v_mov_b32 v{vt}, s{S_T+1}")
                self.e(f"buffer_store_dword v{vt}, v{va}, s[{S_DBG}:{S_DBG+3}], 0 offen offset:{16+4*i}")
            self.lab(lb)
        for i in range(self.nst):
            self.e(f"v_mov_b32 v{vt}, s{S_ST+2*i}")
            self.e(f"buffer_store_dword v{vt}, v{va}, s[{S_WS}:{S_WS+3}], s{S_T} offen offset:{4*i}")
        self.nst = 0
def vr(a, n): return f"v[{a}:{a+n-1}]"
def sr(a, n=4): return f"s[{a}:{a+n-1}]"
DPPALL = "row_mask:0xf bank_mask:0xf"

def prologue(g):
    e = g.e
    e("s_cmp_ge_u32 s2, 256")
    e("s_cbranch_scc1 L_end")
    g.stamp("a")
    e("s_load_dwordx16 s[48:63], s[0:1], 0")
    e("s_load_dwordx4 s[64:67], s[0:1], 64")
    e("s_load_dwordx2 s[68:69], s[0:1], 80")
    if PAR.pf:
        e(f"s_getpc_b64 s[{S_KC}:{S_KC+1}]")
        g.lab("L_pfbase")
        e(f"s_mov_b32 s{S_KC+2}, L_end - L_pfbase"); e(f"s_mov_b32 s{S_KC+3}, 0x00020000")
        e(f"s_lshr_b32 s{S_T}, s2, 3"); e(f"s_lshl_b32 s{S_T}, s{S_T}, 7")
        e("v_xor_b32 v1, 0x1c0, v0"); e("v_lshlrev_b32 v1, 12, v1")
        e(f"buffer_load_dword v255, v1, {sr(S_KC)}, s{S_T} offen")
    e("v_lshrrev_b32 v1, 6, v0")
    e("v_and_b32 v0, 63, v0")
    e(f"v_readfirstlane_b32 s{S_WAVE}, v1")
    e(f"s_and_b32 s{S_T}, s2, 7")
    e(f"s_lshr_b32 s{S_T+1}, s2, 3")
    e(f"s_lshr_b32 s{S_G}, s{S_T+1}, 4")
    e(f"s_lshl_b32 s{S_T}, s{S_T}, 1")
    e(f"s_add_u32 s{S_G}, s{S_G}, s{S_T}")
    e(f"s_and_b32 s{S_R}, s{S_T+1}, 15")
    e(f"s_mov_b32 s{S_MASK}, 0x7fff7fff")
    e("v_and_b32 v25, 31, v0"); e("v_lshlrev_b32 v25, 2, v25"); e(f"v_add_u32 v25, {M_CNT}, v25"); e("v_mov_b32 v2, 0")
    e("ds_write_b32 v25, v2")
    srds = ((S_IDX, 48, 4096*104), (S_TAB, 50, 6400000), (S_WC, 52, LB), (S_WO, 54, 312), (S_W1, 56, 832*1664), (S_B1, 58, 1664), (S_W2, 60, 1664),
            (S_BO, 62, 2), (S_OUT, 64, 8192), (S_DBG, 66, 256), (S_WS, 68, 1 << 28))
    for srd, src, nbytes in srds:
        e(f"s_mov_b32 s{srd+2}, {nbytes}"); e(f"s_mov_b32 s{srd+3}, 0x00020000")
    e("s_waitcnt lgkmcnt(0)")
    for srd, src, nbytes in srds:
        e(f"s_mov_b64 s[{srd}:{srd+1}], s[{src}:{src+1}]")
    e(f"s_cmp_ge_u32 s{S_WAVE}, 4")
    e("s_cbranch_scc1 L_helper")

ACC, ACC2, XR, UR, BR, AR, SC, LG, TM = 4, 68, 132, 188, 216, 232, 244, 248, 252
def X(k, p): return XR + 14 * k + p
def EV(k): return XR + 14 * k + 13
def U(k, t): return UR + 7 * k + t
def cin(g):
    e = g.e
    e("s_setprio 1")
    e(f"s_lshl_b32 s{S_T}, s{S_G}, 8"); e(f"s_lshl_b32 s{S_T+1}, s{S_R}, 4"); e(f"s_add_u32 s{S_T}, s{S_T}, s{S_T+1}")
    e(f"s_lshl_b32 s{S_T+1}, s{S_WAVE}, 2"); e(f"s_add_u32 s{S_SB}, s{S_T}, s{S_T+1}")
    e(f"s_mul_i32 s{S_T}, s{S_SB}, 104")
    e("v_lshrrev_b32 v1, 4, v0")
    e("v_bfe_u32 v2, v0, 2, 2")
    e("v_and_b32 v3, 3, v0")
    e("v_mul_u32_u24 v4, 104, v1")
    e("v_mad_u32_u24 v4, v2, 28, v4")
    I = 8
    e(f"buffer_load_dwordx4 {vr(I,4)}, v4, {sr(S_IDX)}, s{S_T} offen")
    e(f"buffer_load_dwordx3 {vr(I+4,3)}, v4, {sr(S_IDX)}, s{S_T} offen offset:16")
    e("s_barrier")
    L1R = 132
    e(f"s_mov_b32 s{S_WC+2}, {2*LB}"); e(f"s_mov_b32 s{S_J}, s{S_WAVE}")
    e("v_lshlrev_b32 v26, 4, v0"); e(f"v_add_u32 v29, {BUFA + 28*1024}, v26"); e("v_cmp_lt_u32 vcc, 42, v0"); e(f"v_mov_b32 v6, {OOB}"); e("v_cndmask_b32 v26, v26, v6, vcc")
    e(f"s_mul_i32 s{S_T}, s{S_J}, 1352")
    for i in range(13):
        if i < 12:
            t = i >> 1
            if i & 1 == 0: e(f"s_add_u32 s{S_T+1}, s{S_T}, {LB + (13*(t&1) + 4*(t>>1))*1352}")
            e(f"buffer_load_dwordx4 {vr(L1R+4*i,4)}, v26, {sr(S_WC)}, s{S_T+1} offen offset:{676*(i&1)}")
        else:
            e(f"s_lshr_b32 s{S_T+1}, s{S_J}, 1"); e(f"s_mul_i32 s{S_T+1}, s{S_T+1}, {13*1352}"); e(f"s_and_b32 s{S_T+2}, s{S_J}, 1"); e(f"s_mul_i32 s{S_T+2}, s{S_T+2}, 676")
            e(f"s_add_u32 s{S_T+1}, s{S_T+1}, s{S_T+2}"); e(f"s_add_u32 s{S_T+1}, s{S_T+1}, {LB + 12*1352}")
            e(f"buffer_load_dwordx4 {vr(L1R+4*i,4)}, v26, {sr(S_WC)}, s{S_T+1} offen")
    e(f"s_lshl_b32 s{S_T}, s{S_J}, 4"); e(f"s_add_u32 s{S_T}, s{S_T}, {BUFB}")
    e(f"v_mul_u32_u24 v28, {S0STR}, v0"); e(f"v_add_u32 v28, s{S_T}, v28"); e("v_cndmask_b32 v28, v28, v29, vcc")
    e("v_lshlrev_b32 v5, 4, v3")
    e("v_cmp_eq_u32 vcc, 3, v2")
    e(f"v_mov_b32 v6, {OOB}")
    e("v_cndmask_b32 v6, 0, v6, vcc")
    e("v_add_u32 v6, v6, v5")
    e(f"s_mul_i32 s{S_T+1}, s{S_WAVE}, 7168"); e(f"s_add_u32 s{S_T+1}, s{S_T+1}, {D0}")
    e("v_mul_u32_u24 v7, 1792, v1")
    e("v_mad_u32_u24 v16, v2, 7, 0")
    e("v_lshl_add_u32 v7, v16, 6, v7")
    e(f"v_add3_u32 v7, v7, v5, s{S_T+1}")
    e("v_lshrrev_b32 v16, 1, v1")
    e("v_xor_b32 v16, v16, v2")
    e("v_lshlrev_b32 v16, 6, v16")
    e("v_and_b32 v17, 1, v1")
    e("v_lshl_add_u32 v16, v17, 5, v16")
    e("v_lshl_add_u32 v16, v3, 3, v16")
    e(f"v_add_u32 v16, s{S_T+1}, v16")
    for k in range(4): e(f"v_mov_b32 v{LG+k}, 0")
    PA, PS, DR = 32, 40, 184
    unpack_mat(g, PA, 20)
    e("s_waitcnt vmcnt(13) lgkmcnt(0)")
    GR, MR = 68, 96
    for t in range(7):
        e(f"v_lshl_add_u32 v{I+t}, v{I+t}, 6, v{5 if t < 5 else 6}")
        e(f"buffer_load_dwordx4 {vr(GR+4*t,4)}, v{I+t}, {sr(S_TAB)}, 0 offen")
    g.stamp()
    def carrive(c):
        e("v_mov_b32 v2, 1"); e("s_mov_b64 exec, 1"); e(f"ds_add_u32 v25, v2 offset:{CNT[c]-M_CNT}"); e("s_mov_b64 exec, -1")
    for i in range(13):
        e(f"s_waitcnt vmcnt({7 + 12 - i})")
        unpack(g, DR, PA, L1R, i)
        if i & 1 and i >= 3: tmax(g, DR, (i >> 1) - 1, 16, i == 3)
    e(f"s_and_b32 s{S_T}, s{S_J}, 1"); e(f"s_lshl_b32 s{S_T}, s{S_T}, 4")
    tmax(g, DR, 5, 16, False)
    for r in range(4): e(f"v_alignbit_b32 v{L1R+48+r}, v{L1R+48+r}, v{L1R+48+r}, s{S_T}")
    tmax(g, DR, 6, 8, False)
    put_max(g, M_L1)
    carrive("L1M")
    for i in range(8): e(f"v_and_b32 v{PS+i}, 0x800080, v{PA+i}")
    g.stamp("s")
    lwait(g, "L1M", 4, 25, 2)
    get_max(g, M_L1)
    e(f"v_readfirstlane_b32 s{S_T}, v1")
    e(f"s_lshr_b32 s{S_T}, s{S_T}, 23"); e(f"s_max_u32 s{S_T}, s{S_T}, 15"); e(f"s_sub_u32 s{S_HDR+2}, s{S_T}, 142")
    e(f"s_sub_u32 s{S_T}, {127+142}, s{S_T}")
    for i in range(8): e(f"v_mul_u32_u24 v{PS+i}, s{S_T}, v{PS+i}")
    def l1out(i):
        d = DR + 16 * ((i >> 1) & 3) + 8 * (i & 1)
        for r in range(4):
            lo, hi = (d + 2 * r + 1, d + 2 * r) if (i & 1) else (d + 2 * r, d + 2 * r + 1)
            e(f"v_cvt_pk_f16_f32 v{L1R+4*i+r}, v{lo}, v{hi}")
        if i < 12:
            t = i >> 1; o = 16 * (8 * (t >> 1) + 4 * (t & 1)) + 512 * (i & 1)
        else:
            e(f"s_lshr_b32 s{S_T}, s{S_J}, 1"); e(f"s_lshl_b32 s{S_T}, s{S_T}, 5"); e(f"s_and_b32 s{S_T+1}, s{S_J}, 1"); e(f"s_mul_i32 s{S_T+1}, s{S_T+1}, 496")
            e(f"s_add_u32 s{S_T}, s{S_T}, s{S_T+1}"); e(f"v_add_u32 v28, s{S_T}, v28"); o = 24 * 16
        e(f"ds_write_b128 v28, {vr(L1R+4*i,4)} offset:{o}")
    for i in range(13):
        unpack(g, DR, PS, L1R, i)
        if i >= 4: l1out(i - 4)
    for i in range(9, 13): l1out(i)
    g.stamp("s")
    for t in range(7):
        e(f"s_waitcnt vmcnt({6 - t})")
        unpack(g, DR, PA, GR, t)
        e(f"ds_write_b128 v7, {vr(GR+4*t,4)} offset:{64*t}")
        if t in (3, 5): tmax(g, DR, (t >> 1) - 1, 16, t == 3, 20)
    e("v_mov_b32 v2, 1"); e("s_mov_b64 exec, 1"); e(f"ds_add_u32 v25, v2 offset:{CNT['RAW']-M_CNT}"); e("s_mov_b64 exec, -1")
    g.stamp(); g.stamp("s")
    tmax(g, DR, 2, 16, False, 20); tmax(g, DR, 3, 8, False, 20)
    for sh in (8, 4, 2, 1):
        e(f"v_max_u32_dpp v20, v20, v20 row_ror:{sh} {DPPALL}")
    e("v_lshrrev_b32 v20, 23, v20"); e("v_max_u32 v20, 8, v20")
    e(f"v_sub_u32 v21, {127+134}, v20"); e("v_lshlrev_b32 v21, 23, v21")
    for t in range(7):
        d = DR + 8 * t
        for i in range(8): e(f"v_mul_f32 v{d+i}, v{d+i}, v21")
        for i in range(4): e(f"v_cvt_pk_f16_f32 v{MR+4*t+i}, v{d+2*i}, v{d+2*i+1}")
        e(f"ds_write_b128 v7, {vr(MR+4*t,4)} offset:{D1 - D0 + 64*t}")
    for k in range(4): e(f"v_readlane_b32 s{S_EX+k}, v20, {16*k}")
    e("s_waitcnt lgkmcnt(0)")
    for k in range(4):
        for t in range(7):
            e(f"ds_read_b64_tr_b16 {vr(X(k,2*t),2)}, v16 offset:{D1 - D0 + k*1792+t*256}")
    for k in range(4):
        e(f"s_sub_u32 s{S_EX+k}, s{S_EX+k}, 134")
    for i in range(16): e(f"v_mov_b32 v{BR+i}, 0")
    e("v_lshlrev_b32 v1, 4, v0")
    e("s_waitcnt lgkmcnt(0)")
    HW = lambda l: S_HDR + 2 * l
    HD = lambda l: S_HDR + 2 * l + 1
    HQ, HL = S_HDR + 8, S_HDR + 9
    for k in range(4):
        e(f"s_lshl_b32 s{S_T}, s{S_EX+k}, 1")
        e(f"v_mov_b32 v{EV(k)}, s{S_T}")
    g.stamp("s")
    e("s_mov_b64 exec, 1"); e(f"ds_add_u32 v25, v2 offset:{CNT['XST']-M_CNT}"); e("s_mov_b64 exec, -1")
    lwait(g, "S0OK", 4, 25, 2)
    g.stamp(); g.stamp("s")

    ready = set()
    def quad_prod(k, rho):
        p, q = QPAIRS[rho]
        return lambda d: f"v_pk_mul_f16 v{d}, v{X(k,p)}, v{X(k,q)} op_sel_hi:[0,1]"
    def gen_prod(l):
        def f(k, rho):
            r, p = divmod(rho, 13)
            def mk(d):
                if r == 13: return f"v_mov_b32 v{d}, v{U(k,p)}" if l == 2 else f"v_mov_b32 v{d}, 0"
                assert ('u', l, k, r) in ready, (l, k, r)
                if r & 1: return f"v_pk_mul_f16 v{d}, v{U(k,r>>1)}, v{X(k,p)} op_sel:[1,0] op_sel_hi:[1,1]"
                return f"v_pk_mul_f16 v{d}, v{U(k,r>>1)}, v{X(k,p)} op_sel_hi:[0,1]"
            return mk
        return f
    def lin_prod(k, t):
        b = 2 * t + 1 if 2 * t + 1 < 13 else 2 * t
        return lambda d: f"v_pack_b32_f16 v{d}, v{X(k,2*t)}, v{X(k,b)}"
    def steps(nprod, prod, acc, base, first0, stride=1024, needs=None):
        out = []
        ns = (nprod + 3) // 4
        for s in range(ns):
            out.append(dict(lds=base + stride * s, needs=needs if s == 0 else None, jobs=[dict(acc=acc + 16 * k, zero=(first0 and s == 0),
                       prods=[prod(k, rho) for rho in range(4 * s, min(4 * s + 4, nprod))]) for k in range(4)]))
        return out
    def conv(acc, l, t):
        o = []
        for r in (2 * t, 2 * t + 1):
            if r < 13: o += [f"v_mul_f32 v{acc+16*k+r}, v{acc+16*k+r}, v{SC+k}" for k in range(4)]
        for k in range(4):
            hi = f"v{acc+16*k+2*t+1}" if t < 6 else "0"
            o.append((f"v_cvt_pk_f16_f32 v{U(k,t)}, v{acc+16*k+2*t}, {hi}", ('u', l + 1, k, 2 * t)))
            o.append((None, ('u', l + 1, k, 2 * t + 1)))
        return o
    def head(acc, l):
        o = []
        for j in range(6):
            for k in range(4):
                a = acc + 16 * k
                if j == 0: o.append(f"v_max3_f32 v{SC+k}, |v{a}|, |v{a+1}|, |v{a+2}|")
                else: o.append(f"v_max3_f32 v{SC+k}, v{SC+k}, |v{a+2*j+1}|, |v{a+2*j+2}|")
        for k in range(4): o.append(f"v_mov_b32 v{TM+k}, v{SC+k}")
        for k in range(4): o.append(f"v_permlane32_swap_b32 v{SC+k}, v{TM+k}")
        for k in range(4): o.append(f"v_max_f32 v{SC+k}, v{SC+k}, v{TM+k}")
        for k in range(4): o.append(f"v_frexp_exp_i32_f32 v{TM+k}, v{SC+k}")
        for k in range(4): o.append(f"v_sub_u32 v{SC+k}, 8, v{TM+k}")
        for k in range(4): o.append(f"v_ldexp_f32 v{SC+k}, 1.0, v{SC+k}")
        return o + conv(acc, l, 0)
    def tailb(acc, l):
        o = []
        o += conv(acc, l, 1)
        if l == 2:
            o.append((None, 'x', 'k2'))
            for k in range(4): o.append(f"v_ldexp_f32 v{acc+16*k+15}, v{acc+16*k+15}, v{EV(k)}")
            for k in range(4): o.append(f"v_add_u32 v{acc+16*k+13}, s{S_K1+k}, v{EV(k)}")
            for k in range(4): o.append(f"v_ldexp_f32 v{acc+16*k+14}, v{acc+16*k+14}, v{acc+16*k+13}")
            for k in range(4): o.append(f"v_add_f32 v{LG+k}, v{acc+16*k+14}, v{acc+16*k+15}")
        for k in range(4):
            o.append(f"v_add3_u32 v{EV(k)}, v{EV(k)}, v{TM+k}, s{S_K+k}")
        for t in range(2, 7): o += conv(acc, l, t)
        o.append((None, ('free', l)))
        return o
    def emit(s):
        if isinstance(s, tuple):
            if len(s) == 3: assert s[2] in ready, s
            ready.add(s[1]); s = s[0]
        if s: e(s)
    def kconst(l):
        if l == 0: e(f"s_mov_b32 s{S_T}, s{HW(0)}")
        elif l == 1: e(f"s_add_u32 s{S_T}, s{HW(1)}, s{HD(2)}")
        else:
            e(f"s_sub_u32 s{S_T}, s{HD(1)}, s{HD(2)}")
            for k in range(4): e(f"s_sub_u32 s{S_K1+k}, s{S_T}, s{S_EX+k}")
            e(f"s_sub_u32 s{S_T}, s{HW(l)}, s{HD(l)}"); e(f"s_add_u32 s{S_T}, s{S_T}, s{HD(l+1)}")
        e(f"s_sub_u32 s{S_T}, s{S_T}, 8")
        for k in range(4): e(f"s_add_u32 s{S_K+k}, s{S_T}, s{S_EX+k}")
    state = dict(areg=0, breg=0, base=0)
    def rel(addr):
        r = addr - state['base']
        if r < 0 or r > 65535:
            nb = max(addr - 45056, 0) if r > 0 else addr
            nb = min(nb, addr)
            e(f"v_add_u32 v1, {(nb - state['base']) & 0xffffffff}, v1"); state['base'] = nb; r = addr - nb
        return r
    def aread(st):
        st['a'] = AR + 4 * (state['areg'] % 3); state['areg'] += 1
        r = rel(st['lds'])
        e(f"ds_read_b128 {vr(st['a'],4)}, v1 offset:{r}")
    def prods(job):
        job['b'] = BR + 4 * (state['breg'] % 4); state['breg'] += 1
        return [p(job['b'] + i) for i, p in enumerate(job['prods'])]
    def run(seq, nxt, fill=None, events=None, post=None, rates=None):
        rate = PAR.rate
        jobs = [(si, j) for si, st in enumerate(seq) for j in st['jobs']]
        for j in range(2):
            for s in prods(jobs[j][1]): e(s)
        fq = []
        allst = seq + nxt
        for n, (si, job) in enumerate(jobs):
            k = n % 4
            if k == 0:
                if fill and si in fill: fq += fill[si]
                if rates and si in rates: rate = rates[si]
                waited = False
                if events and si in events: waited = events[si]()
                pend = sum(1 for st in allst[si+1:si+2] if 'a' in st)
                if not waited: e(f"s_waitcnt lgkmcnt({pend})")
                if seq[si]['needs']: assert seq[si]['needs'] in ready, seq[si]['needs']
            c = "0" if job['zero'] else vr(job['acc'], 16)
            e(f"v_mfma_f32_32x32x16_f16 {vr(job['acc'],16)}, {vr(seq[si]['a'],4)}, {vr(job['b'],4)}, {c}")
            budget = 7 if rate > 2 else 6
            if k == 0:
                if post and si in post: post[si]()
                if si + 2 < len(allst) and 'a' not in allst[si + 2]:
                    aread(allst[si + 2]); budget -= 1
            if k == 3: budget -= 1
            if n + 2 < len(jobs):
                ps = prods(jobs[n + 2][1])
                for s in ps: e(s)
                budget -= len(ps)
            budget = min(budget, rate)
            while budget > 0 and fq:
                x = fq.pop(0); emit(x)
                t = x[0] if isinstance(x, tuple) else x
                if t: budget -= 2 if 'permlane' in t else 1
            while fq and isinstance(fq[0], tuple) and fq[0][0] is None: emit(fq.pop(0))
        for s in fq: emit(s)
    S0 = steps(91, quad_prod, ACC, BUFA, True, stride=S0STR)
    L1 = steps(172, gen_prod(1), ACC2, BUFB, True, stride=S0STR)
    L2 = steps(176, gen_prod(2), ACC, BUFA, True, needs=('free', 0))
    LN = steps(7, lin_prod, ACC2, D0 + 24 * 1024, True, needs=('free', 1))
    Q4 = steps(91, quad_prod, ACC2, D0, False, needs='ldx')
    L3 = steps(169, gen_prod(3), ACC, BUFB, True, needs=('free', 2))
    def hdr_read(addr):
        def f():
            r = rel(addr)
            e(f"ds_read_b64 v[2:3], v1 offset:{r}")
        return f
    def hdr_get(sa, sb):
        def f():
            e(f"v_readfirstlane_b32 s{sa}, v2")
            if sb is not None: e(f"v_readfirstlane_b32 s{sb}, v3")
        return f
    def arrive(c, pre=None):
        def f():
            if pre: g.stamp("s"); e(pre); g.stamp("s")
            r = rel(CNT[c])
            e("v_mov_b32 v2, 1"); e("s_mov_b64 exec, 1"); e(f"ds_add_u32 v1, v2 offset:{r}"); e("s_mov_b64 exec, -1")
        return f
    def chk_read(c):
        def f():
            r = rel(CNT[c]); e(f"ds_read_b32 v2, v1 offset:{r}")
        return f
    def chk_test(c):
        def f():
            slow = g.newlab("cs"); back = g.newlab("cb"); top = g.newlab("ct")
            e(f"v_readfirstlane_b32 s{S_T}, v2"); e(f"s_cmp_lt_u32 s{S_T}, 4"); e(f"s_cbranch_scc1 {slow}")
            g.lab(back)
            g.tail += [slow + ":", f"    s_mov_b32 s{S_T+1}, {SPIN*8}", f"    v_mov_b32 v3, {CNT[c]}", top + ":", "    s_sleep 1", "    ds_read_b32 v2, v3", "    s_waitcnt lgkmcnt(0)",
                       f"    v_readfirstlane_b32 s{S_T}, v2", f"    s_cmp_ge_u32 s{S_T}, 4", f"    s_cbranch_scc1 {back}",
                       f"    s_sub_u32 s{S_T+1}, s{S_T+1}, 1", f"    s_cbranch_scc0 {top}", f"    s_branch {back}"]
        return f
    def seqf(*fs):
        def f():
            for x in fs: x()
        return f
    HOFF = 29 * 16
    aread(S0[0]); aread(S0[1])
    run(S0, L1[:2], post={4: hdr_read(BUFA + 23 * S0STR + 512), 5: hdr_get(HW(0), None), 22: arrive("AFREE"),
                          19: chk_read("RAW"), 20: chk_test("RAW")})
    g.stamp()
    kconst(0)
    for s in head(ACC, 0): emit(s)
    run(L1, L2[:2], fill={0: tailb(ACC, 0)},
        post={39: chk_read("L2OK"), 40: seqf(chk_test("L2OK"), hdr_read(BUFA + HOFF)), 41: hdr_get(HW(2), HD(2)), 42: arrive("BFREE")})
    g.stamp()
    kconst(1)
    for s in head(ACC2, 1): emit(s)
    LNPOS = PAR.lnpos; B4 = LNPOS - 3
    seq = L2[:LNPOS] + LN + L2[LNPOS:] + Q4 + L3
    nQ = 46; nL3 = nQ + 23
    ldx = [f"v_mul_f32 v{ACC2+16*k+r}, s{S_K1+k}, v{ACC2+16*k+r}" for k in range(4) for r in range(13)] + [(None, 'ldx')]
    PV, PA = 2, 3
    def pload():
        e(f"buffer_load_dword v{PV}, v{PA}, {sr(S_WS)}, s{S_T+3} offen sc1")
    def getq():
        hdr_get(HQ, HL)()
        for k in range(4):
            e(f"s_sub_u32 s{S_T}, s{HL}, s{HQ}"); e(f"s_sub_u32 s{S_T}, s{S_T}, s{S_EX+k}")
            e(f"s_min_i32 s{S_KC+k}, s{S_T}, 50")
            e(f"s_add_i32 s{S_T}, s{S_KC+k}, 127"); e(f"s_max_i32 s{S_T}, s{S_T}, 0"); e(f"s_lshl_b32 s{S_K1+k}, s{S_T}, 23")
        hdr_read(D0 + 23 * 1024 + 8)()
    def get3():
        hdr_get(HW(3), HD(3))(); kconst(2); ready.add('k2')
    pre = []
    pre.append("v_bfe_u32 v2, v0, 4, 1"); pre.append("v_lshrrev_b32 v3, 5, v0"); pre.append("v_lshl_add_u32 v2, v2, 1, v3")
    pre.append("v_and_b32 v3, 15, v0"); pre.append("v_cmp_lt_u32 vcc, 12, v3"); pre.append("v_lshlrev_b32 v3, 10, v3")
    pre.append("v_lshl_add_u32 v3, v2, 2, v3"); pre.append(f"v_mov_b32 v2, {OOB}"); pre.append("v_cndmask_b32 v3, v3, v2, vcc")
    w0 = []
    for k in range(4): w0.append(f"v_ldexp_f32 v{ACC2+16*k+15}, v{ACC2+16*k+15}, s{S_K+k}")
    for k in range(4): w0.append(f"v_add_f32 v{LG+k}, v{LG+k}, v{ACC2+16*k+15}")
    def k_w0():
        for k in range(4):
            e(f"s_lshl_b32 s{S_T}, s{S_EX+k}, 1"); e(f"s_add_u32 s{S_K+k}, s{S_T}, s{HD(0)}")
        e(f"s_mul_i32 s{S_T+3}, s{S_G}, {13*1024}"); e(f"s_and_b32 s{S_T}, s{S_SB}, 255"); e(f"s_lshl_b32 s{S_T}, s{S_T}, 2")
        e(f"s_add_u32 s{S_T+3}, s{S_T+3}, s{S_T}"); e(f"s_add_u32 s{S_T+3}, s{S_T+3}, {WS_PART}")
    def k_fin():
        for k in range(4):
            e(f"s_sub_u32 s{S_T}, s{HW(3)}, s{HD(3)}"); e(f"s_add_u32 s{S_T}, s{S_T}, s{HL}"); e(f"s_add_u32 s{S_T}, s{S_T}, s{S_EX+k}")
            e(f"s_sub_u32 s{S_K+k}, s{S_T}, s{S_KC+k}")
    BO = ACC2 + 14
    fin = [f"v_add_u32 v{TM+k}, s{S_K+k}, v{EV(k)}" for k in range(4)] + [f"v_mov_b32 v{BO-1}, 0"]
    def boload():
        e(f"buffer_load_ushort v{BO}, v{BO-1}, {sr(S_BO)}, 0 offen")
    run(seq, [], fill={0: tailb(ACC2, 1), LNPOS + 3: ldx, nQ + 1: head(ACC, 2) + tailb(ACC, 2), nL3 + 2: pre + w0, nL3 + 10: fin}, rates={nQ: 3, nL3: PAR.rate},
        post={2: hdr_read(BUFA + HOFF + 8), 3: hdr_get(HD(1), None),
              B4 - 1: chk_read("QOK"), B4: seqf(chk_test("QOK"), hdr_read(D0 + 23 * 1024)), B4 + 1: getq, B4 + 2: hdr_get(HD(0), None),
              nQ + 5: chk_read("L3OK"), nQ + 6: seqf(chk_test("L3OK"), hdr_read(BUFB + HOFF)), nQ + 7: get3,
              1: lambda: g.stamp("p"), 21: lambda: g.stamp("p"), nQ: lambda: g.stamp("p"), nL3: lambda: g.stamp("p"), nL3 + 20: lambda: g.stamp("p"), nL3 + 40: lambda: g.stamp("p"),
              nL3 + 1: k_w0, nL3 + 9: k_fin, nL3 + 14: boload, nL3 + PAR.pload: pload})
    g.stamp()
    for r in range(13):
        for k in range(4):
            if r == 0: e(f"v_mul_f32 v{SC+k}, v{ACC+16*k}, v{ACC2+16*k}")
            else: e(f"v_fmac_f32 v{SC+k}, v{ACC+16*k+r}, v{ACC2+16*k+r}")
    for k in range(4): e(f"v_ldexp_f32 v{ACC+16*k+15}, v{ACC+16*k+15}, v{EV(k)}")
    for k in range(4): e(f"v_ldexp_f32 v{SC+k}, v{SC+k}, v{TM+k}")
    for k in range(4): e(f"v_add_f32 v{LG+k}, v{LG+k}, v{ACC+16*k+15}")
    for k in range(4): e(f"v_add_f32 v{LG+k}, v{LG+k}, v{SC+k}")
    e(f"v_permlane32_swap_b32 v{LG}, v{LG+1}"); e(f"v_permlane32_swap_b32 v{LG+2}, v{LG+3}")
    e(f"v_add_f32 v{LG}, v{LG}, v{LG+1}"); e(f"v_add_f32 v{LG+2}, v{LG+2}, v{LG+3}")
    e(f"v_permlane16_swap_b32 v{LG}, v{LG+2}")
    e(f"v_add_f32 v{LG}, v{LG}, v{LG+2}")
    e(f"s_mov_b32 s{S_T}, {SPIN}")
    g.lab("L_pcheck")
    e("s_waitcnt vmcnt(0)")
    e(f"v_cmp_eq_u32 vcc, -1, v{PV}")
    e("s_nop 1")
    e("s_cbranch_vccz L_pok")
    e("s_sleep 4")
    pload()
    e(f"s_sub_u32 s{S_T}, s{S_T}, 1")
    e("s_cbranch_scc0 L_pcheck")
    e("s_waitcnt vmcnt(0)")
    g.lab("L_pok")
    e(f"v_add_f32 v{LG}, v{LG}, v{PV}")
    for sh in (8, 4, 2, 1):
        e(f"v_add_f32_dpp v{LG}, v{LG}, v{LG} row_ror:{sh} {DPPALL}")
    e(f"v_lshlrev_b32 v{BO}, 16, v{BO}")
    e(f"v_add_f32 v{LG}, v{LG}, v{BO}")
    e(f"v_cvt_pk_bf16_f32 v{LG}, v{LG}, v{LG}")
    e(f"v_lshrrev_b32 v{PA}, 1, v{PA}")
    e(f"v_cmp_lt_u32 vcc, 7, v{PA}")
    e(f"v_mov_b32 v2, {OOB}")
    e(f"v_cndmask_b32 v{PA}, v{PA}, v2, vcc")
    e(f"s_lshl_b32 s{S_T}, s{S_SB}, 1")
    e(f"buffer_store_short v{LG}, v{PA}, {sr(S_OUT)}, s{S_T} offen")
    g.stamp()
    g.flush_stamps(4, 5)
    e("s_endpgm")

HACC, HX, HW_ = 4, 68, 208
V_TR0, V_TR1, V_DMA, V_WSRC, V_H16, V_L0, V_HROW, V_CNT = 248, 249, 250, 251, 252, 253, 254, 255
ID, QA, QSH, QS, W0R, PK = 4, 12, 19, 20, 180, 236
L1R, BT = 180, 36
S_WP, S_L, S_FR, S_E0, S_E1, S_E2, S_PO, S_CX = 48, 49, 50, 51, 52, 53, 54, 55
S_LC = 56
S_E3, S_XB = 60, 61
def dma_img(g, name, nfr, lds):
    e = g.e; per = nfr // 4
    e(f"s_mul_i32 s{S_T}, s{S_J}, {per*1024}")
    for i in range(per):
        if i % 4 == 0:
            e(f"s_add_u32 s{S_T+1}, s{S_T}, {IMG[name] + i*1024}")
            e(f"s_add_u32 m0, s{S_T}, {lds + i*1024}")
        g.vm(f"buffer_load_dwordx4 v{V_DMA}, {sr(S_WS)}, s{S_T+1} offen offset:{(i%4)*1024} {PAR.ld} lds", name)
def poll(g, checks, pre=None):
    e = g.e
    done = g.newlab("pd"); top = g.newlab("pt"); slp = g.newlab("ps"); tst = g.newlab("pc")
    regs = pre or [2 + i for i in range(len(checks))]
    e(f"s_mov_b32 s{S_T}, {SPIN}")
    if pre: e(f"s_branch {tst}")
    g.lab(top)
    for r, (srd, so, o, n) in zip(regs, checks):
        e(f"buffer_load_dword v{r}, v{V_L0}, {sr(srd)}, {so} offen offset:{o} sc1")
    e("s_waitcnt vmcnt(0)")
    g.lab(tst)
    for r, (srd, so, o, n) in zip(regs, checks):
        e(f"v_readfirstlane_b32 s{S_T+1}, v{r}")
        e(f"s_cmp_lt_u32 s{S_T+1}, {n}")
        e(f"s_cbranch_scc1 {slp}")
    g.lab(done)
    g.tail += [slp + ":", f"    s_sleep {PAR.slp}", f"    s_sub_u32 s{S_T}, s{S_T}, 1", f"    s_cbranch_scc0 {top}", f"    s_branch {done}"]
def poll1(g, checks, flag, pre=None):
    lb = g.newlab("p1")
    g.e(f"s_cmp_lg_u32 s{S_J}, 0"); g.e(f"s_cbranch_scc1 {lb}")
    poll(g, checks, pre)
    arrive(g, flag)
    g.lab(lb)
    lwait(g, flag, 1)
def presample(g, checks, regs, tag):
    for r, (srd, so, o, n) in zip(regs, checks):
        g.vm(f"buffer_load_dword v{r}, v{V_L0}, {sr(srd)}, {so} offen offset:{o} sc1", tag)
def arrive(g, *cs):
    e = g.e
    e("v_mov_b32 v1, 1"); e("s_mov_b64 exec, 1")
    for c in cs: e(f"ds_add_u32 v{V_CNT}, v1 offset:{CNT[c]-M_CNT}")
    e("s_mov_b64 exec, -1")
def unpack_mat(g, PA, t):
    e = g.e
    e(f"v_and_b32 v{t}, 1, v0"); e(f"v_lshlrev_b32 v{t}, 4, v{t}"); e(f"v_mov_b32 v{t+1}, 0x3f80"); e(f"v_lshlrev_b32 v{t+1}, v{t}, v{t+1}")
    e(f"v_lshrrev_b32 v{t+2}, 3, v0"); e(f"v_xor_b32 v{t+2}, v{t+2}, v0"); e(f"v_and_b32 v{t+2}, 4, v{t+2}")
    e(f"v_bfe_u32 v{t}, v0, 3, 2"); e(f"v_bfe_u32 v{t+3}, v0, 1, 1"); e(f"v_lshl_add_u32 v{t}, v{t}, 1, v{t+3}"); e(f"v_lshl_add_u32 v{t}, v{t+2}, 3, v{t}")
    for i in range(8):
        e(f"v_cmp_eq_u32 vcc, {i}, v{t}"); e(f"v_cndmask_b32 v{PA+i}, 0, v{t+1}, vcc")
def unpack(g, DR, pa, src, i):
    d = DR + 16 * ((i >> 1) & 3)
    g.e(f"v_mfma_f32_32x32x16_bf16 {vr(d,16)}, {vr(pa+4*(i&1),4)}, {vr(src+4*i,4)}, {vr(d,16) if i & 1 else '0'}")
def tmax(g, DR, tile, n, first, mv=1):
    d = DR + 16 * (tile & 3)
    for q in range(n // 2):
        if first and q == 0: g.e(f"v_max_f32 v{mv}, |v{d}|, |v{d+1}|")
        else: g.e(f"v_max3_f32 v{mv}, v{mv}, |v{d+2*q}|, |v{d+2*q+1}|")
def lwait(g, c, n=4, va=None, vd=1):
    e = g.e; top = g.newlab("lw"); done = g.newlab("ld")
    e(f"s_mov_b32 s{S_T}, {SPIN*8}")
    g.lab(top)
    e(f"ds_read_b32 v{vd}, v{va or V_CNT} offset:{CNT[c]-M_CNT}"); e("s_waitcnt lgkmcnt(0)")
    e(f"v_readfirstlane_b32 s{S_T+1}, v{vd}"); e(f"s_cmp_ge_u32 s{S_T+1}, {n}"); e(f"s_cbranch_scc1 {done}")
    e("s_sleep 1"); e(f"s_sub_u32 s{S_T}, s{S_T}, 1"); e(f"s_cbranch_scc0 {top}")
    g.lab(done)
def rowmax(g, v, op="v_max_u32_dpp"):
    for sh in (8, 4, 2, 1): g.e(f"{op} v{v}, v{v}, v{v} row_ror:{sh} {DPPALL}")
def wavemax_exp(g, v, sdst):
    e = g.e
    rowmax(g, v)
    e(f"v_readlane_b32 s{sdst}, v{v}, 0"); e(f"v_readlane_b32 s{S_T}, v{v}, 16"); e(f"s_max_u32 s{sdst}, s{sdst}, s{S_T}")
    e(f"v_readlane_b32 s{S_T}, v{v}, 32"); e(f"s_max_u32 s{sdst}, s{sdst}, s{S_T}")
    e(f"v_readlane_b32 s{S_T}, v{v}, 48"); e(f"s_max_u32 s{sdst}, s{sdst}, s{S_T}")
    e(f"s_lshr_b32 s{sdst}, s{sdst}, 23"); e(f"s_sub_u32 s{sdst}, s{sdst}, 126")
def put_max(g, slot):
    e = g.e
    rowmax(g, 1)
    e("v_lshrrev_b32 v2, 4, v0"); e(f"s_lshl_b32 s{S_T}, s{S_J}, 4"); e(f"s_add_u32 s{S_T}, s{S_T}, {slot}")
    e(f"v_lshl_add_u32 v2, v2, 2, s{S_T}")
    e("ds_write_b32 v2, v1")
def get_max(g, slot):
    e = g.e
    e("v_and_b32 v2, 15, v0"); e("v_lshlrev_b32 v2, 2, v2"); e(f"v_add_u32 v2, {slot}, v2")
    e("ds_read_b32 v1, v2"); e("s_waitcnt lgkmcnt(0)")
    rowmax(g, 1)
def pkmax(g, regs):
    e = g.e
    e(f"v_pk_max_u16 v1, v{regs[0]}, v{regs[1]}"); e(f"v_pk_max_u16 v3, v{regs[2]}, v{regs[3]}")
    for i, r in enumerate(regs[4:]): e(f"v_pk_max_u16 v{1 + 2*(i&1)}, v{1 + 2*(i&1)}, v{r}")
    e("v_pk_max_u16 v1, v1, v3"); e("v_alignbit_b32 v3, v1, v1, 16"); e("v_pk_max_u16 v1, v1, v3")
def pack_round(g, acc, off):
    e = g.e
    for t in range(14): e(f"v_mul_f32 v{acc+t}, v{acc+t}, v{QS+(t>>1)}")
    for t in range(7): e(f"v_cvt_pk_f16_f32 v{PK+t}, v{acc+2*t}, v{acc+2*t+1}")
    for t in range(7): e(f"v_alignbit_b32 v{PK+t}, v{PK+t}, v{PK+t}, v{QSH}")
    for t in range(7): e(f"ds_write_b32 v{QA+t}, v{PK+t} offset:{off}")
def s0_max(g, t):
    a = HX + 16 * t
    for i in range(7):
        if t == 0 and i == 0: g.e(f"v_max_f32 v1, |v{a}|, |v{a+1}|")
        else: g.e(f"v_max3_f32 v1, v1, |v{a+2*i}|, |v{a+2*i+1}|")
F0 = lambda c: sum(PAR.chunks[:c])
S_ROT = 64
def rotf(g, f, sd):
    g.e(f"s_add_u32 s{sd}, s{S_ROT}, {f}"); g.e(f"s_sub_u32 s{S_ROT+1}, s{sd}, 26"); g.e(f"s_min_u32 s{sd}, s{sd}, s{S_ROT+1}")
def dma_w(g, c, only=None):
    e = g.e
    Dc = (D0, D1)[c & 1]
    e(f"s_lshl_b32 s{S_T}, s{S_J}, 10")
    for fl in range(PAR.chunks[c]):
        if only is not None and fl != only: continue
        e(f"s_add_u32 m0, s{S_T}, {Dc + fl*4096}")
        rotf(g, F0(c) + fl, S_T + 1); e(f"s_mul_i32 s{S_T+1}, s{S_T+1}, 53248")
        g.vm(f"buffer_load_dwordx4 v{V_WSRC}, {sr(S_W1)}, s{S_T+1} offen lds", f"W{c}")
CHK_X = lambda: (S_WS, f"s{S_CX}", 0, 16)
def helper_common(g):
    e = g.e
    e("s_setprio 2")
    e(f"s_sub_u32 s{S_J}, s{S_WAVE}, 4")
    e("v_and_b32 v2, 31, v0"); e("v_lshrrev_b32 v3, 5, v0")
    e(f"v_lshlrev_b32 v{V_H16}, 4, v3")
    e(f"v_mad_u32_u24 v1, v2, 52, v{V_H16}")
    if PAR.wpf:
        e(f"s_cmp_lg_u32 s{S_J}, 0"); e("s_cbranch_scc1 L_nowpf")
        e(f"s_mov_b32 s{S_WC+2}, {6*LB}"); e(f"s_lshr_b32 s{S_T}, s2, 3"); e(f"s_lshl_b32 s{S_T}, s{S_T}, 7")
        e("v_lshlrev_b32 v4, 12, v0")
        e(f"buffer_load_dword v247, v4, {sr(S_WC)}, s{S_T} offen")
        e(f"s_mov_b32 s{S_WC+2}, {LB}")
        g.lab("L_nowpf")
    e("s_barrier")
    e(f"s_mul_i32 s{S_T}, s{S_J}, 1352")
    for t in range(7):
        if t < 6: e(f"s_add_u32 s{S_T+1}, s{S_T}, {(13*(t&1) + 4*(t>>1))*1352}")
        else:
            e(f"s_mul_i32 s{S_T+1}, s{S_J}, {13*1352}"); e(f"s_add_u32 s{S_T+1}, s{S_T+1}, {12*1352}")
        for s in range(2):
            g.vm(f"buffer_load_dwordx4 {vr(W0R+8*t+4*s,4)}, v1, {sr(S_WC)}, s{S_T+1} offen offset:{32*s}", f"w0_{t}")
    e(f"v_mov_b32 v5, {OOB}"); e("v_cmp_eq_u32 vcc, 0, v0"); e(f"v_cndmask_b32 v{V_L0}, v5, 0, vcc")
    e(f"s_lshl_b32 s{S_CX}, s{S_G}, 8"); e(f"s_add_u32 s{S_CX}, s{S_CX}, {WS_CNT}")
    e(f"s_add_u32 s{S_T}, s{S_R}, s{S_J}"); e(f"s_cmp_eq_u32 s{S_T}, 0"); e(f"s_cselect_b32 s{S_E3}, 0, {OOB}")
    e(f"v_add_u32 v34, s{S_E3}, v{V_L0}"); e("v_mov_b32 v35, 0")
    g.vm(f"buffer_store_dword v35, v34, {sr(S_WS)}, s{S_CX} offen sc1", "rst")
    if PAR.touch:
        e("v_lshlrev_b32 v36, 20, v0")
        e("v_and_b32 v37, 7, v0"); e("v_lshlrev_b32 v37, 20, v37")
        for i, (srd, vo) in enumerate(((S_TAB, 36), (S_WS, 37), (S_W1, 36), (S_B1, 36), (S_W2, 36), (S_DBG, 36), (S_WO, 36), (S_OUT, 36), (S_BO, 36))):
            g.vm(f"buffer_load_ushort v{38+i}, v{vo}, {sr(srd)}, 0 offen", "touch")
    e("v_lshrrev_b32 v4, 3, v2"); e("v_and_b32 v6, 3, v2"); e("v_lshl_add_u32 v4, v4, 2, v6")
    e("v_bfe_u32 v6, v2, 2, 1"); e(f"v_mad_u32_u24 v{V_HROW}, v6, 13, v4")
    e("v_cmp_lt_u32 vcc, 12, v4"); e("v_mov_b32 v7, 0x100000"); e(f"v_cndmask_b32 v{V_HROW}, v{V_HROW}, v7, vcc")
    e("v_cmp_eq_u32 s[72:73], 0, v6"); e("s_and_b64 vcc, vcc, s[72:73]")
    e(f"v_lshlrev_b32 v{V_DMA}, 4, v0"); e(f"v_cndmask_b32 v{V_DMA}, v{V_DMA}, v5, vcc")
    e("v_lshrrev_b32 v27, 1, v2"); e("v_and_b32 v28, 1, v2"); e(f"v_lshlrev_b32 v{QSH}, 4, v28")
    e("v_sub_u32 v29, 25, v27"); e("v_mul_u32_u24 v29, v29, v27"); e("v_lshrrev_b32 v29, 1, v29")
    e(f"s_lshl_b32 s{S_T}, s{S_J}, 4")
    e(f"v_lshl_add_u32 v28, v28, 9, s{S_T}")
    e(f"v_lshl_add_u32 v30, v0, 2, s{S_T}"); e(f"v_add_u32 v30, {BUFA + 24*S0STR}, v30")
    e("v_mov_b32 v33, 0.5")
    for t in range(7):
        qb = 4 * (t >> 1) + (t & 1)
        e(f"v_lshl_add_u32 v31, v3, 1, {qb}")
        e("v_add_u32 v32, v29, v31")
        e(f"v_lshrrev_b32 v{QA+t}, 2, v32"); e(f"v_mul_u32_u24 v{QA+t}, {S0STR}, v{QA+t}")
        e("v_and_b32 v32, 3, v32"); e("v_lshl_add_u32 v32, v32, 2, v28"); e(f"v_add_u32 v{QA+t}, v{QA+t}, v32")
        e("v_cmp_lt_u32 vcc, v31, v27")
        if t == 6:
            e("v_cmp_lt_u32 s[72:73], 12, v31"); e("s_or_b64 vcc, vcc, s[72:73]")
        e(f"v_cndmask_b32 v{QA+t}, v{QA+t}, v30, vcc")
        e("v_cmp_eq_u32 vcc, v31, v27"); e(f"v_cndmask_b32 v{QS+t}, 1.0, v33, vcc")
    e("v_lshlrev_b32 v31, 3, v3"); e("v_sub_u32 v31, v2, v31")
    e("v_mov_b32 v32, 0x3f80"); e(f"v_lshlrev_b32 v32, v{QSH}, v32")
    e("v_lshrrev_b32 v31, 1, v31")
    for s in range(2):
        for i in range(4):
            e(f"v_cmp_eq_u32 vcc, {8*s+i}, v31"); e(f"v_cndmask_b32 v{ID+4*s+i}, 0, v32, vcc")
    e("v_mul_u32_u24 v3, 676, v3"); e(f"s_movk_i32 s{S_T+1}, 1352"); e(f"v_mad_u32_u24 v27, v{V_HROW}, s{S_T+1}, v3")
    e(f"s_mov_b64 s[{S_LC}:{S_LC+1}], s[{S_WC}:{S_WC+1}]"); e(f"s_mov_b32 s{S_LC+3}, 0x00020000"); e(f"s_mov_b32 s{S_LC+2}, {2*LB}")
    e(f"s_mul_i32 s{S_ROT}, s{S_R}, {PAR.rot}")
    e("v_lshrrev_b32 v1, 3, v0"); e(f"s_lshl_b32 s{S_T}, s{S_J}, 3"); e(f"v_add_u32 v1, s{S_T}, v1")
    e("v_mul_u32_u24 v1, 1664, v1")
    e("v_bfe_u32 v2, v0, 4, 1"); e("v_lshlrev_b32 v2, 2, v2"); e("v_and_b32 v3, 7, v0"); e("v_xor_b32 v2, v2, v3")
    e("v_lshl_add_u32 v1, v2, 4, v1"); e(f"s_lshl_b32 s{S_SB}, s{S_R}, 7"); e(f"v_add_u32 v{V_WSRC}, s{S_SB}, v1")
    e("v_lshrrev_b32 v1, 5, v0"); e("v_bfe_u32 v2, v0, 2, 2")
    e("v_lshl_add_u32 v1, v1, 3, v2"); e("v_lshlrev_b32 v1, 7, v1")
    e("v_bfe_u32 v3, v0, 4, 1"); e("v_lshl_add_u32 v1, v3, 5, v1"); e("v_and_b32 v3, 3, v0"); e("v_lshl_add_u32 v1, v3, 3, v1")
    e("v_lshrrev_b32 v2, 1, v2"); e("v_lshl_add_u32 v1, v2, 6, v1")
    e(f"v_add_u32 v{V_TR0}, {D0}, v1"); e(f"v_xor_b32 v{V_TR1}, 64, v{V_TR0}")
    e(f"s_mul_i32 s{S_PO}, s{S_G}, 13"); e(f"s_add_u32 s{S_PO}, s{S_PO}, s{S_R}"); e(f"s_lshl_b32 s{S_PO}, s{S_PO}, 2"); e(f"s_add_u32 s{S_PO}, s{S_PO}, s{S_J}")
    e(f"s_lshl_b32 s{S_PO}, s{S_PO}, 8"); e(f"s_add_u32 s{S_PO}, s{S_PO}, {WS_PART}")
    e("v_bfe_u32 v60, v0, 3, 2"); e("v_and_b32 v61, 3, v0"); e("v_lshl_add_u32 v60, v60, 2, v61"); e("v_mul_u32_u24 v245, 1792, v60")
    e("v_bfe_u32 v60, v0, 2, 1"); e("v_lshl_add_u32 v245, v60, 4, v245"); e(f"v_lshl_add_u32 v245, v{V_H16}, 1, v245")
    e(f"s_lshl_b32 s{S_T}, s{S_J}, 6"); e(f"s_add_u32 s{S_T}, s{S_T}, {D0}"); e(f"v_add_u32 v245, s{S_T}, v245")
    e("v_lshlrev_b32 v246, 4, v0"); e(f"v_lshl_add_u32 v246, v{V_H16}, 5, v246")
    e(f"s_lshl_b32 s{S_XB}, s{S_G}, 2"); e(f"s_lshr_b32 s{S_T}, s{S_R}, 2"); e(f"s_add_u32 s{S_XB}, s{S_XB}, s{S_T}"); e(f"s_mul_i32 s{S_XB}, s{S_XB}, 106496")
    e(f"s_bfe_u32 s{S_T}, s{S_R}, 0x10001"); e(f"s_lshl_b32 s{S_T}, s{S_T}, 11"); e(f"s_add_u32 s{S_XB}, s{S_XB}, s{S_T}")
    e(f"s_and_b32 s{S_T}, s{S_R}, 1"); e(f"s_lshl_b32 s{S_T}, s{S_T}, 9"); e(f"s_add_u32 s{S_XB}, s{S_XB}, s{S_T}")
    e(f"s_lshl_b32 s{S_T}, s{S_J}, 12"); e(f"s_add_u32 s{S_XB}, s{S_XB}, s{S_T}"); e(f"s_add_u32 s{S_XB}, s{S_XB}, {WS_X}")
    for t in range(7):
        g.vmwait(f"w0_{t}")
        a = HX + 16 * t; w = W0R + 8 * t
        e(f"v_mfma_f32_32x32x16_bf16 {vr(a,16)}, {vr(w,4)}, {vr(ID,4)}, 0")
        e(f"v_mfma_f32_32x32x16_bf16 {vr(a,16)}, {vr(w+4,4)}, {vr(ID+4,4)}, {vr(a,16)}")
        e(f"v_mfma_f32_32x32x16_bf16 {vr(a,16)}, {vr(ID,4)}, {vr(w,4)}, {vr(a,16)}")
        e(f"v_mfma_f32_32x32x16_bf16 {vr(a,16)}, {vr(ID+4,4)}, {vr(w+4,4)}, {vr(a,16)}")
        if t > 0: s0_max(g, t - 1)
    s0_max(g, 6)
    put_max(g, M_S0)
    g.vmwait("rst")
    e(f"v_mov_b32 v{V_CNT}, {M_CNT}")
    arrive(g, "S0M")
    e("v_mov_b32 v35, 1"); e(f"s_lshl_b32 s{S_E3}, s{S_G}, 2")
    g.vm(f"buffer_store_dword v35, v34, {sr(S_DBG)}, s{S_E3} offen offset:{C_RDY} sc1", "rdy")
    lwait(g, "S0M")
    g.stamp(); g.stamp("h")
    get_max(g, M_S0)
    e("v_lshlrev_b32 v3, 4, v0"); e(f"v_mov_b32 v{PK}, 0")
    e(f"ds_write_b32 v3, v{PK} offset:{BUFA + 22*S0STR + 12}")
    e("v_lshrrev_b32 v1, 23, v1")
    e("v_max_u32 v1, 14, v1")
    e("v_sub_u32 v2, 141, v1")
    e("v_subrev_u32 v1, 141, v1")
    e(f"ds_write_b32 v3, v1 offset:{BUFA + 23*S0STR + 512}")
    for t in range(7): e(f"v_ldexp_f32 v{QS+t}, v{QS+t}, v2")
    for t in range(7):
        if t == 6:
            e(f"s_cmp_eq_u32 s{S_J}, 1"); e(f"s_cselect_b32 s{S_T}, 48, 0")
            for i in range(7): e(f"v_add_u32 v{QA+i}, s{S_T}, v{QA+i}")
        if t in (0, 2, 4, 6): g.stamp("h")
        pack_round(g, HX + 16 * t, 16 * (8 * (t >> 1) + 4 * (t & 1)))
    arrive(g, "S0OK")
    g.stamp(); g.stamp("s"); g.stamp("h")
    DR = HX; XS = HX + 64; PS = 60
    def xpub():
        lwait(g, "RAW")
        for t in range(7): e(f"ds_read_b128 {vr(XS+4*t,4)}, v245 offset:{256*t}")
        e(f"s_cmp_ge_u32 s{S_J}, 2"); e(f"s_cselect_b32 s{S_T}, {OOB}, 0"); e(f"v_add_u32 v245, s{S_T}, v246")
        for t in range(7):
            e(f"s_waitcnt lgkmcnt({6-t})")
            g.vm(f"buffer_store_dwordx4 {vr(XS+4*t,4)}, v{246 if t < 6 else 245}, {sr(S_WS)}, s{S_XB} offen sc1", "xst")
            e(f"s_add_u32 s{S_XB}, s{S_XB}, 16384")
        e(f"s_cmp_ge_u32 s{S_R}, 13"); e(f"s_cselect_b32 s{S_T}, {OOB}, 0")
        e(f"v_lshl_add_u32 v1, v0, 2, s{S_T}"); e("v_mov_b32 v3, -1")
        g.vm(f"buffer_store_dword v3, v1, {sr(S_WS)}, s{S_PO} offen sc1", "sent")
        presample(g, [(S_DBG, f"s{S_E3}", C_RDY, 1)], [28], "rdyl")
        e(f"v_lshrrev_b32 v1, 1, v{V_H16}")
        for a in range(2):
            for q in range(4):
                g.vm(f"buffer_load_dwordx2 {vr(BT+8*a+2*q,2)}, v1, {sr(S_B1)}, s{S_SB} offen offset:{64*a+16*q}", "bias")
        g.stamp("s")
    e(f"s_cmp_ge_u32 s{S_R}, 13"); e("s_cbranch_scc1 L_pe1")
    g.lab("L_pe1r")
    xpub()
    e(f"s_cmp_ge_u32 s{S_R}, 13"); e("s_cbranch_scc1 L_pe2")
    g.lab("L_pe2r")
    g.vmwait("rdyl")
    arrive(g, "XST")
    lwait(g, "XST", 8)
    e(f"s_cmp_lg_u32 s{S_J}, 0"); e("s_cbranch_scc1 L_nosig")
    poll(g, [(S_DBG, f"s{S_E3}", C_RDY, 1)], pre=[28])
    e("v_mov_b32 v1, 1")
    e(f"buffer_atomic_add v1, v{V_L0}, {sr(S_WS)}, s{S_CX} offen sc1")
    g.lab("L_nosig")
    g.stamp(); g.stamp("s")

def helper_dnn(g):
    e = g.e
    CH = PAR.chunks; NS = PAR.nslot
    def xb(f, tile, t): return HX + 16 * (f % NS) + 8 * tile + 4 * t
    def xload(f):
        rotf(g, f, S_T + 2); e(f"s_lshl_b32 s{S_T+2}, s{S_T+2}, 12"); e(f"s_add_u32 s{S_T+2}, s{S_T+2}, s{S_XB}")
        for tile in range(2):
            for t in range(2):
                g.vm(f"buffer_load_dwordx4 {vr(xb(f,tile,t),4)}, v2, {sr(S_WS)}, s{S_T+2} offen offset:{2048*tile+1024*t} {PAR.ld}", f"x{f}")
    dma_w(g, 0)
    dma_w(g, 1)
    g.vmwait("bias")
    for a in range(2):
        for i in range(8):
            e(f"v_lshlrev_b32 v{HACC+16*a+2*i}, 16, v{BT+8*a+i}")
            e(f"v_and_b32 v{HACC+16*a+2*i+1}, 0xffff0000, v{BT+8*a+i}")
    for i in range(32): e(f"v_mov_b32 v{HACC+32+i}, v{HACC+i}")
    e(f"s_lshl_b32 s{S_XB}, s{S_G}, 2"); e(f"s_add_u32 s{S_XB}, s{S_XB}, s{S_J}"); e(f"s_mul_i32 s{S_XB}, s{S_XB}, 106496"); e(f"s_add_u32 s{S_XB}, s{S_XB}, {WS_X}")
    poll1(g, [CHK_X()], "FX")
    g.stamp("s")
    g.stamp()
    e("v_bfe_u32 v2, v0, 2, 3"); e("v_lshlrev_b32 v2, 7, v2"); e(f"v_lshl_add_u32 v2, v{V_H16}, 2, v2"); e("v_and_b32 v3, 3, v0"); e("v_lshl_add_u32 v2, v3, 4, v2")
    for f in range(NS): xload(f)
    FL = 232
    W2R = 232 + 0
    wring = [0]
    def loc(ks):
        f = ks // 2; c = max(i for i in range(4) if F0(i) <= f)
        return c, ks - 2 * F0(c)
    def wread(ks):
        c, kl = loc(ks)
        Dc = (D0, D1)[c & 1]
        base = HW_ + 8 * (wring[0] % 3); wring[0] += 1
        for a, ad in ((0, V_TR0), (1, V_TR1)):
            for rd in range(2):
                e(f"ds_read_b64_tr_b16 {vr(base+4*a+2*rd,2)}, v{ad} offset:{Dc - D0 + kl*2048 + rd*512}")
        return base
    CK2 = [(S_DBG, "0", C_L[2], 11)]; CKQ = [(S_DBG, "0", C_Q, 9)]; CK3 = [(S_DBG, "0", C_L[3], 11)]
    def act_l2():
        lwait(g, "AFREE"); g.vmwait("f2"); poll1(g, CK2, "F2", pre=[196]); dma_img(g, "L2", 44, BUFA)
    after = {}
    def add(f, fn): after.setdefault(f, []).append(fn)
    add(PAR.l2pos - 2, lambda: presample(g, CK2, [196], "f2"))
    add(PAR.l2pos, act_l2)
    add(PAR.l2pos + 4, lambda: (g.vmwait("L2"), arrive(g, "L2OK")))
    add(F0(1), lambda: (lwait(g, "C0"), dma_w(g, 2)))
    add(F0(3) - 3, lambda: presample(g, CKQ + CK3, [196, 197], "fq"))
    g.vmwait("W1"); arrive(g, "W01"); lwait(g, "W01")
    for c in range(4):
        k0 = 2 * F0(c); k1 = 2 * F0(c + 1)
        bufs = {k0: wread(k0), k0 + 1: wread(k0 + 1)}
        for ks in range(k0, k1):
            f, t = divmod(ks, 2)
            if t == 0: g.vmwait(f"x{f}")
            e(f"s_waitcnt lgkmcnt({4 if ks + 1 < k1 else 0})")
            for a in range(2):
                for tile in range(2):
                    acc = HACC + 32 * tile + 16 * a
                    e(f"v_mfma_f32_32x32x16_bf16 {vr(acc,16)}, {vr(bufs[ks]+4*a,4)}, {vr(xb(f,tile,t),4)}, {vr(acc,16)}")
                if a == 0 and ks + 2 < k1: bufs[ks + 2] = wread(ks + 2)
            if t == 1:
                if f + NS < 26: xload(f + NS)
                for fn in after.get(f, []): fn()
        if c == 0: arrive(g, "C0"); g.stamp()
        if c == 1:
            g.vmwait("W2"); arrive(g, "C1"); lwait(g, "C1"); dma_w(g, 3)
        if c == 2:
            g.vmwait("W3"); arrive(g, "C2"); lwait(g, "C2")
            if not PAR.qlate: g.vmwait("fq"); poll1(g, CKQ, "FQ", pre=[196]); dma_img(g, "Q4", 28, D0)
            e(f"v_lshrrev_b32 v1, 1, v{V_H16}")
            for a in range(2):
                for q in range(4):
                    g.vm(f"buffer_load_dwordx2 {vr(W2R+8*a+2*q,2)}, v1, {sr(S_W2)}, s{S_SB} offen offset:{64*a+16*q}", "w2")
    if PAR.qlate: g.vmwait("fq"); poll1(g, CKQ, "FQ", pre=[196]); dma_img(g, "Q4", 28, D0)
    e("s_waitcnt vmcnt(0)"); arrive(g, "QOK")
    g.stamp()
    e("s_setprio 0")
    W2F = HX
    for i in range(16):
        e(f"v_lshlrev_b32 v{W2F+2*i}, 16, v{W2R+i}")
        e(f"v_and_b32 v{W2F+2*i+1}, 0xffff0000, v{W2R+i}")
    c0 = 2 * 0.7978845608028654 * 1.4426950408889634
    e(f"s_mov_b32 s{S_C1}, {f2u(c0*0.044715):#x}")
    e(f"v_mov_b32 v2, {f2u(c0):#x}")
    T = HX + 32; SUM = HX + 48
    for i in range(4): e(f"v_mov_b32 v{SUM+i}, 0")
    def gelu(blk):
        rs = [HACC + 4 * blk + i for i in range(4)]
        tile = (4 * blk) // 32
        for i, r in enumerate(rs): e(f"v_mul_f32 v{T+i}, v{r}, v{r}")
        for i, r in enumerate(rs): e(f"v_fma_f32 v{T+i}, v{T+i}, s{S_C1}, v2")
        for i, r in enumerate(rs): e(f"v_mul_f32 v{T+i}, v{T+i}, v{r}")
        for i, r in enumerate(rs): e(f"v_exp_f32 v{T+i}, -v{T+i}")
        for i, r in enumerate(rs): e(f"v_mul_f32 v{r}, v{r}, v{W2F + (r - HACC) % 32}")
        for i, r in enumerate(rs): e(f"v_add_f32 v{T+i}, 1.0, v{T+i}")
        for i, r in enumerate(rs): e(f"v_rcp_f32 v{T+i}, v{T+i}")
        for i, r in enumerate(rs): e(f"v_fmac_f32 v{SUM + 2*tile + (i&1)}, v{r}, v{T+i}")
    for blk in range(16):
        if blk == PAR.gsplit:
            lwait(g, "BFREE"); poll1(g, CK3, "F3", pre=[197]); dma_img(g, "L3", 44, BUFB)
        if blk == PAR.gsplit2:
            e("s_waitcnt vmcnt(0)"); arrive(g, "L3OK")
        gelu(blk)
    e(f"v_add_f32 v{SUM}, v{SUM}, v{SUM+1}"); e(f"v_add_f32 v{SUM+2}, v{SUM+2}, v{SUM+3}")
    e(f"v_permlane32_swap_b32 v{SUM}, v{SUM+2}")
    e(f"v_add_f32 v{SUM}, v{SUM}, v{SUM+2}")
    e(f"v_min_u32 v{SUM}, -2, v{SUM}")
    e("v_lshlrev_b32 v1, 2, v0")
    e(f"buffer_store_dword v{SUM}, v1, {sr(S_WS)}, s{S_PO} offen sc1")
    g.stamp()
    g.flush_stamps(4, 5)
    e("s_endpgm")

def gsignal(g, c, off, so="0"):
    e = g.e; done = g.newlab("sg")
    e("s_waitcnt vmcnt(0)"); arrive(g, c)
    e(f"s_cmp_lg_u32 s{S_J}, 0"); e(f"s_cbranch_scc1 {done}")
    lwait(g, c)
    e("v_mov_b32 v1, 1")
    e(f"buffer_atomic_add v1, v{V_L0}, {sr(S_DBG)}, {so} offen offset:{off} sc1")
    g.lab(done)
SCN, FR, WV, WP, W1V, AQ, RW = 68, 104, 32, 33, 160, 44, 180
QAR = lambda i: (64 + i) if i < 4 else (240 + i)
S_E4, S_LW = 62, 63
def prod_early1(g):
    e = g.e
    g.lab("L_pe1")
    e(f"s_mul_i32 s{S_WP}, s{S_G}, 3"); e(f"s_add_u32 s{S_WP}, s{S_WP}, s{S_R}"); e(f"s_sub_u32 s{S_WP}, s{S_WP}, 13")
    e(f"s_cmp_ge_u32 s{S_WP}, 31"); e("s_cbranch_scc1 L_pe1r")
    e(f"s_mul_i32 s{S_L}, s{S_WP}, 94"); e(f"s_lshr_b32 s{S_L}, s{S_L}, 10")
    e(f"s_mul_i32 s{S_T}, s{S_L}, 11"); e(f"s_sub_u32 s{S_FR}, s{S_WP}, s{S_T}"); e(f"s_lshl_b32 s{S_FR}, s{S_FR}, 2"); e(f"s_add_u32 s{S_FR}, s{S_FR}, s{S_J}")
    e(f"s_add_u32 s{S_L}, s{S_L}, 2")
    e(f"s_mul_i32 s{S_E2}, s{S_L}, {LB}")
    e(f"s_add_u32 s{S_LC+2}, s{S_E2}, {LB}")
    e("v_lshlrev_b32 v1, 4, v0")
    e(f"s_mul_i32 s{S_T}, s{S_J}, 9216"); e(f"s_add_u32 s{S_T}, s{S_T}, s{S_E2}")
    for i in range(9):
        if i % 4 == 0 and i: e(f"s_add_u32 s{S_T}, s{S_T}, 4096")
        e(f"buffer_load_dwordx4 {vr(SCN+4*i,4)}, v1, {sr(S_LC)}, s{S_T} offen offset:{(i%4)*1024}")
    e(f"s_cmp_ge_u32 s{S_WP}, 22"); e("s_cbranch_scc1 L_pe1r")
    e(f"s_lshl_b32 s{S_T}, s{S_FR}, 4"); e(f"s_add_u32 s{S_T}, s{S_T}, s{S_E2}")
    e(f"buffer_load_dwordx4 {vr(FR,4)}, v27, {sr(S_LC)}, s{S_T} offen")
    e(f"v_lshlrev_b32 v1, 1, v{V_HROW}"); e(f"s_mul_i32 s{S_T}, s{S_L}, 52")
    e(f"buffer_load_ushort v{WV}, v1, {sr(S_WO)}, s{S_T} offen")
    e(f"buffer_load_ushort v{WP}, v1, {sr(S_WO)}, 52 offen")
    e("v_lshrrev_b32 v3, 5, v0"); e("v_mul_u32_u24 v3, 26, v3")
    for i in range(8):
        e(f"s_lshl_b32 s{S_T}, s{S_FR}, 3"); e(f"s_sub_u32 s{S_T}, s{S_T}, {8*42 + 2 - i}")
        e(f"s_lshl_b32 s{S_T+1}, s{S_T}, 1"); e(f"s_add_u32 s{S_T+1}, s{S_T+1}, 52")
        e(f"s_cmp_lt_u32 s{S_T}, 13"); e(f"s_cselect_b32 s{S_T+1}, s{S_T+1}, {OOB}")
        e(f"v_add_u32 v2, s{S_T+1}, v3")
        e(f"buffer_load_ushort v{W1V+i}, v2, {sr(S_WO)}, 0 offen")
    e("s_branch L_pe1r")
def prod_early2(g):
    e = g.e
    g.lab("L_pe2")
    e(f"s_cmp_ge_u32 s{S_WP}, 31"); e("s_cbranch_scc1 L_pe2r")
    e("s_setprio 2")
    e("s_waitcnt vmcnt(17)")
    for i in range(36): e(f"v_and_b32 v{SCN+i}, s{S_MASK}, v{SCN+i}")
    pkmax(g, [SCN + i for i in range(36)])
    put_max(g, M_SC)
    arrive(g, "SCM"); lwait(g, "SCM")
    get_max(g, M_SC)
    e(f"v_readfirstlane_b32 s{S_E0}, v1")
    e(f"s_bfe_u32 s{S_E0}, s{S_E0}, 0x80007")
    e(f"s_cmp_ge_u32 s{S_WP}, 22"); e("s_cbranch_scc1 L_pe2r")
    g.lab("L_gjob")
    e(f"s_max_u32 s{S_T+2}, s{S_E0}, 30"); e(f"s_sub_u32 s{S_T+2}, s{S_T+2}, 30")
    e(f"s_mul_i32 s{S_T+3}, s{S_T+2}, 0x800080")
    e(f"s_cmp_lt_u32 s{S_FR}, 42"); e(f"s_cselect_b32 s{S_T+1}, -1, 0")
    for i in range(1, 4): e(f"v_and_b32 v{FR+i}, s{S_T+1}, v{FR+i}")
    e(f"s_cmp_lt_u32 s{S_FR}, 43"); e(f"s_cselect_b32 s{S_T+1}, -1, 0"); e(f"v_and_b32 v{FR}, s{S_T+1}, v{FR}")
    for i in range(4): e(f"v_alignbit_b32 v{FR+i}, v{FR+i}, v{FR+i}, v{V_H16}")
    for i in range(4): e(f"v_and_b32 v{SCN+i}, s{S_MASK}, v{FR+i}")
    for i in range(4): e(f"v_pk_sub_u16 v{SCN+i}, v{SCN+i}, s{S_T+3} clamp")
    for i in range(4): e(f"v_lshlrev_b32 v{SCN+i}, 3, v{SCN+i}")
    for i in range(4): e(f"v_bfi_b32 v{FR+i}, s{S_MASK}, v{SCN+i}, v{FR+i}")
    e(f"v_lshlrev_b32 v{WV}, 16, v{WV}")
    e(f"v_and_b32 v1, 0x7fffffff, v{WV}")
    wavemax_exp(g, 1, S_E1)
    e(f"s_add_u32 s{S_E1}, s{S_E1}, 5"); e(f"s_sub_u32 s{S_T}, 0, s{S_E1}")
    e(f"v_ldexp_f32 v{WV}, v{WV}, s{S_T}")
    for i in range(8):
        sel = "op_sel:[1,0,0] op_sel_hi:[1,0,0]" if i & 1 else "op_sel_hi:[1,0,0]"
        e(f"v_fma_mix_f32 v{SCN+i}, v{FR+(i>>1)}, v{WV}, 0 {sel}")
    for sh in (1, 2, 4, 8):
        for i in range(8): e(f"v_add_f32_dpp v{SCN+i}, v{SCN+i}, v{SCN+i} row_shr:{sh} {DPPALL} bound_ctrl:0")
    for i in range(8): e(f"v_add_f32_dpp v{SCN+i}, v{SCN+i}, v{SCN+i} row_bcast:15 row_mask:0xa bank_mask:0xf")
    for i in range(4): e(f"v_cvt_pk_f16_f32 v{SCN+2*i}, v{SCN+2*i}, v{SCN+2*i+1}")
    e("v_and_b32 v2, 31, v0"); e("v_cmp_eq_u32 vcc, 31, v2")
    for i in range(4): e(f"v_cndmask_b32 v{FR+i}, v{FR+i}, v{SCN+2*i}, vcc")
    e(f"v_lshlrev_b32 v1, 16, v{WP}"); e("v_and_b32 v1, 0x7fffffff, v1")
    wavemax_exp(g, 1, S_E4)
    e(f"s_sub_u32 s{S_T}, 15, s{S_E4}")
    for i in range(8): e(f"v_lshlrev_b32 v{W1V+i}, 16, v{W1V+i}")
    for i in range(8): e(f"v_ldexp_f32 v{W1V+i}, v{W1V+i}, s{S_T}")
    for i in range(4): e(f"v_cvt_pk_f16_f32 v{W1V+2*i}, v{W1V+2*i}, v{W1V+2*i+1}")
    e("v_cmp_eq_u32 vcc, 30, v2")
    for i in range(4): e(f"v_cndmask_b32 v{FR+i}, v{FR+i}, v{W1V+2*i}, vcc")
    e(f"s_cmp_lg_u32 s{S_FR}, 0"); e("s_cbranch_scc1 L_nohdr")
    e(f"s_sub_u32 s{S_T+2}, s{S_T+2}, 112"); e(f"s_add_u32 s{S_E1}, s{S_E1}, s{S_T+2}"); e(f"s_sub_u32 s{S_E4}, s{S_E4}, 15")
    e(f"v_writelane_b32 v{FR}, s{S_T+2}, 29"); e(f"v_writelane_b32 v{FR+1}, s{S_E1}, 29"); e(f"v_writelane_b32 v{FR+2}, s{S_E4}, 29")
    g.lab("L_nohdr")
    e(f"s_mul_i32 s{S_T}, s{S_L}, {44*1024}"); e(f"s_lshl_b32 s{S_T+1}, s{S_FR}, 10"); e(f"s_add_u32 s{S_T}, s{S_T}, s{S_T+1}")
    e(f"s_sub_u32 s{S_T}, s{S_T}, {88*1024 - IMG['L2']}")
    e("v_lshlrev_b32 v1, 4, v0")
    e(f"buffer_store_dwordx4 {vr(FR,4)}, v1, {sr(S_WS)}, s{S_T} offen sc1")
    e("s_nop 1")
    e("s_branch L_pe2r")
def helper_prod(g):
    e = g.e
    e(f"s_cmp_ge_u32 s{S_WP}, 31"); e("s_cbranch_scc1 L_idle")
    e(f"s_cmp_ge_u32 s{S_WP}, 22"); e("s_cbranch_scc1 L_nog")
    e(f"s_lshl_b32 s{S_T+2}, s{S_L}, 2"); e(f"s_sub_u32 s{S_T+2}, s{S_T+2}, 8")
    gsignal(g, "GST", 0, f"s{S_T+2}")
    e("s_branch L_idle")
    g.lab("L_nog")
    e("v_and_b32 v2, 31, v0"); e("v_lshrrev_b32 v3, 5, v0")
    e("v_mul_u32_u24 v1, 676, v3"); e("v_add_lshl_u32 v1, v1, v2, 1")
    e(f"s_mul_i32 s{S_T}, s{S_FR}, 52"); e(f"s_add_u32 s{S_T}, s{S_T}, {4*LB}")
    for s in range(13):
        e(f"buffer_load_ushort v{W1V+s}, v1, {sr(S_LC)}, s{S_T} offen")
        e(f"s_add_u32 s{S_T}, s{S_T}, 2704")
    e(f"s_cmp_eq_u32 s{S_WP}, 29"); e(f"s_cselect_b32 s{S_LW}, 4, 5"); e(f"s_cmp_eq_u32 s{S_WP}, 30"); e(f"s_cselect_b32 s{S_LW}, 0, s{S_LW}")
    e(f"s_mul_i32 s{S_E2}, s{S_LW}, {LB}"); e(f"s_add_u32 s{S_LC+2}, s{S_E2}, {LB}")
    e("v_lshlrev_b32 v1, 1, v0"); e("v_cmp_lt_u32 vcc, 25, v0"); e(f"v_mov_b32 v2, {OOB}"); e("v_cndmask_b32 v1, v1, v2, vcc")
    e(f"s_mul_i32 s{S_T}, s{S_LW}, 52")
    e(f"buffer_load_ushort v{WV}, v1, {sr(S_WO)}, s{S_T} offen")
    e("v_lshlrev_b32 v1, 4, v0")
    e(f"s_mul_i32 s{S_T}, s{S_J}, 1352"); e(f"s_add_u32 s{S_T}, s{S_T}, s{S_E2}")
    for t in range(7):
        for ps in range(2):
            e(f"buffer_load_dwordx4 {vr(RW+8*t+4*ps,4)}, v1, {sr(S_LC)}, s{S_T} offen offset:{1024*ps}")
        e(f"s_add_u32 s{S_T}, s{S_T}, {4*1352}")
    e("s_waitcnt vmcnt(0)")
    AC = HX; TU = HX + 16
    for t in range(6): e(f"v_lshl_or_b32 v{QAR(t)}, v{W1V+2*t+1}, 16, v{W1V+2*t}")
    e(f"v_mov_b32 v{QAR(6)}, v{W1V+12}"); e(f"v_mov_b32 v{QAR(7)}, 0")
    g.stamp("q")
    e(f"v_lshlrev_b32 v{WV}, 16, v{WV}"); e(f"v_and_b32 v1, 0x7fffffff, v{WV}")
    wavemax_exp(g, 1, S_E1)
    e(f"s_sub_u32 s{S_T}, 0, s{S_E1}"); e(f"v_ldexp_f32 v{WV}, v{WV}, s{S_T}")
    for i in range(16): e(f"v_mov_b32 v{AC+i}, 0")
    for t in range(7):
        e(f"s_add_u32 s{S_T}, s{S_J}, {4*t}")
        e(f"v_readlane_b32 s{S_T+1}, v{WV}, s{S_T}")
        for i in range(8):
            e(f"v_lshlrev_b32 v{TU+2*i}, 16, v{RW+8*t+i}"); e(f"v_and_b32 v{TU+2*i+1}, 0xffff0000, v{RW+8*t+i}")
        for i in range(16): e(f"v_fmac_f32 v{AC+i}, s{S_T+1}, v{TU+i}")
    PSTR = 4096
    e(f"s_mul_i32 s{S_T}, s{S_J}, {PSTR}"); e(f"s_add_u32 s{S_T}, s{S_T}, {D0}")
    e(f"v_lshl_add_u32 v1, v0, 5, s{S_T}")
    for ps in range(2):
        for hf in range(2): e(f"ds_write_b128 v1, {vr(AC+8*ps+4*hf,4)} offset:{2048*ps+16*hf}")
    g.stamp("q"); arrive(g, "WC"); lwait(g, "WC"); g.stamp("q")
    e(f"s_cmp_eq_u32 s{S_FR}, 28"); e("s_cbranch_scc1 L_lin")
    e(f"s_cmp_lt_u32 s{S_FR}, 26"); e("s_cbranch_scc1 L_q")
    e(f"s_cmp_lg_u32 s{S_FR}, 32"); e("s_cbranch_scc1 L_noq")
    g.lab("L_q")
    BQ, PT, DQ = HX + 16, HX + 32, HX + 96
    e("v_and_b32 v2, 31, v0"); e("v_lshrrev_b32 v3, 5, v0")
    e("v_mad_u32_u24 v1, v3, 26, v2"); e("v_lshlrev_b32 v1, 2, v1"); e(f"v_add_u32 v1, {D0}, v1")
    def readsum(stride):
        for pj in range(4):
            for s in range(13): e(f"ds_read_b32 v{PT+13*pj+s}, v1 offset:{PSTR*pj + stride*s}")
            if pj: e("s_waitcnt lgkmcnt(13)")
        e("s_waitcnt lgkmcnt(0)")
        for s in range(13):
            e(f"v_add_f32 v{PT+s}, v{PT+s}, v{PT+13+s}"); e(f"v_add_f32 v{PT+26+s}, v{PT+26+s}, v{PT+39+s}")
        for s in range(13): e(f"v_add_f32 v{BQ+s}, v{PT+s}, v{PT+26+s}")
    def max13():
        e(f"v_max3_f32 v1, |v{BQ}|, |v{BQ+1}|, |v{BQ+2}|")
        for s in range(3, 13, 2): e(f"v_max3_f32 v1, v1, |v{BQ+s}|, |v{BQ+s+1}|")
    readsum(208)
    e("v_cmp_gt_u32 vcc, 26, v2")
    for s in range(13): e(f"v_cndmask_b32 v{BQ+s}, 0, v{BQ+s}, vcc")
    max13()
    wavemax_exp(g, 1, S_E2)
    e(f"s_sub_u32 s{S_T}, 0, s{S_E2}")
    for s in range(13): e(f"v_ldexp_f32 v{BQ+s}, v{BQ+s}, s{S_T}")
    e(f"s_max_u32 s{S_E0}, s{S_E0}, 10"); e(f"s_sub_u32 s{S_E0}, s{S_E0}, 126")
    BH, BL = PT, PT + 8
    e(f"v_mov_b32 v{BQ+13}, 0"); e(f"v_mov_b32 v{BH+7}, 0"); e(f"v_mov_b32 v{BL+7}, 0")
    for t in range(7): e(f"v_cvt_pk_bf16_f32 v{BH+t}, v{BQ+2*t}, v{BQ+2*t+1}")
    for t in range(7):
        e(f"v_lshlrev_b32 v{PT+16+2*t}, 16, v{BH+t}"); e(f"v_and_b32 v{PT+17+2*t}, 0xffff0000, v{BH+t}")
    for t in range(14): e(f"v_sub_f32 v{BQ+t}, v{BQ+t}, v{PT+16+t}")
    for t in range(7): e(f"v_cvt_pk_bf16_f32 v{BL+t}, v{BQ+2*t}, v{BQ+2*t+1}")
    e(f"s_cmp_ge_u32 s{S_FR}, 13"); e(f"s_cselect_b32 s{S_T+1}, 13, 0"); e(f"s_cselect_b32 s{S_T+2}, 4, 0")
    e(f"s_sub_u32 s{S_T+1}, s{S_FR}, s{S_T+1}"); e(f"s_and_b32 s{S_T+3}, s{S_T+1}, 3"); e(f"s_add_u32 s{S_T+2}, s{S_T+2}, s{S_T+3}")
    e(f"s_lshr_b32 s{S_T+1}, s{S_T+1}, 2"); e(f"s_lshl_b32 s{S_T+1}, s{S_T+1}, 3"); e(f"s_add_u32 s{S_SB}, s{S_T+2}, s{S_T+1}")
    e(f"s_mov_b32 s{S_L}, 0")
    e(f"s_cmp_lg_u32 s{S_FR}, 32"); e("s_cbranch_scc1 L_q2")
    e("v_sub_u32 v1, v2, v3")
    for s in range(13):
        e(f"v_cmp_eq_u32 vcc, {2*s}, v1"); e(f"v_cndmask_b32 v{AQ+s}, 0, 1.0, vcc")
    e(f"v_mov_b32 v{AQ+13}, 0")
    for t in range(7): e(f"v_cvt_pk_bf16_f32 v{QAR(t)}, v{AQ+2*t}, v{AQ+2*t+1}")
    e(f"s_mov_b32 s{S_E0}, 0"); e(f"s_mov_b32 s{S_SB}, 31"); e(f"s_mov_b32 s{S_L}, 8")
    g.lab("L_q2")
    g.stamp("q")
    e("s_nop 1")
    first = True
    for bb in (BL, BH):
        for ks in range(2):
            e(f"v_mfma_f32_32x32x16_bf16 {vr(DQ,16)}, {vr(QAR(4*ks),4)}, {vr(bb+4*ks,4)}, {'0' if first else vr(DQ,16)}"); first = False
            e(f"v_mfma_f32_32x32x16_bf16 {vr(DQ,16)}, {vr(bb+4*ks,4)}, {vr(QAR(4*ks),4)}, {vr(DQ,16)}")
    e(f"v_max_f32 v1, v{QS}, v{QS+1}")
    e(f"s_sub_u32 s{S_T}, 137, s{S_E0}"); e(f"s_lshl_b32 s{S_T}, s{S_T}, 23"); e(f"v_mov_b32 v30, s{S_T}"); e("v_mul_f32 v31, 0.5, v30")
    for t in range(7):
        e(f"v_cmp_eq_f32 vcc, v1, v{QS+t}"); e(f"v_cndmask_b32 v{QS+t}, v31, v30, vcc")
    e(f"s_cmp_eq_u32 s{S_J}, 1"); e(f"s_cselect_b32 s{S_T}, 48, 0"); e(f"s_sub_u32 s{S_T}, {D1 - BUFA}, s{S_T}")
    for t in range(7): e(f"v_add_u32 v{QA+t}, s{S_T}, v{QA+t}")
    e(f"v_mul_u32_u24 v1, {S0STR}, v2"); e("v_lshl_add_u32 v1, v3, 9, v1"); e(f"s_lshl_b32 s{S_T}, s{S_J}, 4"); e(f"s_add_u32 s{S_T}, s{S_T}, {D1}")
    e(f"v_min_u32 v1, {22*S0STR+512}, v1")
    e(f"v_add_u32 v1, s{S_T}, v1")
    e(f"v_lshl_add_u32 v28, v3, 9, s{S_T}"); e("v_mov_b32 v29, 0")
    e(f"ds_write_b32 v28, v29 offset:{22*S0STR+12}")
    pack_round(g, DQ, 0)
    g.stamp("q")
    e("s_waitcnt lgkmcnt(0)")
    e(f"ds_read_b128 {vr(AQ,4)}, v1")
    e("v_lshlrev_b32 v1, 10, v2"); e("v_lshl_add_u32 v1, v3, 9, v1"); e("v_cmp_lt_u32 vcc, 22, v2"); e(f"v_mov_b32 v28, {OOB}"); e("v_cndmask_b32 v1, v1, v28, vcc")
    e(f"s_lshl_b32 s{S_T}, s{S_SB}, 4"); e(f"s_add_u32 s{S_T}, s{S_T}, {IMG['Q4']}")
    e("s_waitcnt lgkmcnt(0)")
    e(f"buffer_store_dwordx4 {vr(AQ,4)}, v1, {sr(S_WS)}, s{S_T} offen sc1")
    e(f"s_add_u32 s{S_E0}, s{S_E0}, s{S_E2}"); e(f"s_add_u32 s{S_E0}, s{S_E0}, s{S_E1}"); e(f"s_sub_u32 s{S_E0}, s{S_E0}, 10")
    e(f"s_and_b32 s{S_T}, s{S_FR}, 31"); e(f"s_cmp_lg_u32 s{S_T}, 0"); e("s_cbranch_scc1 L_noq")
    g.lab("L_qh")
    e(f"v_mov_b32 v1, s{S_E0}"); e(f"s_add_u32 s{S_T}, s{S_L}, {IMG['Q4'] + 23*1024}")
    e(f"buffer_store_dword v1, v{V_L0}, {sr(S_WS)}, s{S_T} offen sc1")
    e("s_branch L_noq")
    g.lab("L_lin")
    e("v_lshrrev_b32 v3, 5, v0"); e(f"v_min_u32 v2, 25, v{V_HROW}")
    e("v_mad_u32_u24 v1, v2, 26, v3"); e("v_lshlrev_b32 v1, 2, v1"); e(f"v_add_u32 v1, {D0}, v1")
    readsum(8)
    e(f"v_cmp_gt_u32 vcc, 26, v{V_HROW}")
    for s in range(13): e(f"v_cndmask_b32 v{BQ+s}, 0, v{BQ+s}, vcc")
    max13()
    wavemax_exp(g, 1, S_E2)
    e(f"s_sub_u32 s{S_T}, 15, s{S_E2}")
    for s in range(13): e(f"v_ldexp_f32 v{BQ+s}, v{BQ+s}, s{S_T}")
    e(f"v_mov_b32 v{BQ+13}, 0"); e(f"v_mov_b32 v{AQ+7}, 0")
    for t in range(7): e(f"v_cvt_pk_f16_f32 v{AQ+t}, v{BQ+2*t}, v{BQ+2*t+1}")
    e("v_lshlrev_b32 v1, 4, v0"); e(f"s_mov_b32 s{S_T}, {IMG['Q4'] + 24*1024}")
    for s in range(2): e(f"buffer_store_dwordx4 {vr(AQ+4*s,4)}, v1, {sr(S_WS)}, s{S_T} offen offset:{1024*s} sc1")
    e(f"s_add_u32 s{S_E0}, s{S_E2}, s{S_E1}"); e(f"s_sub_u32 s{S_E0}, s{S_E0}, 15"); e(f"s_mov_b32 s{S_L}, 4")
    e("s_branch L_qh")
    g.lab("L_noq")
    g.stamp("q")
    gsignal(g, "QST", C_Q)
    g.stamp("q")
    lwait(g, "QST")
    g.lab("L_idle")
    g.stamp()
    lwait(g, "AFREE")
    poll1(g, [(S_DBG, "0", C_L[2], 11), CHK_X()], "F2")
    dma_img(g, "L2", 44, BUFA)
    e("s_waitcnt vmcnt(0)"); arrive(g, "L2OK")
    g.stamp()
    lwait(g, "L2OK")
    poll1(g, [(S_DBG, "0", C_Q, 9)], "FQ")
    dma_img(g, "Q4", 28, D0)
    e("s_waitcnt vmcnt(0)"); arrive(g, "QOK")
    g.stamp()
    lwait(g, "BFREE")
    poll1(g, [(S_DBG, "0", C_L[3], 11)], "F3")
    dma_img(g, "L3", 44, BUFB)
    e("s_waitcnt vmcnt(0)"); arrive(g, "L3OK")
    g.stamp()
    g.flush_stamps(4, 5)
    e("s_endpgm")

def build(stamps=False):
    g = G(stamps)
    prologue(g); n0 = g.nst
    cin(g)
    g.lab("L_helper"); g.nst = n0
    helper_common(g); n1 = g.nst
    g.e(f"s_cmp_ge_u32 s{S_R}, 13"); g.e("s_cbranch_scc1 L_helper_n")
    helper_dnn(g)
    g.lab("L_helper_n"); g.nst = n1
    helper_prod(g)
    prod_early1(g); prod_early2(g)
    g.L += g.tail
    g.lab("L_end"); g.e("s_endpgm")
    body, nops = fix_hazards(g.L)
    ref = open("standalone__deep_cross_xdeepfm__recsys.s.ref").read().split("\n")
    hdr = [l for l in ref if l.startswith(";") and "@launch" not in l and "Override" not in l and "grid=ceil" not in l]
    txt = "\n".join(hdr) + f"\n; @launch grid=(256,1,1) block=(512,1,1) lds={LDS_TOTAL}\n"
    txt += f'.amdgcn_target "amdgcn-amd-amdhsa--gfx950"\n.text\n.globl {KN}\n.p2align 8\n.type {KN},@function\n{KN}:\n'
    txt += "\n".join(body) + "\n"
    txt += f""".section .rodata,"a"
.p2align 6
.amdhsa_kernel {KN}
  .amdhsa_next_free_vgpr 256
  .amdhsa_next_free_sgpr 102
  .amdhsa_accum_offset 256
  .amdhsa_group_segment_fixed_size 0
  .amdhsa_kernarg_size 88
  .amdhsa_user_sgpr_count 2
  .amdhsa_user_sgpr_kernarg_segment_ptr 1
  .amdhsa_system_sgpr_workgroup_id_x 1
.end_amdhsa_kernel
"""
    return txt, nops
if __name__ == "__main__":
    for a in sys.argv[2:]:
        if "=" in a:
            k, v = a.split("="); setattr(PAR, k, eval(v))
    txt, nops = build(stamps="stamps" in sys.argv)
    open(sys.argv[1], "w").write(txt)
    print("nops inserted", nops, "lines", txt.count("\n"))
```

```python
import sys, struct
from asmlib import fix_hazards
KN = "standalone__deep_cross_xdeepfm__recsys_kernel"
def f2u(f): return struct.unpack('<I', struct.pack('<f', f))[0]
OOB = 0x40000000
SPIN = 200000
LB = 35152
IMG = {}
off = 0
for name, n in (("L2", 44), ("L3", 44), ("Q4", 28)):
    IMG[name] = off; off += n * 1024
WS_PART = off
WS_CNT = WS_PART + 16 * 13 * 1024
WS_STAMP = WS_CNT + 4096
WS_X = WS_STAMP + 256 * 8 * 64
C_L = {2: 0, 3: 4}; C_Q = 8; C_RDY = 128
BUFA, BUFB = 0, 45056
D0, D1 = 90112, 118784
MISC = 147456
LDS_TOTAL = MISC + 1536
M_S0, M_L1, M_SC, M_EW1, M_CNT = MISC, MISC + 64, MISC + 128, MISC + 192, MISC + 256
CNT = {n: M_CNT + 4 * i for i, n in enumerate(["XST", "L1M", "L1OK", "AFREE", "L2OK", "BFREE", "L3OK", "QOK", "W01", "C0", "C1", "C2", "SCM", "GST", "WC", "QST", "FX", "F2", "F3", "FQ", "S0OK", "S0M", "RAW"])}
S0STR = 1040
QPAIRS = [(p, q) for p in range(13) for q in range(p, 13)]
S_IDX, S_TAB, S_WS, S_W1, S_B1, S_W2, S_OUT, S_DBG, S_BO, S_WC, S_WO = 4, 8, 12, 16, 20, 24, 28, 32, 36, 40, 44
S_G, S_R, S_WAVE, S_J = 70, 71, 83, 3
S_HDR = 48
S_EX = 60
S_K = 64
S_K1 = 4
S_KC = 76
S_T = 72
S_MASK = 80
S_C1 = 81
S_SB = 82
S_ST = 84
class P: pass
PAR = P()
PAR.chunks = [7, 7, 6, 6]
PAR.gsplit = 4
PAR.gsplit2 = 8
PAR.lnpos = 29
PAR.pload = 30
PAR.xst = 2
PAR.l2pos = 2
PAR.nslot = 8
PAR.st = 'ad'
PAR.ld = 'sc1'
PAR.inv = 0
PAR.enc = None
PAR.rate = 1
PAR.clk = 0
PAR.hp = 0
PAR.nost = 0
PAR.wpf = 1
PAR.rot = 2
PAR.pf = 4
PAR.qlate = 0
PAR.slp = 8
PAR.de = 2
PAR.touch = 0
PAR.dbg = None
class G:
    def __init__(self, stamps=False):
        self.L = []; self.stamps = stamps; self.nst = 0; self.nl = 0; self.vmq = []; self.tail = []
    def e(self, s): self.L.append("    " + s)
    def lab(self, s): self.L.append(s + ":")
    def vm(self, s, tag): self.e(s); self.vmq.append(tag)
    def vmwait(self, *tags):
        idx = max(i for i, t in enumerate(self.vmq) if t in tags)
        n = len(self.vmq) - 1 - idx
        self.e(f"s_waitcnt vmcnt({min(n, 63)})")
    def newlab(self, s): self.nl += 1; return f"L_{s}_{self.nl}"
    def stamp(self, name=None):
        if self.stamps and (name or "d") in PAR.st:
            assert self.nst < 8
            self.e(f"{'s_memtime' if PAR.clk else 's_memrealtime'} s[{S_ST+2*self.nst}:{S_ST+2*self.nst+1}]"); self.nst += 1
    def flush_stamps(self, vt, va):
        if not self.stamps: return
        self.e("s_waitcnt lgkmcnt(0)")
        self.e(f"s_lshl_b32 s{S_T}, s2, 3"); self.e(f"s_add_u32 s{S_T}, s{S_T}, s{S_WAVE}"); self.e(f"s_lshl_b32 s{S_T}, s{S_T}, 6")
        self.e(f"s_add_u32 s{S_T}, s{S_T}, {WS_STAMP}")
        self.e(f"v_mov_b32 v{va}, 0")
        if PAR.dbg is not None:
            lb = self.newlab("nd")
            self.e(f"s_cmp_lg_u32 s{S_T}, {WS_STAMP + PAR.dbg*64}"); self.e(f"s_cbranch_scc1 {lb}")
            for i in range(self.nst):
                self.e(f"s_sub_u32 s{S_T+1}, s{S_ST+2*i}, s{S_ST}")
                self.e(f"v_mov_b32 v{vt}, s{S_T+1}")
                self.e(f"buffer_store_dword v{vt}, v{va}, s[{S_DBG}:{S_DBG+3}], 0 offen offset:{16+4*i}")
            self.lab(lb)
        for i in range(self.nst):
            self.e(f"v_mov_b32 v{vt}, s{S_ST+2*i}")
            self.e(f"buffer_store_dword v{vt}, v{va}, s[{S_WS}:{S_WS+3}], s{S_T} offen offset:{4*i}")
        self.nst = 0
def vr(a, n): return f"v[{a}:{a+n-1}]"
def sr(a, n=4): return f"s[{a}:{a+n-1}]"
DPPALL = "row_mask:0xf bank_mask:0xf"

def prologue(g):
    e = g.e
    e("s_cmp_ge_u32 s2, 256")
    e("s_cbranch_scc1 L_end")
    g.stamp("a")
    e("s_load_dwordx16 s[48:63], s[0:1], 0")
    e("s_load_dwordx4 s[64:67], s[0:1], 64")
    e("s_load_dwordx2 s[68:69], s[0:1], 80")
    if PAR.pf:
        e(f"s_getpc_b64 s[{S_KC}:{S_KC+1}]")
        g.lab("L_pfbase")
        e(f"s_mov_b32 s{S_KC+2}, L_end - L_pfbase"); e(f"s_mov_b32 s{S_KC+3}, 0x00020000")
        e(f"s_lshr_b32 s{S_T}, s2, 3"); e(f"s_lshl_b32 s{S_T}, s{S_T}, 7")
        e("v_xor_b32 v1, 0x1c0, v0"); e("v_lshlrev_b32 v1, 12, v1")
        e(f"buffer_load_dword v255, v1, {sr(S_KC)}, s{S_T} offen")
    e("v_lshrrev_b32 v1, 6, v0")
    e("v_and_b32 v0, 63, v0")
    e(f"v_readfirstlane_b32 s{S_WAVE}, v1")
    e(f"s_and_b32 s{S_T}, s2, 7")
    e(f"s_lshr_b32 s{S_T+1}, s2, 3")
    e(f"s_lshr_b32 s{S_G}, s{S_T+1}, 4")
    e(f"s_lshl_b32 s{S_T}, s{S_T}, 1")
    e(f"s_add_u32 s{S_G}, s{S_G}, s{S_T}")
    e(f"s_and_b32 s{S_R}, s{S_T+1}, 15")
    e(f"s_mov_b32 s{S_MASK}, 0x7fff7fff")
    e("v_and_b32 v25, 31, v0"); e("v_lshlrev_b32 v25, 2, v25"); e(f"v_add_u32 v25, {M_CNT}, v25"); e("v_mov_b32 v2, 0")
    e("ds_write_b32 v25, v2")
    srds = ((S_IDX, 48, 4096*104), (S_TAB, 50, 6400000), (S_WC, 52, LB), (S_WO, 54, 312), (S_W1, 56, 832*1664), (S_B1, 58, 1664), (S_W2, 60, 1664),
            (S_BO, 62, 2), (S_OUT, 64, 8192), (S_DBG, 66, 256), (S_WS, 68, 1 << 28))
    for srd, src, nbytes in srds:
        e(f"s_mov_b32 s{srd+2}, {nbytes}"); e(f"s_mov_b32 s{srd+3}, 0x00020000")
    e("s_waitcnt lgkmcnt(0)")
    for srd, src, nbytes in srds:
        e(f"s_mov_b64 s[{srd}:{srd+1}], s[{src}:{src+1}]")
    e(f"s_cmp_ge_u32 s{S_WAVE}, 4")
    e("s_cbranch_scc1 L_helper")

ACC, ACC2, XR, UR, BR, AR, SC, LG, TM = 4, 68, 132, 188, 216, 232, 244, 248, 252
def X(k, p): return XR + 14 * k + p
def EV(k): return XR + 14 * k + 13
def U(k, t): return UR + 7 * k + t
def cin(g):
    e = g.e
    e("s_setprio 1")
    e(f"s_lshl_b32 s{S_T}, s{S_G}, 8"); e(f"s_lshl_b32 s{S_T+1}, s{S_R}, 4"); e(f"s_add_u32 s{S_T}, s{S_T}, s{S_T+1}")
    e(f"s_lshl_b32 s{S_T+1}, s{S_WAVE}, 2"); e(f"s_add_u32 s{S_SB}, s{S_T}, s{S_T+1}")
    e(f"s_mul_i32 s{S_T}, s{S_SB}, 104")
    e("v_lshrrev_b32 v1, 4, v0")
    e("v_bfe_u32 v2, v0, 2, 2")
    e("v_and_b32 v3, 3, v0")
    e("v_mul_u32_u24 v4, 104, v1")
    e("v_mad_u32_u24 v4, v2, 28, v4")
    I = 8
    e(f"buffer_load_dwordx4 {vr(I,4)}, v4, {sr(S_IDX)}, s{S_T} offen")
    e(f"buffer_load_dwordx3 {vr(I+4,3)}, v4, {sr(S_IDX)}, s{S_T} offen offset:16")
    e("s_barrier")
    L1R = 132
    e(f"s_mov_b32 s{S_WC+2}, {2*LB}"); e(f"s_mov_b32 s{S_J}, s{S_WAVE}")
    e("v_lshlrev_b32 v26, 4, v0"); e(f"v_add_u32 v29, {BUFA + 28*1024}, v26"); e("v_cmp_lt_u32 vcc, 42, v0"); e(f"v_mov_b32 v6, {OOB}"); e("v_cndmask_b32 v26, v26, v6, vcc")
    e(f"s_mul_i32 s{S_T}, s{S_J}, 1352")
    for i in range(13):
        if i < 12:
            t = i >> 1
            if i & 1 == 0: e(f"s_add_u32 s{S_T+1}, s{S_T}, {LB + (13*(t&1) + 4*(t>>1))*1352}")
            e(f"buffer_load_dwordx4 {vr(L1R+4*i,4)}, v26, {sr(S_WC)}, s{S_T+1} offen offset:{676*(i&1)}")
        else:
            e(f"s_lshr_b32 s{S_T+1}, s{S_J}, 1"); e(f"s_mul_i32 s{S_T+1}, s{S_T+1}, {13*1352}"); e(f"s_and_b32 s{S_T+2}, s{S_J}, 1"); e(f"s_mul_i32 s{S_T+2}, s{S_T+2}, 676")
            e(f"s_add_u32 s{S_T+1}, s{S_T+1}, s{S_T+2}"); e(f"s_add_u32 s{S_T+1}, s{S_T+1}, {LB + 12*1352}")
            e(f"buffer_load_dwordx4 {vr(L1R+4*i,4)}, v26, {sr(S_WC)}, s{S_T+1} offen")
    e(f"s_lshl_b32 s{S_T}, s{S_J}, 4"); e(f"s_add_u32 s{S_T}, s{S_T}, {BUFB}")
    e(f"v_mul_u32_u24 v28, {S0STR}, v0"); e(f"v_add_u32 v28, s{S_T}, v28"); e("v_cndmask_b32 v28, v28, v29, vcc")
    e("v_lshlrev_b32 v5, 4, v3")
    e("v_cmp_eq_u32 vcc, 3, v2")
    e(f"v_mov_b32 v6, {OOB}")
    e("v_cndmask_b32 v6, 0, v6, vcc")
    e("v_add_u32 v6, v6, v5")
    e(f"s_mul_i32 s{S_T+1}, s{S_WAVE}, 7168"); e(f"s_add_u32 s{S_T+1}, s{S_T+1}, {D0}")
    e("v_mul_u32_u24 v7, 1792, v1")
    e("v_mad_u32_u24 v16, v2, 7, 0")
    e("v_lshl_add_u32 v7, v16, 6, v7")
    e(f"v_add3_u32 v7, v7, v5, s{S_T+1}")
    e("v_lshrrev_b32 v16, 1, v1")
    e("v_xor_b32 v16, v16, v2")
    e("v_lshlrev_b32 v16, 6, v16")
    e("v_and_b32 v17, 1, v1")
    e("v_lshl_add_u32 v16, v17, 5, v16")
    e("v_lshl_add_u32 v16, v3, 3, v16")
    e(f"v_add_u32 v16, s{S_T+1}, v16")
    for k in range(4): e(f"v_mov_b32 v{LG+k}, 0")
    PA, PS, DR = 32, 40, 184
    unpack_mat(g, PA, 20)
    e("s_waitcnt vmcnt(13) lgkmcnt(0)")
    GR, MR = 68, 96
    for t in range(7):
        e(f"v_lshl_add_u32 v{I+t}, v{I+t}, 6, v{5 if t < 5 else 6}")
        e(f"buffer_load_dwordx4 {vr(GR+4*t,4)}, v{I+t}, {sr(S_TAB)}, 0 offen")
    g.stamp()
    def carrive(c):
        e("v_mov_b32 v2, 1"); e("s_mov_b64 exec, 1"); e(f"ds_add_u32 v25, v2 offset:{CNT[c]-M_CNT}"); e("s_mov_b64 exec, -1")
    for i in range(13):
        e(f"s_waitcnt vmcnt({7 + 12 - i})")
        unpack(g, DR, PA, L1R, i)
        if i & 1 and i >= 3: tmax(g, DR, (i >> 1) - 1, 16, i == 3)
    e(f"s_and_b32 s{S_T}, s{S_J}, 1"); e(f"s_lshl_b32 s{S_T}, s{S_T}, 4")
    tmax(g, DR, 5, 16, False)
    for r in range(4): e(f"v_alignbit_b32 v{L1R+48+r}, v{L1R+48+r}, v{L1R+48+r}, s{S_T}")
    tmax(g, DR, 6, 8, False)
    put_max(g, M_L1)
    carrive("L1M")
    for i in range(8): e(f"v_and_b32 v{PS+i}, 0x800080, v{PA+i}")
    g.stamp("s")
    lwait(g, "L1M", 4, 25, 2)
    get_max(g, M_L1)
    e(f"v_readfirstlane_b32 s{S_T}, v1")
    e(f"s_lshr_b32 s{S_T}, s{S_T}, 23"); e(f"s_max_u32 s{S_T}, s{S_T}, 15"); e(f"s_sub_u32 s{S_HDR+2}, s{S_T}, 142")
    e(f"s_sub_u32 s{S_T}, {127+142}, s{S_T}")
    for i in range(8): e(f"v_mul_u32_u24 v{PS+i}, s{S_T}, v{PS+i}")
    def l1out(i):
        d = DR + 16 * ((i >> 1) & 3) + 8 * (i & 1)
        for r in range(4):
            lo, hi = (d + 2 * r + 1, d + 2 * r) if (i & 1) else (d + 2 * r, d + 2 * r + 1)
            e(f"v_cvt_pk_f16_f32 v{L1R+4*i+r}, v{lo}, v{hi}")
        if i < 12:
            t = i >> 1; o = 16 * (8 * (t >> 1) + 4 * (t & 1)) + 512 * (i & 1)
        else:
            e(f"s_lshr_b32 s{S_T}, s{S_J}, 1"); e(f"s_lshl_b32 s{S_T}, s{S_T}, 5"); e(f"s_and_b32 s{S_T+1}, s{S_J}, 1"); e(f"s_mul_i32 s{S_T+1}, s{S_T+1}, 496")
            e(f"s_add_u32 s{S_T}, s{S_T}, s{S_T+1}"); e(f"v_add_u32 v28, s{S_T}, v28"); o = 24 * 16
        e(f"ds_write_b128 v28, {vr(L1R+4*i,4)} offset:{o}")
    for i in range(13):
        unpack(g, DR, PS, L1R, i)
        if i >= 4: l1out(i - 4)
    for i in range(9, 13): l1out(i)
    g.stamp("s")
    for t in range(7):
        e(f"s_waitcnt vmcnt({6 - t})")
        unpack(g, DR, PA, GR, t)
        e(f"ds_write_b128 v7, {vr(GR+4*t,4)} offset:{64*t}")
        if t in (3, 5): tmax(g, DR, (t >> 1) - 1, 16, t == 3, 20)
    e("v_mov_b32 v2, 1"); e("s_mov_b64 exec, 1"); e(f"ds_add_u32 v25, v2 offset:{CNT['RAW']-M_CNT}"); e("s_mov_b64 exec, -1")
    g.stamp(); g.stamp("s")
    tmax(g, DR, 2, 16, False, 20); tmax(g, DR, 3, 8, False, 20)
    for sh in (8, 4, 2, 1):
        e(f"v_max_u32_dpp v20, v20, v20 row_ror:{sh} {DPPALL}")
    e("v_lshrrev_b32 v20, 23, v20"); e("v_max_u32 v20, 8, v20")
    e(f"v_sub_u32 v21, {127+134}, v20"); e("v_lshlrev_b32 v21, 23, v21")
    for t in range(7):
        d = DR + 8 * t
        for i in range(8): e(f"v_mul_f32 v{d+i}, v{d+i}, v21")
        for i in range(4): e(f"v_cvt_pk_f16_f32 v{MR+4*t+i}, v{d+2*i}, v{d+2*i+1}")
        e(f"ds_write_b128 v7, {vr(MR+4*t,4)} offset:{D1 - D0 + 64*t}")
    for k in range(4): e(f"v_readlane_b32 s{S_EX+k}, v20, {16*k}")
    e("s_waitcnt lgkmcnt(0)")
    for k in range(4):
        for t in range(7):
            e(f"ds_read_b64_tr_b16 {vr(X(k,2*t),2)}, v16 offset:{D1 - D0 + k*1792+t*256}")
    for k in range(4):
        e(f"s_sub_u32 s{S_EX+k}, s{S_EX+k}, 134")
    for i in range(16): e(f"v_mov_b32 v{BR+i}, 0")
    e("v_lshlrev_b32 v1, 4, v0")
    e("s_waitcnt lgkmcnt(0)")
    HW = lambda l: S_HDR + 2 * l
    HD = lambda l: S_HDR + 2 * l + 1
    HQ, HL = S_HDR + 8, S_HDR + 9
    for k in range(4):
        e(f"s_lshl_b32 s{S_T}, s{S_EX+k}, 1")
        e(f"v_mov_b32 v{EV(k)}, s{S_T}")
    g.stamp("s")
    e("s_mov_b64 exec, 1"); e(f"ds_add_u32 v25, v2 offset:{CNT['XST']-M_CNT}"); e("s_mov_b64 exec, -1")
    lwait(g, "S0OK", 4, 25, 2)
    g.stamp(); g.stamp("s")

    ready = set()
    def quad_prod(k, rho):
        p, q = QPAIRS[rho]
        return lambda d: f"v_pk_mul_f16 v{d}, v{X(k,p)}, v{X(k,q)} op_sel_hi:[0,1]"
    def gen_prod(l):
        def f(k, rho):
            r, p = divmod(rho, 13)
            def mk(d):
                if r == 13: return f"v_mov_b32 v{d}, v{U(k,p)}" if l == 2 else f"v_mov_b32 v{d}, 0"
                assert ('u', l, k, r) in ready, (l, k, r)
                if r & 1: return f"v_pk_mul_f16 v{d}, v{U(k,r>>1)}, v{X(k,p)} op_sel:[1,0] op_sel_hi:[1,1]"
                return f"v_pk_mul_f16 v{d}, v{U(k,r>>1)}, v{X(k,p)} op_sel_hi:[0,1]"
            return mk
        return f
    def lin_prod(k, t):
        b = 2 * t + 1 if 2 * t + 1 < 13 else 2 * t
        return lambda d: f"v_pack_b32_f16 v{d}, v{X(k,2*t)}, v{X(k,b)}"
    def steps(nprod, prod, acc, base, first0, stride=1024, needs=None):
        out = []
        ns = (nprod + 3) // 4
        for s in range(ns):
            out.append(dict(lds=base + stride * s, needs=needs if s == 0 else None, jobs=[dict(acc=acc + 16 * k, zero=(first0 and s == 0),
                       prods=[prod(k, rho) for rho in range(4 * s, min(4 * s + 4, nprod))]) for k in range(4)]))
        return out
    def conv(acc, l, t):
        o = []
        for r in (2 * t, 2 * t + 1):
            if r < 13: o += [f"v_mul_f32 v{acc+16*k+r}, v{acc+16*k+r}, v{SC+k}" for k in range(4)]
        for k in range(4):
            hi = f"v{acc+16*k+2*t+1}" if t < 6 else "0"
            o.append((f"v_cvt_pk_f16_f32 v{U(k,t)}, v{acc+16*k+2*t}, {hi}", ('u', l + 1, k, 2 * t)))
            o.append((None, ('u', l + 1, k, 2 * t + 1)))
        return o
    def head(acc, l):
        o = []
        for j in range(6):
            for k in range(4):
                a = acc + 16 * k
                if j == 0: o.append(f"v_max3_f32 v{SC+k}, |v{a}|, |v{a+1}|, |v{a+2}|")
                else: o.append(f"v_max3_f32 v{SC+k}, v{SC+k}, |v{a+2*j+1}|, |v{a+2*j+2}|")
        for k in range(4): o.append(f"v_mov_b32 v{TM+k}, v{SC+k}")
        for k in range(4): o.append(f"v_permlane32_swap_b32 v{SC+k}, v{TM+k}")
        for k in range(4): o.append(f"v_max_f32 v{SC+k}, v{SC+k}, v{TM+k}")
        for k in range(4): o.append(f"v_frexp_exp_i32_f32 v{TM+k}, v{SC+k}")
        for k in range(4): o.append(f"v_sub_u32 v{SC+k}, 8, v{TM+k}")
        for k in range(4): o.append(f"v_ldexp_f32 v{SC+k}, 1.0, v{SC+k}")
        return o + conv(acc, l, 0)
    def tailb(acc, l):
        o = []
        o += conv(acc, l, 1)
        if l == 2:
            o.append((None, 'x', 'k2'))
            for k in range(4): o.append(f"v_ldexp_f32 v{acc+16*k+15}, v{acc+16*k+15}, v{EV(k)}")
            for k in range(4): o.append(f"v_add_u32 v{acc+16*k+13}, s{S_K1+k}, v{EV(k)}")
            for k in range(4): o.append(f"v_ldexp_f32 v{acc+16*k+14}, v{acc+16*k+14}, v{acc+16*k+13}")
            for k in range(4): o.append(f"v_add_f32 v{LG+k}, v{acc+16*k+14}, v{acc+16*k+15}")
        for k in range(4):
            o.append(f"v_add3_u32 v{EV(k)}, v{EV(k)}, v{TM+k}, s{S_K+k}")
        for t in range(2, 7): o += conv(acc, l, t)
        o.append((None, ('free', l)))
        return o
    def emit(s):
        if isinstance(s, tuple):
            if len(s) == 3: assert s[2] in ready, s
            ready.add(s[1]); s = s[0]
        if s: e(s)
    def kconst(l):
        if l == 0: e(f"s_mov_b32 s{S_T}, s{HW(0)}")
        elif l == 1: e(f"s_add_u32 s{S_T}, s{HW(1)}, s{HD(2)}")
        else:
            e(f"s_sub_u32 s{S_T}, s{HD(1)}, s{HD(2)}")
            for k in range(4): e(f"s_sub_u32 s{S_K1+k}, s{S_T}, s{S_EX+k}")
            e(f"s_sub_u32 s{S_T}, s{HW(l)}, s{HD(l)}"); e(f"s_add_u32 s{S_T}, s{S_T}, s{HD(l+1)}")
        e(f"s_sub_u32 s{S_T}, s{S_T}, 8")
        for k in range(4): e(f"s_add_u32 s{S_K+k}, s{S_T}, s{S_EX+k}")
    state = dict(areg=0, breg=0, base=0)
    def rel(addr):
        r = addr - state['base']
        if r < 0 or r > 65535:
            nb = max(addr - 45056, 0) if r > 0 else addr
            nb = min(nb, addr)
            e(f"v_add_u32 v1, {(nb - state['base']) & 0xffffffff}, v1"); state['base'] = nb; r = addr - nb
        return r
    def aread(st):
        st['a'] = AR + 4 * (state['areg'] % 3); state['areg'] += 1
        r = rel(st['lds'])
        e(f"ds_read_b128 {vr(st['a'],4)}, v1 offset:{r}")
    def prods(job):
        job['b'] = BR + 4 * (state['breg'] % 4); state['breg'] += 1
        return [p(job['b'] + i) for i, p in enumerate(job['prods'])]
    def run(seq, nxt, fill=None, events=None, post=None, rates=None):
        rate = PAR.rate
        jobs = [(si, j) for si, st in enumerate(seq) for j in st['jobs']]
        for j in range(2):
            for s in prods(jobs[j][1]): e(s)
        fq = []
        allst = seq + nxt
        for n, (si, job) in enumerate(jobs):
            k = n % 4
            if k == 0:
                if fill and si in fill: fq += fill[si]
                if rates and si in rates: rate = rates[si]
                waited = False
                if events and si in events: waited = events[si]()
                pend = sum(1 for st in allst[si+1:si+2] if 'a' in st)
                if not waited: e(f"s_waitcnt lgkmcnt({pend})")
                if seq[si]['needs']: assert seq[si]['needs'] in ready, seq[si]['needs']
            c = "0" if job['zero'] else vr(job['acc'], 16)
            e(f"v_mfma_f32_32x32x16_f16 {vr(job['acc'],16)}, {vr(seq[si]['a'],4)}, {vr(job['b'],4)}, {c}")
            budget = 7 if rate > 2 else 6
            if k == 0:
                if post and si in post: post[si]()
                if si + 2 < len(allst) and 'a' not in allst[si + 2]:
                    aread(allst[si + 2]); budget -= 1
            if k == 3: budget -= 1
            if n + 2 < len(jobs):
                ps = prods(jobs[n + 2][1])
                for s in ps: e(s)
                budget -= len(ps)
            budget = min(budget, rate)
            while budget > 0 and fq:
                x = fq.pop(0); emit(x)
                t = x[0] if isinstance(x, tuple) else x
                if t: budget -= 2 if 'permlane' in t else 1
            while fq and isinstance(fq[0], tuple) and fq[0][0] is None: emit(fq.pop(0))
        for s in fq: emit(s)
    S0 = steps(91, quad_prod, ACC, BUFA, True, stride=S0STR)
    L1 = steps(172, gen_prod(1), ACC2, BUFB, True, stride=S0STR)
    L2 = steps(176, gen_prod(2), ACC, BUFA, True, needs=('free', 0))
    LN = steps(7, lin_prod, ACC2, D0 + 24 * 1024, True, needs=('free', 1))
    Q4 = steps(91, quad_prod, ACC2, D0, False, needs='ldx')
    L3 = steps(169, gen_prod(3), ACC, BUFB, True, needs=('free', 2))
    def hdr_read(addr):
        def f():
            r = rel(addr)
            e(f"ds_read_b64 v[2:3], v1 offset:{r}")
        return f
    def hdr_get(sa, sb):
        def f():
            e(f"v_readfirstlane_b32 s{sa}, v2")
            if sb is not None: e(f"v_readfirstlane_b32 s{sb}, v3")
        return f
    def arrive(c, pre=None):
        def f():
            if pre: g.stamp("s"); e(pre); g.stamp("s")
            r = rel(CNT[c])
            e("v_mov_b32 v2, 1"); e("s_mov_b64 exec, 1"); e(f"ds_add_u32 v1, v2 offset:{r}"); e("s_mov_b64 exec, -1")
        return f
    def chk_read(c):
        def f():
            r = rel(CNT[c]); e(f"ds_read_b32 v2, v1 offset:{r}")
        return f
    def chk_test(c):
        def f():
            slow = g.newlab("cs"); back = g.newlab("cb"); top = g.newlab("ct")
            e(f"v_readfirstlane_b32 s{S_T}, v2"); e(f"s_cmp_lt_u32 s{S_T}, 4"); e(f"s_cbranch_scc1 {slow}")
            g.lab(back)
            g.tail += [slow + ":", f"    s_mov_b32 s{S_T+1}, {SPIN*8}", f"    v_mov_b32 v3, {CNT[c]}", top + ":", "    s_sleep 1", "    ds_read_b32 v2, v3", "    s_waitcnt lgkmcnt(0)",
                       f"    v_readfirstlane_b32 s{S_T}, v2", f"    s_cmp_ge_u32 s{S_T}, 4", f"    s_cbranch_scc1 {back}",
                       f"    s_sub_u32 s{S_T+1}, s{S_T+1}, 1", f"    s_cbranch_scc0 {top}", f"    s_branch {back}"]
        return f
    def seqf(*fs):
        def f():
            for x in fs: x()
        return f
    HOFF = 29 * 16
    aread(S0[0]); aread(S0[1])
    run(S0, L1[:2], post={4: hdr_read(BUFA + 23 * S0STR + 512), 5: hdr_get(HW(0), None), 22: arrive("AFREE"),
                          19: chk_read("RAW"), 20: chk_test("RAW")})
    g.stamp()
    kconst(0)
    for s in head(ACC, 0): emit(s)
    run(L1, L2[:2], fill={0: tailb(ACC, 0)},
        post={39: chk_read("L2OK"), 40: seqf(chk_test("L2OK"), hdr_read(BUFA + HOFF)), 41: hdr_get(HW(2), HD(2)), 42: arrive("BFREE")})
    g.stamp()
    kconst(1)
    for s in head(ACC2, 1): emit(s)
    LNPOS = PAR.lnpos; B4 = LNPOS - 3
    seq = L2[:LNPOS] + LN + L2[LNPOS:] + Q4 + L3
    nQ = 46; nL3 = nQ + 23
    ldx = [f"v_mul_f32 v{ACC2+16*k+r}, s{S_K1+k}, v{ACC2+16*k+r}" for k in range(4) for r in range(13)] + [(None, 'ldx')]
    PV, PA = 2, 3
    def pload():
        e(f"buffer_load_dword v{PV}, v{PA}, {sr(S_WS)}, s{S_T+3} offen sc1")
    def getq():
        hdr_get(HQ, HL)()
        for k in range(4):
            e(f"s_sub_u32 s{S_T}, s{HL}, s{HQ}"); e(f"s_sub_u32 s{S_T}, s{S_T}, s{S_EX+k}")
            e(f"s_min_i32 s{S_KC+k}, s{S_T}, 50")
            e(f"s_add_i32 s{S_T}, s{S_KC+k}, 127"); e(f"s_max_i32 s{S_T}, s{S_T}, 0"); e(f"s_lshl_b32 s{S_K1+k}, s{S_T}, 23")
        hdr_read(D0 + 23 * 1024 + 8)()
    def get3():
        hdr_get(HW(3), HD(3))(); kconst(2); ready.add('k2')
    pre = []
    pre.append("v_bfe_u32 v2, v0, 4, 1"); pre.append("v_lshrrev_b32 v3, 5, v0"); pre.append("v_lshl_add_u32 v2, v2, 1, v3")
    pre.append("v_and_b32 v3, 15, v0"); pre.append("v_cmp_lt_u32 vcc, 12, v3"); pre.append("v_lshlrev_b32 v3, 10, v3")
    pre.append("v_lshl_add_u32 v3, v2, 2, v3"); pre.append(f"v_mov_b32 v2, {OOB}"); pre.append("v_cndmask_b32 v3, v3, v2, vcc")
    w0 = []
    for k in range(4): w0.append(f"v_ldexp_f32 v{ACC2+16*k+15}, v{ACC2+16*k+15}, s{S_K+k}")
    for k in range(4): w0.append(f"v_add_f32 v{LG+k}, v{LG+k}, v{ACC2+16*k+15}")
    def k_w0():
        for k in range(4):
            e(f"s_lshl_b32 s{S_T}, s{S_EX+k}, 1"); e(f"s_add_u32 s{S_K+k}, s{S_T}, s{HD(0)}")
        e(f"s_mul_i32 s{S_T+3}, s{S_G}, {13*1024}"); e(f"s_and_b32 s{S_T}, s{S_SB}, 255"); e(f"s_lshl_b32 s{S_T}, s{S_T}, 2")
        e(f"s_add_u32 s{S_T+3}, s{S_T+3}, s{S_T}"); e(f"s_add_u32 s{S_T+3}, s{S_T+3}, {WS_PART}")
    def k_fin():
        for k in range(4):
            e(f"s_sub_u32 s{S_T}, s{HW(3)}, s{HD(3)}"); e(f"s_add_u32 s{S_T}, s{S_T}, s{HL}"); e(f"s_add_u32 s{S_T}, s{S_T}, s{S_EX+k}")
            e(f"s_sub_u32 s{S_K+k}, s{S_T}, s{S_KC+k}")
    BO = ACC2 + 14
    fin = [f"v_add_u32 v{TM+k}, s{S_K+k}, v{EV(k)}" for k in range(4)] + [f"v_mov_b32 v{BO-1}, 0"]
    def boload():
        e(f"buffer_load_ushort v{BO}, v{BO-1}, {sr(S_BO)}, 0 offen")
    run(seq, [], fill={0: tailb(ACC2, 1), LNPOS + 3: ldx, nQ + 1: head(ACC, 2) + tailb(ACC, 2), nL3 + 2: pre + w0, nL3 + 10: fin}, rates={nQ: 3, nL3: PAR.rate},
        post={2: hdr_read(BUFA + HOFF + 8), 3: hdr_get(HD(1), None),
              B4 - 1: chk_read("QOK"), B4: seqf(chk_test("QOK"), hdr_read(D0 + 23 * 1024)), B4 + 1: getq, B4 + 2: hdr_get(HD(0), None),
              nQ + 5: chk_read("L3OK"), nQ + 6: seqf(chk_test("L3OK"), hdr_read(BUFB + HOFF)), nQ + 7: get3,
              1: lambda: g.stamp("p"), 21: lambda: g.stamp("p"), nQ: lambda: g.stamp("p"), nL3: lambda: g.stamp("p"), nL3 + 20: lambda: g.stamp("p"), nL3 + 40: lambda: g.stamp("p"),
              nL3 + 1: k_w0, nL3 + 9: k_fin, nL3 + 14: boload, nL3 + PAR.pload: pload})
    g.stamp()
    for r in range(13):
        for k in range(4):
            if r == 0: e(f"v_mul_f32 v{SC+k}, v{ACC+16*k}, v{ACC2+16*k}")
            else: e(f"v_fmac_f32 v{SC+k}, v{ACC+16*k+r}, v{ACC2+16*k+r}")
    for k in range(4): e(f"v_ldexp_f32 v{ACC+16*k+15}, v{ACC+16*k+15}, v{EV(k)}")
    for k in range(4): e(f"v_ldexp_f32 v{SC+k}, v{SC+k}, v{TM+k}")
    for k in range(4): e(f"v_add_f32 v{LG+k}, v{LG+k}, v{ACC+16*k+15}")
    for k in range(4): e(f"v_add_f32 v{LG+k}, v{LG+k}, v{SC+k}")
    e(f"v_permlane32_swap_b32 v{LG}, v{LG+1}"); e(f"v_permlane32_swap_b32 v{LG+2}, v{LG+3}")
    e(f"v_add_f32 v{LG}, v{LG}, v{LG+1}"); e(f"v_add_f32 v{LG+2}, v{LG+2}, v{LG+3}")
    e(f"v_permlane16_swap_b32 v{LG}, v{LG+2}")
    e(f"v_add_f32 v{LG}, v{LG}, v{LG+2}")
    e(f"s_mov_b32 s{S_T}, {SPIN}")
    g.lab("L_pcheck")
    e("s_waitcnt vmcnt(0)")
    e(f"v_cmp_eq_u32 vcc, -1, v{PV}")
    e("s_nop 1")
    e("s_cbranch_vccz L_pok")
    e("s_sleep 4")
    pload()
    e(f"s_sub_u32 s{S_T}, s{S_T}, 1")
    e("s_cbranch_scc0 L_pcheck")
    e("s_waitcnt vmcnt(0)")
    g.lab("L_pok")
    e(f"v_add_f32 v{LG}, v{LG}, v{PV}")
    for sh in (8, 4, 2, 1):
        e(f"v_add_f32_dpp v{LG}, v{LG}, v{LG} row_ror:{sh} {DPPALL}")
    e(f"v_lshlrev_b32 v{BO}, 16, v{BO}")
    e(f"v_add_f32 v{LG}, v{LG}, v{BO}")
    e(f"v_cvt_pk_bf16_f32 v{LG}, v{LG}, v{LG}")
    e(f"v_lshrrev_b32 v{PA}, 1, v{PA}")
    e(f"v_cmp_lt_u32 vcc, 7, v{PA}")
    e(f"v_mov_b32 v2, {OOB}")
    e(f"v_cndmask_b32 v{PA}, v{PA}, v2, vcc")
    e(f"s_lshl_b32 s{S_T}, s{S_SB}, 1")
    e(f"buffer_store_short v{LG}, v{PA}, {sr(S_OUT)}, s{S_T} offen")
    g.stamp()
    if PAR.enc is not None:
        e("s_waitcnt lgkmcnt(0)")
        e(f"s_sub_u32 s{S_T}, s{S_ST+2*PAR.enc}, s{S_ST}"); e(f"s_lshl_b32 s{S_T}, s{S_T}, 1"); e(f"s_add_u32 s{S_T}, s{S_T}, 6000")
        g.lab("L_enc")
        e(f"s_memrealtime s[{S_T+2}:{S_T+3}]"); e("s_waitcnt lgkmcnt(0)")
        e(f"s_sub_u32 s{S_T+2}, s{S_T+2}, s{S_ST}"); e(f"s_cmp_lt_u32 s{S_T+2}, s{S_T}"); e("s_cbranch_scc1 L_enc")
    g.flush_stamps(4, 5)
    e("s_endpgm")

HACC, HX, HW_ = 4, 68, 208
V_TR0, V_TR1, V_DMA, V_WSRC, V_H16, V_L0, V_HROW, V_CNT = 248, 249, 250, 251, 252, 253, 254, 255
ID, QA, QSH, QS, W0R, PK = 4, 12, 19, 20, 180, 236
L1R, BT = 180, 36
S_WP, S_L, S_FR, S_E0, S_E1, S_E2, S_PO, S_CX = 48, 49, 50, 51, 52, 53, 54, 55
S_LC = 56
S_E3, S_XB = 60, 61
def dma_img(g, name, nfr, lds):
    e = g.e; per = nfr // 4
    e(f"s_mul_i32 s{S_T}, s{S_J}, {per*1024}")
    for i in range(per):
        if i % 4 == 0:
            e(f"s_add_u32 s{S_T+1}, s{S_T}, {IMG[name] + i*1024}")
            e(f"s_add_u32 m0, s{S_T}, {lds + i*1024}")
        g.vm(f"buffer_load_dwordx4 v{V_DMA}, {sr(S_WS)}, s{S_T+1} offen offset:{(i%4)*1024} {PAR.ld} lds", name)
def poll(g, checks, pre=None):
    e = g.e
    done = g.newlab("pd"); top = g.newlab("pt"); slp = g.newlab("ps"); tst = g.newlab("pc")
    regs = pre or [2 + i for i in range(len(checks))]
    e(f"s_mov_b32 s{S_T}, {SPIN}")
    if pre: e(f"s_branch {tst}")
    g.lab(top)
    for r, (srd, so, o, n) in zip(regs, checks):
        e(f"buffer_load_dword v{r}, v{V_L0}, {sr(srd)}, {so} offen offset:{o} sc1")
    e("s_waitcnt vmcnt(0)")
    g.lab(tst)
    for r, (srd, so, o, n) in zip(regs, checks):
        e(f"v_readfirstlane_b32 s{S_T+1}, v{r}")
        e(f"s_cmp_lt_u32 s{S_T+1}, {n}")
        e(f"s_cbranch_scc1 {slp}")
    g.lab(done)
    g.tail += [slp + ":", f"    s_sleep {PAR.slp}", f"    s_sub_u32 s{S_T}, s{S_T}, 1", f"    s_cbranch_scc0 {top}", f"    s_branch {done}"]
def poll1(g, checks, flag, pre=None):
    lb = g.newlab("p1")
    g.e(f"s_cmp_lg_u32 s{S_J}, 0"); g.e(f"s_cbranch_scc1 {lb}")
    poll(g, checks, pre)
    arrive(g, flag)
    g.lab(lb)
    lwait(g, flag, 1)
def presample(g, checks, regs, tag):
    for r, (srd, so, o, n) in zip(regs, checks):
        g.vm(f"buffer_load_dword v{r}, v{V_L0}, {sr(srd)}, {so} offen offset:{o} sc1", tag)
def arrive(g, *cs):
    e = g.e
    e("v_mov_b32 v1, 1"); e("s_mov_b64 exec, 1")
    for c in cs: e(f"ds_add_u32 v{V_CNT}, v1 offset:{CNT[c]-M_CNT}")
    e("s_mov_b64 exec, -1")
def unpack_mat(g, PA, t):
    e = g.e
    e(f"v_and_b32 v{t}, 1, v0"); e(f"v_lshlrev_b32 v{t}, 4, v{t}"); e(f"v_mov_b32 v{t+1}, 0x3f80"); e(f"v_lshlrev_b32 v{t+1}, v{t}, v{t+1}")
    e(f"v_lshrrev_b32 v{t+2}, 3, v0"); e(f"v_xor_b32 v{t+2}, v{t+2}, v0"); e(f"v_and_b32 v{t+2}, 4, v{t+2}")
    e(f"v_bfe_u32 v{t}, v0, 3, 2"); e(f"v_bfe_u32 v{t+3}, v0, 1, 1"); e(f"v_lshl_add_u32 v{t}, v{t}, 1, v{t+3}"); e(f"v_lshl_add_u32 v{t}, v{t+2}, 3, v{t}")
    for i in range(8):
        e(f"v_cmp_eq_u32 vcc, {i}, v{t}"); e(f"v_cndmask_b32 v{PA+i}, 0, v{t+1}, vcc")
def unpack(g, DR, pa, src, i):
    d = DR + 16 * ((i >> 1) & 3)
    g.e(f"v_mfma_f32_32x32x16_bf16 {vr(d,16)}, {vr(pa+4*(i&1),4)}, {vr(src+4*i,4)}, {vr(d,16) if i & 1 else '0'}")
def tmax(g, DR, tile, n, first, mv=1):
    d = DR + 16 * (tile & 3)
    for q in range(n // 2):
        if first and q == 0: g.e(f"v_max_f32 v{mv}, |v{d}|, |v{d+1}|")
        else: g.e(f"v_max3_f32 v{mv}, v{mv}, |v{d+2*q}|, |v{d+2*q+1}|")
def lwait(g, c, n=4, va=None, vd=1):
    e = g.e; top = g.newlab("lw"); done = g.newlab("ld")
    e(f"s_mov_b32 s{S_T}, {SPIN*8}")
    g.lab(top)
    e(f"ds_read_b32 v{vd}, v{va or V_CNT} offset:{CNT[c]-M_CNT}"); e("s_waitcnt lgkmcnt(0)")
    e(f"v_readfirstlane_b32 s{S_T+1}, v{vd}"); e(f"s_cmp_ge_u32 s{S_T+1}, {n}"); e(f"s_cbranch_scc1 {done}")
    e("s_sleep 1"); e(f"s_sub_u32 s{S_T}, s{S_T}, 1"); e(f"s_cbranch_scc0 {top}")
    g.lab(done)
def rowmax(g, v, op="v_max_u32_dpp"):
    for sh in (8, 4, 2, 1): g.e(f"{op} v{v}, v{v}, v{v} row_ror:{sh} {DPPALL}")
def wavemax_exp(g, v, sdst):
    e = g.e
    rowmax(g, v)
    e(f"v_readlane_b32 s{sdst}, v{v}, 0"); e(f"v_readlane_b32 s{S_T}, v{v}, 16"); e(f"s_max_u32 s{sdst}, s{sdst}, s{S_T}")
    e(f"v_readlane_b32 s{S_T}, v{v}, 32"); e(f"s_max_u32 s{sdst}, s{sdst}, s{S_T}")
    e(f"v_readlane_b32 s{S_T}, v{v}, 48"); e(f"s_max_u32 s{sdst}, s{sdst}, s{S_T}")
    e(f"s_lshr_b32 s{sdst}, s{sdst}, 23"); e(f"s_sub_u32 s{sdst}, s{sdst}, 126")
def put_max(g, slot):
    e = g.e
    rowmax(g, 1)
    e("v_lshrrev_b32 v2, 4, v0"); e(f"s_lshl_b32 s{S_T}, s{S_J}, 4"); e(f"s_add_u32 s{S_T}, s{S_T}, {slot}")
    e(f"v_lshl_add_u32 v2, v2, 2, s{S_T}")
    e("ds_write_b32 v2, v1")
def get_max(g, slot):
    e = g.e
    e("v_and_b32 v2, 15, v0"); e("v_lshlrev_b32 v2, 2, v2"); e(f"v_add_u32 v2, {slot}, v2")
    e("ds_read_b32 v1, v2"); e("s_waitcnt lgkmcnt(0)")
    rowmax(g, 1)
def pkmax(g, regs):
    e = g.e
    e(f"v_pk_max_u16 v1, v{regs[0]}, v{regs[1]}"); e(f"v_pk_max_u16 v3, v{regs[2]}, v{regs[3]}")
    for i, r in enumerate(regs[4:]): e(f"v_pk_max_u16 v{1 + 2*(i&1)}, v{1 + 2*(i&1)}, v{r}")
    e("v_pk_max_u16 v1, v1, v3"); e("v_alignbit_b32 v3, v1, v1, 16"); e("v_pk_max_u16 v1, v1, v3")
def pack_round(g, acc, off):
    e = g.e
    for t in range(14): e(f"v_mul_f32 v{acc+t}, v{acc+t}, v{QS+(t>>1)}")
    for t in range(7): e(f"v_cvt_pk_f16_f32 v{PK+t}, v{acc+2*t}, v{acc+2*t+1}")
    for t in range(7): e(f"v_alignbit_b32 v{PK+t}, v{PK+t}, v{PK+t}, v{QSH}")
    for t in range(7): e(f"ds_write_b32 v{QA+t}, v{PK+t} offset:{off}")
def s0_max(g, t):
    a = HX + 16 * t
    for i in range(7):
        if t == 0 and i == 0: g.e(f"v_max_f32 v1, |v{a}|, |v{a+1}|")
        else: g.e(f"v_max3_f32 v1, v1, |v{a+2*i}|, |v{a+2*i+1}|")
F0 = lambda c: sum(PAR.chunks[:c])
S_ROT = 64
def rotf(g, f, sd):
    g.e(f"s_add_u32 s{sd}, s{S_ROT}, {f}"); g.e(f"s_sub_u32 s{S_ROT+1}, s{sd}, 26"); g.e(f"s_min_u32 s{sd}, s{sd}, s{S_ROT+1}")
def dma_w(g, c, only=None):
    e = g.e
    Dc = (D0, D1)[c & 1]
    e(f"s_lshl_b32 s{S_T}, s{S_J}, 10")
    for fl in range(PAR.chunks[c]):
        if only is not None and fl != only: continue
        e(f"s_add_u32 m0, s{S_T}, {Dc + fl*4096}")
        rotf(g, F0(c) + fl, S_T + 1); e(f"s_mul_i32 s{S_T+1}, s{S_T+1}, 53248")
        g.vm(f"buffer_load_dwordx4 v{V_WSRC}, {sr(S_W1)}, s{S_T+1} offen lds", f"W{c}")
CHK_X = lambda: (S_WS, f"s{S_CX}", 0, 16)
def helper_common(g):
    e = g.e
    e("s_setprio 2")
    e(f"s_sub_u32 s{S_J}, s{S_WAVE}, 4")
    e("v_and_b32 v2, 31, v0"); e("v_lshrrev_b32 v3, 5, v0")
    e(f"v_lshlrev_b32 v{V_H16}, 4, v3")
    e(f"v_mad_u32_u24 v1, v2, 52, v{V_H16}")
    if PAR.wpf:
        e(f"s_cmp_lg_u32 s{S_J}, 0"); e("s_cbranch_scc1 L_nowpf")
        e(f"s_mov_b32 s{S_WC+2}, {6*LB}"); e(f"s_lshr_b32 s{S_T}, s2, 3"); e(f"s_lshl_b32 s{S_T}, s{S_T}, 7")
        e("v_lshlrev_b32 v4, 12, v0")
        e(f"buffer_load_dword v247, v4, {sr(S_WC)}, s{S_T} offen")
        e(f"s_mov_b32 s{S_WC+2}, {LB}")
        g.lab("L_nowpf")
    e("s_barrier")
    e(f"s_mul_i32 s{S_T}, s{S_J}, 1352")
    for t in range(7):
        if t < 6: e(f"s_add_u32 s{S_T+1}, s{S_T}, {(13*(t&1) + 4*(t>>1))*1352}")
        else:
            e(f"s_mul_i32 s{S_T+1}, s{S_J}, {13*1352}"); e(f"s_add_u32 s{S_T+1}, s{S_T+1}, {12*1352}")
        for s in range(2):
            g.vm(f"buffer_load_dwordx4 {vr(W0R+8*t+4*s,4)}, v1, {sr(S_WC)}, s{S_T+1} offen offset:{32*s}", f"w0_{t}")
    e(f"v_mov_b32 v5, {OOB}"); e("v_cmp_eq_u32 vcc, 0, v0"); e(f"v_cndmask_b32 v{V_L0}, v5, 0, vcc")
    e(f"s_lshl_b32 s{S_CX}, s{S_G}, 8"); e(f"s_add_u32 s{S_CX}, s{S_CX}, {WS_CNT}")
    e(f"s_add_u32 s{S_T}, s{S_R}, s{S_J}"); e(f"s_cmp_eq_u32 s{S_T}, 0"); e(f"s_cselect_b32 s{S_E3}, 0, {OOB}")
    e(f"v_add_u32 v34, s{S_E3}, v{V_L0}"); e("v_mov_b32 v35, 0")
    g.vm(f"buffer_store_dword v35, v34, {sr(S_WS)}, s{S_CX} offen sc1", "rst")
    if PAR.touch:
        e("v_lshlrev_b32 v36, 20, v0")
        e("v_and_b32 v37, 7, v0"); e("v_lshlrev_b32 v37, 20, v37")
        for i, (srd, vo) in enumerate(((S_TAB, 36), (S_WS, 37), (S_W1, 36), (S_B1, 36), (S_W2, 36), (S_DBG, 36), (S_WO, 36), (S_OUT, 36), (S_BO, 36))):
            g.vm(f"buffer_load_ushort v{38+i}, v{vo}, {sr(srd)}, 0 offen", "touch")
    e("v_lshrrev_b32 v4, 3, v2"); e("v_and_b32 v6, 3, v2"); e("v_lshl_add_u32 v4, v4, 2, v6")
    e("v_bfe_u32 v6, v2, 2, 1"); e(f"v_mad_u32_u24 v{V_HROW}, v6, 13, v4")
    e("v_cmp_lt_u32 vcc, 12, v4"); e("v_mov_b32 v7, 0x100000"); e(f"v_cndmask_b32 v{V_HROW}, v{V_HROW}, v7, vcc")
    e("v_cmp_eq_u32 s[72:73], 0, v6"); e("s_and_b64 vcc, vcc, s[72:73]")
    e(f"v_lshlrev_b32 v{V_DMA}, 4, v0"); e(f"v_cndmask_b32 v{V_DMA}, v{V_DMA}, v5, vcc")
    e("v_lshrrev_b32 v27, 1, v2"); e("v_and_b32 v28, 1, v2"); e(f"v_lshlrev_b32 v{QSH}, 4, v28")
    e("v_sub_u32 v29, 25, v27"); e("v_mul_u32_u24 v29, v29, v27"); e("v_lshrrev_b32 v29, 1, v29")
    e(f"s_lshl_b32 s{S_T}, s{S_J}, 4")
    e(f"v_lshl_add_u32 v28, v28, 9, s{S_T}")
    e(f"v_lshl_add_u32 v30, v0, 2, s{S_T}"); e(f"v_add_u32 v30, {BUFA + 24*S0STR}, v30")
    e("v_mov_b32 v33, 0.5")
    for t in range(7):
        qb = 4 * (t >> 1) + (t & 1)
        e(f"v_lshl_add_u32 v31, v3, 1, {qb}")
        e("v_add_u32 v32, v29, v31")
        e(f"v_lshrrev_b32 v{QA+t}, 2, v32"); e(f"v_mul_u32_u24 v{QA+t}, {S0STR}, v{QA+t}")
        e("v_and_b32 v32, 3, v32"); e("v_lshl_add_u32 v32, v32, 2, v28"); e(f"v_add_u32 v{QA+t}, v{QA+t}, v32")
        e("v_cmp_lt_u32 vcc, v31, v27")
        if t == 6:
            e("v_cmp_lt_u32 s[72:73], 12, v31"); e("s_or_b64 vcc, vcc, s[72:73]")
        e(f"v_cndmask_b32 v{QA+t}, v{QA+t}, v30, vcc")
        e("v_cmp_eq_u32 vcc, v31, v27"); e(f"v_cndmask_b32 v{QS+t}, 1.0, v33, vcc")
    e("v_lshlrev_b32 v31, 3, v3"); e("v_sub_u32 v31, v2, v31")
    e("v_mov_b32 v32, 0x3f80"); e(f"v_lshlrev_b32 v32, v{QSH}, v32")
    e("v_lshrrev_b32 v31, 1, v31")
    for s in range(2):
        for i in range(4):
            e(f"v_cmp_eq_u32 vcc, {8*s+i}, v31"); e(f"v_cndmask_b32 v{ID+4*s+i}, 0, v32, vcc")
    e("v_mul_u32_u24 v3, 676, v3"); e(f"s_movk_i32 s{S_T+1}, 1352"); e(f"v_mad_u32_u24 v27, v{V_HROW}, s{S_T+1}, v3")
    e(f"s_mov_b64 s[{S_LC}:{S_LC+1}], s[{S_WC}:{S_WC+1}]"); e(f"s_mov_b32 s{S_LC+3}, 0x00020000"); e(f"s_mov_b32 s{S_LC+2}, {2*LB}")
    e(f"s_mul_i32 s{S_ROT}, s{S_R}, {PAR.rot}")
    e("v_lshrrev_b32 v1, 3, v0"); e(f"s_lshl_b32 s{S_T}, s{S_J}, 3"); e(f"v_add_u32 v1, s{S_T}, v1")
    e("v_mul_u32_u24 v1, 1664, v1")
    e("v_bfe_u32 v2, v0, 4, 1"); e("v_lshlrev_b32 v2, 2, v2"); e("v_and_b32 v3, 7, v0"); e("v_xor_b32 v2, v2, v3")
    e("v_lshl_add_u32 v1, v2, 4, v1"); e(f"s_lshl_b32 s{S_SB}, s{S_R}, 7"); e(f"v_add_u32 v{V_WSRC}, s{S_SB}, v1")
    e("v_lshrrev_b32 v1, 5, v0"); e("v_bfe_u32 v2, v0, 2, 2")
    e("v_lshl_add_u32 v1, v1, 3, v2"); e("v_lshlrev_b32 v1, 7, v1")
    e("v_bfe_u32 v3, v0, 4, 1"); e("v_lshl_add_u32 v1, v3, 5, v1"); e("v_and_b32 v3, 3, v0"); e("v_lshl_add_u32 v1, v3, 3, v1")
    e("v_lshrrev_b32 v2, 1, v2"); e("v_lshl_add_u32 v1, v2, 6, v1")
    e(f"v_add_u32 v{V_TR0}, {D0}, v1"); e(f"v_xor_b32 v{V_TR1}, 64, v{V_TR0}")
    e(f"s_mul_i32 s{S_PO}, s{S_G}, 13"); e(f"s_add_u32 s{S_PO}, s{S_PO}, s{S_R}"); e(f"s_lshl_b32 s{S_PO}, s{S_PO}, 2"); e(f"s_add_u32 s{S_PO}, s{S_PO}, s{S_J}")
    e(f"s_lshl_b32 s{S_PO}, s{S_PO}, 8"); e(f"s_add_u32 s{S_PO}, s{S_PO}, {WS_PART}")
    e("v_bfe_u32 v60, v0, 3, 2"); e("v_and_b32 v61, 3, v0"); e("v_lshl_add_u32 v60, v60, 2, v61"); e("v_mul_u32_u24 v245, 1792, v60")
    e("v_bfe_u32 v60, v0, 2, 1"); e("v_lshl_add_u32 v245, v60, 4, v245"); e(f"v_lshl_add_u32 v245, v{V_H16}, 1, v245")
    e(f"s_lshl_b32 s{S_T}, s{S_J}, 6"); e(f"s_add_u32 s{S_T}, s{S_T}, {D0}"); e(f"v_add_u32 v245, s{S_T}, v245")
    e("v_lshlrev_b32 v246, 4, v0"); e(f"v_lshl_add_u32 v246, v{V_H16}, 5, v246")
    e(f"s_lshl_b32 s{S_XB}, s{S_G}, 2"); e(f"s_lshr_b32 s{S_T}, s{S_R}, 2"); e(f"s_add_u32 s{S_XB}, s{S_XB}, s{S_T}"); e(f"s_mul_i32 s{S_XB}, s{S_XB}, 106496")
    e(f"s_bfe_u32 s{S_T}, s{S_R}, 0x10001"); e(f"s_lshl_b32 s{S_T}, s{S_T}, 11"); e(f"s_add_u32 s{S_XB}, s{S_XB}, s{S_T}")
    e(f"s_and_b32 s{S_T}, s{S_R}, 1"); e(f"s_lshl_b32 s{S_T}, s{S_T}, 9"); e(f"s_add_u32 s{S_XB}, s{S_XB}, s{S_T}")
    e(f"s_lshl_b32 s{S_T}, s{S_J}, 12"); e(f"s_add_u32 s{S_XB}, s{S_XB}, s{S_T}"); e(f"s_add_u32 s{S_XB}, s{S_XB}, {WS_X}")
    for t in range(7):
        g.vmwait(f"w0_{t}")
        a = HX + 16 * t; w = W0R + 8 * t
        e(f"v_mfma_f32_32x32x16_bf16 {vr(a,16)}, {vr(w,4)}, {vr(ID,4)}, 0")
        e(f"v_mfma_f32_32x32x16_bf16 {vr(a,16)}, {vr(w+4,4)}, {vr(ID+4,4)}, {vr(a,16)}")
        e(f"v_mfma_f32_32x32x16_bf16 {vr(a,16)}, {vr(ID,4)}, {vr(w,4)}, {vr(a,16)}")
        e(f"v_mfma_f32_32x32x16_bf16 {vr(a,16)}, {vr(ID+4,4)}, {vr(w+4,4)}, {vr(a,16)}")
        if t > 0: s0_max(g, t - 1)
    s0_max(g, 6)
    put_max(g, M_S0)
    g.vmwait("rst")
    e(f"v_mov_b32 v{V_CNT}, {M_CNT}")
    arrive(g, "S0M")
    e("v_mov_b32 v35, 1"); e(f"s_lshl_b32 s{S_E3}, s{S_G}, 2")
    g.vm(f"buffer_store_dword v35, v34, {sr(S_DBG)}, s{S_E3} offen offset:{C_RDY} sc1", "rdy")
    lwait(g, "S0M")
    g.stamp(); g.stamp("h")
    get_max(g, M_S0)
    e("v_lshlrev_b32 v3, 4, v0"); e(f"v_mov_b32 v{PK}, 0")
    e(f"ds_write_b32 v3, v{PK} offset:{BUFA + 22*S0STR + 12}")
    e("v_lshrrev_b32 v1, 23, v1")
    e("v_max_u32 v1, 14, v1")
    e("v_sub_u32 v2, 141, v1")
    e("v_subrev_u32 v1, 141, v1")
    e(f"ds_write_b32 v3, v1 offset:{BUFA + 23*S0STR + 512}")
    for t in range(7): e(f"v_ldexp_f32 v{QS+t}, v{QS+t}, v2")
    for t in range(7):
        if t == 6:
            e(f"s_cmp_eq_u32 s{S_J}, 1"); e(f"s_cselect_b32 s{S_T}, 48, 0")
            for i in range(7): e(f"v_add_u32 v{QA+i}, s{S_T}, v{QA+i}")
        if t in (0, 2, 4, 6): g.stamp("h")
        pack_round(g, HX + 16 * t, 16 * (8 * (t >> 1) + 4 * (t & 1)))
    arrive(g, "S0OK")
    g.stamp(); g.stamp("s"); g.stamp("h")
    DR = HX; XS = HX + 64; PS = 60
    def xpub():
        lwait(g, "RAW")
        for t in range(7): e(f"ds_read_b128 {vr(XS+4*t,4)}, v245 offset:{256*t}")
        e(f"s_cmp_ge_u32 s{S_J}, 2"); e(f"s_cselect_b32 s{S_T}, {OOB}, 0"); e(f"v_add_u32 v245, s{S_T}, v246")
        for t in range(7):
            e(f"s_waitcnt lgkmcnt({6-t})")
            g.vm(f"buffer_store_dwordx4 {vr(XS+4*t,4)}, v{246 if t < 6 else 245}, {sr(S_WS)}, s{S_XB} offen sc1", "xst")
            e(f"s_add_u32 s{S_XB}, s{S_XB}, 16384")
        e(f"s_cmp_ge_u32 s{S_R}, 13"); e(f"s_cselect_b32 s{S_T}, {OOB}, 0")
        e(f"v_lshl_add_u32 v1, v0, 2, s{S_T}"); e("v_mov_b32 v3, -1")
        g.vm(f"buffer_store_dword v3, v1, {sr(S_WS)}, s{S_PO} offen sc1", "sent")
        presample(g, [(S_DBG, f"s{S_E3}", C_RDY, 1)], [28], "rdyl")
        e(f"v_lshrrev_b32 v1, 1, v{V_H16}")
        for a in range(2):
            for q in range(4):
                g.vm(f"buffer_load_dwordx2 {vr(BT+8*a+2*q,2)}, v1, {sr(S_B1)}, s{S_SB} offen offset:{64*a+16*q}", "bias")
        g.stamp("s")
    e(f"s_cmp_ge_u32 s{S_R}, 13"); e("s_cbranch_scc1 L_pe1")
    g.lab("L_pe1r")
    xpub()
    e(f"s_cmp_ge_u32 s{S_R}, 13"); e("s_cbranch_scc1 L_pe2")
    g.lab("L_pe2r")
    g.vmwait("rdyl")
    arrive(g, "XST")
    lwait(g, "XST", 8)
    e(f"s_cmp_lg_u32 s{S_J}, 0"); e("s_cbranch_scc1 L_nosig")
    poll(g, [(S_DBG, f"s{S_E3}", C_RDY, 1)], pre=[28])
    e("v_mov_b32 v1, 1")
    e(f"buffer_atomic_add v1, v{V_L0}, {sr(S_WS)}, s{S_CX} offen sc1")
    g.lab("L_nosig")
    g.stamp(); g.stamp("s")

def helper_dnn(g):
    e = g.e
    CH = PAR.chunks; NS = PAR.nslot
    def xb(f, tile, t): return HX + 16 * (f % NS) + 8 * tile + 4 * t
    def xload(f):
        rotf(g, f, S_T + 2); e(f"s_lshl_b32 s{S_T+2}, s{S_T+2}, 12"); e(f"s_add_u32 s{S_T+2}, s{S_T+2}, s{S_XB}")
        for tile in range(2):
            for t in range(2):
                g.vm(f"buffer_load_dwordx4 {vr(xb(f,tile,t),4)}, v2, {sr(S_WS)}, s{S_T+2} offen offset:{2048*tile+1024*t} {PAR.ld}", f"x{f}")
    dma_w(g, 0)
    dma_w(g, 1)
    g.vmwait("bias")
    for a in range(2):
        for i in range(8):
            e(f"v_lshlrev_b32 v{HACC+16*a+2*i}, 16, v{BT+8*a+i}")
            e(f"v_and_b32 v{HACC+16*a+2*i+1}, 0xffff0000, v{BT+8*a+i}")
    for i in range(32): e(f"v_mov_b32 v{HACC+32+i}, v{HACC+i}")
    e(f"s_lshl_b32 s{S_XB}, s{S_G}, 2"); e(f"s_add_u32 s{S_XB}, s{S_XB}, s{S_J}"); e(f"s_mul_i32 s{S_XB}, s{S_XB}, 106496"); e(f"s_add_u32 s{S_XB}, s{S_XB}, {WS_X}")
    poll1(g, [CHK_X()], "FX")
    g.stamp("s")
    g.stamp()
    e("v_bfe_u32 v2, v0, 2, 3"); e("v_lshlrev_b32 v2, 7, v2"); e(f"v_lshl_add_u32 v2, v{V_H16}, 2, v2"); e("v_and_b32 v3, 3, v0"); e("v_lshl_add_u32 v2, v3, 4, v2")
    for f in range(NS): xload(f)
    FL = 232
    W2R = 232 + 0
    wring = [0]
    def loc(ks):
        f = ks // 2; c = max(i for i in range(4) if F0(i) <= f)
        return c, ks - 2 * F0(c)
    def wread(ks):
        c, kl = loc(ks)
        Dc = (D0, D1)[c & 1]
        base = HW_ + 8 * (wring[0] % 3); wring[0] += 1
        for a, ad in ((0, V_TR0), (1, V_TR1)):
            for rd in range(2):
                e(f"ds_read_b64_tr_b16 {vr(base+4*a+2*rd,2)}, v{ad} offset:{Dc - D0 + kl*2048 + rd*512}")
        return base
    CK2 = [(S_DBG, "0", C_L[2], 11)]; CKQ = [(S_DBG, "0", C_Q, 9)]; CK3 = [(S_DBG, "0", C_L[3], 11)]
    def act_l2():
        lwait(g, "AFREE"); g.vmwait("f2"); poll1(g, CK2, "F2", pre=[196]); dma_img(g, "L2", 44, BUFA)
    after = {}
    def add(f, fn): after.setdefault(f, []).append(fn)
    add(PAR.l2pos - 2, lambda: presample(g, CK2, [196], "f2"))
    add(PAR.l2pos, act_l2)
    add(PAR.l2pos + 4, lambda: (g.vmwait("L2"), arrive(g, "L2OK")))
    add(F0(1), lambda: (lwait(g, "C0"), dma_w(g, 2)))
    add(F0(3) - 3, lambda: presample(g, CKQ + CK3, [196, 197], "fq"))
    g.vmwait("W1"); arrive(g, "W01"); lwait(g, "W01")
    for c in range(4):
        k0 = 2 * F0(c); k1 = 2 * F0(c + 1)
        bufs = {k0: wread(k0), k0 + 1: wread(k0 + 1)}
        for ks in range(k0, k1):
            f, t = divmod(ks, 2)
            if t == 0: g.vmwait(f"x{f}")
            e(f"s_waitcnt lgkmcnt({4 if ks + 1 < k1 else 0})")
            for a in range(2):
                for tile in range(2):
                    acc = HACC + 32 * tile + 16 * a
                    e(f"v_mfma_f32_32x32x16_bf16 {vr(acc,16)}, {vr(bufs[ks]+4*a,4)}, {vr(xb(f,tile,t),4)}, {vr(acc,16)}")
                if a == 0 and ks + 2 < k1: bufs[ks + 2] = wread(ks + 2)
            if t == 1:
                if f + NS < 26: xload(f + NS)
                for fn in after.get(f, []): fn()
        if c == 0: arrive(g, "C0"); g.stamp()
        if c == 1:
            g.vmwait("W2"); arrive(g, "C1"); lwait(g, "C1"); dma_w(g, 3)
        if c == 2:
            g.vmwait("W3"); arrive(g, "C2"); lwait(g, "C2")
            if not PAR.qlate: g.vmwait("fq"); poll1(g, CKQ, "FQ", pre=[196]); dma_img(g, "Q4", 28, D0)
            e(f"v_lshrrev_b32 v1, 1, v{V_H16}")
            for a in range(2):
                for q in range(4):
                    g.vm(f"buffer_load_dwordx2 {vr(W2R+8*a+2*q,2)}, v1, {sr(S_W2)}, s{S_SB} offen offset:{64*a+16*q}", "w2")
    if PAR.qlate: g.vmwait("fq"); poll1(g, CKQ, "FQ", pre=[196]); dma_img(g, "Q4", 28, D0)
    e("s_waitcnt vmcnt(0)"); arrive(g, "QOK")
    g.stamp()
    e("s_setprio 0")
    W2F = HX
    for i in range(16):
        e(f"v_lshlrev_b32 v{W2F+2*i}, 16, v{W2R+i}")
        e(f"v_and_b32 v{W2F+2*i+1}, 0xffff0000, v{W2R+i}")
    c0 = 2 * 0.7978845608028654 * 1.4426950408889634
    e(f"s_mov_b32 s{S_C1}, {f2u(c0*0.044715):#x}")
    e(f"v_mov_b32 v2, {f2u(c0):#x}")
    T = HX + 32; SUM = HX + 48
    for i in range(4): e(f"v_mov_b32 v{SUM+i}, 0")
    def gelu(blk):
        rs = [HACC + 4 * blk + i for i in range(4)]
        tile = (4 * blk) // 32
        for i, r in enumerate(rs): e(f"v_mul_f32 v{T+i}, v{r}, v{r}")
        for i, r in enumerate(rs): e(f"v_fma_f32 v{T+i}, v{T+i}, s{S_C1}, v2")
        for i, r in enumerate(rs): e(f"v_mul_f32 v{T+i}, v{T+i}, v{r}")
        for i, r in enumerate(rs): e(f"v_exp_f32 v{T+i}, -v{T+i}")
        for i, r in enumerate(rs): e(f"v_mul_f32 v{r}, v{r}, v{W2F + (r - HACC) % 32}")
        for i, r in enumerate(rs): e(f"v_add_f32 v{T+i}, 1.0, v{T+i}")
        for i, r in enumerate(rs): e(f"v_rcp_f32 v{T+i}, v{T+i}")
        for i, r in enumerate(rs): e(f"v_fmac_f32 v{SUM + 2*tile + (i&1)}, v{r}, v{T+i}")
    for blk in range(16):
        if blk == PAR.gsplit:
            lwait(g, "BFREE"); poll1(g, CK3, "F3", pre=[197]); dma_img(g, "L3", 44, BUFB)
        if blk == PAR.gsplit2:
            e("s_waitcnt vmcnt(0)"); arrive(g, "L3OK")
        gelu(blk)
    e(f"v_add_f32 v{SUM}, v{SUM}, v{SUM+1}"); e(f"v_add_f32 v{SUM+2}, v{SUM+2}, v{SUM+3}")
    e(f"v_permlane32_swap_b32 v{SUM}, v{SUM+2}")
    e(f"v_add_f32 v{SUM}, v{SUM}, v{SUM+2}")
    e(f"v_min_u32 v{SUM}, -2, v{SUM}")
    e("v_lshlrev_b32 v1, 2, v0")
    e(f"buffer_store_dword v{SUM}, v1, {sr(S_WS)}, s{S_PO} offen sc1")
    g.stamp()
    g.flush_stamps(4, 5)
    e("s_endpgm")

def gsignal(g, c, off, so="0"):
    e = g.e; done = g.newlab("sg")
    e("s_waitcnt vmcnt(0)"); arrive(g, c)
    e(f"s_cmp_lg_u32 s{S_J}, 0"); e(f"s_cbranch_scc1 {done}")
    lwait(g, c)
    e("v_mov_b32 v1, 1")
    e(f"buffer_atomic_add v1, v{V_L0}, {sr(S_DBG)}, {so} offen offset:{off} sc1")
    g.lab(done)
SCN, FR, WV, WP, W1V, AQ, RW = 68, 104, 32, 33, 160, 44, 180
QAR = lambda i: (64 + i) if i < 4 else (240 + i)
S_E4, S_LW = 62, 63
def prod_early1(g):
    e = g.e
    g.lab("L_pe1")
    e(f"s_mul_i32 s{S_WP}, s{S_G}, 3"); e(f"s_add_u32 s{S_WP}, s{S_WP}, s{S_R}"); e(f"s_sub_u32 s{S_WP}, s{S_WP}, 13")
    e(f"s_cmp_ge_u32 s{S_WP}, 31"); e("s_cbranch_scc1 L_pe1r")
    e(f"s_mul_i32 s{S_L}, s{S_WP}, 94"); e(f"s_lshr_b32 s{S_L}, s{S_L}, 10")
    e(f"s_mul_i32 s{S_T}, s{S_L}, 11"); e(f"s_sub_u32 s{S_FR}, s{S_WP}, s{S_T}"); e(f"s_lshl_b32 s{S_FR}, s{S_FR}, 2"); e(f"s_add_u32 s{S_FR}, s{S_FR}, s{S_J}")
    e(f"s_add_u32 s{S_L}, s{S_L}, 2")
    e(f"s_mul_i32 s{S_E2}, s{S_L}, {LB}")
    e(f"s_add_u32 s{S_LC+2}, s{S_E2}, {LB}")
    e("v_lshlrev_b32 v1, 4, v0")
    e(f"s_mul_i32 s{S_T}, s{S_J}, 9216"); e(f"s_add_u32 s{S_T}, s{S_T}, s{S_E2}")
    for i in range(9):
        if i % 4 == 0 and i: e(f"s_add_u32 s{S_T}, s{S_T}, 4096")
        e(f"buffer_load_dwordx4 {vr(SCN+4*i,4)}, v1, {sr(S_LC)}, s{S_T} offen offset:{(i%4)*1024}")
    e(f"s_cmp_ge_u32 s{S_WP}, 22"); e("s_cbranch_scc1 L_pe1r")
    e(f"s_lshl_b32 s{S_T}, s{S_FR}, 4"); e(f"s_add_u32 s{S_T}, s{S_T}, s{S_E2}")
    e(f"buffer_load_dwordx4 {vr(FR,4)}, v27, {sr(S_LC)}, s{S_T} offen")
    e(f"v_lshlrev_b32 v1, 1, v{V_HROW}"); e(f"s_mul_i32 s{S_T}, s{S_L}, 52")
    e(f"buffer_load_ushort v{WV}, v1, {sr(S_WO)}, s{S_T} offen")
    e(f"buffer_load_ushort v{WP}, v1, {sr(S_WO)}, 52 offen")
    e("v_lshrrev_b32 v3, 5, v0"); e("v_mul_u32_u24 v3, 26, v3")
    for i in range(8):
        e(f"s_lshl_b32 s{S_T}, s{S_FR}, 3"); e(f"s_sub_u32 s{S_T}, s{S_T}, {8*42 + 2 - i}")
        e(f"s_lshl_b32 s{S_T+1}, s{S_T}, 1"); e(f"s_add_u32 s{S_T+1}, s{S_T+1}, 52")
        e(f"s_cmp_lt_u32 s{S_T}, 13"); e(f"s_cselect_b32 s{S_T+1}, s{S_T+1}, {OOB}")
        e(f"v_add_u32 v2, s{S_T+1}, v3")
        e(f"buffer_load_ushort v{W1V+i}, v2, {sr(S_WO)}, 0 offen")
    e("s_branch L_pe1r")
def prod_early2(g):
    e = g.e
    g.lab("L_pe2")
    e(f"s_cmp_ge_u32 s{S_WP}, 31"); e("s_cbranch_scc1 L_pe2r")
    e("s_setprio 2")
    e("s_waitcnt vmcnt(17)")
    for i in range(36): e(f"v_and_b32 v{SCN+i}, s{S_MASK}, v{SCN+i}")
    pkmax(g, [SCN + i for i in range(36)])
    put_max(g, M_SC)
    arrive(g, "SCM"); lwait(g, "SCM")
    get_max(g, M_SC)
    e(f"v_readfirstlane_b32 s{S_E0}, v1")
    e(f"s_bfe_u32 s{S_E0}, s{S_E0}, 0x80007")
    e(f"s_cmp_ge_u32 s{S_WP}, 22"); e("s_cbranch_scc1 L_pe2r")
    g.lab("L_gjob")
    e(f"s_max_u32 s{S_T+2}, s{S_E0}, 30"); e(f"s_sub_u32 s{S_T+2}, s{S_T+2}, 30")
    e(f"s_mul_i32 s{S_T+3}, s{S_T+2}, 0x800080")
    e(f"s_cmp_lt_u32 s{S_FR}, 42"); e(f"s_cselect_b32 s{S_T+1}, -1, 0")
    for i in range(1, 4): e(f"v_and_b32 v{FR+i}, s{S_T+1}, v{FR+i}")
    e(f"s_cmp_lt_u32 s{S_FR}, 43"); e(f"s_cselect_b32 s{S_T+1}, -1, 0"); e(f"v_and_b32 v{FR}, s{S_T+1}, v{FR}")
    for i in range(4): e(f"v_alignbit_b32 v{FR+i}, v{FR+i}, v{FR+i}, v{V_H16}")
    for i in range(4): e(f"v_and_b32 v{SCN+i}, s{S_MASK}, v{FR+i}")
    for i in range(4): e(f"v_pk_sub_u16 v{SCN+i}, v{SCN+i}, s{S_T+3} clamp")
    for i in range(4): e(f"v_lshlrev_b32 v{SCN+i}, 3, v{SCN+i}")
    for i in range(4): e(f"v_bfi_b32 v{FR+i}, s{S_MASK}, v{SCN+i}, v{FR+i}")
    e(f"v_lshlrev_b32 v{WV}, 16, v{WV}")
    e(f"v_and_b32 v1, 0x7fffffff, v{WV}")
    wavemax_exp(g, 1, S_E1)
    e(f"s_add_u32 s{S_E1}, s{S_E1}, 5"); e(f"s_sub_u32 s{S_T}, 0, s{S_E1}")
    e(f"v_ldexp_f32 v{WV}, v{WV}, s{S_T}")
    for i in range(8):
        sel = "op_sel:[1,0,0] op_sel_hi:[1,0,0]" if i & 1 else "op_sel_hi:[1,0,0]"
        e(f"v_fma_mix_f32 v{SCN+i}, v{FR+(i>>1)}, v{WV}, 0 {sel}")
    for sh in (1, 2, 4, 8):
        for i in range(8): e(f"v_add_f32_dpp v{SCN+i}, v{SCN+i}, v{SCN+i} row_shr:{sh} {DPPALL} bound_ctrl:0")
    for i in range(8): e(f"v_add_f32_dpp v{SCN+i}, v{SCN+i}, v{SCN+i} row_bcast:15 row_mask:0xa bank_mask:0xf")
    for i in range(4): e(f"v_cvt_pk_f16_f32 v{SCN+2*i}, v{SCN+2*i}, v{SCN+2*i+1}")
    e("v_and_b32 v2, 31, v0"); e("v_cmp_eq_u32 vcc, 31, v2")
    for i in range(4): e(f"v_cndmask_b32 v{FR+i}, v{FR+i}, v{SCN+2*i}, vcc")
    e(f"v_lshlrev_b32 v1, 16, v{WP}"); e("v_and_b32 v1, 0x7fffffff, v1")
    wavemax_exp(g, 1, S_E4)
    e(f"s_sub_u32 s{S_T}, 15, s{S_E4}")
    for i in range(8): e(f"v_lshlrev_b32 v{W1V+i}, 16, v{W1V+i}")
    for i in range(8): e(f"v_ldexp_f32 v{W1V+i}, v{W1V+i}, s{S_T}")
    for i in range(4): e(f"v_cvt_pk_f16_f32 v{W1V+2*i}, v{W1V+2*i}, v{W1V+2*i+1}")
    e("v_cmp_eq_u32 vcc, 30, v2")
    for i in range(4): e(f"v_cndmask_b32 v{FR+i}, v{FR+i}, v{W1V+2*i}, vcc")
    e(f"s_cmp_lg_u32 s{S_FR}, 0"); e("s_cbranch_scc1 L_nohdr")
    e(f"s_sub_u32 s{S_T+2}, s{S_T+2}, 112"); e(f"s_add_u32 s{S_E1}, s{S_E1}, s{S_T+2}"); e(f"s_sub_u32 s{S_E4}, s{S_E4}, 15")
    e(f"v_writelane_b32 v{FR}, s{S_T+2}, 29"); e(f"v_writelane_b32 v{FR+1}, s{S_E1}, 29"); e(f"v_writelane_b32 v{FR+2}, s{S_E4}, 29")
    g.lab("L_nohdr")
    e(f"s_mul_i32 s{S_T}, s{S_L}, {44*1024}"); e(f"s_lshl_b32 s{S_T+1}, s{S_FR}, 10"); e(f"s_add_u32 s{S_T}, s{S_T}, s{S_T+1}")
    e(f"s_sub_u32 s{S_T}, s{S_T}, {88*1024 - IMG['L2']}")
    e("v_lshlrev_b32 v1, 4, v0")
    e(f"buffer_store_dwordx4 {vr(FR,4)}, v1, {sr(S_WS)}, s{S_T} offen sc1")
    e("s_nop 1")
    e("s_branch L_pe2r")
def helper_prod(g):
    e = g.e
    e(f"s_cmp_ge_u32 s{S_WP}, 31"); e("s_cbranch_scc1 L_idle")
    e(f"s_cmp_ge_u32 s{S_WP}, 22"); e("s_cbranch_scc1 L_nog")
    e(f"s_lshl_b32 s{S_T+2}, s{S_L}, 2"); e(f"s_sub_u32 s{S_T+2}, s{S_T+2}, 8")
    gsignal(g, "GST", 0, f"s{S_T+2}")
    e("s_branch L_idle")
    g.lab("L_nog")
    e("v_and_b32 v2, 31, v0"); e("v_lshrrev_b32 v3, 5, v0")
    e("v_mul_u32_u24 v1, 676, v3"); e("v_add_lshl_u32 v1, v1, v2, 1")
    e(f"s_mul_i32 s{S_T}, s{S_FR}, 52"); e(f"s_add_u32 s{S_T}, s{S_T}, {4*LB}")
    for s in range(13):
        e(f"buffer_load_ushort v{W1V+s}, v1, {sr(S_LC)}, s{S_T} offen")
        e(f"s_add_u32 s{S_T}, s{S_T}, 2704")
    e(f"s_cmp_eq_u32 s{S_WP}, 29"); e(f"s_cselect_b32 s{S_LW}, 4, 5"); e(f"s_cmp_eq_u32 s{S_WP}, 30"); e(f"s_cselect_b32 s{S_LW}, 0, s{S_LW}")
    e(f"s_mul_i32 s{S_E2}, s{S_LW}, {LB}"); e(f"s_add_u32 s{S_LC+2}, s{S_E2}, {LB}")
    e("v_lshlrev_b32 v1, 1, v0"); e("v_cmp_lt_u32 vcc, 25, v0"); e(f"v_mov_b32 v2, {OOB}"); e("v_cndmask_b32 v1, v1, v2, vcc")
    e(f"s_mul_i32 s{S_T}, s{S_LW}, 52")
    e(f"buffer_load_ushort v{WV}, v1, {sr(S_WO)}, s{S_T} offen")
    e("v_lshlrev_b32 v1, 4, v0")
    e(f"s_mul_i32 s{S_T}, s{S_J}, 1352"); e(f"s_add_u32 s{S_T}, s{S_T}, s{S_E2}")
    for t in range(7):
        for ps in range(2):
            e(f"buffer_load_dwordx4 {vr(RW+8*t+4*ps,4)}, v1, {sr(S_LC)}, s{S_T} offen offset:{1024*ps}")
        e(f"s_add_u32 s{S_T}, s{S_T}, {4*1352}")
    e("s_waitcnt vmcnt(0)")
    AC = HX; TU = HX + 16
    for t in range(6): e(f"v_lshl_or_b32 v{QAR(t)}, v{W1V+2*t+1}, 16, v{W1V+2*t}")
    e(f"v_mov_b32 v{QAR(6)}, v{W1V+12}"); e(f"v_mov_b32 v{QAR(7)}, 0")
    g.stamp("q")
    e(f"v_lshlrev_b32 v{WV}, 16, v{WV}"); e(f"v_and_b32 v1, 0x7fffffff, v{WV}")
    wavemax_exp(g, 1, S_E1)
    e(f"s_sub_u32 s{S_T}, 0, s{S_E1}"); e(f"v_ldexp_f32 v{WV}, v{WV}, s{S_T}")
    for i in range(16): e(f"v_mov_b32 v{AC+i}, 0")
    for t in range(7):
        e(f"s_add_u32 s{S_T}, s{S_J}, {4*t}")
        e(f"v_readlane_b32 s{S_T+1}, v{WV}, s{S_T}")
        for i in range(8):
            e(f"v_lshlrev_b32 v{TU+2*i}, 16, v{RW+8*t+i}"); e(f"v_and_b32 v{TU+2*i+1}, 0xffff0000, v{RW+8*t+i}")
        for i in range(16): e(f"v_fmac_f32 v{AC+i}, s{S_T+1}, v{TU+i}")
    PSTR = 4096
    e(f"s_mul_i32 s{S_T}, s{S_J}, {PSTR}"); e(f"s_add_u32 s{S_T}, s{S_T}, {D0}")
    e(f"v_lshl_add_u32 v1, v0, 5, s{S_T}")
    for ps in range(2):
        for hf in range(2): e(f"ds_write_b128 v1, {vr(AC+8*ps+4*hf,4)} offset:{2048*ps+16*hf}")
    g.stamp("q"); arrive(g, "WC"); lwait(g, "WC"); g.stamp("q")
    e(f"s_cmp_eq_u32 s{S_FR}, 28"); e("s_cbranch_scc1 L_lin")
    e(f"s_cmp_lt_u32 s{S_FR}, 26"); e("s_cbranch_scc1 L_q")
    e(f"s_cmp_lg_u32 s{S_FR}, 32"); e("s_cbranch_scc1 L_noq")
    g.lab("L_q")
    BQ, PT, DQ = HX + 16, HX + 32, HX + 96
    e("v_and_b32 v2, 31, v0"); e("v_lshrrev_b32 v3, 5, v0")
    e("v_mad_u32_u24 v1, v3, 26, v2"); e("v_lshlrev_b32 v1, 2, v1"); e(f"v_add_u32 v1, {D0}, v1")
    def readsum(stride):
        for pj in range(4):
            for s in range(13): e(f"ds_read_b32 v{PT+13*pj+s}, v1 offset:{PSTR*pj + stride*s}")
            if pj: e("s_waitcnt lgkmcnt(13)")
        e("s_waitcnt lgkmcnt(0)")
        for s in range(13):
            e(f"v_add_f32 v{PT+s}, v{PT+s}, v{PT+13+s}"); e(f"v_add_f32 v{PT+26+s}, v{PT+26+s}, v{PT+39+s}")
        for s in range(13): e(f"v_add_f32 v{BQ+s}, v{PT+s}, v{PT+26+s}")
    def max13():
        e(f"v_max3_f32 v1, |v{BQ}|, |v{BQ+1}|, |v{BQ+2}|")
        for s in range(3, 13, 2): e(f"v_max3_f32 v1, v1, |v{BQ+s}|, |v{BQ+s+1}|")
    readsum(208)
    e("v_cmp_gt_u32 vcc, 26, v2")
    for s in range(13): e(f"v_cndmask_b32 v{BQ+s}, 0, v{BQ+s}, vcc")
    max13()
    wavemax_exp(g, 1, S_E2)
    e(f"s_sub_u32 s{S_T}, 0, s{S_E2}")
    for s in range(13): e(f"v_ldexp_f32 v{BQ+s}, v{BQ+s}, s{S_T}")
    e(f"s_max_u32 s{S_E0}, s{S_E0}, 10"); e(f"s_sub_u32 s{S_E0}, s{S_E0}, 126")
    BH, BL = PT, PT + 8
    e(f"v_mov_b32 v{BQ+13}, 0"); e(f"v_mov_b32 v{BH+7}, 0"); e(f"v_mov_b32 v{BL+7}, 0")
    for t in range(7): e(f"v_cvt_pk_bf16_f32 v{BH+t}, v{BQ+2*t}, v{BQ+2*t+1}")
    for t in range(7):
        e(f"v_lshlrev_b32 v{PT+16+2*t}, 16, v{BH+t}"); e(f"v_and_b32 v{PT+17+2*t}, 0xffff0000, v{BH+t}")
    for t in range(14): e(f"v_sub_f32 v{BQ+t}, v{BQ+t}, v{PT+16+t}")
    for t in range(7): e(f"v_cvt_pk_bf16_f32 v{BL+t}, v{BQ+2*t}, v{BQ+2*t+1}")
    e(f"s_cmp_ge_u32 s{S_FR}, 13"); e(f"s_cselect_b32 s{S_T+1}, 13, 0"); e(f"s_cselect_b32 s{S_T+2}, 4, 0")
    e(f"s_sub_u32 s{S_T+1}, s{S_FR}, s{S_T+1}"); e(f"s_and_b32 s{S_T+3}, s{S_T+1}, 3"); e(f"s_add_u32 s{S_T+2}, s{S_T+2}, s{S_T+3}")
    e(f"s_lshr_b32 s{S_T+1}, s{S_T+1}, 2"); e(f"s_lshl_b32 s{S_T+1}, s{S_T+1}, 3"); e(f"s_add_u32 s{S_SB}, s{S_T+2}, s{S_T+1}")
    e(f"s_mov_b32 s{S_L}, 0")
    e(f"s_cmp_lg_u32 s{S_FR}, 32"); e("s_cbranch_scc1 L_q2")
    e("v_sub_u32 v1, v2, v3")
    for s in range(13):
        e(f"v_cmp_eq_u32 vcc, {2*s}, v1"); e(f"v_cndmask_b32 v{AQ+s}, 0, 1.0, vcc")
    e(f"v_mov_b32 v{AQ+13}, 0")
    for t in range(7): e(f"v_cvt_pk_bf16_f32 v{QAR(t)}, v{AQ+2*t}, v{AQ+2*t+1}")
    e(f"s_mov_b32 s{S_E0}, 0"); e(f"s_mov_b32 s{S_SB}, 31"); e(f"s_mov_b32 s{S_L}, 8")
    g.lab("L_q2")
    g.stamp("q")
    e("s_nop 1")
    first = True
    for bb in (BL, BH):
        for ks in range(2):
            e(f"v_mfma_f32_32x32x16_bf16 {vr(DQ,16)}, {vr(QAR(4*ks),4)}, {vr(bb+4*ks,4)}, {'0' if first else vr(DQ,16)}"); first = False
            e(f"v_mfma_f32_32x32x16_bf16 {vr(DQ,16)}, {vr(bb+4*ks,4)}, {vr(QAR(4*ks),4)}, {vr(DQ,16)}")
    e(f"v_max_f32 v1, v{QS}, v{QS+1}")
    e(f"s_sub_u32 s{S_T}, 137, s{S_E0}"); e(f"s_lshl_b32 s{S_T}, s{S_T}, 23"); e(f"v_mov_b32 v30, s{S_T}"); e("v_mul_f32 v31, 0.5, v30")
    for t in range(7):
        e(f"v_cmp_eq_f32 vcc, v1, v{QS+t}"); e(f"v_cndmask_b32 v{QS+t}, v31, v30, vcc")
    e(f"s_cmp_eq_u32 s{S_J}, 1"); e(f"s_cselect_b32 s{S_T}, 48, 0"); e(f"s_sub_u32 s{S_T}, {D1 - BUFA}, s{S_T}")
    for t in range(7): e(f"v_add_u32 v{QA+t}, s{S_T}, v{QA+t}")
    e(f"v_mul_u32_u24 v1, {S0STR}, v2"); e("v_lshl_add_u32 v1, v3, 9, v1"); e(f"s_lshl_b32 s{S_T}, s{S_J}, 4"); e(f"s_add_u32 s{S_T}, s{S_T}, {D1}")
    e(f"v_min_u32 v1, {22*S0STR+512}, v1")
    e(f"v_add_u32 v1, s{S_T}, v1")
    e(f"v_lshl_add_u32 v28, v3, 9, s{S_T}"); e("v_mov_b32 v29, 0")
    e(f"ds_write_b32 v28, v29 offset:{22*S0STR+12}")
    pack_round(g, DQ, 0)
    g.stamp("q")
    e("s_waitcnt lgkmcnt(0)")
    e(f"ds_read_b128 {vr(AQ,4)}, v1")
    e("v_lshlrev_b32 v1, 10, v2"); e("v_lshl_add_u32 v1, v3, 9, v1"); e("v_cmp_lt_u32 vcc, 22, v2"); e(f"v_mov_b32 v28, {OOB}"); e("v_cndmask_b32 v1, v1, v28, vcc")
    e(f"s_lshl_b32 s{S_T}, s{S_SB}, 4"); e(f"s_add_u32 s{S_T}, s{S_T}, {IMG['Q4']}")
    e("s_waitcnt lgkmcnt(0)")
    e(f"buffer_store_dwordx4 {vr(AQ,4)}, v1, {sr(S_WS)}, s{S_T} offen sc1")
    e(f"s_add_u32 s{S_E0}, s{S_E0}, s{S_E2}"); e(f"s_add_u32 s{S_E0}, s{S_E0}, s{S_E1}"); e(f"s_sub_u32 s{S_E0}, s{S_E0}, 10")
    e(f"s_and_b32 s{S_T}, s{S_FR}, 31"); e(f"s_cmp_lg_u32 s{S_T}, 0"); e("s_cbranch_scc1 L_noq")
    g.lab("L_qh")
    e(f"v_mov_b32 v1, s{S_E0}"); e(f"s_add_u32 s{S_T}, s{S_L}, {IMG['Q4'] + 23*1024}")
    e(f"buffer_store_dword v1, v{V_L0}, {sr(S_WS)}, s{S_T} offen sc1")
    e("s_branch L_noq")
    g.lab("L_lin")
    e("v_lshrrev_b32 v3, 5, v0"); e(f"v_min_u32 v2, 25, v{V_HROW}")
    e("v_mad_u32_u24 v1, v2, 26, v3"); e("v_lshlrev_b32 v1, 2, v1"); e(f"v_add_u32 v1, {D0}, v1")
    readsum(8)
    e(f"v_cmp_gt_u32 vcc, 26, v{V_HROW}")
    for s in range(13): e(f"v_cndmask_b32 v{BQ+s}, 0, v{BQ+s}, vcc")
    max13()
    wavemax_exp(g, 1, S_E2)
    e(f"s_sub_u32 s{S_T}, 15, s{S_E2}")
    for s in range(13): e(f"v_ldexp_f32 v{BQ+s}, v{BQ+s}, s{S_T}")
    e(f"v_mov_b32 v{BQ+13}, 0"); e(f"v_mov_b32 v{AQ+7}, 0")
    for t in range(7): e(f"v_cvt_pk_f16_f32 v{AQ+t}, v{BQ+2*t}, v{BQ+2*t+1}")
    e("v_lshlrev_b32 v1, 4, v0"); e(f"s_mov_b32 s{S_T}, {IMG['Q4'] + 24*1024}")
    for s in range(2): e(f"buffer_store_dwordx4 {vr(AQ+4*s,4)}, v1, {sr(S_WS)}, s{S_T} offen offset:{1024*s} sc1")
    e(f"s_add_u32 s{S_E0}, s{S_E2}, s{S_E1}"); e(f"s_sub_u32 s{S_E0}, s{S_E0}, 15"); e(f"s_mov_b32 s{S_L}, 4")
    e("s_branch L_qh")
    g.lab("L_noq")
    g.stamp("q")
    gsignal(g, "QST", C_Q)
    g.stamp("q")
    lwait(g, "QST")
    g.lab("L_idle")
    g.stamp()
    lwait(g, "AFREE")
    poll1(g, [(S_DBG, "0", C_L[2], 11), CHK_X()], "F2")
    dma_img(g, "L2", 44, BUFA)
    e("s_waitcnt vmcnt(0)"); arrive(g, "L2OK")
    g.stamp()
    lwait(g, "L2OK")
    poll1(g, [(S_DBG, "0", C_Q, 9)], "FQ")
    dma_img(g, "Q4", 28, D0)
    e("s_waitcnt vmcnt(0)"); arrive(g, "QOK")
    g.stamp()
    lwait(g, "BFREE")
    poll1(g, [(S_DBG, "0", C_L[3], 11)], "F3")
    dma_img(g, "L3", 44, BUFB)
    e("s_waitcnt vmcnt(0)"); arrive(g, "L3OK")
    g.stamp()
    g.flush_stamps(4, 5)
    e("s_endpgm")

def build(stamps=False):
    g = G(stamps)
    prologue(g); n0 = g.nst
    cin(g)
    g.lab("L_helper"); g.nst = n0
    helper_common(g); n1 = g.nst
    g.e(f"s_cmp_ge_u32 s{S_R}, 13"); g.e("s_cbranch_scc1 L_helper_n")
    helper_dnn(g)
    g.lab("L_helper_n"); g.nst = n1
    helper_prod(g)
    prod_early1(g); prod_early2(g)
    g.L += g.tail
    g.lab("L_end"); g.e("s_endpgm")
    body, nops = fix_hazards(g.L)
    ref = open("standalone__deep_cross_xdeepfm__recsys.s.ref").read().split("\n")
    hdr = [l for l in ref if l.startswith(";") and "@launch" not in l and "Override" not in l and "grid=ceil" not in l]
    txt = "\n".join(hdr) + f"\n; @launch grid=(256,1,1) block=(512,1,1) lds={LDS_TOTAL}\n"
    txt += f'.amdgcn_target "amdgcn-amd-amdhsa--gfx950"\n.text\n.globl {KN}\n.p2align 8\n.type {KN},@function\n{KN}:\n'
    txt += "\n".join(body) + "\n"
    txt += f""".section .rodata,"a"
.p2align 6
.amdhsa_kernel {KN}
  .amdhsa_next_free_vgpr 256
  .amdhsa_next_free_sgpr 102
  .amdhsa_accum_offset 256
  .amdhsa_group_segment_fixed_size 0
  .amdhsa_kernarg_size 88
  .amdhsa_user_sgpr_count 2
  .amdhsa_user_sgpr_kernarg_segment_ptr 1
  .amdhsa_system_sgpr_workgroup_id_x 1
.end_amdhsa_kernel
"""
    return txt, nops
if __name__ == "__main__":
    for a in sys.argv[2:]:
        if "=" in a:
            k, v = a.split("="); setattr(PAR, k, eval(v))
    txt, nops = build(stamps="stamps" in sys.argv)
    open(sys.argv[1], "w").write(txt)
    print("nops inserted", nops, "lines", txt.count("\n"))
```

```python
import sys, struct
from asmlib import fix_hazards
KN = "standalone__deep_cross_xdeepfm__recsys_kernel"
def f2u(f): return struct.unpack('<I', struct.pack('<f', f))[0]
OOB = 0x40000000
SPIN = 200000
LB = 35152
IMG = {}
off = 0
for name, n in (("L2", 44), ("L3", 44), ("Q4", 28)):
    IMG[name] = off; off += n * 1024
WS_PART = off
WS_CNT = WS_PART + 16 * 13 * 1024
WS_STAMP = WS_CNT + 4096
WS_X = WS_STAMP + 256 * 8 * 64
C_L = {2: 0, 3: 4}; C_Q = 8; C_RDY = 128
BUFA, BUFB = 0, 45056
D0, D1 = 90112, 118784
MISC = 147456
LDS_TOTAL = MISC + 2560
M_S0, M_L1, M_SC, M_EW1, M_CNT = MISC, MISC + 64, MISC + 128, MISC + 192, MISC + 256
CNT = {n: M_CNT + 4 * i for i, n in enumerate(["XST", "L1M", "L1OK", "AFREE", "L2OK", "BFREE", "L3OK", "QOK", "W01", "C0", "C1", "C2", "SCM", "GST", "WC", "QST", "FX", "F2", "F3", "FQ", "S0OK", "S0M", "RAW"])}
CNT["AFREE"] = M_CNT + 4 * 28; CNT["BFREE"] = M_CNT + 4 * 29
S0STR = 1040
QPAIRS = [(p, q) for p in range(13) for q in range(p, 13)]
S_IDX, S_TAB, S_WS, S_W1, S_B1, S_W2, S_OUT, S_DBG, S_BO, S_WC, S_WO = 4, 8, 12, 16, 20, 24, 28, 32, 36, 40, 44
S_G, S_R, S_WAVE, S_J = 70, 71, 83, 3
S_HDR = 48
S_EX = 60
S_K = 64
S_K1 = 4
S_KC = 76
S_T = 72
S_MASK = 80
S_C1 = 81
S_SB = 82
S_ST = 84
class P: pass
PAR = P()
PAR.chunks = [7, 7, 6, 6]
PAR.gsplit = 0
PAR.gsplit2 = 6
PAR.lnpos = 27
PAR.pload = 37
PAR.xst = 2
PAR.l2pos = -3
PAR.nslot = 8
PAR.st = 'ad'
PAR.ld = 'sc1'
PAR.inv = 0
PAR.wpf2 = 0
PAR.ghi = 4
PAR.qchk = 12
PAR.cp = 3
PAR.enc = None
PAR.rate = 20
PAR.qrate = 32
PAR.clk = 0
PAR.hp = 0
PAR.nost = 0
PAR.wpf = 1
PAR.rot = 2
PAR.pf = 4
PAR.qlate = 0
PAR.slp = 8
PAR.de = 2
PAR.touch = 0
PAR.dbg = None
class G:
    def __init__(self, stamps=False):
        self.L = []; self.stamps = stamps; self.nst = 0; self.nl = 0; self.vmq = []; self.tail = []
    def e(self, s): self.L.append("    " + s)
    def lab(self, s): self.L.append(s + ":")
    def vm(self, s, tag): self.e(s); self.vmq.append(tag)
    def vmwait(self, *tags):
        idx = max(i for i, t in enumerate(self.vmq) if t in tags)
        n = len(self.vmq) - 1 - idx
        self.e(f"s_waitcnt vmcnt({min(n, 63)})")
    def newlab(self, s): self.nl += 1; return f"L_{s}_{self.nl}"
    def stamp(self, name=None):
        if self.stamps and (name or "d") in PAR.st:
            assert self.nst < 8
            self.e(f"{'s_memtime' if PAR.clk else 's_memrealtime'} s[{S_ST+2*self.nst}:{S_ST+2*self.nst+1}]"); self.nst += 1
    def flush_stamps(self, vt, va):
        if not self.stamps: return
        self.e("s_waitcnt lgkmcnt(0)")
        self.e(f"s_lshl_b32 s{S_T}, s2, 3"); self.e(f"s_add_u32 s{S_T}, s{S_T}, s{S_WAVE}"); self.e(f"s_lshl_b32 s{S_T}, s{S_T}, 6")
        self.e(f"s_add_u32 s{S_T}, s{S_T}, {WS_STAMP}")
        self.e(f"v_mov_b32 v{va}, 0")
        if PAR.dbg is not None:
            lb = self.newlab("nd")
            self.e(f"s_cmp_lg_u32 s{S_T}, {WS_STAMP + PAR.dbg*64}"); self.e(f"s_cbranch_scc1 {lb}")
            for i in range(self.nst):
                self.e(f"s_sub_u32 s{S_T+1}, s{S_ST+2*i}, s{S_ST}")
                self.e(f"v_mov_b32 v{vt}, s{S_T+1}")
                self.e(f"buffer_store_dword v{vt}, v{va}, s[{S_DBG}:{S_DBG+3}], 0 offen offset:{16+4*i}")
            self.lab(lb)
        for i in range(self.nst):
            self.e(f"v_mov_b32 v{vt}, s{S_ST+2*i}")
            self.e(f"buffer_store_dword v{vt}, v{va}, s[{S_WS}:{S_WS+3}], s{S_T} offen offset:{4*i}")
        self.nst = 0
def vr(a, n): return f"v[{a}:{a+n-1}]"
def sr(a, n=4): return f"s[{a}:{a+n-1}]"
DPPALL = "row_mask:0xf bank_mask:0xf"

def prologue(g):
    e = g.e
    e("s_cmp_ge_u32 s2, 256")
    e("s_cbranch_scc1 L_end")
    g.stamp("a")
    e("s_load_dwordx16 s[48:63], s[0:1], 0")
    e("s_load_dwordx4 s[64:67], s[0:1], 64")
    e("s_load_dwordx2 s[68:69], s[0:1], 80")
    if PAR.pf:
        e(f"s_getpc_b64 s[{S_KC}:{S_KC+1}]")
        g.lab("L_pfbase")
        e(f"s_mov_b32 s{S_KC+2}, L_end - L_pfbase"); e(f"s_mov_b32 s{S_KC+3}, 0x00020000")
        e(f"s_lshr_b32 s{S_T}, s2, 3"); e(f"s_lshl_b32 s{S_T}, s{S_T}, 7")
        e("v_xor_b32 v1, 0x1c0, v0"); e("v_lshlrev_b32 v1, 12, v1")
        e(f"buffer_load_dword v255, v1, {sr(S_KC)}, s{S_T} offen")
    e("v_lshrrev_b32 v1, 6, v0")
    e("v_and_b32 v0, 63, v0")
    e(f"v_readfirstlane_b32 s{S_WAVE}, v1")
    e(f"s_and_b32 s{S_T}, s2, 7")
    e(f"s_lshr_b32 s{S_T+1}, s2, 3")
    e(f"s_lshr_b32 s{S_G}, s{S_T+1}, 4")
    e(f"s_lshl_b32 s{S_T}, s{S_T}, 1")
    e(f"s_add_u32 s{S_G}, s{S_G}, s{S_T}")
    e(f"s_and_b32 s{S_R}, s{S_T+1}, 15")
    e(f"s_mov_b32 s{S_MASK}, 0x7fff7fff")
    e("v_and_b32 v25, 31, v0"); e("v_lshlrev_b32 v25, 2, v25"); e(f"v_add_u32 v25, {M_CNT}, v25"); e("v_mov_b32 v2, 0")
    e("ds_write_b32 v25, v2")
    srds = ((S_IDX, 48, 4096*104), (S_TAB, 50, 6400000), (S_WC, 52, LB), (S_WO, 54, 312), (S_W1, 56, 832*1664), (S_B1, 58, 1664), (S_W2, 60, 1664),
            (S_BO, 62, 2), (S_OUT, 64, 8192), (S_DBG, 66, 256), (S_WS, 68, 1 << 28))
    for srd, src, nbytes in srds:
        e(f"s_mov_b32 s{srd+2}, {nbytes}"); e(f"s_mov_b32 s{srd+3}, 0x00020000")
    e("s_waitcnt lgkmcnt(0)")
    for srd, src, nbytes in srds:
        e(f"s_mov_b64 s[{srd}:{srd+1}], s[{src}:{src+1}]")
    e(f"s_cmp_ge_u32 s{S_WAVE}, 4")
    e("s_cbranch_scc1 L_helper")

ACC, ACC2, XR, UR, BR, AR, SC, LG, TM = 4, 68, 132, 188, 216, 232, 244, 248, 252
def X(k, p): return XR + 14 * k + p
def EV(k): return XR + 14 * k + 13
def U(k, t): return UR + 7 * k + t
def cin(g):
    e = g.e
    e("s_setprio 1")
    e(f"s_lshl_b32 s{S_T}, s{S_G}, 8"); e(f"s_lshl_b32 s{S_T+1}, s{S_R}, 4"); e(f"s_add_u32 s{S_T}, s{S_T}, s{S_T+1}")
    e(f"s_lshl_b32 s{S_T+1}, s{S_WAVE}, 2"); e(f"s_add_u32 s{S_SB}, s{S_T}, s{S_T+1}")
    e(f"s_mul_i32 s{S_T}, s{S_SB}, 104")
    e("v_lshrrev_b32 v1, 4, v0")
    e("v_bfe_u32 v2, v0, 2, 2")
    e("v_and_b32 v3, 3, v0")
    e("v_mul_u32_u24 v4, 104, v1")
    e("v_mad_u32_u24 v4, v2, 28, v4")
    I = 8
    e(f"buffer_load_dwordx4 {vr(I,4)}, v4, {sr(S_IDX)}, s{S_T} offen")
    e(f"buffer_load_dwordx3 {vr(I+4,3)}, v4, {sr(S_IDX)}, s{S_T} offen offset:16")
    e("s_barrier")
    L1R = 132
    e(f"s_mov_b32 s{S_WC+2}, {2*LB}"); e(f"s_mov_b32 s{S_J}, s{S_WAVE}")
    e("v_lshlrev_b32 v26, 4, v0"); e(f"v_add_u32 v29, {BUFA + 28*1024}, v26"); e("v_cmp_lt_u32 vcc, 42, v0"); e(f"v_mov_b32 v6, {OOB}"); e("v_cndmask_b32 v26, v26, v6, vcc")
    e(f"s_mul_i32 s{S_T}, s{S_J}, 1352")
    for i in range(13):
        if i < 12:
            t = i >> 1
            if i & 1 == 0: e(f"s_add_u32 s{S_T+1}, s{S_T}, {LB + (13*(t&1) + 4*(t>>1))*1352}")
            e(f"buffer_load_dwordx4 {vr(L1R+4*i,4)}, v26, {sr(S_WC)}, s{S_T+1} offen offset:{676*(i&1)}")
        else:
            e(f"s_lshr_b32 s{S_T+1}, s{S_J}, 1"); e(f"s_mul_i32 s{S_T+1}, s{S_T+1}, {13*1352}"); e(f"s_and_b32 s{S_T+2}, s{S_J}, 1"); e(f"s_mul_i32 s{S_T+2}, s{S_T+2}, 676")
            e(f"s_add_u32 s{S_T+1}, s{S_T+1}, s{S_T+2}"); e(f"s_add_u32 s{S_T+1}, s{S_T+1}, {LB + 12*1352}")
            e(f"buffer_load_dwordx4 {vr(L1R+4*i,4)}, v26, {sr(S_WC)}, s{S_T+1} offen")
    e(f"s_lshl_b32 s{S_T}, s{S_J}, 4"); e(f"s_add_u32 s{S_T}, s{S_T}, {BUFB}")
    e(f"v_mul_u32_u24 v28, {S0STR}, v0"); e(f"v_add_u32 v28, s{S_T}, v28"); e("v_cndmask_b32 v28, v28, v29, vcc")
    e("v_lshlrev_b32 v5, 4, v3")
    e("v_cmp_eq_u32 vcc, 3, v2")
    e(f"v_mov_b32 v6, {OOB}")
    e("v_cndmask_b32 v6, 0, v6, vcc")
    e("v_add_u32 v6, v6, v5")
    e(f"s_mul_i32 s{S_T+1}, s{S_WAVE}, 7168"); e(f"s_add_u32 s{S_T+1}, s{S_T+1}, {D0}")
    e("v_mul_u32_u24 v7, 1792, v1")
    e("v_mad_u32_u24 v16, v2, 7, 0")
    e("v_lshl_add_u32 v7, v16, 6, v7")
    e(f"v_add3_u32 v7, v7, v5, s{S_T+1}")
    e("v_lshrrev_b32 v16, 1, v1")
    e("v_xor_b32 v16, v16, v2")
    e("v_lshlrev_b32 v16, 6, v16")
    e("v_and_b32 v17, 1, v1")
    e("v_lshl_add_u32 v16, v17, 5, v16")
    e("v_lshl_add_u32 v16, v3, 3, v16")
    e(f"v_add_u32 v16, s{S_T+1}, v16")
    for k in range(4): e(f"v_mov_b32 v{LG+k}, 0")
    PA, PS, DR = 32, 40, 184
    unpack_mat(g, PA, 20)
    e("s_waitcnt vmcnt(13) lgkmcnt(0)")
    e(f"s_setprio {PAR.cp}")
    GR, MR = 68, 96
    for t in range(7):
        e(f"v_lshl_add_u32 v{I+t}, v{I+t}, 6, v{5 if t < 5 else 6}")
        e(f"buffer_load_dwordx4 {vr(GR+4*t,4)}, v{I+t}, {sr(S_TAB)}, 0 offen")
    g.stamp()
    def carrive(c):
        e("v_mov_b32 v2, 1"); e("s_mov_b64 exec, 1"); e(f"ds_add_u32 v25, v2 offset:{CNT[c]-M_CNT}"); e("s_mov_b64 exec, -1")
    for i in range(13):
        e(f"s_waitcnt vmcnt({7 + 12 - i})")
        unpack(g, DR, PA, L1R, i)
        if i & 1 and i >= 3: tmax(g, DR, (i >> 1) - 1, 16, i == 3)
    e(f"s_and_b32 s{S_T}, s{S_J}, 1"); e(f"s_lshl_b32 s{S_T}, s{S_T}, 4")
    tmax(g, DR, 5, 16, False)
    for r in range(4): e(f"v_alignbit_b32 v{L1R+48+r}, v{L1R+48+r}, v{L1R+48+r}, s{S_T}")
    tmax(g, DR, 6, 8, False)
    put_max(g, M_L1)
    carrive("L1M")
    for i in range(8): e(f"v_and_b32 v{PS+i}, 0x800080, v{PA+i}")
    g.stamp("s")
    lwait(g, "L1M", 4, 25, 2)
    get_max(g, M_L1)
    e(f"v_readfirstlane_b32 s{S_T}, v1")
    e(f"s_lshr_b32 s{S_T}, s{S_T}, 23"); e(f"s_min_u32 s{S_T}, s{S_T}, 249"); e(f"s_sub_u32 s{S_HDR+2}, s{S_T}, 124")
    e(f"s_sub_u32 s{S_T}, {127+124}, s{S_T}")
    for i in range(8): e(f"v_mul_u32_u24 v{PS+i}, s{S_T}, v{PS+i}")
    def l1out(i):
        d = DR + 16 * ((i >> 1) & 3) + 8 * (i & 1)
        for r in range(4):
            lo, hi = (d + 2 * r + 1, d + 2 * r) if (i & 1) else (d + 2 * r, d + 2 * r + 1)
            e(f"v_cvt_pk_f16_f32 v{L1R+4*i+r}, v{lo}, v{hi}")
        if i < 12:
            t = i >> 1; o = 16 * (8 * (t >> 1) + 4 * (t & 1)) + 512 * (i & 1)
        else:
            e(f"s_lshr_b32 s{S_T}, s{S_J}, 1"); e(f"s_lshl_b32 s{S_T}, s{S_T}, 5"); e(f"s_and_b32 s{S_T+1}, s{S_J}, 1"); e(f"s_mul_i32 s{S_T+1}, s{S_T+1}, 496")
            e(f"s_add_u32 s{S_T}, s{S_T}, s{S_T+1}"); e(f"v_add_u32 v28, s{S_T}, v28"); o = 24 * 16
        e(f"ds_write_b128 v28, {vr(L1R+4*i,4)} offset:{o}")
    for i in range(13):
        unpack(g, DR, PS, L1R, i)
        if i >= 4: l1out(i - 4)
    for i in range(9, 13): l1out(i)
    g.stamp("s")
    for t in range(7):
        e(f"s_waitcnt vmcnt({6 - t})")
        unpack(g, DR, PA, GR, t)
        e(f"ds_write_b128 v7, {vr(GR+4*t,4)} offset:{64*t}")
        if t in (3, 5): tmax(g, DR, (t >> 1) - 1, 16, t == 3, 20)
    e("v_mov_b32 v2, 1"); e("s_mov_b64 exec, 1"); e(f"ds_add_u32 v25, v2 offset:{CNT['RAW']-M_CNT}"); e("s_mov_b64 exec, -1")
    g.stamp(); g.stamp("s")
    tmax(g, DR, 2, 16, False, 20); tmax(g, DR, 3, 8, False, 20)
    for sh in (8, 4, 2, 1):
        e(f"v_max_u32_dpp v20, v20, v20 row_ror:{sh} {DPPALL}")
    e("v_lshrrev_b32 v20, 23, v20"); e("v_max_u32 v20, 4, v20")
    e(f"v_sub_u32 v21, {127+130}, v20"); e("v_lshlrev_b32 v21, 23, v21")
    for t in range(7):
        d = DR + 8 * t
        for i in range(8): e(f"v_mul_f32 v{d+i}, v{d+i}, v21")
        for i in range(4): e(f"v_cvt_pk_f16_f32 v{MR+4*t+i}, v{d+2*i}, v{d+2*i+1}")
        e(f"ds_write_b128 v7, {vr(MR+4*t,4)} offset:{D1 - D0 + 64*t}")
    for k in range(4): e(f"v_readlane_b32 s{S_EX+k}, v20, {16*k}")
    e("s_waitcnt lgkmcnt(0)")
    for k in range(4):
        for t in range(7):
            e(f"ds_read_b64_tr_b16 {vr(X(k,2*t),2)}, v16 offset:{D1 - D0 + k*1792+t*256}")
    for k in range(4):
        e(f"s_sub_u32 s{S_EX+k}, s{S_EX+k}, 130")
    for i in range(16): e(f"v_mov_b32 v{BR+i}, 0")
    e("v_lshlrev_b32 v1, 4, v0")
    e("s_waitcnt lgkmcnt(0)")
    HW = lambda l: S_HDR + 2 * l
    HD = lambda l: S_HDR + 2 * l + 1
    HQ, HL = S_HDR + 8, S_HDR + 9
    for k in range(4):
        e(f"s_lshl_b32 s{S_T}, s{S_EX+k}, 1")
        e(f"v_mov_b32 v{EV(k)}, s{S_T}")
    g.stamp("s")
    e("s_mov_b64 exec, 1"); e(f"ds_add_u32 v25, v2 offset:{CNT['XST']-M_CNT}"); e("s_mov_b64 exec, -1")
    e("s_setprio 1")
    lwait(g, "S0OK", 4, 25, 2)
    g.stamp(); g.stamp("s")

    ready = set()
    def quad_prod(k, rho):
        p, q = QPAIRS[rho]
        return lambda d: f"v_pk_mul_f16 v{d}, v{X(k,p)}, v{X(k,q)} op_sel_hi:[0,1]"
    def gen_prod(l):
        def f(k, rho):
            r, p = divmod(rho, 13)
            def mk(d):
                if r == 13: return f"v_mov_b32 v{d}, v{U(k,p)}" if l == 2 else f"v_mov_b32 v{d}, 0"
                assert ('u', l, k, r) in ready, (l, k, r)
                if r & 1: return f"v_pk_mul_f16 v{d}, v{U(k,r>>1)}, v{X(k,p)} op_sel:[1,0] op_sel_hi:[1,1]"
                return f"v_pk_mul_f16 v{d}, v{U(k,r>>1)}, v{X(k,p)} op_sel_hi:[0,1]"
            return mk
        return f
    def lin_prod(k, t):
        b = 2 * t + 1 if 2 * t + 1 < 13 else 2 * t
        return lambda d: f"v_pack_b32_f16 v{d}, v{X(k,2*t)}, v{X(k,b)}"
    def steps(nprod, prod, acc, base, first0, stride=1024, needs=None):
        out = []
        ns = (nprod + 3) // 4
        for s in range(ns):
            out.append(dict(lds=base + stride * s, needs=needs if s == 0 else None, jobs=[dict(acc=acc + 16 * k, zero=(first0 and s == 0),
                       prods=[prod(k, rho) for rho in range(4 * s, min(4 * s + 4, nprod))]) for k in range(4)]))
        return out
    S_CL = S_C1
    e(f"s_mov_b32 s{S_CL}, {115 << 23}"); e(f"s_mov_b32 s{S_MASK}, 145")
    def cvt(acc, t):
        return [f"v_cvt_pk_f16_f32 v{U(k,t)}, v{acc+16*k+2*t}, " + (f"v{acc+16*k+2*t+1}" if t < 6 else "0") for k in range(4)]
    def scl(l, t):
        o = []
        for k in range(4):
            o.append((f"v_pk_mul_f16 v{U(k,t)}, v{U(k,t)}, v{SC+k} op_sel_hi:[1,0]", ('u', l + 1, k, 2 * t)))
            o.append((None, ('u', l + 1, k, 2 * t + 1)))
        return o
    def head(acc, l):
        o = []
        for j in range(6):
            for k in range(4):
                a = acc + 16 * k
                if j == 0: o.append(f"v_max3_f32 v{SC+k}, |v{a}|, |v{a+1}|, |v{a+2}|")
                else: o.append(f"v_max3_f32 v{SC+k}, v{SC+k}, |v{a+2*j+1}|, |v{a+2*j+2}|")
        for k in range(4): o.append(f"v_mov_b32 v{TM+k}, v{SC+k}")
        o += cvt(acc, 0)
        for k in range(4): o.append(f"v_permlane32_swap_b32 v{SC+k}, v{TM+k}")
        for k in range(4): o.append(f"v_max3_f32 v{SC+k}, v{SC+k}, v{TM+k}, s{S_CL}")
        for k in range(4): o.append(f"v_lshrrev_b32 v{TM+k}, 23, v{SC+k}")
        for k in range(4): o.append(f"v_sub_u32 v{SC+k}, s{S_MASK}, v{TM+k}")
        for k in range(4): o.append(f"v_lshlrev_b32 v{SC+k}, 10, v{SC+k}")
        return o + scl(l, 0)
    def evup(l):
        return [(None, 'x', ('k', l))] + [f"v_add3_u32 v{EV(k)}, v{EV(k)}, v{TM+k}, s{S_K+k}" for k in range(4)] + [(None, ('ev', l))]
    def emit(x):
        if callable(x): return x() or 0
        if isinstance(x, tuple):
            if len(x) == 3: assert x[2] in ready, x
            ready.add(x[1]); x = x[0]
        if not x: return 0
        e(x)
        return 2 if 'permlane' in x else 1
    def kconst(l):
        o = []
        if l == 0: o.append(f"s_sub_u32 s{S_T}, s{HW(0)}, 130")
        elif l == 1: o += [f"s_add_u32 s{S_T}, s{HW(1)}, s{HD(2)}", f"s_sub_u32 s{S_T}, s{S_T}, 130"]
        else: o += [f"s_sub_u32 s{S_T}, s{HW(l)}, s{HD(l)}", f"s_add_u32 s{S_T}, s{S_T}, s{HD(l+1)}", f"s_sub_u32 s{S_T}, s{S_T}, 130"]
        if l: o.insert(0, (None, 'x', ('ev', l - 1)))
        return o + [f"s_add_u32 s{S_K+k}, s{S_T}, s{S_EX+k}" for k in range(4)] + [(None, ('k', l))]
    state = dict(areg=0, breg=0, base=0)
    def aread(st):
        if st.get('ok'): assert st['ok'] in ready, st['ok']
        st['a'] = AR + 4 * (state['areg'] % 3); state['areg'] += 1
        r = st['lds'] - state['base']; c = 1
        if r < 0 or r > 65535:
            e(f"v_add_u32 v1, {r & 0xffffffff}, v1"); state['base'] = st['lds']; r = 0; c = 2
        e(f"ds_read_b128 {vr(st['a'],4)}, v1 offset:{r}")
        return c
    def prods(job):
        job['b'] = BR + 4 * (state['breg'] % 4); state['breg'] += 1
        return [p(job['b'] + i) for i, p in enumerate(job['prods'])]
    GATE = 'GATE'
    import re
    def nbytes(x):
        if callable(x): return 8
        if isinstance(x, tuple): x = x[0]
        if not x or x == GATE: return 0
        op = x.split()[0]
        lit = any(abs(int(t, 0)) > 64 for t in re.findall(r'(?<![\w\[:])(-?(?:0x[0-9a-f]+|\d+))(?![\w\]:.])', x.split(None, 1)[1]))
        short = op.startswith('s_') or op in ('v_mov_b32', 'v_mul_f32', 'v_add_f32', 'v_add_u32', 'v_sub_u32', 'v_lshrrev_b32', 'v_lshlrev_b32', 'v_and_b32',
                                              'v_permlane32_swap_b32', 'v_readfirstlane_b32', 'v_cmp_lt_u32', 'v_cndmask_b32', 'v_max_f32')
        return 4 if short and not lit else 8
    def run(seq, nxt, fill=None, side=None, rates=None):
        rate = PAR.rate
        jobs = [(si, j) for si, st in enumerate(seq) for j in st['jobs']]
        for j in range(2):
            for s in prods(jobs[j][1]): e(s)
        fq = []; sq = []; gate = -1; credit = 0
        allst = seq + nxt
        for n, (si, job) in enumerate(jobs):
            k = n % 4
            if k == 0:
                if fill and si in fill: fq += fill[si]
                if side and si in side: sq += side[si]
                if rates and si in rates: rate = rates[si]
                pend = sum(1 for st in allst[si+1:si+2] if 'a' in st)
                e(f"s_waitcnt lgkmcnt({pend})")
                if seq[si]['needs']: assert seq[si]['needs'] in ready, seq[si]['needs']
            c = "0" if job['zero'] else vr(job['acc'], 16)
            e(f"v_mfma_f32_32x32x16_f16 {vr(job['acc'],16)}, {vr(seq[si]['a'],4)}, {vr(job['b'],4)}, {c}")
            budget = 6
            if k == 0 and si + 2 < len(allst) and 'a' not in allst[si + 2]: budget -= aread(allst[si + 2])
            if k == 3: budget -= 1
            if n + 2 < len(jobs):
                ps = prods(jobs[n + 2][1])
                for s in ps: e(s)
                budget -= len(ps)
                credit += sum(8 - nbytes(p) for p in ps) + 8 * (4 - len(ps))
            credit = min(credit + rate / 4, 16)
            while sq and si >= gate and ((budget > 0 and credit >= nbytes(sq[0])) or nbytes(sq[0]) == 0):
                x = sq.pop(0)
                if x == GATE: gate = si + 2
                else: budget -= emit(x); credit -= nbytes(x)
            while fq and ((budget > 0 and credit >= nbytes(fq[0])) or nbytes(fq[0]) == 0):
                x = fq.pop(0); budget -= emit(x); credit -= nbytes(x)
        assert not sq, sq
        for s in fq: emit(s)
    S0 = steps(91, quad_prod, ACC, BUFA, True, stride=S0STR)
    L1 = steps(172, gen_prod(1), ACC2, BUFB, True, stride=S0STR)
    L2 = steps(176, gen_prod(2), ACC, BUFA, True, needs=('free', 0))
    Q4 = steps(91, quad_prod, ACC2, D0, True, needs=('free', 1))
    LN = steps(7, lin_prod, ACC2, D0 + 24 * 1024, False, needs='ldx')
    L3 = steps(169, gen_prod(3), ACC, BUFB, True, needs=('free', 2))
    L1[0]['ok'] = "RAW"; L2[0]['ok'] = "L2OK"; Q4[0]['ok'] = "QOK"; L3[0]['ok'] = "L3OK"
    def hdr(addr, sa, sb=None):
        return [f"v_mov_b32 v3, {addr}", "ds_read_b64 v[2:3], v3", GATE, f"v_readfirstlane_b32 s{sa}, v2"] + ([f"v_readfirstlane_b32 s{sb}, v3"] if sb else [])
    def arrive(c):
        def f():
            e(f"v_add_u32 v3, {(CNT[c] - state['base']) & 0xffffffff}, v1"); return 1
        return ["v_mov_b32 v2, 1", f, "ds_add_u32 v3, v2"]
    def check(c):
        def f():
            slow = g.newlab("cs"); back = g.newlab("cb"); top = g.newlab("ct")
            e(f"s_cmp_lt_u32 s{S_T+2}, 4"); e(f"s_cbranch_scc1 {slow}")
            g.lab(back)
            g.tail += [slow + ":", f"    s_mov_b32 s{S_T+1}, {SPIN*8}", top + ":", "    s_sleep 1", "    ds_read_b32 v2, v3", "    s_waitcnt lgkmcnt(0)",
                       f"    v_readfirstlane_b32 s{S_T+2}, v2", f"    s_cmp_ge_u32 s{S_T+2}, 4", f"    s_cbranch_scc1 {back}",
                       f"    s_sub_u32 s{S_T+1}, s{S_T+1}, 1", f"    s_cbranch_scc0 {top}", f"    s_branch {back}"]
            ready.add(c); return 2
        return [f"v_mov_b32 v3, {CNT[c]}", "ds_read_b32 v2, v3", GATE, f"v_readfirstlane_b32 s{S_T+2}, v2", f]
    def stp(n): return [lambda: g.stamp(n)]
    def rest(acc, l):
        o = []
        for t in range(1, 7): o += cvt(acc, t) + scl(l, t)
        return o + [(None, ('free', l))]
    HOFF = 29 * 16
    aread(S0[0]); aread(S0[1])
    run(S0, L1[:2], side={2: hdr(BUFA + 23 * S0STR + 512, HW(0)) + kconst(0), 17: check("RAW"), 22: arrive("AFREE")})
    g.stamp()
    for s in head(ACC, 0): emit(s)
    run(L1, L2[:2], fill={0: rest(ACC, 0) + evup(0)}, side={37: check("L2OK"), 42: arrive("BFREE")}, rates={0: 32})
    g.stamp()
    for s in head(ACC2, 1): emit(s)
    LNPOS = PAR.lnpos
    seq = L2 + Q4 + L3[:LNPOS] + LN + L3[LNPOS:]
    nQ = 44; nL3 = nQ + 23
    PV, PA = 2, 3
    def pload():
        e(f"buffer_load_dword v{PV}, v{PA}, {sr(S_WS)}, s{S_T+3} offen sc1"); return 1
    k1 = [f"s_sub_u32 s{S_T}, s{HD(1)}, s{HD(2)}"] + [f"s_sub_u32 s{S_K1+k}, s{S_T}, s{S_EX+k}" for k in range(4)] + [(None, 'k1')]
    dots = [(None, 'x', 'k1')]
    for k in range(4): dots.append(f"v_ldexp_f32 v{ACC+16*k+15}, v{ACC+16*k+15}, v{EV(k)}")
    for k in range(4): dots.append(f"v_add_u32 v{ACC+16*k+13}, s{S_K1+k}, v{EV(k)}")
    for k in range(4): dots.append(f"v_ldexp_f32 v{ACC+16*k+14}, v{ACC+16*k+14}, v{ACC+16*k+13}")
    for k in range(4): dots.append(f"v_add_f32 v{LG+k}, v{ACC+16*k+14}, v{ACC+16*k+15}")
    dots.append((None, 'dots'))
    b2 = head(ACC, 2) + dots
    for t in range(1, 7): b2 += cvt(ACC, t)
    b2.append((None, ('free', 2)))
    kq = []; S_K2 = 8
    for k in range(4):
        kq += [f"s_sub_u32 s{S_T}, s{HQ}, s{HL}", f"s_add_u32 s{S_T}, s{S_T}, s{S_EX+k}", f"s_min_i32 s{S_KC+k}, s{S_T}, 40",
               f"s_add_i32 s{S_T}, s{S_KC+k}, 127", f"s_max_i32 s{S_T}, s{S_T}, 0", f"s_lshl_b32 s{S_K2+k}, s{S_T}, 23"]
    kq.append((None, 'kq'))
    ldx = [(None, 'x', 'kq')] + [f"v_mul_f32 v{ACC2+16*k+r}, s{S_K2+k}, v{ACC2+16*k+r}" for k in range(4) for r in range(13)] + [(None, 'ldx')]
    l3f = scl(2, 1)
    per = (len(ldx) + 4) // 5
    for t in range(2, 7): l3f += scl(2, t) + ldx[(t - 2) * per:(t - 1) * per] + (evup(2) if t == 6 else [])
    pre = ["v_bfe_u32 v2, v0, 4, 1", "v_lshrrev_b32 v3, 5, v0", "v_lshl_add_u32 v2, v2, 1, v3", "v_and_b32 v3, 15, v0", "v_cmp_lt_u32 vcc, 12, v3",
           "v_lshlrev_b32 v3, 10, v3", "v_lshl_add_u32 v3, v2, 2, v3", f"v_mov_b32 v2, {OOB}", "v_cndmask_b32 v3, v3, v2, vcc",
           f"s_mul_i32 s{S_T+3}, s{S_G}, {13*1024}", f"s_and_b32 s{S_T}, s{S_SB}, 255", f"s_lshl_b32 s{S_T}, s{S_T}, 2",
           f"s_add_u32 s{S_T+3}, s{S_T+3}, s{S_T}", f"s_add_u32 s{S_T+3}, s{S_T+3}, {WS_PART}"]
    fin = [(None, 'x', ('ev', 2))]
    for k in range(4): fin += [f"s_lshl_b32 s{S_T}, s{S_EX+k}, 1", f"s_add_u32 s{S_K+k}, s{S_T}, s{HD(0)}"]
    for k in range(4): fin.append(f"v_ldexp_f32 v{ACC2+16*k+15}, v{ACC2+16*k+15}, s{S_K+k}")
    for k in range(4): fin.append(f"v_add_f32 v{LG+k}, v{LG+k}, v{ACC2+16*k+15}")
    fin += [f"s_sub_u32 s{S_T}, s{HW(3)}, s{HD(3)}", f"s_add_u32 s{S_T}, s{S_T}, s{HQ}"]
    for k in range(4): fin += [f"s_lshl_b32 s{S_K+k}, s{S_EX+k}, 1", f"s_add_u32 s{S_K+k}, s{S_K+k}, s{S_T}", f"s_sub_u32 s{S_K+k}, s{S_K+k}, s{S_KC+k}"]
    BO = ACC2 + 14
    fin += [f"v_add_u32 v{TM+k}, s{S_K+k}, v{EV(k)}" for k in range(4)] + [f"v_mov_b32 v{BO-1}, 0", f"buffer_load_ushort v{BO}, v{BO-1}, {sr(S_BO)}, 0 offen"]
    run(seq, [], fill={0: rest(ACC2, 1), 14: evup(1), nQ + 1: b2, nL3: l3f},
        side={0: hdr(BUFA + HOFF, HW(2), HD(2)) + kconst(1) + hdr(BUFA + HOFF + 8, HD(1)) + k1, 1: stp("p"), 21: stp("p"),
              nQ - PAR.qchk: check("QOK") + hdr(D0 + 23 * 1024, HQ, HL) + kq, nQ: stp("p"),
              nL3 - 6: check("L3OK"), nL3: stp("p"), nL3 + 6: hdr(BUFB + HOFF, HW(3), HD(3)) + kconst(2) + hdr(D0 + 23 * 1024 + 8, HD(0)),
              nL3 + LNPOS - 2: pre, nL3 + LNPOS + 4: fin, nL3 + 20: stp("p"), nL3 + PAR.pload: [pload], nL3 + 40: stp("p")},
        rates={0: 32, 20: PAR.rate, nQ: PAR.qrate, nL3: PAR.rate})
    g.stamp()
    for r in range(13):
        for k in range(4):
            if r == 0: e(f"v_mul_f32 v{SC+k}, v{ACC+16*k}, v{ACC2+16*k}")
            else: e(f"v_fmac_f32 v{SC+k}, v{ACC+16*k+r}, v{ACC2+16*k+r}")
    for k in range(4): e(f"v_ldexp_f32 v{ACC+16*k+15}, v{ACC+16*k+15}, v{EV(k)}")
    for k in range(4): e(f"v_ldexp_f32 v{SC+k}, v{SC+k}, v{TM+k}")
    for k in range(4): e(f"v_add_f32 v{LG+k}, v{LG+k}, v{ACC+16*k+15}")
    for k in range(4): e(f"v_add_f32 v{LG+k}, v{LG+k}, v{SC+k}")
    e(f"v_permlane32_swap_b32 v{LG}, v{LG+1}"); e(f"v_permlane32_swap_b32 v{LG+2}, v{LG+3}")
    e(f"v_add_f32 v{LG}, v{LG}, v{LG+1}"); e(f"v_add_f32 v{LG+2}, v{LG+2}, v{LG+3}")
    e(f"v_permlane16_swap_b32 v{LG}, v{LG+2}")
    e(f"v_add_f32 v{LG}, v{LG}, v{LG+2}")
    e(f"s_mov_b32 s{S_T}, {SPIN}")
    g.lab("L_pcheck")
    e("s_waitcnt vmcnt(0)")
    e(f"v_cmp_eq_u32 vcc, -1, v{PV}")
    e("s_nop 1")
    e("s_cbranch_vccz L_pok")
    e("s_sleep 4")
    pload()
    e(f"s_sub_u32 s{S_T}, s{S_T}, 1")
    e("s_cbranch_scc0 L_pcheck")
    e("s_waitcnt vmcnt(0)")
    g.lab("L_pok")
    e(f"v_add_f32 v{LG}, v{LG}, v{PV}")
    for sh in (8, 4, 2, 1):
        e(f"v_add_f32_dpp v{LG}, v{LG}, v{LG} row_ror:{sh} {DPPALL}")
    e(f"v_lshlrev_b32 v{BO}, 16, v{BO}")
    e(f"v_add_f32 v{LG}, v{LG}, v{BO}")
    e(f"v_cvt_pk_bf16_f32 v{LG}, v{LG}, v{LG}")
    e(f"v_lshrrev_b32 v{PA}, 1, v{PA}")
    e(f"v_cmp_lt_u32 vcc, 7, v{PA}")
    e(f"v_mov_b32 v2, {OOB}")
    e(f"v_cndmask_b32 v{PA}, v{PA}, v2, vcc")
    e(f"s_lshl_b32 s{S_T}, s{S_SB}, 1")
    e(f"buffer_store_short v{LG}, v{PA}, {sr(S_OUT)}, s{S_T} offen")
    g.stamp()
    if PAR.enc is not None:
        e("s_waitcnt lgkmcnt(0)")
        e(f"s_sub_u32 s{S_T}, s{S_ST+2*PAR.enc}, s{S_ST}"); e(f"s_lshl_b32 s{S_T}, s{S_T}, 1"); e(f"s_add_u32 s{S_T}, s{S_T}, 6000")
        g.lab("L_enc")
        e(f"s_memrealtime s[{S_T+2}:{S_T+3}]"); e("s_waitcnt lgkmcnt(0)")
        e(f"s_sub_u32 s{S_T+2}, s{S_T+2}, s{S_ST}"); e(f"s_cmp_lt_u32 s{S_T+2}, s{S_T}"); e("s_cbranch_scc1 L_enc")
    g.flush_stamps(4, 5)
    e("s_endpgm")

HACC, HX, HW_ = 4, 68, 208
V_TR0, V_TR1, V_DMA, V_WSRC, V_H16, V_L0, V_HROW, V_CNT = 248, 249, 250, 251, 252, 253, 254, 255
ID, QA, QSH, QS, W0R, PK = 4, 12, 19, 20, 180, 236
L1R, BT = 180, 36
S_WP, S_L, S_FR, S_E0, S_E1, S_E2, S_PO, S_CX = 48, 49, 50, 51, 52, 53, 54, 55
S_LC = 56
S_E3, S_XB = 60, 61
def dma_img(g, name, nfr, lds):
    e = g.e; per = nfr // 4
    e(f"s_mul_i32 s{S_T}, s{S_J}, {per*1024}")
    for i in range(per):
        if i % 4 == 0:
            e(f"s_add_u32 s{S_T+1}, s{S_T}, {IMG[name] + i*1024}")
            e(f"s_add_u32 m0, s{S_T}, {lds + i*1024}")
        g.vm(f"buffer_load_dwordx4 v{V_DMA}, {sr(S_WS)}, s{S_T+1} offen offset:{(i%4)*1024} {PAR.ld} lds", name)
def poll(g, checks, pre=None):
    e = g.e
    done = g.newlab("pd"); top = g.newlab("pt"); slp = g.newlab("ps"); tst = g.newlab("pc")
    regs = pre or [2 + i for i in range(len(checks))]
    e(f"s_mov_b32 s{S_T}, {SPIN}")
    if pre: e(f"s_branch {tst}")
    g.lab(top)
    for r, (srd, so, o, n) in zip(regs, checks):
        e(f"buffer_load_dword v{r}, v{V_L0}, {sr(srd)}, {so} offen offset:{o} sc1")
    e("s_waitcnt vmcnt(0)")
    g.lab(tst)
    for r, (srd, so, o, n) in zip(regs, checks):
        e(f"v_readfirstlane_b32 s{S_T+1}, v{r}")
        e(f"s_cmp_lt_u32 s{S_T+1}, {n}")
        e(f"s_cbranch_scc1 {slp}")
    g.lab(done)
    g.tail += [slp + ":", f"    s_sleep {PAR.slp}", f"    s_sub_u32 s{S_T}, s{S_T}, 1", f"    s_cbranch_scc0 {top}", f"    s_branch {done}"]
def poll1(g, checks, flag, pre=None):
    lb = g.newlab("p1")
    g.e(f"s_cmp_lg_u32 s{S_J}, 0"); g.e(f"s_cbranch_scc1 {lb}")
    poll(g, checks, pre)
    arrive(g, flag)
    g.lab(lb)
    lwait(g, flag, 1)
def presample(g, checks, regs, tag):
    for r, (srd, so, o, n) in zip(regs, checks):
        g.vm(f"buffer_load_dword v{r}, v{V_L0}, {sr(srd)}, {so} offen offset:{o} sc1", tag)
def arrive(g, *cs):
    e = g.e
    e("v_mov_b32 v1, 1"); e("s_mov_b64 exec, 1")
    for c in cs: e(f"ds_add_u32 v{V_CNT}, v1 offset:{CNT[c]-M_CNT}")
    e("s_mov_b64 exec, -1")
def unpack_mat(g, PA, t):
    e = g.e
    e(f"v_and_b32 v{t}, 1, v0"); e(f"v_lshlrev_b32 v{t}, 4, v{t}"); e(f"v_mov_b32 v{t+1}, 0x3f80"); e(f"v_lshlrev_b32 v{t+1}, v{t}, v{t+1}")
    e(f"v_lshrrev_b32 v{t+2}, 3, v0"); e(f"v_xor_b32 v{t+2}, v{t+2}, v0"); e(f"v_and_b32 v{t+2}, 4, v{t+2}")
    e(f"v_bfe_u32 v{t}, v0, 3, 2"); e(f"v_bfe_u32 v{t+3}, v0, 1, 1"); e(f"v_lshl_add_u32 v{t}, v{t}, 1, v{t+3}"); e(f"v_lshl_add_u32 v{t}, v{t+2}, 3, v{t}")
    for i in range(8):
        e(f"v_cmp_eq_u32 vcc, {i}, v{t}"); e(f"v_cndmask_b32 v{PA+i}, 0, v{t+1}, vcc")
def unpack(g, DR, pa, src, i):
    d = DR + 16 * ((i >> 1) & 3)
    g.e(f"v_mfma_f32_32x32x16_bf16 {vr(d,16)}, {vr(pa+4*(i&1),4)}, {vr(src+4*i,4)}, {vr(d,16) if i & 1 else '0'}")
def tmax(g, DR, tile, n, first, mv=1):
    d = DR + 16 * (tile & 3)
    for q in range(n // 2):
        if first and q == 0: g.e(f"v_max_f32 v{mv}, |v{d}|, |v{d+1}|")
        else: g.e(f"v_max3_f32 v{mv}, v{mv}, |v{d+2*q}|, |v{d+2*q+1}|")
def lwait(g, c, n=4, va=None, vd=1):
    e = g.e; top = g.newlab("lw"); done = g.newlab("ld")
    e(f"s_mov_b32 s{S_T}, {SPIN*8}")
    g.lab(top)
    e(f"ds_read_b32 v{vd}, v{va or V_CNT} offset:{CNT[c]-M_CNT}"); e("s_waitcnt lgkmcnt(0)")
    e(f"v_readfirstlane_b32 s{S_T+1}, v{vd}"); e(f"s_cmp_ge_u32 s{S_T+1}, {n}"); e(f"s_cbranch_scc1 {done}")
    e("s_sleep 1"); e(f"s_sub_u32 s{S_T}, s{S_T}, 1"); e(f"s_cbranch_scc0 {top}")
    g.lab(done)
def rowmax(g, v, op="v_max_u32_dpp"):
    for sh in (8, 4, 2, 1): g.e(f"{op} v{v}, v{v}, v{v} row_ror:{sh} {DPPALL}")
def wavemax_exp(g, v, sdst):
    e = g.e
    rowmax(g, v)
    e(f"v_readlane_b32 s{sdst}, v{v}, 0"); e(f"v_readlane_b32 s{S_T}, v{v}, 16"); e(f"s_max_u32 s{sdst}, s{sdst}, s{S_T}")
    e(f"v_readlane_b32 s{S_T}, v{v}, 32"); e(f"s_max_u32 s{sdst}, s{sdst}, s{S_T}")
    e(f"v_readlane_b32 s{S_T}, v{v}, 48"); e(f"s_max_u32 s{sdst}, s{sdst}, s{S_T}")
    e(f"s_lshr_b32 s{sdst}, s{sdst}, 23"); e(f"s_sub_u32 s{sdst}, s{sdst}, 126")
def put_max(g, slot):
    e = g.e
    rowmax(g, 1)
    e("v_lshrrev_b32 v2, 4, v0"); e(f"s_lshl_b32 s{S_T}, s{S_J}, 4"); e(f"s_add_u32 s{S_T}, s{S_T}, {slot}")
    e(f"v_lshl_add_u32 v2, v2, 2, s{S_T}")
    e("ds_write_b32 v2, v1")
def get_max(g, slot):
    e = g.e
    e("v_and_b32 v2, 15, v0"); e("v_lshlrev_b32 v2, 2, v2"); e(f"v_add_u32 v2, {slot}, v2")
    e("ds_read_b32 v1, v2"); e("s_waitcnt lgkmcnt(0)")
    rowmax(g, 1)
def pkmax(g, regs):
    e = g.e
    e(f"v_pk_max_u16 v1, v{regs[0]}, v{regs[1]}"); e(f"v_pk_max_u16 v3, v{regs[2]}, v{regs[3]}")
    for i, r in enumerate(regs[4:]): e(f"v_pk_max_u16 v{1 + 2*(i&1)}, v{1 + 2*(i&1)}, v{r}")
    e("v_pk_max_u16 v1, v1, v3"); e("v_alignbit_b32 v3, v1, v1, 16"); e("v_pk_max_u16 v1, v1, v3")
def pack_round(g, acc, off):
    e = g.e
    for t in range(14): e(f"v_mul_f32 v{acc+t}, v{acc+t}, v{QS+(t>>1)}")
    for t in range(7): e(f"v_cvt_pk_f16_f32 v{PK+t}, v{acc+2*t}, v{acc+2*t+1}")
    for t in range(7): e(f"v_alignbit_b32 v{PK+t}, v{PK+t}, v{PK+t}, v{QSH}")
    for t in range(7): e(f"ds_write_b32 v{QA+t}, v{PK+t} offset:{off}")
def s0_max(g, t):
    a = HX + 16 * t
    for i in range(7):
        if t == 0 and i == 0: g.e(f"v_max_f32 v1, |v{a}|, |v{a+1}|")
        else: g.e(f"v_max3_f32 v1, v1, |v{a+2*i}|, |v{a+2*i+1}|")
F0 = lambda c: sum(PAR.chunks[:c])
S_ROT = 64
def rotf(g, f, sd):
    g.e(f"s_add_u32 s{sd}, s{S_ROT}, {f}"); g.e(f"s_sub_u32 s{S_ROT+1}, s{sd}, 26"); g.e(f"s_min_u32 s{sd}, s{sd}, s{S_ROT+1}")
def dma_w(g, c, only=None):
    e = g.e
    Dc = (D0, D1)[c & 1]
    e(f"s_lshl_b32 s{S_T}, s{S_J}, 10")
    for fl in range(PAR.chunks[c]):
        if only is not None and fl != only: continue
        e(f"s_add_u32 m0, s{S_T}, {Dc + fl*4096}")
        rotf(g, F0(c) + fl, S_T + 1); e(f"s_mul_i32 s{S_T+1}, s{S_T+1}, 53248")
        g.vm(f"buffer_load_dwordx4 v{V_WSRC}, {sr(S_W1)}, s{S_T+1} offen lds", f"W{c}")
CHK_X = lambda: (S_WS, f"s{S_CX}", 0, 16)
def helper_common(g):
    e = g.e
    e("s_setprio 2")
    e(f"s_sub_u32 s{S_J}, s{S_WAVE}, 4")
    e("v_and_b32 v2, 31, v0"); e("v_lshrrev_b32 v3, 5, v0")
    e(f"v_lshlrev_b32 v{V_H16}, 4, v3")
    e(f"v_mad_u32_u24 v1, v2, 52, v{V_H16}")
    if PAR.wpf:
        e(f"s_cmp_lg_u32 s{S_J}, 0"); e("s_cbranch_scc1 L_nowpf")
        e(f"s_mov_b32 s{S_WC+2}, {6*LB}"); e(f"s_lshr_b32 s{S_T}, s2, 3"); e(f"s_lshl_b32 s{S_T}, s{S_T}, 7")
        e("v_lshlrev_b32 v4, 12, v0")
        e(f"buffer_load_dword v247, v4, {sr(S_WC)}, s{S_T} offen")
        e(f"s_mov_b32 s{S_WC+2}, {LB}")
        g.lab("L_nowpf")
    e("s_barrier")
    e(f"s_mul_i32 s{S_T}, s{S_J}, 1352")
    for t in range(7):
        if t < 6: e(f"s_add_u32 s{S_T+1}, s{S_T}, {(13*(t&1) + 4*(t>>1))*1352}")
        else:
            e(f"s_mul_i32 s{S_T+1}, s{S_J}, {13*1352}"); e(f"s_add_u32 s{S_T+1}, s{S_T+1}, {12*1352}")
        for s in range(2):
            g.vm(f"buffer_load_dwordx4 {vr(W0R+8*t+4*s,4)}, v1, {sr(S_WC)}, s{S_T+1} offen offset:{32*s}", f"w0_{t}")
    e(f"v_mov_b32 v5, {OOB}"); e("v_cmp_eq_u32 vcc, 0, v0"); e(f"v_cndmask_b32 v{V_L0}, v5, 0, vcc")
    e(f"s_lshl_b32 s{S_CX}, s{S_G}, 8"); e(f"s_add_u32 s{S_CX}, s{S_CX}, {WS_CNT}")
    e(f"s_add_u32 s{S_T}, s{S_R}, s{S_J}"); e(f"s_cmp_eq_u32 s{S_T}, 0"); e(f"s_cselect_b32 s{S_E3}, 0, {OOB}")
    e(f"v_add_u32 v34, s{S_E3}, v{V_L0}"); e("v_mov_b32 v35, 0")
    g.vm(f"buffer_store_dword v35, v34, {sr(S_WS)}, s{S_CX} offen sc1", "rst")
    if PAR.touch:
        e("v_lshlrev_b32 v36, 20, v0")
        e("v_and_b32 v37, 7, v0"); e("v_lshlrev_b32 v37, 20, v37")
        for i, (srd, vo) in enumerate(((S_TAB, 36), (S_WS, 37), (S_W1, 36), (S_B1, 36), (S_W2, 36), (S_DBG, 36), (S_WO, 36), (S_OUT, 36), (S_BO, 36))):
            g.vm(f"buffer_load_ushort v{38+i}, v{vo}, {sr(srd)}, 0 offen", "touch")
    e("v_lshrrev_b32 v4, 3, v2"); e("v_and_b32 v6, 3, v2"); e("v_lshl_add_u32 v4, v4, 2, v6")
    e("v_bfe_u32 v6, v2, 2, 1"); e(f"v_mad_u32_u24 v{V_HROW}, v6, 13, v4")
    e("v_cmp_lt_u32 vcc, 12, v4"); e("v_mov_b32 v7, 0x100000"); e(f"v_cndmask_b32 v{V_HROW}, v{V_HROW}, v7, vcc")
    e("v_cmp_eq_u32 s[72:73], 0, v6"); e("s_and_b64 vcc, vcc, s[72:73]")
    e(f"v_lshlrev_b32 v{V_DMA}, 4, v0"); e(f"v_cndmask_b32 v{V_DMA}, v{V_DMA}, v5, vcc")
    e("v_lshrrev_b32 v27, 1, v2"); e("v_and_b32 v28, 1, v2"); e(f"v_lshlrev_b32 v{QSH}, 4, v28")
    e("v_sub_u32 v29, 25, v27"); e("v_mul_u32_u24 v29, v29, v27"); e("v_lshrrev_b32 v29, 1, v29")
    e(f"s_lshl_b32 s{S_T}, s{S_J}, 4")
    e(f"v_lshl_add_u32 v28, v28, 9, s{S_T}")
    e(f"v_lshl_add_u32 v30, v0, 2, s{S_T}"); e(f"v_add_u32 v30, {BUFA + 24*S0STR}, v30")
    e("v_mov_b32 v33, 0.5")
    for t in range(7):
        qb = 4 * (t >> 1) + (t & 1)
        e(f"v_lshl_add_u32 v31, v3, 1, {qb}")
        e("v_add_u32 v32, v29, v31")
        e(f"v_lshrrev_b32 v{QA+t}, 2, v32"); e(f"v_mul_u32_u24 v{QA+t}, {S0STR}, v{QA+t}")
        e("v_and_b32 v32, 3, v32"); e("v_lshl_add_u32 v32, v32, 2, v28"); e(f"v_add_u32 v{QA+t}, v{QA+t}, v32")
        e("v_cmp_lt_u32 vcc, v31, v27")
        if t == 6:
            e("v_cmp_lt_u32 s[72:73], 12, v31"); e("s_or_b64 vcc, vcc, s[72:73]")
        e(f"v_cndmask_b32 v{QA+t}, v{QA+t}, v30, vcc")
        e("v_cmp_eq_u32 vcc, v31, v27"); e(f"v_cndmask_b32 v{QS+t}, 1.0, v33, vcc")
    e("v_lshlrev_b32 v31, 3, v3"); e("v_sub_u32 v31, v2, v31")
    e("v_mov_b32 v32, 0x3f80"); e(f"v_lshlrev_b32 v32, v{QSH}, v32")
    e("v_lshrrev_b32 v31, 1, v31")
    for s in range(2):
        for i in range(4):
            e(f"v_cmp_eq_u32 vcc, {8*s+i}, v31"); e(f"v_cndmask_b32 v{ID+4*s+i}, 0, v32, vcc")
    e("v_mul_u32_u24 v3, 676, v3"); e(f"s_movk_i32 s{S_T+1}, 1352"); e(f"v_mad_u32_u24 v27, v{V_HROW}, s{S_T+1}, v3")
    e(f"s_mov_b64 s[{S_LC}:{S_LC+1}], s[{S_WC}:{S_WC+1}]"); e(f"s_mov_b32 s{S_LC+3}, 0x00020000"); e(f"s_mov_b32 s{S_LC+2}, {2*LB}")
    e(f"s_mul_i32 s{S_ROT}, s{S_R}, {PAR.rot}")
    e("v_lshrrev_b32 v1, 3, v0"); e(f"s_lshl_b32 s{S_T}, s{S_J}, 3"); e(f"v_add_u32 v1, s{S_T}, v1")
    e("v_mul_u32_u24 v1, 1664, v1")
    e("v_bfe_u32 v2, v0, 4, 1"); e("v_lshlrev_b32 v2, 2, v2"); e("v_and_b32 v3, 7, v0"); e("v_xor_b32 v2, v2, v3")
    e("v_lshl_add_u32 v1, v2, 4, v1"); e(f"s_lshl_b32 s{S_SB}, s{S_R}, 7"); e(f"v_add_u32 v{V_WSRC}, s{S_SB}, v1")
    e("v_lshrrev_b32 v1, 5, v0"); e("v_bfe_u32 v2, v0, 2, 2")
    e("v_lshl_add_u32 v1, v1, 3, v2"); e("v_lshlrev_b32 v1, 7, v1")
    e("v_bfe_u32 v3, v0, 4, 1"); e("v_lshl_add_u32 v1, v3, 5, v1"); e("v_and_b32 v3, 3, v0"); e("v_lshl_add_u32 v1, v3, 3, v1")
    e("v_lshrrev_b32 v2, 1, v2"); e("v_lshl_add_u32 v1, v2, 6, v1")
    e(f"v_add_u32 v{V_TR0}, {D0}, v1"); e(f"v_xor_b32 v{V_TR1}, 64, v{V_TR0}")
    e(f"s_mul_i32 s{S_PO}, s{S_G}, 13"); e(f"s_add_u32 s{S_PO}, s{S_PO}, s{S_R}"); e(f"s_lshl_b32 s{S_PO}, s{S_PO}, 2"); e(f"s_add_u32 s{S_PO}, s{S_PO}, s{S_J}")
    e(f"s_lshl_b32 s{S_PO}, s{S_PO}, 8"); e(f"s_add_u32 s{S_PO}, s{S_PO}, {WS_PART}")
    e("v_bfe_u32 v60, v0, 3, 2"); e("v_and_b32 v61, 3, v0"); e("v_lshl_add_u32 v60, v60, 2, v61"); e("v_mul_u32_u24 v245, 1792, v60")
    e("v_bfe_u32 v60, v0, 2, 1"); e("v_lshl_add_u32 v245, v60, 4, v245"); e(f"v_lshl_add_u32 v245, v{V_H16}, 1, v245")
    e(f"s_lshl_b32 s{S_T}, s{S_J}, 6"); e(f"s_add_u32 s{S_T}, s{S_T}, {D0}"); e(f"v_add_u32 v245, s{S_T}, v245")
    e("v_lshlrev_b32 v246, 4, v0"); e(f"v_lshl_add_u32 v246, v{V_H16}, 5, v246")
    e(f"s_lshl_b32 s{S_XB}, s{S_G}, 2"); e(f"s_lshr_b32 s{S_T}, s{S_R}, 2"); e(f"s_add_u32 s{S_XB}, s{S_XB}, s{S_T}"); e(f"s_mul_i32 s{S_XB}, s{S_XB}, 106496")
    e(f"s_bfe_u32 s{S_T}, s{S_R}, 0x10001"); e(f"s_lshl_b32 s{S_T}, s{S_T}, 11"); e(f"s_add_u32 s{S_XB}, s{S_XB}, s{S_T}")
    e(f"s_and_b32 s{S_T}, s{S_R}, 1"); e(f"s_lshl_b32 s{S_T}, s{S_T}, 9"); e(f"s_add_u32 s{S_XB}, s{S_XB}, s{S_T}")
    e(f"s_lshl_b32 s{S_T}, s{S_J}, 12"); e(f"s_add_u32 s{S_XB}, s{S_XB}, s{S_T}"); e(f"s_add_u32 s{S_XB}, s{S_XB}, {WS_X}")
    for t in range(7):
        g.vmwait(f"w0_{t}")
        a = HX + 16 * t; w = W0R + 8 * t
        e(f"v_mfma_f32_32x32x16_bf16 {vr(a,16)}, {vr(w,4)}, {vr(ID,4)}, 0")
        e(f"v_mfma_f32_32x32x16_bf16 {vr(a,16)}, {vr(w+4,4)}, {vr(ID+4,4)}, {vr(a,16)}")
        e(f"v_mfma_f32_32x32x16_bf16 {vr(a,16)}, {vr(ID,4)}, {vr(w,4)}, {vr(a,16)}")
        e(f"v_mfma_f32_32x32x16_bf16 {vr(a,16)}, {vr(ID+4,4)}, {vr(w+4,4)}, {vr(a,16)}")
        if t > 0: s0_max(g, t - 1)
    s0_max(g, 6)
    put_max(g, M_S0)
    g.vmwait("rst")
    e(f"v_mov_b32 v{V_CNT}, {M_CNT}")
    arrive(g, "S0M")
    e("v_mov_b32 v35, 1"); e(f"s_lshl_b32 s{S_E3}, s{S_G}, 2")
    g.vm(f"buffer_store_dword v35, v34, {sr(S_DBG)}, s{S_E3} offen offset:{C_RDY} sc1", "rdy")
    lwait(g, "S0M")
    g.stamp(); g.stamp("h")
    get_max(g, M_S0)
    e("v_lshlrev_b32 v3, 4, v0"); e(f"v_mov_b32 v{PK}, 0")
    e(f"ds_write_b32 v3, v{PK} offset:{BUFA + 22*S0STR + 12}")
    e("v_lshrrev_b32 v1, 23, v1")
    e("v_min_u32 v1, 249, v1")
    e("v_sub_u32 v2, 124, v1")
    e("v_subrev_u32 v1, 124, v1")
    e(f"ds_write_b32 v3, v1 offset:{BUFA + 23*S0STR + 512}")
    for t in range(7): e(f"v_ldexp_f32 v{QS+t}, v{QS+t}, v2")
    for t in range(7):
        if t == 6:
            e(f"s_cmp_eq_u32 s{S_J}, 1"); e(f"s_cselect_b32 s{S_T}, 48, 0")
            for i in range(7): e(f"v_add_u32 v{QA+i}, s{S_T}, v{QA+i}")
        if t in (0, 2, 4, 6): g.stamp("h")
        pack_round(g, HX + 16 * t, 16 * (8 * (t >> 1) + 4 * (t & 1)))
    arrive(g, "S0OK")
    g.stamp(); g.stamp("s"); g.stamp("h")
    DR = HX; XS = HX + 64; PS = 60
    def xpub():
        lwait(g, "RAW")
        for t in range(7): e(f"ds_read_b128 {vr(XS+4*t,4)}, v245 offset:{256*t}")
        e(f"s_cmp_ge_u32 s{S_J}, 2"); e(f"s_cselect_b32 s{S_T}, {OOB}, 0"); e(f"v_add_u32 v245, s{S_T}, v246")
        for t in range(7):
            e(f"s_waitcnt lgkmcnt({6-t})")
            g.vm(f"buffer_store_dwordx4 {vr(XS+4*t,4)}, v{246 if t < 6 else 245}, {sr(S_WS)}, s{S_XB} offen sc1", "xst")
            e(f"s_add_u32 s{S_XB}, s{S_XB}, 16384")
        e(f"s_cmp_ge_u32 s{S_R}, 13"); e(f"s_cselect_b32 s{S_T}, {OOB}, 0")
        e(f"v_lshl_add_u32 v1, v0, 2, s{S_T}"); e("v_mov_b32 v3, -1")
        g.vm(f"buffer_store_dword v3, v1, {sr(S_WS)}, s{S_PO} offen sc1", "sent")
        presample(g, [(S_DBG, f"s{S_E3}", C_RDY, 1)], [28], "rdyl")
        e(f"v_lshrrev_b32 v1, 1, v{V_H16}")
        for a in range(2):
            for q in range(4):
                g.vm(f"buffer_load_dwordx2 {vr(BT+8*a+2*q,2)}, v1, {sr(S_B1)}, s{S_SB} offen offset:{64*a+16*q}", "bias")
        if PAR.wpf2:
            e(f"s_lshl_b32 s{S_T+1}, s{S_J}, 6"); e(f"v_add_u32 v1, s{S_T+1}, v0"); e("v_mul_u32_u24 v1, 1664, v1"); e(f"v_add_u32 v1, s{S_T}, v1")
            for i in range(4):
                e(f"s_add_u32 s{S_T+1}, s{S_SB}, {i*256*1664}")
                g.vm(f"buffer_load_dword v{200+i}, v1, {sr(S_W1)}, s{S_T+1} offen", "wpf")
        g.stamp("s")
    e(f"s_cmp_ge_u32 s{S_R}, 13"); e("s_cbranch_scc1 L_pe1")
    g.lab("L_pe1r")
    xpub()
    e(f"s_cmp_ge_u32 s{S_R}, 13"); e("s_cbranch_scc1 L_pe2")
    g.lab("L_pe2r")
    g.vmwait("rdyl")
    arrive(g, "XST")
    lwait(g, "XST", 8)
    e(f"s_cmp_lg_u32 s{S_J}, 0"); e("s_cbranch_scc1 L_nosig")
    poll(g, [(S_DBG, f"s{S_E3}", C_RDY, 1)], pre=[28])
    e("v_mov_b32 v1, 1")
    e(f"buffer_atomic_add v1, v{V_L0}, {sr(S_WS)}, s{S_CX} offen sc1")
    g.lab("L_nosig")
    g.stamp(); g.stamp("s")

def helper_dnn(g):
    e = g.e
    CH = PAR.chunks; NS = PAR.nslot
    def xb(f, tile, t): return HX + 16 * (f % NS) + 8 * tile + 4 * t
    def xload(f):
        rotf(g, f, S_T + 2); e(f"s_lshl_b32 s{S_T+2}, s{S_T+2}, 12"); e(f"s_add_u32 s{S_T+2}, s{S_T+2}, s{S_XB}")
        for tile in range(2):
            for t in range(2):
                g.vm(f"buffer_load_dwordx4 {vr(xb(f,tile,t),4)}, v2, {sr(S_WS)}, s{S_T+2} offen offset:{2048*tile+1024*t} {PAR.ld}", f"x{f}")
    dma_w(g, 0)
    dma_w(g, 1)
    g.vmwait("bias")
    for a in range(2):
        for i in range(8):
            e(f"v_lshlrev_b32 v{HACC+16*a+2*i}, 16, v{BT+8*a+i}")
            e(f"v_and_b32 v{HACC+16*a+2*i+1}, 0xffff0000, v{BT+8*a+i}")
    for i in range(32): e(f"v_mov_b32 v{HACC+32+i}, v{HACC+i}")
    e(f"s_lshl_b32 s{S_XB}, s{S_G}, 2"); e(f"s_add_u32 s{S_XB}, s{S_XB}, s{S_J}"); e(f"s_mul_i32 s{S_XB}, s{S_XB}, 106496"); e(f"s_add_u32 s{S_XB}, s{S_XB}, {WS_X}")
    if PAR.l2pos < 0: poll1(g, [CHK_X(), (S_DBG, "0", C_L[2], 11)], "FX")
    else: poll1(g, [CHK_X()], "FX")
    g.stamp("s")
    g.stamp()
    e("v_bfe_u32 v2, v0, 2, 3"); e("v_lshlrev_b32 v2, 7, v2"); e(f"v_lshl_add_u32 v2, v{V_H16}, 2, v2"); e("v_and_b32 v3, 3, v0"); e("v_lshl_add_u32 v2, v3, 4, v2")
    for f in range(NS):
        xload(f)
        if PAR.l2pos < 0 and f == -PAR.l2pos: lwait(g, "AFREE"); dma_img(g, "L2", 44, BUFA)
    FL = 232
    W2R = 232 + 0
    wring = [0]
    def loc(ks):
        f = ks // 2; c = max(i for i in range(4) if F0(i) <= f)
        return c, ks - 2 * F0(c)
    def wread(ks):
        c, kl = loc(ks)
        Dc = (D0, D1)[c & 1]
        base = HW_ + 8 * (wring[0] % 3); wring[0] += 1
        for a, ad in ((0, V_TR0), (1, V_TR1)):
            for rd in range(2):
                e(f"ds_read_b64_tr_b16 {vr(base+4*a+2*rd,2)}, v{ad} offset:{Dc - D0 + kl*2048 + rd*512}")
        return base
    CK2 = [(S_DBG, "0", C_L[2], 11)]; CKQ = [(S_DBG, "0", C_Q, 9)]; CK3 = [(S_DBG, "0", C_L[3], 11)]
    def act_l2():
        lwait(g, "AFREE"); g.vmwait("f2"); poll1(g, CK2, "F2", pre=[196]); dma_img(g, "L2", 44, BUFA)
    after = {}
    def add(f, fn): after.setdefault(f, []).append(fn)
    if PAR.l2pos >= 0:
        add(PAR.l2pos - 2, lambda: presample(g, CK2, [196], "f2"))
        add(PAR.l2pos, act_l2)
        add(PAR.l2pos + 4, lambda: (g.vmwait("L2"), arrive(g, "L2OK")))
    else: add(-PAR.l2pos, lambda: (g.vmwait("L2"), arrive(g, "L2OK")))
    add(F0(1), lambda: (lwait(g, "C0"), dma_w(g, 2)))
    add(F0(3) - 3, lambda: presample(g, CKQ + CK3, [196, 197], "fq"))
    g.vmwait("W1"); arrive(g, "W01"); lwait(g, "W01")
    for c in range(4):
        k0 = 2 * F0(c); k1 = 2 * F0(c + 1)
        bufs = {k0: wread(k0), k0 + 1: wread(k0 + 1)}
        for ks in range(k0, k1):
            f, t = divmod(ks, 2)
            if t == 0: g.vmwait(f"x{f}")
            e(f"s_waitcnt lgkmcnt({4 if ks + 1 < k1 else 0})")
            for a in range(2):
                for tile in range(2):
                    acc = HACC + 32 * tile + 16 * a
                    e(f"v_mfma_f32_32x32x16_bf16 {vr(acc,16)}, {vr(bufs[ks]+4*a,4)}, {vr(xb(f,tile,t),4)}, {vr(acc,16)}")
                if a == 0 and ks + 2 < k1: bufs[ks + 2] = wread(ks + 2)
            if t == 1:
                if f + NS < 26: xload(f + NS)
                for fn in after.get(f, []): fn()
        if c == 0: arrive(g, "C0"); g.stamp()
        if c == 1:
            g.vmwait("W2"); arrive(g, "C1"); lwait(g, "C1"); dma_w(g, 3)
        if c == 2:
            g.vmwait("W3"); arrive(g, "C2"); lwait(g, "C2")
            if not PAR.qlate: g.vmwait("fq"); poll1(g, CKQ, "FQ", pre=[196]); dma_img(g, "Q4", 28, D0)
            e(f"v_lshrrev_b32 v1, 1, v{V_H16}")
            for a in range(2):
                for q in range(4):
                    g.vm(f"buffer_load_dwordx2 {vr(W2R+8*a+2*q,2)}, v1, {sr(S_W2)}, s{S_SB} offen offset:{64*a+16*q}", "w2")
    if PAR.qlate: g.vmwait("fq"); poll1(g, CKQ, "FQ", pre=[196]); dma_img(g, "Q4", 28, D0)
    e("s_waitcnt vmcnt(0)"); arrive(g, "QOK")
    g.stamp()
    W2F = HX
    for i in range(16):
        e(f"v_lshlrev_b32 v{W2F+2*i}, 16, v{W2R+i}")
        e(f"v_and_b32 v{W2F+2*i+1}, 0xffff0000, v{W2R+i}")
    c0 = 2 * 0.7978845608028654 * 1.4426950408889634
    e(f"s_mov_b32 s{S_C1}, {f2u(c0*0.044715):#x}")
    e(f"v_mov_b32 v2, {f2u(c0):#x}")
    T = HX + 32; SUM = HX + 48
    for i in range(4): e(f"v_mov_b32 v{SUM+i}, 0")
    def gelu(blk):
        rs = [HACC + 4 * blk + i for i in range(4)]
        tile = (4 * blk) // 32
        for i, r in enumerate(rs): e(f"v_mul_f32 v{T+i}, v{r}, v{r}")
        for i, r in enumerate(rs): e(f"v_fma_f32 v{T+i}, v{T+i}, s{S_C1}, v2")
        for i, r in enumerate(rs): e(f"v_mul_f32 v{T+i}, v{T+i}, v{r}")
        for i, r in enumerate(rs): e(f"v_exp_f32 v{T+i}, -v{T+i}")
        for i, r in enumerate(rs): e(f"v_mul_f32 v{r}, v{r}, v{W2F + (r - HACC) % 32}")
        for i, r in enumerate(rs): e(f"v_add_f32 v{T+i}, 1.0, v{T+i}")
        for i, r in enumerate(rs): e(f"v_rcp_f32 v{T+i}, v{T+i}")
        for i, r in enumerate(rs): e(f"v_fmac_f32 v{SUM + 2*tile + (i&1)}, v{r}, v{T+i}")
    for blk in range(16):
        if blk == PAR.gsplit:
            lwait(g, "BFREE"); poll1(g, CK3, "F3", pre=[197]); dma_img(g, "L3", 44, BUFB)
        if blk == PAR.gsplit2:
            e("s_waitcnt vmcnt(0)"); arrive(g, "L3OK")
        if blk == PAR.ghi: e("s_setprio 0")
        gelu(blk)
    e("s_setprio 2")
    e(f"v_add_f32 v{SUM}, v{SUM}, v{SUM+1}"); e(f"v_add_f32 v{SUM+2}, v{SUM+2}, v{SUM+3}")
    e(f"v_permlane32_swap_b32 v{SUM}, v{SUM+2}")
    e(f"v_add_f32 v{SUM}, v{SUM}, v{SUM+2}")
    e(f"v_min_u32 v{SUM}, -2, v{SUM}")
    e("v_lshlrev_b32 v1, 2, v0")
    e(f"buffer_store_dword v{SUM}, v1, {sr(S_WS)}, s{S_PO} offen sc1")
    g.stamp()
    g.flush_stamps(4, 5)
    e("s_endpgm")

def gsignal(g, c, off, so="0"):
    e = g.e; done = g.newlab("sg")
    e("s_waitcnt vmcnt(0)"); arrive(g, c)
    e(f"s_cmp_lg_u32 s{S_J}, 0"); e(f"s_cbranch_scc1 {done}")
    lwait(g, c)
    e("v_mov_b32 v1, 1")
    e(f"buffer_atomic_add v1, v{V_L0}, {sr(S_DBG)}, {so} offen offset:{off} sc1")
    g.lab(done)
SCN, FR, WV, WP, W1V, AQ, RW = 68, 104, 32, 33, 160, 44, 180
QAR = lambda i: (64 + i) if i < 4 else (240 + i)
S_E4, S_LW = 62, 63
def prod_early1(g):
    e = g.e
    g.lab("L_pe1")
    e(f"s_mul_i32 s{S_WP}, s{S_G}, 3"); e(f"s_add_u32 s{S_WP}, s{S_WP}, s{S_R}"); e(f"s_sub_u32 s{S_WP}, s{S_WP}, 13")
    e(f"s_cmp_ge_u32 s{S_WP}, 31"); e("s_cbranch_scc1 L_pe1r")
    e(f"s_mul_i32 s{S_L}, s{S_WP}, 94"); e(f"s_lshr_b32 s{S_L}, s{S_L}, 10")
    e(f"s_mul_i32 s{S_T}, s{S_L}, 11"); e(f"s_sub_u32 s{S_FR}, s{S_WP}, s{S_T}"); e(f"s_lshl_b32 s{S_FR}, s{S_FR}, 2"); e(f"s_add_u32 s{S_FR}, s{S_FR}, s{S_J}")
    e(f"s_add_u32 s{S_L}, s{S_L}, 2")
    e(f"s_mul_i32 s{S_E2}, s{S_L}, {LB}")
    e(f"s_add_u32 s{S_LC+2}, s{S_E2}, {LB}")
    e("v_lshlrev_b32 v1, 4, v0")
    e(f"s_mul_i32 s{S_T}, s{S_J}, 9216"); e(f"s_add_u32 s{S_T}, s{S_T}, s{S_E2}")
    for i in range(9):
        if i % 4 == 0 and i: e(f"s_add_u32 s{S_T}, s{S_T}, 4096")
        e(f"buffer_load_dwordx4 {vr(SCN+4*i,4)}, v1, {sr(S_LC)}, s{S_T} offen offset:{(i%4)*1024}")
    e(f"s_cmp_ge_u32 s{S_WP}, 22"); e("s_cbranch_scc1 L_pe1r")
    e(f"s_lshl_b32 s{S_T}, s{S_FR}, 4"); e(f"s_add_u32 s{S_T}, s{S_T}, s{S_E2}")
    e(f"buffer_load_dwordx4 {vr(FR,4)}, v27, {sr(S_LC)}, s{S_T} offen")
    e(f"v_lshlrev_b32 v1, 1, v{V_HROW}"); e(f"s_mul_i32 s{S_T}, s{S_L}, 52")
    e(f"buffer_load_ushort v{WV}, v1, {sr(S_WO)}, s{S_T} offen")
    e(f"buffer_load_ushort v{WP}, v1, {sr(S_WO)}, 52 offen")
    e("v_lshrrev_b32 v3, 5, v0"); e("v_mul_u32_u24 v3, 26, v3")
    for i in range(8):
        e(f"s_lshl_b32 s{S_T}, s{S_FR}, 3"); e(f"s_sub_u32 s{S_T}, s{S_T}, {8*42 + 2 - i}")
        e(f"s_lshl_b32 s{S_T+1}, s{S_T}, 1"); e(f"s_add_u32 s{S_T+1}, s{S_T+1}, 52")
        e(f"s_cmp_lt_u32 s{S_T}, 13"); e(f"s_cselect_b32 s{S_T+1}, s{S_T+1}, {OOB}")
        e(f"v_add_u32 v2, s{S_T+1}, v3")
        e(f"buffer_load_ushort v{W1V+i}, v2, {sr(S_WO)}, 0 offen")
    e("s_branch L_pe1r")
def prod_early2(g):
    e = g.e
    g.lab("L_pe2")
    e(f"s_cmp_ge_u32 s{S_WP}, 31"); e("s_cbranch_scc1 L_pe2r")
    e("s_setprio 2")
    e(f"s_waitcnt vmcnt({21 if PAR.wpf2 else 17})")
    for i in range(36): e(f"v_and_b32 v{SCN+i}, s{S_MASK}, v{SCN+i}")
    pkmax(g, [SCN + i for i in range(36)])
    put_max(g, M_SC)
    arrive(g, "SCM"); lwait(g, "SCM")
    get_max(g, M_SC)
    e(f"v_readfirstlane_b32 s{S_E0}, v1")
    e(f"s_bfe_u32 s{S_E0}, s{S_E0}, 0x80007")
    e(f"s_cmp_ge_u32 s{S_WP}, 22"); e("s_cbranch_scc1 L_pe2r")
    g.lab("L_gjob")
    e(f"s_min_u32 s{S_T+2}, s{S_E0}, 249"); e(f"s_sub_u32 s{S_T+3}, {127+124}, s{S_T+2}"); e(f"s_lshl_b32 s{S_T+3}, s{S_T+3}, 23")
    e(f"s_cmp_lt_u32 s{S_FR}, 42"); e(f"s_cselect_b32 s{S_T+1}, -1, 0")
    for i in range(1, 4): e(f"v_and_b32 v{FR+i}, s{S_T+1}, v{FR+i}")
    e(f"s_cmp_lt_u32 s{S_FR}, 43"); e(f"s_cselect_b32 s{S_T+1}, -1, 0"); e(f"v_and_b32 v{FR}, s{S_T+1}, v{FR}")
    for i in range(4): e(f"v_alignbit_b32 v{FR+i}, v{FR+i}, v{FR+i}, v{V_H16}")
    for i in range(4):
        e(f"v_lshlrev_b32 v{SCN+2*i}, 16, v{FR+i}"); e(f"v_and_b32 v{SCN+2*i+1}, 0xffff0000, v{FR+i}")
    for i in range(8): e(f"v_mul_f32 v{SCN+i}, s{S_T+3}, v{SCN+i}")
    for i in range(4): e(f"v_cvt_pk_f16_f32 v{FR+i}, v{SCN+2*i}, v{SCN+2*i+1}")
    e(f"v_lshlrev_b32 v{WV}, 16, v{WV}")
    e(f"v_and_b32 v1, 0x7fffffff, v{WV}")
    wavemax_exp(g, 1, S_E1)
    e(f"s_sub_u32 s{S_E1}, s{S_E1}, 13"); e(f"s_sub_u32 s{S_T}, 0, s{S_E1}")
    e(f"v_ldexp_f32 v{WV}, v{WV}, s{S_T}")
    for i in range(8): e(f"v_mul_f32 v{SCN+i}, v{SCN+i}, v{WV}")
    for sh in (1, 2, 4, 8):
        for i in range(8): e(f"v_add_f32_dpp v{SCN+i}, v{SCN+i}, v{SCN+i} row_shr:{sh} {DPPALL} bound_ctrl:0")
    for i in range(8): e(f"v_add_f32_dpp v{SCN+i}, v{SCN+i}, v{SCN+i} row_bcast:15 row_mask:0xa bank_mask:0xf")
    for i in range(4): e(f"v_cvt_pk_f16_f32 v{SCN+2*i}, v{SCN+2*i}, v{SCN+2*i+1}")
    e("v_and_b32 v2, 31, v0"); e("v_cmp_eq_u32 vcc, 31, v2")
    for i in range(4): e(f"v_cndmask_b32 v{FR+i}, v{FR+i}, v{SCN+2*i}, vcc")
    e(f"v_lshlrev_b32 v1, 16, v{WP}"); e("v_and_b32 v1, 0x7fffffff, v1")
    wavemax_exp(g, 1, S_E4)
    e(f"s_sub_u32 s{S_T}, 15, s{S_E4}")
    for i in range(8): e(f"v_lshlrev_b32 v{W1V+i}, 16, v{W1V+i}")
    for i in range(8): e(f"v_ldexp_f32 v{W1V+i}, v{W1V+i}, s{S_T}")
    for i in range(4): e(f"v_cvt_pk_f16_f32 v{W1V+2*i}, v{W1V+2*i}, v{W1V+2*i+1}")
    e("v_cmp_eq_u32 vcc, 30, v2")
    for i in range(4): e(f"v_cndmask_b32 v{FR+i}, v{FR+i}, v{W1V+2*i}, vcc")
    e(f"s_cmp_lg_u32 s{S_FR}, 0"); e("s_cbranch_scc1 L_nohdr")
    e(f"s_sub_u32 s{S_T+2}, s{S_T+2}, 124"); e(f"s_add_u32 s{S_E1}, s{S_E1}, s{S_T+2}"); e(f"s_sub_u32 s{S_E4}, s{S_E4}, 15")
    e(f"v_writelane_b32 v{FR}, s{S_T+2}, 29"); e(f"v_writelane_b32 v{FR+1}, s{S_E1}, 29"); e(f"v_writelane_b32 v{FR+2}, s{S_E4}, 29")
    g.lab("L_nohdr")
    e(f"s_mul_i32 s{S_T}, s{S_L}, {44*1024}"); e(f"s_lshl_b32 s{S_T+1}, s{S_FR}, 10"); e(f"s_add_u32 s{S_T}, s{S_T}, s{S_T+1}")
    e(f"s_sub_u32 s{S_T}, s{S_T}, {88*1024 - IMG['L2']}")
    e("v_lshlrev_b32 v1, 4, v0")
    e(f"buffer_store_dwordx4 {vr(FR,4)}, v1, {sr(S_WS)}, s{S_T} offen sc1")
    e("s_nop 1")
    e("s_branch L_pe2r")
def helper_prod(g):
    e = g.e
    e(f"s_cmp_ge_u32 s{S_WP}, 31"); e("s_cbranch_scc1 L_idle")
    e(f"s_cmp_ge_u32 s{S_WP}, 22"); e("s_cbranch_scc1 L_nog")
    e(f"s_lshl_b32 s{S_T+2}, s{S_L}, 2"); e(f"s_sub_u32 s{S_T+2}, s{S_T+2}, 8")
    gsignal(g, "GST", 0, f"s{S_T+2}")
    e("s_branch L_idle")
    g.lab("L_nog")
    e("v_and_b32 v2, 31, v0"); e("v_lshrrev_b32 v3, 5, v0")
    e("v_mul_u32_u24 v1, 676, v3"); e("v_add_lshl_u32 v1, v1, v2, 1")
    e(f"s_mul_i32 s{S_T}, s{S_FR}, 52"); e(f"s_add_u32 s{S_T}, s{S_T}, {4*LB}")
    for s in range(13):
        e(f"buffer_load_ushort v{W1V+s}, v1, {sr(S_LC)}, s{S_T} offen")
        e(f"s_add_u32 s{S_T}, s{S_T}, 2704")
    e(f"s_cmp_eq_u32 s{S_WP}, 29"); e(f"s_cselect_b32 s{S_LW}, 4, 5"); e(f"s_cmp_eq_u32 s{S_WP}, 30"); e(f"s_cselect_b32 s{S_LW}, 0, s{S_LW}")
    e(f"s_mul_i32 s{S_E2}, s{S_LW}, {LB}"); e(f"s_add_u32 s{S_LC+2}, s{S_E2}, {LB}")
    e("v_lshlrev_b32 v1, 1, v0"); e("v_cmp_lt_u32 vcc, 25, v0"); e(f"v_mov_b32 v2, {OOB}"); e("v_cndmask_b32 v1, v1, v2, vcc")
    e(f"s_mul_i32 s{S_T}, s{S_LW}, 52")
    e(f"buffer_load_ushort v{WV}, v1, {sr(S_WO)}, s{S_T} offen")
    e("v_lshlrev_b32 v1, 4, v0")
    e(f"s_mul_i32 s{S_T}, s{S_J}, 1352"); e(f"s_add_u32 s{S_T}, s{S_T}, s{S_E2}")
    for t in range(7):
        for ps in range(2):
            e(f"buffer_load_dwordx4 {vr(RW+8*t+4*ps,4)}, v1, {sr(S_LC)}, s{S_T} offen offset:{1024*ps}")
        e(f"s_add_u32 s{S_T}, s{S_T}, {4*1352}")
    e("s_waitcnt vmcnt(0)")
    AC = HX; TU = HX + 16
    for t in range(6): e(f"v_lshl_or_b32 v{QAR(t)}, v{W1V+2*t+1}, 16, v{W1V+2*t}")
    e(f"v_mov_b32 v{QAR(6)}, v{W1V+12}"); e(f"v_mov_b32 v{QAR(7)}, 0")
    g.stamp("q")
    e(f"v_lshlrev_b32 v{WV}, 16, v{WV}"); e(f"v_and_b32 v1, 0x7fffffff, v{WV}")
    wavemax_exp(g, 1, S_E1)
    e(f"s_sub_u32 s{S_T}, 0, s{S_E1}"); e(f"v_ldexp_f32 v{WV}, v{WV}, s{S_T}")
    for i in range(16): e(f"v_mov_b32 v{AC+i}, 0")
    for t in range(7):
        e(f"s_add_u32 s{S_T}, s{S_J}, {4*t}")
        e(f"v_readlane_b32 s{S_T+1}, v{WV}, s{S_T}")
        for i in range(8):
            e(f"v_lshlrev_b32 v{TU+2*i}, 16, v{RW+8*t+i}"); e(f"v_and_b32 v{TU+2*i+1}, 0xffff0000, v{RW+8*t+i}")
        for i in range(16): e(f"v_fmac_f32 v{AC+i}, s{S_T+1}, v{TU+i}")
    PSTR = 4096
    e(f"s_mul_i32 s{S_T}, s{S_J}, {PSTR}"); e(f"s_add_u32 s{S_T}, s{S_T}, {D0}")
    e(f"v_lshl_add_u32 v1, v0, 5, s{S_T}")
    for ps in range(2):
        for hf in range(2): e(f"ds_write_b128 v1, {vr(AC+8*ps+4*hf,4)} offset:{2048*ps+16*hf}")
    g.stamp("q"); arrive(g, "WC"); lwait(g, "WC"); g.stamp("q")
    e(f"s_cmp_eq_u32 s{S_FR}, 28"); e("s_cbranch_scc1 L_lin")
    e(f"s_cmp_lt_u32 s{S_FR}, 26"); e("s_cbranch_scc1 L_q")
    e(f"s_cmp_lg_u32 s{S_FR}, 32"); e("s_cbranch_scc1 L_noq")
    g.lab("L_q")
    BQ, PT, DQ = HX + 16, HX + 32, HX + 96
    e("v_and_b32 v2, 31, v0"); e("v_lshrrev_b32 v3, 5, v0")
    e("v_mad_u32_u24 v1, v3, 26, v2"); e("v_lshlrev_b32 v1, 2, v1"); e(f"v_add_u32 v1, {D0}, v1")
    def readsum(stride):
        for pj in range(4):
            for s in range(13): e(f"ds_read_b32 v{PT+13*pj+s}, v1 offset:{PSTR*pj + stride*s}")
            if pj: e("s_waitcnt lgkmcnt(13)")
        e("s_waitcnt lgkmcnt(0)")
        for s in range(13):
            e(f"v_add_f32 v{PT+s}, v{PT+s}, v{PT+13+s}"); e(f"v_add_f32 v{PT+26+s}, v{PT+26+s}, v{PT+39+s}")
        for s in range(13): e(f"v_add_f32 v{BQ+s}, v{PT+s}, v{PT+26+s}")
    def max13():
        e(f"v_max3_f32 v1, |v{BQ}|, |v{BQ+1}|, |v{BQ+2}|")
        for s in range(3, 13, 2): e(f"v_max3_f32 v1, v1, |v{BQ+s}|, |v{BQ+s+1}|")
    readsum(208)
    e("v_cmp_gt_u32 vcc, 26, v2")
    for s in range(13): e(f"v_cndmask_b32 v{BQ+s}, 0, v{BQ+s}, vcc")
    max13()
    wavemax_exp(g, 1, S_E2)
    e(f"s_sub_u32 s{S_T}, 0, s{S_E2}")
    for s in range(13): e(f"v_ldexp_f32 v{BQ+s}, v{BQ+s}, s{S_T}")
    e(f"s_max_u32 s{S_E0}, s{S_E0}, 10"); e(f"s_sub_u32 s{S_E0}, s{S_E0}, 126")
    BH, BL = PT, PT + 8
    e(f"v_mov_b32 v{BQ+13}, 0"); e(f"v_mov_b32 v{BH+7}, 0"); e(f"v_mov_b32 v{BL+7}, 0")
    for t in range(7): e(f"v_cvt_pk_bf16_f32 v{BH+t}, v{BQ+2*t}, v{BQ+2*t+1}")
    for t in range(7):
        e(f"v_lshlrev_b32 v{PT+16+2*t}, 16, v{BH+t}"); e(f"v_and_b32 v{PT+17+2*t}, 0xffff0000, v{BH+t}")
    for t in range(14): e(f"v_sub_f32 v{BQ+t}, v{BQ+t}, v{PT+16+t}")
    for t in range(7): e(f"v_cvt_pk_bf16_f32 v{BL+t}, v{BQ+2*t}, v{BQ+2*t+1}")
    e(f"s_cmp_ge_u32 s{S_FR}, 13"); e(f"s_cselect_b32 s{S_T+1}, 13, 0"); e(f"s_cselect_b32 s{S_T+2}, 4, 0")
    e(f"s_sub_u32 s{S_T+1}, s{S_FR}, s{S_T+1}"); e(f"s_and_b32 s{S_T+3}, s{S_T+1}, 3"); e(f"s_add_u32 s{S_T+2}, s{S_T+2}, s{S_T+3}")
    e(f"s_lshr_b32 s{S_T+1}, s{S_T+1}, 2"); e(f"s_lshl_b32 s{S_T+1}, s{S_T+1}, 3"); e(f"s_add_u32 s{S_SB}, s{S_T+2}, s{S_T+1}")
    e(f"s_mov_b32 s{S_L}, 0")
    e(f"s_cmp_lg_u32 s{S_FR}, 32"); e("s_cbranch_scc1 L_q2")
    e("v_sub_u32 v1, v2, v3")
    for s in range(13):
        e(f"v_cmp_eq_u32 vcc, {2*s}, v1"); e(f"v_cndmask_b32 v{AQ+s}, 0, 1.0, vcc")
    e(f"v_mov_b32 v{AQ+13}, 0")
    for t in range(7): e(f"v_cvt_pk_bf16_f32 v{QAR(t)}, v{AQ+2*t}, v{AQ+2*t+1}")
    e(f"s_mov_b32 s{S_E0}, 0"); e(f"s_mov_b32 s{S_SB}, 31"); e(f"s_mov_b32 s{S_L}, 8")
    g.lab("L_q2")
    g.stamp("q")
    e("s_nop 1")
    first = True
    for bb in (BL, BH):
        for ks in range(2):
            e(f"v_mfma_f32_32x32x16_bf16 {vr(DQ,16)}, {vr(QAR(4*ks),4)}, {vr(bb+4*ks,4)}, {'0' if first else vr(DQ,16)}"); first = False
            e(f"v_mfma_f32_32x32x16_bf16 {vr(DQ,16)}, {vr(bb+4*ks,4)}, {vr(QAR(4*ks),4)}, {vr(DQ,16)}")
    e(f"v_max_f32 v1, v{QS}, v{QS+1}")
    e(f"s_sub_u32 s{S_T}, 137, s{S_E0}"); e(f"s_lshl_b32 s{S_T}, s{S_T}, 23"); e(f"v_mov_b32 v30, s{S_T}"); e("v_mul_f32 v31, 0.5, v30")
    for t in range(7):
        e(f"v_cmp_eq_f32 vcc, v1, v{QS+t}"); e(f"v_cndmask_b32 v{QS+t}, v31, v30, vcc")
    e(f"s_cmp_eq_u32 s{S_J}, 1"); e(f"s_cselect_b32 s{S_T}, 48, 0"); e(f"s_sub_u32 s{S_T}, {D1 - BUFA}, s{S_T}")
    for t in range(7): e(f"v_add_u32 v{QA+t}, s{S_T}, v{QA+t}")
    e(f"v_mul_u32_u24 v1, {S0STR}, v2"); e("v_lshl_add_u32 v1, v3, 9, v1"); e(f"s_lshl_b32 s{S_T}, s{S_J}, 4"); e(f"s_add_u32 s{S_T}, s{S_T}, {D1}")
    e(f"v_min_u32 v1, {22*S0STR+512}, v1")
    e(f"v_add_u32 v1, s{S_T}, v1")
    e(f"v_lshl_add_u32 v28, v3, 9, s{S_T}"); e("v_mov_b32 v29, 0")
    e(f"ds_write_b32 v28, v29 offset:{22*S0STR+12}")
    pack_round(g, DQ, 0)
    g.stamp("q")
    e("s_waitcnt lgkmcnt(0)")
    e(f"ds_read_b128 {vr(AQ,4)}, v1")
    e("v_lshlrev_b32 v1, 10, v2"); e("v_lshl_add_u32 v1, v3, 9, v1"); e("v_cmp_lt_u32 vcc, 22, v2"); e(f"v_mov_b32 v28, {OOB}"); e("v_cndmask_b32 v1, v1, v28, vcc")
    e(f"s_lshl_b32 s{S_T}, s{S_SB}, 4"); e(f"s_add_u32 s{S_T}, s{S_T}, {IMG['Q4']}")
    e("s_waitcnt lgkmcnt(0)")
    e(f"buffer_store_dwordx4 {vr(AQ,4)}, v1, {sr(S_WS)}, s{S_T} offen sc1")
    e(f"s_add_u32 s{S_E0}, s{S_E0}, s{S_E2}"); e(f"s_add_u32 s{S_E0}, s{S_E0}, s{S_E1}"); e(f"s_sub_u32 s{S_E0}, s{S_E0}, 10")
    e(f"s_and_b32 s{S_T}, s{S_FR}, 31"); e(f"s_cmp_lg_u32 s{S_T}, 0"); e("s_cbranch_scc1 L_noq")
    g.lab("L_qh")
    e(f"v_mov_b32 v1, s{S_E0}"); e(f"s_add_u32 s{S_T}, s{S_L}, {IMG['Q4'] + 23*1024}")
    e(f"buffer_store_dword v1, v{V_L0}, {sr(S_WS)}, s{S_T} offen sc1")
    e("s_branch L_noq")
    g.lab("L_lin")
    e("v_lshrrev_b32 v3, 5, v0"); e(f"v_min_u32 v2, 25, v{V_HROW}")
    e("v_mad_u32_u24 v1, v2, 26, v3"); e("v_lshlrev_b32 v1, 2, v1"); e(f"v_add_u32 v1, {D0}, v1")
    readsum(8)
    e(f"v_cmp_gt_u32 vcc, 26, v{V_HROW}")
    for s in range(13): e(f"v_cndmask_b32 v{BQ+s}, 0, v{BQ+s}, vcc")
    max13()
    wavemax_exp(g, 1, S_E2)
    e(f"s_sub_u32 s{S_T}, 15, s{S_E2}")
    for s in range(13): e(f"v_ldexp_f32 v{BQ+s}, v{BQ+s}, s{S_T}")
    e(f"v_mov_b32 v{BQ+13}, 0"); e(f"v_mov_b32 v{AQ+7}, 0")
    for t in range(7): e(f"v_cvt_pk_f16_f32 v{AQ+t}, v{BQ+2*t}, v{BQ+2*t+1}")
    e("v_lshlrev_b32 v1, 4, v0"); e(f"s_mov_b32 s{S_T}, {IMG['Q4'] + 24*1024}")
    for s in range(2): e(f"buffer_store_dwordx4 {vr(AQ+4*s,4)}, v1, {sr(S_WS)}, s{S_T} offen offset:{1024*s} sc1")
    e(f"s_add_u32 s{S_E0}, s{S_E2}, s{S_E1}"); e(f"s_sub_u32 s{S_E0}, s{S_E0}, 15"); e(f"s_mov_b32 s{S_L}, 4")
    e("s_branch L_qh")
    g.lab("L_noq")
    g.stamp("q")
    gsignal(g, "QST", C_Q)
    g.stamp("q")
    lwait(g, "QST")
    g.lab("L_idle")
    g.stamp()
    lwait(g, "AFREE")
    poll1(g, [(S_DBG, "0", C_L[2], 11), CHK_X()], "F2")
    dma_img(g, "L2", 44, BUFA)
    e("s_waitcnt vmcnt(0)"); arrive(g, "L2OK")
    g.stamp()
    lwait(g, "L2OK")
    poll1(g, [(S_DBG, "0", C_Q, 9)], "FQ")
    dma_img(g, "Q4", 28, D0)
    e("s_waitcnt vmcnt(0)"); arrive(g, "QOK")
    g.stamp()
    lwait(g, "BFREE")
    poll1(g, [(S_DBG, "0", C_L[3], 11)], "F3")
    dma_img(g, "L3", 44, BUFB)
    e("s_waitcnt vmcnt(0)"); arrive(g, "L3OK")
    g.stamp()
    g.flush_stamps(4, 5)
    e("s_endpgm")

def build(stamps=False):
    g = G(stamps)
    prologue(g); n0 = g.nst
    cin(g)
    g.lab("L_helper"); g.nst = n0
    helper_common(g); n1 = g.nst
    g.e(f"s_cmp_ge_u32 s{S_R}, 13"); g.e("s_cbranch_scc1 L_helper_n")
    helper_dnn(g)
    g.lab("L_helper_n"); g.nst = n1
    helper_prod(g)
    prod_early1(g); prod_early2(g)
    g.L += g.tail
    g.lab("L_end"); g.e("s_endpgm")
    body, nops = fix_hazards(g.L)
    ref = open("standalone__deep_cross_xdeepfm__recsys.s.ref").read().split("\n")
    hdr = [l for l in ref if l.startswith(";") and "@launch" not in l and "Override" not in l and "grid=ceil" not in l]
    txt = "\n".join(hdr) + f"\n; @launch grid=(256,1,1) block=(512,1,1) lds={LDS_TOTAL}\n"
    txt += f'.amdgcn_target "amdgcn-amd-amdhsa--gfx950"\n.text\n.globl {KN}\n.p2align 8\n.type {KN},@function\n{KN}:\n'
    txt += "\n".join(body) + "\n"
    txt += f""".section .rodata,"a"
.p2align 6
.amdhsa_kernel {KN}
  .amdhsa_next_free_vgpr 256
  .amdhsa_next_free_sgpr 102
  .amdhsa_accum_offset 256
  .amdhsa_group_segment_fixed_size 0
  .amdhsa_kernarg_size 88
  .amdhsa_user_sgpr_count 2
  .amdhsa_user_sgpr_kernarg_segment_ptr 1
  .amdhsa_system_sgpr_workgroup_id_x 1
.end_amdhsa_kernel
"""
    return txt, nops
if __name__ == "__main__":
    for a in sys.argv[2:]:
        if "=" in a:
            k, v = a.split("="); setattr(PAR, k, eval(v))
    txt, nops = build(stamps="stamps" in sys.argv)
    open(sys.argv[1], "w").write(txt)
    print("nops inserted", nops, "lines", txt.count("\n"))
```

```python
import sys, struct
from asmlib import fix_hazards
KN = "standalone__deep_cross_xdeepfm__recsys_kernel"
def f2u(f): return struct.unpack('<I', struct.pack('<f', f))[0]
OOB = 0x40000000
SPIN = 200000
LB = 35152
IMG = {}
off = 0
for name, n in (("L2", 44), ("L3", 44), ("Q4", 28)):
    IMG[name] = off; off += n * 1024
WS_PART = off
WS_CNT = WS_PART + 16 * 13 * 1024
WS_STAMP = WS_CNT + 4096
WS_X = WS_STAMP + 256 * 8 * 64
C_L = {2: 4, 3: 8}; C_Q = 12; C_RDY = 0
BUFA, BUFB = 0, 45056
D0, D1 = 90112, 118784
MISC = 147456
LDS_TOTAL = MISC + 2560
M_S0, M_L1, M_SC, M_EW1, M_CNT = MISC, MISC + 64, MISC + 128, MISC + 192, MISC + 256
CNT = {n: M_CNT + 4 * i for i, n in enumerate(["XST", "L1M", "L1OK", "AFREE", "L2OK", "BFREE", "L3OK", "QOK", "W01", "C0", "C1", "C2", "SCM", "GST", "WC", "QST", "FX", "F2", "F3", "FQ", "S0OK", "S0M", "RAW"])}
CNT["AFREE"] = M_CNT + 4 * 28; CNT["BFREE"] = M_CNT + 4 * 29
S0STR = 1040
QPAIRS = [(p, q) for p in range(13) for q in range(p, 13)]
S_IDX, S_TAB, S_WS, S_W1, S_B1, S_W2, S_OUT, S_DBG, S_BO, S_WC, S_WO = 4, 8, 12, 16, 20, 24, 28, 32, 36, 40, 44
S_G, S_R, S_WAVE, S_J = 70, 71, 83, 3
S_HDR = 48
S_EX = 60
S_K = 64
S_K1 = 4
S_KC = 76
S_T = 72
S_MASK = 80
S_C1 = 81
S_SB = 82
S_ST = 84
class P: pass
PAR = P()
PAR.chunks = [7, 7, 6, 6]
PAR.gsplit = 0
PAR.gsplit2 = 6
PAR.lnpos = 27
PAR.pload = 37
PAR.xst = 2
PAR.l2pos = 3
PAR.nslot = 8
PAR.st = 'ad'
PAR.ld = 'sc1'
PAR.inv = 0
PAR.wpf2 = 0
PAR.ghi = 4
PAR.qchk = 12
PAR.cp = 3
PAR.enc = None
PAR.rate = 20
PAR.qrate = 32
PAR.clk = 0
PAR.hp = 0
PAR.nost = 0
PAR.wpf = 1
PAR.rot = 2
PAR.pf = 4
PAR.qlate = 0
PAR.slp = 8
PAR.de = 2
PAR.touch = 0
PAR.dbg = None
class G:
    def __init__(self, stamps=False):
        self.L = []; self.stamps = stamps; self.nst = 0; self.nl = 0; self.vmq = []; self.tail = []
    def e(self, s): self.L.append("    " + s)
    def lab(self, s): self.L.append(s + ":")
    def vm(self, s, tag): self.e(s); self.vmq.append(tag)
    def vmwait(self, *tags):
        idx = max(i for i, t in enumerate(self.vmq) if t in tags)
        n = len(self.vmq) - 1 - idx
        self.e(f"s_waitcnt vmcnt({min(n, 63)})")
    def newlab(self, s): self.nl += 1; return f"L_{s}_{self.nl}"
    def stamp(self, name=None):
        if self.stamps and (name or "d") in PAR.st:
            assert self.nst < 8
            self.e(f"{'s_memtime' if PAR.clk else 's_memrealtime'} s[{S_ST+2*self.nst}:{S_ST+2*self.nst+1}]"); self.nst += 1
    def flush_stamps(self, vt, va):
        if not self.stamps: return
        self.e("s_waitcnt lgkmcnt(0)")
        self.e(f"s_lshl_b32 s{S_T}, s2, 3"); self.e(f"s_add_u32 s{S_T}, s{S_T}, s{S_WAVE}"); self.e(f"s_lshl_b32 s{S_T}, s{S_T}, 6")
        self.e(f"s_add_u32 s{S_T}, s{S_T}, {WS_STAMP}")
        self.e(f"v_mov_b32 v{va}, 0")
        if PAR.dbg is not None:
            lb = self.newlab("nd")
            self.e(f"s_cmp_lg_u32 s{S_T}, {WS_STAMP + PAR.dbg*64}"); self.e(f"s_cbranch_scc1 {lb}")
            for i in range(self.nst):
                self.e(f"s_sub_u32 s{S_T+1}, s{S_ST+2*i}, s{S_ST}")
                self.e(f"v_mov_b32 v{vt}, s{S_T+1}")
                self.e(f"buffer_store_dword v{vt}, v{va}, s[{S_DBG}:{S_DBG+3}], 0 offen offset:{64+4*i}")
            self.lab(lb)
        for i in range(self.nst):
            self.e(f"v_mov_b32 v{vt}, s{S_ST+2*i}")
            self.e(f"buffer_store_dword v{vt}, v{va}, s[{S_WS}:{S_WS+3}], s{S_T} offen offset:{4*i}")
        self.nst = 0
def vr(a, n): return f"v[{a}:{a+n-1}]"
def sr(a, n=4): return f"s[{a}:{a+n-1}]"
DPPALL = "row_mask:0xf bank_mask:0xf"

def prologue(g):
    e = g.e
    e("s_cmp_ge_u32 s2, 256")
    e("s_cbranch_scc1 L_end")
    g.stamp("a")
    e("s_load_dwordx16 s[48:63], s[0:1], 0")
    e("s_load_dwordx4 s[64:67], s[0:1], 64")
    e("s_load_dwordx2 s[68:69], s[0:1], 80")
    if PAR.pf:
        e(f"s_getpc_b64 s[{S_KC}:{S_KC+1}]")
        g.lab("L_pfbase")
        e(f"s_mov_b32 s{S_KC+2}, L_end - L_pfbase"); e(f"s_mov_b32 s{S_KC+3}, 0x00020000")
        e(f"s_lshr_b32 s{S_T}, s2, 3"); e(f"s_lshl_b32 s{S_T}, s{S_T}, 7")
        e("v_xor_b32 v1, 0x1c0, v0"); e("v_lshlrev_b32 v1, 12, v1")
        e(f"buffer_load_dword v255, v1, {sr(S_KC)}, s{S_T} offen")
    e("v_lshrrev_b32 v1, 6, v0")
    e("v_and_b32 v0, 63, v0")
    e(f"v_readfirstlane_b32 s{S_WAVE}, v1")
    e(f"s_and_b32 s{S_T}, s2, 7")
    e(f"s_lshr_b32 s{S_T+1}, s2, 3")
    e(f"s_lshr_b32 s{S_G}, s{S_T+1}, 4")
    e(f"s_lshl_b32 s{S_T}, s{S_T}, 1")
    e(f"s_add_u32 s{S_G}, s{S_G}, s{S_T}")
    e(f"s_and_b32 s{S_R}, s{S_T+1}, 15")
    e(f"s_mov_b32 s{S_MASK}, 0x7fff7fff")
    e("v_and_b32 v25, 31, v0"); e("v_lshlrev_b32 v25, 2, v25"); e(f"v_add_u32 v25, {M_CNT}, v25"); e("v_mov_b32 v2, 0")
    e("ds_write_b32 v25, v2")
    srds = ((S_IDX, 48, 4096*104), (S_TAB, 50, 6400000), (S_WC, 52, LB), (S_WO, 54, 312), (S_W1, 56, 832*1664), (S_B1, 58, 1664), (S_W2, 60, 1664),
            (S_BO, 62, 2), (S_OUT, 64, 8192), (S_DBG, 66, 256), (S_WS, 68, 1 << 28))
    for srd, src, nbytes in srds:
        e(f"s_mov_b32 s{srd+2}, {nbytes}"); e(f"s_mov_b32 s{srd+3}, 0x00020000")
    e("s_waitcnt lgkmcnt(0)")
    for srd, src, nbytes in srds:
        e(f"s_mov_b64 s[{srd}:{srd+1}], s[{src}:{src+1}]")
    e(f"s_cmp_ge_u32 s{S_WAVE}, 4")
    e("s_cbranch_scc1 L_helper")

ACC, ACC2, XR, UR, BR, AR, SC, LG, TM = 4, 68, 132, 188, 216, 232, 244, 248, 252
def X(k, p): return XR + 14 * k + p
def EV(k): return XR + 14 * k + 13
def U(k, t): return UR + 7 * k + t
def cin(g):
    e = g.e
    e("s_setprio 1")
    e(f"s_lshl_b32 s{S_T}, s{S_G}, 8"); e(f"s_lshl_b32 s{S_T+1}, s{S_R}, 4"); e(f"s_add_u32 s{S_T}, s{S_T}, s{S_T+1}")
    e(f"s_lshl_b32 s{S_T+1}, s{S_WAVE}, 2"); e(f"s_add_u32 s{S_SB}, s{S_T}, s{S_T+1}")
    e(f"s_mul_i32 s{S_T}, s{S_SB}, 104")
    e("v_lshrrev_b32 v1, 4, v0")
    e("v_bfe_u32 v2, v0, 2, 2")
    e("v_and_b32 v3, 3, v0")
    e("v_mul_u32_u24 v4, 104, v1")
    e("v_mad_u32_u24 v4, v2, 28, v4")
    I = 8
    e(f"buffer_load_dwordx4 {vr(I,4)}, v4, {sr(S_IDX)}, s{S_T} offen")
    e(f"buffer_load_dwordx3 {vr(I+4,3)}, v4, {sr(S_IDX)}, s{S_T} offen offset:16")
    e("s_barrier")
    L1R = 132
    e(f"s_mov_b32 s{S_WC+2}, {2*LB}"); e(f"s_mov_b32 s{S_J}, s{S_WAVE}")
    e("v_lshlrev_b32 v26, 4, v0"); e(f"v_add_u32 v29, {BUFA + 28*1024}, v26"); e("v_cmp_lt_u32 vcc, 42, v0"); e(f"v_mov_b32 v6, {OOB}"); e("v_cndmask_b32 v26, v26, v6, vcc")
    e(f"s_mul_i32 s{S_T}, s{S_J}, 1352")
    for i in range(13):
        if i < 12:
            t = i >> 1
            if i & 1 == 0: e(f"s_add_u32 s{S_T+1}, s{S_T}, {LB + (13*(t&1) + 4*(t>>1))*1352}")
            e(f"buffer_load_dwordx4 {vr(L1R+4*i,4)}, v26, {sr(S_WC)}, s{S_T+1} offen offset:{676*(i&1)}")
        else:
            e(f"s_lshr_b32 s{S_T+1}, s{S_J}, 1"); e(f"s_mul_i32 s{S_T+1}, s{S_T+1}, {13*1352}"); e(f"s_and_b32 s{S_T+2}, s{S_J}, 1"); e(f"s_mul_i32 s{S_T+2}, s{S_T+2}, 676")
            e(f"s_add_u32 s{S_T+1}, s{S_T+1}, s{S_T+2}"); e(f"s_add_u32 s{S_T+1}, s{S_T+1}, {LB + 12*1352}")
            e(f"buffer_load_dwordx4 {vr(L1R+4*i,4)}, v26, {sr(S_WC)}, s{S_T+1} offen")
    e(f"s_lshl_b32 s{S_T}, s{S_J}, 4"); e(f"s_add_u32 s{S_T}, s{S_T}, {BUFB}")
    e(f"v_mul_u32_u24 v28, {S0STR}, v0"); e(f"v_add_u32 v28, s{S_T}, v28"); e("v_cndmask_b32 v28, v28, v29, vcc")
    e("v_lshlrev_b32 v5, 4, v3")
    e("v_cmp_eq_u32 vcc, 3, v2")
    e(f"v_mov_b32 v6, {OOB}")
    e("v_cndmask_b32 v6, 0, v6, vcc")
    e("v_add_u32 v6, v6, v5")
    e(f"s_mul_i32 s{S_T+1}, s{S_WAVE}, 7168"); e(f"s_add_u32 s{S_T+1}, s{S_T+1}, {D0}")
    e("v_mul_u32_u24 v7, 1792, v1")
    e("v_mad_u32_u24 v16, v2, 7, 0")
    e("v_lshl_add_u32 v7, v16, 6, v7")
    e(f"v_add3_u32 v7, v7, v5, s{S_T+1}")
    e("v_lshrrev_b32 v16, 1, v1")
    e("v_xor_b32 v16, v16, v2")
    e("v_lshlrev_b32 v16, 6, v16")
    e("v_and_b32 v17, 1, v1")
    e("v_lshl_add_u32 v16, v17, 5, v16")
    e("v_lshl_add_u32 v16, v3, 3, v16")
    e(f"v_add_u32 v16, s{S_T+1}, v16")
    for k in range(4): e(f"v_mov_b32 v{LG+k}, 0")
    PA, PS, DR = 32, 40, 184
    unpack_mat(g, PA, 20)
    e("s_waitcnt vmcnt(13) lgkmcnt(0)")
    e(f"s_setprio {PAR.cp}")
    GR, MR = 68, 96
    for t in range(7):
        e(f"v_lshl_add_u32 v{I+t}, v{I+t}, 6, v{5 if t < 5 else 6}")
        e(f"buffer_load_dwordx4 {vr(GR+4*t,4)}, v{I+t}, {sr(S_TAB)}, 0 offen")
    g.stamp()
    def carrive(c):
        e("v_mov_b32 v2, 1"); e("s_mov_b64 exec, 1"); e(f"ds_add_u32 v25, v2 offset:{CNT[c]-M_CNT}"); e("s_mov_b64 exec, -1")
    for i in range(13):
        e(f"s_waitcnt vmcnt({7 + 12 - i})")
        unpack(g, DR, PA, L1R, i)
        if i & 1 and i >= 3: tmax(g, DR, (i >> 1) - 1, 16, i == 3)
    e(f"s_and_b32 s{S_T}, s{S_J}, 1"); e(f"s_lshl_b32 s{S_T}, s{S_T}, 4")
    tmax(g, DR, 5, 16, False)
    for r in range(4): e(f"v_alignbit_b32 v{L1R+48+r}, v{L1R+48+r}, v{L1R+48+r}, s{S_T}")
    tmax(g, DR, 6, 8, False)
    put_max(g, M_L1)
    carrive("L1M")
    for i in range(8): e(f"v_and_b32 v{PS+i}, 0x800080, v{PA+i}")
    g.stamp("s")
    lwait(g, "L1M", 4, 25, 2)
    get_max(g, M_L1)
    e(f"v_readfirstlane_b32 s{S_T}, v1")
    e(f"s_lshr_b32 s{S_T}, s{S_T}, 23"); e(f"s_min_u32 s{S_T}, s{S_T}, 249"); e(f"s_sub_u32 s{S_HDR+2}, s{S_T}, 124")
    e(f"s_sub_u32 s{S_T}, {127+124}, s{S_T}")
    for i in range(8): e(f"v_mul_u32_u24 v{PS+i}, s{S_T}, v{PS+i}")
    def l1out(i):
        d = DR + 16 * ((i >> 1) & 3) + 8 * (i & 1)
        for r in range(4):
            lo, hi = (d + 2 * r + 1, d + 2 * r) if (i & 1) else (d + 2 * r, d + 2 * r + 1)
            e(f"v_cvt_pk_f16_f32 v{L1R+4*i+r}, v{lo}, v{hi}")
        if i < 12:
            t = i >> 1; o = 16 * (8 * (t >> 1) + 4 * (t & 1)) + 512 * (i & 1)
        else:
            e(f"s_lshr_b32 s{S_T}, s{S_J}, 1"); e(f"s_lshl_b32 s{S_T}, s{S_T}, 5"); e(f"s_and_b32 s{S_T+1}, s{S_J}, 1"); e(f"s_mul_i32 s{S_T+1}, s{S_T+1}, 496")
            e(f"s_add_u32 s{S_T}, s{S_T}, s{S_T+1}"); e(f"v_add_u32 v28, s{S_T}, v28"); o = 24 * 16
        e(f"ds_write_b128 v28, {vr(L1R+4*i,4)} offset:{o}")
    for i in range(13):
        unpack(g, DR, PS, L1R, i)
        if i >= 4: l1out(i - 4)
    for i in range(9, 13): l1out(i)
    g.stamp("s")
    for t in range(7):
        e(f"s_waitcnt vmcnt({6 - t})")
        unpack(g, DR, PA, GR, t)
        e(f"ds_write_b128 v7, {vr(GR+4*t,4)} offset:{64*t}")
        if t in (3, 5): tmax(g, DR, (t >> 1) - 1, 16, t == 3, 20)
    e("v_mov_b32 v2, 1"); e("s_mov_b64 exec, 1"); e(f"ds_add_u32 v25, v2 offset:{CNT['RAW']-M_CNT}"); e("s_mov_b64 exec, -1")
    g.stamp(); g.stamp("s")
    tmax(g, DR, 2, 16, False, 20); tmax(g, DR, 3, 8, False, 20)
    for sh in (8, 4, 2, 1):
        e(f"v_max_u32_dpp v20, v20, v20 row_ror:{sh} {DPPALL}")
    e("v_lshrrev_b32 v20, 23, v20"); e("v_max_u32 v20, 4, v20")
    e(f"v_sub_u32 v21, {127+130}, v20"); e("v_lshlrev_b32 v21, 23, v21")
    for t in range(7):
        d = DR + 8 * t
        for i in range(8): e(f"v_mul_f32 v{d+i}, v{d+i}, v21")
        for i in range(4): e(f"v_cvt_pk_f16_f32 v{MR+4*t+i}, v{d+2*i}, v{d+2*i+1}")
        e(f"ds_write_b128 v7, {vr(MR+4*t,4)} offset:{D1 - D0 + 64*t}")
    for k in range(4): e(f"v_readlane_b32 s{S_EX+k}, v20, {16*k}")
    e("s_waitcnt lgkmcnt(0)")
    for k in range(4):
        for t in range(7):
            e(f"ds_read_b64_tr_b16 {vr(X(k,2*t),2)}, v16 offset:{D1 - D0 + k*1792+t*256}")
    for k in range(4):
        e(f"s_sub_u32 s{S_EX+k}, s{S_EX+k}, 130")
    for i in range(16): e(f"v_mov_b32 v{BR+i}, 0")
    e("v_lshlrev_b32 v1, 4, v0")
    e("s_waitcnt lgkmcnt(0)")
    HW = lambda l: S_HDR + 2 * l
    HD = lambda l: S_HDR + 2 * l + 1
    HQ, HL = S_HDR + 8, S_HDR + 9
    for k in range(4):
        e(f"s_lshl_b32 s{S_T}, s{S_EX+k}, 1")
        e(f"v_mov_b32 v{EV(k)}, s{S_T}")
    g.stamp("s")
    e("s_mov_b64 exec, 1"); e(f"ds_add_u32 v25, v2 offset:{CNT['XST']-M_CNT}"); e("s_mov_b64 exec, -1")
    e("s_setprio 1")
    lwait(g, "S0OK", 4, 25, 2)
    g.stamp(); g.stamp("s")

    ready = set()
    def quad_prod(k, rho):
        p, q = QPAIRS[rho]
        return lambda d: f"v_pk_mul_f16 v{d}, v{X(k,p)}, v{X(k,q)} op_sel_hi:[0,1]"
    def gen_prod(l):
        def f(k, rho):
            r, p = divmod(rho, 13)
            def mk(d):
                if r == 13: return f"v_mov_b32 v{d}, v{U(k,p)}" if l == 2 else f"v_mov_b32 v{d}, 0"
                assert ('u', l, k, r) in ready, (l, k, r)
                if r & 1: return f"v_pk_mul_f16 v{d}, v{U(k,r>>1)}, v{X(k,p)} op_sel:[1,0] op_sel_hi:[1,1]"
                return f"v_pk_mul_f16 v{d}, v{U(k,r>>1)}, v{X(k,p)} op_sel_hi:[0,1]"
            return mk
        return f
    def lin_prod(k, t):
        b = 2 * t + 1 if 2 * t + 1 < 13 else 2 * t
        return lambda d: f"v_pack_b32_f16 v{d}, v{X(k,2*t)}, v{X(k,b)}"
    def steps(nprod, prod, acc, base, first0, stride=1024, needs=None):
        out = []
        ns = (nprod + 3) // 4
        for s in range(ns):
            out.append(dict(lds=base + stride * s, needs=needs if s == 0 else None, jobs=[dict(acc=acc + 16 * k, zero=(first0 and s == 0),
                       prods=[prod(k, rho) for rho in range(4 * s, min(4 * s + 4, nprod))]) for k in range(4)]))
        return out
    S_CL = S_C1
    e(f"s_mov_b32 s{S_CL}, {115 << 23}"); e(f"s_mov_b32 s{S_MASK}, 145")
    def cvt(acc, t):
        return [f"v_cvt_pk_f16_f32 v{U(k,t)}, v{acc+16*k+2*t}, " + (f"v{acc+16*k+2*t+1}" if t < 6 else "0") for k in range(4)]
    def scl(l, t):
        o = []
        for k in range(4):
            o.append((f"v_pk_mul_f16 v{U(k,t)}, v{U(k,t)}, v{SC+k} op_sel_hi:[1,0]", ('u', l + 1, k, 2 * t)))
            o.append((None, ('u', l + 1, k, 2 * t + 1)))
        return o
    def head(acc, l):
        o = []
        for j in range(6):
            for k in range(4):
                a = acc + 16 * k
                if j == 0: o.append(f"v_max3_f32 v{SC+k}, |v{a}|, |v{a+1}|, |v{a+2}|")
                else: o.append(f"v_max3_f32 v{SC+k}, v{SC+k}, |v{a+2*j+1}|, |v{a+2*j+2}|")
        for k in range(4): o.append(f"v_mov_b32 v{TM+k}, v{SC+k}")
        o += cvt(acc, 0)
        for k in range(4): o.append(f"v_permlane32_swap_b32 v{SC+k}, v{TM+k}")
        for k in range(4): o.append(f"v_max3_f32 v{SC+k}, v{SC+k}, v{TM+k}, s{S_CL}")
        for k in range(4): o.append(f"v_lshrrev_b32 v{TM+k}, 23, v{SC+k}")
        for k in range(4): o.append(f"v_sub_u32 v{SC+k}, s{S_MASK}, v{TM+k}")
        for k in range(4): o.append(f"v_lshlrev_b32 v{SC+k}, 10, v{SC+k}")
        return o + scl(l, 0)
    def evup(l):
        return [(None, 'x', ('k', l))] + [f"v_add3_u32 v{EV(k)}, v{EV(k)}, v{TM+k}, s{S_K+k}" for k in range(4)] + [(None, ('ev', l))]
    def emit(x):
        if callable(x): return x() or 0
        if isinstance(x, tuple):
            if len(x) == 3: assert x[2] in ready, x
            ready.add(x[1]); x = x[0]
        if not x: return 0
        e(x)
        return 2 if 'permlane' in x else 1
    def kconst(l):
        o = []
        if l == 0: o.append(f"s_sub_u32 s{S_T}, s{HW(0)}, 130")
        elif l == 1: o += [f"s_add_u32 s{S_T}, s{HW(1)}, s{HD(2)}", f"s_sub_u32 s{S_T}, s{S_T}, 130"]
        else: o += [f"s_sub_u32 s{S_T}, s{HW(l)}, s{HD(l)}", f"s_add_u32 s{S_T}, s{S_T}, s{HD(l+1)}", f"s_sub_u32 s{S_T}, s{S_T}, 130"]
        if l: o.insert(0, (None, 'x', ('ev', l - 1)))
        return o + [f"s_add_u32 s{S_K+k}, s{S_T}, s{S_EX+k}" for k in range(4)] + [(None, ('k', l))]
    state = dict(areg=0, breg=0, base=0)
    def aread(st):
        if st.get('ok'): assert st['ok'] in ready, st['ok']
        st['a'] = AR + 4 * (state['areg'] % 3); state['areg'] += 1
        r = st['lds'] - state['base']; c = 1
        if r < 0 or r > 65535:
            e(f"v_add_u32 v1, {r & 0xffffffff}, v1"); state['base'] = st['lds']; r = 0; c = 2
        e(f"ds_read_b128 {vr(st['a'],4)}, v1 offset:{r}")
        return c
    def prods(job):
        job['b'] = BR + 4 * (state['breg'] % 4); state['breg'] += 1
        return [p(job['b'] + i) for i, p in enumerate(job['prods'])]
    GATE = 'GATE'
    import re
    def nbytes(x):
        if callable(x): return 8
        if isinstance(x, tuple): x = x[0]
        if not x or x == GATE: return 0
        op = x.split()[0]
        lit = any(abs(int(t, 0)) > 64 for t in re.findall(r'(?<![\w\[:])(-?(?:0x[0-9a-f]+|\d+))(?![\w\]:.])', x.split(None, 1)[1]))
        short = op.startswith('s_') or op in ('v_mov_b32', 'v_mul_f32', 'v_add_f32', 'v_add_u32', 'v_sub_u32', 'v_lshrrev_b32', 'v_lshlrev_b32', 'v_and_b32',
                                              'v_permlane32_swap_b32', 'v_readfirstlane_b32', 'v_cmp_lt_u32', 'v_cndmask_b32', 'v_max_f32')
        return 4 if short and not lit else 8
    def run(seq, nxt, fill=None, side=None, rates=None):
        rate = PAR.rate
        jobs = [(si, j) for si, st in enumerate(seq) for j in st['jobs']]
        for j in range(2):
            for s in prods(jobs[j][1]): e(s)
        fq = []; sq = []; gate = -1; credit = 0
        allst = seq + nxt
        for n, (si, job) in enumerate(jobs):
            k = n % 4
            if k == 0:
                if fill and si in fill: fq += fill[si]
                if side and si in side: sq += side[si]
                if rates and si in rates: rate = rates[si]
                pend = sum(1 for st in allst[si+1:si+2] if 'a' in st)
                e(f"s_waitcnt lgkmcnt({pend})")
                if seq[si]['needs']: assert seq[si]['needs'] in ready, seq[si]['needs']
            c = "0" if job['zero'] else vr(job['acc'], 16)
            e(f"v_mfma_f32_32x32x16_f16 {vr(job['acc'],16)}, {vr(seq[si]['a'],4)}, {vr(job['b'],4)}, {c}")
            budget = 6
            if k == 0 and si + 2 < len(allst) and 'a' not in allst[si + 2]: budget -= aread(allst[si + 2])
            if k == 3: budget -= 1
            if n + 2 < len(jobs):
                ps = prods(jobs[n + 2][1])
                for s in ps: e(s)
                budget -= len(ps)
                credit += sum(8 - nbytes(p) for p in ps) + 8 * (4 - len(ps))
            credit = min(credit + rate / 4, 16)
            while sq and si >= gate and ((budget > 0 and credit >= nbytes(sq[0])) or nbytes(sq[0]) == 0):
                x = sq.pop(0)
                if x == GATE: gate = si + 2
                else: budget -= emit(x); credit -= nbytes(x)
            while fq and ((budget > 0 and credit >= nbytes(fq[0])) or nbytes(fq[0]) == 0):
                x = fq.pop(0); budget -= emit(x); credit -= nbytes(x)
        assert not sq, sq
        for s in fq: emit(s)
    S0 = steps(91, quad_prod, ACC, BUFA, True, stride=S0STR)
    L1 = steps(172, gen_prod(1), ACC2, BUFB, True, stride=S0STR)
    L2 = steps(176, gen_prod(2), ACC, BUFA, True, needs=('free', 0))
    Q4 = steps(91, quad_prod, ACC2, D0, True, needs=('free', 1))
    LN = steps(7, lin_prod, ACC2, D0 + 24 * 1024, False, needs='ldx')
    L3 = steps(169, gen_prod(3), ACC, BUFB, True, needs=('free', 2))
    L1[0]['ok'] = "RAW"; L2[0]['ok'] = "L2OK"; Q4[0]['ok'] = "QOK"; L3[0]['ok'] = "L3OK"
    def hdr(addr, sa, sb=None):
        return [f"v_mov_b32 v3, {addr}", "ds_read_b64 v[2:3], v3", GATE, f"v_readfirstlane_b32 s{sa}, v2"] + ([f"v_readfirstlane_b32 s{sb}, v3"] if sb else [])
    def arrive(c):
        def f():
            e(f"v_add_u32 v3, {(CNT[c] - state['base']) & 0xffffffff}, v1"); return 1
        return ["v_mov_b32 v2, 1", f, "ds_add_u32 v3, v2"]
    def check(c):
        def f():
            slow = g.newlab("cs"); back = g.newlab("cb"); top = g.newlab("ct")
            e(f"s_cmp_lt_u32 s{S_T+2}, 4"); e(f"s_cbranch_scc1 {slow}")
            g.lab(back)
            g.tail += [slow + ":", f"    s_mov_b32 s{S_T+1}, {SPIN*8}", top + ":", "    s_sleep 1", "    ds_read_b32 v2, v3", "    s_waitcnt lgkmcnt(0)",
                       f"    v_readfirstlane_b32 s{S_T+2}, v2", f"    s_cmp_ge_u32 s{S_T+2}, 4", f"    s_cbranch_scc1 {back}",
                       f"    s_sub_u32 s{S_T+1}, s{S_T+1}, 1", f"    s_cbranch_scc0 {top}", f"    s_branch {back}"]
            ready.add(c); return 2
        return [f"v_mov_b32 v3, {CNT[c]}", "ds_read_b32 v2, v3", GATE, f"v_readfirstlane_b32 s{S_T+2}, v2", f]
    def stp(n): return [lambda: g.stamp(n)]
    def rest(acc, l):
        o = []
        for t in range(1, 7): o += cvt(acc, t) + scl(l, t)
        return o + [(None, ('free', l))]
    HOFF = 29 * 16
    aread(S0[0]); aread(S0[1])
    run(S0, L1[:2], side={2: hdr(BUFA + 23 * S0STR + 512, HW(0)) + kconst(0), 17: check("RAW"), 22: arrive("AFREE")})
    g.stamp()
    for s in head(ACC, 0): emit(s)
    run(L1, L2[:2], fill={0: rest(ACC, 0) + evup(0)}, side={37: check("L2OK"), 42: arrive("BFREE")}, rates={0: 32})
    g.stamp()
    for s in head(ACC2, 1): emit(s)
    LNPOS = PAR.lnpos
    seq = L2 + Q4 + L3[:LNPOS] + LN + L3[LNPOS:]
    nQ = 44; nL3 = nQ + 23
    PV, PA = 2, 3
    def pload():
        e(f"buffer_load_dword v{PV}, v{PA}, {sr(S_WS)}, s{S_T+3} offen sc1"); return 1
    k1 = [f"s_sub_u32 s{S_T}, s{HD(1)}, s{HD(2)}"] + [f"s_sub_u32 s{S_K1+k}, s{S_T}, s{S_EX+k}" for k in range(4)] + [(None, 'k1')]
    dots = [(None, 'x', 'k1')]
    for k in range(4): dots.append(f"v_ldexp_f32 v{ACC+16*k+15}, v{ACC+16*k+15}, v{EV(k)}")
    for k in range(4): dots.append(f"v_add_u32 v{ACC+16*k+13}, s{S_K1+k}, v{EV(k)}")
    for k in range(4): dots.append(f"v_ldexp_f32 v{ACC+16*k+14}, v{ACC+16*k+14}, v{ACC+16*k+13}")
    for k in range(4): dots.append(f"v_add_f32 v{LG+k}, v{ACC+16*k+14}, v{ACC+16*k+15}")
    dots.append((None, 'dots'))
    b2 = head(ACC, 2) + dots
    for t in range(1, 7): b2 += cvt(ACC, t)
    b2.append((None, ('free', 2)))
    kq = []; S_K2 = 8
    for k in range(4):
        kq += [f"s_sub_u32 s{S_T}, s{HQ}, s{HL}", f"s_add_u32 s{S_T}, s{S_T}, s{S_EX+k}", f"s_min_i32 s{S_KC+k}, s{S_T}, 40",
               f"s_add_i32 s{S_T}, s{S_KC+k}, 127", f"s_max_i32 s{S_T}, s{S_T}, 0", f"s_lshl_b32 s{S_K2+k}, s{S_T}, 23"]
    kq.append((None, 'kq'))
    ldx = [(None, 'x', 'kq')] + [f"v_mul_f32 v{ACC2+16*k+r}, s{S_K2+k}, v{ACC2+16*k+r}" for k in range(4) for r in range(13)] + [(None, 'ldx')]
    l3f = scl(2, 1)
    per = (len(ldx) + 4) // 5
    for t in range(2, 7): l3f += scl(2, t) + ldx[(t - 2) * per:(t - 1) * per] + (evup(2) if t == 6 else [])
    pre = ["v_bfe_u32 v2, v0, 4, 1", "v_lshrrev_b32 v3, 5, v0", "v_lshl_add_u32 v2, v2, 1, v3", "v_and_b32 v3, 15, v0", "v_cmp_lt_u32 vcc, 12, v3",
           "v_lshlrev_b32 v3, 10, v3", "v_lshl_add_u32 v3, v2, 2, v3", f"v_mov_b32 v2, {OOB}", "v_cndmask_b32 v3, v3, v2, vcc",
           f"s_mul_i32 s{S_T+3}, s{S_G}, {13*1024}", f"s_and_b32 s{S_T}, s{S_SB}, 255", f"s_lshl_b32 s{S_T}, s{S_T}, 2",
           f"s_add_u32 s{S_T+3}, s{S_T+3}, s{S_T}", f"s_add_u32 s{S_T+3}, s{S_T+3}, {WS_PART}"]
    fin = [(None, 'x', ('ev', 2))]
    for k in range(4): fin += [f"s_lshl_b32 s{S_T}, s{S_EX+k}, 1", f"s_add_u32 s{S_K+k}, s{S_T}, s{HD(0)}"]
    for k in range(4): fin.append(f"v_ldexp_f32 v{ACC2+16*k+15}, v{ACC2+16*k+15}, s{S_K+k}")
    for k in range(4): fin.append(f"v_add_f32 v{LG+k}, v{LG+k}, v{ACC2+16*k+15}")
    fin += [f"s_sub_u32 s{S_T}, s{HW(3)}, s{HD(3)}", f"s_add_u32 s{S_T}, s{S_T}, s{HQ}"]
    for k in range(4): fin += [f"s_lshl_b32 s{S_K+k}, s{S_EX+k}, 1", f"s_add_u32 s{S_K+k}, s{S_K+k}, s{S_T}", f"s_sub_u32 s{S_K+k}, s{S_K+k}, s{S_KC+k}"]
    BO = ACC2 + 14
    fin += [f"v_add_u32 v{TM+k}, s{S_K+k}, v{EV(k)}" for k in range(4)] + [f"v_mov_b32 v{BO-1}, 0", f"buffer_load_ushort v{BO}, v{BO-1}, {sr(S_BO)}, 0 offen"]
    run(seq, [], fill={0: rest(ACC2, 1), 14: evup(1), nQ + 1: b2, nL3: l3f},
        side={0: hdr(BUFA + HOFF, HW(2), HD(2)) + kconst(1) + hdr(BUFA + HOFF + 8, HD(1)) + k1, 1: stp("p"), 21: stp("p"),
              nQ - PAR.qchk: check("QOK") + hdr(D0 + 23 * 1024, HQ, HL) + kq, nQ: stp("p"),
              nL3 - 6: check("L3OK"), nL3: stp("p"), nL3 + 6: hdr(BUFB + HOFF, HW(3), HD(3)) + kconst(2) + hdr(D0 + 23 * 1024 + 8, HD(0)),
              nL3 + LNPOS - 2: pre, nL3 + LNPOS + 4: fin, nL3 + 20: stp("p"), nL3 + PAR.pload: [pload], nL3 + 40: stp("p")},
        rates={0: 32, 20: PAR.rate, nQ: PAR.qrate, nL3: PAR.rate})
    g.stamp()
    for r in range(13):
        for k in range(4):
            if r == 0: e(f"v_mul_f32 v{SC+k}, v{ACC+16*k}, v{ACC2+16*k}")
            else: e(f"v_fmac_f32 v{SC+k}, v{ACC+16*k+r}, v{ACC2+16*k+r}")
    for k in range(4): e(f"v_ldexp_f32 v{ACC+16*k+15}, v{ACC+16*k+15}, v{EV(k)}")
    for k in range(4): e(f"v_ldexp_f32 v{SC+k}, v{SC+k}, v{TM+k}")
    for k in range(4): e(f"v_add_f32 v{LG+k}, v{LG+k}, v{ACC+16*k+15}")
    for k in range(4): e(f"v_add_f32 v{LG+k}, v{LG+k}, v{SC+k}")
    e(f"v_permlane32_swap_b32 v{LG}, v{LG+1}"); e(f"v_permlane32_swap_b32 v{LG+2}, v{LG+3}")
    e(f"v_add_f32 v{LG}, v{LG}, v{LG+1}"); e(f"v_add_f32 v{LG+2}, v{LG+2}, v{LG+3}")
    e(f"v_permlane16_swap_b32 v{LG}, v{LG+2}")
    e(f"v_add_f32 v{LG}, v{LG}, v{LG+2}")
    e(f"s_mov_b32 s{S_T}, {SPIN}")
    g.lab("L_pcheck")
    e("s_waitcnt vmcnt(0)")
    e(f"v_cmp_eq_u32 vcc, -1, v{PV}")
    e("s_nop 1")
    e("s_cbranch_vccz L_pok")
    e("s_sleep 4")
    pload()
    e(f"s_sub_u32 s{S_T}, s{S_T}, 1")
    e("s_cbranch_scc0 L_pcheck")
    e("s_waitcnt vmcnt(0)")
    g.lab("L_pok")
    e(f"v_add_f32 v{LG}, v{LG}, v{PV}")
    for sh in (8, 4, 2, 1):
        e(f"v_add_f32_dpp v{LG}, v{LG}, v{LG} row_ror:{sh} {DPPALL}")
    e(f"v_lshlrev_b32 v{BO}, 16, v{BO}")
    e(f"v_add_f32 v{LG}, v{LG}, v{BO}")
    e(f"v_cvt_pk_bf16_f32 v{LG}, v{LG}, v{LG}")
    e(f"v_lshrrev_b32 v{PA}, 1, v{PA}")
    e(f"v_cmp_lt_u32 vcc, 7, v{PA}")
    e(f"v_mov_b32 v2, {OOB}")
    e(f"v_cndmask_b32 v{PA}, v{PA}, v2, vcc")
    e(f"s_lshl_b32 s{S_T}, s{S_SB}, 1")
    e(f"buffer_store_short v{LG}, v{PA}, {sr(S_OUT)}, s{S_T} offen")
    g.stamp()
    if PAR.enc is not None:
        e("s_waitcnt lgkmcnt(0)")
        e(f"s_sub_u32 s{S_T}, s{S_ST+2*PAR.enc}, s{S_ST}"); e(f"s_lshl_b32 s{S_T}, s{S_T}, 1"); e(f"s_add_u32 s{S_T}, s{S_T}, 6000")
        g.lab("L_enc")
        e(f"s_memrealtime s[{S_T+2}:{S_T+3}]"); e("s_waitcnt lgkmcnt(0)")
        e(f"s_sub_u32 s{S_T+2}, s{S_T+2}, s{S_ST}"); e(f"s_cmp_lt_u32 s{S_T+2}, s{S_T}"); e("s_cbranch_scc1 L_enc")
    g.flush_stamps(4, 5)
    e("s_endpgm")

HACC, HX, HW_ = 4, 68, 208
V_TR0, V_TR1, V_DMA, V_WSRC, V_H16, V_L0, V_HROW, V_CNT = 248, 249, 250, 251, 252, 253, 254, 255
ID, QA, QSH, QS, W0R, PK = 4, 12, 19, 20, 180, 236
L1R, BT = 180, 36
S_WP, S_L, S_FR, S_E0, S_E1, S_E2, S_PO, S_CX = 48, 49, 50, 51, 52, 53, 54, 55
S_LC = 56
S_E3, S_XB = 60, 61
def dma_img(g, name, nfr, lds):
    e = g.e; per = nfr // 4
    e(f"s_mul_i32 s{S_T}, s{S_J}, {per*1024}")
    for i in range(per):
        if i % 4 == 0:
            e(f"s_add_u32 s{S_T+1}, s{S_T}, {IMG[name] + i*1024}")
            e(f"s_add_u32 m0, s{S_T}, {lds + i*1024}")
        g.vm(f"buffer_load_dwordx4 v{V_DMA}, {sr(S_WS)}, s{S_T+1} offen offset:{(i%4)*1024} {PAR.ld} lds", name)
def poll(g, checks, pre=None):
    e = g.e
    done = g.newlab("pd"); top = g.newlab("pt"); slp = g.newlab("ps"); tst = g.newlab("pc")
    regs = pre or [2 + i for i in range(len(checks))]
    e(f"s_mov_b32 s{S_T}, {SPIN}")
    if pre: e(f"s_branch {tst}")
    g.lab(top)
    for r, (srd, so, o, n) in zip(regs, checks):
        e(f"buffer_load_dword v{r}, v{V_L0}, {sr(srd)}, {so} offen offset:{o} sc1")
    e("s_waitcnt vmcnt(0)")
    g.lab(tst)
    for r, (srd, so, o, n) in zip(regs, checks):
        e(f"v_readfirstlane_b32 s{S_T+1}, v{r}")
        e(f"s_cmp_lt_u32 s{S_T+1}, {n}")
        e(f"s_cbranch_scc1 {slp}")
    g.lab(done)
    g.tail += [slp + ":", f"    s_sleep {PAR.slp}", f"    s_sub_u32 s{S_T}, s{S_T}, 1", f"    s_cbranch_scc0 {top}", f"    s_branch {done}"]
def poll1(g, checks, flag, pre=None):
    lb = g.newlab("p1")
    g.e(f"s_cmp_lg_u32 s{S_J}, 0"); g.e(f"s_cbranch_scc1 {lb}")
    poll(g, checks, pre)
    arrive(g, flag)
    g.lab(lb)
    lwait(g, flag, 1)
def presample(g, checks, regs, tag):
    for r, (srd, so, o, n) in zip(regs, checks):
        g.vm(f"buffer_load_dword v{r}, v{V_L0}, {sr(srd)}, {so} offen offset:{o} sc1", tag)
def arrive(g, *cs):
    e = g.e
    e("v_mov_b32 v1, 1"); e("s_mov_b64 exec, 1")
    for c in cs: e(f"ds_add_u32 v{V_CNT}, v1 offset:{CNT[c]-M_CNT}")
    e("s_mov_b64 exec, -1")
def unpack_mat(g, PA, t):
    e = g.e
    e(f"v_and_b32 v{t}, 1, v0"); e(f"v_lshlrev_b32 v{t}, 4, v{t}"); e(f"v_mov_b32 v{t+1}, 0x3f80"); e(f"v_lshlrev_b32 v{t+1}, v{t}, v{t+1}")
    e(f"v_lshrrev_b32 v{t+2}, 3, v0"); e(f"v_xor_b32 v{t+2}, v{t+2}, v0"); e(f"v_and_b32 v{t+2}, 4, v{t+2}")
    e(f"v_bfe_u32 v{t}, v0, 3, 2"); e(f"v_bfe_u32 v{t+3}, v0, 1, 1"); e(f"v_lshl_add_u32 v{t}, v{t}, 1, v{t+3}"); e(f"v_lshl_add_u32 v{t}, v{t+2}, 3, v{t}")
    for i in range(8):
        e(f"v_cmp_eq_u32 vcc, {i}, v{t}"); e(f"v_cndmask_b32 v{PA+i}, 0, v{t+1}, vcc")
def unpack(g, DR, pa, src, i):
    d = DR + 16 * ((i >> 1) & 3)
    g.e(f"v_mfma_f32_32x32x16_bf16 {vr(d,16)}, {vr(pa+4*(i&1),4)}, {vr(src+4*i,4)}, {vr(d,16) if i & 1 else '0'}")
def tmax(g, DR, tile, n, first, mv=1):
    d = DR + 16 * (tile & 3)
    for q in range(n // 2):
        if first and q == 0: g.e(f"v_max_f32 v{mv}, |v{d}|, |v{d+1}|")
        else: g.e(f"v_max3_f32 v{mv}, v{mv}, |v{d+2*q}|, |v{d+2*q+1}|")
def lwait(g, c, n=4, va=None, vd=1):
    e = g.e; top = g.newlab("lw"); done = g.newlab("ld")
    e(f"s_mov_b32 s{S_T}, {SPIN*8}")
    g.lab(top)
    e(f"ds_read_b32 v{vd}, v{va or V_CNT} offset:{CNT[c]-M_CNT}"); e("s_waitcnt lgkmcnt(0)")
    e(f"v_readfirstlane_b32 s{S_T+1}, v{vd}"); e(f"s_cmp_ge_u32 s{S_T+1}, {n}"); e(f"s_cbranch_scc1 {done}")
    e("s_sleep 1"); e(f"s_sub_u32 s{S_T}, s{S_T}, 1"); e(f"s_cbranch_scc0 {top}")
    g.lab(done)
def rowmax(g, v, op="v_max_u32_dpp"):
    for sh in (8, 4, 2, 1): g.e(f"{op} v{v}, v{v}, v{v} row_ror:{sh} {DPPALL}")
def wavemax_exp(g, v, sdst):
    e = g.e
    rowmax(g, v)
    e(f"v_readlane_b32 s{sdst}, v{v}, 0"); e(f"v_readlane_b32 s{S_T}, v{v}, 16"); e(f"s_max_u32 s{sdst}, s{sdst}, s{S_T}")
    e(f"v_readlane_b32 s{S_T}, v{v}, 32"); e(f"s_max_u32 s{sdst}, s{sdst}, s{S_T}")
    e(f"v_readlane_b32 s{S_T}, v{v}, 48"); e(f"s_max_u32 s{sdst}, s{sdst}, s{S_T}")
    e(f"s_lshr_b32 s{sdst}, s{sdst}, 23"); e(f"s_sub_u32 s{sdst}, s{sdst}, 126")
def put_max(g, slot):
    e = g.e
    rowmax(g, 1)
    e("v_lshrrev_b32 v2, 4, v0"); e(f"s_lshl_b32 s{S_T}, s{S_J}, 4"); e(f"s_add_u32 s{S_T}, s{S_T}, {slot}")
    e(f"v_lshl_add_u32 v2, v2, 2, s{S_T}")
    e("ds_write_b32 v2, v1")
def get_max(g, slot):
    e = g.e
    e("v_and_b32 v2, 15, v0"); e("v_lshlrev_b32 v2, 2, v2"); e(f"v_add_u32 v2, {slot}, v2")
    e("ds_read_b32 v1, v2"); e("s_waitcnt lgkmcnt(0)")
    rowmax(g, 1)
def pkmax(g, regs):
    e = g.e
    e(f"v_pk_max_u16 v1, v{regs[0]}, v{regs[1]}"); e(f"v_pk_max_u16 v3, v{regs[2]}, v{regs[3]}")
    for i, r in enumerate(regs[4:]): e(f"v_pk_max_u16 v{1 + 2*(i&1)}, v{1 + 2*(i&1)}, v{r}")
    e("v_pk_max_u16 v1, v1, v3"); e("v_alignbit_b32 v3, v1, v1, 16"); e("v_pk_max_u16 v1, v1, v3")
def pack_round(g, acc, off):
    e = g.e
    for t in range(14): e(f"v_mul_f32 v{acc+t}, v{acc+t}, v{QS+(t>>1)}")
    for t in range(7): e(f"v_cvt_pk_f16_f32 v{PK+t}, v{acc+2*t}, v{acc+2*t+1}")
    for t in range(7): e(f"v_alignbit_b32 v{PK+t}, v{PK+t}, v{PK+t}, v{QSH}")
    for t in range(7): e(f"ds_write_b32 v{QA+t}, v{PK+t} offset:{off}")
def s0_max(g, t):
    a = HX + 16 * t
    for i in range(7):
        if t == 0 and i == 0: g.e(f"v_max_f32 v1, |v{a}|, |v{a+1}|")
        else: g.e(f"v_max3_f32 v1, v1, |v{a+2*i}|, |v{a+2*i+1}|")
F0 = lambda c: sum(PAR.chunks[:c])
S_ROT = 64
def rotf(g, f, sd):
    g.e(f"s_add_u32 s{sd}, s{S_ROT}, {f}"); g.e(f"s_sub_u32 s{S_ROT+1}, s{sd}, 26"); g.e(f"s_min_u32 s{sd}, s{sd}, s{S_ROT+1}")
def dma_w(g, c, only=None):
    e = g.e
    Dc = (D0, D1)[c & 1]
    e(f"s_lshl_b32 s{S_T}, s{S_J}, 10")
    for fl in range(PAR.chunks[c]):
        if only is not None and fl != only: continue
        e(f"s_add_u32 m0, s{S_T}, {Dc + fl*4096}")
        rotf(g, F0(c) + fl, S_T + 1); e(f"s_mul_i32 s{S_T+1}, s{S_T+1}, 53248")
        g.vm(f"buffer_load_dwordx4 v{V_WSRC}, {sr(S_W1)}, s{S_T+1} offen lds", f"W{c}")
CHK_X = lambda: (S_WS, f"s{S_CX}", 0, 16)
def helper_common(g):
    e = g.e
    e("s_setprio 2")
    e(f"s_sub_u32 s{S_J}, s{S_WAVE}, 4")
    e("v_and_b32 v2, 31, v0"); e("v_lshrrev_b32 v3, 5, v0")
    e(f"v_lshlrev_b32 v{V_H16}, 4, v3")
    e(f"v_mad_u32_u24 v1, v2, 52, v{V_H16}")
    if PAR.wpf:
        e(f"s_cmp_lg_u32 s{S_J}, 0"); e("s_cbranch_scc1 L_nowpf")
        e(f"s_mov_b32 s{S_WC+2}, {6*LB}"); e(f"s_lshr_b32 s{S_T}, s2, 3"); e(f"s_lshl_b32 s{S_T}, s{S_T}, 7")
        e("v_lshlrev_b32 v4, 12, v0")
        e(f"buffer_load_dword v247, v4, {sr(S_WC)}, s{S_T} offen")
        e(f"s_mov_b32 s{S_WC+2}, {LB}")
        g.lab("L_nowpf")
    e("s_barrier")
    e(f"s_mul_i32 s{S_T}, s{S_J}, 1352")
    for t in range(7):
        if t < 6: e(f"s_add_u32 s{S_T+1}, s{S_T}, {(13*(t&1) + 4*(t>>1))*1352}")
        else:
            e(f"s_mul_i32 s{S_T+1}, s{S_J}, {13*1352}"); e(f"s_add_u32 s{S_T+1}, s{S_T+1}, {12*1352}")
        for s in range(2):
            g.vm(f"buffer_load_dwordx4 {vr(W0R+8*t+4*s,4)}, v1, {sr(S_WC)}, s{S_T+1} offen offset:{32*s}", f"w0_{t}")
    e(f"v_mov_b32 v5, {OOB}"); e("v_cmp_eq_u32 vcc, 0, v0"); e(f"v_cndmask_b32 v{V_L0}, v5, 0, vcc")
    e(f"s_lshl_b32 s{S_CX}, s{S_G}, 8"); e(f"s_add_u32 s{S_CX}, s{S_CX}, {WS_CNT}")
    e(f"s_add_u32 s{S_T}, s{S_R}, s{S_J}"); e(f"s_cmp_eq_u32 s{S_T}, 0"); e(f"s_cselect_b32 s{S_E3}, 0, {OOB}")
    e(f"v_add_u32 v34, s{S_E3}, v{V_L0}");
    for i in range(4): e(f"v_mov_b32 v{36+i}, 0")
    g.vm(f"buffer_store_dwordx4 v[36:39], v34, {sr(S_WS)}, s{S_CX} offen sc1", "rst")
    if PAR.touch:
        e("v_lshlrev_b32 v36, 20, v0")
        e("v_and_b32 v37, 7, v0"); e("v_lshlrev_b32 v37, 20, v37")
        for i, (srd, vo) in enumerate(((S_TAB, 36), (S_WS, 37), (S_W1, 36), (S_B1, 36), (S_W2, 36), (S_DBG, 36), (S_WO, 36), (S_OUT, 36), (S_BO, 36))):
            g.vm(f"buffer_load_ushort v{38+i}, v{vo}, {sr(srd)}, 0 offen", "touch")
    e("v_lshrrev_b32 v4, 3, v2"); e("v_and_b32 v6, 3, v2"); e("v_lshl_add_u32 v4, v4, 2, v6")
    e("v_bfe_u32 v6, v2, 2, 1"); e(f"v_mad_u32_u24 v{V_HROW}, v6, 13, v4")
    e("v_cmp_lt_u32 vcc, 12, v4"); e("v_mov_b32 v7, 0x100000"); e(f"v_cndmask_b32 v{V_HROW}, v{V_HROW}, v7, vcc")
    e("v_cmp_eq_u32 s[72:73], 0, v6"); e("s_and_b64 vcc, vcc, s[72:73]")
    e(f"v_lshlrev_b32 v{V_DMA}, 4, v0"); e(f"v_cndmask_b32 v{V_DMA}, v{V_DMA}, v5, vcc")
    e("v_lshrrev_b32 v27, 1, v2"); e("v_and_b32 v28, 1, v2"); e(f"v_lshlrev_b32 v{QSH}, 4, v28")
    e("v_sub_u32 v29, 25, v27"); e("v_mul_u32_u24 v29, v29, v27"); e("v_lshrrev_b32 v29, 1, v29")
    e(f"s_lshl_b32 s{S_T}, s{S_J}, 4")
    e(f"v_lshl_add_u32 v28, v28, 9, s{S_T}")
    e(f"v_lshl_add_u32 v30, v0, 2, s{S_T}"); e(f"v_add_u32 v30, {BUFA + 24*S0STR}, v30")
    e("v_mov_b32 v33, 0.5")
    for t in range(7):
        qb = 4 * (t >> 1) + (t & 1)
        e(f"v_lshl_add_u32 v31, v3, 1, {qb}")
        e("v_add_u32 v32, v29, v31")
        e(f"v_lshrrev_b32 v{QA+t}, 2, v32"); e(f"v_mul_u32_u24 v{QA+t}, {S0STR}, v{QA+t}")
        e("v_and_b32 v32, 3, v32"); e("v_lshl_add_u32 v32, v32, 2, v28"); e(f"v_add_u32 v{QA+t}, v{QA+t}, v32")
        e("v_cmp_lt_u32 vcc, v31, v27")
        if t == 6:
            e("v_cmp_lt_u32 s[72:73], 12, v31"); e("s_or_b64 vcc, vcc, s[72:73]")
        e(f"v_cndmask_b32 v{QA+t}, v{QA+t}, v30, vcc")
        e("v_cmp_eq_u32 vcc, v31, v27"); e(f"v_cndmask_b32 v{QS+t}, 1.0, v33, vcc")
    e("v_lshlrev_b32 v31, 3, v3"); e("v_sub_u32 v31, v2, v31")
    e("v_mov_b32 v32, 0x3f80"); e(f"v_lshlrev_b32 v32, v{QSH}, v32")
    e("v_lshrrev_b32 v31, 1, v31")
    for s in range(2):
        for i in range(4):
            e(f"v_cmp_eq_u32 vcc, {8*s+i}, v31"); e(f"v_cndmask_b32 v{ID+4*s+i}, 0, v32, vcc")
    e("v_mul_u32_u24 v3, 676, v3"); e(f"s_movk_i32 s{S_T+1}, 1352"); e(f"v_mad_u32_u24 v27, v{V_HROW}, s{S_T+1}, v3")
    e(f"s_mov_b64 s[{S_LC}:{S_LC+1}], s[{S_WC}:{S_WC+1}]"); e(f"s_mov_b32 s{S_LC+3}, 0x00020000"); e(f"s_mov_b32 s{S_LC+2}, {2*LB}")
    e(f"s_mul_i32 s{S_ROT}, s{S_R}, {PAR.rot}")
    e("v_lshrrev_b32 v1, 3, v0"); e(f"s_lshl_b32 s{S_T}, s{S_J}, 3"); e(f"v_add_u32 v1, s{S_T}, v1")
    e("v_mul_u32_u24 v1, 1664, v1")
    e("v_bfe_u32 v2, v0, 4, 1"); e("v_lshlrev_b32 v2, 2, v2"); e("v_and_b32 v3, 7, v0"); e("v_xor_b32 v2, v2, v3")
    e("v_lshl_add_u32 v1, v2, 4, v1"); e(f"s_lshl_b32 s{S_SB}, s{S_R}, 7"); e(f"v_add_u32 v{V_WSRC}, s{S_SB}, v1")
    e("v_lshrrev_b32 v1, 5, v0"); e("v_bfe_u32 v2, v0, 2, 2")
    e("v_lshl_add_u32 v1, v1, 3, v2"); e("v_lshlrev_b32 v1, 7, v1")
    e("v_bfe_u32 v3, v0, 4, 1"); e("v_lshl_add_u32 v1, v3, 5, v1"); e("v_and_b32 v3, 3, v0"); e("v_lshl_add_u32 v1, v3, 3, v1")
    e("v_lshrrev_b32 v2, 1, v2"); e("v_lshl_add_u32 v1, v2, 6, v1")
    e(f"v_add_u32 v{V_TR0}, {D0}, v1"); e(f"v_xor_b32 v{V_TR1}, 64, v{V_TR0}")
    e(f"s_mul_i32 s{S_PO}, s{S_G}, 13"); e(f"s_add_u32 s{S_PO}, s{S_PO}, s{S_R}"); e(f"s_lshl_b32 s{S_PO}, s{S_PO}, 2"); e(f"s_add_u32 s{S_PO}, s{S_PO}, s{S_J}")
    e(f"s_lshl_b32 s{S_PO}, s{S_PO}, 8"); e(f"s_add_u32 s{S_PO}, s{S_PO}, {WS_PART}")
    e("v_bfe_u32 v60, v0, 3, 2"); e("v_and_b32 v61, 3, v0"); e("v_lshl_add_u32 v60, v60, 2, v61"); e("v_mul_u32_u24 v245, 1792, v60")
    e("v_bfe_u32 v60, v0, 2, 1"); e("v_lshl_add_u32 v245, v60, 4, v245"); e(f"v_lshl_add_u32 v245, v{V_H16}, 1, v245")
    e(f"s_lshl_b32 s{S_T}, s{S_J}, 6"); e(f"s_add_u32 s{S_T}, s{S_T}, {D0}"); e(f"v_add_u32 v245, s{S_T}, v245")
    e("v_lshlrev_b32 v246, 4, v0"); e(f"v_lshl_add_u32 v246, v{V_H16}, 5, v246")
    e(f"s_lshl_b32 s{S_XB}, s{S_G}, 2"); e(f"s_lshr_b32 s{S_T}, s{S_R}, 2"); e(f"s_add_u32 s{S_XB}, s{S_XB}, s{S_T}"); e(f"s_mul_i32 s{S_XB}, s{S_XB}, 106496")
    e(f"s_bfe_u32 s{S_T}, s{S_R}, 0x10001"); e(f"s_lshl_b32 s{S_T}, s{S_T}, 11"); e(f"s_add_u32 s{S_XB}, s{S_XB}, s{S_T}")
    e(f"s_and_b32 s{S_T}, s{S_R}, 1"); e(f"s_lshl_b32 s{S_T}, s{S_T}, 9"); e(f"s_add_u32 s{S_XB}, s{S_XB}, s{S_T}")
    e(f"s_lshl_b32 s{S_T}, s{S_J}, 12"); e(f"s_add_u32 s{S_XB}, s{S_XB}, s{S_T}"); e(f"s_add_u32 s{S_XB}, s{S_XB}, {WS_X}")
    for t in range(7):
        g.vmwait(f"w0_{t}")
        a = HX + 16 * t; w = W0R + 8 * t
        e(f"v_mfma_f32_32x32x16_bf16 {vr(a,16)}, {vr(w,4)}, {vr(ID,4)}, 0")
        e(f"v_mfma_f32_32x32x16_bf16 {vr(a,16)}, {vr(w+4,4)}, {vr(ID+4,4)}, {vr(a,16)}")
        e(f"v_mfma_f32_32x32x16_bf16 {vr(a,16)}, {vr(ID,4)}, {vr(w,4)}, {vr(a,16)}")
        e(f"v_mfma_f32_32x32x16_bf16 {vr(a,16)}, {vr(ID+4,4)}, {vr(w+4,4)}, {vr(a,16)}")
        if t > 0: s0_max(g, t - 1)
    s0_max(g, 6)
    put_max(g, M_S0)
    g.vmwait("rst")
    e(f"v_mov_b32 v{V_CNT}, {M_CNT}")
    arrive(g, "S0M")
    e("v_mov_b32 v35, 1"); e(f"s_lshl_b32 s{S_E3}, s{S_G}, 2")
    g.vm(f"buffer_store_dword v35, v34, {sr(S_DBG)}, s{S_E3} offen offset:{C_RDY} sc1", "rdy")
    lwait(g, "S0M")
    g.stamp(); g.stamp("h")
    get_max(g, M_S0)
    e("v_lshlrev_b32 v3, 4, v0"); e(f"v_mov_b32 v{PK}, 0")
    e(f"ds_write_b32 v3, v{PK} offset:{BUFA + 22*S0STR + 12}")
    e("v_lshrrev_b32 v1, 23, v1")
    e("v_min_u32 v1, 249, v1")
    e("v_sub_u32 v2, 124, v1")
    e("v_subrev_u32 v1, 124, v1")
    e(f"ds_write_b32 v3, v1 offset:{BUFA + 23*S0STR + 512}")
    for t in range(7): e(f"v_ldexp_f32 v{QS+t}, v{QS+t}, v2")
    for t in range(7):
        if t == 6:
            e(f"s_cmp_eq_u32 s{S_J}, 1"); e(f"s_cselect_b32 s{S_T}, 48, 0")
            for i in range(7): e(f"v_add_u32 v{QA+i}, s{S_T}, v{QA+i}")
        if t in (0, 2, 4, 6): g.stamp("h")
        pack_round(g, HX + 16 * t, 16 * (8 * (t >> 1) + 4 * (t & 1)))
    arrive(g, "S0OK")
    g.stamp(); g.stamp("s"); g.stamp("h")
    DR = HX; XS = HX + 64; PS = 60
    def xpub():
        lwait(g, "RAW")
        for t in range(7): e(f"ds_read_b128 {vr(XS+4*t,4)}, v245 offset:{256*t}")
        e(f"s_cmp_ge_u32 s{S_J}, 2"); e(f"s_cselect_b32 s{S_T}, {OOB}, 0"); e(f"v_add_u32 v245, s{S_T}, v246")
        for t in range(7):
            e(f"s_waitcnt lgkmcnt({6-t})")
            g.vm(f"buffer_store_dwordx4 {vr(XS+4*t,4)}, v{246 if t < 6 else 245}, {sr(S_WS)}, s{S_XB} offen sc1", "xst")
            e(f"s_add_u32 s{S_XB}, s{S_XB}, 16384")
        e(f"s_cmp_ge_u32 s{S_R}, 13"); e(f"s_cselect_b32 s{S_T}, {OOB}, 0")
        e(f"v_lshl_add_u32 v1, v0, 2, s{S_T}"); e("v_mov_b32 v3, -1")
        g.vm(f"buffer_store_dword v3, v1, {sr(S_WS)}, s{S_PO} offen sc1", "sent")
        presample(g, [(S_DBG, f"s{S_E3}", C_RDY, 1)], [28], "rdyl")
        e(f"v_lshrrev_b32 v1, 1, v{V_H16}")
        for a in range(2):
            for q in range(4):
                g.vm(f"buffer_load_dwordx2 {vr(BT+8*a+2*q,2)}, v1, {sr(S_B1)}, s{S_SB} offen offset:{64*a+16*q}", "bias")
        if PAR.wpf2:
            e(f"s_lshl_b32 s{S_T+1}, s{S_J}, 6"); e(f"v_add_u32 v1, s{S_T+1}, v0"); e("v_mul_u32_u24 v1, 1664, v1"); e(f"v_add_u32 v1, s{S_T}, v1")
            for i in range(4):
                e(f"s_add_u32 s{S_T+1}, s{S_SB}, {i*256*1664}")
                g.vm(f"buffer_load_dword v{200+i}, v1, {sr(S_W1)}, s{S_T+1} offen", "wpf")
        g.stamp("s")
    e(f"s_cmp_ge_u32 s{S_R}, 13"); e("s_cbranch_scc1 L_pe1")
    g.lab("L_pe1r")
    xpub()
    e(f"s_cmp_ge_u32 s{S_R}, 13"); e("s_cbranch_scc1 L_pe2")
    g.lab("L_pe2r")
    g.vmwait("rdyl")
    arrive(g, "XST")
    lwait(g, "XST", 8)
    e(f"s_cmp_lg_u32 s{S_J}, 0"); e("s_cbranch_scc1 L_nosig")
    poll(g, [(S_DBG, f"s{S_E3}", C_RDY, 1)], pre=[28])
    e("v_mov_b32 v1, 1")
    e(f"buffer_atomic_add v1, v{V_L0}, {sr(S_WS)}, s{S_CX} offen sc1")
    g.lab("L_nosig")
    g.stamp(); g.stamp("s")

def helper_dnn(g):
    e = g.e
    CH = PAR.chunks; NS = PAR.nslot
    def xb(f, tile, t): return HX + 16 * (f % NS) + 8 * tile + 4 * t
    def xload(f):
        rotf(g, f, S_T + 2); e(f"s_lshl_b32 s{S_T+2}, s{S_T+2}, 12"); e(f"s_add_u32 s{S_T+2}, s{S_T+2}, s{S_XB}")
        for tile in range(2):
            for t in range(2):
                g.vm(f"buffer_load_dwordx4 {vr(xb(f,tile,t),4)}, v2, {sr(S_WS)}, s{S_T+2} offen offset:{2048*tile+1024*t} {PAR.ld}", f"x{f}")
    dma_w(g, 0)
    dma_w(g, 1)
    g.vmwait("bias")
    for a in range(2):
        for i in range(8):
            e(f"v_lshlrev_b32 v{HACC+16*a+2*i}, 16, v{BT+8*a+i}")
            e(f"v_and_b32 v{HACC+16*a+2*i+1}, 0xffff0000, v{BT+8*a+i}")
    for i in range(32): e(f"v_mov_b32 v{HACC+32+i}, v{HACC+i}")
    e(f"s_lshl_b32 s{S_XB}, s{S_G}, 2"); e(f"s_add_u32 s{S_XB}, s{S_XB}, s{S_J}"); e(f"s_mul_i32 s{S_XB}, s{S_XB}, 106496"); e(f"s_add_u32 s{S_XB}, s{S_XB}, {WS_X}")
    if PAR.l2pos < 0: poll1(g, [CHK_X(), (S_WS, f"s{S_CX}", C_L[2], 11)], "FX")
    else: poll1(g, [CHK_X()], "FX")
    g.stamp("s")
    g.stamp()
    e("v_bfe_u32 v2, v0, 2, 3"); e("v_lshlrev_b32 v2, 7, v2"); e(f"v_lshl_add_u32 v2, v{V_H16}, 2, v2"); e("v_and_b32 v3, 3, v0"); e("v_lshl_add_u32 v2, v3, 4, v2")
    for f in range(NS):
        xload(f)
        if PAR.l2pos < 0 and f == -PAR.l2pos: lwait(g, "AFREE"); dma_img(g, "L2", 44, BUFA)
    FL = 232
    W2R = 232 + 0
    wring = [0]
    def loc(ks):
        f = ks // 2; c = max(i for i in range(4) if F0(i) <= f)
        return c, ks - 2 * F0(c)
    def wread(ks):
        c, kl = loc(ks)
        Dc = (D0, D1)[c & 1]
        base = HW_ + 8 * (wring[0] % 3); wring[0] += 1
        for a, ad in ((0, V_TR0), (1, V_TR1)):
            for rd in range(2):
                e(f"ds_read_b64_tr_b16 {vr(base+4*a+2*rd,2)}, v{ad} offset:{Dc - D0 + kl*2048 + rd*512}")
        return base
    CK2 = [(S_WS, f"s{S_CX}", C_L[2], 11)]; CKQ = [(S_WS, f"s{S_CX}", C_Q, 9)]; CK3 = [(S_WS, f"s{S_CX}", C_L[3], 11)]
    def act_l2():
        lwait(g, "AFREE"); g.vmwait("f2"); poll1(g, CK2, "F2", pre=[196]); dma_img(g, "L2", 44, BUFA)
    after = {}
    def add(f, fn): after.setdefault(f, []).append(fn)
    if PAR.l2pos >= 0:
        add(PAR.l2pos - 2, lambda: presample(g, CK2, [196], "f2"))
        add(PAR.l2pos, act_l2)
        add(PAR.l2pos + 4, lambda: (g.vmwait("L2"), arrive(g, "L2OK")))
    else: add(-PAR.l2pos, lambda: (g.vmwait("L2"), arrive(g, "L2OK")))
    add(F0(1), lambda: (lwait(g, "C0"), dma_w(g, 2)))
    add(F0(3) - 3, lambda: presample(g, CKQ + CK3, [196, 197], "fq"))
    g.vmwait("W1"); arrive(g, "W01"); lwait(g, "W01")
    for c in range(4):
        k0 = 2 * F0(c); k1 = 2 * F0(c + 1)
        bufs = {k0: wread(k0), k0 + 1: wread(k0 + 1)}
        for ks in range(k0, k1):
            f, t = divmod(ks, 2)
            if t == 0: g.vmwait(f"x{f}")
            e(f"s_waitcnt lgkmcnt({4 if ks + 1 < k1 else 0})")
            for a in range(2):
                for tile in range(2):
                    acc = HACC + 32 * tile + 16 * a
                    e(f"v_mfma_f32_32x32x16_bf16 {vr(acc,16)}, {vr(bufs[ks]+4*a,4)}, {vr(xb(f,tile,t),4)}, {vr(acc,16)}")
                if a == 0 and ks + 2 < k1: bufs[ks + 2] = wread(ks + 2)
            if t == 1:
                if f + NS < 26: xload(f + NS)
                for fn in after.get(f, []): fn()
        if c == 0: arrive(g, "C0"); g.stamp()
        if c == 1:
            g.vmwait("W2"); arrive(g, "C1"); lwait(g, "C1"); dma_w(g, 3)
        if c == 2:
            g.vmwait("W3"); arrive(g, "C2"); lwait(g, "C2")
            if not PAR.qlate: g.vmwait("fq"); poll1(g, CKQ, "FQ", pre=[196]); dma_img(g, "Q4", 28, D0)
            e(f"v_lshrrev_b32 v1, 1, v{V_H16}")
            for a in range(2):
                for q in range(4):
                    g.vm(f"buffer_load_dwordx2 {vr(W2R+8*a+2*q,2)}, v1, {sr(S_W2)}, s{S_SB} offen offset:{64*a+16*q}", "w2")
    if PAR.qlate: g.vmwait("fq"); poll1(g, CKQ, "FQ", pre=[196]); dma_img(g, "Q4", 28, D0)
    e("s_waitcnt vmcnt(0)"); arrive(g, "QOK")
    g.stamp()
    W2F = HX
    for i in range(16):
        e(f"v_lshlrev_b32 v{W2F+2*i}, 16, v{W2R+i}")
        e(f"v_and_b32 v{W2F+2*i+1}, 0xffff0000, v{W2R+i}")
    c0 = 2 * 0.7978845608028654 * 1.4426950408889634
    e(f"s_mov_b32 s{S_C1}, {f2u(c0*0.044715):#x}")
    e(f"v_mov_b32 v2, {f2u(c0):#x}")
    T = HX + 32; SUM = HX + 48
    for i in range(4): e(f"v_mov_b32 v{SUM+i}, 0")
    def gelu(blk):
        rs = [HACC + 4 * blk + i for i in range(4)]
        tile = (4 * blk) // 32
        for i, r in enumerate(rs): e(f"v_mul_f32 v{T+i}, v{r}, v{r}")
        for i, r in enumerate(rs): e(f"v_fma_f32 v{T+i}, v{T+i}, s{S_C1}, v2")
        for i, r in enumerate(rs): e(f"v_mul_f32 v{T+i}, v{T+i}, v{r}")
        for i, r in enumerate(rs): e(f"v_exp_f32 v{T+i}, -v{T+i}")
        for i, r in enumerate(rs): e(f"v_mul_f32 v{r}, v{r}, v{W2F + (r - HACC) % 32}")
        for i, r in enumerate(rs): e(f"v_add_f32 v{T+i}, 1.0, v{T+i}")
        for i, r in enumerate(rs): e(f"v_rcp_f32 v{T+i}, v{T+i}")
        for i, r in enumerate(rs): e(f"v_fmac_f32 v{SUM + 2*tile + (i&1)}, v{r}, v{T+i}")
    for blk in range(16):
        if blk == PAR.gsplit:
            lwait(g, "BFREE"); poll1(g, CK3, "F3", pre=[197]); dma_img(g, "L3", 44, BUFB)
        if blk == PAR.gsplit2:
            e("s_waitcnt vmcnt(0)"); arrive(g, "L3OK")
        if blk == PAR.ghi: e("s_setprio 0")
        gelu(blk)
    e("s_setprio 2")
    e(f"v_add_f32 v{SUM}, v{SUM}, v{SUM+1}"); e(f"v_add_f32 v{SUM+2}, v{SUM+2}, v{SUM+3}")
    e(f"v_permlane32_swap_b32 v{SUM}, v{SUM+2}")
    e(f"v_add_f32 v{SUM}, v{SUM}, v{SUM+2}")
    e(f"v_min_u32 v{SUM}, -2, v{SUM}")
    e("v_lshlrev_b32 v1, 2, v0")
    e(f"buffer_store_dword v{SUM}, v1, {sr(S_WS)}, s{S_PO} offen sc1")
    g.stamp()
    g.flush_stamps(4, 5)
    e("s_endpgm")

def gsignal(g, c, so):
    e = g.e; done = g.newlab("sg"); top = g.newlab("st"); ok = g.newlab("so")
    e(f"s_cmp_lg_u32 s{S_J}, 0"); e(f"s_cbranch_scc1 {ok}")
    e("v_lshlrev_b32 v2, 2, v0"); e(f"s_mov_b32 s{S_T}, {SPIN}")
    g.lab(top)
    e(f"buffer_load_dword v3, v2, {sr(S_DBG)}, 0 offen offset:{C_RDY} sc1"); e("s_waitcnt vmcnt(0)")
    e("v_cmp_ne_u32 vcc, 0, v3"); e(f"s_and_b32 s{S_T+1}, vcc_lo, 0xffff"); e(f"s_cmp_eq_u32 s{S_T+1}, 0xffff"); e(f"s_cbranch_scc1 {ok}")
    e("s_sleep 8"); e(f"s_sub_u32 s{S_T}, s{S_T}, 1"); e(f"s_cbranch_scc0 {top}")
    g.lab(ok)
    e("s_waitcnt vmcnt(0)"); arrive(g, c)
    e(f"s_cmp_lg_u32 s{S_J}, 0"); e(f"s_cbranch_scc1 {done}")
    lwait(g, c)
    e("v_lshlrev_b32 v2, 8, v0"); e("v_cmp_lt_u32 vcc, 15, v0"); e(f"v_mov_b32 v3, {OOB}"); e("v_cndmask_b32 v2, v2, v3, vcc")
    e("v_mov_b32 v1, 1")
    e(f"buffer_atomic_add v1, v2, {sr(S_WS)}, {so} offen sc1")
    g.lab(done)
SCN, FR, WV, WP, W1V, AQ, RW = 68, 104, 32, 33, 160, 44, 180
QAR = lambda i: (64 + i) if i < 4 else (240 + i)
S_E4, S_LW = 62, 63
def prod_early1(g):
    e = g.e
    g.lab("L_pe1")
    e(f"s_mul_i32 s{S_WP}, s{S_G}, 3"); e(f"s_add_u32 s{S_WP}, s{S_WP}, s{S_R}"); e(f"s_sub_u32 s{S_WP}, s{S_WP}, 13")
    e(f"s_cmp_ge_u32 s{S_WP}, 31"); e("s_cbranch_scc1 L_pe1r")
    e(f"s_mul_i32 s{S_L}, s{S_WP}, 94"); e(f"s_lshr_b32 s{S_L}, s{S_L}, 10")
    e(f"s_mul_i32 s{S_T}, s{S_L}, 11"); e(f"s_sub_u32 s{S_FR}, s{S_WP}, s{S_T}"); e(f"s_lshl_b32 s{S_FR}, s{S_FR}, 2"); e(f"s_add_u32 s{S_FR}, s{S_FR}, s{S_J}")
    e(f"s_add_u32 s{S_L}, s{S_L}, 2")
    e(f"s_mul_i32 s{S_E2}, s{S_L}, {LB}")
    e(f"s_add_u32 s{S_LC+2}, s{S_E2}, {LB}")
    e("v_lshlrev_b32 v1, 4, v0")
    e(f"s_mul_i32 s{S_T}, s{S_J}, 9216"); e(f"s_add_u32 s{S_T}, s{S_T}, s{S_E2}")
    for i in range(9):
        if i % 4 == 0 and i: e(f"s_add_u32 s{S_T}, s{S_T}, 4096")
        e(f"buffer_load_dwordx4 {vr(SCN+4*i,4)}, v1, {sr(S_LC)}, s{S_T} offen offset:{(i%4)*1024}")
    e(f"s_cmp_ge_u32 s{S_WP}, 22"); e("s_cbranch_scc1 L_pe1r")
    e(f"s_lshl_b32 s{S_T}, s{S_FR}, 4"); e(f"s_add_u32 s{S_T}, s{S_T}, s{S_E2}")
    e(f"buffer_load_dwordx4 {vr(FR,4)}, v27, {sr(S_LC)}, s{S_T} offen")
    e(f"v_lshlrev_b32 v1, 1, v{V_HROW}"); e(f"s_mul_i32 s{S_T}, s{S_L}, 52")
    e(f"buffer_load_ushort v{WV}, v1, {sr(S_WO)}, s{S_T} offen")
    e(f"buffer_load_ushort v{WP}, v1, {sr(S_WO)}, 52 offen")
    e("v_lshrrev_b32 v3, 5, v0"); e("v_mul_u32_u24 v3, 26, v3")
    for i in range(8):
        e(f"s_lshl_b32 s{S_T}, s{S_FR}, 3"); e(f"s_sub_u32 s{S_T}, s{S_T}, {8*42 + 2 - i}")
        e(f"s_lshl_b32 s{S_T+1}, s{S_T}, 1"); e(f"s_add_u32 s{S_T+1}, s{S_T+1}, 52")
        e(f"s_cmp_lt_u32 s{S_T}, 13"); e(f"s_cselect_b32 s{S_T+1}, s{S_T+1}, {OOB}")
        e(f"v_add_u32 v2, s{S_T+1}, v3")
        e(f"buffer_load_ushort v{W1V+i}, v2, {sr(S_WO)}, 0 offen")
    e("s_branch L_pe1r")
def prod_early2(g):
    e = g.e
    g.lab("L_pe2")
    e(f"s_cmp_ge_u32 s{S_WP}, 31"); e("s_cbranch_scc1 L_pe2r")
    e("s_setprio 2")
    e(f"s_waitcnt vmcnt({21 if PAR.wpf2 else 17})")
    for i in range(36): e(f"v_and_b32 v{SCN+i}, s{S_MASK}, v{SCN+i}")
    pkmax(g, [SCN + i for i in range(36)])
    put_max(g, M_SC)
    arrive(g, "SCM"); lwait(g, "SCM")
    get_max(g, M_SC)
    e(f"v_readfirstlane_b32 s{S_E0}, v1")
    e(f"s_bfe_u32 s{S_E0}, s{S_E0}, 0x80007")
    e(f"s_cmp_ge_u32 s{S_WP}, 22"); e("s_cbranch_scc1 L_pe2r")
    g.lab("L_gjob")
    e(f"s_min_u32 s{S_T+2}, s{S_E0}, 249"); e(f"s_sub_u32 s{S_T+3}, {127+124}, s{S_T+2}"); e(f"s_lshl_b32 s{S_T+3}, s{S_T+3}, 23")
    e(f"s_cmp_lt_u32 s{S_FR}, 42"); e(f"s_cselect_b32 s{S_T+1}, -1, 0")
    for i in range(1, 4): e(f"v_and_b32 v{FR+i}, s{S_T+1}, v{FR+i}")
    e(f"s_cmp_lt_u32 s{S_FR}, 43"); e(f"s_cselect_b32 s{S_T+1}, -1, 0"); e(f"v_and_b32 v{FR}, s{S_T+1}, v{FR}")
    for i in range(4): e(f"v_alignbit_b32 v{FR+i}, v{FR+i}, v{FR+i}, v{V_H16}")
    for i in range(4):
        e(f"v_lshlrev_b32 v{SCN+2*i}, 16, v{FR+i}"); e(f"v_and_b32 v{SCN+2*i+1}, 0xffff0000, v{FR+i}")
    for i in range(8): e(f"v_mul_f32 v{SCN+i}, s{S_T+3}, v{SCN+i}")
    for i in range(4): e(f"v_cvt_pk_f16_f32 v{FR+i}, v{SCN+2*i}, v{SCN+2*i+1}")
    e(f"v_lshlrev_b32 v{WV}, 16, v{WV}")
    e(f"v_and_b32 v1, 0x7fffffff, v{WV}")
    wavemax_exp(g, 1, S_E1)
    e(f"s_sub_u32 s{S_E1}, s{S_E1}, 13"); e(f"s_sub_u32 s{S_T}, 0, s{S_E1}")
    e(f"v_ldexp_f32 v{WV}, v{WV}, s{S_T}")
    for i in range(8): e(f"v_mul_f32 v{SCN+i}, v{SCN+i}, v{WV}")
    for sh in (1, 2, 4, 8):
        for i in range(8): e(f"v_add_f32_dpp v{SCN+i}, v{SCN+i}, v{SCN+i} row_shr:{sh} {DPPALL} bound_ctrl:0")
    for i in range(8): e(f"v_add_f32_dpp v{SCN+i}, v{SCN+i}, v{SCN+i} row_bcast:15 row_mask:0xa bank_mask:0xf")
    for i in range(4): e(f"v_cvt_pk_f16_f32 v{SCN+2*i}, v{SCN+2*i}, v{SCN+2*i+1}")
    e("v_and_b32 v2, 31, v0"); e("v_cmp_eq_u32 vcc, 31, v2")
    for i in range(4): e(f"v_cndmask_b32 v{FR+i}, v{FR+i}, v{SCN+2*i}, vcc")
    e(f"v_lshlrev_b32 v1, 16, v{WP}"); e("v_and_b32 v1, 0x7fffffff, v1")
    wavemax_exp(g, 1, S_E4)
    e(f"s_sub_u32 s{S_T}, 15, s{S_E4}")
    for i in range(8): e(f"v_lshlrev_b32 v{W1V+i}, 16, v{W1V+i}")
    for i in range(8): e(f"v_ldexp_f32 v{W1V+i}, v{W1V+i}, s{S_T}")
    for i in range(4): e(f"v_cvt_pk_f16_f32 v{W1V+2*i}, v{W1V+2*i}, v{W1V+2*i+1}")
    e("v_cmp_eq_u32 vcc, 30, v2")
    for i in range(4): e(f"v_cndmask_b32 v{FR+i}, v{FR+i}, v{W1V+2*i}, vcc")
    e(f"s_cmp_lg_u32 s{S_FR}, 0"); e("s_cbranch_scc1 L_nohdr")
    e(f"s_sub_u32 s{S_T+2}, s{S_T+2}, 124"); e(f"s_add_u32 s{S_E1}, s{S_E1}, s{S_T+2}"); e(f"s_sub_u32 s{S_E4}, s{S_E4}, 15")
    e(f"v_writelane_b32 v{FR}, s{S_T+2}, 29"); e(f"v_writelane_b32 v{FR+1}, s{S_E1}, 29"); e(f"v_writelane_b32 v{FR+2}, s{S_E4}, 29")
    g.lab("L_nohdr")
    e(f"s_mul_i32 s{S_T}, s{S_L}, {44*1024}"); e(f"s_lshl_b32 s{S_T+1}, s{S_FR}, 10"); e(f"s_add_u32 s{S_T}, s{S_T}, s{S_T+1}")
    e(f"s_sub_u32 s{S_T}, s{S_T}, {88*1024 - IMG['L2']}")
    e("v_lshlrev_b32 v1, 4, v0")
    e(f"buffer_store_dwordx4 {vr(FR,4)}, v1, {sr(S_WS)}, s{S_T} offen sc1")
    e("s_nop 1")
    e("s_branch L_pe2r")
def helper_prod(g):
    e = g.e
    e(f"s_cmp_ge_u32 s{S_WP}, 31"); e("s_cbranch_scc1 L_idle")
    e(f"s_cmp_ge_u32 s{S_WP}, 22"); e("s_cbranch_scc1 L_nog")
    e(f"s_lshl_b32 s{S_T+2}, s{S_L}, 2"); e(f"s_add_u32 s{S_T+2}, s{S_T+2}, {WS_CNT - 4}")
    gsignal(g, "GST", f"s{S_T+2}")
    e("s_branch L_idle")
    g.lab("L_nog")
    e("v_and_b32 v2, 31, v0"); e("v_lshrrev_b32 v3, 5, v0")
    e("v_mul_u32_u24 v1, 676, v3"); e("v_add_lshl_u32 v1, v1, v2, 1")
    e(f"s_mul_i32 s{S_T}, s{S_FR}, 52"); e(f"s_add_u32 s{S_T}, s{S_T}, {4*LB}")
    for s in range(13):
        e(f"buffer_load_ushort v{W1V+s}, v1, {sr(S_LC)}, s{S_T} offen")
        e(f"s_add_u32 s{S_T}, s{S_T}, 2704")
    e(f"s_cmp_eq_u32 s{S_WP}, 29"); e(f"s_cselect_b32 s{S_LW}, 4, 5"); e(f"s_cmp_eq_u32 s{S_WP}, 30"); e(f"s_cselect_b32 s{S_LW}, 0, s{S_LW}")
    e(f"s_mul_i32 s{S_E2}, s{S_LW}, {LB}"); e(f"s_add_u32 s{S_LC+2}, s{S_E2}, {LB}")
    e("v_lshlrev_b32 v1, 1, v0"); e("v_cmp_lt_u32 vcc, 25, v0"); e(f"v_mov_b32 v2, {OOB}"); e("v_cndmask_b32 v1, v1, v2, vcc")
    e(f"s_mul_i32 s{S_T}, s{S_LW}, 52")
    e(f"buffer_load_ushort v{WV}, v1, {sr(S_WO)}, s{S_T} offen")
    e("v_lshlrev_b32 v1, 4, v0")
    e(f"s_mul_i32 s{S_T}, s{S_J}, 1352"); e(f"s_add_u32 s{S_T}, s{S_T}, s{S_E2}")
    for t in range(7):
        for ps in range(2):
            e(f"buffer_load_dwordx4 {vr(RW+8*t+4*ps,4)}, v1, {sr(S_LC)}, s{S_T} offen offset:{1024*ps}")
        e(f"s_add_u32 s{S_T}, s{S_T}, {4*1352}")
    e("s_waitcnt vmcnt(0)")
    AC = HX; TU = HX + 16
    for t in range(6): e(f"v_lshl_or_b32 v{QAR(t)}, v{W1V+2*t+1}, 16, v{W1V+2*t}")
    e(f"v_mov_b32 v{QAR(6)}, v{W1V+12}"); e(f"v_mov_b32 v{QAR(7)}, 0")
    g.stamp("q")
    e(f"v_lshlrev_b32 v{WV}, 16, v{WV}"); e(f"v_and_b32 v1, 0x7fffffff, v{WV}")
    wavemax_exp(g, 1, S_E1)
    e(f"s_sub_u32 s{S_T}, 0, s{S_E1}"); e(f"v_ldexp_f32 v{WV}, v{WV}, s{S_T}")
    for i in range(16): e(f"v_mov_b32 v{AC+i}, 0")
    for t in range(7):
        e(f"s_add_u32 s{S_T}, s{S_J}, {4*t}")
        e(f"v_readlane_b32 s{S_T+1}, v{WV}, s{S_T}")
        for i in range(8):
            e(f"v_lshlrev_b32 v{TU+2*i}, 16, v{RW+8*t+i}"); e(f"v_and_b32 v{TU+2*i+1}, 0xffff0000, v{RW+8*t+i}")
        for i in range(16): e(f"v_fmac_f32 v{AC+i}, s{S_T+1}, v{TU+i}")
    PSTR = 4096
    e(f"s_mul_i32 s{S_T}, s{S_J}, {PSTR}"); e(f"s_add_u32 s{S_T}, s{S_T}, {D0}")
    e(f"v_lshl_add_u32 v1, v0, 5, s{S_T}")
    for ps in range(2):
        for hf in range(2): e(f"ds_write_b128 v1, {vr(AC+8*ps+4*hf,4)} offset:{2048*ps+16*hf}")
    g.stamp("q"); arrive(g, "WC"); lwait(g, "WC"); g.stamp("q")
    e(f"s_cmp_eq_u32 s{S_FR}, 28"); e("s_cbranch_scc1 L_lin")
    e(f"s_cmp_lt_u32 s{S_FR}, 26"); e("s_cbranch_scc1 L_q")
    e(f"s_cmp_lg_u32 s{S_FR}, 32"); e("s_cbranch_scc1 L_noq")
    g.lab("L_q")
    BQ, PT, DQ = HX + 16, HX + 32, HX + 96
    e("v_and_b32 v2, 31, v0"); e("v_lshrrev_b32 v3, 5, v0")
    e("v_mad_u32_u24 v1, v3, 26, v2"); e("v_lshlrev_b32 v1, 2, v1"); e(f"v_add_u32 v1, {D0}, v1")
    def readsum(stride):
        for pj in range(4):
            for s in range(13): e(f"ds_read_b32 v{PT+13*pj+s}, v1 offset:{PSTR*pj + stride*s}")
            if pj: e("s_waitcnt lgkmcnt(13)")
        e("s_waitcnt lgkmcnt(0)")
        for s in range(13):
            e(f"v_add_f32 v{PT+s}, v{PT+s}, v{PT+13+s}"); e(f"v_add_f32 v{PT+26+s}, v{PT+26+s}, v{PT+39+s}")
        for s in range(13): e(f"v_add_f32 v{BQ+s}, v{PT+s}, v{PT+26+s}")
    def max13():
        e(f"v_max3_f32 v1, |v{BQ}|, |v{BQ+1}|, |v{BQ+2}|")
        for s in range(3, 13, 2): e(f"v_max3_f32 v1, v1, |v{BQ+s}|, |v{BQ+s+1}|")
    readsum(208)
    e("v_cmp_gt_u32 vcc, 26, v2")
    for s in range(13): e(f"v_cndmask_b32 v{BQ+s}, 0, v{BQ+s}, vcc")
    max13()
    wavemax_exp(g, 1, S_E2)
    e(f"s_sub_u32 s{S_T}, 0, s{S_E2}")
    for s in range(13): e(f"v_ldexp_f32 v{BQ+s}, v{BQ+s}, s{S_T}")
    e(f"s_max_u32 s{S_E0}, s{S_E0}, 10"); e(f"s_sub_u32 s{S_E0}, s{S_E0}, 126")
    BH, BL = PT, PT + 8
    e(f"v_mov_b32 v{BQ+13}, 0"); e(f"v_mov_b32 v{BH+7}, 0"); e(f"v_mov_b32 v{BL+7}, 0")
    for t in range(7): e(f"v_cvt_pk_bf16_f32 v{BH+t}, v{BQ+2*t}, v{BQ+2*t+1}")
    for t in range(7):
        e(f"v_lshlrev_b32 v{PT+16+2*t}, 16, v{BH+t}"); e(f"v_and_b32 v{PT+17+2*t}, 0xffff0000, v{BH+t}")
    for t in range(14): e(f"v_sub_f32 v{BQ+t}, v{BQ+t}, v{PT+16+t}")
    for t in range(7): e(f"v_cvt_pk_bf16_f32 v{BL+t}, v{BQ+2*t}, v{BQ+2*t+1}")
    e(f"s_cmp_ge_u32 s{S_FR}, 13"); e(f"s_cselect_b32 s{S_T+1}, 13, 0"); e(f"s_cselect_b32 s{S_T+2}, 4, 0")
    e(f"s_sub_u32 s{S_T+1}, s{S_FR}, s{S_T+1}"); e(f"s_and_b32 s{S_T+3}, s{S_T+1}, 3"); e(f"s_add_u32 s{S_T+2}, s{S_T+2}, s{S_T+3}")
    e(f"s_lshr_b32 s{S_T+1}, s{S_T+1}, 2"); e(f"s_lshl_b32 s{S_T+1}, s{S_T+1}, 3"); e(f"s_add_u32 s{S_SB}, s{S_T+2}, s{S_T+1}")
    e(f"s_mov_b32 s{S_L}, 0")
    e(f"s_cmp_lg_u32 s{S_FR}, 32"); e("s_cbranch_scc1 L_q2")
    e("v_sub_u32 v1, v2, v3")
    for s in range(13):
        e(f"v_cmp_eq_u32 vcc, {2*s}, v1"); e(f"v_cndmask_b32 v{AQ+s}, 0, 1.0, vcc")
    e(f"v_mov_b32 v{AQ+13}, 0")
    for t in range(7): e(f"v_cvt_pk_bf16_f32 v{QAR(t)}, v{AQ+2*t}, v{AQ+2*t+1}")
    e(f"s_mov_b32 s{S_E0}, 0"); e(f"s_mov_b32 s{S_SB}, 31"); e(f"s_mov_b32 s{S_L}, 8")
    g.lab("L_q2")
    g.stamp("q")
    e("s_nop 1")
    first = True
    for bb in (BL, BH):
        for ks in range(2):
            e(f"v_mfma_f32_32x32x16_bf16 {vr(DQ,16)}, {vr(QAR(4*ks),4)}, {vr(bb+4*ks,4)}, {'0' if first else vr(DQ,16)}"); first = False
            e(f"v_mfma_f32_32x32x16_bf16 {vr(DQ,16)}, {vr(bb+4*ks,4)}, {vr(QAR(4*ks),4)}, {vr(DQ,16)}")
    e(f"v_max_f32 v1, v{QS}, v{QS+1}")
    e(f"s_sub_u32 s{S_T}, 137, s{S_E0}"); e(f"s_lshl_b32 s{S_T}, s{S_T}, 23"); e(f"v_mov_b32 v30, s{S_T}"); e("v_mul_f32 v31, 0.5, v30")
    for t in range(7):
        e(f"v_cmp_eq_f32 vcc, v1, v{QS+t}"); e(f"v_cndmask_b32 v{QS+t}, v31, v30, vcc")
    e(f"s_cmp_eq_u32 s{S_J}, 1"); e(f"s_cselect_b32 s{S_T}, 48, 0"); e(f"s_sub_u32 s{S_T}, {D1 - BUFA}, s{S_T}")
    for t in range(7): e(f"v_add_u32 v{QA+t}, s{S_T}, v{QA+t}")
    e(f"v_mul_u32_u24 v1, {S0STR}, v2"); e("v_lshl_add_u32 v1, v3, 9, v1"); e(f"s_lshl_b32 s{S_T}, s{S_J}, 4"); e(f"s_add_u32 s{S_T}, s{S_T}, {D1}")
    e(f"v_min_u32 v1, {22*S0STR+512}, v1")
    e(f"v_add_u32 v1, s{S_T}, v1")
    e(f"v_lshl_add_u32 v28, v3, 9, s{S_T}"); e("v_mov_b32 v29, 0")
    e(f"ds_write_b32 v28, v29 offset:{22*S0STR+12}")
    pack_round(g, DQ, 0)
    g.stamp("q")
    e("s_waitcnt lgkmcnt(0)")
    e(f"ds_read_b128 {vr(AQ,4)}, v1")
    e("v_lshlrev_b32 v1, 10, v2"); e("v_lshl_add_u32 v1, v3, 9, v1"); e("v_cmp_lt_u32 vcc, 22, v2"); e(f"v_mov_b32 v28, {OOB}"); e("v_cndmask_b32 v1, v1, v28, vcc")
    e(f"s_lshl_b32 s{S_T}, s{S_SB}, 4"); e(f"s_add_u32 s{S_T}, s{S_T}, {IMG['Q4']}")
    e("s_waitcnt lgkmcnt(0)")
    e(f"buffer_store_dwordx4 {vr(AQ,4)}, v1, {sr(S_WS)}, s{S_T} offen sc1")
    e(f"s_add_u32 s{S_E0}, s{S_E0}, s{S_E2}"); e(f"s_add_u32 s{S_E0}, s{S_E0}, s{S_E1}"); e(f"s_sub_u32 s{S_E0}, s{S_E0}, 10")
    e(f"s_and_b32 s{S_T}, s{S_FR}, 31"); e(f"s_cmp_lg_u32 s{S_T}, 0"); e("s_cbranch_scc1 L_noq")
    g.lab("L_qh")
    e(f"v_mov_b32 v1, s{S_E0}"); e(f"s_add_u32 s{S_T}, s{S_L}, {IMG['Q4'] + 23*1024}")
    e(f"buffer_store_dword v1, v{V_L0}, {sr(S_WS)}, s{S_T} offen sc1")
    e("s_branch L_noq")
    g.lab("L_lin")
    e("v_lshrrev_b32 v3, 5, v0"); e(f"v_min_u32 v2, 25, v{V_HROW}")
    e("v_mad_u32_u24 v1, v2, 26, v3"); e("v_lshlrev_b32 v1, 2, v1"); e(f"v_add_u32 v1, {D0}, v1")
    readsum(8)
    e(f"v_cmp_gt_u32 vcc, 26, v{V_HROW}")
    for s in range(13): e(f"v_cndmask_b32 v{BQ+s}, 0, v{BQ+s}, vcc")
    max13()
    wavemax_exp(g, 1, S_E2)
    e(f"s_sub_u32 s{S_T}, 15, s{S_E2}")
    for s in range(13): e(f"v_ldexp_f32 v{BQ+s}, v{BQ+s}, s{S_T}")
    e(f"v_mov_b32 v{BQ+13}, 0"); e(f"v_mov_b32 v{AQ+7}, 0")
    for t in range(7): e(f"v_cvt_pk_f16_f32 v{AQ+t}, v{BQ+2*t}, v{BQ+2*t+1}")
    e("v_lshlrev_b32 v1, 4, v0"); e(f"s_mov_b32 s{S_T}, {IMG['Q4'] + 24*1024}")
    for s in range(2): e(f"buffer_store_dwordx4 {vr(AQ+4*s,4)}, v1, {sr(S_WS)}, s{S_T} offen offset:{1024*s} sc1")
    e(f"s_add_u32 s{S_E0}, s{S_E2}, s{S_E1}"); e(f"s_sub_u32 s{S_E0}, s{S_E0}, 15"); e(f"s_mov_b32 s{S_L}, 4")
    e("s_branch L_qh")
    g.lab("L_noq")
    g.stamp("q")
    e(f"s_mov_b32 s{S_T+2}, {WS_CNT + C_Q}")
    gsignal(g, "QST", f"s{S_T+2}")
    g.stamp("q")
    lwait(g, "QST")
    g.lab("L_idle")
    g.stamp()
    lwait(g, "AFREE")
    poll1(g, [(S_WS, f"s{S_CX}", C_L[2], 11), CHK_X()], "F2")
    dma_img(g, "L2", 44, BUFA)
    e("s_waitcnt vmcnt(0)"); arrive(g, "L2OK")
    g.stamp()
    lwait(g, "L2OK")
    poll1(g, [(S_WS, f"s{S_CX}", C_Q, 9)], "FQ")
    dma_img(g, "Q4", 28, D0)
    e("s_waitcnt vmcnt(0)"); arrive(g, "QOK")
    g.stamp()
    lwait(g, "BFREE")
    poll1(g, [(S_WS, f"s{S_CX}", C_L[3], 11)], "F3")
    dma_img(g, "L3", 44, BUFB)
    e("s_waitcnt vmcnt(0)"); arrive(g, "L3OK")
    g.stamp()
    g.flush_stamps(4, 5)
    e("s_endpgm")

def build(stamps=False):
    g = G(stamps)
    prologue(g); n0 = g.nst
    cin(g)
    g.lab("L_helper"); g.nst = n0
    helper_common(g); n1 = g.nst
    g.e(f"s_cmp_ge_u32 s{S_R}, 13"); g.e("s_cbranch_scc1 L_helper_n")
    helper_dnn(g)
    g.lab("L_helper_n"); g.nst = n1
    helper_prod(g)
    prod_early1(g); prod_early2(g)
    g.L += g.tail
    g.lab("L_end"); g.e("s_endpgm")
    body, nops = fix_hazards(g.L)
    ref = open("standalone__deep_cross_xdeepfm__recsys.s.ref").read().split("\n")
    hdr = [l for l in ref if l.startswith(";") and "@launch" not in l and "Override" not in l and "grid=ceil" not in l]
    txt = "\n".join(hdr) + f"\n; @launch grid=(256,1,1) block=(512,1,1) lds={LDS_TOTAL}\n"
    txt += f'.amdgcn_target "amdgcn-amd-amdhsa--gfx950"\n.text\n.globl {KN}\n.p2align 8\n.type {KN},@function\n{KN}:\n'
    txt += "\n".join(body) + "\n"
    txt += f""".section .rodata,"a"
.p2align 6
.amdhsa_kernel {KN}
  .amdhsa_next_free_vgpr 256
  .amdhsa_next_free_sgpr 102
  .amdhsa_accum_offset 256
  .amdhsa_group_segment_fixed_size 0
  .amdhsa_kernarg_size 88
  .amdhsa_user_sgpr_count 2
  .amdhsa_user_sgpr_kernarg_segment_ptr 1
  .amdhsa_system_sgpr_workgroup_id_x 1
.end_amdhsa_kernel
"""
    return txt, nops
if __name__ == "__main__":
    for a in sys.argv[2:]:
        if "=" in a:
            k, v = a.split("="); setattr(PAR, k, eval(v))
    txt, nops = build(stamps="stamps" in sys.argv)
    open(sys.argv[1], "w").write(txt)
    print("nops inserted", nops, "lines", txt.count("\n"))
```

```python
import sys, struct
from asmlib import fix_hazards
KN = "standalone__deep_cross_xdeepfm__recsys_kernel"
def f2u(f): return struct.unpack('<I', struct.pack('<f', f))[0]
OOB = 0x40000000
SPIN = 200000
LB = 35152
IMG = {}
off = 0
for name, n in (("L2", 44), ("L3", 44), ("Q4", 28)):
    IMG[name] = off; off += n * 1024
WS_PART = off
WS_CNT = WS_PART + 16 * 13 * 1024
WS_STAMP = WS_CNT + 16 * 8192
WS_X = WS_STAMP + 256 * 8 * 64
C_L = {2: 4, 3: 8}; C_Q = 12; C_RDY = 0
BUFA, BUFB = 0, 45056
D0, D1 = 90112, 118784
MISC = 147456
LDS_TOTAL = MISC + 2560
M_S0, M_L1, M_SC, M_EW1, M_CNT = MISC, MISC + 64, MISC + 128, MISC + 192, MISC + 256
CNT = {n: M_CNT + 4 * i for i, n in enumerate(["XST", "L1M", "L1OK", "AFREE", "L2OK", "BFREE", "L3OK", "QOK", "W01", "C0", "C1", "C2", "SCM", "GST", "WC", "QST", "FX", "F2", "F3", "FQ", "S0OK", "S0M", "RAW", "RB"])}
CNT["AFREE"] = M_CNT + 4 * 28; CNT["BFREE"] = M_CNT + 4 * 29; CNT["RB"] = M_CNT + 4 * 30
S0STR = 1040
XSTR = 1680
QPAIRS = [(p, q) for p in range(13) for q in range(p, 13)]
S_IDX, S_TAB, S_WS, S_W1, S_B1, S_W2, S_OUT, S_DBG, S_BO, S_WC, S_WO = 4, 8, 12, 16, 20, 24, 28, 32, 36, 40, 44
S_G, S_R, S_WAVE, S_J = 70, 71, 83, 3
S_HDR = 48
S_EX = 60
S_K = 64
S_K1 = 4
S_KC = 76
S_T = 72
S_MASK = 80
S_C1 = 81
S_SB = 82
S_ST = 84
class P: pass
PAR = P()
PAR.chunks = [7, 7, 6, 6]
PAR.gsplit = 0
PAR.gsplit2 = 7
PAR.lnpos = 27
PAR.pload = 37
PAR.xst = 2
PAR.l2pos = -7
PAR.nslot = 8
PAR.st = 'ad'
PAR.ld = 'sc1'
PAR.inv = 0
PAR.ngelu = 16
PAR.nmf = 4
PAR.npk = 4
PAR.lslp = 4
PAR.zpad = 1
PAR.skew = 1
PAR.cstr = 4352
PAR.l3late = 1
PAR.xp = 3
PAR.wearly = 0
PAR.wpf2 = 0
PAR.ghi = 5
PAR.qchk = 12
PAR.cp = 1
PAR.enc = None
PAR.rate = 20
PAR.qrate = 32
PAR.clk = 0
PAR.hp = 0
PAR.nost = 0
PAR.wpf = 1
PAR.rot = 2
PAR.pf = 4
PAR.qlate = 0
PAR.slp = 8
PAR.de = 2
PAR.touch = 0
PAR.dbg = None
class G:
    def __init__(self, stamps=False):
        self.L = []; self.stamps = stamps; self.nst = 0; self.nl = 0; self.vmq = []; self.tail = []
    def e(self, s): self.L.append("    " + s)
    def lab(self, s): self.L.append(s + ":")
    def vm(self, s, tag): self.e(s); self.vmq.append(tag)
    def vmwait(self, *tags):
        idx = max(i for i, t in enumerate(self.vmq) if t in tags)
        n = len(self.vmq) - 1 - idx
        self.e(f"s_waitcnt vmcnt({min(n, 63)})")
    def newlab(self, s): self.nl += 1; return f"L_{s}_{self.nl}"
    def stamp(self, name=None):
        if self.stamps and (name or "d") in PAR.st:
            assert self.nst < 8
            self.e(f"{'s_memtime' if PAR.clk else 's_memrealtime'} s[{S_ST+2*self.nst}:{S_ST+2*self.nst+1}]"); self.nst += 1
    def flush_stamps(self, vt, va):
        if not self.stamps: return
        self.e("s_waitcnt lgkmcnt(0)")
        self.e(f"s_lshl_b32 s{S_T}, s2, 3"); self.e(f"s_add_u32 s{S_T}, s{S_T}, s{S_WAVE}"); self.e(f"s_lshl_b32 s{S_T}, s{S_T}, 6")
        self.e(f"s_add_u32 s{S_T}, s{S_T}, {WS_STAMP}")
        self.e(f"v_mov_b32 v{va}, 0")
        if PAR.dbg is not None:
            lb = self.newlab("nd")
            self.e(f"s_cmp_lg_u32 s{S_T}, {WS_STAMP + PAR.dbg*64}"); self.e(f"s_cbranch_scc1 {lb}")
            for i in range(self.nst):
                self.e(f"s_sub_u32 s{S_T+1}, s{S_ST+2*i}, s{S_ST}")
                self.e(f"v_mov_b32 v{vt}, s{S_T+1}")
                self.e(f"buffer_store_dword v{vt}, v{va}, s[{S_DBG}:{S_DBG+3}], 0 offen offset:{64+4*i}")
            self.lab(lb)
        for i in range(self.nst):
            self.e(f"v_mov_b32 v{vt}, s{S_ST+2*i}")
            self.e(f"buffer_store_dword v{vt}, v{va}, s[{S_WS}:{S_WS+3}], s{S_T} offen offset:{4*i}")
        self.nst = 0
def vr(a, n): return f"v[{a}:{a+n-1}]"
def sr(a, n=4): return f"s[{a}:{a+n-1}]"
DPPALL = "row_mask:0xf bank_mask:0xf"

def prologue(g):
    e = g.e
    e("s_cmp_ge_u32 s2, 256")
    e("s_cbranch_scc1 L_end")
    g.stamp("a")
    e("s_load_dwordx16 s[48:63], s[0:1], 0")
    e("s_load_dwordx4 s[64:67], s[0:1], 64")
    e("s_load_dwordx2 s[68:69], s[0:1], 80")
    if PAR.pf:
        e(f"s_getpc_b64 s[{S_KC}:{S_KC+1}]")
        g.lab("L_pfbase")
        e(f"s_mov_b32 s{S_KC+2}, L_end - L_pfbase"); e(f"s_mov_b32 s{S_KC+3}, 0x00020000")
        e(f"s_lshr_b32 s{S_T}, s2, 3"); e(f"s_lshl_b32 s{S_T}, s{S_T}, 7")
        e("v_xor_b32 v1, 0x1c0, v0"); e("v_lshlrev_b32 v1, 12, v1")
        e(f"buffer_load_dword v255, v1, {sr(S_KC)}, s{S_T} offen")
    e("v_lshrrev_b32 v1, 6, v0")
    e("v_and_b32 v0, 63, v0")
    e(f"v_readfirstlane_b32 s{S_WAVE}, v1")
    e(f"s_and_b32 s{S_T}, s2, 7")
    e(f"s_lshr_b32 s{S_T+1}, s2, 3")
    e(f"s_lshr_b32 s{S_G}, s{S_T+1}, 4")
    e(f"s_lshl_b32 s{S_T}, s{S_T}, 1")
    e(f"s_add_u32 s{S_G}, s{S_G}, s{S_T}")
    e(f"s_and_b32 s{S_R}, s{S_T+1}, 15")
    e(f"s_mov_b32 s{S_MASK}, 0x7fff7fff")
    e("v_and_b32 v25, 31, v0"); e("v_lshlrev_b32 v25, 2, v25"); e(f"v_add_u32 v25, {M_CNT}, v25"); e("v_mov_b32 v2, 0")
    e("ds_write_b32 v25, v2")
    srds = ((S_IDX, 48, 4096*104), (S_TAB, 50, 6400000), (S_WC, 52, LB), (S_WO, 54, 312), (S_W1, 56, 832*1664), (S_B1, 58, 1664), (S_W2, 60, 1664),
            (S_BO, 62, 2), (S_OUT, 64, 8192), (S_DBG, 66, 256), (S_WS, 68, 1 << 28))
    for srd, src, nbytes in srds:
        e(f"s_mov_b32 s{srd+2}, {nbytes}"); e(f"s_mov_b32 s{srd+3}, 0x00020000")
    e("s_waitcnt lgkmcnt(0)")
    for srd, src, nbytes in srds:
        e(f"s_mov_b64 s[{srd}:{srd+1}], s[{src}:{src+1}]")
    e(f"s_cmp_ge_u32 s{S_WAVE}, 4")
    e("s_cbranch_scc1 L_helper")

ACC, ACC2, XR, UR, BR, AR, SC, LG, TM = 4, 68, 132, 188, 216, 232, 244, 248, 252
def X(k, p): return XR + 14 * k + p
def EV(k): return XR + 14 * k + 13
def U(k, t): return UR + 7 * k + t
def cin(g):
    e = g.e
    e("s_setprio 1")
    e(f"s_lshl_b32 s{S_T}, s{S_G}, 8"); e(f"s_lshl_b32 s{S_T+1}, s{S_R}, 4"); e(f"s_add_u32 s{S_T}, s{S_T}, s{S_T+1}")
    e(f"s_lshl_b32 s{S_T+1}, s{S_WAVE}, 2"); e(f"s_add_u32 s{S_SB}, s{S_T}, s{S_T+1}")
    e(f"s_mul_i32 s{S_T}, s{S_SB}, 104")
    e("v_lshrrev_b32 v1, 4, v0")
    e("v_bfe_u32 v2, v0, 2, 2")
    e("v_and_b32 v3, 3, v0")
    e("v_mul_u32_u24 v4, 104, v1")
    e("v_mad_u32_u24 v4, v2, 28, v4")
    I = 8
    e(f"buffer_load_dwordx4 {vr(I,4)}, v4, {sr(S_IDX)}, s{S_T} offen")
    e(f"buffer_load_dwordx3 {vr(I+4,3)}, v4, {sr(S_IDX)}, s{S_T} offen offset:16")
    e("s_barrier")
    L1R = 132
    e(f"s_mov_b32 s{S_WC+2}, {2*LB}"); e(f"s_mov_b32 s{S_J}, s{S_WAVE}")
    e("v_lshlrev_b32 v26, 4, v0"); e(f"v_add_u32 v29, {BUFA + 28*1024}, v26"); e("v_cmp_lt_u32 vcc, 42, v0"); e(f"v_mov_b32 v6, {OOB}"); e("v_cndmask_b32 v26, v26, v6, vcc")
    e(f"s_mul_i32 s{S_T}, s{S_J}, 1352")
    for i in range(13):
        if i < 12:
            t = i >> 1
            if i & 1 == 0: e(f"s_add_u32 s{S_T+1}, s{S_T}, {LB + (13*(t&1) + 4*(t>>1))*1352}")
            e(f"buffer_load_dwordx4 {vr(L1R+4*i,4)}, v26, {sr(S_WC)}, s{S_T+1} offen offset:{676*(i&1)}")
        else:
            e(f"s_lshr_b32 s{S_T+1}, s{S_J}, 1"); e(f"s_mul_i32 s{S_T+1}, s{S_T+1}, {13*1352}"); e(f"s_and_b32 s{S_T+2}, s{S_J}, 1"); e(f"s_mul_i32 s{S_T+2}, s{S_T+2}, 676")
            e(f"s_add_u32 s{S_T+1}, s{S_T+1}, s{S_T+2}"); e(f"s_add_u32 s{S_T+1}, s{S_T+1}, {LB + 12*1352}")
            e(f"buffer_load_dwordx4 {vr(L1R+4*i,4)}, v26, {sr(S_WC)}, s{S_T+1} offen")
    e(f"s_lshl_b32 s{S_T}, s{S_J}, 4"); e(f"s_add_u32 s{S_T}, s{S_T}, {BUFB}")
    e(f"v_mul_u32_u24 v28, {S0STR}, v0"); e(f"v_add_u32 v28, s{S_T}, v28"); e("v_cndmask_b32 v28, v28, v29, vcc")
    e("v_lshlrev_b32 v5, 4, v3")
    e("v_cmp_eq_u32 vcc, 3, v2")
    e(f"v_mov_b32 v6, {OOB}")
    e("v_cndmask_b32 v6, 0, v6, vcc")
    e("v_add_u32 v6, v6, v5")
    e(f"s_mul_i32 s{S_T+1}, s{S_WAVE}, {4*XSTR}"); e(f"s_add_u32 s{S_T+1}, s{S_T+1}, {D0}")
    e(f"v_mul_u32_u24 v7, {XSTR}, v1")
    e("v_mad_u32_u24 v16, v2, 7, 0")
    e("v_lshl_add_u32 v7, v16, 6, v7")
    e(f"v_add3_u32 v7, v7, v5, s{S_T+1}")
    e(f"v_lshl_add_u32 v18, v0, 4, 0"); e(f"v_add_u32 v18, {D0 + 16*XSTR + 256 - 320}, v18"); e("v_cndmask_b32 v18, v7, v18, vcc")
    e("v_lshrrev_b32 v16, 1, v1")
    e("v_xor_b32 v16, v16, v2")
    e("v_lshlrev_b32 v16, 6, v16")
    e("v_and_b32 v17, 1, v1")
    e("v_lshl_add_u32 v16, v17, 5, v16")
    e("v_lshl_add_u32 v16, v3, 3, v16")
    e(f"v_add_u32 v16, s{S_T+1}, v16")
    for k in range(4): e(f"v_mov_b32 v{LG+k}, 0")
    PA, PS, DR = 32, 40, 184
    if PAR.zpad:
        for i in range(4): e(f"v_mov_b32 v{PS+i}, 0")
        e(f"s_and_b32 s{S_T}, s{S_J}, 1"); e(f"s_mul_i32 s{S_T}, s{S_T}, 48"); e(f"s_lshr_b32 s{S_T+1}, s{S_J}, 1"); e(f"s_mul_i32 s{S_T+1}, s{S_T+1}, 480")
        e(f"s_add_u32 s{S_T}, s{S_T}, s{S_T+1}"); e(f"v_add_u32 v30, s{S_T}, v28")
        e(f"v_subrev_u32 v31, {BUFB - BUFA}, v30"); e("v_cmp_lt_u32 vcc, 22, v0"); e("v_cndmask_b32 v31, v31, v29, vcc")
        for i in range(3):
            e(f"ds_write_b128 v30, {vr(PS,4)} offset:{25*16 + 16*i}"); e(f"ds_write_b128 v31, {vr(PS,4)} offset:{25*16 + 16*i}")
    unpack_mat(g, PA, 20)
    e("s_waitcnt vmcnt(13) lgkmcnt(0)")
    e(f"s_setprio {PAR.cp}")
    GR, MR = 68, 96
    for t in range(7):
        e(f"v_lshl_add_u32 v{I+t}, v{I+t}, 6, v{5 if t < 5 else 6}")
        e(f"buffer_load_dwordx4 {vr(GR+4*t,4)}, v{I+t}, {sr(S_TAB)}, 0 offen")
    g.stamp()
    def carrive(c):
        e("v_mov_b32 v2, 1"); e("s_mov_b64 exec, 1"); e(f"ds_add_u32 v25, v2 offset:{CNT[c]-M_CNT}"); e("s_mov_b64 exec, -1")
    for i in range(13):
        e(f"s_waitcnt vmcnt({7 + 12 - i})")
        unpack(g, DR, PA, L1R, i)
        if i & 1 and i >= 3: tmax(g, DR, (i >> 1) - 1, 16, i == 3)
    e(f"s_and_b32 s{S_T}, s{S_J}, 1"); e(f"s_lshl_b32 s{S_T}, s{S_T}, 4")
    tmax(g, DR, 5, 16, False)
    for r in range(4): e(f"v_alignbit_b32 v{L1R+48+r}, v{L1R+48+r}, v{L1R+48+r}, s{S_T}")
    tmax(g, DR, 6, 8, False)
    put_max(g, M_L1)
    carrive("L1M")
    for i in range(8): e(f"v_and_b32 v{PS+i}, 0x800080, v{PA+i}")
    g.stamp("s")
    lwait(g, "L1M", 4, 25, 2)
    get_max(g, M_L1)
    e(f"v_readfirstlane_b32 s{S_T}, v1")
    e(f"s_lshr_b32 s{S_T}, s{S_T}, 23"); e(f"s_min_u32 s{S_T}, s{S_T}, 249"); e(f"s_sub_u32 s{S_HDR+2}, s{S_T}, 124")
    e(f"s_sub_u32 s{S_T}, {127+124}, s{S_T}")
    for i in range(8): e(f"v_mul_u32_u24 v{PS+i}, s{S_T}, v{PS+i}")
    def l1out(i):
        d = DR + 16 * ((i >> 1) & 3) + 8 * (i & 1)
        for r in range(4):
            lo, hi = (d + 2 * r + 1, d + 2 * r) if (i & 1) else (d + 2 * r, d + 2 * r + 1)
            e(f"v_cvt_pk_f16_f32 v{L1R+4*i+r}, v{lo}, v{hi}")
        if i < 12:
            t = i >> 1; o = 16 * (8 * (t >> 1) + 4 * (t & 1)) + 512 * (i & 1)
        else:
            e(f"s_lshr_b32 s{S_T}, s{S_J}, 1"); e(f"s_lshl_b32 s{S_T}, s{S_T}, 5"); e(f"s_and_b32 s{S_T+1}, s{S_J}, 1"); e(f"s_mul_i32 s{S_T+1}, s{S_T+1}, 496")
            e(f"s_add_u32 s{S_T}, s{S_T}, s{S_T+1}"); e(f"v_add_u32 v28, s{S_T}, v28"); o = 24 * 16
        e(f"ds_write_b128 v28, {vr(L1R+4*i,4)} offset:{o}")
    for i in range(13):
        unpack(g, DR, PS, L1R, i)
        if i >= 4: l1out(i - 4)
    for i in range(9, 13): l1out(i)
    g.stamp("s")
    lwait(g, "S0OK", 4, 25, 2)
    e("v_lshlrev_b32 v1, 4, v0")
    for i in range(2): e(f"ds_read_b128 {vr(AR+4*i,4)}, v1 offset:{BUFA + i*S0STR}")
    DR = 132
    e("v_mov_b32 v2, 1")
    e(f"s_setprio {PAR.xp}")
    for t in range(7):
        e(f"s_waitcnt vmcnt({6 - t})")
        unpack(g, DR, PA, GR, t)
        e(f"ds_write_b128 v{7 if t < 5 else 18}, {vr(GR+4*t,4)} offset:{64*t}")
        if t in (3, 5): tmax(g, DR, (t >> 1) - 1, 16, t == 3, 20)
    e("s_mov_b64 exec, 1"); e(f"ds_add_u32 v25, v2 offset:{CNT['RAW']-M_CNT}"); e("s_mov_b64 exec, -1")
    g.stamp(); g.stamp("s")
    tmax(g, DR, 2, 16, False, 20); tmax(g, DR, 3, 8, False, 20)
    for sh in (8, 4, 2, 1):
        e(f"v_max_u32_dpp v20, v20, v20 row_ror:{sh} {DPPALL}")
    e("v_lshrrev_b32 v20, 23, v20"); e("v_max_u32 v20, 4, v20")
    e(f"v_sub_u32 v22, {127+130}, v20"); e("v_lshlrev_b32 v22, 23, v22")
    for t in range(7):
        d = DR + 8 * t
        for i in range(4): e(f"v_pk_mul_f32 {vr(d+2*i,2)}, {vr(d+2*i,2)}, v[22:23] op_sel_hi:[1,0]")
        for i in range(4): e(f"v_cvt_pk_f16_f32 v{MR+4*t+i}, v{d+2*i}, v{d+2*i+1}")
        e(f"ds_write_b128 v{7 if t < 5 else 18}, {vr(MR+4*t,4)} offset:{D1 - D0 + 64*t}")
    for k in range(4):
        for t in range(7):
            e(f"ds_read_b64_tr_b16 {vr(X(k,2*t),2)}, v16 offset:{D1 - D0 + k*XSTR+t*256}")
    for k in range(4): e(f"v_readlane_b32 s{S_EX+k}, v20, {16*k}")
    HW = lambda l: S_HDR + 2 * l
    HD = lambda l: S_HDR + 2 * l + 1
    HQ, HL = S_HDR + 8, S_HDR + 9
    e("s_setprio 1")
    e("s_waitcnt lgkmcnt(14)")
    g.stamp(); g.stamp("s")

    ready = set()
    def quad_prod(k, rho):
        p, q = QPAIRS[rho]
        return lambda d: f"v_pk_mul_f16 v{d}, v{X(k,p)}, v{X(k,q)} op_sel_hi:[0,1]"
    def gen_prod(l):
        def f(k, rho):
            r, p = divmod(rho, 13)
            def mk(d):
                if r == 13: return f"v_mov_b32 v{d}, v{U(k,p)}" if l == 2 else f"v_mov_b32 v{d}, 0"
                assert ('u', l, k, r) in ready, (l, k, r)
                if r & 1: return f"v_pk_mul_f16 v{d}, v{U(k,r>>1)}, v{X(k,p)} op_sel:[1,0] op_sel_hi:[1,1]"
                return f"v_pk_mul_f16 v{d}, v{U(k,r>>1)}, v{X(k,p)} op_sel_hi:[0,1]"
            return mk
        return f
    def lin_prod(k, t):
        b = 2 * t + 1 if 2 * t + 1 < 13 else 2 * t
        return lambda d: f"v_pack_b32_f16 v{d}, v{X(k,2*t)}, v{X(k,b)}"
    def steps(nprod, prod, acc, base, first0, stride=1024, needs=None):
        out = []
        ns = (nprod + 3) // 4
        for s in range(ns):
            out.append(dict(lds=base + stride * s, needs=needs if s == 0 else None, jobs=[dict(acc=acc + 16 * k, zero=(first0 and s == 0),
                       prods=[prod(k, rho) for rho in range(4 * s, min(4 * s + 4, nprod))]) for k in range(4)]))
        return out
    S_CL = S_C1
    e(f"s_mov_b32 s{S_CL}, {115 << 23}"); e(f"s_mov_b32 s{S_MASK}, 145")
    def cvt(acc, t):
        return [f"v_cvt_pk_f16_f32 v{U(k,t)}, v{acc+16*k+2*t}, " + (f"v{acc+16*k+2*t+1}" if t < 6 else "0") for k in range(4)]
    def scl(l, t):
        o = []
        for k in range(4):
            o.append((f"v_pk_mul_f16 v{U(k,t)}, v{U(k,t)}, v{SC+k} op_sel_hi:[1,0]", ('u', l + 1, k, 2 * t)))
            o.append((None, ('u', l + 1, k, 2 * t + 1)))
        return o
    def head(acc, l):
        o = []
        for j in range(6):
            for k in range(4):
                a = acc + 16 * k
                if j == 0: o.append(f"v_max3_f32 v{SC+k}, |v{a}|, |v{a+1}|, |v{a+2}|")
                else: o.append(f"v_max3_f32 v{SC+k}, v{SC+k}, |v{a+2*j+1}|, |v{a+2*j+2}|")
        for k in range(4): o.append(f"v_mov_b32 v{TM+k}, v{SC+k}")
        o += cvt(acc, 0)
        for k in range(4): o.append(f"v_permlane32_swap_b32 v{SC+k}, v{TM+k}")
        for k in range(4): o.append(f"v_max3_f32 v{SC+k}, v{SC+k}, v{TM+k}, s{S_CL}")
        for k in range(4): o.append(f"v_lshrrev_b32 v{TM+k}, 23, v{SC+k}")
        for k in range(4): o.append(f"v_sub_u32 v{SC+k}, s{S_MASK}, v{TM+k}")
        for k in range(4): o.append(f"v_lshlrev_b32 v{SC+k}, 10, v{SC+k}")
        return o + scl(l, 0)
    def evup(l):
        return [(None, 'x', ('k', l))] + [f"v_add3_u32 v{EV(k)}, v{EV(k)}, v{TM+k}, s{S_K+k}" for k in range(4)] + [(None, ('ev', l))]
    def emit(x):
        if callable(x): return x() or 0
        if isinstance(x, tuple):
            if len(x) == 3: assert x[2] in ready, x
            ready.add(x[1]); x = x[0]
        if not x: return 0
        e(x)
        return 2 if 'permlane' in x else 1
    def kconst(l):
        o = []
        if l == 0: o.append(f"s_sub_u32 s{S_T}, s{HW(0)}, 130")
        elif l == 1: o += [f"s_add_u32 s{S_T}, s{HW(1)}, s{HD(2)}", f"s_sub_u32 s{S_T}, s{S_T}, 130"]
        else: o += [f"s_sub_u32 s{S_T}, s{HW(l)}, s{HD(l)}", f"s_add_u32 s{S_T}, s{S_T}, s{HD(l+1)}", f"s_sub_u32 s{S_T}, s{S_T}, 130"]
        if l: o.insert(0, (None, 'x', ('ev', l - 1)))
        return o + [f"s_add_u32 s{S_K+k}, s{S_T}, s{S_EX+k}" for k in range(4)] + [(None, ('k', l))]
    state = dict(areg=0, breg=0, base=0)
    def aread(st):
        if st.get('ok'): assert st['ok'] in ready, st['ok']
        st['a'] = AR + 4 * (state['areg'] % 3); state['areg'] += 1
        r = st['lds'] - state['base']; c = 1
        if r < 0 or r > 65535:
            e(f"v_add_u32 v1, {r & 0xffffffff}, v1"); state['base'] = st['lds']; r = 0; c = 2
        e(f"ds_read_b128 {vr(st['a'],4)}, v1 offset:{r}")
        return c
    def prods(job):
        job['b'] = BR + 4 * (state['breg'] % 4); state['breg'] += 1
        return [p(job['b'] + i) for i, p in enumerate(job['prods'])][:PAR.npk]
    GATE = 'GATE'
    import re
    def nbytes(x):
        if callable(x): return 0 if x.__name__ == '<lambda>' else 8
        if isinstance(x, tuple): x = x[0]
        if not x or x == GATE: return 0
        op = x.split()[0]
        lit = any(abs(int(t, 0)) > 64 for t in re.findall(r'(?<![\w\[:])(-?(?:0x[0-9a-f]+|\d+))(?![\w\]:.])', x.split(None, 1)[1]))
        short = op.startswith('s_') or op in ('v_mov_b32', 'v_mul_f32', 'v_add_f32', 'v_add_u32', 'v_sub_u32', 'v_lshrrev_b32', 'v_lshlrev_b32', 'v_and_b32',
                                              'v_permlane32_swap_b32', 'v_readfirstlane_b32', 'v_cmp_lt_u32', 'v_cndmask_b32', 'v_max_f32')
        return 4 if short and not lit else 8
    def run(seq, nxt, fill=None, side=None, rates=None):
        rate = PAR.rate
        jobs = [(si, j) for si, st in enumerate(seq) for j in st['jobs']]
        for j in range(2):
            for s in prods(jobs[j][1]): e(s)
        fq = []; sq = []; gate = -1; credit = 0
        allst = seq + nxt
        for n, (si, job) in enumerate(jobs):
            k = n % 4
            if k == 0:
                if fill and si in fill: fq += fill[si]
                if side and si in side: sq += side[si]
                if rates and si in rates: rate = rates[si]
                pend = sum(1 for st in allst[si+1:si+2] if 'a' in st)
                e(f"s_waitcnt lgkmcnt({0 if seq[si].get('drain') else pend})")
                if seq[si]['needs']: assert seq[si]['needs'] in ready, seq[si]['needs']
            c = "0" if job['zero'] else vr(job['acc'], 16)
            e(f"v_mfma_f32_32x32x16_f16 {vr(job['acc'],16)}, {vr(seq[si]['a'],4)}, {vr(job['b'],4)}, {c}")
            budget = 6
            if k == 0 and si + 2 < len(allst) and 'a' not in allst[si + 2]: budget -= aread(allst[si + 2])
            if k == 3: budget -= 1
            if n + 2 < len(jobs):
                ps = prods(jobs[n + 2][1])
                for s in ps: e(s)
                budget -= len(ps)
                credit += sum(8 - nbytes(p) for p in ps) + 8 * (4 - len(ps))
            credit = min(credit + rate / 4, 16)
            while sq and si >= gate and ((budget > 0 and credit >= nbytes(sq[0])) or nbytes(sq[0]) == 0):
                x = sq.pop(0)
                if x == GATE: gate = si + 2
                else: budget -= emit(x); credit -= nbytes(x)
            while fq and ((budget > 0 and credit >= nbytes(fq[0])) or nbytes(fq[0]) == 0):
                x = fq.pop(0); budget -= emit(x); credit -= nbytes(x)
        assert not sq, sq
        for s in fq: emit(s)
    S0 = steps(91, quad_prod, ACC, BUFA, True, stride=S0STR)
    L1 = steps(172, gen_prod(1), ACC2, BUFB, True, stride=S0STR)
    L2 = steps(176, gen_prod(2), ACC, BUFA, True, needs=('free', 0))
    Q4 = steps(91, quad_prod, ACC2, D0, True, needs=('free', 1))
    LN = steps(7, lin_prod, ACC2, D0 + 24 * 1024, False, needs='ldx')
    L3 = steps(169, gen_prod(3), ACC, BUFB, True, needs=('free', 2))
    L1[0]['ok'] = "RAW"; L2[0]['ok'] = "L2OK"; Q4[0]['ok'] = "QOK"; L3[0]['ok'] = "L3OK"
    def hdr(addr, sa, sb=None):
        return [f"v_mov_b32 v3, {addr}", "ds_read_b64 v[2:3], v3", GATE, f"v_readfirstlane_b32 s{sa}, v2"] + ([f"v_readfirstlane_b32 s{sb}, v3"] if sb else [])
    def arrive(c):
        def f():
            e(f"v_add_u32 v3, {(CNT[c] - state['base']) & 0xffffffff}, v1"); return 1
        return ["v_mov_b32 v2, 1", f, "ds_add_u32 v3, v2"]
    def check(c):
        def f():
            slow = g.newlab("cs"); back = g.newlab("cb"); top = g.newlab("ct")
            e(f"s_cmp_lt_u32 s{S_T+2}, 4"); e(f"s_cbranch_scc1 {slow}")
            g.lab(back)
            g.tail += [slow + ":", f"    s_mov_b32 s{S_T+1}, {SPIN*8}", top + ":", "    s_sleep 1", "    ds_read_b32 v2, v3", "    s_waitcnt lgkmcnt(0)",
                       f"    v_readfirstlane_b32 s{S_T+2}, v2", f"    s_cmp_ge_u32 s{S_T+2}, 4", f"    s_cbranch_scc1 {back}",
                       f"    s_sub_u32 s{S_T+1}, s{S_T+1}, 1", f"    s_cbranch_scc0 {top}", f"    s_branch {back}"]
            ready.add(c); return 2
        return [f"v_mov_b32 v3, {CNT[c]}", "ds_read_b32 v2, v3", GATE, f"v_readfirstlane_b32 s{S_T+2}, v2", f]
    def stp(n): return [lambda: g.stamp(n)]
    def rest(acc, l):
        o = []
        for t in range(1, 7): o += cvt(acc, t) + scl(l, t)
        return o + [(None, ('free', l))]
    HOFF = 29 * 16
    S0[0]['a'] = AR; S0[1]['a'] = AR + 4; state['areg'] = 2; S0[0]['drain'] = True
    ev0 = []
    for k in range(4): ev0 += [f"s_sub_u32 s{S_EX+k}, s{S_EX+k}, 130", f"s_lshl_b32 s{S_T}, s{S_EX+k}, 1", f"v_mov_b32 v{EV(k)}, s{S_T}"]
    run(S0, L1[:2], side={0: arrive("RB") + ev0, 2: hdr(BUFA + 23 * S0STR + 512, HW(0)) + kconst(0), 17: check("RAW"), 22: arrive("AFREE")})
    g.stamp(); g.stamp("l")
    for s in head(ACC, 0): emit(s)
    g.stamp("l")
    run(L1, L2[:2], fill={0: rest(ACC, 0) + evup(0)}, side={20: stp("l"), 37: check("L2OK")[:-1] + stp("l") + check("L2OK")[-1:] + stp("l"), 42: arrive("BFREE")}, rates={0: 32})
    g.stamp(); g.stamp("l")
    for s in head(ACC2, 1): emit(s)
    g.stamp("l")
    LNPOS = PAR.lnpos
    seq = L2 + Q4 + L3[:LNPOS] + LN + L3[LNPOS:]
    nQ = 44; nL3 = nQ + 23
    PV, PA = 2, 3
    def pload():
        e(f"buffer_load_dword v{PV}, v{PA}, {sr(S_WS)}, s{S_T+3} offen sc1"); return 1
    k1 = [f"s_sub_u32 s{S_T}, s{HD(1)}, s{HD(2)}"] + [f"s_sub_u32 s{S_K1+k}, s{S_T}, s{S_EX+k}" for k in range(4)] + [(None, 'k1')]
    dots = [(None, 'x', 'k1')]
    for k in range(4): dots.append(f"v_ldexp_f32 v{ACC+16*k+15}, v{ACC+16*k+15}, v{EV(k)}")
    for k in range(4): dots.append(f"v_add_u32 v{ACC+16*k+13}, s{S_K1+k}, v{EV(k)}")
    for k in range(4): dots.append(f"v_ldexp_f32 v{ACC+16*k+14}, v{ACC+16*k+14}, v{ACC+16*k+13}")
    for k in range(4): dots.append(f"v_add_f32 v{LG+k}, v{ACC+16*k+14}, v{ACC+16*k+15}")
    dots.append((None, 'dots'))
    b2 = head(ACC, 2) + dots
    for t in range(1, 7): b2 += cvt(ACC, t)
    b2.append((None, ('free', 2)))
    kq = []; S_K2 = 8
    for k in range(4):
        kq += [f"s_sub_u32 s{S_T}, s{HQ}, s{HL}", f"s_add_u32 s{S_T}, s{S_T}, s{S_EX+k}", f"s_min_i32 s{S_KC+k}, s{S_T}, 40",
               f"s_add_i32 s{S_T}, s{S_KC+k}, 127", f"s_max_i32 s{S_T}, s{S_T}, 0", f"s_lshl_b32 s{S_K2+k}, s{S_T}, 23"]
    kq.append((None, 'kq'))
    ldx = [(None, 'x', 'kq')] + [f"v_mul_f32 v{ACC2+16*k+r}, s{S_K2+k}, v{ACC2+16*k+r}" for k in range(4) for r in range(13)] + [(None, 'ldx')]
    l3f = scl(2, 1)
    per = (len(ldx) + 4) // 5
    for t in range(2, 7): l3f += scl(2, t) + ldx[(t - 2) * per:(t - 1) * per] + (evup(2) if t == 6 else [])
    pre = ["v_bfe_u32 v2, v0, 4, 1", "v_lshrrev_b32 v3, 5, v0", "v_lshl_add_u32 v2, v2, 1, v3", "v_and_b32 v3, 15, v0", "v_cmp_lt_u32 vcc, 12, v3",
           "v_lshlrev_b32 v3, 10, v3", "v_lshl_add_u32 v3, v2, 2, v3", f"v_mov_b32 v2, {OOB}", "v_cndmask_b32 v3, v3, v2, vcc",
           f"s_mul_i32 s{S_T+3}, s{S_G}, {13*1024}", f"s_and_b32 s{S_T}, s{S_SB}, 255", f"s_lshl_b32 s{S_T}, s{S_T}, 2",
           f"s_add_u32 s{S_T+3}, s{S_T+3}, s{S_T}", f"s_add_u32 s{S_T+3}, s{S_T+3}, {WS_PART}"]
    fin = [(None, 'x', ('ev', 2))]
    for k in range(4): fin += [f"s_lshl_b32 s{S_T}, s{S_EX+k}, 1", f"s_add_u32 s{S_K+k}, s{S_T}, s{HD(0)}"]
    for k in range(4): fin.append(f"v_ldexp_f32 v{ACC2+16*k+15}, v{ACC2+16*k+15}, s{S_K+k}")
    for k in range(4): fin.append(f"v_add_f32 v{LG+k}, v{LG+k}, v{ACC2+16*k+15}")
    fin += [f"s_sub_u32 s{S_T}, s{HW(3)}, s{HD(3)}", f"s_add_u32 s{S_T}, s{S_T}, s{HQ}"]
    for k in range(4): fin += [f"s_lshl_b32 s{S_K+k}, s{S_EX+k}, 1", f"s_add_u32 s{S_K+k}, s{S_K+k}, s{S_T}", f"s_sub_u32 s{S_K+k}, s{S_K+k}, s{S_KC+k}"]
    BO = ACC2 + 14
    fin += [f"v_add_u32 v{TM+k}, s{S_K+k}, v{EV(k)}" for k in range(4)] + [f"v_mov_b32 v{BO-1}, 0", f"buffer_load_ushort v{BO}, v{BO-1}, {sr(S_BO)}, 0 offen"]
    run(seq, [], fill={0: rest(ACC2, 1), 14: evup(1), nQ + 1: b2, nL3: l3f},
        side={0: hdr(BUFA + HOFF, HW(2), HD(2)) + kconst(1) + hdr(BUFA + HOFF + 8, HD(1)) + k1, 1: stp("p"), 21: stp("p"),
              nQ - PAR.qchk: check("QOK") + hdr(D0 + 23 * 1024, HQ, HL) + kq, nQ: stp("p"),
              nL3 - 6: check("L3OK"), nL3: stp("p"), nL3 + 6: hdr(BUFB + HOFF, HW(3), HD(3)) + kconst(2) + hdr(D0 + 23 * 1024 + 8, HD(0)),
              nL3 + LNPOS - 2: pre, nL3 + LNPOS + 4: fin, nL3 + 20: stp("p"), nL3 + PAR.pload: [pload], nL3 + 40: stp("p")},
        rates={0: 32, 20: PAR.rate, nQ: PAR.qrate, nL3: PAR.rate})
    g.stamp()
    for r in range(13):
        for k in range(4):
            if r == 0: e(f"v_mul_f32 v{SC+k}, v{ACC+16*k}, v{ACC2+16*k}")
            else: e(f"v_fmac_f32 v{SC+k}, v{ACC+16*k+r}, v{ACC2+16*k+r}")
    for k in range(4): e(f"v_ldexp_f32 v{ACC+16*k+15}, v{ACC+16*k+15}, v{EV(k)}")
    for k in range(4): e(f"v_ldexp_f32 v{SC+k}, v{SC+k}, v{TM+k}")
    for k in range(4): e(f"v_add_f32 v{LG+k}, v{LG+k}, v{ACC+16*k+15}")
    for k in range(4): e(f"v_add_f32 v{LG+k}, v{LG+k}, v{SC+k}")
    e(f"v_permlane32_swap_b32 v{LG}, v{LG+1}"); e(f"v_permlane32_swap_b32 v{LG+2}, v{LG+3}")
    e(f"v_add_f32 v{LG}, v{LG}, v{LG+1}"); e(f"v_add_f32 v{LG+2}, v{LG+2}, v{LG+3}")
    e(f"v_permlane16_swap_b32 v{LG}, v{LG+2}")
    e(f"v_add_f32 v{LG}, v{LG}, v{LG+2}")
    e(f"s_mov_b32 s{S_T}, {SPIN}")
    g.lab("L_pcheck")
    e("s_waitcnt vmcnt(0)")
    e(f"v_cmp_eq_u32 vcc, -1, v{PV}")
    e("s_nop 1")
    e("s_cbranch_vccz L_pok")
    e("s_sleep 4")
    pload()
    e(f"s_sub_u32 s{S_T}, s{S_T}, 1")
    e("s_cbranch_scc0 L_pcheck")
    e("s_waitcnt vmcnt(0)")
    g.lab("L_pok")
    e(f"v_add_f32 v{LG}, v{LG}, v{PV}")
    for sh in (8, 4, 2, 1):
        e(f"v_add_f32_dpp v{LG}, v{LG}, v{LG} row_ror:{sh} {DPPALL}")
    e(f"v_lshlrev_b32 v{BO}, 16, v{BO}")
    e(f"v_add_f32 v{LG}, v{LG}, v{BO}")
    e(f"v_cvt_pk_bf16_f32 v{LG}, v{LG}, v{LG}")
    e(f"v_lshrrev_b32 v{PA}, 1, v{PA}")
    e(f"v_cmp_lt_u32 vcc, 7, v{PA}")
    e(f"v_mov_b32 v2, {OOB}")
    e(f"v_cndmask_b32 v{PA}, v{PA}, v2, vcc")
    e(f"s_lshl_b32 s{S_T}, s{S_SB}, 1")
    e(f"buffer_store_short v{LG}, v{PA}, {sr(S_OUT)}, s{S_T} offen")
    g.stamp(); g.stamp("e")
    if PAR.enc is not None:
        e("s_waitcnt lgkmcnt(0)")
        e(f"s_sub_u32 s{S_T}, s{S_ST+2*PAR.enc}, s{S_ST}"); e(f"s_lshl_b32 s{S_T}, s{S_T}, 1"); e(f"s_add_u32 s{S_T}, s{S_T}, 6000")
        g.lab("L_enc")
        e(f"s_memrealtime s[{S_T+2}:{S_T+3}]"); e("s_waitcnt lgkmcnt(0)")
        e(f"s_sub_u32 s{S_T+2}, s{S_T+2}, s{S_ST}"); e(f"s_cmp_lt_u32 s{S_T+2}, s{S_T}"); e("s_cbranch_scc1 L_enc")
    g.flush_stamps(4, 5)
    e("s_endpgm")

HACC, HX, HW_ = 4, 68, 208
V_TR0, V_TR1, V_DMA, V_WSRC, V_H16, V_L0, V_HROW, V_CNT = 248, 249, 250, 251, 252, 253, 254, 255
ID, QA, QSH, QS, W0R, PK = 4, 12, 19, 20, 180, 236
L1R, BT = 180, 36
S_WP, S_L, S_FR, S_E0, S_E1, S_E2, S_PO, S_CX = 48, 49, 50, 51, 52, 53, 54, 55
S_LC = 56
S_E3, S_XB = 60, 61
def dma_img(g, name, nfr, lds):
    e = g.e; per = nfr // 4
    va = V_DMA
    if name == "Q4":
        va = 1
        e("v_and_b32 v1, 31, v0"); e("v_subrev_u32 v1, 29, v1"); e("v_cmp_gt_u32 vcc, 2, v1"); e(f"v_mov_b32 v1, {OOB}"); e(f"v_cndmask_b32 v1, v{V_DMA}, v1, vcc")
    e(f"s_mul_i32 s{S_T}, s{S_J}, {per*1024}")
    for i in range(per):
        if i % 4 == 0:
            e(f"s_add_u32 s{S_T+1}, s{S_T}, {IMG[name] + i*1024}")
            e(f"s_add_u32 m0, s{S_T}, {lds + i*1024}")
        g.vm(f"buffer_load_dwordx4 v{va}, {sr(S_WS)}, s{S_T+1} offen offset:{(i%4)*1024} {PAR.ld} lds", name)
def poll(g, checks, pre=None):
    e = g.e
    done = g.newlab("pd"); top = g.newlab("pt"); slp = g.newlab("ps"); tst = g.newlab("pc")
    regs = pre or [2 + i for i in range(len(checks))]
    e(f"s_mov_b32 s{S_T}, {SPIN}")
    if pre: e(f"s_branch {tst}")
    g.lab(top)
    for r, (srd, so, o, n) in zip(regs, checks):
        e(f"buffer_load_dword v{r}, v{V_L0}, {sr(srd)}, {so} offen offset:{o} sc1")
    e("s_waitcnt vmcnt(0)")
    g.lab(tst)
    for r, (srd, so, o, n) in zip(regs, checks):
        e(f"v_readfirstlane_b32 s{S_T+1}, v{r}")
        e(f"s_cmp_lt_u32 s{S_T+1}, {n}")
        e(f"s_cbranch_scc1 {slp}")
    g.lab(done)
    g.tail += [slp + ":", f"    s_sleep {PAR.slp}", f"    s_sub_u32 s{S_T}, s{S_T}, 1", f"    s_cbranch_scc0 {top}", f"    s_branch {done}"]
def poll1(g, checks, flag, pre=None):
    lb = g.newlab("p1")
    g.e(f"s_cmp_lg_u32 s{S_J}, 0"); g.e(f"s_cbranch_scc1 {lb}")
    poll(g, checks, pre)
    arrive(g, flag)
    g.lab(lb)
    lwait(g, flag, 1)
def presample(g, checks, regs, tag):
    for r, (srd, so, o, n) in zip(regs, checks):
        g.vm(f"buffer_load_dword v{r}, v{V_L0}, {sr(srd)}, {so} offen offset:{o} sc1", tag)
def arrive(g, *cs):
    e = g.e
    e("v_mov_b32 v1, 1"); e("s_mov_b64 exec, 1")
    for c in cs: e(f"ds_add_u32 v{V_CNT}, v1 offset:{CNT[c]-M_CNT}")
    e("s_mov_b64 exec, -1")
def unpack_mat(g, PA, t):
    e = g.e
    e(f"v_and_b32 v{t}, 1, v0"); e(f"v_lshlrev_b32 v{t}, 4, v{t}"); e(f"v_mov_b32 v{t+1}, 0x3f80"); e(f"v_lshlrev_b32 v{t+1}, v{t}, v{t+1}")
    e(f"v_lshrrev_b32 v{t+2}, 3, v0"); e(f"v_xor_b32 v{t+2}, v{t+2}, v0"); e(f"v_and_b32 v{t+2}, 4, v{t+2}")
    e(f"v_bfe_u32 v{t}, v0, 3, 2"); e(f"v_bfe_u32 v{t+3}, v0, 1, 1"); e(f"v_lshl_add_u32 v{t}, v{t}, 1, v{t+3}"); e(f"v_lshl_add_u32 v{t}, v{t+2}, 3, v{t}")
    for i in range(8):
        e(f"v_cmp_eq_u32 vcc, {i}, v{t}"); e(f"v_cndmask_b32 v{PA+i}, 0, v{t+1}, vcc")
def unpack(g, DR, pa, src, i):
    d = DR + 16 * ((i >> 1) & 3)
    g.e(f"v_mfma_f32_32x32x16_bf16 {vr(d,16)}, {vr(pa+4*(i&1),4)}, {vr(src+4*i,4)}, {vr(d,16) if i & 1 else '0'}")
def tmax(g, DR, tile, n, first, mv=1):
    d = DR + 16 * (tile & 3)
    for q in range(n // 2):
        if first and q == 0: g.e(f"v_max_f32 v{mv}, |v{d}|, |v{d+1}|")
        else: g.e(f"v_max3_f32 v{mv}, v{mv}, |v{d+2*q}|, |v{d+2*q+1}|")
def lwait(g, c, n=4, va=None, vd=1):
    e = g.e; top = g.newlab("lw"); done = g.newlab("ld")
    e(f"s_mov_b32 s{S_T}, {SPIN*8}")
    g.lab(top)
    e(f"ds_read_b32 v{vd}, v{va or V_CNT} offset:{CNT[c]-M_CNT}"); e("s_waitcnt lgkmcnt(0)")
    e(f"v_readfirstlane_b32 s{S_T+1}, v{vd}"); e(f"s_cmp_ge_u32 s{S_T+1}, {n}"); e(f"s_cbranch_scc1 {done}")
    e(f"s_sleep {PAR.lslp if c in ('FX', 'F2', 'F3', 'FQ', 'AFREE', 'BFREE', 'XST') else 1}"); e(f"s_sub_u32 s{S_T}, s{S_T}, 1"); e(f"s_cbranch_scc0 {top}")
    g.lab(done)
def rowmax(g, v, op="v_max_u32_dpp"):
    for sh in (8, 4, 2, 1): g.e(f"{op} v{v}, v{v}, v{v} row_ror:{sh} {DPPALL}")
def wavemax_exp(g, v, sdst):
    e = g.e
    rowmax(g, v)
    e(f"v_readlane_b32 s{sdst}, v{v}, 0"); e(f"v_readlane_b32 s{S_T}, v{v}, 16"); e(f"s_max_u32 s{sdst}, s{sdst}, s{S_T}")
    e(f"v_readlane_b32 s{S_T}, v{v}, 32"); e(f"s_max_u32 s{sdst}, s{sdst}, s{S_T}")
    e(f"v_readlane_b32 s{S_T}, v{v}, 48"); e(f"s_max_u32 s{sdst}, s{sdst}, s{S_T}")
    e(f"s_lshr_b32 s{sdst}, s{sdst}, 23"); e(f"s_sub_u32 s{sdst}, s{sdst}, 126")
def put_max(g, slot):
    e = g.e
    rowmax(g, 1)
    e("v_lshrrev_b32 v2, 4, v0"); e(f"s_lshl_b32 s{S_T}, s{S_J}, 4"); e(f"s_add_u32 s{S_T}, s{S_T}, {slot}")
    e(f"v_lshl_add_u32 v2, v2, 2, s{S_T}")
    e("ds_write_b32 v2, v1")
def get_max(g, slot):
    e = g.e
    e("v_and_b32 v2, 15, v0"); e("v_lshlrev_b32 v2, 2, v2"); e(f"v_add_u32 v2, {slot}, v2")
    e("ds_read_b32 v1, v2"); e("s_waitcnt lgkmcnt(0)")
    rowmax(g, 1)
def pkmax(g, regs):
    e = g.e
    e(f"v_pk_max_u16 v1, v{regs[0]}, v{regs[1]}"); e(f"v_pk_max_u16 v3, v{regs[2]}, v{regs[3]}")
    for i, r in enumerate(regs[4:]): e(f"v_pk_max_u16 v{1 + 2*(i&1)}, v{1 + 2*(i&1)}, v{r}")
    e("v_pk_max_u16 v1, v1, v3"); e("v_alignbit_b32 v3, v1, v1, 16"); e("v_pk_max_u16 v1, v1, v3")
def pack_round(g, acc, off):
    e = g.e
    for t in range(14): e(f"v_mul_f32 v{acc+t}, v{acc+t}, v{QS+(t>>1)}")
    for t in range(7): e(f"v_cvt_pk_f16_f32 v{PK+t}, v{acc+2*t}, v{acc+2*t+1}")
    for t in range(7): e(f"v_alignbit_b32 v{PK+t}, v{PK+t}, v{PK+t}, v{QSH}")
    for t in range(7): e(f"ds_write_b32 v{QA+t}, v{PK+t} offset:{off}")
def s0_max(g, t):
    a = HX + 16 * t
    for i in range(7):
        if t == 0 and i == 0: g.e(f"v_max_f32 v1, |v{a}|, |v{a+1}|")
        else: g.e(f"v_max3_f32 v1, v1, |v{a+2*i}|, |v{a+2*i+1}|")
F0 = lambda c: sum(PAR.chunks[:c])
S_ROT = 64
def rotf(g, f, sd):
    g.e(f"s_add_u32 s{sd}, s{S_ROT}, {f}"); g.e(f"s_sub_u32 s{S_ROT+1}, s{sd}, 26"); g.e(f"s_min_u32 s{sd}, s{sd}, s{S_ROT+1}")
def dma_w(g, c, only=None):
    e = g.e
    Dc = (D0, D1)[c & 1]
    e(f"s_lshl_b32 s{S_T}, s{S_J}, 10")
    for fl in range(PAR.chunks[c]):
        if only is not None and fl != only: continue
        e(f"s_add_u32 m0, s{S_T}, {Dc + fl*4096}")
        rotf(g, F0(c) + fl, S_T + 1); e(f"s_mul_i32 s{S_T+1}, s{S_T+1}, 53248")
        g.vm(f"buffer_load_dwordx4 v{V_WSRC}, {sr(S_W1)}, s{S_T+1} offen lds", f"W{c}")
CHK_X = lambda: (S_WS, f"s{S_CX}", 0, 16)
def helper_common(g):
    e = g.e
    e("s_setprio 2")
    e(f"s_sub_u32 s{S_J}, s{S_WAVE}, 4")
    e("v_and_b32 v2, 31, v0"); e("v_lshrrev_b32 v3, 5, v0")
    e(f"v_lshlrev_b32 v{V_H16}, 4, v3")
    e(f"v_mad_u32_u24 v1, v2, 52, v{V_H16}")
    if PAR.wpf:
        e(f"s_cmp_lg_u32 s{S_J}, 0"); e("s_cbranch_scc1 L_nowpf")
        e(f"s_mov_b32 s{S_WC+2}, {6*LB}"); e(f"s_lshr_b32 s{S_T}, s2, 3"); e(f"s_lshl_b32 s{S_T}, s{S_T}, 7")
        e("v_lshlrev_b32 v4, 12, v0")
        e(f"buffer_load_dword v247, v4, {sr(S_WC)}, s{S_T} offen")
        e(f"s_mov_b32 s{S_WC+2}, {LB}")
        g.lab("L_nowpf")
    e("s_barrier")
    e(f"s_mul_i32 s{S_T}, s{S_J}, 1352")
    for t in range(7):
        if t < 6: e(f"s_add_u32 s{S_T+1}, s{S_T}, {(13*(t&1) + 4*(t>>1))*1352}")
        else:
            e(f"s_mul_i32 s{S_T+1}, s{S_J}, {13*1352}"); e(f"s_add_u32 s{S_T+1}, s{S_T+1}, {12*1352}")
        for s in range(2):
            g.vm(f"buffer_load_dwordx4 {vr(W0R+8*t+4*s,4)}, v1, {sr(S_WC)}, s{S_T+1} offen offset:{32*s}", f"w0_{t}")
    e(f"v_mov_b32 v5, {OOB}"); e("v_cmp_eq_u32 vcc, 0, v0"); e(f"v_cndmask_b32 v{V_L0}, v5, 0, vcc")
    e(f"s_mul_i32 s{S_CX}, s{S_G}, {PAR.cstr}"); e(f"s_add_u32 s{S_CX}, s{S_CX}, {WS_CNT}")
    e(f"s_add_u32 s{S_T}, s{S_R}, s{S_J}"); e(f"s_cmp_eq_u32 s{S_T}, 0"); e(f"s_cselect_b32 s{S_E3}, 0, {OOB}")
    e(f"v_add_u32 v34, s{S_E3}, v{V_L0}");
    for i in range(4): e(f"v_mov_b32 v{36+i}, 0")
    g.vm(f"buffer_store_dwordx4 v[36:39], v34, {sr(S_WS)}, s{S_CX} offen sc1", "rst")
    if PAR.touch:
        e("v_lshlrev_b32 v36, 20, v0")
        e("v_and_b32 v37, 7, v0"); e("v_lshlrev_b32 v37, 20, v37")
        for i, (srd, vo) in enumerate(((S_TAB, 36), (S_WS, 37), (S_W1, 36), (S_B1, 36), (S_W2, 36), (S_DBG, 36), (S_WO, 36), (S_OUT, 36), (S_BO, 36))):
            g.vm(f"buffer_load_ushort v{38+i}, v{vo}, {sr(srd)}, 0 offen", "touch")
    e("v_lshrrev_b32 v4, 3, v2"); e("v_and_b32 v6, 3, v2"); e("v_lshl_add_u32 v4, v4, 2, v6")
    e("v_bfe_u32 v6, v2, 2, 1"); e(f"v_mad_u32_u24 v{V_HROW}, v6, 13, v4")
    e("v_cmp_lt_u32 vcc, 12, v4"); e("v_mov_b32 v7, 0x100000"); e(f"v_cndmask_b32 v{V_HROW}, v{V_HROW}, v7, vcc")
    e("v_cmp_eq_u32 s[72:73], 0, v6"); e("s_and_b64 vcc, vcc, s[72:73]")
    e(f"v_lshlrev_b32 v{V_DMA}, 4, v0"); e(f"v_cndmask_b32 v{V_DMA}, v{V_DMA}, v5, vcc")
    e("v_lshrrev_b32 v27, 1, v2"); e("v_and_b32 v28, 1, v2"); e(f"v_lshlrev_b32 v{QSH}, 4, v28")
    e("v_sub_u32 v29, 25, v27"); e("v_mul_u32_u24 v29, v29, v27"); e("v_lshrrev_b32 v29, 1, v29")
    e(f"s_lshl_b32 s{S_T}, s{S_J}, 4")
    e(f"v_lshl_add_u32 v28, v28, 9, s{S_T}")
    e(f"v_lshl_add_u32 v30, v0, 2, s{S_T}"); e(f"v_add_u32 v30, {BUFA + 24*S0STR}, v30")
    e("v_mov_b32 v33, 0.5")
    for t in range(7):
        qb = 4 * (t >> 1) + (t & 1)
        e(f"v_lshl_add_u32 v31, v3, 1, {qb}")
        e("v_add_u32 v32, v29, v31")
        e(f"v_lshrrev_b32 v{QA+t}, 2, v32"); e(f"v_mul_u32_u24 v{QA+t}, {S0STR}, v{QA+t}")
        e("v_and_b32 v32, 3, v32"); e("v_lshl_add_u32 v32, v32, 2, v28"); e(f"v_add_u32 v{QA+t}, v{QA+t}, v32")
        e("v_cmp_lt_u32 vcc, v31, v27")
        if t == 6:
            e("v_cmp_lt_u32 s[72:73], 12, v31"); e("s_or_b64 vcc, vcc, s[72:73]")
        e(f"v_cndmask_b32 v{QA+t}, v{QA+t}, v30, vcc")
        e("v_cmp_eq_u32 vcc, v31, v27"); e(f"v_cndmask_b32 v{QS+t}, 1.0, v33, vcc")
    e("v_lshlrev_b32 v31, 3, v3"); e("v_sub_u32 v31, v2, v31")
    e("v_mov_b32 v32, 0x3f80"); e(f"v_lshlrev_b32 v32, v{QSH}, v32")
    e("v_lshrrev_b32 v31, 1, v31")
    for s in range(2):
        for i in range(4):
            e(f"v_cmp_eq_u32 vcc, {8*s+i}, v31"); e(f"v_cndmask_b32 v{ID+4*s+i}, 0, v32, vcc")
    e("v_mul_u32_u24 v3, 676, v3"); e(f"s_movk_i32 s{S_T+1}, 1352"); e(f"v_mad_u32_u24 v27, v{V_HROW}, s{S_T+1}, v3")
    e(f"s_mov_b64 s[{S_LC}:{S_LC+1}], s[{S_WC}:{S_WC+1}]"); e(f"s_mov_b32 s{S_LC+3}, 0x00020000"); e(f"s_mov_b32 s{S_LC+2}, {2*LB}")
    e(f"s_mul_i32 s{S_ROT}, s{S_R}, {PAR.rot}")
    e("v_lshrrev_b32 v1, 3, v0"); e(f"s_lshl_b32 s{S_T}, s{S_J}, 3"); e(f"v_add_u32 v1, s{S_T}, v1")
    e("v_mul_u32_u24 v1, 1664, v1")
    e("v_bfe_u32 v2, v0, 4, 1"); e("v_lshlrev_b32 v2, 2, v2"); e("v_and_b32 v3, 7, v0"); e("v_xor_b32 v2, v2, v3")
    e("v_lshl_add_u32 v1, v2, 4, v1"); e(f"s_lshl_b32 s{S_SB}, s{S_R}, 7"); e(f"v_add_u32 v{V_WSRC}, s{S_SB}, v1")
    e("v_lshrrev_b32 v1, 5, v0"); e("v_bfe_u32 v2, v0, 2, 2")
    e("v_lshl_add_u32 v1, v1, 3, v2"); e("v_lshlrev_b32 v1, 7, v1")
    e("v_bfe_u32 v3, v0, 4, 1"); e("v_lshl_add_u32 v1, v3, 5, v1"); e("v_and_b32 v3, 3, v0"); e("v_lshl_add_u32 v1, v3, 3, v1")
    e("v_lshrrev_b32 v2, 1, v2"); e("v_lshl_add_u32 v1, v2, 6, v1")
    e(f"v_add_u32 v{V_TR0}, {D0}, v1"); e(f"v_xor_b32 v{V_TR1}, 64, v{V_TR0}")
    e(f"s_mul_i32 s{S_PO}, s{S_G}, 13"); e(f"s_add_u32 s{S_PO}, s{S_PO}, s{S_R}"); e(f"s_lshl_b32 s{S_PO}, s{S_PO}, 2"); e(f"s_add_u32 s{S_PO}, s{S_PO}, s{S_J}")
    e(f"s_lshl_b32 s{S_PO}, s{S_PO}, 8"); e(f"s_add_u32 s{S_PO}, s{S_PO}, {WS_PART}")
    e("v_bfe_u32 v60, v0, 3, 2"); e("v_and_b32 v61, 3, v0"); e("v_lshl_add_u32 v60, v60, 2, v61"); e(f"v_mul_u32_u24 v245, {XSTR}, v60")
    e("v_bfe_u32 v60, v0, 2, 1"); e("v_lshl_add_u32 v245, v60, 4, v245"); e(f"v_lshl_add_u32 v245, v{V_H16}, 1, v245")
    e(f"s_lshl_b32 s{S_T}, s{S_J}, 6"); e(f"s_add_u32 s{S_T}, s{S_T}, {D0}"); e(f"v_add_u32 v245, s{S_T}, v245")
    e("v_lshlrev_b32 v246, 4, v0"); e(f"v_lshl_add_u32 v246, v{V_H16}, 5, v246")
    e(f"s_lshl_b32 s{S_XB}, s{S_G}, 2"); e(f"s_lshr_b32 s{S_T}, s{S_R}, 2"); e(f"s_add_u32 s{S_XB}, s{S_XB}, s{S_T}"); e(f"s_mul_i32 s{S_XB}, s{S_XB}, 106496")
    e(f"s_bfe_u32 s{S_T}, s{S_R}, 0x10001"); e(f"s_lshl_b32 s{S_T}, s{S_T}, 11"); e(f"s_add_u32 s{S_XB}, s{S_XB}, s{S_T}")
    e(f"s_and_b32 s{S_T}, s{S_R}, 1"); e(f"s_lshl_b32 s{S_T}, s{S_T}, 9"); e(f"s_add_u32 s{S_XB}, s{S_XB}, s{S_T}")
    e(f"s_lshl_b32 s{S_T}, s{S_J}, 12"); e(f"s_add_u32 s{S_XB}, s{S_XB}, s{S_T}"); e(f"s_add_u32 s{S_XB}, s{S_XB}, {WS_X}")
    for t in range(7):
        g.vmwait(f"w0_{t}")
        a = HX + 16 * t; w = W0R + 8 * t
        e(f"v_mfma_f32_32x32x16_bf16 {vr(a,16)}, {vr(w,4)}, {vr(ID,4)}, 0")
        e(f"v_mfma_f32_32x32x16_bf16 {vr(a,16)}, {vr(w+4,4)}, {vr(ID+4,4)}, {vr(a,16)}")
        e(f"v_mfma_f32_32x32x16_bf16 {vr(a,16)}, {vr(ID,4)}, {vr(w,4)}, {vr(a,16)}")
        e(f"v_mfma_f32_32x32x16_bf16 {vr(a,16)}, {vr(ID+4,4)}, {vr(w+4,4)}, {vr(a,16)}")
        if t > 0: s0_max(g, t - 1)
    s0_max(g, 6)
    put_max(g, M_S0)
    g.vmwait("rst")
    e(f"v_mov_b32 v{V_CNT}, {M_CNT}")
    arrive(g, "S0M")
    e("v_mov_b32 v35, 1"); e(f"s_lshl_b32 s{S_E3}, s{S_G}, 2")
    g.vm(f"buffer_store_dword v35, v34, {sr(S_DBG)}, s{S_E3} offen offset:{C_RDY} sc1", "rdy")
    lwait(g, "S0M")
    g.stamp(); g.stamp("h")
    get_max(g, M_S0)
    e("v_lshlrev_b32 v3, 4, v0"); e(f"v_mov_b32 v{PK}, 0")
    e(f"ds_write_b32 v3, v{PK} offset:{BUFA + 22*S0STR + 12}")
    e("v_lshrrev_b32 v1, 23, v1")
    e("v_min_u32 v1, 249, v1")
    e("v_sub_u32 v2, 124, v1")
    e("v_subrev_u32 v1, 124, v1")
    e(f"ds_write_b32 v3, v1 offset:{BUFA + 23*S0STR + 512}")
    for t in range(7): e(f"v_ldexp_f32 v{QS+t}, v{QS+t}, v2")
    for t in range(7):
        if t == 6:
            e(f"s_cmp_eq_u32 s{S_J}, 1"); e(f"s_cselect_b32 s{S_T}, 48, 0")
            for i in range(7): e(f"v_add_u32 v{QA+i}, s{S_T}, v{QA+i}")
        if t in (0, 2, 4, 6): g.stamp("h")
        pack_round(g, HX + 16 * t, 16 * (8 * (t >> 1) + 4 * (t & 1)))
    arrive(g, "S0OK")
    g.stamp(); g.stamp("s"); g.stamp("h")
    DR = HX; XS = HX + 64; PS = 60
    def xpub():
        lwait(g, "RAW")
        for t in range(7): e(f"ds_read_b128 {vr(XS+4*t,4)}, v245 offset:{256*t}")
        e(f"s_cmp_ge_u32 s{S_J}, 2"); e(f"s_cselect_b32 s{S_T}, {OOB}, 0"); e(f"v_add_u32 v245, s{S_T}, v246")
        for t in range(7):
            e(f"s_waitcnt lgkmcnt({6-t})")
            g.vm(f"buffer_store_dwordx4 {vr(XS+4*t,4)}, v{246 if t < 6 else 245}, {sr(S_WS)}, s{S_XB} offen sc1", "xst")
            e(f"s_add_u32 s{S_XB}, s{S_XB}, 16384")
        arrive(g, "RB")
        e(f"s_cmp_ge_u32 s{S_R}, 13"); e(f"s_cselect_b32 s{S_T}, {OOB}, 0")
        e(f"v_lshl_add_u32 v1, v0, 2, s{S_T}"); e("v_mov_b32 v3, -1")
        g.vm(f"buffer_store_dword v3, v1, {sr(S_WS)}, s{S_PO} offen sc1", "sent")
        e("v_lshlrev_b32 v29, 2, v0")
        g.vm(f"buffer_load_dword v28, v29, {sr(S_DBG)}, 0 offen offset:{C_RDY} sc1", "rdyl")
        e(f"v_lshrrev_b32 v1, 1, v{V_H16}")
        for a in range(2):
            for q in range(4):
                g.vm(f"buffer_load_dwordx2 {vr(BT+8*a+2*q,2)}, v1, {sr(S_B1)}, s{S_SB} offen offset:{64*a+16*q}", "bias")
        if PAR.wpf2:
            e(f"s_lshl_b32 s{S_T+1}, s{S_J}, 6"); e(f"v_add_u32 v1, s{S_T+1}, v0"); e("v_mul_u32_u24 v1, 1664, v1"); e(f"v_add_u32 v1, s{S_T}, v1")
            for i in range(4):
                e(f"s_add_u32 s{S_T+1}, s{S_SB}, {i*256*1664}")
                g.vm(f"buffer_load_dword v{200+i}, v1, {sr(S_W1)}, s{S_T+1} offen", "wpf")
        g.stamp("s")
    e(f"s_cmp_ge_u32 s{S_R}, 13"); e("s_cbranch_scc1 L_pe1")
    g.lab("L_pe1r")
    xpub()
    e(f"s_cmp_ge_u32 s{S_R}, 13"); e("s_cbranch_scc1 L_pe2")
    if PAR.wearly:
        lwait(g, "RB", 8); dma_w(g, 0); dma_w(g, 1)
    g.vmwait("rdyl")
    g.lab("L_pe3r")
    g.tail += ["L_pe2r:", "    s_waitcnt vmcnt(8)", "    s_branch L_pe3r"]
    arrive(g, "XST")
    e(f"s_cmp_lg_u32 s{S_J}, 0"); e("s_cbranch_scc1 L_nosig")
    lwait(g, "XST")
    e(f"s_mov_b32 s{S_T}, {SPIN}")
    g.lab("L_rdy")
    e("v_cmp_ne_u32 vcc, 0, v28"); e(f"s_and_b32 s{S_T+1}, vcc_lo, 0xffff"); e(f"s_cmp_eq_u32 s{S_T+1}, 0xffff"); e("s_cbranch_scc0 L_rdys")
    g.lab("L_rdyd")
    g.tail += ["L_rdys:", "    s_sleep 8", f"    buffer_load_dword v28, v29, {sr(S_DBG)}, 0 offen offset:{C_RDY} sc1", "    s_waitcnt vmcnt(0)",
               f"    s_sub_u32 s{S_T}, s{S_T}, 1", "    s_cbranch_scc0 L_rdy", "    s_branch L_rdyd"]
    e("v_mov_b32 v1, 1")
    e(f"buffer_atomic_add v1, v{V_L0}, {sr(S_WS)}, s{S_CX} offen sc1")
    g.lab("L_nosig")
    g.stamp(); g.stamp("s")

def helper_dnn(g):
    e = g.e
    CH = PAR.chunks; NS = PAR.nslot
    def xb(f, tile, t): return HX + 16 * (f % NS) + 8 * tile + 4 * t
    def xload(f):
        rotf(g, f, S_T + 2); e(f"s_lshl_b32 s{S_T+2}, s{S_T+2}, 12"); e(f"s_add_u32 s{S_T+2}, s{S_T+2}, s{S_XB}")
        for tile in range(2):
            for t in range(2):
                g.vm(f"buffer_load_dwordx4 {vr(xb(f,tile,t),4)}, v2, {sr(S_WS)}, s{S_T+2} offen offset:{2048*tile+1024*t} {PAR.ld}", f"x{f}")
    if not PAR.wearly:
        lwait(g, "RB", 8); dma_w(g, 0); dma_w(g, 1)
    g.vmwait("bias")
    for a in range(2):
        for i in range(8):
            e(f"v_lshlrev_b32 v{HACC+16*a+2*i}, 16, v{BT+8*a+i}")
            e(f"v_and_b32 v{HACC+16*a+2*i+1}, 0xffff0000, v{BT+8*a+i}")
    for i in range(32): e(f"v_mov_b32 v{HACC+32+i}, v{HACC+i}")
    e(f"s_lshl_b32 s{S_XB}, s{S_G}, 2"); e(f"s_add_u32 s{S_XB}, s{S_XB}, s{S_J}"); e(f"s_mul_i32 s{S_XB}, s{S_XB}, 106496"); e(f"s_add_u32 s{S_XB}, s{S_XB}, {WS_X}")
    if PAR.l2pos < 0: poll1(g, [CHK_X(), (S_WS, f"s{S_CX}", C_L[2], 11)], "FX")
    else: poll1(g, [CHK_X()], "FX")
    g.stamp("s")
    g.stamp()
    e("v_bfe_u32 v2, v0, 2, 3"); e("v_lshlrev_b32 v2, 7, v2"); e(f"v_lshl_add_u32 v2, v{V_H16}, 2, v2"); e("v_and_b32 v3, 3, v0"); e("v_lshl_add_u32 v2, v3, 4, v2")
    if PAR.l2pos < 0: lwait(g, "AFREE"); dma_img(g, "L2", 44, BUFA)
    for f in range(NS):
        xload(f)
        if f == -PAR.l2pos: g.vmwait("L2"); arrive(g, "L2OK")
    FL = 232
    W2R = 232 + 0
    wring = [0]
    def loc(ks):
        f = ks // 2; c = max(i for i in range(4) if F0(i) <= f)
        return c, ks - 2 * F0(c)
    def wread(ks):
        c, kl = loc(ks)
        Dc = (D0, D1)[c & 1]
        base = HW_ + 8 * (wring[0] % 3); wring[0] += 1
        for a, ad in ((0, V_TR0), (1, V_TR1)):
            for rd in range(2):
                e(f"ds_read_b64_tr_b16 {vr(base+4*a+2*rd,2)}, v{ad} offset:{Dc - D0 + kl*2048 + rd*512}")
        return base
    CK2 = [(S_WS, f"s{S_CX}", C_L[2], 11)]; CKQ = [(S_WS, f"s{S_CX}", C_Q, 9)]; CK3 = [(S_WS, f"s{S_CX}", C_L[3], 11)]
    def act_l2():
        lwait(g, "AFREE"); g.vmwait("f2"); poll1(g, CK2, "F2", pre=[196]); dma_img(g, "L2", 44, BUFA)
    after = {}
    def add(f, fn): after.setdefault(f, []).append(fn)
    if PAR.l2pos >= 0:
        add(PAR.l2pos - 2, lambda: presample(g, CK2, [196], "f2"))
        add(PAR.l2pos, act_l2)
        add(PAR.l2pos + 4, lambda: (g.vmwait("L2"), arrive(g, "L2OK")))
    add(F0(1), lambda: (lwait(g, "C0"), dma_w(g, 2)))
    add(F0(3) - 3, lambda: presample(g, CKQ + CK3, [196, 197], "fq"))
    g.vmwait("W1"); arrive(g, "W01"); lwait(g, "W01")
    for c in range(4):
        k0 = 2 * F0(c); k1 = 2 * F0(c + 1)
        bufs = {k0: wread(k0), k0 + 1: wread(k0 + 1)}
        for ks in range(k0, k1):
            f, t = divmod(ks, 2)
            if t == 0: g.vmwait(f"x{f}")
            e(f"s_waitcnt lgkmcnt({4 if ks + 1 < k1 else 0})")
            for a in range(2):
                for tile in range(2):
                    acc = HACC + 32 * tile + 16 * a
                    if 2 * a + tile < PAR.nmf: e(f"v_mfma_f32_32x32x16_bf16 {vr(acc,16)}, {vr(bufs[ks]+4*a,4)}, {vr(xb(f,tile,t),4)}, {vr(acc,16)}")
                if a == 0 and ks + 2 < k1: bufs[ks + 2] = wread(ks + 2)
            if t == 1:
                if f + NS < 26: xload(f + NS)
                for fn in after.get(f, []): fn()
        if c == 0: arrive(g, "C0"); g.stamp()
        if c == 1:
            g.vmwait("W2"); arrive(g, "C1"); lwait(g, "C1"); dma_w(g, 3)
        if c == 2:
            g.vmwait("W3"); arrive(g, "C2"); lwait(g, "C2")
            if not PAR.qlate: g.vmwait("fq"); poll1(g, CKQ, "FQ", pre=[196]); dma_img(g, "Q4", 28, D0)
            e(f"v_lshrrev_b32 v1, 1, v{V_H16}")
            for a in range(2):
                for q in range(4):
                    g.vm(f"buffer_load_dwordx2 {vr(W2R+8*a+2*q,2)}, v1, {sr(S_W2)}, s{S_SB} offen offset:{64*a+16*q}", "w2")
    if PAR.qlate: g.vmwait("fq"); poll1(g, CKQ, "FQ", pre=[196]); dma_img(g, "Q4", 28, D0)
    e("s_waitcnt vmcnt(0)"); arrive(g, "QOK")
    g.stamp()
    W2F = HX
    for i in range(16):
        e(f"v_lshlrev_b32 v{W2F+2*i}, 16, v{W2R+i}")
        e(f"v_and_b32 v{W2F+2*i+1}, 0xffff0000, v{W2R+i}")
    c0 = 2 * 0.7978845608028654 * 1.4426950408889634
    e(f"s_mov_b32 s{S_C1}, {f2u(c0*0.044715):#x}")
    e(f"v_mov_b32 v2, {f2u(c0):#x}")
    T = HX + 32; SUM = HX + 48
    for i in range(4): e(f"v_mov_b32 v{SUM+i}, 0")
    def gelu(blk):
        rs = [HACC + 4 * blk + i for i in range(4)]
        tile = (4 * blk) // 32
        for i, r in enumerate(rs): e(f"v_mul_f32 v{T+i}, v{r}, v{r}")
        for i, r in enumerate(rs): e(f"v_fma_f32 v{T+i}, v{T+i}, s{S_C1}, v2")
        for i, r in enumerate(rs): e(f"v_mul_f32 v{T+i}, v{T+i}, v{r}")
        for i, r in enumerate(rs): e(f"v_exp_f32 v{T+i}, -v{T+i}")
        for i, r in enumerate(rs): e(f"v_mul_f32 v{r}, v{r}, v{W2F + (r - HACC) % 32}")
        for i, r in enumerate(rs): e(f"v_add_f32 v{T+i}, 1.0, v{T+i}")
        for i, r in enumerate(rs): e(f"v_rcp_f32 v{T+i}, v{T+i}")
        for i, r in enumerate(rs): e(f"v_fmac_f32 v{SUM + 2*tile + (i&1)}, v{r}, v{T+i}")
    for blk in range(16):
        if blk == PAR.gsplit:
            lwait(g, "BFREE"); poll1(g, CK3, "F3", pre=[197]); dma_img(g, "L3", 44, BUFB)
        if blk == PAR.gsplit2:
            e("s_waitcnt vmcnt(0)"); arrive(g, "L3OK")
        if blk == PAR.ghi: e("s_setprio 0")
        if blk < PAR.ngelu: gelu(blk)
    e("s_setprio 2")
    e(f"v_add_f32 v{SUM}, v{SUM}, v{SUM+1}"); e(f"v_add_f32 v{SUM+2}, v{SUM+2}, v{SUM+3}")
    e(f"v_permlane32_swap_b32 v{SUM}, v{SUM+2}")
    e(f"v_add_f32 v{SUM}, v{SUM}, v{SUM+2}")
    e(f"v_min_u32 v{SUM}, -2, v{SUM}")
    e("v_lshlrev_b32 v1, 2, v0")
    e(f"buffer_store_dword v{SUM}, v1, {sr(S_WS)}, s{S_PO} offen sc1")
    g.stamp()
    g.flush_stamps(4, 5)
    e("s_endpgm")

def gsignal(g, c, so):
    e = g.e; done = g.newlab("sg")
    if c: e("s_waitcnt vmcnt(0)"); arrive(g, c)
    e(f"s_cmp_lg_u32 s{S_J}, 0"); e(f"s_cbranch_scc1 {done}")
    if c: lwait(g, c)
    e(f"v_mul_u32_u24 v2, {PAR.cstr}, v0"); e("v_cmp_lt_u32 vcc, 15, v0"); e(f"v_mov_b32 v3, {OOB}"); e("v_cndmask_b32 v2, v2, v3, vcc")
    e("v_mov_b32 v1, 1")
    e(f"buffer_atomic_add v1, v2, {sr(S_WS)}, {so} offen sc1")
    g.lab(done)
SCN, FR, WV, WP, W1V, AQ, RW = 180, 216, 32, 33, 220, 44, 120
QAR = lambda i: (64 + i) if i < 4 else (240 + i)
S_E4, S_LW = 62, 63
def prod_early1(g):
    e = g.e
    g.lab("L_pe1")
    e(f"s_mul_i32 s{S_WP}, s{S_G}, 3"); e(f"s_add_u32 s{S_WP}, s{S_WP}, s{S_R}"); e(f"s_sub_u32 s{S_WP}, s{S_WP}, 13")
    e(f"s_cmp_ge_u32 s{S_WP}, 31"); e("s_cbranch_scc1 L_pe1r")
    e(f"s_mul_i32 s{S_L}, s{S_WP}, 94"); e(f"s_lshr_b32 s{S_L}, s{S_L}, 10")
    e(f"s_mul_i32 s{S_T}, s{S_L}, 11"); e(f"s_sub_u32 s{S_FR}, s{S_WP}, s{S_T}"); e(f"s_lshl_b32 s{S_FR}, s{S_FR}, 2"); e(f"s_add_u32 s{S_FR}, s{S_FR}, s{S_J}")
    e(f"s_add_u32 s{S_L}, s{S_L}, 2")
    e(f"s_mul_i32 s{S_E2}, s{S_L}, {LB}")
    e(f"s_add_u32 s{S_LC+2}, s{S_E2}, {LB}")
    e("v_lshlrev_b32 v1, 4, v0")
    e(f"s_mul_i32 s{S_T}, s{S_J}, 9216"); e(f"s_add_u32 s{S_T}, s{S_T}, s{S_E2}")
    for i in range(9):
        if i % 4 == 0 and i: e(f"s_add_u32 s{S_T}, s{S_T}, 4096")
        e(f"buffer_load_dwordx4 {vr(SCN+4*i,4)}, v1, {sr(S_LC)}, s{S_T} offen offset:{(i%4)*1024}")
    e(f"s_cmp_ge_u32 s{S_WP}, 22"); e("s_cbranch_scc1 L_pe1r")
    e(f"s_lshl_b32 s{S_T}, s{S_FR}, 4"); e(f"s_add_u32 s{S_T}, s{S_T}, s{S_E2}")
    e(f"buffer_load_dwordx4 {vr(FR,4)}, v27, {sr(S_LC)}, s{S_T} offen")
    e(f"v_lshlrev_b32 v1, 1, v{V_HROW}"); e(f"s_mul_i32 s{S_T}, s{S_L}, 52")
    e(f"buffer_load_ushort v{WV}, v1, {sr(S_WO)}, s{S_T} offen")
    e(f"buffer_load_ushort v{WP}, v1, {sr(S_WO)}, 52 offen")
    e("v_lshrrev_b32 v3, 5, v0"); e("v_mul_u32_u24 v3, 26, v3")
    for i in range(8):
        e(f"s_lshl_b32 s{S_T}, s{S_FR}, 3"); e(f"s_sub_u32 s{S_T}, s{S_T}, {8*42 + 2 - i}")
        e(f"s_lshl_b32 s{S_T+1}, s{S_T}, 1"); e(f"s_add_u32 s{S_T+1}, s{S_T+1}, 52")
        e(f"s_cmp_lt_u32 s{S_T}, 13"); e(f"s_cselect_b32 s{S_T+1}, s{S_T+1}, {OOB}")
        e(f"v_add_u32 v2, s{S_T+1}, v3")
        e(f"buffer_load_ushort v{W1V+i}, v2, {sr(S_WO)}, 0 offen")
    e("s_branch L_pe1r")
def prod_early2(g):
    e = g.e
    g.lab("L_pe2")
    e(f"s_cmp_ge_u32 s{S_WP}, 31"); e("s_cbranch_scc1 L_pe2r")
    e("s_waitcnt vmcnt(17)")
    for i in range(36): e(f"v_and_b32 v{SCN+i}, s{S_MASK}, v{SCN+i}")
    pkmax(g, [SCN + i for i in range(36)])
    put_max(g, M_SC)
    arrive(g, "SCM"); lwait(g, "SCM")
    get_max(g, M_SC)
    e(f"v_readfirstlane_b32 s{S_E0}, v1")
    e(f"s_bfe_u32 s{S_E0}, s{S_E0}, 0x80007")
    e(f"s_cmp_ge_u32 s{S_WP}, 22"); e("s_cbranch_scc1 L_pe2r")
    g.lab("L_gjob")
    e(f"s_min_u32 s{S_T+2}, s{S_E0}, 249"); e(f"s_sub_u32 s{S_T+3}, {127+124}, s{S_T+2}"); e(f"s_lshl_b32 s{S_T+3}, s{S_T+3}, 23")
    e(f"s_cmp_lt_u32 s{S_FR}, 42"); e(f"s_cselect_b32 s{S_T+1}, -1, 0")
    for i in range(1, 4): e(f"v_and_b32 v{FR+i}, s{S_T+1}, v{FR+i}")
    e(f"s_cmp_lt_u32 s{S_FR}, 43"); e(f"s_cselect_b32 s{S_T+1}, -1, 0"); e(f"v_and_b32 v{FR}, s{S_T+1}, v{FR}")
    for i in range(4): e(f"v_alignbit_b32 v{FR+i}, v{FR+i}, v{FR+i}, v{V_H16}")
    for i in range(4):
        e(f"v_lshlrev_b32 v{SCN+2*i}, 16, v{FR+i}"); e(f"v_and_b32 v{SCN+2*i+1}, 0xffff0000, v{FR+i}")
    for i in range(8): e(f"v_mul_f32 v{SCN+i}, s{S_T+3}, v{SCN+i}")
    for i in range(4): e(f"v_cvt_pk_f16_f32 v{FR+i}, v{SCN+2*i}, v{SCN+2*i+1}")
    e(f"v_lshlrev_b32 v{WV}, 16, v{WV}")
    e(f"v_and_b32 v1, 0x7fffffff, v{WV}")
    wavemax_exp(g, 1, S_E1)
    e(f"s_sub_u32 s{S_E1}, s{S_E1}, 13"); e(f"s_sub_u32 s{S_T}, 0, s{S_E1}")
    e(f"v_ldexp_f32 v{WV}, v{WV}, s{S_T}")
    for i in range(8): e(f"v_mul_f32 v{SCN+i}, v{SCN+i}, v{WV}")
    for sh in (1, 2, 4, 8):
        for i in range(8): e(f"v_add_f32_dpp v{SCN+i}, v{SCN+i}, v{SCN+i} row_shr:{sh} {DPPALL} bound_ctrl:0")
    for i in range(8): e(f"v_add_f32_dpp v{SCN+i}, v{SCN+i}, v{SCN+i} row_bcast:15 row_mask:0xa bank_mask:0xf")
    for i in range(4): e(f"v_cvt_pk_f16_f32 v{SCN+2*i}, v{SCN+2*i}, v{SCN+2*i+1}")
    e("v_and_b32 v2, 31, v0"); e("v_cmp_eq_u32 vcc, 31, v2")
    for i in range(4): e(f"v_cndmask_b32 v{FR+i}, v{FR+i}, v{SCN+2*i}, vcc")
    e(f"v_lshlrev_b32 v1, 16, v{WP}"); e("v_and_b32 v1, 0x7fffffff, v1")
    wavemax_exp(g, 1, S_E4)
    e(f"s_sub_u32 s{S_T}, 15, s{S_E4}")
    for i in range(8): e(f"v_lshlrev_b32 v{W1V+i}, 16, v{W1V+i}")
    for i in range(8): e(f"v_ldexp_f32 v{W1V+i}, v{W1V+i}, s{S_T}")
    for i in range(4): e(f"v_cvt_pk_f16_f32 v{W1V+2*i}, v{W1V+2*i}, v{W1V+2*i+1}")
    e("v_cmp_eq_u32 vcc, 30, v2")
    for i in range(4): e(f"v_cndmask_b32 v{FR+i}, v{FR+i}, v{W1V+2*i}, vcc")
    e(f"s_cmp_lg_u32 s{S_FR}, 0"); e("s_cbranch_scc1 L_nohdr")
    e(f"s_sub_u32 s{S_T+2}, s{S_T+2}, 124"); e(f"s_add_u32 s{S_E1}, s{S_E1}, s{S_T+2}"); e(f"s_sub_u32 s{S_E4}, s{S_E4}, 15")
    e(f"v_writelane_b32 v{FR}, s{S_T+2}, 29"); e(f"v_writelane_b32 v{FR+1}, s{S_E1}, 29"); e(f"v_writelane_b32 v{FR+2}, s{S_E4}, 29")
    g.lab("L_nohdr")
    e(f"s_mul_i32 s{S_T}, s{S_L}, {44*1024}"); e(f"s_lshl_b32 s{S_T+1}, s{S_FR}, 10"); e(f"s_add_u32 s{S_T}, s{S_T}, s{S_T+1}")
    e(f"s_sub_u32 s{S_T}, s{S_T}, {88*1024 - IMG['L2']}")
    e("v_lshlrev_b32 v1, 4, v0")
    e(f"buffer_store_dwordx4 {vr(FR,4)}, v1, {sr(S_WS)}, s{S_T} offen sc1")
    e("s_nop 1")
    e("s_branch L_pe2r")
def helper_prod(g):
    e = g.e
    e(f"s_cmp_ge_u32 s{S_WP}, 31"); e("s_cbranch_scc1 L_idle")
    e(f"s_cmp_ge_u32 s{S_WP}, 22"); e("s_cbranch_scc1 L_nog")
    e(f"s_lshl_b32 s{S_T+2}, s{S_L}, 2"); e(f"s_add_u32 s{S_T+2}, s{S_T+2}, {WS_CNT - 4}")
    if PAR.l3late:
        e(f"s_cmp_eq_u32 s{S_L}, 3"); e("s_cbranch_scc1 L_idle")
    gsignal(g, "GST", f"s{S_T+2}")
    e("s_branch L_idle")
    g.lab("L_nog")
    lwait(g, "RB", 8)
    e("v_and_b32 v2, 31, v0"); e("v_lshrrev_b32 v3, 5, v0")
    e("v_mul_u32_u24 v1, 676, v3"); e("v_add_lshl_u32 v1, v1, v2, 1")
    e(f"s_mul_i32 s{S_T}, s{S_FR}, 52"); e(f"s_add_u32 s{S_T}, s{S_T}, {4*LB}")
    for s in range(13):
        e(f"buffer_load_ushort v{W1V+s}, v1, {sr(S_LC)}, s{S_T} offen")
        e(f"s_add_u32 s{S_T}, s{S_T}, 2704")
    e(f"s_cmp_eq_u32 s{S_WP}, 29"); e(f"s_cselect_b32 s{S_LW}, 4, 5"); e(f"s_cmp_eq_u32 s{S_WP}, 30"); e(f"s_cselect_b32 s{S_LW}, 0, s{S_LW}")
    e(f"s_mul_i32 s{S_E2}, s{S_LW}, {LB}"); e(f"s_add_u32 s{S_LC+2}, s{S_E2}, {LB}")
    e("v_lshlrev_b32 v1, 1, v0"); e("v_cmp_lt_u32 vcc, 25, v0"); e(f"v_mov_b32 v2, {OOB}"); e("v_cndmask_b32 v1, v1, v2, vcc")
    e(f"s_mul_i32 s{S_T}, s{S_LW}, 52")
    e(f"buffer_load_ushort v{WV}, v1, {sr(S_WO)}, s{S_T} offen")
    e("v_lshlrev_b32 v1, 4, v0")
    e(f"s_mul_i32 s{S_T}, s{S_J}, 1352"); e(f"s_add_u32 s{S_T}, s{S_T}, s{S_E2}")
    for t in range(7):
        for ps in range(2):
            e(f"buffer_load_dwordx4 {vr(RW+8*t+4*ps,4)}, v1, {sr(S_LC)}, s{S_T} offen offset:{1024*ps}")
        e(f"s_add_u32 s{S_T}, s{S_T}, {4*1352}")
    e("s_waitcnt vmcnt(0)")
    AC = HX; TU = HX + 16
    for t in range(6): e(f"v_lshl_or_b32 v{QAR(t)}, v{W1V+2*t+1}, 16, v{W1V+2*t}")
    e(f"v_mov_b32 v{QAR(6)}, v{W1V+12}"); e(f"v_mov_b32 v{QAR(7)}, 0")
    g.stamp("q")
    e(f"v_lshlrev_b32 v{WV}, 16, v{WV}"); e(f"v_and_b32 v1, 0x7fffffff, v{WV}")
    wavemax_exp(g, 1, S_E1)
    e(f"s_sub_u32 s{S_T}, 0, s{S_E1}"); e(f"v_ldexp_f32 v{WV}, v{WV}, s{S_T}")
    for i in range(16): e(f"v_mov_b32 v{AC+i}, 0")
    for t in range(7):
        e(f"s_add_u32 s{S_T}, s{S_J}, {4*t}")
        e(f"v_readlane_b32 s{S_T+1}, v{WV}, s{S_T}")
        for i in range(8):
            e(f"v_lshlrev_b32 v{TU+2*i}, 16, v{RW+8*t+i}"); e(f"v_and_b32 v{TU+2*i+1}, 0xffff0000, v{RW+8*t+i}")
        for i in range(16): e(f"v_fmac_f32 v{AC+i}, s{S_T+1}, v{TU+i}")
    PSTR = 4096
    e(f"s_mul_i32 s{S_T}, s{S_J}, {PSTR}"); e(f"s_add_u32 s{S_T}, s{S_T}, {D0}")
    e(f"v_lshl_add_u32 v1, v0, 5, s{S_T}")
    for ps in range(2):
        for hf in range(2): e(f"ds_write_b128 v1, {vr(AC+8*ps+4*hf,4)} offset:{2048*ps+16*hf}")
    g.stamp("q"); arrive(g, "WC"); lwait(g, "WC"); g.stamp("q")
    e(f"s_cmp_eq_u32 s{S_FR}, 28"); e("s_cbranch_scc1 L_lin")
    e(f"s_cmp_lt_u32 s{S_FR}, 26"); e("s_cbranch_scc1 L_q")
    e(f"s_cmp_lg_u32 s{S_FR}, 32"); e("s_cbranch_scc1 L_noq")
    g.lab("L_q")
    BQ, PT, DQ = HX + 16, HX + 32, HX + 96
    e("v_and_b32 v2, 31, v0"); e("v_lshrrev_b32 v3, 5, v0")
    e("v_mad_u32_u24 v1, v3, 26, v2"); e("v_lshlrev_b32 v1, 2, v1"); e(f"v_add_u32 v1, {D0}, v1")
    def readsum(stride):
        for pj in range(4):
            for s in range(13): e(f"ds_read_b32 v{PT+13*pj+s}, v1 offset:{PSTR*pj + stride*s}")
            if pj: e("s_waitcnt lgkmcnt(13)")
        e("s_waitcnt lgkmcnt(0)")
        for s in range(13):
            e(f"v_add_f32 v{PT+s}, v{PT+s}, v{PT+13+s}"); e(f"v_add_f32 v{PT+26+s}, v{PT+26+s}, v{PT+39+s}")
        for s in range(13): e(f"v_add_f32 v{BQ+s}, v{PT+s}, v{PT+26+s}")
    def max13():
        e(f"v_max3_f32 v1, |v{BQ}|, |v{BQ+1}|, |v{BQ+2}|")
        for s in range(3, 13, 2): e(f"v_max3_f32 v1, v1, |v{BQ+s}|, |v{BQ+s+1}|")
    readsum(208)
    e("v_cmp_gt_u32 vcc, 26, v2")
    for s in range(13): e(f"v_cndmask_b32 v{BQ+s}, 0, v{BQ+s}, vcc")
    max13()
    wavemax_exp(g, 1, S_E2)
    e(f"s_sub_u32 s{S_T}, 0, s{S_E2}")
    for s in range(13): e(f"v_ldexp_f32 v{BQ+s}, v{BQ+s}, s{S_T}")
    e(f"s_max_u32 s{S_E0}, s{S_E0}, 10"); e(f"s_sub_u32 s{S_E0}, s{S_E0}, 126")
    BH, BL = PT, PT + 8
    e(f"v_mov_b32 v{BQ+13}, 0"); e(f"v_mov_b32 v{BH+7}, 0"); e(f"v_mov_b32 v{BL+7}, 0")
    for t in range(7): e(f"v_cvt_pk_bf16_f32 v{BH+t}, v{BQ+2*t}, v{BQ+2*t+1}")
    for t in range(7):
        e(f"v_lshlrev_b32 v{PT+16+2*t}, 16, v{BH+t}"); e(f"v_and_b32 v{PT+17+2*t}, 0xffff0000, v{BH+t}")
    for t in range(14): e(f"v_sub_f32 v{BQ+t}, v{BQ+t}, v{PT+16+t}")
    for t in range(7): e(f"v_cvt_pk_bf16_f32 v{BL+t}, v{BQ+2*t}, v{BQ+2*t+1}")
    e(f"s_cmp_ge_u32 s{S_FR}, 13"); e(f"s_cselect_b32 s{S_T+1}, 13, 0"); e(f"s_cselect_b32 s{S_T+2}, 4, 0")
    e(f"s_sub_u32 s{S_T+1}, s{S_FR}, s{S_T+1}"); e(f"s_and_b32 s{S_T+3}, s{S_T+1}, 3"); e(f"s_add_u32 s{S_T+2}, s{S_T+2}, s{S_T+3}")
    e(f"s_lshr_b32 s{S_T+1}, s{S_T+1}, 2"); e(f"s_lshl_b32 s{S_T+1}, s{S_T+1}, 3"); e(f"s_add_u32 s{S_SB}, s{S_T+2}, s{S_T+1}")
    e(f"s_mov_b32 s{S_L}, 0")
    e(f"s_cmp_lg_u32 s{S_FR}, 32"); e("s_cbranch_scc1 L_q2")
    e("v_sub_u32 v1, v2, v3")
    for s in range(13):
        e(f"v_cmp_eq_u32 vcc, {2*s}, v1"); e(f"v_cndmask_b32 v{AQ+s}, 0, 1.0, vcc")
    e(f"v_mov_b32 v{AQ+13}, 0")
    for t in range(7): e(f"v_cvt_pk_bf16_f32 v{QAR(t)}, v{AQ+2*t}, v{AQ+2*t+1}")
    e(f"s_mov_b32 s{S_E0}, 0"); e(f"s_mov_b32 s{S_SB}, 31"); e(f"s_mov_b32 s{S_L}, 8")
    g.lab("L_q2")
    g.stamp("q")
    e("s_nop 1")
    first = True
    for bb in (BL, BH):
        for ks in range(2):
            e(f"v_mfma_f32_32x32x16_bf16 {vr(DQ,16)}, {vr(QAR(4*ks),4)}, {vr(bb+4*ks,4)}, {'0' if first else vr(DQ,16)}"); first = False
            e(f"v_mfma_f32_32x32x16_bf16 {vr(DQ,16)}, {vr(bb+4*ks,4)}, {vr(QAR(4*ks),4)}, {vr(DQ,16)}")
    e(f"v_max_f32 v1, v{QS}, v{QS+1}")
    e(f"s_sub_u32 s{S_T}, 137, s{S_E0}"); e(f"s_lshl_b32 s{S_T}, s{S_T}, 23"); e(f"v_mov_b32 v30, s{S_T}"); e("v_mul_f32 v31, 0.5, v30")
    for t in range(7):
        e(f"v_cmp_eq_f32 vcc, v1, v{QS+t}"); e(f"v_cndmask_b32 v{QS+t}, v31, v30, vcc")
    e(f"s_cmp_eq_u32 s{S_J}, 1"); e(f"s_cselect_b32 s{S_T}, 48, 0"); e(f"s_sub_u32 s{S_T}, {D1 - BUFA}, s{S_T}")
    for t in range(7): e(f"v_add_u32 v{QA+t}, s{S_T}, v{QA+t}")
    e(f"v_mul_u32_u24 v1, {S0STR}, v2"); e("v_lshl_add_u32 v1, v3, 9, v1"); e(f"s_lshl_b32 s{S_T}, s{S_J}, 4"); e(f"s_add_u32 s{S_T}, s{S_T}, {D1}")
    e(f"v_min_u32 v1, {22*S0STR+512}, v1")
    e(f"v_add_u32 v1, s{S_T}, v1")
    e(f"v_lshl_add_u32 v28, v3, 9, s{S_T}"); e("v_mov_b32 v29, 0")
    e(f"ds_write_b32 v28, v29 offset:{22*S0STR+12}")
    pack_round(g, DQ, 0)
    g.stamp("q")
    e("s_waitcnt lgkmcnt(0)")
    e(f"ds_read_b128 {vr(AQ,4)}, v1")
    e("v_lshlrev_b32 v1, 10, v2"); e("v_lshl_add_u32 v1, v3, 9, v1"); e("v_cmp_lt_u32 vcc, 22, v2"); e(f"v_mov_b32 v28, {OOB}"); e("v_cndmask_b32 v1, v1, v28, vcc")
    e(f"s_lshl_b32 s{S_T}, s{S_SB}, 4"); e(f"s_add_u32 s{S_T}, s{S_T}, {IMG['Q4']}")
    e("s_waitcnt lgkmcnt(0)")
    e(f"buffer_store_dwordx4 {vr(AQ,4)}, v1, {sr(S_WS)}, s{S_T} offen sc1")
    e(f"s_add_u32 s{S_E0}, s{S_E0}, s{S_E2}"); e(f"s_add_u32 s{S_E0}, s{S_E0}, s{S_E1}"); e(f"s_sub_u32 s{S_E0}, s{S_E0}, 10")
    e(f"s_and_b32 s{S_T}, s{S_FR}, 31"); e(f"s_cmp_lg_u32 s{S_T}, 0"); e("s_cbranch_scc1 L_noq")
    g.lab("L_qh")
    e(f"v_mov_b32 v1, s{S_E0}"); e(f"s_add_u32 s{S_T}, s{S_L}, {IMG['Q4'] + 23*1024}")
    e(f"buffer_store_dword v1, v{V_L0}, {sr(S_WS)}, s{S_T} offen sc1")
    e("s_branch L_noq")
    g.lab("L_lin")
    e("v_lshrrev_b32 v3, 5, v0"); e(f"v_min_u32 v2, 25, v{V_HROW}")
    e("v_mad_u32_u24 v1, v2, 26, v3"); e("v_lshlrev_b32 v1, 2, v1"); e(f"v_add_u32 v1, {D0}, v1")
    readsum(8)
    e(f"v_cmp_gt_u32 vcc, 26, v{V_HROW}")
    for s in range(13): e(f"v_cndmask_b32 v{BQ+s}, 0, v{BQ+s}, vcc")
    max13()
    wavemax_exp(g, 1, S_E2)
    e(f"s_sub_u32 s{S_T}, 15, s{S_E2}")
    for s in range(13): e(f"v_ldexp_f32 v{BQ+s}, v{BQ+s}, s{S_T}")
    e(f"v_mov_b32 v{BQ+13}, 0"); e(f"v_mov_b32 v{AQ+7}, 0")
    for t in range(7): e(f"v_cvt_pk_f16_f32 v{AQ+t}, v{BQ+2*t}, v{BQ+2*t+1}")
    e("v_lshlrev_b32 v1, 4, v0"); e(f"s_mov_b32 s{S_T}, {IMG['Q4'] + 24*1024}")
    for s in range(2): e(f"buffer_store_dwordx4 {vr(AQ+4*s,4)}, v1, {sr(S_WS)}, s{S_T} offen offset:{1024*s} sc1")
    e(f"s_add_u32 s{S_E0}, s{S_E2}, s{S_E1}"); e(f"s_sub_u32 s{S_E0}, s{S_E0}, 15"); e(f"s_mov_b32 s{S_L}, 4")
    e("s_branch L_qh")
    g.lab("L_noq")
    g.stamp("q")
    e(f"s_mov_b32 s{S_T+2}, {WS_CNT + C_Q}")
    gsignal(g, "QST", f"s{S_T+2}")
    g.stamp("q")
    lwait(g, "QST")
    g.lab("L_idle")
    g.stamp()
    lwait(g, "AFREE")
    poll1(g, [(S_WS, f"s{S_CX}", C_L[2], 11), CHK_X()], "F2")
    dma_img(g, "L2", 44, BUFA)
    e("s_waitcnt vmcnt(0)"); arrive(g, "L2OK")
    g.stamp()
    lwait(g, "L2OK")
    if PAR.l3late:
        e(f"s_sub_u32 s{S_T}, s{S_WP}, 11"); e(f"s_cmp_ge_u32 s{S_T}, 11"); e("s_cbranch_scc1 L_nol3")
        e(f"s_mov_b32 s{S_T+2}, {WS_CNT + C_L[3]}")
        gsignal(g, None, f"s{S_T+2}")
        g.lab("L_nol3")
    poll1(g, [(S_WS, f"s{S_CX}", C_Q, 9)], "FQ")
    dma_img(g, "Q4", 28, D0)
    e("s_waitcnt vmcnt(0)"); arrive(g, "QOK")
    g.stamp()
    lwait(g, "BFREE")
    poll1(g, [(S_WS, f"s{S_CX}", C_L[3], 11)], "F3")
    dma_img(g, "L3", 44, BUFB)
    e("s_waitcnt vmcnt(0)"); arrive(g, "L3OK")
    g.stamp()
    g.flush_stamps(4, 5)
    e("s_endpgm")

def build(stamps=False):
    g = G(stamps)
    prologue(g); n0 = g.nst
    cin(g)
    g.lab("L_helper"); g.nst = n0
    helper_common(g); n1 = g.nst
    g.e(f"s_cmp_ge_u32 s{S_R}, 13"); g.e("s_cbranch_scc1 L_helper_n")
    helper_dnn(g)
    g.lab("L_helper_n"); g.nst = n1
    helper_prod(g)
    prod_early1(g); prod_early2(g)
    g.L += g.tail
    g.lab("L_end"); g.e("s_endpgm")
    body, nops = fix_hazards(g.L)
    ref = open("standalone__deep_cross_xdeepfm__recsys.s.ref").read().split("\n")
    hdr = [l for l in ref if l.startswith(";") and "@launch" not in l and "Override" not in l and "grid=ceil" not in l]
    txt = "\n".join(hdr) + f"\n; @launch grid=(256,1,1) block=(512,1,1) lds={LDS_TOTAL}\n"
    txt += f'.amdgcn_target "amdgcn-amd-amdhsa--gfx950"\n.text\n.globl {KN}\n.p2align 8\n.type {KN},@function\n{KN}:\n'
    txt += "\n".join(body) + "\n"
    txt += f""".section .rodata,"a"
.p2align 6
.amdhsa_kernel {KN}
  .amdhsa_next_free_vgpr 256
  .amdhsa_next_free_sgpr 102
  .amdhsa_accum_offset 256
  .amdhsa_group_segment_fixed_size 0
  .amdhsa_kernarg_size 88
  .amdhsa_user_sgpr_count 2
  .amdhsa_user_sgpr_kernarg_segment_ptr 1
  .amdhsa_system_sgpr_workgroup_id_x 1
.end_amdhsa_kernel
"""
    return txt, nops
if __name__ == "__main__":
    for a in sys.argv[2:]:
        if "=" in a:
            k, v = a.split("="); setattr(PAR, k, eval(v))
    txt, nops = build(stamps="stamps" in sys.argv)
    open(sys.argv[1], "w").write(txt)
    print("nops inserted", nops, "lines", txt.count("\n"))
```

```python
import sys, struct
from asmlib import fix_hazards
KN = "standalone__deep_cross_xdeepfm__recsys_kernel"
def f2u(f): return struct.unpack('<I', struct.pack('<f', f))[0]
OOB = 0x40000000
SPIN = 200000
LB = 35152
IMG = {}
off = 0
for name, n in (("L2", 44), ("L3", 44), ("Q4", 28)):
    IMG[name] = off; off += n * 1024
WS_PART = off
WS_CNT = WS_PART + 16 * 13 * 1024
WS_STAMP = WS_CNT + 16 * 8192
WS_X = WS_STAMP + 256 * 8 * 64
C_L = {2: 4, 3: 8}; C_Q = 12; C_RDY = 0
BUFA, BUFB = 0, 45056
D0, D1 = 90112, 118784
MISC = 147456
LDS_TOTAL = MISC + 2560
M_S0, M_L1, M_SC, M_EW1, M_CNT = MISC, MISC + 64, MISC + 128, MISC + 192, MISC + 256
CNT = {n: M_CNT + 4 * i for i, n in enumerate(["XST", "L1M", "L1OK", "AFREE", "L2OK", "BFREE", "L3OK", "QOK", "W01", "C0", "C1", "C2", "SCM", "GST", "WC", "QST", "FX", "F2", "F3", "FQ", "S0OK", "S0M", "RAW", "RB"])}
CNT["AFREE"] = M_CNT + 4 * 28; CNT["BFREE"] = M_CNT + 4 * 29; CNT["RB"] = M_CNT + 4 * 30
S0STR = 1040
XSTR = 1680
QPAIRS = [(p, q) for p in range(13) for q in range(p, 13)]
S_IDX, S_TAB, S_WS, S_W1, S_B1, S_W2, S_OUT, S_DBG, S_BO, S_WC, S_WO = 4, 8, 12, 16, 20, 24, 28, 32, 36, 40, 44
S_G, S_R, S_WAVE, S_J = 70, 71, 83, 3
S_HDR = 48
S_EX = 60
S_K = 64
S_K1 = 4
S_KC = 76
S_T = 72
S_MASK = 80
S_C1 = 81
S_SB = 82
S_ST = 84
class P: pass
PAR = P()
PAR.chunks = [7, 7, 6, 6]
PAR.gsplit = 0
PAR.gsplit2 = 7
PAR.lnpos = 28
PAR.pload = 37
PAR.xst = 2
PAR.l2pos = -1
PAR.nslot = 8
PAR.st = 'ad'
PAR.ld = 'sc1'
PAR.inv = 0
PAR.qaearly = 0
PAR.gmod = 'nt'
PAR.imod = 'nt'
PAR.pkpack = 0
PAR.w0lin = 0
PAR.l3rate = 22
PAR.qarr = 3
PAR.gearly = 11
PAR.ngelu = 16
PAR.nmf = 4
PAR.npk = 4
PAR.lslp = 4
PAR.zpad = 1
PAR.skew = 1
PAR.cstr = 4352
PAR.l3late = 1
PAR.xp = 3
PAR.wearly = 2
PAR.wpf2 = 0
PAR.ghi = 5
PAR.qchk = 6
PAR.cp = 1
PAR.enc = None
PAR.rate = 20
PAR.qrate = 32
PAR.clk = 0
PAR.hp = 0
PAR.nost = 0
PAR.wpf = 1
PAR.rot = 2
PAR.pf = 4
PAR.qlate = 0
PAR.slp = 8
PAR.de = 2
PAR.touch = 0
PAR.dbg = None
class G:
    def __init__(self, stamps=False):
        self.L = []; self.stamps = stamps; self.nst = 0; self.nl = 0; self.vmq = []; self.tail = []
    def e(self, s): self.L.append("    " + s)
    def lab(self, s): self.L.append(s + ":")
    def vm(self, s, tag): self.e(s); self.vmq.append(tag)
    def vmwait(self, *tags):
        idx = max(i for i, t in enumerate(self.vmq) if t in tags)
        n = len(self.vmq) - 1 - idx
        self.e(f"s_waitcnt vmcnt({min(n, 63)})")
    def newlab(self, s): self.nl += 1; return f"L_{s}_{self.nl}"
    def stamp(self, name=None):
        if self.stamps and (name or "d") in PAR.st:
            assert self.nst < 8
            self.e(f"{'s_memtime' if PAR.clk else 's_memrealtime'} s[{S_ST+2*self.nst}:{S_ST+2*self.nst+1}]"); self.nst += 1
    def flush_stamps(self, vt, va):
        if not self.stamps: return
        self.e("s_waitcnt lgkmcnt(0)")
        self.e(f"s_lshl_b32 s{S_T}, s2, 3"); self.e(f"s_add_u32 s{S_T}, s{S_T}, s{S_WAVE}"); self.e(f"s_lshl_b32 s{S_T}, s{S_T}, 6")
        self.e(f"s_add_u32 s{S_T}, s{S_T}, {WS_STAMP}")
        self.e(f"v_mov_b32 v{va}, 0")
        if PAR.dbg is not None:
            lb = self.newlab("nd")
            self.e(f"s_cmp_lg_u32 s{S_T}, {WS_STAMP + PAR.dbg*64}"); self.e(f"s_cbranch_scc1 {lb}")
            for i in range(self.nst):
                self.e(f"s_sub_u32 s{S_T+1}, s{S_ST+2*i}, s{S_ST}")
                self.e(f"v_mov_b32 v{vt}, s{S_T+1}")
                self.e(f"buffer_store_dword v{vt}, v{va}, s[{S_DBG}:{S_DBG+3}], 0 offen offset:{64+4*i}")
            self.lab(lb)
        for i in range(self.nst):
            self.e(f"v_mov_b32 v{vt}, s{S_ST+2*i}")
            self.e(f"buffer_store_dword v{vt}, v{va}, s[{S_WS}:{S_WS+3}], s{S_T} offen offset:{4*i}")
        self.nst = 0
def vr(a, n): return f"v[{a}:{a+n-1}]"
def sr(a, n=4): return f"s[{a}:{a+n-1}]"
DPPALL = "row_mask:0xf bank_mask:0xf"

def prologue(g):
    e = g.e
    e("s_cmp_ge_u32 s2, 256")
    e("s_cbranch_scc1 L_end")
    g.stamp("a")
    e("s_load_dwordx16 s[48:63], s[0:1], 0")
    e("s_load_dwordx4 s[64:67], s[0:1], 64")
    e("s_load_dwordx2 s[68:69], s[0:1], 80")
    if PAR.pf:
        e(f"s_getpc_b64 s[{S_KC}:{S_KC+1}]")
        g.lab("L_pfbase")
        e(f"s_mov_b32 s{S_KC+2}, L_end - L_pfbase"); e(f"s_mov_b32 s{S_KC+3}, 0x00020000")
        e(f"s_lshr_b32 s{S_T}, s2, 3"); e(f"s_lshl_b32 s{S_T}, s{S_T}, 7")
        e("v_xor_b32 v1, 0x1c0, v0"); e("v_lshlrev_b32 v1, 12, v1")
        e(f"buffer_load_dword v255, v1, {sr(S_KC)}, s{S_T} offen")
    e("v_lshrrev_b32 v1, 6, v0")
    e("v_and_b32 v0, 63, v0")
    e(f"v_readfirstlane_b32 s{S_WAVE}, v1")
    e(f"s_and_b32 s{S_T}, s2, 7")
    e(f"s_lshr_b32 s{S_T+1}, s2, 3")
    e(f"s_lshr_b32 s{S_G}, s{S_T+1}, 4")
    e(f"s_lshl_b32 s{S_T}, s{S_T}, 1")
    e(f"s_add_u32 s{S_G}, s{S_G}, s{S_T}")
    e(f"s_and_b32 s{S_R}, s{S_T+1}, 15")
    e(f"s_mov_b32 s{S_MASK}, 0x7fff7fff")
    e("v_and_b32 v25, 31, v0"); e("v_lshlrev_b32 v25, 2, v25"); e(f"v_add_u32 v25, {M_CNT}, v25"); e("v_mov_b32 v2, 0")
    e("ds_write_b32 v25, v2")
    e(f"s_cmp_ge_u32 s{S_WAVE}, 4")
    e("s_cbranch_scc1 L_helper")

SRDS = {S_IDX: (48, 4096*104), S_TAB: (50, 6400000), S_WC: (52, LB), S_WO: (54, 312), S_W1: (56, 832*1664), S_B1: (58, 1664), S_W2: (60, 1664),
        S_BO: (62, 2), S_OUT: (64, 8192), S_DBG: (66, 256), S_WS: (68, 1 << 28)}
def srd_const(g, lst):
    for srd in lst: g.e(f"s_mov_b32 s{srd+2}, {SRDS[srd][1]}"); g.e(f"s_mov_b32 s{srd+3}, 0x00020000")
def srd_base(g, lst):
    for srd in lst: g.e(f"s_mov_b64 s[{srd}:{srd+1}], s[{SRDS[srd][0]}:{SRDS[srd][0]+1}]")
ACC, ACC2, XR, UR, BR, AR, SC, LG, TM = 4, 68, 132, 188, 216, 232, 244, 248, 252
def X(k, p): return XR + 14 * k + p
def EV(k): return XR + 14 * k + 13
def U(k, t): return UR + 7 * k + t
def cin(g):
    e = g.e
    e("s_setprio 1")
    e(f"s_lshl_b32 s{S_T}, s{S_G}, 8"); e(f"s_lshl_b32 s{S_T+1}, s{S_R}, 4"); e(f"s_add_u32 s{S_T}, s{S_T}, s{S_T+1}")
    e(f"s_lshl_b32 s{S_T+1}, s{S_WAVE}, 2"); e(f"s_add_u32 s{S_SB}, s{S_T}, s{S_T+1}")
    e("v_lshrrev_b32 v1, 4, v0")
    e("v_bfe_u32 v2, v0, 2, 2")
    e("v_and_b32 v3, 3, v0")
    e("v_mul_u32_u24 v4, 104, v1")
    e("v_mad_u32_u24 v4, v2, 28, v4")
    I = 8
    CS = [S_IDX, S_WC, S_TAB, S_WS, S_BO, S_OUT] + ([S_DBG] if PAR.dbg is not None else [])
    srd_const(g, CS)
    e(f"s_mov_b32 s{S_WC+2}, {2*LB}"); e(f"s_mov_b32 s{S_J}, s{S_WAVE}")
    e("v_lshlrev_b32 v5, 4, v3")
    e("v_cmp_eq_u32 vcc, 3, v2")
    e(f"v_mov_b32 v6, {OOB}")
    e("v_cndmask_b32 v6, 0, v6, vcc")
    e("v_add_u32 v6, v6, v5")
    e("v_lshlrev_b32 v26, 4, v0"); e("v_cmp_lt_u32 vcc, 42, v0"); e(f"v_mov_b32 v27, {OOB}"); e("v_cndmask_b32 v26, v26, v27, vcc")
    e("v_lshlrev_b32 v29, 4, v0"); e(f"v_add_u32 v29, {BUFA + 28*1024}, v29")
    e(f"s_lshl_b32 s{S_T}, s{S_J}, 4"); e(f"s_add_u32 s{S_T}, s{S_T}, {BUFB}")
    e(f"v_mul_u32_u24 v28, {S0STR}, v0"); e(f"v_add_u32 v28, s{S_T}, v28"); e("v_cndmask_b32 v28, v28, v29, vcc")
    e(f"s_mul_i32 s{S_T+1}, s{S_WAVE}, {4*XSTR}"); e(f"s_add_u32 s{S_T+1}, s{S_T+1}, {D0}")
    e(f"v_mul_u32_u24 v7, {XSTR}, v1")
    e("v_mad_u32_u24 v16, v2, 7, 0")
    e("v_lshl_add_u32 v7, v16, 6, v7")
    e(f"v_add3_u32 v7, v7, v5, s{S_T+1}")
    e("v_cmp_eq_u32 vcc, 3, v2")
    e(f"v_lshl_add_u32 v18, v0, 4, 0"); e(f"v_add_u32 v18, {D0 + 16*XSTR + 256 - 320}, v18"); e("v_cndmask_b32 v18, v7, v18, vcc")
    e("v_lshrrev_b32 v16, 1, v1")
    e("v_xor_b32 v16, v16, v2")
    e("v_lshlrev_b32 v16, 6, v16")
    e("v_and_b32 v17, 1, v1")
    e("v_lshl_add_u32 v16, v17, 5, v16")
    e("v_lshl_add_u32 v16, v3, 3, v16")
    e(f"v_add_u32 v16, s{S_T+1}, v16")
    for k in range(4): e(f"v_mov_b32 v{LG+k}, 0")
    PA, PS, DR = 32, 40, 184
    if PAR.zpad:
        for i in range(4): e(f"v_mov_b32 v{PS+i}, 0")
        e(f"s_and_b32 s{S_T}, s{S_J}, 1"); e(f"s_mul_i32 s{S_T}, s{S_T}, 48"); e(f"s_lshr_b32 s{S_T+1}, s{S_J}, 1"); e(f"s_mul_i32 s{S_T+1}, s{S_T+1}, 480")
        e(f"s_add_u32 s{S_T}, s{S_T}, s{S_T+1}"); e(f"v_add_u32 v30, s{S_T}, v28")
        e(f"v_subrev_u32 v31, {BUFB - BUFA}, v30"); e("v_cmp_lt_u32 vcc, 22, v0"); e("v_cndmask_b32 v31, v31, v29, vcc")
        for i in range(3):
            e(f"ds_write_b128 v30, {vr(PS,4)} offset:{25*16 + 16*i}"); e(f"ds_write_b128 v31, {vr(PS,4)} offset:{25*16 + 16*i}")
    unpack_mat(g, PA, 20)
    e(f"s_mul_i32 s{S_T}, s{S_SB}, 104")
    e("s_waitcnt lgkmcnt(0)")
    srd_base(g, CS[:1])
    e(f"buffer_load_dwordx4 {vr(I,4)}, v4, {sr(S_IDX)}, s{S_T} offen {PAR.imod}")
    e(f"buffer_load_dwordx3 {vr(I+4,3)}, v4, {sr(S_IDX)}, s{S_T} offen offset:16 {PAR.imod}")
    srd_base(g, CS[1:])
    e("s_barrier")
    L1R = 132
    e(f"s_mul_i32 s{S_T}, s{S_J}, 1352")
    for i in range(13):
        if i < 12:
            t = i >> 1
            if i & 1 == 0: e(f"s_add_u32 s{S_T+1}, s{S_T}, {LB + (13*(t&1) + 4*(t>>1))*1352}")
            e(f"buffer_load_dwordx4 {vr(L1R+4*i,4)}, v26, {sr(S_WC)}, s{S_T+1} offen offset:{676*(i&1)}")
        else:
            e(f"s_lshr_b32 s{S_T+1}, s{S_J}, 1"); e(f"s_mul_i32 s{S_T+1}, s{S_T+1}, {13*1352}"); e(f"s_and_b32 s{S_T+2}, s{S_J}, 1"); e(f"s_mul_i32 s{S_T+2}, s{S_T+2}, 676")
            e(f"s_add_u32 s{S_T+1}, s{S_T+1}, s{S_T+2}"); e(f"s_add_u32 s{S_T+1}, s{S_T+1}, {LB + 12*1352}")
            e(f"buffer_load_dwordx4 {vr(L1R+4*i,4)}, v26, {sr(S_WC)}, s{S_T+1} offen")
    e("s_setprio 3")
    e("s_waitcnt vmcnt(13)")
    GR, MR = 68, 96
    for t in range(7):
        e(f"v_lshl_add_u32 v{I+t}, v{I+t}, 6, v{5 if t < 5 else 6}")
        e(f"buffer_load_dwordx4 {vr(GR+4*t,4)}, v{I+t}, {sr(S_TAB)}, 0 offen {PAR.gmod}")
    g.stamp()
    e(f"s_setprio {PAR.cp}")
    def carrive(c):
        e("v_mov_b32 v2, 1"); e("s_mov_b64 exec, 1"); e(f"ds_add_u32 v25, v2 offset:{CNT[c]-M_CNT}"); e("s_mov_b64 exec, -1")
    for i in range(13):
        e(f"s_waitcnt vmcnt({7 + 12 - i})")
        unpack(g, DR, PA, L1R, i)
        if i & 1 and i >= 3: tmax(g, DR, (i >> 1) - 1, 16, i == 3)
    e(f"s_and_b32 s{S_T}, s{S_J}, 1"); e(f"s_lshl_b32 s{S_T}, s{S_T}, 4")
    tmax(g, DR, 5, 16, False)
    for r in range(4): e(f"v_alignbit_b32 v{L1R+48+r}, v{L1R+48+r}, v{L1R+48+r}, s{S_T}")
    tmax(g, DR, 6, 8, False)
    put_max(g, M_L1)
    carrive("L1M")
    for i in range(8): e(f"v_and_b32 v{PS+i}, 0x800080, v{PA+i}")
    g.stamp("s")
    lwait(g, "L1M", 4, 25, 2)
    get_max(g, M_L1)
    e(f"v_readfirstlane_b32 s{S_T}, v1")
    e(f"s_lshr_b32 s{S_T}, s{S_T}, 23"); e(f"s_min_u32 s{S_T}, s{S_T}, 249"); e(f"s_sub_u32 s{S_HDR+2}, s{S_T}, 124")
    e(f"s_sub_u32 s{S_T}, {127+124}, s{S_T}")
    for i in range(8): e(f"v_mul_u32_u24 v{PS+i}, s{S_T}, v{PS+i}")
    def l1out(i):
        d = DR + 16 * ((i >> 1) & 3) + 8 * (i & 1)
        for r in range(4):
            lo, hi = (d + 2 * r + 1, d + 2 * r) if (i & 1) else (d + 2 * r, d + 2 * r + 1)
            e(f"v_cvt_pk_f16_f32 v{L1R+4*i+r}, v{lo}, v{hi}")
        if i < 12:
            t = i >> 1; o = 16 * (8 * (t >> 1) + 4 * (t & 1)) + 512 * (i & 1)
        else:
            e(f"s_lshr_b32 s{S_T}, s{S_J}, 1"); e(f"s_lshl_b32 s{S_T}, s{S_T}, 5"); e(f"s_and_b32 s{S_T+1}, s{S_J}, 1"); e(f"s_mul_i32 s{S_T+1}, s{S_T+1}, 496")
            e(f"s_add_u32 s{S_T}, s{S_T}, s{S_T+1}"); e(f"v_add_u32 v28, s{S_T}, v28"); o = 24 * 16
        e(f"ds_write_b128 v28, {vr(L1R+4*i,4)} offset:{o}")
    for i in range(13):
        unpack(g, DR, PS, L1R, i)
        if i >= 4: l1out(i - 4)
    for i in range(9, 13): l1out(i)
    g.stamp("s")
    e(f"ds_read_b32 v3, v25 offset:{CNT['S0OK']-M_CNT}")
    e("v_lshlrev_b32 v1, 4, v0")
    for i in range(2): e(f"ds_read_b128 {vr(AR+4*i,4)}, v1 offset:{BUFA + i*S0STR}")
    e("s_waitcnt lgkmcnt(2)")
    DR = 132
    e("v_mov_b32 v2, 1")
    e(f"s_setprio {PAR.xp}")
    for t in range(7):
        e(f"s_waitcnt vmcnt({6 - t})")
        unpack(g, DR, PA, GR, t)
        e(f"ds_write_b128 v{7 if t < 5 else 18}, {vr(GR+4*t,4)} offset:{64*t}")
        if t in (3, 5): tmax(g, DR, (t >> 1) - 1, 16, t == 3, 20)
    e("s_mov_b64 exec, 1"); e(f"ds_add_u32 v25, v2 offset:{CNT['RAW']-M_CNT}"); e("s_mov_b64 exec, -1")
    g.stamp(); g.stamp("s")
    tmax(g, DR, 2, 16, False, 20); tmax(g, DR, 3, 8, False, 20)
    for sh in (8, 4, 2, 1):
        e(f"v_max_u32_dpp v20, v20, v20 row_ror:{sh} {DPPALL}")
    e("v_lshrrev_b32 v20, 23, v20"); e("v_max_u32 v20, 4, v20")
    e(f"v_sub_u32 v22, {127+130}, v20"); e("v_lshlrev_b32 v22, 23, v22")
    for t in range(7):
        d = DR + 8 * t
        for i in range(8): e(f"v_mul_f32 v{d+i}, v{d+i}, v22")
        for i in range(4): e(f"v_cvt_pk_f16_f32 v{MR+4*t+i}, v{d+2*i}, v{d+2*i+1}")
        e(f"ds_write_b128 v{7 if t < 5 else 18}, {vr(MR+4*t,4)} offset:{D1 - D0 + 64*t}")
    for k in range(4):
        for t in range(7):
            e(f"ds_read_b64_tr_b16 {vr(X(k,2*t),2)}, v16 offset:{D1 - D0 + k*XSTR+t*256}")
    for k in range(4): e(f"v_readlane_b32 s{S_EX+k}, v20, {16*k}")
    HW = lambda l: S_HDR + 2 * l
    HD = lambda l: S_HDR + 2 * l + 1
    HQ, HL = S_HDR + 8, S_HDR + 9
    e("s_setprio 1")
    e(f"v_readfirstlane_b32 s{S_T}, v3"); e(f"s_cmp_ge_u32 s{S_T}, 4"); e("s_cbranch_scc1 L_s0ok")
    lwait(g, "S0OK", 4, 25, 2)
    for i in range(2): e(f"ds_read_b128 {vr(AR+4*i,4)}, v1 offset:{BUFA + i*S0STR}")
    g.lab("L_s0ok")
    e("s_waitcnt lgkmcnt(14)")
    g.stamp(); g.stamp("s")

    ready = set()
    def quad_prod(k, rho):
        p, q = QPAIRS[rho]
        return lambda d: f"v_pk_mul_f16 v{d}, v{X(k,p)}, v{X(k,q)} op_sel_hi:[0,1]"
    def gen_prod(l):
        def f(k, rho):
            r, p = divmod(rho, 13)
            def mk(d):
                if r == 13: return f"v_mov_b32 v{d}, v{U(k,p)}" if l == 2 else f"v_mov_b32 v{d}, 0"
                assert ('u', l, k, r) in ready, (l, k, r)
                if r & 1: return f"v_pk_mul_f16 v{d}, v{U(k,r>>1)}, v{X(k,p)} op_sel:[1,0] op_sel_hi:[1,1]"
                return f"v_pk_mul_f16 v{d}, v{U(k,r>>1)}, v{X(k,p)} op_sel_hi:[0,1]"
            return mk
        return f
    def lin_prod(k, t):
        b = 2 * t + 1 if 2 * t + 1 < 13 else 2 * t
        return lambda d: f"v_pack_b32_f16 v{d}, v{X(k,2*t)}, v{X(k,b)}"
    def steps(nprod, prod, acc, base, first0, stride=1024, needs=None):
        out = []
        ns = (nprod + 3) // 4
        for s in range(ns):
            out.append(dict(lds=base + stride * s, needs=needs if s == 0 else None, jobs=[dict(acc=acc + 16 * k, zero=(first0 and s == 0),
                       prods=[prod(k, rho) for rho in range(4 * s, min(4 * s + 4, nprod))]) for k in range(4)]))
        return out
    S_CL = S_C1
    e(f"s_mov_b32 s{S_CL}, {115 << 23}"); e(f"s_mov_b32 s{S_MASK}, 145"); e(f"s_mov_b32 s{S_J}, 127")
    def cvt(acc, t):
        return [f"v_cvt_pk_f16_f32 v{U(k,t)}, v{acc+16*k+2*t}, " + (f"v{acc+16*k+2*t+1}" if t < 6 else "0") for k in range(4)]
    def scl(l, t):
        o = []
        for k in range(4):
            o.append((f"v_pk_mul_f16 v{U(k,t)}, v{U(k,t)}, v{SC+k} op_sel_hi:[1,0]", ('u', l + 1, k, 2 * t)))
            o.append((None, ('u', l + 1, k, 2 * t + 1)))
        return o
    def head(acc, l):
        o = []
        for j in range(6):
            for k in range(4):
                a = acc + 16 * k
                if j == 0: o.append(f"v_max3_f32 v{SC+k}, |v{a}|, |v{a+1}|, |v{a+2}|")
                else: o.append(f"v_max3_f32 v{SC+k}, v{SC+k}, |v{a+2*j+1}|, |v{a+2*j+2}|")
        for k in range(4): o.append(f"v_mov_b32 v{TM+k}, v{SC+k}")
        o += cvt(acc, 0)
        for k in range(4): o.append(f"v_permlane32_swap_b32 v{SC+k}, v{TM+k}")
        for k in range(4): o.append(f"v_max3_f32 v{SC+k}, v{SC+k}, v{TM+k}, s{S_CL}")
        for k in range(4): o.append(f"v_lshrrev_b32 v{TM+k}, 23, v{SC+k}")
        for k in range(4): o.append(f"v_sub_u32 v{SC+k}, s{S_MASK}, v{TM+k}")
        for k in range(4): o.append(f"v_lshlrev_b32 v{SC+k}, 10, v{SC+k}")
        return o + scl(l, 0)
    def evup(l):
        return [(None, 'x', ('k', l))] + [f"v_add3_u32 v{EV(k)}, v{EV(k)}, v{TM+k}, s{S_K+k}" for k in range(4)] + [(None, ('ev', l))]
    def emit(x):
        if callable(x): return x() or 0
        if isinstance(x, tuple):
            if len(x) == 3: assert x[2] in ready, x
            ready.add(x[1]); x = x[0]
        if not x: return 0
        e(x)
        return 2 if 'permlane' in x else 1
    def kconst(l):
        o = []
        if l == 0: o.append(f"s_sub_u32 s{S_T}, s{HW(0)}, 130")
        elif l == 1: o += [f"s_add_u32 s{S_T}, s{HW(1)}, s{HD(2)}", f"s_sub_u32 s{S_T}, s{S_T}, 130"]
        else: o += [f"s_sub_u32 s{S_T}, s{HW(l)}, s{HD(l)}", f"s_add_u32 s{S_T}, s{S_T}, s{HD(l+1)}", f"s_sub_u32 s{S_T}, s{S_T}, 130"]
        if l: o.insert(0, (None, 'x', ('ev', l - 1)))
        return o + [f"s_add_u32 s{S_K+k}, s{S_T}, s{S_EX+k}" for k in range(4)] + [(None, ('k', l))]
    state = dict(areg=0, breg=0, base=0)
    def aread(st):
        if st.get('ok'): assert st['ok'] in ready, st['ok']
        st['a'] = AR + 4 * (state['areg'] % 3); state['areg'] += 1
        r = st['lds'] - state['base']; c = 1
        if r < 0 or r > 65535:
            e(f"v_add_u32 v1, {r & 0xffffffff}, v1"); state['base'] = st['lds']; r = 0; c = 2
        e(f"ds_read_b128 {vr(st['a'],4)}, v1 offset:{r}")
        return c
    def prods(job):
        job['b'] = BR + 4 * (state['breg'] % 4); state['breg'] += 1
        return [p(job['b'] + i) for i, p in enumerate(job['prods'])][:PAR.npk]
    GATE = 'GATE'
    import re
    def nbytes(x):
        if callable(x): return 0 if x.__name__ == '<lambda>' else 8
        if isinstance(x, tuple): x = x[0]
        if not x or x == GATE: return 0
        op = x.split()[0]
        lit = any(abs(int(t, 0)) > 64 for t in re.findall(r'(?<![\w\[:])(-?(?:0x[0-9a-f]+|\d+))(?![\w\]:.])', x.split(None, 1)[1]))
        short = op.startswith('s_') or op in ('v_mov_b32', 'v_mul_f32', 'v_add_f32', 'v_add_u32', 'v_sub_u32', 'v_lshrrev_b32', 'v_lshlrev_b32', 'v_and_b32',
                                              'v_permlane32_swap_b32', 'v_readfirstlane_b32', 'v_cmp_lt_u32', 'v_cndmask_b32', 'v_max_f32')
        return 4 if short and not lit else 8
    def run(seq, nxt, fill=None, side=None, rates=None):
        rate = PAR.rate
        jobs = [(si, j) for si, st in enumerate(seq) for j in st['jobs']]
        for j in range(2):
            for s in prods(jobs[j][1]): e(s)
        fq = []; sq = []; gate = -1; credit = 0
        allst = seq + nxt
        for n, (si, job) in enumerate(jobs):
            k = n % 4
            if k == 0:
                if fill and si in fill: fq += fill[si]
                if side and si in side: sq += side[si]
                if rates and si in rates: rate = rates[si]
                pend = sum(1 for st in allst[si+1:si+2] if 'a' in st)
                e(f"s_waitcnt lgkmcnt({0 if seq[si].get('drain') else pend})")
                if seq[si]['needs']: assert seq[si]['needs'] in ready, seq[si]['needs']
            c = "0" if job['zero'] else vr(job['acc'], 16)
            e(f"v_mfma_f32_32x32x16_f16 {vr(job['acc'],16)}, {vr(seq[si]['a'],4)}, {vr(job['b'],4)}, {c}")
            budget = 6
            if k == 0 and si + 2 < len(allst) and 'a' not in allst[si + 2]: budget -= aread(allst[si + 2])
            if k == 3: budget -= 1
            if n + 2 < len(jobs):
                ps = prods(jobs[n + 2][1])
                for s in ps: e(s)
                budget -= len(ps)
                credit += sum(8 - nbytes(p) for p in ps) + 8 * (PAR.npk - len(ps))
            credit = min(credit + rate / 4, 16)
            while sq and si >= gate and ((budget > 0 and credit >= nbytes(sq[0])) or nbytes(sq[0]) == 0):
                x = sq.pop(0)
                if x == GATE: gate = si + 2
                else: budget -= emit(x); credit -= nbytes(x)
            while fq and ((budget > 0 and credit >= nbytes(fq[0])) or nbytes(fq[0]) == 0):
                x = fq.pop(0); budget -= emit(x); credit -= nbytes(x)
        assert not sq, sq
        for s in fq: emit(s)
    S0 = steps(91, quad_prod, ACC, BUFA, True, stride=S0STR)
    L1 = steps(172, gen_prod(1), ACC2, BUFB, True, stride=S0STR)
    L2 = steps(176, gen_prod(2), ACC, BUFA, True, needs=('free', 0))
    Q4 = steps(91, quad_prod, ACC2, D0, True, needs=('free', 1))
    LN = steps(7, lin_prod, ACC2, D0 + 24 * 1024, False, needs='ldx')
    L3 = steps(169, gen_prod(3), ACC, BUFB, True, needs=('free', 2))
    L1[0]['ok'] = "RAW"; L2[0]['ok'] = "L2OK"; Q4[0]['ok'] = "QOK"; L3[0]['ok'] = "L3OK"
    def hdr(addr, sa, sb=None):
        return [f"v_mov_b32 v3, {addr}", "ds_read_b64 v[2:3], v3", GATE, f"v_readfirstlane_b32 s{sa}, v2"] + ([f"v_readfirstlane_b32 s{sb}, v3"] if sb else [])
    def arrive(c):
        def f():
            e(f"v_add_u32 v3, {(CNT[c] - state['base']) & 0xffffffff}, v1"); return 1
        return ["v_mov_b32 v2, 1", f, "ds_add_u32 v3, v2"]
    def check(c):
        def f():
            slow = g.newlab("cs"); back = g.newlab("cb"); top = g.newlab("ct")
            e(f"s_cmp_lt_u32 s{S_T+2}, 4"); e(f"s_cbranch_scc1 {slow}")
            g.lab(back)
            g.tail += [slow + ":", f"    s_mov_b32 s{S_T+1}, {SPIN*8}", top + ":", "    s_sleep 1", "    ds_read_b32 v2, v3", "    s_waitcnt lgkmcnt(0)",
                       f"    v_readfirstlane_b32 s{S_T+2}, v2", f"    s_cmp_ge_u32 s{S_T+2}, 4", f"    s_cbranch_scc1 {back}",
                       f"    s_sub_u32 s{S_T+1}, s{S_T+1}, 1", f"    s_cbranch_scc0 {top}", f"    s_branch {back}"]
            ready.add(c); return 2
        return [f"v_mov_b32 v3, {CNT[c]}", "ds_read_b32 v2, v3", GATE, f"v_readfirstlane_b32 s{S_T+2}, v2", f]
    def stp(n): return [lambda: g.stamp(n)]
    def rest(acc, l):
        o = []
        for t in range(1, 7): o += cvt(acc, t) + scl(l, t)
        return o + [(None, ('free', l))]
    HOFF = 29 * 16
    S0[0]['a'] = AR; S0[1]['a'] = AR + 4; state['areg'] = 2; S0[0]['drain'] = True
    ev0 = []
    for k in range(4): ev0 += [f"s_sub_u32 s{S_EX+k}, s{S_EX+k}, 130", f"s_lshl_b32 s{S_T}, s{S_EX+k}, 1", f"v_mov_b32 v{EV(k)}, s{S_T}"]
    run(S0, L1[:2], side={0: arrive("RB") + ev0, 2: hdr(BUFA + 23 * S0STR + 512, HW(0)) + kconst(0), 17: check("RAW"), 22: arrive("AFREE")})
    g.stamp(); g.stamp("l")
    for s in head(ACC, 0): emit(s)
    g.stamp("l")
    run(L1, L2[:2], fill={0: rest(ACC, 0) + evup(0)}, side={20: stp("l"), 37: check("L2OK")[:-1] + stp("l") + check("L2OK")[-1:] + stp("l"), 42: arrive("BFREE")}, rates={0: 32})
    g.stamp(); g.stamp("l")
    for s in head(ACC2, 1): emit(s)
    g.stamp("l")
    LNPOS = PAR.lnpos
    seq = L2 + Q4 + L3[:LNPOS] + LN + L3[LNPOS:]
    nQ = 44; nL3 = nQ + 23
    assert len({0, 6, 20, 40, LNPOS - 2, LNPOS + 4, PAR.pload}) == 7
    PV, PA = 2, 3
    def pload():
        e(f"buffer_load_dword v{PV}, v{PA}, {sr(S_WS)}, s{S_T+3} offen sc1"); return 1
    k1 = [f"s_sub_u32 s{S_T}, s{HD(1)}, s{HD(2)}"] + [f"s_sub_u32 s{S_K1+k}, s{S_T}, s{S_EX+k}" for k in range(4)] + [(None, 'k1')]
    dots = [(None, 'x', 'k1')]
    for k in range(4): dots.append(f"v_ldexp_f32 v{ACC+16*k+15}, v{ACC+16*k+15}, v{EV(k)}")
    for k in range(4): dots.append(f"v_add_u32 v{ACC+16*k+13}, s{S_K1+k}, v{EV(k)}")
    for k in range(4): dots.append(f"v_ldexp_f32 v{ACC+16*k+14}, v{ACC+16*k+14}, v{ACC+16*k+13}")
    for k in range(4): dots.append(f"v_add_f32 v{LG+k}, v{ACC+16*k+14}, v{ACC+16*k+15}")
    dots.append((None, 'dots'))
    b2 = head(ACC, 2) + dots
    for t in range(1, 7): b2 += cvt(ACC, t)
    b2.append((None, ('free', 2)))
    kq = [f"s_sub_u32 s{HL}, s{HQ}, s{HL}"]; S_K2 = 8
    for k in range(4):
        kq += [f"s_add_u32 s{S_T}, s{HL}, s{S_EX+k}", f"s_min_i32 s{S_KC+k}, s{S_T}, 40",
               f"s_add_i32 s{S_T}, s{S_KC+k}, s{S_J}", f"s_max_i32 s{S_T}, s{S_T}, 0", f"s_lshl_b32 s{S_K2+k}, s{S_T}, 23"]
    kq.append((None, 'kq'))
    ldx = [(None, 'x', 'kq')] + [f"v_mul_f32 v{ACC2+16*k+r}, s{S_K2+k}, v{ACC2+16*k+r}" for k in range(4) for r in range(13)] + [(None, 'ldx')]
    l3f = scl(2, 1)
    per = (len(ldx) + 4) // 5
    for t in range(2, 7): l3f += scl(2, t) + ldx[(t - 2) * per:(t - 1) * per] + (evup(2) if t == 6 else [])
    pre = ["v_bfe_u32 v2, v0, 4, 1", "v_lshrrev_b32 v3, 5, v0", "v_lshl_add_u32 v2, v2, 1, v3", "v_and_b32 v3, 15, v0", "v_cmp_lt_u32 vcc, 12, v3",
           "v_lshlrev_b32 v3, 10, v3", "v_lshl_add_u32 v3, v2, 2, v3", f"v_mov_b32 v2, {OOB}", "v_cndmask_b32 v3, v3, v2, vcc",
           f"s_mul_i32 s{S_T+3}, s{S_G}, {13*1024}", f"s_and_b32 s{S_T}, s{S_SB}, 255", f"s_lshl_b32 s{S_T}, s{S_T}, 2",
           f"s_add_u32 s{S_T+3}, s{S_T+3}, s{S_T}", f"s_add_u32 s{S_T+3}, s{S_T+3}, {WS_PART}"]
    fin = [(None, 'x', ('ev', 2))]
    for k in range(4): fin += [f"s_lshl_b32 s{S_T}, s{S_EX+k}, 1", f"s_add_u32 s{S_K+k}, s{S_T}, s{HD(0)}"]
    for k in range(4): fin.append(f"v_ldexp_f32 v{ACC2+16*k+15}, v{ACC2+16*k+15}, s{S_K+k}")
    for k in range(4): fin.append(f"v_add_f32 v{LG+k}, v{LG+k}, v{ACC2+16*k+15}")
    fin += [f"s_sub_u32 s{S_T}, s{HW(3)}, s{HD(3)}", f"s_add_u32 s{S_T}, s{S_T}, s{HQ}"]
    for k in range(4): fin += [f"s_lshl_b32 s{S_K+k}, s{S_EX+k}, 1", f"s_add_u32 s{S_K+k}, s{S_K+k}, s{S_T}", f"s_sub_u32 s{S_K+k}, s{S_K+k}, s{S_KC+k}"]
    BO = ACC2 + 14
    fin += [f"v_add_u32 v{TM+k}, s{S_K+k}, v{EV(k)}" for k in range(4)] + [f"v_mov_b32 v{BO-1}, 0", f"buffer_load_ushort v{BO}, v{BO-1}, {sr(S_BO)}, 0 offen"]
    run(seq, [], fill={0: rest(ACC2, 1), 14: evup(1), nQ + 1: b2, nL3: l3f},
        side={0: hdr(BUFA + HOFF, HW(2), HD(2)) + kconst(1) + hdr(BUFA + HOFF + 8, HD(1)) + k1, 1: stp("p"), 21: stp("p"),
              nQ - PAR.qchk: check("QOK"), nQ: stp("p"),
              nL3 - 6: check("L3OK"), nL3: stp("p") + hdr(D0 + 23 * 1024, HQ, HL) + kq, nL3 + 6: hdr(BUFB + HOFF, HW(3), HD(3)) + kconst(2) + hdr(D0 + 23 * 1024 + 8, HD(0)),
              nL3 + LNPOS - 2: pre, nL3 + LNPOS + 4: fin, nL3 + 20: stp("p"), nL3 + PAR.pload: [pload], nL3 + 40: stp("p")},
        rates={0: 32, 20: PAR.rate, nQ: PAR.qrate, nL3: PAR.l3rate})
    g.stamp()
    for r in range(13):
        for k in range(4):
            if r == 0: e(f"v_mul_f32 v{SC+k}, v{ACC+16*k}, v{ACC2+16*k}")
            else: e(f"v_fmac_f32 v{SC+k}, v{ACC+16*k+r}, v{ACC2+16*k+r}")
    for k in range(4): e(f"v_ldexp_f32 v{ACC+16*k+15}, v{ACC+16*k+15}, v{EV(k)}")
    for k in range(4): e(f"v_ldexp_f32 v{SC+k}, v{SC+k}, v{TM+k}")
    for k in range(4): e(f"v_add_f32 v{LG+k}, v{LG+k}, v{ACC+16*k+15}")
    for k in range(4): e(f"v_add_f32 v{LG+k}, v{LG+k}, v{SC+k}")
    e(f"v_permlane32_swap_b32 v{LG}, v{LG+1}"); e(f"v_permlane32_swap_b32 v{LG+2}, v{LG+3}")
    e(f"v_add_f32 v{LG}, v{LG}, v{LG+1}"); e(f"v_add_f32 v{LG+2}, v{LG+2}, v{LG+3}")
    e(f"v_permlane16_swap_b32 v{LG}, v{LG+2}")
    e(f"v_add_f32 v{LG}, v{LG}, v{LG+2}")
    e(f"s_mov_b32 s{S_T}, {SPIN}")
    g.lab("L_pcheck")
    e("s_waitcnt vmcnt(0)")
    e(f"v_cmp_eq_u32 vcc, -1, v{PV}")
    e("s_nop 1")
    e("s_cbranch_vccz L_pok")
    e("s_sleep 4")
    pload()
    e(f"s_sub_u32 s{S_T}, s{S_T}, 1")
    e("s_cbranch_scc0 L_pcheck")
    e("s_waitcnt vmcnt(0)")
    g.lab("L_pok")
    e(f"v_add_f32 v{LG}, v{LG}, v{PV}")
    for sh in (8, 4, 2, 1):
        e(f"v_add_f32_dpp v{LG}, v{LG}, v{LG} row_ror:{sh} {DPPALL}")
    e(f"v_lshlrev_b32 v{BO}, 16, v{BO}")
    e(f"v_add_f32 v{LG}, v{LG}, v{BO}")
    e(f"v_cvt_pk_bf16_f32 v{LG}, v{LG}, v{LG}")
    e(f"v_lshrrev_b32 v{PA}, 1, v{PA}")
    e(f"v_cmp_lt_u32 vcc, 7, v{PA}")
    e(f"v_mov_b32 v2, {OOB}")
    e(f"v_cndmask_b32 v{PA}, v{PA}, v2, vcc")
    e(f"s_lshl_b32 s{S_T}, s{S_SB}, 1")
    e(f"buffer_store_short v{LG}, v{PA}, {sr(S_OUT)}, s{S_T} offen")
    g.stamp(); g.stamp("e")
    if PAR.enc is not None:
        e("s_waitcnt lgkmcnt(0)")
        e(f"s_sub_u32 s{S_T}, s{S_ST+2*PAR.enc}, s{S_ST}"); e(f"s_lshl_b32 s{S_T}, s{S_T}, 1"); e(f"s_cmp_lt_u32 s{S_R}, 13"); e(f"s_cselect_b32 s{S_T}, s{S_T}, 0"); e(f"s_add_u32 s{S_T}, s{S_T}, 6000")
        g.lab("L_enc")
        e(f"s_memrealtime s[{S_T+2}:{S_T+3}]"); e("s_waitcnt lgkmcnt(0)")
        e(f"s_sub_u32 s{S_T+2}, s{S_T+2}, s{S_ST}"); e(f"s_cmp_lt_u32 s{S_T+2}, s{S_T}"); e("s_cbranch_scc1 L_enc")
    g.flush_stamps(4, 5)
    e("s_endpgm")

HACC, HX, HW_ = 4, 68, 208
V_TR0, V_TR1, V_DMA, V_WSRC, V_H16, V_L0, V_HROW, V_CNT = 248, 249, 250, 251, 252, 253, 254, 255
ID, QA, QSH, QS, W0R, PK = 4, 12, 19, 20, 180, 236
L1R, BT = 180, 36
S_WP, S_L, S_FR, S_E0, S_E1, S_E2, S_PO, S_CX = 48, 49, 50, 51, 52, 53, 54, 55
S_LC = 56
S_E3, S_XB = 60, 61
def dma_img(g, name, nfr, lds):
    e = g.e; per = nfr // 4
    va = V_DMA
    if name == "Q4":
        va = 1
        e("v_and_b32 v1, 31, v0"); e("v_subrev_u32 v1, 29, v1"); e("v_cmp_gt_u32 vcc, 2, v1"); e(f"v_mov_b32 v1, {OOB}"); e(f"v_cndmask_b32 v1, v{V_DMA}, v1, vcc")
    e(f"s_mul_i32 s{S_T}, s{S_J}, {per*1024}")
    for i in range(per):
        if i % 4 == 0:
            e(f"s_add_u32 s{S_T+1}, s{S_T}, {IMG[name] + i*1024}")
            e(f"s_add_u32 m0, s{S_T}, {lds + i*1024}")
        g.vm(f"buffer_load_dwordx4 v{va}, {sr(S_WS)}, s{S_T+1} offen offset:{(i%4)*1024} {PAR.ld} lds", name)
def poll(g, checks, pre=None):
    e = g.e
    done = g.newlab("pd"); top = g.newlab("pt"); slp = g.newlab("ps"); tst = g.newlab("pc")
    regs = pre or [2 + i for i in range(len(checks))]
    e(f"s_mov_b32 s{S_T}, {SPIN}")
    if pre: e(f"s_branch {tst}")
    g.lab(top)
    for r, (srd, so, o, n) in zip(regs, checks):
        e(f"buffer_load_dword v{r}, v{V_L0}, {sr(srd)}, {so} offen offset:{o} sc1")
    e("s_waitcnt vmcnt(0)")
    g.lab(tst)
    for r, (srd, so, o, n) in zip(regs, checks):
        e(f"v_readfirstlane_b32 s{S_T+1}, v{r}")
        e(f"s_cmp_lt_u32 s{S_T+1}, {n}")
        e(f"s_cbranch_scc1 {slp}")
    g.lab(done)
    g.tail += [slp + ":", f"    s_sleep {PAR.slp}", f"    s_sub_u32 s{S_T}, s{S_T}, 1", f"    s_cbranch_scc0 {top}", f"    s_branch {done}"]
def poll1(g, checks, flag, pre=None):
    lb = g.newlab("p1")
    g.e(f"s_cmp_lg_u32 s{S_J}, 0"); g.e(f"s_cbranch_scc1 {lb}")
    poll(g, checks, pre)
    arrive(g, flag)
    g.lab(lb)
    lwait(g, flag, 1)
def presample(g, checks, regs, tag):
    for r, (srd, so, o, n) in zip(regs, checks):
        g.vm(f"buffer_load_dword v{r}, v{V_L0}, {sr(srd)}, {so} offen offset:{o} sc1", tag)
def arrive(g, *cs):
    e = g.e
    e("v_mov_b32 v1, 1"); e("s_mov_b64 exec, 1")
    for c in cs: e(f"ds_add_u32 v{V_CNT}, v1 offset:{CNT[c]-M_CNT}")
    e("s_mov_b64 exec, -1")
def unpack_mat(g, PA, t):
    e = g.e
    e(f"v_and_b32 v{t}, 1, v0"); e(f"v_lshlrev_b32 v{t}, 4, v{t}"); e(f"v_mov_b32 v{t+1}, 0x3f80"); e(f"v_lshlrev_b32 v{t+1}, v{t}, v{t+1}")
    e(f"v_lshrrev_b32 v{t+2}, 3, v0"); e(f"v_xor_b32 v{t+2}, v{t+2}, v0"); e(f"v_and_b32 v{t+2}, 4, v{t+2}")
    e(f"v_bfe_u32 v{t}, v0, 3, 2"); e(f"v_bfe_u32 v{t+3}, v0, 1, 1"); e(f"v_lshl_add_u32 v{t}, v{t}, 1, v{t+3}"); e(f"v_lshl_add_u32 v{t}, v{t+2}, 3, v{t}")
    for i in range(8):
        e(f"v_cmp_eq_u32 vcc, {i}, v{t}"); e(f"v_cndmask_b32 v{PA+i}, 0, v{t+1}, vcc")
def unpack(g, DR, pa, src, i):
    d = DR + 16 * ((i >> 1) & 3)
    g.e(f"v_mfma_f32_32x32x16_bf16 {vr(d,16)}, {vr(pa+4*(i&1),4)}, {vr(src+4*i,4)}, {vr(d,16) if i & 1 else '0'}")
def tmax(g, DR, tile, n, first, mv=1):
    d = DR + 16 * (tile & 3)
    for q in range(n // 2):
        if first and q == 0: g.e(f"v_max_f32 v{mv}, |v{d}|, |v{d+1}|")
        else: g.e(f"v_max3_f32 v{mv}, v{mv}, |v{d+2*q}|, |v{d+2*q+1}|")
def lwait(g, c, n=4, va=None, vd=1):
    e = g.e; top = g.newlab("lw"); done = g.newlab("ld")
    e(f"s_mov_b32 s{S_T}, {SPIN*8}")
    g.lab(top)
    e(f"ds_read_b32 v{vd}, v{va or V_CNT} offset:{CNT[c]-M_CNT}"); e("s_waitcnt lgkmcnt(0)")
    e(f"v_readfirstlane_b32 s{S_T+1}, v{vd}"); e(f"s_cmp_ge_u32 s{S_T+1}, {n}"); e(f"s_cbranch_scc1 {done}")
    e(f"s_sleep {PAR.lslp if c in ('FX', 'F2', 'F3', 'FQ', 'AFREE', 'BFREE', 'XST') else 1}"); e(f"s_sub_u32 s{S_T}, s{S_T}, 1"); e(f"s_cbranch_scc0 {top}")
    g.lab(done)
def rowmax(g, v, op="v_max_u32_dpp"):
    for sh in (8, 4, 2, 1): g.e(f"{op} v{v}, v{v}, v{v} row_ror:{sh} {DPPALL}")
def wavemax_exp(g, v, sdst):
    e = g.e
    rowmax(g, v)
    e(f"v_readlane_b32 s{sdst}, v{v}, 0"); e(f"v_readlane_b32 s{S_T}, v{v}, 16"); e(f"s_max_u32 s{sdst}, s{sdst}, s{S_T}")
    e(f"v_readlane_b32 s{S_T}, v{v}, 32"); e(f"s_max_u32 s{sdst}, s{sdst}, s{S_T}")
    e(f"v_readlane_b32 s{S_T}, v{v}, 48"); e(f"s_max_u32 s{sdst}, s{sdst}, s{S_T}")
    e(f"s_lshr_b32 s{sdst}, s{sdst}, 23"); e(f"s_sub_u32 s{sdst}, s{sdst}, 126")
def put_max(g, slot):
    e = g.e
    rowmax(g, 1)
    e("v_lshrrev_b32 v2, 4, v0"); e(f"s_lshl_b32 s{S_T}, s{S_J}, 4"); e(f"s_add_u32 s{S_T}, s{S_T}, {slot}")
    e(f"v_lshl_add_u32 v2, v2, 2, s{S_T}")
    e("ds_write_b32 v2, v1")
def get_max(g, slot):
    e = g.e
    e("v_and_b32 v2, 15, v0"); e("v_lshlrev_b32 v2, 2, v2"); e(f"v_add_u32 v2, {slot}, v2")
    e("ds_read_b32 v1, v2"); e("s_waitcnt lgkmcnt(0)")
    rowmax(g, 1)
def pkmax(g, regs):
    e = g.e
    e(f"v_pk_max_u16 v1, v{regs[0]}, v{regs[1]}"); e(f"v_pk_max_u16 v3, v{regs[2]}, v{regs[3]}")
    for i, r in enumerate(regs[4:]): e(f"v_pk_max_u16 v{1 + 2*(i&1)}, v{1 + 2*(i&1)}, v{r}")
    e("v_pk_max_u16 v1, v1, v3"); e("v_alignbit_b32 v3, v1, v1, 16"); e("v_pk_max_u16 v1, v1, v3")
def pack_round(g, acc, off, pk=True):
    e = g.e
    if PAR.pkpack and pk:
        for t in range(7):
            q = QS + t; sel = q & 1
            e(f"v_pk_mul_f32 {vr(acc+2*t,2)}, {vr(acc+2*t,2)}, {vr(q - sel,2)} op_sel:[0,{sel}] op_sel_hi:[1,{sel}]")
    else:
        for t in range(14): e(f"v_mul_f32 v{acc+t}, v{acc+t}, v{QS+(t>>1)}")
    for t in range(7): e(f"v_cvt_pk_f16_f32 v{PK+t}, v{acc+2*t}, v{acc+2*t+1}")
    for t in range(7): e(f"v_alignbit_b32 v{PK+t}, v{PK+t}, v{PK+t}, v{QSH}")
    for t in range(7): e(f"ds_write_b32 v{QA+t}, v{PK+t} offset:{off}")
def s0_max(g, t):
    a = HX + 16 * t
    for i in range(7):
        if t == 0 and i == 0: g.e(f"v_max_f32 v1, |v{a}|, |v{a+1}|")
        else: g.e(f"v_max3_f32 v1, v1, |v{a+2*i}|, |v{a+2*i+1}|")
F0 = lambda c: sum(PAR.chunks[:c])
S_ROT = 64
S_RA = 66
def call_if(g, cond, target):
    lb = g.newlab('nc')
    for c in cond: g.e(c[0]); g.e(f'{c[1]} {lb}')
    g.e(f's_call_b64 s[{S_RA}:{S_RA+1}], {target}')
    g.lab(lb)
RET = f's_setpc_b64 s[{S_RA}:{S_RA+1}]'
def EARLY(): return [(f's_cmp_lt_u32 s{S_WP}, {PAR.gearly}', 's_cbranch_scc0')]
def LATE(): return [(f's_cmp_lt_u32 s{S_WP}, {PAR.gearly}', 's_cbranch_scc1'), (f's_cmp_ge_u32 s{S_WP}, 31', 's_cbranch_scc1')]
def rotf(g, f, sd):
    g.e(f"s_add_u32 s{sd}, s{S_ROT}, {f}"); g.e(f"s_sub_u32 s{S_ROT+1}, s{sd}, 26"); g.e(f"s_min_u32 s{sd}, s{sd}, s{S_ROT+1}")
def dma_w(g, c, only=None):
    e = g.e
    Dc = (D0, D1)[c & 1]
    e(f"s_lshl_b32 s{S_T}, s{S_J}, 10")
    for fl in range(PAR.chunks[c]):
        if only is not None and fl != only: continue
        e(f"s_add_u32 m0, s{S_T}, {Dc + fl*4096}")
        rotf(g, F0(c) + fl, S_T + 1); e(f"s_mul_i32 s{S_T+1}, s{S_T+1}, 53248")
        g.vm(f"buffer_load_dwordx4 v{V_WSRC}, {sr(S_W1)}, s{S_T+1} offen lds", f"W{c}")
CHK_X = lambda: (S_WS, f"s{S_CX}", 0, 16)
def helper_common(g):
    e = g.e
    e("s_setprio 2")
    e(f"s_sub_u32 s{S_J}, s{S_WAVE}, 4")
    e("v_and_b32 v2, 31, v0"); e("v_lshrrev_b32 v3, 5, v0")
    e(f"v_lshlrev_b32 v{V_H16}, 4, v3")
    e("v_lshrrev_b32 v4, 3, v2"); e("v_and_b32 v6, 3, v2"); e("v_lshl_add_u32 v4, v4, 2, v6")
    e("v_bfe_u32 v6, v2, 2, 1"); e(f"v_mad_u32_u24 v{V_HROW}, v6, 13, v4")
    e("v_cmp_lt_u32 vcc, 12, v4"); e("v_mov_b32 v7, 0x100000"); e(f"v_cndmask_b32 v{V_HROW}, v{V_HROW}, v7, vcc")
    e("v_mul_u32_u24 v4, 676, v3"); e(f"s_movk_i32 s{S_T+1}, 1352"); e(f"v_mad_u32_u24 v243, v{V_HROW}, s{S_T+1}, v4")
    def qaset():
        e("v_lshrrev_b32 v27, 1, v2"); e("v_and_b32 v28, 1, v2"); e(f"v_lshlrev_b32 v{QSH}, 4, v28")
        e("v_sub_u32 v29, 25, v27"); e("v_mul_u32_u24 v29, v29, v27"); e("v_lshrrev_b32 v29, 1, v29")
        e(f"s_lshl_b32 s{S_T}, s{S_J}, 4")
        e(f"v_lshl_add_u32 v28, v28, 9, s{S_T}")
        e(f"v_lshl_add_u32 v30, v0, 2, s{S_T}"); e(f"v_add_u32 v30, {BUFA + 24*S0STR}, v30")
        e("v_mov_b32 v33, 0.5")
        for t in range(7):
            qb = 4 * (t >> 1) + (t & 1)
            e(f"v_lshl_add_u32 v31, v3, 1, {qb}")
            e("v_add_u32 v32, v29, v31")
            e(f"v_lshrrev_b32 v{QA+t}, 2, v32"); e(f"v_mul_u32_u24 v{QA+t}, {S0STR}, v{QA+t}")
            e("v_and_b32 v32, 3, v32"); e("v_lshl_add_u32 v32, v32, 2, v28"); e(f"v_add_u32 v{QA+t}, v{QA+t}, v32")
            e("v_cmp_lt_u32 vcc, v31, v27")
            if t == 6:
                e("v_cmp_lt_u32 s[72:73], 12, v31"); e("s_or_b64 vcc, vcc, s[72:73]")
            e(f"v_cndmask_b32 v{QA+t}, v{QA+t}, v30, vcc")
            e("v_cmp_eq_u32 vcc, v31, v27"); e(f"v_cndmask_b32 v{QS+t}, 1.0, v33, vcc")
        e("v_lshlrev_b32 v31, 3, v3"); e("v_sub_u32 v31, v2, v31")
        e("v_mov_b32 v32, 0x3f80"); e(f"v_lshlrev_b32 v32, v{QSH}, v32")
        e("v_lshrrev_b32 v31, 1, v31")
        for s in range(2):
            for i in range(4):
                e(f"v_cmp_eq_u32 vcc, {8*s+i}, v31"); e(f"v_cndmask_b32 v{ID+4*s+i}, 0, v32, vcc")
    if PAR.qaearly: qaset()
    HS = [S_WC, S_WS, S_WO, S_W1, S_B1, S_W2, S_DBG]
    srd_const(g, HS)
    e("s_waitcnt lgkmcnt(0)")
    srd_base(g, HS)
    e(f"s_mov_b64 s[{S_LC}:{S_LC+1}], s[{S_WC}:{S_WC+1}]"); e(f"s_mov_b32 s{S_LC+3}, 0x00020000"); e(f"s_mov_b32 s{S_LC+2}, {2*LB}")
    e(f"s_mul_i32 s{S_WP}, s{S_G}, 3"); e(f"s_add_u32 s{S_WP}, s{S_WP}, s{S_R}"); e(f"s_sub_u32 s{S_WP}, s{S_WP}, 13")
    e(f"s_cmp_lt_u32 s{S_R}, 13"); e(f"s_cselect_b32 s{S_WP}, 63, s{S_WP}")
    if PAR.wpf:
        e(f"s_cmp_lg_u32 s{S_J}, 0"); e("s_cbranch_scc1 L_nowpf")
        e(f"s_mov_b32 s{S_WC+2}, {6*LB}"); e(f"s_lshr_b32 s{S_T}, s2, 3"); e(f"s_lshl_b32 s{S_T}, s{S_T}, 7")
        e("v_lshlrev_b32 v1, 12, v0")
        e(f"buffer_load_dword v247, v1, {sr(S_WC)}, s{S_T} offen")
        e(f"s_mov_b32 s{S_WC+2}, {LB}")
        g.lab("L_nowpf")
    e("s_barrier")
    g.stamp("g")
    call_if(g, EARLY(), "L_pe1")
    g.stamp("g")
    e("v_and_b32 v2, 31, v0"); e("v_lshrrev_b32 v3, 5, v0")
    e(f"v_mad_u32_u24 v1, v2, 52, v{V_H16}")
    if PAR.w0lin: e("v_lshlrev_b32 v1, 4, v0")
    e(f"s_mul_i32 s{S_T}, s{S_J}, 1352")
    for t in range(7):
        if t < 6: e(f"s_add_u32 s{S_T+1}, s{S_T}, {(13*(t&1) + 4*(t>>1))*1352}")
        else:
            e(f"s_mul_i32 s{S_T+1}, s{S_J}, {13*1352}"); e(f"s_add_u32 s{S_T+1}, s{S_T+1}, {12*1352}")
        for s in range(2):
            g.vm(f"buffer_load_dwordx4 {vr(W0R+8*t+4*s,4)}, v1, {sr(S_WC)}, s{S_T+1} offen offset:{(320 if PAR.w0lin else 32)*s}", f"w0_{t}")
    e(f"v_mov_b32 v61, {OOB}"); e(f"v_add_u32 v60, s{S_J}, v0"); e("v_cmp_eq_u32 vcc, 0, v60"); e(f"v_cndmask_b32 v{V_L0}, v61, 0, vcc")
    e(f"s_lshl_b32 s{S_SB}, s{S_R}, 7")
    e(f"s_mul_i32 s{S_CX}, s{S_G}, {PAR.cstr}"); e(f"s_add_u32 s{S_CX}, s{S_CX}, {WS_CNT}")
    e(f"s_add_u32 s{S_T}, s{S_R}, s{S_J}"); e(f"s_cmp_eq_u32 s{S_T}, 0"); e(f"s_cselect_b32 s{S_E3}, 0, {OOB}")
    e(f"v_add_u32 v34, s{S_E3}, v{V_L0}");
    for i in range(4): e(f"v_mov_b32 v{36+i}, 0")
    g.vm(f"buffer_store_dwordx4 v[36:39], v34, {sr(S_WS)}, s{S_CX} offen sc1", "rst")
    if not PAR.qaearly: qaset()
    e(f"s_mul_i32 s{S_PO}, s{S_G}, 13"); e(f"s_add_u32 s{S_PO}, s{S_PO}, s{S_R}"); e(f"s_lshl_b32 s{S_PO}, s{S_PO}, 2"); e(f"s_add_u32 s{S_PO}, s{S_PO}, s{S_J}")
    e(f"s_lshl_b32 s{S_PO}, s{S_PO}, 8"); e(f"s_add_u32 s{S_PO}, s{S_PO}, {WS_PART}")
    e("v_bfe_u32 v60, v0, 3, 2"); e("v_and_b32 v61, 3, v0"); e("v_lshl_add_u32 v60, v60, 2, v61"); e(f"v_mul_u32_u24 v245, {XSTR}, v60")
    e("v_bfe_u32 v60, v0, 2, 1"); e("v_lshl_add_u32 v245, v60, 4, v245"); e(f"v_lshl_add_u32 v245, v{V_H16}, 1, v245")
    e(f"s_lshl_b32 s{S_T}, s{S_J}, 6"); e(f"s_add_u32 s{S_T}, s{S_T}, {D0}"); e(f"v_add_u32 v245, s{S_T}, v245")
    e("v_lshlrev_b32 v246, 4, v0"); e(f"v_lshl_add_u32 v246, v{V_H16}, 5, v246")
    e(f"s_lshl_b32 s{S_XB}, s{S_G}, 2"); e(f"s_lshr_b32 s{S_T}, s{S_R}, 2"); e(f"s_add_u32 s{S_XB}, s{S_XB}, s{S_T}"); e(f"s_mul_i32 s{S_XB}, s{S_XB}, 106496")
    e(f"s_bfe_u32 s{S_T}, s{S_R}, 0x10001"); e(f"s_lshl_b32 s{S_T}, s{S_T}, 11"); e(f"s_add_u32 s{S_XB}, s{S_XB}, s{S_T}")
    e(f"s_and_b32 s{S_T}, s{S_R}, 1"); e(f"s_lshl_b32 s{S_T}, s{S_T}, 9"); e(f"s_add_u32 s{S_XB}, s{S_XB}, s{S_T}")
    e(f"s_lshl_b32 s{S_T}, s{S_J}, 12"); e(f"s_add_u32 s{S_XB}, s{S_XB}, s{S_T}"); e(f"s_add_u32 s{S_XB}, s{S_XB}, {WS_X}")
    g.stamp("g")
    call_if(g, EARLY(), "L_pe2")
    g.stamp("g")
    for t in range(7):
        g.vmwait(f"w0_{t}")
        a = HX + 16 * t; w = W0R + 8 * t
        e(f"v_mfma_f32_32x32x16_bf16 {vr(a,16)}, {vr(w,4)}, {vr(ID,4)}, 0")
        e(f"v_mfma_f32_32x32x16_bf16 {vr(a,16)}, {vr(w+4,4)}, {vr(ID+4,4)}, {vr(a,16)}")
        e(f"v_mfma_f32_32x32x16_bf16 {vr(a,16)}, {vr(ID,4)}, {vr(w,4)}, {vr(a,16)}")
        e(f"v_mfma_f32_32x32x16_bf16 {vr(a,16)}, {vr(ID+4,4)}, {vr(w+4,4)}, {vr(a,16)}")
        if t > 0: s0_max(g, t - 1)
    s0_max(g, 6)
    put_max(g, M_S0)
    e(f"v_mov_b32 v{V_CNT}, {M_CNT}")
    arrive(g, "S0M")
    e(f"s_cmp_lg_u32 s{S_R}, 0"); e("s_cbranch_scc1 L_nordy")
    g.vmwait("rst")
    e("v_mov_b32 v35, 1"); e(f"s_lshl_b32 s{S_E3}, s{S_G}, 2")
    e(f"buffer_store_dword v35, v34, {sr(S_DBG)}, s{S_E3} offen offset:{C_RDY} sc1")
    g.lab("L_nordy")
    g.stamp("g")
    if g.stamps and "g" in PAR.st: e("s_waitcnt vmcnt(0)"); g.stamp("g")
    call_if(g, EARLY(), "L_gsig")
    g.stamp("g")
    lwait(g, "S0M")
    g.stamp(); g.stamp("h")
    get_max(g, M_S0)
    e("v_lshlrev_b32 v3, 4, v0"); e(f"v_mov_b32 v{PK}, 0")
    e(f"ds_write_b32 v3, v{PK} offset:{BUFA + 22*S0STR + 12}")
    e("v_lshrrev_b32 v1, 23, v1")
    e("v_min_u32 v1, 249, v1")
    e("v_sub_u32 v2, 124, v1")
    e("v_subrev_u32 v1, 124, v1")
    e(f"ds_write_b32 v3, v1 offset:{BUFA + 23*S0STR + 512}")
    for t in range(7): e(f"v_ldexp_f32 v{QS+t}, v{QS+t}, v2")
    for t in range(7):
        if t == 6:
            e(f"s_cmp_eq_u32 s{S_J}, 1"); e(f"s_cselect_b32 s{S_T}, 48, 0")
            for i in range(7): e(f"v_add_u32 v{QA+i}, s{S_T}, v{QA+i}")
        if t in (0, 2, 4, 6): g.stamp("h")
        pack_round(g, HX + 16 * t, 16 * (8 * (t >> 1) + 4 * (t & 1)))
    arrive(g, "S0OK")
    g.stamp(); g.stamp("s"); g.stamp("h")
    e(f"v_cmp_lt_u32 vcc, 25, v{V_HROW}"); e("v_bfe_u32 v1, v0, 2, 1")
    e("v_cmp_eq_u32 s[72:73], 0, v1"); e("s_and_b64 vcc, vcc, s[72:73]")
    e(f"v_mov_b32 v2, {OOB}"); e(f"v_lshlrev_b32 v{V_DMA}, 4, v0"); e(f"v_cndmask_b32 v{V_DMA}, v{V_DMA}, v2, vcc")
    e(f"s_mul_i32 s{S_ROT}, s{S_R}, {PAR.rot}")
    e("v_lshrrev_b32 v1, 3, v0"); e(f"s_lshl_b32 s{S_T}, s{S_J}, 3"); e(f"v_add_u32 v1, s{S_T}, v1")
    e("v_mul_u32_u24 v1, 1664, v1")
    e("v_bfe_u32 v2, v0, 4, 1"); e("v_lshlrev_b32 v2, 2, v2"); e("v_and_b32 v3, 7, v0"); e("v_xor_b32 v2, v2, v3")
    e("v_lshl_add_u32 v1, v2, 4, v1"); e(f"s_lshl_b32 s{S_SB}, s{S_R}, 7"); e(f"v_add_u32 v{V_WSRC}, s{S_SB}, v1")
    e("v_lshrrev_b32 v1, 5, v0"); e("v_bfe_u32 v2, v0, 2, 2")
    e("v_lshl_add_u32 v1, v1, 3, v2"); e("v_lshlrev_b32 v1, 7, v1")
    e("v_bfe_u32 v3, v0, 4, 1"); e("v_lshl_add_u32 v1, v3, 5, v1"); e("v_and_b32 v3, 3, v0"); e("v_lshl_add_u32 v1, v3, 3, v1")
    e("v_lshrrev_b32 v2, 1, v2"); e("v_lshl_add_u32 v1, v2, 6, v1")
    e(f"v_add_u32 v{V_TR0}, {D0}, v1"); e(f"v_xor_b32 v{V_TR1}, 64, v{V_TR0}")
    call_if(g, LATE(), "L_pe1")
    call_if(g, LATE()[:1], "L_xpub")
    g.vmq += ["xst"] * 7 + ["sent", "rdyl"] + ["bias"] * 8
    g.stamp("s")
    call_if(g, LATE(), "L_pe2")
    if PAR.wearly:
        e(f"s_cmp_ge_u32 s{S_R}, 13"); e("s_cbranch_scc1 L_pw")
        lwait(g, "RB", 8); dma_w(g, 0)
        if PAR.wearly > 1: dma_w(g, 1)
        g.tail += ["L_pw:", "    s_waitcnt vmcnt(8)", "    s_branch L_pwr"]
    g.vmwait("rdyl")
    g.lab("L_pwr")
    arrive(g, "XST")
    e(f"s_cmp_lg_u32 s{S_J}, 0"); e("s_cbranch_scc1 L_nosig")
    lwait(g, "XST")
    e(f"s_mov_b32 s{S_T}, {SPIN}")
    g.lab("L_rdy")
    e("v_cmp_ne_u32 vcc, 0, v28"); e(f"s_and_b32 s{S_T+1}, vcc_lo, 0xffff"); e(f"s_cmp_eq_u32 s{S_T+1}, 0xffff"); e("s_cbranch_scc0 L_rdys")
    g.lab("L_rdyd")
    g.tail += ["L_rdys:", "    s_sleep 8", f"    buffer_load_dword v28, v29, {sr(S_DBG)}, 0 offen offset:{C_RDY} sc1", "    s_waitcnt vmcnt(0)",
               f"    s_sub_u32 s{S_T}, s{S_T}, 1", "    s_cbranch_scc0 L_rdy", "    s_branch L_rdyd"]
    e("v_mov_b32 v1, 1")
    e(f"buffer_atomic_add v1, v{V_L0}, {sr(S_WS)}, s{S_CX} offen sc1")
    g.lab("L_nosig")
    g.stamp(); g.stamp("s")

def helper_dnn(g):
    e = g.e
    CH = PAR.chunks; NS = PAR.nslot
    def xb(f, tile, t): return HX + 16 * (f % NS) + 8 * tile + 4 * t
    def xload(f):
        rotf(g, f, S_T + 2); e(f"s_lshl_b32 s{S_T+2}, s{S_T+2}, 12"); e(f"s_add_u32 s{S_T+2}, s{S_T+2}, s{S_XB}")
        for tile in range(2):
            for t in range(2):
                g.vm(f"buffer_load_dwordx4 {vr(xb(f,tile,t),4)}, v2, {sr(S_WS)}, s{S_T+2} offen offset:{2048*tile+1024*t} {PAR.ld}", f"x{f}")
    g.vmwait("bias")
    for a in range(2):
        for i in range(8):
            e(f"v_lshlrev_b32 v{HACC+16*a+2*i}, 16, v{BT+8*a+i}")
            e(f"v_and_b32 v{HACC+16*a+2*i+1}, 0xffff0000, v{BT+8*a+i}")
    for i in range(32): e(f"v_mov_b32 v{HACC+32+i}, v{HACC+i}")
    e(f"s_lshl_b32 s{S_XB}, s{S_G}, 2"); e(f"s_add_u32 s{S_XB}, s{S_XB}, s{S_J}"); e(f"s_mul_i32 s{S_XB}, s{S_XB}, 106496"); e(f"s_add_u32 s{S_XB}, s{S_XB}, {WS_X}")
    poll1(g, [(S_DBG, "0", 128, 11)], "F2")
    if not PAR.wearly: lwait(g, "RB", 8); dma_w(g, 0)
    if PAR.wearly < 2: dma_w(g, 1)
    lwait(g, "AFREE"); dma_img(g, "L2", 44, BUFA)
    presample(g, [CHK_X()], [196], "fx")
    g.vmwait("fx"); arrive(g, "L2OK", "W01")
    poll1(g, [CHK_X()], "FX", pre=[196])
    g.stamp("s")
    g.stamp()
    e("v_bfe_u32 v2, v0, 2, 3"); e("v_lshlrev_b32 v2, 7, v2"); e(f"v_lshl_add_u32 v2, v{V_H16}, 2, v2"); e("v_and_b32 v3, 3, v0"); e("v_lshl_add_u32 v2, v3, 4, v2")
    for f in range(NS):
        xload(f)
    FL = 232
    W2R = 232 + 0
    wring = [0]
    def loc(ks):
        f = ks // 2; c = max(i for i in range(4) if F0(i) <= f)
        return c, ks - 2 * F0(c)
    def wread(ks):
        c, kl = loc(ks)
        Dc = (D0, D1)[c & 1]
        base = HW_ + 8 * (wring[0] % 3); wring[0] += 1
        for a, ad in ((0, V_TR0), (1, V_TR1)):
            for rd in range(2):
                e(f"ds_read_b64_tr_b16 {vr(base+4*a+2*rd,2)}, v{ad} offset:{Dc - D0 + kl*2048 + rd*512}")
        return base
    CK2 = [(S_DBG, "0", 128, 11)]; CKQ = [(S_WS, f"s{S_CX}", C_Q, 9)]; CK3 = [(S_WS, f"s{S_CX}", C_L[3], 11)]
    def act_l2():
        lwait(g, "AFREE"); g.vmwait("f2"); poll1(g, CK2, "F2", pre=[196]); dma_img(g, "L2", 44, BUFA)
    after = {}
    def add(f, fn): after.setdefault(f, []).append(fn)
    if PAR.l2pos >= 0:
        add(PAR.l2pos - 2, lambda: presample(g, CK2, [196], "f2"))
        add(PAR.l2pos, act_l2)
        add(PAR.l2pos + 4, lambda: (g.vmwait("L2"), arrive(g, "L2OK")))
    add(F0(1), lambda: (lwait(g, "C0"), dma_w(g, 2)))
    add(F0(3) - 3, lambda: presample(g, CKQ + CK3, [196, 197], "fq"))
    add(F0(3) + PAR.qarr, lambda: (g.vmwait("Q4"), arrive(g, "QOK")))
    lwait(g, "W01")
    for c in range(4):
        k0 = 2 * F0(c); k1 = 2 * F0(c + 1)
        bufs = {k0: wread(k0), k0 + 1: wread(k0 + 1)}
        for ks in range(k0, k1):
            f, t = divmod(ks, 2)
            if t == 0: g.vmwait(f"x{f}")
            e(f"s_waitcnt lgkmcnt({4 if ks + 1 < k1 else 0})")
            for a in range(2):
                for tile in range(2):
                    acc = HACC + 32 * tile + 16 * a
                    if 2 * a + tile < PAR.nmf: e(f"v_mfma_f32_32x32x16_bf16 {vr(acc,16)}, {vr(bufs[ks]+4*a,4)}, {vr(xb(f,tile,t),4)}, {vr(acc,16)}")
                if a == 0 and ks + 2 < k1: bufs[ks + 2] = wread(ks + 2)
            if t == 1:
                if f + NS < 26: xload(f + NS)
                for fn in after.get(f, []): fn()
        if c == 0: arrive(g, "C0"); g.stamp()
        if c == 1:
            g.vmwait("W2"); arrive(g, "C1"); lwait(g, "C1"); dma_w(g, 3)
        if c == 2:
            g.vmwait("W3"); arrive(g, "C2"); lwait(g, "C2")
            if not PAR.qlate: g.vmwait("fq"); poll1(g, CKQ, "FQ", pre=[196]); dma_img(g, "Q4", 28, D0)
            e(f"v_lshrrev_b32 v1, 1, v{V_H16}")
            for a in range(2):
                for q in range(4):
                    g.vm(f"buffer_load_dwordx2 {vr(W2R+8*a+2*q,2)}, v1, {sr(S_W2)}, s{S_SB} offen offset:{64*a+16*q}", "w2")
    if PAR.qlate: g.vmwait("fq"); poll1(g, CKQ, "FQ", pre=[196]); dma_img(g, "Q4", 28, D0)
    e("s_waitcnt vmcnt(0)")
    g.stamp()
    W2F = HX
    for i in range(16):
        e(f"v_lshlrev_b32 v{W2F+2*i}, 16, v{W2R+i}")
        e(f"v_and_b32 v{W2F+2*i+1}, 0xffff0000, v{W2R+i}")
    c0 = 2 * 0.7978845608028654 * 1.4426950408889634
    e(f"s_mov_b32 s{S_C1}, {f2u(c0*0.044715):#x}")
    e(f"v_mov_b32 v2, {f2u(c0):#x}")
    T = HX + 32; SUM = HX + 48
    for i in range(4): e(f"v_mov_b32 v{SUM+i}, 0")
    def gelu(blk):
        rs = [HACC + 4 * blk + i for i in range(4)]
        tile = (4 * blk) // 32
        for i, r in enumerate(rs): e(f"v_mul_f32 v{T+i}, v{r}, v{r}")
        for i, r in enumerate(rs): e(f"v_fma_f32 v{T+i}, v{T+i}, s{S_C1}, v2")
        for i, r in enumerate(rs): e(f"v_mul_f32 v{T+i}, v{T+i}, v{r}")
        for i, r in enumerate(rs): e(f"v_exp_f32 v{T+i}, -v{T+i}")
        for i, r in enumerate(rs): e(f"v_mul_f32 v{r}, v{r}, v{W2F + (r - HACC) % 32}")
        for i, r in enumerate(rs): e(f"v_add_f32 v{T+i}, 1.0, v{T+i}")
        for i, r in enumerate(rs): e(f"v_rcp_f32 v{T+i}, v{T+i}")
        for i, r in enumerate(rs): e(f"v_fmac_f32 v{SUM + 2*tile + (i&1)}, v{r}, v{T+i}")
    for blk in range(16):
        if blk == PAR.gsplit:
            lwait(g, "BFREE"); poll1(g, CK3, "F3", pre=[197]); dma_img(g, "L3", 44, BUFB)
        if blk == PAR.gsplit2:
            e("s_waitcnt vmcnt(0)"); arrive(g, "L3OK")
        if blk == PAR.ghi: e("s_setprio 0")
        if blk < PAR.ngelu: gelu(blk)
    e("s_setprio 2")
    e(f"v_add_f32 v{SUM}, v{SUM}, v{SUM+1}"); e(f"v_add_f32 v{SUM+2}, v{SUM+2}, v{SUM+3}")
    e(f"v_permlane32_swap_b32 v{SUM}, v{SUM+2}")
    e(f"v_add_f32 v{SUM}, v{SUM}, v{SUM+2}")
    e(f"v_min_u32 v{SUM}, -2, v{SUM}")
    e("v_lshlrev_b32 v1, 2, v0")
    e(f"buffer_store_dword v{SUM}, v1, {sr(S_WS)}, s{S_PO} offen sc1")
    g.stamp()
    g.flush_stamps(4, 5)
    e("s_endpgm")

def gsignal(g, c, so):
    e = g.e; done = g.newlab("sg")
    if c: e("s_waitcnt vmcnt(0)"); arrive(g, c)
    e(f"s_cmp_lg_u32 s{S_J}, 0"); e(f"s_cbranch_scc1 {done}")
    if c: lwait(g, c)
    e(f"v_mul_u32_u24 v2, {PAR.cstr}, v0"); e("v_cmp_lt_u32 vcc, 15, v0"); e(f"v_mov_b32 v3, {OOB}"); e("v_cndmask_b32 v2, v2, v3, vcc")
    e("v_mov_b32 v1, 1")
    e(f"buffer_atomic_add v1, v2, {sr(S_WS)}, {so} offen sc1")
    g.lab(done)
SCN, FR, WV, WP, W1V, AQ, RW = 68, 104, 121, 122, 108, 44, 180
QAR = lambda i: (64 + i) if i < 4 else (240 + i)
S_E4, S_LW = 62, 63
def prod_early1(g):
    e = g.e
    g.lab("L_gsig")
    e("s_waitcnt vmcnt(0)"); arrive(g, "GST")
    e(f"s_cmp_lg_u32 s{S_J}, 0"); e("s_cbranch_scc1 L_xpub")
    lwait(g, "GST")
    e("v_mov_b32 v1, 1"); e(f"buffer_atomic_add v1, v{V_L0}, {sr(S_DBG)}, 0 offen offset:128 sc1")
    g.lab("L_xpub")
    XS = 180
    lwait(g, "RAW")
    for t in range(7): e(f"ds_read_b128 {vr(XS+4*t,4)}, v245 offset:{256*t}")
    e(f"s_cmp_ge_u32 s{S_J}, 2"); e(f"s_cselect_b32 s{S_T}, {OOB}, 0"); e(f"v_add_u32 v245, s{S_T}, v246")
    for t in range(7):
        e(f"s_waitcnt lgkmcnt({6-t})")
        g.vm(f"buffer_store_dwordx4 {vr(XS+4*t,4)}, v{246 if t < 6 else 245}, {sr(S_WS)}, s{S_XB} offen sc1", "xst")
        e(f"s_add_u32 s{S_XB}, s{S_XB}, 16384")
    arrive(g, "RB")
    e(f"s_cmp_ge_u32 s{S_R}, 13"); e(f"s_cselect_b32 s{S_T}, {OOB}, 0")
    e(f"v_lshl_add_u32 v1, v0, 2, s{S_T}"); e("v_mov_b32 v3, -1")
    g.vm(f"buffer_store_dword v3, v1, {sr(S_WS)}, s{S_PO} offen sc1", "sent")
    e(f"s_lshl_b32 s{S_T}, s{S_J}, 8"); e("v_lshrrev_b32 v29, 4, v0"); e(f"v_lshl_add_u32 v29, v29, 8, s{S_T}"); e("v_lshl_add_u32 v29, v0, 2, v29")
    g.vm(f"buffer_load_dword v28, v29, {sr(S_DBG)}, 0 offen offset:{C_RDY} sc1", "rdyl")
    e(f"v_lshrrev_b32 v1, 1, v{V_H16}")
    for a in range(2):
        for q in range(4):
            g.vm(f"buffer_load_dwordx2 {vr(BT+8*a+2*q,2)}, v1, {sr(S_B1)}, s{S_SB} offen offset:{64*a+16*q}", "bias")
    e(RET)
    g.lab("L_pe1")
    e(f"s_mul_i32 s{S_L}, s{S_WP}, 94"); e(f"s_lshr_b32 s{S_L}, s{S_L}, 10")
    e(f"s_mul_i32 s{S_T}, s{S_L}, 11"); e(f"s_sub_u32 s{S_FR}, s{S_WP}, s{S_T}"); e(f"s_lshl_b32 s{S_FR}, s{S_FR}, 2"); e(f"s_add_u32 s{S_FR}, s{S_FR}, s{S_J}")
    e(f"s_add_u32 s{S_L}, s{S_L}, 2")
    e(f"s_mul_i32 s{S_E2}, s{S_L}, {LB}")
    e(f"s_add_u32 s{S_LC+2}, s{S_E2}, {LB}")
    e("v_lshlrev_b32 v1, 4, v0")
    e(f"s_mul_i32 s{S_T}, s{S_J}, 9216"); e(f"s_add_u32 s{S_T}, s{S_T}, s{S_E2}")
    for i in range(9):
        if i % 4 == 0 and i: e(f"s_add_u32 s{S_T}, s{S_T}, 4096")
        e(f"buffer_load_dwordx4 {vr(SCN+4*i,4)}, v1, {sr(S_LC)}, s{S_T} offen offset:{(i%4)*1024}")
    e(f"s_cmp_ge_u32 s{S_WP}, 22"); e("s_cbranch_scc1 L_ret")
    e(f"s_lshl_b32 s{S_T}, s{S_FR}, 4"); e(f"s_add_u32 s{S_T}, s{S_T}, s{S_E2}")
    e(f"buffer_load_dwordx4 {vr(FR,4)}, v243, {sr(S_LC)}, s{S_T} offen")
    e(f"v_lshlrev_b32 v1, 1, v{V_HROW}"); e(f"s_mul_i32 s{S_T}, s{S_L}, 52")
    e(f"buffer_load_ushort v{WV}, v1, {sr(S_WO)}, s{S_T} offen")
    e(f"buffer_load_ushort v{WP}, v1, {sr(S_WO)}, 52 offen")
    e("v_lshrrev_b32 v3, 5, v0"); e("v_mul_u32_u24 v3, 26, v3")
    for i in range(8):
        e(f"s_lshl_b32 s{S_T}, s{S_FR}, 3"); e(f"s_sub_u32 s{S_T}, s{S_T}, {8*42 + 2 - i}")
        e(f"s_lshl_b32 s{S_T+1}, s{S_T}, 1"); e(f"s_add_u32 s{S_T+1}, s{S_T+1}, 52")
        e(f"s_cmp_lt_u32 s{S_T}, 13"); e(f"s_cselect_b32 s{S_T+1}, s{S_T+1}, {OOB}")
        e(f"v_add_u32 v2, s{S_T+1}, v3")
        e(f"buffer_load_ushort v{W1V+i}, v2, {sr(S_WO)}, 0 offen")
    g.lab("L_ret")
    e(RET)
def prod_early2(g):
    e = g.e
    g.lab("L_pe2")
    e("s_waitcnt vmcnt(15)")
    e(f"v_mov_b32 v{V_CNT}, {M_CNT}")
    for i in range(36): e(f"v_and_b32 v{SCN+i}, s{S_MASK}, v{SCN+i}")
    pkmax(g, [SCN + i for i in range(36)])
    put_max(g, M_SC)
    arrive(g, "SCM"); lwait(g, "SCM")
    get_max(g, M_SC)
    e(f"v_readfirstlane_b32 s{S_E0}, v1")
    e(f"s_bfe_u32 s{S_E0}, s{S_E0}, 0x80007")
    e(f"s_cmp_ge_u32 s{S_WP}, 22"); e("s_cbranch_scc1 L_ret")
    g.lab("L_gjob")
    e(f"s_min_u32 s{S_T+2}, s{S_E0}, 249"); e(f"s_sub_u32 s{S_T+3}, {127+124}, s{S_T+2}"); e(f"s_lshl_b32 s{S_T+3}, s{S_T+3}, 23")
    e(f"s_cmp_lt_u32 s{S_FR}, 42"); e(f"s_cselect_b32 s{S_T+1}, -1, 0")
    for i in range(1, 4): e(f"v_and_b32 v{FR+i}, s{S_T+1}, v{FR+i}")
    e(f"s_cmp_lt_u32 s{S_FR}, 43"); e(f"s_cselect_b32 s{S_T+1}, -1, 0"); e(f"v_and_b32 v{FR}, s{S_T+1}, v{FR}")
    for i in range(4): e(f"v_alignbit_b32 v{FR+i}, v{FR+i}, v{FR+i}, v{V_H16}")
    for i in range(4):
        e(f"v_lshlrev_b32 v{SCN+2*i}, 16, v{FR+i}"); e(f"v_and_b32 v{SCN+2*i+1}, 0xffff0000, v{FR+i}")
    for i in range(8): e(f"v_mul_f32 v{SCN+i}, s{S_T+3}, v{SCN+i}")
    for i in range(4): e(f"v_cvt_pk_f16_f32 v{FR+i}, v{SCN+2*i}, v{SCN+2*i+1}")
    e(f"v_lshlrev_b32 v{WV}, 16, v{WV}")
    e(f"v_and_b32 v1, 0x7fffffff, v{WV}")
    wavemax_exp(g, 1, S_E1)
    e(f"s_sub_u32 s{S_E1}, s{S_E1}, 13"); e(f"s_sub_u32 s{S_T}, 0, s{S_E1}")
    e(f"v_ldexp_f32 v{WV}, v{WV}, s{S_T}")
    for i in range(8): e(f"v_mul_f32 v{SCN+i}, v{SCN+i}, v{WV}")
    for sh in (1, 2, 4, 8):
        for i in range(8): e(f"v_add_f32_dpp v{SCN+i}, v{SCN+i}, v{SCN+i} row_shr:{sh} {DPPALL} bound_ctrl:0")
    for i in range(8): e(f"v_add_f32_dpp v{SCN+i}, v{SCN+i}, v{SCN+i} row_bcast:15 row_mask:0xa bank_mask:0xf")
    for i in range(4): e(f"v_cvt_pk_f16_f32 v{SCN+2*i}, v{SCN+2*i}, v{SCN+2*i+1}")
    e("v_and_b32 v2, 31, v0"); e("v_cmp_eq_u32 vcc, 31, v2")
    for i in range(4): e(f"v_cndmask_b32 v{FR+i}, v{FR+i}, v{SCN+2*i}, vcc")
    e(f"v_lshlrev_b32 v1, 16, v{WP}"); e("v_and_b32 v1, 0x7fffffff, v1")
    wavemax_exp(g, 1, S_E4)
    e(f"s_sub_u32 s{S_T}, 15, s{S_E4}")
    for i in range(8): e(f"v_lshlrev_b32 v{W1V+i}, 16, v{W1V+i}")
    for i in range(8): e(f"v_ldexp_f32 v{W1V+i}, v{W1V+i}, s{S_T}")
    for i in range(4): e(f"v_cvt_pk_f16_f32 v{W1V+2*i}, v{W1V+2*i}, v{W1V+2*i+1}")
    e("v_cmp_eq_u32 vcc, 30, v2")
    for i in range(4): e(f"v_cndmask_b32 v{FR+i}, v{FR+i}, v{W1V+2*i}, vcc")
    e(f"s_cmp_lg_u32 s{S_FR}, 0"); e("s_cbranch_scc1 L_nohdr")
    e(f"s_sub_u32 s{S_T+2}, s{S_T+2}, 124"); e(f"s_add_u32 s{S_E1}, s{S_E1}, s{S_T+2}"); e(f"s_sub_u32 s{S_E4}, s{S_E4}, 15")
    e(f"v_writelane_b32 v{FR}, s{S_T+2}, 29"); e(f"v_writelane_b32 v{FR+1}, s{S_E1}, 29"); e(f"v_writelane_b32 v{FR+2}, s{S_E4}, 29")
    g.lab("L_nohdr")
    e(f"s_mul_i32 s{S_T}, s{S_L}, {44*1024}"); e(f"s_lshl_b32 s{S_T+1}, s{S_FR}, 10"); e(f"s_add_u32 s{S_T}, s{S_T}, s{S_T+1}")
    e(f"s_sub_u32 s{S_T}, s{S_T}, {88*1024 - IMG['L2']}")
    e("v_lshlrev_b32 v1, 4, v0")
    e(f"buffer_store_dwordx4 {vr(FR,4)}, v1, {sr(S_WS)}, s{S_T} offen sc1")
    e("s_nop 0")
    e(RET)
def helper_prod(g):
    e = g.e
    e(f"s_cmp_ge_u32 s{S_WP}, 31"); e("s_cbranch_scc1 L_idle")
    e(f"s_cmp_ge_u32 s{S_WP}, 22"); e("s_cbranch_scc1 L_nog")
    e("s_branch L_idle")
    g.lab("L_nog")
    lwait(g, "RB", 8)
    e("v_and_b32 v2, 31, v0"); e("v_lshrrev_b32 v3, 5, v0")
    e("v_mul_u32_u24 v1, 676, v3"); e("v_add_lshl_u32 v1, v1, v2, 1")
    e(f"s_mul_i32 s{S_T}, s{S_FR}, 52"); e(f"s_add_u32 s{S_T}, s{S_T}, {4*LB}")
    for s in range(13):
        e(f"buffer_load_ushort v{W1V+s}, v1, {sr(S_LC)}, s{S_T} offen")
        e(f"s_add_u32 s{S_T}, s{S_T}, 2704")
    e(f"s_cmp_eq_u32 s{S_WP}, 29"); e(f"s_cselect_b32 s{S_LW}, 4, 5"); e(f"s_cmp_eq_u32 s{S_WP}, 30"); e(f"s_cselect_b32 s{S_LW}, 0, s{S_LW}")
    e(f"s_mul_i32 s{S_E2}, s{S_LW}, {LB}"); e(f"s_add_u32 s{S_LC+2}, s{S_E2}, {LB}")
    e("v_lshlrev_b32 v1, 1, v0"); e("v_cmp_lt_u32 vcc, 25, v0"); e(f"v_mov_b32 v2, {OOB}"); e("v_cndmask_b32 v1, v1, v2, vcc")
    e(f"s_mul_i32 s{S_T}, s{S_LW}, 52")
    e(f"buffer_load_ushort v{WV}, v1, {sr(S_WO)}, s{S_T} offen")
    e("v_lshlrev_b32 v1, 4, v0")
    e(f"s_mul_i32 s{S_T}, s{S_J}, 1352"); e(f"s_add_u32 s{S_T}, s{S_T}, s{S_E2}")
    for t in range(7):
        for ps in range(2):
            e(f"buffer_load_dwordx4 {vr(RW+8*t+4*ps,4)}, v1, {sr(S_LC)}, s{S_T} offen offset:{1024*ps}")
        e(f"s_add_u32 s{S_T}, s{S_T}, {4*1352}")
    e("s_waitcnt vmcnt(0)")
    AC = HX; TU = HX + 16
    for t in range(6): e(f"v_lshl_or_b32 v{QAR(t)}, v{W1V+2*t+1}, 16, v{W1V+2*t}")
    e(f"v_mov_b32 v{QAR(6)}, v{W1V+12}"); e(f"v_mov_b32 v{QAR(7)}, 0")
    g.stamp("q")
    e(f"v_lshlrev_b32 v{WV}, 16, v{WV}"); e(f"v_and_b32 v1, 0x7fffffff, v{WV}")
    wavemax_exp(g, 1, S_E1)
    e(f"s_sub_u32 s{S_T}, 0, s{S_E1}"); e(f"v_ldexp_f32 v{WV}, v{WV}, s{S_T}")
    for i in range(16): e(f"v_mov_b32 v{AC+i}, 0")
    for t in range(7):
        e(f"s_add_u32 s{S_T}, s{S_J}, {4*t}")
        e(f"v_readlane_b32 s{S_T+1}, v{WV}, s{S_T}")
        for i in range(8):
            e(f"v_lshlrev_b32 v{TU+2*i}, 16, v{RW+8*t+i}"); e(f"v_and_b32 v{TU+2*i+1}, 0xffff0000, v{RW+8*t+i}")
        for i in range(16): e(f"v_fmac_f32 v{AC+i}, s{S_T+1}, v{TU+i}")
    PSTR = 4096
    e(f"s_mul_i32 s{S_T}, s{S_J}, {PSTR}"); e(f"s_add_u32 s{S_T}, s{S_T}, {D0}")
    e(f"v_lshl_add_u32 v1, v0, 5, s{S_T}")
    for ps in range(2):
        for hf in range(2): e(f"ds_write_b128 v1, {vr(AC+8*ps+4*hf,4)} offset:{2048*ps+16*hf}")
    g.stamp("q"); arrive(g, "WC"); lwait(g, "WC"); g.stamp("q")
    e(f"s_cmp_eq_u32 s{S_FR}, 28"); e("s_cbranch_scc1 L_lin")
    e(f"s_cmp_lt_u32 s{S_FR}, 26"); e("s_cbranch_scc1 L_q")
    e(f"s_cmp_lg_u32 s{S_FR}, 32"); e("s_cbranch_scc1 L_noq")
    g.lab("L_q")
    BQ, PT, DQ = HX + 16, HX + 32, HX + 96
    e("v_and_b32 v2, 31, v0"); e("v_lshrrev_b32 v3, 5, v0")
    e("v_mad_u32_u24 v1, v3, 26, v2"); e("v_lshlrev_b32 v1, 2, v1"); e(f"v_add_u32 v1, {D0}, v1")
    def readsum(stride):
        for pj in range(4):
            for s in range(13): e(f"ds_read_b32 v{PT+13*pj+s}, v1 offset:{PSTR*pj + stride*s}")
            if pj: e("s_waitcnt lgkmcnt(13)")
        e("s_waitcnt lgkmcnt(0)")
        for s in range(13):
            e(f"v_add_f32 v{PT+s}, v{PT+s}, v{PT+13+s}"); e(f"v_add_f32 v{PT+26+s}, v{PT+26+s}, v{PT+39+s}")
        for s in range(13): e(f"v_add_f32 v{BQ+s}, v{PT+s}, v{PT+26+s}")
    def max13():
        e(f"v_max3_f32 v1, |v{BQ}|, |v{BQ+1}|, |v{BQ+2}|")
        for s in range(3, 13, 2): e(f"v_max3_f32 v1, v1, |v{BQ+s}|, |v{BQ+s+1}|")
    readsum(208)
    e("v_cmp_gt_u32 vcc, 26, v2")
    for s in range(13): e(f"v_cndmask_b32 v{BQ+s}, 0, v{BQ+s}, vcc")
    max13()
    wavemax_exp(g, 1, S_E2)
    e(f"s_sub_u32 s{S_T}, 0, s{S_E2}")
    for s in range(13): e(f"v_ldexp_f32 v{BQ+s}, v{BQ+s}, s{S_T}")
    e(f"s_max_u32 s{S_E0}, s{S_E0}, 10"); e(f"s_sub_u32 s{S_E0}, s{S_E0}, 126")
    BH, BL = PT, PT + 8
    e(f"v_mov_b32 v{BQ+13}, 0"); e(f"v_mov_b32 v{BH+7}, 0"); e(f"v_mov_b32 v{BL+7}, 0")
    for t in range(7): e(f"v_cvt_pk_bf16_f32 v{BH+t}, v{BQ+2*t}, v{BQ+2*t+1}")
    for t in range(7):
        e(f"v_lshlrev_b32 v{PT+16+2*t}, 16, v{BH+t}"); e(f"v_and_b32 v{PT+17+2*t}, 0xffff0000, v{BH+t}")
    for t in range(14): e(f"v_sub_f32 v{BQ+t}, v{BQ+t}, v{PT+16+t}")
    for t in range(7): e(f"v_cvt_pk_bf16_f32 v{BL+t}, v{BQ+2*t}, v{BQ+2*t+1}")
    e(f"s_cmp_ge_u32 s{S_FR}, 13"); e(f"s_cselect_b32 s{S_T+1}, 13, 0"); e(f"s_cselect_b32 s{S_T+2}, 4, 0")
    e(f"s_sub_u32 s{S_T+1}, s{S_FR}, s{S_T+1}"); e(f"s_and_b32 s{S_T+3}, s{S_T+1}, 3"); e(f"s_add_u32 s{S_T+2}, s{S_T+2}, s{S_T+3}")
    e(f"s_lshr_b32 s{S_T+1}, s{S_T+1}, 2"); e(f"s_lshl_b32 s{S_T+1}, s{S_T+1}, 3"); e(f"s_add_u32 s{S_SB}, s{S_T+2}, s{S_T+1}")
    e(f"s_mov_b32 s{S_L}, 0")
    e(f"s_cmp_lg_u32 s{S_FR}, 32"); e("s_cbranch_scc1 L_q2")
    e("v_sub_u32 v1, v2, v3")
    for s in range(13):
        e(f"v_cmp_eq_u32 vcc, {2*s}, v1"); e(f"v_cndmask_b32 v{AQ+s}, 0, 1.0, vcc")
    e(f"v_mov_b32 v{AQ+13}, 0")
    for t in range(7): e(f"v_cvt_pk_bf16_f32 v{QAR(t)}, v{AQ+2*t}, v{AQ+2*t+1}")
    e(f"s_mov_b32 s{S_E0}, 0"); e(f"s_mov_b32 s{S_SB}, 31"); e(f"s_mov_b32 s{S_L}, 8")
    g.lab("L_q2")
    g.stamp("q")
    e("s_nop 1")
    first = True
    for bb in (BL, BH):
        for ks in range(2):
            e(f"v_mfma_f32_32x32x16_bf16 {vr(DQ,16)}, {vr(QAR(4*ks),4)}, {vr(bb+4*ks,4)}, {'0' if first else vr(DQ,16)}"); first = False
            e(f"v_mfma_f32_32x32x16_bf16 {vr(DQ,16)}, {vr(bb+4*ks,4)}, {vr(QAR(4*ks),4)}, {vr(DQ,16)}")
    e(f"v_max_f32 v1, v{QS}, v{QS+1}")
    e(f"s_sub_u32 s{S_T}, 137, s{S_E0}"); e(f"s_lshl_b32 s{S_T}, s{S_T}, 23"); e(f"v_mov_b32 v30, s{S_T}"); e("v_mul_f32 v31, 0.5, v30")
    for t in range(7):
        e(f"v_cmp_eq_f32 vcc, v1, v{QS+t}"); e(f"v_cndmask_b32 v{QS+t}, v31, v30, vcc")
    e(f"s_cmp_eq_u32 s{S_J}, 1"); e(f"s_cselect_b32 s{S_T}, 48, 0"); e(f"s_sub_u32 s{S_T}, {D1 - BUFA}, s{S_T}")
    for t in range(7): e(f"v_add_u32 v{QA+t}, s{S_T}, v{QA+t}")
    e(f"v_mul_u32_u24 v1, {S0STR}, v2"); e("v_lshl_add_u32 v1, v3, 9, v1"); e(f"s_lshl_b32 s{S_T}, s{S_J}, 4"); e(f"s_add_u32 s{S_T}, s{S_T}, {D1}")
    e(f"v_min_u32 v1, {22*S0STR+512}, v1")
    e(f"v_add_u32 v1, s{S_T}, v1")
    e(f"v_lshl_add_u32 v28, v3, 9, s{S_T}"); e("v_mov_b32 v29, 0")
    e(f"ds_write_b32 v28, v29 offset:{22*S0STR+12}")
    pack_round(g, DQ, 0, False)
    g.stamp("q")
    e("s_waitcnt lgkmcnt(0)")
    e(f"ds_read_b128 {vr(AQ,4)}, v1")
    e("v_lshlrev_b32 v1, 10, v2"); e("v_lshl_add_u32 v1, v3, 9, v1"); e("v_cmp_lt_u32 vcc, 22, v2"); e(f"v_mov_b32 v28, {OOB}"); e("v_cndmask_b32 v1, v1, v28, vcc")
    e(f"s_lshl_b32 s{S_T}, s{S_SB}, 4"); e(f"s_add_u32 s{S_T}, s{S_T}, {IMG['Q4']}")
    e("s_waitcnt lgkmcnt(0)")
    e(f"buffer_store_dwordx4 {vr(AQ,4)}, v1, {sr(S_WS)}, s{S_T} offen sc1")
    e(f"s_add_u32 s{S_E0}, s{S_E0}, s{S_E2}"); e(f"s_add_u32 s{S_E0}, s{S_E0}, s{S_E1}"); e(f"s_sub_u32 s{S_E0}, s{S_E0}, 10")
    e(f"s_and_b32 s{S_T}, s{S_FR}, 31"); e(f"s_cmp_lg_u32 s{S_T}, 0"); e("s_cbranch_scc1 L_noq")
    g.lab("L_qh")
    e(f"v_mov_b32 v1, s{S_E0}"); e(f"s_add_u32 s{S_T}, s{S_L}, {IMG['Q4'] + 23*1024}")
    e(f"buffer_store_dword v1, v{V_L0}, {sr(S_WS)}, s{S_T} offen sc1")
    e("s_branch L_noq")
    g.lab("L_lin")
    e("v_lshrrev_b32 v3, 5, v0"); e(f"v_min_u32 v2, 25, v{V_HROW}")
    e("v_mad_u32_u24 v1, v2, 26, v3"); e("v_lshlrev_b32 v1, 2, v1"); e(f"v_add_u32 v1, {D0}, v1")
    readsum(8)
    e(f"v_cmp_gt_u32 vcc, 26, v{V_HROW}")
    for s in range(13): e(f"v_cndmask_b32 v{BQ+s}, 0, v{BQ+s}, vcc")
    max13()
    wavemax_exp(g, 1, S_E2)
    e(f"s_sub_u32 s{S_T}, 15, s{S_E2}")
    for s in range(13): e(f"v_ldexp_f32 v{BQ+s}, v{BQ+s}, s{S_T}")
    e(f"v_mov_b32 v{BQ+13}, 0"); e(f"v_mov_b32 v{AQ+7}, 0")
    for t in range(7): e(f"v_cvt_pk_f16_f32 v{AQ+t}, v{BQ+2*t}, v{BQ+2*t+1}")
    e("v_lshlrev_b32 v1, 4, v0"); e(f"s_mov_b32 s{S_T}, {IMG['Q4'] + 24*1024}")
    for s in range(2): e(f"buffer_store_dwordx4 {vr(AQ+4*s,4)}, v1, {sr(S_WS)}, s{S_T} offen offset:{1024*s} sc1")
    e(f"s_add_u32 s{S_E0}, s{S_E2}, s{S_E1}"); e(f"s_sub_u32 s{S_E0}, s{S_E0}, 15"); e(f"s_mov_b32 s{S_L}, 4")
    e("s_branch L_qh")
    g.lab("L_noq")
    g.stamp("q")
    e(f"s_mov_b32 s{S_T+2}, {WS_CNT + C_Q}")
    gsignal(g, "QST", f"s{S_T+2}")
    g.stamp("q")
    lwait(g, "QST")
    g.lab("L_idle")
    g.stamp()
    lwait(g, "AFREE")
    poll1(g, [(S_DBG, "0", 128, 11)], "F2")
    dma_img(g, "L2", 44, BUFA)
    e("s_waitcnt vmcnt(0)"); arrive(g, "L2OK")
    g.stamp()
    lwait(g, "L2OK")
    if PAR.l3late:
        e(f"s_sub_u32 s{S_T}, s{S_WP}, 11"); e(f"s_cmp_ge_u32 s{S_T}, 11"); e("s_cbranch_scc1 L_nol3")
        e(f"s_mov_b32 s{S_T+2}, {WS_CNT + C_L[3]}")
        gsignal(g, None, f"s{S_T+2}")
        g.lab("L_nol3")
    poll1(g, [(S_WS, f"s{S_CX}", C_Q, 9), CHK_X()], "FQ")
    dma_img(g, "Q4", 28, D0)
    e("s_waitcnt vmcnt(0)"); arrive(g, "QOK")
    g.stamp()
    lwait(g, "BFREE")
    poll1(g, [(S_WS, f"s{S_CX}", C_L[3], 11)], "F3")
    dma_img(g, "L3", 44, BUFB)
    e("s_waitcnt vmcnt(0)"); arrive(g, "L3OK")
    g.stamp()
    g.flush_stamps(4, 5)
    e("s_endpgm")

def build(stamps=False):
    g = G(stamps)
    prologue(g); n0 = g.nst
    cin(g)
    g.lab("L_helper"); g.nst = n0
    helper_common(g); n1 = g.nst
    g.e(f"s_cmp_ge_u32 s{S_R}, 13"); g.e("s_cbranch_scc1 L_helper_n")
    helper_dnn(g)
    g.lab("L_helper_n"); g.nst = n1
    helper_prod(g)
    prod_early1(g); prod_early2(g)
    g.L += g.tail
    g.lab("L_end"); g.e("s_endpgm")
    body, nops = fix_hazards(g.L)
    ref = open("standalone__deep_cross_xdeepfm__recsys.s.ref").read().split("\n")
    hdr = [l for l in ref if l.startswith(";") and "@launch" not in l and "Override" not in l and "grid=ceil" not in l]
    txt = "\n".join(hdr) + f"\n; @launch grid=(256,1,1) block=(512,1,1) lds={LDS_TOTAL}\n"
    txt += f'.amdgcn_target "amdgcn-amd-amdhsa--gfx950"\n.text\n.globl {KN}\n.p2align 8\n.type {KN},@function\n{KN}:\n'
    txt += "\n".join(body) + "\n"
    txt += f""".section .rodata,"a"
.p2align 6
.amdhsa_kernel {KN}
  .amdhsa_next_free_vgpr 256
  .amdhsa_next_free_sgpr 102
  .amdhsa_accum_offset 256
  .amdhsa_group_segment_fixed_size 0
  .amdhsa_kernarg_size 88
  .amdhsa_user_sgpr_count 2
  .amdhsa_user_sgpr_kernarg_segment_ptr 1
  .amdhsa_system_sgpr_workgroup_id_x 1
.end_amdhsa_kernel
"""
    return txt, nops
if __name__ == "__main__":
    for a in sys.argv[2:]:
        if "=" in a:
            k, v = a.split("="); setattr(PAR, k, eval(v))
    txt, nops = build(stamps="stamps" in sys.argv)
    open(sys.argv[1], "w").write(txt)
    print("nops inserted", nops, "lines", txt.count("\n"))
```

```python
import sys, struct
from asmlib import fix_hazards
KN = "standalone__deep_cross_xdeepfm__recsys_kernel"
def f2u(f): return struct.unpack('<I', struct.pack('<f', f))[0]
OOB = 0x40000000
SPIN = 200000
LB = 35152
IMG = {}
off = 0
for name, n in (("L2", 44), ("L3", 44), ("Q4", 28)):
    IMG[name] = off; off += n * 1024
WS_PART = off
WS_CNT = WS_PART + 16 * 13 * 1024
WS_STAMP = WS_CNT + 16 * 8192
WS_X = WS_STAMP + 256 * 8 * 64
C_L = {2: 4, 3: 8}; C_Q = 12; C_RDY = 0
BUFA, BUFB = 0, 45056
D0, D1 = 90112, 118784
MISC = 147456
LDS_TOTAL = MISC + 2560
M_S0, M_L1, M_SC, M_EW1, M_CNT = MISC, MISC + 64, MISC + 128, MISC + 192, MISC + 256
CNT = {n: M_CNT + 4 * i for i, n in enumerate(["XST", "L1M", "L1OK", "AFREE", "L2OK", "BFREE", "L3OK", "QOK", "W01", "C0", "C1", "C2", "SCM", "GST", "WC", "QST", "FX", "F2", "F3", "FQ", "S0OK", "S0M", "RAW", "RB"])}
CNT["AFREE"] = M_CNT + 4 * 28; CNT["BFREE"] = M_CNT + 4 * 29; CNT["RB"] = M_CNT + 4 * 30
S0STR = 1040
XSTR = 1680
QPAIRS = [(p, q) for p in range(13) for q in range(p, 13)]
S_IDX, S_TAB, S_WS, S_W1, S_B1, S_W2, S_OUT, S_DBG, S_BO, S_WC, S_WO = 4, 8, 12, 16, 20, 24, 28, 32, 36, 40, 44
S_G, S_R, S_WAVE, S_J = 70, 71, 83, 3
S_HDR = 48
S_EX = 60
S_K = 64
S_K1 = 4
S_KC = 76
S_T = 72
S_MASK = 80
S_C1 = 81
S_SB = 82
S_ST = 84
class P: pass
PAR = P()
PAR.chunks = [7, 7, 6, 6]
PAR.gsplit = 0
PAR.gsplit2 = 7
PAR.lnpos = 28
PAR.pload = 37
PAR.xst = 2
PAR.l2pos = -1
PAR.nslot = 8
PAR.st = 'ad'
PAR.ld = 'sc1'
PAR.inv = 0
PAR.qaearly = 0
PAR.gmod = 'nt'
PAR.imod = 'nt'
PAR.pkpack = 0
PAR.w0lin = 0
PAR.l3rate = 22
PAR.qarr = 3
PAR.gearly = 11
PAR.ngelu = 16
PAR.nmf = 4
PAR.npk = 4
PAR.lslp = 4
PAR.zpad = 1
PAR.skew = 1
PAR.cstr = 4352
PAR.l3late = 1
PAR.xp = 3
PAR.wearly = 2
PAR.wpf2 = 0
PAR.ghi = 5
PAR.qchk = 6
PAR.cp = 1
PAR.enc = None
PAR.rate = 20
PAR.qrate = 32
PAR.clk = 0
PAR.hp = 0
PAR.nost = 0
PAR.wpf = 1
PAR.rot = 2
PAR.pf = 4
PAR.qlate = 0
PAR.slp = 8
PAR.de = 2
PAR.touch = 0
PAR.dbg = None
class G:
    def __init__(self, stamps=False):
        self.L = []; self.stamps = stamps; self.nst = 0; self.nl = 0; self.vmq = []; self.tail = []
    def e(self, s): self.L.append("    " + s)
    def lab(self, s): self.L.append(s + ":")
    def vm(self, s, tag): self.e(s); self.vmq.append(tag)
    def vmwait(self, *tags):
        idx = max(i for i, t in enumerate(self.vmq) if t in tags)
        n = len(self.vmq) - 1 - idx
        self.e(f"s_waitcnt vmcnt({min(n, 63)})")
    def newlab(self, s): self.nl += 1; return f"L_{s}_{self.nl}"
    def stamp(self, name=None):
        if self.stamps and (name or "d") in PAR.st:
            assert self.nst < 8
            self.e(f"{'s_memtime' if PAR.clk else 's_memrealtime'} s[{S_ST+2*self.nst}:{S_ST+2*self.nst+1}]"); self.nst += 1
    def flush_stamps(self, vt, va):
        if not self.stamps: return
        self.e("s_waitcnt lgkmcnt(0)")
        self.e(f"s_lshl_b32 s{S_T}, s2, 3"); self.e(f"s_add_u32 s{S_T}, s{S_T}, s{S_WAVE}"); self.e(f"s_lshl_b32 s{S_T}, s{S_T}, 6")
        self.e(f"s_add_u32 s{S_T}, s{S_T}, {WS_STAMP}")
        self.e(f"v_mov_b32 v{va}, 0")
        if PAR.dbg is not None:
            lb = self.newlab("nd")
            self.e(f"s_cmp_lg_u32 s{S_T}, {WS_STAMP + PAR.dbg*64}"); self.e(f"s_cbranch_scc1 {lb}")
            for i in range(self.nst):
                self.e(f"s_sub_u32 s{S_T+1}, s{S_ST+2*i}, s{S_ST}")
                self.e(f"v_mov_b32 v{vt}, s{S_T+1}")
                self.e(f"buffer_store_dword v{vt}, v{va}, s[{S_DBG}:{S_DBG+3}], 0 offen offset:{64+4*i}")
            self.lab(lb)
        for i in range(self.nst):
            self.e(f"v_mov_b32 v{vt}, s{S_ST+2*i}")
            self.e(f"buffer_store_dword v{vt}, v{va}, s[{S_WS}:{S_WS+3}], s{S_T} offen offset:{4*i}")
        self.nst = 0
def vr(a, n): return f"v[{a}:{a+n-1}]"
def sr(a, n=4): return f"s[{a}:{a+n-1}]"
DPPALL = "row_mask:0xf bank_mask:0xf"

def prologue(g):
    e = g.e
    e("s_cmp_ge_u32 s2, 256")
    e("s_cbranch_scc1 L_end")
    g.stamp("a")
    e("s_load_dwordx16 s[48:63], s[0:1], 0")
    e("s_load_dwordx4 s[64:67], s[0:1], 64")
    e("s_load_dwordx2 s[68:69], s[0:1], 80")
    if PAR.pf:
        e(f"s_getpc_b64 s[{S_KC}:{S_KC+1}]")
        g.lab("L_pfbase")
        e(f"s_mov_b32 s{S_KC+2}, L_end - L_pfbase"); e(f"s_mov_b32 s{S_KC+3}, 0x00020000")
        e(f"s_lshr_b32 s{S_T}, s2, 3"); e(f"s_lshl_b32 s{S_T}, s{S_T}, 7")
        e("v_xor_b32 v1, 0x1c0, v0"); e("v_lshlrev_b32 v1, 12, v1")
        e(f"buffer_load_dword v255, v1, {sr(S_KC)}, s{S_T} offen")
    e("v_lshrrev_b32 v1, 6, v0")
    e("v_and_b32 v0, 63, v0")
    e(f"v_readfirstlane_b32 s{S_WAVE}, v1")
    e(f"s_and_b32 s{S_T}, s2, 7")
    e(f"s_lshr_b32 s{S_T+1}, s2, 3")
    e(f"s_lshr_b32 s{S_G}, s{S_T+1}, 4")
    e(f"s_lshl_b32 s{S_T}, s{S_T}, 1")
    e(f"s_add_u32 s{S_G}, s{S_G}, s{S_T}")
    e(f"s_and_b32 s{S_R}, s{S_T+1}, 15")
    e(f"s_mov_b32 s{S_MASK}, 0x7fff7fff")
    e("v_and_b32 v25, 31, v0"); e("v_lshlrev_b32 v25, 2, v25"); e(f"v_add_u32 v25, {M_CNT}, v25"); e("v_mov_b32 v2, 0")
    e("ds_write_b32 v25, v2")
    e(f"s_cmp_ge_u32 s{S_WAVE}, 4")
    e("s_cbranch_scc1 L_helper")

SRDS = {S_IDX: (48, 4096*104), S_TAB: (50, 6400000), S_WC: (52, LB), S_WO: (54, 312), S_W1: (56, 832*1664), S_B1: (58, 1664), S_W2: (60, 1664),
        S_BO: (62, 2), S_OUT: (64, 8192), S_DBG: (66, 256), S_WS: (68, 1 << 28)}
def srd_const(g, lst):
    for srd in lst: g.e(f"s_mov_b32 s{srd+2}, {SRDS[srd][1]}"); g.e(f"s_mov_b32 s{srd+3}, 0x00020000")
def srd_base(g, lst):
    for srd in lst: g.e(f"s_mov_b64 s[{srd}:{srd+1}], s[{SRDS[srd][0]}:{SRDS[srd][0]+1}]")
ACC, ACC2, XR, UR, BR, AR, SC, LG, TM = 4, 68, 132, 188, 216, 232, 244, 248, 252
def X(k, p): return XR + 14 * k + p
def EV(k): return XR + 14 * k + 13
def U(k, t): return UR + 7 * k + t
def cin(g):
    e = g.e
    e("s_setprio 1")
    e(f"s_lshl_b32 s{S_T}, s{S_G}, 8"); e(f"s_lshl_b32 s{S_T+1}, s{S_R}, 4"); e(f"s_add_u32 s{S_T}, s{S_T}, s{S_T+1}")
    e(f"s_lshl_b32 s{S_T+1}, s{S_WAVE}, 2"); e(f"s_add_u32 s{S_SB}, s{S_T}, s{S_T+1}")
    e("v_lshrrev_b32 v1, 4, v0")
    e("v_bfe_u32 v2, v0, 2, 2")
    e("v_and_b32 v3, 3, v0")
    e("v_mul_u32_u24 v4, 104, v1")
    e("v_mad_u32_u24 v4, v2, 28, v4")
    I = 8
    CS = [S_IDX, S_WC, S_TAB, S_WS, S_BO, S_OUT] + ([S_DBG] if PAR.dbg is not None else [])
    srd_const(g, CS)
    e(f"s_mov_b32 s{S_WC+2}, {2*LB}"); e(f"s_mov_b32 s{S_J}, s{S_WAVE}")
    e("v_lshlrev_b32 v5, 4, v3")
    e("v_cmp_eq_u32 vcc, 3, v2")
    e(f"v_mov_b32 v6, {OOB}")
    e("v_cndmask_b32 v6, 0, v6, vcc")
    e("v_add_u32 v6, v6, v5")
    e("v_lshlrev_b32 v26, 4, v0"); e("v_cmp_lt_u32 vcc, 42, v0"); e(f"v_mov_b32 v27, {OOB}"); e("v_cndmask_b32 v26, v26, v27, vcc")
    e("v_lshlrev_b32 v29, 4, v0"); e(f"v_add_u32 v29, {BUFA + 28*1024}, v29")
    e(f"s_lshl_b32 s{S_T}, s{S_J}, 4"); e(f"s_add_u32 s{S_T}, s{S_T}, {BUFB}")
    e(f"v_mul_u32_u24 v28, {S0STR}, v0"); e(f"v_add_u32 v28, s{S_T}, v28"); e("v_cndmask_b32 v28, v28, v29, vcc")
    e(f"s_mul_i32 s{S_T+1}, s{S_WAVE}, {4*XSTR}"); e(f"s_add_u32 s{S_T+1}, s{S_T+1}, {D0}")
    e(f"v_mul_u32_u24 v7, {XSTR}, v1")
    e("v_mad_u32_u24 v16, v2, 7, 0")
    e("v_lshl_add_u32 v7, v16, 6, v7")
    e(f"v_add3_u32 v7, v7, v5, s{S_T+1}")
    e("v_cmp_eq_u32 vcc, 3, v2")
    e(f"v_lshl_add_u32 v18, v0, 4, 0"); e(f"v_add_u32 v18, {D0 + 16*XSTR + 256 - 320}, v18"); e("v_cndmask_b32 v18, v7, v18, vcc")
    e("v_lshrrev_b32 v16, 1, v1")
    e("v_xor_b32 v16, v16, v2")
    e("v_lshlrev_b32 v16, 6, v16")
    e("v_and_b32 v17, 1, v1")
    e("v_lshl_add_u32 v16, v17, 5, v16")
    e("v_lshl_add_u32 v16, v3, 3, v16")
    e(f"v_add_u32 v16, s{S_T+1}, v16")
    for k in range(4): e(f"v_mov_b32 v{LG+k}, 0")
    PA, PS, DR = 32, 40, 184
    if PAR.zpad:
        for i in range(4): e(f"v_mov_b32 v{PS+i}, 0")
        e(f"s_and_b32 s{S_T}, s{S_J}, 1"); e(f"s_mul_i32 s{S_T}, s{S_T}, 48"); e(f"s_lshr_b32 s{S_T+1}, s{S_J}, 1"); e(f"s_mul_i32 s{S_T+1}, s{S_T+1}, 480")
        e(f"s_add_u32 s{S_T}, s{S_T}, s{S_T+1}"); e(f"v_add_u32 v30, s{S_T}, v28")
        e(f"v_subrev_u32 v31, {BUFB - BUFA}, v30"); e("v_cmp_lt_u32 vcc, 22, v0"); e("v_cndmask_b32 v31, v31, v29, vcc")
        for i in range(3):
            e(f"ds_write_b128 v30, {vr(PS,4)} offset:{25*16 + 16*i}"); e(f"ds_write_b128 v31, {vr(PS,4)} offset:{25*16 + 16*i}")
    unpack_mat(g, PA, 20)
    e(f"s_mul_i32 s{S_T}, s{S_SB}, 104")
    e("s_waitcnt lgkmcnt(0)")
    srd_base(g, CS[:1])
    e(f"buffer_load_dwordx4 {vr(I,4)}, v4, {sr(S_IDX)}, s{S_T} offen {PAR.imod}")
    e(f"buffer_load_dwordx3 {vr(I+4,3)}, v4, {sr(S_IDX)}, s{S_T} offen offset:16 {PAR.imod}")
    srd_base(g, CS[1:])
    e("s_barrier")
    L1R = 132
    e(f"s_mul_i32 s{S_T}, s{S_J}, 1352")
    for i in range(13):
        if i < 12:
            t = i >> 1
            if i & 1 == 0: e(f"s_add_u32 s{S_T+1}, s{S_T}, {LB + (13*(t&1) + 4*(t>>1))*1352}")
            e(f"buffer_load_dwordx4 {vr(L1R+4*i,4)}, v26, {sr(S_WC)}, s{S_T+1} offen offset:{676*(i&1)}")
        else:
            e(f"s_lshr_b32 s{S_T+1}, s{S_J}, 1"); e(f"s_mul_i32 s{S_T+1}, s{S_T+1}, {13*1352}"); e(f"s_and_b32 s{S_T+2}, s{S_J}, 1"); e(f"s_mul_i32 s{S_T+2}, s{S_T+2}, 676")
            e(f"s_add_u32 s{S_T+1}, s{S_T+1}, s{S_T+2}"); e(f"s_add_u32 s{S_T+1}, s{S_T+1}, {LB + 12*1352}")
            e(f"buffer_load_dwordx4 {vr(L1R+4*i,4)}, v26, {sr(S_WC)}, s{S_T+1} offen")
    e("s_setprio 3")
    e("s_waitcnt vmcnt(13)")
    GR, MR = 68, 96
    for t in range(7):
        e(f"v_lshl_add_u32 v{I+t}, v{I+t}, 6, v{5 if t < 5 else 6}")
        e(f"buffer_load_dwordx4 {vr(GR+4*t,4)}, v{I+t}, {sr(S_TAB)}, 0 offen {PAR.gmod}")
    g.stamp()
    e(f"s_setprio {PAR.cp}")
    def carrive(c):
        e("v_mov_b32 v2, 1"); e("s_mov_b64 exec, 1"); e(f"ds_add_u32 v25, v2 offset:{CNT[c]-M_CNT}"); e("s_mov_b64 exec, -1")
    for i in range(13):
        e(f"s_waitcnt vmcnt({7 + 12 - i})")
        unpack(g, DR, PA, L1R, i)
        if i & 1 and i >= 3: tmax(g, DR, (i >> 1) - 1, 16, i == 3)
    e(f"s_and_b32 s{S_T}, s{S_J}, 1"); e(f"s_lshl_b32 s{S_T}, s{S_T}, 4")
    tmax(g, DR, 5, 16, False)
    for r in range(4): e(f"v_alignbit_b32 v{L1R+48+r}, v{L1R+48+r}, v{L1R+48+r}, s{S_T}")
    tmax(g, DR, 6, 8, False)
    put_max(g, M_L1)
    carrive("L1M")
    for i in range(8): e(f"v_and_b32 v{PS+i}, 0x800080, v{PA+i}")
    g.stamp("s")
    lwait(g, "L1M", 4, 25, 2)
    get_max(g, M_L1)
    e(f"v_readfirstlane_b32 s{S_T}, v1")
    e(f"s_lshr_b32 s{S_T}, s{S_T}, 23"); e(f"s_min_u32 s{S_T}, s{S_T}, 249"); e(f"s_sub_u32 s{S_HDR+2}, s{S_T}, 124")
    e(f"s_sub_u32 s{S_T}, {127+124}, s{S_T}")
    for i in range(8): e(f"v_mul_u32_u24 v{PS+i}, s{S_T}, v{PS+i}")
    def l1out(i):
        d = DR + 16 * ((i >> 1) & 3) + 8 * (i & 1)
        for r in range(4):
            lo, hi = (d + 2 * r + 1, d + 2 * r) if (i & 1) else (d + 2 * r, d + 2 * r + 1)
            e(f"v_cvt_pk_f16_f32 v{L1R+4*i+r}, v{lo}, v{hi}")
        if i < 12:
            t = i >> 1; o = 16 * (8 * (t >> 1) + 4 * (t & 1)) + 512 * (i & 1)
        else:
            e(f"s_lshr_b32 s{S_T}, s{S_J}, 1"); e(f"s_lshl_b32 s{S_T}, s{S_T}, 5"); e(f"s_and_b32 s{S_T+1}, s{S_J}, 1"); e(f"s_mul_i32 s{S_T+1}, s{S_T+1}, 496")
            e(f"s_add_u32 s{S_T}, s{S_T}, s{S_T+1}"); e(f"v_add_u32 v28, s{S_T}, v28"); o = 24 * 16
        e(f"ds_write_b128 v28, {vr(L1R+4*i,4)} offset:{o}")
    for i in range(13):
        unpack(g, DR, PS, L1R, i)
        if i >= 4: l1out(i - 4)
    for i in range(9, 13): l1out(i)
    g.stamp("s")
    e(f"ds_read_b32 v3, v25 offset:{CNT['S0OK']-M_CNT}")
    e("v_lshlrev_b32 v1, 4, v0")
    for i in range(2): e(f"ds_read_b128 {vr(AR+4*i,4)}, v1 offset:{BUFA + i*S0STR}")
    e("s_waitcnt lgkmcnt(2)")
    DR = 132
    e("v_mov_b32 v2, 1")
    e(f"s_setprio {PAR.xp}")
    for t in range(7):
        e(f"s_waitcnt vmcnt({6 - t})")
        unpack(g, DR, PA, GR, t)
        e(f"ds_write_b128 v{7 if t < 5 else 18}, {vr(GR+4*t,4)} offset:{64*t}")
        if t in (3, 5): tmax(g, DR, (t >> 1) - 1, 16, t == 3, 20)
    e("s_mov_b64 exec, 1"); e(f"ds_add_u32 v25, v2 offset:{CNT['RAW']-M_CNT}"); e("s_mov_b64 exec, -1")
    g.stamp(); g.stamp("s")
    tmax(g, DR, 2, 16, False, 20); tmax(g, DR, 3, 8, False, 20)
    for sh in (8, 4, 2, 1):
        e(f"v_max_u32_dpp v20, v20, v20 row_ror:{sh} {DPPALL}")
    e("v_lshrrev_b32 v20, 23, v20"); e("v_max_u32 v20, 4, v20")
    e(f"v_sub_u32 v22, {127+130}, v20"); e("v_lshlrev_b32 v22, 23, v22")
    for t in range(7):
        d = DR + 8 * t
        for i in range(8): e(f"v_mul_f32 v{d+i}, v{d+i}, v22")
        for i in range(4): e(f"v_cvt_pk_f16_f32 v{MR+4*t+i}, v{d+2*i}, v{d+2*i+1}")
        e(f"ds_write_b128 v{7 if t < 5 else 18}, {vr(MR+4*t,4)} offset:{D1 - D0 + 64*t}")
    for k in range(4):
        for t in range(7):
            e(f"ds_read_b64_tr_b16 {vr(X(k,2*t),2)}, v16 offset:{D1 - D0 + k*XSTR+t*256}")
    for k in range(4): e(f"v_readlane_b32 s{S_EX+k}, v20, {16*k}")
    HW = lambda l: S_HDR + 2 * l
    HD = lambda l: S_HDR + 2 * l + 1
    HQ, HL = S_HDR + 8, S_HDR + 9
    e("s_setprio 1")
    e(f"v_readfirstlane_b32 s{S_T}, v3"); e(f"s_cmp_ge_u32 s{S_T}, 4"); e("s_cbranch_scc1 L_s0ok")
    lwait(g, "S0OK", 4, 25, 2)
    for i in range(2): e(f"ds_read_b128 {vr(AR+4*i,4)}, v1 offset:{BUFA + i*S0STR}")
    g.lab("L_s0ok")
    e("s_waitcnt lgkmcnt(14)")
    g.stamp(); g.stamp("s")

    ready = set()
    def quad_prod(k, rho):
        p, q = QPAIRS[rho]
        return lambda d: f"v_pk_mul_f16 v{d}, v{X(k,p)}, v{X(k,q)} op_sel_hi:[0,1]"
    def gen_prod(l):
        def f(k, rho):
            r, p = divmod(rho, 13)
            def mk(d):
                if r == 13: return f"v_mov_b32 v{d}, v{U(k,p)}" if l == 2 else f"v_mov_b32 v{d}, 0"
                assert ('u', l, k, r) in ready, (l, k, r)
                if r & 1: return f"v_pk_mul_f16 v{d}, v{U(k,r>>1)}, v{X(k,p)} op_sel:[1,0] op_sel_hi:[1,1]"
                return f"v_pk_mul_f16 v{d}, v{U(k,r>>1)}, v{X(k,p)} op_sel_hi:[0,1]"
            return mk
        return f
    def lin_prod(k, t):
        b = 2 * t + 1 if 2 * t + 1 < 13 else 2 * t
        return lambda d: f"v_pack_b32_f16 v{d}, v{X(k,2*t)}, v{X(k,b)}"
    def steps(nprod, prod, acc, base, first0, stride=1024, needs=None):
        out = []
        ns = (nprod + 3) // 4
        for s in range(ns):
            out.append(dict(lds=base + stride * s, needs=needs if s == 0 else None, jobs=[dict(acc=acc + 16 * k, zero=(first0 and s == 0),
                       prods=[prod(k, rho) for rho in range(4 * s, min(4 * s + 4, nprod))]) for k in range(4)]))
        return out
    S_CL = S_C1
    e(f"s_mov_b32 s{S_CL}, {115 << 23}"); e(f"s_mov_b32 s{S_MASK}, 145"); e(f"s_mov_b32 s{S_J}, 127")
    def cvt(acc, t):
        return [f"v_cvt_pk_f16_f32 v{U(k,t)}, v{acc+16*k+2*t}, " + (f"v{acc+16*k+2*t+1}" if t < 6 else "0") for k in range(4)]
    def scl(l, t):
        o = []
        for k in range(4):
            o.append((f"v_pk_mul_f16 v{U(k,t)}, v{U(k,t)}, v{SC+k} op_sel_hi:[1,0]", ('u', l + 1, k, 2 * t)))
            o.append((None, ('u', l + 1, k, 2 * t + 1)))
        return o
    def head(acc, l):
        o = []
        for j in range(6):
            for k in range(4):
                a = acc + 16 * k
                if j == 0: o.append(f"v_max3_f32 v{SC+k}, |v{a}|, |v{a+1}|, |v{a+2}|")
                else: o.append(f"v_max3_f32 v{SC+k}, v{SC+k}, |v{a+2*j+1}|, |v{a+2*j+2}|")
        for k in range(4): o.append(f"v_mov_b32 v{TM+k}, v{SC+k}")
        o += cvt(acc, 0)
        for k in range(4): o.append(f"v_permlane32_swap_b32 v{SC+k}, v{TM+k}")
        for k in range(4): o.append(f"v_max3_f32 v{SC+k}, v{SC+k}, v{TM+k}, s{S_CL}")
        for k in range(4): o.append(f"v_lshrrev_b32 v{TM+k}, 23, v{SC+k}")
        for k in range(4): o.append(f"v_sub_u32 v{SC+k}, s{S_MASK}, v{TM+k}")
        for k in range(4): o.append(f"v_lshlrev_b32 v{SC+k}, 10, v{SC+k}")
        return o + scl(l, 0)
    def evup(l):
        return [(None, 'x', ('k', l))] + [f"v_add3_u32 v{EV(k)}, v{EV(k)}, v{TM+k}, s{S_K+k}" for k in range(4)] + [(None, ('ev', l))]
    def emit(x):
        if callable(x): return x() or 0
        if isinstance(x, tuple):
            if len(x) == 3: assert x[2] in ready, x
            ready.add(x[1]); x = x[0]
        if not x: return 0
        e(x)
        return 2 if 'permlane' in x else 1
    def kconst(l):
        o = []
        if l == 0: o.append(f"s_sub_u32 s{S_T}, s{HW(0)}, 130")
        elif l == 1: o += [f"s_add_u32 s{S_T}, s{HW(1)}, s{HD(2)}", f"s_sub_u32 s{S_T}, s{S_T}, 130"]
        else: o += [f"s_sub_u32 s{S_T}, s{HW(l)}, s{HD(l)}", f"s_add_u32 s{S_T}, s{S_T}, s{HD(l+1)}", f"s_sub_u32 s{S_T}, s{S_T}, 130"]
        if l: o.insert(0, (None, 'x', ('ev', l - 1)))
        return o + [f"s_add_u32 s{S_K+k}, s{S_T}, s{S_EX+k}" for k in range(4)] + [(None, ('k', l))]
    state = dict(areg=0, breg=0, base=0)
    def aread(st):
        if st.get('ok'): assert st['ok'] in ready, st['ok']
        st['a'] = AR + 4 * (state['areg'] % 3); state['areg'] += 1
        r = st['lds'] - state['base']; c = 1
        if r < 0 or r > 65535:
            e(f"v_add_u32 v1, {r & 0xffffffff}, v1"); state['base'] = st['lds']; r = 0; c = 2
        e(f"ds_read_b128 {vr(st['a'],4)}, v1 offset:{r}")
        return c
    def prods(job):
        job['b'] = BR + 4 * (state['breg'] % 4); state['breg'] += 1
        return [p(job['b'] + i) for i, p in enumerate(job['prods'])][:PAR.npk]
    GATE = 'GATE'
    import re
    def nbytes(x):
        if callable(x): return 0 if x.__name__ == '<lambda>' else 8
        if isinstance(x, tuple): x = x[0]
        if not x or x == GATE: return 0
        op = x.split()[0]
        lit = any(abs(int(t, 0)) > 64 for t in re.findall(r'(?<![\w\[:])(-?(?:0x[0-9a-f]+|\d+))(?![\w\]:.])', x.split(None, 1)[1]))
        short = op.startswith('s_') or op in ('v_mov_b32', 'v_mul_f32', 'v_add_f32', 'v_add_u32', 'v_sub_u32', 'v_lshrrev_b32', 'v_lshlrev_b32', 'v_and_b32',
                                              'v_permlane32_swap_b32', 'v_readfirstlane_b32', 'v_cmp_lt_u32', 'v_cndmask_b32', 'v_max_f32')
        return 4 if short and not lit else 8
    def run(seq, nxt, fill=None, side=None, rates=None):
        rate = PAR.rate
        jobs = [(si, j) for si, st in enumerate(seq) for j in st['jobs']]
        for j in range(2):
            for s in prods(jobs[j][1]): e(s)
        fq = []; sq = []; gate = -1; credit = 0
        allst = seq + nxt
        for n, (si, job) in enumerate(jobs):
            k = n % 4
            if k == 0:
                if fill and si in fill: fq += fill[si]
                if side and si in side: sq += side[si]
                if rates and si in rates: rate = rates[si]
                pend = sum(1 for st in allst[si+1:si+2] if 'a' in st)
                e(f"s_waitcnt lgkmcnt({0 if seq[si].get('drain') else pend})")
                if seq[si]['needs']: assert seq[si]['needs'] in ready, seq[si]['needs']
            c = "0" if job['zero'] else vr(job['acc'], 16)
            e(f"v_mfma_f32_32x32x16_f16 {vr(job['acc'],16)}, {vr(seq[si]['a'],4)}, {vr(job['b'],4)}, {c}")
            budget = 6
            if k == 0 and si + 2 < len(allst) and 'a' not in allst[si + 2]: budget -= aread(allst[si + 2])
            if k == 3: budget -= 1
            if n + 2 < len(jobs):
                ps = prods(jobs[n + 2][1])
                for s in ps: e(s)
                budget -= len(ps)
                credit += sum(8 - nbytes(p) for p in ps) + 8 * (PAR.npk - len(ps))
            credit = min(credit + rate / 4, 16)
            while sq and si >= gate and ((budget > 0 and credit >= nbytes(sq[0])) or nbytes(sq[0]) == 0):
                x = sq.pop(0)
                if x == GATE: gate = si + 2
                else: budget -= emit(x); credit -= nbytes(x)
            while fq and ((budget > 0 and credit >= nbytes(fq[0])) or nbytes(fq[0]) == 0):
                x = fq.pop(0); budget -= emit(x); credit -= nbytes(x)
        assert not sq, sq
        for s in fq: emit(s)
    S0 = steps(91, quad_prod, ACC, BUFA, True, stride=S0STR)
    L1 = steps(172, gen_prod(1), ACC2, BUFB, True, stride=S0STR)
    L2 = steps(176, gen_prod(2), ACC, BUFA, True, needs=('free', 0))
    Q4 = steps(91, quad_prod, ACC2, D0, True, needs=('free', 1))
    LN = steps(7, lin_prod, ACC2, D0 + 24 * 1024, False, needs='ldx')
    L3 = steps(169, gen_prod(3), ACC, BUFB, True, needs=('free', 2))
    L1[0]['ok'] = "RAW"; L2[0]['ok'] = "L2OK"; Q4[0]['ok'] = "QOK"; L3[0]['ok'] = "L3OK"
    def hdr(addr, sa, sb=None):
        return [f"v_mov_b32 v3, {addr}", "ds_read_b64 v[2:3], v3", GATE, f"v_readfirstlane_b32 s{sa}, v2"] + ([f"v_readfirstlane_b32 s{sb}, v3"] if sb else [])
    def arrive(c):
        def f():
            e(f"v_add_u32 v3, {(CNT[c] - state['base']) & 0xffffffff}, v1"); return 1
        return ["v_mov_b32 v2, 1", f, "ds_add_u32 v3, v2"]
    def check(c):
        def f():
            slow = g.newlab("cs"); back = g.newlab("cb"); top = g.newlab("ct")
            e(f"s_cmp_lt_u32 s{S_T+2}, 4"); e(f"s_cbranch_scc1 {slow}")
            g.lab(back)
            g.tail += [slow + ":", f"    s_mov_b32 s{S_T+1}, {SPIN*8}", top + ":", "    s_sleep 1", "    ds_read_b32 v2, v3", "    s_waitcnt lgkmcnt(0)",
                       f"    v_readfirstlane_b32 s{S_T+2}, v2", f"    s_cmp_ge_u32 s{S_T+2}, 4", f"    s_cbranch_scc1 {back}",
                       f"    s_sub_u32 s{S_T+1}, s{S_T+1}, 1", f"    s_cbranch_scc0 {top}", f"    s_branch {back}"]
            ready.add(c); return 2
        return [f"v_mov_b32 v3, {CNT[c]}", "ds_read_b32 v2, v3", GATE, f"v_readfirstlane_b32 s{S_T+2}, v2", f]
    def stp(n): return [lambda: g.stamp(n)]
    def rest(acc, l):
        o = []
        for t in range(1, 7): o += cvt(acc, t) + scl(l, t)
        return o + [(None, ('free', l))]
    HOFF = 29 * 16
    S0[0]['a'] = AR; S0[1]['a'] = AR + 4; state['areg'] = 2; S0[0]['drain'] = True
    ev0 = []
    for k in range(4): ev0 += [f"s_sub_u32 s{S_EX+k}, s{S_EX+k}, 130", f"s_lshl_b32 s{S_T}, s{S_EX+k}, 1", f"v_mov_b32 v{EV(k)}, s{S_T}"]
    run(S0, L1[:2], side={0: arrive("RB") + ev0, 2: hdr(BUFA + 23 * S0STR + 512, HW(0)) + kconst(0), 17: check("RAW"), 22: arrive("AFREE")})
    g.stamp(); g.stamp("l")
    for s in head(ACC, 0): emit(s)
    g.stamp("l")
    run(L1, L2[:2], fill={0: rest(ACC, 0) + evup(0)}, side={20: stp("l"), 37: check("L2OK")[:-1] + stp("l") + check("L2OK")[-1:] + stp("l"), 42: arrive("BFREE")}, rates={0: 32})
    g.stamp(); g.stamp("l")
    for s in head(ACC2, 1): emit(s)
    g.stamp("l")
    LNPOS = PAR.lnpos
    seq = L2 + Q4 + L3[:LNPOS] + LN + L3[LNPOS:]
    nQ = 44; nL3 = nQ + 23
    assert len({0, 6, 20, 40, LNPOS - 2, LNPOS + 4, PAR.pload}) == 7
    PV, PA = 2, 3
    def pload():
        e(f"buffer_load_dword v{PV}, v{PA}, {sr(S_WS)}, s{S_T+3} offen sc1"); return 1
    k1 = [f"s_sub_u32 s{S_T}, s{HD(1)}, s{HD(2)}"] + [f"s_sub_u32 s{S_K1+k}, s{S_T}, s{S_EX+k}" for k in range(4)] + [(None, 'k1')]
    dots = [(None, 'x', 'k1')]
    for k in range(4): dots.append(f"v_ldexp_f32 v{ACC+16*k+15}, v{ACC+16*k+15}, v{EV(k)}")
    for k in range(4): dots.append(f"v_add_u32 v{ACC+16*k+13}, s{S_K1+k}, v{EV(k)}")
    for k in range(4): dots.append(f"v_ldexp_f32 v{ACC+16*k+14}, v{ACC+16*k+14}, v{ACC+16*k+13}")
    for k in range(4): dots.append(f"v_add_f32 v{LG+k}, v{ACC+16*k+14}, v{ACC+16*k+15}")
    dots.append((None, 'dots'))
    b2 = head(ACC, 2) + dots
    for t in range(1, 7): b2 += cvt(ACC, t)
    b2.append((None, ('free', 2)))
    kq = [f"s_sub_u32 s{HL}, s{HQ}, s{HL}"]; S_K2 = 8
    for k in range(4):
        kq += [f"s_add_u32 s{S_T}, s{HL}, s{S_EX+k}", f"s_min_i32 s{S_KC+k}, s{S_T}, 40",
               f"s_add_i32 s{S_T}, s{S_KC+k}, s{S_J}", f"s_max_i32 s{S_T}, s{S_T}, 0", f"s_lshl_b32 s{S_K2+k}, s{S_T}, 23"]
    kq.append((None, 'kq'))
    ldx = [(None, 'x', 'kq')] + [f"v_mul_f32 v{ACC2+16*k+r}, s{S_K2+k}, v{ACC2+16*k+r}" for k in range(4) for r in range(13)] + [(None, 'ldx')]
    l3f = scl(2, 1)
    per = (len(ldx) + 4) // 5
    for t in range(2, 7): l3f += scl(2, t) + ldx[(t - 2) * per:(t - 1) * per] + (evup(2) if t == 6 else [])
    pre = ["v_bfe_u32 v2, v0, 4, 1", "v_lshrrev_b32 v3, 5, v0", "v_lshl_add_u32 v2, v2, 1, v3", "v_and_b32 v3, 15, v0", "v_cmp_lt_u32 vcc, 12, v3",
           "v_lshlrev_b32 v3, 10, v3", "v_lshl_add_u32 v3, v2, 2, v3", f"v_mov_b32 v2, {OOB}", "v_cndmask_b32 v3, v3, v2, vcc",
           f"s_mul_i32 s{S_T+3}, s{S_G}, {13*1024}", f"s_and_b32 s{S_T}, s{S_SB}, 255", f"s_lshl_b32 s{S_T}, s{S_T}, 2",
           f"s_add_u32 s{S_T+3}, s{S_T+3}, s{S_T}", f"s_add_u32 s{S_T+3}, s{S_T+3}, {WS_PART}"]
    fin = [(None, 'x', ('ev', 2))]
    for k in range(4): fin += [f"s_lshl_b32 s{S_T}, s{S_EX+k}, 1", f"s_add_u32 s{S_K+k}, s{S_T}, s{HD(0)}"]
    for k in range(4): fin.append(f"v_ldexp_f32 v{ACC2+16*k+15}, v{ACC2+16*k+15}, s{S_K+k}")
    for k in range(4): fin.append(f"v_add_f32 v{LG+k}, v{LG+k}, v{ACC2+16*k+15}")
    fin += [f"s_sub_u32 s{S_T}, s{HW(3)}, s{HD(3)}", f"s_add_u32 s{S_T}, s{S_T}, s{HQ}"]
    for k in range(4): fin += [f"s_lshl_b32 s{S_K+k}, s{S_EX+k}, 1", f"s_add_u32 s{S_K+k}, s{S_K+k}, s{S_T}", f"s_sub_u32 s{S_K+k}, s{S_K+k}, s{S_KC+k}"]
    BO = ACC2 + 14
    fin += [f"v_add_u32 v{TM+k}, s{S_K+k}, v{EV(k)}" for k in range(4)] + [f"v_mov_b32 v{BO-1}, 0", f"buffer_load_ushort v{BO}, v{BO-1}, {sr(S_BO)}, 0 offen"]
    run(seq, [], fill={0: rest(ACC2, 1), 14: evup(1), nQ + 1: b2, nL3: l3f},
        side={0: hdr(BUFA + HOFF, HW(2), HD(2)) + kconst(1) + hdr(BUFA + HOFF + 8, HD(1)) + k1, 1: stp("p"), 21: stp("p"),
              nQ - PAR.qchk: check("QOK"), nQ: stp("p"),
              nL3 - 6: check("L3OK"), nL3: stp("p") + hdr(D0 + 23 * 1024, HQ, HL) + kq, nL3 + 6: hdr(BUFB + HOFF, HW(3), HD(3)) + kconst(2) + hdr(D0 + 23 * 1024 + 8, HD(0)),
              nL3 + LNPOS - 2: pre, nL3 + LNPOS + 4: fin, nL3 + 20: stp("p"), nL3 + PAR.pload: [pload], nL3 + 40: stp("p")},
        rates={0: 32, 20: PAR.rate, nQ: PAR.qrate, nL3: PAR.l3rate})
    g.stamp()
    for r in range(13):
        for k in range(4):
            if r == 0: e(f"v_mul_f32 v{SC+k}, v{ACC+16*k}, v{ACC2+16*k}")
            else: e(f"v_fmac_f32 v{SC+k}, v{ACC+16*k+r}, v{ACC2+16*k+r}")
    for k in range(4): e(f"v_ldexp_f32 v{ACC+16*k+15}, v{ACC+16*k+15}, v{EV(k)}")
    for k in range(4): e(f"v_ldexp_f32 v{SC+k}, v{SC+k}, v{TM+k}")
    for k in range(4): e(f"v_add_f32 v{LG+k}, v{LG+k}, v{ACC+16*k+15}")
    for k in range(4): e(f"v_add_f32 v{LG+k}, v{LG+k}, v{SC+k}")
    e(f"v_permlane32_swap_b32 v{LG}, v{LG+1}"); e(f"v_permlane32_swap_b32 v{LG+2}, v{LG+3}")
    e(f"v_add_f32 v{LG}, v{LG}, v{LG+1}"); e(f"v_add_f32 v{LG+2}, v{LG+2}, v{LG+3}")
    e(f"v_permlane16_swap_b32 v{LG}, v{LG+2}")
    e(f"v_add_f32 v{LG}, v{LG}, v{LG+2}")
    e(f"s_mov_b32 s{S_T}, {SPIN}")
    g.lab("L_pcheck")
    e("s_waitcnt vmcnt(0)")
    e(f"v_cmp_eq_u32 vcc, -1, v{PV}")
    e("s_nop 1")
    e("s_cbranch_vccz L_pok")
    e("s_sleep 4")
    pload()
    e(f"s_sub_u32 s{S_T}, s{S_T}, 1")
    e("s_cbranch_scc0 L_pcheck")
    e("s_waitcnt vmcnt(0)")
    g.lab("L_pok")
    e(f"v_add_f32 v{LG}, v{LG}, v{PV}")
    for sh in (8, 4, 2, 1):
        e(f"v_add_f32_dpp v{LG}, v{LG}, v{LG} row_ror:{sh} {DPPALL}")
    e(f"v_lshlrev_b32 v{BO}, 16, v{BO}")
    e(f"v_add_f32 v{LG}, v{LG}, v{BO}")
    e(f"v_cvt_pk_bf16_f32 v{LG}, v{LG}, v{LG}")
    e(f"v_lshrrev_b32 v{PA}, 1, v{PA}")
    e(f"v_cmp_lt_u32 vcc, 7, v{PA}")
    e(f"v_mov_b32 v2, {OOB}")
    e(f"v_cndmask_b32 v{PA}, v{PA}, v2, vcc")
    e(f"s_lshl_b32 s{S_T}, s{S_SB}, 1")
    e(f"buffer_store_short v{LG}, v{PA}, {sr(S_OUT)}, s{S_T} offen")
    g.stamp(); g.stamp("e")
    if PAR.enc is not None:
        e("s_waitcnt lgkmcnt(0)")
        e(f"s_sub_u32 s{S_T}, s{S_ST+2*PAR.enc}, s{S_ST}"); e(f"s_lshl_b32 s{S_T}, s{S_T}, 1"); e(f"s_cmp_lt_u32 s{S_R}, 13"); e(f"s_cselect_b32 s{S_T}, s{S_T}, 0"); e(f"s_add_u32 s{S_T}, s{S_T}, 6000")
        g.lab("L_enc")
        e(f"s_memrealtime s[{S_T+2}:{S_T+3}]"); e("s_waitcnt lgkmcnt(0)")
        e(f"s_sub_u32 s{S_T+2}, s{S_T+2}, s{S_ST}"); e(f"s_cmp_lt_u32 s{S_T+2}, s{S_T}"); e("s_cbranch_scc1 L_enc")
    g.flush_stamps(4, 5)
    e("s_endpgm")

HACC, HX, HW_ = 4, 68, 208
V_TR0, V_TR1, V_DMA, V_WSRC, V_H16, V_L0, V_HROW, V_CNT = 248, 249, 250, 251, 252, 253, 254, 255
ID, QA, QSH, QS, W0R, PK = 4, 12, 19, 20, 180, 236
L1R, BT = 180, 36
S_WP, S_L, S_FR, S_E0, S_E1, S_E2, S_PO, S_CX = 48, 49, 50, 51, 52, 53, 54, 55
S_LC = 56
S_E3, S_XB = 60, 61
def dma_img(g, name, nfr, lds):
    e = g.e; per = nfr // 4
    va = V_DMA
    if name == "Q4":
        va = 1
        e("v_and_b32 v1, 31, v0"); e("v_subrev_u32 v1, 29, v1"); e("v_cmp_gt_u32 vcc, 2, v1"); e(f"v_mov_b32 v1, {OOB}"); e(f"v_cndmask_b32 v1, v{V_DMA}, v1, vcc")
    e(f"s_mul_i32 s{S_T}, s{S_J}, {per*1024}")
    for i in range(per):
        if i % 4 == 0:
            e(f"s_add_u32 s{S_T+1}, s{S_T}, {IMG[name] + i*1024}")
            e(f"s_add_u32 m0, s{S_T}, {lds + i*1024}")
        g.vm(f"buffer_load_dwordx4 v{va}, {sr(S_WS)}, s{S_T+1} offen offset:{(i%4)*1024} {PAR.ld} lds", name)
def poll(g, checks, pre=None):
    e = g.e
    done = g.newlab("pd"); top = g.newlab("pt"); slp = g.newlab("ps"); tst = g.newlab("pc")
    regs = pre or [2 + i for i in range(len(checks))]
    e(f"s_mov_b32 s{S_T}, {SPIN}")
    if pre: e(f"s_branch {tst}")
    g.lab(top)
    for r, (srd, so, o, n) in zip(regs, checks):
        e(f"buffer_load_dword v{r}, v{V_L0}, {sr(srd)}, {so} offen offset:{o} sc1")
    e("s_waitcnt vmcnt(0)")
    g.lab(tst)
    for r, (srd, so, o, n) in zip(regs, checks):
        e(f"v_readfirstlane_b32 s{S_T+1}, v{r}")
        e(f"s_cmp_lt_u32 s{S_T+1}, {n}")
        e(f"s_cbranch_scc1 {slp}")
    g.lab(done)
    g.tail += [slp + ":", f"    s_sleep {PAR.slp}", f"    s_sub_u32 s{S_T}, s{S_T}, 1", f"    s_cbranch_scc0 {top}", f"    s_branch {done}"]
def poll1(g, checks, flag, pre=None):
    lb = g.newlab("p1")
    g.e(f"s_cmp_lg_u32 s{S_J}, 0"); g.e(f"s_cbranch_scc1 {lb}")
    poll(g, checks, pre)
    arrive(g, flag)
    g.lab(lb)
    lwait(g, flag, 1)
def presample(g, checks, regs, tag):
    for r, (srd, so, o, n) in zip(regs, checks):
        g.vm(f"buffer_load_dword v{r}, v{V_L0}, {sr(srd)}, {so} offen offset:{o} sc1", tag)
def arrive(g, *cs):
    e = g.e
    e("v_mov_b32 v1, 1"); e("s_mov_b64 exec, 1")
    for c in cs: e(f"ds_add_u32 v{V_CNT}, v1 offset:{CNT[c]-M_CNT}")
    e("s_mov_b64 exec, -1")
def unpack_mat(g, PA, t):
    e = g.e
    e(f"v_and_b32 v{t}, 1, v0"); e(f"v_lshlrev_b32 v{t}, 4, v{t}"); e(f"v_mov_b32 v{t+1}, 0x3f80"); e(f"v_lshlrev_b32 v{t+1}, v{t}, v{t+1}")
    e(f"v_lshrrev_b32 v{t+2}, 3, v0"); e(f"v_xor_b32 v{t+2}, v{t+2}, v0"); e(f"v_and_b32 v{t+2}, 4, v{t+2}")
    e(f"v_bfe_u32 v{t}, v0, 3, 2"); e(f"v_bfe_u32 v{t+3}, v0, 1, 1"); e(f"v_lshl_add_u32 v{t}, v{t}, 1, v{t+3}"); e(f"v_lshl_add_u32 v{t}, v{t+2}, 3, v{t}")
    for i in range(8):
        e(f"v_cmp_eq_u32 vcc, {i}, v{t}"); e(f"v_cndmask_b32 v{PA+i}, 0, v{t+1}, vcc")
def unpack(g, DR, pa, src, i):
    d = DR + 16 * ((i >> 1) & 3)
    g.e(f"v_mfma_f32_32x32x16_bf16 {vr(d,16)}, {vr(pa+4*(i&1),4)}, {vr(src+4*i,4)}, {vr(d,16) if i & 1 else '0'}")
def tmax(g, DR, tile, n, first, mv=1):
    d = DR + 16 * (tile & 3)
    for q in range(n // 2):
        if first and q == 0: g.e(f"v_max_f32 v{mv}, |v{d}|, |v{d+1}|")
        else: g.e(f"v_max3_f32 v{mv}, v{mv}, |v{d+2*q}|, |v{d+2*q+1}|")
def lwait(g, c, n=4, va=None, vd=1):
    e = g.e; top = g.newlab("lw"); done = g.newlab("ld")
    e(f"s_mov_b32 s{S_T}, {SPIN*8}")
    g.lab(top)
    e(f"ds_read_b32 v{vd}, v{va or V_CNT} offset:{CNT[c]-M_CNT}"); e("s_waitcnt lgkmcnt(0)")
    e(f"v_readfirstlane_b32 s{S_T+1}, v{vd}"); e(f"s_cmp_ge_u32 s{S_T+1}, {n}"); e(f"s_cbranch_scc1 {done}")
    e(f"s_sleep {PAR.lslp if c in ('FX', 'F2', 'F3', 'FQ', 'AFREE', 'BFREE', 'XST') else 1}"); e(f"s_sub_u32 s{S_T}, s{S_T}, 1"); e(f"s_cbranch_scc0 {top}")
    g.lab(done)
def rowmax(g, v, op="v_max_u32_dpp"):
    for sh in (8, 4, 2, 1): g.e(f"{op} v{v}, v{v}, v{v} row_ror:{sh} {DPPALL}")
def wavemax_exp(g, v, sdst):
    e = g.e
    rowmax(g, v)
    e(f"v_readlane_b32 s{sdst}, v{v}, 0"); e(f"v_readlane_b32 s{S_T}, v{v}, 16"); e(f"s_max_u32 s{sdst}, s{sdst}, s{S_T}")
    e(f"v_readlane_b32 s{S_T}, v{v}, 32"); e(f"s_max_u32 s{sdst}, s{sdst}, s{S_T}")
    e(f"v_readlane_b32 s{S_T}, v{v}, 48"); e(f"s_max_u32 s{sdst}, s{sdst}, s{S_T}")
    e(f"s_lshr_b32 s{sdst}, s{sdst}, 23"); e(f"s_sub_u32 s{sdst}, s{sdst}, 126")
def put_max(g, slot):
    e = g.e
    rowmax(g, 1)
    e("v_lshrrev_b32 v2, 4, v0"); e(f"s_lshl_b32 s{S_T}, s{S_J}, 4"); e(f"s_add_u32 s{S_T}, s{S_T}, {slot}")
    e(f"v_lshl_add_u32 v2, v2, 2, s{S_T}")
    e("ds_write_b32 v2, v1")
def get_max(g, slot):
    e = g.e
    e("v_and_b32 v2, 15, v0"); e("v_lshlrev_b32 v2, 2, v2"); e(f"v_add_u32 v2, {slot}, v2")
    e("ds_read_b32 v1, v2"); e("s_waitcnt lgkmcnt(0)")
    rowmax(g, 1)
def pkmax(g, regs):
    e = g.e
    e(f"v_pk_max_u16 v1, v{regs[0]}, v{regs[1]}"); e(f"v_pk_max_u16 v3, v{regs[2]}, v{regs[3]}")
    for i, r in enumerate(regs[4:]): e(f"v_pk_max_u16 v{1 + 2*(i&1)}, v{1 + 2*(i&1)}, v{r}")
    e("v_pk_max_u16 v1, v1, v3"); e("v_alignbit_b32 v3, v1, v1, 16"); e("v_pk_max_u16 v1, v1, v3")
def pack_round(g, acc, off, pk=True):
    e = g.e
    if PAR.pkpack and pk:
        for t in range(7):
            q = QS + t; sel = q & 1
            e(f"v_pk_mul_f32 {vr(acc+2*t,2)}, {vr(acc+2*t,2)}, {vr(q - sel,2)} op_sel:[0,{sel}] op_sel_hi:[1,{sel}]")
    else:
        for t in range(14): e(f"v_mul_f32 v{acc+t}, v{acc+t}, v{QS+(t>>1)}")
    for t in range(7): e(f"v_cvt_pk_f16_f32 v{PK+t}, v{acc+2*t}, v{acc+2*t+1}")
    for t in range(7): e(f"v_alignbit_b32 v{PK+t}, v{PK+t}, v{PK+t}, v{QSH}")
    for t in range(7): e(f"ds_write_b32 v{QA+t}, v{PK+t} offset:{off}")
def s0_max(g, t):
    a = HX + 16 * t
    for i in range(7):
        if t == 0 and i == 0: g.e(f"v_max_f32 v1, |v{a}|, |v{a+1}|")
        else: g.e(f"v_max3_f32 v1, v1, |v{a+2*i}|, |v{a+2*i+1}|")
F0 = lambda c: sum(PAR.chunks[:c])
S_ROT = 64
S_RA = 66
def call_if(g, cond, target):
    lb = g.newlab('nc')
    for c in cond: g.e(c[0]); g.e(f'{c[1]} {lb}')
    g.e(f's_call_b64 s[{S_RA}:{S_RA+1}], {target}')
    g.lab(lb)
RET = f's_setpc_b64 s[{S_RA}:{S_RA+1}]'
def EARLY(): return [(f's_cmp_lt_u32 s{S_WP}, {PAR.gearly}', 's_cbranch_scc0')]
def LATE(): return [(f's_cmp_lt_u32 s{S_WP}, {PAR.gearly}', 's_cbranch_scc1'), (f's_cmp_ge_u32 s{S_WP}, 31', 's_cbranch_scc1')]
def rotf(g, f, sd):
    g.e(f"s_add_u32 s{sd}, s{S_ROT}, {f}"); g.e(f"s_sub_u32 s{S_ROT+1}, s{sd}, 26"); g.e(f"s_min_u32 s{sd}, s{sd}, s{S_ROT+1}")
def dma_w(g, c, only=None):
    e = g.e
    Dc = (D0, D1)[c & 1]
    e(f"s_lshl_b32 s{S_T}, s{S_J}, 10")
    for fl in range(PAR.chunks[c]):
        if only is not None and fl != only: continue
        e(f"s_add_u32 m0, s{S_T}, {Dc + fl*4096}")
        rotf(g, F0(c) + fl, S_T + 1); e(f"s_mul_i32 s{S_T+1}, s{S_T+1}, 53248")
        g.vm(f"buffer_load_dwordx4 v{V_WSRC}, {sr(S_W1)}, s{S_T+1} offen lds", f"W{c}")
CHK_X = lambda: (S_WS, f"s{S_CX}", 0, 16)
def helper_common(g):
    e = g.e
    e("s_setprio 2")
    e(f"s_sub_u32 s{S_J}, s{S_WAVE}, 4")
    e("v_and_b32 v2, 31, v0"); e("v_lshrrev_b32 v3, 5, v0")
    e(f"v_lshlrev_b32 v{V_H16}, 4, v3")
    e("v_lshrrev_b32 v4, 3, v2"); e("v_and_b32 v6, 3, v2"); e("v_lshl_add_u32 v4, v4, 2, v6")
    e("v_bfe_u32 v6, v2, 2, 1"); e(f"v_mad_u32_u24 v{V_HROW}, v6, 13, v4")
    e("v_cmp_lt_u32 vcc, 12, v4"); e("v_mov_b32 v7, 0x100000"); e(f"v_cndmask_b32 v{V_HROW}, v{V_HROW}, v7, vcc")
    e("v_mul_u32_u24 v4, 676, v3"); e(f"s_movk_i32 s{S_T+1}, 1352"); e(f"v_mad_u32_u24 v243, v{V_HROW}, s{S_T+1}, v4")
    def qaset():
        e("v_lshrrev_b32 v27, 1, v2"); e("v_and_b32 v28, 1, v2"); e(f"v_lshlrev_b32 v{QSH}, 4, v28")
        e("v_sub_u32 v29, 25, v27"); e("v_mul_u32_u24 v29, v29, v27"); e("v_lshrrev_b32 v29, 1, v29")
        e(f"s_lshl_b32 s{S_T}, s{S_J}, 4")
        e(f"v_lshl_add_u32 v28, v28, 9, s{S_T}")
        e(f"v_lshl_add_u32 v30, v0, 2, s{S_T}"); e(f"v_add_u32 v30, {BUFA + 24*S0STR}, v30")
        e("v_mov_b32 v33, 0.5")
        for t in range(7):
            qb = 4 * (t >> 1) + (t & 1)
            e(f"v_lshl_add_u32 v31, v3, 1, {qb}")
            e("v_add_u32 v32, v29, v31")
            e(f"v_lshrrev_b32 v{QA+t}, 2, v32"); e(f"v_mul_u32_u24 v{QA+t}, {S0STR}, v{QA+t}")
            e("v_and_b32 v32, 3, v32"); e("v_lshl_add_u32 v32, v32, 2, v28"); e(f"v_add_u32 v{QA+t}, v{QA+t}, v32")
            e("v_cmp_lt_u32 vcc, v31, v27")
            if t == 6:
                e("v_cmp_lt_u32 s[72:73], 12, v31"); e("s_or_b64 vcc, vcc, s[72:73]")
            e(f"v_cndmask_b32 v{QA+t}, v{QA+t}, v30, vcc")
            e("v_cmp_eq_u32 vcc, v31, v27"); e(f"v_cndmask_b32 v{QS+t}, 1.0, v33, vcc")
        e("v_lshlrev_b32 v31, 3, v3"); e("v_sub_u32 v31, v2, v31")
        e("v_mov_b32 v32, 0x3f80"); e(f"v_lshlrev_b32 v32, v{QSH}, v32")
        e("v_lshrrev_b32 v31, 1, v31")
        for s in range(2):
            for i in range(4):
                e(f"v_cmp_eq_u32 vcc, {8*s+i}, v31"); e(f"v_cndmask_b32 v{ID+4*s+i}, 0, v32, vcc")
    if PAR.qaearly: qaset()
    HS = [S_WC, S_WS, S_WO, S_W1, S_B1, S_W2, S_DBG]
    srd_const(g, HS)
    e("s_waitcnt lgkmcnt(0)")
    srd_base(g, HS)
    e(f"s_mov_b64 s[{S_LC}:{S_LC+1}], s[{S_WC}:{S_WC+1}]"); e(f"s_mov_b32 s{S_LC+3}, 0x00020000"); e(f"s_mov_b32 s{S_LC+2}, {2*LB}")
    e(f"s_mul_i32 s{S_WP}, s{S_G}, 3"); e(f"s_add_u32 s{S_WP}, s{S_WP}, s{S_R}"); e(f"s_sub_u32 s{S_WP}, s{S_WP}, 13")
    e(f"s_cmp_lt_u32 s{S_R}, 13"); e(f"s_cselect_b32 s{S_WP}, 63, s{S_WP}")
    if PAR.wpf:
        e(f"s_cmp_lg_u32 s{S_J}, 0"); e("s_cbranch_scc1 L_nowpf")
        e(f"s_mov_b32 s{S_WC+2}, {6*LB}"); e(f"s_lshr_b32 s{S_T}, s2, 3"); e(f"s_lshl_b32 s{S_T}, s{S_T}, 7")
        e("v_lshlrev_b32 v1, 12, v0")
        e(f"buffer_load_dword v247, v1, {sr(S_WC)}, s{S_T} offen")
        e(f"s_mov_b32 s{S_WC+2}, {LB}")
        g.lab("L_nowpf")
    e("s_barrier")
    g.stamp("g")
    call_if(g, EARLY(), "L_pe1")
    g.stamp("g")
    e("v_and_b32 v2, 31, v0"); e("v_lshrrev_b32 v3, 5, v0")
    e(f"v_mad_u32_u24 v1, v2, 52, v{V_H16}")
    if PAR.w0lin: e("v_lshlrev_b32 v1, 4, v0")
    e(f"s_mul_i32 s{S_T}, s{S_J}, 1352")
    for t in range(7):
        if t < 6: e(f"s_add_u32 s{S_T+1}, s{S_T}, {(13*(t&1) + 4*(t>>1))*1352}")
        else:
            e(f"s_mul_i32 s{S_T+1}, s{S_J}, {13*1352}"); e(f"s_add_u32 s{S_T+1}, s{S_T+1}, {12*1352}")
        for s in range(2):
            g.vm(f"buffer_load_dwordx4 {vr(W0R+8*t+4*s,4)}, v1, {sr(S_WC)}, s{S_T+1} offen offset:{(320 if PAR.w0lin else 32)*s}", f"w0_{t}")
    e(f"v_mov_b32 v61, {OOB}"); e(f"v_add_u32 v60, s{S_J}, v0"); e("v_cmp_eq_u32 vcc, 0, v60"); e(f"v_cndmask_b32 v{V_L0}, v61, 0, vcc")
    e(f"s_lshl_b32 s{S_SB}, s{S_R}, 7")
    e(f"s_mul_i32 s{S_CX}, s{S_G}, {PAR.cstr}"); e(f"s_add_u32 s{S_CX}, s{S_CX}, {WS_CNT}")
    e(f"s_add_u32 s{S_T}, s{S_R}, s{S_J}"); e(f"s_cmp_eq_u32 s{S_T}, 0"); e(f"s_cselect_b32 s{S_E3}, 0, {OOB}")
    e(f"v_add_u32 v34, s{S_E3}, v{V_L0}");
    for i in range(4): e(f"v_mov_b32 v{36+i}, 0")
    g.vm(f"buffer_store_dwordx4 v[36:39], v34, {sr(S_WS)}, s{S_CX} offen sc1", "rst")
    if not PAR.qaearly: qaset()
    e(f"s_mul_i32 s{S_PO}, s{S_G}, 13"); e(f"s_add_u32 s{S_PO}, s{S_PO}, s{S_R}"); e(f"s_lshl_b32 s{S_PO}, s{S_PO}, 2"); e(f"s_add_u32 s{S_PO}, s{S_PO}, s{S_J}")
    e(f"s_lshl_b32 s{S_PO}, s{S_PO}, 8"); e(f"s_add_u32 s{S_PO}, s{S_PO}, {WS_PART}")
    e("v_bfe_u32 v60, v0, 3, 2"); e("v_and_b32 v61, 3, v0"); e("v_lshl_add_u32 v60, v60, 2, v61"); e(f"v_mul_u32_u24 v245, {XSTR}, v60")
    e("v_bfe_u32 v60, v0, 2, 1"); e("v_lshl_add_u32 v245, v60, 4, v245"); e(f"v_lshl_add_u32 v245, v{V_H16}, 1, v245")
    e(f"s_lshl_b32 s{S_T}, s{S_J}, 6"); e(f"s_add_u32 s{S_T}, s{S_T}, {D0}"); e(f"v_add_u32 v245, s{S_T}, v245")
    e("v_lshlrev_b32 v246, 4, v0"); e(f"v_lshl_add_u32 v246, v{V_H16}, 5, v246")
    e(f"s_lshl_b32 s{S_XB}, s{S_G}, 2"); e(f"s_lshr_b32 s{S_T}, s{S_R}, 2"); e(f"s_add_u32 s{S_XB}, s{S_XB}, s{S_T}"); e(f"s_mul_i32 s{S_XB}, s{S_XB}, 106496")
    e(f"s_bfe_u32 s{S_T}, s{S_R}, 0x10001"); e(f"s_lshl_b32 s{S_T}, s{S_T}, 11"); e(f"s_add_u32 s{S_XB}, s{S_XB}, s{S_T}")
    e(f"s_and_b32 s{S_T}, s{S_R}, 1"); e(f"s_lshl_b32 s{S_T}, s{S_T}, 9"); e(f"s_add_u32 s{S_XB}, s{S_XB}, s{S_T}")
    e(f"s_lshl_b32 s{S_T}, s{S_J}, 12"); e(f"s_add_u32 s{S_XB}, s{S_XB}, s{S_T}"); e(f"s_add_u32 s{S_XB}, s{S_XB}, {WS_X}")
    g.stamp("g")
    call_if(g, EARLY(), "L_pe2")
    g.stamp("g")
    for t in range(7):
        g.vmwait(f"w0_{t}")
        a = HX + 16 * t; w = W0R + 8 * t
        e(f"v_mfma_f32_32x32x16_bf16 {vr(a,16)}, {vr(w,4)}, {vr(ID,4)}, 0")
        e(f"v_mfma_f32_32x32x16_bf16 {vr(a,16)}, {vr(w+4,4)}, {vr(ID+4,4)}, {vr(a,16)}")
        e(f"v_mfma_f32_32x32x16_bf16 {vr(a,16)}, {vr(ID,4)}, {vr(w,4)}, {vr(a,16)}")
        e(f"v_mfma_f32_32x32x16_bf16 {vr(a,16)}, {vr(ID+4,4)}, {vr(w+4,4)}, {vr(a,16)}")
        if t > 0: s0_max(g, t - 1)
    s0_max(g, 6)
    put_max(g, M_S0)
    e(f"v_mov_b32 v{V_CNT}, {M_CNT}")
    arrive(g, "S0M")
    g.stamp("g")
    if g.stamps and "g" in PAR.st: e("s_waitcnt vmcnt(0)"); g.stamp("g")
    call_if(g, EARLY(), "L_gsig")
    g.stamp("g")
    lwait(g, "S0M")
    g.stamp(); g.stamp("h")
    get_max(g, M_S0)
    e("v_lshlrev_b32 v3, 4, v0"); e(f"v_mov_b32 v{PK}, 0")
    e(f"ds_write_b32 v3, v{PK} offset:{BUFA + 22*S0STR + 12}")
    e("v_lshrrev_b32 v1, 23, v1")
    e("v_min_u32 v1, 249, v1")
    e("v_sub_u32 v2, 124, v1")
    e("v_subrev_u32 v1, 124, v1")
    e(f"ds_write_b32 v3, v1 offset:{BUFA + 23*S0STR + 512}")
    for t in range(7): e(f"v_ldexp_f32 v{QS+t}, v{QS+t}, v2")
    for t in range(7):
        if t == 6:
            e(f"s_cmp_eq_u32 s{S_J}, 1"); e(f"s_cselect_b32 s{S_T}, 48, 0")
            for i in range(7): e(f"v_add_u32 v{QA+i}, s{S_T}, v{QA+i}")
        if t in (0, 2, 4, 6): g.stamp("h")
        pack_round(g, HX + 16 * t, 16 * (8 * (t >> 1) + 4 * (t & 1)))
    arrive(g, "S0OK")
    g.stamp(); g.stamp("s"); g.stamp("h")
    e(f"v_cmp_lt_u32 vcc, 25, v{V_HROW}"); e("v_bfe_u32 v1, v0, 2, 1")
    e("v_cmp_eq_u32 s[72:73], 0, v1"); e("s_and_b64 vcc, vcc, s[72:73]")
    e(f"v_mov_b32 v2, {OOB}"); e(f"v_lshlrev_b32 v{V_DMA}, 4, v0"); e(f"v_cndmask_b32 v{V_DMA}, v{V_DMA}, v2, vcc")
    e(f"s_mul_i32 s{S_ROT}, s{S_R}, {PAR.rot}")
    e("v_lshrrev_b32 v1, 3, v0"); e(f"s_lshl_b32 s{S_T}, s{S_J}, 3"); e(f"v_add_u32 v1, s{S_T}, v1")
    e("v_mul_u32_u24 v1, 1664, v1")
    e("v_bfe_u32 v2, v0, 4, 1"); e("v_lshlrev_b32 v2, 2, v2"); e("v_and_b32 v3, 7, v0"); e("v_xor_b32 v2, v2, v3")
    e("v_lshl_add_u32 v1, v2, 4, v1"); e(f"s_lshl_b32 s{S_SB}, s{S_R}, 7"); e(f"v_add_u32 v{V_WSRC}, s{S_SB}, v1")
    e("v_lshrrev_b32 v1, 5, v0"); e("v_bfe_u32 v2, v0, 2, 2")
    e("v_lshl_add_u32 v1, v1, 3, v2"); e("v_lshlrev_b32 v1, 7, v1")
    e("v_bfe_u32 v3, v0, 4, 1"); e("v_lshl_add_u32 v1, v3, 5, v1"); e("v_and_b32 v3, 3, v0"); e("v_lshl_add_u32 v1, v3, 3, v1")
    e("v_lshrrev_b32 v2, 1, v2"); e("v_lshl_add_u32 v1, v2, 6, v1")
    e(f"v_add_u32 v{V_TR0}, {D0}, v1"); e(f"v_xor_b32 v{V_TR1}, 64, v{V_TR0}")
    e(f"s_cmp_lg_u32 s{S_R}, 0"); e("s_cbranch_scc1 L_nordy")
    g.vmwait("rst")
    e("v_mov_b32 v35, 1"); e(f"s_lshl_b32 s{S_E3}, s{S_G}, 2")
    e(f"buffer_store_dword v35, v34, {sr(S_DBG)}, s{S_E3} offen offset:{C_RDY} sc1")
    g.lab("L_nordy")
    call_if(g, LATE(), "L_pe1")
    call_if(g, LATE()[:1], "L_xpub")
    g.vmq += ["xst"] * 7 + ["sent", "rdyl"] + ["bias"] * 8
    g.stamp("s")
    call_if(g, LATE(), "L_pe2")
    if PAR.wearly:
        e(f"s_cmp_ge_u32 s{S_R}, 13"); e("s_cbranch_scc1 L_pw")
        lwait(g, "RB", 8); dma_w(g, 0)
        if PAR.wearly > 1: dma_w(g, 1)
        g.tail += ["L_pw:", "    s_waitcnt vmcnt(8)", "    s_branch L_pwr"]
    g.vmwait("rdyl")
    g.lab("L_pwr")
    arrive(g, "XST")
    e(f"s_cmp_lg_u32 s{S_J}, 0"); e("s_cbranch_scc1 L_nosig")
    lwait(g, "XST")
    e(f"s_mov_b32 s{S_T}, {SPIN}")
    g.lab("L_rdy")
    e("v_cmp_ne_u32 vcc, 0, v28"); e(f"s_and_b32 s{S_T+1}, vcc_lo, 0xffff"); e(f"s_cmp_eq_u32 s{S_T+1}, 0xffff"); e("s_cbranch_scc0 L_rdys")
    g.lab("L_rdyd")
    g.tail += ["L_rdys:", "    s_sleep 8", f"    buffer_load_dword v28, v29, {sr(S_DBG)}, 0 offen offset:{C_RDY} sc1", "    s_waitcnt vmcnt(0)",
               f"    s_sub_u32 s{S_T}, s{S_T}, 1", "    s_cbranch_scc0 L_rdy", "    s_branch L_rdyd"]
    e("v_mov_b32 v1, 1")
    e(f"buffer_atomic_add v1, v{V_L0}, {sr(S_WS)}, s{S_CX} offen sc1")
    g.lab("L_nosig")
    g.stamp(); g.stamp("s")

def helper_dnn(g):
    e = g.e
    CH = PAR.chunks; NS = PAR.nslot
    def xb(f, tile, t): return HX + 16 * (f % NS) + 8 * tile + 4 * t
    def xload(f):
        rotf(g, f, S_T + 2); e(f"s_lshl_b32 s{S_T+2}, s{S_T+2}, 12"); e(f"s_add_u32 s{S_T+2}, s{S_T+2}, s{S_XB}")
        for tile in range(2):
            for t in range(2):
                g.vm(f"buffer_load_dwordx4 {vr(xb(f,tile,t),4)}, v2, {sr(S_WS)}, s{S_T+2} offen offset:{2048*tile+1024*t} {PAR.ld}", f"x{f}")
    g.vmwait("bias")
    for a in range(2):
        for i in range(8):
            e(f"v_lshlrev_b32 v{HACC+16*a+2*i}, 16, v{BT+8*a+i}")
            e(f"v_and_b32 v{HACC+16*a+2*i+1}, 0xffff0000, v{BT+8*a+i}")
    for i in range(32): e(f"v_mov_b32 v{HACC+32+i}, v{HACC+i}")
    e(f"s_lshl_b32 s{S_XB}, s{S_G}, 2"); e(f"s_add_u32 s{S_XB}, s{S_XB}, s{S_J}"); e(f"s_mul_i32 s{S_XB}, s{S_XB}, 106496"); e(f"s_add_u32 s{S_XB}, s{S_XB}, {WS_X}")
    poll1(g, [(S_DBG, "0", 128, 11)], "F2")
    if not PAR.wearly: lwait(g, "RB", 8); dma_w(g, 0)
    if PAR.wearly < 2: dma_w(g, 1)
    lwait(g, "AFREE"); dma_img(g, "L2", 44, BUFA)
    presample(g, [CHK_X()], [196], "fx")
    g.vmwait("fx"); arrive(g, "L2OK", "W01")
    poll1(g, [CHK_X()], "FX", pre=[196])
    g.stamp("s")
    g.stamp()
    e("v_bfe_u32 v2, v0, 2, 3"); e("v_lshlrev_b32 v2, 7, v2"); e(f"v_lshl_add_u32 v2, v{V_H16}, 2, v2"); e("v_and_b32 v3, 3, v0"); e("v_lshl_add_u32 v2, v3, 4, v2")
    for f in range(NS):
        xload(f)
    FL = 232
    W2R = 232 + 0
    wring = [0]
    def loc(ks):
        f = ks // 2; c = max(i for i in range(4) if F0(i) <= f)
        return c, ks - 2 * F0(c)
    def wread(ks):
        c, kl = loc(ks)
        Dc = (D0, D1)[c & 1]
        base = HW_ + 8 * (wring[0] % 3); wring[0] += 1
        for a, ad in ((0, V_TR0), (1, V_TR1)):
            for rd in range(2):
                e(f"ds_read_b64_tr_b16 {vr(base+4*a+2*rd,2)}, v{ad} offset:{Dc - D0 + kl*2048 + rd*512}")
        return base
    CK2 = [(S_DBG, "0", 128, 11)]; CKQ = [(S_WS, f"s{S_CX}", C_Q, 9)]; CK3 = [(S_WS, f"s{S_CX}", C_L[3], 11)]
    def act_l2():
        lwait(g, "AFREE"); g.vmwait("f2"); poll1(g, CK2, "F2", pre=[196]); dma_img(g, "L2", 44, BUFA)
    after = {}
    def add(f, fn): after.setdefault(f, []).append(fn)
    if PAR.l2pos >= 0:
        add(PAR.l2pos - 2, lambda: presample(g, CK2, [196], "f2"))
        add(PAR.l2pos, act_l2)
        add(PAR.l2pos + 4, lambda: (g.vmwait("L2"), arrive(g, "L2OK")))
    add(F0(1), lambda: (lwait(g, "C0"), dma_w(g, 2)))
    add(F0(3) - 3, lambda: presample(g, CKQ + CK3, [196, 197], "fq"))
    add(F0(3) + PAR.qarr, lambda: (g.vmwait("Q4"), arrive(g, "QOK")))
    lwait(g, "W01")
    for c in range(4):
        k0 = 2 * F0(c); k1 = 2 * F0(c + 1)
        bufs = {k0: wread(k0), k0 + 1: wread(k0 + 1)}
        for ks in range(k0, k1):
            f, t = divmod(ks, 2)
            if t == 0: g.vmwait(f"x{f}")
            e(f"s_waitcnt lgkmcnt({4 if ks + 1 < k1 else 0})")
            for a in range(2):
                for tile in range(2):
                    acc = HACC + 32 * tile + 16 * a
                    if 2 * a + tile < PAR.nmf: e(f"v_mfma_f32_32x32x16_bf16 {vr(acc,16)}, {vr(bufs[ks]+4*a,4)}, {vr(xb(f,tile,t),4)}, {vr(acc,16)}")
                if a == 0 and ks + 2 < k1: bufs[ks + 2] = wread(ks + 2)
            if t == 1:
                if f + NS < 26: xload(f + NS)
                for fn in after.get(f, []): fn()
        if c == 0: arrive(g, "C0"); g.stamp()
        if c == 1:
            g.vmwait("W2"); arrive(g, "C1"); lwait(g, "C1"); dma_w(g, 3)
        if c == 2:
            g.vmwait("W3"); arrive(g, "C2"); lwait(g, "C2")
            if not PAR.qlate: g.vmwait("fq"); poll1(g, CKQ, "FQ", pre=[196]); dma_img(g, "Q4", 28, D0)
            e(f"v_lshrrev_b32 v1, 1, v{V_H16}")
            for a in range(2):
                for q in range(4):
                    g.vm(f"buffer_load_dwordx2 {vr(W2R+8*a+2*q,2)}, v1, {sr(S_W2)}, s{S_SB} offen offset:{64*a+16*q}", "w2")
    if PAR.qlate: g.vmwait("fq"); poll1(g, CKQ, "FQ", pre=[196]); dma_img(g, "Q4", 28, D0)
    e("s_waitcnt vmcnt(0)")
    g.stamp()
    W2F = HX
    for i in range(16):
        e(f"v_lshlrev_b32 v{W2F+2*i}, 16, v{W2R+i}")
        e(f"v_and_b32 v{W2F+2*i+1}, 0xffff0000, v{W2R+i}")
    c0 = 2 * 0.7978845608028654 * 1.4426950408889634
    e(f"s_mov_b32 s{S_C1}, {f2u(c0*0.044715):#x}")
    e(f"v_mov_b32 v2, {f2u(c0):#x}")
    T = HX + 32; SUM = HX + 48
    for i in range(4): e(f"v_mov_b32 v{SUM+i}, 0")
    def gelu(blk):
        rs = [HACC + 4 * blk + i for i in range(4)]
        tile = (4 * blk) // 32
        for i, r in enumerate(rs): e(f"v_mul_f32 v{T+i}, v{r}, v{r}")
        for i, r in enumerate(rs): e(f"v_fma_f32 v{T+i}, v{T+i}, s{S_C1}, v2")
        for i, r in enumerate(rs): e(f"v_mul_f32 v{T+i}, v{T+i}, v{r}")
        for i, r in enumerate(rs): e(f"v_exp_f32 v{T+i}, -v{T+i}")
        for i, r in enumerate(rs): e(f"v_mul_f32 v{r}, v{r}, v{W2F + (r - HACC) % 32}")
        for i, r in enumerate(rs): e(f"v_add_f32 v{T+i}, 1.0, v{T+i}")
        for i, r in enumerate(rs): e(f"v_rcp_f32 v{T+i}, v{T+i}")
        for i, r in enumerate(rs): e(f"v_fmac_f32 v{SUM + 2*tile + (i&1)}, v{r}, v{T+i}")
    for blk in range(16):
        if blk == PAR.gsplit:
            lwait(g, "BFREE"); poll1(g, CK3, "F3", pre=[197]); dma_img(g, "L3", 44, BUFB)
        if blk == PAR.gsplit2:
            e("s_waitcnt vmcnt(0)"); arrive(g, "L3OK")
        if blk == PAR.ghi: e("s_setprio 0")
        if blk < PAR.ngelu: gelu(blk)
    e("s_setprio 2")
    e(f"v_add_f32 v{SUM}, v{SUM}, v{SUM+1}"); e(f"v_add_f32 v{SUM+2}, v{SUM+2}, v{SUM+3}")
    e(f"v_permlane32_swap_b32 v{SUM}, v{SUM+2}")
    e(f"v_add_f32 v{SUM}, v{SUM}, v{SUM+2}")
    e(f"v_min_u32 v{SUM}, -2, v{SUM}")
    e("v_lshlrev_b32 v1, 2, v0")
    e(f"buffer_store_dword v{SUM}, v1, {sr(S_WS)}, s{S_PO} offen sc1")
    g.stamp()
    g.flush_stamps(4, 5)
    e("s_endpgm")

def gsignal(g, c, so):
    e = g.e; done = g.newlab("sg")
    if c: e("s_waitcnt vmcnt(0)"); arrive(g, c)
    e(f"s_cmp_lg_u32 s{S_J}, 0"); e(f"s_cbranch_scc1 {done}")
    if c: lwait(g, c)
    e(f"v_mul_u32_u24 v2, {PAR.cstr}, v0"); e("v_cmp_lt_u32 vcc, 15, v0"); e(f"v_mov_b32 v3, {OOB}"); e("v_cndmask_b32 v2, v2, v3, vcc")
    e("v_mov_b32 v1, 1")
    e(f"buffer_atomic_add v1, v2, {sr(S_WS)}, {so} offen sc1")
    g.lab(done)
SCN, FR, WV, WP, W1V, AQ, RW = 68, 104, 121, 122, 108, 44, 180
QAR = lambda i: (64 + i) if i < 4 else (240 + i)
S_E4, S_LW = 62, 63
def prod_early1(g):
    e = g.e
    g.lab("L_gsig")
    e("s_waitcnt vmcnt(0)"); arrive(g, "GST")
    e(f"s_cmp_lg_u32 s{S_J}, 0"); e("s_cbranch_scc1 L_xpub")
    lwait(g, "GST")
    e("v_mov_b32 v1, 1"); e(f"buffer_atomic_add v1, v{V_L0}, {sr(S_DBG)}, 0 offen offset:128 sc1")
    g.lab("L_xpub")
    XS = 180
    lwait(g, "RAW")
    for t in range(7): e(f"ds_read_b128 {vr(XS+4*t,4)}, v245 offset:{256*t}")
    e(f"s_cmp_ge_u32 s{S_J}, 2"); e(f"s_cselect_b32 s{S_T}, {OOB}, 0"); e(f"v_add_u32 v245, s{S_T}, v246")
    for t in range(7):
        e(f"s_waitcnt lgkmcnt({6-t})")
        g.vm(f"buffer_store_dwordx4 {vr(XS+4*t,4)}, v{246 if t < 6 else 245}, {sr(S_WS)}, s{S_XB} offen sc1", "xst")
        e(f"s_add_u32 s{S_XB}, s{S_XB}, 16384")
    arrive(g, "RB")
    e(f"s_cmp_ge_u32 s{S_R}, 13"); e(f"s_cselect_b32 s{S_T}, {OOB}, 0")
    e(f"v_lshl_add_u32 v1, v0, 2, s{S_T}"); e("v_mov_b32 v3, -1")
    g.vm(f"buffer_store_dword v3, v1, {sr(S_WS)}, s{S_PO} offen sc1", "sent")
    e(f"s_lshl_b32 s{S_T}, s{S_J}, 8"); e("v_lshrrev_b32 v29, 4, v0"); e(f"v_lshl_add_u32 v29, v29, 8, s{S_T}"); e("v_lshl_add_u32 v29, v0, 2, v29")
    g.vm(f"buffer_load_dword v28, v29, {sr(S_DBG)}, 0 offen offset:{C_RDY} sc1", "rdyl")
    e(f"v_lshrrev_b32 v1, 1, v{V_H16}")
    for a in range(2):
        for q in range(4):
            g.vm(f"buffer_load_dwordx2 {vr(BT+8*a+2*q,2)}, v1, {sr(S_B1)}, s{S_SB} offen offset:{64*a+16*q}", "bias")
    e(RET)
    g.lab("L_pe1")
    e(f"s_mul_i32 s{S_L}, s{S_WP}, 94"); e(f"s_lshr_b32 s{S_L}, s{S_L}, 10")
    e(f"s_mul_i32 s{S_T}, s{S_L}, 11"); e(f"s_sub_u32 s{S_FR}, s{S_WP}, s{S_T}"); e(f"s_lshl_b32 s{S_FR}, s{S_FR}, 2"); e(f"s_add_u32 s{S_FR}, s{S_FR}, s{S_J}")
    e(f"s_add_u32 s{S_L}, s{S_L}, 2")
    e(f"s_mul_i32 s{S_E2}, s{S_L}, {LB}")
    e(f"s_add_u32 s{S_LC+2}, s{S_E2}, {LB}")
    e("v_lshlrev_b32 v1, 4, v0")
    e(f"s_mul_i32 s{S_T}, s{S_J}, 9216"); e(f"s_add_u32 s{S_T}, s{S_T}, s{S_E2}")
    for i in range(9):
        if i % 4 == 0 and i: e(f"s_add_u32 s{S_T}, s{S_T}, 4096")
        e(f"buffer_load_dwordx4 {vr(SCN+4*i,4)}, v1, {sr(S_LC)}, s{S_T} offen offset:{(i%4)*1024}")
    e(f"s_cmp_ge_u32 s{S_WP}, 22"); e("s_cbranch_scc1 L_ret")
    e(f"s_lshl_b32 s{S_T}, s{S_FR}, 4"); e(f"s_add_u32 s{S_T}, s{S_T}, s{S_E2}")
    e(f"buffer_load_dwordx4 {vr(FR,4)}, v243, {sr(S_LC)}, s{S_T} offen")
    e(f"v_lshlrev_b32 v1, 1, v{V_HROW}"); e(f"s_mul_i32 s{S_T}, s{S_L}, 52")
    e(f"buffer_load_ushort v{WV}, v1, {sr(S_WO)}, s{S_T} offen")
    e(f"buffer_load_ushort v{WP}, v1, {sr(S_WO)}, 52 offen")
    e("v_lshrrev_b32 v3, 5, v0"); e("v_mul_u32_u24 v3, 26, v3")
    for i in range(8):
        e(f"s_lshl_b32 s{S_T}, s{S_FR}, 3"); e(f"s_sub_u32 s{S_T}, s{S_T}, {8*42 + 2 - i}")
        e(f"s_lshl_b32 s{S_T+1}, s{S_T}, 1"); e(f"s_add_u32 s{S_T+1}, s{S_T+1}, 52")
        e(f"s_cmp_lt_u32 s{S_T}, 13"); e(f"s_cselect_b32 s{S_T+1}, s{S_T+1}, {OOB}")
        e(f"v_add_u32 v2, s{S_T+1}, v3")
        e(f"buffer_load_ushort v{W1V+i}, v2, {sr(S_WO)}, 0 offen")
    g.lab("L_ret")
    e(RET)
def prod_early2(g):
    e = g.e
    g.lab("L_pe2")
    e("s_waitcnt vmcnt(15)")
    e(f"v_mov_b32 v{V_CNT}, {M_CNT}")
    for i in range(36): e(f"v_and_b32 v{SCN+i}, s{S_MASK}, v{SCN+i}")
    pkmax(g, [SCN + i for i in range(36)])
    put_max(g, M_SC)
    arrive(g, "SCM"); lwait(g, "SCM")
    get_max(g, M_SC)
    e(f"v_readfirstlane_b32 s{S_E0}, v1")
    e(f"s_bfe_u32 s{S_E0}, s{S_E0}, 0x80007")
    e(f"s_cmp_ge_u32 s{S_WP}, 22"); e("s_cbranch_scc1 L_ret")
    g.lab("L_gjob")
    e(f"s_min_u32 s{S_T+2}, s{S_E0}, 249"); e(f"s_sub_u32 s{S_T+3}, {127+124}, s{S_T+2}"); e(f"s_lshl_b32 s{S_T+3}, s{S_T+3}, 23")
    e(f"s_cmp_lt_u32 s{S_FR}, 42"); e(f"s_cselect_b32 s{S_T+1}, -1, 0")
    for i in range(1, 4): e(f"v_and_b32 v{FR+i}, s{S_T+1}, v{FR+i}")
    e(f"s_cmp_lt_u32 s{S_FR}, 43"); e(f"s_cselect_b32 s{S_T+1}, -1, 0"); e(f"v_and_b32 v{FR}, s{S_T+1}, v{FR}")
    for i in range(4): e(f"v_alignbit_b32 v{FR+i}, v{FR+i}, v{FR+i}, v{V_H16}")
    for i in range(4):
        e(f"v_lshlrev_b32 v{SCN+2*i}, 16, v{FR+i}"); e(f"v_and_b32 v{SCN+2*i+1}, 0xffff0000, v{FR+i}")
    for i in range(8): e(f"v_mul_f32 v{SCN+i}, s{S_T+3}, v{SCN+i}")
    for i in range(4): e(f"v_cvt_pk_f16_f32 v{FR+i}, v{SCN+2*i}, v{SCN+2*i+1}")
    e(f"v_lshlrev_b32 v{WV}, 16, v{WV}")
    e(f"v_and_b32 v1, 0x7fffffff, v{WV}")
    wavemax_exp(g, 1, S_E1)
    e(f"s_sub_u32 s{S_E1}, s{S_E1}, 13"); e(f"s_sub_u32 s{S_T}, 0, s{S_E1}")
    e(f"v_ldexp_f32 v{WV}, v{WV}, s{S_T}")
    for i in range(8): e(f"v_mul_f32 v{SCN+i}, v{SCN+i}, v{WV}")
    for sh in (1, 2, 4, 8):
        for i in range(8): e(f"v_add_f32_dpp v{SCN+i}, v{SCN+i}, v{SCN+i} row_shr:{sh} {DPPALL} bound_ctrl:0")
    for i in range(8): e(f"v_add_f32_dpp v{SCN+i}, v{SCN+i}, v{SCN+i} row_bcast:15 row_mask:0xa bank_mask:0xf")
    for i in range(4): e(f"v_cvt_pk_f16_f32 v{SCN+2*i}, v{SCN+2*i}, v{SCN+2*i+1}")
    e("v_and_b32 v2, 31, v0"); e("v_cmp_eq_u32 vcc, 31, v2")
    for i in range(4): e(f"v_cndmask_b32 v{FR+i}, v{FR+i}, v{SCN+2*i}, vcc")
    e(f"v_lshlrev_b32 v1, 16, v{WP}"); e("v_and_b32 v1, 0x7fffffff, v1")
    wavemax_exp(g, 1, S_E4)
    e(f"s_sub_u32 s{S_T}, 15, s{S_E4}")
    for i in range(8): e(f"v_lshlrev_b32 v{W1V+i}, 16, v{W1V+i}")
    for i in range(8): e(f"v_ldexp_f32 v{W1V+i}, v{W1V+i}, s{S_T}")
    for i in range(4): e(f"v_cvt_pk_f16_f32 v{W1V+2*i}, v{W1V+2*i}, v{W1V+2*i+1}")
    e("v_cmp_eq_u32 vcc, 30, v2")
    for i in range(4): e(f"v_cndmask_b32 v{FR+i}, v{FR+i}, v{W1V+2*i}, vcc")
    e(f"s_cmp_lg_u32 s{S_FR}, 0"); e("s_cbranch_scc1 L_nohdr")
    e(f"s_sub_u32 s{S_T+2}, s{S_T+2}, 124"); e(f"s_add_u32 s{S_E1}, s{S_E1}, s{S_T+2}"); e(f"s_sub_u32 s{S_E4}, s{S_E4}, 15")
    e(f"v_writelane_b32 v{FR}, s{S_T+2}, 29"); e(f"v_writelane_b32 v{FR+1}, s{S_E1}, 29"); e(f"v_writelane_b32 v{FR+2}, s{S_E4}, 29")
    g.lab("L_nohdr")
    e(f"s_mul_i32 s{S_T}, s{S_L}, {44*1024}"); e(f"s_lshl_b32 s{S_T+1}, s{S_FR}, 10"); e(f"s_add_u32 s{S_T}, s{S_T}, s{S_T+1}")
    e(f"s_sub_u32 s{S_T}, s{S_T}, {88*1024 - IMG['L2']}")
    e("v_lshlrev_b32 v1, 4, v0")
    e(f"buffer_store_dwordx4 {vr(FR,4)}, v1, {sr(S_WS)}, s{S_T} offen sc1")
    e("s_nop 0")
    e(RET)
def helper_prod(g):
    e = g.e
    e(f"s_cmp_ge_u32 s{S_WP}, 31"); e("s_cbranch_scc1 L_idle")
    e(f"s_cmp_ge_u32 s{S_WP}, 22"); e("s_cbranch_scc1 L_nog")
    e("s_branch L_idle")
    g.lab("L_nog")
    lwait(g, "RB", 8)
    e("v_and_b32 v2, 31, v0"); e("v_lshrrev_b32 v3, 5, v0")
    e("v_mul_u32_u24 v1, 676, v3"); e("v_add_lshl_u32 v1, v1, v2, 1")
    e(f"s_mul_i32 s{S_T}, s{S_FR}, 52"); e(f"s_add_u32 s{S_T}, s{S_T}, {4*LB}")
    for s in range(13):
        e(f"buffer_load_ushort v{W1V+s}, v1, {sr(S_LC)}, s{S_T} offen")
        e(f"s_add_u32 s{S_T}, s{S_T}, 2704")
    e(f"s_cmp_eq_u32 s{S_WP}, 29"); e(f"s_cselect_b32 s{S_LW}, 4, 5"); e(f"s_cmp_eq_u32 s{S_WP}, 30"); e(f"s_cselect_b32 s{S_LW}, 0, s{S_LW}")
    e(f"s_mul_i32 s{S_E2}, s{S_LW}, {LB}"); e(f"s_add_u32 s{S_LC+2}, s{S_E2}, {LB}")
    e("v_lshlrev_b32 v1, 1, v0"); e("v_cmp_lt_u32 vcc, 25, v0"); e(f"v_mov_b32 v2, {OOB}"); e("v_cndmask_b32 v1, v1, v2, vcc")
    e(f"s_mul_i32 s{S_T}, s{S_LW}, 52")
    e(f"buffer_load_ushort v{WV}, v1, {sr(S_WO)}, s{S_T} offen")
    e("v_lshlrev_b32 v1, 4, v0")
    e(f"s_mul_i32 s{S_T}, s{S_J}, 1352"); e(f"s_add_u32 s{S_T}, s{S_T}, s{S_E2}")
    for t in range(7):
        for ps in range(2):
            e(f"buffer_load_dwordx4 {vr(RW+8*t+4*ps,4)}, v1, {sr(S_LC)}, s{S_T} offen offset:{1024*ps}")
        e(f"s_add_u32 s{S_T}, s{S_T}, {4*1352}")
    e("s_waitcnt vmcnt(0)")
    AC = HX; TU = HX + 16
    for t in range(6): e(f"v_lshl_or_b32 v{QAR(t)}, v{W1V+2*t+1}, 16, v{W1V+2*t}")
    e(f"v_mov_b32 v{QAR(6)}, v{W1V+12}"); e(f"v_mov_b32 v{QAR(7)}, 0")
    g.stamp("q")
    e(f"v_lshlrev_b32 v{WV}, 16, v{WV}"); e(f"v_and_b32 v1, 0x7fffffff, v{WV}")
    wavemax_exp(g, 1, S_E1)
    e(f"s_sub_u32 s{S_T}, 0, s{S_E1}"); e(f"v_ldexp_f32 v{WV}, v{WV}, s{S_T}")
    for i in range(16): e(f"v_mov_b32 v{AC+i}, 0")
    for t in range(7):
        e(f"s_add_u32 s{S_T}, s{S_J}, {4*t}")
        e(f"v_readlane_b32 s{S_T+1}, v{WV}, s{S_T}")
        for i in range(8):
            e(f"v_lshlrev_b32 v{TU+2*i}, 16, v{RW+8*t+i}"); e(f"v_and_b32 v{TU+2*i+1}, 0xffff0000, v{RW+8*t+i}")
        for i in range(16): e(f"v_fmac_f32 v{AC+i}, s{S_T+1}, v{TU+i}")
    PSTR = 4096
    e(f"s_mul_i32 s{S_T}, s{S_J}, {PSTR}"); e(f"s_add_u32 s{S_T}, s{S_T}, {D0}")
    e(f"v_lshl_add_u32 v1, v0, 5, s{S_T}")
    for ps in range(2):
        for hf in range(2): e(f"ds_write_b128 v1, {vr(AC+8*ps+4*hf,4)} offset:{2048*ps+16*hf}")
    g.stamp("q"); arrive(g, "WC"); lwait(g, "WC"); g.stamp("q")
    e(f"s_cmp_eq_u32 s{S_FR}, 28"); e("s_cbranch_scc1 L_lin")
    e(f"s_cmp_lt_u32 s{S_FR}, 26"); e("s_cbranch_scc1 L_q")
    e(f"s_cmp_lg_u32 s{S_FR}, 32"); e("s_cbranch_scc1 L_noq")
    g.lab("L_q")
    BQ, PT, DQ = HX + 16, HX + 32, HX + 96
    e("v_and_b32 v2, 31, v0"); e("v_lshrrev_b32 v3, 5, v0")
    e("v_mad_u32_u24 v1, v3, 26, v2"); e("v_lshlrev_b32 v1, 2, v1"); e(f"v_add_u32 v1, {D0}, v1")
    def readsum(stride):
        for pj in range(4):
            for s in range(13): e(f"ds_read_b32 v{PT+13*pj+s}, v1 offset:{PSTR*pj + stride*s}")
            if pj: e("s_waitcnt lgkmcnt(13)")
        e("s_waitcnt lgkmcnt(0)")
        for s in range(13):
            e(f"v_add_f32 v{PT+s}, v{PT+s}, v{PT+13+s}"); e(f"v_add_f32 v{PT+26+s}, v{PT+26+s}, v{PT+39+s}")
        for s in range(13): e(f"v_add_f32 v{BQ+s}, v{PT+s}, v{PT+26+s}")
    def max13():
        e(f"v_max3_f32 v1, |v{BQ}|, |v{BQ+1}|, |v{BQ+2}|")
        for s in range(3, 13, 2): e(f"v_max3_f32 v1, v1, |v{BQ+s}|, |v{BQ+s+1}|")
    readsum(208)
    e("v_cmp_gt_u32 vcc, 26, v2")
    for s in range(13): e(f"v_cndmask_b32 v{BQ+s}, 0, v{BQ+s}, vcc")
    max13()
    wavemax_exp(g, 1, S_E2)
    e(f"s_sub_u32 s{S_T}, 0, s{S_E2}")
    for s in range(13): e(f"v_ldexp_f32 v{BQ+s}, v{BQ+s}, s{S_T}")
    e(f"s_max_u32 s{S_E0}, s{S_E0}, 10"); e(f"s_sub_u32 s{S_E0}, s{S_E0}, 126")
    BH, BL = PT, PT + 8
    e(f"v_mov_b32 v{BQ+13}, 0"); e(f"v_mov_b32 v{BH+7}, 0"); e(f"v_mov_b32 v{BL+7}, 0")
    for t in range(7): e(f"v_cvt_pk_bf16_f32 v{BH+t}, v{BQ+2*t}, v{BQ+2*t+1}")
    for t in range(7):
        e(f"v_lshlrev_b32 v{PT+16+2*t}, 16, v{BH+t}"); e(f"v_and_b32 v{PT+17+2*t}, 0xffff0000, v{BH+t}")
    for t in range(14): e(f"v_sub_f32 v{BQ+t}, v{BQ+t}, v{PT+16+t}")
    for t in range(7): e(f"v_cvt_pk_bf16_f32 v{BL+t}, v{BQ+2*t}, v{BQ+2*t+1}")
    e(f"s_cmp_ge_u32 s{S_FR}, 13"); e(f"s_cselect_b32 s{S_T+1}, 13, 0"); e(f"s_cselect_b32 s{S_T+2}, 4, 0")
    e(f"s_sub_u32 s{S_T+1}, s{S_FR}, s{S_T+1}"); e(f"s_and_b32 s{S_T+3}, s{S_T+1}, 3"); e(f"s_add_u32 s{S_T+2}, s{S_T+2}, s{S_T+3}")
    e(f"s_lshr_b32 s{S_T+1}, s{S_T+1}, 2"); e(f"s_lshl_b32 s{S_T+1}, s{S_T+1}, 3"); e(f"s_add_u32 s{S_SB}, s{S_T+2}, s{S_T+1}")
    e(f"s_mov_b32 s{S_L}, 0")
    e(f"s_cmp_lg_u32 s{S_FR}, 32"); e("s_cbranch_scc1 L_q2")
    e("v_sub_u32 v1, v2, v3")
    for s in range(13):
        e(f"v_cmp_eq_u32 vcc, {2*s}, v1"); e(f"v_cndmask_b32 v{AQ+s}, 0, 1.0, vcc")
    e(f"v_mov_b32 v{AQ+13}, 0")
    for t in range(7): e(f"v_cvt_pk_bf16_f32 v{QAR(t)}, v{AQ+2*t}, v{AQ+2*t+1}")
    e(f"s_mov_b32 s{S_E0}, 0"); e(f"s_mov_b32 s{S_SB}, 31"); e(f"s_mov_b32 s{S_L}, 8")
    g.lab("L_q2")
    g.stamp("q")
    e("s_nop 1")
    first = True
    for bb in (BL, BH):
        for ks in range(2):
            e(f"v_mfma_f32_32x32x16_bf16 {vr(DQ,16)}, {vr(QAR(4*ks),4)}, {vr(bb+4*ks,4)}, {'0' if first else vr(DQ,16)}"); first = False
            e(f"v_mfma_f32_32x32x16_bf16 {vr(DQ,16)}, {vr(bb+4*ks,4)}, {vr(QAR(4*ks),4)}, {vr(DQ,16)}")
    e(f"v_max_f32 v1, v{QS}, v{QS+1}")
    e(f"s_sub_u32 s{S_T}, 137, s{S_E0}"); e(f"s_lshl_b32 s{S_T}, s{S_T}, 23"); e(f"v_mov_b32 v30, s{S_T}"); e("v_mul_f32 v31, 0.5, v30")
    for t in range(7):
        e(f"v_cmp_eq_f32 vcc, v1, v{QS+t}"); e(f"v_cndmask_b32 v{QS+t}, v31, v30, vcc")
    e(f"s_cmp_eq_u32 s{S_J}, 1"); e(f"s_cselect_b32 s{S_T}, 48, 0"); e(f"s_sub_u32 s{S_T}, {D1 - BUFA}, s{S_T}")
    for t in range(7): e(f"v_add_u32 v{QA+t}, s{S_T}, v{QA+t}")
    e(f"v_mul_u32_u24 v1, {S0STR}, v2"); e("v_lshl_add_u32 v1, v3, 9, v1"); e(f"s_lshl_b32 s{S_T}, s{S_J}, 4"); e(f"s_add_u32 s{S_T}, s{S_T}, {D1}")
    e(f"v_min_u32 v1, {22*S0STR+512}, v1")
    e(f"v_add_u32 v1, s{S_T}, v1")
    e(f"v_lshl_add_u32 v28, v3, 9, s{S_T}"); e("v_mov_b32 v29, 0")
    e(f"ds_write_b32 v28, v29 offset:{22*S0STR+12}")
    pack_round(g, DQ, 0, False)
    g.stamp("q")
    e("s_waitcnt lgkmcnt(0)")
    e(f"ds_read_b128 {vr(AQ,4)}, v1")
    e("v_lshlrev_b32 v1, 10, v2"); e("v_lshl_add_u32 v1, v3, 9, v1"); e("v_cmp_lt_u32 vcc, 22, v2"); e(f"v_mov_b32 v28, {OOB}"); e("v_cndmask_b32 v1, v1, v28, vcc")
    e(f"s_lshl_b32 s{S_T}, s{S_SB}, 4"); e(f"s_add_u32 s{S_T}, s{S_T}, {IMG['Q4']}")
    e("s_waitcnt lgkmcnt(0)")
    e(f"buffer_store_dwordx4 {vr(AQ,4)}, v1, {sr(S_WS)}, s{S_T} offen sc1")
    e(f"s_add_u32 s{S_E0}, s{S_E0}, s{S_E2}"); e(f"s_add_u32 s{S_E0}, s{S_E0}, s{S_E1}"); e(f"s_sub_u32 s{S_E0}, s{S_E0}, 10")
    e(f"s_and_b32 s{S_T}, s{S_FR}, 31"); e(f"s_cmp_lg_u32 s{S_T}, 0"); e("s_cbranch_scc1 L_noq")
    g.lab("L_qh")
    e(f"v_mov_b32 v1, s{S_E0}"); e(f"s_add_u32 s{S_T}, s{S_L}, {IMG['Q4'] + 23*1024}")
    e(f"buffer_store_dword v1, v{V_L0}, {sr(S_WS)}, s{S_T} offen sc1")
    e("s_branch L_noq")
    g.lab("L_lin")
    e("v_lshrrev_b32 v3, 5, v0"); e(f"v_min_u32 v2, 25, v{V_HROW}")
    e("v_mad_u32_u24 v1, v2, 26, v3"); e("v_lshlrev_b32 v1, 2, v1"); e(f"v_add_u32 v1, {D0}, v1")
    readsum(8)
    e(f"v_cmp_gt_u32 vcc, 26, v{V_HROW}")
    for s in range(13): e(f"v_cndmask_b32 v{BQ+s}, 0, v{BQ+s}, vcc")
    max13()
    wavemax_exp(g, 1, S_E2)
    e(f"s_sub_u32 s{S_T}, 15, s{S_E2}")
    for s in range(13): e(f"v_ldexp_f32 v{BQ+s}, v{BQ+s}, s{S_T}")
    e(f"v_mov_b32 v{BQ+13}, 0"); e(f"v_mov_b32 v{AQ+7}, 0")
    for t in range(7): e(f"v_cvt_pk_f16_f32 v{AQ+t}, v{BQ+2*t}, v{BQ+2*t+1}")
    e("v_lshlrev_b32 v1, 4, v0"); e(f"s_mov_b32 s{S_T}, {IMG['Q4'] + 24*1024}")
    for s in range(2): e(f"buffer_store_dwordx4 {vr(AQ+4*s,4)}, v1, {sr(S_WS)}, s{S_T} offen offset:{1024*s} sc1")
    e(f"s_add_u32 s{S_E0}, s{S_E2}, s{S_E1}"); e(f"s_sub_u32 s{S_E0}, s{S_E0}, 15"); e(f"s_mov_b32 s{S_L}, 4")
    e("s_branch L_qh")
    g.lab("L_noq")
    g.stamp("q")
    e(f"s_mov_b32 s{S_T+2}, {WS_CNT + C_Q}")
    gsignal(g, "QST", f"s{S_T+2}")
    g.stamp("q")
    lwait(g, "QST")
    g.lab("L_idle")
    g.stamp()
    lwait(g, "AFREE")
    poll1(g, [(S_DBG, "0", 128, 11)], "F2")
    dma_img(g, "L2", 44, BUFA)
    e("s_waitcnt vmcnt(0)"); arrive(g, "L2OK")
    g.stamp()
    lwait(g, "L2OK")
    if PAR.l3late:
        e(f"s_sub_u32 s{S_T}, s{S_WP}, 11"); e(f"s_cmp_ge_u32 s{S_T}, 11"); e("s_cbranch_scc1 L_nol3")
        e(f"s_mov_b32 s{S_T+2}, {WS_CNT + C_L[3]}")
        gsignal(g, None, f"s{S_T+2}")
        g.lab("L_nol3")
    poll1(g, [(S_WS, f"s{S_CX}", C_Q, 9), CHK_X()], "FQ")
    dma_img(g, "Q4", 28, D0)
    e("s_waitcnt vmcnt(0)"); arrive(g, "QOK")
    g.stamp()
    lwait(g, "BFREE")
    poll1(g, [(S_WS, f"s{S_CX}", C_L[3], 11)], "F3")
    dma_img(g, "L3", 44, BUFB)
    e("s_waitcnt vmcnt(0)"); arrive(g, "L3OK")
    g.stamp()
    g.flush_stamps(4, 5)
    e("s_endpgm")

def build(stamps=False):
    g = G(stamps)
    prologue(g); n0 = g.nst
    cin(g)
    g.lab("L_helper"); g.nst = n0
    helper_common(g); n1 = g.nst
    g.e(f"s_cmp_ge_u32 s{S_R}, 13"); g.e("s_cbranch_scc1 L_helper_n")
    helper_dnn(g)
    g.lab("L_helper_n"); g.nst = n1
    helper_prod(g)
    prod_early1(g); prod_early2(g)
    g.L += g.tail
    g.lab("L_end"); g.e("s_endpgm")
    body, nops = fix_hazards(g.L)
    ref = open("standalone__deep_cross_xdeepfm__recsys.s.ref").read().split("\n")
    hdr = [l for l in ref if l.startswith(";") and "@launch" not in l and "Override" not in l and "grid=ceil" not in l]
    txt = "\n".join(hdr) + f"\n; @launch grid=(256,1,1) block=(512,1,1) lds={LDS_TOTAL}\n"
    txt += f'.amdgcn_target "amdgcn-amd-amdhsa--gfx950"\n.text\n.globl {KN}\n.p2align 8\n.type {KN},@function\n{KN}:\n'
    txt += "\n".join(body) + "\n"
    txt += f""".section .rodata,"a"
.p2align 6
.amdhsa_kernel {KN}
  .amdhsa_next_free_vgpr 256
  .amdhsa_next_free_sgpr 102
  .amdhsa_accum_offset 256
  .amdhsa_group_segment_fixed_size 0
  .amdhsa_kernarg_size 88
  .amdhsa_user_sgpr_count 2
  .amdhsa_user_sgpr_kernarg_segment_ptr 1
  .amdhsa_system_sgpr_workgroup_id_x 1
.end_amdhsa_kernel
"""
    return txt, nops
if __name__ == "__main__":
    for a in sys.argv[2:]:
        if "=" in a:
            k, v = a.split("="); setattr(PAR, k, eval(v))
    txt, nops = build(stamps="stamps" in sys.argv)
    open(sys.argv[1], "w").write(txt)
    print("nops inserted", nops, "lines", txt.count("\n"))
```

```python
import sys, struct
from asmlib import fix_hazards
KN = "standalone__deep_cross_xdeepfm__recsys_kernel"
def f2u(f): return struct.unpack('<I', struct.pack('<f', f))[0]
OOB = 0x40000000
SPIN = 200000
LB = 35152
IMG = {}
off = 0
for name, n in (("L2", 44), ("L3", 44), ("Q4", 28)):
    IMG[name] = off; off += n * 1024
WS_PART = off
WS_CNT = WS_PART + 16 * 13 * 1024
WS_STAMP = WS_CNT + 16 * 8192
WS_X = WS_STAMP + 256 * 8 * 64
C_L = {2: 4, 3: 8}; C_Q = 12; C_RDY = 0
BUFA, BUFB = 0, 45056
D0, D1 = 90112, 118784
MISC = 147456
LDS_TOTAL = MISC + 2560
M_S0, M_L1, M_SC, M_EW1, M_CNT = MISC, MISC + 64, MISC + 128, MISC + 192, MISC + 256
CNT = {n: M_CNT + 4 * i for i, n in enumerate(["XST", "L1M", "L1OK", "AFREE", "L2OK", "BFREE", "L3OK", "QOK", "W01", "C0", "C1", "C2", "SCM", "GST", "WC", "QST", "FX", "F2", "F3", "FQ", "S0OK", "S0M", "RAW", "RB"])}
CNT["AFREE"] = M_CNT + 4 * 28; CNT["BFREE"] = M_CNT + 4 * 29; CNT["RB"] = M_CNT + 4 * 30
S0STR = 1040
XSTR = 1680
QPAIRS = [(p, q) for p in range(13) for q in range(p, 13)]
S_IDX, S_TAB, S_WS, S_W1, S_B1, S_W2, S_OUT, S_DBG, S_BO, S_WC, S_WO = 4, 8, 12, 16, 20, 24, 28, 32, 36, 40, 44
S_G, S_R, S_WAVE, S_J = 70, 71, 83, 3
S_HDR = 48
S_EX = 60
S_K = 64
S_K1 = 4
S_KC = 76
S_T = 72
S_MASK = 80
S_C1 = 81
S_SB = 82
S_ST = 84
class P: pass
PAR = P()
PAR.chunks = [7, 7, 6, 6]
PAR.gsplit = 0
PAR.gsplit2 = 7
PAR.lnpos = 28
PAR.pload = 37
PAR.xst = 2
PAR.l2pos = -1
PAR.nslot = 8
PAR.st = 'ad'
PAR.ld = 'sc1'
PAR.inv = 0
PAR.encsel = None
PAR.gmin = 0
PAR.qaearly = 0
PAR.gmod = 'nt'
PAR.imod = 'nt'
PAR.pkpack = 0
PAR.w0lin = 0
PAR.l3rate = 22
PAR.qarr = 3
PAR.gearly = 11
PAR.ngelu = 16
PAR.nmf = 4
PAR.npk = 4
PAR.lslp = 4
PAR.zpad = 1
PAR.skew = 1
PAR.cstr = 4352
PAR.l3late = 1
PAR.xp = 3
PAR.wearly = 2
PAR.wpf2 = 0
PAR.ghi = 5
PAR.qchk = 6
PAR.cp = 1
PAR.enc = None
PAR.rate = 20
PAR.qrate = 32
PAR.clk = 0
PAR.hp = 0
PAR.nost = 0
PAR.wpf = 1
PAR.rot = 2
PAR.pf = 4
PAR.qlate = 0
PAR.slp = 8
PAR.de = 2
PAR.touch = 0
PAR.dbg = None
class G:
    def __init__(self, stamps=False):
        self.L = []; self.stamps = stamps; self.nst = 0; self.nl = 0; self.vmq = []; self.tail = []
    def e(self, s): self.L.append("    " + s)
    def lab(self, s): self.L.append(s + ":")
    def vm(self, s, tag): self.e(s); self.vmq.append(tag)
    def vmwait(self, *tags):
        idx = max(i for i, t in enumerate(self.vmq) if t in tags)
        n = len(self.vmq) - 1 - idx
        self.e(f"s_waitcnt vmcnt({min(n, 63)})")
    def newlab(self, s): self.nl += 1; return f"L_{s}_{self.nl}"
    def stamp(self, name=None):
        if self.stamps and (name or "d") in PAR.st:
            assert self.nst < 8
            self.e(f"{'s_memtime' if PAR.clk else 's_memrealtime'} s[{S_ST+2*self.nst}:{S_ST+2*self.nst+1}]"); self.nst += 1
    def flush_stamps(self, vt, va):
        if not self.stamps: return
        self.e("s_waitcnt lgkmcnt(0)")
        self.e(f"s_lshl_b32 s{S_T}, s2, 3"); self.e(f"s_add_u32 s{S_T}, s{S_T}, s{S_WAVE}"); self.e(f"s_lshl_b32 s{S_T}, s{S_T}, 6")
        self.e(f"s_add_u32 s{S_T}, s{S_T}, {WS_STAMP}")
        self.e(f"v_mov_b32 v{va}, 0")
        if PAR.dbg is not None:
            lb = self.newlab("nd")
            self.e(f"s_cmp_lg_u32 s{S_T}, {WS_STAMP + PAR.dbg*64}"); self.e(f"s_cbranch_scc1 {lb}")
            for i in range(self.nst):
                self.e(f"s_sub_u32 s{S_T+1}, s{S_ST+2*i}, s{S_ST}")
                self.e(f"v_mov_b32 v{vt}, s{S_T+1}")
                self.e(f"buffer_store_dword v{vt}, v{va}, s[{S_DBG}:{S_DBG+3}], 0 offen offset:{64+4*i}")
            self.lab(lb)
        for i in range(self.nst):
            self.e(f"v_mov_b32 v{vt}, s{S_ST+2*i}")
            self.e(f"buffer_store_dword v{vt}, v{va}, s[{S_WS}:{S_WS+3}], s{S_T} offen offset:{4*i}")
        self.nst = 0
def vr(a, n): return f"v[{a}:{a+n-1}]"
def sr(a, n=4): return f"s[{a}:{a+n-1}]"
DPPALL = "row_mask:0xf bank_mask:0xf"

def prologue(g):
    e = g.e
    e("s_cmp_ge_u32 s2, 256")
    e("s_cbranch_scc1 L_end")
    g.stamp("a")
    e("s_load_dwordx16 s[48:63], s[0:1], 0")
    e("s_load_dwordx4 s[64:67], s[0:1], 64")
    e("s_load_dwordx2 s[68:69], s[0:1], 80")
    if PAR.pf:
        e(f"s_getpc_b64 s[{S_KC}:{S_KC+1}]")
        g.lab("L_pfbase")
        e(f"s_mov_b32 s{S_KC+2}, L_end - L_pfbase"); e(f"s_mov_b32 s{S_KC+3}, 0x00020000")
        e(f"s_lshr_b32 s{S_T}, s2, 3"); e(f"s_lshl_b32 s{S_T}, s{S_T}, 7")
        e("v_xor_b32 v1, 0x1c0, v0"); e("v_lshlrev_b32 v1, 12, v1")
        e(f"buffer_load_dword v255, v1, {sr(S_KC)}, s{S_T} offen")
    e("v_lshrrev_b32 v1, 6, v0")
    e("v_and_b32 v0, 63, v0")
    e(f"v_readfirstlane_b32 s{S_WAVE}, v1")
    e(f"s_and_b32 s{S_T}, s2, 7")
    e(f"s_lshr_b32 s{S_T+1}, s2, 3")
    e(f"s_lshr_b32 s{S_G}, s{S_T+1}, 4")
    e(f"s_lshl_b32 s{S_T}, s{S_T}, 1")
    e(f"s_add_u32 s{S_G}, s{S_G}, s{S_T}")
    e(f"s_and_b32 s{S_R}, s{S_T+1}, 15")
    e(f"s_mov_b32 s{S_MASK}, 0x7fff7fff")
    e("v_and_b32 v25, 31, v0"); e("v_lshlrev_b32 v25, 2, v25"); e(f"v_add_u32 v25, {M_CNT}, v25"); e("v_mov_b32 v2, 0")
    e("ds_write_b32 v25, v2")
    e(f"s_cmp_ge_u32 s{S_WAVE}, 4")
    e("s_cbranch_scc1 L_helper")

SRDS = {S_IDX: (48, 4096*104), S_TAB: (50, 6400000), S_WC: (52, LB), S_WO: (54, 312), S_W1: (56, 832*1664), S_B1: (58, 1664), S_W2: (60, 1664),
        S_BO: (62, 2), S_OUT: (64, 8192), S_DBG: (66, 256), S_WS: (68, 1 << 28)}
def srd_const(g, lst):
    for srd in lst: g.e(f"s_mov_b32 s{srd+2}, {SRDS[srd][1]}"); g.e(f"s_mov_b32 s{srd+3}, 0x00020000")
def srd_base(g, lst):
    for srd in lst: g.e(f"s_mov_b64 s[{srd}:{srd+1}], s[{SRDS[srd][0]}:{SRDS[srd][0]+1}]")
ACC, ACC2, XR, UR, BR, AR, SC, LG, TM = 4, 68, 132, 188, 216, 232, 244, 248, 252
def X(k, p): return XR + 14 * k + p
def EV(k): return XR + 14 * k + 13
def U(k, t): return UR + 7 * k + t
def cin(g):
    e = g.e
    e("s_setprio 1")
    e(f"s_lshl_b32 s{S_T}, s{S_G}, 8"); e(f"s_lshl_b32 s{S_T+1}, s{S_R}, 4"); e(f"s_add_u32 s{S_T}, s{S_T}, s{S_T+1}")
    e(f"s_lshl_b32 s{S_T+1}, s{S_WAVE}, 2"); e(f"s_add_u32 s{S_SB}, s{S_T}, s{S_T+1}")
    e("v_lshrrev_b32 v1, 4, v0")
    e("v_bfe_u32 v2, v0, 2, 2")
    e("v_and_b32 v3, 3, v0")
    e("v_mul_u32_u24 v4, 104, v1")
    e("v_mad_u32_u24 v4, v2, 28, v4")
    I = 8
    CS = [S_IDX, S_WC, S_TAB, S_WS, S_BO, S_OUT] + ([S_DBG] if PAR.dbg is not None or PAR.gmin else [])
    srd_const(g, CS)
    e(f"s_mov_b32 s{S_WC+2}, {2*LB}"); e(f"s_mov_b32 s{S_J}, s{S_WAVE}")
    e("v_lshlrev_b32 v5, 4, v3")
    e("v_cmp_eq_u32 vcc, 3, v2")
    e(f"v_mov_b32 v6, {OOB}")
    e("v_cndmask_b32 v6, 0, v6, vcc")
    e("v_add_u32 v6, v6, v5")
    e("v_lshlrev_b32 v26, 4, v0"); e("v_cmp_lt_u32 vcc, 42, v0"); e(f"v_mov_b32 v27, {OOB}"); e("v_cndmask_b32 v26, v26, v27, vcc")
    e("v_lshlrev_b32 v29, 4, v0"); e(f"v_add_u32 v29, {BUFA + 28*1024}, v29")
    e(f"s_lshl_b32 s{S_T}, s{S_J}, 4"); e(f"s_add_u32 s{S_T}, s{S_T}, {BUFB}")
    e(f"v_mul_u32_u24 v28, {S0STR}, v0"); e(f"v_add_u32 v28, s{S_T}, v28"); e("v_cndmask_b32 v28, v28, v29, vcc")
    e(f"s_mul_i32 s{S_T+1}, s{S_WAVE}, {4*XSTR}"); e(f"s_add_u32 s{S_T+1}, s{S_T+1}, {D0}")
    e(f"v_mul_u32_u24 v7, {XSTR}, v1")
    e("v_mad_u32_u24 v16, v2, 7, 0")
    e("v_lshl_add_u32 v7, v16, 6, v7")
    e(f"v_add3_u32 v7, v7, v5, s{S_T+1}")
    e("v_cmp_eq_u32 vcc, 3, v2")
    e(f"v_lshl_add_u32 v18, v0, 4, 0"); e(f"v_add_u32 v18, {D0 + 16*XSTR + 256 - 320}, v18"); e("v_cndmask_b32 v18, v7, v18, vcc")
    e("v_lshrrev_b32 v16, 1, v1")
    e("v_xor_b32 v16, v16, v2")
    e("v_lshlrev_b32 v16, 6, v16")
    e("v_and_b32 v17, 1, v1")
    e("v_lshl_add_u32 v16, v17, 5, v16")
    e("v_lshl_add_u32 v16, v3, 3, v16")
    e(f"v_add_u32 v16, s{S_T+1}, v16")
    for k in range(4): e(f"v_mov_b32 v{LG+k}, 0")
    PA, PS, DR = 32, 40, 184
    if PAR.zpad:
        for i in range(4): e(f"v_mov_b32 v{PS+i}, 0")
        e(f"s_and_b32 s{S_T}, s{S_J}, 1"); e(f"s_mul_i32 s{S_T}, s{S_T}, 48"); e(f"s_lshr_b32 s{S_T+1}, s{S_J}, 1"); e(f"s_mul_i32 s{S_T+1}, s{S_T+1}, 480")
        e(f"s_add_u32 s{S_T}, s{S_T}, s{S_T+1}"); e(f"v_add_u32 v30, s{S_T}, v28")
        e(f"v_subrev_u32 v31, {BUFB - BUFA}, v30"); e("v_cmp_lt_u32 vcc, 22, v0"); e("v_cndmask_b32 v31, v31, v29, vcc")
        for i in range(3):
            e(f"ds_write_b128 v30, {vr(PS,4)} offset:{25*16 + 16*i}"); e(f"ds_write_b128 v31, {vr(PS,4)} offset:{25*16 + 16*i}")
    unpack_mat(g, PA, 20)
    e(f"s_mul_i32 s{S_T}, s{S_SB}, 104")
    e("s_waitcnt lgkmcnt(0)")
    srd_base(g, CS[:1])
    e(f"buffer_load_dwordx4 {vr(I,4)}, v4, {sr(S_IDX)}, s{S_T} offen {PAR.imod}")
    e(f"buffer_load_dwordx3 {vr(I+4,3)}, v4, {sr(S_IDX)}, s{S_T} offen offset:16 {PAR.imod}")
    srd_base(g, CS[1:])
    e("s_barrier")
    L1R = 132
    e(f"s_mul_i32 s{S_T}, s{S_J}, 1352")
    for i in range(13):
        if i < 12:
            t = i >> 1
            if i & 1 == 0: e(f"s_add_u32 s{S_T+1}, s{S_T}, {LB + (13*(t&1) + 4*(t>>1))*1352}")
            e(f"buffer_load_dwordx4 {vr(L1R+4*i,4)}, v26, {sr(S_WC)}, s{S_T+1} offen offset:{676*(i&1)}")
        else:
            e(f"s_lshr_b32 s{S_T+1}, s{S_J}, 1"); e(f"s_mul_i32 s{S_T+1}, s{S_T+1}, {13*1352}"); e(f"s_and_b32 s{S_T+2}, s{S_J}, 1"); e(f"s_mul_i32 s{S_T+2}, s{S_T+2}, 676")
            e(f"s_add_u32 s{S_T+1}, s{S_T+1}, s{S_T+2}"); e(f"s_add_u32 s{S_T+1}, s{S_T+1}, {LB + 12*1352}")
            e(f"buffer_load_dwordx4 {vr(L1R+4*i,4)}, v26, {sr(S_WC)}, s{S_T+1} offen")
    e("s_setprio 3")
    e("s_waitcnt vmcnt(13)")
    GR, MR = 68, 96
    for t in range(7):
        e(f"v_lshl_add_u32 v{I+t}, v{I+t}, 6, v{5 if t < 5 else 6}")
        e(f"buffer_load_dwordx4 {vr(GR+4*t,4)}, v{I+t}, {sr(S_TAB)}, 0 offen {PAR.gmod}")
    g.stamp()
    e(f"s_setprio {PAR.cp}")
    def carrive(c):
        e("v_mov_b32 v2, 1"); e("s_mov_b64 exec, 1"); e(f"ds_add_u32 v25, v2 offset:{CNT[c]-M_CNT}"); e("s_mov_b64 exec, -1")
    for i in range(13):
        e(f"s_waitcnt vmcnt({7 + 12 - i})")
        unpack(g, DR, PA, L1R, i)
        if i & 1 and i >= 3: tmax(g, DR, (i >> 1) - 1, 16, i == 3)
    e(f"s_and_b32 s{S_T}, s{S_J}, 1"); e(f"s_lshl_b32 s{S_T}, s{S_T}, 4")
    tmax(g, DR, 5, 16, False)
    for r in range(4): e(f"v_alignbit_b32 v{L1R+48+r}, v{L1R+48+r}, v{L1R+48+r}, s{S_T}")
    tmax(g, DR, 6, 8, False)
    put_max(g, M_L1)
    carrive("L1M")
    for i in range(8): e(f"v_and_b32 v{PS+i}, 0x800080, v{PA+i}")
    g.stamp("s")
    lwait(g, "L1M", 4, 25, 2)
    get_max(g, M_L1)
    e(f"v_readfirstlane_b32 s{S_T}, v1")
    e(f"s_lshr_b32 s{S_T}, s{S_T}, 23"); e(f"s_min_u32 s{S_T}, s{S_T}, 249"); e(f"s_sub_u32 s{S_HDR+2}, s{S_T}, 124")
    e(f"s_sub_u32 s{S_T}, {127+124}, s{S_T}")
    for i in range(8): e(f"v_mul_u32_u24 v{PS+i}, s{S_T}, v{PS+i}")
    def l1out(i):
        d = DR + 16 * ((i >> 1) & 3) + 8 * (i & 1)
        for r in range(4):
            lo, hi = (d + 2 * r + 1, d + 2 * r) if (i & 1) else (d + 2 * r, d + 2 * r + 1)
            e(f"v_cvt_pk_f16_f32 v{L1R+4*i+r}, v{lo}, v{hi}")
        if i < 12:
            t = i >> 1; o = 16 * (8 * (t >> 1) + 4 * (t & 1)) + 512 * (i & 1)
        else:
            e(f"s_lshr_b32 s{S_T}, s{S_J}, 1"); e(f"s_lshl_b32 s{S_T}, s{S_T}, 5"); e(f"s_and_b32 s{S_T+1}, s{S_J}, 1"); e(f"s_mul_i32 s{S_T+1}, s{S_T+1}, 496")
            e(f"s_add_u32 s{S_T}, s{S_T}, s{S_T+1}"); e(f"v_add_u32 v28, s{S_T}, v28"); o = 24 * 16
        e(f"ds_write_b128 v28, {vr(L1R+4*i,4)} offset:{o}")
    for i in range(13):
        unpack(g, DR, PS, L1R, i)
        if i >= 4: l1out(i - 4)
    for i in range(9, 13): l1out(i)
    g.stamp("s")
    e(f"ds_read_b32 v3, v25 offset:{CNT['S0OK']-M_CNT}")
    e("v_lshlrev_b32 v1, 4, v0")
    for i in range(2): e(f"ds_read_b128 {vr(AR+4*i,4)}, v1 offset:{BUFA + i*S0STR}")
    e("s_waitcnt lgkmcnt(2)")
    DR = 132
    e("v_mov_b32 v2, 1")
    e(f"s_setprio {PAR.xp}")
    for t in range(7):
        e(f"s_waitcnt vmcnt({6 - t})")
        unpack(g, DR, PA, GR, t)
        e(f"ds_write_b128 v{7 if t < 5 else 18}, {vr(GR+4*t,4)} offset:{64*t}")
        if t in (3, 5): tmax(g, DR, (t >> 1) - 1, 16, t == 3, 20)
    e("s_mov_b64 exec, 1"); e(f"ds_add_u32 v25, v2 offset:{CNT['RAW']-M_CNT}"); e("s_mov_b64 exec, -1")
    g.stamp(); g.stamp("s")
    tmax(g, DR, 2, 16, False, 20); tmax(g, DR, 3, 8, False, 20)
    for sh in (8, 4, 2, 1):
        e(f"v_max_u32_dpp v20, v20, v20 row_ror:{sh} {DPPALL}")
    e("v_lshrrev_b32 v20, 23, v20"); e("v_max_u32 v20, 4, v20")
    e(f"v_sub_u32 v22, {127+130}, v20"); e("v_lshlrev_b32 v22, 23, v22")
    for t in range(7):
        d = DR + 8 * t
        for i in range(8): e(f"v_mul_f32 v{d+i}, v{d+i}, v22")
        for i in range(4): e(f"v_cvt_pk_f16_f32 v{MR+4*t+i}, v{d+2*i}, v{d+2*i+1}")
        e(f"ds_write_b128 v{7 if t < 5 else 18}, {vr(MR+4*t,4)} offset:{D1 - D0 + 64*t}")
    for k in range(4):
        for t in range(7):
            e(f"ds_read_b64_tr_b16 {vr(X(k,2*t),2)}, v16 offset:{D1 - D0 + k*XSTR+t*256}")
    for k in range(4): e(f"v_readlane_b32 s{S_EX+k}, v20, {16*k}")
    HW = lambda l: S_HDR + 2 * l
    HD = lambda l: S_HDR + 2 * l + 1
    HQ, HL = S_HDR + 8, S_HDR + 9
    e("s_setprio 1")
    e(f"v_readfirstlane_b32 s{S_T}, v3"); e(f"s_cmp_ge_u32 s{S_T}, 4"); e("s_cbranch_scc1 L_s0ok")
    lwait(g, "S0OK", 4, 25, 2)
    for i in range(2): e(f"ds_read_b128 {vr(AR+4*i,4)}, v1 offset:{BUFA + i*S0STR}")
    g.lab("L_s0ok")
    e("s_waitcnt lgkmcnt(14)")
    g.stamp(); g.stamp("s")

    ready = set()
    def quad_prod(k, rho):
        p, q = QPAIRS[rho]
        return lambda d: f"v_pk_mul_f16 v{d}, v{X(k,p)}, v{X(k,q)} op_sel_hi:[0,1]"
    def gen_prod(l):
        def f(k, rho):
            r, p = divmod(rho, 13)
            def mk(d):
                if r == 13: return f"v_mov_b32 v{d}, v{U(k,p)}" if l == 2 else f"v_mov_b32 v{d}, 0"
                assert ('u', l, k, r) in ready, (l, k, r)
                if r & 1: return f"v_pk_mul_f16 v{d}, v{U(k,r>>1)}, v{X(k,p)} op_sel:[1,0] op_sel_hi:[1,1]"
                return f"v_pk_mul_f16 v{d}, v{U(k,r>>1)}, v{X(k,p)} op_sel_hi:[0,1]"
            return mk
        return f
    def lin_prod(k, t):
        b = 2 * t + 1 if 2 * t + 1 < 13 else 2 * t
        return lambda d: f"v_pack_b32_f16 v{d}, v{X(k,2*t)}, v{X(k,b)}"
    def steps(nprod, prod, acc, base, first0, stride=1024, needs=None):
        out = []
        ns = (nprod + 3) // 4
        for s in range(ns):
            out.append(dict(lds=base + stride * s, needs=needs if s == 0 else None, jobs=[dict(acc=acc + 16 * k, zero=(first0 and s == 0),
                       prods=[prod(k, rho) for rho in range(4 * s, min(4 * s + 4, nprod))]) for k in range(4)]))
        return out
    S_CL = S_C1
    e(f"s_mov_b32 s{S_CL}, {115 << 23}"); e(f"s_mov_b32 s{S_MASK}, 145"); e(f"s_mov_b32 s{S_J}, 127")
    def cvt(acc, t):
        return [f"v_cvt_pk_f16_f32 v{U(k,t)}, v{acc+16*k+2*t}, " + (f"v{acc+16*k+2*t+1}" if t < 6 else "0") for k in range(4)]
    def scl(l, t):
        o = []
        for k in range(4):
            o.append((f"v_pk_mul_f16 v{U(k,t)}, v{U(k,t)}, v{SC+k} op_sel_hi:[1,0]", ('u', l + 1, k, 2 * t)))
            o.append((None, ('u', l + 1, k, 2 * t + 1)))
        return o
    def head(acc, l):
        o = []
        for j in range(6):
            for k in range(4):
                a = acc + 16 * k
                if j == 0: o.append(f"v_max3_f32 v{SC+k}, |v{a}|, |v{a+1}|, |v{a+2}|")
                else: o.append(f"v_max3_f32 v{SC+k}, v{SC+k}, |v{a+2*j+1}|, |v{a+2*j+2}|")
        for k in range(4): o.append(f"v_mov_b32 v{TM+k}, v{SC+k}")
        o += cvt(acc, 0)
        for k in range(4): o.append(f"v_permlane32_swap_b32 v{SC+k}, v{TM+k}")
        for k in range(4): o.append(f"v_max3_f32 v{SC+k}, v{SC+k}, v{TM+k}, s{S_CL}")
        for k in range(4): o.append(f"v_lshrrev_b32 v{TM+k}, 23, v{SC+k}")
        for k in range(4): o.append(f"v_sub_u32 v{SC+k}, s{S_MASK}, v{TM+k}")
        for k in range(4): o.append(f"v_lshlrev_b32 v{SC+k}, 10, v{SC+k}")
        return o + scl(l, 0)
    def evup(l):
        return [(None, 'x', ('k', l))] + [f"v_add3_u32 v{EV(k)}, v{EV(k)}, v{TM+k}, s{S_K+k}" for k in range(4)] + [(None, ('ev', l))]
    def emit(x):
        if callable(x): return x() or 0
        if isinstance(x, tuple):
            if len(x) == 3: assert x[2] in ready, x
            ready.add(x[1]); x = x[0]
        if not x: return 0
        e(x)
        return 2 if 'permlane' in x else 1
    def kconst(l):
        o = []
        if l == 0: o.append(f"s_sub_u32 s{S_T}, s{HW(0)}, 130")
        elif l == 1: o += [f"s_add_u32 s{S_T}, s{HW(1)}, s{HD(2)}", f"s_sub_u32 s{S_T}, s{S_T}, 130"]
        else: o += [f"s_sub_u32 s{S_T}, s{HW(l)}, s{HD(l)}", f"s_add_u32 s{S_T}, s{S_T}, s{HD(l+1)}", f"s_sub_u32 s{S_T}, s{S_T}, 130"]
        if l: o.insert(0, (None, 'x', ('ev', l - 1)))
        return o + [f"s_add_u32 s{S_K+k}, s{S_T}, s{S_EX+k}" for k in range(4)] + [(None, ('k', l))]
    state = dict(areg=0, breg=0, base=0)
    def aread(st):
        if st.get('ok'): assert st['ok'] in ready, st['ok']
        st['a'] = AR + 4 * (state['areg'] % 3); state['areg'] += 1
        r = st['lds'] - state['base']; c = 1
        if r < 0 or r > 65535:
            e(f"v_add_u32 v1, {r & 0xffffffff}, v1"); state['base'] = st['lds']; r = 0; c = 2
        e(f"ds_read_b128 {vr(st['a'],4)}, v1 offset:{r}")
        return c
    def prods(job):
        job['b'] = BR + 4 * (state['breg'] % 4); state['breg'] += 1
        return [p(job['b'] + i) for i, p in enumerate(job['prods'])][:PAR.npk]
    GATE = 'GATE'
    import re
    def nbytes(x):
        if callable(x): return 0 if x.__name__ == '<lambda>' else 8
        if isinstance(x, tuple): x = x[0]
        if not x or x == GATE: return 0
        op = x.split()[0]
        lit = any(abs(int(t, 0)) > 64 for t in re.findall(r'(?<![\w\[:])(-?(?:0x[0-9a-f]+|\d+))(?![\w\]:.])', x.split(None, 1)[1]))
        short = op.startswith('s_') or op in ('v_mov_b32', 'v_mul_f32', 'v_add_f32', 'v_add_u32', 'v_sub_u32', 'v_lshrrev_b32', 'v_lshlrev_b32', 'v_and_b32',
                                              'v_permlane32_swap_b32', 'v_readfirstlane_b32', 'v_cmp_lt_u32', 'v_cndmask_b32', 'v_max_f32')
        return 4 if short and not lit else 8
    def run(seq, nxt, fill=None, side=None, rates=None):
        rate = PAR.rate
        jobs = [(si, j) for si, st in enumerate(seq) for j in st['jobs']]
        for j in range(2):
            for s in prods(jobs[j][1]): e(s)
        fq = []; sq = []; gate = -1; credit = 0
        allst = seq + nxt
        for n, (si, job) in enumerate(jobs):
            k = n % 4
            if k == 0:
                if fill and si in fill: fq += fill[si]
                if side and si in side: sq += side[si]
                if rates and si in rates: rate = rates[si]
                pend = sum(1 for st in allst[si+1:si+2] if 'a' in st)
                e(f"s_waitcnt lgkmcnt({0 if seq[si].get('drain') else pend})")
                if seq[si]['needs']: assert seq[si]['needs'] in ready, seq[si]['needs']
            c = "0" if job['zero'] else vr(job['acc'], 16)
            e(f"v_mfma_f32_32x32x16_f16 {vr(job['acc'],16)}, {vr(seq[si]['a'],4)}, {vr(job['b'],4)}, {c}")
            budget = 6
            if k == 0 and si + 2 < len(allst) and 'a' not in allst[si + 2]: budget -= aread(allst[si + 2])
            if k == 3: budget -= 1
            if n + 2 < len(jobs):
                ps = prods(jobs[n + 2][1])
                for s in ps: e(s)
                budget -= len(ps)
                credit += sum(8 - nbytes(p) for p in ps) + 8 * (PAR.npk - len(ps))
            credit = min(credit + rate / 4, 16)
            while sq and si >= gate and ((budget > 0 and credit >= nbytes(sq[0])) or nbytes(sq[0]) == 0):
                x = sq.pop(0)
                if x == GATE: gate = si + 2
                else: budget -= emit(x); credit -= nbytes(x)
            while fq and ((budget > 0 and credit >= nbytes(fq[0])) or nbytes(fq[0]) == 0):
                x = fq.pop(0); budget -= emit(x); credit -= nbytes(x)
        assert not sq, sq
        for s in fq: emit(s)
    S0 = steps(91, quad_prod, ACC, BUFA, True, stride=S0STR)
    L1 = steps(172, gen_prod(1), ACC2, BUFB, True, stride=S0STR)
    L2 = steps(176, gen_prod(2), ACC, BUFA, True, needs=('free', 0))
    Q4 = steps(91, quad_prod, ACC2, D0, True, needs=('free', 1))
    LN = steps(7, lin_prod, ACC2, D0 + 24 * 1024, False, needs='ldx')
    L3 = steps(169, gen_prod(3), ACC, BUFB, True, needs=('free', 2))
    L1[0]['ok'] = "RAW"; L2[0]['ok'] = "L2OK"; Q4[0]['ok'] = "QOK"; L3[0]['ok'] = "L3OK"
    def hdr(addr, sa, sb=None):
        return [f"v_mov_b32 v3, {addr}", "ds_read_b64 v[2:3], v3", GATE, f"v_readfirstlane_b32 s{sa}, v2"] + ([f"v_readfirstlane_b32 s{sb}, v3"] if sb else [])
    def arrive(c):
        def f():
            e(f"v_add_u32 v3, {(CNT[c] - state['base']) & 0xffffffff}, v1"); return 1
        return ["v_mov_b32 v2, 1", f, "ds_add_u32 v3, v2"]
    def check(c):
        def f():
            slow = g.newlab("cs"); back = g.newlab("cb"); top = g.newlab("ct")
            e(f"s_cmp_lt_u32 s{S_T+2}, 4"); e(f"s_cbranch_scc1 {slow}")
            g.lab(back)
            g.tail += [slow + ":", f"    s_mov_b32 s{S_T+1}, {SPIN*8}", top + ":", "    s_sleep 1", "    ds_read_b32 v2, v3", "    s_waitcnt lgkmcnt(0)",
                       f"    v_readfirstlane_b32 s{S_T+2}, v2", f"    s_cmp_ge_u32 s{S_T+2}, 4", f"    s_cbranch_scc1 {back}",
                       f"    s_sub_u32 s{S_T+1}, s{S_T+1}, 1", f"    s_cbranch_scc0 {top}", f"    s_branch {back}"]
            ready.add(c); return 2
        return [f"v_mov_b32 v3, {CNT[c]}", "ds_read_b32 v2, v3", GATE, f"v_readfirstlane_b32 s{S_T+2}, v2", f]
    def stp(n): return [lambda: g.stamp(n)]
    def rest(acc, l):
        o = []
        for t in range(1, 7): o += cvt(acc, t) + scl(l, t)
        return o + [(None, ('free', l))]
    HOFF = 29 * 16
    S0[0]['a'] = AR; S0[1]['a'] = AR + 4; state['areg'] = 2; S0[0]['drain'] = True
    ev0 = []
    for k in range(4): ev0 += [f"s_sub_u32 s{S_EX+k}, s{S_EX+k}, 130", f"s_lshl_b32 s{S_T}, s{S_EX+k}, 1", f"v_mov_b32 v{EV(k)}, s{S_T}"]
    run(S0, L1[:2], side={0: arrive("RB") + ev0, 2: hdr(BUFA + 23 * S0STR + 512, HW(0)) + kconst(0), 17: check("RAW"), 22: arrive("AFREE")})
    g.stamp(); g.stamp("l")
    for s in head(ACC, 0): emit(s)
    g.stamp("l")
    run(L1, L2[:2], fill={0: rest(ACC, 0) + evup(0)}, side={20: stp("l"), 37: check("L2OK")[:-1] + stp("l") + check("L2OK")[-1:] + stp("l"), 42: arrive("BFREE")}, rates={0: 32})
    g.stamp(); g.stamp("l")
    for s in head(ACC2, 1): emit(s)
    g.stamp("l")
    LNPOS = PAR.lnpos
    seq = L2 + Q4 + L3[:LNPOS] + LN + L3[LNPOS:]
    nQ = 44; nL3 = nQ + 23
    assert len({0, 6, 20, 40, LNPOS - 2, LNPOS + 4, PAR.pload}) == 7
    PV, PA = 2, 3
    def pload():
        e(f"buffer_load_dword v{PV}, v{PA}, {sr(S_WS)}, s{S_T+3} offen sc1"); return 1
    k1 = [f"s_sub_u32 s{S_T}, s{HD(1)}, s{HD(2)}"] + [f"s_sub_u32 s{S_K1+k}, s{S_T}, s{S_EX+k}" for k in range(4)] + [(None, 'k1')]
    dots = [(None, 'x', 'k1')]
    for k in range(4): dots.append(f"v_ldexp_f32 v{ACC+16*k+15}, v{ACC+16*k+15}, v{EV(k)}")
    for k in range(4): dots.append(f"v_add_u32 v{ACC+16*k+13}, s{S_K1+k}, v{EV(k)}")
    for k in range(4): dots.append(f"v_ldexp_f32 v{ACC+16*k+14}, v{ACC+16*k+14}, v{ACC+16*k+13}")
    for k in range(4): dots.append(f"v_add_f32 v{LG+k}, v{ACC+16*k+14}, v{ACC+16*k+15}")
    dots.append((None, 'dots'))
    b2 = head(ACC, 2) + dots
    for t in range(1, 7): b2 += cvt(ACC, t)
    b2.append((None, ('free', 2)))
    kq = [f"s_sub_u32 s{HL}, s{HQ}, s{HL}"]; S_K2 = 8
    for k in range(4):
        kq += [f"s_add_u32 s{S_T}, s{HL}, s{S_EX+k}", f"s_min_i32 s{S_KC+k}, s{S_T}, 40",
               f"s_add_i32 s{S_T}, s{S_KC+k}, s{S_J}", f"s_max_i32 s{S_T}, s{S_T}, 0", f"s_lshl_b32 s{S_K2+k}, s{S_T}, 23"]
    kq.append((None, 'kq'))
    ldx = [(None, 'x', 'kq')] + [f"v_mul_f32 v{ACC2+16*k+r}, s{S_K2+k}, v{ACC2+16*k+r}" for k in range(4) for r in range(13)] + [(None, 'ldx')]
    l3f = scl(2, 1)
    per = (len(ldx) + 4) // 5
    for t in range(2, 7): l3f += scl(2, t) + ldx[(t - 2) * per:(t - 1) * per] + (evup(2) if t == 6 else [])
    pre = ["v_bfe_u32 v2, v0, 4, 1", "v_lshrrev_b32 v3, 5, v0", "v_lshl_add_u32 v2, v2, 1, v3", "v_and_b32 v3, 15, v0", "v_cmp_lt_u32 vcc, 12, v3",
           "v_lshlrev_b32 v3, 10, v3", "v_lshl_add_u32 v3, v2, 2, v3", f"v_mov_b32 v2, {OOB}", "v_cndmask_b32 v3, v3, v2, vcc",
           f"s_mul_i32 s{S_T+3}, s{S_G}, {13*1024}", f"s_and_b32 s{S_T}, s{S_SB}, 255", f"s_lshl_b32 s{S_T}, s{S_T}, 2",
           f"s_add_u32 s{S_T+3}, s{S_T+3}, s{S_T}", f"s_add_u32 s{S_T+3}, s{S_T+3}, {WS_PART}"]
    fin = [(None, 'x', ('ev', 2))]
    for k in range(4): fin += [f"s_lshl_b32 s{S_T}, s{S_EX+k}, 1", f"s_add_u32 s{S_K+k}, s{S_T}, s{HD(0)}"]
    for k in range(4): fin.append(f"v_ldexp_f32 v{ACC2+16*k+15}, v{ACC2+16*k+15}, s{S_K+k}")
    for k in range(4): fin.append(f"v_add_f32 v{LG+k}, v{LG+k}, v{ACC2+16*k+15}")
    fin += [f"s_sub_u32 s{S_T}, s{HW(3)}, s{HD(3)}", f"s_add_u32 s{S_T}, s{S_T}, s{HQ}"]
    for k in range(4): fin += [f"s_lshl_b32 s{S_K+k}, s{S_EX+k}, 1", f"s_add_u32 s{S_K+k}, s{S_K+k}, s{S_T}", f"s_sub_u32 s{S_K+k}, s{S_K+k}, s{S_KC+k}"]
    BO = ACC2 + 14
    fin += [f"v_add_u32 v{TM+k}, s{S_K+k}, v{EV(k)}" for k in range(4)] + [f"v_mov_b32 v{BO-1}, 0", f"buffer_load_ushort v{BO}, v{BO-1}, {sr(S_BO)}, 0 offen"]
    run(seq, [], fill={0: rest(ACC2, 1), 14: evup(1), nQ + 1: b2, nL3: l3f},
        side={0: hdr(BUFA + HOFF, HW(2), HD(2)) + kconst(1) + hdr(BUFA + HOFF + 8, HD(1)) + k1, 1: stp("p"), 21: stp("p"),
              nQ - PAR.qchk: check("QOK"), nQ: stp("p"),
              nL3 - 6: check("L3OK"), nL3: stp("p") + hdr(D0 + 23 * 1024, HQ, HL) + kq, nL3 + 6: hdr(BUFB + HOFF, HW(3), HD(3)) + kconst(2) + hdr(D0 + 23 * 1024 + 8, HD(0)),
              nL3 + LNPOS - 2: pre, nL3 + LNPOS + 4: fin, nL3 + 20: stp("p"), nL3 + PAR.pload: [pload], nL3 + 40: stp("p")},
        rates={0: 32, 20: PAR.rate, nQ: PAR.qrate, nL3: PAR.l3rate})
    g.stamp()
    for r in range(13):
        for k in range(4):
            if r == 0: e(f"v_mul_f32 v{SC+k}, v{ACC+16*k}, v{ACC2+16*k}")
            else: e(f"v_fmac_f32 v{SC+k}, v{ACC+16*k+r}, v{ACC2+16*k+r}")
    for k in range(4): e(f"v_ldexp_f32 v{ACC+16*k+15}, v{ACC+16*k+15}, v{EV(k)}")
    for k in range(4): e(f"v_ldexp_f32 v{SC+k}, v{SC+k}, v{TM+k}")
    for k in range(4): e(f"v_add_f32 v{LG+k}, v{LG+k}, v{ACC+16*k+15}")
    for k in range(4): e(f"v_add_f32 v{LG+k}, v{LG+k}, v{SC+k}")
    e(f"v_permlane32_swap_b32 v{LG}, v{LG+1}"); e(f"v_permlane32_swap_b32 v{LG+2}, v{LG+3}")
    e(f"v_add_f32 v{LG}, v{LG}, v{LG+1}"); e(f"v_add_f32 v{LG+2}, v{LG+2}, v{LG+3}")
    e(f"v_permlane16_swap_b32 v{LG}, v{LG+2}")
    e(f"v_add_f32 v{LG}, v{LG}, v{LG+2}")
    e(f"s_mov_b32 s{S_T}, {SPIN}")
    g.lab("L_pcheck")
    e("s_waitcnt vmcnt(0)")
    e(f"v_cmp_eq_u32 vcc, -1, v{PV}")
    e("s_nop 1")
    e("s_cbranch_vccz L_pok")
    e("s_sleep 4")
    pload()
    e(f"s_sub_u32 s{S_T}, s{S_T}, 1")
    e("s_cbranch_scc0 L_pcheck")
    e("s_waitcnt vmcnt(0)")
    g.lab("L_pok")
    e(f"v_add_f32 v{LG}, v{LG}, v{PV}")
    for sh in (8, 4, 2, 1):
        e(f"v_add_f32_dpp v{LG}, v{LG}, v{LG} row_ror:{sh} {DPPALL}")
    e(f"v_lshlrev_b32 v{BO}, 16, v{BO}")
    e(f"v_add_f32 v{LG}, v{LG}, v{BO}")
    e(f"v_cvt_pk_bf16_f32 v{LG}, v{LG}, v{LG}")
    e(f"v_lshrrev_b32 v{PA}, 1, v{PA}")
    e(f"v_cmp_lt_u32 vcc, 7, v{PA}")
    e(f"v_mov_b32 v2, {OOB}")
    e(f"v_cndmask_b32 v{PA}, v{PA}, v2, vcc")
    e(f"s_lshl_b32 s{S_T}, s{S_SB}, 1")
    e(f"buffer_store_short v{LG}, v{PA}, {sr(S_OUT)}, s{S_T} offen")
    g.stamp(); g.stamp("e")
    if PAR.enc is not None:
        e("s_waitcnt lgkmcnt(0)")
        if PAR.gmin:
            e(f"s_not_b32 s{S_T}, s{S_ST}"); e(f"v_mov_b32 v4, s{S_T}"); e("v_mov_b32 v5, 0"); e("s_mov_b64 exec, 1")
            e(f"buffer_atomic_umax v4, v5, {sr(S_DBG)}, 0 offen offset:192 sc1"); e("s_waitcnt vmcnt(0)")
            g.lab("L_enc0")
            e(f"s_memrealtime s[{S_T+2}:{S_T+3}]"); e("s_waitcnt lgkmcnt(0)")
            e(f"s_sub_u32 s{S_T+2}, s{S_T+2}, s{S_ST}"); e(f"s_cmp_lt_u32 s{S_T+2}, 5000"); e("s_cbranch_scc1 L_enc0")
            e(f"buffer_load_dword v4, v5, {sr(S_DBG)}, 0 offen offset:192 sc1"); e("s_waitcnt vmcnt(0)"); e("s_mov_b64 exec, -1")
            if PAR.encsel: e(f"s_mov_b32 s{S_ST+2*PAR.enc}, s{S_ST}")
            e(f"v_readfirstlane_b32 s{S_ST}, v4"); e(f"s_not_b32 s{S_ST}, s{S_ST}")
        e(f"s_sub_u32 s{S_T}, s{S_ST+2*PAR.enc}, s{S_ST}"); e(f"s_lshl_b32 s{S_T}, s{S_T}, 1");
        if PAR.encsel:
            e(f"s_lshl_b32 s{S_T}, s{S_T}, 2"); e(f"s_and_b32 s{S_T+1}, s2, {PAR.encsel[0]}"); e(f"s_cmp_eq_u32 s{S_T+1}, {PAR.encsel[1]}")
        else: e(f"s_cmp_lt_u32 s{S_R}, 13")
        e(f"s_cselect_b32 s{S_T}, s{S_T}, 0"); e(f"s_add_u32 s{S_T}, s{S_T}, 6000")
        g.lab("L_enc")
        e(f"s_memrealtime s[{S_T+2}:{S_T+3}]"); e("s_waitcnt lgkmcnt(0)")
        e(f"s_sub_u32 s{S_T+2}, s{S_T+2}, s{S_ST}"); e(f"s_cmp_lt_u32 s{S_T+2}, s{S_T}"); e("s_cbranch_scc1 L_enc")
    g.flush_stamps(4, 5)
    e("s_endpgm")

HACC, HX, HW_ = 4, 68, 208
V_TR0, V_TR1, V_DMA, V_WSRC, V_H16, V_L0, V_HROW, V_CNT = 248, 249, 250, 251, 252, 253, 254, 255
ID, QA, QSH, QS, W0R, PK = 4, 12, 19, 20, 180, 236
L1R, BT = 180, 36
S_WP, S_L, S_FR, S_E0, S_E1, S_E2, S_PO, S_CX = 48, 49, 50, 51, 52, 53, 54, 55
S_LC = 56
S_E3, S_XB = 60, 61
def dma_img(g, name, nfr, lds):
    e = g.e; per = nfr // 4
    va = V_DMA
    if name == "Q4":
        va = 1
        e("v_and_b32 v1, 31, v0"); e("v_subrev_u32 v1, 29, v1"); e("v_cmp_gt_u32 vcc, 2, v1"); e(f"v_mov_b32 v1, {OOB}"); e(f"v_cndmask_b32 v1, v{V_DMA}, v1, vcc")
    e(f"s_mul_i32 s{S_T}, s{S_J}, {per*1024}")
    for i in range(per):
        if i % 4 == 0:
            e(f"s_add_u32 s{S_T+1}, s{S_T}, {IMG[name] + i*1024}")
            e(f"s_add_u32 m0, s{S_T}, {lds + i*1024}")
        g.vm(f"buffer_load_dwordx4 v{va}, {sr(S_WS)}, s{S_T+1} offen offset:{(i%4)*1024} {PAR.ld} lds", name)
def poll(g, checks, pre=None):
    e = g.e
    done = g.newlab("pd"); top = g.newlab("pt"); slp = g.newlab("ps"); tst = g.newlab("pc")
    regs = pre or [2 + i for i in range(len(checks))]
    e(f"s_mov_b32 s{S_T}, {SPIN}")
    if pre: e(f"s_branch {tst}")
    g.lab(top)
    for r, (srd, so, o, n) in zip(regs, checks):
        e(f"buffer_load_dword v{r}, v{V_L0}, {sr(srd)}, {so} offen offset:{o} sc1")
    e("s_waitcnt vmcnt(0)")
    g.lab(tst)
    for r, (srd, so, o, n) in zip(regs, checks):
        e(f"v_readfirstlane_b32 s{S_T+1}, v{r}")
        e(f"s_cmp_lt_u32 s{S_T+1}, {n}")
        e(f"s_cbranch_scc1 {slp}")
    g.lab(done)
    g.tail += [slp + ":", f"    s_sleep {PAR.slp}", f"    s_sub_u32 s{S_T}, s{S_T}, 1", f"    s_cbranch_scc0 {top}", f"    s_branch {done}"]
def poll1(g, checks, flag, pre=None):
    lb = g.newlab("p1")
    g.e(f"s_cmp_lg_u32 s{S_J}, 0"); g.e(f"s_cbranch_scc1 {lb}")
    poll(g, checks, pre)
    arrive(g, flag)
    g.lab(lb)
    lwait(g, flag, 1)
def presample(g, checks, regs, tag):
    for r, (srd, so, o, n) in zip(regs, checks):
        g.vm(f"buffer_load_dword v{r}, v{V_L0}, {sr(srd)}, {so} offen offset:{o} sc1", tag)
def arrive(g, *cs):
    e = g.e
    e("v_mov_b32 v1, 1"); e("s_mov_b64 exec, 1")
    for c in cs: e(f"ds_add_u32 v{V_CNT}, v1 offset:{CNT[c]-M_CNT}")
    e("s_mov_b64 exec, -1")
def unpack_mat(g, PA, t):
    e = g.e
    e(f"v_and_b32 v{t}, 1, v0"); e(f"v_lshlrev_b32 v{t}, 4, v{t}"); e(f"v_mov_b32 v{t+1}, 0x3f80"); e(f"v_lshlrev_b32 v{t+1}, v{t}, v{t+1}")
    e(f"v_lshrrev_b32 v{t+2}, 3, v0"); e(f"v_xor_b32 v{t+2}, v{t+2}, v0"); e(f"v_and_b32 v{t+2}, 4, v{t+2}")
    e(f"v_bfe_u32 v{t}, v0, 3, 2"); e(f"v_bfe_u32 v{t+3}, v0, 1, 1"); e(f"v_lshl_add_u32 v{t}, v{t}, 1, v{t+3}"); e(f"v_lshl_add_u32 v{t}, v{t+2}, 3, v{t}")
    for i in range(8):
        e(f"v_cmp_eq_u32 vcc, {i}, v{t}"); e(f"v_cndmask_b32 v{PA+i}, 0, v{t+1}, vcc")
def unpack(g, DR, pa, src, i):
    d = DR + 16 * ((i >> 1) & 3)
    g.e(f"v_mfma_f32_32x32x16_bf16 {vr(d,16)}, {vr(pa+4*(i&1),4)}, {vr(src+4*i,4)}, {vr(d,16) if i & 1 else '0'}")
def tmax(g, DR, tile, n, first, mv=1):
    d = DR + 16 * (tile & 3)
    for q in range(n // 2):
        if first and q == 0: g.e(f"v_max_f32 v{mv}, |v{d}|, |v{d+1}|")
        else: g.e(f"v_max3_f32 v{mv}, v{mv}, |v{d+2*q}|, |v{d+2*q+1}|")
def lwait(g, c, n=4, va=None, vd=1):
    e = g.e; top = g.newlab("lw"); done = g.newlab("ld")
    e(f"s_mov_b32 s{S_T}, {SPIN*8}")
    g.lab(top)
    e(f"ds_read_b32 v{vd}, v{va or V_CNT} offset:{CNT[c]-M_CNT}"); e("s_waitcnt lgkmcnt(0)")
    e(f"v_readfirstlane_b32 s{S_T+1}, v{vd}"); e(f"s_cmp_ge_u32 s{S_T+1}, {n}"); e(f"s_cbranch_scc1 {done}")
    e(f"s_sleep {PAR.lslp if c in ('FX', 'F2', 'F3', 'FQ', 'AFREE', 'BFREE', 'XST') else 1}"); e(f"s_sub_u32 s{S_T}, s{S_T}, 1"); e(f"s_cbranch_scc0 {top}")
    g.lab(done)
def rowmax(g, v, op="v_max_u32_dpp"):
    for sh in (8, 4, 2, 1): g.e(f"{op} v{v}, v{v}, v{v} row_ror:{sh} {DPPALL}")
def wavemax_exp(g, v, sdst):
    e = g.e
    rowmax(g, v)
    e(f"v_readlane_b32 s{sdst}, v{v}, 0"); e(f"v_readlane_b32 s{S_T}, v{v}, 16"); e(f"s_max_u32 s{sdst}, s{sdst}, s{S_T}")
    e(f"v_readlane_b32 s{S_T}, v{v}, 32"); e(f"s_max_u32 s{sdst}, s{sdst}, s{S_T}")
    e(f"v_readlane_b32 s{S_T}, v{v}, 48"); e(f"s_max_u32 s{sdst}, s{sdst}, s{S_T}")
    e(f"s_lshr_b32 s{sdst}, s{sdst}, 23"); e(f"s_sub_u32 s{sdst}, s{sdst}, 126")
def put_max(g, slot):
    e = g.e
    rowmax(g, 1)
    e("v_lshrrev_b32 v2, 4, v0"); e(f"s_lshl_b32 s{S_T}, s{S_J}, 4"); e(f"s_add_u32 s{S_T}, s{S_T}, {slot}")
    e(f"v_lshl_add_u32 v2, v2, 2, s{S_T}")
    e("ds_write_b32 v2, v1")
def get_max(g, slot):
    e = g.e
    e("v_and_b32 v2, 15, v0"); e("v_lshlrev_b32 v2, 2, v2"); e(f"v_add_u32 v2, {slot}, v2")
    e("ds_read_b32 v1, v2"); e("s_waitcnt lgkmcnt(0)")
    rowmax(g, 1)
def pkmax(g, regs):
    e = g.e
    e(f"v_pk_max_u16 v1, v{regs[0]}, v{regs[1]}"); e(f"v_pk_max_u16 v3, v{regs[2]}, v{regs[3]}")
    for i, r in enumerate(regs[4:]): e(f"v_pk_max_u16 v{1 + 2*(i&1)}, v{1 + 2*(i&1)}, v{r}")
    e("v_pk_max_u16 v1, v1, v3"); e("v_alignbit_b32 v3, v1, v1, 16"); e("v_pk_max_u16 v1, v1, v3")
def pack_round(g, acc, off, pk=True):
    e = g.e
    if PAR.pkpack and pk:
        for t in range(7):
            q = QS + t; sel = q & 1
            e(f"v_pk_mul_f32 {vr(acc+2*t,2)}, {vr(acc+2*t,2)}, {vr(q - sel,2)} op_sel:[0,{sel}] op_sel_hi:[1,{sel}]")
    else:
        for t in range(14): e(f"v_mul_f32 v{acc+t}, v{acc+t}, v{QS+(t>>1)}")
    for t in range(7): e(f"v_cvt_pk_f16_f32 v{PK+t}, v{acc+2*t}, v{acc+2*t+1}")
    for t in range(7): e(f"v_alignbit_b32 v{PK+t}, v{PK+t}, v{PK+t}, v{QSH}")
    for t in range(7): e(f"ds_write_b32 v{QA+t}, v{PK+t} offset:{off}")
def s0_max(g, t):
    a = HX + 16 * t
    for i in range(7):
        if t == 0 and i == 0: g.e(f"v_max_f32 v1, |v{a}|, |v{a+1}|")
        else: g.e(f"v_max3_f32 v1, v1, |v{a+2*i}|, |v{a+2*i+1}|")
F0 = lambda c: sum(PAR.chunks[:c])
S_ROT = 64
S_RA = 66
def call_if(g, cond, target):
    lb = g.newlab('nc')
    for c in cond: g.e(c[0]); g.e(f'{c[1]} {lb}')
    g.e(f's_call_b64 s[{S_RA}:{S_RA+1}], {target}')
    g.lab(lb)
RET = f's_setpc_b64 s[{S_RA}:{S_RA+1}]'
def EARLY(): return [(f's_cmp_lt_u32 s{S_WP}, {PAR.gearly}', 's_cbranch_scc0')]
def LATE(): return [(f's_cmp_lt_u32 s{S_WP}, {PAR.gearly}', 's_cbranch_scc1'), (f's_cmp_ge_u32 s{S_WP}, 31', 's_cbranch_scc1')]
def rotf(g, f, sd):
    g.e(f"s_add_u32 s{sd}, s{S_ROT}, {f}"); g.e(f"s_sub_u32 s{S_ROT+1}, s{sd}, 26"); g.e(f"s_min_u32 s{sd}, s{sd}, s{S_ROT+1}")
def dma_w(g, c, only=None):
    e = g.e
    Dc = (D0, D1)[c & 1]
    e(f"s_lshl_b32 s{S_T}, s{S_J}, 10")
    for fl in range(PAR.chunks[c]):
        if only is not None and fl != only: continue
        e(f"s_add_u32 m0, s{S_T}, {Dc + fl*4096}")
        rotf(g, F0(c) + fl, S_T + 1); e(f"s_mul_i32 s{S_T+1}, s{S_T+1}, 53248")
        g.vm(f"buffer_load_dwordx4 v{V_WSRC}, {sr(S_W1)}, s{S_T+1} offen lds", f"W{c}")
CHK_X = lambda: (S_WS, f"s{S_CX}", 0, 16)
def helper_common(g):
    e = g.e
    e("s_setprio 2")
    e(f"s_sub_u32 s{S_J}, s{S_WAVE}, 4")
    e("v_and_b32 v2, 31, v0"); e("v_lshrrev_b32 v3, 5, v0")
    e(f"v_lshlrev_b32 v{V_H16}, 4, v3")
    e("v_lshrrev_b32 v4, 3, v2"); e("v_and_b32 v6, 3, v2"); e("v_lshl_add_u32 v4, v4, 2, v6")
    e("v_bfe_u32 v6, v2, 2, 1"); e(f"v_mad_u32_u24 v{V_HROW}, v6, 13, v4")
    e("v_cmp_lt_u32 vcc, 12, v4"); e("v_mov_b32 v7, 0x100000"); e(f"v_cndmask_b32 v{V_HROW}, v{V_HROW}, v7, vcc")
    e("v_mul_u32_u24 v4, 676, v3"); e(f"s_movk_i32 s{S_T+1}, 1352"); e(f"v_mad_u32_u24 v243, v{V_HROW}, s{S_T+1}, v4")
    def qaset():
        e("v_lshrrev_b32 v27, 1, v2"); e("v_and_b32 v28, 1, v2"); e(f"v_lshlrev_b32 v{QSH}, 4, v28")
        e("v_sub_u32 v29, 25, v27"); e("v_mul_u32_u24 v29, v29, v27"); e("v_lshrrev_b32 v29, 1, v29")
        e(f"s_lshl_b32 s{S_T}, s{S_J}, 4")
        e(f"v_lshl_add_u32 v28, v28, 9, s{S_T}")
        e(f"v_lshl_add_u32 v30, v0, 2, s{S_T}"); e(f"v_add_u32 v30, {BUFA + 24*S0STR}, v30")
        e("v_mov_b32 v33, 0.5")
        for t in range(7):
            qb = 4 * (t >> 1) + (t & 1)
            e(f"v_lshl_add_u32 v31, v3, 1, {qb}")
            e("v_add_u32 v32, v29, v31")
            e(f"v_lshrrev_b32 v{QA+t}, 2, v32"); e(f"v_mul_u32_u24 v{QA+t}, {S0STR}, v{QA+t}")
            e("v_and_b32 v32, 3, v32"); e("v_lshl_add_u32 v32, v32, 2, v28"); e(f"v_add_u32 v{QA+t}, v{QA+t}, v32")
            e("v_cmp_lt_u32 vcc, v31, v27")
            if t == 6:
                e("v_cmp_lt_u32 s[72:73], 12, v31"); e("s_or_b64 vcc, vcc, s[72:73]")
            e(f"v_cndmask_b32 v{QA+t}, v{QA+t}, v30, vcc")
            e("v_cmp_eq_u32 vcc, v31, v27"); e(f"v_cndmask_b32 v{QS+t}, 1.0, v33, vcc")
        e("v_lshlrev_b32 v31, 3, v3"); e("v_sub_u32 v31, v2, v31")
        e("v_mov_b32 v32, 0x3f80"); e(f"v_lshlrev_b32 v32, v{QSH}, v32")
        e("v_lshrrev_b32 v31, 1, v31")
        for s in range(2):
            for i in range(4):
                e(f"v_cmp_eq_u32 vcc, {8*s+i}, v31"); e(f"v_cndmask_b32 v{ID+4*s+i}, 0, v32, vcc")
    if PAR.qaearly: qaset()
    HS = [S_WC, S_WS, S_WO, S_W1, S_B1, S_W2, S_DBG]
    srd_const(g, HS)
    e("s_waitcnt lgkmcnt(0)")
    srd_base(g, HS)
    e(f"s_mov_b64 s[{S_LC}:{S_LC+1}], s[{S_WC}:{S_WC+1}]"); e(f"s_mov_b32 s{S_LC+3}, 0x00020000"); e(f"s_mov_b32 s{S_LC+2}, {2*LB}")
    e(f"s_mul_i32 s{S_WP}, s{S_G}, 3"); e(f"s_add_u32 s{S_WP}, s{S_WP}, s{S_R}"); e(f"s_sub_u32 s{S_WP}, s{S_WP}, 13")
    e(f"s_cmp_lt_u32 s{S_R}, 13"); e(f"s_cselect_b32 s{S_WP}, 63, s{S_WP}")
    if PAR.wpf:
        e(f"s_cmp_lg_u32 s{S_J}, 0"); e("s_cbranch_scc1 L_nowpf")
        e(f"s_mov_b32 s{S_WC+2}, {6*LB}"); e(f"s_lshr_b32 s{S_T}, s2, 3"); e(f"s_lshl_b32 s{S_T}, s{S_T}, 7")
        e("v_lshlrev_b32 v1, 12, v0")
        e(f"buffer_load_dword v247, v1, {sr(S_WC)}, s{S_T} offen")
        e(f"s_mov_b32 s{S_WC+2}, {LB}")
        g.lab("L_nowpf")
    e("s_barrier")
    g.stamp("g")
    call_if(g, EARLY(), "L_pe1")
    g.stamp("g")
    e("v_and_b32 v2, 31, v0"); e("v_lshrrev_b32 v3, 5, v0")
    e(f"v_mad_u32_u24 v1, v2, 52, v{V_H16}")
    if PAR.w0lin: e("v_lshlrev_b32 v1, 4, v0")
    e(f"s_mul_i32 s{S_T}, s{S_J}, 1352")
    for t in range(7):
        if t < 6: e(f"s_add_u32 s{S_T+1}, s{S_T}, {(13*(t&1) + 4*(t>>1))*1352}")
        else:
            e(f"s_mul_i32 s{S_T+1}, s{S_J}, {13*1352}"); e(f"s_add_u32 s{S_T+1}, s{S_T+1}, {12*1352}")
        for s in range(2):
            g.vm(f"buffer_load_dwordx4 {vr(W0R+8*t+4*s,4)}, v1, {sr(S_WC)}, s{S_T+1} offen offset:{(320 if PAR.w0lin else 32)*s}", f"w0_{t}")
    e(f"v_mov_b32 v61, {OOB}"); e(f"v_add_u32 v60, s{S_J}, v0"); e("v_cmp_eq_u32 vcc, 0, v60"); e(f"v_cndmask_b32 v{V_L0}, v61, 0, vcc")
    e(f"s_lshl_b32 s{S_SB}, s{S_R}, 7")
    e(f"s_mul_i32 s{S_CX}, s{S_G}, {PAR.cstr}"); e(f"s_add_u32 s{S_CX}, s{S_CX}, {WS_CNT}")
    e(f"s_add_u32 s{S_T}, s{S_R}, s{S_J}"); e(f"s_cmp_eq_u32 s{S_T}, 0"); e(f"s_cselect_b32 s{S_E3}, 0, {OOB}")
    e(f"v_add_u32 v34, s{S_E3}, v{V_L0}");
    for i in range(4): e(f"v_mov_b32 v{36+i}, 0")
    g.vm(f"buffer_store_dwordx4 v[36:39], v34, {sr(S_WS)}, s{S_CX} offen sc1", "rst")
    if not PAR.qaearly: qaset()
    e(f"s_mul_i32 s{S_PO}, s{S_G}, 13"); e(f"s_add_u32 s{S_PO}, s{S_PO}, s{S_R}"); e(f"s_lshl_b32 s{S_PO}, s{S_PO}, 2"); e(f"s_add_u32 s{S_PO}, s{S_PO}, s{S_J}")
    e(f"s_lshl_b32 s{S_PO}, s{S_PO}, 8"); e(f"s_add_u32 s{S_PO}, s{S_PO}, {WS_PART}")
    e("v_bfe_u32 v60, v0, 3, 2"); e("v_and_b32 v61, 3, v0"); e("v_lshl_add_u32 v60, v60, 2, v61"); e(f"v_mul_u32_u24 v245, {XSTR}, v60")
    e("v_bfe_u32 v60, v0, 2, 1"); e("v_lshl_add_u32 v245, v60, 4, v245"); e(f"v_lshl_add_u32 v245, v{V_H16}, 1, v245")
    e(f"s_lshl_b32 s{S_T}, s{S_J}, 6"); e(f"s_add_u32 s{S_T}, s{S_T}, {D0}"); e(f"v_add_u32 v245, s{S_T}, v245")
    e("v_lshlrev_b32 v246, 4, v0"); e(f"v_lshl_add_u32 v246, v{V_H16}, 5, v246")
    e(f"s_lshl_b32 s{S_XB}, s{S_G}, 2"); e(f"s_lshr_b32 s{S_T}, s{S_R}, 2"); e(f"s_add_u32 s{S_XB}, s{S_XB}, s{S_T}"); e(f"s_mul_i32 s{S_XB}, s{S_XB}, 106496")
    e(f"s_bfe_u32 s{S_T}, s{S_R}, 0x10001"); e(f"s_lshl_b32 s{S_T}, s{S_T}, 11"); e(f"s_add_u32 s{S_XB}, s{S_XB}, s{S_T}")
    e(f"s_and_b32 s{S_T}, s{S_R}, 1"); e(f"s_lshl_b32 s{S_T}, s{S_T}, 9"); e(f"s_add_u32 s{S_XB}, s{S_XB}, s{S_T}")
    e(f"s_lshl_b32 s{S_T}, s{S_J}, 12"); e(f"s_add_u32 s{S_XB}, s{S_XB}, s{S_T}"); e(f"s_add_u32 s{S_XB}, s{S_XB}, {WS_X}")
    g.stamp("g")
    call_if(g, EARLY(), "L_pe2")
    g.stamp("g")
    for t in range(7):
        g.vmwait(f"w0_{t}")
        a = HX + 16 * t; w = W0R + 8 * t
        e(f"v_mfma_f32_32x32x16_bf16 {vr(a,16)}, {vr(w,4)}, {vr(ID,4)}, 0")
        e(f"v_mfma_f32_32x32x16_bf16 {vr(a,16)}, {vr(w+4,4)}, {vr(ID+4,4)}, {vr(a,16)}")
        e(f"v_mfma_f32_32x32x16_bf16 {vr(a,16)}, {vr(ID,4)}, {vr(w,4)}, {vr(a,16)}")
        e(f"v_mfma_f32_32x32x16_bf16 {vr(a,16)}, {vr(ID+4,4)}, {vr(w+4,4)}, {vr(a,16)}")
        if t > 0: s0_max(g, t - 1)
    s0_max(g, 6)
    put_max(g, M_S0)
    e(f"v_mov_b32 v{V_CNT}, {M_CNT}")
    arrive(g, "S0M")
    g.stamp("g")
    if g.stamps and "g" in PAR.st: e("s_waitcnt vmcnt(0)"); g.stamp("g")
    call_if(g, EARLY(), "L_gsig")
    g.stamp("g")
    lwait(g, "S0M")
    g.stamp(); g.stamp("h")
    get_max(g, M_S0)
    e("v_lshlrev_b32 v3, 4, v0"); e(f"v_mov_b32 v{PK}, 0")
    e(f"ds_write_b32 v3, v{PK} offset:{BUFA + 22*S0STR + 12}")
    e("v_lshrrev_b32 v1, 23, v1")
    e("v_min_u32 v1, 249, v1")
    e("v_sub_u32 v2, 124, v1")
    e("v_subrev_u32 v1, 124, v1")
    e(f"ds_write_b32 v3, v1 offset:{BUFA + 23*S0STR + 512}")
    for t in range(7): e(f"v_ldexp_f32 v{QS+t}, v{QS+t}, v2")
    for t in range(7):
        if t == 6:
            e(f"s_cmp_eq_u32 s{S_J}, 1"); e(f"s_cselect_b32 s{S_T}, 48, 0")
            for i in range(7): e(f"v_add_u32 v{QA+i}, s{S_T}, v{QA+i}")
        if t in (0, 2, 4, 6): g.stamp("h")
        pack_round(g, HX + 16 * t, 16 * (8 * (t >> 1) + 4 * (t & 1)))
    arrive(g, "S0OK")
    g.stamp(); g.stamp("s"); g.stamp("h")
    e(f"v_cmp_lt_u32 vcc, 25, v{V_HROW}"); e("v_bfe_u32 v1, v0, 2, 1")
    e("v_cmp_eq_u32 s[72:73], 0, v1"); e("s_and_b64 vcc, vcc, s[72:73]")
    e(f"v_mov_b32 v2, {OOB}"); e(f"v_lshlrev_b32 v{V_DMA}, 4, v0"); e(f"v_cndmask_b32 v{V_DMA}, v{V_DMA}, v2, vcc")
    e(f"s_mul_i32 s{S_ROT}, s{S_R}, {PAR.rot}")
    e("v_lshrrev_b32 v1, 3, v0"); e(f"s_lshl_b32 s{S_T}, s{S_J}, 3"); e(f"v_add_u32 v1, s{S_T}, v1")
    e("v_mul_u32_u24 v1, 1664, v1")
    e("v_bfe_u32 v2, v0, 4, 1"); e("v_lshlrev_b32 v2, 2, v2"); e("v_and_b32 v3, 7, v0"); e("v_xor_b32 v2, v2, v3")
    e("v_lshl_add_u32 v1, v2, 4, v1"); e(f"s_lshl_b32 s{S_SB}, s{S_R}, 7"); e(f"v_add_u32 v{V_WSRC}, s{S_SB}, v1")
    e("v_lshrrev_b32 v1, 5, v0"); e("v_bfe_u32 v2, v0, 2, 2")
    e("v_lshl_add_u32 v1, v1, 3, v2"); e("v_lshlrev_b32 v1, 7, v1")
    e("v_bfe_u32 v3, v0, 4, 1"); e("v_lshl_add_u32 v1, v3, 5, v1"); e("v_and_b32 v3, 3, v0"); e("v_lshl_add_u32 v1, v3, 3, v1")
    e("v_lshrrev_b32 v2, 1, v2"); e("v_lshl_add_u32 v1, v2, 6, v1")
    e(f"v_add_u32 v{V_TR0}, {D0}, v1"); e(f"v_xor_b32 v{V_TR1}, 64, v{V_TR0}")
    e(f"s_cmp_lg_u32 s{S_R}, 0"); e("s_cbranch_scc1 L_nordy")
    g.vmwait("rst")
    e("v_mov_b32 v35, 1"); e(f"s_lshl_b32 s{S_E3}, s{S_G}, 2")
    e(f"buffer_store_dword v35, v34, {sr(S_DBG)}, s{S_E3} offen offset:{C_RDY} sc1")
    g.lab("L_nordy")
    call_if(g, LATE(), "L_pe1")
    call_if(g, LATE()[:1], "L_xpub")
    g.vmq += ["xst"] * 7 + ["sent", "rdyl"] + ["bias"] * 8
    g.stamp("s")
    call_if(g, LATE(), "L_pe2")
    if PAR.wearly:
        e(f"s_cmp_ge_u32 s{S_R}, 13"); e("s_cbranch_scc1 L_pw")
        lwait(g, "RB", 8); dma_w(g, 0)
        if PAR.wearly > 1: dma_w(g, 1)
        g.tail += ["L_pw:", "    s_waitcnt vmcnt(8)", "    s_branch L_pwr"]
    g.vmwait("rdyl")
    g.lab("L_pwr")
    arrive(g, "XST")
    e(f"s_cmp_lg_u32 s{S_J}, 0"); e("s_cbranch_scc1 L_nosig")
    lwait(g, "XST")
    e(f"s_mov_b32 s{S_T}, {SPIN}")
    g.lab("L_rdy")
    e("v_cmp_ne_u32 vcc, 0, v28"); e(f"s_and_b32 s{S_T+1}, vcc_lo, 0xffff"); e(f"s_cmp_eq_u32 s{S_T+1}, 0xffff"); e("s_cbranch_scc0 L_rdys")
    g.lab("L_rdyd")
    g.tail += ["L_rdys:", "    s_sleep 8", f"    buffer_load_dword v28, v29, {sr(S_DBG)}, 0 offen offset:{C_RDY} sc1", "    s_waitcnt vmcnt(0)",
               f"    s_sub_u32 s{S_T}, s{S_T}, 1", "    s_cbranch_scc0 L_rdy", "    s_branch L_rdyd"]
    e("v_mov_b32 v1, 1")
    e(f"buffer_atomic_add v1, v{V_L0}, {sr(S_WS)}, s{S_CX} offen sc1")
    g.lab("L_nosig")
    g.stamp(); g.stamp("s")

def helper_dnn(g):
    e = g.e
    CH = PAR.chunks; NS = PAR.nslot
    def xb(f, tile, t): return HX + 16 * (f % NS) + 8 * tile + 4 * t
    def xload(f):
        rotf(g, f, S_T + 2); e(f"s_lshl_b32 s{S_T+2}, s{S_T+2}, 12"); e(f"s_add_u32 s{S_T+2}, s{S_T+2}, s{S_XB}")
        for tile in range(2):
            for t in range(2):
                g.vm(f"buffer_load_dwordx4 {vr(xb(f,tile,t),4)}, v2, {sr(S_WS)}, s{S_T+2} offen offset:{2048*tile+1024*t} {PAR.ld}", f"x{f}")
    g.vmwait("bias")
    for a in range(2):
        for i in range(8):
            e(f"v_lshlrev_b32 v{HACC+16*a+2*i}, 16, v{BT+8*a+i}")
            e(f"v_and_b32 v{HACC+16*a+2*i+1}, 0xffff0000, v{BT+8*a+i}")
    for i in range(32): e(f"v_mov_b32 v{HACC+32+i}, v{HACC+i}")
    e(f"s_lshl_b32 s{S_XB}, s{S_G}, 2"); e(f"s_add_u32 s{S_XB}, s{S_XB}, s{S_J}"); e(f"s_mul_i32 s{S_XB}, s{S_XB}, 106496"); e(f"s_add_u32 s{S_XB}, s{S_XB}, {WS_X}")
    poll1(g, [(S_DBG, "0", 128, 11)], "F2")
    if not PAR.wearly: lwait(g, "RB", 8); dma_w(g, 0)
    if PAR.wearly < 2: dma_w(g, 1)
    lwait(g, "AFREE"); dma_img(g, "L2", 44, BUFA)
    presample(g, [CHK_X()], [196], "fx")
    g.vmwait("fx"); arrive(g, "L2OK", "W01")
    poll1(g, [CHK_X()], "FX", pre=[196])
    g.stamp("s")
    g.stamp()
    e("v_bfe_u32 v2, v0, 2, 3"); e("v_lshlrev_b32 v2, 7, v2"); e(f"v_lshl_add_u32 v2, v{V_H16}, 2, v2"); e("v_and_b32 v3, 3, v0"); e("v_lshl_add_u32 v2, v3, 4, v2")
    for f in range(NS):
        xload(f)
    FL = 232
    W2R = 232 + 0
    wring = [0]
    def loc(ks):
        f = ks // 2; c = max(i for i in range(4) if F0(i) <= f)
        return c, ks - 2 * F0(c)
    def wread(ks):
        c, kl = loc(ks)
        Dc = (D0, D1)[c & 1]
        base = HW_ + 8 * (wring[0] % 3); wring[0] += 1
        for a, ad in ((0, V_TR0), (1, V_TR1)):
            for rd in range(2):
                e(f"ds_read_b64_tr_b16 {vr(base+4*a+2*rd,2)}, v{ad} offset:{Dc - D0 + kl*2048 + rd*512}")
        return base
    CK2 = [(S_DBG, "0", 128, 11)]; CKQ = [(S_WS, f"s{S_CX}", C_Q, 9)]; CK3 = [(S_WS, f"s{S_CX}", C_L[3], 11)]
    def act_l2():
        lwait(g, "AFREE"); g.vmwait("f2"); poll1(g, CK2, "F2", pre=[196]); dma_img(g, "L2", 44, BUFA)
    after = {}
    def add(f, fn): after.setdefault(f, []).append(fn)
    if PAR.l2pos >= 0:
        add(PAR.l2pos - 2, lambda: presample(g, CK2, [196], "f2"))
        add(PAR.l2pos, act_l2)
        add(PAR.l2pos + 4, lambda: (g.vmwait("L2"), arrive(g, "L2OK")))
    add(F0(1), lambda: (lwait(g, "C0"), dma_w(g, 2)))
    add(F0(3) - 3, lambda: presample(g, CKQ + CK3, [196, 197], "fq"))
    add(F0(3) + PAR.qarr, lambda: (g.vmwait("Q4"), arrive(g, "QOK")))
    lwait(g, "W01")
    for c in range(4):
        k0 = 2 * F0(c); k1 = 2 * F0(c + 1)
        bufs = {k0: wread(k0), k0 + 1: wread(k0 + 1)}
        for ks in range(k0, k1):
            f, t = divmod(ks, 2)
            if t == 0: g.vmwait(f"x{f}")
            e(f"s_waitcnt lgkmcnt({4 if ks + 1 < k1 else 0})")
            for a in range(2):
                for tile in range(2):
                    acc = HACC + 32 * tile + 16 * a
                    if 2 * a + tile < PAR.nmf: e(f"v_mfma_f32_32x32x16_bf16 {vr(acc,16)}, {vr(bufs[ks]+4*a,4)}, {vr(xb(f,tile,t),4)}, {vr(acc,16)}")
                if a == 0 and ks + 2 < k1: bufs[ks + 2] = wread(ks + 2)
            if t == 1:
                if f + NS < 26: xload(f + NS)
                for fn in after.get(f, []): fn()
        if c == 0: arrive(g, "C0"); g.stamp()
        if c == 1:
            g.vmwait("W2"); arrive(g, "C1"); lwait(g, "C1"); dma_w(g, 3)
        if c == 2:
            g.vmwait("W3"); arrive(g, "C2"); lwait(g, "C2")
            if not PAR.qlate: g.vmwait("fq"); poll1(g, CKQ, "FQ", pre=[196]); dma_img(g, "Q4", 28, D0)
            e(f"v_lshrrev_b32 v1, 1, v{V_H16}")
            for a in range(2):
                for q in range(4):
                    g.vm(f"buffer_load_dwordx2 {vr(W2R+8*a+2*q,2)}, v1, {sr(S_W2)}, s{S_SB} offen offset:{64*a+16*q}", "w2")
    if PAR.qlate: g.vmwait("fq"); poll1(g, CKQ, "FQ", pre=[196]); dma_img(g, "Q4", 28, D0)
    e("s_waitcnt vmcnt(0)")
    g.stamp()
    W2F = HX
    for i in range(16):
        e(f"v_lshlrev_b32 v{W2F+2*i}, 16, v{W2R+i}")
        e(f"v_and_b32 v{W2F+2*i+1}, 0xffff0000, v{W2R+i}")
    c0 = 2 * 0.7978845608028654 * 1.4426950408889634
    e(f"s_mov_b32 s{S_C1}, {f2u(c0*0.044715):#x}")
    e(f"v_mov_b32 v2, {f2u(c0):#x}")
    T = HX + 32; SUM = HX + 48
    for i in range(4): e(f"v_mov_b32 v{SUM+i}, 0")
    def gelu(blk):
        rs = [HACC + 4 * blk + i for i in range(4)]
        tile = (4 * blk) // 32
        for i, r in enumerate(rs): e(f"v_mul_f32 v{T+i}, v{r}, v{r}")
        for i, r in enumerate(rs): e(f"v_fma_f32 v{T+i}, v{T+i}, s{S_C1}, v2")
        for i, r in enumerate(rs): e(f"v_mul_f32 v{T+i}, v{T+i}, v{r}")
        for i, r in enumerate(rs): e(f"v_exp_f32 v{T+i}, -v{T+i}")
        for i, r in enumerate(rs): e(f"v_mul_f32 v{r}, v{r}, v{W2F + (r - HACC) % 32}")
        for i, r in enumerate(rs): e(f"v_add_f32 v{T+i}, 1.0, v{T+i}")
        for i, r in enumerate(rs): e(f"v_rcp_f32 v{T+i}, v{T+i}")
        for i, r in enumerate(rs): e(f"v_fmac_f32 v{SUM + 2*tile + (i&1)}, v{r}, v{T+i}")
    for blk in range(16):
        if blk == PAR.gsplit:
            lwait(g, "BFREE"); poll1(g, CK3, "F3", pre=[197]); dma_img(g, "L3", 44, BUFB)
        if blk == PAR.gsplit2:
            e("s_waitcnt vmcnt(0)"); arrive(g, "L3OK")
        if blk == PAR.ghi: e("s_setprio 0")
        if blk < PAR.ngelu: gelu(blk)
    e("s_setprio 2")
    e(f"v_add_f32 v{SUM}, v{SUM}, v{SUM+1}"); e(f"v_add_f32 v{SUM+2}, v{SUM+2}, v{SUM+3}")
    e(f"v_permlane32_swap_b32 v{SUM}, v{SUM+2}")
    e(f"v_add_f32 v{SUM}, v{SUM}, v{SUM+2}")
    e(f"v_min_u32 v{SUM}, -2, v{SUM}")
    e("v_lshlrev_b32 v1, 2, v0")
    e(f"buffer_store_dword v{SUM}, v1, {sr(S_WS)}, s{S_PO} offen sc1")
    g.stamp()
    g.flush_stamps(4, 5)
    e("s_endpgm")

def gsignal(g, c, so):
    e = g.e; done = g.newlab("sg")
    if c: e("s_waitcnt vmcnt(0)"); arrive(g, c)
    e(f"s_cmp_lg_u32 s{S_J}, 0"); e(f"s_cbranch_scc1 {done}")
    if c: lwait(g, c)
    e(f"v_mul_u32_u24 v2, {PAR.cstr}, v0"); e("v_cmp_lt_u32 vcc, 15, v0"); e(f"v_mov_b32 v3, {OOB}"); e("v_cndmask_b32 v2, v2, v3, vcc")
    e("v_mov_b32 v1, 1")
    e(f"buffer_atomic_add v1, v2, {sr(S_WS)}, {so} offen sc1")
    g.lab(done)
SCN, FR, WV, WP, W1V, AQ, RW = 68, 104, 121, 122, 108, 44, 180
QAR = lambda i: (64 + i) if i < 4 else (240 + i)
S_E4, S_LW = 62, 63
def prod_early1(g):
    e = g.e
    g.lab("L_gsig")
    e("s_waitcnt vmcnt(0)"); arrive(g, "GST")
    e(f"s_cmp_lg_u32 s{S_J}, 0"); e("s_cbranch_scc1 L_xpub")
    lwait(g, "GST")
    e("v_mov_b32 v1, 1"); e(f"buffer_atomic_add v1, v{V_L0}, {sr(S_DBG)}, 0 offen offset:128 sc1")
    g.lab("L_xpub")
    XS = 180
    lwait(g, "RAW")
    for t in range(7): e(f"ds_read_b128 {vr(XS+4*t,4)}, v245 offset:{256*t}")
    e(f"s_cmp_ge_u32 s{S_J}, 2"); e(f"s_cselect_b32 s{S_T}, {OOB}, 0"); e(f"v_add_u32 v245, s{S_T}, v246")
    for t in range(7):
        e(f"s_waitcnt lgkmcnt({6-t})")
        g.vm(f"buffer_store_dwordx4 {vr(XS+4*t,4)}, v{246 if t < 6 else 245}, {sr(S_WS)}, s{S_XB} offen sc1", "xst")
        e(f"s_add_u32 s{S_XB}, s{S_XB}, 16384")
    arrive(g, "RB")
    e(f"s_cmp_ge_u32 s{S_R}, 13"); e(f"s_cselect_b32 s{S_T}, {OOB}, 0")
    e(f"v_lshl_add_u32 v1, v0, 2, s{S_T}"); e("v_mov_b32 v3, -1")
    g.vm(f"buffer_store_dword v3, v1, {sr(S_WS)}, s{S_PO} offen sc1", "sent")
    e(f"s_lshl_b32 s{S_T}, s{S_J}, 8"); e("v_lshrrev_b32 v29, 4, v0"); e(f"v_lshl_add_u32 v29, v29, 8, s{S_T}"); e("v_lshl_add_u32 v29, v0, 2, v29")
    g.vm(f"buffer_load_dword v28, v29, {sr(S_DBG)}, 0 offen offset:{C_RDY} sc1", "rdyl")
    e(f"v_lshrrev_b32 v1, 1, v{V_H16}")
    for a in range(2):
        for q in range(4):
            g.vm(f"buffer_load_dwordx2 {vr(BT+8*a+2*q,2)}, v1, {sr(S_B1)}, s{S_SB} offen offset:{64*a+16*q}", "bias")
    e(RET)
    g.lab("L_pe1")
    e(f"s_mul_i32 s{S_L}, s{S_WP}, 94"); e(f"s_lshr_b32 s{S_L}, s{S_L}, 10")
    e(f"s_mul_i32 s{S_T}, s{S_L}, 11"); e(f"s_sub_u32 s{S_FR}, s{S_WP}, s{S_T}"); e(f"s_lshl_b32 s{S_FR}, s{S_FR}, 2"); e(f"s_add_u32 s{S_FR}, s{S_FR}, s{S_J}")
    e(f"s_add_u32 s{S_L}, s{S_L}, 2")
    e(f"s_mul_i32 s{S_E2}, s{S_L}, {LB}")
    e(f"s_add_u32 s{S_LC+2}, s{S_E2}, {LB}")
    e("v_lshlrev_b32 v1, 4, v0")
    e(f"s_mul_i32 s{S_T}, s{S_J}, 9216"); e(f"s_add_u32 s{S_T}, s{S_T}, s{S_E2}")
    for i in range(9):
        if i % 4 == 0 and i: e(f"s_add_u32 s{S_T}, s{S_T}, 4096")
        e(f"buffer_load_dwordx4 {vr(SCN+4*i,4)}, v1, {sr(S_LC)}, s{S_T} offen offset:{(i%4)*1024}")
    e(f"s_cmp_ge_u32 s{S_WP}, 22"); e("s_cbranch_scc1 L_ret")
    e(f"s_lshl_b32 s{S_T}, s{S_FR}, 4"); e(f"s_add_u32 s{S_T}, s{S_T}, s{S_E2}")
    e(f"buffer_load_dwordx4 {vr(FR,4)}, v243, {sr(S_LC)}, s{S_T} offen")
    e(f"v_lshlrev_b32 v1, 1, v{V_HROW}"); e(f"s_mul_i32 s{S_T}, s{S_L}, 52")
    e(f"buffer_load_ushort v{WV}, v1, {sr(S_WO)}, s{S_T} offen")
    e(f"buffer_load_ushort v{WP}, v1, {sr(S_WO)}, 52 offen")
    e("v_lshrrev_b32 v3, 5, v0"); e("v_mul_u32_u24 v3, 26, v3")
    for i in range(8):
        e(f"s_lshl_b32 s{S_T}, s{S_FR}, 3"); e(f"s_sub_u32 s{S_T}, s{S_T}, {8*42 + 2 - i}")
        e(f"s_lshl_b32 s{S_T+1}, s{S_T}, 1"); e(f"s_add_u32 s{S_T+1}, s{S_T+1}, 52")
        e(f"s_cmp_lt_u32 s{S_T}, 13"); e(f"s_cselect_b32 s{S_T+1}, s{S_T+1}, {OOB}")
        e(f"v_add_u32 v2, s{S_T+1}, v3")
        e(f"buffer_load_ushort v{W1V+i}, v2, {sr(S_WO)}, 0 offen")
    g.lab("L_ret")
    e(RET)
def prod_early2(g):
    e = g.e
    g.lab("L_pe2")
    e("s_waitcnt vmcnt(15)")
    e(f"v_mov_b32 v{V_CNT}, {M_CNT}")
    for i in range(36): e(f"v_and_b32 v{SCN+i}, s{S_MASK}, v{SCN+i}")
    pkmax(g, [SCN + i for i in range(36)])
    put_max(g, M_SC)
    arrive(g, "SCM"); lwait(g, "SCM")
    get_max(g, M_SC)
    e(f"v_readfirstlane_b32 s{S_E0}, v1")
    e(f"s_bfe_u32 s{S_E0}, s{S_E0}, 0x80007")
    e(f"s_cmp_ge_u32 s{S_WP}, 22"); e("s_cbranch_scc1 L_ret")
    g.lab("L_gjob")
    e(f"s_min_u32 s{S_T+2}, s{S_E0}, 249"); e(f"s_sub_u32 s{S_T+3}, {127+124}, s{S_T+2}"); e(f"s_lshl_b32 s{S_T+3}, s{S_T+3}, 23")
    e(f"s_cmp_lt_u32 s{S_FR}, 42"); e(f"s_cselect_b32 s{S_T+1}, -1, 0")
    for i in range(1, 4): e(f"v_and_b32 v{FR+i}, s{S_T+1}, v{FR+i}")
    e(f"s_cmp_lt_u32 s{S_FR}, 43"); e(f"s_cselect_b32 s{S_T+1}, -1, 0"); e(f"v_and_b32 v{FR}, s{S_T+1}, v{FR}")
    for i in range(4): e(f"v_alignbit_b32 v{FR+i}, v{FR+i}, v{FR+i}, v{V_H16}")
    for i in range(4):
        e(f"v_lshlrev_b32 v{SCN+2*i}, 16, v{FR+i}"); e(f"v_and_b32 v{SCN+2*i+1}, 0xffff0000, v{FR+i}")
    for i in range(8): e(f"v_mul_f32 v{SCN+i}, s{S_T+3}, v{SCN+i}")
    for i in range(4): e(f"v_cvt_pk_f16_f32 v{FR+i}, v{SCN+2*i}, v{SCN+2*i+1}")
    e(f"v_lshlrev_b32 v{WV}, 16, v{WV}")
    e(f"v_and_b32 v1, 0x7fffffff, v{WV}")
    wavemax_exp(g, 1, S_E1)
    e(f"s_sub_u32 s{S_E1}, s{S_E1}, 13"); e(f"s_sub_u32 s{S_T}, 0, s{S_E1}")
    e(f"v_ldexp_f32 v{WV}, v{WV}, s{S_T}")
    for i in range(8): e(f"v_mul_f32 v{SCN+i}, v{SCN+i}, v{WV}")
    for sh in (1, 2, 4, 8):
        for i in range(8): e(f"v_add_f32_dpp v{SCN+i}, v{SCN+i}, v{SCN+i} row_shr:{sh} {DPPALL} bound_ctrl:0")
    for i in range(8): e(f"v_add_f32_dpp v{SCN+i}, v{SCN+i}, v{SCN+i} row_bcast:15 row_mask:0xa bank_mask:0xf")
    for i in range(4): e(f"v_cvt_pk_f16_f32 v{SCN+2*i}, v{SCN+2*i}, v{SCN+2*i+1}")
    e("v_and_b32 v2, 31, v0"); e("v_cmp_eq_u32 vcc, 31, v2")
    for i in range(4): e(f"v_cndmask_b32 v{FR+i}, v{FR+i}, v{SCN+2*i}, vcc")
    e(f"v_lshlrev_b32 v1, 16, v{WP}"); e("v_and_b32 v1, 0x7fffffff, v1")
    wavemax_exp(g, 1, S_E4)
    e(f"s_sub_u32 s{S_T}, 15, s{S_E4}")
    for i in range(8): e(f"v_lshlrev_b32 v{W1V+i}, 16, v{W1V+i}")
    for i in range(8): e(f"v_ldexp_f32 v{W1V+i}, v{W1V+i}, s{S_T}")
    for i in range(4): e(f"v_cvt_pk_f16_f32 v{W1V+2*i}, v{W1V+2*i}, v{W1V+2*i+1}")
    e("v_cmp_eq_u32 vcc, 30, v2")
    for i in range(4): e(f"v_cndmask_b32 v{FR+i}, v{FR+i}, v{W1V+2*i}, vcc")
    e(f"s_cmp_lg_u32 s{S_FR}, 0"); e("s_cbranch_scc1 L_nohdr")
    e(f"s_sub_u32 s{S_T+2}, s{S_T+2}, 124"); e(f"s_add_u32 s{S_E1}, s{S_E1}, s{S_T+2}"); e(f"s_sub_u32 s{S_E4}, s{S_E4}, 15")
    e(f"v_writelane_b32 v{FR}, s{S_T+2}, 29"); e(f"v_writelane_b32 v{FR+1}, s{S_E1}, 29"); e(f"v_writelane_b32 v{FR+2}, s{S_E4}, 29")
    g.lab("L_nohdr")
    e(f"s_mul_i32 s{S_T}, s{S_L}, {44*1024}"); e(f"s_lshl_b32 s{S_T+1}, s{S_FR}, 10"); e(f"s_add_u32 s{S_T}, s{S_T}, s{S_T+1}")
    e(f"s_sub_u32 s{S_T}, s{S_T}, {88*1024 - IMG['L2']}")
    e("v_lshlrev_b32 v1, 4, v0")
    e(f"buffer_store_dwordx4 {vr(FR,4)}, v1, {sr(S_WS)}, s{S_T} offen sc1")
    e("s_nop 0")
    e(RET)
def helper_prod(g):
    e = g.e
    e(f"s_cmp_ge_u32 s{S_WP}, 31"); e("s_cbranch_scc1 L_idle")
    e(f"s_cmp_ge_u32 s{S_WP}, 22"); e("s_cbranch_scc1 L_nog")
    e("s_branch L_idle")
    g.lab("L_nog")
    lwait(g, "RB", 8)
    e("v_and_b32 v2, 31, v0"); e("v_lshrrev_b32 v3, 5, v0")
    e("v_mul_u32_u24 v1, 676, v3"); e("v_add_lshl_u32 v1, v1, v2, 1")
    e(f"s_mul_i32 s{S_T}, s{S_FR}, 52"); e(f"s_add_u32 s{S_T}, s{S_T}, {4*LB}")
    for s in range(13):
        e(f"buffer_load_ushort v{W1V+s}, v1, {sr(S_LC)}, s{S_T} offen")
        e(f"s_add_u32 s{S_T}, s{S_T}, 2704")
    e(f"s_cmp_eq_u32 s{S_WP}, 29"); e(f"s_cselect_b32 s{S_LW}, 4, 5"); e(f"s_cmp_eq_u32 s{S_WP}, 30"); e(f"s_cselect_b32 s{S_LW}, 0, s{S_LW}")
    e(f"s_mul_i32 s{S_E2}, s{S_LW}, {LB}"); e(f"s_add_u32 s{S_LC+2}, s{S_E2}, {LB}")
    e("v_lshlrev_b32 v1, 1, v0"); e("v_cmp_lt_u32 vcc, 25, v0"); e(f"v_mov_b32 v2, {OOB}"); e("v_cndmask_b32 v1, v1, v2, vcc")
    e(f"s_mul_i32 s{S_T}, s{S_LW}, 52")
    e(f"buffer_load_ushort v{WV}, v1, {sr(S_WO)}, s{S_T} offen")
    e("v_lshlrev_b32 v1, 4, v0")
    e(f"s_mul_i32 s{S_T}, s{S_J}, 1352"); e(f"s_add_u32 s{S_T}, s{S_T}, s{S_E2}")
    for t in range(7):
        for ps in range(2):
            e(f"buffer_load_dwordx4 {vr(RW+8*t+4*ps,4)}, v1, {sr(S_LC)}, s{S_T} offen offset:{1024*ps}")
        e(f"s_add_u32 s{S_T}, s{S_T}, {4*1352}")
    e("s_waitcnt vmcnt(0)")
    AC = HX; TU = HX + 16
    for t in range(6): e(f"v_lshl_or_b32 v{QAR(t)}, v{W1V+2*t+1}, 16, v{W1V+2*t}")
    e(f"v_mov_b32 v{QAR(6)}, v{W1V+12}"); e(f"v_mov_b32 v{QAR(7)}, 0")
    g.stamp("q")
    e(f"v_lshlrev_b32 v{WV}, 16, v{WV}"); e(f"v_and_b32 v1, 0x7fffffff, v{WV}")
    wavemax_exp(g, 1, S_E1)
    e(f"s_sub_u32 s{S_T}, 0, s{S_E1}"); e(f"v_ldexp_f32 v{WV}, v{WV}, s{S_T}")
    for i in range(16): e(f"v_mov_b32 v{AC+i}, 0")
    for t in range(7):
        e(f"s_add_u32 s{S_T}, s{S_J}, {4*t}")
        e(f"v_readlane_b32 s{S_T+1}, v{WV}, s{S_T}")
        for i in range(8):
            e(f"v_lshlrev_b32 v{TU+2*i}, 16, v{RW+8*t+i}"); e(f"v_and_b32 v{TU+2*i+1}, 0xffff0000, v{RW+8*t+i}")
        for i in range(16): e(f"v_fmac_f32 v{AC+i}, s{S_T+1}, v{TU+i}")
    PSTR = 4096
    e(f"s_mul_i32 s{S_T}, s{S_J}, {PSTR}"); e(f"s_add_u32 s{S_T}, s{S_T}, {D0}")
    e(f"v_lshl_add_u32 v1, v0, 5, s{S_T}")
    for ps in range(2):
        for hf in range(2): e(f"ds_write_b128 v1, {vr(AC+8*ps+4*hf,4)} offset:{2048*ps+16*hf}")
    g.stamp("q"); arrive(g, "WC"); lwait(g, "WC"); g.stamp("q")
    e(f"s_cmp_eq_u32 s{S_FR}, 28"); e("s_cbranch_scc1 L_lin")
    e(f"s_cmp_lt_u32 s{S_FR}, 26"); e("s_cbranch_scc1 L_q")
    e(f"s_cmp_lg_u32 s{S_FR}, 32"); e("s_cbranch_scc1 L_noq")
    g.lab("L_q")
    BQ, PT, DQ = HX + 16, HX + 32, HX + 96
    e("v_and_b32 v2, 31, v0"); e("v_lshrrev_b32 v3, 5, v0")
    e("v_mad_u32_u24 v1, v3, 26, v2"); e("v_lshlrev_b32 v1, 2, v1"); e(f"v_add_u32 v1, {D0}, v1")
    def readsum(stride):
        for pj in range(4):
            for s in range(13): e(f"ds_read_b32 v{PT+13*pj+s}, v1 offset:{PSTR*pj + stride*s}")
            if pj: e("s_waitcnt lgkmcnt(13)")
        e("s_waitcnt lgkmcnt(0)")
        for s in range(13):
            e(f"v_add_f32 v{PT+s}, v{PT+s}, v{PT+13+s}"); e(f"v_add_f32 v{PT+26+s}, v{PT+26+s}, v{PT+39+s}")
        for s in range(13): e(f"v_add_f32 v{BQ+s}, v{PT+s}, v{PT+26+s}")
    def max13():
        e(f"v_max3_f32 v1, |v{BQ}|, |v{BQ+1}|, |v{BQ+2}|")
        for s in range(3, 13, 2): e(f"v_max3_f32 v1, v1, |v{BQ+s}|, |v{BQ+s+1}|")
    readsum(208)
    e("v_cmp_gt_u32 vcc, 26, v2")
    for s in range(13): e(f"v_cndmask_b32 v{BQ+s}, 0, v{BQ+s}, vcc")
    max13()
    wavemax_exp(g, 1, S_E2)
    e(f"s_sub_u32 s{S_T}, 0, s{S_E2}")
    for s in range(13): e(f"v_ldexp_f32 v{BQ+s}, v{BQ+s}, s{S_T}")
    e(f"s_max_u32 s{S_E0}, s{S_E0}, 10"); e(f"s_sub_u32 s{S_E0}, s{S_E0}, 126")
    BH, BL = PT, PT + 8
    e(f"v_mov_b32 v{BQ+13}, 0"); e(f"v_mov_b32 v{BH+7}, 0"); e(f"v_mov_b32 v{BL+7}, 0")
    for t in range(7): e(f"v_cvt_pk_bf16_f32 v{BH+t}, v{BQ+2*t}, v{BQ+2*t+1}")
    for t in range(7):
        e(f"v_lshlrev_b32 v{PT+16+2*t}, 16, v{BH+t}"); e(f"v_and_b32 v{PT+17+2*t}, 0xffff0000, v{BH+t}")
    for t in range(14): e(f"v_sub_f32 v{BQ+t}, v{BQ+t}, v{PT+16+t}")
    for t in range(7): e(f"v_cvt_pk_bf16_f32 v{BL+t}, v{BQ+2*t}, v{BQ+2*t+1}")
    e(f"s_cmp_ge_u32 s{S_FR}, 13"); e(f"s_cselect_b32 s{S_T+1}, 13, 0"); e(f"s_cselect_b32 s{S_T+2}, 4, 0")
    e(f"s_sub_u32 s{S_T+1}, s{S_FR}, s{S_T+1}"); e(f"s_and_b32 s{S_T+3}, s{S_T+1}, 3"); e(f"s_add_u32 s{S_T+2}, s{S_T+2}, s{S_T+3}")
    e(f"s_lshr_b32 s{S_T+1}, s{S_T+1}, 2"); e(f"s_lshl_b32 s{S_T+1}, s{S_T+1}, 3"); e(f"s_add_u32 s{S_SB}, s{S_T+2}, s{S_T+1}")
    e(f"s_mov_b32 s{S_L}, 0")
    e(f"s_cmp_lg_u32 s{S_FR}, 32"); e("s_cbranch_scc1 L_q2")
    e("v_sub_u32 v1, v2, v3")
    for s in range(13):
        e(f"v_cmp_eq_u32 vcc, {2*s}, v1"); e(f"v_cndmask_b32 v{AQ+s}, 0, 1.0, vcc")
    e(f"v_mov_b32 v{AQ+13}, 0")
    for t in range(7): e(f"v_cvt_pk_bf16_f32 v{QAR(t)}, v{AQ+2*t}, v{AQ+2*t+1}")
    e(f"s_mov_b32 s{S_E0}, 0"); e(f"s_mov_b32 s{S_SB}, 31"); e(f"s_mov_b32 s{S_L}, 8")
    g.lab("L_q2")
    g.stamp("q")
    e("s_nop 1")
    first = True
    for bb in (BL, BH):
        for ks in range(2):
            e(f"v_mfma_f32_32x32x16_bf16 {vr(DQ,16)}, {vr(QAR(4*ks),4)}, {vr(bb+4*ks,4)}, {'0' if first else vr(DQ,16)}"); first = False
            e(f"v_mfma_f32_32x32x16_bf16 {vr(DQ,16)}, {vr(bb+4*ks,4)}, {vr(QAR(4*ks),4)}, {vr(DQ,16)}")
    e(f"v_max_f32 v1, v{QS}, v{QS+1}")
    e(f"s_sub_u32 s{S_T}, 137, s{S_E0}"); e(f"s_lshl_b32 s{S_T}, s{S_T}, 23"); e(f"v_mov_b32 v30, s{S_T}"); e("v_mul_f32 v31, 0.5, v30")
    for t in range(7):
        e(f"v_cmp_eq_f32 vcc, v1, v{QS+t}"); e(f"v_cndmask_b32 v{QS+t}, v31, v30, vcc")
    e(f"s_cmp_eq_u32 s{S_J}, 1"); e(f"s_cselect_b32 s{S_T}, 48, 0"); e(f"s_sub_u32 s{S_T}, {D1 - BUFA}, s{S_T}")
    for t in range(7): e(f"v_add_u32 v{QA+t}, s{S_T}, v{QA+t}")
    e(f"v_mul_u32_u24 v1, {S0STR}, v2"); e("v_lshl_add_u32 v1, v3, 9, v1"); e(f"s_lshl_b32 s{S_T}, s{S_J}, 4"); e(f"s_add_u32 s{S_T}, s{S_T}, {D1}")
    e(f"v_min_u32 v1, {22*S0STR+512}, v1")
    e(f"v_add_u32 v1, s{S_T}, v1")
    e(f"v_lshl_add_u32 v28, v3, 9, s{S_T}"); e("v_mov_b32 v29, 0")
    e(f"ds_write_b32 v28, v29 offset:{22*S0STR+12}")
    pack_round(g, DQ, 0, False)
    g.stamp("q")
    e("s_waitcnt lgkmcnt(0)")
    e(f"ds_read_b128 {vr(AQ,4)}, v1")
    e("v_lshlrev_b32 v1, 10, v2"); e("v_lshl_add_u32 v1, v3, 9, v1"); e("v_cmp_lt_u32 vcc, 22, v2"); e(f"v_mov_b32 v28, {OOB}"); e("v_cndmask_b32 v1, v1, v28, vcc")
    e(f"s_lshl_b32 s{S_T}, s{S_SB}, 4"); e(f"s_add_u32 s{S_T}, s{S_T}, {IMG['Q4']}")
    e("s_waitcnt lgkmcnt(0)")
    e(f"buffer_store_dwordx4 {vr(AQ,4)}, v1, {sr(S_WS)}, s{S_T} offen sc1")
    e(f"s_add_u32 s{S_E0}, s{S_E0}, s{S_E2}"); e(f"s_add_u32 s{S_E0}, s{S_E0}, s{S_E1}"); e(f"s_sub_u32 s{S_E0}, s{S_E0}, 10")
    e(f"s_and_b32 s{S_T}, s{S_FR}, 31"); e(f"s_cmp_lg_u32 s{S_T}, 0"); e("s_cbranch_scc1 L_noq")
    g.lab("L_qh")
    e(f"v_mov_b32 v1, s{S_E0}"); e(f"s_add_u32 s{S_T}, s{S_L}, {IMG['Q4'] + 23*1024}")
    e(f"buffer_store_dword v1, v{V_L0}, {sr(S_WS)}, s{S_T} offen sc1")
    e("s_branch L_noq")
    g.lab("L_lin")
    e("v_lshrrev_b32 v3, 5, v0"); e(f"v_min_u32 v2, 25, v{V_HROW}")
    e("v_mad_u32_u24 v1, v2, 26, v3"); e("v_lshlrev_b32 v1, 2, v1"); e(f"v_add_u32 v1, {D0}, v1")
    readsum(8)
    e(f"v_cmp_gt_u32 vcc, 26, v{V_HROW}")
    for s in range(13): e(f"v_cndmask_b32 v{BQ+s}, 0, v{BQ+s}, vcc")
    max13()
    wavemax_exp(g, 1, S_E2)
    e(f"s_sub_u32 s{S_T}, 15, s{S_E2}")
    for s in range(13): e(f"v_ldexp_f32 v{BQ+s}, v{BQ+s}, s{S_T}")
    e(f"v_mov_b32 v{BQ+13}, 0"); e(f"v_mov_b32 v{AQ+7}, 0")
    for t in range(7): e(f"v_cvt_pk_f16_f32 v{AQ+t}, v{BQ+2*t}, v{BQ+2*t+1}")
    e("v_lshlrev_b32 v1, 4, v0"); e(f"s_mov_b32 s{S_T}, {IMG['Q4'] + 24*1024}")
    for s in range(2): e(f"buffer_store_dwordx4 {vr(AQ+4*s,4)}, v1, {sr(S_WS)}, s{S_T} offen offset:{1024*s} sc1")
    e(f"s_add_u32 s{S_E0}, s{S_E2}, s{S_E1}"); e(f"s_sub_u32 s{S_E0}, s{S_E0}, 15"); e(f"s_mov_b32 s{S_L}, 4")
    e("s_branch L_qh")
    g.lab("L_noq")
    g.stamp("q")
    e(f"s_mov_b32 s{S_T+2}, {WS_CNT + C_Q}")
    gsignal(g, "QST", f"s{S_T+2}")
    g.stamp("q")
    lwait(g, "QST")
    g.lab("L_idle")
    g.stamp()
    lwait(g, "AFREE")
    poll1(g, [(S_DBG, "0", 128, 11)], "F2")
    dma_img(g, "L2", 44, BUFA)
    e("s_waitcnt vmcnt(0)"); arrive(g, "L2OK")
    g.stamp()
    lwait(g, "L2OK")
    if PAR.l3late:
        e(f"s_sub_u32 s{S_T}, s{S_WP}, 11"); e(f"s_cmp_ge_u32 s{S_T}, 11"); e("s_cbranch_scc1 L_nol3")
        e(f"s_mov_b32 s{S_T+2}, {WS_CNT + C_L[3]}")
        gsignal(g, None, f"s{S_T+2}")
        g.lab("L_nol3")
    poll1(g, [(S_WS, f"s{S_CX}", C_Q, 9), CHK_X()], "FQ")
    dma_img(g, "Q4", 28, D0)
    e("s_waitcnt vmcnt(0)"); arrive(g, "QOK")
    g.stamp()
    lwait(g, "BFREE")
    poll1(g, [(S_WS, f"s{S_CX}", C_L[3], 11)], "F3")
    dma_img(g, "L3", 44, BUFB)
    e("s_waitcnt vmcnt(0)"); arrive(g, "L3OK")
    g.stamp()
    g.flush_stamps(4, 5)
    e("s_endpgm")

def build(stamps=False):
    g = G(stamps)
    prologue(g); n0 = g.nst
    cin(g)
    g.lab("L_helper"); g.nst = n0
    helper_common(g); n1 = g.nst
    g.e(f"s_cmp_ge_u32 s{S_R}, 13"); g.e("s_cbranch_scc1 L_helper_n")
    helper_dnn(g)
    g.lab("L_helper_n"); g.nst = n1
    helper_prod(g)
    prod_early1(g); prod_early2(g)
    g.L += g.tail
    g.lab("L_end"); g.e("s_endpgm")
    body, nops = fix_hazards(g.L)
    ref = open("standalone__deep_cross_xdeepfm__recsys.s.ref").read().split("\n")
    hdr = [l for l in ref if l.startswith(";") and "@launch" not in l and "Override" not in l and "grid=ceil" not in l]
    txt = "\n".join(hdr) + f"\n; @launch grid=(256,1,1) block=(512,1,1) lds={LDS_TOTAL}\n"
    txt += f'.amdgcn_target "amdgcn-amd-amdhsa--gfx950"\n.text\n.globl {KN}\n.p2align 8\n.type {KN},@function\n{KN}:\n'
    txt += "\n".join(body) + "\n"
    txt += f""".section .rodata,"a"
.p2align 6
.amdhsa_kernel {KN}
  .amdhsa_next_free_vgpr 256
  .amdhsa_next_free_sgpr 102
  .amdhsa_accum_offset 256
  .amdhsa_group_segment_fixed_size 0
  .amdhsa_kernarg_size 88
  .amdhsa_user_sgpr_count 2
  .amdhsa_user_sgpr_kernarg_segment_ptr 1
  .amdhsa_system_sgpr_workgroup_id_x 1
.end_amdhsa_kernel
"""
    return txt, nops
if __name__ == "__main__":
    for a in sys.argv[2:]:
        if "=" in a:
            k, v = a.split("="); setattr(PAR, k, eval(v))
    txt, nops = build(stamps="stamps" in sys.argv)
    open(sys.argv[1], "w").write(txt)
    print("nops inserted", nops, "lines", txt.count("\n"))
```

```python
import sys, struct
from asmlib import fix_hazards
KN = "standalone__deep_cross_xdeepfm__recsys_kernel"
def f2u(f): return struct.unpack('<I', struct.pack('<f', f))[0]
OOB = 0x40000000
SPIN = 200000
LB = 35152
IMG = {}
off = 0
for name, n in (("L2", 44), ("L3", 44), ("Q4", 28)):
    IMG[name] = off; off += n * 1024
NR = 15
WS_PART = off
WS_CNT = WS_PART + 16 * NR * 1024
WS_STAMP = 0x80000
WS_X = WS_STAMP + 256 * 8 * 64
C_L = {3: 512}; C_Q = 516; C_XR = 256; C_RDY = 0
BUFA, BUFB = 0, 45056
D0, D1 = 90112, 118784
QB = D0 + 10 * 4096
MISC = QB + 28672
LDS_TOTAL = MISC + 2560
M_S0, M_L1, M_SC, M_EW1, M_CNT = MISC, MISC + 64, MISC + 128, MISC + 192, MISC + 256
CNT = {n: M_CNT + 4 * i for i, n in enumerate(["XST", "L1M", "L1OK", "AFREE", "L2OK", "BFREE", "L3OK", "QOK", "W01", "C0", "C1", "C2", "SCM", "GST", "WC", "QST", "FX", "F2", "F3", "FQ", "S0OK", "S0M", "RAW", "RB"])}
CNT["AFREE"] = M_CNT + 4 * 28; CNT["BFREE"] = M_CNT + 4 * 29; CNT["RB"] = M_CNT + 4 * 30
S0STR = 1040
XSTR = 1680
QPAIRS = [(p, q) for p in range(13) for q in range(p, 13)]
S_IDX, S_TAB, S_WS, S_W1, S_B1, S_W2, S_OUT, S_DBG, S_BO, S_WC, S_WO = 4, 8, 12, 16, 20, 24, 28, 32, 36, 40, 44
S_G, S_R, S_WAVE, S_J = 70, 71, 83, 3
S_HDR = 48
S_EX = 60
S_K = 64
S_K1 = 4
S_KC = 76
S_T = 72
S_MASK = 80
S_C1 = 81
S_SB = 82
S_ST = 84
class P: pass
PAR = P()
PAR.chunks = [7, 7, 6, 6]
PAR.gsplit = 0
PAR.gsplit2 = 6
PAR.lnpos = 28
PAR.pload = 21
PAR.xst = 2
PAR.l2pos = -1
PAR.nslot = 6
PAR.st = 'ad'
PAR.ld = 'sc1'
PAR.inv = 0
PAR.il = 2
PAR.fst = (0, 3, 6, 10, 13, 17, 22)
PAR.xi = 3
PAR.wbn = 3
PAR.wpf3 = 0
PAR.wa = 10
PAR.l3n = 2
PAR.wbpos = 3
PAR.wmod = ''
PAR.w2 = 1
PAR.l1rate = 16
PAR.sclq = 0
PAR.x0 = 0
PAR.qpos = 13
PAR.m16 = 0
PAR.encsel = None
PAR.gmin = 0
PAR.qaearly = 0
PAR.gmod = 'nt'
PAR.imod = 'nt'
PAR.pkpack = 0
PAR.w0lin = 0
PAR.l3rate = 18
PAR.qarr = 3
PAR.gearly = 11
PAR.ngelu = 16
PAR.nmf = 14
PAR.npk = 4
PAR.lslp = 4
PAR.zpad = 1
PAR.skew = 1
PAR.cstr = 4352
PAR.l3late = 1
PAR.xp = 3
PAR.wearly = 0
PAR.wpf2 = 0
PAR.ghi = 4
PAR.qchk = 8
PAR.cp = 1
PAR.enc = None
PAR.rate = 20
PAR.qrate = 24
PAR.clk = 0
PAR.hp = 0
PAR.nost = 0
PAR.wpf = 1
PAR.rot = 2
PAR.pf = 4
PAR.qlate = 0
PAR.slp = 8
PAR.de = 2
PAR.touch = 0
PAR.dbg = None
class G:
    def __init__(self, stamps=False):
        self.L = []; self.stamps = stamps; self.nst = 0; self.nl = 0; self.vmq = []; self.tail = []
    def e(self, s): self.L.append("    " + s)
    def lab(self, s): self.L.append(s + ":")
    def vm(self, s, tag): self.e(s); self.vmq.append(tag)
    def vmwait(self, *tags):
        idx = max(i for i, t in enumerate(self.vmq) if t in tags)
        n = len(self.vmq) - 1 - idx
        self.e(f"s_waitcnt vmcnt({min(n, 63)})")
    def newlab(self, s): self.nl += 1; return f"L_{s}_{self.nl}"
    def stamp(self, name=None):
        if self.stamps and (name or "d") in PAR.st:
            assert self.nst < 8
            self.e(f"{'s_memtime' if PAR.clk else 's_memrealtime'} s[{S_ST+2*self.nst}:{S_ST+2*self.nst+1}]"); self.nst += 1
    def flush_stamps(self, vt, va):
        if not self.stamps: return
        self.e("s_waitcnt lgkmcnt(0)")
        self.e(f"s_lshl_b32 s{S_T}, s2, 3"); self.e(f"s_add_u32 s{S_T}, s{S_T}, s{S_WAVE}"); self.e(f"s_lshl_b32 s{S_T}, s{S_T}, 6")
        self.e(f"s_add_u32 s{S_T}, s{S_T}, {WS_STAMP}")
        self.e(f"v_mov_b32 v{va}, 0")
        if PAR.dbg is not None:
            lb = self.newlab("nd")
            self.e(f"s_cmp_lg_u32 s{S_T}, {WS_STAMP + PAR.dbg*64}"); self.e(f"s_cbranch_scc1 {lb}")
            for i in range(self.nst):
                self.e(f"s_sub_u32 s{S_T+1}, s{S_ST+2*i}, s{S_ST}")
                self.e(f"v_mov_b32 v{vt}, s{S_T+1}")
                self.e(f"buffer_store_dword v{vt}, v{va}, s[{S_DBG}:{S_DBG+3}], 0 offen offset:{64+4*i}")
            self.lab(lb)
        for i in range(self.nst):
            self.e(f"v_mov_b32 v{vt}, s{S_ST+2*i}")
            self.e(f"buffer_store_dword v{vt}, v{va}, s[{S_WS}:{S_WS+3}], s{S_T} offen offset:{4*i}")
        self.nst = 0
def vr(a, n): return f"v[{a}:{a+n-1}]"
def sr(a, n=4): return f"s[{a}:{a+n-1}]"
DPPALL = "row_mask:0xf bank_mask:0xf"

def prologue(g):
    e = g.e
    e("s_cmp_ge_u32 s2, 256")
    e("s_cbranch_scc1 L_end")
    g.stamp("a")
    e("s_load_dwordx16 s[48:63], s[0:1], 0")
    e("s_load_dwordx4 s[64:67], s[0:1], 64")
    e("s_load_dwordx2 s[68:69], s[0:1], 80")
    if PAR.pf:
        e(f"s_getpc_b64 s[{S_KC}:{S_KC+1}]")
        g.lab("L_pfbase")
        e(f"s_mov_b32 s{S_KC+2}, L_end - L_pfbase"); e(f"s_mov_b32 s{S_KC+3}, 0x00020000")
        e(f"s_lshr_b32 s{S_T}, s2, 3"); e(f"s_lshl_b32 s{S_T}, s{S_T}, 7")
        e("v_xor_b32 v1, 0x1c0, v0"); e("v_lshlrev_b32 v1, 12, v1")
        e(f"buffer_load_dword v255, v1, {sr(S_KC)}, s{S_T} offen")
    e("v_lshrrev_b32 v1, 6, v0")
    e("v_and_b32 v0, 63, v0")
    e(f"v_readfirstlane_b32 s{S_WAVE}, v1")
    e(f"s_and_b32 s{S_T}, s2, 7")
    e(f"s_lshr_b32 s{S_T+1}, s2, 3")
    e(f"s_lshr_b32 s{S_G}, s{S_T+1}, 4")
    e(f"s_lshl_b32 s{S_T}, s{S_T}, 1")
    e(f"s_add_u32 s{S_G}, s{S_G}, s{S_T}")
    e(f"s_and_b32 s{S_R}, s{S_T+1}, 15")
    e(f"s_mov_b32 s{S_MASK}, 0x7fff7fff")
    e("v_and_b32 v25, 31, v0"); e("v_lshlrev_b32 v25, 2, v25"); e(f"v_add_u32 v25, {M_CNT}, v25"); e("v_mov_b32 v2, 0")
    e("ds_write_b32 v25, v2")
    e(f"s_cmp_ge_u32 s{S_WAVE}, 4")
    e("s_cbranch_scc1 L_helper")

SRDS = {S_IDX: (48, 4096*104), S_TAB: (50, 6400000), S_WC: (52, LB), S_WO: (54, 312), S_W1: (56, 832*1664), S_B1: (58, 1664), S_W2: (60, 1664),
        S_BO: (62, 2), S_OUT: (64, 8192), S_DBG: (66, 256), S_WS: (68, 1 << 28)}
def srd_const(g, lst):
    for srd in lst: g.e(f"s_mov_b32 s{srd+2}, {SRDS[srd][1]}"); g.e(f"s_mov_b32 s{srd+3}, 0x00020000")
def srd_base(g, lst):
    for srd in lst: g.e(f"s_mov_b64 s[{srd}:{srd+1}], s[{SRDS[srd][0]}:{SRDS[srd][0]+1}]")
ACC, ACC2, XR, UR, BR, AR, SC, LG, TM = 4, 68, 132, 188, 216, 232, 244, 248, 252
def X(k, p): return XR + 14 * k + p
def EV(k): return XR + 14 * k + 13
def U(k, t): return UR + 7 * k + t
def cin(g):
    e = g.e
    e("s_setprio 1")
    e(f"s_lshl_b32 s{S_T}, s{S_G}, 8"); e(f"s_lshl_b32 s{S_T+1}, s{S_R}, 4"); e(f"s_add_u32 s{S_T}, s{S_T}, s{S_T+1}")
    e(f"s_lshl_b32 s{S_T+1}, s{S_WAVE}, 2"); e(f"s_add_u32 s{S_SB}, s{S_T}, s{S_T+1}")
    e("v_lshrrev_b32 v1, 4, v0")
    e("v_bfe_u32 v2, v0, 2, 2")
    e("v_and_b32 v3, 3, v0")
    e("v_mul_u32_u24 v4, 104, v1")
    e("v_mad_u32_u24 v4, v2, 28, v4")
    I = 8
    CS = [S_IDX, S_WC, S_TAB, S_WS, S_BO, S_OUT] + ([S_DBG] if PAR.dbg is not None or PAR.gmin else [])
    srd_const(g, CS)
    e(f"s_mov_b32 s{S_WC+2}, {2*LB}"); e(f"s_mov_b32 s{S_J}, s{S_WAVE}")
    e("v_lshlrev_b32 v5, 4, v3")
    e("v_cmp_eq_u32 vcc, 3, v2")
    e(f"v_mov_b32 v6, {OOB}")
    e("v_cndmask_b32 v6, 0, v6, vcc")
    e("v_add_u32 v6, v6, v5")
    e("v_lshlrev_b32 v26, 4, v0"); e("v_cmp_lt_u32 vcc, 42, v0"); e(f"v_mov_b32 v27, {OOB}"); e("v_cndmask_b32 v26, v26, v27, vcc")
    e("v_lshlrev_b32 v29, 4, v0"); e(f"v_add_u32 v29, {BUFA + 28*1024}, v29")
    e(f"s_lshl_b32 s{S_T}, s{S_J}, 4"); e(f"s_add_u32 s{S_T}, s{S_T}, {BUFB}")
    e(f"v_mul_u32_u24 v28, {S0STR}, v0"); e(f"v_add_u32 v28, s{S_T}, v28"); e("v_cndmask_b32 v28, v28, v29, vcc")
    e(f"s_mul_i32 s{S_T+1}, s{S_WAVE}, {4*XSTR}"); e(f"s_add_u32 s{S_T+1}, s{S_T+1}, {D0}")
    e(f"v_mul_u32_u24 v7, {XSTR}, v1")
    e("v_mad_u32_u24 v16, v2, 7, 0")
    e("v_lshl_add_u32 v7, v16, 6, v7")
    e(f"v_add3_u32 v7, v7, v5, s{S_T+1}")
    e("v_cmp_eq_u32 vcc, 3, v2")
    e(f"v_lshl_add_u32 v18, v0, 4, 0"); e(f"v_add_u32 v18, {D0 + 16*XSTR + 256 - 320}, v18"); e("v_cndmask_b32 v18, v7, v18, vcc")
    e("v_lshrrev_b32 v16, 1, v1")
    e("v_xor_b32 v16, v16, v2")
    e("v_lshlrev_b32 v16, 6, v16")
    e("v_and_b32 v17, 1, v1")
    e("v_lshl_add_u32 v16, v17, 5, v16")
    e("v_lshl_add_u32 v16, v3, 3, v16")
    e(f"v_add_u32 v16, s{S_T+1}, v16")
    for k in range(4): e(f"v_mov_b32 v{LG+k}, 0")
    PA, PS, DR = 32, 40, 184
    if PAR.zpad:
        for i in range(4): e(f"v_mov_b32 v{PS+i}, 0")
        e(f"s_and_b32 s{S_T}, s{S_J}, 1"); e(f"s_mul_i32 s{S_T}, s{S_T}, 48"); e(f"s_lshr_b32 s{S_T+1}, s{S_J}, 1"); e(f"s_mul_i32 s{S_T+1}, s{S_T+1}, 480")
        e(f"s_add_u32 s{S_T}, s{S_T}, s{S_T+1}"); e(f"v_add_u32 v30, s{S_T}, v28")
        e(f"v_subrev_u32 v31, {BUFB - BUFA}, v30"); e("v_cmp_lt_u32 vcc, 22, v0"); e("v_cndmask_b32 v31, v31, v29, vcc")
        for i in range(3):
            e(f"ds_write_b128 v30, {vr(PS,4)} offset:{25*16 + 16*i}"); e(f"ds_write_b128 v31, {vr(PS,4)} offset:{25*16 + 16*i}")
    unpack_mat(g, PA, 20)
    e(f"s_mul_i32 s{S_T}, s{S_SB}, 104")
    e("s_waitcnt lgkmcnt(0)")
    srd_base(g, CS[:1])
    e(f"buffer_load_dwordx4 {vr(I,4)}, v4, {sr(S_IDX)}, s{S_T} offen {PAR.imod}")
    e(f"buffer_load_dwordx3 {vr(I+4,3)}, v4, {sr(S_IDX)}, s{S_T} offen offset:16 {PAR.imod}")
    srd_base(g, CS[1:])
    e("s_barrier")
    L1R = 132
    e(f"s_mul_i32 s{S_T}, s{S_J}, 1352")
    for i in range(13):
        if i < 12:
            t = i >> 1
            if i & 1 == 0: e(f"s_add_u32 s{S_T+1}, s{S_T}, {LB + (13*(t&1) + 4*(t>>1))*1352}")
            e(f"buffer_load_dwordx4 {vr(L1R+4*i,4)}, v26, {sr(S_WC)}, s{S_T+1} offen offset:{676*(i&1)}")
        else:
            e(f"s_lshr_b32 s{S_T+1}, s{S_J}, 1"); e(f"s_mul_i32 s{S_T+1}, s{S_T+1}, {13*1352}"); e(f"s_and_b32 s{S_T+2}, s{S_J}, 1"); e(f"s_mul_i32 s{S_T+2}, s{S_T+2}, 676")
            e(f"s_add_u32 s{S_T+1}, s{S_T+1}, s{S_T+2}"); e(f"s_add_u32 s{S_T+1}, s{S_T+1}, {LB + 12*1352}")
            e(f"buffer_load_dwordx4 {vr(L1R+4*i,4)}, v26, {sr(S_WC)}, s{S_T+1} offen")
    e("s_setprio 3")
    e("s_waitcnt vmcnt(13)")
    GR, MR = 68, 96
    for t in range(7):
        e(f"v_lshl_add_u32 v{I+t}, v{I+t}, 6, v{5 if t < 5 else 6}")
        e(f"buffer_load_dwordx4 {vr(GR+4*t,4)}, v{I+t}, {sr(S_TAB)}, 0 offen {PAR.gmod}")
    g.stamp()
    e(f"s_setprio {PAR.cp}")
    def carrive(c):
        e("v_mov_b32 v2, 1"); e("s_mov_b64 exec, 1"); e(f"ds_add_u32 v25, v2 offset:{CNT[c]-M_CNT}"); e("s_mov_b64 exec, -1")
    for i in range(13):
        e(f"s_waitcnt vmcnt({7 + 12 - i})")
        unpack(g, DR, PA, L1R, i)
        if i & 1 and i >= 3: tmax(g, DR, (i >> 1) - 1, 16, i == 3)
    e(f"s_and_b32 s{S_T}, s{S_J}, 1"); e(f"s_lshl_b32 s{S_T}, s{S_T}, 4")
    tmax(g, DR, 5, 16, False)
    for r in range(4): e(f"v_alignbit_b32 v{L1R+48+r}, v{L1R+48+r}, v{L1R+48+r}, s{S_T}")
    tmax(g, DR, 6, 8, False)
    put_max(g, M_L1)
    carrive("L1M")
    for i in range(8): e(f"v_and_b32 v{PS+i}, 0x800080, v{PA+i}")
    g.stamp("s")
    lwait(g, "L1M", 4, 25, 2)
    get_max(g, M_L1)
    e(f"v_readfirstlane_b32 s{S_T}, v1")
    e(f"s_lshr_b32 s{S_T}, s{S_T}, 23"); e(f"s_min_u32 s{S_T}, s{S_T}, 249"); e(f"s_sub_u32 s{S_HDR+2}, s{S_T}, 124")
    e(f"s_sub_u32 s{S_T}, {127+124}, s{S_T}")
    for i in range(8): e(f"v_mul_u32_u24 v{PS+i}, s{S_T}, v{PS+i}")
    def l1out(i):
        d = DR + 16 * ((i >> 1) & 3) + 8 * (i & 1)
        for r in range(4):
            lo, hi = (d + 2 * r + 1, d + 2 * r) if (i & 1) else (d + 2 * r, d + 2 * r + 1)
            e(f"v_cvt_pk_f16_f32 v{L1R+4*i+r}, v{lo}, v{hi}")
        if i < 12:
            t = i >> 1; o = 16 * (8 * (t >> 1) + 4 * (t & 1)) + 512 * (i & 1)
        else:
            e(f"s_lshr_b32 s{S_T}, s{S_J}, 1"); e(f"s_lshl_b32 s{S_T}, s{S_T}, 5"); e(f"s_and_b32 s{S_T+1}, s{S_J}, 1"); e(f"s_mul_i32 s{S_T+1}, s{S_T+1}, 496")
            e(f"s_add_u32 s{S_T}, s{S_T}, s{S_T+1}"); e(f"v_add_u32 v28, s{S_T}, v28"); o = 24 * 16
        e(f"ds_write_b128 v28, {vr(L1R+4*i,4)} offset:{o}")
    for i in range(13):
        unpack(g, DR, PS, L1R, i)
        if i >= 4: l1out(i - 4)
    for i in range(9, 13): l1out(i)
    g.stamp("s")
    e(f"ds_read_b32 v3, v25 offset:{CNT['S0OK']-M_CNT}")
    e("v_lshlrev_b32 v1, 4, v0")
    for i in range(2): e(f"ds_read_b128 {vr(AR+4*i,4)}, v1 offset:{BUFA + i*S0STR}")
    e("s_waitcnt lgkmcnt(2)")
    DR = 132
    e("v_mov_b32 v2, 1")
    e(f"s_setprio {PAR.xp}")
    for t in range(7):
        e(f"s_waitcnt vmcnt({6 - t})")
        unpack(g, DR, PA, GR, t)
        e(f"ds_write_b128 v{7 if t < 5 else 18}, {vr(GR+4*t,4)} offset:{64*t}")
        if t in (3, 5): tmax(g, DR, (t >> 1) - 1, 16, t == 3, 20)
    e("s_mov_b64 exec, 1"); e(f"ds_add_u32 v25, v2 offset:{CNT['RAW']-M_CNT}"); e("s_mov_b64 exec, -1")
    g.stamp(); g.stamp("s")
    tmax(g, DR, 2, 16, False, 20); tmax(g, DR, 3, 8, False, 20)
    for sh in (8, 4, 2, 1):
        e(f"v_max_u32_dpp v20, v20, v20 row_ror:{sh} {DPPALL}")
    e("v_lshrrev_b32 v20, 23, v20"); e("v_max_u32 v20, 4, v20")
    e(f"v_sub_u32 v22, {127+130}, v20"); e("v_lshlrev_b32 v22, 23, v22")
    for t in range(7):
        d = DR + 8 * t
        for i in range(8): e(f"v_mul_f32 v{d+i}, v{d+i}, v22")
        for i in range(4): e(f"v_cvt_pk_f16_f32 v{MR+4*t+i}, v{d+2*i}, v{d+2*i+1}")
        e(f"ds_write_b128 v{7 if t < 5 else 18}, {vr(MR+4*t,4)} offset:{D1 - D0 + 64*t}")
    for k in range(4):
        for t in range(7):
            e(f"ds_read_b64_tr_b16 {vr(X(k,2*t),2)}, v16 offset:{D1 - D0 + k*XSTR+t*256}")
    for k in range(4): e(f"v_readlane_b32 s{S_EX+k}, v20, {16*k}")
    HW = lambda l: S_HDR + 2 * l
    HD = lambda l: S_HDR + 2 * l + 1
    HQ, HL = S_HDR + 8, S_HDR + 9
    e("s_setprio 1")
    e(f"v_readfirstlane_b32 s{S_T}, v3"); e(f"s_cmp_ge_u32 s{S_T}, 4"); e("s_cbranch_scc1 L_s0ok")
    lwait(g, "S0OK", 4, 25, 2)
    for i in range(2): e(f"ds_read_b128 {vr(AR+4*i,4)}, v1 offset:{BUFA + i*S0STR}")
    g.lab("L_s0ok")
    e("s_waitcnt lgkmcnt(14)")
    g.stamp(); g.stamp("s")

    ready = set()
    def quad_prod(k, rho):
        p, q = QPAIRS[rho]
        return lambda d: f"v_pk_mul_f16 v{d}, v{X(k,p)}, v{X(k,q)} op_sel_hi:[0,1]"
    def gen_prod(l):
        def f(k, rho):
            r, p = divmod(rho, 13)
            def mk(d):
                if r == 13: return f"v_mov_b32 v{d}, v{U(k,p)}" if l == 2 else f"v_mov_b32 v{d}, 0"
                assert ('u', l, k, r) in ready, (l, k, r)
                if r & 1: return f"v_pk_mul_f16 v{d}, v{U(k,r>>1)}, v{X(k,p)} op_sel:[1,0] op_sel_hi:[1,1]"
                return f"v_pk_mul_f16 v{d}, v{U(k,r>>1)}, v{X(k,p)} op_sel_hi:[0,1]"
            return mk
        return f
    def lin_prod(k, t):
        b = 2 * t + 1 if 2 * t + 1 < 13 else 2 * t
        return lambda d: f"v_pack_b32_f16 v{d}, v{X(k,2*t)}, v{X(k,b)}"
    def steps(nprod, prod, acc, base, first0, stride=1024, needs=None):
        out = []
        ns = (nprod + 3) // 4
        for s in range(ns):
            out.append(dict(lds=base + stride * s, needs=needs if s == 0 else None, jobs=[dict(acc=acc + 16 * k, zero=(first0 and s == 0),
                       prods=[prod(k, rho) for rho in range(4 * s, min(4 * s + 4, nprod))]) for k in range(4)]))
        return out
    S_CL = S_C1
    e(f"s_mov_b32 s{S_CL}, {115 << 23}"); e(f"s_mov_b32 s{S_MASK}, 145"); e(f"s_mov_b32 s{S_J}, 127")
    def cvt(acc, t):
        return [f"v_cvt_pk_f16_f32 v{U(k,t)}, v{acc+16*k+2*t}, " + (f"v{acc+16*k+2*t+1}" if t < 6 else "0") for k in range(4)]
    def scl(l, t):
        o = []
        for k in range(4):
            o.append((f"v_pk_mul_f16 v{U(k,t)}, v{U(k,t)}, v{SC+k} op_sel_hi:[1,0]", ('u', l + 1, k, 2 * t)))
            o.append((None, ('u', l + 1, k, 2 * t + 1)))
        return o
    def head(acc, l):
        o = []
        for j in range(6):
            for k in range(4):
                a = acc + 16 * k
                if j == 0: o.append(f"v_max3_f32 v{SC+k}, |v{a}|, |v{a+1}|, |v{a+2}|")
                else: o.append(f"v_max3_f32 v{SC+k}, v{SC+k}, |v{a+2*j+1}|, |v{a+2*j+2}|")
        for k in range(4): o.append(f"v_mov_b32 v{TM+k}, v{SC+k}")
        o += cvt(acc, 0)
        for k in range(4): o.append(f"v_permlane32_swap_b32 v{SC+k}, v{TM+k}")
        for k in range(4): o.append(f"v_max3_f32 v{SC+k}, v{SC+k}, v{TM+k}, s{S_CL}")
        for k in range(4): o.append(f"v_lshrrev_b32 v{TM+k}, 23, v{SC+k}")
        for k in range(4): o.append(f"v_sub_u32 v{SC+k}, s{S_MASK}, v{TM+k}")
        for k in range(4): o.append(f"v_lshlrev_b32 v{SC+k}, 10, v{SC+k}")
        return o + scl(l, 0)
    def evup(l):
        return [(None, 'x', ('k', l))] + [f"v_add3_u32 v{EV(k)}, v{EV(k)}, v{TM+k}, s{S_K+k}" for k in range(4)] + [(None, ('ev', l))]
    def emit(x):
        if callable(x): return x() or 0
        if isinstance(x, tuple):
            if len(x) == 3: assert x[2] in ready, x
            ready.add(x[1]); x = x[0]
        if not x: return 0
        e(x)
        return 2 if 'permlane' in x else 1
    def kconst(l):
        o = []
        if l == 0: o.append(f"s_sub_u32 s{S_T}, s{HW(0)}, 130")
        elif l == 1: o += [f"s_add_u32 s{S_T}, s{HW(1)}, s{HD(2)}", f"s_sub_u32 s{S_T}, s{S_T}, 130"]
        else: o += [f"s_sub_u32 s{S_T}, s{HW(l)}, s{HD(l)}", f"s_add_u32 s{S_T}, s{S_T}, s{HD(l+1)}", f"s_sub_u32 s{S_T}, s{S_T}, 130"]
        if l: o.insert(0, (None, 'x', ('ev', l - 1)))
        return o + [f"s_add_u32 s{S_K+k}, s{S_T}, s{S_EX+k}" for k in range(4)] + [(None, ('k', l))]
    state = dict(areg=0, breg=0, base=0)
    def aread(st):
        if st.get('ok'): assert st['ok'] in ready, st['ok']
        st['a'] = AR + 4 * (state['areg'] % 3); state['areg'] += 1
        r = st['lds'] - state['base']; c = 1
        if r < 0 or r > 65535:
            e(f"v_add_u32 v1, {r & 0xffffffff}, v1"); state['base'] = st['lds']; r = 0; c = 2
        e(f"ds_read_b128 {vr(st['a'],4)}, v1 offset:{r}")
        return c
    def prods(job):
        job['b'] = BR + 4 * (state['breg'] % 4); state['breg'] += 1
        return [p(job['b'] + i) for i, p in enumerate(job['prods'])][:PAR.npk]
    GATE = 'GATE'
    import re
    def nbytes(x):
        if callable(x): return 0 if x.__name__ == '<lambda>' else 8
        if isinstance(x, tuple): x = x[0]
        if not x or x == GATE: return 0
        op = x.split()[0]
        lit = any(abs(int(t, 0)) > 64 for t in re.findall(r'(?<![\w\[:])(-?(?:0x[0-9a-f]+|\d+))(?![\w\]:.])', x.split(None, 1)[1]))
        short = op.startswith('s_') or op in ('v_mov_b32', 'v_mul_f32', 'v_add_f32', 'v_add_u32', 'v_sub_u32', 'v_lshrrev_b32', 'v_lshlrev_b32', 'v_and_b32',
                                              'v_permlane32_swap_b32', 'v_readfirstlane_b32', 'v_cmp_lt_u32', 'v_cndmask_b32', 'v_max_f32', 'v_fmac_f32')
        return 4 if short and not lit else 8
    def run(seq, nxt, fill=None, side=None, rates=None):
        rate = PAR.rate
        jobs = [(si, j) for si, st in enumerate(seq) for j in st['jobs']]
        kidx = [k for st in seq for k in range(len(st['jobs']))]
        for j in range(2):
            for s in prods(jobs[j][1]): e(s)
        fq = []; sq = []; gate = -1; credit = 0
        allst = seq + nxt
        for n, (si, job) in enumerate(jobs):
            k = kidx[n]
            if k == 0:
                if fill and si in fill: fq += fill[si]
                if side and si in side: sq += side[si]
                if rates and si in rates: rate = rates[si]
                pend = sum(1 for st in allst[si+1:si+2] if 'a' in st)
                if not PAR.w2: e(f"s_waitcnt lgkmcnt({0 if seq[si].get('drain') else pend})")
                elif si % 2 == 0: e("s_waitcnt lgkmcnt(0)")
                if seq[si]['needs']: assert seq[si]['needs'] in ready, seq[si]['needs']
            c = "0" if job['zero'] else vr(job['acc'], 16)
            e(f"v_mfma_f32_32x32x16_f16 {vr(job['acc'],16)}, {vr(job.get('a', seq[si]['a']),4)}, {vr(job['b'],4)}, {c}")
            budget = 6
            if k == 0 and si + 2 < len(allst) and 'a' not in allst[si + 2]: budget -= aread(allst[si + 2])
            if k == len(seq[si]['jobs']) - 1 and not (PAR.w2 and si % 2 == 0): budget -= 1
            if n + 2 < len(jobs):
                ps = prods(jobs[n + 2][1])
                for s in ps: e(s)
                budget -= len(ps)
                credit += sum(8 - nbytes(p) for p in ps) + 8 * (PAR.npk - len(ps))
            credit = min(credit + rate / 4, 16)
            while sq and si >= gate and ((budget > 0 and credit >= nbytes(sq[0])) or nbytes(sq[0]) == 0):
                x = sq.pop(0)
                if x == GATE: gate = si + 2 - (si % 2 if PAR.w2 else 0)
                else: budget -= emit(x); credit -= nbytes(x)
            while fq and ((budget > 0 and credit >= nbytes(fq[0])) or nbytes(fq[0]) == 0):
                x = fq.pop(0); budget -= emit(x); credit -= nbytes(x)
        assert not sq, sq
        for s in fq: emit(s)
    S0 = steps(91, quad_prod, ACC, BUFA, True, stride=S0STR)
    L1 = steps(172, gen_prod(1), ACC2, BUFB, True, stride=S0STR)
    L2 = steps(176, gen_prod(2), ACC, BUFA, True, needs=('free', 0))
    L3 = steps(169, gen_prod(3), ACC2, BUFB, True, needs=('free', 1))
    Q4 = steps(91, quad_prod, ACC, QB, True, needs=('free', 2))
    LT, LA = UR, UR + 16
    LN = [dict(a=LA, needs=('lin', k - 1), jobs=[dict(acc=LT, a=LA + 4 * i, zero=(i == 0), prods=[lin_prod(k, t) for t in range(4 * i, min(4 * i + 4, 7))]) for i in range(2)]) for k in range(4)]
    L1[0]['ok'] = "RAW"; L2[0]['ok'] = "L2OK"; Q4[0]['ok'] = "QOK"; L3[0]['ok'] = "L3OK"
    def hdr(addr, sa, sb=None):
        return [f"v_mov_b32 v3, {addr}", "ds_read_b64 v[2:3], v3", GATE, f"v_readfirstlane_b32 s{sa}, v2"] + ([f"v_readfirstlane_b32 s{sb}, v3"] if sb else [])
    def arrive(c):
        def f():
            e(f"v_add_u32 v3, {(CNT[c] - state['base']) & 0xffffffff}, v1"); return 1
        return ["v_mov_b32 v2, 1", f, "ds_add_u32 v3, v2"]
    def check(c):
        def f():
            slow = g.newlab("cs"); back = g.newlab("cb"); top = g.newlab("ct")
            if c != "RAW": g.stamp("w")
            e(f"s_cmp_lt_u32 s{S_T+2}, 4"); e(f"s_cbranch_scc1 {slow}")
            g.lab(back)
            if c != "RAW": g.stamp("w")
            g.tail += [slow + ":", f"    s_mov_b32 s{S_T+1}, {SPIN*8}", top + ":", "    s_sleep 1", "    ds_read_b32 v2, v3", "    s_waitcnt lgkmcnt(0)",
                       f"    v_readfirstlane_b32 s{S_T+2}, v2", f"    s_cmp_ge_u32 s{S_T+2}, 4", f"    s_cbranch_scc1 {back}",
                       f"    s_sub_u32 s{S_T+1}, s{S_T+1}, 1", f"    s_cbranch_scc0 {top}", f"    s_branch {back}"]
            ready.add(c); return 2
        return [f"v_mov_b32 v3, {CNT[c]}", "ds_read_b32 v2, v3", GATE, f"v_readfirstlane_b32 s{S_T+2}, v2", f]
    def stp(n): return [lambda: g.stamp(n)]
    def rest(acc, l):
        o = []
        for t in range(1, 7): o += cvt(acc, t) + scl(l, t)
        return o + [(None, ('free', l))]
    HOFF = 29 * 16
    S0[0]['a'] = AR; S0[1]['a'] = AR + 4; state['areg'] = 2; S0[0]['drain'] = True
    ev0 = []
    for k in range(4): ev0 += [f"s_sub_u32 s{S_EX+k}, s{S_EX+k}, 130", f"s_lshl_b32 s{S_T}, s{S_EX+k}, 1", f"v_mov_b32 v{EV(k)}, s{S_T}"]
    run(S0, L1[:2], side={0: arrive("RB") + ev0, 2: hdr(BUFA + 23 * S0STR + 512, HW(0)) + kconst(0), 17: check("RAW"), 22: arrive("AFREE")})
    g.stamp(); g.stamp("l")
    for s in head(ACC, 0): emit(s)
    g.stamp("l")
    run(L1, L2[:2], fill={0: rest(ACC, 0) + evup(0)}, side={20: stp("l"), 37: check("L2OK")[:-1] + stp("l") + check("L2OK")[-1:] + stp("l"), 42: arrive("BFREE")}, rates={0: PAR.l1rate})
    g.stamp(); g.stamp("l")
    for s in head(ACC2, 1): emit(s)
    g.stamp("l")
    k1 = [f"s_sub_u32 s{S_T}, s{HD(1)}, s{HD(2)}"] + [f"s_sub_u32 s{S_K1+k}, s{S_T}, s{S_EX+k}" for k in range(4)] + [(None, 'k1')]
    run(L2, L3[:2], fill={0: rest(ACC2, 1), 14: evup(1)},
        side={0: hdr(BUFA + HOFF, HW(2), HD(2)) + kconst(1) + hdr(BUFA + HOFF + 8, HD(1)) + k1, 1: stp("p"), 21: stp("p"), 38: check("L3OK")}, rates={0: 32})
    g.stamp("p")
    for s in head(ACC, 2): emit(s)
    LP = [3, 8, 13, 18]
    qs = []; lpos = []
    for i, st in enumerate(Q4):
        qs.append(st)
        if i in LP: lpos.append(43 + len(qs)); qs.append(LN[LP.index(i)])
    seq = L3 + qs
    nQ = 43
    PV, PA = 2, 3
    def pload():
        e(f"buffer_load_dword v{PV}, v{PA}, {sr(S_WS)}, s{S_T+3} offen sc1"); return 1
    dots = [(None, 'x', 'k1')]
    for k in range(4): dots.append(f"v_ldexp_f32 v{ACC+16*k+15}, v{ACC+16*k+15}, v{EV(k)}")
    for k in range(4): dots.append(f"v_add_u32 v{ACC+16*k+13}, s{S_K1+k}, v{EV(k)}")
    for k in range(4): dots.append(f"v_ldexp_f32 v{ACC+16*k+14}, v{ACC+16*k+14}, v{ACC+16*k+13}")
    for k in range(4): dots.append(f"v_add_f32 v{LG+k}, v{ACC+16*k+14}, v{ACC+16*k+15}")
    r2 = rest(ACC, 2)
    l3f = r2[:-1] + dots + r2[-1:] + evup(2)
    kf = [(None, 'x', ('ev', 2)), f"s_sub_u32 s{S_T}, s{HW(3)}, s{HD(3)}", f"s_add_u32 s{HL}, s{HL}, s{S_T}", f"s_add_u32 s{HQ}, s{HQ}, s{S_T}"]
    for k in range(4):
        kf += [f"s_add_u32 s{S_K1+k}, s{HL}, s{S_EX+k}", f"s_lshl1_add_u32 s{S_K+k}, s{S_EX+k}, s{HQ}", f"s_lshl1_add_u32 s{S_KC+k}, s{S_EX+k}, s{HD(0)}"]
    kf.append((None, 'kf'))
    pre = ["v_bfe_u32 v2, v0, 4, 1", "v_lshrrev_b32 v3, 5, v0", "v_lshl_add_u32 v2, v2, 1, v3", "v_and_b32 v3, 15, v0", f"v_cmp_lt_u32 vcc, {NR-1}, v3",
           "v_lshlrev_b32 v3, 10, v3", "v_lshl_add_u32 v3, v2, 2, v3", f"v_mov_b32 v2, {OOB}", "v_cndmask_b32 v3, v3, v2, vcc",
           f"s_mul_i32 s{S_T+3}, s{S_G}, {NR*1024}", f"s_and_b32 s{S_T}, s{S_SB}, 255", f"s_lshl_b32 s{S_T}, s{S_T}, 2",
           f"s_add_u32 s{S_T+3}, s{S_T+3}, s{S_T}", f"s_add_u32 s{S_T+3}, s{S_T+3}, {WS_PART}"]
    def lread():
        for i in range(2): e(f"ds_read_b128 {vr(LA+4*i,4)}, v1 offset:{QB + (24 + i)*1024 - state['base']}")
        return 2
    BO = ACC2 + 14
    d3 = [f"v_ldexp_f32 v{ACC2+16*k+15}, v{ACC2+16*k+15}, v{EV(k)}" for k in range(4)] + [f"v_add_f32 v{LG+k}, v{LG+k}, v{ACC2+16*k+15}" for k in range(4)]
    d3 += [f"v_mov_b32 v{BO-1}, 0", f"buffer_load_ushort v{BO}, v{BO-1}, {sr(S_BO)}, 0 offen"]
    fill = {0: l3f, nQ + 1: d3}
    for k in range(4):
        o = [f"v_mul_f32 v{SC+k}, v{LT}, v{ACC2+16*k}"] + [f"v_fmac_f32 v{SC+k}, v{LT+r}, v{ACC2+16*k+r}" for r in range(1, 13)] + [(None, ('lin', k)), (None, 'x', 'kf')]
        o += [f"v_add_u32 v{TM+k}, s{S_K1+k}, v{EV(k)}", f"v_ldexp_f32 v{SC+k}, v{SC+k}, v{TM+k}", f"v_add_u32 v{TM+k}, s{S_K+k}, v{EV(k)}", f"v_add_f32 v{LG+k}, v{LG+k}, v{SC+k}"]
        fill[lpos[k] + 2] = o
    run(seq, [], fill=fill,
        side={12: hdr(BUFB + HOFF, HW(3), HD(3)) + kconst(2), 20: stp("p"),
              nQ - PAR.qchk: check("QOK") + hdr(QB + 23 * 1024, HQ, HL) + hdr(QB + 23 * 1024 + 8, HD(0)), nQ: stp("p") + [lread, GATE, (None, ('lin', -1))] + kf, nQ + 10: pre[:7], nQ + 16: pre[7:],
              nQ + PAR.pload: [pload]},
        rates={0: PAR.l3rate, nQ: PAR.qrate})
    g.stamp(); g.stamp("p")
    for r in range(13):
        for k in range(4):
            if r == 0: e(f"v_mul_f32 v{SC+k}, v{ACC+16*k}, v{ACC2+16*k}")
            else: e(f"v_fmac_f32 v{SC+k}, v{ACC+16*k+r}, v{ACC2+16*k+r}")
    for k in range(4): e(f"v_ldexp_f32 v{ACC+16*k+15}, v{ACC+16*k+15}, s{S_KC+k}")
    for k in range(4): e(f"v_ldexp_f32 v{SC+k}, v{SC+k}, v{TM+k}")
    for k in range(4): e(f"v_add_f32 v{LG+k}, v{LG+k}, v{ACC+16*k+15}")
    for k in range(4): e(f"v_add_f32 v{LG+k}, v{LG+k}, v{SC+k}")
    e(f"v_permlane32_swap_b32 v{LG}, v{LG+1}"); e(f"v_permlane32_swap_b32 v{LG+2}, v{LG+3}")
    e(f"v_add_f32 v{LG}, v{LG}, v{LG+1}"); e(f"v_add_f32 v{LG+2}, v{LG+2}, v{LG+3}")
    e(f"v_permlane16_swap_b32 v{LG}, v{LG+2}")
    e(f"v_add_f32 v{LG}, v{LG}, v{LG+2}")
    e(f"s_mov_b32 s{S_T}, {SPIN}")
    g.lab("L_pcheck")
    e("s_waitcnt vmcnt(0)")
    e(f"v_cmp_eq_u32 vcc, -1, v{PV}")
    e("s_nop 1")
    e("s_cbranch_vccz L_pok")
    e("s_sleep 4")
    pload()
    e(f"s_sub_u32 s{S_T}, s{S_T}, 1")
    e("s_cbranch_scc0 L_pcheck")
    e("s_waitcnt vmcnt(0)")
    g.lab("L_pok")
    e(f"v_add_f32 v{LG}, v{LG}, v{PV}")
    for sh in (8, 4, 2, 1):
        e(f"v_add_f32_dpp v{LG}, v{LG}, v{LG} row_ror:{sh} {DPPALL}")
    e(f"v_lshlrev_b32 v{BO}, 16, v{BO}")
    e(f"v_add_f32 v{LG}, v{LG}, v{BO}")
    e(f"v_cvt_pk_bf16_f32 v{LG}, v{LG}, v{LG}")
    e(f"v_lshrrev_b32 v{PA}, 1, v{PA}")
    e(f"v_cmp_lt_u32 vcc, 7, v{PA}")
    e(f"v_mov_b32 v2, {OOB}")
    e(f"v_cndmask_b32 v{PA}, v{PA}, v2, vcc")
    e(f"s_lshl_b32 s{S_T}, s{S_SB}, 1")
    e(f"buffer_store_short v{LG}, v{PA}, {sr(S_OUT)}, s{S_T} offen")
    g.stamp(); g.stamp("e")
    if PAR.enc is not None:
        e("s_waitcnt lgkmcnt(0)")
        if PAR.gmin:
            e(f"s_not_b32 s{S_T}, s{S_ST}"); e(f"v_mov_b32 v4, s{S_T}"); e("v_mov_b32 v5, 0"); e("s_mov_b64 exec, 1")
            e(f"buffer_atomic_umax v4, v5, {sr(S_DBG)}, 0 offen offset:192 sc1"); e("s_waitcnt vmcnt(0)")
            g.lab("L_enc0")
            e(f"s_memrealtime s[{S_T+2}:{S_T+3}]"); e("s_waitcnt lgkmcnt(0)")
            e(f"s_sub_u32 s{S_T+2}, s{S_T+2}, s{S_ST}"); e(f"s_cmp_lt_u32 s{S_T+2}, 5000"); e("s_cbranch_scc1 L_enc0")
            e(f"buffer_load_dword v4, v5, {sr(S_DBG)}, 0 offen offset:192 sc1"); e("s_waitcnt vmcnt(0)"); e("s_mov_b64 exec, -1")
            if PAR.encsel: e(f"s_mov_b32 s{S_ST+2*PAR.enc}, s{S_ST}")
            e(f"v_readfirstlane_b32 s{S_ST}, v4"); e(f"s_not_b32 s{S_ST}, s{S_ST}")
        e(f"s_sub_u32 s{S_T}, s{S_ST+2*PAR.enc}, s{S_ST}"); e(f"s_lshl_b32 s{S_T}, s{S_T}, 1");
        if PAR.encsel:
            e(f"s_lshl_b32 s{S_T}, s{S_T}, 2"); e(f"s_and_b32 s{S_T+1}, s2, {PAR.encsel[0]}"); e(f"s_cmp_eq_u32 s{S_T+1}, {PAR.encsel[1]}")
        else: e(f"s_cmp_lt_u32 s{S_R}, {NR}")
        e(f"s_cselect_b32 s{S_T}, s{S_T}, 0"); e(f"s_add_u32 s{S_T}, s{S_T}, 6000")
        g.lab("L_enc")
        e(f"s_memrealtime s[{S_T+2}:{S_T+3}]"); e("s_waitcnt lgkmcnt(0)")
        e(f"s_sub_u32 s{S_T+2}, s{S_T+2}, s{S_ST}"); e(f"s_cmp_lt_u32 s{S_T+2}, s{S_T}"); e("s_cbranch_scc1 L_enc")
    g.flush_stamps(4, 5)
    e("s_endpgm")

HACC, HX, HW_ = 4, 68, 208
V_TR0, V_TR1, V_DMA, V_WSRC, V_H16, V_L0, V_HROW, V_CNT = 248, 249, 250, 251, 252, 253, 254, 255
ID, QA, QSH, QS, W0R, PK = 4, 12, 19, 20, 180, 236
L1R, BT = 180, 60
S_WP, S_L, S_FR, S_E0, S_E1, S_E2, S_PO, S_CX = 48, 49, 50, 51, 52, 53, 54, 55
S_LC = 56
S_E3, S_XB = 60, 61
def dma_img(g, name, nfr, lds, first=0, part=None):
    e = g.e; per = nfr // 4
    va = V_DMA
    if name == "Q4":
        va = 1
        e("v_and_b32 v1, 31, v0"); e("v_subrev_u32 v1, 29, v1"); e("v_cmp_gt_u32 vcc, 2, v1"); e(f"v_mov_b32 v1, {OOB}"); e(f"v_cndmask_b32 v1, v{V_DMA}, v1, vcc")
    e(f"s_mul_i32 s{S_T}, s{S_J}, {per*1024}")
    i0, i1 = part or (0, per)
    for i in range(i0, min(i1, per)):
        if (i - i0) % 4 == 0:
            e(f"s_add_u32 s{S_T+1}, s{S_T}, {IMG[name] + (first + i)*1024}")
            e(f"s_add_u32 m0, s{S_T}, {lds + i*1024}")
        g.vm(f"buffer_load_dwordx4 v{va}, {sr(S_WS)}, s{S_T+1} offen offset:{((i - i0)%4)*1024} {PAR.ld} lds", name)
def poll(g, checks, pre=None):
    e = g.e
    done = g.newlab("pd"); top = g.newlab("pt"); slp = g.newlab("ps"); tst = g.newlab("pc")
    regs = pre or [2 + i for i in range(len(checks))]
    e(f"s_mov_b32 s{S_T}, {SPIN}")
    if pre: e(f"s_branch {tst}")
    g.lab(top)
    for r, (srd, so, o, n) in zip(regs, checks):
        e(f"buffer_load_dword v{r}, v{V_L0}, {sr(srd)}, {so} offen offset:{o} sc1")
    e("s_waitcnt vmcnt(0)")
    g.lab(tst)
    for r, (srd, so, o, n) in zip(regs, checks):
        e(f"v_readfirstlane_b32 s{S_T+1}, v{r}")
        e(f"s_cmp_lt_u32 s{S_T+1}, {n}")
        e(f"s_cbranch_scc1 {slp}")
    g.lab(done)
    g.tail += [slp + ":", f"    s_sleep {PAR.slp}", f"    s_sub_u32 s{S_T}, s{S_T}, 1", f"    s_cbranch_scc0 {top}", f"    s_branch {done}"]
def poll1(g, checks, flag, pre=None):
    lb = g.newlab("p1")
    g.e(f"s_cmp_lg_u32 s{S_J}, 0"); g.e(f"s_cbranch_scc1 {lb}")
    poll(g, checks, pre)
    arrive(g, flag)
    g.lab(lb)
    lwait(g, flag, 1)
def presample(g, checks, regs, tag):
    for r, (srd, so, o, n) in zip(regs, checks):
        g.vm(f"buffer_load_dword v{r}, v{V_L0}, {sr(srd)}, {so} offen offset:{o} sc1", tag)
def arrive(g, *cs):
    e = g.e
    e("v_mov_b32 v1, 1"); e("s_mov_b64 exec, 1")
    for c in cs: e(f"ds_add_u32 v{V_CNT}, v1 offset:{CNT[c]-M_CNT}")
    e("s_mov_b64 exec, -1")
def unpack_mat(g, PA, t):
    e = g.e
    e(f"v_and_b32 v{t}, 1, v0"); e(f"v_lshlrev_b32 v{t}, 4, v{t}"); e(f"v_mov_b32 v{t+1}, 0x3f80"); e(f"v_lshlrev_b32 v{t+1}, v{t}, v{t+1}")
    e(f"v_lshrrev_b32 v{t+2}, 3, v0"); e(f"v_xor_b32 v{t+2}, v{t+2}, v0"); e(f"v_and_b32 v{t+2}, 4, v{t+2}")
    e(f"v_bfe_u32 v{t}, v0, 3, 2"); e(f"v_bfe_u32 v{t+3}, v0, 1, 1"); e(f"v_lshl_add_u32 v{t}, v{t}, 1, v{t+3}"); e(f"v_lshl_add_u32 v{t}, v{t+2}, 3, v{t}")
    for i in range(8):
        e(f"v_cmp_eq_u32 vcc, {i}, v{t}"); e(f"v_cndmask_b32 v{PA+i}, 0, v{t+1}, vcc")
def unpack(g, DR, pa, src, i):
    d = DR + 16 * ((i >> 1) & 3)
    g.e(f"v_mfma_f32_32x32x16_bf16 {vr(d,16)}, {vr(pa+4*(i&1),4)}, {vr(src+4*i,4)}, {vr(d,16) if i & 1 else '0'}")
def tmax(g, DR, tile, n, first, mv=1):
    d = DR + 16 * (tile & 3)
    for q in range(n // 2):
        if first and q == 0: g.e(f"v_max_f32 v{mv}, |v{d}|, |v{d+1}|")
        else: g.e(f"v_max3_f32 v{mv}, v{mv}, |v{d+2*q}|, |v{d+2*q+1}|")
def lwait(g, c, n=4, va=None, vd=1):
    e = g.e; top = g.newlab("lw"); done = g.newlab("ld")
    e(f"s_mov_b32 s{S_T}, {SPIN*8}")
    g.lab(top)
    e(f"ds_read_b32 v{vd}, v{va or V_CNT} offset:{CNT[c]-M_CNT}"); e("s_waitcnt lgkmcnt(0)")
    e(f"v_readfirstlane_b32 s{S_T+1}, v{vd}"); e(f"s_cmp_ge_u32 s{S_T+1}, {n}"); e(f"s_cbranch_scc1 {done}")
    e(f"s_sleep {PAR.lslp if c in ('FX', 'F2', 'F3', 'FQ', 'AFREE', 'BFREE', 'XST') else 1}"); e(f"s_sub_u32 s{S_T}, s{S_T}, 1"); e(f"s_cbranch_scc0 {top}")
    g.lab(done)
def rowmax(g, v, op="v_max_u32_dpp"):
    for sh in (8, 4, 2, 1): g.e(f"{op} v{v}, v{v}, v{v} row_ror:{sh} {DPPALL}")
def wavemax_exp(g, v, sdst):
    e = g.e
    rowmax(g, v)
    e(f"v_readlane_b32 s{sdst}, v{v}, 0"); e(f"v_readlane_b32 s{S_T}, v{v}, 16"); e(f"s_max_u32 s{sdst}, s{sdst}, s{S_T}")
    e(f"v_readlane_b32 s{S_T}, v{v}, 32"); e(f"s_max_u32 s{sdst}, s{sdst}, s{S_T}")
    e(f"v_readlane_b32 s{S_T}, v{v}, 48"); e(f"s_max_u32 s{sdst}, s{sdst}, s{S_T}")
    e(f"s_lshr_b32 s{sdst}, s{sdst}, 23"); e(f"s_sub_u32 s{sdst}, s{sdst}, 126")
def put_max(g, slot):
    e = g.e
    rowmax(g, 1)
    e("v_lshrrev_b32 v2, 4, v0"); e(f"s_lshl_b32 s{S_T}, s{S_J}, 4"); e(f"s_add_u32 s{S_T}, s{S_T}, {slot}")
    e(f"v_lshl_add_u32 v2, v2, 2, s{S_T}")
    e("ds_write_b32 v2, v1")
def get_max(g, slot):
    e = g.e
    e("v_and_b32 v2, 15, v0"); e("v_lshlrev_b32 v2, 2, v2"); e(f"v_add_u32 v2, {slot}, v2")
    e("ds_read_b32 v1, v2"); e("s_waitcnt lgkmcnt(0)")
    rowmax(g, 1)
def pkmax(g, regs):
    e = g.e
    e(f"v_pk_max_u16 v1, v{regs[0]}, v{regs[1]}"); e(f"v_pk_max_u16 v3, v{regs[2]}, v{regs[3]}")
    for i, r in enumerate(regs[4:]): e(f"v_pk_max_u16 v{1 + 2*(i&1)}, v{1 + 2*(i&1)}, v{r}")
    e("v_pk_max_u16 v1, v1, v3"); e("v_alignbit_b32 v3, v1, v1, 16"); e("v_pk_max_u16 v1, v1, v3")
def pack_round(g, acc, off, pk=True):
    e = g.e
    if PAR.pkpack and pk:
        for t in range(7):
            q = QS + t; sel = q & 1
            e(f"v_pk_mul_f32 {vr(acc+2*t,2)}, {vr(acc+2*t,2)}, {vr(q - sel,2)} op_sel:[0,{sel}] op_sel_hi:[1,{sel}]")
    else:
        for t in range(14): e(f"v_mul_f32 v{acc+t}, v{acc+t}, v{QS+(t>>1)}")
    for t in range(7): e(f"v_cvt_pk_f16_f32 v{PK+t}, v{acc+2*t}, v{acc+2*t+1}")
    for t in range(7): e(f"v_alignbit_b32 v{PK+t}, v{PK+t}, v{PK+t}, v{QSH}")
    for t in range(7): e(f"ds_write_b32 v{QA+t}, v{PK+t} offset:{off}")
def s0_max(g, t):
    a = HX + 16 * t
    for i in range(7):
        if t == 0 and i == 0: g.e(f"v_max_f32 v1, |v{a}|, |v{a+1}|")
        else: g.e(f"v_max3_f32 v1, v1, |v{a+2*i}|, |v{a+2*i+1}|")
F0 = lambda c: sum(PAR.chunks[:c])
S_ROT = 64
S_SCN, S_XC = 68, 69
S_RA = 66
def call_if(g, cond, target):
    lb = g.newlab('nc')
    for c in cond: g.e(c[0]); g.e(f'{c[1]} {lb}')
    g.e(f's_call_b64 s[{S_RA}:{S_RA+1}], {target}')
    g.lab(lb)
RET = f's_setpc_b64 s[{S_RA}:{S_RA+1}]'
def EARLY(): return [(f's_cmp_lt_u32 s{S_WP}, {PAR.gearly}', 's_cbranch_scc0')]
def LATE(): return [(f's_cmp_lt_u32 s{S_WP}, {PAR.gearly}', 's_cbranch_scc1'), (f's_cmp_ge_u32 s{S_WP}, 31', 's_cbranch_scc1')]
def rotf(g, f, sd):
    g.e(f"s_add_u32 s{sd}, s{S_ROT}, {f}"); g.e(f"s_sub_u32 s{S_ROT+1}, s{sd}, 26"); g.e(f"s_min_u32 s{sd}, s{sd}, s{S_ROT+1}")
def colvec(g, srd, dst, tag):
    g.e("v_lshrrev_b32 v1, 4, v0"); g.e("v_lshlrev_b32 v1, 3, v1")
    for a in range(4):
        g.e(f"s_xor_b32 s{S_T}, s{S_XC}, {32*a}"); g.e(f"s_add_u32 s{S_T}, s{S_T}, s{S_SB}")
        g.vm(f"buffer_load_dwordx2 {vr(dst+2*a,2)}, v1, {sr(srd)}, s{S_T} offen", tag)
def dma_w(g, f0, f1, tag):
    e = g.e
    e(f"s_lshl_b32 s{S_T}, s{S_J}, 10")
    for f in range(f0, f1):
        e(f"s_add_u32 m0, s{S_T}, {D0 + (f % 16)*4096}")
        rotf(g, f, S_T + 1); e(f"s_mul_i32 s{S_T+1}, s{S_T+1}, 53248")
        g.vm(f"buffer_load_dwordx4 v{V_WSRC}, {sr(S_W1)}, s{S_T+1} offen {PAR.wmod} lds", tag)
CHK_X = lambda: (S_WS, f"s{S_CX}", C_XR, 1)
def helper_common(g):
    e = g.e
    e("s_setprio 2")
    e(f"s_sub_u32 s{S_J}, s{S_WAVE}, 4")
    e("v_and_b32 v2, 31, v0"); e("v_lshrrev_b32 v3, 5, v0")
    e(f"v_lshlrev_b32 v{V_H16}, 4, v3")
    e("v_lshrrev_b32 v4, 3, v2"); e("v_and_b32 v6, 3, v2"); e("v_lshl_add_u32 v4, v4, 2, v6")
    e("v_bfe_u32 v6, v2, 2, 1"); e(f"v_mad_u32_u24 v{V_HROW}, v6, 13, v4")
    e("v_cmp_lt_u32 vcc, 12, v4"); e("v_mov_b32 v7, 0x100000"); e(f"v_cndmask_b32 v{V_HROW}, v{V_HROW}, v7, vcc")
    e("v_mul_u32_u24 v4, 676, v3"); e(f"s_movk_i32 s{S_T+1}, 1352"); e(f"v_mad_u32_u24 v243, v{V_HROW}, s{S_T+1}, v4")
    def qaset():
        e("v_lshrrev_b32 v27, 1, v2"); e("v_and_b32 v28, 1, v2"); e(f"v_lshlrev_b32 v{QSH}, 4, v28")
        e("v_sub_u32 v29, 25, v27"); e("v_mul_u32_u24 v29, v29, v27"); e("v_lshrrev_b32 v29, 1, v29")
        e(f"s_lshl_b32 s{S_T}, s{S_J}, 4")
        e(f"v_lshl_add_u32 v28, v28, 9, s{S_T}")
        e(f"v_lshl_add_u32 v30, v0, 2, s{S_T}"); e(f"v_add_u32 v30, {BUFA + 24*S0STR}, v30")
        e("v_mov_b32 v33, 0.5")
        for t in range(7):
            qb = 4 * (t >> 1) + (t & 1)
            e(f"v_lshl_add_u32 v31, v3, 1, {qb}")
            e("v_add_u32 v32, v29, v31")
            e(f"v_lshrrev_b32 v{QA+t}, 2, v32"); e(f"v_mul_u32_u24 v{QA+t}, {S0STR}, v{QA+t}")
            e("v_and_b32 v32, 3, v32"); e("v_lshl_add_u32 v32, v32, 2, v28"); e(f"v_add_u32 v{QA+t}, v{QA+t}, v32")
            e("v_cmp_lt_u32 vcc, v31, v27")
            if t == 6:
                e("v_cmp_lt_u32 s[72:73], 12, v31"); e("s_or_b64 vcc, vcc, s[72:73]")
            e(f"v_cndmask_b32 v{QA+t}, v{QA+t}, v30, vcc")
            e("v_cmp_eq_u32 vcc, v31, v27"); e(f"v_cndmask_b32 v{QS+t}, 1.0, v33, vcc")
        e("v_lshlrev_b32 v31, 3, v3"); e("v_sub_u32 v31, v2, v31")
        e("v_mov_b32 v32, 0x3f80"); e(f"v_lshlrev_b32 v32, v{QSH}, v32")
        e("v_lshrrev_b32 v31, 1, v31")
        for s in range(2):
            for i in range(4):
                e(f"v_cmp_eq_u32 vcc, {8*s+i}, v31"); e(f"v_cndmask_b32 v{ID+4*s+i}, 0, v32, vcc")
    if PAR.qaearly: qaset()
    HS = [S_WC, S_WS, S_WO, S_W1, S_B1, S_W2, S_DBG]
    srd_const(g, HS)
    e("s_waitcnt lgkmcnt(0)")
    srd_base(g, HS)
    e(f"s_mov_b64 s[{S_LC}:{S_LC+1}], s[{S_WC}:{S_WC+1}]"); e(f"s_mov_b32 s{S_LC+3}, 0x00020000"); e(f"s_mov_b32 s{S_LC+2}, {2*LB}")
    e(f"s_cmp_lt_u32 s{S_R}, {NR}"); e(f"s_cselect_b32 s{S_WP}, 63, s{S_G}"); e(f"s_mov_b32 s{S_SCN}, 0")
    if PAR.wpf:
        e(f"s_cmp_lg_u32 s{S_J}, 0"); e("s_cbranch_scc1 L_nowpf")
        e(f"s_mov_b32 s{S_WC+2}, {6*LB}"); e(f"s_lshr_b32 s{S_T}, s2, 3"); e(f"s_lshl_b32 s{S_T}, s{S_T}, 7")
        e("v_lshlrev_b32 v1, 12, v0")
        e(f"buffer_load_dword v247, v1, {sr(S_WC)}, s{S_T} offen")
        e(f"s_mov_b32 s{S_WC+2}, {LB}")
        g.lab("L_nowpf")
    e("s_barrier")
    g.stamp("g")
    call_if(g, EARLY(), "L_pe1")
    g.stamp("g")
    e("v_and_b32 v2, 31, v0"); e("v_lshrrev_b32 v3, 5, v0")
    e(f"v_mad_u32_u24 v1, v2, 52, v{V_H16}")
    if PAR.w0lin: e("v_lshlrev_b32 v1, 4, v0")
    e(f"s_mul_i32 s{S_T}, s{S_J}, 1352")
    for t in range(7):
        if t < 6: e(f"s_add_u32 s{S_T+1}, s{S_T}, {(13*(t&1) + 4*(t>>1))*1352}")
        else:
            e(f"s_mul_i32 s{S_T+1}, s{S_J}, {13*1352}"); e(f"s_add_u32 s{S_T+1}, s{S_T+1}, {12*1352}")
        for s in range(2):
            g.vm(f"buffer_load_dwordx4 {vr(W0R+8*t+4*s,4)}, v1, {sr(S_WC)}, s{S_T+1} offen offset:{(320 if PAR.w0lin else 32)*s}", f"w0_{t}")
    e(f"v_mov_b32 v61, {OOB}"); e(f"v_add_u32 v60, s{S_J}, v0"); e("v_cmp_eq_u32 vcc, 0, v60"); e(f"v_cndmask_b32 v{V_L0}, v61, 0, vcc")
    e(f"s_lshr_b32 s{S_SB}, s{S_R}, 1"); e(f"s_mul_i32 s{S_SB}, s{S_SB}, 224"); e(f"s_and_b32 s{S_XC}, s{S_R}, 1"); e(f"s_mul_i32 s{S_XC}, s{S_XC}, 96"); e(f"s_add_u32 s{S_SB}, s{S_SB}, s{S_XC}")
    e(f"s_mul_i32 s{S_CX}, s{S_G}, {PAR.cstr}"); e(f"s_add_u32 s{S_CX}, s{S_CX}, {WS_CNT}")
    e(f"s_add_u32 s{S_T}, s{S_R}, s{S_J}"); e(f"s_cmp_eq_u32 s{S_T}, 0"); e(f"s_cselect_b32 s{S_E3}, 0, {OOB}")
    e(f"v_add_u32 v34, s{S_E3}, v{V_L0}");
    for i in range(4): e(f"v_mov_b32 v{36+i}, 0")
    e(f"v_lshl_add_u32 v35, v0, 8, s{S_E3}"); e("v_cmp_lt_u32 vcc, 2, v0"); e("v_cndmask_b32 v35, v35, v61, vcc")
    g.vm(f"buffer_store_dwordx4 v[36:39], v35, {sr(S_WS)}, s{S_CX} offen sc1", "rst")
    if not PAR.qaearly: qaset()
    e(f"s_mul_i32 s{S_PO}, s{S_G}, {NR}"); e(f"s_add_u32 s{S_PO}, s{S_PO}, s{S_R}"); e(f"s_lshl_b32 s{S_PO}, s{S_PO}, 2"); e(f"s_add_u32 s{S_PO}, s{S_PO}, s{S_J}")
    e(f"s_lshl_b32 s{S_PO}, s{S_PO}, 8"); e(f"s_add_u32 s{S_PO}, s{S_PO}, {WS_PART}")
    e("v_and_b32 v60, 15, v0"); e(f"v_mul_u32_u24 v245, {XSTR}, v60"); e("v_and_b32 v60, 48, v0")
    e(f"s_lshl_b32 s{S_T}, s{S_J}, 6"); e(f"s_add_u32 s{S_T}, s{S_T}, {D0}"); e(f"v_add3_u32 v245, v245, v60, s{S_T}")
    e("v_lshlrev_b32 v246, 4, v0")
    e(f"s_lshl_b32 s{S_XB}, s{S_G}, 2"); e(f"s_lshr_b32 s{S_T}, s{S_R}, 2"); e(f"s_add_u32 s{S_XB}, s{S_XB}, s{S_T}"); e(f"s_mul_i32 s{S_XB}, s{S_XB}, 106496")
    e(f"s_and_b32 s{S_T}, s{S_R}, 3"); e(f"s_lshl_b32 s{S_T}, s{S_T}, 10"); e(f"s_add_u32 s{S_XB}, s{S_XB}, s{S_T}")
    e(f"s_lshl_b32 s{S_T}, s{S_J}, 12"); e(f"s_add_u32 s{S_XB}, s{S_XB}, s{S_T}"); e(f"s_add_u32 s{S_XB}, s{S_XB}, {WS_X}")
    g.stamp("g")
    call_if(g, EARLY(), "L_pe2")
    g.stamp("g")
    for t in range(7):
        g.vmwait(f"w0_{t}")
        a = HX + 16 * t; w = W0R + 8 * t
        e(f"v_mfma_f32_32x32x16_bf16 {vr(a,16)}, {vr(w,4)}, {vr(ID,4)}, 0")
        e(f"v_mfma_f32_32x32x16_bf16 {vr(a,16)}, {vr(w+4,4)}, {vr(ID+4,4)}, {vr(a,16)}")
        e(f"v_mfma_f32_32x32x16_bf16 {vr(a,16)}, {vr(ID,4)}, {vr(w,4)}, {vr(a,16)}")
        e(f"v_mfma_f32_32x32x16_bf16 {vr(a,16)}, {vr(ID+4,4)}, {vr(w+4,4)}, {vr(a,16)}")
        if t > 0: s0_max(g, t - 1)
    s0_max(g, 6)
    put_max(g, M_S0)
    e(f"v_mov_b32 v{V_CNT}, {M_CNT}")
    arrive(g, "S0M")
    g.stamp("g")
    if g.stamps and "g" in PAR.st: e("s_waitcnt vmcnt(0)"); g.stamp("g")
    if PAR.wpf3 == 2:
        e("v_lshlrev_b32 v1, 14, v0"); e(f"s_lshr_b32 s{S_T}, s2, 3"); e(f"s_lshl_b32 s{S_T}, s{S_T}, 7"); e(f"s_lshl_b32 s{S_T+1}, s{S_J}, 12"); e(f"s_add_u32 s{S_T}, s{S_T}, s{S_T+1}")
        e(f"buffer_load_dword v247, v1, {sr(S_W1)}, s{S_T} offen"); e("v_add_u32 v1, 0x100000, v1")
        e(f"buffer_load_dword v247, v1, {sr(S_W1)}, s{S_T} offen")
    call_if(g, EARLY(), "L_gsig")
    g.stamp("g")
    lwait(g, "S0M")
    g.stamp(); g.stamp("h")
    get_max(g, M_S0)
    e("v_lshlrev_b32 v3, 4, v0"); e(f"v_mov_b32 v{PK}, 0")
    e(f"ds_write_b32 v3, v{PK} offset:{BUFA + 22*S0STR + 12}")
    e("v_lshrrev_b32 v1, 23, v1")
    e("v_min_u32 v1, 249, v1")
    e("v_sub_u32 v2, 124, v1")
    e("v_subrev_u32 v1, 124, v1")
    e(f"ds_write_b32 v3, v1 offset:{BUFA + 23*S0STR + 512}")
    for t in range(7): e(f"v_ldexp_f32 v{QS+t}, v{QS+t}, v2")
    for t in range(7):
        if t == 6:
            e(f"s_cmp_eq_u32 s{S_J}, 1"); e(f"s_cselect_b32 s{S_T}, 48, 0")
            for i in range(7): e(f"v_add_u32 v{QA+i}, s{S_T}, v{QA+i}")
        if t in (0, 2, 4, 6): g.stamp("h")
        pack_round(g, HX + 16 * t, 16 * (8 * (t >> 1) + 4 * (t & 1)))
    arrive(g, "S0OK")
    g.stamp(); g.stamp("s"); g.stamp("h")
    e(f"v_cmp_lt_u32 vcc, 25, v{V_HROW}"); e("v_bfe_u32 v1, v0, 2, 1")
    e("v_cmp_eq_u32 s[72:73], 0, v1"); e("s_and_b64 vcc, vcc, s[72:73]")
    e(f"v_mov_b32 v2, {OOB}"); e(f"v_lshlrev_b32 v{V_DMA}, 4, v0"); e(f"v_cndmask_b32 v{V_DMA}, v{V_DMA}, v2, vcc")
    e(f"s_mul_i32 s{S_ROT}, s{S_R}, 7"); e(f"s_lshr_b32 s{S_ROT}, s{S_ROT}, 2")
    e("v_lshrrev_b32 v1, 3, v0"); e(f"s_lshl_b32 s{S_T}, s{S_J}, 3"); e(f"v_add_u32 v1, s{S_T}, v1")
    e("v_mul_u32_u24 v1, 1664, v1"); e("v_and_b32 v2, 1, v0"); e("v_lshl_add_u32 v1, v2, 4, v1")
    e(f"s_and_b32 s{S_T}, s{S_J}, 1"); e(f"s_lshl_b32 s{S_T}, s{S_T}, 1")
    e("v_bfe_u32 v2, v0, 4, 1"); e("v_bfe_u32 v3, v0, 1, 2"); e("v_xor_b32 v2, v2, v3"); e(f"v_xor_b32 v2, s{S_T}, v2")
    e(f"v_lshl_add_u32 v3, v2, 5, s{S_SB}")
    e(f"v_add_u32 v{V_WSRC}, v1, v3")
    e("v_lshrrev_b32 v1, 4, v0"); e("v_bfe_u32 v2, v0, 2, 2"); e("v_lshl_add_u32 v1, v1, 3, v2"); e("v_lshlrev_b32 v1, 7, v1")
    e("v_and_b32 v3, 3, v0"); e("v_lshl_add_u32 v1, v3, 3, v1"); e("v_bfe_u32 v2, v0, 3, 2"); e("v_lshl_add_u32 v1, v2, 5, v1")
    e(f"v_xor_b32 v1, s{S_XC}, v1"); e(f"v_add_u32 v{V_TR0}, {D0}, v1")
    e(f"s_cmp_lg_u32 s{S_R}, 0"); e("s_cbranch_scc1 L_nordy")
    g.vmwait("rst")
    e("v_mov_b32 v35, 1"); e(f"s_lshl_b32 s{S_E3}, s{S_G}, 2")
    e(f"buffer_store_dword v35, v34, {sr(S_DBG)}, s{S_E3} offen offset:{C_RDY} sc1")
    g.lab("L_nordy")
    if PAR.wpf3 == 1:
        e("v_lshlrev_b32 v1, 14, v0"); e(f"s_lshr_b32 s{S_T}, s2, 3"); e(f"s_lshl_b32 s{S_T}, s{S_T}, 7"); e(f"s_lshl_b32 s{S_T+1}, s{S_J}, 12"); e(f"s_add_u32 s{S_T}, s{S_T}, s{S_T+1}")
        e(f"buffer_load_dword v247, v1, {sr(S_W1)}, s{S_T} offen"); e("v_add_u32 v1, 0x100000, v1")
        e(f"buffer_load_dword v247, v1, {sr(S_W1)}, s{S_T} offen")
    call_if(g, LATE(), "L_pe1")
    call_if(g, LATE()[:1], "L_xpub")
    g.vmq += ["xst"] * 7 + ["sent", "rdyl"] + ["bias"] * 4
    g.stamp("s")
    call_if(g, LATE(), "L_pe2")
    if PAR.wearly:
        e(f"s_cmp_ge_u32 s{S_R}, {NR}"); e("s_cbranch_scc1 L_pw")
        lwait(g, "RB", 8); dma_w(g, 0, PAR.wa, "Wa")
        g.tail += ["L_pw:", "    s_waitcnt vmcnt(4)", "    s_branch L_pwr"]
    g.vmwait("rdyl")
    g.lab("L_pwr")
    arrive(g, "XST")
    e(f"s_cmp_lg_u32 s{S_J}, 0"); e("s_cbranch_scc1 L_nosig")
    lwait(g, "XST")
    e(f"s_mov_b32 s{S_T}, {SPIN}")
    g.lab("L_rdy")
    e("v_cmp_ne_u32 vcc, 0, v28"); e(f"s_and_b32 s{S_T+1}, vcc_lo, 0xffff"); e(f"s_cmp_eq_u32 s{S_T+1}, 0xffff"); e("s_cbranch_scc0 L_rdys")
    g.lab("L_rdyd")
    g.tail += ["L_rdys:", "    s_sleep 8", f"    buffer_load_dword v28, v29, {sr(S_DBG)}, 0 offen offset:{C_RDY} sc1", "    s_waitcnt vmcnt(0)",
               f"    s_sub_u32 s{S_T}, s{S_T}, 1", "    s_cbranch_scc0 L_rdy", "    s_branch L_rdyd"]
    e("v_mov_b32 v1, 1")
    e(f"buffer_atomic_add v1, v{V_L0}, {sr(S_WS)}, s{S_CX} offen sc0 sc1")
    e(f"buffer_load_dword v197, v{V_L0}, {sr(S_DBG)}, 0 offen offset:128 sc1")
    e("s_waitcnt vmcnt(0)")
    e(f"v_readfirstlane_b32 s{S_T}, v1"); e(f"s_cmp_lg_u32 s{S_T}, 15"); e("s_cbranch_scc1 L_nosig")
    e(f"buffer_store_dword v1, v{V_L0}, {sr(S_WS)}, s{S_CX} offen offset:{C_XR} sc1")
    g.lab("L_nosig")
    g.stamp(); g.stamp("s")

def helper_dnn(g):
    e = g.e
    CH = PAR.chunks; NS = PAR.nslot
    UNITS = [(a, sl) for a in range(3) for sl in range(4)] + [(3, 0), (3, 1)]
    def ac(a, sl): return HACC + 4 * UNITS.index((a, sl))
    def xb(f, sl): return HX + 16 * (f % NS) + 4 * sl
    def xload(f):
        rotf(g, f, S_T + 2); e(f"s_lshl_b32 s{S_T+2}, s{S_T+2}, 12"); e(f"s_add_u32 s{S_T+2}, s{S_T+2}, s{S_XB}")
        for sl in range(4):
            g.vm(f"buffer_load_dwordx4 {vr(xb(f,sl),4)}, v{2 + (sl >> 1)}, {sr(S_WS)}, s{S_T+2} offen offset:{1024*(sl&1)} {PAR.ld}", f"x{f}")
    VTR = [V_TR0, V_TR1, 198, 199]
    for a in range(1, 4): e(f"v_xor_b32 v{VTR[a]}, {32*a}, v{V_TR0}")
    g.vmwait("bias")
    for a in range(4):
        for i in range(2):
            e(f"v_lshlrev_b32 v{ac(a,0)+2*i}, 16, v{BT+2*a+i}")
            e(f"v_and_b32 v{ac(a,0)+2*i+1}, 0xffff0000, v{BT+2*a+i}")
    for a, sl in UNITS:
        if sl:
            for i in range(4): e(f"v_mov_b32 v{ac(a,sl)+i}, v{ac(a,0)+i}")
    e(f"s_lshl_b32 s{S_XB}, s{S_G}, 2"); e(f"s_add_u32 s{S_XB}, s{S_XB}, s{S_J}"); e(f"s_mul_i32 s{S_XB}, s{S_XB}, 106496"); e(f"s_add_u32 s{S_XB}, s{S_XB}, {WS_X}")
    if PAR.wearly < 1: lwait(g, "RB", 8); dma_w(g, 0, PAR.wa, "Wa")
    if PAR.x0: poll1(g, [(S_DBG, "0", 128, 11), CHK_X()], "FX")
    else:
        poll1(g, [(S_DBG, "0", 128, 11)], "F2", pre=[197])
        lwait(g, "AFREE"); dma_img(g, "L2", 44, BUFA)
        presample(g, [CHK_X()], [196], "fx")
        g.vmwait("fx"); arrive(g, "L2OK", "W01")
        poll1(g, [CHK_X()], "FX", pre=[196])
    e(f"s_and_b32 s{S_E0}, s{S_R}, 1"); e(f"s_lshl_b32 s{S_T}, s{S_E0}, 11"); e(f"v_lshl_add_u32 v2, v0, 4, s{S_T}"); e("v_xor_b32 v3, 0x800, v2")
    g.stamp("s")
    g.stamp()
    for f in range(PAR.xi): xload(f)
    if PAR.x0:
        lwait(g, "AFREE"); dma_img(g, "L2", 44, BUFA)
        g.vmwait("W1"); arrive(g, "W01")
    nld = [PAR.xi]
    W2R = 232
    wring = [0]
    def wread(ks):
        f, hf = divmod(ks, 2)
        base = HW_ + 8 * (wring[0] % 3); wring[0] += 1
        for a in range(2):
            for rd in range(2):
                e(f"ds_read_b64_tr_b16 {vr(base+4*a+2*rd,2)}, v{VTR[2*hf+a]} offset:{(f % 16)*4096 + rd*512}")
        return base
    CKQ = [(S_WS, f"s{S_CX}", C_Q, 9)]; CK3 = [(S_WS, f"s{S_CX}", C_L[3], 11)]
    after = {}
    def add(f, fn): after.setdefault(f, []).append(fn)
    inter = {}
    def addi(f, fn): inter.setdefault(f, []).append(fn)
    def capture(fn):
        keep = g.L; g.L = []; fn(); out = g.L; g.L = keep; return out
    assert PAR.wa >= 10
    for i in range(16 - PAR.wa): addi(i + 1, lambda i=i: dma_w(g, PAR.wa + i, PAR.wa + i + 1, "Wb"))
    for f, (x, y) in {10: (16, 18), 11: (18, 20), 12: (20, 21), 13: (21, 22), 14: (22, 23), 15: (23, 24), 16: (24, 25), 17: (25, 26)}.items():
        addi(f, lambda x=x, y=y: dma_w(g, x, y, "Wc" if x < 21 else "Wd"))
    SEG = [0, 10, 16, 21, 26]
    add(PAR.qpos - 3, lambda: presample(g, CK3, [196], "f3"))
    add(PAR.qpos, lambda: (lwait(g, "BFREE"), g.vmwait("f3"), poll1(g, CK3, "F3", pre=[196])))
    for i in range(0, 11, PAR.l3n): addi(PAR.qpos + 1 + i // PAR.l3n, lambda i=i: dma_img(g, "L3", 44, BUFB, part=(i, i + PAR.l3n)))
    add(PAR.qpos + 1 + 10 // PAR.l3n + PAR.qarr, lambda: (g.vmwait("L3"), arrive(g, "L3OK")))
    add(22, lambda: presample(g, CKQ, [197], "fq"))
    lwait(g, "W01")
    for c in range(4):
        k0 = 2 * SEG[c]; k1 = 2 * SEG[c + 1]
        bufs = {k0: wread(k0), k0 + 1: wread(k0 + 1)}
        for ks in range(k0, k1):
            f, hf = divmod(ks, 2)
            if hf == 0 and f in PAR.fst: g.stamp("f")
            if hf == 0:
                g.vmwait(f"x{f}")
                def gen_other():
                    for _ in range(2):
                        if nld[0] < min(26, f + NS): xload(nld[0]); nld[0] += 1
                    for fn in inter.get(f, []): fn()
                other = capture(gen_other)
            e(f"s_waitcnt lgkmcnt({4 if ks + 1 < k1 else 0})")
            rd = []
            if ks + 2 < k1: rd = capture(lambda: bufs.__setitem__(ks + 2, wread(ks + 2)))
            mf = [(a, sl) for a in range(2) for sl in range(4) if (2 * hf + a, sl) in UNITS[:PAR.nmf]]
            for i, (a, sl) in enumerate(mf):
                d = ac(2 * hf + a, sl)
                e(f"v_mfma_f32_16x16x32_bf16 {vr(d,4)}, {vr(bufs[ks]+4*a,4)}, {vr(xb(f,sl),4)}, {vr(d,4)}")
                n = PAR.il
                if rd and i >= 1: g.L.append(rd.pop(0)); n -= 1
                while other and n > 0: g.L.append(other.pop(0)); n -= 1
            g.L += rd
            if hf == 1:
                g.L += other
                for fn in after.get(f, []): fn()
        if c == 0:
            if PAR.wa < 16: g.vmwait("Wb")
            arrive(g, "C0"); lwait(g, "C0"); g.stamp()
        if c == 1: g.vmwait("Wc"); arrive(g, "C1"); lwait(g, "C1")
        if c == 2:
            g.vmwait("Wd"); arrive(g, "C2"); lwait(g, "C2")
            colvec(g, S_W2, W2R, "w2")
    e("s_waitcnt vmcnt(0)")
    g.stamp()
    W2F = HX
    for i in range(8):
        e(f"v_lshlrev_b32 v{W2F+2*i}, 16, v{W2R+i}")
        e(f"v_and_b32 v{W2F+2*i+1}, 0xffff0000, v{W2R+i}")
    c0 = 2 * 0.7978845608028654 * 1.4426950408889634
    e(f"s_mov_b32 s{S_C1}, {f2u(c0*0.044715):#x}")
    e(f"v_mov_b32 v2, {f2u(c0):#x}")
    T = HX + 32; SUM = HX + 48
    def gelu(blk):
        a, sl = UNITS[blk]
        rs = [ac(a, sl) + i for i in range(4)]
        for i, r in enumerate(rs): e(f"v_mul_f32 v{T+i}, v{r}, v{r}")
        for i, r in enumerate(rs): e(f"v_fma_f32 v{T+i}, v{T+i}, s{S_C1}, v2")
        for i, r in enumerate(rs): e(f"v_mul_f32 v{T+i}, v{T+i}, v{r}")
        for i, r in enumerate(rs): e(f"v_exp_f32 v{T+i}, -v{T+i}")
        for i, r in enumerate(rs): e(f"v_mul_f32 v{r}, v{r}, v{W2F + 4*a + i}")
        for i, r in enumerate(rs): e(f"v_add_f32 v{T+i}, 1.0, v{T+i}")
        for i, r in enumerate(rs): e(f"v_rcp_f32 v{T+i}, v{T+i}")
        for i, r in enumerate(rs): e(f"v_{'mul' if a == 0 and i == 0 else 'fmac'}_f32 v{SUM + sl}, v{r}, v{T+i}")
    for blk in range(len(UNITS)):
        if blk == PAR.gsplit:
            poll1(g, CKQ, "FQ", pre=[197]); dma_img(g, "Q4", 28, QB)
        if blk == PAR.gsplit2:
            e("s_waitcnt vmcnt(0)"); arrive(g, "QOK")
        if blk == PAR.ghi: e("s_setprio 0")
        gelu(blk)
    e("s_setprio 2")
    e(f"v_permlane32_swap_b32 v{SUM}, v{SUM+2}"); e(f"v_permlane32_swap_b32 v{SUM+1}, v{SUM+3}")
    e(f"v_add_f32 v{SUM}, v{SUM}, v{SUM+2}"); e(f"v_add_f32 v{SUM+1}, v{SUM+1}, v{SUM+3}")
    e(f"v_permlane16_swap_b32 v{SUM}, v{SUM+1}")
    e(f"v_add_f32 v{SUM}, v{SUM}, v{SUM+1}")
    e(f"v_min_u32 v{SUM}, -2, v{SUM}")
    e(f"s_lshl_b32 s{S_T}, s{S_E0}, 7"); e("v_lshlrev_b32 v1, 2, v0"); e(f"v_xor_b32 v1, s{S_T}, v1")
    e(f"buffer_store_dword v{SUM}, v1, {sr(S_WS)}, s{S_PO} offen sc1")
    g.stamp()
    g.flush_stamps(4, 5)
    e("s_endpgm")

def gsignal(g, c, so):
    e = g.e; done = g.newlab("sg")
    if c: e("s_waitcnt vmcnt(0)"); arrive(g, c)
    e(f"s_cmp_lg_u32 s{S_J}, 0"); e(f"s_cbranch_scc1 {done}")
    if c: lwait(g, c)
    e(f"v_mul_u32_u24 v2, {PAR.cstr}, v0"); e("v_cmp_lt_u32 vcc, 15, v0"); e(f"v_mov_b32 v3, {OOB}"); e("v_cndmask_b32 v2, v2, v3, vcc")
    e("v_mov_b32 v1, 1")
    e(f"buffer_atomic_add v1, v2, {sr(S_WS)}, {so} offen sc1")
    g.lab(done)
SCN, FR, WV, WP, W1V, AQ, RW = 68, 104, 121, 122, 108, 44, 180
QAR = lambda i: (64 + i) if i < 4 else (240 + i)
S_E4, S_LW = 62, 63
def prod_early1(g):
    e = g.e
    g.lab("L_gsig")
    e("s_waitcnt vmcnt(0)"); arrive(g, "GST")
    e(f"s_cmp_lg_u32 s{S_J}, 0"); e("s_cbranch_scc1 L_xpub")
    lwait(g, "GST")
    e("v_mov_b32 v1, 1"); e(f"buffer_atomic_add v1, v{V_L0}, {sr(S_DBG)}, 0 offen offset:128 sc1")
    g.lab("L_xpub")
    XS = 180
    lwait(g, "RAW")
    for t in range(7): e(f"ds_read_b128 {vr(XS+4*t,4)}, v245 offset:{256*t}")
    e(f"s_cmp_ge_u32 s{S_J}, 2"); e(f"s_cselect_b32 s{S_T}, {OOB}, 0"); e(f"v_add_u32 v245, s{S_T}, v246")
    for t in range(7):
        e(f"s_waitcnt lgkmcnt({6-t})")
        g.vm(f"buffer_store_dwordx4 {vr(XS+4*t,4)}, v{246 if t < 6 else 245}, {sr(S_WS)}, s{S_XB} offen sc1", "xst")
        e(f"s_add_u32 s{S_XB}, s{S_XB}, 16384")
    arrive(g, "RB")
    e(f"s_cmp_ge_u32 s{S_R}, {NR}"); e(f"s_cselect_b32 s{S_T}, {OOB}, 0")
    e(f"v_lshl_add_u32 v1, v0, 2, s{S_T}"); e("v_mov_b32 v3, -1")
    g.vm(f"buffer_store_dword v3, v1, {sr(S_WS)}, s{S_PO} offen sc1", "sent")
    e(f"s_lshl_b32 s{S_T}, s{S_J}, 8"); e("v_lshrrev_b32 v29, 4, v0"); e(f"v_lshl_add_u32 v29, v29, 8, s{S_T}"); e("v_lshl_add_u32 v29, v0, 2, v29")
    g.vm(f"buffer_load_dword v28, v29, {sr(S_DBG)}, 0 offen offset:{C_RDY} sc1", "rdyl")
    colvec(g, S_B1, BT, "bias")
    e(RET)
    g.lab("L_pe1")
    e(f"s_mul_i32 s{S_L}, s{S_WP}, 94"); e(f"s_lshr_b32 s{S_L}, s{S_L}, 10")
    e(f"s_mul_i32 s{S_T}, s{S_L}, 11"); e(f"s_sub_u32 s{S_FR}, s{S_WP}, s{S_T}"); e(f"s_lshl_b32 s{S_FR}, s{S_FR}, 2"); e(f"s_add_u32 s{S_FR}, s{S_FR}, s{S_J}")
    e(f"s_add_u32 s{S_L}, s{S_L}, 2")
    e(f"s_mul_i32 s{S_E2}, s{S_L}, {LB}")
    e(f"s_add_u32 s{S_LC+2}, s{S_E2}, {LB}")
    e("v_lshlrev_b32 v1, 4, v0")
    e(f"s_mul_i32 s{S_T}, s{S_J}, 9216"); e(f"s_add_u32 s{S_T}, s{S_T}, s{S_E2}")
    for i in range(9):
        if i % 4 == 0 and i: e(f"s_add_u32 s{S_T}, s{S_T}, 4096")
        e(f"buffer_load_dwordx4 {vr(SCN+4*i,4)}, v1, {sr(S_LC)}, s{S_T} offen offset:{(i%4)*1024}")
    e(f"s_cmp_ge_u32 s{S_WP}, 22"); e("s_cbranch_scc1 L_ret")
    e(f"s_lshl_b32 s{S_T}, s{S_FR}, 4"); e(f"s_add_u32 s{S_T}, s{S_T}, s{S_E2}")
    e(f"buffer_load_dwordx4 {vr(FR,4)}, v243, {sr(S_LC)}, s{S_T} offen")
    e(f"v_lshlrev_b32 v1, 1, v{V_HROW}"); e(f"s_mul_i32 s{S_T}, s{S_L}, 52")
    e(f"buffer_load_ushort v{WV}, v1, {sr(S_WO)}, s{S_T} offen")
    e(f"buffer_load_ushort v{WP}, v1, {sr(S_WO)}, 52 offen")
    e("v_lshrrev_b32 v3, 5, v0"); e("v_mul_u32_u24 v3, 26, v3")
    for i in range(8):
        e(f"s_lshl_b32 s{S_T}, s{S_FR}, 3"); e(f"s_sub_u32 s{S_T}, s{S_T}, {8*42 + 2 - i}")
        e(f"s_lshl_b32 s{S_T+1}, s{S_T}, 1"); e(f"s_add_u32 s{S_T+1}, s{S_T+1}, 52")
        e(f"s_cmp_lt_u32 s{S_T}, 13"); e(f"s_cselect_b32 s{S_T+1}, s{S_T+1}, {OOB}")
        e(f"v_add_u32 v2, s{S_T+1}, v3")
        e(f"buffer_load_ushort v{W1V+i}, v2, {sr(S_WO)}, 0 offen")
    g.lab("L_ret")
    e(RET)
def prod_early2(g):
    e = g.e
    g.lab("L_pe2")
    e("s_waitcnt vmcnt(13)")
    e(f"v_mov_b32 v{V_CNT}, {M_CNT}")
    for i in range(36): e(f"v_and_b32 v{SCN+i}, s{S_MASK}, v{SCN+i}")
    pkmax(g, [SCN + i for i in range(36)])
    put_max(g, M_SC)
    e(f"s_add_u32 s{S_SCN}, s{S_SCN}, 4")
    arrive(g, "SCM"); lwait(g, "SCM", f"s{S_SCN}")
    get_max(g, M_SC)
    e(f"v_readfirstlane_b32 s{S_E0}, v1")
    e(f"s_bfe_u32 s{S_E0}, s{S_E0}, 0x80007")
    e(f"s_cmp_ge_u32 s{S_WP}, 22"); e("s_cbranch_scc1 L_ret")
    g.lab("L_gjob")
    e(f"s_min_u32 s{S_T+2}, s{S_E0}, 249"); e(f"s_sub_u32 s{S_T+3}, {127+124}, s{S_T+2}"); e(f"s_lshl_b32 s{S_T+3}, s{S_T+3}, 23")
    e(f"s_cmp_lt_u32 s{S_FR}, 42"); e(f"s_cselect_b32 s{S_T+1}, -1, 0")
    for i in range(1, 4): e(f"v_and_b32 v{FR+i}, s{S_T+1}, v{FR+i}")
    e(f"s_cmp_lt_u32 s{S_FR}, 43"); e(f"s_cselect_b32 s{S_T+1}, -1, 0"); e(f"v_and_b32 v{FR}, s{S_T+1}, v{FR}")
    for i in range(4): e(f"v_alignbit_b32 v{FR+i}, v{FR+i}, v{FR+i}, v{V_H16}")
    for i in range(4):
        e(f"v_lshlrev_b32 v{SCN+2*i}, 16, v{FR+i}"); e(f"v_and_b32 v{SCN+2*i+1}, 0xffff0000, v{FR+i}")
    for i in range(8): e(f"v_mul_f32 v{SCN+i}, s{S_T+3}, v{SCN+i}")
    for i in range(4): e(f"v_cvt_pk_f16_f32 v{FR+i}, v{SCN+2*i}, v{SCN+2*i+1}")
    e(f"v_lshlrev_b32 v{WV}, 16, v{WV}")
    e(f"v_and_b32 v1, 0x7fffffff, v{WV}")
    wavemax_exp(g, 1, S_E1)
    e(f"s_sub_u32 s{S_E1}, s{S_E1}, 13"); e(f"s_sub_u32 s{S_T}, 0, s{S_E1}")
    e(f"v_ldexp_f32 v{WV}, v{WV}, s{S_T}")
    for i in range(8): e(f"v_mul_f32 v{SCN+i}, v{SCN+i}, v{WV}")
    for sh in (1, 2, 4, 8):
        for i in range(8): e(f"v_add_f32_dpp v{SCN+i}, v{SCN+i}, v{SCN+i} row_shr:{sh} {DPPALL} bound_ctrl:0")
    for i in range(8): e(f"v_add_f32_dpp v{SCN+i}, v{SCN+i}, v{SCN+i} row_bcast:15 row_mask:0xa bank_mask:0xf")
    for i in range(4): e(f"v_cvt_pk_f16_f32 v{SCN+2*i}, v{SCN+2*i}, v{SCN+2*i+1}")
    e("v_and_b32 v2, 31, v0"); e("v_cmp_eq_u32 vcc, 31, v2")
    for i in range(4): e(f"v_cndmask_b32 v{FR+i}, v{FR+i}, v{SCN+2*i}, vcc")
    e(f"v_lshlrev_b32 v1, 16, v{WP}"); e("v_and_b32 v1, 0x7fffffff, v1")
    wavemax_exp(g, 1, S_E4)
    e(f"s_sub_u32 s{S_T}, 15, s{S_E4}")
    for i in range(8): e(f"v_lshlrev_b32 v{W1V+i}, 16, v{W1V+i}")
    for i in range(8): e(f"v_ldexp_f32 v{W1V+i}, v{W1V+i}, s{S_T}")
    for i in range(4): e(f"v_cvt_pk_f16_f32 v{W1V+2*i}, v{W1V+2*i}, v{W1V+2*i+1}")
    e("v_cmp_eq_u32 vcc, 30, v2")
    for i in range(4): e(f"v_cndmask_b32 v{FR+i}, v{FR+i}, v{W1V+2*i}, vcc")
    e(f"s_cmp_lg_u32 s{S_FR}, 0"); e("s_cbranch_scc1 L_nohdr")
    e(f"s_sub_u32 s{S_T+2}, s{S_T+2}, 124"); e(f"s_add_u32 s{S_E1}, s{S_E1}, s{S_T+2}"); e(f"s_sub_u32 s{S_E4}, s{S_E4}, 15")
    e(f"v_writelane_b32 v{FR}, s{S_T+2}, 29"); e(f"v_writelane_b32 v{FR+1}, s{S_E1}, 29"); e(f"v_writelane_b32 v{FR+2}, s{S_E4}, 29")
    g.lab("L_nohdr")
    e(f"s_mul_i32 s{S_T}, s{S_L}, {44*1024}"); e(f"s_lshl_b32 s{S_T+1}, s{S_FR}, 10"); e(f"s_add_u32 s{S_T}, s{S_T}, s{S_T+1}")
    e(f"s_sub_u32 s{S_T}, s{S_T}, {88*1024 - IMG['L2']}")
    e("v_lshlrev_b32 v1, 4, v0")
    e(f"buffer_store_dwordx4 {vr(FR,4)}, v1, {sr(S_WS)}, s{S_T} offen sc1")
    e("s_nop 0")
    e(RET)
def helper_prod(g):
    e = g.e
    e(f"s_add_u32 s{S_WP}, s{S_G}, 16")
    e(f"s_cmp_ge_u32 s{S_WP}, 31"); e("s_cbranch_scc1 L_j2d")
    call_if(g, [], "L_pe1")
    e(f"s_cmp_lt_u32 s{S_WP}, 22"); e("s_cbranch_scc1 L_noql")
    e("v_and_b32 v2, 31, v0"); e("v_lshrrev_b32 v3, 5, v0")
    e("v_mul_u32_u24 v1, 676, v3"); e("v_add_lshl_u32 v1, v1, v2, 1")
    e(f"s_mul_i32 s{S_T}, s{S_FR}, 52"); e(f"s_add_u32 s{S_T}, s{S_T}, {4*LB}")
    for s in range(13):
        e(f"buffer_load_ushort v{W1V+s}, v1, {sr(S_LC)}, s{S_T} offen")
        e(f"s_add_u32 s{S_T}, s{S_T}, 2704")
    e(f"s_cmp_eq_u32 s{S_WP}, 29"); e(f"s_cselect_b32 s{S_LW}, 4, 5"); e(f"s_cmp_eq_u32 s{S_WP}, 30"); e(f"s_cselect_b32 s{S_LW}, 0, s{S_LW}")
    e(f"s_mul_i32 s{S_E2}, s{S_LW}, {LB}"); e(f"s_add_u32 s{S_LC+2}, s{S_E2}, {LB}")
    e("v_lshlrev_b32 v1, 1, v0"); e("v_cmp_lt_u32 vcc, 25, v0"); e(f"v_mov_b32 v2, {OOB}"); e("v_cndmask_b32 v1, v1, v2, vcc")
    e(f"s_mul_i32 s{S_T}, s{S_LW}, 52")
    e(f"buffer_load_ushort v{WV}, v1, {sr(S_WO)}, s{S_T} offen")
    e("v_lshlrev_b32 v1, 4, v0")
    e(f"s_mul_i32 s{S_T}, s{S_J}, 1352"); e(f"s_add_u32 s{S_T}, s{S_T}, s{S_E2}")
    for t in range(7):
        for ps in range(2):
            e(f"buffer_load_dwordx4 {vr(RW+8*t+4*ps,4)}, v1, {sr(S_LC)}, s{S_T} offen offset:{1024*ps}")
        e(f"s_add_u32 s{S_T}, s{S_T}, {4*1352}")
    g.lab("L_noql")
    lwait(g, "XST")
    e("s_waitcnt vmcnt(0)")
    call_if(g, [], "L_pe2")
    g.lab("L_j2d")
    e(f"s_sub_u32 s{S_T}, s{S_G}, 6"); e(f"s_cmp_lt_u32 s{S_T}, 5"); e("s_cbranch_scc1 L_nol3")
    e(f"s_mov_b32 s{S_T+2}, {WS_CNT + C_L[3]}")
    gsignal(g, "F3", f"s{S_T+2}")
    g.lab("L_nol3")
    e(f"s_cmp_ge_u32 s{S_WP}, 31"); e("s_cbranch_scc1 L_idle")
    e(f"s_cmp_ge_u32 s{S_WP}, 22"); e("s_cbranch_scc1 L_nog")
    e("s_branch L_idle")
    g.lab("L_nog")
    lwait(g, "RB", 8)
    AC = HX; TU = HX + 16
    for t in range(6): e(f"v_lshl_or_b32 v{QAR(t)}, v{W1V+2*t+1}, 16, v{W1V+2*t}")
    e(f"v_mov_b32 v{QAR(6)}, v{W1V+12}"); e(f"v_mov_b32 v{QAR(7)}, 0")
    g.stamp("q")
    e(f"v_lshlrev_b32 v{WV}, 16, v{WV}"); e(f"v_and_b32 v1, 0x7fffffff, v{WV}")
    wavemax_exp(g, 1, S_E1)
    e(f"s_sub_u32 s{S_T}, 0, s{S_E1}"); e(f"v_ldexp_f32 v{WV}, v{WV}, s{S_T}")
    for i in range(16): e(f"v_mov_b32 v{AC+i}, 0")
    for t in range(7):
        e(f"s_add_u32 s{S_T}, s{S_J}, {4*t}")
        e(f"v_readlane_b32 s{S_T+1}, v{WV}, s{S_T}")
        for i in range(8):
            e(f"v_lshlrev_b32 v{TU+2*i}, 16, v{RW+8*t+i}"); e(f"v_and_b32 v{TU+2*i+1}, 0xffff0000, v{RW+8*t+i}")
        for i in range(16): e(f"v_fmac_f32 v{AC+i}, s{S_T+1}, v{TU+i}")
    PSTR = 4096
    e(f"s_mul_i32 s{S_T}, s{S_J}, {PSTR}"); e(f"s_add_u32 s{S_T}, s{S_T}, {D0}")
    e(f"v_lshl_add_u32 v1, v0, 5, s{S_T}")
    for ps in range(2):
        for hf in range(2): e(f"ds_write_b128 v1, {vr(AC+8*ps+4*hf,4)} offset:{2048*ps+16*hf}")
    g.stamp("q"); arrive(g, "WC"); lwait(g, "WC"); g.stamp("q")
    e(f"s_cmp_eq_u32 s{S_FR}, 28"); e("s_cbranch_scc1 L_lin")
    e(f"s_cmp_lt_u32 s{S_FR}, 26"); e("s_cbranch_scc1 L_q")
    e(f"s_cmp_lg_u32 s{S_FR}, 32"); e("s_cbranch_scc1 L_noq")
    g.lab("L_q")
    BQ, PT, DQ = HX + 16, HX + 32, HX + 96
    e("v_and_b32 v2, 31, v0"); e("v_lshrrev_b32 v3, 5, v0")
    e("v_mad_u32_u24 v1, v3, 26, v2"); e("v_lshlrev_b32 v1, 2, v1"); e(f"v_add_u32 v1, {D0}, v1")
    def readsum(stride):
        for pj in range(4):
            for s in range(13): e(f"ds_read_b32 v{PT+13*pj+s}, v1 offset:{PSTR*pj + stride*s}")
            if pj: e("s_waitcnt lgkmcnt(13)")
        e("s_waitcnt lgkmcnt(0)")
        for s in range(13):
            e(f"v_add_f32 v{PT+s}, v{PT+s}, v{PT+13+s}"); e(f"v_add_f32 v{PT+26+s}, v{PT+26+s}, v{PT+39+s}")
        for s in range(13): e(f"v_add_f32 v{BQ+s}, v{PT+s}, v{PT+26+s}")
    def max13():
        e(f"v_max3_f32 v1, |v{BQ}|, |v{BQ+1}|, |v{BQ+2}|")
        for s in range(3, 13, 2): e(f"v_max3_f32 v1, v1, |v{BQ+s}|, |v{BQ+s+1}|")
    readsum(208)
    e("v_cmp_gt_u32 vcc, 26, v2")
    for s in range(13): e(f"v_cndmask_b32 v{BQ+s}, 0, v{BQ+s}, vcc")
    max13()
    wavemax_exp(g, 1, S_E2)
    e(f"s_sub_u32 s{S_T}, 0, s{S_E2}")
    for s in range(13): e(f"v_ldexp_f32 v{BQ+s}, v{BQ+s}, s{S_T}")
    e(f"s_max_u32 s{S_E0}, s{S_E0}, 10"); e(f"s_sub_u32 s{S_E0}, s{S_E0}, 126")
    BH, BL = PT, PT + 8
    e(f"v_mov_b32 v{BQ+13}, 0"); e(f"v_mov_b32 v{BH+7}, 0"); e(f"v_mov_b32 v{BL+7}, 0")
    for t in range(7): e(f"v_cvt_pk_bf16_f32 v{BH+t}, v{BQ+2*t}, v{BQ+2*t+1}")
    for t in range(7):
        e(f"v_lshlrev_b32 v{PT+16+2*t}, 16, v{BH+t}"); e(f"v_and_b32 v{PT+17+2*t}, 0xffff0000, v{BH+t}")
    for t in range(14): e(f"v_sub_f32 v{BQ+t}, v{BQ+t}, v{PT+16+t}")
    for t in range(7): e(f"v_cvt_pk_bf16_f32 v{BL+t}, v{BQ+2*t}, v{BQ+2*t+1}")
    e(f"s_cmp_ge_u32 s{S_FR}, 13"); e(f"s_cselect_b32 s{S_T+1}, 13, 0"); e(f"s_cselect_b32 s{S_T+2}, 4, 0")
    e(f"s_sub_u32 s{S_T+1}, s{S_FR}, s{S_T+1}"); e(f"s_and_b32 s{S_T+3}, s{S_T+1}, 3"); e(f"s_add_u32 s{S_T+2}, s{S_T+2}, s{S_T+3}")
    e(f"s_lshr_b32 s{S_T+1}, s{S_T+1}, 2"); e(f"s_lshl_b32 s{S_T+1}, s{S_T+1}, 3"); e(f"s_add_u32 s{S_SB}, s{S_T+2}, s{S_T+1}")
    e(f"s_mov_b32 s{S_L}, 0")
    e(f"s_cmp_lg_u32 s{S_FR}, 32"); e("s_cbranch_scc1 L_q2")
    e("v_sub_u32 v1, v2, v3")
    for s in range(13):
        e(f"v_cmp_eq_u32 vcc, {2*s}, v1"); e(f"v_cndmask_b32 v{AQ+s}, 0, 1.0, vcc")
    e(f"v_mov_b32 v{AQ+13}, 0")
    for t in range(7): e(f"v_cvt_pk_bf16_f32 v{QAR(t)}, v{AQ+2*t}, v{AQ+2*t+1}")
    e(f"s_mov_b32 s{S_E0}, 0"); e(f"s_mov_b32 s{S_SB}, 31"); e(f"s_mov_b32 s{S_L}, 8")
    g.lab("L_q2")
    g.stamp("q")
    e("s_nop 1")
    first = True
    for bb in (BL, BH):
        for ks in range(2):
            e(f"v_mfma_f32_32x32x16_bf16 {vr(DQ,16)}, {vr(QAR(4*ks),4)}, {vr(bb+4*ks,4)}, {'0' if first else vr(DQ,16)}"); first = False
            e(f"v_mfma_f32_32x32x16_bf16 {vr(DQ,16)}, {vr(bb+4*ks,4)}, {vr(QAR(4*ks),4)}, {vr(DQ,16)}")
    e(f"v_max_f32 v1, v{QS}, v{QS+1}")
    e(f"s_sub_u32 s{S_T}, 137, s{S_E0}"); e(f"s_lshl_b32 s{S_T}, s{S_T}, 23"); e(f"v_mov_b32 v30, s{S_T}"); e("v_mul_f32 v31, 0.5, v30")
    for t in range(7):
        e(f"v_cmp_eq_f32 vcc, v1, v{QS+t}"); e(f"v_cndmask_b32 v{QS+t}, v31, v30, vcc")
    e(f"s_cmp_eq_u32 s{S_J}, 1"); e(f"s_cselect_b32 s{S_T}, 48, 0"); e(f"s_sub_u32 s{S_T}, {D1 - BUFA}, s{S_T}")
    for t in range(7): e(f"v_add_u32 v{QA+t}, s{S_T}, v{QA+t}")
    e(f"v_mul_u32_u24 v1, {S0STR}, v2"); e("v_lshl_add_u32 v1, v3, 9, v1"); e(f"s_lshl_b32 s{S_T}, s{S_J}, 4"); e(f"s_add_u32 s{S_T}, s{S_T}, {D1}")
    e(f"v_min_u32 v1, {22*S0STR+512}, v1")
    e(f"v_add_u32 v1, s{S_T}, v1")
    e(f"v_lshl_add_u32 v28, v3, 9, s{S_T}"); e("v_mov_b32 v29, 0")
    e(f"ds_write_b32 v28, v29 offset:{22*S0STR+12}")
    pack_round(g, DQ, 0, False)
    g.stamp("q")
    e("s_waitcnt lgkmcnt(0)")
    e(f"ds_read_b128 {vr(AQ,4)}, v1")
    e("v_lshlrev_b32 v1, 10, v2"); e("v_lshl_add_u32 v1, v3, 9, v1"); e("v_cmp_lt_u32 vcc, 22, v2"); e(f"v_mov_b32 v28, {OOB}"); e("v_cndmask_b32 v1, v1, v28, vcc")
    e(f"s_lshl_b32 s{S_T}, s{S_SB}, 4"); e(f"s_add_u32 s{S_T}, s{S_T}, {IMG['Q4']}")
    e("s_waitcnt lgkmcnt(0)")
    e(f"buffer_store_dwordx4 {vr(AQ,4)}, v1, {sr(S_WS)}, s{S_T} offen sc1")
    e(f"s_add_u32 s{S_E0}, s{S_E0}, s{S_E2}"); e(f"s_add_u32 s{S_E0}, s{S_E0}, s{S_E1}"); e(f"s_sub_u32 s{S_E0}, s{S_E0}, 10")
    e(f"s_and_b32 s{S_T}, s{S_FR}, 31"); e(f"s_cmp_lg_u32 s{S_T}, 0"); e("s_cbranch_scc1 L_noq")
    g.lab("L_qh")
    e(f"v_mov_b32 v1, s{S_E0}"); e(f"s_add_u32 s{S_T}, s{S_L}, {IMG['Q4'] + 23*1024}")
    e(f"buffer_store_dword v1, v{V_L0}, {sr(S_WS)}, s{S_T} offen sc1")
    e("s_branch L_noq")
    g.lab("L_lin")
    e("v_lshrrev_b32 v3, 5, v0"); e(f"v_min_u32 v2, 25, v{V_HROW}")
    e("v_mad_u32_u24 v1, v2, 26, v3"); e("v_lshlrev_b32 v1, 2, v1"); e(f"v_add_u32 v1, {D0}, v1")
    readsum(8)
    e(f"v_cmp_gt_u32 vcc, 26, v{V_HROW}")
    for s in range(13): e(f"v_cndmask_b32 v{BQ+s}, 0, v{BQ+s}, vcc")
    max13()
    wavemax_exp(g, 1, S_E2)
    e(f"s_sub_u32 s{S_T}, 15, s{S_E2}")
    for s in range(13): e(f"v_ldexp_f32 v{BQ+s}, v{BQ+s}, s{S_T}")
    e(f"v_mov_b32 v{BQ+13}, 0"); e(f"v_mov_b32 v{AQ+7}, 0")
    for t in range(7): e(f"v_cvt_pk_f16_f32 v{AQ+t}, v{BQ+2*t}, v{BQ+2*t+1}")
    e("v_lshlrev_b32 v1, 4, v0"); e(f"s_mov_b32 s{S_T}, {IMG['Q4'] + 24*1024}")
    for s in range(2): e(f"buffer_store_dwordx4 {vr(AQ+4*s,4)}, v1, {sr(S_WS)}, s{S_T} offen offset:{1024*s} sc1")
    e(f"s_add_u32 s{S_E0}, s{S_E2}, s{S_E1}"); e(f"s_sub_u32 s{S_E0}, s{S_E0}, 15"); e(f"s_mov_b32 s{S_L}, 4")
    e("s_branch L_qh")
    g.lab("L_noq")
    g.stamp("q")
    e(f"s_mov_b32 s{S_T+2}, {WS_CNT + C_Q}")
    gsignal(g, "QST", f"s{S_T+2}")
    g.stamp("q")
    lwait(g, "QST")
    g.lab("L_idle")
    g.stamp()
    lwait(g, "AFREE")
    poll1(g, [(S_DBG, "0", 128, 11)], "F2")
    dma_img(g, "L2", 44, BUFA)
    e("s_waitcnt vmcnt(0)"); arrive(g, "L2OK")
    g.stamp()
    lwait(g, "BFREE")
    poll1(g, [(S_WS, f"s{S_CX}", C_Q, 9), (S_WS, f"s{S_CX}", C_L[3], 11), CHK_X()], "FQ")
    g.stamp()
    dma_img(g, "Q4", 28, QB)
    dma_img(g, "L3", 44, BUFB)
    e("s_waitcnt vmcnt(0)"); arrive(g, "QOK", "L3OK")
    g.stamp()
    g.flush_stamps(4, 5)
    e("s_endpgm")

def build(stamps=False):
    g = G(stamps)
    prologue(g); n0 = g.nst
    cin(g)
    g.lab("L_helper"); g.nst = n0
    helper_common(g); n1 = g.nst
    g.e(f"s_cmp_ge_u32 s{S_R}, {NR}"); g.e("s_cbranch_scc1 L_helper_n")
    helper_dnn(g)
    g.lab("L_helper_n"); g.nst = n1
    helper_prod(g)
    prod_early1(g); prod_early2(g)
    g.L += g.tail
    g.lab("L_end"); g.e("s_endpgm")
    body, nops = fix_hazards(g.L)
    ref = open("standalone__deep_cross_xdeepfm__recsys.s.ref").read().split("\n")
    hdr = [l for l in ref if l.startswith(";") and "@launch" not in l and "Override" not in l and "grid=ceil" not in l]
    txt = "\n".join(hdr) + f"\n; @launch grid=(256,1,1) block=(512,1,1) lds={LDS_TOTAL}\n"
    txt += f'.amdgcn_target "amdgcn-amd-amdhsa--gfx950"\n.text\n.globl {KN}\n.p2align 8\n.type {KN},@function\n{KN}:\n'
    txt += "\n".join(body) + "\n"
    txt += f""".section .rodata,"a"
.p2align 6
.amdhsa_kernel {KN}
  .amdhsa_next_free_vgpr 256
  .amdhsa_next_free_sgpr 102
  .amdhsa_accum_offset 256
  .amdhsa_group_segment_fixed_size 0
  .amdhsa_kernarg_size 88
  .amdhsa_user_sgpr_count 2
  .amdhsa_user_sgpr_kernarg_segment_ptr 1
  .amdhsa_system_sgpr_workgroup_id_x 1
.end_amdhsa_kernel
"""
    return txt, nops
if __name__ == "__main__":
    for a in sys.argv[2:]:
        if "=" in a:
            k, v = a.split("="); setattr(PAR, k, eval(v))
    txt, nops = build(stamps="stamps" in sys.argv)
    open(sys.argv[1], "w").write(txt)
    print("nops inserted", nops, "lines", txt.count("\n"))
```

```python
import sys, struct
from asmlib import fix_hazards
KN = "standalone__deep_cross_xdeepfm__recsys_kernel"
def f2u(f): return struct.unpack('<I', struct.pack('<f', f))[0]
OOB = 0x40000000
SPIN = 200000
LB = 35152
IMG = {}
off = 0
for name, n in (("L2", 44), ("L3", 44), ("Q4", 28)):
    IMG[name] = off; off += n * 1024
NR = 15
WS_PART = off
WS_CNT = WS_PART + 16 * NR * 1024
WS_STAMP = 0x80000
WS_X = WS_STAMP + 256 * 8 * 64
C_L = {3: 512}; C_Q = 516; C_XR = 256; C_RDY = 0
BUFA, BUFB = 0, 45056
D0, D1 = 90112, 118784
QB = D0 + 10 * 4096
MISC = QB + 28672
LDS_TOTAL = MISC + 2560
M_S0, M_L1, M_SC, M_EW1, M_CNT = MISC, MISC + 64, MISC + 128, MISC + 192, MISC + 256
CNT = {n: M_CNT + 4 * i for i, n in enumerate(["XST", "L1M", "L1OK", "AFREE", "L2OK", "BFREE", "L3OK", "QOK", "W01", "C0", "C1", "C2", "SCM", "GST", "WC", "QST", "FX", "F2", "F3", "FQ", "S0OK", "S0M", "RAW", "RB"])}
CNT["AFREE"] = M_CNT + 4 * 28; CNT["BFREE"] = M_CNT + 4 * 29; CNT["RB"] = M_CNT + 4 * 30
S0STR = 1040
XSTR = 1680
QPAIRS = [(p, q) for p in range(13) for q in range(p, 13)]
S_IDX, S_TAB, S_WS, S_W1, S_B1, S_W2, S_OUT, S_DBG, S_BO, S_WC, S_WO = 4, 8, 12, 16, 20, 24, 28, 32, 36, 40, 44
S_G, S_R, S_WAVE, S_J = 70, 71, 83, 3
S_HDR = 48
S_EX = 60
S_K = 64
S_K1 = 4
S_KC = 76
S_T = 72
S_MASK = 80
S_C1 = 81
S_SB = 82
S_ST = 84
class P: pass
PAR = P()
PAR.chunks = [7, 7, 6, 6]
PAR.gsplit = 0
PAR.gsplit2 = 6
PAR.lnpos = 28
PAR.pload = 17
PAR.la = 12
PAR.urate = 5
PAR.xst = 2
PAR.l2pos = -1
PAR.nslot = 6
PAR.st = 'ad'
PAR.ld = 'sc1'
PAR.inv = 0
PAR.cp2 = 1
PAR.sp = 1
PAR.barpos = 2
PAR.nxl = 4
PAR.noa = 0
PAR.il = 2
PAR.fst = (0, 3, 6, 10, 13, 17, 22)
PAR.xi = 3
PAR.wbn = 3
PAR.wpf3 = 0
PAR.wa = 10
PAR.l3n = 2
PAR.wbpos = 3
PAR.wmod = ''
PAR.w2 = 1
PAR.l1rate = 16
PAR.sclq = 0
PAR.x0 = 0
PAR.qpos = 13
PAR.m16 = 0
PAR.encsel = None
PAR.gmin = 0
PAR.qaearly = 0
PAR.gmod = 'nt'
PAR.imod = 'nt'
PAR.pkpack = 0
PAR.w0lin = 0
PAR.l3rate = 18
PAR.qarr = 3
PAR.gearly = 11
PAR.ngelu = 16
PAR.nmf = 14
PAR.npk = 4
PAR.lslp = 4
PAR.zpad = 1
PAR.skew = 1
PAR.cstr = 4352
PAR.l3late = 1
PAR.xp = 3
PAR.wearly = 0
PAR.wpf2 = 0
PAR.ghi = 4
PAR.qchk = 8
PAR.cp = 1
PAR.enc = None
PAR.rate = 20
PAR.qrate = 24
PAR.clk = 0
PAR.hp = 0
PAR.nost = 0
PAR.wpf = 1
PAR.rot = 2
PAR.pf = 4
PAR.qlate = 0
PAR.slp = 8
PAR.de = 2
PAR.touch = 0
PAR.dbg = None
class G:
    def __init__(self, stamps=False):
        self.L = []; self.stamps = stamps; self.nst = 0; self.nl = 0; self.vmq = []; self.tail = []
    def e(self, s): self.L.append("    " + s)
    def lab(self, s): self.L.append(s + ":")
    def vm(self, s, tag): self.e(s); self.vmq.append(tag)
    def vmwait(self, *tags):
        idx = max(i for i, t in enumerate(self.vmq) if t in tags)
        n = len(self.vmq) - 1 - idx
        self.e(f"s_waitcnt vmcnt({min(n, 63)})")
    def newlab(self, s): self.nl += 1; return f"L_{s}_{self.nl}"
    def stamp(self, name=None):
        if self.stamps and (name or "d") in PAR.st:
            assert self.nst < 8
            self.e(f"{'s_memtime' if PAR.clk else 's_memrealtime'} s[{S_ST+2*self.nst}:{S_ST+2*self.nst+1}]"); self.nst += 1
    def flush_stamps(self, vt, va):
        if not self.stamps: return
        self.e("s_waitcnt lgkmcnt(0)")
        self.e(f"s_lshl_b32 s{S_T}, s2, 3"); self.e(f"s_add_u32 s{S_T}, s{S_T}, s{S_WAVE}"); self.e(f"s_lshl_b32 s{S_T}, s{S_T}, 6")
        self.e(f"s_add_u32 s{S_T}, s{S_T}, {WS_STAMP}")
        self.e(f"v_mov_b32 v{va}, 0")
        if PAR.dbg is not None:
            lb = self.newlab("nd")
            self.e(f"s_cmp_lg_u32 s{S_T}, {WS_STAMP + PAR.dbg*64}"); self.e(f"s_cbranch_scc1 {lb}")
            for i in range(self.nst):
                self.e(f"s_sub_u32 s{S_T+1}, s{S_ST+2*i}, s{S_ST}")
                self.e(f"v_mov_b32 v{vt}, s{S_T+1}")
                self.e(f"buffer_store_dword v{vt}, v{va}, s[{S_DBG}:{S_DBG+3}], 0 offen offset:{64+4*i}")
            self.lab(lb)
        for i in range(self.nst):
            self.e(f"v_mov_b32 v{vt}, s{S_ST+2*i}")
            self.e(f"buffer_store_dword v{vt}, v{va}, s[{S_WS}:{S_WS+3}], s{S_T} offen offset:{4*i}")
        self.nst = 0
def vr(a, n): return f"v[{a}:{a+n-1}]"
def sr(a, n=4): return f"s[{a}:{a+n-1}]"
DPPALL = "row_mask:0xf bank_mask:0xf"

def prologue(g):
    e = g.e
    e("s_cmp_ge_u32 s2, 256")
    e("s_cbranch_scc1 L_end")
    g.stamp("a")
    e("s_load_dwordx16 s[48:63], s[0:1], 0")
    e("s_load_dwordx4 s[64:67], s[0:1], 64")
    e("s_load_dwordx2 s[68:69], s[0:1], 80")
    if PAR.pf:
        e(f"s_getpc_b64 s[{S_KC}:{S_KC+1}]")
        g.lab("L_pfbase")
        e(f"s_mov_b32 s{S_KC+2}, L_end - L_pfbase"); e(f"s_mov_b32 s{S_KC+3}, 0x00020000")
        e(f"s_lshr_b32 s{S_T}, s2, 3"); e(f"s_lshl_b32 s{S_T}, s{S_T}, 7")
        e("v_xor_b32 v1, 0x1c0, v0"); e("v_lshlrev_b32 v1, 12, v1")
        e(f"buffer_load_dword v255, v1, {sr(S_KC)}, s{S_T} offen")
    e("v_lshrrev_b32 v1, 6, v0")
    e("v_and_b32 v0, 63, v0")
    e(f"v_readfirstlane_b32 s{S_WAVE}, v1")
    e(f"s_and_b32 s{S_T}, s2, 7")
    e(f"s_lshr_b32 s{S_T+1}, s2, 3")
    e(f"s_lshr_b32 s{S_G}, s{S_T+1}, 4")
    e(f"s_lshl_b32 s{S_T}, s{S_T}, 1")
    e(f"s_add_u32 s{S_G}, s{S_G}, s{S_T}")
    e(f"s_and_b32 s{S_R}, s{S_T+1}, 15")
    e(f"s_mov_b32 s{S_MASK}, 0x7fff7fff")
    e("v_and_b32 v25, 31, v0"); e("v_lshlrev_b32 v25, 2, v25"); e(f"v_add_u32 v25, {M_CNT}, v25"); e("v_mov_b32 v2, 0")
    e("ds_write_b32 v25, v2")
    if PAR.barpos == 2: e("s_waitcnt lgkmcnt(0)"); e("s_barrier")
    e(f"s_cmp_ge_u32 s{S_WAVE}, 4")
    e("s_cbranch_scc1 L_helper")

SRDS = {S_IDX: (48, 4096*104), S_TAB: (50, 6400000), S_WC: (52, LB), S_WO: (54, 312), S_W1: (56, 832*1664), S_B1: (58, 1664), S_W2: (60, 1664),
        S_BO: (62, 2), S_OUT: (64, 8192), S_DBG: (66, 256), S_WS: (68, 1 << 28)}
def srd_const(g, lst):
    for srd in lst: g.e(f"s_mov_b32 s{srd+2}, {SRDS[srd][1]}"); g.e(f"s_mov_b32 s{srd+3}, 0x00020000")
def srd_base(g, lst):
    for srd in lst: g.e(f"s_mov_b64 s[{srd}:{srd+1}], s[{SRDS[srd][0]}:{SRDS[srd][0]+1}]")
ACC, ACC2, XR, UR, BR, AR, SC, LG, TM = 4, 68, 132, 188, 216, 228, 244, 248, 252
def X(k, p): return XR + 14 * k + p
def EV(k): return XR + 14 * k + 13
def U(k, t): return UR + 7 * k + t
def cin(g):
    e = g.e
    e("s_setprio 3")
    e(f"s_lshl_b32 s{S_T}, s{S_G}, 8"); e(f"s_lshl_b32 s{S_T+1}, s{S_R}, 4"); e(f"s_add_u32 s{S_T}, s{S_T}, s{S_T+1}")
    e(f"s_lshl_b32 s{S_T+1}, s{S_WAVE}, 2"); e(f"s_add_u32 s{S_SB}, s{S_T}, s{S_T+1}")
    e("v_lshrrev_b32 v1, 4, v0")
    e("v_bfe_u32 v2, v0, 2, 2")
    e("v_and_b32 v3, 3, v0")
    e("v_mul_u32_u24 v4, 104, v1")
    e("v_mad_u32_u24 v4, v2, 28, v4")
    I = 8
    CS = [S_IDX, S_WC, S_TAB, S_WS, S_BO, S_OUT] + ([S_DBG] if PAR.dbg is not None or PAR.gmin else [])
    srd_const(g, CS[:1])
    e(f"s_mul_i32 s{S_T}, s{S_SB}, 104")
    g.stamp("i")
    e("s_waitcnt lgkmcnt(0)")
    g.stamp("i")
    srd_base(g, CS[:1])
    e(f"buffer_load_dwordx4 {vr(I,4)}, v4, {sr(S_IDX)}, s{S_T} offen {PAR.imod}")
    e(f"buffer_load_dwordx3 {vr(I+4,3)}, v4, {sr(S_IDX)}, s{S_T} offen offset:16 {PAR.imod}")
    e(f"s_setprio {PAR.sp}")
    e("s_branch L_cin2")
    g.lab("L_cin2")
    srd_base(g, CS[1:])
    srd_const(g, CS[1:])
    e(f"s_mov_b32 s{S_WC+2}, {2*LB}"); e(f"s_mov_b32 s{S_J}, s{S_WAVE}")
    e("v_lshlrev_b32 v5, 4, v3")
    e("v_cmp_eq_u32 vcc, 3, v2")
    e(f"v_mov_b32 v6, {OOB}")
    e("v_cndmask_b32 v6, 0, v6, vcc")
    e("v_add_u32 v6, v6, v5")
    e("v_lshlrev_b32 v26, 4, v0"); e("v_cmp_lt_u32 vcc, 42, v0"); e(f"v_mov_b32 v27, {OOB}"); e("v_cndmask_b32 v26, v26, v27, vcc")
    e("v_lshlrev_b32 v29, 4, v0"); e(f"v_add_u32 v29, {BUFA + 28*1024}, v29")
    e(f"s_lshl_b32 s{S_T}, s{S_J}, 4"); e(f"s_add_u32 s{S_T}, s{S_T}, {BUFB}")
    e(f"v_mul_u32_u24 v28, {S0STR}, v0"); e(f"v_add_u32 v28, s{S_T}, v28"); e("v_cndmask_b32 v28, v28, v29, vcc")
    e(f"s_mul_i32 s{S_T+1}, s{S_WAVE}, {4*XSTR}"); e(f"s_add_u32 s{S_T+1}, s{S_T+1}, {D0}")
    e(f"v_mul_u32_u24 v7, {XSTR}, v1")
    e("v_mad_u32_u24 v16, v2, 7, 0")
    e("v_lshl_add_u32 v7, v16, 6, v7")
    e(f"v_add3_u32 v7, v7, v5, s{S_T+1}")
    e("v_cmp_eq_u32 vcc, 3, v2")
    e(f"v_lshl_add_u32 v18, v0, 4, 0"); e(f"v_add_u32 v18, {D0 + 16*XSTR + 256 - 320}, v18"); e("v_cndmask_b32 v18, v7, v18, vcc")
    e("v_lshrrev_b32 v16, 1, v1")
    e("v_xor_b32 v16, v16, v2")
    e("v_lshlrev_b32 v16, 6, v16")
    e("v_and_b32 v17, 1, v1")
    e("v_lshl_add_u32 v16, v17, 5, v16")
    e("v_lshl_add_u32 v16, v3, 3, v16")
    e(f"v_add_u32 v16, s{S_T+1}, v16")
    for k in range(4): e(f"v_mov_b32 v{LG+k}, 0")
    PA, PS, DR = 32, 40, 184
    if PAR.zpad:
        for i in range(4): e(f"v_mov_b32 v{PS+i}, 0")
        e(f"s_and_b32 s{S_T}, s{S_J}, 1"); e(f"s_mul_i32 s{S_T}, s{S_T}, 48"); e(f"s_lshr_b32 s{S_T+1}, s{S_J}, 1"); e(f"s_mul_i32 s{S_T+1}, s{S_T+1}, 480")
        e(f"s_add_u32 s{S_T}, s{S_T}, s{S_T+1}"); e(f"v_add_u32 v30, s{S_T}, v28")
        e(f"v_subrev_u32 v31, {BUFB - BUFA}, v30"); e("v_cmp_lt_u32 vcc, 22, v0"); e("v_cndmask_b32 v31, v31, v29, vcc")
        for i in range(3):
            e(f"ds_write_b128 v30, {vr(PS,4)} offset:{25*16 + 16*i}"); e(f"ds_write_b128 v31, {vr(PS,4)} offset:{25*16 + 16*i}")
    unpack_mat(g, PA, 20)
    e("s_setprio 1")
    L1R = 132
    if not PAR.barpos: e("s_barrier")
    g.stamp("i")
    e(f"s_mul_i32 s{S_T}, s{S_J}, 1352")
    for i in range(13):
        if i < 12:
            t = i >> 1
            if i & 1 == 0: e(f"s_add_u32 s{S_T+1}, s{S_T}, {LB + (13*(t&1) + 4*(t>>1))*1352}")
            e(f"buffer_load_dwordx4 {vr(L1R+4*i,4)}, v26, {sr(S_WC)}, s{S_T+1} offen offset:{676*(i&1)}")
        else:
            e(f"s_lshr_b32 s{S_T+1}, s{S_J}, 1"); e(f"s_mul_i32 s{S_T+1}, s{S_T+1}, {13*1352}"); e(f"s_and_b32 s{S_T+2}, s{S_J}, 1"); e(f"s_mul_i32 s{S_T+2}, s{S_T+2}, 676")
            e(f"s_add_u32 s{S_T+1}, s{S_T+1}, s{S_T+2}"); e(f"s_add_u32 s{S_T+1}, s{S_T+1}, {LB + 12*1352}")
            e(f"buffer_load_dwordx4 {vr(L1R+4*i,4)}, v26, {sr(S_WC)}, s{S_T+1} offen")
    e("s_setprio 3")
    g.stamp("i")
    e("s_waitcnt vmcnt(13)")
    g.stamp("i")
    GR, MR = 68, 96
    for t in range(7):
        e(f"v_lshl_add_u32 v{I+t}, v{I+t}, 6, v{5 if t < 5 else 6}")
        e(f"buffer_load_dwordx4 {vr(GR+4*t,4)}, v{I+t}, {sr(S_TAB)}, 0 offen {PAR.gmod}")
    g.stamp(); g.stamp("i")
    e(f"s_setprio {PAR.cp}")
    if PAR.barpos == 1: e("s_barrier")
    def carrive(c):
        e("v_mov_b32 v2, 1"); e("s_mov_b64 exec, 1"); e(f"ds_add_u32 v25, v2 offset:{CNT[c]-M_CNT}"); e("s_mov_b64 exec, -1")
    for i in range(13):
        e(f"s_waitcnt vmcnt({7 + 12 - i})")
        unpack(g, DR, PA, L1R, i)
        if i & 1 and i >= 3: tmax(g, DR, (i >> 1) - 1, 16, i == 3)
    e(f"s_and_b32 s{S_T}, s{S_J}, 1"); e(f"s_lshl_b32 s{S_T}, s{S_T}, 4")
    tmax(g, DR, 5, 16, False)
    for r in range(4): e(f"v_alignbit_b32 v{L1R+48+r}, v{L1R+48+r}, v{L1R+48+r}, s{S_T}")
    tmax(g, DR, 6, 8, False)
    put_max(g, M_L1)
    carrive("L1M")
    for i in range(8): e(f"v_and_b32 v{PS+i}, 0x800080, v{PA+i}")
    g.stamp("s")
    e(f"s_setprio {PAR.cp2}")
    lwait(g, "L1M", 4, 25, 2)
    get_max(g, M_L1)
    e(f"v_readfirstlane_b32 s{S_T}, v1")
    e(f"s_lshr_b32 s{S_T}, s{S_T}, 23"); e(f"s_min_u32 s{S_T}, s{S_T}, 249"); e(f"s_sub_u32 s{S_HDR+2}, s{S_T}, 124")
    e(f"s_sub_u32 s{S_T}, {127+124}, s{S_T}")
    for i in range(8): e(f"v_mul_u32_u24 v{PS+i}, s{S_T}, v{PS+i}")
    def l1out(i):
        d = DR + 16 * ((i >> 1) & 3) + 8 * (i & 1)
        for r in range(4):
            lo, hi = (d + 2 * r + 1, d + 2 * r) if (i & 1) else (d + 2 * r, d + 2 * r + 1)
            e(f"v_cvt_pk_f16_f32 v{L1R+4*i+r}, v{lo}, v{hi}")
        if i < 12:
            t = i >> 1; o = 16 * (8 * (t >> 1) + 4 * (t & 1)) + 512 * (i & 1)
        else:
            e(f"s_lshr_b32 s{S_T}, s{S_J}, 1"); e(f"s_lshl_b32 s{S_T}, s{S_T}, 5"); e(f"s_and_b32 s{S_T+1}, s{S_J}, 1"); e(f"s_mul_i32 s{S_T+1}, s{S_T+1}, 496")
            e(f"s_add_u32 s{S_T}, s{S_T}, s{S_T+1}"); e(f"v_add_u32 v28, s{S_T}, v28"); o = 24 * 16
        e(f"ds_write_b128 v28, {vr(L1R+4*i,4)} offset:{o}")
    for i in range(13):
        unpack(g, DR, PS, L1R, i)
        if i >= 4: l1out(i - 4)
    for i in range(9, 13): l1out(i)
    g.stamp("s")
    e(f"ds_read_b32 v3, v25 offset:{CNT['S0OK']-M_CNT}")
    e("v_lshlrev_b32 v1, 4, v0")
    for i in range(2): e(f"ds_read_b128 {vr(AR+4*i,4)}, v1 offset:{BUFA + i*S0STR}")
    e("s_waitcnt lgkmcnt(2)")
    DR = 132
    e("v_mov_b32 v2, 1")
    e(f"s_setprio {PAR.xp}")
    for t in range(7):
        e(f"s_waitcnt vmcnt({6 - t})")
        unpack(g, DR, PA, GR, t)
        e(f"ds_write_b128 v{7 if t < 5 else 18}, {vr(GR+4*t,4)} offset:{64*t}")
        if t in (3, 5): tmax(g, DR, (t >> 1) - 1, 16, t == 3, 20)
    e("s_mov_b64 exec, 1"); e(f"ds_add_u32 v25, v2 offset:{CNT['RAW']-M_CNT}"); e("s_mov_b64 exec, -1")
    g.stamp(); g.stamp("s")
    tmax(g, DR, 2, 16, False, 20); tmax(g, DR, 3, 8, False, 20)
    for sh in (8, 4, 2, 1):
        e(f"v_max_u32_dpp v20, v20, v20 row_ror:{sh} {DPPALL}")
    e("v_lshrrev_b32 v20, 23, v20"); e("v_max_u32 v20, 4, v20")
    e(f"v_sub_u32 v22, {127+130}, v20"); e("v_lshlrev_b32 v22, 23, v22")
    for t in range(7):
        d = DR + 8 * t
        for i in range(8): e(f"v_mul_f32 v{d+i}, v{d+i}, v22")
        for i in range(4): e(f"v_cvt_pk_f16_f32 v{MR+4*t+i}, v{d+2*i}, v{d+2*i+1}")
        e(f"ds_write_b128 v{7 if t < 5 else 18}, {vr(MR+4*t,4)} offset:{D1 - D0 + 64*t}")
    for k in range(4):
        for t in range(7):
            e(f"ds_read_b64_tr_b16 {vr(X(k,2*t),2)}, v16 offset:{D1 - D0 + k*XSTR+t*256}")
    for k in range(4): e(f"v_readlane_b32 s{S_EX+k}, v20, {16*k}")
    HW = lambda l: S_HDR + 2 * l
    HD = lambda l: S_HDR + 2 * l + 1
    HQ, HL = S_HDR + 8, S_HDR + 9
    e("s_setprio 1")
    e(f"v_readfirstlane_b32 s{S_T}, v3"); e(f"s_cmp_ge_u32 s{S_T}, 4"); e("s_cbranch_scc1 L_s0ok")
    lwait(g, "S0OK", 4, 25, 2)
    for i in range(2): e(f"ds_read_b128 {vr(AR+4*i,4)}, v1 offset:{BUFA + i*S0STR}")
    g.lab("L_s0ok")
    e("s_waitcnt lgkmcnt(14)")
    g.stamp(); g.stamp("s")

    ready = set()
    def quad_prod(k, rho):
        p, q = QPAIRS[rho]
        return lambda d: f"v_pk_mul_f16 v{d}, v{X(k,p)}, v{X(k,q)} op_sel_hi:[0,1]"
    def gen_prod(l):
        def f(k, rho):
            r, p = divmod(rho, 13)
            def mk(d):
                if r == 13: return f"v_mov_b32 v{d}, v{U(k,p)}" if l == 2 else f"v_mov_b32 v{d}, 0"
                assert ('u', l, k, r) in ready, (l, k, r)
                if r & 1: return f"v_pk_mul_f16 v{d}, v{U(k,r>>1)}, v{X(k,p)} op_sel:[1,0] op_sel_hi:[1,1]"
                return f"v_pk_mul_f16 v{d}, v{U(k,r>>1)}, v{X(k,p)} op_sel_hi:[0,1]"
            return mk
        return f
    def lin_prod(k, t):
        b = 2 * t + 1 if 2 * t + 1 < 13 else 2 * t
        return lambda d: f"v_pack_b32_f16 v{d}, v{X(k,2*t)}, v{X(k,b)}"
    S_CL = S_C1
    e(f"s_mov_b32 s{S_CL}, {115 << 23}"); e(f"s_mov_b32 s{S_MASK}, 145")
    def cvt1(acc, k, t): return f"v_cvt_pk_f16_f32 v{U(k,t)}, v{acc+16*k+2*t}, " + (f"v{acc+16*k+2*t+1}" if t < 6 else "0")
    def scl1(l, k, t): return [(f"v_pk_mul_f16 v{U(k,t)}, v{U(k,t)}, v{SC+k} op_sel_hi:[1,0]", ('u', l + 1, k, 2 * t)), (None, ('u', l + 1, k, 2 * t + 1))]
    def head(acc, l, k):
        a = acc + 16 * k; ef = EV(k) if l == 0 else TM + k
        return [f"v_max3_f32 v{SC+k}, |v{a}|, |v{a+1}|, |v{a+2}|", f"v_max3_f32 v{TM+k}, |v{a+3}|, |v{a+4}|, |v{a+5}|",
                f"v_max3_f32 v{SC+k}, v{SC+k}, |v{a+6}|, |v{a+7}|", f"v_max3_f32 v{TM+k}, v{TM+k}, |v{a+8}|, |v{a+9}|",
                f"v_max3_f32 v{SC+k}, v{SC+k}, |v{a+10}|, |v{a+11}|", f"v_max3_f32 v{SC+k}, v{SC+k}, v{TM+k}, |v{a+12}|",
                f"v_mov_b32 v{TM+k}, v{SC+k}", cvt1(acc, k, 0), cvt1(acc, k, 1),
                f"v_permlane32_swap_b32 v{SC+k}, v{TM+k}", f"v_max3_f32 v{SC+k}, v{SC+k}, v{TM+k}, s{S_CL}",
                f"v_lshrrev_b32 v{ef}, 23, v{SC+k}", f"v_sub_u32 v{SC+k}, s{S_MASK}, v{ef}", f"v_lshlrev_b32 v{SC+k}, 10, v{SC+k}"] + scl1(l, k, 0)
    def rest(acc, l):
        o = []
        for k in range(4): o += scl1(l, k, 1)
        for t in range(2, 7):
            o += [cvt1(acc, k, t) for k in range(4)]
            for k in range(4): o += scl1(l, k, t)
        return o
    def evup(l):
        return [(None, 'x', ('k', l))] + [f"v_add3_u32 v{EV(k)}, v{EV(k)}, v{TM+k}, s{S_K+k}" for k in range(4)] + [(None, ('ev', l))]
    state = dict(base=0, n=0)
    lq = []
    landed = set()
    def emit(x):
        if callable(x): return x() or 0
        if isinstance(x, tuple):
            if len(x) == 3: assert x[2] in ready, x
            ready.add(x[1]); x = x[0]
        if not x: return 0
        e(x)
        if x.startswith('ds_'): lq.append(['side', state['n']])
        return 2 if 'permlane' in x else 1
    GATE = 'GATE'
    import re
    def nbytes(x):
        if callable(x): return 0 if x.__name__ == '<lambda>' else 8
        if isinstance(x, tuple): x = x[0]
        if not x or x == GATE: return 0
        op = x.split()[0]
        lit = any(abs(int(t, 0)) > 64 for t in re.findall(r'(?<![\w\[:])(-?(?:0x[0-9a-f]+|\d+))(?![\w\]:.])', x.split(None, 1)[1]))
        short = op.startswith('s_') or op in ('v_mov_b32', 'v_mul_f32', 'v_add_f32', 'v_add_u32', 'v_sub_u32', 'v_lshrrev_b32', 'v_lshlrev_b32', 'v_and_b32',
                                              'v_permlane32_swap_b32', 'v_readfirstlane_b32', 'v_cmp_lt_u32', 'v_cndmask_b32', 'v_max_f32', 'v_fmac_f32')
        return 4 if short and not lit else 8
    jobs = []; frags = []; pos = {}
    def phase(name, nprod, prod, acc, base, stride=1024, ok=None, needs=None, skew0=False, skew1=False, extra=None):
        ns = (nprod + 3) // 4
        fr = [dict(lds=base + stride * s, ok=ok if s == 0 else None) for s in range(ns)]
        frags.extend(fr)
        order = [(s, k) for s in range(ns) for k in range(4)]
        if skew0: order[:8] = [(s, k) for k in range(4) for s in (0, 1)]
        if skew1: order[-8:] = [(s, k) for k in range(4) for s in (ns - 2, ns - 1)]
        for i, (s, k) in enumerate(order):
            if i % 4 == 0: pos[(name, i // 4)] = len(jobs)
            jobs.append(dict(acc=acc + 16 * k, fr=fr[s], zero=(s == 0), needs=needs if s == 0 else None, last=(name, k) if s == ns - 1 else None,
                             prods=[prod(k, rho) for rho in range(4 * s, min(4 * s + 4, nprod))], req=('u', int(name[1]), k, 0) if name[0] == 'L' and s == 0 else None))
            if extra and i % 4 == 3 and i // 4 in extra: jobs.extend(extra[i // 4])
    LT, LA = UR, UR + 16
    LP = [3, 8, 13, 18]
    LN = {LP[k]: [dict(acc=LT, a=LA + 4 * i, zero=(i == 0), needs=('lin', k - 1), last=('LN', k) if i else None, req=None,
                       prods=[lin_prod(k, t) for t in range(4 * i, min(4 * i + 4, 7))]) for i in range(2)] for k in range(4)}
    sk = PAR.skew
    phase("S0", 91, quad_prod, ACC, BUFA, stride=S0STR, skew1=sk)
    phase("L1", 172, gen_prod(1), ACC2, BUFB, stride=S0STR, ok="RAW", skew0=sk, skew1=sk)
    phase("L2", 176, gen_prod(2), ACC, BUFA, ok="L2OK", needs=('free', 0), skew0=sk, skew1=sk)
    phase("L3", 169, gen_prod(3), ACC2, BUFB, ok="L3OK", needs=('free', 1), skew0=sk)
    phase("Q4", 91, quad_prod, ACC, QB, ok="QOK", needs=('free', 2), skew1=sk, extra=LN)
    for i, f in enumerate(frags): f['id'] = i; f['a'] = AR + 4 * (i % 4)
    for n, j in enumerate(jobs):
        if 'fr' in j: j['fr'].setdefault('first', n); j['fr']['lastj'] = n
    def hdr(addr, sa, sb=None):
        return [f"v_mov_b32 v3, {addr}", "ds_read_b64 v[2:3], v3", GATE, f"v_readfirstlane_b32 s{sa}, v2"] + ([f"v_readfirstlane_b32 s{sb}, v3"] if sb else [])
    def arrive(c, after=None):
        def f():
            if after is not None: assert 'issued' in after
            e(f"v_add_u32 v3, {(CNT[c] - state['base']) & 0xffffffff}, v1"); return 1
        return ["v_mov_b32 v2, 1", f, "ds_add_u32 v3, v2"]
    def check(c):
        def f():
            slow = g.newlab("cs"); back = g.newlab("cb"); top = g.newlab("ct")
            if c != "RAW": g.stamp("w")
            e(f"s_cmp_lt_u32 s{S_T+2}, 4"); e(f"s_cbranch_scc1 {slow}")
            g.lab(back)
            if c != "RAW": g.stamp("w")
            g.tail += [slow + ":", f"    s_mov_b32 s{S_T+1}, {SPIN*8}", top + ":", "    s_sleep 1", "    ds_read_b32 v2, v3", "    s_waitcnt lgkmcnt(0)",
                       f"    v_readfirstlane_b32 s{S_T+2}, v2", f"    s_cmp_ge_u32 s{S_T+2}, 4", f"    s_cbranch_scc1 {back}",
                       f"    s_sub_u32 s{S_T+1}, s{S_T+1}, 1", f"    s_cbranch_scc0 {top}", f"    s_branch {back}"]
            ready.add(c); return 2
        return [f"v_mov_b32 v3, {CNT[c]}", "ds_read_b32 v2, v3", GATE, f"v_readfirstlane_b32 s{S_T+2}, v2", f]
    def stp(n=None): return [lambda: g.stamp(n)]
    HOFF = 29 * 16
    PV, PA = 2, 3
    def pload():
        e(f"buffer_load_dword v{PV}, v{PA}, {sr(S_WS)}, s{S_T+3} offen sc1"); return 1
    kc1 = [f"s_add_u32 s{S_T}, s{HW(0)}, s{HW(1)}", f"s_add_u32 s{S_T}, s{S_T}, s{HD(2)}", f"s_sub_u32 s{S_T}, s{S_T}, 780"]
    kc1 += [f"s_lshl2_add_u32 s{S_K+k}, s{S_EX+k}, s{S_T}" for k in range(4)] + [(None, ('k', 1))]
    k1 = [f"s_sub_u32 s{S_T}, s{HD(1)}, s{HD(2)}", f"s_add_u32 s{S_T}, s{S_T}, 130"] + [f"s_sub_u32 s{S_K1+k}, s{S_T}, s{S_EX+k}" for k in range(4)] + [(None, 'k1')]
    kc2 = [(None, 'x', ('ev', 1)), f"s_sub_u32 s{S_T}, s{HW(2)}, s{HD(2)}", f"s_add_u32 s{S_T}, s{S_T}, s{HD(3)}", f"s_sub_u32 s{S_T}, s{S_T}, 260"]
    kc2 += [f"s_add_u32 s{S_K+k}, s{S_T}, s{S_EX+k}" for k in range(4)] + [(None, ('k', 2))]
    dots = [(None, 'x', 'k1')]
    for k in range(4): dots.append(f"v_ldexp_f32 v{ACC+16*k+15}, v{ACC+16*k+15}, v{EV(k)}")
    for k in range(4): dots.append(f"v_add_u32 v{ACC+16*k+13}, s{S_K1+k}, v{EV(k)}")
    for k in range(4): dots.append(f"v_ldexp_f32 v{ACC+16*k+14}, v{ACC+16*k+14}, v{ACC+16*k+13}")
    for k in range(4): dots.append(f"v_add_f32 v{LG+k}, v{ACC+16*k+14}, v{ACC+16*k+15}")
    kf = [(None, 'x', ('ev', 2)), f"s_sub_u32 s{S_T}, s{HW(3)}, s{HD(3)}", f"s_sub_u32 s{S_T}, s{S_T}, 130", f"s_add_u32 s{HL}, s{HL}, s{S_T}", f"s_add_u32 s{HQ}, s{HQ}, s{S_T}",
          f"s_sub_u32 s{HQ}, s{HQ}, 130", f"s_sub_u32 s{HD(0)}, s{HD(0)}, 260"]
    for k in range(4):
        kf += [f"s_add_u32 s{S_K1+k}, s{HL}, s{S_EX+k}", f"s_lshl1_add_u32 s{S_K+k}, s{S_EX+k}, s{HQ}", f"s_lshl1_add_u32 s{S_KC+k}, s{S_EX+k}, s{HD(0)}"]
    kf.append((None, 'kf'))
    pre = ["v_bfe_u32 v2, v0, 4, 1", "v_lshrrev_b32 v3, 5, v0", "v_lshl_add_u32 v2, v2, 1, v3", "v_and_b32 v3, 15, v0", f"v_cmp_lt_u32 vcc, {NR-1}, v3",
           "v_lshlrev_b32 v3, 10, v3", "v_lshl_add_u32 v3, v2, 2, v3", f"v_mov_b32 v2, {OOB}", "v_cndmask_b32 v3, v3, v2, vcc",
           f"s_mul_i32 s{S_T+3}, s{S_G}, {NR*1024}", f"s_and_b32 s{S_T}, s{S_SB}, 255", f"s_lshl_b32 s{S_T}, s{S_T}, 2",
           f"s_add_u32 s{S_T+3}, s{S_T+3}, s{S_T}", f"s_add_u32 s{S_T+3}, s{S_T+3}, {WS_PART}"]
    def lread():
        for i in range(2): emit(f"ds_read_b128 {vr(LA+4*i,4)}, v1 offset:{QB + (24 + i)*1024 - state['base']}")
        return 2
    BO = ACC2 + 14
    d3 = [f"v_ldexp_f32 v{ACC2+16*k+15}, v{ACC2+16*k+15}, v{EV(k)}" for k in range(4)] + [f"v_add_f32 v{LG+k}, v{LG+k}, v{ACC2+16*k+15}" for k in range(4)]
    d3 += [f"v_mov_b32 v{BO-1}, 0", f"buffer_load_ushort v{BO}, v{BO-1}, {sr(S_BO)}, 0 offen"]
    fill = {("L1", 2): rest(ACC, 0) + [(None, ('free', 0))], ("L2", 2): rest(ACC2, 1) + [(None, ('free', 1))], ("L2", 16): evup(1),
            ("L3", 2): rest(ACC, 2) + dots + [(None, ('free', 2))] + evup(2), ("Q4", 1): d3}
    for k in range(4):
        o = [f"v_mul_f32 v{SC+k}, v{LT}, v{ACC2+16*k}"] + [f"v_fmac_f32 v{SC+k}, v{LT+r}, v{ACC2+16*k+r}" for r in range(1, 13)] + [(None, ('lin', k)), (None, 'x', 'kf')]
        o += [f"v_add_u32 v{TM+k}, s{S_K1+k}, v{EV(k)}", f"v_ldexp_f32 v{SC+k}, v{SC+k}, v{TM+k}", f"v_add_u32 v{TM+k}, s{S_K+k}, v{EV(k)}", f"v_add_f32 v{LG+k}, v{LG+k}, v{SC+k}", (None, ('lind', k))]
        fill[("Q4", LP[k] + 2)] = o
    def final(k):
        return ([(None, 'x', ('lind', k)), f"v_mul_f32 v{SC+k}, v{ACC+16*k}, v{ACC2+16*k}", f"v_ldexp_f32 v{ACC+16*k+15}, v{ACC+16*k+15}, s{S_KC+k}"]
                + [f"v_fmac_f32 v{SC+k}, v{ACC+16*k+r}, v{ACC2+16*k+r}" for r in range(1, 13)]
                + [f"v_add_f32 v{LG+k}, v{LG+k}, v{ACC+16*k+15}", f"v_ldexp_f32 v{SC+k}, v{SC+k}, v{TM+k}", f"v_add_f32 v{LG+k}, v{LG+k}, v{SC+k}"])
    urgent = {}
    for k in range(4):
        urgent[("S0", k)] = head(ACC, 0, k); urgent[("L1", k)] = head(ACC2, 1, k); urgent[("L2", k)] = head(ACC, 2, k); urgent[("Q4", k)] = final(k)
    side = {("S0", 0): arrive("RB"), ("S0", 2): hdr(BUFA + 23 * S0STR + 512, HW(0)), ("S0", 14): check("RAW"), ("S0", 21): arrive("AFREE", frags[22]),
            ("L1", 0): stp(), ("L1", 35): check("L2OK"), ("L1", 41): arrive("BFREE", frags[65]),
            ("L2", 0): stp(), ("L2", 4): hdr(BUFA + HOFF, HW(2), HD(2)) + kc1 + hdr(BUFA + HOFF + 8, HD(1)) + k1, ("L2", 36): check("L3OK"),
            ("L3", 12): hdr(BUFB + HOFF, HW(3), HD(3)) + kc2,
            ("L3", 43 - PAR.qchk): check("QOK") + hdr(QB + 23 * 1024, HQ, HL) + hdr(QB + 23 * 1024 + 8, HD(0)),
            ("Q4", 0): [lread, GATE, (None, ('lin', -1))] + kf, ("Q4", 9): pre[:7], ("Q4", 14): pre[7:], ("Q4", PAR.pload): [pload]}
    rates = {("S0", 0): PAR.rate, ("L1", 0): PAR.l1rate, ("L2", 0): 32, ("L3", 0): PAR.l3rate, ("Q4", 0): PAR.qrate}
    fill = {pos[k]: v for k, v in fill.items()}; side = {pos[k]: v for k, v in side.items()}; rates = {pos[k]: v for k, v in rates.items()}
    frags[0]['issued'] = frags[1]['issued'] = True
    nfr = 2; fq = []; sq = []; uq = []; credit = 0; gated = False
    def prods(n):
        job = jobs[n]; job['b'] = BR + 4 * (n % 3)
        while job['req'] and job['req'] not in ready: emit(uq.pop(0)[1])
        return [p(job['b'] + i) for i, p in enumerate(job['prods'])]
    for n in range(2):
        for x in prods(n): e(x)
    e("s_waitcnt lgkmcnt(0)"); landed |= {0, 1}
    for n, job in enumerate(jobs):
        state['n'] = n
        fq += fill.get(n, []); sq += side.get(n, []); rate = rates.get(n, rate if n else None)
        budget = 6
        if 'fr' in job and job['fr']['id'] not in landed:
            idx = max(i for i, (t, at) in enumerate(lq) if t == job['fr']['id'] or at <= n - 3)
            e(f"s_waitcnt lgkmcnt({len(lq) - 1 - idx})")
            landed |= {t for t, at in lq[:idx + 1]}; del lq[:idx + 1]
        if job['needs']: assert job['needs'] in ready, job['needs']
        c = "0" if job['zero'] else vr(job['acc'], 16)
        e(f"v_mfma_f32_32x32x16_f16 {vr(job['acc'],16)}, {vr(job['a'] if 'a' in job else job['fr']['a'],4)}, {vr(job['b'],4)}, {c}")
        if job['last'] in urgent: uq += [(n + 2, x) for x in urgent[job['last']]]
        if nfr < len(frags) and frags[nfr]['first'] - n <= PAR.la and (nfr < 4 or frags[nfr - 4]['lastj'] < n):
            f = frags[nfr]; nfr += 1; f['issued'] = True
            if f['ok']: assert f['ok'] in ready, f['ok']
            r = f['lds'] - state['base']
            if r < 0 or r > 65535:
                e(f"v_add_u32 v1, {r & 0xffffffff}, v1"); state['base'] = f['lds']; r = 0; budget -= 1
            e(f"ds_read_b128 {vr(f['a'],4)}, v1 offset:{r}"); lq.append([f['id'], n]); budget -= 1
        u = PAR.urate
        while uq and uq[0][0] <= n and u > 0: c = emit(uq.pop(0)[1]); u -= c; budget -= c
        if n + 2 < len(jobs):
            ps = prods(n + 2)
            for x in ps: e(x)
            budget -= len(ps)
            credit += sum(8 - nbytes(p) for p in ps) + 8 * (4 - len(ps))
        credit = min(credit + rate / 4, 16)
        while sq:
            if sq[0] == GATE:
                if any(t == 'side' for t, at in lq): break
                sq.pop(0); continue
            if not ((budget > 0 and credit >= nbytes(sq[0])) or nbytes(sq[0]) == 0): break
            x = sq.pop(0); budget -= emit(x); credit -= nbytes(x)
        while fq and ((budget > 0 and credit >= nbytes(fq[0])) or nbytes(fq[0]) == 0):
            x = fq.pop(0); budget -= emit(x); credit -= nbytes(x)
    assert not sq and not fq, (sq, fq)
    g.stamp()
    for at, x in uq: emit(x)
    e(f"v_permlane32_swap_b32 v{LG}, v{LG+1}"); e(f"v_permlane32_swap_b32 v{LG+2}, v{LG+3}")
    e(f"v_add_f32 v{LG}, v{LG}, v{LG+1}"); e(f"v_add_f32 v{LG+2}, v{LG+2}, v{LG+3}")
    e(f"v_permlane16_swap_b32 v{LG}, v{LG+2}")
    e(f"v_add_f32 v{LG}, v{LG}, v{LG+2}")
    e(f"s_mov_b32 s{S_T}, {SPIN}")
    g.lab("L_pcheck")
    e("s_waitcnt vmcnt(0)")
    e(f"v_cmp_eq_u32 vcc, -1, v{PV}")
    e("s_nop 1")
    e("s_cbranch_vccz L_pok")
    e("s_sleep 4")
    pload()
    e(f"s_sub_u32 s{S_T}, s{S_T}, 1")
    e("s_cbranch_scc0 L_pcheck")
    e("s_waitcnt vmcnt(0)")
    g.lab("L_pok")
    e(f"v_add_f32 v{LG}, v{LG}, v{PV}")
    for sh in (8, 4, 2, 1):
        e(f"v_add_f32_dpp v{LG}, v{LG}, v{LG} row_ror:{sh} {DPPALL}")
    e(f"v_lshlrev_b32 v{BO}, 16, v{BO}")
    e(f"v_add_f32 v{LG}, v{LG}, v{BO}")
    e(f"v_cvt_pk_bf16_f32 v{LG}, v{LG}, v{LG}")
    e(f"v_lshrrev_b32 v{PA}, 1, v{PA}")
    e(f"v_cmp_lt_u32 vcc, 7, v{PA}")
    e(f"v_mov_b32 v2, {OOB}")
    e(f"v_cndmask_b32 v{PA}, v{PA}, v2, vcc")
    e(f"s_lshl_b32 s{S_T}, s{S_SB}, 1")
    e(f"buffer_store_short v{LG}, v{PA}, {sr(S_OUT)}, s{S_T} offen")
    g.stamp(); g.stamp("e")
    if PAR.enc is not None:
        e("s_waitcnt lgkmcnt(0)")
        if PAR.gmin:
            e(f"s_not_b32 s{S_T}, s{S_ST}"); e(f"v_mov_b32 v4, s{S_T}"); e("v_mov_b32 v5, 0"); e("s_mov_b64 exec, 1")
            e(f"buffer_atomic_umax v4, v5, {sr(S_DBG)}, 0 offen offset:192 sc1"); e("s_waitcnt vmcnt(0)")
            g.lab("L_enc0")
            e(f"s_memrealtime s[{S_T+2}:{S_T+3}]"); e("s_waitcnt lgkmcnt(0)")
            e(f"s_sub_u32 s{S_T+2}, s{S_T+2}, s{S_ST}"); e(f"s_cmp_lt_u32 s{S_T+2}, 5000"); e("s_cbranch_scc1 L_enc0")
            e(f"buffer_load_dword v4, v5, {sr(S_DBG)}, 0 offen offset:192 sc1"); e("s_waitcnt vmcnt(0)"); e("s_mov_b64 exec, -1")
            if PAR.encsel: e(f"s_mov_b32 s{S_ST+2*PAR.enc}, s{S_ST}")
            e(f"v_readfirstlane_b32 s{S_ST}, v4"); e(f"s_not_b32 s{S_ST}, s{S_ST}")
        e(f"s_sub_u32 s{S_T}, s{S_ST+2*PAR.enc}, s{S_ST}"); e(f"s_lshl_b32 s{S_T}, s{S_T}, 1");
        if PAR.encsel:
            e(f"s_lshl_b32 s{S_T}, s{S_T}, 2"); e(f"s_and_b32 s{S_T+1}, s2, {PAR.encsel[0]}"); e(f"s_cmp_eq_u32 s{S_T+1}, {PAR.encsel[1]}")
        else: e(f"s_cmp_lt_u32 s{S_R}, {NR}")
        e(f"s_cselect_b32 s{S_T}, s{S_T}, 0"); e(f"s_add_u32 s{S_T}, s{S_T}, 6000")
        g.lab("L_enc")
        e(f"s_memrealtime s[{S_T+2}:{S_T+3}]"); e("s_waitcnt lgkmcnt(0)")
        e(f"s_sub_u32 s{S_T+2}, s{S_T+2}, s{S_ST}"); e(f"s_cmp_lt_u32 s{S_T+2}, s{S_T}"); e("s_cbranch_scc1 L_enc")
    g.flush_stamps(4, 5)
    e("s_endpgm")

HACC, HX, HW_ = 4, 68, 208
V_TR0, V_TR1, V_DMA, V_WSRC, V_H16, V_L0, V_HROW, V_CNT = 248, 249, 250, 251, 252, 253, 254, 255
ID, QA, QSH, QS, W0R, PK = 4, 12, 19, 20, 180, 236
L1R, BT = 180, 60
S_WP, S_L, S_FR, S_E0, S_E1, S_E2, S_PO, S_CX = 48, 49, 50, 51, 52, 53, 54, 55
S_LC = 56
S_E3, S_XB = 60, 61
def dma_img(g, name, nfr, lds, first=0, part=None):
    e = g.e; per = nfr // 4
    va = V_DMA
    if name == "Q4":
        va = 1
        e("v_and_b32 v1, 31, v0"); e("v_subrev_u32 v1, 29, v1"); e("v_cmp_gt_u32 vcc, 2, v1"); e(f"v_mov_b32 v1, {OOB}"); e(f"v_cndmask_b32 v1, v{V_DMA}, v1, vcc")
    e(f"s_mul_i32 s{S_T}, s{S_J}, {per*1024}")
    i0, i1 = part or (0, per)
    for i in range(i0, min(i1, per)):
        if (i - i0) % 4 == 0:
            e(f"s_add_u32 s{S_T+1}, s{S_T}, {IMG[name] + (first + i)*1024}")
            e(f"s_add_u32 m0, s{S_T}, {lds + i*1024}")
        g.vm(f"buffer_load_dwordx4 v{va}, {sr(S_WS)}, s{S_T+1} offen offset:{((i - i0)%4)*1024} {PAR.ld} lds", name)
def poll(g, checks, pre=None):
    e = g.e
    done = g.newlab("pd"); top = g.newlab("pt"); slp = g.newlab("ps"); tst = g.newlab("pc")
    regs = pre or [2 + i for i in range(len(checks))]
    e(f"s_mov_b32 s{S_T}, {SPIN}")
    if pre: e(f"s_branch {tst}")
    g.lab(top)
    for r, (srd, so, o, n) in zip(regs, checks):
        e(f"buffer_load_dword v{r}, v{V_L0}, {sr(srd)}, {so} offen offset:{o} sc1")
    e("s_waitcnt vmcnt(0)")
    g.lab(tst)
    for r, (srd, so, o, n) in zip(regs, checks):
        e(f"v_readfirstlane_b32 s{S_T+1}, v{r}")
        e(f"s_cmp_lt_u32 s{S_T+1}, {n}")
        e(f"s_cbranch_scc1 {slp}")
    g.lab(done)
    g.tail += [slp + ":", f"    s_sleep {PAR.slp}", f"    s_sub_u32 s{S_T}, s{S_T}, 1", f"    s_cbranch_scc0 {top}", f"    s_branch {done}"]
def poll1(g, checks, flag, pre=None):
    lb = g.newlab("p1")
    g.e(f"s_cmp_lg_u32 s{S_J}, 0"); g.e(f"s_cbranch_scc1 {lb}")
    poll(g, checks, pre)
    arrive(g, flag)
    g.lab(lb)
    lwait(g, flag, 1)
def presample(g, checks, regs, tag):
    for r, (srd, so, o, n) in zip(regs, checks):
        g.vm(f"buffer_load_dword v{r}, v{V_L0}, {sr(srd)}, {so} offen offset:{o} sc1", tag)
def arrive(g, *cs):
    e = g.e
    e("v_mov_b32 v1, 1"); e("s_mov_b64 exec, 1")
    for c in cs: e(f"ds_add_u32 v{V_CNT}, v1 offset:{CNT[c]-M_CNT}")
    e("s_mov_b64 exec, -1")
def unpack_mat(g, PA, t):
    e = g.e
    e(f"v_and_b32 v{t}, 1, v0"); e(f"v_lshlrev_b32 v{t}, 4, v{t}"); e(f"v_mov_b32 v{t+1}, 0x3f80"); e(f"v_lshlrev_b32 v{t+1}, v{t}, v{t+1}")
    e(f"v_lshrrev_b32 v{t+2}, 3, v0"); e(f"v_xor_b32 v{t+2}, v{t+2}, v0"); e(f"v_and_b32 v{t+2}, 4, v{t+2}")
    e(f"v_bfe_u32 v{t}, v0, 3, 2"); e(f"v_bfe_u32 v{t+3}, v0, 1, 1"); e(f"v_lshl_add_u32 v{t}, v{t}, 1, v{t+3}"); e(f"v_lshl_add_u32 v{t}, v{t+2}, 3, v{t}")
    for i in range(8):
        e(f"v_cmp_eq_u32 vcc, {i}, v{t}"); e(f"v_cndmask_b32 v{PA+i}, 0, v{t+1}, vcc")
def unpack(g, DR, pa, src, i):
    d = DR + 16 * ((i >> 1) & 3)
    g.e(f"v_mfma_f32_32x32x16_bf16 {vr(d,16)}, {vr(pa+4*(i&1),4)}, {vr(src+4*i,4)}, {vr(d,16) if i & 1 else '0'}")
def tmax(g, DR, tile, n, first, mv=1):
    d = DR + 16 * (tile & 3)
    for q in range(n // 2):
        if first and q == 0: g.e(f"v_max_f32 v{mv}, |v{d}|, |v{d+1}|")
        else: g.e(f"v_max3_f32 v{mv}, v{mv}, |v{d+2*q}|, |v{d+2*q+1}|")
def lwait(g, c, n=4, va=None, vd=1):
    e = g.e; top = g.newlab("lw"); done = g.newlab("ld")
    e(f"s_mov_b32 s{S_T}, {SPIN*8}")
    g.lab(top)
    e(f"ds_read_b32 v{vd}, v{va or V_CNT} offset:{CNT[c]-M_CNT}"); e("s_waitcnt lgkmcnt(0)")
    e(f"v_readfirstlane_b32 s{S_T+1}, v{vd}"); e(f"s_cmp_ge_u32 s{S_T+1}, {n}"); e(f"s_cbranch_scc1 {done}")
    e(f"s_sleep {PAR.lslp if c in ('FX', 'F2', 'F3', 'FQ', 'AFREE', 'BFREE', 'XST') else 1}"); e(f"s_sub_u32 s{S_T}, s{S_T}, 1"); e(f"s_cbranch_scc0 {top}")
    g.lab(done)
def rowmax(g, v, op="v_max_u32_dpp"):
    for sh in (8, 4, 2, 1): g.e(f"{op} v{v}, v{v}, v{v} row_ror:{sh} {DPPALL}")
def wavemax_exp(g, v, sdst):
    e = g.e
    rowmax(g, v)
    e(f"v_readlane_b32 s{sdst}, v{v}, 0"); e(f"v_readlane_b32 s{S_T}, v{v}, 16"); e(f"s_max_u32 s{sdst}, s{sdst}, s{S_T}")
    e(f"v_readlane_b32 s{S_T}, v{v}, 32"); e(f"s_max_u32 s{sdst}, s{sdst}, s{S_T}")
    e(f"v_readlane_b32 s{S_T}, v{v}, 48"); e(f"s_max_u32 s{sdst}, s{sdst}, s{S_T}")
    e(f"s_lshr_b32 s{sdst}, s{sdst}, 23"); e(f"s_sub_u32 s{sdst}, s{sdst}, 126")
def put_max(g, slot):
    e = g.e
    rowmax(g, 1)
    e("v_lshrrev_b32 v2, 4, v0"); e(f"s_lshl_b32 s{S_T}, s{S_J}, 4"); e(f"s_add_u32 s{S_T}, s{S_T}, {slot}")
    e(f"v_lshl_add_u32 v2, v2, 2, s{S_T}")
    e("ds_write_b32 v2, v1")
def get_max(g, slot):
    e = g.e
    e("v_and_b32 v2, 15, v0"); e("v_lshlrev_b32 v2, 2, v2"); e(f"v_add_u32 v2, {slot}, v2")
    e("ds_read_b32 v1, v2"); e("s_waitcnt lgkmcnt(0)")
    rowmax(g, 1)
def pkmax(g, regs):
    e = g.e
    e(f"v_pk_max_u16 v1, v{regs[0]}, v{regs[1]}"); e(f"v_pk_max_u16 v3, v{regs[2]}, v{regs[3]}")
    for i, r in enumerate(regs[4:]): e(f"v_pk_max_u16 v{1 + 2*(i&1)}, v{1 + 2*(i&1)}, v{r}")
    e("v_pk_max_u16 v1, v1, v3"); e("v_alignbit_b32 v3, v1, v1, 16"); e("v_pk_max_u16 v1, v1, v3")
def pack_round(g, acc, off, pk=True):
    e = g.e
    if PAR.pkpack and pk:
        for t in range(7):
            q = QS + t; sel = q & 1
            e(f"v_pk_mul_f32 {vr(acc+2*t,2)}, {vr(acc+2*t,2)}, {vr(q - sel,2)} op_sel:[0,{sel}] op_sel_hi:[1,{sel}]")
    else:
        for t in range(14): e(f"v_mul_f32 v{acc+t}, v{acc+t}, v{QS+(t>>1)}")
    for t in range(7): e(f"v_cvt_pk_f16_f32 v{PK+t}, v{acc+2*t}, v{acc+2*t+1}")
    for t in range(7): e(f"v_alignbit_b32 v{PK+t}, v{PK+t}, v{PK+t}, v{QSH}")
    for t in range(7): e(f"ds_write_b32 v{QA+t}, v{PK+t} offset:{off}")
def s0_max(g, t):
    a = HX + 16 * t
    for i in range(7):
        if t == 0 and i == 0: g.e(f"v_max_f32 v1, |v{a}|, |v{a+1}|")
        else: g.e(f"v_max3_f32 v1, v1, |v{a+2*i}|, |v{a+2*i+1}|")
F0 = lambda c: sum(PAR.chunks[:c])
S_ROT = 64
S_SCN, S_XC = 68, 69
S_RA = 66
def call_if(g, cond, target):
    lb = g.newlab('nc')
    for c in cond: g.e(c[0]); g.e(f'{c[1]} {lb}')
    g.e(f's_call_b64 s[{S_RA}:{S_RA+1}], {target}')
    g.lab(lb)
RET = f's_setpc_b64 s[{S_RA}:{S_RA+1}]'
def EARLY(): return [(f's_cmp_lt_u32 s{S_WP}, {PAR.gearly}', 's_cbranch_scc0')]
def LATE(): return [(f's_cmp_lt_u32 s{S_WP}, {PAR.gearly}', 's_cbranch_scc1'), (f's_cmp_ge_u32 s{S_WP}, 31', 's_cbranch_scc1')]
def rotf(g, f, sd):
    g.e(f"s_add_u32 s{sd}, s{S_ROT}, {f}"); g.e(f"s_sub_u32 s{S_ROT+1}, s{sd}, 26"); g.e(f"s_min_u32 s{sd}, s{sd}, s{S_ROT+1}")
def colvec(g, srd, dst, tag):
    g.e("v_lshrrev_b32 v1, 4, v0"); g.e("v_lshlrev_b32 v1, 3, v1")
    for a in range(4):
        g.e(f"s_xor_b32 s{S_T}, s{S_XC}, {32*a}"); g.e(f"s_add_u32 s{S_T}, s{S_T}, s{S_SB}")
        g.vm(f"buffer_load_dwordx2 {vr(dst+2*a,2)}, v1, {sr(srd)}, s{S_T} offen", tag)
def dma_w(g, f0, f1, tag):
    e = g.e
    e(f"s_lshl_b32 s{S_T}, s{S_J}, 10")
    for f in range(f0, f1):
        e(f"s_add_u32 m0, s{S_T}, {D0 + (f % 16)*4096}")
        rotf(g, f, S_T + 1); e(f"s_mul_i32 s{S_T+1}, s{S_T+1}, 53248")
        g.vm(f"buffer_load_dwordx4 v{V_WSRC}, {sr(S_W1)}, s{S_T+1} offen {PAR.wmod} lds", tag)
CHK_X = lambda: (S_WS, f"s{S_CX}", C_XR, 1)
def helper_common(g):
    e = g.e
    e("s_setprio 2")
    e(f"s_sub_u32 s{S_J}, s{S_WAVE}, 4")
    e("v_and_b32 v2, 31, v0"); e("v_lshrrev_b32 v3, 5, v0")
    e(f"v_lshlrev_b32 v{V_H16}, 4, v3")
    e("v_lshrrev_b32 v4, 3, v2"); e("v_and_b32 v6, 3, v2"); e("v_lshl_add_u32 v4, v4, 2, v6")
    e("v_bfe_u32 v6, v2, 2, 1"); e(f"v_mad_u32_u24 v{V_HROW}, v6, 13, v4")
    e("v_cmp_lt_u32 vcc, 12, v4"); e("v_mov_b32 v7, 0x100000"); e(f"v_cndmask_b32 v{V_HROW}, v{V_HROW}, v7, vcc")
    e("v_mul_u32_u24 v4, 676, v3"); e(f"s_movk_i32 s{S_T+1}, 1352"); e(f"v_mad_u32_u24 v243, v{V_HROW}, s{S_T+1}, v4")
    def qaset():
        e("v_lshrrev_b32 v27, 1, v2"); e("v_and_b32 v28, 1, v2"); e(f"v_lshlrev_b32 v{QSH}, 4, v28")
        e("v_sub_u32 v29, 25, v27"); e("v_mul_u32_u24 v29, v29, v27"); e("v_lshrrev_b32 v29, 1, v29")
        e(f"s_lshl_b32 s{S_T}, s{S_J}, 4")
        e(f"v_lshl_add_u32 v28, v28, 9, s{S_T}")
        e(f"v_lshl_add_u32 v30, v0, 2, s{S_T}"); e(f"v_add_u32 v30, {BUFA + 24*S0STR}, v30")
        e("v_mov_b32 v33, 0.5")
        for t in range(7):
            qb = 4 * (t >> 1) + (t & 1)
            e(f"v_lshl_add_u32 v31, v3, 1, {qb}")
            e("v_add_u32 v32, v29, v31")
            e(f"v_lshrrev_b32 v{QA+t}, 2, v32"); e(f"v_mul_u32_u24 v{QA+t}, {S0STR}, v{QA+t}")
            e("v_and_b32 v32, 3, v32"); e("v_lshl_add_u32 v32, v32, 2, v28"); e(f"v_add_u32 v{QA+t}, v{QA+t}, v32")
            e("v_cmp_lt_u32 vcc, v31, v27")
            if t == 6:
                e("v_cmp_lt_u32 s[72:73], 12, v31"); e("s_or_b64 vcc, vcc, s[72:73]")
            e(f"v_cndmask_b32 v{QA+t}, v{QA+t}, v30, vcc")
            e("v_cmp_eq_u32 vcc, v31, v27"); e(f"v_cndmask_b32 v{QS+t}, 1.0, v33, vcc")
        e("v_lshlrev_b32 v31, 3, v3"); e("v_sub_u32 v31, v2, v31")
        e("v_mov_b32 v32, 0x3f80"); e(f"v_lshlrev_b32 v32, v{QSH}, v32")
        e("v_lshrrev_b32 v31, 1, v31")
        for s in range(2):
            for i in range(4):
                e(f"v_cmp_eq_u32 vcc, {8*s+i}, v31"); e(f"v_cndmask_b32 v{ID+4*s+i}, 0, v32, vcc")
    if PAR.qaearly: qaset()
    HS = [S_WC, S_WS, S_WO, S_W1, S_B1, S_W2, S_DBG]
    srd_const(g, HS)
    e("s_waitcnt lgkmcnt(0)")
    srd_base(g, HS)
    e(f"s_mov_b64 s[{S_LC}:{S_LC+1}], s[{S_WC}:{S_WC+1}]"); e(f"s_mov_b32 s{S_LC+3}, 0x00020000"); e(f"s_mov_b32 s{S_LC+2}, {2*LB}")
    e(f"s_cmp_lt_u32 s{S_R}, {NR}"); e(f"s_cselect_b32 s{S_WP}, 63, s{S_G}"); e(f"s_mov_b32 s{S_SCN}, 0")
    if PAR.wpf:
        e(f"s_cmp_lg_u32 s{S_J}, 0"); e("s_cbranch_scc1 L_nowpf")
        e(f"s_mov_b32 s{S_WC+2}, {6*LB}"); e(f"s_lshr_b32 s{S_T}, s2, 3"); e(f"s_lshl_b32 s{S_T}, s{S_T}, 7")
        e("v_lshlrev_b32 v1, 12, v0")
        e(f"buffer_load_dword v247, v1, {sr(S_WC)}, s{S_T} offen")
        e(f"s_mov_b32 s{S_WC+2}, {LB}")
        g.lab("L_nowpf")
    g.stamp("g")
    call_if(g, EARLY(), "L_pe1")
    g.stamp("g")
    e("v_and_b32 v2, 31, v0"); e("v_lshrrev_b32 v3, 5, v0")
    e(f"v_mad_u32_u24 v1, v2, 52, v{V_H16}")
    if PAR.w0lin: e("v_lshlrev_b32 v1, 4, v0")
    e(f"s_mul_i32 s{S_T}, s{S_J}, 1352")
    for t in range(7):
        if t < 6: e(f"s_add_u32 s{S_T+1}, s{S_T}, {(13*(t&1) + 4*(t>>1))*1352}")
        else:
            e(f"s_mul_i32 s{S_T+1}, s{S_J}, {13*1352}"); e(f"s_add_u32 s{S_T+1}, s{S_T+1}, {12*1352}")
        for s in range(2):
            g.vm(f"buffer_load_dwordx4 {vr(W0R+8*t+4*s,4)}, v1, {sr(S_WC)}, s{S_T+1} offen offset:{(320 if PAR.w0lin else 32)*s}", f"w0_{t}")
    e("s_branch L_helper2")
    g.hfirst = g.L[g.h0:]; del g.L[g.h0:]
    g.lab("L_helper2")
    if not PAR.barpos: e("s_barrier")
    e(f"v_mov_b32 v61, {OOB}"); e(f"v_add_u32 v60, s{S_J}, v0"); e("v_cmp_eq_u32 vcc, 0, v60"); e(f"v_cndmask_b32 v{V_L0}, v61, 0, vcc")
    e(f"s_lshr_b32 s{S_SB}, s{S_R}, 1"); e(f"s_mul_i32 s{S_SB}, s{S_SB}, 224"); e(f"s_and_b32 s{S_XC}, s{S_R}, 1"); e(f"s_mul_i32 s{S_XC}, s{S_XC}, 96"); e(f"s_add_u32 s{S_SB}, s{S_SB}, s{S_XC}")
    e(f"s_mul_i32 s{S_CX}, s{S_G}, {PAR.cstr}"); e(f"s_add_u32 s{S_CX}, s{S_CX}, {WS_CNT}")
    e(f"s_add_u32 s{S_T}, s{S_R}, s{S_J}"); e(f"s_cmp_eq_u32 s{S_T}, 0"); e(f"s_cselect_b32 s{S_E3}, 0, {OOB}")
    e(f"v_add_u32 v34, s{S_E3}, v{V_L0}");
    for i in range(4): e(f"v_mov_b32 v{36+i}, 0")
    e(f"v_lshl_add_u32 v35, v0, 8, s{S_E3}"); e("v_cmp_lt_u32 vcc, 2, v0"); e("v_cndmask_b32 v35, v35, v61, vcc")
    g.vm(f"buffer_store_dwordx4 v[36:39], v35, {sr(S_WS)}, s{S_CX} offen sc1", "rst")
    if not PAR.qaearly: qaset()
    e(f"s_mul_i32 s{S_PO}, s{S_G}, {NR}"); e(f"s_add_u32 s{S_PO}, s{S_PO}, s{S_R}"); e(f"s_lshl_b32 s{S_PO}, s{S_PO}, 2"); e(f"s_add_u32 s{S_PO}, s{S_PO}, s{S_J}")
    e(f"s_lshl_b32 s{S_PO}, s{S_PO}, 8"); e(f"s_add_u32 s{S_PO}, s{S_PO}, {WS_PART}")
    e("v_and_b32 v60, 15, v0"); e(f"v_mul_u32_u24 v245, {XSTR}, v60"); e("v_and_b32 v60, 48, v0")
    e(f"s_lshl_b32 s{S_T}, s{S_J}, 6"); e(f"s_add_u32 s{S_T}, s{S_T}, {D0}"); e(f"v_add3_u32 v245, v245, v60, s{S_T}")
    e("v_lshlrev_b32 v246, 4, v0")
    e(f"s_lshl_b32 s{S_XB}, s{S_G}, 2"); e(f"s_lshr_b32 s{S_T}, s{S_R}, 2"); e(f"s_add_u32 s{S_XB}, s{S_XB}, s{S_T}"); e(f"s_mul_i32 s{S_XB}, s{S_XB}, 106496")
    e(f"s_and_b32 s{S_T}, s{S_R}, 3"); e(f"s_lshl_b32 s{S_T}, s{S_T}, 10"); e(f"s_add_u32 s{S_XB}, s{S_XB}, s{S_T}")
    e(f"s_lshl_b32 s{S_T}, s{S_J}, 12"); e(f"s_add_u32 s{S_XB}, s{S_XB}, s{S_T}"); e(f"s_add_u32 s{S_XB}, s{S_XB}, {WS_X}")
    g.stamp("g")
    if PAR.barpos == 1: e("s_barrier")
    call_if(g, EARLY(), "L_pe2")
    g.stamp("g")
    for t in range(7):
        g.vmwait(f"w0_{t}")
        a = HX + 16 * t; w = W0R + 8 * t
        e(f"v_mfma_f32_32x32x16_bf16 {vr(a,16)}, {vr(w,4)}, {vr(ID,4)}, 0")
        e(f"v_mfma_f32_32x32x16_bf16 {vr(a,16)}, {vr(w+4,4)}, {vr(ID+4,4)}, {vr(a,16)}")
        e(f"v_mfma_f32_32x32x16_bf16 {vr(a,16)}, {vr(ID,4)}, {vr(w,4)}, {vr(a,16)}")
        e(f"v_mfma_f32_32x32x16_bf16 {vr(a,16)}, {vr(ID+4,4)}, {vr(w+4,4)}, {vr(a,16)}")
        if t > 0: s0_max(g, t - 1)
    s0_max(g, 6)
    put_max(g, M_S0)
    e(f"v_mov_b32 v{V_CNT}, {M_CNT}")
    arrive(g, "S0M")
    g.stamp("g")
    if g.stamps and "g" in PAR.st: e("s_waitcnt vmcnt(0)"); g.stamp("g")
    if PAR.wpf3 == 2:
        e("v_lshlrev_b32 v1, 14, v0"); e(f"s_lshr_b32 s{S_T}, s2, 3"); e(f"s_lshl_b32 s{S_T}, s{S_T}, 7"); e(f"s_lshl_b32 s{S_T+1}, s{S_J}, 12"); e(f"s_add_u32 s{S_T}, s{S_T}, s{S_T+1}")
        e(f"buffer_load_dword v247, v1, {sr(S_W1)}, s{S_T} offen"); e("v_add_u32 v1, 0x100000, v1")
        e(f"buffer_load_dword v247, v1, {sr(S_W1)}, s{S_T} offen")
    call_if(g, EARLY(), "L_gsig")
    g.stamp("g")
    lwait(g, "S0M")
    g.stamp(); g.stamp("h")
    get_max(g, M_S0)
    e("v_lshlrev_b32 v3, 4, v0"); e(f"v_mov_b32 v{PK}, 0")
    e(f"ds_write_b32 v3, v{PK} offset:{BUFA + 22*S0STR + 12}")
    e("v_lshrrev_b32 v1, 23, v1")
    e("v_min_u32 v1, 249, v1")
    e("v_sub_u32 v2, 124, v1")
    e("v_subrev_u32 v1, 124, v1")
    e(f"ds_write_b32 v3, v1 offset:{BUFA + 23*S0STR + 512}")
    for t in range(7): e(f"v_ldexp_f32 v{QS+t}, v{QS+t}, v2")
    for t in range(7):
        if t == 6:
            e(f"s_cmp_eq_u32 s{S_J}, 1"); e(f"s_cselect_b32 s{S_T}, 48, 0")
            for i in range(7): e(f"v_add_u32 v{QA+i}, s{S_T}, v{QA+i}")
        if t in (0, 2, 4, 6): g.stamp("h")
        pack_round(g, HX + 16 * t, 16 * (8 * (t >> 1) + 4 * (t & 1)))
    arrive(g, "S0OK")
    g.stamp(); g.stamp("s"); g.stamp("h")
    e(f"v_cmp_lt_u32 vcc, 25, v{V_HROW}"); e("v_bfe_u32 v1, v0, 2, 1")
    e("v_cmp_eq_u32 s[72:73], 0, v1"); e("s_and_b64 vcc, vcc, s[72:73]")
    e(f"v_mov_b32 v2, {OOB}"); e(f"v_lshlrev_b32 v{V_DMA}, 4, v0"); e(f"v_cndmask_b32 v{V_DMA}, v{V_DMA}, v2, vcc")
    e(f"s_mul_i32 s{S_ROT}, s{S_R}, 7"); e(f"s_lshr_b32 s{S_ROT}, s{S_ROT}, 2")
    e("v_lshrrev_b32 v1, 3, v0"); e(f"s_lshl_b32 s{S_T}, s{S_J}, 3"); e(f"v_add_u32 v1, s{S_T}, v1")
    e("v_mul_u32_u24 v1, 1664, v1"); e("v_and_b32 v2, 1, v0"); e("v_lshl_add_u32 v1, v2, 4, v1")
    e(f"s_and_b32 s{S_T}, s{S_J}, 1"); e(f"s_lshl_b32 s{S_T}, s{S_T}, 1")
    e("v_bfe_u32 v2, v0, 4, 1"); e("v_bfe_u32 v3, v0, 1, 2"); e("v_xor_b32 v2, v2, v3"); e(f"v_xor_b32 v2, s{S_T}, v2")
    e(f"v_lshl_add_u32 v3, v2, 5, s{S_SB}")
    e(f"v_add_u32 v{V_WSRC}, v1, v3")
    e("v_lshrrev_b32 v1, 4, v0"); e("v_bfe_u32 v2, v0, 2, 2"); e("v_lshl_add_u32 v1, v1, 3, v2"); e("v_lshlrev_b32 v1, 7, v1")
    e("v_and_b32 v3, 3, v0"); e("v_lshl_add_u32 v1, v3, 3, v1"); e("v_bfe_u32 v2, v0, 3, 2"); e("v_lshl_add_u32 v1, v2, 5, v1")
    e(f"v_xor_b32 v1, s{S_XC}, v1"); e(f"v_add_u32 v{V_TR0}, {D0}, v1")
    e(f"s_cmp_lg_u32 s{S_R}, 0"); e("s_cbranch_scc1 L_nordy")
    g.vmwait("rst")
    e("v_mov_b32 v35, 1"); e(f"s_lshl_b32 s{S_E3}, s{S_G}, 2")
    e(f"buffer_store_dword v35, v34, {sr(S_DBG)}, s{S_E3} offen offset:{C_RDY} sc1")
    g.lab("L_nordy")
    if PAR.wpf3 == 1:
        e("v_lshlrev_b32 v1, 14, v0"); e(f"s_lshr_b32 s{S_T}, s2, 3"); e(f"s_lshl_b32 s{S_T}, s{S_T}, 7"); e(f"s_lshl_b32 s{S_T+1}, s{S_J}, 12"); e(f"s_add_u32 s{S_T}, s{S_T}, s{S_T+1}")
        e(f"buffer_load_dword v247, v1, {sr(S_W1)}, s{S_T} offen"); e("v_add_u32 v1, 0x100000, v1")
        e(f"buffer_load_dword v247, v1, {sr(S_W1)}, s{S_T} offen")
    call_if(g, LATE(), "L_pe1")
    call_if(g, LATE()[:1], "L_xpub")
    g.vmq += ["xst"] * 7 + ["sent", "rdyl"] + ["bias"] * 4
    g.stamp("s")
    call_if(g, LATE(), "L_pe2")
    if PAR.wearly:
        e(f"s_cmp_ge_u32 s{S_R}, {NR}"); e("s_cbranch_scc1 L_pw")
        lwait(g, "RB", 8); dma_w(g, 0, PAR.wa, "Wa")
        g.tail += ["L_pw:", "    s_waitcnt vmcnt(4)", "    s_branch L_pwr"]
    g.vmwait("rdyl")
    g.lab("L_pwr")
    arrive(g, "XST")
    e(f"s_cmp_lg_u32 s{S_J}, 0"); e("s_cbranch_scc1 L_nosig")
    lwait(g, "XST")
    e(f"s_mov_b32 s{S_T}, {SPIN}")
    g.lab("L_rdy")
    e("v_cmp_ne_u32 vcc, 0, v28"); e(f"s_and_b32 s{S_T+1}, vcc_lo, 0xffff"); e(f"s_cmp_eq_u32 s{S_T+1}, 0xffff"); e("s_cbranch_scc0 L_rdys")
    g.lab("L_rdyd")
    g.tail += ["L_rdys:", "    s_sleep 8", f"    buffer_load_dword v28, v29, {sr(S_DBG)}, 0 offen offset:{C_RDY} sc1", "    s_waitcnt vmcnt(0)",
               f"    s_sub_u32 s{S_T}, s{S_T}, 1", "    s_cbranch_scc0 L_rdy", "    s_branch L_rdyd"]
    e("v_mov_b32 v1, 1")
    e(f"buffer_atomic_add v1, v{V_L0}, {sr(S_WS)}, s{S_CX} offen sc0 sc1")
    e(f"buffer_load_dword v197, v{V_L0}, {sr(S_DBG)}, 0 offen offset:128 sc1")
    e("s_waitcnt vmcnt(0)")
    e(f"v_readfirstlane_b32 s{S_T}, v1"); e(f"s_cmp_lg_u32 s{S_T}, 15"); e("s_cbranch_scc1 L_nosig")
    e(f"buffer_store_dword v1, v{V_L0}, {sr(S_WS)}, s{S_CX} offen offset:{C_XR} sc1")
    g.lab("L_nosig")
    g.stamp(); g.stamp("s")

def helper_dnn(g):
    e = g.e
    CH = PAR.chunks; NS = PAR.nslot
    UNITS = [(a, sl) for a in range(3) for sl in range(4)] + [(3, 0), (3, 1)]
    def ac(a, sl): return HACC + 4 * UNITS.index((a, sl))
    def xb(f, sl): return HX + 16 * (f % NS) + 4 * sl
    def xload(f):
        rotf(g, f, S_T + 2); e(f"s_lshl_b32 s{S_T+2}, s{S_T+2}, 12"); e(f"s_add_u32 s{S_T+2}, s{S_T+2}, s{S_XB}")
        for sl in range(4 if f < NS else PAR.nxl):
            g.vm(f"buffer_load_dwordx4 {vr(xb(f,sl),4)}, v{2 + (sl >> 1)}, {sr(S_WS)}, s{S_T+2} offen offset:{1024*(sl&1)} {PAR.ld}", f"x{f}")
    VTR = [V_TR0, V_TR1, 198, 199]
    for a in range(1, 4): e(f"v_xor_b32 v{VTR[a]}, {32*a}, v{V_TR0}")
    g.vmwait("bias")
    for a in range(4):
        for i in range(2):
            e(f"v_lshlrev_b32 v{ac(a,0)+2*i}, 16, v{BT+2*a+i}")
            e(f"v_and_b32 v{ac(a,0)+2*i+1}, 0xffff0000, v{BT+2*a+i}")
    for a, sl in UNITS:
        if sl:
            for i in range(4): e(f"v_mov_b32 v{ac(a,sl)+i}, v{ac(a,0)+i}")
    e(f"s_lshl_b32 s{S_XB}, s{S_G}, 2"); e(f"s_add_u32 s{S_XB}, s{S_XB}, s{S_J}"); e(f"s_mul_i32 s{S_XB}, s{S_XB}, 106496"); e(f"s_add_u32 s{S_XB}, s{S_XB}, {WS_X}")
    if PAR.wearly < 1: lwait(g, "RB", 8); dma_w(g, 0, PAR.wa, "Wa")
    if PAR.x0: poll1(g, [(S_DBG, "0", 128, 11), CHK_X()], "FX")
    else:
        poll1(g, [(S_DBG, "0", 128, 11)], "F2", pre=[197])
        lwait(g, "AFREE"); dma_img(g, "L2", 44, BUFA)
        presample(g, [CHK_X()], [196], "fx")
        g.vmwait("fx"); arrive(g, "L2OK", "W01")
        poll1(g, [CHK_X()], "FX", pre=[196])
    e(f"s_and_b32 s{S_E0}, s{S_R}, 1"); e(f"s_lshl_b32 s{S_T}, s{S_E0}, 11"); e(f"v_lshl_add_u32 v2, v0, 4, s{S_T}"); e("v_xor_b32 v3, 0x800, v2")
    g.stamp("s")
    g.stamp()
    for f in range(PAR.xi): xload(f)
    if PAR.x0:
        lwait(g, "AFREE"); dma_img(g, "L2", 44, BUFA)
        g.vmwait("W1"); arrive(g, "W01")
    nld = [PAR.xi]
    W2R = 232
    wring = [0]
    def wread(ks):
        f, hf = divmod(ks, 2)
        base = HW_ + 8 * (wring[0] % 3); wring[0] += 1
        for a in range(2):
            for rd in range(2):
                e(f"ds_read_b64_tr_b16 {vr(base+4*a+2*rd,2)}, v{VTR[2*hf+a]} offset:{(f % 16)*4096 + rd*512}")
        return base
    CKQ = [(S_WS, f"s{S_CX}", C_Q, 9)]; CK3 = [(S_WS, f"s{S_CX}", C_L[3], 11)]
    after = {}
    def add(f, fn): after.setdefault(f, []).append(fn)
    inter = {}
    def addi(f, fn): inter.setdefault(f, []).append(fn)
    def capture(fn):
        keep = g.L; g.L = []; fn(); out = g.L; g.L = keep; return out
    assert PAR.wa >= 10
    for i in range(16 - PAR.wa): addi(i + 1, lambda i=i: dma_w(g, PAR.wa + i, PAR.wa + i + 1, "Wb"))
    for f, (x, y) in {10: (16, 18), 11: (18, 20), 12: (20, 21), 13: (21, 22), 14: (22, 23), 15: (23, 24), 16: (24, 25), 17: (25, 26)}.items():
        addi(f, lambda x=x, y=y: dma_w(g, x, y, "Wc" if x < 21 else "Wd"))
    SEG = [0, 10, 16, 21, 26]
    add(PAR.qpos - 3, lambda: presample(g, CK3, [196], "f3"))
    add(PAR.qpos, lambda: (lwait(g, "BFREE"), g.vmwait("f3"), poll1(g, CK3, "F3", pre=[196])))
    for i in range(0, 11, PAR.l3n): addi(PAR.qpos + 1 + i // PAR.l3n, lambda i=i: dma_img(g, "L3", 44, BUFB, part=(i, i + PAR.l3n)))
    add(PAR.qpos + 1 + 10 // PAR.l3n + PAR.qarr, lambda: (g.vmwait("L3"), arrive(g, "L3OK")))
    add(22, lambda: presample(g, CKQ, [197], "fq"))
    lwait(g, "W01")
    for c in range(4):
        k0 = 2 * SEG[c]; k1 = 2 * SEG[c + 1]
        bufs = {k0: wread(k0), k0 + 1: wread(k0 + 1)}
        for ks in range(k0, k1):
            f, hf = divmod(ks, 2)
            if hf == 0 and f in PAR.fst: g.stamp("f")
            if hf == 0:
                g.vmwait(f"x{f}")
                def gen_other():
                    for _ in range(2):
                        if nld[0] < min(26, f + NS): xload(nld[0]); nld[0] += 1
                    for fn in inter.get(f, []): fn()
                other = capture(gen_other)
            e(f"s_waitcnt lgkmcnt({4 if ks + 1 < k1 else 0})")
            rd = []
            if ks + 2 < k1: rd = capture(lambda: bufs.__setitem__(ks + 2, wread(ks + 2)))
            mf = [(a, sl) for a in range(2) for sl in range(4) if (2 * hf + a, sl) in UNITS[:PAR.nmf]]
            for i, (a, sl) in enumerate(mf):
                d = ac(2 * hf + a, sl)
                e(f"v_mfma_f32_16x16x32_bf16 {vr(d,4)}, {vr(bufs[ks]+4*a,4)}, {vr(xb(f,sl),4)}, {vr(d,4)}")
                n = PAR.il
                if rd and i >= 1: g.L.append(rd.pop(0)); n -= 1
                while other and n > 0: g.L.append(other.pop(0)); n -= 1
            g.L += rd
            if hf == 1:
                g.L += other
                for fn in after.get(f, []): fn()
        if c == 0:
            if PAR.wa < 16: g.vmwait("Wb")
            arrive(g, "C0"); lwait(g, "C0"); g.stamp()
        if c == 1: g.vmwait("Wc"); arrive(g, "C1"); lwait(g, "C1")
        if c == 2:
            g.vmwait("Wd"); arrive(g, "C2"); lwait(g, "C2")
            colvec(g, S_W2, W2R, "w2")
    e("s_waitcnt vmcnt(0)")
    g.stamp()
    W2F = HX
    for i in range(8):
        e(f"v_lshlrev_b32 v{W2F+2*i}, 16, v{W2R+i}")
        e(f"v_and_b32 v{W2F+2*i+1}, 0xffff0000, v{W2R+i}")
    c0 = 2 * 0.7978845608028654 * 1.4426950408889634
    e(f"s_mov_b32 s{S_C1}, {f2u(c0*0.044715):#x}")
    e(f"v_mov_b32 v2, {f2u(c0):#x}")
    T = HX + 32; SUM = HX + 48
    def gelu(blk):
        a, sl = UNITS[blk]
        rs = [ac(a, sl) + i for i in range(4)]
        for i, r in enumerate(rs): e(f"v_mul_f32 v{T+i}, v{r}, v{r}")
        for i, r in enumerate(rs): e(f"v_fma_f32 v{T+i}, v{T+i}, s{S_C1}, v2")
        for i, r in enumerate(rs): e(f"v_mul_f32 v{T+i}, v{T+i}, v{r}")
        for i, r in enumerate(rs): e(f"v_exp_f32 v{T+i}, -v{T+i}")
        for i, r in enumerate(rs): e(f"v_mul_f32 v{r}, v{r}, v{W2F + 4*a + i}")
        for i, r in enumerate(rs): e(f"v_add_f32 v{T+i}, 1.0, v{T+i}")
        for i, r in enumerate(rs): e(f"v_rcp_f32 v{T+i}, v{T+i}")
        for i, r in enumerate(rs): e(f"v_{'mul' if a == 0 and i == 0 else 'fmac'}_f32 v{SUM + sl}, v{r}, v{T+i}")
    for blk in range(len(UNITS)):
        if blk == PAR.gsplit:
            poll1(g, CKQ, "FQ", pre=[197]); dma_img(g, "Q4", 28, QB)
        if blk == PAR.gsplit2:
            e("s_waitcnt vmcnt(0)"); arrive(g, "QOK")
        if blk == PAR.ghi: e("s_setprio 0")
        gelu(blk)
    e("s_setprio 2")
    e(f"v_permlane32_swap_b32 v{SUM}, v{SUM+2}"); e(f"v_permlane32_swap_b32 v{SUM+1}, v{SUM+3}")
    e(f"v_add_f32 v{SUM}, v{SUM}, v{SUM+2}"); e(f"v_add_f32 v{SUM+1}, v{SUM+1}, v{SUM+3}")
    e(f"v_permlane16_swap_b32 v{SUM}, v{SUM+1}")
    e(f"v_add_f32 v{SUM}, v{SUM}, v{SUM+1}")
    e(f"v_min_u32 v{SUM}, -2, v{SUM}")
    e(f"s_lshl_b32 s{S_T}, s{S_E0}, 7"); e("v_lshlrev_b32 v1, 2, v0"); e(f"v_xor_b32 v1, s{S_T}, v1")
    e(f"buffer_store_dword v{SUM}, v1, {sr(S_WS)}, s{S_PO} offen sc1")
    g.stamp()
    g.flush_stamps(4, 5)
    e("s_endpgm")

def gsignal(g, c, so):
    e = g.e; done = g.newlab("sg")
    if c: e("s_waitcnt vmcnt(0)"); arrive(g, c)
    e(f"s_cmp_lg_u32 s{S_J}, 0"); e(f"s_cbranch_scc1 {done}")
    if c: lwait(g, c)
    e(f"v_mul_u32_u24 v2, {PAR.cstr}, v0"); e("v_cmp_lt_u32 vcc, 15, v0"); e(f"v_mov_b32 v3, {OOB}"); e("v_cndmask_b32 v2, v2, v3, vcc")
    e("v_mov_b32 v1, 1")
    e(f"buffer_atomic_add v1, v2, {sr(S_WS)}, {so} offen sc1")
    g.lab(done)
SCN, FR, WV, WP, W1V, AQ, RW = 68, 104, 121, 122, 108, 44, 180
QAR = lambda i: (64 + i) if i < 4 else (240 + i)
S_E4, S_LW = 62, 63
def prod_early1(g):
    e = g.e
    g.lab("L_gsig")
    e("s_waitcnt vmcnt(0)"); arrive(g, "GST")
    e(f"s_cmp_lg_u32 s{S_J}, 0"); e("s_cbranch_scc1 L_xpub")
    lwait(g, "GST")
    e("v_mov_b32 v1, 1"); e(f"buffer_atomic_add v1, v{V_L0}, {sr(S_DBG)}, 0 offen offset:128 sc1")
    g.lab("L_xpub")
    XS = 180
    lwait(g, "RAW")
    for t in range(7): e(f"ds_read_b128 {vr(XS+4*t,4)}, v245 offset:{256*t}")
    e(f"s_cmp_ge_u32 s{S_J}, 2"); e(f"s_cselect_b32 s{S_T}, {OOB}, 0"); e(f"v_add_u32 v245, s{S_T}, v246")
    for t in range(7):
        e(f"s_waitcnt lgkmcnt({6-t})")
        g.vm(f"buffer_store_dwordx4 {vr(XS+4*t,4)}, v{246 if t < 6 else 245}, {sr(S_WS)}, s{S_XB} offen sc1", "xst")
        e(f"s_add_u32 s{S_XB}, s{S_XB}, 16384")
    arrive(g, "RB")
    e(f"s_cmp_ge_u32 s{S_R}, {NR}"); e(f"s_cselect_b32 s{S_T}, {OOB}, 0")
    e(f"v_lshl_add_u32 v1, v0, 2, s{S_T}"); e("v_mov_b32 v3, -1")
    g.vm(f"buffer_store_dword v3, v1, {sr(S_WS)}, s{S_PO} offen sc1", "sent")
    e(f"s_lshl_b32 s{S_T}, s{S_J}, 8"); e("v_lshrrev_b32 v29, 4, v0"); e(f"v_lshl_add_u32 v29, v29, 8, s{S_T}"); e("v_lshl_add_u32 v29, v0, 2, v29")
    g.vm(f"buffer_load_dword v28, v29, {sr(S_DBG)}, 0 offen offset:{C_RDY} sc1", "rdyl")
    colvec(g, S_B1, BT, "bias")
    e(RET)
    g.lab("L_pe1")
    e(f"s_mul_i32 s{S_L}, s{S_WP}, 94"); e(f"s_lshr_b32 s{S_L}, s{S_L}, 10")
    e(f"s_mul_i32 s{S_T}, s{S_L}, 11"); e(f"s_sub_u32 s{S_FR}, s{S_WP}, s{S_T}"); e(f"s_lshl_b32 s{S_FR}, s{S_FR}, 2"); e(f"s_add_u32 s{S_FR}, s{S_FR}, s{S_J}")
    e(f"s_add_u32 s{S_L}, s{S_L}, 2")
    e(f"s_mul_i32 s{S_E2}, s{S_L}, {LB}")
    e(f"s_add_u32 s{S_LC+2}, s{S_E2}, {LB}")
    e("v_lshlrev_b32 v1, 4, v0")
    e(f"s_mul_i32 s{S_T}, s{S_J}, 9216"); e(f"s_add_u32 s{S_T}, s{S_T}, s{S_E2}")
    for i in range(9):
        if i % 4 == 0 and i: e(f"s_add_u32 s{S_T}, s{S_T}, 4096")
        e(f"buffer_load_dwordx4 {vr(SCN+4*i,4)}, v1, {sr(S_LC)}, s{S_T} offen offset:{(i%4)*1024}")
    e(f"s_cmp_ge_u32 s{S_WP}, 22"); e("s_cbranch_scc1 L_ret")
    e(f"s_lshl_b32 s{S_T}, s{S_FR}, 4"); e(f"s_add_u32 s{S_T}, s{S_T}, s{S_E2}")
    e(f"buffer_load_dwordx4 {vr(FR,4)}, v243, {sr(S_LC)}, s{S_T} offen")
    e(f"v_lshlrev_b32 v1, 1, v{V_HROW}"); e(f"s_mul_i32 s{S_T}, s{S_L}, 52")
    e(f"buffer_load_ushort v{WV}, v1, {sr(S_WO)}, s{S_T} offen")
    e(f"buffer_load_ushort v{WP}, v1, {sr(S_WO)}, 52 offen")
    e("v_lshrrev_b32 v3, 5, v0"); e("v_mul_u32_u24 v3, 26, v3")
    for i in range(8):
        e(f"s_lshl_b32 s{S_T}, s{S_FR}, 3"); e(f"s_sub_u32 s{S_T}, s{S_T}, {8*42 + 2 - i}")
        e(f"s_lshl_b32 s{S_T+1}, s{S_T}, 1"); e(f"s_add_u32 s{S_T+1}, s{S_T+1}, 52")
        e(f"s_cmp_lt_u32 s{S_T}, 13"); e(f"s_cselect_b32 s{S_T+1}, s{S_T+1}, {OOB}")
        e(f"v_add_u32 v2, s{S_T+1}, v3")
        e(f"buffer_load_ushort v{W1V+i}, v2, {sr(S_WO)}, 0 offen")
    g.lab("L_ret")
    e(RET)
def prod_early2(g):
    e = g.e
    g.lab("L_pe2")
    e("s_waitcnt vmcnt(13)")
    e(f"v_mov_b32 v{V_CNT}, {M_CNT}")
    for i in range(36): e(f"v_and_b32 v{SCN+i}, s{S_MASK}, v{SCN+i}")
    pkmax(g, [SCN + i for i in range(36)])
    put_max(g, M_SC)
    e(f"s_add_u32 s{S_SCN}, s{S_SCN}, 4")
    arrive(g, "SCM"); lwait(g, "SCM", f"s{S_SCN}")
    get_max(g, M_SC)
    e(f"v_readfirstlane_b32 s{S_E0}, v1")
    e(f"s_bfe_u32 s{S_E0}, s{S_E0}, 0x80007")
    e(f"s_cmp_ge_u32 s{S_WP}, 22"); e("s_cbranch_scc1 L_ret")
    g.lab("L_gjob")
    e(f"s_min_u32 s{S_T+2}, s{S_E0}, 249"); e(f"s_sub_u32 s{S_T+3}, {127+124}, s{S_T+2}"); e(f"s_lshl_b32 s{S_T+3}, s{S_T+3}, 23")
    e(f"s_cmp_lt_u32 s{S_FR}, 42"); e(f"s_cselect_b32 s{S_T+1}, -1, 0")
    for i in range(1, 4): e(f"v_and_b32 v{FR+i}, s{S_T+1}, v{FR+i}")
    e(f"s_cmp_lt_u32 s{S_FR}, 43"); e(f"s_cselect_b32 s{S_T+1}, -1, 0"); e(f"v_and_b32 v{FR}, s{S_T+1}, v{FR}")
    for i in range(4): e(f"v_alignbit_b32 v{FR+i}, v{FR+i}, v{FR+i}, v{V_H16}")
    for i in range(4):
        e(f"v_lshlrev_b32 v{SCN+2*i}, 16, v{FR+i}"); e(f"v_and_b32 v{SCN+2*i+1}, 0xffff0000, v{FR+i}")
    for i in range(8): e(f"v_mul_f32 v{SCN+i}, s{S_T+3}, v{SCN+i}")
    for i in range(4): e(f"v_cvt_pk_f16_f32 v{FR+i}, v{SCN+2*i}, v{SCN+2*i+1}")
    e(f"v_lshlrev_b32 v{WV}, 16, v{WV}")
    e(f"v_and_b32 v1, 0x7fffffff, v{WV}")
    wavemax_exp(g, 1, S_E1)
    e(f"s_sub_u32 s{S_E1}, s{S_E1}, 13"); e(f"s_sub_u32 s{S_T}, 0, s{S_E1}")
    e(f"v_ldexp_f32 v{WV}, v{WV}, s{S_T}")
    for i in range(8): e(f"v_mul_f32 v{SCN+i}, v{SCN+i}, v{WV}")
    for sh in (1, 2, 4, 8):
        for i in range(8): e(f"v_add_f32_dpp v{SCN+i}, v{SCN+i}, v{SCN+i} row_shr:{sh} {DPPALL} bound_ctrl:0")
    for i in range(8): e(f"v_add_f32_dpp v{SCN+i}, v{SCN+i}, v{SCN+i} row_bcast:15 row_mask:0xa bank_mask:0xf")
    for i in range(4): e(f"v_cvt_pk_f16_f32 v{SCN+2*i}, v{SCN+2*i}, v{SCN+2*i+1}")
    e("v_and_b32 v2, 31, v0"); e("v_cmp_eq_u32 vcc, 31, v2")
    for i in range(4): e(f"v_cndmask_b32 v{FR+i}, v{FR+i}, v{SCN+2*i}, vcc")
    e(f"v_lshlrev_b32 v1, 16, v{WP}"); e("v_and_b32 v1, 0x7fffffff, v1")
    wavemax_exp(g, 1, S_E4)
    e(f"s_sub_u32 s{S_T}, 15, s{S_E4}")
    for i in range(8): e(f"v_lshlrev_b32 v{W1V+i}, 16, v{W1V+i}")
    for i in range(8): e(f"v_ldexp_f32 v{W1V+i}, v{W1V+i}, s{S_T}")
    for i in range(4): e(f"v_cvt_pk_f16_f32 v{W1V+2*i}, v{W1V+2*i}, v{W1V+2*i+1}")
    e("v_cmp_eq_u32 vcc, 30, v2")
    for i in range(4): e(f"v_cndmask_b32 v{FR+i}, v{FR+i}, v{W1V+2*i}, vcc")
    e(f"s_cmp_lg_u32 s{S_FR}, 0"); e("s_cbranch_scc1 L_nohdr")
    e(f"s_sub_u32 s{S_T+2}, s{S_T+2}, 124"); e(f"s_add_u32 s{S_E1}, s{S_E1}, s{S_T+2}"); e(f"s_sub_u32 s{S_E4}, s{S_E4}, 15")
    e(f"v_writelane_b32 v{FR}, s{S_T+2}, 29"); e(f"v_writelane_b32 v{FR+1}, s{S_E1}, 29"); e(f"v_writelane_b32 v{FR+2}, s{S_E4}, 29")
    g.lab("L_nohdr")
    e(f"s_mul_i32 s{S_T}, s{S_L}, {44*1024}"); e(f"s_lshl_b32 s{S_T+1}, s{S_FR}, 10"); e(f"s_add_u32 s{S_T}, s{S_T}, s{S_T+1}")
    e(f"s_sub_u32 s{S_T}, s{S_T}, {88*1024 - IMG['L2']}")
    e("v_lshlrev_b32 v1, 4, v0")
    e(f"buffer_store_dwordx4 {vr(FR,4)}, v1, {sr(S_WS)}, s{S_T} offen sc1")
    e("s_nop 0")
    e(RET)
def helper_prod(g):
    e = g.e
    e(f"s_add_u32 s{S_WP}, s{S_G}, 16")
    e(f"s_cmp_ge_u32 s{S_WP}, 31"); e("s_cbranch_scc1 L_j2d")
    call_if(g, [], "L_pe1")
    e(f"s_cmp_lt_u32 s{S_WP}, 22"); e("s_cbranch_scc1 L_noql")
    e("v_and_b32 v2, 31, v0"); e("v_lshrrev_b32 v3, 5, v0")
    e("v_mul_u32_u24 v1, 676, v3"); e("v_add_lshl_u32 v1, v1, v2, 1")
    e(f"s_mul_i32 s{S_T}, s{S_FR}, 52"); e(f"s_add_u32 s{S_T}, s{S_T}, {4*LB}")
    for s in range(13):
        e(f"buffer_load_ushort v{W1V+s}, v1, {sr(S_LC)}, s{S_T} offen")
        e(f"s_add_u32 s{S_T}, s{S_T}, 2704")
    e(f"s_cmp_eq_u32 s{S_WP}, 29"); e(f"s_cselect_b32 s{S_LW}, 4, 5"); e(f"s_cmp_eq_u32 s{S_WP}, 30"); e(f"s_cselect_b32 s{S_LW}, 0, s{S_LW}")
    e(f"s_mul_i32 s{S_E2}, s{S_LW}, {LB}"); e(f"s_add_u32 s{S_LC+2}, s{S_E2}, {LB}")
    e("v_lshlrev_b32 v1, 1, v0"); e("v_cmp_lt_u32 vcc, 25, v0"); e(f"v_mov_b32 v2, {OOB}"); e("v_cndmask_b32 v1, v1, v2, vcc")
    e(f"s_mul_i32 s{S_T}, s{S_LW}, 52")
    e(f"buffer_load_ushort v{WV}, v1, {sr(S_WO)}, s{S_T} offen")
    e("v_lshlrev_b32 v1, 4, v0")
    e(f"s_mul_i32 s{S_T}, s{S_J}, 1352"); e(f"s_add_u32 s{S_T}, s{S_T}, s{S_E2}")
    for t in range(7):
        for ps in range(2):
            e(f"buffer_load_dwordx4 {vr(RW+8*t+4*ps,4)}, v1, {sr(S_LC)}, s{S_T} offen offset:{1024*ps}")
        e(f"s_add_u32 s{S_T}, s{S_T}, {4*1352}")
    g.lab("L_noql")
    lwait(g, "XST")
    e("s_waitcnt vmcnt(0)")
    call_if(g, [], "L_pe2")
    g.lab("L_j2d")
    e(f"s_sub_u32 s{S_T}, s{S_G}, 6"); e(f"s_cmp_lt_u32 s{S_T}, 5"); e("s_cbranch_scc1 L_nol3")
    e(f"s_mov_b32 s{S_T+2}, {WS_CNT + C_L[3]}")
    gsignal(g, "F3", f"s{S_T+2}")
    g.lab("L_nol3")
    e(f"s_cmp_ge_u32 s{S_WP}, 31"); e("s_cbranch_scc1 L_idle")
    e(f"s_cmp_ge_u32 s{S_WP}, 22"); e("s_cbranch_scc1 L_nog")
    e("s_branch L_idle")
    g.lab("L_nog")
    lwait(g, "RB", 8)
    AC = HX; TU = HX + 16
    for t in range(6): e(f"v_lshl_or_b32 v{QAR(t)}, v{W1V+2*t+1}, 16, v{W1V+2*t}")
    e(f"v_mov_b32 v{QAR(6)}, v{W1V+12}"); e(f"v_mov_b32 v{QAR(7)}, 0")
    g.stamp("q")
    e(f"v_lshlrev_b32 v{WV}, 16, v{WV}"); e(f"v_and_b32 v1, 0x7fffffff, v{WV}")
    wavemax_exp(g, 1, S_E1)
    e(f"s_sub_u32 s{S_T}, 0, s{S_E1}"); e(f"v_ldexp_f32 v{WV}, v{WV}, s{S_T}")
    for i in range(16): e(f"v_mov_b32 v{AC+i}, 0")
    for t in range(7):
        e(f"s_add_u32 s{S_T}, s{S_J}, {4*t}")
        e(f"v_readlane_b32 s{S_T+1}, v{WV}, s{S_T}")
        for i in range(8):
            e(f"v_lshlrev_b32 v{TU+2*i}, 16, v{RW+8*t+i}"); e(f"v_and_b32 v{TU+2*i+1}, 0xffff0000, v{RW+8*t+i}")
        for i in range(16): e(f"v_fmac_f32 v{AC+i}, s{S_T+1}, v{TU+i}")
    PSTR = 4096
    e(f"s_mul_i32 s{S_T}, s{S_J}, {PSTR}"); e(f"s_add_u32 s{S_T}, s{S_T}, {D0}")
    e(f"v_lshl_add_u32 v1, v0, 5, s{S_T}")
    for ps in range(2):
        for hf in range(2): e(f"ds_write_b128 v1, {vr(AC+8*ps+4*hf,4)} offset:{2048*ps+16*hf}")
    g.stamp("q"); arrive(g, "WC"); lwait(g, "WC"); g.stamp("q")
    e(f"s_cmp_eq_u32 s{S_FR}, 28"); e("s_cbranch_scc1 L_lin")
    e(f"s_cmp_lt_u32 s{S_FR}, 26"); e("s_cbranch_scc1 L_q")
    e(f"s_cmp_lg_u32 s{S_FR}, 32"); e("s_cbranch_scc1 L_noq")
    g.lab("L_q")
    BQ, PT, DQ = HX + 16, HX + 32, HX + 96
    e("v_and_b32 v2, 31, v0"); e("v_lshrrev_b32 v3, 5, v0")
    e("v_mad_u32_u24 v1, v3, 26, v2"); e("v_lshlrev_b32 v1, 2, v1"); e(f"v_add_u32 v1, {D0}, v1")
    def readsum(stride):
        for pj in range(4):
            for s in range(13): e(f"ds_read_b32 v{PT+13*pj+s}, v1 offset:{PSTR*pj + stride*s}")
            if pj: e("s_waitcnt lgkmcnt(13)")
        e("s_waitcnt lgkmcnt(0)")
        for s in range(13):
            e(f"v_add_f32 v{PT+s}, v{PT+s}, v{PT+13+s}"); e(f"v_add_f32 v{PT+26+s}, v{PT+26+s}, v{PT+39+s}")
        for s in range(13): e(f"v_add_f32 v{BQ+s}, v{PT+s}, v{PT+26+s}")
    def max13():
        e(f"v_max3_f32 v1, |v{BQ}|, |v{BQ+1}|, |v{BQ+2}|")
        for s in range(3, 13, 2): e(f"v_max3_f32 v1, v1, |v{BQ+s}|, |v{BQ+s+1}|")
    readsum(208)
    e("v_cmp_gt_u32 vcc, 26, v2")
    for s in range(13): e(f"v_cndmask_b32 v{BQ+s}, 0, v{BQ+s}, vcc")
    max13()
    wavemax_exp(g, 1, S_E2)
    e(f"s_sub_u32 s{S_T}, 0, s{S_E2}")
    for s in range(13): e(f"v_ldexp_f32 v{BQ+s}, v{BQ+s}, s{S_T}")
    e(f"s_max_u32 s{S_E0}, s{S_E0}, 10"); e(f"s_sub_u32 s{S_E0}, s{S_E0}, 126")
    BH, BL = PT, PT + 8
    e(f"v_mov_b32 v{BQ+13}, 0"); e(f"v_mov_b32 v{BH+7}, 0"); e(f"v_mov_b32 v{BL+7}, 0")
    for t in range(7): e(f"v_cvt_pk_bf16_f32 v{BH+t}, v{BQ+2*t}, v{BQ+2*t+1}")
    for t in range(7):
        e(f"v_lshlrev_b32 v{PT+16+2*t}, 16, v{BH+t}"); e(f"v_and_b32 v{PT+17+2*t}, 0xffff0000, v{BH+t}")
    for t in range(14): e(f"v_sub_f32 v{BQ+t}, v{BQ+t}, v{PT+16+t}")
    for t in range(7): e(f"v_cvt_pk_bf16_f32 v{BL+t}, v{BQ+2*t}, v{BQ+2*t+1}")
    e(f"s_cmp_ge_u32 s{S_FR}, 13"); e(f"s_cselect_b32 s{S_T+1}, 13, 0"); e(f"s_cselect_b32 s{S_T+2}, 4, 0")
    e(f"s_sub_u32 s{S_T+1}, s{S_FR}, s{S_T+1}"); e(f"s_and_b32 s{S_T+3}, s{S_T+1}, 3"); e(f"s_add_u32 s{S_T+2}, s{S_T+2}, s{S_T+3}")
    e(f"s_lshr_b32 s{S_T+1}, s{S_T+1}, 2"); e(f"s_lshl_b32 s{S_T+1}, s{S_T+1}, 3"); e(f"s_add_u32 s{S_SB}, s{S_T+2}, s{S_T+1}")
    e(f"s_mov_b32 s{S_L}, 0")
    e(f"s_cmp_lg_u32 s{S_FR}, 32"); e("s_cbranch_scc1 L_q2")
    e("v_sub_u32 v1, v2, v3")
    for s in range(13):
        e(f"v_cmp_eq_u32 vcc, {2*s}, v1"); e(f"v_cndmask_b32 v{AQ+s}, 0, 1.0, vcc")
    e(f"v_mov_b32 v{AQ+13}, 0")
    for t in range(7): e(f"v_cvt_pk_bf16_f32 v{QAR(t)}, v{AQ+2*t}, v{AQ+2*t+1}")
    e(f"s_mov_b32 s{S_E0}, 0"); e(f"s_mov_b32 s{S_SB}, 31"); e(f"s_mov_b32 s{S_L}, 8")
    g.lab("L_q2")
    g.stamp("q")
    e("s_nop 1")
    first = True
    for bb in (BL, BH):
        for ks in range(2):
            e(f"v_mfma_f32_32x32x16_bf16 {vr(DQ,16)}, {vr(QAR(4*ks),4)}, {vr(bb+4*ks,4)}, {'0' if first else vr(DQ,16)}"); first = False
            e(f"v_mfma_f32_32x32x16_bf16 {vr(DQ,16)}, {vr(bb+4*ks,4)}, {vr(QAR(4*ks),4)}, {vr(DQ,16)}")
    e(f"v_max_f32 v1, v{QS}, v{QS+1}")
    e(f"s_sub_u32 s{S_T}, 137, s{S_E0}"); e(f"s_lshl_b32 s{S_T}, s{S_T}, 23"); e(f"v_mov_b32 v30, s{S_T}"); e("v_mul_f32 v31, 0.5, v30")
    for t in range(7):
        e(f"v_cmp_eq_f32 vcc, v1, v{QS+t}"); e(f"v_cndmask_b32 v{QS+t}, v31, v30, vcc")
    e(f"s_cmp_eq_u32 s{S_J}, 1"); e(f"s_cselect_b32 s{S_T}, 48, 0"); e(f"s_sub_u32 s{S_T}, {D1 - BUFA}, s{S_T}")
    for t in range(7): e(f"v_add_u32 v{QA+t}, s{S_T}, v{QA+t}")
    e(f"v_mul_u32_u24 v1, {S0STR}, v2"); e("v_lshl_add_u32 v1, v3, 9, v1"); e(f"s_lshl_b32 s{S_T}, s{S_J}, 4"); e(f"s_add_u32 s{S_T}, s{S_T}, {D1}")
    e(f"v_min_u32 v1, {22*S0STR+512}, v1")
    e(f"v_add_u32 v1, s{S_T}, v1")
    e(f"v_lshl_add_u32 v28, v3, 9, s{S_T}"); e("v_mov_b32 v29, 0")
    e(f"ds_write_b32 v28, v29 offset:{22*S0STR+12}")
    pack_round(g, DQ, 0, False)
    g.stamp("q")
    e("s_waitcnt lgkmcnt(0)")
    e(f"ds_read_b128 {vr(AQ,4)}, v1")
    e("v_lshlrev_b32 v1, 10, v2"); e("v_lshl_add_u32 v1, v3, 9, v1"); e("v_cmp_lt_u32 vcc, 22, v2"); e(f"v_mov_b32 v28, {OOB}"); e("v_cndmask_b32 v1, v1, v28, vcc")
    e(f"s_lshl_b32 s{S_T}, s{S_SB}, 4"); e(f"s_add_u32 s{S_T}, s{S_T}, {IMG['Q4']}")
    e("s_waitcnt lgkmcnt(0)")
    e(f"buffer_store_dwordx4 {vr(AQ,4)}, v1, {sr(S_WS)}, s{S_T} offen sc1")
    e(f"s_add_u32 s{S_E0}, s{S_E0}, s{S_E2}"); e(f"s_add_u32 s{S_E0}, s{S_E0}, s{S_E1}"); e(f"s_sub_u32 s{S_E0}, s{S_E0}, 10")
    e(f"s_and_b32 s{S_T}, s{S_FR}, 31"); e(f"s_cmp_lg_u32 s{S_T}, 0"); e("s_cbranch_scc1 L_noq")
    g.lab("L_qh")
    e(f"v_mov_b32 v1, s{S_E0}"); e(f"s_add_u32 s{S_T}, s{S_L}, {IMG['Q4'] + 23*1024}")
    e(f"buffer_store_dword v1, v{V_L0}, {sr(S_WS)}, s{S_T} offen sc1")
    e("s_branch L_noq")
    g.lab("L_lin")
    e("v_lshrrev_b32 v3, 5, v0"); e(f"v_min_u32 v2, 25, v{V_HROW}")
    e("v_mad_u32_u24 v1, v2, 26, v3"); e("v_lshlrev_b32 v1, 2, v1"); e(f"v_add_u32 v1, {D0}, v1")
    readsum(8)
    e(f"v_cmp_gt_u32 vcc, 26, v{V_HROW}")
    for s in range(13): e(f"v_cndmask_b32 v{BQ+s}, 0, v{BQ+s}, vcc")
    max13()
    wavemax_exp(g, 1, S_E2)
    e(f"s_sub_u32 s{S_T}, 15, s{S_E2}")
    for s in range(13): e(f"v_ldexp_f32 v{BQ+s}, v{BQ+s}, s{S_T}")
    e(f"v_mov_b32 v{BQ+13}, 0"); e(f"v_mov_b32 v{AQ+7}, 0")
    for t in range(7): e(f"v_cvt_pk_f16_f32 v{AQ+t}, v{BQ+2*t}, v{BQ+2*t+1}")
    e("v_lshlrev_b32 v1, 4, v0"); e(f"s_mov_b32 s{S_T}, {IMG['Q4'] + 24*1024}")
    for s in range(2): e(f"buffer_store_dwordx4 {vr(AQ+4*s,4)}, v1, {sr(S_WS)}, s{S_T} offen offset:{1024*s} sc1")
    e(f"s_add_u32 s{S_E0}, s{S_E2}, s{S_E1}"); e(f"s_sub_u32 s{S_E0}, s{S_E0}, 15"); e(f"s_mov_b32 s{S_L}, 4")
    e("s_branch L_qh")
    g.lab("L_noq")
    g.stamp("q")
    e(f"s_mov_b32 s{S_T+2}, {WS_CNT + C_Q}")
    gsignal(g, "QST", f"s{S_T+2}")
    g.stamp("q")
    lwait(g, "QST")
    g.lab("L_idle")
    g.stamp()
    lwait(g, "AFREE")
    poll1(g, [(S_DBG, "0", 128, 11)], "F2")
    dma_img(g, "L2", 44, BUFA)
    e("s_waitcnt vmcnt(0)"); arrive(g, "L2OK")
    g.stamp()
    lwait(g, "BFREE")
    poll1(g, [(S_WS, f"s{S_CX}", C_Q, 9), (S_WS, f"s{S_CX}", C_L[3], 11), CHK_X()], "FQ")
    g.stamp()
    dma_img(g, "Q4", 28, QB)
    dma_img(g, "L3", 44, BUFB)
    e("s_waitcnt vmcnt(0)"); arrive(g, "QOK", "L3OK")
    g.stamp()
    g.flush_stamps(4, 5)
    e("s_endpgm")

def build(stamps=False):
    g = G(stamps)
    prologue(g); n0 = g.nst
    cin(g)
    g.h0 = len(g.L); g.lab("L_helper"); g.nst = n0
    helper_common(g); n1 = g.nst
    g.e(f"s_cmp_ge_u32 s{S_R}, {NR}"); g.e("s_cbranch_scc1 L_helper_n")
    helper_dnn(g)
    g.lab("L_helper_n"); g.nst = n1
    helper_prod(g)
    prod_early1(g); prod_early2(g)
    g.L += g.tail
    i = g.L.index("L_cin2:"); g.L[i:i] = g.hfirst
    g.lab("L_end"); g.e("s_endpgm")
    body, nops = fix_hazards(g.L)
    ref = open("standalone__deep_cross_xdeepfm__recsys.s.ref").read().split("\n")
    hdr = [l for l in ref if l.startswith(";") and "@launch" not in l and "Override" not in l and "grid=ceil" not in l]
    txt = "\n".join(hdr) + f"\n; @launch grid=(256,1,1) block=(512,1,1) lds={LDS_TOTAL}\n"
    txt += f'.amdgcn_target "amdgcn-amd-amdhsa--gfx950"\n.text\n.globl {KN}\n.p2align 8\n.type {KN},@function\n{KN}:\n'
    txt += "\n".join(body) + "\n"
    txt += f""".section .rodata,"a"
.p2align 6
.amdhsa_kernel {KN}
  .amdhsa_next_free_vgpr 256
  .amdhsa_next_free_sgpr 102
  .amdhsa_accum_offset 256
  .amdhsa_group_segment_fixed_size 0
  .amdhsa_kernarg_size 88
  .amdhsa_user_sgpr_count 2
  .amdhsa_user_sgpr_kernarg_segment_ptr 1
  .amdhsa_system_sgpr_workgroup_id_x 1
.end_amdhsa_kernel
"""
    return txt, nops
if __name__ == "__main__":
    for a in sys.argv[2:]:
        if "=" in a:
            k, v = a.split("="); setattr(PAR, k, eval(v))
    txt, nops = build(stamps="stamps" in sys.argv)
    open(sys.argv[1], "w").write(txt)
    print("nops inserted", nops, "lines", txt.count("\n"))
```

```python
import sys, struct
from asmlib import fix_hazards
KN = "standalone__deep_cross_xdeepfm__recsys_kernel"
def f2u(f): return struct.unpack('<I', struct.pack('<f', f))[0]
OOB = 0x40000000
SPIN = 200000
LB = 35152
IMG = {}
off = 0
for name, n in (("L2", 44), ("L3", 44), ("Q4", 28)):
    IMG[name] = off; off += n * 1024
NR = 15
WS_PART = off
WS_CNT = WS_PART + 16 * NR * 1024
WS_STAMP = 0x80000
WS_X = WS_STAMP + 256 * 8 * 64
C_L = {3: 512}; C_Q = 516; C_XR = 256; C_RDY = 0
BUFA, BUFB = 0, 45056
D0, D1 = 90112, 118784
QB = D0 + 10 * 4096
MISC = QB + 28672
LDS_TOTAL = MISC + 2560
M_S0, M_L1, M_SC, M_EW1, M_CNT = MISC, MISC + 64, MISC + 128, MISC + 192, MISC + 256
CNT = {n: M_CNT + 4 * i for i, n in enumerate(["XST", "L1M", "L1OK", "AFREE", "L2OK", "BFREE", "L3OK", "QOK", "W01", "C0", "C1", "C2", "SCM", "GST", "WC", "QST", "FX", "F2", "F3", "FQ", "S0OK", "S0M", "RAW", "RB"])}
CNT["AFREE"] = M_CNT + 4 * 28; CNT["BFREE"] = M_CNT + 4 * 29; CNT["RB"] = M_CNT + 4 * 30
S0STR = 1040
XSTR = 1680
QPAIRS = [(p, q) for p in range(13) for q in range(p, 13)]
S_IDX, S_TAB, S_WS, S_W1, S_B1, S_W2, S_OUT, S_DBG, S_BO, S_WC, S_WO = 4, 8, 12, 16, 20, 24, 28, 32, 36, 40, 44
S_G, S_R, S_WAVE, S_J = 70, 71, 83, 3
S_HDR = 48
S_EX = 60
S_K = 64
S_K1 = 4
S_KC = 76
S_T = 72
S_MASK = 80
S_C1 = 81
S_SB = 82
S_ST = 84
class P: pass
PAR = P()
PAR.chunks = [7, 7, 6, 6]
PAR.gsplit = 0
PAR.gsplit2 = 3
PAR.lnpos = 28
PAR.pload = 17
PAR.la = 12
PAR.urate = 5
PAR.xst = 2
PAR.l2pos = -1
PAR.nslot = 6
PAR.st = 'ad'
PAR.ld = 'sc1'
PAR.inv = 0
PAR.drop = ('Q4', 6)
PAR.cp2 = 1
PAR.sp = 1
PAR.barpos = 2
PAR.nxl = 4
PAR.noa = 0
PAR.il = 2
PAR.fst = (0, 3, 6, 10, 13, 17, 22)
PAR.xi = 3
PAR.wbn = 3
PAR.wpf3 = 0
PAR.wa = 10
PAR.l3n = 2
PAR.wbpos = 3
PAR.wmod = ''
PAR.w2 = 1
PAR.l1rate = 16
PAR.sclq = 0
PAR.x0 = 0
PAR.qpos = 13
PAR.m16 = 0
PAR.encsel = None
PAR.gmin = 0
PAR.qaearly = 0
PAR.gmod = 'nt'
PAR.imod = 'nt'
PAR.pkpack = 0
PAR.w0lin = 0
PAR.l3rate = 18
PAR.qarr = 3
PAR.gearly = 11
PAR.ngelu = 16
PAR.nmf = 14
PAR.npk = 4
PAR.lslp = 4
PAR.zpad = 1
PAR.skew = 1
PAR.cstr = 4352
PAR.l3late = 1
PAR.xp = 3
PAR.wearly = 0
PAR.wpf2 = 0
PAR.ghi = 1
PAR.qchk = 8
PAR.cp = 1
PAR.enc = None
PAR.rate = 20
PAR.qrate = 24
PAR.clk = 0
PAR.hp = 0
PAR.nost = 0
PAR.wpf = 1
PAR.rot = 2
PAR.pf = 4
PAR.qlate = 0
PAR.slp = 8
PAR.de = 2
PAR.touch = 0
PAR.dbg = None
class G:
    def __init__(self, stamps=False):
        self.L = []; self.stamps = stamps; self.nst = 0; self.nl = 0; self.vmq = []; self.tail = []
    def e(self, s): self.L.append("    " + s)
    def lab(self, s): self.L.append(s + ":")
    def vm(self, s, tag): self.e(s); self.vmq.append(tag)
    def vmwait(self, *tags):
        idx = max(i for i, t in enumerate(self.vmq) if t in tags)
        n = sum(1 for t in self.vmq[idx + 1:] if not t.startswith("f"))
        self.e(f"s_waitcnt vmcnt({min(n, 63)})")
    def newlab(self, s): self.nl += 1; return f"L_{s}_{self.nl}"
    def stamp(self, name=None):
        if self.stamps and (name or "d") in PAR.st:
            assert self.nst < 8
            self.e(f"{'s_memtime' if PAR.clk else 's_memrealtime'} s[{S_ST+2*self.nst}:{S_ST+2*self.nst+1}]"); self.nst += 1
    def flush_stamps(self, vt, va):
        if not self.stamps: return
        self.e("s_waitcnt lgkmcnt(0)")
        self.e(f"s_lshl_b32 s{S_T}, s2, 3"); self.e(f"s_add_u32 s{S_T}, s{S_T}, s{S_WAVE}"); self.e(f"s_lshl_b32 s{S_T}, s{S_T}, 6")
        self.e(f"s_add_u32 s{S_T}, s{S_T}, {WS_STAMP}")
        self.e(f"v_mov_b32 v{va}, 0")
        if PAR.dbg is not None:
            lb = self.newlab("nd")
            self.e(f"s_cmp_lg_u32 s{S_T}, {WS_STAMP + PAR.dbg*64}"); self.e(f"s_cbranch_scc1 {lb}")
            for i in range(self.nst):
                self.e(f"s_sub_u32 s{S_T+1}, s{S_ST+2*i}, s{S_ST}")
                self.e(f"v_mov_b32 v{vt}, s{S_T+1}")
                self.e(f"buffer_store_dword v{vt}, v{va}, s[{S_DBG}:{S_DBG+3}], 0 offen offset:{64+4*i}")
            self.lab(lb)
        for i in range(self.nst):
            self.e(f"v_mov_b32 v{vt}, s{S_ST+2*i}")
            self.e(f"buffer_store_dword v{vt}, v{va}, s[{S_WS}:{S_WS+3}], s{S_T} offen offset:{4*i}")
        self.nst = 0
def vr(a, n): return f"v[{a}:{a+n-1}]"
def sr(a, n=4): return f"s[{a}:{a+n-1}]"
DPPALL = "row_mask:0xf bank_mask:0xf"

def prologue(g):
    e = g.e
    e("s_cmp_ge_u32 s2, 256")
    e("s_cbranch_scc1 L_end")
    g.stamp("a")
    e("s_load_dwordx16 s[48:63], s[0:1], 0")
    e("s_load_dwordx4 s[64:67], s[0:1], 64")
    e("s_load_dwordx2 s[68:69], s[0:1], 80")
    if PAR.pf:
        e(f"s_getpc_b64 s[{S_KC}:{S_KC+1}]")
        g.lab("L_pfbase")
        e(f"s_mov_b32 s{S_KC+2}, L_end - L_pfbase"); e(f"s_mov_b32 s{S_KC+3}, 0x00020000")
        e(f"s_lshr_b32 s{S_T}, s2, 3"); e(f"s_lshl_b32 s{S_T}, s{S_T}, 7")
        e("v_xor_b32 v1, 0x1c0, v0"); e("v_lshlrev_b32 v1, 12, v1")
        e(f"buffer_load_dword v255, v1, {sr(S_KC)}, s{S_T} offen")
    e("v_lshrrev_b32 v1, 6, v0")
    e("v_and_b32 v0, 63, v0")
    e(f"v_readfirstlane_b32 s{S_WAVE}, v1")
    e(f"s_and_b32 s{S_T}, s2, 7")
    e(f"s_lshr_b32 s{S_T+1}, s2, 3")
    e(f"s_lshr_b32 s{S_G}, s{S_T+1}, 4")
    e(f"s_lshl_b32 s{S_T}, s{S_T}, 1")
    e(f"s_add_u32 s{S_G}, s{S_G}, s{S_T}")
    e(f"s_and_b32 s{S_R}, s{S_T+1}, 15")
    e(f"s_mov_b32 s{S_MASK}, 0x7fff7fff")
    e("v_and_b32 v25, 31, v0"); e("v_lshlrev_b32 v25, 2, v25"); e(f"v_add_u32 v25, {M_CNT}, v25"); e("v_mov_b32 v2, 0")
    e("ds_write_b32 v25, v2")
    if PAR.barpos == 2: e("s_waitcnt lgkmcnt(0)"); e("s_barrier")
    e(f"s_cmp_ge_u32 s{S_WAVE}, 4")
    e("s_cbranch_scc1 L_helper")

SRDS = {S_IDX: (48, 4096*104), S_TAB: (50, 6400000), S_WC: (52, LB), S_WO: (54, 312), S_W1: (56, 832*1664), S_B1: (58, 1664), S_W2: (60, 1664),
        S_BO: (62, 2), S_OUT: (64, 8192), S_DBG: (66, 256), S_WS: (68, 1 << 28)}
def srd_const(g, lst):
    for srd in lst: g.e(f"s_mov_b32 s{srd+2}, {SRDS[srd][1]}"); g.e(f"s_mov_b32 s{srd+3}, 0x00020000")
def srd_base(g, lst):
    for srd in lst: g.e(f"s_mov_b64 s[{srd}:{srd+1}], s[{SRDS[srd][0]}:{SRDS[srd][0]+1}]")
ACC, ACC2, XR, UR, BR, AR, SC, LG, TM = 4, 68, 132, 188, 216, 228, 244, 248, 252
def X(k, p): return XR + 14 * k + p
def EV(k): return XR + 14 * k + 13
def U(k, t): return UR + 7 * k + t
def cin(g):
    e = g.e
    e("s_setprio 3")
    e(f"s_lshl_b32 s{S_T}, s{S_G}, 8"); e(f"s_lshl_b32 s{S_T+1}, s{S_R}, 4"); e(f"s_add_u32 s{S_T}, s{S_T}, s{S_T+1}")
    e(f"s_lshl_b32 s{S_T+1}, s{S_WAVE}, 2"); e(f"s_add_u32 s{S_SB}, s{S_T}, s{S_T+1}")
    e("v_lshrrev_b32 v1, 4, v0")
    e("v_bfe_u32 v2, v0, 2, 2")
    e("v_and_b32 v3, 3, v0")
    e("v_mul_u32_u24 v4, 104, v1")
    e("v_mad_u32_u24 v4, v2, 28, v4")
    I = 8
    CS = [S_IDX, S_WC, S_TAB, S_WS, S_BO, S_OUT] + ([S_DBG] if PAR.dbg is not None or PAR.gmin else [])
    srd_const(g, CS[:1])
    e(f"s_mul_i32 s{S_T}, s{S_SB}, 104")
    g.stamp("i")
    e("s_waitcnt lgkmcnt(0)")
    g.stamp("i")
    srd_base(g, CS[:1])
    e(f"buffer_load_dwordx4 {vr(I,4)}, v4, {sr(S_IDX)}, s{S_T} offen {PAR.imod}")
    e(f"buffer_load_dwordx3 {vr(I+4,3)}, v4, {sr(S_IDX)}, s{S_T} offen offset:16 {PAR.imod}")
    e(f"s_setprio {PAR.sp}")
    e("s_branch L_cin2")
    g.lab("L_cin2")
    srd_base(g, CS[1:])
    srd_const(g, CS[1:])
    e(f"s_mov_b32 s{S_WC+2}, {2*LB}"); e(f"s_mov_b32 s{S_J}, s{S_WAVE}")
    e("v_lshlrev_b32 v5, 4, v3")
    e("v_cmp_eq_u32 vcc, 3, v2")
    e(f"v_mov_b32 v6, {OOB}")
    e("v_cndmask_b32 v6, 0, v6, vcc")
    e("v_add_u32 v6, v6, v5")
    e("v_lshlrev_b32 v26, 4, v0"); e("v_cmp_lt_u32 vcc, 42, v0"); e(f"v_mov_b32 v27, {OOB}"); e("v_cndmask_b32 v26, v26, v27, vcc")
    e("v_lshlrev_b32 v29, 4, v0"); e(f"v_add_u32 v29, {BUFA + 28*1024}, v29")
    e(f"s_lshl_b32 s{S_T}, s{S_J}, 4"); e(f"s_add_u32 s{S_T}, s{S_T}, {BUFB}")
    e(f"v_mul_u32_u24 v28, {S0STR}, v0"); e(f"v_add_u32 v28, s{S_T}, v28"); e("v_cndmask_b32 v28, v28, v29, vcc")
    e(f"s_mul_i32 s{S_T+1}, s{S_WAVE}, {4*XSTR}"); e(f"s_add_u32 s{S_T+1}, s{S_T+1}, {D0}")
    e(f"v_mul_u32_u24 v7, {XSTR}, v1")
    e("v_mad_u32_u24 v16, v2, 7, 0")
    e("v_lshl_add_u32 v7, v16, 6, v7")
    e(f"v_add3_u32 v7, v7, v5, s{S_T+1}")
    e("v_cmp_eq_u32 vcc, 3, v2")
    e(f"v_lshl_add_u32 v18, v0, 4, 0"); e(f"v_add_u32 v18, {D0 + 16*XSTR + 256 - 320}, v18"); e("v_cndmask_b32 v18, v7, v18, vcc")
    e("v_lshrrev_b32 v16, 1, v1")
    e("v_xor_b32 v16, v16, v2")
    e("v_lshlrev_b32 v16, 6, v16")
    e("v_and_b32 v17, 1, v1")
    e("v_lshl_add_u32 v16, v17, 5, v16")
    e("v_lshl_add_u32 v16, v3, 3, v16")
    e(f"v_add_u32 v16, s{S_T+1}, v16")
    for k in range(4): e(f"v_mov_b32 v{LG+k}, 0")
    PA, PS, DR = 32, 40, 184
    if PAR.zpad:
        for i in range(4): e(f"v_mov_b32 v{PS+i}, 0")
        e(f"s_and_b32 s{S_T}, s{S_J}, 1"); e(f"s_mul_i32 s{S_T}, s{S_T}, 48"); e(f"s_lshr_b32 s{S_T+1}, s{S_J}, 1"); e(f"s_mul_i32 s{S_T+1}, s{S_T+1}, 480")
        e(f"s_add_u32 s{S_T}, s{S_T}, s{S_T+1}"); e(f"v_add_u32 v30, s{S_T}, v28")
        e(f"v_subrev_u32 v31, {BUFB - BUFA}, v30"); e("v_cmp_lt_u32 vcc, 22, v0"); e("v_cndmask_b32 v31, v31, v29, vcc")
        for i in range(3):
            e(f"ds_write_b128 v30, {vr(PS,4)} offset:{25*16 + 16*i}"); e(f"ds_write_b128 v31, {vr(PS,4)} offset:{25*16 + 16*i}")
    unpack_mat(g, PA, 20)
    e("s_setprio 1")
    L1R = 132
    if not PAR.barpos: e("s_barrier")
    g.stamp("i")
    e(f"s_mul_i32 s{S_T}, s{S_J}, 1352")
    for i in range(13):
        if i < 12:
            t = i >> 1
            if i & 1 == 0: e(f"s_add_u32 s{S_T+1}, s{S_T}, {LB + (13*(t&1) + 4*(t>>1))*1352}")
            e(f"buffer_load_dwordx4 {vr(L1R+4*i,4)}, v26, {sr(S_WC)}, s{S_T+1} offen offset:{676*(i&1)}")
        else:
            e(f"s_lshr_b32 s{S_T+1}, s{S_J}, 1"); e(f"s_mul_i32 s{S_T+1}, s{S_T+1}, {13*1352}"); e(f"s_and_b32 s{S_T+2}, s{S_J}, 1"); e(f"s_mul_i32 s{S_T+2}, s{S_T+2}, 676")
            e(f"s_add_u32 s{S_T+1}, s{S_T+1}, s{S_T+2}"); e(f"s_add_u32 s{S_T+1}, s{S_T+1}, {LB + 12*1352}")
            e(f"buffer_load_dwordx4 {vr(L1R+4*i,4)}, v26, {sr(S_WC)}, s{S_T+1} offen")
    e("s_setprio 3")
    g.stamp("i")
    e("s_waitcnt vmcnt(13)")
    g.stamp("i")
    GR, MR = 68, 96
    for t in range(7):
        e(f"v_lshl_add_u32 v{I+t}, v{I+t}, 6, v{5 if t < 5 else 6}")
        e(f"buffer_load_dwordx4 {vr(GR+4*t,4)}, v{I+t}, {sr(S_TAB)}, 0 offen {PAR.gmod}")
    g.stamp(); g.stamp("i")
    e(f"s_setprio {PAR.cp}")
    if PAR.barpos == 1: e("s_barrier")
    def carrive(c):
        e("v_mov_b32 v2, 1"); e("s_mov_b64 exec, 1"); e(f"ds_add_u32 v25, v2 offset:{CNT[c]-M_CNT}"); e("s_mov_b64 exec, -1")
    for i in range(13):
        e(f"s_waitcnt vmcnt({7 + 12 - i})")
        unpack(g, DR, PA, L1R, i)
        if i & 1 and i >= 3: tmax(g, DR, (i >> 1) - 1, 16, i == 3)
    e(f"s_and_b32 s{S_T}, s{S_J}, 1"); e(f"s_lshl_b32 s{S_T}, s{S_T}, 4")
    tmax(g, DR, 5, 16, False)
    for r in range(4): e(f"v_alignbit_b32 v{L1R+48+r}, v{L1R+48+r}, v{L1R+48+r}, s{S_T}")
    tmax(g, DR, 6, 8, False)
    put_max(g, M_L1)
    carrive("L1M")
    for i in range(8): e(f"v_and_b32 v{PS+i}, 0x800080, v{PA+i}")
    g.stamp("s")
    e(f"s_setprio {PAR.cp2}")
    lwait(g, "L1M", 4, 25, 2)
    get_max(g, M_L1)
    e(f"v_readfirstlane_b32 s{S_T}, v1")
    e(f"s_lshr_b32 s{S_T}, s{S_T}, 23"); e(f"s_min_u32 s{S_T}, s{S_T}, 249"); e(f"s_sub_u32 s{S_HDR+2}, s{S_T}, 124")
    e(f"s_sub_u32 s{S_T}, {127+124}, s{S_T}")
    for i in range(8): e(f"v_mul_u32_u24 v{PS+i}, s{S_T}, v{PS+i}")
    def l1out(i):
        d = DR + 16 * ((i >> 1) & 3) + 8 * (i & 1)
        for r in range(4):
            lo, hi = (d + 2 * r + 1, d + 2 * r) if (i & 1) else (d + 2 * r, d + 2 * r + 1)
            e(f"v_cvt_pk_f16_f32 v{L1R+4*i+r}, v{lo}, v{hi}")
        if i < 12:
            t = i >> 1; o = 16 * (8 * (t >> 1) + 4 * (t & 1)) + 512 * (i & 1)
        else:
            e(f"s_lshr_b32 s{S_T}, s{S_J}, 1"); e(f"s_lshl_b32 s{S_T}, s{S_T}, 5"); e(f"s_and_b32 s{S_T+1}, s{S_J}, 1"); e(f"s_mul_i32 s{S_T+1}, s{S_T+1}, 496")
            e(f"s_add_u32 s{S_T}, s{S_T}, s{S_T+1}"); e(f"v_add_u32 v28, s{S_T}, v28"); o = 24 * 16
        e(f"ds_write_b128 v28, {vr(L1R+4*i,4)} offset:{o}")
    for i in range(13):
        unpack(g, DR, PS, L1R, i)
        if i >= 4: l1out(i - 4)
    for i in range(9, 13): l1out(i)
    g.stamp("s")
    e(f"ds_read_b32 v3, v25 offset:{CNT['S0OK']-M_CNT}")
    e("v_lshlrev_b32 v1, 4, v0")
    for i in range(2): e(f"ds_read_b128 {vr(AR+4*i,4)}, v1 offset:{BUFA + i*S0STR}")
    e("s_waitcnt lgkmcnt(2)")
    DR = 132
    e("v_mov_b32 v2, 1")
    e(f"s_setprio {PAR.xp}")
    for t in range(7):
        e(f"s_waitcnt vmcnt({6 - t})")
        unpack(g, DR, PA, GR, t)
        e(f"ds_write_b128 v{7 if t < 5 else 18}, {vr(GR+4*t,4)} offset:{64*t}")
        if t in (3, 5): tmax(g, DR, (t >> 1) - 1, 16, t == 3, 20)
    e("s_mov_b64 exec, 1"); e(f"ds_add_u32 v25, v2 offset:{CNT['RAW']-M_CNT}"); e("s_mov_b64 exec, -1")
    g.stamp(); g.stamp("s")
    tmax(g, DR, 2, 16, False, 20); tmax(g, DR, 3, 8, False, 20)
    for sh in (8, 4, 2, 1):
        e(f"v_max_u32_dpp v20, v20, v20 row_ror:{sh} {DPPALL}")
    e("v_lshrrev_b32 v20, 23, v20"); e("v_max_u32 v20, 4, v20")
    e(f"v_sub_u32 v22, {127+130}, v20"); e("v_lshlrev_b32 v22, 23, v22")
    for t in range(7):
        d = DR + 8 * t
        for i in range(8): e(f"v_mul_f32 v{d+i}, v{d+i}, v22")
        for i in range(4): e(f"v_cvt_pk_f16_f32 v{MR+4*t+i}, v{d+2*i}, v{d+2*i+1}")
        e(f"ds_write_b128 v{7 if t < 5 else 18}, {vr(MR+4*t,4)} offset:{D1 - D0 + 64*t}")
    for k in range(4):
        for t in range(7):
            e(f"ds_read_b64_tr_b16 {vr(X(k,2*t),2)}, v16 offset:{D1 - D0 + k*XSTR+t*256}")
    for k in range(4): e(f"v_readlane_b32 s{S_EX+k}, v20, {16*k}")
    HW = lambda l: S_HDR + 2 * l
    HD = lambda l: S_HDR + 2 * l + 1
    HQ, HL = S_HDR + 8, S_HDR + 9
    e("s_setprio 1")
    e(f"v_readfirstlane_b32 s{S_T}, v3"); e(f"s_cmp_ge_u32 s{S_T}, 4"); e("s_cbranch_scc1 L_s0ok")
    lwait(g, "S0OK", 4, 25, 2)
    for i in range(2): e(f"ds_read_b128 {vr(AR+4*i,4)}, v1 offset:{BUFA + i*S0STR}")
    g.lab("L_s0ok")
    e("s_waitcnt lgkmcnt(14)")
    g.stamp(); g.stamp("s")

    ready = set()
    def quad_prod(k, rho):
        p, q = QPAIRS[rho]
        return lambda d: f"v_pk_mul_f16 v{d}, v{X(k,p)}, v{X(k,q)} op_sel_hi:[0,1]"
    def gen_prod(l):
        def f(k, rho):
            r, p = divmod(rho, 13)
            def mk(d):
                if r == 13: return f"v_mov_b32 v{d}, v{U(k,p)}" if l == 2 else f"v_mov_b32 v{d}, 0"
                assert ('u', l, k, r) in ready, (l, k, r)
                if r & 1: return f"v_pk_mul_f16 v{d}, v{U(k,r>>1)}, v{X(k,p)} op_sel:[1,0] op_sel_hi:[1,1]"
                return f"v_pk_mul_f16 v{d}, v{U(k,r>>1)}, v{X(k,p)} op_sel_hi:[0,1]"
            return mk
        return f
    def lin_prod(k, t):
        b = 2 * t + 1 if 2 * t + 1 < 13 else 2 * t
        return lambda d: f"v_pack_b32_f16 v{d}, v{X(k,2*t)}, v{X(k,b)}"
    S_CL = S_C1
    e(f"s_mov_b32 s{S_CL}, {115 << 23}"); e(f"s_mov_b32 s{S_MASK}, 145")
    def cvt1(acc, k, t): return f"v_cvt_pk_f16_f32 v{U(k,t)}, v{acc+16*k+2*t}, " + (f"v{acc+16*k+2*t+1}" if t < 6 else "0")
    def scl1(l, k, t): return [(f"v_pk_mul_f16 v{U(k,t)}, v{U(k,t)}, v{SC+k} op_sel_hi:[1,0]", ('u', l + 1, k, 2 * t)), (None, ('u', l + 1, k, 2 * t + 1))]
    def head(acc, l, k):
        a = acc + 16 * k; ef = EV(k) if l == 0 else TM + k
        return [f"v_max3_f32 v{SC+k}, |v{a}|, |v{a+1}|, |v{a+2}|", f"v_max3_f32 v{TM+k}, |v{a+3}|, |v{a+4}|, |v{a+5}|",
                f"v_max3_f32 v{SC+k}, v{SC+k}, |v{a+6}|, |v{a+7}|", f"v_max3_f32 v{TM+k}, v{TM+k}, |v{a+8}|, |v{a+9}|",
                f"v_max3_f32 v{SC+k}, v{SC+k}, |v{a+10}|, |v{a+11}|", f"v_max3_f32 v{SC+k}, v{SC+k}, v{TM+k}, |v{a+12}|",
                f"v_mov_b32 v{TM+k}, v{SC+k}", cvt1(acc, k, 0), cvt1(acc, k, 1),
                f"v_permlane32_swap_b32 v{SC+k}, v{TM+k}", f"v_max3_f32 v{SC+k}, v{SC+k}, v{TM+k}, s{S_CL}",
                f"v_lshrrev_b32 v{ef}, 23, v{SC+k}", f"v_sub_u32 v{SC+k}, s{S_MASK}, v{ef}", f"v_lshlrev_b32 v{SC+k}, 10, v{SC+k}"] + scl1(l, k, 0)
    def rest(acc, l):
        o = []
        for k in range(4): o += scl1(l, k, 1)
        for t in range(2, 7):
            o += [cvt1(acc, k, t) for k in range(4)]
            for k in range(4): o += scl1(l, k, t)
        return o
    def evup(l):
        return [(None, 'x', ('k', l))] + [f"v_add3_u32 v{EV(k)}, v{EV(k)}, v{TM+k}, s{S_K+k}" for k in range(4)] + [(None, ('ev', l))]
    state = dict(base=0, n=0)
    lq = []
    landed = set()
    def emit(x):
        if callable(x): return x() or 0
        if isinstance(x, tuple):
            if len(x) == 3: assert x[2] in ready, x
            ready.add(x[1]); x = x[0]
        if not x: return 0
        e(x)
        if x.startswith('ds_'): lq.append(['side', state['n']])
        return 2 if 'permlane' in x else 1
    GATE = 'GATE'
    import re
    def nbytes(x):
        if callable(x): return 0 if x.__name__ == '<lambda>' else 8
        if isinstance(x, tuple): x = x[0]
        if not x or x == GATE: return 0
        op = x.split()[0]
        lit = any(abs(int(t, 0)) > 64 for t in re.findall(r'(?<![\w\[:])(-?(?:0x[0-9a-f]+|\d+))(?![\w\]:.])', x.split(None, 1)[1]))
        short = op.startswith('s_') or op in ('v_mov_b32', 'v_mul_f32', 'v_add_f32', 'v_add_u32', 'v_sub_u32', 'v_lshrrev_b32', 'v_lshlrev_b32', 'v_and_b32',
                                              'v_permlane32_swap_b32', 'v_readfirstlane_b32', 'v_cmp_lt_u32', 'v_cndmask_b32', 'v_max_f32', 'v_fmac_f32')
        return 4 if short and not lit else 8
    jobs = []; frags = []; pos = {}
    def phase(name, nprod, prod, acc, base, stride=1024, ok=None, needs=None, skew0=False, skew1=False, extra=None):
        ns = (nprod + 3) // 4
        fr = [dict(lds=base + stride * s, ok=ok if s == 0 else None) for s in range(ns)]
        frags.extend(fr)
        order = [(s, k) for s in range(ns) for k in range(4)]
        if skew0: order[:8] = [(s, k) for k in range(4) for s in (0, 1)]
        if skew1: order[-8:] = [(s, k) for k in range(4) for s in (ns - 2, ns - 1)]
        for i, (s, k) in enumerate(order):
            if i % 4 == 0: pos[(name, i // 4)] = len(jobs)
            jobs.append(dict(acc=acc + 16 * k, fr=fr[s], zero=(s == 0), needs=needs if s == 0 else None, last=(name, k) if s == ns - 1 else None,
                             prods=[prod(k, rho) for rho in range(4 * s, min(4 * s + 4, nprod))], req=('u', int(name[1]), k, 0) if name[0] == 'L' and s == 0 else None))
            if extra and i % 4 == 3 and i // 4 in extra: jobs.extend(extra[i // 4])
    LT, LA = UR, UR + 16
    LP = [3, 8, 13, 18]
    LN = {LP[k]: [dict(acc=LT, a=LA + 4 * i, zero=(i == 0), needs=('lin', k - 1), last=('LN', k) if i else None, req=None,
                       prods=[lin_prod(k, t) for t in range(4 * i, min(4 * i + 4, 7))]) for i in range(2)] for k in range(4)}
    sk = PAR.skew
    phase("S0", 91, quad_prod, ACC, BUFA, stride=S0STR, skew1=sk)
    phase("L1", 172, gen_prod(1), ACC2, BUFB, stride=S0STR, ok="RAW", skew0=sk, skew1=sk)
    phase("L2", 176, gen_prod(2), ACC, BUFA, ok="L2OK", needs=('free', 0), skew0=sk, skew1=sk)
    phase("L3", 169, gen_prod(3), ACC2, BUFB, ok="L3OK", needs=('free', 1), skew0=sk)
    phase("Q4", 91, quad_prod, ACC, QB, ok="QOK", needs=('free', 2), skew1=sk, extra=LN)
    for i, f in enumerate(frags): f['id'] = i; f['a'] = AR + 4 * (i % 4)
    for n, j in enumerate(jobs):
        if 'fr' in j: j['fr'].setdefault('first', n); j['fr']['lastj'] = n
    def hdr(addr, sa, sb=None):
        return [f"v_mov_b32 v3, {addr}", "ds_read_b64 v[2:3], v3", GATE, f"v_readfirstlane_b32 s{sa}, v2"] + ([f"v_readfirstlane_b32 s{sb}, v3"] if sb else [])
    def arrive(c, after=None):
        def f():
            if after is not None: assert 'issued' in after
            e(f"v_add_u32 v3, {(CNT[c] - state['base']) & 0xffffffff}, v1"); return 1
        return ["v_mov_b32 v2, 1", f, "ds_add_u32 v3, v2"]
    def check(c):
        def f():
            slow = g.newlab("cs"); back = g.newlab("cb"); top = g.newlab("ct")
            if c != "RAW": g.stamp("w")
            e(f"s_cmp_lt_u32 s{S_T+2}, 4"); e(f"s_cbranch_scc1 {slow}")
            g.lab(back)
            if c != "RAW": g.stamp("w")
            g.tail += [slow + ":", f"    s_mov_b32 s{S_T+1}, {SPIN*8}", top + ":", "    s_sleep 1", "    ds_read_b32 v2, v3", "    s_waitcnt lgkmcnt(0)",
                       f"    v_readfirstlane_b32 s{S_T+2}, v2", f"    s_cmp_ge_u32 s{S_T+2}, 4", f"    s_cbranch_scc1 {back}",
                       f"    s_sub_u32 s{S_T+1}, s{S_T+1}, 1", f"    s_cbranch_scc0 {top}", f"    s_branch {back}"]
            ready.add(c); return 2
        return [f"v_mov_b32 v3, {CNT[c]}", "ds_read_b32 v2, v3", GATE, f"v_readfirstlane_b32 s{S_T+2}, v2", f]
    def stp(n=None): return [lambda: g.stamp(n)]
    HOFF = 29 * 16
    PV, PA = 2, 3
    def pload():
        e(f"buffer_load_dword v{PV}, v{PA}, {sr(S_WS)}, s{S_T+3} offen sc1"); return 1
    kc1 = [f"s_add_u32 s{S_T}, s{HW(0)}, s{HW(1)}", f"s_add_u32 s{S_T}, s{S_T}, s{HD(2)}", f"s_sub_u32 s{S_T}, s{S_T}, 780"]
    kc1 += [f"s_lshl2_add_u32 s{S_K+k}, s{S_EX+k}, s{S_T}" for k in range(4)] + [(None, ('k', 1))]
    k1 = [f"s_sub_u32 s{S_T}, s{HD(1)}, s{HD(2)}", f"s_add_u32 s{S_T}, s{S_T}, 130"] + [f"s_sub_u32 s{S_K1+k}, s{S_T}, s{S_EX+k}" for k in range(4)] + [(None, 'k1')]
    kc2 = [(None, 'x', ('ev', 1)), f"s_sub_u32 s{S_T}, s{HW(2)}, s{HD(2)}", f"s_add_u32 s{S_T}, s{S_T}, s{HD(3)}", f"s_sub_u32 s{S_T}, s{S_T}, 260"]
    kc2 += [f"s_add_u32 s{S_K+k}, s{S_T}, s{S_EX+k}" for k in range(4)] + [(None, ('k', 2))]
    dots = [(None, 'x', 'k1')]
    for k in range(4): dots.append(f"v_ldexp_f32 v{ACC+16*k+15}, v{ACC+16*k+15}, v{EV(k)}")
    for k in range(4): dots.append(f"v_add_u32 v{ACC+16*k+13}, s{S_K1+k}, v{EV(k)}")
    for k in range(4): dots.append(f"v_ldexp_f32 v{ACC+16*k+14}, v{ACC+16*k+14}, v{ACC+16*k+13}")
    for k in range(4): dots.append(f"v_add_f32 v{LG+k}, v{ACC+16*k+14}, v{ACC+16*k+15}")
    kf = [(None, 'x', ('ev', 2)), f"s_sub_u32 s{S_T}, s{HW(3)}, s{HD(3)}", f"s_sub_u32 s{S_T}, s{S_T}, 130", f"s_add_u32 s{HL}, s{HL}, s{S_T}", f"s_add_u32 s{HQ}, s{HQ}, s{S_T}",
          f"s_sub_u32 s{HQ}, s{HQ}, 130", f"s_sub_u32 s{HD(0)}, s{HD(0)}, 260"]
    for k in range(4):
        kf += [f"s_add_u32 s{S_K1+k}, s{HL}, s{S_EX+k}", f"s_lshl1_add_u32 s{S_K+k}, s{S_EX+k}, s{HQ}", f"s_lshl1_add_u32 s{S_KC+k}, s{S_EX+k}, s{HD(0)}"]
    kf.append((None, 'kf'))
    pre = ["v_bfe_u32 v2, v0, 4, 1", "v_lshrrev_b32 v3, 5, v0", "v_lshl_add_u32 v2, v2, 1, v3", "v_and_b32 v3, 15, v0", f"v_cmp_lt_u32 vcc, {NR-1}, v3",
           "v_lshlrev_b32 v3, 10, v3", "v_lshl_add_u32 v3, v2, 2, v3", f"v_mov_b32 v2, {OOB}", "v_cndmask_b32 v3, v3, v2, vcc",
           f"s_mul_i32 s{S_T+3}, s{S_G}, {NR*1024}", f"s_and_b32 s{S_T}, s{S_SB}, 255", f"s_lshl_b32 s{S_T}, s{S_T}, 2",
           f"s_add_u32 s{S_T+3}, s{S_T+3}, s{S_T}", f"s_add_u32 s{S_T+3}, s{S_T+3}, {WS_PART}"]
    def lread():
        for i in range(2): emit(f"ds_read_b128 {vr(LA+4*i,4)}, v1 offset:{QB + (24 + i)*1024 - state['base']}")
        return 2
    BO = ACC2 + 14
    d3 = [f"v_ldexp_f32 v{ACC2+16*k+15}, v{ACC2+16*k+15}, v{EV(k)}" for k in range(4)] + [f"v_add_f32 v{LG+k}, v{LG+k}, v{ACC2+16*k+15}" for k in range(4)]
    d3 += [f"v_mov_b32 v{BO-1}, 0", f"buffer_load_ushort v{BO}, v{BO-1}, {sr(S_BO)}, 0 offen"]
    fill = {("L1", 2): rest(ACC, 0) + [(None, ('free', 0))], ("L2", 2): rest(ACC2, 1) + [(None, ('free', 1))], ("L2", 16): evup(1),
            ("L3", 2): rest(ACC, 2) + dots + [(None, ('free', 2))] + evup(2), ("Q4", 1): d3}
    for k in range(4):
        o = [f"v_mul_f32 v{SC+k}, v{LT}, v{ACC2+16*k}"] + [f"v_fmac_f32 v{SC+k}, v{LT+r}, v{ACC2+16*k+r}" for r in range(1, 13)] + [(None, ('lin', k)), (None, 'x', 'kf')]
        o += [f"v_add_u32 v{TM+k}, s{S_K1+k}, v{EV(k)}", f"v_ldexp_f32 v{SC+k}, v{SC+k}, v{TM+k}", f"v_add_u32 v{TM+k}, s{S_K+k}, v{EV(k)}", f"v_add_f32 v{LG+k}, v{LG+k}, v{SC+k}", (None, ('lind', k))]
        fill[("Q4", LP[k] + 2)] = o
    def final(k):
        return ([(None, 'x', ('lind', k)), f"v_mul_f32 v{SC+k}, v{ACC+16*k}, v{ACC2+16*k}", f"v_ldexp_f32 v{ACC+16*k+15}, v{ACC+16*k+15}, s{S_KC+k}"]
                + [f"v_fmac_f32 v{SC+k}, v{ACC+16*k+r}, v{ACC2+16*k+r}" for r in range(1, 13)]
                + [f"v_add_f32 v{LG+k}, v{LG+k}, v{ACC+16*k+15}", f"v_ldexp_f32 v{SC+k}, v{SC+k}, v{TM+k}", f"v_add_f32 v{LG+k}, v{LG+k}, v{SC+k}"])
    urgent = {}
    for k in range(4):
        urgent[("S0", k)] = head(ACC, 0, k); urgent[("L1", k)] = head(ACC2, 1, k); urgent[("L2", k)] = head(ACC, 2, k); urgent[("Q4", k)] = final(k)
    side = {("S0", 0): arrive("RB"), ("S0", 2): hdr(BUFA + 23 * S0STR + 512, HW(0)), ("S0", 14): check("RAW"), ("S0", 21): arrive("AFREE", frags[22]),
            ("S0", 8): ["s_setprio 2"], PAR.drop: ["s_setprio 0"],
            ("L1", 0): stp(), ("L1", 35): check("L2OK"), ("L1", 41): arrive("BFREE", frags[65]),
            ("L2", 0): stp(), ("L2", 4): hdr(BUFA + HOFF, HW(2), HD(2)) + kc1 + hdr(BUFA + HOFF + 8, HD(1)) + k1, ("L2", 36): check("L3OK"),
            ("L3", 12): hdr(BUFB + HOFF, HW(3), HD(3)) + kc2,
            ("L3", 43 - PAR.qchk): check("QOK") + hdr(QB + 23 * 1024, HQ, HL) + hdr(QB + 23 * 1024 + 8, HD(0)),
            ("Q4", 0): [lread, GATE, (None, ('lin', -1))] + kf, ("Q4", 9): pre[:7], ("Q4", 14): pre[7:], ("Q4", PAR.pload): [pload]}
    rates = {("S0", 0): PAR.rate, ("L1", 0): PAR.l1rate, ("L2", 0): 32, ("L3", 0): PAR.l3rate, ("Q4", 0): PAR.qrate}
    fill = {pos[k]: v for k, v in fill.items()}; side = {pos[k]: v for k, v in side.items()}; rates = {pos[k]: v for k, v in rates.items()}
    frags[0]['issued'] = frags[1]['issued'] = True
    nfr = 2; fq = []; sq = []; uq = []; credit = 0; gated = False
    def prods(n):
        job = jobs[n]; job['b'] = BR + 4 * (n % 3)
        while job['req'] and job['req'] not in ready: emit(uq.pop(0)[1])
        return [p(job['b'] + i) for i, p in enumerate(job['prods'])]
    for n in range(2):
        for x in prods(n): e(x)
    e("s_waitcnt lgkmcnt(0)"); landed |= {0, 1}
    for n, job in enumerate(jobs):
        state['n'] = n
        fq += fill.get(n, []); sq += side.get(n, []); rate = rates.get(n, rate if n else None)
        budget = 6
        if 'fr' in job and job['fr']['id'] not in landed:
            idx = max(i for i, (t, at) in enumerate(lq) if t == job['fr']['id'] or at <= n - 3)
            e(f"s_waitcnt lgkmcnt({len(lq) - 1 - idx})")
            landed |= {t for t, at in lq[:idx + 1]}; del lq[:idx + 1]
        if job['needs']: assert job['needs'] in ready, job['needs']
        c = "0" if job['zero'] else vr(job['acc'], 16)
        e(f"v_mfma_f32_32x32x16_f16 {vr(job['acc'],16)}, {vr(job['a'] if 'a' in job else job['fr']['a'],4)}, {vr(job['b'],4)}, {c}")
        if job['last'] in urgent: uq += [(n + 2, x) for x in urgent[job['last']]]
        if nfr < len(frags) and frags[nfr]['first'] - n <= PAR.la and (nfr < 4 or frags[nfr - 4]['lastj'] < n):
            f = frags[nfr]; nfr += 1; f['issued'] = True
            if f['ok']: assert f['ok'] in ready, f['ok']
            r = f['lds'] - state['base']
            if r < 0 or r > 65535:
                e(f"v_add_u32 v1, {r & 0xffffffff}, v1"); state['base'] = f['lds']; r = 0; budget -= 1
            e(f"ds_read_b128 {vr(f['a'],4)}, v1 offset:{r}"); lq.append([f['id'], n]); budget -= 1
        u = PAR.urate
        while uq and uq[0][0] <= n and u > 0: c = emit(uq.pop(0)[1]); u -= c; budget -= c
        if n + 2 < len(jobs):
            ps = prods(n + 2)
            for x in ps: e(x)
            budget -= len(ps)
            credit += sum(8 - nbytes(p) for p in ps) + 8 * (4 - len(ps))
        credit = min(credit + rate / 4, 16)
        while sq:
            if sq[0] == GATE:
                if any(t == 'side' for t, at in lq): break
                sq.pop(0); continue
            if not ((budget > 0 and credit >= nbytes(sq[0])) or nbytes(sq[0]) == 0): break
            x = sq.pop(0); budget -= emit(x); credit -= nbytes(x)
        while fq and ((budget > 0 and credit >= nbytes(fq[0])) or nbytes(fq[0]) == 0):
            x = fq.pop(0); budget -= emit(x); credit -= nbytes(x)
    assert not sq and not fq, (sq, fq)
    g.stamp()
    for at, x in uq: emit(x)
    e(f"v_permlane32_swap_b32 v{LG}, v{LG+1}"); e(f"v_permlane32_swap_b32 v{LG+2}, v{LG+3}")
    e(f"v_add_f32 v{LG}, v{LG}, v{LG+1}"); e(f"v_add_f32 v{LG+2}, v{LG+2}, v{LG+3}")
    e(f"v_permlane16_swap_b32 v{LG}, v{LG+2}")
    e(f"v_add_f32 v{LG}, v{LG}, v{LG+2}")
    e(f"s_mov_b32 s{S_T}, {SPIN}")
    g.lab("L_pcheck")
    e("s_waitcnt vmcnt(0)")
    e(f"v_cmp_eq_u32 vcc, -1, v{PV}")
    e("s_nop 1")
    e("s_cbranch_vccz L_pok")
    e("s_sleep 4")
    pload()
    e(f"s_sub_u32 s{S_T}, s{S_T}, 1")
    e("s_cbranch_scc0 L_pcheck")
    e("s_waitcnt vmcnt(0)")
    g.lab("L_pok")
    e(f"v_add_f32 v{LG}, v{LG}, v{PV}")
    for sh in (8, 4, 2, 1):
        e(f"v_add_f32_dpp v{LG}, v{LG}, v{LG} row_ror:{sh} {DPPALL}")
    e(f"v_lshlrev_b32 v{BO}, 16, v{BO}")
    e(f"v_add_f32 v{LG}, v{LG}, v{BO}")
    e(f"v_cvt_pk_bf16_f32 v{LG}, v{LG}, v{LG}")
    e(f"v_lshrrev_b32 v{PA}, 1, v{PA}")
    e(f"v_cmp_lt_u32 vcc, 7, v{PA}")
    e(f"v_mov_b32 v2, {OOB}")
    e(f"v_cndmask_b32 v{PA}, v{PA}, v2, vcc")
    e(f"s_lshl_b32 s{S_T}, s{S_SB}, 1")
    e(f"buffer_store_short v{LG}, v{PA}, {sr(S_OUT)}, s{S_T} offen")
    g.stamp(); g.stamp("e")
    if PAR.enc is not None:
        e("s_waitcnt lgkmcnt(0)")
        if PAR.gmin:
            e(f"s_not_b32 s{S_T}, s{S_ST}"); e(f"v_mov_b32 v4, s{S_T}"); e("v_mov_b32 v5, 0"); e("s_mov_b64 exec, 1")
            e(f"buffer_atomic_umax v4, v5, {sr(S_DBG)}, 0 offen offset:192 sc1"); e("s_waitcnt vmcnt(0)")
            g.lab("L_enc0")
            e(f"s_memrealtime s[{S_T+2}:{S_T+3}]"); e("s_waitcnt lgkmcnt(0)")
            e(f"s_sub_u32 s{S_T+2}, s{S_T+2}, s{S_ST}"); e(f"s_cmp_lt_u32 s{S_T+2}, 5000"); e("s_cbranch_scc1 L_enc0")
            e(f"buffer_load_dword v4, v5, {sr(S_DBG)}, 0 offen offset:192 sc1"); e("s_waitcnt vmcnt(0)"); e("s_mov_b64 exec, -1")
            if PAR.encsel: e(f"s_mov_b32 s{S_ST+2*PAR.enc}, s{S_ST}")
            e(f"v_readfirstlane_b32 s{S_ST}, v4"); e(f"s_not_b32 s{S_ST}, s{S_ST}")
        e(f"s_sub_u32 s{S_T}, s{S_ST+2*PAR.enc}, s{S_ST}"); e(f"s_lshl_b32 s{S_T}, s{S_T}, 1");
        if PAR.encsel:
            e(f"s_lshl_b32 s{S_T}, s{S_T}, 2"); e(f"s_and_b32 s{S_T+1}, s2, {PAR.encsel[0]}"); e(f"s_cmp_eq_u32 s{S_T+1}, {PAR.encsel[1]}")
        else: e(f"s_cmp_lt_u32 s{S_R}, {NR}")
        e(f"s_cselect_b32 s{S_T}, s{S_T}, 0"); e(f"s_add_u32 s{S_T}, s{S_T}, 6000")
        g.lab("L_enc")
        e(f"s_memrealtime s[{S_T+2}:{S_T+3}]"); e("s_waitcnt lgkmcnt(0)")
        e(f"s_sub_u32 s{S_T+2}, s{S_T+2}, s{S_ST}"); e(f"s_cmp_lt_u32 s{S_T+2}, s{S_T}"); e("s_cbranch_scc1 L_enc")
    g.flush_stamps(4, 5)
    e("s_endpgm")

HACC, HX, HW_ = 4, 68, 208
V_TR0, V_TR1, V_DMA, V_WSRC, V_H16, V_L0, V_HROW, V_CNT = 248, 249, 250, 251, 252, 253, 254, 255
ID, QA, QSH, QS, W0R, PK = 4, 12, 19, 20, 180, 236
L1R, BT = 180, 60
S_WP, S_L, S_FR, S_E0, S_E1, S_E2, S_PO, S_CX = 48, 49, 50, 51, 52, 53, 54, 55
S_LC = 56
S_E3, S_XB = 60, 61
def dma_img(g, name, nfr, lds, first=0, part=None):
    e = g.e; per = nfr // 4
    va = V_DMA
    if name == "Q4":
        va = 1
        e("v_and_b32 v1, 31, v0"); e("v_subrev_u32 v1, 29, v1"); e("v_cmp_gt_u32 vcc, 2, v1"); e(f"v_mov_b32 v1, {OOB}"); e(f"v_cndmask_b32 v1, v{V_DMA}, v1, vcc")
    e(f"s_mul_i32 s{S_T}, s{S_J}, {per*1024}")
    i0, i1 = part or (0, per)
    for i in range(i0, min(i1, per)):
        if (i - i0) % 4 == 0:
            e(f"s_add_u32 s{S_T+1}, s{S_T}, {IMG[name] + (first + i)*1024}")
            e(f"s_add_u32 m0, s{S_T}, {lds + i*1024}")
        g.vm(f"buffer_load_dwordx4 v{va}, {sr(S_WS)}, s{S_T+1} offen offset:{((i - i0)%4)*1024} {PAR.ld} lds", name)
def poll(g, checks, pre=None):
    e = g.e
    done = g.newlab("pd"); top = g.newlab("pt"); slp = g.newlab("ps"); tst = g.newlab("pc")
    regs = pre or [2 + i for i in range(len(checks))]
    e(f"s_mov_b32 s{S_T}, {SPIN}")
    if pre: e(f"s_branch {tst}")
    g.lab(top)
    for r, (srd, so, o, n) in zip(regs, checks):
        e(f"buffer_load_dword v{r}, v{V_L0}, {sr(srd)}, {so} offen offset:{o} sc1")
    e("s_waitcnt vmcnt(0)")
    g.lab(tst)
    for r, (srd, so, o, n) in zip(regs, checks):
        e(f"v_readfirstlane_b32 s{S_T+1}, v{r}")
        e(f"s_cmp_lt_u32 s{S_T+1}, {n}")
        e(f"s_cbranch_scc1 {slp}")
    g.lab(done)
    g.tail += [slp + ":", f"    s_sleep {PAR.slp}", f"    s_sub_u32 s{S_T}, s{S_T}, 1", f"    s_cbranch_scc0 {top}", f"    s_branch {done}"]
def poll1(g, checks, flag, pre=None):
    lb = g.newlab("p1")
    g.e(f"s_cmp_lg_u32 s{S_J}, 0"); g.e(f"s_cbranch_scc1 {lb}")
    poll(g, checks, pre)
    arrive(g, flag)
    g.lab(lb)
    lwait(g, flag, 1)
def presample(g, checks, regs, tag):
    for r, (srd, so, o, n) in zip(regs, checks):
        g.vm(f"buffer_load_dword v{r}, v{V_L0}, {sr(srd)}, {so} offen offset:{o} sc1", tag)
def arrive(g, *cs):
    e = g.e
    e("v_mov_b32 v1, 1"); e("s_mov_b64 exec, 1")
    for c in cs: e(f"ds_add_u32 v{V_CNT}, v1 offset:{CNT[c]-M_CNT}")
    e("s_mov_b64 exec, -1")
def unpack_mat(g, PA, t):
    e = g.e
    e(f"v_and_b32 v{t}, 1, v0"); e(f"v_lshlrev_b32 v{t}, 4, v{t}"); e(f"v_mov_b32 v{t+1}, 0x3f80"); e(f"v_lshlrev_b32 v{t+1}, v{t}, v{t+1}")
    e(f"v_lshrrev_b32 v{t+2}, 3, v0"); e(f"v_xor_b32 v{t+2}, v{t+2}, v0"); e(f"v_and_b32 v{t+2}, 4, v{t+2}")
    e(f"v_bfe_u32 v{t}, v0, 3, 2"); e(f"v_bfe_u32 v{t+3}, v0, 1, 1"); e(f"v_lshl_add_u32 v{t}, v{t}, 1, v{t+3}"); e(f"v_lshl_add_u32 v{t}, v{t+2}, 3, v{t}")
    for i in range(8):
        e(f"v_cmp_eq_u32 vcc, {i}, v{t}"); e(f"v_cndmask_b32 v{PA+i}, 0, v{t+1}, vcc")
def unpack(g, DR, pa, src, i):
    d = DR + 16 * ((i >> 1) & 3)
    g.e(f"v_mfma_f32_32x32x16_bf16 {vr(d,16)}, {vr(pa+4*(i&1),4)}, {vr(src+4*i,4)}, {vr(d,16) if i & 1 else '0'}")
def tmax(g, DR, tile, n, first, mv=1):
    d = DR + 16 * (tile & 3)
    for q in range(n // 2):
        if first and q == 0: g.e(f"v_max_f32 v{mv}, |v{d}|, |v{d+1}|")
        else: g.e(f"v_max3_f32 v{mv}, v{mv}, |v{d+2*q}|, |v{d+2*q+1}|")
def lwait(g, c, n=4, va=None, vd=1):
    e = g.e; top = g.newlab("lw"); done = g.newlab("ld")
    e(f"s_mov_b32 s{S_T}, {SPIN*8}")
    g.lab(top)
    e(f"ds_read_b32 v{vd}, v{va or V_CNT} offset:{CNT[c]-M_CNT}"); e("s_waitcnt lgkmcnt(0)")
    e(f"v_readfirstlane_b32 s{S_T+1}, v{vd}"); e(f"s_cmp_ge_u32 s{S_T+1}, {n}"); e(f"s_cbranch_scc1 {done}")
    e(f"s_sleep {PAR.lslp if c in ('FX', 'F2', 'F3', 'FQ', 'AFREE', 'BFREE', 'XST') else 1}"); e(f"s_sub_u32 s{S_T}, s{S_T}, 1"); e(f"s_cbranch_scc0 {top}")
    g.lab(done)
def rowmax(g, v, op="v_max_u32_dpp"):
    for sh in (8, 4, 2, 1): g.e(f"{op} v{v}, v{v}, v{v} row_ror:{sh} {DPPALL}")
def wavemax_exp(g, v, sdst):
    e = g.e
    rowmax(g, v)
    e(f"v_readlane_b32 s{sdst}, v{v}, 0"); e(f"v_readlane_b32 s{S_T}, v{v}, 16"); e(f"s_max_u32 s{sdst}, s{sdst}, s{S_T}")
    e(f"v_readlane_b32 s{S_T}, v{v}, 32"); e(f"s_max_u32 s{sdst}, s{sdst}, s{S_T}")
    e(f"v_readlane_b32 s{S_T}, v{v}, 48"); e(f"s_max_u32 s{sdst}, s{sdst}, s{S_T}")
    e(f"s_lshr_b32 s{sdst}, s{sdst}, 23"); e(f"s_sub_u32 s{sdst}, s{sdst}, 126")
def put_max(g, slot):
    e = g.e
    rowmax(g, 1)
    e("v_lshrrev_b32 v2, 4, v0"); e(f"s_lshl_b32 s{S_T}, s{S_J}, 4"); e(f"s_add_u32 s{S_T}, s{S_T}, {slot}")
    e(f"v_lshl_add_u32 v2, v2, 2, s{S_T}")
    e("ds_write_b32 v2, v1")
def get_max(g, slot):
    e = g.e
    e("v_and_b32 v2, 15, v0"); e("v_lshlrev_b32 v2, 2, v2"); e(f"v_add_u32 v2, {slot}, v2")
    e("ds_read_b32 v1, v2"); e("s_waitcnt lgkmcnt(0)")
    rowmax(g, 1)
def pkmax(g, regs):
    e = g.e
    e(f"v_pk_max_u16 v1, v{regs[0]}, v{regs[1]}"); e(f"v_pk_max_u16 v3, v{regs[2]}, v{regs[3]}")
    for i, r in enumerate(regs[4:]): e(f"v_pk_max_u16 v{1 + 2*(i&1)}, v{1 + 2*(i&1)}, v{r}")
    e("v_pk_max_u16 v1, v1, v3"); e("v_alignbit_b32 v3, v1, v1, 16"); e("v_pk_max_u16 v1, v1, v3")
def pack_round(g, acc, off, pk=True):
    e = g.e
    if PAR.pkpack and pk:
        for t in range(7):
            q = QS + t; sel = q & 1
            e(f"v_pk_mul_f32 {vr(acc+2*t,2)}, {vr(acc+2*t,2)}, {vr(q - sel,2)} op_sel:[0,{sel}] op_sel_hi:[1,{sel}]")
    else:
        for t in range(14): e(f"v_mul_f32 v{acc+t}, v{acc+t}, v{QS+(t>>1)}")
    for t in range(7): e(f"v_cvt_pk_f16_f32 v{PK+t}, v{acc+2*t}, v{acc+2*t+1}")
    for t in range(7): e(f"v_alignbit_b32 v{PK+t}, v{PK+t}, v{PK+t}, v{QSH}")
    for t in range(7): e(f"ds_write_b32 v{QA+t}, v{PK+t} offset:{off}")
def s0_max(g, t):
    a = HX + 16 * t
    for i in range(7):
        if t == 0 and i == 0: g.e(f"v_max_f32 v1, |v{a}|, |v{a+1}|")
        else: g.e(f"v_max3_f32 v1, v1, |v{a+2*i}|, |v{a+2*i+1}|")
F0 = lambda c: sum(PAR.chunks[:c])
S_ROT = 64
S_SCN, S_XC = 68, 69
S_RA = 66
def call_if(g, cond, target):
    lb = g.newlab('nc')
    for c in cond: g.e(c[0]); g.e(f'{c[1]} {lb}')
    g.e(f's_call_b64 s[{S_RA}:{S_RA+1}], {target}')
    g.lab(lb)
RET = f's_setpc_b64 s[{S_RA}:{S_RA+1}]'
def EARLY(): return [(f's_cmp_lt_u32 s{S_WP}, {PAR.gearly}', 's_cbranch_scc0')]
def LATE(): return [(f's_cmp_lt_u32 s{S_WP}, {PAR.gearly}', 's_cbranch_scc1'), (f's_cmp_ge_u32 s{S_WP}, 31', 's_cbranch_scc1')]
def rotf(g, f, sd):
    g.e(f"s_add_u32 s{sd}, s{S_ROT}, {f}"); g.e(f"s_sub_u32 s{S_ROT+1}, s{sd}, 26"); g.e(f"s_min_u32 s{sd}, s{sd}, s{S_ROT+1}")
def colvec(g, srd, dst, tag):
    g.e("v_lshrrev_b32 v1, 4, v0"); g.e("v_lshlrev_b32 v1, 3, v1")
    for a in range(4):
        g.e(f"s_xor_b32 s{S_T}, s{S_XC}, {32*a}"); g.e(f"s_add_u32 s{S_T}, s{S_T}, s{S_SB}")
        g.vm(f"buffer_load_dwordx2 {vr(dst+2*a,2)}, v1, {sr(srd)}, s{S_T} offen", tag)
def dma_w(g, f0, f1, tag):
    e = g.e
    e(f"s_lshl_b32 s{S_T}, s{S_J}, 10")
    for f in range(f0, f1):
        e(f"s_add_u32 m0, s{S_T}, {D0 + (f % 16)*4096}")
        rotf(g, f, S_T + 1); e(f"s_mul_i32 s{S_T+1}, s{S_T+1}, 53248")
        g.vm(f"buffer_load_dwordx4 v{V_WSRC}, {sr(S_W1)}, s{S_T+1} offen {PAR.wmod} lds", tag)
CHK_X = lambda: (S_WS, f"s{S_CX}", C_XR, 1)
def helper_common(g):
    e = g.e
    e("s_setprio 2")
    e(f"s_sub_u32 s{S_J}, s{S_WAVE}, 4")
    e("v_and_b32 v2, 31, v0"); e("v_lshrrev_b32 v3, 5, v0")
    e(f"v_lshlrev_b32 v{V_H16}, 4, v3")
    e("v_lshrrev_b32 v4, 3, v2"); e("v_and_b32 v6, 3, v2"); e("v_lshl_add_u32 v4, v4, 2, v6")
    e("v_bfe_u32 v6, v2, 2, 1"); e(f"v_mad_u32_u24 v{V_HROW}, v6, 13, v4")
    e("v_cmp_lt_u32 vcc, 12, v4"); e("v_mov_b32 v7, 0x100000"); e(f"v_cndmask_b32 v{V_HROW}, v{V_HROW}, v7, vcc")
    e("v_mul_u32_u24 v4, 676, v3"); e(f"s_movk_i32 s{S_T+1}, 1352"); e(f"v_mad_u32_u24 v243, v{V_HROW}, s{S_T+1}, v4")
    def qaset():
        e("v_lshrrev_b32 v27, 1, v2"); e("v_and_b32 v28, 1, v2"); e(f"v_lshlrev_b32 v{QSH}, 4, v28")
        e("v_sub_u32 v29, 25, v27"); e("v_mul_u32_u24 v29, v29, v27"); e("v_lshrrev_b32 v29, 1, v29")
        e(f"s_lshl_b32 s{S_T}, s{S_J}, 4")
        e(f"v_lshl_add_u32 v28, v28, 9, s{S_T}")
        e(f"v_lshl_add_u32 v30, v0, 2, s{S_T}"); e(f"v_add_u32 v30, {BUFA + 24*S0STR}, v30")
        e("v_mov_b32 v33, 0.5")
        for t in range(7):
            qb = 4 * (t >> 1) + (t & 1)
            e(f"v_lshl_add_u32 v31, v3, 1, {qb}")
            e("v_add_u32 v32, v29, v31")
            e(f"v_lshrrev_b32 v{QA+t}, 2, v32"); e(f"v_mul_u32_u24 v{QA+t}, {S0STR}, v{QA+t}")
            e("v_and_b32 v32, 3, v32"); e("v_lshl_add_u32 v32, v32, 2, v28"); e(f"v_add_u32 v{QA+t}, v{QA+t}, v32")
            e("v_cmp_lt_u32 vcc, v31, v27")
            if t == 6:
                e("v_cmp_lt_u32 s[72:73], 12, v31"); e("s_or_b64 vcc, vcc, s[72:73]")
            e(f"v_cndmask_b32 v{QA+t}, v{QA+t}, v30, vcc")
            e("v_cmp_eq_u32 vcc, v31, v27"); e(f"v_cndmask_b32 v{QS+t}, 1.0, v33, vcc")
        e("v_lshlrev_b32 v31, 3, v3"); e("v_sub_u32 v31, v2, v31")
        e("v_mov_b32 v32, 0x3f80"); e(f"v_lshlrev_b32 v32, v{QSH}, v32")
        e("v_lshrrev_b32 v31, 1, v31")
        for s in range(2):
            for i in range(4):
                e(f"v_cmp_eq_u32 vcc, {8*s+i}, v31"); e(f"v_cndmask_b32 v{ID+4*s+i}, 0, v32, vcc")
    if PAR.qaearly: qaset()
    HS = [S_WC, S_WS, S_WO, S_W1, S_B1, S_W2, S_DBG]
    srd_const(g, HS)
    e("s_waitcnt lgkmcnt(0)")
    srd_base(g, HS)
    e(f"s_mov_b64 s[{S_LC}:{S_LC+1}], s[{S_WC}:{S_WC+1}]"); e(f"s_mov_b32 s{S_LC+3}, 0x00020000"); e(f"s_mov_b32 s{S_LC+2}, {2*LB}")
    e(f"s_cmp_lt_u32 s{S_R}, {NR}"); e(f"s_cselect_b32 s{S_WP}, 63, s{S_G}"); e(f"s_mov_b32 s{S_SCN}, 0")
    e(f"s_mul_i32 s{S_CX}, s{S_G}, {PAR.cstr}"); e(f"s_add_u32 s{S_CX}, s{S_CX}, {WS_CNT}")
    if PAR.wpf:
        e(f"s_cmp_lg_u32 s{S_J}, 0"); e("s_cbranch_scc1 L_nowpf")
        e(f"s_mov_b32 s{S_WC+2}, {6*LB}"); e(f"s_lshr_b32 s{S_T}, s2, 3"); e(f"s_lshl_b32 s{S_T}, s{S_T}, 7")
        e("v_lshlrev_b32 v1, 12, v0")
        e(f"buffer_load_dword v247, v1, {sr(S_WC)}, s{S_T} offen")
        e(f"s_mov_b32 s{S_WC+2}, {LB}")
        e(f"s_cmp_lt_u32 s{S_R}, {NR}"); e("s_cbranch_scc1 L_nowpf")
        for i in range(4): e(f"v_mov_b32 v{36+i}, 0")
        e("v_lshlrev_b32 v35, 8, v0"); e("v_cmp_lt_u32 vcc, 2, v0"); e(f"v_mov_b32 v34, {OOB}"); e("v_cndmask_b32 v35, v35, v34, vcc")
        e(f"buffer_store_dwordx4 v[36:39], v35, {sr(S_WS)}, s{S_CX} offen sc1")
        g.lab("L_nowpf")
    g.stamp("g")
    call_if(g, EARLY(), "L_pe1")
    g.stamp("g")
    e("v_and_b32 v2, 31, v0"); e("v_lshrrev_b32 v3, 5, v0")
    e(f"v_mad_u32_u24 v1, v2, 52, v{V_H16}")
    if PAR.w0lin: e("v_lshlrev_b32 v1, 4, v0")
    e(f"s_mul_i32 s{S_T}, s{S_J}, 1352")
    for t in range(7):
        if t < 6: e(f"s_add_u32 s{S_T+1}, s{S_T}, {(13*(t&1) + 4*(t>>1))*1352}")
        else:
            e(f"s_mul_i32 s{S_T+1}, s{S_J}, {13*1352}"); e(f"s_add_u32 s{S_T+1}, s{S_T+1}, {12*1352}")
        for s in range(2):
            g.vm(f"buffer_load_dwordx4 {vr(W0R+8*t+4*s,4)}, v1, {sr(S_WC)}, s{S_T+1} offen offset:{(320 if PAR.w0lin else 32)*s}", f"w0_{t}")
    e("s_branch L_helper2")
    g.hfirst = g.L[g.h0:]; del g.L[g.h0:]
    g.lab("L_helper2")
    if not PAR.barpos: e("s_barrier")
    e(f"v_mov_b32 v61, {OOB}"); e(f"v_add_u32 v60, s{S_J}, v0"); e("v_cmp_eq_u32 vcc, 0, v60"); e(f"v_cndmask_b32 v{V_L0}, v61, 0, vcc")
    e(f"s_lshr_b32 s{S_SB}, s{S_R}, 1"); e(f"s_mul_i32 s{S_SB}, s{S_SB}, 224"); e(f"s_and_b32 s{S_XC}, s{S_R}, 1"); e(f"s_mul_i32 s{S_XC}, s{S_XC}, 96"); e(f"s_add_u32 s{S_SB}, s{S_SB}, s{S_XC}")
    if not PAR.qaearly: qaset()
    e(f"s_mul_i32 s{S_PO}, s{S_G}, {NR}"); e(f"s_add_u32 s{S_PO}, s{S_PO}, s{S_R}"); e(f"s_lshl_b32 s{S_PO}, s{S_PO}, 2"); e(f"s_add_u32 s{S_PO}, s{S_PO}, s{S_J}")
    e(f"s_lshl_b32 s{S_PO}, s{S_PO}, 8"); e(f"s_add_u32 s{S_PO}, s{S_PO}, {WS_PART}")
    e("v_and_b32 v60, 15, v0"); e(f"v_mul_u32_u24 v245, {XSTR}, v60"); e("v_and_b32 v60, 48, v0")
    e(f"s_lshl_b32 s{S_T}, s{S_J}, 6"); e(f"s_add_u32 s{S_T}, s{S_T}, {D0}"); e(f"v_add3_u32 v245, v245, v60, s{S_T}")
    e("v_lshlrev_b32 v246, 4, v0")
    e(f"s_lshl_b32 s{S_XB}, s{S_G}, 2"); e(f"s_lshr_b32 s{S_T}, s{S_R}, 2"); e(f"s_add_u32 s{S_XB}, s{S_XB}, s{S_T}"); e(f"s_mul_i32 s{S_XB}, s{S_XB}, 106496")
    e(f"s_and_b32 s{S_T}, s{S_R}, 3"); e(f"s_lshl_b32 s{S_T}, s{S_T}, 10"); e(f"s_add_u32 s{S_XB}, s{S_XB}, s{S_T}")
    e(f"s_lshl_b32 s{S_T}, s{S_J}, 12"); e(f"s_add_u32 s{S_XB}, s{S_XB}, s{S_T}"); e(f"s_add_u32 s{S_XB}, s{S_XB}, {WS_X}")
    g.stamp("g")
    e(f"s_cmp_lt_u32 s{S_R}, {NR}"); e("s_cbranch_scc1 L_nordy")
    e("s_waitcnt vmcnt(0)")
    e("v_mov_b32 v35, 1"); e(f"s_lshl_b32 s{S_E3}, s{S_G}, 2")
    e(f"buffer_store_dword v35, v{V_L0}, {sr(S_DBG)}, s{S_E3} offen offset:{C_RDY} sc1")
    g.lab("L_nordy")
    call_if(g, EARLY(), "L_pe2")
    g.stamp("g")
    for t in range(7):
        if t == 6: e(f"s_cmp_ge_u32 s{S_R}, {NR}"); e("s_cbranch_scc1 L_w0d")
        g.vmwait(f"w0_{t}")
        if t == 6: g.lab("L_w0d")
        a = HX + 16 * t; w = W0R + 8 * t
        e(f"v_mfma_f32_32x32x16_bf16 {vr(a,16)}, {vr(w,4)}, {vr(ID,4)}, 0")
        e(f"v_mfma_f32_32x32x16_bf16 {vr(a,16)}, {vr(w+4,4)}, {vr(ID+4,4)}, {vr(a,16)}")
        e(f"v_mfma_f32_32x32x16_bf16 {vr(a,16)}, {vr(ID,4)}, {vr(w,4)}, {vr(a,16)}")
        e(f"v_mfma_f32_32x32x16_bf16 {vr(a,16)}, {vr(ID+4,4)}, {vr(w+4,4)}, {vr(a,16)}")
        if t > 0: s0_max(g, t - 1)
    s0_max(g, 6)
    put_max(g, M_S0)
    e(f"v_mov_b32 v{V_CNT}, {M_CNT}")
    arrive(g, "S0M")
    g.stamp("g")
    if g.stamps and "g" in PAR.st: e("s_waitcnt vmcnt(0)"); g.stamp("g")
    if PAR.wpf3 == 2:
        e("v_lshlrev_b32 v1, 14, v0"); e(f"s_lshr_b32 s{S_T}, s2, 3"); e(f"s_lshl_b32 s{S_T}, s{S_T}, 7"); e(f"s_lshl_b32 s{S_T+1}, s{S_J}, 12"); e(f"s_add_u32 s{S_T}, s{S_T}, s{S_T+1}")
        e(f"buffer_load_dword v247, v1, {sr(S_W1)}, s{S_T} offen"); e("v_add_u32 v1, 0x100000, v1")
        e(f"buffer_load_dword v247, v1, {sr(S_W1)}, s{S_T} offen")
    call_if(g, EARLY(), "L_gsig")
    g.stamp("g")
    lwait(g, "S0M")
    g.stamp(); g.stamp("h")
    get_max(g, M_S0)
    e("v_lshlrev_b32 v3, 4, v0"); e(f"v_mov_b32 v{PK}, 0")
    e(f"ds_write_b32 v3, v{PK} offset:{BUFA + 22*S0STR + 12}")
    e("v_lshrrev_b32 v1, 23, v1")
    e("v_min_u32 v1, 249, v1")
    e("v_sub_u32 v2, 124, v1")
    e("v_subrev_u32 v1, 124, v1")
    e(f"ds_write_b32 v3, v1 offset:{BUFA + 23*S0STR + 512}")
    for t in range(7): e(f"v_ldexp_f32 v{QS+t}, v{QS+t}, v2")
    for t in range(7):
        if t == 6:
            e(f"s_cmp_eq_u32 s{S_J}, 1"); e(f"s_cselect_b32 s{S_T}, 48, 0")
            for i in range(7): e(f"v_add_u32 v{QA+i}, s{S_T}, v{QA+i}")
        if t in (0, 2, 4, 6): g.stamp("h")
        pack_round(g, HX + 16 * t, 16 * (8 * (t >> 1) + 4 * (t & 1)))
    arrive(g, "S0OK")
    g.stamp(); g.stamp("s"); g.stamp("h")
    e(f"v_cmp_lt_u32 vcc, 25, v{V_HROW}"); e("v_bfe_u32 v1, v0, 2, 1")
    e("v_cmp_eq_u32 s[72:73], 0, v1"); e("s_and_b64 vcc, vcc, s[72:73]")
    e(f"v_mov_b32 v2, {OOB}"); e(f"v_lshlrev_b32 v{V_DMA}, 4, v0"); e(f"v_cndmask_b32 v{V_DMA}, v{V_DMA}, v2, vcc")
    e(f"s_mul_i32 s{S_ROT}, s{S_R}, 7"); e(f"s_lshr_b32 s{S_ROT}, s{S_ROT}, 2")
    e("v_lshrrev_b32 v1, 3, v0"); e(f"s_lshl_b32 s{S_T}, s{S_J}, 3"); e(f"v_add_u32 v1, s{S_T}, v1")
    e("v_mul_u32_u24 v1, 1664, v1"); e("v_and_b32 v2, 1, v0"); e("v_lshl_add_u32 v1, v2, 4, v1")
    e(f"s_and_b32 s{S_T}, s{S_J}, 1"); e(f"s_lshl_b32 s{S_T}, s{S_T}, 1")
    e("v_bfe_u32 v2, v0, 4, 1"); e("v_bfe_u32 v3, v0, 1, 2"); e("v_xor_b32 v2, v2, v3"); e(f"v_xor_b32 v2, s{S_T}, v2")
    e(f"v_lshl_add_u32 v3, v2, 5, s{S_SB}")
    e(f"v_add_u32 v{V_WSRC}, v1, v3")
    e("v_lshrrev_b32 v1, 4, v0"); e("v_bfe_u32 v2, v0, 2, 2"); e("v_lshl_add_u32 v1, v1, 3, v2"); e("v_lshlrev_b32 v1, 7, v1")
    e("v_and_b32 v3, 3, v0"); e("v_lshl_add_u32 v1, v3, 3, v1"); e("v_bfe_u32 v2, v0, 3, 2"); e("v_lshl_add_u32 v1, v2, 5, v1")
    e(f"v_xor_b32 v1, s{S_XC}, v1"); e(f"v_add_u32 v{V_TR0}, {D0}, v1")
    if PAR.wpf3 == 1:
        e("v_lshlrev_b32 v1, 14, v0"); e(f"s_lshr_b32 s{S_T}, s2, 3"); e(f"s_lshl_b32 s{S_T}, s{S_T}, 7"); e(f"s_lshl_b32 s{S_T+1}, s{S_J}, 12"); e(f"s_add_u32 s{S_T}, s{S_T}, s{S_T+1}")
        e(f"buffer_load_dword v247, v1, {sr(S_W1)}, s{S_T} offen"); e("v_add_u32 v1, 0x100000, v1")
        e(f"buffer_load_dword v247, v1, {sr(S_W1)}, s{S_T} offen")
    call_if(g, LATE(), "L_pe1")
    call_if(g, LATE()[:1], "L_xpub")
    g.vmq += ["xst"] * 7 + ["sent", "rdyl"] + ["bias"] * 4
    g.stamp("s")
    call_if(g, LATE(), "L_pe2")
    e("s_waitcnt vmcnt(1)")
    e(f"s_sub_u32 s{S_T}, s{S_WP}, {PAR.gearly}"); e(f"s_cmp_lt_u32 s{S_T}, {31 - PAR.gearly}"); e("s_cbranch_scc1 L_pwr")
    e("s_waitcnt vmcnt(0)")
    g.lab("L_pwr")
    arrive(g, "XST")
    e(f"s_cmp_lg_u32 s{S_J}, 0"); e("s_cbranch_scc1 L_nosig")
    lwait(g, "XST")
    e(f"s_mov_b32 s{S_T}, {SPIN}")
    g.lab("L_rdy")
    e("v_cmp_ne_u32 vcc, 0, v28"); e(f"s_and_b32 s{S_T+1}, vcc_lo, 0xffff"); e(f"s_cmp_eq_u32 s{S_T+1}, 0xffff"); e("s_cbranch_scc0 L_rdys")
    g.lab("L_rdyd")
    g.tail += ["L_rdys:", "    s_sleep 8", f"    buffer_load_dword v28, v29, {sr(S_DBG)}, 0 offen offset:{C_RDY} sc1", "    s_waitcnt vmcnt(0)",
               f"    s_sub_u32 s{S_T}, s{S_T}, 1", "    s_cbranch_scc0 L_rdy", "    s_branch L_rdyd"]
    e("v_mov_b32 v1, 1")
    e(f"buffer_atomic_add v1, v{V_L0}, {sr(S_WS)}, s{S_CX} offen sc0 sc1")
    e(f"buffer_load_dword v197, v{V_L0}, {sr(S_DBG)}, 0 offen offset:128 sc1")
    e("s_waitcnt vmcnt(0)")
    e(f"v_readfirstlane_b32 s{S_T}, v1"); e(f"s_cmp_lg_u32 s{S_T}, 15"); e("s_cbranch_scc1 L_nosig")
    e(f"buffer_store_dword v1, v{V_L0}, {sr(S_WS)}, s{S_CX} offen offset:{C_XR} sc1")
    g.lab("L_nosig")
    e("s_setprio 3")
    g.stamp(); g.stamp("s")

def helper_dnn(g):
    e = g.e
    CH = PAR.chunks; NS = PAR.nslot
    UNITS = [(a, sl) for a in range(3) for sl in range(4)] + [(3, 0), (3, 1)]
    def ac(a, sl): return HACC + 4 * UNITS.index((a, sl))
    def xb(f, sl): return HX + 16 * (f % NS) + 4 * sl
    def xload(f):
        rotf(g, f, S_T + 2); e(f"s_lshl_b32 s{S_T+2}, s{S_T+2}, 12"); e(f"s_add_u32 s{S_T+2}, s{S_T+2}, s{S_XB}")
        for sl in range(4 if f < NS else PAR.nxl):
            g.vm(f"buffer_load_dwordx4 {vr(xb(f,sl),4)}, v{2 + (sl >> 1)}, {sr(S_WS)}, s{S_T+2} offen offset:{1024*(sl&1)} {PAR.ld}", f"x{f}")
    VTR = [V_TR0, V_TR1, 198, 199]
    for a in range(1, 4): e(f"v_xor_b32 v{VTR[a]}, {32*a}, v{V_TR0}")
    g.vmwait("bias")
    for a in range(4):
        for i in range(2):
            e(f"v_lshlrev_b32 v{ac(a,0)+2*i}, 16, v{BT+2*a+i}")
            e(f"v_and_b32 v{ac(a,0)+2*i+1}, 0xffff0000, v{BT+2*a+i}")
    for a, sl in UNITS:
        if sl:
            for i in range(4): e(f"v_mov_b32 v{ac(a,sl)+i}, v{ac(a,0)+i}")
    e(f"s_lshl_b32 s{S_XB}, s{S_G}, 2"); e(f"s_add_u32 s{S_XB}, s{S_XB}, s{S_J}"); e(f"s_mul_i32 s{S_XB}, s{S_XB}, 106496"); e(f"s_add_u32 s{S_XB}, s{S_XB}, {WS_X}")
    if PAR.wearly < 1: lwait(g, "RB", 8); dma_w(g, 0, PAR.wa, "Wa")
    if PAR.x0: poll1(g, [(S_DBG, "0", 128, 11), CHK_X()], "FX")
    else:
        poll1(g, [(S_DBG, "0", 128, 11)], "F2", pre=[197])
        lwait(g, "AFREE"); dma_img(g, "L2", 44, BUFA)
        presample(g, [CHK_X()], [196], "fx")
        g.vmwait("fx"); arrive(g, "L2OK", "W01")
        poll1(g, [CHK_X()], "FX", pre=[196])
    e(f"s_and_b32 s{S_E0}, s{S_R}, 1"); e(f"s_lshl_b32 s{S_T}, s{S_E0}, 11"); e(f"v_lshl_add_u32 v2, v0, 4, s{S_T}"); e("v_xor_b32 v3, 0x800, v2")
    g.stamp("s")
    g.stamp()
    for f in range(PAR.xi): xload(f)
    if PAR.x0:
        lwait(g, "AFREE"); dma_img(g, "L2", 44, BUFA)
        g.vmwait("W1"); arrive(g, "W01")
    nld = [PAR.xi]
    W2R = 232
    wring = [0]
    def wread(ks):
        f, hf = divmod(ks, 2)
        base = HW_ + 8 * (wring[0] % 3); wring[0] += 1
        for a in range(2):
            for rd in range(2):
                e(f"ds_read_b64_tr_b16 {vr(base+4*a+2*rd,2)}, v{VTR[2*hf+a]} offset:{(f % 16)*4096 + rd*512}")
        return base
    CKQ = [(S_WS, f"s{S_CX}", C_Q, 9)]; CK3 = [(S_WS, f"s{S_CX}", C_L[3], 11)]
    after = {}
    def add(f, fn): after.setdefault(f, []).append(fn)
    inter = {}
    def addi(f, fn): inter.setdefault(f, []).append(fn)
    def capture(fn):
        keep = g.L; g.L = []; fn(); out = g.L; g.L = keep; return out
    assert PAR.wa >= 10
    for i in range(16 - PAR.wa): addi(i + 1, lambda i=i: dma_w(g, PAR.wa + i, PAR.wa + i + 1, "Wb"))
    for f, (x, y) in {10: (16, 18), 11: (18, 20), 12: (20, 21), 13: (21, 22), 14: (22, 23), 15: (23, 24), 16: (24, 25), 17: (25, 26)}.items():
        addi(f, lambda x=x, y=y: dma_w(g, x, y, "Wc" if x < 21 else "Wd"))
    SEG = [0, 10, 16, 21, 26]
    add(PAR.qpos - 3, lambda: presample(g, CK3, [196], "f3"))
    add(PAR.qpos, lambda: (lwait(g, "BFREE"), g.vmwait("f3"), poll1(g, CK3, "F3", pre=[196])))
    for i in range(0, 11, PAR.l3n): addi(PAR.qpos + 1 + i // PAR.l3n, lambda i=i: dma_img(g, "L3", 44, BUFB, part=(i, i + PAR.l3n)))
    add(PAR.qpos + 1 + 10 // PAR.l3n + PAR.qarr, lambda: (g.vmwait("L3"), arrive(g, "L3OK")))
    add(22, lambda: presample(g, CKQ, [197], "fq"))
    lwait(g, "W01")
    for c in range(4):
        k0 = 2 * SEG[c]; k1 = 2 * SEG[c + 1]
        bufs = {k0: wread(k0), k0 + 1: wread(k0 + 1)}
        for ks in range(k0, k1):
            f, hf = divmod(ks, 2)
            if hf == 0 and f in PAR.fst: g.stamp("f")
            if hf == 0:
                g.vmwait(f"x{f}")
                def gen_other():
                    for _ in range(2):
                        if nld[0] < min(26, f + NS): xload(nld[0]); nld[0] += 1
                    for fn in inter.get(f, []): fn()
                other = capture(gen_other)
            e(f"s_waitcnt lgkmcnt({4 if ks + 1 < k1 else 0})")
            rd = []
            if ks + 2 < k1: rd = capture(lambda: bufs.__setitem__(ks + 2, wread(ks + 2)))
            mf = [(a, sl) for a in range(2) for sl in range(4) if (2 * hf + a, sl) in UNITS[:PAR.nmf]]
            for i, (a, sl) in enumerate(mf):
                d = ac(2 * hf + a, sl)
                e(f"v_mfma_f32_16x16x32_bf16 {vr(d,4)}, {vr(bufs[ks]+4*a,4)}, {vr(xb(f,sl),4)}, {vr(d,4)}")
                n = PAR.il
                if rd and i >= 1: g.L.append(rd.pop(0)); n -= 1
                while other and n > 0: g.L.append(other.pop(0)); n -= 1
            g.L += rd
            if hf == 1:
                g.L += other
                for fn in after.get(f, []): fn()
        if c == 0:
            if PAR.wa < 16: g.vmwait("Wb")
            arrive(g, "C0"); lwait(g, "C0"); g.stamp()
        if c == 1: g.vmwait("Wc"); arrive(g, "C1"); lwait(g, "C1")
        if c == 2:
            g.vmwait("Wd"); arrive(g, "C2"); lwait(g, "C2")
            colvec(g, S_W2, W2R, "w2")
    e("s_waitcnt vmcnt(0)")
    g.stamp()
    W2F = HX
    for i in range(8):
        e(f"v_lshlrev_b32 v{W2F+2*i}, 16, v{W2R+i}")
        e(f"v_and_b32 v{W2F+2*i+1}, 0xffff0000, v{W2R+i}")
    c0 = 2 * 0.7978845608028654 * 1.4426950408889634
    e(f"s_mov_b32 s{S_C1}, {f2u(c0*0.044715):#x}")
    e(f"v_mov_b32 v2, {f2u(c0):#x}")
    T = HX + 32; SUM = HX + 48
    def gelu(blk):
        a, sl = UNITS[blk]
        rs = [ac(a, sl) + i for i in range(4)]
        for i, r in enumerate(rs): e(f"v_mul_f32 v{T+i}, v{r}, v{r}")
        for i, r in enumerate(rs): e(f"v_fma_f32 v{T+i}, v{T+i}, s{S_C1}, v2")
        for i, r in enumerate(rs): e(f"v_mul_f32 v{T+i}, v{T+i}, v{r}")
        for i, r in enumerate(rs): e(f"v_exp_f32 v{T+i}, -v{T+i}")
        for i, r in enumerate(rs): e(f"v_mul_f32 v{r}, v{r}, v{W2F + 4*a + i}")
        for i, r in enumerate(rs): e(f"v_add_f32 v{T+i}, 1.0, v{T+i}")
        for i, r in enumerate(rs): e(f"v_rcp_f32 v{T+i}, v{T+i}")
        for i, r in enumerate(rs): e(f"v_{'mul' if a == 0 and i == 0 else 'fmac'}_f32 v{SUM + sl}, v{r}, v{T+i}")
    for blk in range(len(UNITS)):
        if blk == PAR.gsplit:
            poll1(g, CKQ, "FQ", pre=[197]); dma_img(g, "Q4", 28, QB)
        if blk == PAR.gsplit2:
            e("s_waitcnt vmcnt(0)"); arrive(g, "QOK")
        if blk == PAR.ghi: e("s_setprio 1")
        gelu(blk)
    e("s_setprio 3")
    e(f"v_permlane32_swap_b32 v{SUM}, v{SUM+2}"); e(f"v_permlane32_swap_b32 v{SUM+1}, v{SUM+3}")
    e(f"v_add_f32 v{SUM}, v{SUM}, v{SUM+2}"); e(f"v_add_f32 v{SUM+1}, v{SUM+1}, v{SUM+3}")
    e(f"v_permlane16_swap_b32 v{SUM}, v{SUM+1}")
    e(f"v_add_f32 v{SUM}, v{SUM}, v{SUM+1}")
    e(f"v_min_u32 v{SUM}, -2, v{SUM}")
    e(f"s_lshl_b32 s{S_T}, s{S_E0}, 7"); e("v_lshlrev_b32 v1, 2, v0"); e(f"v_xor_b32 v1, s{S_T}, v1")
    e(f"buffer_store_dword v{SUM}, v1, {sr(S_WS)}, s{S_PO} offen sc1")
    g.stamp()
    g.flush_stamps(4, 5)
    e("s_endpgm")

def gsignal(g, c, so):
    e = g.e; done = g.newlab("sg")
    if c: e("s_waitcnt vmcnt(0)"); arrive(g, c)
    e(f"s_cmp_lg_u32 s{S_J}, 0"); e(f"s_cbranch_scc1 {done}")
    if c: lwait(g, c)
    e(f"v_mul_u32_u24 v2, {PAR.cstr}, v0"); e("v_cmp_lt_u32 vcc, 15, v0"); e(f"v_mov_b32 v3, {OOB}"); e("v_cndmask_b32 v2, v2, v3, vcc")
    e("v_mov_b32 v1, 1")
    e(f"buffer_atomic_add v1, v2, {sr(S_WS)}, {so} offen sc1")
    g.lab(done)
SCN, FR, WV, WP, W1V, AQ, RW = 68, 104, 121, 122, 108, 44, 180
QAR = lambda i: (64 + i) if i < 4 else (240 + i)
S_E4, S_LW = 62, 63
def prod_early1(g):
    e = g.e
    g.lab("L_gsig")
    e("s_waitcnt vmcnt(0)"); arrive(g, "GST")
    e(f"s_cmp_lg_u32 s{S_J}, 0"); e("s_cbranch_scc1 L_xpub")
    lwait(g, "GST")
    e("v_mov_b32 v1, 1"); e(f"buffer_atomic_add v1, v{V_L0}, {sr(S_DBG)}, 0 offen offset:128 sc1")
    g.lab("L_xpub")
    XS = 180
    lwait(g, "RAW")
    for t in range(7): e(f"ds_read_b128 {vr(XS+4*t,4)}, v245 offset:{256*t}")
    e(f"s_cmp_ge_u32 s{S_J}, 2"); e(f"s_cselect_b32 s{S_T}, {OOB}, 0"); e(f"v_add_u32 v245, s{S_T}, v246")
    for t in range(7):
        e(f"s_waitcnt lgkmcnt({6-t})")
        g.vm(f"buffer_store_dwordx4 {vr(XS+4*t,4)}, v{246 if t < 6 else 245}, {sr(S_WS)}, s{S_XB} offen sc1", "xst")
        e(f"s_add_u32 s{S_XB}, s{S_XB}, 16384")
    arrive(g, "RB")
    e(f"s_cmp_ge_u32 s{S_R}, {NR}"); e(f"s_cselect_b32 s{S_T}, {OOB}, 0")
    e(f"v_lshl_add_u32 v1, v0, 2, s{S_T}"); e("v_mov_b32 v3, -1")
    g.vm(f"buffer_store_dword v3, v1, {sr(S_WS)}, s{S_PO} offen sc1", "sent")
    e(f"s_lshl_b32 s{S_T}, s{S_J}, 8"); e("v_lshrrev_b32 v29, 4, v0"); e(f"v_lshl_add_u32 v29, v29, 8, s{S_T}"); e("v_lshl_add_u32 v29, v0, 2, v29")
    g.vm(f"buffer_load_dword v28, v29, {sr(S_DBG)}, 0 offen offset:{C_RDY} sc1", "rdyl")
    colvec(g, S_B1, BT, "bias")
    e(RET)
    g.lab("L_pe1")
    e(f"s_mul_i32 s{S_L}, s{S_WP}, 94"); e(f"s_lshr_b32 s{S_L}, s{S_L}, 10")
    e(f"s_mul_i32 s{S_T}, s{S_L}, 11"); e(f"s_sub_u32 s{S_FR}, s{S_WP}, s{S_T}"); e(f"s_lshl_b32 s{S_FR}, s{S_FR}, 2"); e(f"s_add_u32 s{S_FR}, s{S_FR}, s{S_J}")
    e(f"s_add_u32 s{S_L}, s{S_L}, 2")
    e(f"s_mul_i32 s{S_E2}, s{S_L}, {LB}")
    e(f"s_add_u32 s{S_LC+2}, s{S_E2}, {LB}")
    e("v_lshlrev_b32 v1, 4, v0")
    e(f"s_mul_i32 s{S_T}, s{S_J}, 9216"); e(f"s_add_u32 s{S_T}, s{S_T}, s{S_E2}")
    for i in range(9):
        if i % 4 == 0 and i: e(f"s_add_u32 s{S_T}, s{S_T}, 4096")
        e(f"buffer_load_dwordx4 {vr(SCN+4*i,4)}, v1, {sr(S_LC)}, s{S_T} offen offset:{(i%4)*1024}")
    e(f"s_cmp_ge_u32 s{S_WP}, 22"); e("s_cbranch_scc1 L_ret")
    e(f"s_lshl_b32 s{S_T}, s{S_FR}, 4"); e(f"s_add_u32 s{S_T}, s{S_T}, s{S_E2}")
    e(f"buffer_load_dwordx4 {vr(FR,4)}, v243, {sr(S_LC)}, s{S_T} offen")
    e(f"v_lshlrev_b32 v1, 1, v{V_HROW}"); e(f"s_mul_i32 s{S_T}, s{S_L}, 52")
    e(f"buffer_load_ushort v{WV}, v1, {sr(S_WO)}, s{S_T} offen")
    e(f"buffer_load_ushort v{WP}, v1, {sr(S_WO)}, 52 offen")
    e("v_lshrrev_b32 v3, 5, v0"); e("v_mul_u32_u24 v3, 26, v3")
    for i in range(8):
        e(f"s_lshl_b32 s{S_T}, s{S_FR}, 3"); e(f"s_sub_u32 s{S_T}, s{S_T}, {8*42 + 2 - i}")
        e(f"s_lshl_b32 s{S_T+1}, s{S_T}, 1"); e(f"s_add_u32 s{S_T+1}, s{S_T+1}, 52")
        e(f"s_cmp_lt_u32 s{S_T}, 13"); e(f"s_cselect_b32 s{S_T+1}, s{S_T+1}, {OOB}")
        e(f"v_add_u32 v2, s{S_T+1}, v3")
        e(f"buffer_load_ushort v{W1V+i}, v2, {sr(S_WO)}, 0 offen")
    g.lab("L_ret")
    e(RET)
def prod_early2(g):
    e = g.e
    g.lab("L_pe2")
    e("s_waitcnt vmcnt(13)")
    e(f"v_mov_b32 v{V_CNT}, {M_CNT}")
    for i in range(36): e(f"v_and_b32 v{SCN+i}, s{S_MASK}, v{SCN+i}")
    pkmax(g, [SCN + i for i in range(36)])
    put_max(g, M_SC)
    e(f"s_add_u32 s{S_SCN}, s{S_SCN}, 4")
    arrive(g, "SCM"); lwait(g, "SCM", f"s{S_SCN}")
    get_max(g, M_SC)
    e(f"v_readfirstlane_b32 s{S_E0}, v1")
    e(f"s_bfe_u32 s{S_E0}, s{S_E0}, 0x80007")
    e(f"s_cmp_ge_u32 s{S_WP}, 22"); e("s_cbranch_scc1 L_ret")
    g.lab("L_gjob")
    e(f"s_min_u32 s{S_T+2}, s{S_E0}, 249"); e(f"s_sub_u32 s{S_T+3}, {127+124}, s{S_T+2}"); e(f"s_lshl_b32 s{S_T+3}, s{S_T+3}, 23")
    e(f"s_cmp_lt_u32 s{S_FR}, 42"); e(f"s_cselect_b32 s{S_T+1}, -1, 0")
    for i in range(1, 4): e(f"v_and_b32 v{FR+i}, s{S_T+1}, v{FR+i}")
    e(f"s_cmp_lt_u32 s{S_FR}, 43"); e(f"s_cselect_b32 s{S_T+1}, -1, 0"); e(f"v_and_b32 v{FR}, s{S_T+1}, v{FR}")
    for i in range(4): e(f"v_alignbit_b32 v{FR+i}, v{FR+i}, v{FR+i}, v{V_H16}")
    for i in range(4):
        e(f"v_lshlrev_b32 v{SCN+2*i}, 16, v{FR+i}"); e(f"v_and_b32 v{SCN+2*i+1}, 0xffff0000, v{FR+i}")
    for i in range(8): e(f"v_mul_f32 v{SCN+i}, s{S_T+3}, v{SCN+i}")
    for i in range(4): e(f"v_cvt_pk_f16_f32 v{FR+i}, v{SCN+2*i}, v{SCN+2*i+1}")
    e(f"v_lshlrev_b32 v{WV}, 16, v{WV}")
    e(f"v_and_b32 v1, 0x7fffffff, v{WV}")
    wavemax_exp(g, 1, S_E1)
    e(f"s_sub_u32 s{S_E1}, s{S_E1}, 13"); e(f"s_sub_u32 s{S_T}, 0, s{S_E1}")
    e(f"v_ldexp_f32 v{WV}, v{WV}, s{S_T}")
    for i in range(8): e(f"v_mul_f32 v{SCN+i}, v{SCN+i}, v{WV}")
    for sh in (1, 2, 4, 8):
        for i in range(8): e(f"v_add_f32_dpp v{SCN+i}, v{SCN+i}, v{SCN+i} row_shr:{sh} {DPPALL} bound_ctrl:0")
    for i in range(8): e(f"v_add_f32_dpp v{SCN+i}, v{SCN+i}, v{SCN+i} row_bcast:15 row_mask:0xa bank_mask:0xf")
    for i in range(4): e(f"v_cvt_pk_f16_f32 v{SCN+2*i}, v{SCN+2*i}, v{SCN+2*i+1}")
    e("v_and_b32 v2, 31, v0"); e("v_cmp_eq_u32 vcc, 31, v2")
    for i in range(4): e(f"v_cndmask_b32 v{FR+i}, v{FR+i}, v{SCN+2*i}, vcc")
    e(f"v_lshlrev_b32 v1, 16, v{WP}"); e("v_and_b32 v1, 0x7fffffff, v1")
    wavemax_exp(g, 1, S_E4)
    e(f"s_sub_u32 s{S_T}, 15, s{S_E4}")
    for i in range(8): e(f"v_lshlrev_b32 v{W1V+i}, 16, v{W1V+i}")
    for i in range(8): e(f"v_ldexp_f32 v{W1V+i}, v{W1V+i}, s{S_T}")
    for i in range(4): e(f"v_cvt_pk_f16_f32 v{W1V+2*i}, v{W1V+2*i}, v{W1V+2*i+1}")
    e("v_cmp_eq_u32 vcc, 30, v2")
    for i in range(4): e(f"v_cndmask_b32 v{FR+i}, v{FR+i}, v{W1V+2*i}, vcc")
    e(f"s_cmp_lg_u32 s{S_FR}, 0"); e("s_cbranch_scc1 L_nohdr")
    e(f"s_sub_u32 s{S_T+2}, s{S_T+2}, 124"); e(f"s_add_u32 s{S_E1}, s{S_E1}, s{S_T+2}"); e(f"s_sub_u32 s{S_E4}, s{S_E4}, 15")
    e(f"v_writelane_b32 v{FR}, s{S_T+2}, 29"); e(f"v_writelane_b32 v{FR+1}, s{S_E1}, 29"); e(f"v_writelane_b32 v{FR+2}, s{S_E4}, 29")
    g.lab("L_nohdr")
    e(f"s_mul_i32 s{S_T}, s{S_L}, {44*1024}"); e(f"s_lshl_b32 s{S_T+1}, s{S_FR}, 10"); e(f"s_add_u32 s{S_T}, s{S_T}, s{S_T+1}")
    e(f"s_sub_u32 s{S_T}, s{S_T}, {88*1024 - IMG['L2']}")
    e("v_lshlrev_b32 v1, 4, v0")
    e(f"buffer_store_dwordx4 {vr(FR,4)}, v1, {sr(S_WS)}, s{S_T} offen sc1")
    e("s_nop 0")
    e(RET)
def helper_prod(g):
    e = g.e
    e(f"s_add_u32 s{S_WP}, s{S_G}, 16")
    e(f"s_cmp_ge_u32 s{S_WP}, 31"); e("s_cbranch_scc1 L_j2d")
    call_if(g, [], "L_pe1")
    e(f"s_cmp_lt_u32 s{S_WP}, 22"); e("s_cbranch_scc1 L_noql")
    e("v_and_b32 v2, 31, v0"); e("v_lshrrev_b32 v3, 5, v0")
    e("v_mul_u32_u24 v1, 676, v3"); e("v_add_lshl_u32 v1, v1, v2, 1")
    e(f"s_mul_i32 s{S_T}, s{S_FR}, 52"); e(f"s_add_u32 s{S_T}, s{S_T}, {4*LB}")
    for s in range(13):
        e(f"buffer_load_ushort v{W1V+s}, v1, {sr(S_LC)}, s{S_T} offen")
        e(f"s_add_u32 s{S_T}, s{S_T}, 2704")
    e(f"s_cmp_eq_u32 s{S_WP}, 29"); e(f"s_cselect_b32 s{S_LW}, 4, 5"); e(f"s_cmp_eq_u32 s{S_WP}, 30"); e(f"s_cselect_b32 s{S_LW}, 0, s{S_LW}")
    e(f"s_mul_i32 s{S_E2}, s{S_LW}, {LB}"); e(f"s_add_u32 s{S_LC+2}, s{S_E2}, {LB}")
    e("v_lshlrev_b32 v1, 1, v0"); e("v_cmp_lt_u32 vcc, 25, v0"); e(f"v_mov_b32 v2, {OOB}"); e("v_cndmask_b32 v1, v1, v2, vcc")
    e(f"s_mul_i32 s{S_T}, s{S_LW}, 52")
    e(f"buffer_load_ushort v{WV}, v1, {sr(S_WO)}, s{S_T} offen")
    e("v_lshlrev_b32 v1, 4, v0")
    e(f"s_mul_i32 s{S_T}, s{S_J}, 1352"); e(f"s_add_u32 s{S_T}, s{S_T}, s{S_E2}")
    for t in range(7):
        for ps in range(2):
            e(f"buffer_load_dwordx4 {vr(RW+8*t+4*ps,4)}, v1, {sr(S_LC)}, s{S_T} offen offset:{1024*ps}")
        e(f"s_add_u32 s{S_T}, s{S_T}, {4*1352}")
    g.lab("L_noql")
    lwait(g, "XST")
    e("s_waitcnt vmcnt(0)")
    call_if(g, [], "L_pe2")
    g.lab("L_j2d")
    e(f"s_sub_u32 s{S_T}, s{S_G}, 6"); e(f"s_cmp_lt_u32 s{S_T}, 5"); e("s_cbranch_scc1 L_nol3")
    e(f"s_mov_b32 s{S_T+2}, {WS_CNT + C_L[3]}")
    gsignal(g, "F3", f"s{S_T+2}")
    g.lab("L_nol3")
    e(f"s_cmp_ge_u32 s{S_WP}, 31"); e("s_cbranch_scc1 L_idle")
    e(f"s_cmp_ge_u32 s{S_WP}, 22"); e("s_cbranch_scc1 L_nog")
    e("s_branch L_idle")
    g.lab("L_nog")
    lwait(g, "RB", 8)
    AC = HX; TU = HX + 16
    for t in range(6): e(f"v_lshl_or_b32 v{QAR(t)}, v{W1V+2*t+1}, 16, v{W1V+2*t}")
    e(f"v_mov_b32 v{QAR(6)}, v{W1V+12}"); e(f"v_mov_b32 v{QAR(7)}, 0")
    g.stamp("q")
    e(f"v_lshlrev_b32 v{WV}, 16, v{WV}"); e(f"v_and_b32 v1, 0x7fffffff, v{WV}")
    wavemax_exp(g, 1, S_E1)
    e(f"s_sub_u32 s{S_T}, 0, s{S_E1}"); e(f"v_ldexp_f32 v{WV}, v{WV}, s{S_T}")
    for i in range(16): e(f"v_mov_b32 v{AC+i}, 0")
    for t in range(7):
        e(f"s_add_u32 s{S_T}, s{S_J}, {4*t}")
        e(f"v_readlane_b32 s{S_T+1}, v{WV}, s{S_T}")
        for i in range(8):
            e(f"v_lshlrev_b32 v{TU+2*i}, 16, v{RW+8*t+i}"); e(f"v_and_b32 v{TU+2*i+1}, 0xffff0000, v{RW+8*t+i}")
        for i in range(16): e(f"v_fmac_f32 v{AC+i}, s{S_T+1}, v{TU+i}")
    PSTR = 4096
    e(f"s_mul_i32 s{S_T}, s{S_J}, {PSTR}"); e(f"s_add_u32 s{S_T}, s{S_T}, {D0}")
    e(f"v_lshl_add_u32 v1, v0, 5, s{S_T}")
    for ps in range(2):
        for hf in range(2): e(f"ds_write_b128 v1, {vr(AC+8*ps+4*hf,4)} offset:{2048*ps+16*hf}")
    g.stamp("q"); arrive(g, "WC"); lwait(g, "WC"); g.stamp("q")
    call_if(g, [], "L_l2")
    e(f"s_cmp_eq_u32 s{S_FR}, 28"); e("s_cbranch_scc1 L_lin")
    e(f"s_cmp_lt_u32 s{S_FR}, 26"); e("s_cbranch_scc1 L_q")
    e(f"s_cmp_lg_u32 s{S_FR}, 32"); e("s_cbranch_scc1 L_noq")
    g.lab("L_q")
    BQ, PT, DQ = HX + 16, HX + 32, HX + 96
    e("v_and_b32 v2, 31, v0"); e("v_lshrrev_b32 v3, 5, v0")
    e("v_mad_u32_u24 v1, v3, 26, v2"); e("v_lshlrev_b32 v1, 2, v1"); e(f"v_add_u32 v1, {D0}, v1")
    def readsum(stride):
        for pj in range(4):
            for s in range(13): e(f"ds_read_b32 v{PT+13*pj+s}, v1 offset:{PSTR*pj + stride*s}")
            if pj: e("s_waitcnt lgkmcnt(13)")
        e("s_waitcnt lgkmcnt(0)")
        for s in range(13):
            e(f"v_add_f32 v{PT+s}, v{PT+s}, v{PT+13+s}"); e(f"v_add_f32 v{PT+26+s}, v{PT+26+s}, v{PT+39+s}")
        for s in range(13): e(f"v_add_f32 v{BQ+s}, v{PT+s}, v{PT+26+s}")
    def max13():
        e(f"v_max3_f32 v1, |v{BQ}|, |v{BQ+1}|, |v{BQ+2}|")
        for s in range(3, 13, 2): e(f"v_max3_f32 v1, v1, |v{BQ+s}|, |v{BQ+s+1}|")
    readsum(208)
    e("v_cmp_gt_u32 vcc, 26, v2")
    for s in range(13): e(f"v_cndmask_b32 v{BQ+s}, 0, v{BQ+s}, vcc")
    max13()
    wavemax_exp(g, 1, S_E2)
    e(f"s_sub_u32 s{S_T}, 0, s{S_E2}")
    for s in range(13): e(f"v_ldexp_f32 v{BQ+s}, v{BQ+s}, s{S_T}")
    e(f"s_max_u32 s{S_E0}, s{S_E0}, 10"); e(f"s_sub_u32 s{S_E0}, s{S_E0}, 126")
    BH, BL = PT, PT + 8
    e(f"v_mov_b32 v{BQ+13}, 0"); e(f"v_mov_b32 v{BH+7}, 0"); e(f"v_mov_b32 v{BL+7}, 0")
    for t in range(7): e(f"v_cvt_pk_bf16_f32 v{BH+t}, v{BQ+2*t}, v{BQ+2*t+1}")
    for t in range(7):
        e(f"v_lshlrev_b32 v{PT+16+2*t}, 16, v{BH+t}"); e(f"v_and_b32 v{PT+17+2*t}, 0xffff0000, v{BH+t}")
    for t in range(14): e(f"v_sub_f32 v{BQ+t}, v{BQ+t}, v{PT+16+t}")
    for t in range(7): e(f"v_cvt_pk_bf16_f32 v{BL+t}, v{BQ+2*t}, v{BQ+2*t+1}")
    e(f"s_cmp_ge_u32 s{S_FR}, 13"); e(f"s_cselect_b32 s{S_T+1}, 13, 0"); e(f"s_cselect_b32 s{S_T+2}, 4, 0")
    e(f"s_sub_u32 s{S_T+1}, s{S_FR}, s{S_T+1}"); e(f"s_and_b32 s{S_T+3}, s{S_T+1}, 3"); e(f"s_add_u32 s{S_T+2}, s{S_T+2}, s{S_T+3}")
    e(f"s_lshr_b32 s{S_T+1}, s{S_T+1}, 2"); e(f"s_lshl_b32 s{S_T+1}, s{S_T+1}, 3"); e(f"s_add_u32 s{S_SB}, s{S_T+2}, s{S_T+1}")
    e(f"s_mov_b32 s{S_L}, 0")
    e(f"s_cmp_lg_u32 s{S_FR}, 32"); e("s_cbranch_scc1 L_q2")
    e("v_sub_u32 v1, v2, v3")
    for s in range(13):
        e(f"v_cmp_eq_u32 vcc, {2*s}, v1"); e(f"v_cndmask_b32 v{AQ+s}, 0, 1.0, vcc")
    e(f"v_mov_b32 v{AQ+13}, 0")
    for t in range(7): e(f"v_cvt_pk_bf16_f32 v{QAR(t)}, v{AQ+2*t}, v{AQ+2*t+1}")
    e(f"s_mov_b32 s{S_E0}, 0"); e(f"s_mov_b32 s{S_SB}, 31"); e(f"s_mov_b32 s{S_L}, 8")
    g.lab("L_q2")
    g.stamp("q")
    e("s_nop 1")
    first = True
    for bb in (BL, BH):
        for ks in range(2):
            e(f"v_mfma_f32_32x32x16_bf16 {vr(DQ,16)}, {vr(QAR(4*ks),4)}, {vr(bb+4*ks,4)}, {'0' if first else vr(DQ,16)}"); first = False
            e(f"v_mfma_f32_32x32x16_bf16 {vr(DQ,16)}, {vr(bb+4*ks,4)}, {vr(QAR(4*ks),4)}, {vr(DQ,16)}")
    e(f"v_max_f32 v1, v{QS}, v{QS+1}")
    e(f"s_sub_u32 s{S_T}, 137, s{S_E0}"); e(f"s_lshl_b32 s{S_T}, s{S_T}, 23"); e(f"v_mov_b32 v30, s{S_T}"); e("v_mul_f32 v31, 0.5, v30")
    for t in range(7):
        e(f"v_cmp_eq_f32 vcc, v1, v{QS+t}"); e(f"v_cndmask_b32 v{QS+t}, v31, v30, vcc")
    e(f"s_cmp_eq_u32 s{S_J}, 1"); e(f"s_cselect_b32 s{S_T}, 48, 0"); e(f"s_sub_u32 s{S_T}, {D1 - BUFA}, s{S_T}")
    for t in range(7): e(f"v_add_u32 v{QA+t}, s{S_T}, v{QA+t}")
    e(f"v_mul_u32_u24 v1, {S0STR}, v2"); e("v_lshl_add_u32 v1, v3, 9, v1"); e(f"s_lshl_b32 s{S_T}, s{S_J}, 4"); e(f"s_add_u32 s{S_T}, s{S_T}, {D1}")
    e(f"v_min_u32 v1, {22*S0STR+512}, v1")
    e(f"v_add_u32 v1, s{S_T}, v1")
    e(f"v_lshl_add_u32 v28, v3, 9, s{S_T}"); e("v_mov_b32 v29, 0")
    e(f"ds_write_b32 v28, v29 offset:{22*S0STR+12}")
    pack_round(g, DQ, 0, False)
    g.stamp("q")
    e("s_waitcnt lgkmcnt(0)")
    e(f"ds_read_b128 {vr(AQ,4)}, v1")
    e("v_lshlrev_b32 v1, 10, v2"); e("v_lshl_add_u32 v1, v3, 9, v1"); e("v_cmp_lt_u32 vcc, 22, v2"); e(f"v_mov_b32 v28, {OOB}"); e("v_cndmask_b32 v1, v1, v28, vcc")
    e(f"s_lshl_b32 s{S_T}, s{S_SB}, 4"); e(f"s_add_u32 s{S_T}, s{S_T}, {IMG['Q4']}")
    e("s_waitcnt lgkmcnt(0)")
    e(f"buffer_store_dwordx4 {vr(AQ,4)}, v1, {sr(S_WS)}, s{S_T} offen sc1")
    e(f"s_add_u32 s{S_E0}, s{S_E0}, s{S_E2}"); e(f"s_add_u32 s{S_E0}, s{S_E0}, s{S_E1}"); e(f"s_sub_u32 s{S_E0}, s{S_E0}, 10")
    e(f"s_and_b32 s{S_T}, s{S_FR}, 31"); e(f"s_cmp_lg_u32 s{S_T}, 0"); e("s_cbranch_scc1 L_noq")
    g.lab("L_qh")
    e(f"v_mov_b32 v1, s{S_E0}"); e(f"s_add_u32 s{S_T}, s{S_L}, {IMG['Q4'] + 23*1024}")
    e(f"buffer_store_dword v1, v{V_L0}, {sr(S_WS)}, s{S_T} offen sc1")
    e("s_branch L_noq")
    g.lab("L_lin")
    e("v_lshrrev_b32 v3, 5, v0"); e(f"v_min_u32 v2, 25, v{V_HROW}")
    e("v_mad_u32_u24 v1, v2, 26, v3"); e("v_lshlrev_b32 v1, 2, v1"); e(f"v_add_u32 v1, {D0}, v1")
    readsum(8)
    e(f"v_cmp_gt_u32 vcc, 26, v{V_HROW}")
    for s in range(13): e(f"v_cndmask_b32 v{BQ+s}, 0, v{BQ+s}, vcc")
    max13()
    wavemax_exp(g, 1, S_E2)
    e(f"s_sub_u32 s{S_T}, 15, s{S_E2}")
    for s in range(13): e(f"v_ldexp_f32 v{BQ+s}, v{BQ+s}, s{S_T}")
    e(f"v_mov_b32 v{BQ+13}, 0"); e(f"v_mov_b32 v{AQ+7}, 0")
    for t in range(7): e(f"v_cvt_pk_f16_f32 v{AQ+t}, v{BQ+2*t}, v{BQ+2*t+1}")
    e("v_lshlrev_b32 v1, 4, v0"); e(f"s_mov_b32 s{S_T}, {IMG['Q4'] + 24*1024}")
    for s in range(2): e(f"buffer_store_dwordx4 {vr(AQ+4*s,4)}, v1, {sr(S_WS)}, s{S_T} offen offset:{1024*s} sc1")
    e(f"s_add_u32 s{S_E0}, s{S_E2}, s{S_E1}"); e(f"s_sub_u32 s{S_E0}, s{S_E0}, 15"); e(f"s_mov_b32 s{S_L}, 4")
    e("s_branch L_qh")
    g.lab("L_noq")
    g.stamp("q")
    e(f"s_mov_b32 s{S_T+2}, {WS_CNT + C_Q}")
    gsignal(g, "QST", f"s{S_T+2}")
    g.stamp("q")
    lwait(g, "QST")
    e("s_branch L_idle2")
    g.lab("L_l2")
    lwait(g, "AFREE")
    poll1(g, [(S_DBG, "0", 128, 11)], "F2")
    dma_img(g, "L2", 44, BUFA)
    e("s_waitcnt vmcnt(0)"); arrive(g, "L2OK")
    e(RET)
    g.lab("L_idle")
    call_if(g, [], "L_l2")
    g.lab("L_idle2")
    g.stamp(); g.stamp()
    lwait(g, "BFREE")
    poll1(g, [(S_WS, f"s{S_CX}", C_L[3], 11)], "FX")
    dma_img(g, "L3", 44, BUFB)
    e("s_waitcnt vmcnt(0)"); arrive(g, "L3OK")
    g.stamp()
    poll1(g, [(S_WS, f"s{S_CX}", C_Q, 9), CHK_X()], "FQ")
    dma_img(g, "Q4", 28, QB)
    e("s_waitcnt vmcnt(0)"); arrive(g, "QOK")
    g.stamp()
    g.flush_stamps(4, 5)
    e("s_endpgm")

def build(stamps=False):
    g = G(stamps)
    prologue(g); n0 = g.nst
    cin(g)
    g.h0 = len(g.L); g.lab("L_helper"); g.nst = n0
    helper_common(g); n1 = g.nst
    g.e(f"s_cmp_ge_u32 s{S_R}, {NR}"); g.e("s_cbranch_scc1 L_helper_n")
    helper_dnn(g)
    g.lab("L_helper_n"); g.nst = n1
    helper_prod(g)
    prod_early1(g); prod_early2(g)
    g.L += g.tail
    i = g.L.index("L_cin2:"); g.L[i:i] = g.hfirst
    g.lab("L_end"); g.e("s_endpgm")
    body, nops = fix_hazards(g.L)
    ref = open("standalone__deep_cross_xdeepfm__recsys.s.ref").read().split("\n")
    hdr = [l for l in ref if l.startswith(";") and "@launch" not in l and "Override" not in l and "grid=ceil" not in l]
    txt = "\n".join(hdr) + f"\n; @launch grid=(256,1,1) block=(512,1,1) lds={LDS_TOTAL}\n"
    txt += f'.amdgcn_target "amdgcn-amd-amdhsa--gfx950"\n.text\n.globl {KN}\n.p2align 8\n.type {KN},@function\n{KN}:\n'
    txt += "\n".join(body) + "\n"
    txt += f""".section .rodata,"a"
.p2align 6
.amdhsa_kernel {KN}
  .amdhsa_next_free_vgpr 256
  .amdhsa_next_free_sgpr 102
  .amdhsa_accum_offset 256
  .amdhsa_group_segment_fixed_size 0
  .amdhsa_kernarg_size 88
  .amdhsa_user_sgpr_count 2
  .amdhsa_user_sgpr_kernarg_segment_ptr 1
  .amdhsa_system_sgpr_workgroup_id_x 1
.end_amdhsa_kernel
"""
    return txt, nops
if __name__ == "__main__":
    for a in sys.argv[2:]:
        if "=" in a:
            k, v = a.split("="); setattr(PAR, k, eval(v))
    txt, nops = build(stamps="stamps" in sys.argv)
    open(sys.argv[1], "w").write(txt)
    print("nops inserted", nops, "lines", txt.count("\n"))
```

```python
import sys, struct
from asmlib import fix_hazards
KN = "standalone__deep_cross_xdeepfm__recsys_kernel"
def f2u(f): return struct.unpack('<I', struct.pack('<f', f))[0]
OOB = 0x40000000
SPIN = 200000
LB = 35152
IMG = {}
off = 0
for name, n in (("L2", 44), ("L3", 44), ("Q4", 28)):
    IMG[name] = off; off += n * 1024
NR = 15
WS_PART = off
WS_CNT = WS_PART + 16 * NR * 1024
WS_STAMP = 0x80000
WS_X = WS_STAMP + 256 * 8 * 64
C_L = {3: 512}; C_Q = 516; C_XR = 256; C_RDY = 0
BUFA, BUFB = 0, 45056
D0, D1 = 90112, 118784
QB = D0 + 10 * 4096
MISC = QB + 28672
LDS_TOTAL = MISC + 2560
M_S0, M_L1, M_SC, M_EW1, M_CNT = MISC, MISC + 64, MISC + 128, MISC + 192, MISC + 256
CNT = {n: M_CNT + 4 * i for i, n in enumerate(["XST", "L1M", "L1OK", "AFREE", "L2OK", "BFREE", "L3OK", "QOK", "W01", "C0", "C1", "C2", "SCM", "GST", "WC", "QST", "FX", "F2", "F3", "FQ", "S0OK", "S0M", "RAW", "RB"])}
CNT["AFREE"] = M_CNT + 4 * 28; CNT["BFREE"] = M_CNT + 4 * 29; CNT["RB"] = M_CNT + 4 * 30
S0STR = 1040
XSTR = 1680
QPAIRS = [(p, q) for p in range(13) for q in range(p, 13)]
S_IDX, S_TAB, S_WS, S_W1, S_B1, S_W2, S_OUT, S_DBG, S_BO, S_WC, S_WO = 4, 8, 12, 16, 20, 24, 28, 32, 36, 40, 44
S_G, S_R, S_WAVE, S_J = 70, 71, 83, 3
S_HDR = 48
S_EX = 60
S_K = 64
S_K1 = 4
S_KC = 76
S_T = 72
S_MASK = 80
S_C1 = 81
S_SB = 82
S_ST = 84
class P: pass
PAR = P()
PAR.chunks = [7, 7, 6, 6]
PAR.gsplit = 0
PAR.gsplit2 = 3
PAR.lnpos = 28
PAR.pload = 17
PAR.la = 12
PAR.urate = 5
PAR.xst = 2
PAR.l2pos = -1
PAR.nslot = 6
PAR.st = 'ad'
PAR.ld = 'sc1'
PAR.inv = 0
PAR.encsh = 1
PAR.wp = 3
PAR.dp = 3
PAR.otouch = 0
PAR.drop = ('Q4', 6)
PAR.cp2 = 1
PAR.sp = 1
PAR.barpos = 2
PAR.nxl = 4
PAR.noa = 0
PAR.il = 2
PAR.fst = (0, 3, 6, 10, 13, 17, 22)
PAR.xi = 3
PAR.wbn = 3
PAR.wpf3 = 0
PAR.wa = 10
PAR.l3n = 2
PAR.wbpos = 3
PAR.wmod = ''
PAR.w2 = 1
PAR.l1rate = 16
PAR.sclq = 0
PAR.x0 = 0
PAR.qpos = 13
PAR.m16 = 0
PAR.encsel = None
PAR.gmin = 0
PAR.qaearly = 0
PAR.gmod = 'nt'
PAR.imod = 'nt'
PAR.pkpack = 0
PAR.w0lin = 0
PAR.l3rate = 18
PAR.qarr = 3
PAR.gearly = 11
PAR.ngelu = 16
PAR.nmf = 14
PAR.npk = 4
PAR.lslp = 4
PAR.zpad = 1
PAR.skew = 1
PAR.cstr = 4352
PAR.l3late = 1
PAR.xp = 3
PAR.wearly = 0
PAR.wpf2 = 0
PAR.ghi = 1
PAR.qchk = 8
PAR.cp = 1
PAR.enc = None
PAR.rate = 20
PAR.qrate = 24
PAR.clk = 0
PAR.hp = 0
PAR.nost = 0
PAR.wpf = 1
PAR.rot = 2
PAR.pf = 4
PAR.qlate = 0
PAR.slp = 8
PAR.de = 2
PAR.touch = 0
PAR.dbg = None
class G:
    def __init__(self, stamps=False):
        self.L = []; self.stamps = stamps; self.nst = 0; self.nl = 0; self.vmq = []; self.tail = []
    def e(self, s): self.L.append("    " + s)
    def lab(self, s): self.L.append(s + ":")
    def vm(self, s, tag): self.e(s); self.vmq.append(tag)
    def vmwait(self, *tags):
        idx = max(i for i, t in enumerate(self.vmq) if t in tags)
        n = sum(1 for t in self.vmq[idx + 1:] if not t.startswith("f"))
        self.e(f"s_waitcnt vmcnt({min(n, 63)})")
    def newlab(self, s): self.nl += 1; return f"L_{s}_{self.nl}"
    def stamp(self, name=None):
        if self.stamps and (name or "d") in PAR.st:
            assert self.nst < 8
            self.e(f"{'s_memtime' if PAR.clk else 's_memrealtime'} s[{S_ST+2*self.nst}:{S_ST+2*self.nst+1}]"); self.nst += 1
    def flush_stamps(self, vt, va):
        if not self.stamps: return
        self.e("s_waitcnt lgkmcnt(0)")
        self.e(f"s_lshl_b32 s{S_T}, s2, 3"); self.e(f"s_add_u32 s{S_T}, s{S_T}, s{S_WAVE}"); self.e(f"s_lshl_b32 s{S_T}, s{S_T}, 6")
        self.e(f"s_add_u32 s{S_T}, s{S_T}, {WS_STAMP}")
        self.e(f"v_mov_b32 v{va}, 0")
        if PAR.dbg is not None:
            lb = self.newlab("nd")
            self.e(f"s_cmp_lg_u32 s{S_T}, {WS_STAMP + PAR.dbg*64}"); self.e(f"s_cbranch_scc1 {lb}")
            for i in range(self.nst):
                self.e(f"s_sub_u32 s{S_T+1}, s{S_ST+2*i}, s{S_ST}")
                self.e(f"v_mov_b32 v{vt}, s{S_T+1}")
                self.e(f"buffer_store_dword v{vt}, v{va}, s[{S_DBG}:{S_DBG+3}], 0 offen offset:{64+4*i}")
            self.lab(lb)
        for i in range(self.nst):
            self.e(f"v_mov_b32 v{vt}, s{S_ST+2*i}")
            self.e(f"buffer_store_dword v{vt}, v{va}, s[{S_WS}:{S_WS+3}], s{S_T} offen offset:{4*i}")
        self.nst = 0
def vr(a, n): return f"v[{a}:{a+n-1}]"
def sr(a, n=4): return f"s[{a}:{a+n-1}]"
DPPALL = "row_mask:0xf bank_mask:0xf"

def prologue(g):
    e = g.e
    e("s_cmp_ge_u32 s2, 256")
    e("s_cbranch_scc1 L_end")
    g.stamp("a")
    e("s_load_dwordx16 s[48:63], s[0:1], 0")
    e("s_load_dwordx4 s[64:67], s[0:1], 64")
    e("s_load_dwordx2 s[68:69], s[0:1], 80")
    if PAR.pf:
        e(f"s_getpc_b64 s[{S_KC}:{S_KC+1}]")
        g.lab("L_pfbase")
        e(f"s_mov_b32 s{S_KC+2}, L_end - L_pfbase"); e(f"s_mov_b32 s{S_KC+3}, 0x00020000")
        e(f"s_lshr_b32 s{S_T}, s2, 3"); e(f"s_lshl_b32 s{S_T}, s{S_T}, 7")
        e("v_xor_b32 v1, 0x1c0, v0"); e("v_lshlrev_b32 v1, 12, v1")
        e(f"buffer_load_dword v255, v1, {sr(S_KC)}, s{S_T} offen")
    e("v_lshrrev_b32 v1, 6, v0")
    e("v_and_b32 v0, 63, v0")
    e(f"v_readfirstlane_b32 s{S_WAVE}, v1")
    e(f"s_and_b32 s{S_T}, s2, 7")
    e(f"s_lshr_b32 s{S_T+1}, s2, 3")
    e(f"s_lshr_b32 s{S_G}, s{S_T+1}, 4")
    e(f"s_lshl_b32 s{S_T}, s{S_T}, 1")
    e(f"s_add_u32 s{S_G}, s{S_G}, s{S_T}")
    e(f"s_and_b32 s{S_R}, s{S_T+1}, 15")
    e(f"s_mov_b32 s{S_MASK}, 0x7fff7fff")
    e("v_and_b32 v25, 31, v0"); e("v_lshlrev_b32 v25, 2, v25"); e(f"v_add_u32 v25, {M_CNT}, v25"); e("v_mov_b32 v2, 0")
    e("ds_write_b32 v25, v2")
    if PAR.barpos == 2: e("s_waitcnt lgkmcnt(0)"); e("s_barrier")
    e(f"s_cmp_ge_u32 s{S_WAVE}, 4")
    e("s_cbranch_scc1 L_helper")

SRDS = {S_IDX: (48, 4096*104), S_TAB: (50, 6400000), S_WC: (52, LB), S_WO: (54, 312), S_W1: (56, 832*1664), S_B1: (58, 1664), S_W2: (60, 1664),
        S_BO: (62, 2), S_OUT: (64, 8192), S_DBG: (66, 256), S_WS: (68, 1 << 28)}
def srd_const(g, lst):
    for srd in lst: g.e(f"s_mov_b32 s{srd+2}, {SRDS[srd][1]}"); g.e(f"s_mov_b32 s{srd+3}, 0x00020000")
def srd_base(g, lst):
    for srd in lst: g.e(f"s_mov_b64 s[{srd}:{srd+1}], s[{SRDS[srd][0]}:{SRDS[srd][0]+1}]")
ACC, ACC2, XR, UR, BR, AR, SC, LG, TM = 4, 68, 132, 188, 216, 228, 244, 248, 252
def X(k, p): return XR + 14 * k + p
def EV(k): return XR + 14 * k + 13
def U(k, t): return UR + 7 * k + t
def cin(g):
    e = g.e
    e("s_setprio 3")
    e(f"s_lshl_b32 s{S_T}, s{S_G}, 8"); e(f"s_lshl_b32 s{S_T+1}, s{S_R}, 4"); e(f"s_add_u32 s{S_T}, s{S_T}, s{S_T+1}")
    e(f"s_lshl_b32 s{S_T+1}, s{S_WAVE}, 2"); e(f"s_add_u32 s{S_SB}, s{S_T}, s{S_T+1}")
    e("v_lshrrev_b32 v1, 4, v0")
    e("v_bfe_u32 v2, v0, 2, 2")
    e("v_and_b32 v3, 3, v0")
    e("v_mul_u32_u24 v4, 104, v1")
    e("v_mad_u32_u24 v4, v2, 28, v4")
    I = 8
    CS = [S_IDX, S_WC, S_TAB, S_WS, S_OUT] + ([S_DBG] if PAR.dbg is not None or PAR.gmin else [])
    srd_const(g, CS[:1])
    e(f"s_mul_i32 s{S_T}, s{S_SB}, 104")
    g.stamp("i")
    e("s_waitcnt lgkmcnt(0)")
    g.stamp("i")
    srd_base(g, CS[:1])
    e(f"buffer_load_dwordx4 {vr(I,4)}, v4, {sr(S_IDX)}, s{S_T} offen {PAR.imod}")
    e(f"buffer_load_dwordx3 {vr(I+4,3)}, v4, {sr(S_IDX)}, s{S_T} offen offset:16 {PAR.imod}")
    e(f"s_setprio {PAR.sp}")
    e("s_branch L_cin2")
    g.lab("L_cin2")
    srd_base(g, CS[1:])
    e(f"s_load_dword s{S_BO}, s[62:63], 0")
    srd_const(g, CS[1:])
    e(f"s_mov_b32 s{S_WC+2}, {2*LB}"); e(f"s_mov_b32 s{S_J}, s{S_WAVE}")
    e("v_lshlrev_b32 v5, 4, v3")
    e("v_cmp_eq_u32 vcc, 3, v2")
    e(f"v_mov_b32 v6, {OOB}")
    e("v_cndmask_b32 v6, 0, v6, vcc")
    e("v_add_u32 v6, v6, v5")
    e("v_lshlrev_b32 v26, 4, v0"); e("v_cmp_lt_u32 vcc, 42, v0"); e(f"v_mov_b32 v27, {OOB}"); e("v_cndmask_b32 v26, v26, v27, vcc")
    e("v_lshlrev_b32 v29, 4, v0"); e(f"v_add_u32 v29, {BUFA + 28*1024}, v29")
    e(f"s_lshl_b32 s{S_T}, s{S_J}, 4"); e(f"s_add_u32 s{S_T}, s{S_T}, {BUFB}")
    e(f"v_mul_u32_u24 v28, {S0STR}, v0"); e(f"v_add_u32 v28, s{S_T}, v28"); e("v_cndmask_b32 v28, v28, v29, vcc")
    e(f"s_mul_i32 s{S_T+1}, s{S_WAVE}, {4*XSTR}"); e(f"s_add_u32 s{S_T+1}, s{S_T+1}, {D0}")
    e(f"v_mul_u32_u24 v7, {XSTR}, v1")
    e("v_mad_u32_u24 v16, v2, 7, 0")
    e("v_lshl_add_u32 v7, v16, 6, v7")
    e(f"v_add3_u32 v7, v7, v5, s{S_T+1}")
    e("v_cmp_eq_u32 vcc, 3, v2")
    e(f"v_lshl_add_u32 v18, v0, 4, 0"); e(f"v_add_u32 v18, {D0 + 16*XSTR + 256 - 320}, v18"); e("v_cndmask_b32 v18, v7, v18, vcc")
    e("v_lshrrev_b32 v16, 1, v1")
    e("v_xor_b32 v16, v16, v2")
    e("v_lshlrev_b32 v16, 6, v16")
    e("v_and_b32 v17, 1, v1")
    e("v_lshl_add_u32 v16, v17, 5, v16")
    e("v_lshl_add_u32 v16, v3, 3, v16")
    e(f"v_add_u32 v16, s{S_T+1}, v16")
    for k in range(4): e(f"v_mov_b32 v{LG+k}, 0")
    PA, PS, DR = 32, 40, 184
    if PAR.zpad:
        for i in range(4): e(f"v_mov_b32 v{PS+i}, 0")
        e(f"s_and_b32 s{S_T}, s{S_J}, 1"); e(f"s_mul_i32 s{S_T}, s{S_T}, 48"); e(f"s_lshr_b32 s{S_T+1}, s{S_J}, 1"); e(f"s_mul_i32 s{S_T+1}, s{S_T+1}, 480")
        e(f"s_add_u32 s{S_T}, s{S_T}, s{S_T+1}"); e(f"v_add_u32 v30, s{S_T}, v28")
        e(f"v_subrev_u32 v31, {BUFB - BUFA}, v30"); e("v_cmp_lt_u32 vcc, 22, v0"); e("v_cndmask_b32 v31, v31, v29, vcc")
        for i in range(3):
            e(f"ds_write_b128 v30, {vr(PS,4)} offset:{25*16 + 16*i}"); e(f"ds_write_b128 v31, {vr(PS,4)} offset:{25*16 + 16*i}")
    unpack_mat(g, PA, 20)
    e("s_setprio 1")
    L1R = 132
    if not PAR.barpos: e("s_barrier")
    g.stamp("i")
    e(f"s_mul_i32 s{S_T}, s{S_J}, 1352")
    for i in range(13):
        if i < 12:
            t = i >> 1
            if i & 1 == 0: e(f"s_add_u32 s{S_T+1}, s{S_T}, {LB + (13*(t&1) + 4*(t>>1))*1352}")
            e(f"buffer_load_dwordx4 {vr(L1R+4*i,4)}, v26, {sr(S_WC)}, s{S_T+1} offen offset:{676*(i&1)}")
        else:
            e(f"s_lshr_b32 s{S_T+1}, s{S_J}, 1"); e(f"s_mul_i32 s{S_T+1}, s{S_T+1}, {13*1352}"); e(f"s_and_b32 s{S_T+2}, s{S_J}, 1"); e(f"s_mul_i32 s{S_T+2}, s{S_T+2}, 676")
            e(f"s_add_u32 s{S_T+1}, s{S_T+1}, s{S_T+2}"); e(f"s_add_u32 s{S_T+1}, s{S_T+1}, {LB + 12*1352}")
            e(f"buffer_load_dwordx4 {vr(L1R+4*i,4)}, v26, {sr(S_WC)}, s{S_T+1} offen")
    e("s_setprio 3")
    g.stamp("i")
    e("s_waitcnt vmcnt(13)")
    g.stamp("i")
    GR, MR = 68, 96
    for t in range(7):
        e(f"v_lshl_add_u32 v{I+t}, v{I+t}, 6, v{5 if t < 5 else 6}")
        e(f"buffer_load_dwordx4 {vr(GR+4*t,4)}, v{I+t}, {sr(S_TAB)}, 0 offen {PAR.gmod}")
    g.stamp(); g.stamp("i")
    e(f"s_setprio {PAR.cp}")
    if PAR.barpos == 1: e("s_barrier")
    def carrive(c):
        e("v_mov_b32 v2, 1"); e("s_mov_b64 exec, 1"); e(f"ds_add_u32 v25, v2 offset:{CNT[c]-M_CNT}"); e("s_mov_b64 exec, -1")
    for i in range(13):
        e(f"s_waitcnt vmcnt({7 + 12 - i})")
        unpack(g, DR, PA, L1R, i)
        if i & 1 and i >= 3: tmax(g, DR, (i >> 1) - 1, 16, i == 3)
    e(f"s_and_b32 s{S_T}, s{S_J}, 1"); e(f"s_lshl_b32 s{S_T}, s{S_T}, 4")
    tmax(g, DR, 5, 16, False)
    for r in range(4): e(f"v_alignbit_b32 v{L1R+48+r}, v{L1R+48+r}, v{L1R+48+r}, s{S_T}")
    tmax(g, DR, 6, 8, False)
    put_max(g, M_L1)
    carrive("L1M")
    for i in range(8): e(f"v_and_b32 v{PS+i}, 0x800080, v{PA+i}")
    g.stamp("s")
    e(f"s_setprio {PAR.cp2}")
    lwait(g, "L1M", 4, 25, 2)
    get_max(g, M_L1)
    e(f"v_readfirstlane_b32 s{S_T}, v1")
    e(f"s_lshr_b32 s{S_T}, s{S_T}, 23"); e(f"s_min_u32 s{S_T}, s{S_T}, 249"); e(f"s_sub_u32 s{S_HDR+2}, s{S_T}, 124")
    e(f"s_sub_u32 s{S_T}, {127+124}, s{S_T}")
    for i in range(8): e(f"v_mul_u32_u24 v{PS+i}, s{S_T}, v{PS+i}")
    def l1out(i):
        d = DR + 16 * ((i >> 1) & 3) + 8 * (i & 1)
        for r in range(4):
            lo, hi = (d + 2 * r + 1, d + 2 * r) if (i & 1) else (d + 2 * r, d + 2 * r + 1)
            e(f"v_cvt_pk_f16_f32 v{L1R+4*i+r}, v{lo}, v{hi}")
        if i < 12:
            t = i >> 1; o = 16 * (8 * (t >> 1) + 4 * (t & 1)) + 512 * (i & 1)
        else:
            e(f"s_lshr_b32 s{S_T}, s{S_J}, 1"); e(f"s_lshl_b32 s{S_T}, s{S_T}, 5"); e(f"s_and_b32 s{S_T+1}, s{S_J}, 1"); e(f"s_mul_i32 s{S_T+1}, s{S_T+1}, 496")
            e(f"s_add_u32 s{S_T}, s{S_T}, s{S_T+1}"); e(f"v_add_u32 v28, s{S_T}, v28"); o = 24 * 16
        e(f"ds_write_b128 v28, {vr(L1R+4*i,4)} offset:{o}")
    for i in range(13):
        unpack(g, DR, PS, L1R, i)
        if i >= 4: l1out(i - 4)
    for i in range(9, 13): l1out(i)
    g.stamp("s")
    e(f"ds_read_b32 v3, v25 offset:{CNT['S0OK']-M_CNT}")
    e("v_lshlrev_b32 v1, 4, v0")
    for i in range(2): e(f"ds_read_b128 {vr(AR+4*i,4)}, v1 offset:{BUFA + i*S0STR}")
    e("s_waitcnt lgkmcnt(2)")
    DR = 132
    e("v_mov_b32 v2, 1")
    e(f"s_setprio {PAR.xp}")
    for t in range(7):
        e(f"s_waitcnt vmcnt({6 - t})")
        unpack(g, DR, PA, GR, t)
        e(f"ds_write_b128 v{7 if t < 5 else 18}, {vr(GR+4*t,4)} offset:{64*t}")
        if t in (3, 5): tmax(g, DR, (t >> 1) - 1, 16, t == 3, 20)
    e("s_mov_b64 exec, 1"); e(f"ds_add_u32 v25, v2 offset:{CNT['RAW']-M_CNT}"); e("s_mov_b64 exec, -1")
    g.stamp(); g.stamp("s")
    tmax(g, DR, 2, 16, False, 20); tmax(g, DR, 3, 8, False, 20)
    for sh in (8, 4, 2, 1):
        e(f"v_max_u32_dpp v20, v20, v20 row_ror:{sh} {DPPALL}")
    e("v_lshrrev_b32 v20, 23, v20"); e("v_max_u32 v20, 4, v20")
    e(f"v_sub_u32 v22, {127+130}, v20"); e("v_lshlrev_b32 v22, 23, v22")
    for t in range(7):
        d = DR + 8 * t
        for i in range(8): e(f"v_mul_f32 v{d+i}, v{d+i}, v22")
        for i in range(4): e(f"v_cvt_pk_f16_f32 v{MR+4*t+i}, v{d+2*i}, v{d+2*i+1}")
        e(f"ds_write_b128 v{7 if t < 5 else 18}, {vr(MR+4*t,4)} offset:{D1 - D0 + 64*t}")
    for k in range(4):
        for t in range(7):
            e(f"ds_read_b64_tr_b16 {vr(X(k,2*t),2)}, v16 offset:{D1 - D0 + k*XSTR+t*256}")
    for k in range(4): e(f"v_readlane_b32 s{S_EX+k}, v20, {16*k}")
    HW = lambda l: S_HDR + 2 * l
    HD = lambda l: S_HDR + 2 * l + 1
    HQ, HL = S_HDR + 8, S_HDR + 9
    e("s_setprio 1")
    e(f"v_readfirstlane_b32 s{S_T}, v3"); e(f"s_cmp_ge_u32 s{S_T}, 4"); e("s_cbranch_scc1 L_s0ok")
    lwait(g, "S0OK", 4, 25, 2)
    for i in range(2): e(f"ds_read_b128 {vr(AR+4*i,4)}, v1 offset:{BUFA + i*S0STR}")
    g.lab("L_s0ok")
    e("s_waitcnt lgkmcnt(14)")
    g.stamp(); g.stamp("s")

    ready = set()
    def quad_prod(k, rho):
        p, q = QPAIRS[rho]
        return lambda d: f"v_pk_mul_f16 v{d}, v{X(k,p)}, v{X(k,q)} op_sel_hi:[0,1]"
    def gen_prod(l):
        def f(k, rho):
            r, p = divmod(rho, 13)
            def mk(d):
                if r == 13: return f"v_mov_b32 v{d}, v{U(k,p)}" if l == 2 else f"v_mov_b32 v{d}, 0"
                assert ('u', l, k, r) in ready, (l, k, r)
                if r & 1: return f"v_pk_mul_f16 v{d}, v{U(k,r>>1)}, v{X(k,p)} op_sel:[1,0] op_sel_hi:[1,1]"
                return f"v_pk_mul_f16 v{d}, v{U(k,r>>1)}, v{X(k,p)} op_sel_hi:[0,1]"
            return mk
        return f
    def lin_prod(k, t):
        b = 2 * t + 1 if 2 * t + 1 < 13 else 2 * t
        return lambda d: f"v_pack_b32_f16 v{d}, v{X(k,2*t)}, v{X(k,b)}"
    S_CL = S_C1
    e(f"s_mov_b32 s{S_CL}, {115 << 23}"); e(f"s_mov_b32 s{S_MASK}, 145"); e(f"s_lshl_b32 s{S_BO}, s{S_BO}, 16")
    def cvt1(acc, k, t): return f"v_cvt_pk_f16_f32 v{U(k,t)}, v{acc+16*k+2*t}, " + (f"v{acc+16*k+2*t+1}" if t < 6 else "0")
    def scl1(l, k, t): return [(f"v_pk_mul_f16 v{U(k,t)}, v{U(k,t)}, v{SC+k} op_sel_hi:[1,0]", ('u', l + 1, k, 2 * t)), (None, ('u', l + 1, k, 2 * t + 1))]
    def head(acc, l, k):
        a = acc + 16 * k; ef = EV(k) if l == 0 else TM + k
        return [f"v_max3_f32 v{SC+k}, |v{a}|, |v{a+1}|, |v{a+2}|", f"v_max3_f32 v{TM+k}, |v{a+3}|, |v{a+4}|, |v{a+5}|",
                f"v_max3_f32 v{SC+k}, v{SC+k}, |v{a+6}|, |v{a+7}|", f"v_max3_f32 v{TM+k}, v{TM+k}, |v{a+8}|, |v{a+9}|",
                f"v_max3_f32 v{SC+k}, v{SC+k}, |v{a+10}|, |v{a+11}|", f"v_max3_f32 v{SC+k}, v{SC+k}, v{TM+k}, |v{a+12}|",
                f"v_mov_b32 v{TM+k}, v{SC+k}", cvt1(acc, k, 0), cvt1(acc, k, 1),
                f"v_permlane32_swap_b32 v{SC+k}, v{TM+k}", f"v_max3_f32 v{SC+k}, v{SC+k}, v{TM+k}, s{S_CL}",
                f"v_lshrrev_b32 v{ef}, 23, v{SC+k}", f"v_sub_u32 v{SC+k}, s{S_MASK}, v{ef}", f"v_lshlrev_b32 v{SC+k}, 10, v{SC+k}"] + scl1(l, k, 0)
    def rest(acc, l):
        o = []
        for k in range(4): o += scl1(l, k, 1)
        for t in range(2, 7):
            o += [cvt1(acc, k, t) for k in range(4)]
            for k in range(4): o += scl1(l, k, t)
        return o
    def evup(l):
        return [(None, 'x', ('k', l))] + [f"v_add3_u32 v{EV(k)}, v{EV(k)}, v{TM+k}, s{S_K+k}" for k in range(4)] + [(None, ('ev', l))]
    state = dict(base=0, n=0)
    lq = []
    landed = set()
    def emit(x):
        if callable(x): return x() or 0
        if isinstance(x, tuple):
            if len(x) == 3: assert x[2] in ready, x
            ready.add(x[1]); x = x[0]
        if not x: return 0
        e(x)
        if x.startswith('ds_'): lq.append(['side', state['n']])
        return 2 if 'permlane' in x else 1
    GATE = 'GATE'
    import re
    def nbytes(x):
        if callable(x): return 0 if x.__name__ == '<lambda>' else 8
        if isinstance(x, tuple): x = x[0]
        if not x or x == GATE: return 0
        op = x.split()[0]
        lit = any(abs(int(t, 0)) > 64 for t in re.findall(r'(?<![\w\[:])(-?(?:0x[0-9a-f]+|\d+))(?![\w\]:.])', x.split(None, 1)[1]))
        short = op.startswith('s_') or op in ('v_mov_b32', 'v_mul_f32', 'v_add_f32', 'v_add_u32', 'v_sub_u32', 'v_lshrrev_b32', 'v_lshlrev_b32', 'v_and_b32',
                                              'v_permlane32_swap_b32', 'v_readfirstlane_b32', 'v_cmp_lt_u32', 'v_cndmask_b32', 'v_max_f32', 'v_fmac_f32')
        return 4 if short and not lit else 8
    jobs = []; frags = []; pos = {}
    def phase(name, nprod, prod, acc, base, stride=1024, ok=None, needs=None, skew0=False, skew1=False, extra=None):
        ns = (nprod + 3) // 4
        fr = [dict(lds=base + stride * s, ok=ok if s == 0 else None) for s in range(ns)]
        frags.extend(fr)
        order = [(s, k) for s in range(ns) for k in range(4)]
        if skew0: order[:8] = [(s, k) for k in range(4) for s in (0, 1)]
        if skew1: order[-8:] = [(s, k) for k in range(4) for s in (ns - 2, ns - 1)]
        for i, (s, k) in enumerate(order):
            if i % 4 == 0: pos[(name, i // 4)] = len(jobs)
            jobs.append(dict(acc=acc + 16 * k, fr=fr[s], zero=(s == 0), needs=needs if s == 0 else None, last=(name, k) if s == ns - 1 else None,
                             prods=[prod(k, rho) for rho in range(4 * s, min(4 * s + 4, nprod))], req=('u', int(name[1]), k, 0) if name[0] == 'L' and s == 0 else None))
            if extra and i % 4 == 3 and i // 4 in extra: jobs.extend(extra[i // 4])
    LT, LA = UR, UR + 16
    LP = [3, 8, 13, 18]
    LN = {LP[k]: [dict(acc=LT, a=LA + 4 * i, zero=(i == 0), needs=('lin', k - 1), last=('LN', k) if i else None, req=None,
                       prods=[lin_prod(k, t) for t in range(4 * i, min(4 * i + 4, 7))]) for i in range(2)] for k in range(4)}
    sk = PAR.skew
    phase("S0", 91, quad_prod, ACC, BUFA, stride=S0STR, skew1=sk)
    phase("L1", 172, gen_prod(1), ACC2, BUFB, stride=S0STR, ok="RAW", skew0=sk, skew1=sk)
    phase("L2", 176, gen_prod(2), ACC, BUFA, ok="L2OK", needs=('free', 0), skew0=sk, skew1=sk)
    phase("L3", 169, gen_prod(3), ACC2, BUFB, ok="L3OK", needs=('free', 1), skew0=sk)
    phase("Q4", 91, quad_prod, ACC, QB, ok="QOK", needs=('free', 2), skew1=sk, extra=LN)
    for i, f in enumerate(frags): f['id'] = i; f['a'] = AR + 4 * (i % 4)
    for n, j in enumerate(jobs):
        if 'fr' in j: j['fr'].setdefault('first', n); j['fr']['lastj'] = n
    def hdr(addr, sa, sb=None):
        return [f"v_mov_b32 v3, {addr}", "ds_read_b64 v[2:3], v3", GATE, f"v_readfirstlane_b32 s{sa}, v2"] + ([f"v_readfirstlane_b32 s{sb}, v3"] if sb else [])
    def arrive(c, after=None):
        def f():
            if after is not None: assert 'issued' in after
            e(f"v_add_u32 v3, {(CNT[c] - state['base']) & 0xffffffff}, v1"); return 1
        return ["v_mov_b32 v2, 1", f, "ds_add_u32 v3, v2"]
    def check(c):
        def f():
            slow = g.newlab("cs"); back = g.newlab("cb"); top = g.newlab("ct")
            if c != "RAW": g.stamp("w")
            e(f"s_cmp_lt_u32 s{S_T+2}, 4"); e(f"s_cbranch_scc1 {slow}")
            g.lab(back)
            if c != "RAW": g.stamp("w")
            g.tail += [slow + ":", f"    s_mov_b32 s{S_T+1}, {SPIN*8}", top + ":", "    s_sleep 1", "    ds_read_b32 v2, v3", "    s_waitcnt lgkmcnt(0)",
                       f"    v_readfirstlane_b32 s{S_T+2}, v2", f"    s_cmp_ge_u32 s{S_T+2}, 4", f"    s_cbranch_scc1 {back}",
                       f"    s_sub_u32 s{S_T+1}, s{S_T+1}, 1", f"    s_cbranch_scc0 {top}", f"    s_branch {back}"]
            ready.add(c); return 2
        return [f"v_mov_b32 v3, {CNT[c]}", "ds_read_b32 v2, v3", GATE, f"v_readfirstlane_b32 s{S_T+2}, v2", f]
    def stp(n=None): return [lambda: g.stamp(n)]
    HOFF = 29 * 16
    PV, PA = 2, 3
    def pload():
        e(f"buffer_load_dword v{PV}, v{PA}, {sr(S_WS)}, s{S_T+3} offen sc1"); return 1
    kc1 = [f"s_add_u32 s{S_T}, s{HW(0)}, s{HW(1)}", f"s_add_u32 s{S_T}, s{S_T}, s{HD(2)}", f"s_sub_u32 s{S_T}, s{S_T}, 780"]
    kc1 += [f"s_lshl2_add_u32 s{S_K+k}, s{S_EX+k}, s{S_T}" for k in range(4)] + [(None, ('k', 1))]
    k1 = [f"s_sub_u32 s{S_T}, s{HD(1)}, s{HD(2)}", f"s_add_u32 s{S_T}, s{S_T}, 130"] + [f"s_sub_u32 s{S_K1+k}, s{S_T}, s{S_EX+k}" for k in range(4)] + [(None, 'k1')]
    kc2 = [(None, 'x', ('ev', 1)), f"s_sub_u32 s{S_T}, s{HW(2)}, s{HD(2)}", f"s_add_u32 s{S_T}, s{S_T}, s{HD(3)}", f"s_sub_u32 s{S_T}, s{S_T}, 260"]
    kc2 += [f"s_add_u32 s{S_K+k}, s{S_T}, s{S_EX+k}" for k in range(4)] + [(None, ('k', 2))]
    dots = [(None, 'x', 'k1')]
    for k in range(4): dots.append(f"v_ldexp_f32 v{ACC+16*k+15}, v{ACC+16*k+15}, v{EV(k)}")
    for k in range(4): dots.append(f"v_add_u32 v{ACC+16*k+13}, s{S_K1+k}, v{EV(k)}")
    for k in range(4): dots.append(f"v_ldexp_f32 v{ACC+16*k+14}, v{ACC+16*k+14}, v{ACC+16*k+13}")
    for k in range(4): dots.append(f"v_add_f32 v{LG+k}, v{ACC+16*k+14}, v{ACC+16*k+15}")
    kf = [(None, 'x', ('ev', 2)), f"s_sub_u32 s{S_T}, s{HW(3)}, s{HD(3)}", f"s_sub_u32 s{S_T}, s{S_T}, 130", f"s_add_u32 s{HL}, s{HL}, s{S_T}", f"s_add_u32 s{HQ}, s{HQ}, s{S_T}",
          f"s_sub_u32 s{HQ}, s{HQ}, 130", f"s_sub_u32 s{HD(0)}, s{HD(0)}, 260"]
    for k in range(4):
        kf += [f"s_add_u32 s{S_K1+k}, s{HL}, s{S_EX+k}", f"s_lshl1_add_u32 s{S_K+k}, s{S_EX+k}, s{HQ}", f"s_lshl1_add_u32 s{S_KC+k}, s{S_EX+k}, s{HD(0)}"]
    kf.append((None, 'kf'))
    pre = ["v_bfe_u32 v2, v0, 4, 1", "v_lshrrev_b32 v3, 5, v0", "v_lshl_add_u32 v2, v2, 1, v3", "v_and_b32 v3, 15, v0", f"v_cmp_lt_u32 vcc, {NR-1}, v3",
           "v_lshlrev_b32 v3, 10, v3", "v_lshl_add_u32 v3, v2, 2, v3", f"v_mov_b32 v2, {OOB}", "v_cndmask_b32 v3, v3, v2, vcc",
           f"s_mul_i32 s{S_T+3}, s{S_G}, {NR*1024}", f"s_and_b32 s{S_T}, s{S_SB}, 255", f"s_lshl_b32 s{S_T}, s{S_T}, 2",
           f"s_add_u32 s{S_T+3}, s{S_T+3}, s{S_T}", f"s_add_u32 s{S_T+3}, s{S_T+3}, {WS_PART}"]
    def lread():
        for i in range(2): emit(f"ds_read_b128 {vr(LA+4*i,4)}, v1 offset:{QB + (24 + i)*1024 - state['base']}")
        return 2
    BO = ACC2 + 14
    d3 = [f"v_ldexp_f32 v{ACC2+16*k+15}, v{ACC2+16*k+15}, v{EV(k)}" for k in range(4)] + [f"v_add_f32 v{LG+k}, v{LG+k}, v{ACC2+16*k+15}" for k in range(4)]
    if PAR.otouch: d3 += [f"s_lshl_b32 s{S_J}, s{S_SB}, 1", f"buffer_load_ushort v{BO+16}, v{BO-1}, {sr(S_OUT)}, s{S_J} offen"]
    fill = {("L1", 2): rest(ACC, 0) + [(None, ('free', 0))], ("L2", 2): rest(ACC2, 1) + [(None, ('free', 1))], ("L2", 16): evup(1),
            ("L3", 2): rest(ACC, 2) + dots + [(None, ('free', 2))] + evup(2), ("Q4", 1): d3}
    for k in range(4):
        o = [f"v_mul_f32 v{SC+k}, v{LT}, v{ACC2+16*k}"] + [f"v_fmac_f32 v{SC+k}, v{LT+r}, v{ACC2+16*k+r}" for r in range(1, 13)] + [(None, ('lin', k)), (None, 'x', 'kf')]
        o += [f"v_add_u32 v{TM+k}, s{S_K1+k}, v{EV(k)}", f"v_ldexp_f32 v{SC+k}, v{SC+k}, v{TM+k}", f"v_add_u32 v{TM+k}, s{S_K+k}, v{EV(k)}", f"v_add_f32 v{LG+k}, v{LG+k}, v{SC+k}", (None, ('lind', k))]
        fill[("Q4", LP[k] + 2)] = o
    def final(k):
        return ([(None, 'x', ('lind', k)), f"v_mul_f32 v{SC+k}, v{ACC+16*k}, v{ACC2+16*k}", f"v_ldexp_f32 v{ACC+16*k+15}, v{ACC+16*k+15}, s{S_KC+k}"]
                + [f"v_fmac_f32 v{SC+k}, v{ACC+16*k+r}, v{ACC2+16*k+r}" for r in range(1, 13)]
                + [f"v_add_f32 v{LG+k}, v{LG+k}, v{ACC+16*k+15}", f"v_ldexp_f32 v{SC+k}, v{SC+k}, v{TM+k}", f"v_add_f32 v{LG+k}, v{LG+k}, v{SC+k}"])
    urgent = {}
    for k in range(4):
        urgent[("S0", k)] = head(ACC, 0, k); urgent[("L1", k)] = head(ACC2, 1, k); urgent[("L2", k)] = head(ACC, 2, k); urgent[("Q4", k)] = final(k)
    side = {("S0", 0): arrive("RB"), ("S0", 2): hdr(BUFA + 23 * S0STR + 512, HW(0)), ("S0", 14): check("RAW"), ("S0", 21): arrive("AFREE", frags[22]),
            ("S0", 8): ["s_setprio 2"], PAR.drop: ["s_setprio 0"],
            ("L1", 0): stp(), ("L1", 35): check("L2OK"), ("L1", 41): arrive("BFREE", frags[65]),
            ("L2", 0): stp(), ("L2", 4): hdr(BUFA + HOFF, HW(2), HD(2)) + kc1 + hdr(BUFA + HOFF + 8, HD(1)) + k1, ("L2", 36): check("L3OK"),
            ("L3", 12): hdr(BUFB + HOFF, HW(3), HD(3)) + kc2,
            ("L3", 43 - PAR.qchk): check("QOK") + hdr(QB + 23 * 1024, HQ, HL) + hdr(QB + 23 * 1024 + 8, HD(0)),
            ("Q4", 0): [lread, GATE, (None, ('lin', -1))] + kf, ("Q4", 9): pre[:7], ("Q4", 14): pre[7:], ("Q4", PAR.pload): [pload]}
    rates = {("S0", 0): PAR.rate, ("L1", 0): PAR.l1rate, ("L2", 0): 32, ("L3", 0): PAR.l3rate, ("Q4", 0): PAR.qrate}
    fill = {pos[k]: v for k, v in fill.items()}; side = {pos[k]: v for k, v in side.items()}; rates = {pos[k]: v for k, v in rates.items()}
    frags[0]['issued'] = frags[1]['issued'] = True
    nfr = 2; fq = []; sq = []; uq = []; credit = 0; gated = False
    def prods(n):
        job = jobs[n]; job['b'] = BR + 4 * (n % 3)
        while job['req'] and job['req'] not in ready: emit(uq.pop(0)[1])
        return [p(job['b'] + i) for i, p in enumerate(job['prods'])]
    for n in range(2):
        for x in prods(n): e(x)
    e("s_waitcnt lgkmcnt(0)"); landed |= {0, 1}
    for n, job in enumerate(jobs):
        state['n'] = n
        fq += fill.get(n, []); sq += side.get(n, []); rate = rates.get(n, rate if n else None)
        budget = 6
        if 'fr' in job and job['fr']['id'] not in landed:
            idx = max(i for i, (t, at) in enumerate(lq) if t == job['fr']['id'] or at <= n - 3)
            e(f"s_waitcnt lgkmcnt({len(lq) - 1 - idx})")
            landed |= {t for t, at in lq[:idx + 1]}; del lq[:idx + 1]
        if job['needs']: assert job['needs'] in ready, job['needs']
        c = "0" if job['zero'] else vr(job['acc'], 16)
        e(f"v_mfma_f32_32x32x16_f16 {vr(job['acc'],16)}, {vr(job['a'] if 'a' in job else job['fr']['a'],4)}, {vr(job['b'],4)}, {c}")
        if job['last'] in urgent: uq += [(n + 2, x) for x in urgent[job['last']]]
        if nfr < len(frags) and frags[nfr]['first'] - n <= PAR.la and (nfr < 4 or frags[nfr - 4]['lastj'] < n):
            f = frags[nfr]; nfr += 1; f['issued'] = True
            if f['ok']: assert f['ok'] in ready, f['ok']
            r = f['lds'] - state['base']
            if r < 0 or r > 65535:
                e(f"v_add_u32 v1, {r & 0xffffffff}, v1"); state['base'] = f['lds']; r = 0; budget -= 1
            e(f"ds_read_b128 {vr(f['a'],4)}, v1 offset:{r}"); lq.append([f['id'], n]); budget -= 1
        u = PAR.urate
        while uq and uq[0][0] <= n and u > 0: c = emit(uq.pop(0)[1]); u -= c; budget -= c
        if n + 2 < len(jobs):
            ps = prods(n + 2)
            for x in ps: e(x)
            budget -= len(ps)
            credit += sum(8 - nbytes(p) for p in ps) + 8 * (4 - len(ps))
        credit = min(credit + rate / 4, 16)
        while sq:
            if sq[0] == GATE:
                if any(t == 'side' for t, at in lq): break
                sq.pop(0); continue
            if not ((budget > 0 and credit >= nbytes(sq[0])) or nbytes(sq[0]) == 0): break
            x = sq.pop(0); budget -= emit(x); credit -= nbytes(x)
        while fq and ((budget > 0 and credit >= nbytes(fq[0])) or nbytes(fq[0]) == 0):
            x = fq.pop(0); budget -= emit(x); credit -= nbytes(x)
    assert not sq and not fq, (sq, fq)
    g.stamp()
    for at, x in uq: emit(x)
    e(f"v_permlane32_swap_b32 v{LG}, v{LG+1}"); e(f"v_permlane32_swap_b32 v{LG+2}, v{LG+3}")
    e(f"v_add_f32 v{LG}, v{LG}, v{LG+1}"); e(f"v_add_f32 v{LG+2}, v{LG+2}, v{LG+3}")
    e(f"v_permlane16_swap_b32 v{LG}, v{LG+2}")
    e(f"v_add_f32 v{LG}, v{LG}, v{LG+2}")
    e(f"s_mov_b32 s{S_T}, {SPIN}")
    g.lab("L_pcheck")
    e("s_waitcnt vmcnt(0)")
    e(f"v_cmp_eq_u32 vcc, -1, v{PV}")
    e("s_nop 1")
    e("s_cbranch_vccz L_pok")
    e("s_sleep 4")
    pload()
    e(f"s_sub_u32 s{S_T}, s{S_T}, 1")
    e("s_cbranch_scc0 L_pcheck")
    e("s_waitcnt vmcnt(0)")
    g.lab("L_pok")
    e(f"v_add_f32 v{LG}, v{LG}, v{PV}")
    for sh in (8, 4, 2, 1):
        e(f"v_add_f32_dpp v{LG}, v{LG}, v{LG} row_ror:{sh} {DPPALL}")
    e(f"v_add_f32 v{LG}, s{S_BO}, v{LG}")
    e(f"v_cvt_pk_bf16_f32 v{LG}, v{LG}, v{LG}")
    e(f"v_lshrrev_b32 v{PA}, 1, v{PA}")
    e(f"v_cmp_lt_u32 vcc, 7, v{PA}")
    e(f"v_mov_b32 v2, {OOB}")
    e(f"v_cndmask_b32 v{PA}, v{PA}, v2, vcc")
    e(f"s_lshl_b32 s{S_T}, s{S_SB}, 1")
    e(f"buffer_store_short v{LG}, v{PA}, {sr(S_OUT)}, s{S_T} offen")
    g.stamp(); g.stamp("e")
    if PAR.enc is not None:
        e("s_waitcnt lgkmcnt(0)")
        if PAR.gmin:
            e(f"s_not_b32 s{S_T}, s{S_ST}"); e(f"v_mov_b32 v4, s{S_T}"); e("v_mov_b32 v5, 0"); e("s_mov_b64 exec, 1")
            e(f"buffer_atomic_umax v4, v5, {sr(S_DBG)}, 0 offen offset:192 sc1"); e("s_waitcnt vmcnt(0)")
            g.lab("L_enc0")
            e(f"s_memrealtime s[{S_T+2}:{S_T+3}]"); e("s_waitcnt lgkmcnt(0)")
            e(f"s_sub_u32 s{S_T+2}, s{S_T+2}, s{S_ST}"); e(f"s_cmp_lt_u32 s{S_T+2}, 5000"); e("s_cbranch_scc1 L_enc0")
            e(f"buffer_load_dword v4, v5, {sr(S_DBG)}, 0 offen offset:192 sc1"); e("s_waitcnt vmcnt(0)"); e("s_mov_b64 exec, -1")
            if PAR.encsel: e(f"s_mov_b32 s{S_ST+2*PAR.enc}, s{S_ST}")
            e(f"v_readfirstlane_b32 s{S_ST}, v4"); e(f"s_not_b32 s{S_ST}, s{S_ST}")
        e(f"s_sub_u32 s{S_T}, s{S_ST+2*PAR.enc}, s{S_ST}"); e(f"s_lshl_b32 s{S_T}, s{S_T}, {PAR.encsh}");
        if PAR.encsel:
            e(f"s_lshl_b32 s{S_T}, s{S_T}, 2"); e(f"s_and_b32 s{S_T+1}, s2, {PAR.encsel[0]}"); e(f"s_cmp_eq_u32 s{S_T+1}, {PAR.encsel[1]}")
        else: e(f"s_cmp_lt_u32 s{S_R}, {NR}")
        e(f"s_cselect_b32 s{S_T}, s{S_T}, 0"); e(f"s_add_u32 s{S_T}, s{S_T}, 6000")
        g.lab("L_enc")
        e(f"s_memrealtime s[{S_T+2}:{S_T+3}]"); e("s_waitcnt lgkmcnt(0)")
        e(f"s_sub_u32 s{S_T+2}, s{S_T+2}, s{S_ST}"); e(f"s_cmp_lt_u32 s{S_T+2}, s{S_T}"); e("s_cbranch_scc1 L_enc")
    g.flush_stamps(4, 5)
    e("s_endpgm")

HACC, HX, HW_ = 4, 68, 208
V_TR0, V_TR1, V_DMA, V_WSRC, V_H16, V_L0, V_HROW, V_CNT = 248, 249, 250, 251, 252, 253, 254, 255
ID, QA, QSH, QS, W0R, PK = 4, 12, 19, 20, 180, 236
L1R, BT = 180, 60
S_WP, S_L, S_FR, S_E0, S_E1, S_E2, S_PO, S_CX = 48, 49, 50, 51, 52, 53, 54, 55
S_LC = 56
S_E3, S_XB = 60, 61
def dma_img(g, name, nfr, lds, first=0, part=None):
    e = g.e; per = nfr // 4
    va = V_DMA
    if name == "Q4":
        va = 1
        e("v_and_b32 v1, 31, v0"); e("v_subrev_u32 v1, 29, v1"); e("v_cmp_gt_u32 vcc, 2, v1"); e(f"v_mov_b32 v1, {OOB}"); e(f"v_cndmask_b32 v1, v{V_DMA}, v1, vcc")
    e(f"s_mul_i32 s{S_T}, s{S_J}, {per*1024}")
    i0, i1 = part or (0, per)
    for i in range(i0, min(i1, per)):
        if (i - i0) % 4 == 0:
            e(f"s_add_u32 s{S_T+1}, s{S_T}, {IMG[name] + (first + i)*1024}")
            e(f"s_add_u32 m0, s{S_T}, {lds + i*1024}")
        g.vm(f"buffer_load_dwordx4 v{va}, {sr(S_WS)}, s{S_T+1} offen offset:{((i - i0)%4)*1024} {PAR.ld} lds", name)
def poll(g, checks, pre=None):
    e = g.e
    done = g.newlab("pd"); top = g.newlab("pt"); slp = g.newlab("ps"); tst = g.newlab("pc")
    regs = pre or [2 + i for i in range(len(checks))]
    e(f"s_mov_b32 s{S_T}, {SPIN}")
    if pre: e(f"s_branch {tst}")
    g.lab(top)
    for r, (srd, so, o, n) in zip(regs, checks):
        e(f"buffer_load_dword v{r}, v{V_L0}, {sr(srd)}, {so} offen offset:{o} sc1")
    e("s_waitcnt vmcnt(0)")
    g.lab(tst)
    for r, (srd, so, o, n) in zip(regs, checks):
        e(f"v_readfirstlane_b32 s{S_T+1}, v{r}")
        e(f"s_cmp_lt_u32 s{S_T+1}, {n}")
        e(f"s_cbranch_scc1 {slp}")
    g.lab(done)
    g.tail += [slp + ":", f"    s_sleep {PAR.slp}", f"    s_sub_u32 s{S_T}, s{S_T}, 1", f"    s_cbranch_scc0 {top}", f"    s_branch {done}"]
def poll1(g, checks, flag, pre=None):
    lb = g.newlab("p1")
    g.e(f"s_cmp_lg_u32 s{S_J}, 0"); g.e(f"s_cbranch_scc1 {lb}")
    poll(g, checks, pre)
    arrive(g, flag)
    g.lab(lb)
    lwait(g, flag, 1)
def presample(g, checks, regs, tag):
    for r, (srd, so, o, n) in zip(regs, checks):
        g.vm(f"buffer_load_dword v{r}, v{V_L0}, {sr(srd)}, {so} offen offset:{o} sc1", tag)
def arrive(g, *cs):
    e = g.e
    e("v_mov_b32 v1, 1"); e("s_mov_b64 exec, 1")
    for c in cs: e(f"ds_add_u32 v{V_CNT}, v1 offset:{CNT[c]-M_CNT}")
    e("s_mov_b64 exec, -1")
def unpack_mat(g, PA, t):
    e = g.e
    e(f"v_and_b32 v{t}, 1, v0"); e(f"v_lshlrev_b32 v{t}, 4, v{t}"); e(f"v_mov_b32 v{t+1}, 0x3f80"); e(f"v_lshlrev_b32 v{t+1}, v{t}, v{t+1}")
    e(f"v_lshrrev_b32 v{t+2}, 3, v0"); e(f"v_xor_b32 v{t+2}, v{t+2}, v0"); e(f"v_and_b32 v{t+2}, 4, v{t+2}")
    e(f"v_bfe_u32 v{t}, v0, 3, 2"); e(f"v_bfe_u32 v{t+3}, v0, 1, 1"); e(f"v_lshl_add_u32 v{t}, v{t}, 1, v{t+3}"); e(f"v_lshl_add_u32 v{t}, v{t+2}, 3, v{t}")
    for i in range(8):
        e(f"v_cmp_eq_u32 vcc, {i}, v{t}"); e(f"v_cndmask_b32 v{PA+i}, 0, v{t+1}, vcc")
def unpack(g, DR, pa, src, i):
    d = DR + 16 * ((i >> 1) & 3)
    g.e(f"v_mfma_f32_32x32x16_bf16 {vr(d,16)}, {vr(pa+4*(i&1),4)}, {vr(src+4*i,4)}, {vr(d,16) if i & 1 else '0'}")
def tmax(g, DR, tile, n, first, mv=1):
    d = DR + 16 * (tile & 3)
    for q in range(n // 2):
        if first and q == 0: g.e(f"v_max_f32 v{mv}, |v{d}|, |v{d+1}|")
        else: g.e(f"v_max3_f32 v{mv}, v{mv}, |v{d+2*q}|, |v{d+2*q+1}|")
def lwait(g, c, n=4, va=None, vd=1):
    e = g.e; top = g.newlab("lw"); done = g.newlab("ld")
    e(f"s_mov_b32 s{S_T}, {SPIN*8}")
    g.lab(top)
    e(f"ds_read_b32 v{vd}, v{va or V_CNT} offset:{CNT[c]-M_CNT}"); e("s_waitcnt lgkmcnt(0)")
    e(f"v_readfirstlane_b32 s{S_T+1}, v{vd}"); e(f"s_cmp_ge_u32 s{S_T+1}, {n}"); e(f"s_cbranch_scc1 {done}")
    e(f"s_sleep {PAR.lslp if c in ('FX', 'F2', 'F3', 'FQ', 'AFREE', 'BFREE', 'XST') else 1}"); e(f"s_sub_u32 s{S_T}, s{S_T}, 1"); e(f"s_cbranch_scc0 {top}")
    g.lab(done)
def rowmax(g, v, op="v_max_u32_dpp"):
    for sh in (8, 4, 2, 1): g.e(f"{op} v{v}, v{v}, v{v} row_ror:{sh} {DPPALL}")
def wavemax_exp(g, v, sdst):
    e = g.e
    rowmax(g, v)
    e(f"v_readlane_b32 s{sdst}, v{v}, 0"); e(f"v_readlane_b32 s{S_T}, v{v}, 16"); e(f"s_max_u32 s{sdst}, s{sdst}, s{S_T}")
    e(f"v_readlane_b32 s{S_T}, v{v}, 32"); e(f"s_max_u32 s{sdst}, s{sdst}, s{S_T}")
    e(f"v_readlane_b32 s{S_T}, v{v}, 48"); e(f"s_max_u32 s{sdst}, s{sdst}, s{S_T}")
    e(f"s_lshr_b32 s{sdst}, s{sdst}, 23"); e(f"s_sub_u32 s{sdst}, s{sdst}, 126")
def put_max(g, slot):
    e = g.e
    rowmax(g, 1)
    e("v_lshrrev_b32 v2, 4, v0"); e(f"s_lshl_b32 s{S_T}, s{S_J}, 4"); e(f"s_add_u32 s{S_T}, s{S_T}, {slot}")
    e(f"v_lshl_add_u32 v2, v2, 2, s{S_T}")
    e("ds_write_b32 v2, v1")
def get_max(g, slot):
    e = g.e
    e("v_and_b32 v2, 15, v0"); e("v_lshlrev_b32 v2, 2, v2"); e(f"v_add_u32 v2, {slot}, v2")
    e("ds_read_b32 v1, v2"); e("s_waitcnt lgkmcnt(0)")
    rowmax(g, 1)
def pkmax(g, regs):
    e = g.e
    e(f"v_pk_max_u16 v1, v{regs[0]}, v{regs[1]}"); e(f"v_pk_max_u16 v3, v{regs[2]}, v{regs[3]}")
    for i, r in enumerate(regs[4:]): e(f"v_pk_max_u16 v{1 + 2*(i&1)}, v{1 + 2*(i&1)}, v{r}")
    e("v_pk_max_u16 v1, v1, v3"); e("v_alignbit_b32 v3, v1, v1, 16"); e("v_pk_max_u16 v1, v1, v3")
def pack_round(g, acc, off, pk=True):
    e = g.e
    if PAR.pkpack and pk:
        for t in range(7):
            q = QS + t; sel = q & 1
            e(f"v_pk_mul_f32 {vr(acc+2*t,2)}, {vr(acc+2*t,2)}, {vr(q - sel,2)} op_sel:[0,{sel}] op_sel_hi:[1,{sel}]")
    else:
        for t in range(14): e(f"v_mul_f32 v{acc+t}, v{acc+t}, v{QS+(t>>1)}")
    for t in range(7): e(f"v_cvt_pk_f16_f32 v{PK+t}, v{acc+2*t}, v{acc+2*t+1}")
    for t in range(7): e(f"v_alignbit_b32 v{PK+t}, v{PK+t}, v{PK+t}, v{QSH}")
    for t in range(7): e(f"ds_write_b32 v{QA+t}, v{PK+t} offset:{off}")
def s0_max(g, t):
    a = HX + 16 * t
    for i in range(7):
        if t == 0 and i == 0: g.e(f"v_max_f32 v1, |v{a}|, |v{a+1}|")
        else: g.e(f"v_max3_f32 v1, v1, |v{a+2*i}|, |v{a+2*i+1}|")
F0 = lambda c: sum(PAR.chunks[:c])
S_ROT = 64
S_SCN, S_XC = 68, 69
S_RA = 66
def call_if(g, cond, target):
    lb = g.newlab('nc')
    for c in cond: g.e(c[0]); g.e(f'{c[1]} {lb}')
    g.e(f's_call_b64 s[{S_RA}:{S_RA+1}], {target}')
    g.lab(lb)
RET = f's_setpc_b64 s[{S_RA}:{S_RA+1}]'
def EARLY(): return [(f's_cmp_lt_u32 s{S_WP}, {PAR.gearly}', 's_cbranch_scc0')]
def LATE(): return [(f's_cmp_lt_u32 s{S_WP}, {PAR.gearly}', 's_cbranch_scc1'), (f's_cmp_ge_u32 s{S_WP}, 31', 's_cbranch_scc1')]
def rotf(g, f, sd):
    g.e(f"s_add_u32 s{sd}, s{S_ROT}, {f}"); g.e(f"s_sub_u32 s{S_ROT+1}, s{sd}, 26"); g.e(f"s_min_u32 s{sd}, s{sd}, s{S_ROT+1}")
def colvec(g, srd, dst, tag):
    g.e("v_lshrrev_b32 v1, 4, v0"); g.e("v_lshlrev_b32 v1, 3, v1")
    for a in range(4):
        g.e(f"s_xor_b32 s{S_T}, s{S_XC}, {32*a}"); g.e(f"s_add_u32 s{S_T}, s{S_T}, s{S_SB}")
        g.vm(f"buffer_load_dwordx2 {vr(dst+2*a,2)}, v1, {sr(srd)}, s{S_T} offen", tag)
def dma_w(g, f0, f1, tag):
    e = g.e
    e(f"s_lshl_b32 s{S_T}, s{S_J}, 10")
    for f in range(f0, f1):
        e(f"s_add_u32 m0, s{S_T}, {D0 + (f % 16)*4096}")
        rotf(g, f, S_T + 1); e(f"s_mul_i32 s{S_T+1}, s{S_T+1}, 53248")
        g.vm(f"buffer_load_dwordx4 v{V_WSRC}, {sr(S_W1)}, s{S_T+1} offen {PAR.wmod} lds", tag)
CHK_X = lambda: (S_WS, f"s{S_CX}", C_XR, 1)
def helper_common(g):
    e = g.e
    e("s_setprio 2")
    e(f"s_sub_u32 s{S_J}, s{S_WAVE}, 4")
    e("v_and_b32 v2, 31, v0"); e("v_lshrrev_b32 v3, 5, v0")
    e(f"v_lshlrev_b32 v{V_H16}, 4, v3")
    e("v_lshrrev_b32 v4, 3, v2"); e("v_and_b32 v6, 3, v2"); e("v_lshl_add_u32 v4, v4, 2, v6")
    e("v_bfe_u32 v6, v2, 2, 1"); e(f"v_mad_u32_u24 v{V_HROW}, v6, 13, v4")
    e("v_cmp_lt_u32 vcc, 12, v4"); e("v_mov_b32 v7, 0x100000"); e(f"v_cndmask_b32 v{V_HROW}, v{V_HROW}, v7, vcc")
    e("v_mul_u32_u24 v4, 676, v3"); e(f"s_movk_i32 s{S_T+1}, 1352"); e(f"v_mad_u32_u24 v243, v{V_HROW}, s{S_T+1}, v4")
    def qaset():
        e("v_lshrrev_b32 v27, 1, v2"); e("v_and_b32 v28, 1, v2"); e(f"v_lshlrev_b32 v{QSH}, 4, v28")
        e("v_sub_u32 v29, 25, v27"); e("v_mul_u32_u24 v29, v29, v27"); e("v_lshrrev_b32 v29, 1, v29")
        e(f"s_lshl_b32 s{S_T}, s{S_J}, 4")
        e(f"v_lshl_add_u32 v28, v28, 9, s{S_T}")
        e(f"v_lshl_add_u32 v30, v0, 2, s{S_T}"); e(f"v_add_u32 v30, {BUFA + 24*S0STR}, v30")
        e("v_mov_b32 v33, 0.5")
        for t in range(7):
            qb = 4 * (t >> 1) + (t & 1)
            e(f"v_lshl_add_u32 v31, v3, 1, {qb}")
            e("v_add_u32 v32, v29, v31")
            e(f"v_lshrrev_b32 v{QA+t}, 2, v32"); e(f"v_mul_u32_u24 v{QA+t}, {S0STR}, v{QA+t}")
            e("v_and_b32 v32, 3, v32"); e("v_lshl_add_u32 v32, v32, 2, v28"); e(f"v_add_u32 v{QA+t}, v{QA+t}, v32")
            e("v_cmp_lt_u32 vcc, v31, v27")
            if t == 6:
                e("v_cmp_lt_u32 s[72:73], 12, v31"); e("s_or_b64 vcc, vcc, s[72:73]")
            e(f"v_cndmask_b32 v{QA+t}, v{QA+t}, v30, vcc")
            e("v_cmp_eq_u32 vcc, v31, v27"); e(f"v_cndmask_b32 v{QS+t}, 1.0, v33, vcc")
        e("v_lshlrev_b32 v31, 3, v3"); e("v_sub_u32 v31, v2, v31")
        e("v_mov_b32 v32, 0x3f80"); e(f"v_lshlrev_b32 v32, v{QSH}, v32")
        e("v_lshrrev_b32 v31, 1, v31")
        for s in range(2):
            for i in range(4):
                e(f"v_cmp_eq_u32 vcc, {8*s+i}, v31"); e(f"v_cndmask_b32 v{ID+4*s+i}, 0, v32, vcc")
    if PAR.qaearly: qaset()
    HS = [S_WC, S_WS, S_WO, S_W1, S_B1, S_W2, S_DBG]
    srd_const(g, HS)
    e("s_waitcnt lgkmcnt(0)")
    srd_base(g, HS)
    e(f"s_mov_b64 s[{S_LC}:{S_LC+1}], s[{S_WC}:{S_WC+1}]"); e(f"s_mov_b32 s{S_LC+3}, 0x00020000"); e(f"s_mov_b32 s{S_LC+2}, {2*LB}")
    e(f"s_cmp_lt_u32 s{S_R}, {NR}"); e(f"s_cselect_b32 s{S_WP}, 63, s{S_G}"); e(f"s_mov_b32 s{S_SCN}, 0")
    e(f"s_mul_i32 s{S_CX}, s{S_G}, {PAR.cstr}"); e(f"s_add_u32 s{S_CX}, s{S_CX}, {WS_CNT}")
    if PAR.wpf:
        e(f"s_cmp_lg_u32 s{S_J}, 0"); e("s_cbranch_scc1 L_nowpf")
        e(f"s_mov_b32 s{S_WC+2}, {6*LB}"); e(f"s_lshr_b32 s{S_T}, s2, 3"); e(f"s_lshl_b32 s{S_T}, s{S_T}, 7")
        e("v_lshlrev_b32 v1, 12, v0")
        if PAR.wpf == 1: e(f"buffer_load_dword v247, v1, {sr(S_WC)}, s{S_T} offen")
        e(f"s_mov_b32 s{S_WC+2}, {LB}")
        e(f"s_cmp_lt_u32 s{S_R}, {NR}"); e("s_cbranch_scc1 L_nowpf")
        for i in range(4): e(f"v_mov_b32 v{36+i}, 0")
        e("v_lshlrev_b32 v35, 8, v0"); e("v_cmp_lt_u32 vcc, 2, v0"); e(f"v_mov_b32 v34, {OOB}"); e("v_cndmask_b32 v35, v35, v34, vcc")
        e(f"buffer_store_dwordx4 v[36:39], v35, {sr(S_WS)}, s{S_CX} offen sc1")
        g.lab("L_nowpf")
    g.stamp("g")
    call_if(g, EARLY(), "L_pe1")
    g.stamp("g")
    e("v_and_b32 v2, 31, v0"); e("v_lshrrev_b32 v3, 5, v0")
    e(f"v_mad_u32_u24 v1, v2, 52, v{V_H16}")
    if PAR.w0lin: e("v_lshlrev_b32 v1, 4, v0")
    e(f"s_mul_i32 s{S_T}, s{S_J}, 1352")
    for t in range(7):
        if t < 6: e(f"s_add_u32 s{S_T+1}, s{S_T}, {(13*(t&1) + 4*(t>>1))*1352}")
        else:
            e(f"s_mul_i32 s{S_T+1}, s{S_J}, {13*1352}"); e(f"s_add_u32 s{S_T+1}, s{S_T+1}, {12*1352}")
        for s in range(2):
            g.vm(f"buffer_load_dwordx4 {vr(W0R+8*t+4*s,4)}, v1, {sr(S_WC)}, s{S_T+1} offen offset:{(320 if PAR.w0lin else 32)*s}", f"w0_{t}")
    e("s_branch L_helper2")
    g.hfirst = g.L[g.h0:]; del g.L[g.h0:]
    g.lab("L_helper2")
    if not PAR.barpos: e("s_barrier")
    e(f"v_mov_b32 v61, {OOB}"); e(f"v_add_u32 v60, s{S_J}, v0"); e("v_cmp_eq_u32 vcc, 0, v60"); e(f"v_cndmask_b32 v{V_L0}, v61, 0, vcc")
    e(f"s_lshr_b32 s{S_SB}, s{S_R}, 1"); e(f"s_mul_i32 s{S_SB}, s{S_SB}, 224"); e(f"s_and_b32 s{S_XC}, s{S_R}, 1"); e(f"s_mul_i32 s{S_XC}, s{S_XC}, 96"); e(f"s_add_u32 s{S_SB}, s{S_SB}, s{S_XC}")
    if not PAR.qaearly: qaset()
    e(f"s_mul_i32 s{S_PO}, s{S_G}, {NR}"); e(f"s_add_u32 s{S_PO}, s{S_PO}, s{S_R}"); e(f"s_lshl_b32 s{S_PO}, s{S_PO}, 2"); e(f"s_add_u32 s{S_PO}, s{S_PO}, s{S_J}")
    e(f"s_lshl_b32 s{S_PO}, s{S_PO}, 8"); e(f"s_add_u32 s{S_PO}, s{S_PO}, {WS_PART}")
    e("v_and_b32 v60, 15, v0"); e(f"v_mul_u32_u24 v245, {XSTR}, v60"); e("v_and_b32 v60, 48, v0")
    e(f"s_lshl_b32 s{S_T}, s{S_J}, 6"); e(f"s_add_u32 s{S_T}, s{S_T}, {D0}"); e(f"v_add3_u32 v245, v245, v60, s{S_T}")
    e("v_lshlrev_b32 v246, 4, v0")
    e(f"s_lshl_b32 s{S_XB}, s{S_G}, 2"); e(f"s_lshr_b32 s{S_T}, s{S_R}, 2"); e(f"s_add_u32 s{S_XB}, s{S_XB}, s{S_T}"); e(f"s_mul_i32 s{S_XB}, s{S_XB}, 106496")
    e(f"s_and_b32 s{S_T}, s{S_R}, 3"); e(f"s_lshl_b32 s{S_T}, s{S_T}, 10"); e(f"s_add_u32 s{S_XB}, s{S_XB}, s{S_T}")
    e(f"s_lshl_b32 s{S_T}, s{S_J}, 12"); e(f"s_add_u32 s{S_XB}, s{S_XB}, s{S_T}"); e(f"s_add_u32 s{S_XB}, s{S_XB}, {WS_X}")
    g.stamp("g")
    e(f"s_cmp_lt_u32 s{S_R}, {NR}"); e("s_cbranch_scc1 L_nordy")
    e("s_waitcnt vmcnt(0)")
    e("v_mov_b32 v35, 1"); e(f"s_lshl_b32 s{S_E3}, s{S_G}, 2")
    e(f"buffer_store_dword v35, v{V_L0}, {sr(S_DBG)}, s{S_E3} offen offset:{C_RDY} sc1")
    g.lab("L_nordy")
    call_if(g, EARLY(), "L_pe2")
    g.stamp("g")
    for t in range(7):
        if t == 6: e(f"s_cmp_ge_u32 s{S_R}, {NR}"); e("s_cbranch_scc1 L_w0d")
        g.vmwait(f"w0_{t}")
        if t == 6: g.lab("L_w0d")
        a = HX + 16 * t; w = W0R + 8 * t
        e(f"v_mfma_f32_32x32x16_bf16 {vr(a,16)}, {vr(w,4)}, {vr(ID,4)}, 0")
        e(f"v_mfma_f32_32x32x16_bf16 {vr(a,16)}, {vr(w+4,4)}, {vr(ID+4,4)}, {vr(a,16)}")
        e(f"v_mfma_f32_32x32x16_bf16 {vr(a,16)}, {vr(ID,4)}, {vr(w,4)}, {vr(a,16)}")
        e(f"v_mfma_f32_32x32x16_bf16 {vr(a,16)}, {vr(ID+4,4)}, {vr(w+4,4)}, {vr(a,16)}")
        if t > 0: s0_max(g, t - 1)
    s0_max(g, 6)
    put_max(g, M_S0)
    e(f"v_mov_b32 v{V_CNT}, {M_CNT}")
    arrive(g, "S0M")
    g.stamp("g")
    if g.stamps and "g" in PAR.st: e("s_waitcnt vmcnt(0)"); g.stamp("g")
    if PAR.wpf3 == 2:
        e("v_lshlrev_b32 v1, 14, v0"); e(f"s_lshr_b32 s{S_T}, s2, 3"); e(f"s_lshl_b32 s{S_T}, s{S_T}, 7"); e(f"s_lshl_b32 s{S_T+1}, s{S_J}, 12"); e(f"s_add_u32 s{S_T}, s{S_T}, s{S_T+1}")
        e(f"buffer_load_dword v247, v1, {sr(S_W1)}, s{S_T} offen"); e("v_add_u32 v1, 0x100000, v1")
        e(f"buffer_load_dword v247, v1, {sr(S_W1)}, s{S_T} offen")
    call_if(g, EARLY(), "L_gsig")
    g.stamp("g")
    lwait(g, "S0M")
    g.stamp(); g.stamp("h")
    get_max(g, M_S0)
    e("v_lshlrev_b32 v3, 4, v0"); e(f"v_mov_b32 v{PK}, 0")
    e(f"ds_write_b32 v3, v{PK} offset:{BUFA + 22*S0STR + 12}")
    e("v_lshrrev_b32 v1, 23, v1")
    e("v_min_u32 v1, 249, v1")
    e("v_sub_u32 v2, 124, v1")
    e("v_subrev_u32 v1, 124, v1")
    e(f"ds_write_b32 v3, v1 offset:{BUFA + 23*S0STR + 512}")
    for t in range(7): e(f"v_ldexp_f32 v{QS+t}, v{QS+t}, v2")
    for t in range(7):
        if t == 6:
            e(f"s_cmp_eq_u32 s{S_J}, 1"); e(f"s_cselect_b32 s{S_T}, 48, 0")
            for i in range(7): e(f"v_add_u32 v{QA+i}, s{S_T}, v{QA+i}")
        if t in (0, 2, 4, 6): g.stamp("h")
        pack_round(g, HX + 16 * t, 16 * (8 * (t >> 1) + 4 * (t & 1)))
    arrive(g, "S0OK")
    g.stamp(); g.stamp("s"); g.stamp("h")
    e(f"v_cmp_lt_u32 vcc, 25, v{V_HROW}"); e("v_bfe_u32 v1, v0, 2, 1")
    e("v_cmp_eq_u32 s[72:73], 0, v1"); e("s_and_b64 vcc, vcc, s[72:73]")
    e(f"v_mov_b32 v2, {OOB}"); e(f"v_lshlrev_b32 v{V_DMA}, 4, v0"); e(f"v_cndmask_b32 v{V_DMA}, v{V_DMA}, v2, vcc")
    e(f"s_mul_i32 s{S_ROT}, s{S_R}, 7"); e(f"s_lshr_b32 s{S_ROT}, s{S_ROT}, 2")
    e("v_lshrrev_b32 v1, 3, v0"); e(f"s_lshl_b32 s{S_T}, s{S_J}, 3"); e(f"v_add_u32 v1, s{S_T}, v1")
    e("v_mul_u32_u24 v1, 1664, v1"); e("v_and_b32 v2, 1, v0"); e("v_lshl_add_u32 v1, v2, 4, v1")
    e(f"s_and_b32 s{S_T}, s{S_J}, 1"); e(f"s_lshl_b32 s{S_T}, s{S_T}, 1")
    e("v_bfe_u32 v2, v0, 4, 1"); e("v_bfe_u32 v3, v0, 1, 2"); e("v_xor_b32 v2, v2, v3"); e(f"v_xor_b32 v2, s{S_T}, v2")
    e(f"v_lshl_add_u32 v3, v2, 5, s{S_SB}")
    e(f"v_add_u32 v{V_WSRC}, v1, v3")
    e("v_lshrrev_b32 v1, 4, v0"); e("v_bfe_u32 v2, v0, 2, 2"); e("v_lshl_add_u32 v1, v1, 3, v2"); e("v_lshlrev_b32 v1, 7, v1")
    e("v_and_b32 v3, 3, v0"); e("v_lshl_add_u32 v1, v3, 3, v1"); e("v_bfe_u32 v2, v0, 3, 2"); e("v_lshl_add_u32 v1, v2, 5, v1")
    e(f"v_xor_b32 v1, s{S_XC}, v1"); e(f"v_add_u32 v{V_TR0}, {D0}, v1")
    if PAR.wpf3 == 1:
        e("v_lshlrev_b32 v1, 14, v0"); e(f"s_lshr_b32 s{S_T}, s2, 3"); e(f"s_lshl_b32 s{S_T}, s{S_T}, 7"); e(f"s_lshl_b32 s{S_T+1}, s{S_J}, 12"); e(f"s_add_u32 s{S_T}, s{S_T}, s{S_T+1}")
        e(f"buffer_load_dword v247, v1, {sr(S_W1)}, s{S_T} offen"); e("v_add_u32 v1, 0x100000, v1")
        e(f"buffer_load_dword v247, v1, {sr(S_W1)}, s{S_T} offen")
    call_if(g, LATE(), "L_pe1")
    call_if(g, LATE()[:1], "L_xpub")
    g.vmq += ["xst"] * 7 + ["sent", "rdyl"] + ["bias"] * 4
    g.stamp("s")
    call_if(g, LATE(), "L_pe2")
    e("s_waitcnt vmcnt(1)")
    e(f"s_sub_u32 s{S_T}, s{S_WP}, {PAR.gearly}"); e(f"s_cmp_lt_u32 s{S_T}, {31 - PAR.gearly}"); e("s_cbranch_scc1 L_pwr")
    e("s_waitcnt vmcnt(0)")
    g.lab("L_pwr")
    arrive(g, "XST")
    e(f"s_cmp_lg_u32 s{S_J}, 0"); e("s_cbranch_scc1 L_nosig")
    lwait(g, "XST")
    e(f"s_mov_b32 s{S_T}, {SPIN}")
    g.lab("L_rdy")
    e("v_cmp_ne_u32 vcc, 0, v28"); e(f"s_and_b32 s{S_T+1}, vcc_lo, 0xffff"); e(f"s_cmp_eq_u32 s{S_T+1}, 0xffff"); e("s_cbranch_scc0 L_rdys")
    g.lab("L_rdyd")
    g.tail += ["L_rdys:", "    s_sleep 8", f"    buffer_load_dword v28, v29, {sr(S_DBG)}, 0 offen offset:{C_RDY} sc1", "    s_waitcnt vmcnt(0)",
               f"    s_sub_u32 s{S_T}, s{S_T}, 1", "    s_cbranch_scc0 L_rdy", "    s_branch L_rdyd"]
    e("v_mov_b32 v1, 1")
    e(f"buffer_atomic_add v1, v{V_L0}, {sr(S_WS)}, s{S_CX} offen sc0 sc1")
    e(f"buffer_load_dword v197, v{V_L0}, {sr(S_DBG)}, 0 offen offset:128 sc1")
    e("s_waitcnt vmcnt(0)")
    e(f"v_readfirstlane_b32 s{S_T}, v1"); e(f"s_cmp_lg_u32 s{S_T}, 15"); e("s_cbranch_scc1 L_nosig")
    e(f"buffer_store_dword v1, v{V_L0}, {sr(S_WS)}, s{S_CX} offen offset:{C_XR} sc1")
    g.lab("L_nosig")
    e("s_setprio 3")
    g.stamp(); g.stamp("s")

def helper_dnn(g):
    e = g.e
    CH = PAR.chunks; NS = PAR.nslot
    UNITS = [(a, sl) for a in range(3) for sl in range(4)] + [(3, 0), (3, 1)]
    def ac(a, sl): return HACC + 4 * UNITS.index((a, sl))
    def xb(f, sl): return HX + 16 * (f % NS) + 4 * sl
    def xload(f):
        rotf(g, f, S_T + 2); e(f"s_lshl_b32 s{S_T+2}, s{S_T+2}, 12"); e(f"s_add_u32 s{S_T+2}, s{S_T+2}, s{S_XB}")
        for sl in range(4 if f < NS else PAR.nxl):
            g.vm(f"buffer_load_dwordx4 {vr(xb(f,sl),4)}, v{2 + (sl >> 1)}, {sr(S_WS)}, s{S_T+2} offen offset:{1024*(sl&1)} {PAR.ld}", f"x{f}")
    e(f"s_setprio {PAR.wp}")
    VTR = [V_TR0, V_TR1, 198, 199]
    for a in range(1, 4): e(f"v_xor_b32 v{VTR[a]}, {32*a}, v{V_TR0}")
    colvec(g, S_W2, 232, "w2")
    g.vmwait("bias")
    for a in range(4):
        for i in range(2):
            e(f"v_lshlrev_b32 v{ac(a,0)+2*i}, 16, v{BT+2*a+i}")
            e(f"v_and_b32 v{ac(a,0)+2*i+1}, 0xffff0000, v{BT+2*a+i}")
    for a, sl in UNITS:
        if sl:
            for i in range(4): e(f"v_mov_b32 v{ac(a,sl)+i}, v{ac(a,0)+i}")
    e(f"s_lshl_b32 s{S_XB}, s{S_G}, 2"); e(f"s_add_u32 s{S_XB}, s{S_XB}, s{S_J}"); e(f"s_mul_i32 s{S_XB}, s{S_XB}, 106496"); e(f"s_add_u32 s{S_XB}, s{S_XB}, {WS_X}")
    if PAR.wearly < 1: lwait(g, "RB", 8); dma_w(g, 0, PAR.wa, "Wa")
    if PAR.x0: poll1(g, [(S_DBG, "0", 128, 11), CHK_X()], "FX")
    else:
        poll1(g, [(S_DBG, "0", 128, 11)], "F2", pre=[197])
        lwait(g, "AFREE"); dma_img(g, "L2", 44, BUFA)
        presample(g, [CHK_X()], [196], "fx")
        g.vmwait("fx"); arrive(g, "L2OK", "W01")
        poll1(g, [CHK_X()], "FX", pre=[196])
    e(f"s_and_b32 s{S_E0}, s{S_R}, 1"); e(f"s_lshl_b32 s{S_T}, s{S_E0}, 11"); e(f"v_lshl_add_u32 v2, v0, 4, s{S_T}"); e("v_xor_b32 v3, 0x800, v2")
    g.stamp("s")
    g.stamp()
    e(f"s_setprio {PAR.dp}")
    for f in range(PAR.xi): xload(f)
    if PAR.x0:
        lwait(g, "AFREE"); dma_img(g, "L2", 44, BUFA)
        g.vmwait("W1"); arrive(g, "W01")
    nld = [PAR.xi]
    W2R = 232
    wring = [0]
    def wread(ks):
        f, hf = divmod(ks, 2)
        base = HW_ + 8 * (wring[0] % 3); wring[0] += 1
        for a in range(2):
            for rd in range(2):
                e(f"ds_read_b64_tr_b16 {vr(base+4*a+2*rd,2)}, v{VTR[2*hf+a]} offset:{(f % 16)*4096 + rd*512}")
        return base
    CKQ = [(S_WS, f"s{S_CX}", C_Q, 9)]; CK3 = [(S_WS, f"s{S_CX}", C_L[3], 11)]
    after = {}
    def add(f, fn): after.setdefault(f, []).append(fn)
    inter = {}
    def addi(f, fn): inter.setdefault(f, []).append(fn)
    def capture(fn):
        keep = g.L; g.L = []; fn(); out = g.L; g.L = keep; return out
    assert PAR.wa >= 10
    for i in range(16 - PAR.wa): addi(i + 1, lambda i=i: dma_w(g, PAR.wa + i, PAR.wa + i + 1, "Wb"))
    for f, (x, y) in {10: (16, 18), 11: (18, 20), 12: (20, 21), 13: (21, 22), 14: (22, 23), 15: (23, 24), 16: (24, 25), 17: (25, 26)}.items():
        addi(f, lambda x=x, y=y: dma_w(g, x, y, "Wc" if x < 21 else "Wd"))
    SEG = [0, 10, 16, 21, 26]
    add(PAR.qpos - 3, lambda: presample(g, CK3, [196], "f3"))
    add(PAR.qpos, lambda: (lwait(g, "BFREE"), g.vmwait("f3"), poll1(g, CK3, "F3", pre=[196])))
    for i in range(0, 11, PAR.l3n): addi(PAR.qpos + 1 + i // PAR.l3n, lambda i=i: dma_img(g, "L3", 44, BUFB, part=(i, i + PAR.l3n)))
    add(PAR.qpos + 1 + 10 // PAR.l3n + PAR.qarr, lambda: (g.vmwait("L3"), arrive(g, "L3OK")))
    add(22, lambda: presample(g, CKQ, [197], "fq"))
    lwait(g, "W01")
    for c in range(4):
        k0 = 2 * SEG[c]; k1 = 2 * SEG[c + 1]
        bufs = {k0: wread(k0), k0 + 1: wread(k0 + 1)}
        for ks in range(k0, k1):
            f, hf = divmod(ks, 2)
            if hf == 0 and f in PAR.fst: g.stamp("f")
            if hf == 0:
                g.vmwait(f"x{f}")
                def gen_other():
                    for _ in range(2):
                        if nld[0] < min(26, f + NS): xload(nld[0]); nld[0] += 1
                    for fn in inter.get(f, []): fn()
                other = capture(gen_other)
            e(f"s_waitcnt lgkmcnt({4 if ks + 1 < k1 else 0})")
            rd = []
            if ks + 2 < k1: rd = capture(lambda: bufs.__setitem__(ks + 2, wread(ks + 2)))
            mf = [(a, sl) for a in range(2) for sl in range(4) if (2 * hf + a, sl) in UNITS[:PAR.nmf]]
            for i, (a, sl) in enumerate(mf):
                d = ac(2 * hf + a, sl)
                e(f"v_mfma_f32_16x16x32_bf16 {vr(d,4)}, {vr(bufs[ks]+4*a,4)}, {vr(xb(f,sl),4)}, {vr(d,4)}")
                n = PAR.il
                if rd and i >= 1: g.L.append(rd.pop(0)); n -= 1
                while other and n > 0: g.L.append(other.pop(0)); n -= 1
            g.L += rd
            if hf == 1:
                g.L += other
                for fn in after.get(f, []): fn()
        if c == 0:
            if PAR.wa < 16: g.vmwait("Wb")
            arrive(g, "C0"); lwait(g, "C0"); g.stamp()
        if c == 1: g.vmwait("Wc"); arrive(g, "C1"); lwait(g, "C1")
        if c == 2:
            g.vmwait("Wd"); arrive(g, "C2"); lwait(g, "C2")
    e("s_waitcnt vmcnt(0)")
    g.stamp()
    W2F = HX
    for i in range(8):
        e(f"v_lshlrev_b32 v{W2F+2*i}, 16, v{W2R+i}")
        e(f"v_and_b32 v{W2F+2*i+1}, 0xffff0000, v{W2R+i}")
    c0 = 2 * 0.7978845608028654 * 1.4426950408889634
    e(f"s_mov_b32 s{S_C1}, {f2u(c0*0.044715):#x}")
    e(f"v_mov_b32 v2, {f2u(c0):#x}")
    T = HX + 32; SUM = HX + 48
    def gelu(blk):
        a, sl = UNITS[blk]
        rs = [ac(a, sl) + i for i in range(4)]
        for i, r in enumerate(rs): e(f"v_mul_f32 v{T+i}, v{r}, v{r}")
        for i, r in enumerate(rs): e(f"v_fma_f32 v{T+i}, v{T+i}, s{S_C1}, v2")
        for i, r in enumerate(rs): e(f"v_mul_f32 v{T+i}, v{T+i}, v{r}")
        for i, r in enumerate(rs): e(f"v_exp_f32 v{T+i}, -v{T+i}")
        for i, r in enumerate(rs): e(f"v_mul_f32 v{r}, v{r}, v{W2F + 4*a + i}")
        for i, r in enumerate(rs): e(f"v_add_f32 v{T+i}, 1.0, v{T+i}")
        for i, r in enumerate(rs): e(f"v_rcp_f32 v{T+i}, v{T+i}")
        for i, r in enumerate(rs): e(f"v_{'mul' if a == 0 and i == 0 else 'fmac'}_f32 v{SUM + sl}, v{r}, v{T+i}")
    for blk in range(len(UNITS)):
        if blk == PAR.gsplit:
            poll1(g, CKQ, "FQ", pre=[197]); dma_img(g, "Q4", 28, QB)
        if blk == PAR.gsplit2:
            e("s_waitcnt vmcnt(0)"); arrive(g, "QOK")
        if blk == PAR.ghi: e("s_setprio 1")
        gelu(blk)
    e("s_setprio 3")
    e(f"v_permlane32_swap_b32 v{SUM}, v{SUM+2}"); e(f"v_permlane32_swap_b32 v{SUM+1}, v{SUM+3}")
    e(f"v_add_f32 v{SUM}, v{SUM}, v{SUM+2}"); e(f"v_add_f32 v{SUM+1}, v{SUM+1}, v{SUM+3}")
    e(f"v_permlane16_swap_b32 v{SUM}, v{SUM+1}")
    e(f"v_add_f32 v{SUM}, v{SUM}, v{SUM+1}")
    e(f"v_min_u32 v{SUM}, -2, v{SUM}")
    e(f"s_lshl_b32 s{S_T}, s{S_E0}, 7"); e("v_lshlrev_b32 v1, 2, v0"); e(f"v_xor_b32 v1, s{S_T}, v1")
    e(f"buffer_store_dword v{SUM}, v1, {sr(S_WS)}, s{S_PO} offen sc1")
    g.stamp()
    g.flush_stamps(4, 5)
    e("s_endpgm")

def gsignal(g, c, so):
    e = g.e; done = g.newlab("sg")
    if c: e("s_waitcnt vmcnt(0)"); arrive(g, c)
    e(f"s_cmp_lg_u32 s{S_J}, 0"); e(f"s_cbranch_scc1 {done}")
    if c: lwait(g, c)
    e(f"v_mul_u32_u24 v2, {PAR.cstr}, v0"); e("v_cmp_lt_u32 vcc, 15, v0"); e(f"v_mov_b32 v3, {OOB}"); e("v_cndmask_b32 v2, v2, v3, vcc")
    e("v_mov_b32 v1, 1")
    e(f"buffer_atomic_add v1, v2, {sr(S_WS)}, {so} offen sc1")
    g.lab(done)
SCN, FR, WV, WP, W1V, AQ, RW = 68, 104, 121, 122, 108, 44, 180
QAR = lambda i: (64 + i) if i < 4 else (240 + i)
S_E4, S_LW = 62, 63
def prod_early1(g):
    e = g.e
    g.lab("L_gsig")
    e("s_waitcnt vmcnt(0)"); arrive(g, "GST")
    e(f"s_cmp_lg_u32 s{S_J}, 0"); e("s_cbranch_scc1 L_xpub")
    lwait(g, "GST")
    e("v_mov_b32 v1, 1"); e(f"buffer_atomic_add v1, v{V_L0}, {sr(S_DBG)}, 0 offen offset:128 sc1")
    g.lab("L_xpub")
    XS = 180
    lwait(g, "RAW")
    for t in range(7): e(f"ds_read_b128 {vr(XS+4*t,4)}, v245 offset:{256*t}")
    e(f"s_cmp_ge_u32 s{S_J}, 2"); e(f"s_cselect_b32 s{S_T}, {OOB}, 0"); e(f"v_add_u32 v245, s{S_T}, v246")
    for t in range(7):
        e(f"s_waitcnt lgkmcnt({6-t})")
        g.vm(f"buffer_store_dwordx4 {vr(XS+4*t,4)}, v{246 if t < 6 else 245}, {sr(S_WS)}, s{S_XB} offen sc1", "xst")
        e(f"s_add_u32 s{S_XB}, s{S_XB}, 16384")
    arrive(g, "RB")
    e(f"s_cmp_ge_u32 s{S_R}, {NR}"); e(f"s_cselect_b32 s{S_T}, {OOB}, 0")
    e(f"v_lshl_add_u32 v1, v0, 2, s{S_T}"); e("v_mov_b32 v3, -1")
    g.vm(f"buffer_store_dword v3, v1, {sr(S_WS)}, s{S_PO} offen sc1", "sent")
    e(f"s_lshl_b32 s{S_T}, s{S_J}, 8"); e("v_lshrrev_b32 v29, 4, v0"); e(f"v_lshl_add_u32 v29, v29, 8, s{S_T}"); e("v_lshl_add_u32 v29, v0, 2, v29")
    g.vm(f"buffer_load_dword v28, v29, {sr(S_DBG)}, 0 offen offset:{C_RDY} sc1", "rdyl")
    colvec(g, S_B1, BT, "bias")
    e(RET)
    g.lab("L_pe1")
    e(f"s_mul_i32 s{S_L}, s{S_WP}, 94"); e(f"s_lshr_b32 s{S_L}, s{S_L}, 10")
    e(f"s_mul_i32 s{S_T}, s{S_L}, 11"); e(f"s_sub_u32 s{S_FR}, s{S_WP}, s{S_T}"); e(f"s_lshl_b32 s{S_FR}, s{S_FR}, 2"); e(f"s_add_u32 s{S_FR}, s{S_FR}, s{S_J}")
    e(f"s_add_u32 s{S_L}, s{S_L}, 2")
    e(f"s_mul_i32 s{S_E2}, s{S_L}, {LB}")
    e(f"s_add_u32 s{S_LC+2}, s{S_E2}, {LB}")
    e("v_lshlrev_b32 v1, 4, v0")
    e(f"s_mul_i32 s{S_T}, s{S_J}, 9216"); e(f"s_add_u32 s{S_T}, s{S_T}, s{S_E2}")
    for i in range(9):
        if i % 4 == 0 and i: e(f"s_add_u32 s{S_T}, s{S_T}, 4096")
        e(f"buffer_load_dwordx4 {vr(SCN+4*i,4)}, v1, {sr(S_LC)}, s{S_T} offen offset:{(i%4)*1024}")
    e(f"s_cmp_ge_u32 s{S_WP}, 22"); e("s_cbranch_scc1 L_ret")
    e(f"s_lshl_b32 s{S_T}, s{S_FR}, 4"); e(f"s_add_u32 s{S_T}, s{S_T}, s{S_E2}")
    e(f"buffer_load_dwordx4 {vr(FR,4)}, v243, {sr(S_LC)}, s{S_T} offen")
    e(f"v_lshlrev_b32 v1, 1, v{V_HROW}"); e(f"s_mul_i32 s{S_T}, s{S_L}, 52")
    e(f"buffer_load_ushort v{WV}, v1, {sr(S_WO)}, s{S_T} offen")
    e(f"buffer_load_ushort v{WP}, v1, {sr(S_WO)}, 52 offen")
    e("v_lshrrev_b32 v3, 5, v0"); e("v_mul_u32_u24 v3, 26, v3")
    for i in range(8):
        e(f"s_lshl_b32 s{S_T}, s{S_FR}, 3"); e(f"s_sub_u32 s{S_T}, s{S_T}, {8*42 + 2 - i}")
        e(f"s_lshl_b32 s{S_T+1}, s{S_T}, 1"); e(f"s_add_u32 s{S_T+1}, s{S_T+1}, 52")
        e(f"s_cmp_lt_u32 s{S_T}, 13"); e(f"s_cselect_b32 s{S_T+1}, s{S_T+1}, {OOB}")
        e(f"v_add_u32 v2, s{S_T+1}, v3")
        e(f"buffer_load_ushort v{W1V+i}, v2, {sr(S_WO)}, 0 offen")
    g.lab("L_ret")
    e(RET)
def prod_early2(g):
    e = g.e
    g.lab("L_pe2")
    e("s_waitcnt vmcnt(13)")
    e(f"v_mov_b32 v{V_CNT}, {M_CNT}")
    for i in range(36): e(f"v_and_b32 v{SCN+i}, s{S_MASK}, v{SCN+i}")
    pkmax(g, [SCN + i for i in range(36)])
    put_max(g, M_SC)
    e(f"s_add_u32 s{S_SCN}, s{S_SCN}, 4")
    arrive(g, "SCM"); lwait(g, "SCM", f"s{S_SCN}")
    get_max(g, M_SC)
    e(f"v_readfirstlane_b32 s{S_E0}, v1")
    e(f"s_bfe_u32 s{S_E0}, s{S_E0}, 0x80007")
    e(f"s_cmp_ge_u32 s{S_WP}, 22"); e("s_cbranch_scc1 L_ret")
    g.lab("L_gjob")
    e(f"s_min_u32 s{S_T+2}, s{S_E0}, 249"); e(f"s_sub_u32 s{S_T+3}, {127+124}, s{S_T+2}"); e(f"s_lshl_b32 s{S_T+3}, s{S_T+3}, 23")
    e(f"s_cmp_lt_u32 s{S_FR}, 42"); e(f"s_cselect_b32 s{S_T+1}, -1, 0")
    for i in range(1, 4): e(f"v_and_b32 v{FR+i}, s{S_T+1}, v{FR+i}")
    e(f"s_cmp_lt_u32 s{S_FR}, 43"); e(f"s_cselect_b32 s{S_T+1}, -1, 0"); e(f"v_and_b32 v{FR}, s{S_T+1}, v{FR}")
    for i in range(4): e(f"v_alignbit_b32 v{FR+i}, v{FR+i}, v{FR+i}, v{V_H16}")
    for i in range(4):
        e(f"v_lshlrev_b32 v{SCN+2*i}, 16, v{FR+i}"); e(f"v_and_b32 v{SCN+2*i+1}, 0xffff0000, v{FR+i}")
    for i in range(8): e(f"v_mul_f32 v{SCN+i}, s{S_T+3}, v{SCN+i}")
    for i in range(4): e(f"v_cvt_pk_f16_f32 v{FR+i}, v{SCN+2*i}, v{SCN+2*i+1}")
    e(f"v_lshlrev_b32 v{WV}, 16, v{WV}")
    e(f"v_and_b32 v1, 0x7fffffff, v{WV}")
    wavemax_exp(g, 1, S_E1)
    e(f"s_sub_u32 s{S_E1}, s{S_E1}, 13"); e(f"s_sub_u32 s{S_T}, 0, s{S_E1}")
    e(f"v_ldexp_f32 v{WV}, v{WV}, s{S_T}")
    for i in range(8): e(f"v_mul_f32 v{SCN+i}, v{SCN+i}, v{WV}")
    for sh in (1, 2, 4, 8):
        for i in range(8): e(f"v_add_f32_dpp v{SCN+i}, v{SCN+i}, v{SCN+i} row_shr:{sh} {DPPALL} bound_ctrl:0")
    for i in range(8): e(f"v_add_f32_dpp v{SCN+i}, v{SCN+i}, v{SCN+i} row_bcast:15 row_mask:0xa bank_mask:0xf")
    for i in range(4): e(f"v_cvt_pk_f16_f32 v{SCN+2*i}, v{SCN+2*i}, v{SCN+2*i+1}")
    e("v_and_b32 v2, 31, v0"); e("v_cmp_eq_u32 vcc, 31, v2")
    for i in range(4): e(f"v_cndmask_b32 v{FR+i}, v{FR+i}, v{SCN+2*i}, vcc")
    e(f"v_lshlrev_b32 v1, 16, v{WP}"); e("v_and_b32 v1, 0x7fffffff, v1")
    wavemax_exp(g, 1, S_E4)
    e(f"s_sub_u32 s{S_T}, 15, s{S_E4}")
    for i in range(8): e(f"v_lshlrev_b32 v{W1V+i}, 16, v{W1V+i}")
    for i in range(8): e(f"v_ldexp_f32 v{W1V+i}, v{W1V+i}, s{S_T}")
    for i in range(4): e(f"v_cvt_pk_f16_f32 v{W1V+2*i}, v{W1V+2*i}, v{W1V+2*i+1}")
    e("v_cmp_eq_u32 vcc, 30, v2")
    for i in range(4): e(f"v_cndmask_b32 v{FR+i}, v{FR+i}, v{W1V+2*i}, vcc")
    e(f"s_cmp_lg_u32 s{S_FR}, 0"); e("s_cbranch_scc1 L_nohdr")
    e(f"s_sub_u32 s{S_T+2}, s{S_T+2}, 124"); e(f"s_add_u32 s{S_E1}, s{S_E1}, s{S_T+2}"); e(f"s_sub_u32 s{S_E4}, s{S_E4}, 15")
    e(f"v_writelane_b32 v{FR}, s{S_T+2}, 29"); e(f"v_writelane_b32 v{FR+1}, s{S_E1}, 29"); e(f"v_writelane_b32 v{FR+2}, s{S_E4}, 29")
    g.lab("L_nohdr")
    e(f"s_mul_i32 s{S_T}, s{S_L}, {44*1024}"); e(f"s_lshl_b32 s{S_T+1}, s{S_FR}, 10"); e(f"s_add_u32 s{S_T}, s{S_T}, s{S_T+1}")
    e(f"s_sub_u32 s{S_T}, s{S_T}, {88*1024 - IMG['L2']}")
    e("v_lshlrev_b32 v1, 4, v0")
    e(f"buffer_store_dwordx4 {vr(FR,4)}, v1, {sr(S_WS)}, s{S_T} offen sc1")
    e("s_nop 0")
    e(RET)
def helper_prod(g):
    e = g.e
    e(f"s_add_u32 s{S_WP}, s{S_G}, 16")
    e(f"s_cmp_ge_u32 s{S_WP}, 31"); e("s_cbranch_scc1 L_j2d")
    call_if(g, [], "L_pe1")
    e(f"s_cmp_lt_u32 s{S_WP}, 22"); e("s_cbranch_scc1 L_noql")
    e("v_and_b32 v2, 31, v0"); e("v_lshrrev_b32 v3, 5, v0")
    e("v_mul_u32_u24 v1, 676, v3"); e("v_add_lshl_u32 v1, v1, v2, 1")
    e(f"s_mul_i32 s{S_T}, s{S_FR}, 52"); e(f"s_add_u32 s{S_T}, s{S_T}, {4*LB}")
    for s in range(13):
        e(f"buffer_load_ushort v{W1V+s}, v1, {sr(S_LC)}, s{S_T} offen")
        e(f"s_add_u32 s{S_T}, s{S_T}, 2704")
    e(f"s_cmp_eq_u32 s{S_WP}, 29"); e(f"s_cselect_b32 s{S_LW}, 4, 5"); e(f"s_cmp_eq_u32 s{S_WP}, 30"); e(f"s_cselect_b32 s{S_LW}, 0, s{S_LW}")
    e(f"s_mul_i32 s{S_E2}, s{S_LW}, {LB}"); e(f"s_add_u32 s{S_LC+2}, s{S_E2}, {LB}")
    e("v_lshlrev_b32 v1, 1, v0"); e("v_cmp_lt_u32 vcc, 25, v0"); e(f"v_mov_b32 v2, {OOB}"); e("v_cndmask_b32 v1, v1, v2, vcc")
    e(f"s_mul_i32 s{S_T}, s{S_LW}, 52")
    e(f"buffer_load_ushort v{WV}, v1, {sr(S_WO)}, s{S_T} offen")
    e("v_lshlrev_b32 v1, 4, v0")
    e(f"s_mul_i32 s{S_T}, s{S_J}, 1352"); e(f"s_add_u32 s{S_T}, s{S_T}, s{S_E2}")
    for t in range(7):
        for ps in range(2):
            e(f"buffer_load_dwordx4 {vr(RW+8*t+4*ps,4)}, v1, {sr(S_LC)}, s{S_T} offen offset:{1024*ps}")
        e(f"s_add_u32 s{S_T}, s{S_T}, {4*1352}")
    g.lab("L_noql")
    lwait(g, "XST")
    e("s_waitcnt vmcnt(0)")
    call_if(g, [], "L_pe2")
    g.lab("L_j2d")
    e(f"s_sub_u32 s{S_T}, s{S_G}, 6"); e(f"s_cmp_lt_u32 s{S_T}, 5"); e("s_cbranch_scc1 L_nol3")
    e(f"s_mov_b32 s{S_T+2}, {WS_CNT + C_L[3]}")
    gsignal(g, "F3", f"s{S_T+2}")
    g.lab("L_nol3")
    e(f"s_cmp_ge_u32 s{S_WP}, 31"); e("s_cbranch_scc1 L_idle")
    e(f"s_cmp_ge_u32 s{S_WP}, 22"); e("s_cbranch_scc1 L_nog")
    e("s_branch L_idle")
    g.lab("L_nog")
    lwait(g, "RB", 8)
    AC = HX; TU = HX + 16
    for t in range(6): e(f"v_lshl_or_b32 v{QAR(t)}, v{W1V+2*t+1}, 16, v{W1V+2*t}")
    e(f"v_mov_b32 v{QAR(6)}, v{W1V+12}"); e(f"v_mov_b32 v{QAR(7)}, 0")
    g.stamp("q")
    e(f"v_lshlrev_b32 v{WV}, 16, v{WV}"); e(f"v_and_b32 v1, 0x7fffffff, v{WV}")
    wavemax_exp(g, 1, S_E1)
    e(f"s_sub_u32 s{S_T}, 0, s{S_E1}"); e(f"v_ldexp_f32 v{WV}, v{WV}, s{S_T}")
    for i in range(16): e(f"v_mov_b32 v{AC+i}, 0")
    for t in range(7):
        e(f"s_add_u32 s{S_T}, s{S_J}, {4*t}")
        e(f"v_readlane_b32 s{S_T+1}, v{WV}, s{S_T}")
        for i in range(8):
            e(f"v_lshlrev_b32 v{TU+2*i}, 16, v{RW+8*t+i}"); e(f"v_and_b32 v{TU+2*i+1}, 0xffff0000, v{RW+8*t+i}")
        for i in range(16): e(f"v_fmac_f32 v{AC+i}, s{S_T+1}, v{TU+i}")
    PSTR = 4096
    e(f"s_mul_i32 s{S_T}, s{S_J}, {PSTR}"); e(f"s_add_u32 s{S_T}, s{S_T}, {D0}")
    e(f"v_lshl_add_u32 v1, v0, 5, s{S_T}")
    for ps in range(2):
        for hf in range(2): e(f"ds_write_b128 v1, {vr(AC+8*ps+4*hf,4)} offset:{2048*ps+16*hf}")
    g.stamp("q"); arrive(g, "WC"); lwait(g, "WC"); g.stamp("q")
    call_if(g, [], "L_l2")
    e(f"s_cmp_eq_u32 s{S_FR}, 28"); e("s_cbranch_scc1 L_lin")
    e(f"s_cmp_lt_u32 s{S_FR}, 26"); e("s_cbranch_scc1 L_q")
    e(f"s_cmp_lg_u32 s{S_FR}, 32"); e("s_cbranch_scc1 L_noq")
    g.lab("L_q")
    BQ, PT, DQ = HX + 16, HX + 32, HX + 96
    e("v_and_b32 v2, 31, v0"); e("v_lshrrev_b32 v3, 5, v0")
    e("v_mad_u32_u24 v1, v3, 26, v2"); e("v_lshlrev_b32 v1, 2, v1"); e(f"v_add_u32 v1, {D0}, v1")
    def readsum(stride):
        for pj in range(4):
            for s in range(13): e(f"ds_read_b32 v{PT+13*pj+s}, v1 offset:{PSTR*pj + stride*s}")
            if pj: e("s_waitcnt lgkmcnt(13)")
        e("s_waitcnt lgkmcnt(0)")
        for s in range(13):
            e(f"v_add_f32 v{PT+s}, v{PT+s}, v{PT+13+s}"); e(f"v_add_f32 v{PT+26+s}, v{PT+26+s}, v{PT+39+s}")
        for s in range(13): e(f"v_add_f32 v{BQ+s}, v{PT+s}, v{PT+26+s}")
    def max13():
        e(f"v_max3_f32 v1, |v{BQ}|, |v{BQ+1}|, |v{BQ+2}|")
        for s in range(3, 13, 2): e(f"v_max3_f32 v1, v1, |v{BQ+s}|, |v{BQ+s+1}|")
    readsum(208)
    e("v_cmp_gt_u32 vcc, 26, v2")
    for s in range(13): e(f"v_cndmask_b32 v{BQ+s}, 0, v{BQ+s}, vcc")
    max13()
    wavemax_exp(g, 1, S_E2)
    e(f"s_sub_u32 s{S_T}, 0, s{S_E2}")
    for s in range(13): e(f"v_ldexp_f32 v{BQ+s}, v{BQ+s}, s{S_T}")
    e(f"s_max_u32 s{S_E0}, s{S_E0}, 10"); e(f"s_sub_u32 s{S_E0}, s{S_E0}, 126")
    BH, BL = PT, PT + 8
    e(f"v_mov_b32 v{BQ+13}, 0"); e(f"v_mov_b32 v{BH+7}, 0"); e(f"v_mov_b32 v{BL+7}, 0")
    for t in range(7): e(f"v_cvt_pk_bf16_f32 v{BH+t}, v{BQ+2*t}, v{BQ+2*t+1}")
    for t in range(7):
        e(f"v_lshlrev_b32 v{PT+16+2*t}, 16, v{BH+t}"); e(f"v_and_b32 v{PT+17+2*t}, 0xffff0000, v{BH+t}")
    for t in range(14): e(f"v_sub_f32 v{BQ+t}, v{BQ+t}, v{PT+16+t}")
    for t in range(7): e(f"v_cvt_pk_bf16_f32 v{BL+t}, v{BQ+2*t}, v{BQ+2*t+1}")
    e(f"s_cmp_ge_u32 s{S_FR}, 13"); e(f"s_cselect_b32 s{S_T+1}, 13, 0"); e(f"s_cselect_b32 s{S_T+2}, 4, 0")
    e(f"s_sub_u32 s{S_T+1}, s{S_FR}, s{S_T+1}"); e(f"s_and_b32 s{S_T+3}, s{S_T+1}, 3"); e(f"s_add_u32 s{S_T+2}, s{S_T+2}, s{S_T+3}")
    e(f"s_lshr_b32 s{S_T+1}, s{S_T+1}, 2"); e(f"s_lshl_b32 s{S_T+1}, s{S_T+1}, 3"); e(f"s_add_u32 s{S_SB}, s{S_T+2}, s{S_T+1}")
    e(f"s_mov_b32 s{S_L}, 0")
    e(f"s_cmp_lg_u32 s{S_FR}, 32"); e("s_cbranch_scc1 L_q2")
    e("v_sub_u32 v1, v2, v3")
    for s in range(13):
        e(f"v_cmp_eq_u32 vcc, {2*s}, v1"); e(f"v_cndmask_b32 v{AQ+s}, 0, 1.0, vcc")
    e(f"v_mov_b32 v{AQ+13}, 0")
    for t in range(7): e(f"v_cvt_pk_bf16_f32 v{QAR(t)}, v{AQ+2*t}, v{AQ+2*t+1}")
    e(f"s_mov_b32 s{S_E0}, 0"); e(f"s_mov_b32 s{S_SB}, 31"); e(f"s_mov_b32 s{S_L}, 8")
    g.lab("L_q2")
    g.stamp("q")
    e("s_nop 1")
    first = True
    for bb in (BL, BH):
        for ks in range(2):
            e(f"v_mfma_f32_32x32x16_bf16 {vr(DQ,16)}, {vr(QAR(4*ks),4)}, {vr(bb+4*ks,4)}, {'0' if first else vr(DQ,16)}"); first = False
            e(f"v_mfma_f32_32x32x16_bf16 {vr(DQ,16)}, {vr(bb+4*ks,4)}, {vr(QAR(4*ks),4)}, {vr(DQ,16)}")
    e(f"v_max_f32 v1, v{QS}, v{QS+1}")
    e(f"s_sub_u32 s{S_T}, 137, s{S_E0}"); e(f"s_lshl_b32 s{S_T}, s{S_T}, 23"); e(f"v_mov_b32 v30, s{S_T}"); e("v_mul_f32 v31, 0.5, v30")
    for t in range(7):
        e(f"v_cmp_eq_f32 vcc, v1, v{QS+t}"); e(f"v_cndmask_b32 v{QS+t}, v31, v30, vcc")
    e(f"s_cmp_eq_u32 s{S_J}, 1"); e(f"s_cselect_b32 s{S_T}, 48, 0"); e(f"s_sub_u32 s{S_T}, {D1 - BUFA}, s{S_T}")
    for t in range(7): e(f"v_add_u32 v{QA+t}, s{S_T}, v{QA+t}")
    e(f"v_mul_u32_u24 v1, {S0STR}, v2"); e("v_lshl_add_u32 v1, v3, 9, v1"); e(f"s_lshl_b32 s{S_T}, s{S_J}, 4"); e(f"s_add_u32 s{S_T}, s{S_T}, {D1}")
    e(f"v_min_u32 v1, {22*S0STR+512}, v1")
    e(f"v_add_u32 v1, s{S_T}, v1")
    e(f"v_lshl_add_u32 v28, v3, 9, s{S_T}"); e("v_mov_b32 v29, 0")
    e(f"ds_write_b32 v28, v29 offset:{22*S0STR+12}")
    pack_round(g, DQ, 0, False)
    g.stamp("q")
    e("s_waitcnt lgkmcnt(0)")
    e(f"ds_read_b128 {vr(AQ,4)}, v1")
    e("v_lshlrev_b32 v1, 10, v2"); e("v_lshl_add_u32 v1, v3, 9, v1"); e("v_cmp_lt_u32 vcc, 22, v2"); e(f"v_mov_b32 v28, {OOB}"); e("v_cndmask_b32 v1, v1, v28, vcc")
    e(f"s_lshl_b32 s{S_T}, s{S_SB}, 4"); e(f"s_add_u32 s{S_T}, s{S_T}, {IMG['Q4']}")
    e("s_waitcnt lgkmcnt(0)")
    e(f"buffer_store_dwordx4 {vr(AQ,4)}, v1, {sr(S_WS)}, s{S_T} offen sc1")
    e(f"s_add_u32 s{S_E0}, s{S_E0}, s{S_E2}"); e(f"s_add_u32 s{S_E0}, s{S_E0}, s{S_E1}"); e(f"s_sub_u32 s{S_E0}, s{S_E0}, 10")
    e(f"s_and_b32 s{S_T}, s{S_FR}, 31"); e(f"s_cmp_lg_u32 s{S_T}, 0"); e("s_cbranch_scc1 L_noq")
    g.lab("L_qh")
    e(f"v_mov_b32 v1, s{S_E0}"); e(f"s_add_u32 s{S_T}, s{S_L}, {IMG['Q4'] + 23*1024}")
    e(f"buffer_store_dword v1, v{V_L0}, {sr(S_WS)}, s{S_T} offen sc1")
    e("s_branch L_noq")
    g.lab("L_lin")
    e("v_lshrrev_b32 v3, 5, v0"); e(f"v_min_u32 v2, 25, v{V_HROW}")
    e("v_mad_u32_u24 v1, v2, 26, v3"); e("v_lshlrev_b32 v1, 2, v1"); e(f"v_add_u32 v1, {D0}, v1")
    readsum(8)
    e(f"v_cmp_gt_u32 vcc, 26, v{V_HROW}")
    for s in range(13): e(f"v_cndmask_b32 v{BQ+s}, 0, v{BQ+s}, vcc")
    max13()
    wavemax_exp(g, 1, S_E2)
    e(f"s_sub_u32 s{S_T}, 15, s{S_E2}")
    for s in range(13): e(f"v_ldexp_f32 v{BQ+s}, v{BQ+s}, s{S_T}")
    e(f"v_mov_b32 v{BQ+13}, 0"); e(f"v_mov_b32 v{AQ+7}, 0")
    for t in range(7): e(f"v_cvt_pk_f16_f32 v{AQ+t}, v{BQ+2*t}, v{BQ+2*t+1}")
    e("v_lshlrev_b32 v1, 4, v0"); e(f"s_mov_b32 s{S_T}, {IMG['Q4'] + 24*1024}")
    for s in range(2): e(f"buffer_store_dwordx4 {vr(AQ+4*s,4)}, v1, {sr(S_WS)}, s{S_T} offen offset:{1024*s} sc1")
    e(f"s_add_u32 s{S_E0}, s{S_E2}, s{S_E1}"); e(f"s_sub_u32 s{S_E0}, s{S_E0}, 15"); e(f"s_mov_b32 s{S_L}, 4")
    e("s_branch L_qh")
    g.lab("L_noq")
    g.stamp("q")
    e(f"s_mov_b32 s{S_T+2}, {WS_CNT + C_Q}")
    gsignal(g, "QST", f"s{S_T+2}")
    g.stamp("q")
    lwait(g, "QST")
    e("s_branch L_idle2")
    g.lab("L_l2")
    lwait(g, "AFREE")
    poll1(g, [(S_DBG, "0", 128, 11)], "F2")
    dma_img(g, "L2", 44, BUFA)
    e("s_waitcnt vmcnt(0)"); arrive(g, "L2OK")
    e(RET)
    g.lab("L_idle")
    call_if(g, [], "L_l2")
    g.lab("L_idle2")
    g.stamp(); g.stamp()
    lwait(g, "BFREE")
    poll1(g, [(S_WS, f"s{S_CX}", C_L[3], 11)], "FX")
    dma_img(g, "L3", 44, BUFB)
    e("s_waitcnt vmcnt(0)"); arrive(g, "L3OK")
    g.stamp()
    poll1(g, [(S_WS, f"s{S_CX}", C_Q, 9), CHK_X()], "FQ")
    dma_img(g, "Q4", 28, QB)
    e("s_waitcnt vmcnt(0)"); arrive(g, "QOK")
    g.stamp()
    g.flush_stamps(4, 5)
    e("s_endpgm")

DOC = """; ---- design (generated by a script of my own) ----
;   g4 = L x + Q(x,x) with L = w4.W4, Q = W4.(w5.W5);  logit = sum_l w_l.u_{l+1} + g4.u4.
; MLP: 15 workgroups per 256 samples, 16x16x32 bf16 MFMA, x exchanged in fragment order through d_ws; the 16th workgroup
;   prepares the shared fp16 weight images. Hand-offs: write-through stores, drained, then counters reset inside this launch.
"""
def build(stamps=False):
    g = G(stamps)
    prologue(g); n0 = g.nst
    cin(g)
    g.h0 = len(g.L); g.lab("L_helper"); g.nst = n0
    helper_common(g); n1 = g.nst
    g.e(f"s_cmp_ge_u32 s{S_R}, {NR}"); g.e("s_cbranch_scc1 L_helper_n")
    helper_dnn(g)
    g.lab("L_helper_n"); g.nst = n1
    helper_prod(g)
    prod_early1(g); prod_early2(g)
    g.L += g.tail
    i = g.L.index("L_cin2:"); g.L[i:i] = g.hfirst
    g.lab("L_end"); g.e("s_endpgm")
    body, nops = fix_hazards(g.L)
    ref = open("standalone__deep_cross_xdeepfm__recsys.s.ref").read().split("\n")
    hdr = [l for l in ref if l.startswith(";") and "@launch" not in l and "Override" not in l and "grid=ceil" not in l]
    txt = "\n".join(hdr) + f"\n; @launch grid=(256,1,1) block=(512,1,1) lds={LDS_TOTAL}\n"
    txt += DOC
    txt += f'.amdgcn_target "amdgcn-amd-amdhsa--gfx950"\n.text\n.globl {KN}\n.p2align 8\n.type {KN},@function\n{KN}:\n'
    txt += "\n".join(body) + "\n"
    txt += f""".section .rodata,"a"
.p2align 6
.amdhsa_kernel {KN}
  .amdhsa_next_free_vgpr 256
  .amdhsa_next_free_sgpr 102
  .amdhsa_accum_offset 256
  .amdhsa_group_segment_fixed_size 0
  .amdhsa_kernarg_size 88
  .amdhsa_user_sgpr_count 2
  .amdhsa_user_sgpr_kernarg_segment_ptr 1
  .amdhsa_system_sgpr_workgroup_id_x 1
.end_amdhsa_kernel
"""
    return txt, nops
if __name__ == "__main__":
    for a in sys.argv[2:]:
        if "=" in a:
            k, v = a.split("="); setattr(PAR, k, eval(v))
    txt, nops = build(stamps="stamps" in sys.argv)
    open(sys.argv[1], "w").write(txt)
    print("nops inserted", nops, "lines", txt.count("\n"))
```

```python
import sys, struct
from asmlib import fix_hazards
KN = "standalone__deep_cross_xdeepfm__recsys_kernel"
def f2u(f): return struct.unpack('<I', struct.pack('<f', f))[0]
OOB = 0x40000000
SPIN = 200000
LB = 35152
IMG = {}
off = 0
for name, n in (("L2", 44), ("L3", 44), ("Q4", 28)):
    IMG[name] = off; off += n * 1024
NR = 15
WS_PART = off
WS_CNT = WS_PART + 16 * NR * 1024
WS_STAMP = 0x80000
WS_X = WS_STAMP + 256 * 8 * 64
C_L = {3: 512}; C_Q = 516; C_XR = 256; C_RDY = 0
BUFA, BUFB = 0, 45056
D0, D1 = 90112, 118784
QB = D0 + 10 * 4096
MISC = QB + 28672
LDS_TOTAL = MISC + 2560
M_S0, M_L1, M_SC, M_EW1, M_CNT = MISC, MISC + 64, MISC + 128, MISC + 192, MISC + 256
CNT = {n: M_CNT + 4 * i for i, n in enumerate(["XST", "L1M", "L1OK", "AFREE", "L2OK", "BFREE", "L3OK", "QOK", "W01", "C0", "C1", "C2", "SCM", "GST", "WC", "QST", "FX", "F2", "F3", "FQ", "S0OK", "S0M", "RAW", "RB"])}
CNT["AFREE"] = M_CNT + 4 * 28; CNT["BFREE"] = M_CNT + 4 * 29; CNT["RB"] = M_CNT + 4 * 30
S0STR = 1040
XSTR = 1680
QPAIRS = [(p, q) for p in range(13) for q in range(p, 13)]
S_IDX, S_TAB, S_WS, S_W1, S_B1, S_W2, S_OUT, S_DBG, S_BO, S_WC, S_WO = 4, 8, 12, 16, 20, 24, 28, 32, 36, 40, 44
S_G, S_R, S_WAVE, S_J = 70, 71, 83, 3
S_HDR = 48
S_EX = 60
S_K = 64
S_K1 = 4
S_KC = 76
S_T = 72
S_MASK = 80
S_C1 = 81
S_SB = 82
S_ST = 84
class P: pass
PAR = P()
PAR.chunks = [7, 7, 6, 6]
PAR.gsplit = 0
PAR.gsplit2 = 3
PAR.lnpos = 28
PAR.pload = 17
PAR.la = 12
PAR.urate = 5
PAR.xst = 2
PAR.l2pos = -1
PAR.nslot = 6
PAR.st = 'ad'
PAR.ld = 'sc1'
PAR.inv = 0
PAR.ttouch = 0
PAR.encsh = 1
PAR.wp = 3
PAR.dp = 3
PAR.otouch = 0
PAR.drop = ('Q4', 6)
PAR.cp2 = 1
PAR.sp = 1
PAR.barpos = 2
PAR.nxl = 4
PAR.noa = 0
PAR.il = 2
PAR.fst = (0, 3, 6, 10, 13, 17, 22)
PAR.xi = 3
PAR.wbn = 3
PAR.wpf3 = 0
PAR.wa = 10
PAR.l3n = 2
PAR.wbpos = 3
PAR.wmod = ''
PAR.w2 = 1
PAR.l1rate = 16
PAR.sclq = 0
PAR.x0 = 0
PAR.qpos = 13
PAR.m16 = 0
PAR.encsel = None
PAR.gmin = 0
PAR.qaearly = 0
PAR.gmod = 'nt'
PAR.imod = 'nt'
PAR.pkpack = 0
PAR.w0lin = 0
PAR.l3rate = 18
PAR.qarr = 3
PAR.gearly = 11
PAR.ngelu = 16
PAR.nmf = 14
PAR.npk = 4
PAR.lslp = 4
PAR.zpad = 1
PAR.skew = 1
PAR.cstr = 4352
PAR.l3late = 1
PAR.xp = 3
PAR.wearly = 0
PAR.wpf2 = 0
PAR.ghi = 1
PAR.qchk = 8
PAR.cp = 1
PAR.enc = None
PAR.rate = 20
PAR.qrate = 24
PAR.clk = 0
PAR.hp = 0
PAR.nost = 0
PAR.wpf = 1
PAR.rot = 2
PAR.pf = 4
PAR.qlate = 0
PAR.slp = 8
PAR.de = 2
PAR.touch = 0
PAR.dbg = None
class G:
    def __init__(self, stamps=False):
        self.L = []; self.stamps = stamps; self.nst = 0; self.nl = 0; self.vmq = []; self.tail = []
    def e(self, s): self.L.append("    " + s)
    def lab(self, s): self.L.append(s + ":")
    def vm(self, s, tag): self.e(s); self.vmq.append(tag)
    def vmwait(self, *tags):
        idx = max(i for i, t in enumerate(self.vmq) if t in tags)
        n = sum(1 for t in self.vmq[idx + 1:] if not t.startswith("f"))
        self.e(f"s_waitcnt vmcnt({min(n, 63)})")
    def newlab(self, s): self.nl += 1; return f"L_{s}_{self.nl}"
    def stamp(self, name=None):
        if self.stamps and (name or "d") in PAR.st:
            assert self.nst < 8
            self.e(f"{'s_memtime' if PAR.clk else 's_memrealtime'} s[{S_ST+2*self.nst}:{S_ST+2*self.nst+1}]"); self.nst += 1
    def flush_stamps(self, vt, va):
        if not self.stamps: return
        self.e("s_waitcnt lgkmcnt(0)")
        self.e(f"s_lshl_b32 s{S_T}, s2, 3"); self.e(f"s_add_u32 s{S_T}, s{S_T}, s{S_WAVE}"); self.e(f"s_lshl_b32 s{S_T}, s{S_T}, 6")
        self.e(f"s_add_u32 s{S_T}, s{S_T}, {WS_STAMP}")
        self.e(f"v_mov_b32 v{va}, 0")
        if PAR.dbg is not None:
            lb = self.newlab("nd")
            self.e(f"s_cmp_lg_u32 s{S_T}, {WS_STAMP + PAR.dbg*64}"); self.e(f"s_cbranch_scc1 {lb}")
            for i in range(self.nst):
                self.e(f"s_sub_u32 s{S_T+1}, s{S_ST+2*i}, s{S_ST}")
                self.e(f"v_mov_b32 v{vt}, s{S_T+1}")
                self.e(f"buffer_store_dword v{vt}, v{va}, s[{S_DBG}:{S_DBG+3}], 0 offen offset:{64+4*i}")
            self.lab(lb)
        for i in range(self.nst):
            self.e(f"v_mov_b32 v{vt}, s{S_ST+2*i}")
            self.e(f"buffer_store_dword v{vt}, v{va}, s[{S_WS}:{S_WS+3}], s{S_T} offen offset:{4*i}")
        self.nst = 0
def vr(a, n): return f"v[{a}:{a+n-1}]"
def sr(a, n=4): return f"s[{a}:{a+n-1}]"
DPPALL = "row_mask:0xf bank_mask:0xf"

def prologue(g):
    e = g.e
    e("s_cmp_ge_u32 s2, 256")
    e("s_cbranch_scc1 L_end")
    g.stamp("a")
    e("s_load_dwordx16 s[48:63], s[0:1], 0")
    e("s_load_dwordx4 s[64:67], s[0:1], 64")
    e("s_load_dwordx2 s[68:69], s[0:1], 80")
    if PAR.pf:
        e(f"s_getpc_b64 s[{S_KC}:{S_KC+1}]")
        g.lab("L_pfbase")
        e(f"s_mov_b32 s{S_KC+2}, L_end - L_pfbase"); e(f"s_mov_b32 s{S_KC+3}, 0x00020000")
        e(f"s_lshr_b32 s{S_T}, s2, 3"); e(f"s_lshl_b32 s{S_T}, s{S_T}, 7")
        e("v_xor_b32 v1, 0x1c0, v0"); e("v_lshlrev_b32 v1, 12, v1")
        e(f"buffer_load_dword v255, v1, {sr(S_KC)}, s{S_T} offen")
    e("v_lshrrev_b32 v1, 6, v0")
    e("v_and_b32 v0, 63, v0")
    e(f"v_readfirstlane_b32 s{S_WAVE}, v1")
    e(f"s_and_b32 s{S_T}, s2, 7")
    e(f"s_lshr_b32 s{S_T+1}, s2, 3")
    e(f"s_lshr_b32 s{S_G}, s{S_T+1}, 4")
    e(f"s_lshl_b32 s{S_T}, s{S_T}, 1")
    e(f"s_add_u32 s{S_G}, s{S_G}, s{S_T}")
    e(f"s_and_b32 s{S_R}, s{S_T+1}, 15")
    e(f"s_mov_b32 s{S_MASK}, 0x7fff7fff")
    e("v_and_b32 v25, 31, v0"); e("v_lshlrev_b32 v25, 2, v25"); e(f"v_add_u32 v25, {M_CNT}, v25"); e("v_mov_b32 v2, 0")
    e("ds_write_b32 v25, v2")
    if PAR.barpos == 2: e("s_waitcnt lgkmcnt(0)"); e("s_barrier")
    e(f"s_cmp_ge_u32 s{S_WAVE}, 4")
    e("s_cbranch_scc1 L_helper")

SRDS = {S_IDX: (48, 4096*104), S_TAB: (50, 6400000), S_WC: (52, LB), S_WO: (54, 312), S_W1: (56, 832*1664), S_B1: (58, 1664), S_W2: (60, 1664),
        S_BO: (62, 2), S_OUT: (64, 8192), S_DBG: (66, 256), S_WS: (68, 1 << 28)}
def srd_const(g, lst):
    for srd in lst: g.e(f"s_mov_b32 s{srd+2}, {SRDS[srd][1]}"); g.e(f"s_mov_b32 s{srd+3}, 0x00020000")
def srd_base(g, lst):
    for srd in lst: g.e(f"s_mov_b64 s[{srd}:{srd+1}], s[{SRDS[srd][0]}:{SRDS[srd][0]+1}]")
ACC, ACC2, XR, UR, BR, AR, SC, LG, TM = 4, 68, 132, 188, 216, 228, 244, 248, 252
def X(k, p): return XR + 14 * k + p
def EV(k): return XR + 14 * k + 13
def U(k, t): return UR + 7 * k + t
def cin(g):
    e = g.e
    e("s_setprio 3")
    e(f"s_lshl_b32 s{S_T}, s{S_G}, 8"); e(f"s_lshl_b32 s{S_T+1}, s{S_R}, 4"); e(f"s_add_u32 s{S_T}, s{S_T}, s{S_T+1}")
    e(f"s_lshl_b32 s{S_T+1}, s{S_WAVE}, 2"); e(f"s_add_u32 s{S_SB}, s{S_T}, s{S_T+1}")
    e("v_lshrrev_b32 v1, 4, v0")
    e("v_bfe_u32 v2, v0, 2, 2")
    e("v_and_b32 v3, 3, v0")
    e("v_mul_u32_u24 v4, 104, v1")
    e("v_mad_u32_u24 v4, v2, 28, v4")
    I = 8
    CS = [S_IDX, S_WC, S_TAB, S_WS, S_OUT] + ([S_DBG] if PAR.dbg is not None or PAR.gmin else [])
    srd_const(g, CS[:1])
    e(f"s_mul_i32 s{S_T}, s{S_SB}, 104")
    g.stamp("i")
    e("s_waitcnt lgkmcnt(0)")
    g.stamp("i")
    srd_base(g, CS[:1])
    e(f"buffer_load_dwordx4 {vr(I,4)}, v4, {sr(S_IDX)}, s{S_T} offen {PAR.imod}")
    e(f"buffer_load_dwordx3 {vr(I+4,3)}, v4, {sr(S_IDX)}, s{S_T} offen offset:16 {PAR.imod}")
    if PAR.ttouch:
        srd_const(g, [S_TAB]); srd_base(g, [S_TAB])
        e(f"s_lshl_b32 s{S_T}, s{S_WAVE}, 30"); e(f"v_lshl_add_u32 v15, v0, {PAR.ttouch}, s{S_T}")
        e(f"buffer_load_dword v15, v15, {sr(S_TAB)}, 0 offen")
    e(f"s_setprio {PAR.sp}")
    e("s_branch L_cin2")
    g.lab("L_cin2")
    srd_base(g, CS[1:])
    e(f"s_load_dword s{S_BO}, s[62:63], 0")
    srd_const(g, CS[1:])
    e(f"s_mov_b32 s{S_WC+2}, {2*LB}"); e(f"s_mov_b32 s{S_J}, s{S_WAVE}")
    e("v_lshlrev_b32 v5, 4, v3")
    e("v_cmp_eq_u32 vcc, 3, v2")
    e(f"v_mov_b32 v6, {OOB}")
    e("v_cndmask_b32 v6, 0, v6, vcc")
    e("v_add_u32 v6, v6, v5")
    e("v_lshlrev_b32 v26, 4, v0"); e("v_cmp_lt_u32 vcc, 42, v0"); e(f"v_mov_b32 v27, {OOB}"); e("v_cndmask_b32 v26, v26, v27, vcc")
    e("v_lshlrev_b32 v29, 4, v0"); e(f"v_add_u32 v29, {BUFA + 28*1024}, v29")
    e(f"s_lshl_b32 s{S_T}, s{S_J}, 4"); e(f"s_add_u32 s{S_T}, s{S_T}, {BUFB}")
    e(f"v_mul_u32_u24 v28, {S0STR}, v0"); e(f"v_add_u32 v28, s{S_T}, v28"); e("v_cndmask_b32 v28, v28, v29, vcc")
    e(f"s_mul_i32 s{S_T+1}, s{S_WAVE}, {4*XSTR}"); e(f"s_add_u32 s{S_T+1}, s{S_T+1}, {D0}")
    e(f"v_mul_u32_u24 v7, {XSTR}, v1")
    e("v_mad_u32_u24 v16, v2, 7, 0")
    e("v_lshl_add_u32 v7, v16, 6, v7")
    e(f"v_add3_u32 v7, v7, v5, s{S_T+1}")
    e("v_cmp_eq_u32 vcc, 3, v2")
    e(f"v_lshl_add_u32 v18, v0, 4, 0"); e(f"v_add_u32 v18, {D0 + 16*XSTR + 256 - 320}, v18"); e("v_cndmask_b32 v18, v7, v18, vcc")
    e("v_lshrrev_b32 v16, 1, v1")
    e("v_xor_b32 v16, v16, v2")
    e("v_lshlrev_b32 v16, 6, v16")
    e("v_and_b32 v17, 1, v1")
    e("v_lshl_add_u32 v16, v17, 5, v16")
    e("v_lshl_add_u32 v16, v3, 3, v16")
    e(f"v_add_u32 v16, s{S_T+1}, v16")
    for k in range(4): e(f"v_mov_b32 v{LG+k}, 0")
    PA, PS, DR = 32, 40, 184
    if PAR.zpad:
        for i in range(4): e(f"v_mov_b32 v{PS+i}, 0")
        e(f"s_and_b32 s{S_T}, s{S_J}, 1"); e(f"s_mul_i32 s{S_T}, s{S_T}, 48"); e(f"s_lshr_b32 s{S_T+1}, s{S_J}, 1"); e(f"s_mul_i32 s{S_T+1}, s{S_T+1}, 480")
        e(f"s_add_u32 s{S_T}, s{S_T}, s{S_T+1}"); e(f"v_add_u32 v30, s{S_T}, v28")
        e(f"v_subrev_u32 v31, {BUFB - BUFA}, v30"); e("v_cmp_lt_u32 vcc, 22, v0"); e("v_cndmask_b32 v31, v31, v29, vcc")
        for i in range(3):
            e(f"ds_write_b128 v30, {vr(PS,4)} offset:{25*16 + 16*i}"); e(f"ds_write_b128 v31, {vr(PS,4)} offset:{25*16 + 16*i}")
    unpack_mat(g, PA, 20)
    e("s_setprio 1")
    L1R = 132
    if not PAR.barpos: e("s_barrier")
    g.stamp("i")
    e(f"s_mul_i32 s{S_T}, s{S_J}, 1352")
    for i in range(13):
        if i < 12:
            t = i >> 1
            if i & 1 == 0: e(f"s_add_u32 s{S_T+1}, s{S_T}, {LB + (13*(t&1) + 4*(t>>1))*1352}")
            e(f"buffer_load_dwordx4 {vr(L1R+4*i,4)}, v26, {sr(S_WC)}, s{S_T+1} offen offset:{676*(i&1)}")
        else:
            e(f"s_lshr_b32 s{S_T+1}, s{S_J}, 1"); e(f"s_mul_i32 s{S_T+1}, s{S_T+1}, {13*1352}"); e(f"s_and_b32 s{S_T+2}, s{S_J}, 1"); e(f"s_mul_i32 s{S_T+2}, s{S_T+2}, 676")
            e(f"s_add_u32 s{S_T+1}, s{S_T+1}, s{S_T+2}"); e(f"s_add_u32 s{S_T+1}, s{S_T+1}, {LB + 12*1352}")
            e(f"buffer_load_dwordx4 {vr(L1R+4*i,4)}, v26, {sr(S_WC)}, s{S_T+1} offen")
    e("s_setprio 3")
    g.stamp("i")
    e("s_waitcnt vmcnt(13)")
    g.stamp("i")
    GR, MR = 68, 96
    for t in range(7):
        e(f"v_lshl_add_u32 v{I+t}, v{I+t}, 6, v{5 if t < 5 else 6}")
        e(f"buffer_load_dwordx4 {vr(GR+4*t,4)}, v{I+t}, {sr(S_TAB)}, 0 offen {PAR.gmod}")
    g.stamp(); g.stamp("i")
    e(f"s_setprio {PAR.cp}")
    if PAR.barpos == 1: e("s_barrier")
    def carrive(c):
        e("v_mov_b32 v2, 1"); e("s_mov_b64 exec, 1"); e(f"ds_add_u32 v25, v2 offset:{CNT[c]-M_CNT}"); e("s_mov_b64 exec, -1")
    for i in range(13):
        e(f"s_waitcnt vmcnt({7 + 12 - i})")
        unpack(g, DR, PA, L1R, i)
        if i & 1 and i >= 3: tmax(g, DR, (i >> 1) - 1, 16, i == 3)
    e(f"s_and_b32 s{S_T}, s{S_J}, 1"); e(f"s_lshl_b32 s{S_T}, s{S_T}, 4")
    tmax(g, DR, 5, 16, False)
    for r in range(4): e(f"v_alignbit_b32 v{L1R+48+r}, v{L1R+48+r}, v{L1R+48+r}, s{S_T}")
    tmax(g, DR, 6, 8, False)
    put_max(g, M_L1)
    carrive("L1M")
    for i in range(8): e(f"v_and_b32 v{PS+i}, 0x800080, v{PA+i}")
    g.stamp("s")
    e(f"s_setprio {PAR.cp2}")
    lwait(g, "L1M", 4, 25, 2)
    get_max(g, M_L1)
    e(f"v_readfirstlane_b32 s{S_T}, v1")
    e(f"s_lshr_b32 s{S_T}, s{S_T}, 23"); e(f"s_min_u32 s{S_T}, s{S_T}, 249"); e(f"s_sub_u32 s{S_HDR+2}, s{S_T}, 124")
    e(f"s_sub_u32 s{S_T}, {127+124}, s{S_T}")
    for i in range(8): e(f"v_mul_u32_u24 v{PS+i}, s{S_T}, v{PS+i}")
    def l1out(i):
        d = DR + 16 * ((i >> 1) & 3) + 8 * (i & 1)
        for r in range(4):
            lo, hi = (d + 2 * r + 1, d + 2 * r) if (i & 1) else (d + 2 * r, d + 2 * r + 1)
            e(f"v_cvt_pk_f16_f32 v{L1R+4*i+r}, v{lo}, v{hi}")
        if i < 12:
            t = i >> 1; o = 16 * (8 * (t >> 1) + 4 * (t & 1)) + 512 * (i & 1)
        else:
            e(f"s_lshr_b32 s{S_T}, s{S_J}, 1"); e(f"s_lshl_b32 s{S_T}, s{S_T}, 5"); e(f"s_and_b32 s{S_T+1}, s{S_J}, 1"); e(f"s_mul_i32 s{S_T+1}, s{S_T+1}, 496")
            e(f"s_add_u32 s{S_T}, s{S_T}, s{S_T+1}"); e(f"v_add_u32 v28, s{S_T}, v28"); o = 24 * 16
        e(f"ds_write_b128 v28, {vr(L1R+4*i,4)} offset:{o}")
    for i in range(13):
        unpack(g, DR, PS, L1R, i)
        if i >= 4: l1out(i - 4)
    for i in range(9, 13): l1out(i)
    g.stamp("s")
    e(f"ds_read_b32 v3, v25 offset:{CNT['S0OK']-M_CNT}")
    e("v_lshlrev_b32 v1, 4, v0")
    for i in range(2): e(f"ds_read_b128 {vr(AR+4*i,4)}, v1 offset:{BUFA + i*S0STR}")
    e("s_waitcnt lgkmcnt(2)")
    DR = 132
    e("v_mov_b32 v2, 1")
    e(f"s_setprio {PAR.xp}")
    for t in range(7):
        e(f"s_waitcnt vmcnt({6 - t})")
        unpack(g, DR, PA, GR, t)
        e(f"ds_write_b128 v{7 if t < 5 else 18}, {vr(GR+4*t,4)} offset:{64*t}")
        if t in (3, 5): tmax(g, DR, (t >> 1) - 1, 16, t == 3, 20)
    e("s_mov_b64 exec, 1"); e(f"ds_add_u32 v25, v2 offset:{CNT['RAW']-M_CNT}"); e("s_mov_b64 exec, -1")
    g.stamp(); g.stamp("s")
    tmax(g, DR, 2, 16, False, 20); tmax(g, DR, 3, 8, False, 20)
    for sh in (8, 4, 2, 1):
        e(f"v_max_u32_dpp v20, v20, v20 row_ror:{sh} {DPPALL}")
    e("v_lshrrev_b32 v20, 23, v20"); e("v_max_u32 v20, 4, v20")
    e(f"v_sub_u32 v22, {127+130}, v20"); e("v_lshlrev_b32 v22, 23, v22")
    for t in range(7):
        d = DR + 8 * t
        for i in range(8): e(f"v_mul_f32 v{d+i}, v{d+i}, v22")
        for i in range(4): e(f"v_cvt_pk_f16_f32 v{MR+4*t+i}, v{d+2*i}, v{d+2*i+1}")
        e(f"ds_write_b128 v{7 if t < 5 else 18}, {vr(MR+4*t,4)} offset:{D1 - D0 + 64*t}")
    for k in range(4):
        for t in range(7):
            e(f"ds_read_b64_tr_b16 {vr(X(k,2*t),2)}, v16 offset:{D1 - D0 + k*XSTR+t*256}")
    for k in range(4): e(f"v_readlane_b32 s{S_EX+k}, v20, {16*k}")
    HW = lambda l: S_HDR + 2 * l
    HD = lambda l: S_HDR + 2 * l + 1
    HQ, HL = S_HDR + 8, S_HDR + 9
    e("s_setprio 1")
    e(f"v_readfirstlane_b32 s{S_T}, v3"); e(f"s_cmp_ge_u32 s{S_T}, 4"); e("s_cbranch_scc1 L_s0ok")
    lwait(g, "S0OK", 4, 25, 2)
    for i in range(2): e(f"ds_read_b128 {vr(AR+4*i,4)}, v1 offset:{BUFA + i*S0STR}")
    g.lab("L_s0ok")
    e("s_waitcnt lgkmcnt(14)")
    g.stamp(); g.stamp("s")

    ready = set()
    def quad_prod(k, rho):
        p, q = QPAIRS[rho]
        return lambda d: f"v_pk_mul_f16 v{d}, v{X(k,p)}, v{X(k,q)} op_sel_hi:[0,1]"
    def gen_prod(l):
        def f(k, rho):
            r, p = divmod(rho, 13)
            def mk(d):
                if r == 13: return f"v_mov_b32 v{d}, v{U(k,p)}" if l == 2 else f"v_mov_b32 v{d}, 0"
                assert ('u', l, k, r) in ready, (l, k, r)
                if r & 1: return f"v_pk_mul_f16 v{d}, v{U(k,r>>1)}, v{X(k,p)} op_sel:[1,0] op_sel_hi:[1,1]"
                return f"v_pk_mul_f16 v{d}, v{U(k,r>>1)}, v{X(k,p)} op_sel_hi:[0,1]"
            return mk
        return f
    def lin_prod(k, t):
        b = 2 * t + 1 if 2 * t + 1 < 13 else 2 * t
        return lambda d: f"v_pack_b32_f16 v{d}, v{X(k,2*t)}, v{X(k,b)}"
    S_CL = S_C1
    e(f"s_mov_b32 s{S_CL}, {115 << 23}"); e(f"s_mov_b32 s{S_MASK}, 145"); e(f"s_lshl_b32 s{S_BO}, s{S_BO}, 16")
    def cvt1(acc, k, t): return f"v_cvt_pk_f16_f32 v{U(k,t)}, v{acc+16*k+2*t}, " + (f"v{acc+16*k+2*t+1}" if t < 6 else "0")
    def scl1(l, k, t): return [(f"v_pk_mul_f16 v{U(k,t)}, v{U(k,t)}, v{SC+k} op_sel_hi:[1,0]", ('u', l + 1, k, 2 * t)), (None, ('u', l + 1, k, 2 * t + 1))]
    def head(acc, l, k):
        a = acc + 16 * k; ef = EV(k) if l == 0 else TM + k
        return [f"v_max3_f32 v{SC+k}, |v{a}|, |v{a+1}|, |v{a+2}|", f"v_max3_f32 v{TM+k}, |v{a+3}|, |v{a+4}|, |v{a+5}|",
                f"v_max3_f32 v{SC+k}, v{SC+k}, |v{a+6}|, |v{a+7}|", f"v_max3_f32 v{TM+k}, v{TM+k}, |v{a+8}|, |v{a+9}|",
                f"v_max3_f32 v{SC+k}, v{SC+k}, |v{a+10}|, |v{a+11}|", f"v_max3_f32 v{SC+k}, v{SC+k}, v{TM+k}, |v{a+12}|",
                f"v_mov_b32 v{TM+k}, v{SC+k}", cvt1(acc, k, 0), cvt1(acc, k, 1),
                f"v_permlane32_swap_b32 v{SC+k}, v{TM+k}", f"v_max3_f32 v{SC+k}, v{SC+k}, v{TM+k}, s{S_CL}",
                f"v_lshrrev_b32 v{ef}, 23, v{SC+k}", f"v_sub_u32 v{SC+k}, s{S_MASK}, v{ef}", f"v_lshlrev_b32 v{SC+k}, 10, v{SC+k}"] + scl1(l, k, 0)
    def rest(acc, l):
        o = []
        for k in range(4): o += scl1(l, k, 1)
        for t in range(2, 7):
            o += [cvt1(acc, k, t) for k in range(4)]
            for k in range(4): o += scl1(l, k, t)
        return o
    def evup(l):
        return [(None, 'x', ('k', l))] + [f"v_add3_u32 v{EV(k)}, v{EV(k)}, v{TM+k}, s{S_K+k}" for k in range(4)] + [(None, ('ev', l))]
    state = dict(base=0, n=0)
    lq = []
    landed = set()
    def emit(x):
        if callable(x): return x() or 0
        if isinstance(x, tuple):
            if len(x) == 3: assert x[2] in ready, x
            ready.add(x[1]); x = x[0]
        if not x: return 0
        e(x)
        if x.startswith('ds_'): lq.append(['side', state['n']])
        return 2 if 'permlane' in x else 1
    GATE = 'GATE'
    import re
    def nbytes(x):
        if callable(x): return 0 if x.__name__ == '<lambda>' else 8
        if isinstance(x, tuple): x = x[0]
        if not x or x == GATE: return 0
        op = x.split()[0]
        lit = any(abs(int(t, 0)) > 64 for t in re.findall(r'(?<![\w\[:])(-?(?:0x[0-9a-f]+|\d+))(?![\w\]:.])', x.split(None, 1)[1]))
        short = op.startswith('s_') or op in ('v_mov_b32', 'v_mul_f32', 'v_add_f32', 'v_add_u32', 'v_sub_u32', 'v_lshrrev_b32', 'v_lshlrev_b32', 'v_and_b32',
                                              'v_permlane32_swap_b32', 'v_readfirstlane_b32', 'v_cmp_lt_u32', 'v_cndmask_b32', 'v_max_f32', 'v_fmac_f32')
        return 4 if short and not lit else 8
    jobs = []; frags = []; pos = {}
    def phase(name, nprod, prod, acc, base, stride=1024, ok=None, needs=None, skew0=False, skew1=False, extra=None):
        ns = (nprod + 3) // 4
        fr = [dict(lds=base + stride * s, ok=ok if s == 0 else None) for s in range(ns)]
        frags.extend(fr)
        order = [(s, k) for s in range(ns) for k in range(4)]
        if skew0: order[:8] = [(s, k) for k in range(4) for s in (0, 1)]
        if skew1: order[-8:] = [(s, k) for k in range(4) for s in (ns - 2, ns - 1)]
        for i, (s, k) in enumerate(order):
            if i % 4 == 0: pos[(name, i // 4)] = len(jobs)
            jobs.append(dict(acc=acc + 16 * k, fr=fr[s], zero=(s == 0), needs=needs if s == 0 else None, last=(name, k) if s == ns - 1 else None,
                             prods=[prod(k, rho) for rho in range(4 * s, min(4 * s + 4, nprod))], req=('u', int(name[1]), k, 0) if name[0] == 'L' and s == 0 else None))
            if extra and i % 4 == 3 and i // 4 in extra: jobs.extend(extra[i // 4])
    LT, LA = UR, UR + 16
    LP = [3, 8, 13, 18]
    LN = {LP[k]: [dict(acc=LT, a=LA + 4 * i, zero=(i == 0), needs=('lin', k - 1), last=('LN', k) if i else None, req=None,
                       prods=[lin_prod(k, t) for t in range(4 * i, min(4 * i + 4, 7))]) for i in range(2)] for k in range(4)}
    sk = PAR.skew
    phase("S0", 91, quad_prod, ACC, BUFA, stride=S0STR, skew1=sk)
    phase("L1", 172, gen_prod(1), ACC2, BUFB, stride=S0STR, ok="RAW", skew0=sk, skew1=sk)
    phase("L2", 176, gen_prod(2), ACC, BUFA, ok="L2OK", needs=('free', 0), skew0=sk, skew1=sk)
    phase("L3", 169, gen_prod(3), ACC2, BUFB, ok="L3OK", needs=('free', 1), skew0=sk)
    phase("Q4", 91, quad_prod, ACC, QB, ok="QOK", needs=('free', 2), skew1=sk, extra=LN)
    for i, f in enumerate(frags): f['id'] = i; f['a'] = AR + 4 * (i % 4)
    for n, j in enumerate(jobs):
        if 'fr' in j: j['fr'].setdefault('first', n); j['fr']['lastj'] = n
    def hdr(addr, sa, sb=None):
        return [f"v_mov_b32 v3, {addr}", "ds_read_b64 v[2:3], v3", GATE, f"v_readfirstlane_b32 s{sa}, v2"] + ([f"v_readfirstlane_b32 s{sb}, v3"] if sb else [])
    def arrive(c, after=None):
        def f():
            if after is not None: assert 'issued' in after
            e(f"v_add_u32 v3, {(CNT[c] - state['base']) & 0xffffffff}, v1"); return 1
        return ["v_mov_b32 v2, 1", f, "ds_add_u32 v3, v2"]
    def check(c):
        def f():
            slow = g.newlab("cs"); back = g.newlab("cb"); top = g.newlab("ct")
            if c != "RAW": g.stamp("w")
            e(f"s_cmp_lt_u32 s{S_T+2}, 4"); e(f"s_cbranch_scc1 {slow}")
            g.lab(back)
            if c != "RAW": g.stamp("w")
            g.tail += [slow + ":", f"    s_mov_b32 s{S_T+1}, {SPIN*8}", top + ":", "    s_sleep 1", "    ds_read_b32 v2, v3", "    s_waitcnt lgkmcnt(0)",
                       f"    v_readfirstlane_b32 s{S_T+2}, v2", f"    s_cmp_ge_u32 s{S_T+2}, 4", f"    s_cbranch_scc1 {back}",
                       f"    s_sub_u32 s{S_T+1}, s{S_T+1}, 1", f"    s_cbranch_scc0 {top}", f"    s_branch {back}"]
            ready.add(c); return 2
        return [f"v_mov_b32 v3, {CNT[c]}", "ds_read_b32 v2, v3", GATE, f"v_readfirstlane_b32 s{S_T+2}, v2", f]
    def stp(n=None): return [lambda: g.stamp(n)]
    HOFF = 29 * 16
    PV, PA = 2, 3
    def pload():
        e(f"buffer_load_dword v{PV}, v{PA}, {sr(S_WS)}, s{S_T+3} offen sc1"); return 1
    kc1 = [f"s_add_u32 s{S_T}, s{HW(0)}, s{HW(1)}", f"s_add_u32 s{S_T}, s{S_T}, s{HD(2)}", f"s_sub_u32 s{S_T}, s{S_T}, 780"]
    kc1 += [f"s_lshl2_add_u32 s{S_K+k}, s{S_EX+k}, s{S_T}" for k in range(4)] + [(None, ('k', 1))]
    k1 = [f"s_sub_u32 s{S_T}, s{HD(1)}, s{HD(2)}", f"s_add_u32 s{S_T}, s{S_T}, 130"] + [f"s_sub_u32 s{S_K1+k}, s{S_T}, s{S_EX+k}" for k in range(4)] + [(None, 'k1')]
    kc2 = [(None, 'x', ('ev', 1)), f"s_sub_u32 s{S_T}, s{HW(2)}, s{HD(2)}", f"s_add_u32 s{S_T}, s{S_T}, s{HD(3)}", f"s_sub_u32 s{S_T}, s{S_T}, 260"]
    kc2 += [f"s_add_u32 s{S_K+k}, s{S_T}, s{S_EX+k}" for k in range(4)] + [(None, ('k', 2))]
    dots = [(None, 'x', 'k1')]
    for k in range(4): dots.append(f"v_ldexp_f32 v{ACC+16*k+15}, v{ACC+16*k+15}, v{EV(k)}")
    for k in range(4): dots.append(f"v_add_u32 v{ACC+16*k+13}, s{S_K1+k}, v{EV(k)}")
    for k in range(4): dots.append(f"v_ldexp_f32 v{ACC+16*k+14}, v{ACC+16*k+14}, v{ACC+16*k+13}")
    for k in range(4): dots.append(f"v_add_f32 v{LG+k}, v{ACC+16*k+14}, v{ACC+16*k+15}")
    kf = [(None, 'x', ('ev', 2)), f"s_sub_u32 s{S_T}, s{HW(3)}, s{HD(3)}", f"s_sub_u32 s{S_T}, s{S_T}, 130", f"s_add_u32 s{HL}, s{HL}, s{S_T}", f"s_add_u32 s{HQ}, s{HQ}, s{S_T}",
          f"s_sub_u32 s{HQ}, s{HQ}, 130", f"s_sub_u32 s{HD(0)}, s{HD(0)}, 260"]
    for k in range(4):
        kf += [f"s_add_u32 s{S_K1+k}, s{HL}, s{S_EX+k}", f"s_lshl1_add_u32 s{S_K+k}, s{S_EX+k}, s{HQ}", f"s_lshl1_add_u32 s{S_KC+k}, s{S_EX+k}, s{HD(0)}"]
    kf.append((None, 'kf'))
    pre = ["v_bfe_u32 v2, v0, 4, 1", "v_lshrrev_b32 v3, 5, v0", "v_lshl_add_u32 v2, v2, 1, v3", "v_and_b32 v3, 15, v0", f"v_cmp_lt_u32 vcc, {NR-1}, v3",
           "v_lshlrev_b32 v3, 10, v3", "v_lshl_add_u32 v3, v2, 2, v3", f"v_mov_b32 v2, {OOB}", "v_cndmask_b32 v3, v3, v2, vcc",
           f"s_mul_i32 s{S_T+3}, s{S_G}, {NR*1024}", f"s_and_b32 s{S_T}, s{S_SB}, 255", f"s_lshl_b32 s{S_T}, s{S_T}, 2",
           f"s_add_u32 s{S_T+3}, s{S_T+3}, s{S_T}", f"s_add_u32 s{S_T+3}, s{S_T+3}, {WS_PART}"]
    def lread():
        for i in range(2): emit(f"ds_read_b128 {vr(LA+4*i,4)}, v1 offset:{QB + (24 + i)*1024 - state['base']}")
        return 2
    BO = ACC2 + 14
    d3 = [f"v_ldexp_f32 v{ACC2+16*k+15}, v{ACC2+16*k+15}, v{EV(k)}" for k in range(4)] + [f"v_add_f32 v{LG+k}, v{LG+k}, v{ACC2+16*k+15}" for k in range(4)]
    if PAR.otouch: d3 += [f"s_lshl_b32 s{S_J}, s{S_SB}, 1", f"buffer_load_ushort v{BO+16}, v{BO-1}, {sr(S_OUT)}, s{S_J} offen"]
    fill = {("L1", 2): rest(ACC, 0) + [(None, ('free', 0))], ("L2", 2): rest(ACC2, 1) + [(None, ('free', 1))], ("L2", 16): evup(1),
            ("L3", 2): rest(ACC, 2) + dots + [(None, ('free', 2))] + evup(2), ("Q4", 1): d3}
    for k in range(4):
        o = [f"v_mul_f32 v{SC+k}, v{LT}, v{ACC2+16*k}"] + [f"v_fmac_f32 v{SC+k}, v{LT+r}, v{ACC2+16*k+r}" for r in range(1, 13)] + [(None, ('lin', k)), (None, 'x', 'kf')]
        o += [f"v_add_u32 v{TM+k}, s{S_K1+k}, v{EV(k)}", f"v_ldexp_f32 v{SC+k}, v{SC+k}, v{TM+k}", f"v_add_u32 v{TM+k}, s{S_K+k}, v{EV(k)}", f"v_add_f32 v{LG+k}, v{LG+k}, v{SC+k}", (None, ('lind', k))]
        fill[("Q4", LP[k] + 2)] = o
    def final(k):
        return ([(None, 'x', ('lind', k)), f"v_mul_f32 v{SC+k}, v{ACC+16*k}, v{ACC2+16*k}", f"v_ldexp_f32 v{ACC+16*k+15}, v{ACC+16*k+15}, s{S_KC+k}"]
                + [f"v_fmac_f32 v{SC+k}, v{ACC+16*k+r}, v{ACC2+16*k+r}" for r in range(1, 13)]
                + [f"v_add_f32 v{LG+k}, v{LG+k}, v{ACC+16*k+15}", f"v_ldexp_f32 v{SC+k}, v{SC+k}, v{TM+k}", f"v_add_f32 v{LG+k}, v{LG+k}, v{SC+k}"])
    urgent = {}
    for k in range(4):
        urgent[("S0", k)] = head(ACC, 0, k); urgent[("L1", k)] = head(ACC2, 1, k); urgent[("L2", k)] = head(ACC, 2, k); urgent[("Q4", k)] = final(k)
    side = {("S0", 0): arrive("RB"), ("S0", 2): hdr(BUFA + 23 * S0STR + 512, HW(0)), ("S0", 14): check("RAW"), ("S0", 21): arrive("AFREE", frags[22]),
            ("S0", 8): ["s_setprio 2"], PAR.drop: ["s_setprio 0"],
            ("L1", 0): stp(), ("L1", 35): check("L2OK"), ("L1", 41): arrive("BFREE", frags[65]),
            ("L2", 0): stp(), ("L2", 4): hdr(BUFA + HOFF, HW(2), HD(2)) + kc1 + hdr(BUFA + HOFF + 8, HD(1)) + k1, ("L2", 36): check("L3OK"),
            ("L3", 12): hdr(BUFB + HOFF, HW(3), HD(3)) + kc2,
            ("L3", 43 - PAR.qchk): check("QOK") + hdr(QB + 23 * 1024, HQ, HL) + hdr(QB + 23 * 1024 + 8, HD(0)),
            ("Q4", 0): [lread, GATE, (None, ('lin', -1))] + kf, ("Q4", 9): pre[:7], ("Q4", 14): pre[7:], ("Q4", PAR.pload): [pload]}
    rates = {("S0", 0): PAR.rate, ("L1", 0): PAR.l1rate, ("L2", 0): 32, ("L3", 0): PAR.l3rate, ("Q4", 0): PAR.qrate}
    fill = {pos[k]: v for k, v in fill.items()}; side = {pos[k]: v for k, v in side.items()}; rates = {pos[k]: v for k, v in rates.items()}
    frags[0]['issued'] = frags[1]['issued'] = True
    nfr = 2; fq = []; sq = []; uq = []; credit = 0; gated = False
    def prods(n):
        job = jobs[n]; job['b'] = BR + 4 * (n % 3)
        while job['req'] and job['req'] not in ready: emit(uq.pop(0)[1])
        return [p(job['b'] + i) for i, p in enumerate(job['prods'])]
    for n in range(2):
        for x in prods(n): e(x)
    e("s_waitcnt lgkmcnt(0)"); landed |= {0, 1}
    for n, job in enumerate(jobs):
        state['n'] = n
        fq += fill.get(n, []); sq += side.get(n, []); rate = rates.get(n, rate if n else None)
        budget = 6
        if 'fr' in job and job['fr']['id'] not in landed:
            idx = max(i for i, (t, at) in enumerate(lq) if t == job['fr']['id'] or at <= n - 3)
            e(f"s_waitcnt lgkmcnt({len(lq) - 1 - idx})")
            landed |= {t for t, at in lq[:idx + 1]}; del lq[:idx + 1]
        if job['needs']: assert job['needs'] in ready, job['needs']
        c = "0" if job['zero'] else vr(job['acc'], 16)
        e(f"v_mfma_f32_32x32x16_f16 {vr(job['acc'],16)}, {vr(job['a'] if 'a' in job else job['fr']['a'],4)}, {vr(job['b'],4)}, {c}")
        if job['last'] in urgent: uq += [(n + 2, x) for x in urgent[job['last']]]
        if nfr < len(frags) and frags[nfr]['first'] - n <= PAR.la and (nfr < 4 or frags[nfr - 4]['lastj'] < n):
            f = frags[nfr]; nfr += 1; f['issued'] = True
            if f['ok']: assert f['ok'] in ready, f['ok']
            r = f['lds'] - state['base']
            if r < 0 or r > 65535:
                e(f"v_add_u32 v1, {r & 0xffffffff}, v1"); state['base'] = f['lds']; r = 0; budget -= 1
            e(f"ds_read_b128 {vr(f['a'],4)}, v1 offset:{r}"); lq.append([f['id'], n]); budget -= 1
        u = PAR.urate
        while uq and uq[0][0] <= n and u > 0: c = emit(uq.pop(0)[1]); u -= c; budget -= c
        if n + 2 < len(jobs):
            ps = prods(n + 2)
            for x in ps: e(x)
            budget -= len(ps)
            credit += sum(8 - nbytes(p) for p in ps) + 8 * (4 - len(ps))
        credit = min(credit + rate / 4, 16)
        while sq:
            if sq[0] == GATE:
                if any(t == 'side' for t, at in lq): break
                sq.pop(0); continue
            if not ((budget > 0 and credit >= nbytes(sq[0])) or nbytes(sq[0]) == 0): break
            x = sq.pop(0); budget -= emit(x); credit -= nbytes(x)
        while fq and ((budget > 0 and credit >= nbytes(fq[0])) or nbytes(fq[0]) == 0):
            x = fq.pop(0); budget -= emit(x); credit -= nbytes(x)
    assert not sq and not fq, (sq, fq)
    g.stamp()
    for at, x in uq: emit(x)
    e(f"v_permlane32_swap_b32 v{LG}, v{LG+1}"); e(f"v_permlane32_swap_b32 v{LG+2}, v{LG+3}")
    e(f"v_add_f32 v{LG}, v{LG}, v{LG+1}"); e(f"v_add_f32 v{LG+2}, v{LG+2}, v{LG+3}")
    e(f"v_permlane16_swap_b32 v{LG}, v{LG+2}")
    e(f"v_add_f32 v{LG}, v{LG}, v{LG+2}")
    e(f"s_mov_b32 s{S_T}, {SPIN}")
    g.lab("L_pcheck")
    e("s_waitcnt vmcnt(0)")
    e(f"v_cmp_eq_u32 vcc, -1, v{PV}")
    e("s_nop 1")
    e("s_cbranch_vccz L_pok")
    e("s_sleep 4")
    pload()
    e(f"s_sub_u32 s{S_T}, s{S_T}, 1")
    e("s_cbranch_scc0 L_pcheck")
    e("s_waitcnt vmcnt(0)")
    g.lab("L_pok")
    e(f"v_add_f32 v{LG}, v{LG}, v{PV}")
    for sh in (8, 4, 2, 1):
        e(f"v_add_f32_dpp v{LG}, v{LG}, v{LG} row_ror:{sh} {DPPALL}")
    e(f"v_add_f32 v{LG}, s{S_BO}, v{LG}")
    e(f"v_cvt_pk_bf16_f32 v{LG}, v{LG}, v{LG}")
    e(f"v_lshrrev_b32 v{PA}, 1, v{PA}")
    e(f"v_cmp_lt_u32 vcc, 7, v{PA}")
    e(f"v_mov_b32 v2, {OOB}")
    e(f"v_cndmask_b32 v{PA}, v{PA}, v2, vcc")
    e(f"s_lshl_b32 s{S_T}, s{S_SB}, 1")
    e(f"buffer_store_short v{LG}, v{PA}, {sr(S_OUT)}, s{S_T} offen")
    g.stamp(); g.stamp("e")
    if PAR.enc is not None:
        e("s_waitcnt lgkmcnt(0)")
        if PAR.gmin:
            e(f"s_not_b32 s{S_T}, s{S_ST}"); e(f"v_mov_b32 v4, s{S_T}"); e("v_mov_b32 v5, 0"); e("s_mov_b64 exec, 1")
            e(f"buffer_atomic_umax v4, v5, {sr(S_DBG)}, 0 offen offset:192 sc1"); e("s_waitcnt vmcnt(0)")
            g.lab("L_enc0")
            e(f"s_memrealtime s[{S_T+2}:{S_T+3}]"); e("s_waitcnt lgkmcnt(0)")
            e(f"s_sub_u32 s{S_T+2}, s{S_T+2}, s{S_ST}"); e(f"s_cmp_lt_u32 s{S_T+2}, 5000"); e("s_cbranch_scc1 L_enc0")
            e(f"buffer_load_dword v4, v5, {sr(S_DBG)}, 0 offen offset:192 sc1"); e("s_waitcnt vmcnt(0)"); e("s_mov_b64 exec, -1")
            if PAR.encsel: e(f"s_mov_b32 s{S_ST+2*PAR.enc}, s{S_ST}")
            e(f"v_readfirstlane_b32 s{S_ST}, v4"); e(f"s_not_b32 s{S_ST}, s{S_ST}")
        e(f"s_sub_u32 s{S_T}, s{S_ST+2*PAR.enc}, s{S_ST}"); e(f"s_lshl_b32 s{S_T}, s{S_T}, {PAR.encsh}");
        if PAR.encsel:
            e(f"s_lshl_b32 s{S_T}, s{S_T}, 2"); e(f"s_and_b32 s{S_T+1}, s2, {PAR.encsel[0]}"); e(f"s_cmp_eq_u32 s{S_T+1}, {PAR.encsel[1]}")
        else: e(f"s_cmp_lt_u32 s{S_R}, {NR}")
        e(f"s_cselect_b32 s{S_T}, s{S_T}, 0"); e(f"s_add_u32 s{S_T}, s{S_T}, 6000")
        g.lab("L_enc")
        e(f"s_memrealtime s[{S_T+2}:{S_T+3}]"); e("s_waitcnt lgkmcnt(0)")
        e(f"s_sub_u32 s{S_T+2}, s{S_T+2}, s{S_ST}"); e(f"s_cmp_lt_u32 s{S_T+2}, s{S_T}"); e("s_cbranch_scc1 L_enc")
    g.flush_stamps(4, 5)
    e("s_endpgm")

HACC, HX, HW_ = 4, 68, 208
V_TR0, V_TR1, V_DMA, V_WSRC, V_H16, V_L0, V_HROW, V_CNT = 248, 249, 250, 251, 252, 253, 254, 255
ID, QA, QSH, QS, W0R, PK = 4, 12, 19, 20, 180, 236
L1R, BT = 180, 60
S_WP, S_L, S_FR, S_E0, S_E1, S_E2, S_PO, S_CX = 48, 49, 50, 51, 52, 53, 54, 55
S_LC = 56
S_E3, S_XB = 60, 61
def dma_img(g, name, nfr, lds, first=0, part=None):
    e = g.e; per = nfr // 4
    va = V_DMA
    if name == "Q4":
        va = 1
        e("v_and_b32 v1, 31, v0"); e("v_subrev_u32 v1, 29, v1"); e("v_cmp_gt_u32 vcc, 2, v1"); e(f"v_mov_b32 v1, {OOB}"); e(f"v_cndmask_b32 v1, v{V_DMA}, v1, vcc")
    e(f"s_mul_i32 s{S_T}, s{S_J}, {per*1024}")
    i0, i1 = part or (0, per)
    for i in range(i0, min(i1, per)):
        if (i - i0) % 4 == 0:
            e(f"s_add_u32 s{S_T+1}, s{S_T}, {IMG[name] + (first + i)*1024}")
            e(f"s_add_u32 m0, s{S_T}, {lds + i*1024}")
        g.vm(f"buffer_load_dwordx4 v{va}, {sr(S_WS)}, s{S_T+1} offen offset:{((i - i0)%4)*1024} {PAR.ld} lds", name)
def poll(g, checks, pre=None):
    e = g.e
    done = g.newlab("pd"); top = g.newlab("pt"); slp = g.newlab("ps"); tst = g.newlab("pc")
    regs = pre or [2 + i for i in range(len(checks))]
    e(f"s_mov_b32 s{S_T}, {SPIN}")
    if pre: e(f"s_branch {tst}")
    g.lab(top)
    for r, (srd, so, o, n) in zip(regs, checks):
        e(f"buffer_load_dword v{r}, v{V_L0}, {sr(srd)}, {so} offen offset:{o} sc1")
    e("s_waitcnt vmcnt(0)")
    g.lab(tst)
    for r, (srd, so, o, n) in zip(regs, checks):
        e(f"v_readfirstlane_b32 s{S_T+1}, v{r}")
        e(f"s_cmp_lt_u32 s{S_T+1}, {n}")
        e(f"s_cbranch_scc1 {slp}")
    g.lab(done)
    g.tail += [slp + ":", f"    s_sleep {PAR.slp}", f"    s_sub_u32 s{S_T}, s{S_T}, 1", f"    s_cbranch_scc0 {top}", f"    s_branch {done}"]
def poll1(g, checks, flag, pre=None):
    lb = g.newlab("p1")
    g.e(f"s_cmp_lg_u32 s{S_J}, 0"); g.e(f"s_cbranch_scc1 {lb}")
    poll(g, checks, pre)
    arrive(g, flag)
    g.lab(lb)
    lwait(g, flag, 1)
def presample(g, checks, regs, tag):
    for r, (srd, so, o, n) in zip(regs, checks):
        g.vm(f"buffer_load_dword v{r}, v{V_L0}, {sr(srd)}, {so} offen offset:{o} sc1", tag)
def arrive(g, *cs):
    e = g.e
    e("v_mov_b32 v1, 1"); e("s_mov_b64 exec, 1")
    for c in cs: e(f"ds_add_u32 v{V_CNT}, v1 offset:{CNT[c]-M_CNT}")
    e("s_mov_b64 exec, -1")
def unpack_mat(g, PA, t):
    e = g.e
    e(f"v_and_b32 v{t}, 1, v0"); e(f"v_lshlrev_b32 v{t}, 4, v{t}"); e(f"v_mov_b32 v{t+1}, 0x3f80"); e(f"v_lshlrev_b32 v{t+1}, v{t}, v{t+1}")
    e(f"v_lshrrev_b32 v{t+2}, 3, v0"); e(f"v_xor_b32 v{t+2}, v{t+2}, v0"); e(f"v_and_b32 v{t+2}, 4, v{t+2}")
    e(f"v_bfe_u32 v{t}, v0, 3, 2"); e(f"v_bfe_u32 v{t+3}, v0, 1, 1"); e(f"v_lshl_add_u32 v{t}, v{t}, 1, v{t+3}"); e(f"v_lshl_add_u32 v{t}, v{t+2}, 3, v{t}")
    for i in range(8):
        e(f"v_cmp_eq_u32 vcc, {i}, v{t}"); e(f"v_cndmask_b32 v{PA+i}, 0, v{t+1}, vcc")
def unpack(g, DR, pa, src, i):
    d = DR + 16 * ((i >> 1) & 3)
    g.e(f"v_mfma_f32_32x32x16_bf16 {vr(d,16)}, {vr(pa+4*(i&1),4)}, {vr(src+4*i,4)}, {vr(d,16) if i & 1 else '0'}")
def tmax(g, DR, tile, n, first, mv=1):
    d = DR + 16 * (tile & 3)
    for q in range(n // 2):
        if first and q == 0: g.e(f"v_max_f32 v{mv}, |v{d}|, |v{d+1}|")
        else: g.e(f"v_max3_f32 v{mv}, v{mv}, |v{d+2*q}|, |v{d+2*q+1}|")
def lwait(g, c, n=4, va=None, vd=1):
    e = g.e; top = g.newlab("lw"); done = g.newlab("ld")
    e(f"s_mov_b32 s{S_T}, {SPIN*8}")
    g.lab(top)
    e(f"ds_read_b32 v{vd}, v{va or V_CNT} offset:{CNT[c]-M_CNT}"); e("s_waitcnt lgkmcnt(0)")
    e(f"v_readfirstlane_b32 s{S_T+1}, v{vd}"); e(f"s_cmp_ge_u32 s{S_T+1}, {n}"); e(f"s_cbranch_scc1 {done}")
    e(f"s_sleep {PAR.lslp if c in ('FX', 'F2', 'F3', 'FQ', 'AFREE', 'BFREE', 'XST') else 1}"); e(f"s_sub_u32 s{S_T}, s{S_T}, 1"); e(f"s_cbranch_scc0 {top}")
    g.lab(done)
def rowmax(g, v, op="v_max_u32_dpp"):
    for sh in (8, 4, 2, 1): g.e(f"{op} v{v}, v{v}, v{v} row_ror:{sh} {DPPALL}")
def wavemax_exp(g, v, sdst):
    e = g.e
    rowmax(g, v)
    e(f"v_readlane_b32 s{sdst}, v{v}, 0"); e(f"v_readlane_b32 s{S_T}, v{v}, 16"); e(f"s_max_u32 s{sdst}, s{sdst}, s{S_T}")
    e(f"v_readlane_b32 s{S_T}, v{v}, 32"); e(f"s_max_u32 s{sdst}, s{sdst}, s{S_T}")
    e(f"v_readlane_b32 s{S_T}, v{v}, 48"); e(f"s_max_u32 s{sdst}, s{sdst}, s{S_T}")
    e(f"s_lshr_b32 s{sdst}, s{sdst}, 23"); e(f"s_sub_u32 s{sdst}, s{sdst}, 126")
def put_max(g, slot):
    e = g.e
    rowmax(g, 1)
    e("v_lshrrev_b32 v2, 4, v0"); e(f"s_lshl_b32 s{S_T}, s{S_J}, 4"); e(f"s_add_u32 s{S_T}, s{S_T}, {slot}")
    e(f"v_lshl_add_u32 v2, v2, 2, s{S_T}")
    e("ds_write_b32 v2, v1")
def get_max(g, slot):
    e = g.e
    e("v_and_b32 v2, 15, v0"); e("v_lshlrev_b32 v2, 2, v2"); e(f"v_add_u32 v2, {slot}, v2")
    e("ds_read_b32 v1, v2"); e("s_waitcnt lgkmcnt(0)")
    rowmax(g, 1)
def pkmax(g, regs):
    e = g.e
    e(f"v_pk_max_u16 v1, v{regs[0]}, v{regs[1]}"); e(f"v_pk_max_u16 v3, v{regs[2]}, v{regs[3]}")
    for i, r in enumerate(regs[4:]): e(f"v_pk_max_u16 v{1 + 2*(i&1)}, v{1 + 2*(i&1)}, v{r}")
    e("v_pk_max_u16 v1, v1, v3"); e("v_alignbit_b32 v3, v1, v1, 16"); e("v_pk_max_u16 v1, v1, v3")
def pack_round(g, acc, off, pk=True):
    e = g.e
    if PAR.pkpack and pk:
        for t in range(7):
            q = QS + t; sel = q & 1
            e(f"v_pk_mul_f32 {vr(acc+2*t,2)}, {vr(acc+2*t,2)}, {vr(q - sel,2)} op_sel:[0,{sel}] op_sel_hi:[1,{sel}]")
    else:
        for t in range(14): e(f"v_mul_f32 v{acc+t}, v{acc+t}, v{QS+(t>>1)}")
    for t in range(7): e(f"v_cvt_pk_f16_f32 v{PK+t}, v{acc+2*t}, v{acc+2*t+1}")
    for t in range(7): e(f"v_alignbit_b32 v{PK+t}, v{PK+t}, v{PK+t}, v{QSH}")
    for t in range(7): e(f"ds_write_b32 v{QA+t}, v{PK+t} offset:{off}")
def s0_max(g, t):
    a = HX + 16 * t
    for i in range(7):
        if t == 0 and i == 0: g.e(f"v_max_f32 v1, |v{a}|, |v{a+1}|")
        else: g.e(f"v_max3_f32 v1, v1, |v{a+2*i}|, |v{a+2*i+1}|")
F0 = lambda c: sum(PAR.chunks[:c])
S_ROT = 64
S_SCN, S_XC = 68, 69
S_RA = 66
def call_if(g, cond, target):
    lb = g.newlab('nc')
    for c in cond: g.e(c[0]); g.e(f'{c[1]} {lb}')
    g.e(f's_call_b64 s[{S_RA}:{S_RA+1}], {target}')
    g.lab(lb)
RET = f's_setpc_b64 s[{S_RA}:{S_RA+1}]'
def EARLY(): return [(f's_cmp_lt_u32 s{S_WP}, {PAR.gearly}', 's_cbranch_scc0')]
def LATE(): return [(f's_cmp_lt_u32 s{S_WP}, {PAR.gearly}', 's_cbranch_scc1'), (f's_cmp_ge_u32 s{S_WP}, 31', 's_cbranch_scc1')]
def rotf(g, f, sd):
    g.e(f"s_add_u32 s{sd}, s{S_ROT}, {f}"); g.e(f"s_sub_u32 s{S_ROT+1}, s{sd}, 26"); g.e(f"s_min_u32 s{sd}, s{sd}, s{S_ROT+1}")
def colvec(g, srd, dst, tag):
    g.e("v_lshrrev_b32 v1, 4, v0"); g.e("v_lshlrev_b32 v1, 3, v1")
    for a in range(4):
        g.e(f"s_xor_b32 s{S_T}, s{S_XC}, {32*a}"); g.e(f"s_add_u32 s{S_T}, s{S_T}, s{S_SB}")
        g.vm(f"buffer_load_dwordx2 {vr(dst+2*a,2)}, v1, {sr(srd)}, s{S_T} offen", tag)
def dma_w(g, f0, f1, tag):
    e = g.e
    e(f"s_lshl_b32 s{S_T}, s{S_J}, 10")
    for f in range(f0, f1):
        e(f"s_add_u32 m0, s{S_T}, {D0 + (f % 16)*4096}")
        rotf(g, f, S_T + 1); e(f"s_mul_i32 s{S_T+1}, s{S_T+1}, 53248")
        g.vm(f"buffer_load_dwordx4 v{V_WSRC}, {sr(S_W1)}, s{S_T+1} offen {PAR.wmod} lds", tag)
CHK_X = lambda: (S_WS, f"s{S_CX}", C_XR, 1)
def helper_common(g):
    e = g.e
    e("s_setprio 2")
    e(f"s_sub_u32 s{S_J}, s{S_WAVE}, 4")
    e("v_and_b32 v2, 31, v0"); e("v_lshrrev_b32 v3, 5, v0")
    e(f"v_lshlrev_b32 v{V_H16}, 4, v3")
    e("v_lshrrev_b32 v4, 3, v2"); e("v_and_b32 v6, 3, v2"); e("v_lshl_add_u32 v4, v4, 2, v6")
    e("v_bfe_u32 v6, v2, 2, 1"); e(f"v_mad_u32_u24 v{V_HROW}, v6, 13, v4")
    e("v_cmp_lt_u32 vcc, 12, v4"); e("v_mov_b32 v7, 0x100000"); e(f"v_cndmask_b32 v{V_HROW}, v{V_HROW}, v7, vcc")
    e("v_mul_u32_u24 v4, 676, v3"); e(f"s_movk_i32 s{S_T+1}, 1352"); e(f"v_mad_u32_u24 v243, v{V_HROW}, s{S_T+1}, v4")
    def qaset():
        e("v_lshrrev_b32 v27, 1, v2"); e("v_and_b32 v28, 1, v2"); e(f"v_lshlrev_b32 v{QSH}, 4, v28")
        e("v_sub_u32 v29, 25, v27"); e("v_mul_u32_u24 v29, v29, v27"); e("v_lshrrev_b32 v29, 1, v29")
        e(f"s_lshl_b32 s{S_T}, s{S_J}, 4")
        e(f"v_lshl_add_u32 v28, v28, 9, s{S_T}")
        e(f"v_lshl_add_u32 v30, v0, 2, s{S_T}"); e(f"v_add_u32 v30, {BUFA + 24*S0STR}, v30")
        e("v_mov_b32 v33, 0.5")
        for t in range(7):
            qb = 4 * (t >> 1) + (t & 1)
            e(f"v_lshl_add_u32 v31, v3, 1, {qb}")
            e("v_add_u32 v32, v29, v31")
            e(f"v_lshrrev_b32 v{QA+t}, 2, v32"); e(f"v_mul_u32_u24 v{QA+t}, {S0STR}, v{QA+t}")
            e("v_and_b32 v32, 3, v32"); e("v_lshl_add_u32 v32, v32, 2, v28"); e(f"v_add_u32 v{QA+t}, v{QA+t}, v32")
            e("v_cmp_lt_u32 vcc, v31, v27")
            if t == 6:
                e("v_cmp_lt_u32 s[72:73], 12, v31"); e("s_or_b64 vcc, vcc, s[72:73]")
            e(f"v_cndmask_b32 v{QA+t}, v{QA+t}, v30, vcc")
            e("v_cmp_eq_u32 vcc, v31, v27"); e(f"v_cndmask_b32 v{QS+t}, 1.0, v33, vcc")
        e("v_lshlrev_b32 v31, 3, v3"); e("v_sub_u32 v31, v2, v31")
        e("v_mov_b32 v32, 0x3f80"); e(f"v_lshlrev_b32 v32, v{QSH}, v32")
        e("v_lshrrev_b32 v31, 1, v31")
        for s in range(2):
            for i in range(4):
                e(f"v_cmp_eq_u32 vcc, {8*s+i}, v31"); e(f"v_cndmask_b32 v{ID+4*s+i}, 0, v32, vcc")
    if PAR.qaearly: qaset()
    HS = [S_WC, S_WS, S_WO, S_W1, S_B1, S_W2, S_DBG]
    srd_const(g, HS)
    e("s_waitcnt lgkmcnt(0)")
    srd_base(g, HS)
    e(f"s_mov_b64 s[{S_LC}:{S_LC+1}], s[{S_WC}:{S_WC+1}]"); e(f"s_mov_b32 s{S_LC+3}, 0x00020000"); e(f"s_mov_b32 s{S_LC+2}, {2*LB}")
    e(f"s_cmp_lt_u32 s{S_R}, {NR}"); e(f"s_cselect_b32 s{S_WP}, 63, s{S_G}"); e(f"s_mov_b32 s{S_SCN}, 0")
    e(f"s_mul_i32 s{S_CX}, s{S_G}, {PAR.cstr}"); e(f"s_add_u32 s{S_CX}, s{S_CX}, {WS_CNT}")
    if PAR.wpf:
        e(f"s_cmp_lg_u32 s{S_J}, 0"); e("s_cbranch_scc1 L_nowpf")
        e(f"s_mov_b32 s{S_WC+2}, {6*LB}"); e(f"s_lshr_b32 s{S_T}, s2, 3"); e(f"s_lshl_b32 s{S_T}, s{S_T}, 7")
        e("v_lshlrev_b32 v1, 12, v0")
        if PAR.wpf == 1: e(f"buffer_load_dword v247, v1, {sr(S_WC)}, s{S_T} offen")
        e(f"s_mov_b32 s{S_WC+2}, {LB}")
        e(f"s_cmp_lt_u32 s{S_R}, {NR}"); e("s_cbranch_scc1 L_nowpf")
        for i in range(4): e(f"v_mov_b32 v{36+i}, 0")
        e("v_lshlrev_b32 v35, 8, v0"); e("v_cmp_lt_u32 vcc, 2, v0"); e(f"v_mov_b32 v34, {OOB}"); e("v_cndmask_b32 v35, v35, v34, vcc")
        e(f"buffer_store_dwordx4 v[36:39], v35, {sr(S_WS)}, s{S_CX} offen sc1")
        g.lab("L_nowpf")
    g.stamp("g")
    call_if(g, EARLY(), "L_pe1")
    g.stamp("g")
    e("v_and_b32 v2, 31, v0"); e("v_lshrrev_b32 v3, 5, v0")
    e(f"v_mad_u32_u24 v1, v2, 52, v{V_H16}")
    if PAR.w0lin: e("v_lshlrev_b32 v1, 4, v0")
    e(f"s_mul_i32 s{S_T}, s{S_J}, 1352")
    for t in range(7):
        if t < 6: e(f"s_add_u32 s{S_T+1}, s{S_T}, {(13*(t&1) + 4*(t>>1))*1352}")
        else:
            e(f"s_mul_i32 s{S_T+1}, s{S_J}, {13*1352}"); e(f"s_add_u32 s{S_T+1}, s{S_T+1}, {12*1352}")
        for s in range(2):
            g.vm(f"buffer_load_dwordx4 {vr(W0R+8*t+4*s,4)}, v1, {sr(S_WC)}, s{S_T+1} offen offset:{(320 if PAR.w0lin else 32)*s}", f"w0_{t}")
    e("s_branch L_helper2")
    g.hfirst = g.L[g.h0:]; del g.L[g.h0:]
    g.lab("L_helper2")
    if not PAR.barpos: e("s_barrier")
    e(f"v_mov_b32 v61, {OOB}"); e(f"v_add_u32 v60, s{S_J}, v0"); e("v_cmp_eq_u32 vcc, 0, v60"); e(f"v_cndmask_b32 v{V_L0}, v61, 0, vcc")
    e(f"s_lshr_b32 s{S_SB}, s{S_R}, 1"); e(f"s_mul_i32 s{S_SB}, s{S_SB}, 224"); e(f"s_and_b32 s{S_XC}, s{S_R}, 1"); e(f"s_mul_i32 s{S_XC}, s{S_XC}, 96"); e(f"s_add_u32 s{S_SB}, s{S_SB}, s{S_XC}")
    if not PAR.qaearly: qaset()
    e(f"s_mul_i32 s{S_PO}, s{S_G}, {NR}"); e(f"s_add_u32 s{S_PO}, s{S_PO}, s{S_R}"); e(f"s_lshl_b32 s{S_PO}, s{S_PO}, 2"); e(f"s_add_u32 s{S_PO}, s{S_PO}, s{S_J}")
    e(f"s_lshl_b32 s{S_PO}, s{S_PO}, 8"); e(f"s_add_u32 s{S_PO}, s{S_PO}, {WS_PART}")
    e("v_and_b32 v60, 15, v0"); e(f"v_mul_u32_u24 v245, {XSTR}, v60"); e("v_and_b32 v60, 48, v0")
    e(f"s_lshl_b32 s{S_T}, s{S_J}, 6"); e(f"s_add_u32 s{S_T}, s{S_T}, {D0}"); e(f"v_add3_u32 v245, v245, v60, s{S_T}")
    e("v_lshlrev_b32 v246, 4, v0")
    e(f"s_lshl_b32 s{S_XB}, s{S_G}, 2"); e(f"s_lshr_b32 s{S_T}, s{S_R}, 2"); e(f"s_add_u32 s{S_XB}, s{S_XB}, s{S_T}"); e(f"s_mul_i32 s{S_XB}, s{S_XB}, 106496")
    e(f"s_and_b32 s{S_T}, s{S_R}, 3"); e(f"s_lshl_b32 s{S_T}, s{S_T}, 10"); e(f"s_add_u32 s{S_XB}, s{S_XB}, s{S_T}")
    e(f"s_lshl_b32 s{S_T}, s{S_J}, 12"); e(f"s_add_u32 s{S_XB}, s{S_XB}, s{S_T}"); e(f"s_add_u32 s{S_XB}, s{S_XB}, {WS_X}")
    g.stamp("g")
    e(f"s_cmp_lt_u32 s{S_R}, {NR}"); e("s_cbranch_scc1 L_nordy")
    e("s_waitcnt vmcnt(0)")
    e("v_mov_b32 v35, 1"); e(f"s_lshl_b32 s{S_E3}, s{S_G}, 2")
    e(f"buffer_store_dword v35, v{V_L0}, {sr(S_DBG)}, s{S_E3} offen offset:{C_RDY} sc1")
    g.lab("L_nordy")
    call_if(g, EARLY(), "L_pe2")
    g.stamp("g")
    for t in range(7):
        if t == 6: e(f"s_cmp_ge_u32 s{S_R}, {NR}"); e("s_cbranch_scc1 L_w0d")
        g.vmwait(f"w0_{t}")
        if t == 6: g.lab("L_w0d")
        a = HX + 16 * t; w = W0R + 8 * t
        e(f"v_mfma_f32_32x32x16_bf16 {vr(a,16)}, {vr(w,4)}, {vr(ID,4)}, 0")
        e(f"v_mfma_f32_32x32x16_bf16 {vr(a,16)}, {vr(w+4,4)}, {vr(ID+4,4)}, {vr(a,16)}")
        e(f"v_mfma_f32_32x32x16_bf16 {vr(a,16)}, {vr(ID,4)}, {vr(w,4)}, {vr(a,16)}")
        e(f"v_mfma_f32_32x32x16_bf16 {vr(a,16)}, {vr(ID+4,4)}, {vr(w+4,4)}, {vr(a,16)}")
        if t > 0: s0_max(g, t - 1)
    s0_max(g, 6)
    put_max(g, M_S0)
    e(f"v_mov_b32 v{V_CNT}, {M_CNT}")
    arrive(g, "S0M")
    g.stamp("g")
    if g.stamps and "g" in PAR.st: e("s_waitcnt vmcnt(0)"); g.stamp("g")
    if PAR.wpf3 == 2:
        e("v_lshlrev_b32 v1, 14, v0"); e(f"s_lshr_b32 s{S_T}, s2, 3"); e(f"s_lshl_b32 s{S_T}, s{S_T}, 7"); e(f"s_lshl_b32 s{S_T+1}, s{S_J}, 12"); e(f"s_add_u32 s{S_T}, s{S_T}, s{S_T+1}")
        e(f"buffer_load_dword v247, v1, {sr(S_W1)}, s{S_T} offen"); e("v_add_u32 v1, 0x100000, v1")
        e(f"buffer_load_dword v247, v1, {sr(S_W1)}, s{S_T} offen")
    call_if(g, EARLY(), "L_gsig")
    g.stamp("g")
    lwait(g, "S0M")
    g.stamp(); g.stamp("h")
    get_max(g, M_S0)
    e("v_lshlrev_b32 v3, 4, v0"); e(f"v_mov_b32 v{PK}, 0")
    e(f"ds_write_b32 v3, v{PK} offset:{BUFA + 22*S0STR + 12}")
    e("v_lshrrev_b32 v1, 23, v1")
    e("v_min_u32 v1, 249, v1")
    e("v_sub_u32 v2, 124, v1")
    e("v_subrev_u32 v1, 124, v1")
    e(f"ds_write_b32 v3, v1 offset:{BUFA + 23*S0STR + 512}")
    for t in range(7): e(f"v_ldexp_f32 v{QS+t}, v{QS+t}, v2")
    for t in range(7):
        if t == 6:
            e(f"s_cmp_eq_u32 s{S_J}, 1"); e(f"s_cselect_b32 s{S_T}, 48, 0")
            for i in range(7): e(f"v_add_u32 v{QA+i}, s{S_T}, v{QA+i}")
        if t in (0, 2, 4, 6): g.stamp("h")
        pack_round(g, HX + 16 * t, 16 * (8 * (t >> 1) + 4 * (t & 1)))
    arrive(g, "S0OK")
    g.stamp(); g.stamp("s"); g.stamp("h")
    e(f"v_cmp_lt_u32 vcc, 25, v{V_HROW}"); e("v_bfe_u32 v1, v0, 2, 1")
    e("v_cmp_eq_u32 s[72:73], 0, v1"); e("s_and_b64 vcc, vcc, s[72:73]")
    e(f"v_mov_b32 v2, {OOB}"); e(f"v_lshlrev_b32 v{V_DMA}, 4, v0"); e(f"v_cndmask_b32 v{V_DMA}, v{V_DMA}, v2, vcc")
    e(f"s_mul_i32 s{S_ROT}, s{S_R}, 7"); e(f"s_lshr_b32 s{S_ROT}, s{S_ROT}, 2")
    e("v_lshrrev_b32 v1, 3, v0"); e(f"s_lshl_b32 s{S_T}, s{S_J}, 3"); e(f"v_add_u32 v1, s{S_T}, v1")
    e("v_mul_u32_u24 v1, 1664, v1"); e("v_and_b32 v2, 1, v0"); e("v_lshl_add_u32 v1, v2, 4, v1")
    e(f"s_and_b32 s{S_T}, s{S_J}, 1"); e(f"s_lshl_b32 s{S_T}, s{S_T}, 1")
    e("v_bfe_u32 v2, v0, 4, 1"); e("v_bfe_u32 v3, v0, 1, 2"); e("v_xor_b32 v2, v2, v3"); e(f"v_xor_b32 v2, s{S_T}, v2")
    e(f"v_lshl_add_u32 v3, v2, 5, s{S_SB}")
    e(f"v_add_u32 v{V_WSRC}, v1, v3")
    e("v_lshrrev_b32 v1, 4, v0"); e("v_bfe_u32 v2, v0, 2, 2"); e("v_lshl_add_u32 v1, v1, 3, v2"); e("v_lshlrev_b32 v1, 7, v1")
    e("v_and_b32 v3, 3, v0"); e("v_lshl_add_u32 v1, v3, 3, v1"); e("v_bfe_u32 v2, v0, 3, 2"); e("v_lshl_add_u32 v1, v2, 5, v1")
    e(f"v_xor_b32 v1, s{S_XC}, v1"); e(f"v_add_u32 v{V_TR0}, {D0}, v1")
    if PAR.wpf3 == 1:
        e("v_lshlrev_b32 v1, 14, v0"); e(f"s_lshr_b32 s{S_T}, s2, 3"); e(f"s_lshl_b32 s{S_T}, s{S_T}, 7"); e(f"s_lshl_b32 s{S_T+1}, s{S_J}, 12"); e(f"s_add_u32 s{S_T}, s{S_T}, s{S_T+1}")
        e(f"buffer_load_dword v247, v1, {sr(S_W1)}, s{S_T} offen"); e("v_add_u32 v1, 0x100000, v1")
        e(f"buffer_load_dword v247, v1, {sr(S_W1)}, s{S_T} offen")
    call_if(g, LATE(), "L_pe1")
    call_if(g, LATE()[:1], "L_xpub")
    g.vmq += ["xst"] * 7 + ["sent", "rdyl"] + ["bias"] * 4
    g.stamp("s")
    call_if(g, LATE(), "L_pe2")
    e("s_waitcnt vmcnt(1)")
    e(f"s_sub_u32 s{S_T}, s{S_WP}, {PAR.gearly}"); e(f"s_cmp_lt_u32 s{S_T}, {31 - PAR.gearly}"); e("s_cbranch_scc1 L_pwr")
    e("s_waitcnt vmcnt(0)")
    g.lab("L_pwr")
    arrive(g, "XST")
    e(f"s_cmp_lg_u32 s{S_J}, 0"); e("s_cbranch_scc1 L_nosig")
    lwait(g, "XST")
    e(f"s_mov_b32 s{S_T}, {SPIN}")
    g.lab("L_rdy")
    e("v_cmp_ne_u32 vcc, 0, v28"); e(f"s_and_b32 s{S_T+1}, vcc_lo, 0xffff"); e(f"s_cmp_eq_u32 s{S_T+1}, 0xffff"); e("s_cbranch_scc0 L_rdys")
    g.lab("L_rdyd")
    g.tail += ["L_rdys:", "    s_sleep 8", f"    buffer_load_dword v28, v29, {sr(S_DBG)}, 0 offen offset:{C_RDY} sc1", "    s_waitcnt vmcnt(0)",
               f"    s_sub_u32 s{S_T}, s{S_T}, 1", "    s_cbranch_scc0 L_rdy", "    s_branch L_rdyd"]
    e("v_mov_b32 v1, 1")
    e(f"buffer_atomic_add v1, v{V_L0}, {sr(S_WS)}, s{S_CX} offen sc0 sc1")
    e(f"buffer_load_dword v197, v{V_L0}, {sr(S_DBG)}, 0 offen offset:128 sc1")
    e("s_waitcnt vmcnt(0)")
    e(f"v_readfirstlane_b32 s{S_T}, v1"); e(f"s_cmp_lg_u32 s{S_T}, 15"); e("s_cbranch_scc1 L_nosig")
    e(f"buffer_store_dword v1, v{V_L0}, {sr(S_WS)}, s{S_CX} offen offset:{C_XR} sc1")
    g.lab("L_nosig")
    e("s_setprio 3")
    g.stamp(); g.stamp("s")

def helper_dnn(g):
    e = g.e
    CH = PAR.chunks; NS = PAR.nslot
    UNITS = [(a, sl) for a in range(3) for sl in range(4)] + [(3, 0), (3, 1)]
    def ac(a, sl): return HACC + 4 * UNITS.index((a, sl))
    def xb(f, sl): return HX + 16 * (f % NS) + 4 * sl
    def xload(f):
        rotf(g, f, S_T + 2); e(f"s_lshl_b32 s{S_T+2}, s{S_T+2}, 12"); e(f"s_add_u32 s{S_T+2}, s{S_T+2}, s{S_XB}")
        for sl in range(4 if f < NS else PAR.nxl):
            g.vm(f"buffer_load_dwordx4 {vr(xb(f,sl),4)}, v{2 + (sl >> 1)}, {sr(S_WS)}, s{S_T+2} offen offset:{1024*(sl&1)} {PAR.ld}", f"x{f}")
    e(f"s_setprio {PAR.wp}")
    VTR = [V_TR0, V_TR1, 198, 199]
    for a in range(1, 4): e(f"v_xor_b32 v{VTR[a]}, {32*a}, v{V_TR0}")
    colvec(g, S_W2, 232, "w2")
    g.vmwait("bias")
    for a in range(4):
        for i in range(2):
            e(f"v_lshlrev_b32 v{ac(a,0)+2*i}, 16, v{BT+2*a+i}")
            e(f"v_and_b32 v{ac(a,0)+2*i+1}, 0xffff0000, v{BT+2*a+i}")
    for a, sl in UNITS:
        if sl:
            for i in range(4): e(f"v_mov_b32 v{ac(a,sl)+i}, v{ac(a,0)+i}")
    e(f"s_lshl_b32 s{S_XB}, s{S_G}, 2"); e(f"s_add_u32 s{S_XB}, s{S_XB}, s{S_J}"); e(f"s_mul_i32 s{S_XB}, s{S_XB}, 106496"); e(f"s_add_u32 s{S_XB}, s{S_XB}, {WS_X}")
    if PAR.wearly < 1: lwait(g, "RB", 8); dma_w(g, 0, PAR.wa, "Wa")
    if PAR.x0: poll1(g, [(S_DBG, "0", 128, 11), CHK_X()], "FX")
    else:
        poll1(g, [(S_DBG, "0", 128, 11)], "F2", pre=[197])
        lwait(g, "AFREE"); dma_img(g, "L2", 44, BUFA)
        presample(g, [CHK_X()], [196], "fx")
        g.vmwait("fx"); arrive(g, "L2OK", "W01")
        poll1(g, [CHK_X()], "FX", pre=[196])
    e(f"s_and_b32 s{S_E0}, s{S_R}, 1"); e(f"s_lshl_b32 s{S_T}, s{S_E0}, 11"); e(f"v_lshl_add_u32 v2, v0, 4, s{S_T}"); e("v_xor_b32 v3, 0x800, v2")
    g.stamp("s")
    g.stamp()
    e(f"s_setprio {PAR.dp}")
    for f in range(PAR.xi): xload(f)
    if PAR.x0:
        lwait(g, "AFREE"); dma_img(g, "L2", 44, BUFA)
        g.vmwait("W1"); arrive(g, "W01")
    nld = [PAR.xi]
    W2R = 232
    wring = [0]
    def wread(ks):
        f, hf = divmod(ks, 2)
        base = HW_ + 8 * (wring[0] % 3); wring[0] += 1
        for a in range(2):
            for rd in range(2):
                e(f"ds_read_b64_tr_b16 {vr(base+4*a+2*rd,2)}, v{VTR[2*hf+a]} offset:{(f % 16)*4096 + rd*512}")
        return base
    CKQ = [(S_WS, f"s{S_CX}", C_Q, 9)]; CK3 = [(S_WS, f"s{S_CX}", C_L[3], 11)]
    after = {}
    def add(f, fn): after.setdefault(f, []).append(fn)
    inter = {}
    def addi(f, fn): inter.setdefault(f, []).append(fn)
    def capture(fn):
        keep = g.L; g.L = []; fn(); out = g.L; g.L = keep; return out
    assert PAR.wa >= 10
    for i in range(16 - PAR.wa): addi(i + 1, lambda i=i: dma_w(g, PAR.wa + i, PAR.wa + i + 1, "Wb"))
    for f, (x, y) in {10: (16, 18), 11: (18, 20), 12: (20, 21), 13: (21, 22), 14: (22, 23), 15: (23, 24), 16: (24, 25), 17: (25, 26)}.items():
        addi(f, lambda x=x, y=y: dma_w(g, x, y, "Wc" if x < 21 else "Wd"))
    SEG = [0, 10, 16, 21, 26]
    add(PAR.qpos - 3, lambda: presample(g, CK3, [196], "f3"))
    add(PAR.qpos, lambda: (lwait(g, "BFREE"), g.vmwait("f3"), poll1(g, CK3, "F3", pre=[196])))
    for i in range(0, 11, PAR.l3n): addi(PAR.qpos + 1 + i // PAR.l3n, lambda i=i: dma_img(g, "L3", 44, BUFB, part=(i, i + PAR.l3n)))
    add(PAR.qpos + 1 + 10 // PAR.l3n + PAR.qarr, lambda: (g.vmwait("L3"), arrive(g, "L3OK")))
    add(22, lambda: presample(g, CKQ, [197], "fq"))
    lwait(g, "W01")
    for c in range(4):
        k0 = 2 * SEG[c]; k1 = 2 * SEG[c + 1]
        bufs = {k0: wread(k0), k0 + 1: wread(k0 + 1)}
        for ks in range(k0, k1):
            f, hf = divmod(ks, 2)
            if hf == 0 and f in PAR.fst: g.stamp("f")
            if hf == 0:
                g.vmwait(f"x{f}")
                def gen_other():
                    for _ in range(2):
                        if nld[0] < min(26, f + NS): xload(nld[0]); nld[0] += 1
                    for fn in inter.get(f, []): fn()
                other = capture(gen_other)
            e(f"s_waitcnt lgkmcnt({4 if ks + 1 < k1 else 0})")
            rd = []
            if ks + 2 < k1: rd = capture(lambda: bufs.__setitem__(ks + 2, wread(ks + 2)))
            mf = [(a, sl) for a in range(2) for sl in range(4) if (2 * hf + a, sl) in UNITS[:PAR.nmf]]
            for i, (a, sl) in enumerate(mf):
                d = ac(2 * hf + a, sl)
                e(f"v_mfma_f32_16x16x32_bf16 {vr(d,4)}, {vr(bufs[ks]+4*a,4)}, {vr(xb(f,sl),4)}, {vr(d,4)}")
                n = PAR.il
                if rd and i >= 1: g.L.append(rd.pop(0)); n -= 1
                while other and n > 0: g.L.append(other.pop(0)); n -= 1
            g.L += rd
            if hf == 1:
                g.L += other
                for fn in after.get(f, []): fn()
        if c == 0:
            if PAR.wa < 16: g.vmwait("Wb")
            arrive(g, "C0"); lwait(g, "C0"); g.stamp()
        if c == 1: g.vmwait("Wc"); arrive(g, "C1"); lwait(g, "C1")
        if c == 2:
            g.vmwait("Wd"); arrive(g, "C2"); lwait(g, "C2")
    e("s_waitcnt vmcnt(0)")
    g.stamp()
    W2F = HX
    for i in range(8):
        e(f"v_lshlrev_b32 v{W2F+2*i}, 16, v{W2R+i}")
        e(f"v_and_b32 v{W2F+2*i+1}, 0xffff0000, v{W2R+i}")
    c0 = 2 * 0.7978845608028654 * 1.4426950408889634
    e(f"s_mov_b32 s{S_C1}, {f2u(c0*0.044715):#x}")
    e(f"v_mov_b32 v2, {f2u(c0):#x}")
    T = HX + 32; SUM = HX + 48
    def gelu(blk):
        a, sl = UNITS[blk]
        rs = [ac(a, sl) + i for i in range(4)]
        for i, r in enumerate(rs): e(f"v_mul_f32 v{T+i}, v{r}, v{r}")
        for i, r in enumerate(rs): e(f"v_fma_f32 v{T+i}, v{T+i}, s{S_C1}, v2")
        for i, r in enumerate(rs): e(f"v_mul_f32 v{T+i}, v{T+i}, v{r}")
        for i, r in enumerate(rs): e(f"v_exp_f32 v{T+i}, -v{T+i}")
        for i, r in enumerate(rs): e(f"v_mul_f32 v{r}, v{r}, v{W2F + 4*a + i}")
        for i, r in enumerate(rs): e(f"v_add_f32 v{T+i}, 1.0, v{T+i}")
        for i, r in enumerate(rs): e(f"v_rcp_f32 v{T+i}, v{T+i}")
        for i, r in enumerate(rs): e(f"v_{'mul' if a == 0 and i == 0 else 'fmac'}_f32 v{SUM + sl}, v{r}, v{T+i}")
    for blk in range(len(UNITS)):
        if blk == PAR.gsplit:
            poll1(g, CKQ, "FQ", pre=[197]); dma_img(g, "Q4", 28, QB)
        if blk == PAR.gsplit2:
            e("s_waitcnt vmcnt(0)"); arrive(g, "QOK")
        if blk == PAR.ghi: e("s_setprio 1")
        gelu(blk)
    e("s_setprio 3")
    e(f"v_permlane32_swap_b32 v{SUM}, v{SUM+2}"); e(f"v_permlane32_swap_b32 v{SUM+1}, v{SUM+3}")
    e(f"v_add_f32 v{SUM}, v{SUM}, v{SUM+2}"); e(f"v_add_f32 v{SUM+1}, v{SUM+1}, v{SUM+3}")
    e(f"v_permlane16_swap_b32 v{SUM}, v{SUM+1}")
    e(f"v_add_f32 v{SUM}, v{SUM}, v{SUM+1}")
    e(f"v_min_u32 v{SUM}, -2, v{SUM}")
    e(f"s_lshl_b32 s{S_T}, s{S_E0}, 7"); e("v_lshlrev_b32 v1, 2, v0"); e(f"v_xor_b32 v1, s{S_T}, v1")
    e(f"buffer_store_dword v{SUM}, v1, {sr(S_WS)}, s{S_PO} offen sc1")
    g.stamp()
    g.flush_stamps(4, 5)
    e("s_endpgm")

def gsignal(g, c, so):
    e = g.e; done = g.newlab("sg")
    if c: e("s_waitcnt vmcnt(0)"); arrive(g, c)
    e(f"s_cmp_lg_u32 s{S_J}, 0"); e(f"s_cbranch_scc1 {done}")
    if c: lwait(g, c)
    e(f"v_mul_u32_u24 v2, {PAR.cstr}, v0"); e("v_cmp_lt_u32 vcc, 15, v0"); e(f"v_mov_b32 v3, {OOB}"); e("v_cndmask_b32 v2, v2, v3, vcc")
    e("v_mov_b32 v1, 1")
    e(f"buffer_atomic_add v1, v2, {sr(S_WS)}, {so} offen sc1")
    g.lab(done)
SCN, FR, WV, WP, W1V, AQ, RW = 68, 104, 121, 122, 108, 44, 180
QAR = lambda i: (64 + i) if i < 4 else (240 + i)
S_E4, S_LW = 62, 63
def prod_early1(g):
    e = g.e
    g.lab("L_gsig")
    e("s_waitcnt vmcnt(0)"); arrive(g, "GST")
    e(f"s_cmp_lg_u32 s{S_J}, 0"); e("s_cbranch_scc1 L_xpub")
    lwait(g, "GST")
    e("v_mov_b32 v1, 1"); e(f"buffer_atomic_add v1, v{V_L0}, {sr(S_DBG)}, 0 offen offset:128 sc1")
    g.lab("L_xpub")
    XS = 180
    lwait(g, "RAW")
    for t in range(7): e(f"ds_read_b128 {vr(XS+4*t,4)}, v245 offset:{256*t}")
    e(f"s_cmp_ge_u32 s{S_J}, 2"); e(f"s_cselect_b32 s{S_T}, {OOB}, 0"); e(f"v_add_u32 v245, s{S_T}, v246")
    for t in range(7):
        e(f"s_waitcnt lgkmcnt({6-t})")
        g.vm(f"buffer_store_dwordx4 {vr(XS+4*t,4)}, v{246 if t < 6 else 245}, {sr(S_WS)}, s{S_XB} offen sc1", "xst")
        e(f"s_add_u32 s{S_XB}, s{S_XB}, 16384")
    arrive(g, "RB")
    e(f"s_cmp_ge_u32 s{S_R}, {NR}"); e(f"s_cselect_b32 s{S_T}, {OOB}, 0")
    e(f"v_lshl_add_u32 v1, v0, 2, s{S_T}"); e("v_mov_b32 v3, -1")
    g.vm(f"buffer_store_dword v3, v1, {sr(S_WS)}, s{S_PO} offen sc1", "sent")
    e(f"s_lshl_b32 s{S_T}, s{S_J}, 8"); e("v_lshrrev_b32 v29, 4, v0"); e(f"v_lshl_add_u32 v29, v29, 8, s{S_T}"); e("v_lshl_add_u32 v29, v0, 2, v29")
    g.vm(f"buffer_load_dword v28, v29, {sr(S_DBG)}, 0 offen offset:{C_RDY} sc1", "rdyl")
    colvec(g, S_B1, BT, "bias")
    e(RET)
    g.lab("L_pe1")
    e(f"s_mul_i32 s{S_L}, s{S_WP}, 94"); e(f"s_lshr_b32 s{S_L}, s{S_L}, 10")
    e(f"s_mul_i32 s{S_T}, s{S_L}, 11"); e(f"s_sub_u32 s{S_FR}, s{S_WP}, s{S_T}"); e(f"s_lshl_b32 s{S_FR}, s{S_FR}, 2"); e(f"s_add_u32 s{S_FR}, s{S_FR}, s{S_J}")
    e(f"s_add_u32 s{S_L}, s{S_L}, 2")
    e(f"s_mul_i32 s{S_E2}, s{S_L}, {LB}")
    e(f"s_add_u32 s{S_LC+2}, s{S_E2}, {LB}")
    e("v_lshlrev_b32 v1, 4, v0")
    e(f"s_mul_i32 s{S_T}, s{S_J}, 9216"); e(f"s_add_u32 s{S_T}, s{S_T}, s{S_E2}")
    for i in range(9):
        if i % 4 == 0 and i: e(f"s_add_u32 s{S_T}, s{S_T}, 4096")
        e(f"buffer_load_dwordx4 {vr(SCN+4*i,4)}, v1, {sr(S_LC)}, s{S_T} offen offset:{(i%4)*1024}")
    e(f"s_cmp_ge_u32 s{S_WP}, 22"); e("s_cbranch_scc1 L_ret")
    e(f"s_lshl_b32 s{S_T}, s{S_FR}, 4"); e(f"s_add_u32 s{S_T}, s{S_T}, s{S_E2}")
    e(f"buffer_load_dwordx4 {vr(FR,4)}, v243, {sr(S_LC)}, s{S_T} offen")
    e(f"v_lshlrev_b32 v1, 1, v{V_HROW}"); e(f"s_mul_i32 s{S_T}, s{S_L}, 52")
    e(f"buffer_load_ushort v{WV}, v1, {sr(S_WO)}, s{S_T} offen")
    e(f"buffer_load_ushort v{WP}, v1, {sr(S_WO)}, 52 offen")
    e("v_lshrrev_b32 v3, 5, v0"); e("v_mul_u32_u24 v3, 26, v3")
    for i in range(8):
        e(f"s_lshl_b32 s{S_T}, s{S_FR}, 3"); e(f"s_sub_u32 s{S_T}, s{S_T}, {8*42 + 2 - i}")
        e(f"s_lshl_b32 s{S_T+1}, s{S_T}, 1"); e(f"s_add_u32 s{S_T+1}, s{S_T+1}, 52")
        e(f"s_cmp_lt_u32 s{S_T}, 13"); e(f"s_cselect_b32 s{S_T+1}, s{S_T+1}, {OOB}")
        e(f"v_add_u32 v2, s{S_T+1}, v3")
        e(f"buffer_load_ushort v{W1V+i}, v2, {sr(S_WO)}, 0 offen")
    g.lab("L_ret")
    e(RET)
def prod_early2(g):
    e = g.e
    g.lab("L_pe2")
    e("s_waitcnt vmcnt(13)")
    e(f"v_mov_b32 v{V_CNT}, {M_CNT}")
    for i in range(36): e(f"v_and_b32 v{SCN+i}, s{S_MASK}, v{SCN+i}")
    pkmax(g, [SCN + i for i in range(36)])
    put_max(g, M_SC)
    e(f"s_add_u32 s{S_SCN}, s{S_SCN}, 4")
    arrive(g, "SCM"); lwait(g, "SCM", f"s{S_SCN}")
    get_max(g, M_SC)
    e(f"v_readfirstlane_b32 s{S_E0}, v1")
    e(f"s_bfe_u32 s{S_E0}, s{S_E0}, 0x80007")
    e(f"s_cmp_ge_u32 s{S_WP}, 22"); e("s_cbranch_scc1 L_ret")
    g.lab("L_gjob")
    e(f"s_min_u32 s{S_T+2}, s{S_E0}, 249"); e(f"s_sub_u32 s{S_T+3}, {127+124}, s{S_T+2}"); e(f"s_lshl_b32 s{S_T+3}, s{S_T+3}, 23")
    e(f"s_cmp_lt_u32 s{S_FR}, 42"); e(f"s_cselect_b32 s{S_T+1}, -1, 0")
    for i in range(1, 4): e(f"v_and_b32 v{FR+i}, s{S_T+1}, v{FR+i}")
    e(f"s_cmp_lt_u32 s{S_FR}, 43"); e(f"s_cselect_b32 s{S_T+1}, -1, 0"); e(f"v_and_b32 v{FR}, s{S_T+1}, v{FR}")
    for i in range(4): e(f"v_alignbit_b32 v{FR+i}, v{FR+i}, v{FR+i}, v{V_H16}")
    for i in range(4):
        e(f"v_lshlrev_b32 v{SCN+2*i}, 16, v{FR+i}"); e(f"v_and_b32 v{SCN+2*i+1}, 0xffff0000, v{FR+i}")
    for i in range(8): e(f"v_mul_f32 v{SCN+i}, s{S_T+3}, v{SCN+i}")
    for i in range(4): e(f"v_cvt_pk_f16_f32 v{FR+i}, v{SCN+2*i}, v{SCN+2*i+1}")
    e(f"v_lshlrev_b32 v{WV}, 16, v{WV}")
    e(f"v_and_b32 v1, 0x7fffffff, v{WV}")
    wavemax_exp(g, 1, S_E1)
    e(f"s_sub_u32 s{S_E1}, s{S_E1}, 13"); e(f"s_sub_u32 s{S_T}, 0, s{S_E1}")
    e(f"v_ldexp_f32 v{WV}, v{WV}, s{S_T}")
    for i in range(8): e(f"v_mul_f32 v{SCN+i}, v{SCN+i}, v{WV}")
    for sh in (1, 2, 4, 8):
        for i in range(8): e(f"v_add_f32_dpp v{SCN+i}, v{SCN+i}, v{SCN+i} row_shr:{sh} {DPPALL} bound_ctrl:0")
    for i in range(8): e(f"v_add_f32_dpp v{SCN+i}, v{SCN+i}, v{SCN+i} row_bcast:15 row_mask:0xa bank_mask:0xf")
    for i in range(4): e(f"v_cvt_pk_f16_f32 v{SCN+2*i}, v{SCN+2*i}, v{SCN+2*i+1}")
    e("v_and_b32 v2, 31, v0"); e("v_cmp_eq_u32 vcc, 31, v2")
    for i in range(4): e(f"v_cndmask_b32 v{FR+i}, v{FR+i}, v{SCN+2*i}, vcc")
    e(f"v_lshlrev_b32 v1, 16, v{WP}"); e("v_and_b32 v1, 0x7fffffff, v1")
    wavemax_exp(g, 1, S_E4)
    e(f"s_sub_u32 s{S_T}, 15, s{S_E4}")
    for i in range(8): e(f"v_lshlrev_b32 v{W1V+i}, 16, v{W1V+i}")
    for i in range(8): e(f"v_ldexp_f32 v{W1V+i}, v{W1V+i}, s{S_T}")
    for i in range(4): e(f"v_cvt_pk_f16_f32 v{W1V+2*i}, v{W1V+2*i}, v{W1V+2*i+1}")
    e("v_cmp_eq_u32 vcc, 30, v2")
    for i in range(4): e(f"v_cndmask_b32 v{FR+i}, v{FR+i}, v{W1V+2*i}, vcc")
    e(f"s_cmp_lg_u32 s{S_FR}, 0"); e("s_cbranch_scc1 L_nohdr")
    e(f"s_sub_u32 s{S_T+2}, s{S_T+2}, 124"); e(f"s_add_u32 s{S_E1}, s{S_E1}, s{S_T+2}"); e(f"s_sub_u32 s{S_E4}, s{S_E4}, 15")
    e(f"v_writelane_b32 v{FR}, s{S_T+2}, 29"); e(f"v_writelane_b32 v{FR+1}, s{S_E1}, 29"); e(f"v_writelane_b32 v{FR+2}, s{S_E4}, 29")
    g.lab("L_nohdr")
    e(f"s_mul_i32 s{S_T}, s{S_L}, {44*1024}"); e(f"s_lshl_b32 s{S_T+1}, s{S_FR}, 10"); e(f"s_add_u32 s{S_T}, s{S_T}, s{S_T+1}")
    e(f"s_sub_u32 s{S_T}, s{S_T}, {88*1024 - IMG['L2']}")
    e("v_lshlrev_b32 v1, 4, v0")
    e(f"buffer_store_dwordx4 {vr(FR,4)}, v1, {sr(S_WS)}, s{S_T} offen sc1")
    e("s_nop 0")
    e(RET)
def helper_prod(g):
    e = g.e
    e(f"s_add_u32 s{S_WP}, s{S_G}, 16")
    e(f"s_cmp_ge_u32 s{S_WP}, 31"); e("s_cbranch_scc1 L_j2d")
    call_if(g, [], "L_pe1")
    e(f"s_cmp_lt_u32 s{S_WP}, 22"); e("s_cbranch_scc1 L_noql")
    e("v_and_b32 v2, 31, v0"); e("v_lshrrev_b32 v3, 5, v0")
    e("v_mul_u32_u24 v1, 676, v3"); e("v_add_lshl_u32 v1, v1, v2, 1")
    e(f"s_mul_i32 s{S_T}, s{S_FR}, 52"); e(f"s_add_u32 s{S_T}, s{S_T}, {4*LB}")
    for s in range(13):
        e(f"buffer_load_ushort v{W1V+s}, v1, {sr(S_LC)}, s{S_T} offen")
        e(f"s_add_u32 s{S_T}, s{S_T}, 2704")
    e(f"s_cmp_eq_u32 s{S_WP}, 29"); e(f"s_cselect_b32 s{S_LW}, 4, 5"); e(f"s_cmp_eq_u32 s{S_WP}, 30"); e(f"s_cselect_b32 s{S_LW}, 0, s{S_LW}")
    e(f"s_mul_i32 s{S_E2}, s{S_LW}, {LB}"); e(f"s_add_u32 s{S_LC+2}, s{S_E2}, {LB}")
    e("v_lshlrev_b32 v1, 1, v0"); e("v_cmp_lt_u32 vcc, 25, v0"); e(f"v_mov_b32 v2, {OOB}"); e("v_cndmask_b32 v1, v1, v2, vcc")
    e(f"s_mul_i32 s{S_T}, s{S_LW}, 52")
    e(f"buffer_load_ushort v{WV}, v1, {sr(S_WO)}, s{S_T} offen")
    e("v_lshlrev_b32 v1, 4, v0")
    e(f"s_mul_i32 s{S_T}, s{S_J}, 1352"); e(f"s_add_u32 s{S_T}, s{S_T}, s{S_E2}")
    for t in range(7):
        for ps in range(2):
            e(f"buffer_load_dwordx4 {vr(RW+8*t+4*ps,4)}, v1, {sr(S_LC)}, s{S_T} offen offset:{1024*ps}")
        e(f"s_add_u32 s{S_T}, s{S_T}, {4*1352}")
    g.lab("L_noql")
    lwait(g, "XST")
    e("s_waitcnt vmcnt(0)")
    call_if(g, [], "L_pe2")
    g.lab("L_j2d")
    e(f"s_sub_u32 s{S_T}, s{S_G}, 6"); e(f"s_cmp_lt_u32 s{S_T}, 5"); e("s_cbranch_scc1 L_nol3")
    e(f"s_mov_b32 s{S_T+2}, {WS_CNT + C_L[3]}")
    gsignal(g, "F3", f"s{S_T+2}")
    g.lab("L_nol3")
    e(f"s_cmp_ge_u32 s{S_WP}, 31"); e("s_cbranch_scc1 L_idle")
    e(f"s_cmp_ge_u32 s{S_WP}, 22"); e("s_cbranch_scc1 L_nog")
    e("s_branch L_idle")
    g.lab("L_nog")
    lwait(g, "RB", 8)
    AC = HX; TU = HX + 16
    for t in range(6): e(f"v_lshl_or_b32 v{QAR(t)}, v{W1V+2*t+1}, 16, v{W1V+2*t}")
    e(f"v_mov_b32 v{QAR(6)}, v{W1V+12}"); e(f"v_mov_b32 v{QAR(7)}, 0")
    g.stamp("q")
    e(f"v_lshlrev_b32 v{WV}, 16, v{WV}"); e(f"v_and_b32 v1, 0x7fffffff, v{WV}")
    wavemax_exp(g, 1, S_E1)
    e(f"s_sub_u32 s{S_T}, 0, s{S_E1}"); e(f"v_ldexp_f32 v{WV}, v{WV}, s{S_T}")
    for i in range(16): e(f"v_mov_b32 v{AC+i}, 0")
    for t in range(7):
        e(f"s_add_u32 s{S_T}, s{S_J}, {4*t}")
        e(f"v_readlane_b32 s{S_T+1}, v{WV}, s{S_T}")
        for i in range(8):
            e(f"v_lshlrev_b32 v{TU+2*i}, 16, v{RW+8*t+i}"); e(f"v_and_b32 v{TU+2*i+1}, 0xffff0000, v{RW+8*t+i}")
        for i in range(16): e(f"v_fmac_f32 v{AC+i}, s{S_T+1}, v{TU+i}")
    PSTR = 4096
    e(f"s_mul_i32 s{S_T}, s{S_J}, {PSTR}"); e(f"s_add_u32 s{S_T}, s{S_T}, {D0}")
    e(f"v_lshl_add_u32 v1, v0, 5, s{S_T}")
    for ps in range(2):
        for hf in range(2): e(f"ds_write_b128 v1, {vr(AC+8*ps+4*hf,4)} offset:{2048*ps+16*hf}")
    g.stamp("q"); arrive(g, "WC"); lwait(g, "WC"); g.stamp("q")
    call_if(g, [], "L_l2")
    e(f"s_cmp_eq_u32 s{S_FR}, 28"); e("s_cbranch_scc1 L_lin")
    e(f"s_cmp_lt_u32 s{S_FR}, 26"); e("s_cbranch_scc1 L_q")
    e(f"s_cmp_lg_u32 s{S_FR}, 32"); e("s_cbranch_scc1 L_noq")
    g.lab("L_q")
    BQ, PT, DQ = HX + 16, HX + 32, HX + 96
    e("v_and_b32 v2, 31, v0"); e("v_lshrrev_b32 v3, 5, v0")
    e("v_mad_u32_u24 v1, v3, 26, v2"); e("v_lshlrev_b32 v1, 2, v1"); e(f"v_add_u32 v1, {D0}, v1")
    def readsum(stride):
        for pj in range(4):
            for s in range(13): e(f"ds_read_b32 v{PT+13*pj+s}, v1 offset:{PSTR*pj + stride*s}")
            if pj: e("s_waitcnt lgkmcnt(13)")
        e("s_waitcnt lgkmcnt(0)")
        for s in range(13):
            e(f"v_add_f32 v{PT+s}, v{PT+s}, v{PT+13+s}"); e(f"v_add_f32 v{PT+26+s}, v{PT+26+s}, v{PT+39+s}")
        for s in range(13): e(f"v_add_f32 v{BQ+s}, v{PT+s}, v{PT+26+s}")
    def max13():
        e(f"v_max3_f32 v1, |v{BQ}|, |v{BQ+1}|, |v{BQ+2}|")
        for s in range(3, 13, 2): e(f"v_max3_f32 v1, v1, |v{BQ+s}|, |v{BQ+s+1}|")
    readsum(208)
    e("v_cmp_gt_u32 vcc, 26, v2")
    for s in range(13): e(f"v_cndmask_b32 v{BQ+s}, 0, v{BQ+s}, vcc")
    max13()
    wavemax_exp(g, 1, S_E2)
    e(f"s_sub_u32 s{S_T}, 0, s{S_E2}")
    for s in range(13): e(f"v_ldexp_f32 v{BQ+s}, v{BQ+s}, s{S_T}")
    e(f"s_max_u32 s{S_E0}, s{S_E0}, 10"); e(f"s_sub_u32 s{S_E0}, s{S_E0}, 126")
    BH, BL = PT, PT + 8
    e(f"v_mov_b32 v{BQ+13}, 0"); e(f"v_mov_b32 v{BH+7}, 0"); e(f"v_mov_b32 v{BL+7}, 0")
    for t in range(7): e(f"v_cvt_pk_bf16_f32 v{BH+t}, v{BQ+2*t}, v{BQ+2*t+1}")
    for t in range(7):
        e(f"v_lshlrev_b32 v{PT+16+2*t}, 16, v{BH+t}"); e(f"v_and_b32 v{PT+17+2*t}, 0xffff0000, v{BH+t}")
    for t in range(14): e(f"v_sub_f32 v{BQ+t}, v{BQ+t}, v{PT+16+t}")
    for t in range(7): e(f"v_cvt_pk_bf16_f32 v{BL+t}, v{BQ+2*t}, v{BQ+2*t+1}")
    e(f"s_cmp_ge_u32 s{S_FR}, 13"); e(f"s_cselect_b32 s{S_T+1}, 13, 0"); e(f"s_cselect_b32 s{S_T+2}, 4, 0")
    e(f"s_sub_u32 s{S_T+1}, s{S_FR}, s{S_T+1}"); e(f"s_and_b32 s{S_T+3}, s{S_T+1}, 3"); e(f"s_add_u32 s{S_T+2}, s{S_T+2}, s{S_T+3}")
    e(f"s_lshr_b32 s{S_T+1}, s{S_T+1}, 2"); e(f"s_lshl_b32 s{S_T+1}, s{S_T+1}, 3"); e(f"s_add_u32 s{S_SB}, s{S_T+2}, s{S_T+1}")
    e(f"s_mov_b32 s{S_L}, 0")
    e(f"s_cmp_lg_u32 s{S_FR}, 32"); e("s_cbranch_scc1 L_q2")
    e("v_sub_u32 v1, v2, v3")
    for s in range(13):
        e(f"v_cmp_eq_u32 vcc, {2*s}, v1"); e(f"v_cndmask_b32 v{AQ+s}, 0, 1.0, vcc")
    e(f"v_mov_b32 v{AQ+13}, 0")
    for t in range(7): e(f"v_cvt_pk_bf16_f32 v{QAR(t)}, v{AQ+2*t}, v{AQ+2*t+1}")
    e(f"s_mov_b32 s{S_E0}, 0"); e(f"s_mov_b32 s{S_SB}, 31"); e(f"s_mov_b32 s{S_L}, 8")
    g.lab("L_q2")
    g.stamp("q")
    e("s_nop 1")
    first = True
    for bb in (BL, BH):
        for ks in range(2):
            e(f"v_mfma_f32_32x32x16_bf16 {vr(DQ,16)}, {vr(QAR(4*ks),4)}, {vr(bb+4*ks,4)}, {'0' if first else vr(DQ,16)}"); first = False
            e(f"v_mfma_f32_32x32x16_bf16 {vr(DQ,16)}, {vr(bb+4*ks,4)}, {vr(QAR(4*ks),4)}, {vr(DQ,16)}")
    e(f"v_max_f32 v1, v{QS}, v{QS+1}")
    e(f"s_sub_u32 s{S_T}, 137, s{S_E0}"); e(f"s_lshl_b32 s{S_T}, s{S_T}, 23"); e(f"v_mov_b32 v30, s{S_T}"); e("v_mul_f32 v31, 0.5, v30")
    for t in range(7):
        e(f"v_cmp_eq_f32 vcc, v1, v{QS+t}"); e(f"v_cndmask_b32 v{QS+t}, v31, v30, vcc")
    e(f"s_cmp_eq_u32 s{S_J}, 1"); e(f"s_cselect_b32 s{S_T}, 48, 0"); e(f"s_sub_u32 s{S_T}, {D1 - BUFA}, s{S_T}")
    for t in range(7): e(f"v_add_u32 v{QA+t}, s{S_T}, v{QA+t}")
    e(f"v_mul_u32_u24 v1, {S0STR}, v2"); e("v_lshl_add_u32 v1, v3, 9, v1"); e(f"s_lshl_b32 s{S_T}, s{S_J}, 4"); e(f"s_add_u32 s{S_T}, s{S_T}, {D1}")
    e(f"v_min_u32 v1, {22*S0STR+512}, v1")
    e(f"v_add_u32 v1, s{S_T}, v1")
    e(f"v_lshl_add_u32 v28, v3, 9, s{S_T}"); e("v_mov_b32 v29, 0")
    e(f"ds_write_b32 v28, v29 offset:{22*S0STR+12}")
    pack_round(g, DQ, 0, False)
    g.stamp("q")
    e("s_waitcnt lgkmcnt(0)")
    e(f"ds_read_b128 {vr(AQ,4)}, v1")
    e("v_lshlrev_b32 v1, 10, v2"); e("v_lshl_add_u32 v1, v3, 9, v1"); e("v_cmp_lt_u32 vcc, 22, v2"); e(f"v_mov_b32 v28, {OOB}"); e("v_cndmask_b32 v1, v1, v28, vcc")
    e(f"s_lshl_b32 s{S_T}, s{S_SB}, 4"); e(f"s_add_u32 s{S_T}, s{S_T}, {IMG['Q4']}")
    e("s_waitcnt lgkmcnt(0)")
    e(f"buffer_store_dwordx4 {vr(AQ,4)}, v1, {sr(S_WS)}, s{S_T} offen sc1")
    e(f"s_add_u32 s{S_E0}, s{S_E0}, s{S_E2}"); e(f"s_add_u32 s{S_E0}, s{S_E0}, s{S_E1}"); e(f"s_sub_u32 s{S_E0}, s{S_E0}, 10")
    e(f"s_and_b32 s{S_T}, s{S_FR}, 31"); e(f"s_cmp_lg_u32 s{S_T}, 0"); e("s_cbranch_scc1 L_noq")
    g.lab("L_qh")
    e(f"v_mov_b32 v1, s{S_E0}"); e(f"s_add_u32 s{S_T}, s{S_L}, {IMG['Q4'] + 23*1024}")
    e(f"buffer_store_dword v1, v{V_L0}, {sr(S_WS)}, s{S_T} offen sc1")
    e("s_branch L_noq")
    g.lab("L_lin")
    e("v_lshrrev_b32 v3, 5, v0"); e(f"v_min_u32 v2, 25, v{V_HROW}")
    e("v_mad_u32_u24 v1, v2, 26, v3"); e("v_lshlrev_b32 v1, 2, v1"); e(f"v_add_u32 v1, {D0}, v1")
    readsum(8)
    e(f"v_cmp_gt_u32 vcc, 26, v{V_HROW}")
    for s in range(13): e(f"v_cndmask_b32 v{BQ+s}, 0, v{BQ+s}, vcc")
    max13()
    wavemax_exp(g, 1, S_E2)
    e(f"s_sub_u32 s{S_T}, 15, s{S_E2}")
    for s in range(13): e(f"v_ldexp_f32 v{BQ+s}, v{BQ+s}, s{S_T}")
    e(f"v_mov_b32 v{BQ+13}, 0"); e(f"v_mov_b32 v{AQ+7}, 0")
    for t in range(7): e(f"v_cvt_pk_f16_f32 v{AQ+t}, v{BQ+2*t}, v{BQ+2*t+1}")
    e("v_lshlrev_b32 v1, 4, v0"); e(f"s_mov_b32 s{S_T}, {IMG['Q4'] + 24*1024}")
    for s in range(2): e(f"buffer_store_dwordx4 {vr(AQ+4*s,4)}, v1, {sr(S_WS)}, s{S_T} offen offset:{1024*s} sc1")
    e(f"s_add_u32 s{S_E0}, s{S_E2}, s{S_E1}"); e(f"s_sub_u32 s{S_E0}, s{S_E0}, 15"); e(f"s_mov_b32 s{S_L}, 4")
    e("s_branch L_qh")
    g.lab("L_noq")
    g.stamp("q")
    e(f"s_mov_b32 s{S_T+2}, {WS_CNT + C_Q}")
    gsignal(g, "QST", f"s{S_T+2}")
    g.stamp("q")
    lwait(g, "QST")
    e("s_branch L_idle2")
    g.lab("L_l2")
    lwait(g, "AFREE")
    poll1(g, [(S_DBG, "0", 128, 11)], "F2")
    dma_img(g, "L2", 44, BUFA)
    e("s_waitcnt vmcnt(0)"); arrive(g, "L2OK")
    e(RET)
    g.lab("L_idle")
    call_if(g, [], "L_l2")
    g.lab("L_idle2")
    g.stamp(); g.stamp()
    lwait(g, "BFREE")
    poll1(g, [(S_WS, f"s{S_CX}", C_L[3], 11)], "FX")
    dma_img(g, "L3", 44, BUFB)
    e("s_waitcnt vmcnt(0)"); arrive(g, "L3OK")
    g.stamp()
    poll1(g, [(S_WS, f"s{S_CX}", C_Q, 9), CHK_X()], "FQ")
    dma_img(g, "Q4", 28, QB)
    e("s_waitcnt vmcnt(0)"); arrive(g, "QOK")
    g.stamp()
    g.flush_stamps(4, 5)
    e("s_endpgm")

DOC = """; ---- design (generated by a script of my own) ----
;   g4 = L x + Q(x,x) with L = w4.W4, Q = W4.(w5.W5);  logit = sum_l w_l.u_{l+1} + g4.u4.
; MLP: 15 workgroups per 256 samples, 16x16x32 bf16 MFMA, x exchanged in fragment order through d_ws; the 16th workgroup
;   prepares the shared fp16 weight images. Hand-offs: write-through stores, drained, then counters reset inside this launch.
"""
def build(stamps=False):
    g = G(stamps)
    prologue(g); n0 = g.nst
    cin(g)
    g.h0 = len(g.L); g.lab("L_helper"); g.nst = n0
    helper_common(g); n1 = g.nst
    g.e(f"s_cmp_ge_u32 s{S_R}, {NR}"); g.e("s_cbranch_scc1 L_helper_n")
    helper_dnn(g)
    g.lab("L_helper_n"); g.nst = n1
    helper_prod(g)
    prod_early1(g); prod_early2(g)
    g.L += g.tail
    i = g.L.index("L_cin2:"); g.L[i:i] = g.hfirst
    g.lab("L_end"); g.e("s_endpgm")
    body, nops = fix_hazards(g.L)
    ref = open("standalone__deep_cross_xdeepfm__recsys.s.ref").read().split("\n")
    hdr = [l for l in ref if l.startswith(";") and "@launch" not in l and "Override" not in l and "grid=ceil" not in l]
    txt = "\n".join(hdr) + f"\n; @launch grid=(256,1,1) block=(512,1,1) lds={LDS_TOTAL}\n"
    txt += DOC
    txt += f'.amdgcn_target "amdgcn-amd-amdhsa--gfx950"\n.text\n.globl {KN}\n.p2align 8\n.type {KN},@function\n{KN}:\n'
    txt += "\n".join(body) + "\n"
    txt += f""".section .rodata,"a"
.p2align 6
.amdhsa_kernel {KN}
  .amdhsa_next_free_vgpr 256
  .amdhsa_next_free_sgpr 102
  .amdhsa_accum_offset 256
  .amdhsa_group_segment_fixed_size 0
  .amdhsa_kernarg_size 88
  .amdhsa_user_sgpr_count 2
  .amdhsa_user_sgpr_kernarg_segment_ptr 1
  .amdhsa_system_sgpr_workgroup_id_x 1
.end_amdhsa_kernel
"""
    return txt, nops
if __name__ == "__main__":
    for a in sys.argv[2:]:
        if "=" in a:
            k, v = a.split("="); setattr(PAR, k, eval(v))
    txt, nops = build(stamps="stamps" in sys.argv)
    open(sys.argv[1], "w").write(txt)
    print("nops inserted", nops, "lines", txt.count("\n"))
```

```python
import sys, struct
from asmlib import fix_hazards
KN = "standalone__deep_cross_xdeepfm__recsys_kernel"
def f2u(f): return struct.unpack('<I', struct.pack('<f', f))[0]
OOB = 0x40000000
SPIN = 200000
LB = 35152
IMG = {}
off = 0
for name, n in (("L2", 44), ("L3", 44), ("Q4", 28)):
    IMG[name] = off; off += n * 1024
NR = 15
WS_PART = off
WS_CNT = WS_PART + 16 * NR * 1024
WS_STAMP = 0x80000
WS_X = WS_STAMP + 256 * 8 * 64
C_L = {3: 512}; C_Q = 516; C_XR = 256; C_RDY = 0
BUFA, BUFB = 0, 45056
D0, D1 = 90112, 118784
QB = D0 + 10 * 4096
MISC = QB + 28672
LDS_TOTAL = MISC + 2560
M_S0, M_L1, M_SC, M_EW1, M_CNT = MISC, MISC + 64, MISC + 128, MISC + 192, MISC + 256
CNT = {n: M_CNT + 4 * i for i, n in enumerate(["XST", "L1M", "L1OK", "AFREE", "L2OK", "BFREE", "L3OK", "QOK", "W01", "C0", "C1", "C2", "SCM", "GST", "WC", "QST", "FX", "F2", "F3", "FQ", "S0OK", "S0M", "RAW", "RB"])}
CNT["AFREE"] = M_CNT + 4 * 28; CNT["BFREE"] = M_CNT + 4 * 29; CNT["RB"] = M_CNT + 4 * 30
S0STR = 1040
XSTR = 1680
QPAIRS = [(p, q) for p in range(13) for q in range(p, 13)]
S_IDX, S_TAB, S_WS, S_W1, S_B1, S_W2, S_OUT, S_DBG, S_BO, S_WC, S_WO = 4, 8, 12, 16, 20, 24, 28, 32, 36, 40, 44
S_G, S_R, S_WAVE, S_J = 70, 71, 83, 3
S_HDR = 48
S_EX = 60
S_K = 64
S_K1 = 4
S_KC = 76
S_T = 72
S_MASK = 80
S_C1 = 81
S_SB = 82
S_ST = 84
class P: pass
PAR = P()
PAR.chunks = [7, 7, 6, 6]
PAR.gsplit = 0
PAR.gsplit2 = 3
PAR.lnpos = 28
PAR.pload = 17
PAR.la = 12
PAR.urate = 5
PAR.xst = 2
PAR.l2pos = -1
PAR.nslot = 6
PAR.st = 'ad'
PAR.ld = 'sc1'
PAR.inv = 0
PAR.ttouch = 1
PAR.tset = [[S_TAB], [S_WS], [S_W1, S_B1, S_W2], [S_DBG, S_OUT, S_WO]]
PAR.encsh = 1
PAR.wp = 3
PAR.dp = 3
PAR.otouch = 0
PAR.drop = ('Q4', 6)
PAR.cp2 = 1
PAR.sp = 1
PAR.barpos = 2
PAR.nxl = 4
PAR.noa = 0
PAR.il = 2
PAR.fst = (0, 3, 6, 10, 13, 17, 22)
PAR.xi = 3
PAR.wbn = 3
PAR.wpf3 = 0
PAR.wa = 10
PAR.l3n = 2
PAR.wbpos = 3
PAR.wmod = ''
PAR.w2 = 1
PAR.l1rate = 16
PAR.sclq = 0
PAR.x0 = 0
PAR.qpos = 13
PAR.m16 = 0
PAR.encsel = None
PAR.gmin = 0
PAR.qaearly = 0
PAR.gmod = 'nt'
PAR.imod = 'nt'
PAR.pkpack = 0
PAR.w0lin = 0
PAR.l3rate = 18
PAR.qarr = 3
PAR.gearly = 11
PAR.ngelu = 16
PAR.nmf = 14
PAR.npk = 4
PAR.lslp = 4
PAR.zpad = 1
PAR.skew = 1
PAR.cstr = 4352
PAR.l3late = 1
PAR.xp = 3
PAR.wearly = 0
PAR.wpf2 = 0
PAR.ghi = 1
PAR.qchk = 8
PAR.cp = 1
PAR.enc = None
PAR.rate = 20
PAR.qrate = 24
PAR.clk = 0
PAR.hp = 0
PAR.nost = 0
PAR.wpf = 1
PAR.rot = 2
PAR.pf = 4
PAR.qlate = 0
PAR.slp = 8
PAR.de = 2
PAR.touch = 0
PAR.dbg = None
class G:
    def __init__(self, stamps=False):
        self.L = []; self.stamps = stamps; self.nst = 0; self.nl = 0; self.vmq = []; self.tail = []
    def e(self, s): self.L.append("    " + s)
    def lab(self, s): self.L.append(s + ":")
    def vm(self, s, tag): self.e(s); self.vmq.append(tag)
    def vmwait(self, *tags):
        idx = max(i for i, t in enumerate(self.vmq) if t in tags)
        n = sum(1 for t in self.vmq[idx + 1:] if not t.startswith("f"))
        self.e(f"s_waitcnt vmcnt({min(n, 63)})")
    def newlab(self, s): self.nl += 1; return f"L_{s}_{self.nl}"
    def stamp(self, name=None):
        if self.stamps and (name or "d") in PAR.st:
            assert self.nst < 8
            self.e(f"{'s_memtime' if PAR.clk else 's_memrealtime'} s[{S_ST+2*self.nst}:{S_ST+2*self.nst+1}]"); self.nst += 1
    def flush_stamps(self, vt, va):
        if not self.stamps: return
        self.e("s_waitcnt lgkmcnt(0)")
        self.e(f"s_lshl_b32 s{S_T}, s2, 3"); self.e(f"s_add_u32 s{S_T}, s{S_T}, s{S_WAVE}"); self.e(f"s_lshl_b32 s{S_T}, s{S_T}, 6")
        self.e(f"s_add_u32 s{S_T}, s{S_T}, {WS_STAMP}")
        self.e(f"v_mov_b32 v{va}, 0")
        if PAR.dbg is not None:
            lb = self.newlab("nd")
            self.e(f"s_cmp_lg_u32 s{S_T}, {WS_STAMP + PAR.dbg*64}"); self.e(f"s_cbranch_scc1 {lb}")
            for i in range(self.nst):
                self.e(f"s_sub_u32 s{S_T+1}, s{S_ST+2*i}, s{S_ST}")
                self.e(f"v_mov_b32 v{vt}, s{S_T+1}")
                self.e(f"buffer_store_dword v{vt}, v{va}, s[{S_DBG}:{S_DBG+3}], 0 offen offset:{64+4*i}")
            self.lab(lb)
        for i in range(self.nst):
            self.e(f"v_mov_b32 v{vt}, s{S_ST+2*i}")
            self.e(f"buffer_store_dword v{vt}, v{va}, s[{S_WS}:{S_WS+3}], s{S_T} offen offset:{4*i}")
        self.nst = 0
def vr(a, n): return f"v[{a}:{a+n-1}]"
def sr(a, n=4): return f"s[{a}:{a+n-1}]"
DPPALL = "row_mask:0xf bank_mask:0xf"

def prologue(g):
    e = g.e
    e("s_cmp_ge_u32 s2, 256")
    e("s_cbranch_scc1 L_end")
    g.stamp("a")
    e("s_load_dwordx16 s[48:63], s[0:1], 0")
    e("s_load_dwordx4 s[64:67], s[0:1], 64")
    e("s_load_dwordx2 s[68:69], s[0:1], 80")
    if PAR.pf:
        e(f"s_getpc_b64 s[{S_KC}:{S_KC+1}]")
        g.lab("L_pfbase")
        e(f"s_mov_b32 s{S_KC+2}, L_end - L_pfbase"); e(f"s_mov_b32 s{S_KC+3}, 0x00020000")
        e(f"s_lshr_b32 s{S_T}, s2, 3"); e(f"s_lshl_b32 s{S_T}, s{S_T}, 7")
        e("v_xor_b32 v1, 0x1c0, v0"); e("v_lshlrev_b32 v1, 12, v1")
        e(f"buffer_load_dword v255, v1, {sr(S_KC)}, s{S_T} offen")
    e("v_lshrrev_b32 v1, 6, v0")
    e("v_and_b32 v0, 63, v0")
    e(f"v_readfirstlane_b32 s{S_WAVE}, v1")
    e(f"s_and_b32 s{S_T}, s2, 7")
    e(f"s_lshr_b32 s{S_T+1}, s2, 3")
    e(f"s_lshr_b32 s{S_G}, s{S_T+1}, 4")
    e(f"s_lshl_b32 s{S_T}, s{S_T}, 1")
    e(f"s_add_u32 s{S_G}, s{S_G}, s{S_T}")
    e(f"s_and_b32 s{S_R}, s{S_T+1}, 15")
    e(f"s_mov_b32 s{S_MASK}, 0x7fff7fff")
    e("v_and_b32 v25, 31, v0"); e("v_lshlrev_b32 v25, 2, v25"); e(f"v_add_u32 v25, {M_CNT}, v25"); e("v_mov_b32 v2, 0")
    e("ds_write_b32 v25, v2")
    if PAR.barpos == 2: e("s_waitcnt lgkmcnt(0)"); e("s_barrier")
    e(f"s_cmp_ge_u32 s{S_WAVE}, 4")
    e("s_cbranch_scc1 L_helper")

SRDS = {S_IDX: (48, 4096*104), S_TAB: (50, 6400000), S_WC: (52, LB), S_WO: (54, 312), S_W1: (56, 832*1664), S_B1: (58, 1664), S_W2: (60, 1664),
        S_BO: (62, 2), S_OUT: (64, 8192), S_DBG: (66, 256), S_WS: (68, 1 << 28)}
def srd_const(g, lst):
    for srd in lst: g.e(f"s_mov_b32 s{srd+2}, {SRDS[srd][1]}"); g.e(f"s_mov_b32 s{srd+3}, 0x00020000")
def srd_base(g, lst):
    for srd in lst: g.e(f"s_mov_b64 s[{srd}:{srd+1}], s[{SRDS[srd][0]}:{SRDS[srd][0]+1}]")
ACC, ACC2, XR, UR, BR, AR, SC, LG, TM = 4, 68, 132, 188, 216, 228, 244, 248, 252
def X(k, p): return XR + 14 * k + p
def EV(k): return XR + 14 * k + 13
def U(k, t): return UR + 7 * k + t
def cin(g):
    e = g.e
    e("s_setprio 3")
    e(f"s_lshl_b32 s{S_T}, s{S_G}, 8"); e(f"s_lshl_b32 s{S_T+1}, s{S_R}, 4"); e(f"s_add_u32 s{S_T}, s{S_T}, s{S_T+1}")
    e(f"s_lshl_b32 s{S_T+1}, s{S_WAVE}, 2"); e(f"s_add_u32 s{S_SB}, s{S_T}, s{S_T+1}")
    e("v_lshrrev_b32 v1, 4, v0")
    e("v_bfe_u32 v2, v0, 2, 2")
    e("v_and_b32 v3, 3, v0")
    e("v_mul_u32_u24 v4, 104, v1")
    e("v_mad_u32_u24 v4, v2, 28, v4")
    I = 8
    CS = [S_IDX, S_WC, S_TAB, S_WS, S_OUT] + ([S_DBG] if PAR.dbg is not None or PAR.gmin else [])
    srd_const(g, CS[:1])
    e(f"s_mul_i32 s{S_T}, s{S_SB}, 104")
    g.stamp("i")
    e("s_waitcnt lgkmcnt(0)")
    g.stamp("i")
    srd_base(g, CS[:1])
    e(f"buffer_load_dwordx4 {vr(I,4)}, v4, {sr(S_IDX)}, s{S_T} offen {PAR.imod}")
    e(f"buffer_load_dwordx3 {vr(I+4,3)}, v4, {sr(S_IDX)}, s{S_T} offen offset:16 {PAR.imod}")
    if PAR.ttouch:
        e("v_lshlrev_b32 v15, 20, v0")
        for w, lst in enumerate(PAR.tset):
            if not lst: continue
            lb = g.newlab("tt")
            e(f"s_cmp_lg_u32 s{S_WAVE}, {w}"); e(f"s_cbranch_scc1 {lb}")
            for srd in lst:
                srd_const(g, [srd]); srd_base(g, [srd])
                if srd == S_WS: e(f"s_mov_b32 s{srd+2}, {WS_X + 64*106496}")
                e(f"buffer_load_ushort v19, v15, {sr(srd)}, 0 offen")
            g.lab(lb)
    e(f"s_setprio {PAR.sp}")
    e("s_branch L_cin2")
    g.lab("L_cin2")
    srd_base(g, CS[1:])
    e(f"s_load_dword s{S_BO}, s[62:63], 0")
    srd_const(g, CS[1:])
    e(f"s_mov_b32 s{S_WC+2}, {2*LB}"); e(f"s_mov_b32 s{S_J}, s{S_WAVE}")
    e("v_lshlrev_b32 v5, 4, v3")
    e("v_cmp_eq_u32 vcc, 3, v2")
    e(f"v_mov_b32 v6, {OOB}")
    e("v_cndmask_b32 v6, 0, v6, vcc")
    e("v_add_u32 v6, v6, v5")
    e("v_lshlrev_b32 v26, 4, v0"); e("v_cmp_lt_u32 vcc, 42, v0"); e(f"v_mov_b32 v27, {OOB}"); e("v_cndmask_b32 v26, v26, v27, vcc")
    e("v_lshlrev_b32 v29, 4, v0"); e(f"v_add_u32 v29, {BUFA + 28*1024}, v29")
    e(f"s_lshl_b32 s{S_T}, s{S_J}, 4"); e(f"s_add_u32 s{S_T}, s{S_T}, {BUFB}")
    e(f"v_mul_u32_u24 v28, {S0STR}, v0"); e(f"v_add_u32 v28, s{S_T}, v28"); e("v_cndmask_b32 v28, v28, v29, vcc")
    e(f"s_mul_i32 s{S_T+1}, s{S_WAVE}, {4*XSTR}"); e(f"s_add_u32 s{S_T+1}, s{S_T+1}, {D0}")
    e(f"v_mul_u32_u24 v7, {XSTR}, v1")
    e("v_mad_u32_u24 v16, v2, 7, 0")
    e("v_lshl_add_u32 v7, v16, 6, v7")
    e(f"v_add3_u32 v7, v7, v5, s{S_T+1}")
    e("v_cmp_eq_u32 vcc, 3, v2")
    e(f"v_lshl_add_u32 v18, v0, 4, 0"); e(f"v_add_u32 v18, {D0 + 16*XSTR + 256 - 320}, v18"); e("v_cndmask_b32 v18, v7, v18, vcc")
    e("v_lshrrev_b32 v16, 1, v1")
    e("v_xor_b32 v16, v16, v2")
    e("v_lshlrev_b32 v16, 6, v16")
    e("v_and_b32 v17, 1, v1")
    e("v_lshl_add_u32 v16, v17, 5, v16")
    e("v_lshl_add_u32 v16, v3, 3, v16")
    e(f"v_add_u32 v16, s{S_T+1}, v16")
    for k in range(4): e(f"v_mov_b32 v{LG+k}, 0")
    PA, PS, DR = 32, 40, 184
    if PAR.zpad:
        for i in range(4): e(f"v_mov_b32 v{PS+i}, 0")
        e(f"s_and_b32 s{S_T}, s{S_J}, 1"); e(f"s_mul_i32 s{S_T}, s{S_T}, 48"); e(f"s_lshr_b32 s{S_T+1}, s{S_J}, 1"); e(f"s_mul_i32 s{S_T+1}, s{S_T+1}, 480")
        e(f"s_add_u32 s{S_T}, s{S_T}, s{S_T+1}"); e(f"v_add_u32 v30, s{S_T}, v28")
        e(f"v_subrev_u32 v31, {BUFB - BUFA}, v30"); e("v_cmp_lt_u32 vcc, 22, v0"); e("v_cndmask_b32 v31, v31, v29, vcc")
        for i in range(3):
            e(f"ds_write_b128 v30, {vr(PS,4)} offset:{25*16 + 16*i}"); e(f"ds_write_b128 v31, {vr(PS,4)} offset:{25*16 + 16*i}")
    unpack_mat(g, PA, 20)
    e("s_setprio 1")
    L1R = 132
    if not PAR.barpos: e("s_barrier")
    g.stamp("i")
    e(f"s_mul_i32 s{S_T}, s{S_J}, 1352")
    for i in range(13):
        if i < 12:
            t = i >> 1
            if i & 1 == 0: e(f"s_add_u32 s{S_T+1}, s{S_T}, {LB + (13*(t&1) + 4*(t>>1))*1352}")
            e(f"buffer_load_dwordx4 {vr(L1R+4*i,4)}, v26, {sr(S_WC)}, s{S_T+1} offen offset:{676*(i&1)}")
        else:
            e(f"s_lshr_b32 s{S_T+1}, s{S_J}, 1"); e(f"s_mul_i32 s{S_T+1}, s{S_T+1}, {13*1352}"); e(f"s_and_b32 s{S_T+2}, s{S_J}, 1"); e(f"s_mul_i32 s{S_T+2}, s{S_T+2}, 676")
            e(f"s_add_u32 s{S_T+1}, s{S_T+1}, s{S_T+2}"); e(f"s_add_u32 s{S_T+1}, s{S_T+1}, {LB + 12*1352}")
            e(f"buffer_load_dwordx4 {vr(L1R+4*i,4)}, v26, {sr(S_WC)}, s{S_T+1} offen")
    e("s_setprio 3")
    g.stamp("i")
    e("s_waitcnt vmcnt(13)")
    g.stamp("i")
    GR, MR = 68, 96
    for t in range(7):
        e(f"v_lshl_add_u32 v{I+t}, v{I+t}, 6, v{5 if t < 5 else 6}")
        e(f"buffer_load_dwordx4 {vr(GR+4*t,4)}, v{I+t}, {sr(S_TAB)}, 0 offen {PAR.gmod}")
    g.stamp(); g.stamp("i")
    e(f"s_setprio {PAR.cp}")
    if PAR.barpos == 1: e("s_barrier")
    def carrive(c):
        e("v_mov_b32 v2, 1"); e("s_mov_b64 exec, 1"); e(f"ds_add_u32 v25, v2 offset:{CNT[c]-M_CNT}"); e("s_mov_b64 exec, -1")
    for i in range(13):
        e(f"s_waitcnt vmcnt({7 + 12 - i})")
        unpack(g, DR, PA, L1R, i)
        if i & 1 and i >= 3: tmax(g, DR, (i >> 1) - 1, 16, i == 3)
    e(f"s_and_b32 s{S_T}, s{S_J}, 1"); e(f"s_lshl_b32 s{S_T}, s{S_T}, 4")
    tmax(g, DR, 5, 16, False)
    for r in range(4): e(f"v_alignbit_b32 v{L1R+48+r}, v{L1R+48+r}, v{L1R+48+r}, s{S_T}")
    tmax(g, DR, 6, 8, False)
    put_max(g, M_L1)
    carrive("L1M")
    for i in range(8): e(f"v_and_b32 v{PS+i}, 0x800080, v{PA+i}")
    g.stamp("s")
    e(f"s_setprio {PAR.cp2}")
    lwait(g, "L1M", 4, 25, 2)
    get_max(g, M_L1)
    e(f"v_readfirstlane_b32 s{S_T}, v1")
    e(f"s_lshr_b32 s{S_T}, s{S_T}, 23"); e(f"s_min_u32 s{S_T}, s{S_T}, 249"); e(f"s_sub_u32 s{S_HDR+2}, s{S_T}, 124")
    e(f"s_sub_u32 s{S_T}, {127+124}, s{S_T}")
    for i in range(8): e(f"v_mul_u32_u24 v{PS+i}, s{S_T}, v{PS+i}")
    def l1out(i):
        d = DR + 16 * ((i >> 1) & 3) + 8 * (i & 1)
        for r in range(4):
            lo, hi = (d + 2 * r + 1, d + 2 * r) if (i & 1) else (d + 2 * r, d + 2 * r + 1)
            e(f"v_cvt_pk_f16_f32 v{L1R+4*i+r}, v{lo}, v{hi}")
        if i < 12:
            t = i >> 1; o = 16 * (8 * (t >> 1) + 4 * (t & 1)) + 512 * (i & 1)
        else:
            e(f"s_lshr_b32 s{S_T}, s{S_J}, 1"); e(f"s_lshl_b32 s{S_T}, s{S_T}, 5"); e(f"s_and_b32 s{S_T+1}, s{S_J}, 1"); e(f"s_mul_i32 s{S_T+1}, s{S_T+1}, 496")
            e(f"s_add_u32 s{S_T}, s{S_T}, s{S_T+1}"); e(f"v_add_u32 v28, s{S_T}, v28"); o = 24 * 16
        e(f"ds_write_b128 v28, {vr(L1R+4*i,4)} offset:{o}")
    for i in range(13):
        unpack(g, DR, PS, L1R, i)
        if i >= 4: l1out(i - 4)
    for i in range(9, 13): l1out(i)
    g.stamp("s")
    e(f"ds_read_b32 v3, v25 offset:{CNT['S0OK']-M_CNT}")
    e("v_lshlrev_b32 v1, 4, v0")
    for i in range(2): e(f"ds_read_b128 {vr(AR+4*i,4)}, v1 offset:{BUFA + i*S0STR}")
    e("s_waitcnt lgkmcnt(2)")
    DR = 132
    e("v_mov_b32 v2, 1")
    e(f"s_setprio {PAR.xp}")
    for t in range(7):
        e(f"s_waitcnt vmcnt({6 - t})")
        unpack(g, DR, PA, GR, t)
        e(f"ds_write_b128 v{7 if t < 5 else 18}, {vr(GR+4*t,4)} offset:{64*t}")
        if t in (3, 5): tmax(g, DR, (t >> 1) - 1, 16, t == 3, 20)
    e("s_mov_b64 exec, 1"); e(f"ds_add_u32 v25, v2 offset:{CNT['RAW']-M_CNT}"); e("s_mov_b64 exec, -1")
    g.stamp(); g.stamp("s")
    tmax(g, DR, 2, 16, False, 20); tmax(g, DR, 3, 8, False, 20)
    for sh in (8, 4, 2, 1):
        e(f"v_max_u32_dpp v20, v20, v20 row_ror:{sh} {DPPALL}")
    e("v_lshrrev_b32 v20, 23, v20"); e("v_max_u32 v20, 4, v20")
    e(f"v_sub_u32 v22, {127+130}, v20"); e("v_lshlrev_b32 v22, 23, v22")
    for t in range(7):
        d = DR + 8 * t
        for i in range(8): e(f"v_mul_f32 v{d+i}, v{d+i}, v22")
        for i in range(4): e(f"v_cvt_pk_f16_f32 v{MR+4*t+i}, v{d+2*i}, v{d+2*i+1}")
        e(f"ds_write_b128 v{7 if t < 5 else 18}, {vr(MR+4*t,4)} offset:{D1 - D0 + 64*t}")
    for k in range(4):
        for t in range(7):
            e(f"ds_read_b64_tr_b16 {vr(X(k,2*t),2)}, v16 offset:{D1 - D0 + k*XSTR+t*256}")
    for k in range(4): e(f"v_readlane_b32 s{S_EX+k}, v20, {16*k}")
    HW = lambda l: S_HDR + 2 * l
    HD = lambda l: S_HDR + 2 * l + 1
    HQ, HL = S_HDR + 8, S_HDR + 9
    e("s_setprio 1")
    e(f"v_readfirstlane_b32 s{S_T}, v3"); e(f"s_cmp_ge_u32 s{S_T}, 4"); e("s_cbranch_scc1 L_s0ok")
    lwait(g, "S0OK", 4, 25, 2)
    for i in range(2): e(f"ds_read_b128 {vr(AR+4*i,4)}, v1 offset:{BUFA + i*S0STR}")
    g.lab("L_s0ok")
    e("s_waitcnt lgkmcnt(14)")
    g.stamp(); g.stamp("s")

    ready = set()
    def quad_prod(k, rho):
        p, q = QPAIRS[rho]
        return lambda d: f"v_pk_mul_f16 v{d}, v{X(k,p)}, v{X(k,q)} op_sel_hi:[0,1]"
    def gen_prod(l):
        def f(k, rho):
            r, p = divmod(rho, 13)
            def mk(d):
                if r == 13: return f"v_mov_b32 v{d}, v{U(k,p)}" if l == 2 else f"v_mov_b32 v{d}, 0"
                assert ('u', l, k, r) in ready, (l, k, r)
                if r & 1: return f"v_pk_mul_f16 v{d}, v{U(k,r>>1)}, v{X(k,p)} op_sel:[1,0] op_sel_hi:[1,1]"
                return f"v_pk_mul_f16 v{d}, v{U(k,r>>1)}, v{X(k,p)} op_sel_hi:[0,1]"
            return mk
        return f
    def lin_prod(k, t):
        b = 2 * t + 1 if 2 * t + 1 < 13 else 2 * t
        return lambda d: f"v_pack_b32_f16 v{d}, v{X(k,2*t)}, v{X(k,b)}"
    S_CL = S_C1
    e(f"s_mov_b32 s{S_CL}, {115 << 23}"); e(f"s_mov_b32 s{S_MASK}, 145"); e(f"s_lshl_b32 s{S_BO}, s{S_BO}, 16")
    def cvt1(acc, k, t): return f"v_cvt_pk_f16_f32 v{U(k,t)}, v{acc+16*k+2*t}, " + (f"v{acc+16*k+2*t+1}" if t < 6 else "0")
    def scl1(l, k, t): return [(f"v_pk_mul_f16 v{U(k,t)}, v{U(k,t)}, v{SC+k} op_sel_hi:[1,0]", ('u', l + 1, k, 2 * t)), (None, ('u', l + 1, k, 2 * t + 1))]
    def head(acc, l, k):
        a = acc + 16 * k; ef = EV(k) if l == 0 else TM + k
        return [f"v_max3_f32 v{SC+k}, |v{a}|, |v{a+1}|, |v{a+2}|", f"v_max3_f32 v{TM+k}, |v{a+3}|, |v{a+4}|, |v{a+5}|",
                f"v_max3_f32 v{SC+k}, v{SC+k}, |v{a+6}|, |v{a+7}|", f"v_max3_f32 v{TM+k}, v{TM+k}, |v{a+8}|, |v{a+9}|",
                f"v_max3_f32 v{SC+k}, v{SC+k}, |v{a+10}|, |v{a+11}|", f"v_max3_f32 v{SC+k}, v{SC+k}, v{TM+k}, |v{a+12}|",
                f"v_mov_b32 v{TM+k}, v{SC+k}", cvt1(acc, k, 0), cvt1(acc, k, 1),
                f"v_permlane32_swap_b32 v{SC+k}, v{TM+k}", f"v_max3_f32 v{SC+k}, v{SC+k}, v{TM+k}, s{S_CL}",
                f"v_lshrrev_b32 v{ef}, 23, v{SC+k}", f"v_sub_u32 v{SC+k}, s{S_MASK}, v{ef}", f"v_lshlrev_b32 v{SC+k}, 10, v{SC+k}"] + scl1(l, k, 0)
    def rest(acc, l):
        o = []
        for k in range(4): o += scl1(l, k, 1)
        for t in range(2, 7):
            o += [cvt1(acc, k, t) for k in range(4)]
            for k in range(4): o += scl1(l, k, t)
        return o
    def evup(l):
        return [(None, 'x', ('k', l))] + [f"v_add3_u32 v{EV(k)}, v{EV(k)}, v{TM+k}, s{S_K+k}" for k in range(4)] + [(None, ('ev', l))]
    state = dict(base=0, n=0)
    lq = []
    landed = set()
    def emit(x):
        if callable(x): return x() or 0
        if isinstance(x, tuple):
            if len(x) == 3: assert x[2] in ready, x
            ready.add(x[1]); x = x[0]
        if not x: return 0
        e(x)
        if x.startswith('ds_'): lq.append(['side', state['n']])
        return 2 if 'permlane' in x else 1
    GATE = 'GATE'
    import re
    def nbytes(x):
        if callable(x): return 0 if x.__name__ == '<lambda>' else 8
        if isinstance(x, tuple): x = x[0]
        if not x or x == GATE: return 0
        op = x.split()[0]
        lit = any(abs(int(t, 0)) > 64 for t in re.findall(r'(?<![\w\[:])(-?(?:0x[0-9a-f]+|\d+))(?![\w\]:.])', x.split(None, 1)[1]))
        short = op.startswith('s_') or op in ('v_mov_b32', 'v_mul_f32', 'v_add_f32', 'v_add_u32', 'v_sub_u32', 'v_lshrrev_b32', 'v_lshlrev_b32', 'v_and_b32',
                                              'v_permlane32_swap_b32', 'v_readfirstlane_b32', 'v_cmp_lt_u32', 'v_cndmask_b32', 'v_max_f32', 'v_fmac_f32')
        return 4 if short and not lit else 8
    jobs = []; frags = []; pos = {}
    def phase(name, nprod, prod, acc, base, stride=1024, ok=None, needs=None, skew0=False, skew1=False, extra=None):
        ns = (nprod + 3) // 4
        fr = [dict(lds=base + stride * s, ok=ok if s == 0 else None) for s in range(ns)]
        frags.extend(fr)
        order = [(s, k) for s in range(ns) for k in range(4)]
        if skew0: order[:8] = [(s, k) for k in range(4) for s in (0, 1)]
        if skew1: order[-8:] = [(s, k) for k in range(4) for s in (ns - 2, ns - 1)]
        for i, (s, k) in enumerate(order):
            if i % 4 == 0: pos[(name, i // 4)] = len(jobs)
            jobs.append(dict(acc=acc + 16 * k, fr=fr[s], zero=(s == 0), needs=needs if s == 0 else None, last=(name, k) if s == ns - 1 else None,
                             prods=[prod(k, rho) for rho in range(4 * s, min(4 * s + 4, nprod))], req=('u', int(name[1]), k, 0) if name[0] == 'L' and s == 0 else None))
            if extra and i % 4 == 3 and i // 4 in extra: jobs.extend(extra[i // 4])
    LT, LA = UR, UR + 16
    LP = [3, 8, 13, 18]
    LN = {LP[k]: [dict(acc=LT, a=LA + 4 * i, zero=(i == 0), needs=('lin', k - 1), last=('LN', k) if i else None, req=None,
                       prods=[lin_prod(k, t) for t in range(4 * i, min(4 * i + 4, 7))]) for i in range(2)] for k in range(4)}
    sk = PAR.skew
    phase("S0", 91, quad_prod, ACC, BUFA, stride=S0STR, skew1=sk)
    phase("L1", 172, gen_prod(1), ACC2, BUFB, stride=S0STR, ok="RAW", skew0=sk, skew1=sk)
    phase("L2", 176, gen_prod(2), ACC, BUFA, ok="L2OK", needs=('free', 0), skew0=sk, skew1=sk)
    phase("L3", 169, gen_prod(3), ACC2, BUFB, ok="L3OK", needs=('free', 1), skew0=sk)
    phase("Q4", 91, quad_prod, ACC, QB, ok="QOK", needs=('free', 2), skew1=sk, extra=LN)
    for i, f in enumerate(frags): f['id'] = i; f['a'] = AR + 4 * (i % 4)
    for n, j in enumerate(jobs):
        if 'fr' in j: j['fr'].setdefault('first', n); j['fr']['lastj'] = n
    def hdr(addr, sa, sb=None):
        return [f"v_mov_b32 v3, {addr}", "ds_read_b64 v[2:3], v3", GATE, f"v_readfirstlane_b32 s{sa}, v2"] + ([f"v_readfirstlane_b32 s{sb}, v3"] if sb else [])
    def arrive(c, after=None):
        def f():
            if after is not None: assert 'issued' in after
            e(f"v_add_u32 v3, {(CNT[c] - state['base']) & 0xffffffff}, v1"); return 1
        return ["v_mov_b32 v2, 1", f, "ds_add_u32 v3, v2"]
    def check(c):
        def f():
            slow = g.newlab("cs"); back = g.newlab("cb"); top = g.newlab("ct")
            if c != "RAW": g.stamp("w")
            e(f"s_cmp_lt_u32 s{S_T+2}, 4"); e(f"s_cbranch_scc1 {slow}")
            g.lab(back)
            if c != "RAW": g.stamp("w")
            g.tail += [slow + ":", f"    s_mov_b32 s{S_T+1}, {SPIN*8}", top + ":", "    s_sleep 1", "    ds_read_b32 v2, v3", "    s_waitcnt lgkmcnt(0)",
                       f"    v_readfirstlane_b32 s{S_T+2}, v2", f"    s_cmp_ge_u32 s{S_T+2}, 4", f"    s_cbranch_scc1 {back}",
                       f"    s_sub_u32 s{S_T+1}, s{S_T+1}, 1", f"    s_cbranch_scc0 {top}", f"    s_branch {back}"]
            ready.add(c); return 2
        return [f"v_mov_b32 v3, {CNT[c]}", "ds_read_b32 v2, v3", GATE, f"v_readfirstlane_b32 s{S_T+2}, v2", f]
    def stp(n=None): return [lambda: g.stamp(n)]
    HOFF = 29 * 16
    PV, PA = 2, 3
    def pload():
        e(f"buffer_load_dword v{PV}, v{PA}, {sr(S_WS)}, s{S_T+3} offen sc1"); return 1
    kc1 = [f"s_add_u32 s{S_T}, s{HW(0)}, s{HW(1)}", f"s_add_u32 s{S_T}, s{S_T}, s{HD(2)}", f"s_sub_u32 s{S_T}, s{S_T}, 780"]
    kc1 += [f"s_lshl2_add_u32 s{S_K+k}, s{S_EX+k}, s{S_T}" for k in range(4)] + [(None, ('k', 1))]
    k1 = [f"s_sub_u32 s{S_T}, s{HD(1)}, s{HD(2)}", f"s_add_u32 s{S_T}, s{S_T}, 130"] + [f"s_sub_u32 s{S_K1+k}, s{S_T}, s{S_EX+k}" for k in range(4)] + [(None, 'k1')]
    kc2 = [(None, 'x', ('ev', 1)), f"s_sub_u32 s{S_T}, s{HW(2)}, s{HD(2)}", f"s_add_u32 s{S_T}, s{S_T}, s{HD(3)}", f"s_sub_u32 s{S_T}, s{S_T}, 260"]
    kc2 += [f"s_add_u32 s{S_K+k}, s{S_T}, s{S_EX+k}" for k in range(4)] + [(None, ('k', 2))]
    dots = [(None, 'x', 'k1')]
    for k in range(4): dots.append(f"v_ldexp_f32 v{ACC+16*k+15}, v{ACC+16*k+15}, v{EV(k)}")
    for k in range(4): dots.append(f"v_add_u32 v{ACC+16*k+13}, s{S_K1+k}, v{EV(k)}")
    for k in range(4): dots.append(f"v_ldexp_f32 v{ACC+16*k+14}, v{ACC+16*k+14}, v{ACC+16*k+13}")
    for k in range(4): dots.append(f"v_add_f32 v{LG+k}, v{ACC+16*k+14}, v{ACC+16*k+15}")
    kf = [(None, 'x', ('ev', 2)), f"s_sub_u32 s{S_T}, s{HW(3)}, s{HD(3)}", f"s_sub_u32 s{S_T}, s{S_T}, 130", f"s_add_u32 s{HL}, s{HL}, s{S_T}", f"s_add_u32 s{HQ}, s{HQ}, s{S_T}",
          f"s_sub_u32 s{HQ}, s{HQ}, 130", f"s_sub_u32 s{HD(0)}, s{HD(0)}, 260"]
    for k in range(4):
        kf += [f"s_add_u32 s{S_K1+k}, s{HL}, s{S_EX+k}", f"s_lshl1_add_u32 s{S_K+k}, s{S_EX+k}, s{HQ}", f"s_lshl1_add_u32 s{S_KC+k}, s{S_EX+k}, s{HD(0)}"]
    kf.append((None, 'kf'))
    pre = ["v_bfe_u32 v2, v0, 4, 1", "v_lshrrev_b32 v3, 5, v0", "v_lshl_add_u32 v2, v2, 1, v3", "v_and_b32 v3, 15, v0", f"v_cmp_lt_u32 vcc, {NR-1}, v3",
           "v_lshlrev_b32 v3, 10, v3", "v_lshl_add_u32 v3, v2, 2, v3", f"v_mov_b32 v2, {OOB}", "v_cndmask_b32 v3, v3, v2, vcc",
           f"s_mul_i32 s{S_T+3}, s{S_G}, {NR*1024}", f"s_and_b32 s{S_T}, s{S_SB}, 255", f"s_lshl_b32 s{S_T}, s{S_T}, 2",
           f"s_add_u32 s{S_T+3}, s{S_T+3}, s{S_T}", f"s_add_u32 s{S_T+3}, s{S_T+3}, {WS_PART}"]
    def lread():
        for i in range(2): emit(f"ds_read_b128 {vr(LA+4*i,4)}, v1 offset:{QB + (24 + i)*1024 - state['base']}")
        return 2
    BO = ACC2 + 14
    d3 = [f"v_ldexp_f32 v{ACC2+16*k+15}, v{ACC2+16*k+15}, v{EV(k)}" for k in range(4)] + [f"v_add_f32 v{LG+k}, v{LG+k}, v{ACC2+16*k+15}" for k in range(4)]
    if PAR.otouch: d3 += [f"s_lshl_b32 s{S_J}, s{S_SB}, 1", f"buffer_load_ushort v{BO+16}, v{BO-1}, {sr(S_OUT)}, s{S_J} offen"]
    fill = {("L1", 2): rest(ACC, 0) + [(None, ('free', 0))], ("L2", 2): rest(ACC2, 1) + [(None, ('free', 1))], ("L2", 16): evup(1),
            ("L3", 2): rest(ACC, 2) + dots + [(None, ('free', 2))] + evup(2), ("Q4", 1): d3}
    for k in range(4):
        o = [f"v_mul_f32 v{SC+k}, v{LT}, v{ACC2+16*k}"] + [f"v_fmac_f32 v{SC+k}, v{LT+r}, v{ACC2+16*k+r}" for r in range(1, 13)] + [(None, ('lin', k)), (None, 'x', 'kf')]
        o += [f"v_add_u32 v{TM+k}, s{S_K1+k}, v{EV(k)}", f"v_ldexp_f32 v{SC+k}, v{SC+k}, v{TM+k}", f"v_add_u32 v{TM+k}, s{S_K+k}, v{EV(k)}", f"v_add_f32 v{LG+k}, v{LG+k}, v{SC+k}", (None, ('lind', k))]
        fill[("Q4", LP[k] + 2)] = o
    def final(k):
        return ([(None, 'x', ('lind', k)), f"v_mul_f32 v{SC+k}, v{ACC+16*k}, v{ACC2+16*k}", f"v_ldexp_f32 v{ACC+16*k+15}, v{ACC+16*k+15}, s{S_KC+k}"]
                + [f"v_fmac_f32 v{SC+k}, v{ACC+16*k+r}, v{ACC2+16*k+r}" for r in range(1, 13)]
                + [f"v_add_f32 v{LG+k}, v{LG+k}, v{ACC+16*k+15}", f"v_ldexp_f32 v{SC+k}, v{SC+k}, v{TM+k}", f"v_add_f32 v{LG+k}, v{LG+k}, v{SC+k}"])
    urgent = {}
    for k in range(4):
        urgent[("S0", k)] = head(ACC, 0, k); urgent[("L1", k)] = head(ACC2, 1, k); urgent[("L2", k)] = head(ACC, 2, k); urgent[("Q4", k)] = final(k)
    side = {("S0", 0): arrive("RB"), ("S0", 2): hdr(BUFA + 23 * S0STR + 512, HW(0)), ("S0", 14): check("RAW"), ("S0", 21): arrive("AFREE", frags[22]),
            ("S0", 8): ["s_setprio 2"], PAR.drop: ["s_setprio 0"],
            ("L1", 0): stp(), ("L1", 35): check("L2OK"), ("L1", 41): arrive("BFREE", frags[65]),
            ("L2", 0): stp(), ("L2", 4): hdr(BUFA + HOFF, HW(2), HD(2)) + kc1 + hdr(BUFA + HOFF + 8, HD(1)) + k1, ("L2", 36): check("L3OK"),
            ("L3", 12): hdr(BUFB + HOFF, HW(3), HD(3)) + kc2,
            ("L3", 43 - PAR.qchk): check("QOK") + hdr(QB + 23 * 1024, HQ, HL) + hdr(QB + 23 * 1024 + 8, HD(0)),
            ("Q4", 0): [lread, GATE, (None, ('lin', -1))] + kf, ("Q4", 9): pre[:7], ("Q4", 14): pre[7:], ("Q4", PAR.pload): [pload]}
    rates = {("S0", 0): PAR.rate, ("L1", 0): PAR.l1rate, ("L2", 0): 32, ("L3", 0): PAR.l3rate, ("Q4", 0): PAR.qrate}
    fill = {pos[k]: v for k, v in fill.items()}; side = {pos[k]: v for k, v in side.items()}; rates = {pos[k]: v for k, v in rates.items()}
    frags[0]['issued'] = frags[1]['issued'] = True
    nfr = 2; fq = []; sq = []; uq = []; credit = 0; gated = False
    def prods(n):
        job = jobs[n]; job['b'] = BR + 4 * (n % 3)
        while job['req'] and job['req'] not in ready: emit(uq.pop(0)[1])
        return [p(job['b'] + i) for i, p in enumerate(job['prods'])]
    for n in range(2):
        for x in prods(n): e(x)
    e("s_waitcnt lgkmcnt(0)"); landed |= {0, 1}
    for n, job in enumerate(jobs):
        state['n'] = n
        fq += fill.get(n, []); sq += side.get(n, []); rate = rates.get(n, rate if n else None)
        budget = 6
        if 'fr' in job and job['fr']['id'] not in landed:
            idx = max(i for i, (t, at) in enumerate(lq) if t == job['fr']['id'] or at <= n - 3)
            e(f"s_waitcnt lgkmcnt({len(lq) - 1 - idx})")
            landed |= {t for t, at in lq[:idx + 1]}; del lq[:idx + 1]
        if job['needs']: assert job['needs'] in ready, job['needs']
        c = "0" if job['zero'] else vr(job['acc'], 16)
        e(f"v_mfma_f32_32x32x16_f16 {vr(job['acc'],16)}, {vr(job['a'] if 'a' in job else job['fr']['a'],4)}, {vr(job['b'],4)}, {c}")
        if job['last'] in urgent: uq += [(n + 2, x) for x in urgent[job['last']]]
        if nfr < len(frags) and frags[nfr]['first'] - n <= PAR.la and (nfr < 4 or frags[nfr - 4]['lastj'] < n):
            f = frags[nfr]; nfr += 1; f['issued'] = True
            if f['ok']: assert f['ok'] in ready, f['ok']
            r = f['lds'] - state['base']
            if r < 0 or r > 65535:
                e(f"v_add_u32 v1, {r & 0xffffffff}, v1"); state['base'] = f['lds']; r = 0; budget -= 1
            e(f"ds_read_b128 {vr(f['a'],4)}, v1 offset:{r}"); lq.append([f['id'], n]); budget -= 1
        u = PAR.urate
        while uq and uq[0][0] <= n and u > 0: c = emit(uq.pop(0)[1]); u -= c; budget -= c
        if n + 2 < len(jobs):
            ps = prods(n + 2)
            for x in ps: e(x)
            budget -= len(ps)
            credit += sum(8 - nbytes(p) for p in ps) + 8 * (4 - len(ps))
        credit = min(credit + rate / 4, 16)
        while sq:
            if sq[0] == GATE:
                if any(t == 'side' for t, at in lq): break
                sq.pop(0); continue
            if not ((budget > 0 and credit >= nbytes(sq[0])) or nbytes(sq[0]) == 0): break
            x = sq.pop(0); budget -= emit(x); credit -= nbytes(x)
        while fq and ((budget > 0 and credit >= nbytes(fq[0])) or nbytes(fq[0]) == 0):
            x = fq.pop(0); budget -= emit(x); credit -= nbytes(x)
    assert not sq and not fq, (sq, fq)
    g.stamp()
    for at, x in uq: emit(x)
    e(f"v_permlane32_swap_b32 v{LG}, v{LG+1}"); e(f"v_permlane32_swap_b32 v{LG+2}, v{LG+3}")
    e(f"v_add_f32 v{LG}, v{LG}, v{LG+1}"); e(f"v_add_f32 v{LG+2}, v{LG+2}, v{LG+3}")
    e(f"v_permlane16_swap_b32 v{LG}, v{LG+2}")
    e(f"v_add_f32 v{LG}, v{LG}, v{LG+2}")
    e(f"s_mov_b32 s{S_T}, {SPIN}")
    g.lab("L_pcheck")
    e("s_waitcnt vmcnt(0)")
    e(f"v_cmp_eq_u32 vcc, -1, v{PV}")
    e("s_nop 1")
    e("s_cbranch_vccz L_pok")
    e("s_sleep 4")
    pload()
    e(f"s_sub_u32 s{S_T}, s{S_T}, 1")
    e("s_cbranch_scc0 L_pcheck")
    e("s_waitcnt vmcnt(0)")
    g.lab("L_pok")
    e(f"v_add_f32 v{LG}, v{LG}, v{PV}")
    for sh in (8, 4, 2, 1):
        e(f"v_add_f32_dpp v{LG}, v{LG}, v{LG} row_ror:{sh} {DPPALL}")
    e(f"v_add_f32 v{LG}, s{S_BO}, v{LG}")
    e(f"v_cvt_pk_bf16_f32 v{LG}, v{LG}, v{LG}")
    e(f"v_lshrrev_b32 v{PA}, 1, v{PA}")
    e(f"v_cmp_lt_u32 vcc, 7, v{PA}")
    e(f"v_mov_b32 v2, {OOB}")
    e(f"v_cndmask_b32 v{PA}, v{PA}, v2, vcc")
    e(f"s_lshl_b32 s{S_T}, s{S_SB}, 1")
    e(f"buffer_store_short v{LG}, v{PA}, {sr(S_OUT)}, s{S_T} offen")
    g.stamp(); g.stamp("e")
    if PAR.enc is not None:
        e("s_waitcnt lgkmcnt(0)")
        if PAR.gmin:
            e(f"s_not_b32 s{S_T}, s{S_ST}"); e(f"v_mov_b32 v4, s{S_T}"); e("v_mov_b32 v5, 0"); e("s_mov_b64 exec, 1")
            e(f"buffer_atomic_umax v4, v5, {sr(S_DBG)}, 0 offen offset:192 sc1"); e("s_waitcnt vmcnt(0)")
            g.lab("L_enc0")
            e(f"s_memrealtime s[{S_T+2}:{S_T+3}]"); e("s_waitcnt lgkmcnt(0)")
            e(f"s_sub_u32 s{S_T+2}, s{S_T+2}, s{S_ST}"); e(f"s_cmp_lt_u32 s{S_T+2}, 5000"); e("s_cbranch_scc1 L_enc0")
            e(f"buffer_load_dword v4, v5, {sr(S_DBG)}, 0 offen offset:192 sc1"); e("s_waitcnt vmcnt(0)"); e("s_mov_b64 exec, -1")
            if PAR.encsel: e(f"s_mov_b32 s{S_ST+2*PAR.enc}, s{S_ST}")
            e(f"v_readfirstlane_b32 s{S_ST}, v4"); e(f"s_not_b32 s{S_ST}, s{S_ST}")
        e(f"s_sub_u32 s{S_T}, s{S_ST+2*PAR.enc}, s{S_ST}"); e(f"s_lshl_b32 s{S_T}, s{S_T}, {PAR.encsh}");
        if PAR.encsel:
            e(f"s_lshl_b32 s{S_T}, s{S_T}, 2"); e(f"s_and_b32 s{S_T+1}, s2, {PAR.encsel[0]}"); e(f"s_cmp_eq_u32 s{S_T+1}, {PAR.encsel[1]}")
        else: e(f"s_cmp_lt_u32 s{S_R}, {NR}")
        e(f"s_cselect_b32 s{S_T}, s{S_T}, 0"); e(f"s_add_u32 s{S_T}, s{S_T}, 6000")
        g.lab("L_enc")
        e(f"s_memrealtime s[{S_T+2}:{S_T+3}]"); e("s_waitcnt lgkmcnt(0)")
        e(f"s_sub_u32 s{S_T+2}, s{S_T+2}, s{S_ST}"); e(f"s_cmp_lt_u32 s{S_T+2}, s{S_T}"); e("s_cbranch_scc1 L_enc")
    g.flush_stamps(4, 5)
    e("s_endpgm")

HACC, HX, HW_ = 4, 68, 208
V_TR0, V_TR1, V_DMA, V_WSRC, V_H16, V_L0, V_HROW, V_CNT = 248, 249, 250, 251, 252, 253, 254, 255
ID, QA, QSH, QS, W0R, PK = 4, 12, 19, 20, 180, 236
L1R, BT = 180, 60
S_WP, S_L, S_FR, S_E0, S_E1, S_E2, S_PO, S_CX = 48, 49, 50, 51, 52, 53, 54, 55
S_LC = 56
S_E3, S_XB = 60, 61
def dma_img(g, name, nfr, lds, first=0, part=None):
    e = g.e; per = nfr // 4
    va = V_DMA
    if name == "Q4":
        va = 1
        e("v_and_b32 v1, 31, v0"); e("v_subrev_u32 v1, 29, v1"); e("v_cmp_gt_u32 vcc, 2, v1"); e(f"v_mov_b32 v1, {OOB}"); e(f"v_cndmask_b32 v1, v{V_DMA}, v1, vcc")
    e(f"s_mul_i32 s{S_T}, s{S_J}, {per*1024}")
    i0, i1 = part or (0, per)
    for i in range(i0, min(i1, per)):
        if (i - i0) % 4 == 0:
            e(f"s_add_u32 s{S_T+1}, s{S_T}, {IMG[name] + (first + i)*1024}")
            e(f"s_add_u32 m0, s{S_T}, {lds + i*1024}")
        g.vm(f"buffer_load_dwordx4 v{va}, {sr(S_WS)}, s{S_T+1} offen offset:{((i - i0)%4)*1024} {PAR.ld} lds", name)
def poll(g, checks, pre=None):
    e = g.e
    done = g.newlab("pd"); top = g.newlab("pt"); slp = g.newlab("ps"); tst = g.newlab("pc")
    regs = pre or [2 + i for i in range(len(checks))]
    e(f"s_mov_b32 s{S_T}, {SPIN}")
    if pre: e(f"s_branch {tst}")
    g.lab(top)
    for r, (srd, so, o, n) in zip(regs, checks):
        e(f"buffer_load_dword v{r}, v{V_L0}, {sr(srd)}, {so} offen offset:{o} sc1")
    e("s_waitcnt vmcnt(0)")
    g.lab(tst)
    for r, (srd, so, o, n) in zip(regs, checks):
        e(f"v_readfirstlane_b32 s{S_T+1}, v{r}")
        e(f"s_cmp_lt_u32 s{S_T+1}, {n}")
        e(f"s_cbranch_scc1 {slp}")
    g.lab(done)
    g.tail += [slp + ":", f"    s_sleep {PAR.slp}", f"    s_sub_u32 s{S_T}, s{S_T}, 1", f"    s_cbranch_scc0 {top}", f"    s_branch {done}"]
def poll1(g, checks, flag, pre=None):
    lb = g.newlab("p1")
    g.e(f"s_cmp_lg_u32 s{S_J}, 0"); g.e(f"s_cbranch_scc1 {lb}")
    poll(g, checks, pre)
    arrive(g, flag)
    g.lab(lb)
    lwait(g, flag, 1)
def presample(g, checks, regs, tag):
    for r, (srd, so, o, n) in zip(regs, checks):
        g.vm(f"buffer_load_dword v{r}, v{V_L0}, {sr(srd)}, {so} offen offset:{o} sc1", tag)
def arrive(g, *cs):
    e = g.e
    e("v_mov_b32 v1, 1"); e("s_mov_b64 exec, 1")
    for c in cs: e(f"ds_add_u32 v{V_CNT}, v1 offset:{CNT[c]-M_CNT}")
    e("s_mov_b64 exec, -1")
def unpack_mat(g, PA, t):
    e = g.e
    e(f"v_and_b32 v{t}, 1, v0"); e(f"v_lshlrev_b32 v{t}, 4, v{t}"); e(f"v_mov_b32 v{t+1}, 0x3f80"); e(f"v_lshlrev_b32 v{t+1}, v{t}, v{t+1}")
    e(f"v_lshrrev_b32 v{t+2}, 3, v0"); e(f"v_xor_b32 v{t+2}, v{t+2}, v0"); e(f"v_and_b32 v{t+2}, 4, v{t+2}")
    e(f"v_bfe_u32 v{t}, v0, 3, 2"); e(f"v_bfe_u32 v{t+3}, v0, 1, 1"); e(f"v_lshl_add_u32 v{t}, v{t}, 1, v{t+3}"); e(f"v_lshl_add_u32 v{t}, v{t+2}, 3, v{t}")
    for i in range(8):
        e(f"v_cmp_eq_u32 vcc, {i}, v{t}"); e(f"v_cndmask_b32 v{PA+i}, 0, v{t+1}, vcc")
def unpack(g, DR, pa, src, i):
    d = DR + 16 * ((i >> 1) & 3)
    g.e(f"v_mfma_f32_32x32x16_bf16 {vr(d,16)}, {vr(pa+4*(i&1),4)}, {vr(src+4*i,4)}, {vr(d,16) if i & 1 else '0'}")
def tmax(g, DR, tile, n, first, mv=1):
    d = DR + 16 * (tile & 3)
    for q in range(n // 2):
        if first and q == 0: g.e(f"v_max_f32 v{mv}, |v{d}|, |v{d+1}|")
        else: g.e(f"v_max3_f32 v{mv}, v{mv}, |v{d+2*q}|, |v{d+2*q+1}|")
def lwait(g, c, n=4, va=None, vd=1):
    e = g.e; top = g.newlab("lw"); done = g.newlab("ld")
    e(f"s_mov_b32 s{S_T}, {SPIN*8}")
    g.lab(top)
    e(f"ds_read_b32 v{vd}, v{va or V_CNT} offset:{CNT[c]-M_CNT}"); e("s_waitcnt lgkmcnt(0)")
    e(f"v_readfirstlane_b32 s{S_T+1}, v{vd}"); e(f"s_cmp_ge_u32 s{S_T+1}, {n}"); e(f"s_cbranch_scc1 {done}")
    e(f"s_sleep {PAR.lslp if c in ('FX', 'F2', 'F3', 'FQ', 'AFREE', 'BFREE', 'XST') else 1}"); e(f"s_sub_u32 s{S_T}, s{S_T}, 1"); e(f"s_cbranch_scc0 {top}")
    g.lab(done)
def rowmax(g, v, op="v_max_u32_dpp"):
    for sh in (8, 4, 2, 1): g.e(f"{op} v{v}, v{v}, v{v} row_ror:{sh} {DPPALL}")
def wavemax_exp(g, v, sdst):
    e = g.e
    rowmax(g, v)
    e(f"v_readlane_b32 s{sdst}, v{v}, 0"); e(f"v_readlane_b32 s{S_T}, v{v}, 16"); e(f"s_max_u32 s{sdst}, s{sdst}, s{S_T}")
    e(f"v_readlane_b32 s{S_T}, v{v}, 32"); e(f"s_max_u32 s{sdst}, s{sdst}, s{S_T}")
    e(f"v_readlane_b32 s{S_T}, v{v}, 48"); e(f"s_max_u32 s{sdst}, s{sdst}, s{S_T}")
    e(f"s_lshr_b32 s{sdst}, s{sdst}, 23"); e(f"s_sub_u32 s{sdst}, s{sdst}, 126")
def put_max(g, slot):
    e = g.e
    rowmax(g, 1)
    e("v_lshrrev_b32 v2, 4, v0"); e(f"s_lshl_b32 s{S_T}, s{S_J}, 4"); e(f"s_add_u32 s{S_T}, s{S_T}, {slot}")
    e(f"v_lshl_add_u32 v2, v2, 2, s{S_T}")
    e("ds_write_b32 v2, v1")
def get_max(g, slot):
    e = g.e
    e("v_and_b32 v2, 15, v0"); e("v_lshlrev_b32 v2, 2, v2"); e(f"v_add_u32 v2, {slot}, v2")
    e("ds_read_b32 v1, v2"); e("s_waitcnt lgkmcnt(0)")
    rowmax(g, 1)
def pkmax(g, regs):
    e = g.e
    e(f"v_pk_max_u16 v1, v{regs[0]}, v{regs[1]}"); e(f"v_pk_max_u16 v3, v{regs[2]}, v{regs[3]}")
    for i, r in enumerate(regs[4:]): e(f"v_pk_max_u16 v{1 + 2*(i&1)}, v{1 + 2*(i&1)}, v{r}")
    e("v_pk_max_u16 v1, v1, v3"); e("v_alignbit_b32 v3, v1, v1, 16"); e("v_pk_max_u16 v1, v1, v3")
def pack_round(g, acc, off, pk=True):
    e = g.e
    if PAR.pkpack and pk:
        for t in range(7):
            q = QS + t; sel = q & 1
            e(f"v_pk_mul_f32 {vr(acc+2*t,2)}, {vr(acc+2*t,2)}, {vr(q - sel,2)} op_sel:[0,{sel}] op_sel_hi:[1,{sel}]")
    else:
        for t in range(14): e(f"v_mul_f32 v{acc+t}, v{acc+t}, v{QS+(t>>1)}")
    for t in range(7): e(f"v_cvt_pk_f16_f32 v{PK+t}, v{acc+2*t}, v{acc+2*t+1}")
    for t in range(7): e(f"v_alignbit_b32 v{PK+t}, v{PK+t}, v{PK+t}, v{QSH}")
    for t in range(7): e(f"ds_write_b32 v{QA+t}, v{PK+t} offset:{off}")
def s0_max(g, t):
    a = HX + 16 * t
    for i in range(7):
        if t == 0 and i == 0: g.e(f"v_max_f32 v1, |v{a}|, |v{a+1}|")
        else: g.e(f"v_max3_f32 v1, v1, |v{a+2*i}|, |v{a+2*i+1}|")
F0 = lambda c: sum(PAR.chunks[:c])
S_ROT = 64
S_SCN, S_XC = 68, 69
S_RA = 66
def call_if(g, cond, target):
    lb = g.newlab('nc')
    for c in cond: g.e(c[0]); g.e(f'{c[1]} {lb}')
    g.e(f's_call_b64 s[{S_RA}:{S_RA+1}], {target}')
    g.lab(lb)
RET = f's_setpc_b64 s[{S_RA}:{S_RA+1}]'
def EARLY(): return [(f's_cmp_lt_u32 s{S_WP}, {PAR.gearly}', 's_cbranch_scc0')]
def LATE(): return [(f's_cmp_lt_u32 s{S_WP}, {PAR.gearly}', 's_cbranch_scc1'), (f's_cmp_ge_u32 s{S_WP}, 31', 's_cbranch_scc1')]
def rotf(g, f, sd):
    g.e(f"s_add_u32 s{sd}, s{S_ROT}, {f}"); g.e(f"s_sub_u32 s{S_ROT+1}, s{sd}, 26"); g.e(f"s_min_u32 s{sd}, s{sd}, s{S_ROT+1}")
def colvec(g, srd, dst, tag):
    g.e("v_lshrrev_b32 v1, 4, v0"); g.e("v_lshlrev_b32 v1, 3, v1")
    for a in range(4):
        g.e(f"s_xor_b32 s{S_T}, s{S_XC}, {32*a}"); g.e(f"s_add_u32 s{S_T}, s{S_T}, s{S_SB}")
        g.vm(f"buffer_load_dwordx2 {vr(dst+2*a,2)}, v1, {sr(srd)}, s{S_T} offen", tag)
def dma_w(g, f0, f1, tag):
    e = g.e
    e(f"s_lshl_b32 s{S_T}, s{S_J}, 10")
    for f in range(f0, f1):
        e(f"s_add_u32 m0, s{S_T}, {D0 + (f % 16)*4096}")
        rotf(g, f, S_T + 1); e(f"s_mul_i32 s{S_T+1}, s{S_T+1}, 53248")
        g.vm(f"buffer_load_dwordx4 v{V_WSRC}, {sr(S_W1)}, s{S_T+1} offen {PAR.wmod} lds", tag)
CHK_X = lambda: (S_WS, f"s{S_CX}", C_XR, 1)
def helper_common(g):
    e = g.e
    e("s_setprio 2")
    e(f"s_sub_u32 s{S_J}, s{S_WAVE}, 4")
    e("v_and_b32 v2, 31, v0"); e("v_lshrrev_b32 v3, 5, v0")
    e(f"v_lshlrev_b32 v{V_H16}, 4, v3")
    e("v_lshrrev_b32 v4, 3, v2"); e("v_and_b32 v6, 3, v2"); e("v_lshl_add_u32 v4, v4, 2, v6")
    e("v_bfe_u32 v6, v2, 2, 1"); e(f"v_mad_u32_u24 v{V_HROW}, v6, 13, v4")
    e("v_cmp_lt_u32 vcc, 12, v4"); e("v_mov_b32 v7, 0x100000"); e(f"v_cndmask_b32 v{V_HROW}, v{V_HROW}, v7, vcc")
    e("v_mul_u32_u24 v4, 676, v3"); e(f"s_movk_i32 s{S_T+1}, 1352"); e(f"v_mad_u32_u24 v243, v{V_HROW}, s{S_T+1}, v4")
    def qaset():
        e("v_lshrrev_b32 v27, 1, v2"); e("v_and_b32 v28, 1, v2"); e(f"v_lshlrev_b32 v{QSH}, 4, v28")
        e("v_sub_u32 v29, 25, v27"); e("v_mul_u32_u24 v29, v29, v27"); e("v_lshrrev_b32 v29, 1, v29")
        e(f"s_lshl_b32 s{S_T}, s{S_J}, 4")
        e(f"v_lshl_add_u32 v28, v28, 9, s{S_T}")
        e(f"v_lshl_add_u32 v30, v0, 2, s{S_T}"); e(f"v_add_u32 v30, {BUFA + 24*S0STR}, v30")
        e("v_mov_b32 v33, 0.5")
        for t in range(7):
            qb = 4 * (t >> 1) + (t & 1)
            e(f"v_lshl_add_u32 v31, v3, 1, {qb}")
            e("v_add_u32 v32, v29, v31")
            e(f"v_lshrrev_b32 v{QA+t}, 2, v32"); e(f"v_mul_u32_u24 v{QA+t}, {S0STR}, v{QA+t}")
            e("v_and_b32 v32, 3, v32"); e("v_lshl_add_u32 v32, v32, 2, v28"); e(f"v_add_u32 v{QA+t}, v{QA+t}, v32")
            e("v_cmp_lt_u32 vcc, v31, v27")
            if t == 6:
                e("v_cmp_lt_u32 s[72:73], 12, v31"); e("s_or_b64 vcc, vcc, s[72:73]")
            e(f"v_cndmask_b32 v{QA+t}, v{QA+t}, v30, vcc")
            e("v_cmp_eq_u32 vcc, v31, v27"); e(f"v_cndmask_b32 v{QS+t}, 1.0, v33, vcc")
        e("v_lshlrev_b32 v31, 3, v3"); e("v_sub_u32 v31, v2, v31")
        e("v_mov_b32 v32, 0x3f80"); e(f"v_lshlrev_b32 v32, v{QSH}, v32")
        e("v_lshrrev_b32 v31, 1, v31")
        for s in range(2):
            for i in range(4):
                e(f"v_cmp_eq_u32 vcc, {8*s+i}, v31"); e(f"v_cndmask_b32 v{ID+4*s+i}, 0, v32, vcc")
    if PAR.qaearly: qaset()
    HS = [S_WC, S_WS, S_WO, S_W1, S_B1, S_W2, S_DBG]
    srd_const(g, HS)
    e("s_waitcnt lgkmcnt(0)")
    srd_base(g, HS)
    e(f"s_mov_b64 s[{S_LC}:{S_LC+1}], s[{S_WC}:{S_WC+1}]"); e(f"s_mov_b32 s{S_LC+3}, 0x00020000"); e(f"s_mov_b32 s{S_LC+2}, {2*LB}")
    e(f"s_cmp_lt_u32 s{S_R}, {NR}"); e(f"s_cselect_b32 s{S_WP}, 63, s{S_G}"); e(f"s_mov_b32 s{S_SCN}, 0")
    e(f"s_mul_i32 s{S_CX}, s{S_G}, {PAR.cstr}"); e(f"s_add_u32 s{S_CX}, s{S_CX}, {WS_CNT}")
    if PAR.wpf:
        e(f"s_cmp_lg_u32 s{S_J}, 0"); e("s_cbranch_scc1 L_nowpf")
        e(f"s_mov_b32 s{S_WC+2}, {6*LB}"); e(f"s_lshr_b32 s{S_T}, s2, 3"); e(f"s_lshl_b32 s{S_T}, s{S_T}, 7")
        e("v_lshlrev_b32 v1, 12, v0")
        if PAR.wpf == 1: e(f"buffer_load_dword v247, v1, {sr(S_WC)}, s{S_T} offen")
        e(f"s_mov_b32 s{S_WC+2}, {LB}")
        e(f"s_cmp_lt_u32 s{S_R}, {NR}"); e("s_cbranch_scc1 L_nowpf")
        for i in range(4): e(f"v_mov_b32 v{36+i}, 0")
        e("v_lshlrev_b32 v35, 8, v0"); e("v_cmp_lt_u32 vcc, 2, v0"); e(f"v_mov_b32 v34, {OOB}"); e("v_cndmask_b32 v35, v35, v34, vcc")
        e(f"buffer_store_dwordx4 v[36:39], v35, {sr(S_WS)}, s{S_CX} offen sc1")
        g.lab("L_nowpf")
    g.stamp("g")
    call_if(g, EARLY(), "L_pe1")
    g.stamp("g")
    e("v_and_b32 v2, 31, v0"); e("v_lshrrev_b32 v3, 5, v0")
    e(f"v_mad_u32_u24 v1, v2, 52, v{V_H16}")
    if PAR.w0lin: e("v_lshlrev_b32 v1, 4, v0")
    e(f"s_mul_i32 s{S_T}, s{S_J}, 1352")
    for t in range(7):
        if t < 6: e(f"s_add_u32 s{S_T+1}, s{S_T}, {(13*(t&1) + 4*(t>>1))*1352}")
        else:
            e(f"s_mul_i32 s{S_T+1}, s{S_J}, {13*1352}"); e(f"s_add_u32 s{S_T+1}, s{S_T+1}, {12*1352}")
        for s in range(2):
            g.vm(f"buffer_load_dwordx4 {vr(W0R+8*t+4*s,4)}, v1, {sr(S_WC)}, s{S_T+1} offen offset:{(320 if PAR.w0lin else 32)*s}", f"w0_{t}")
    e("s_branch L_helper2")
    g.hfirst = g.L[g.h0:]; del g.L[g.h0:]
    g.lab("L_helper2")
    if not PAR.barpos: e("s_barrier")
    e(f"v_mov_b32 v61, {OOB}"); e(f"v_add_u32 v60, s{S_J}, v0"); e("v_cmp_eq_u32 vcc, 0, v60"); e(f"v_cndmask_b32 v{V_L0}, v61, 0, vcc")
    e(f"s_lshr_b32 s{S_SB}, s{S_R}, 1"); e(f"s_mul_i32 s{S_SB}, s{S_SB}, 224"); e(f"s_and_b32 s{S_XC}, s{S_R}, 1"); e(f"s_mul_i32 s{S_XC}, s{S_XC}, 96"); e(f"s_add_u32 s{S_SB}, s{S_SB}, s{S_XC}")
    if not PAR.qaearly: qaset()
    e(f"s_mul_i32 s{S_PO}, s{S_G}, {NR}"); e(f"s_add_u32 s{S_PO}, s{S_PO}, s{S_R}"); e(f"s_lshl_b32 s{S_PO}, s{S_PO}, 2"); e(f"s_add_u32 s{S_PO}, s{S_PO}, s{S_J}")
    e(f"s_lshl_b32 s{S_PO}, s{S_PO}, 8"); e(f"s_add_u32 s{S_PO}, s{S_PO}, {WS_PART}")
    e("v_and_b32 v60, 15, v0"); e(f"v_mul_u32_u24 v245, {XSTR}, v60"); e("v_and_b32 v60, 48, v0")
    e(f"s_lshl_b32 s{S_T}, s{S_J}, 6"); e(f"s_add_u32 s{S_T}, s{S_T}, {D0}"); e(f"v_add3_u32 v245, v245, v60, s{S_T}")
    e("v_lshlrev_b32 v246, 4, v0")
    e(f"s_lshl_b32 s{S_XB}, s{S_G}, 2"); e(f"s_lshr_b32 s{S_T}, s{S_R}, 2"); e(f"s_add_u32 s{S_XB}, s{S_XB}, s{S_T}"); e(f"s_mul_i32 s{S_XB}, s{S_XB}, 106496")
    e(f"s_and_b32 s{S_T}, s{S_R}, 3"); e(f"s_lshl_b32 s{S_T}, s{S_T}, 10"); e(f"s_add_u32 s{S_XB}, s{S_XB}, s{S_T}")
    e(f"s_lshl_b32 s{S_T}, s{S_J}, 12"); e(f"s_add_u32 s{S_XB}, s{S_XB}, s{S_T}"); e(f"s_add_u32 s{S_XB}, s{S_XB}, {WS_X}")
    g.stamp("g")
    e(f"s_cmp_lt_u32 s{S_R}, {NR}"); e("s_cbranch_scc1 L_nordy")
    e("s_waitcnt vmcnt(0)")
    e("v_mov_b32 v35, 1"); e(f"s_lshl_b32 s{S_E3}, s{S_G}, 2")
    e(f"buffer_store_dword v35, v{V_L0}, {sr(S_DBG)}, s{S_E3} offen offset:{C_RDY} sc1")
    g.lab("L_nordy")
    call_if(g, EARLY(), "L_pe2")
    g.stamp("g")
    for t in range(7):
        if t == 6: e(f"s_cmp_ge_u32 s{S_R}, {NR}"); e("s_cbranch_scc1 L_w0d")
        g.vmwait(f"w0_{t}")
        if t == 6: g.lab("L_w0d")
        a = HX + 16 * t; w = W0R + 8 * t
        e(f"v_mfma_f32_32x32x16_bf16 {vr(a,16)}, {vr(w,4)}, {vr(ID,4)}, 0")
        e(f"v_mfma_f32_32x32x16_bf16 {vr(a,16)}, {vr(w+4,4)}, {vr(ID+4,4)}, {vr(a,16)}")
        e(f"v_mfma_f32_32x32x16_bf16 {vr(a,16)}, {vr(ID,4)}, {vr(w,4)}, {vr(a,16)}")
        e(f"v_mfma_f32_32x32x16_bf16 {vr(a,16)}, {vr(ID+4,4)}, {vr(w+4,4)}, {vr(a,16)}")
        if t > 0: s0_max(g, t - 1)
    s0_max(g, 6)
    put_max(g, M_S0)
    e(f"v_mov_b32 v{V_CNT}, {M_CNT}")
    arrive(g, "S0M")
    g.stamp("g")
    if g.stamps and "g" in PAR.st: e("s_waitcnt vmcnt(0)"); g.stamp("g")
    if PAR.wpf3 == 2:
        e("v_lshlrev_b32 v1, 14, v0"); e(f"s_lshr_b32 s{S_T}, s2, 3"); e(f"s_lshl_b32 s{S_T}, s{S_T}, 7"); e(f"s_lshl_b32 s{S_T+1}, s{S_J}, 12"); e(f"s_add_u32 s{S_T}, s{S_T}, s{S_T+1}")
        e(f"buffer_load_dword v247, v1, {sr(S_W1)}, s{S_T} offen"); e("v_add_u32 v1, 0x100000, v1")
        e(f"buffer_load_dword v247, v1, {sr(S_W1)}, s{S_T} offen")
    call_if(g, EARLY(), "L_gsig")
    g.stamp("g")
    lwait(g, "S0M")
    g.stamp(); g.stamp("h")
    get_max(g, M_S0)
    e("v_lshlrev_b32 v3, 4, v0"); e(f"v_mov_b32 v{PK}, 0")
    e(f"ds_write_b32 v3, v{PK} offset:{BUFA + 22*S0STR + 12}")
    e("v_lshrrev_b32 v1, 23, v1")
    e("v_min_u32 v1, 249, v1")
    e("v_sub_u32 v2, 124, v1")
    e("v_subrev_u32 v1, 124, v1")
    e(f"ds_write_b32 v3, v1 offset:{BUFA + 23*S0STR + 512}")
    for t in range(7): e(f"v_ldexp_f32 v{QS+t}, v{QS+t}, v2")
    for t in range(7):
        if t == 6:
            e(f"s_cmp_eq_u32 s{S_J}, 1"); e(f"s_cselect_b32 s{S_T}, 48, 0")
            for i in range(7): e(f"v_add_u32 v{QA+i}, s{S_T}, v{QA+i}")
        if t in (0, 2, 4, 6): g.stamp("h")
        pack_round(g, HX + 16 * t, 16 * (8 * (t >> 1) + 4 * (t & 1)))
    arrive(g, "S0OK")
    g.stamp(); g.stamp("s"); g.stamp("h")
    e(f"v_cmp_lt_u32 vcc, 25, v{V_HROW}"); e("v_bfe_u32 v1, v0, 2, 1")
    e("v_cmp_eq_u32 s[72:73], 0, v1"); e("s_and_b64 vcc, vcc, s[72:73]")
    e(f"v_mov_b32 v2, {OOB}"); e(f"v_lshlrev_b32 v{V_DMA}, 4, v0"); e(f"v_cndmask_b32 v{V_DMA}, v{V_DMA}, v2, vcc")
    e(f"s_mul_i32 s{S_ROT}, s{S_R}, 7"); e(f"s_lshr_b32 s{S_ROT}, s{S_ROT}, 2")
    e("v_lshrrev_b32 v1, 3, v0"); e(f"s_lshl_b32 s{S_T}, s{S_J}, 3"); e(f"v_add_u32 v1, s{S_T}, v1")
    e("v_mul_u32_u24 v1, 1664, v1"); e("v_and_b32 v2, 1, v0"); e("v_lshl_add_u32 v1, v2, 4, v1")
    e(f"s_and_b32 s{S_T}, s{S_J}, 1"); e(f"s_lshl_b32 s{S_T}, s{S_T}, 1")
    e("v_bfe_u32 v2, v0, 4, 1"); e("v_bfe_u32 v3, v0, 1, 2"); e("v_xor_b32 v2, v2, v3"); e(f"v_xor_b32 v2, s{S_T}, v2")
    e(f"v_lshl_add_u32 v3, v2, 5, s{S_SB}")
    e(f"v_add_u32 v{V_WSRC}, v1, v3")
    e("v_lshrrev_b32 v1, 4, v0"); e("v_bfe_u32 v2, v0, 2, 2"); e("v_lshl_add_u32 v1, v1, 3, v2"); e("v_lshlrev_b32 v1, 7, v1")
    e("v_and_b32 v3, 3, v0"); e("v_lshl_add_u32 v1, v3, 3, v1"); e("v_bfe_u32 v2, v0, 3, 2"); e("v_lshl_add_u32 v1, v2, 5, v1")
    e(f"v_xor_b32 v1, s{S_XC}, v1"); e(f"v_add_u32 v{V_TR0}, {D0}, v1")
    if PAR.wpf3 == 1:
        e("v_lshlrev_b32 v1, 14, v0"); e(f"s_lshr_b32 s{S_T}, s2, 3"); e(f"s_lshl_b32 s{S_T}, s{S_T}, 7"); e(f"s_lshl_b32 s{S_T+1}, s{S_J}, 12"); e(f"s_add_u32 s{S_T}, s{S_T}, s{S_T+1}")
        e(f"buffer_load_dword v247, v1, {sr(S_W1)}, s{S_T} offen"); e("v_add_u32 v1, 0x100000, v1")
        e(f"buffer_load_dword v247, v1, {sr(S_W1)}, s{S_T} offen")
    call_if(g, LATE(), "L_pe1")
    call_if(g, LATE()[:1], "L_xpub")
    g.vmq += ["xst"] * 7 + ["sent", "rdyl"] + ["bias"] * 4
    g.stamp("s")
    call_if(g, LATE(), "L_pe2")
    e("s_waitcnt vmcnt(1)")
    e(f"s_sub_u32 s{S_T}, s{S_WP}, {PAR.gearly}"); e(f"s_cmp_lt_u32 s{S_T}, {31 - PAR.gearly}"); e("s_cbranch_scc1 L_pwr")
    e("s_waitcnt vmcnt(0)")
    g.lab("L_pwr")
    arrive(g, "XST")
    e(f"s_cmp_lg_u32 s{S_J}, 0"); e("s_cbranch_scc1 L_nosig")
    lwait(g, "XST")
    e(f"s_mov_b32 s{S_T}, {SPIN}")
    g.lab("L_rdy")
    e("v_cmp_ne_u32 vcc, 0, v28"); e(f"s_and_b32 s{S_T+1}, vcc_lo, 0xffff"); e(f"s_cmp_eq_u32 s{S_T+1}, 0xffff"); e("s_cbranch_scc0 L_rdys")
    g.lab("L_rdyd")
    g.tail += ["L_rdys:", "    s_sleep 8", f"    buffer_load_dword v28, v29, {sr(S_DBG)}, 0 offen offset:{C_RDY} sc1", "    s_waitcnt vmcnt(0)",
               f"    s_sub_u32 s{S_T}, s{S_T}, 1", "    s_cbranch_scc0 L_rdy", "    s_branch L_rdyd"]
    e("v_mov_b32 v1, 1")
    e(f"buffer_atomic_add v1, v{V_L0}, {sr(S_WS)}, s{S_CX} offen sc0 sc1")
    e(f"buffer_load_dword v197, v{V_L0}, {sr(S_DBG)}, 0 offen offset:128 sc1")
    e("s_waitcnt vmcnt(0)")
    e(f"v_readfirstlane_b32 s{S_T}, v1"); e(f"s_cmp_lg_u32 s{S_T}, 15"); e("s_cbranch_scc1 L_nosig")
    e(f"buffer_store_dword v1, v{V_L0}, {sr(S_WS)}, s{S_CX} offen offset:{C_XR} sc1")
    g.lab("L_nosig")
    e("s_setprio 3")
    g.stamp(); g.stamp("s")

def helper_dnn(g):
    e = g.e
    CH = PAR.chunks; NS = PAR.nslot
    UNITS = [(a, sl) for a in range(3) for sl in range(4)] + [(3, 0), (3, 1)]
    def ac(a, sl): return HACC + 4 * UNITS.index((a, sl))
    def xb(f, sl): return HX + 16 * (f % NS) + 4 * sl
    def xload(f):
        rotf(g, f, S_T + 2); e(f"s_lshl_b32 s{S_T+2}, s{S_T+2}, 12"); e(f"s_add_u32 s{S_T+2}, s{S_T+2}, s{S_XB}")
        for sl in range(4 if f < NS else PAR.nxl):
            g.vm(f"buffer_load_dwordx4 {vr(xb(f,sl),4)}, v{2 + (sl >> 1)}, {sr(S_WS)}, s{S_T+2} offen offset:{1024*(sl&1)} {PAR.ld}", f"x{f}")
    e(f"s_setprio {PAR.wp}")
    VTR = [V_TR0, V_TR1, 198, 199]
    for a in range(1, 4): e(f"v_xor_b32 v{VTR[a]}, {32*a}, v{V_TR0}")
    colvec(g, S_W2, 232, "w2")
    g.vmwait("bias")
    for a in range(4):
        for i in range(2):
            e(f"v_lshlrev_b32 v{ac(a,0)+2*i}, 16, v{BT+2*a+i}")
            e(f"v_and_b32 v{ac(a,0)+2*i+1}, 0xffff0000, v{BT+2*a+i}")
    for a, sl in UNITS:
        if sl:
            for i in range(4): e(f"v_mov_b32 v{ac(a,sl)+i}, v{ac(a,0)+i}")
    e(f"s_lshl_b32 s{S_XB}, s{S_G}, 2"); e(f"s_add_u32 s{S_XB}, s{S_XB}, s{S_J}"); e(f"s_mul_i32 s{S_XB}, s{S_XB}, 106496"); e(f"s_add_u32 s{S_XB}, s{S_XB}, {WS_X}")
    if PAR.wearly < 1: lwait(g, "RB", 8); dma_w(g, 0, PAR.wa, "Wa")
    if PAR.x0: poll1(g, [(S_DBG, "0", 128, 11), CHK_X()], "FX")
    else:
        poll1(g, [(S_DBG, "0", 128, 11)], "F2", pre=[197])
        lwait(g, "AFREE"); dma_img(g, "L2", 44, BUFA)
        presample(g, [CHK_X()], [196], "fx")
        g.vmwait("fx"); arrive(g, "L2OK", "W01")
        poll1(g, [CHK_X()], "FX", pre=[196])
    e(f"s_and_b32 s{S_E0}, s{S_R}, 1"); e(f"s_lshl_b32 s{S_T}, s{S_E0}, 11"); e(f"v_lshl_add_u32 v2, v0, 4, s{S_T}"); e("v_xor_b32 v3, 0x800, v2")
    g.stamp("s")
    g.stamp()
    e(f"s_setprio {PAR.dp}")
    for f in range(PAR.xi): xload(f)
    if PAR.x0:
        lwait(g, "AFREE"); dma_img(g, "L2", 44, BUFA)
        g.vmwait("W1"); arrive(g, "W01")
    nld = [PAR.xi]
    W2R = 232
    wring = [0]
    def wread(ks):
        f, hf = divmod(ks, 2)
        base = HW_ + 8 * (wring[0] % 3); wring[0] += 1
        for a in range(2):
            for rd in range(2):
                e(f"ds_read_b64_tr_b16 {vr(base+4*a+2*rd,2)}, v{VTR[2*hf+a]} offset:{(f % 16)*4096 + rd*512}")
        return base
    CKQ = [(S_WS, f"s{S_CX}", C_Q, 9)]; CK3 = [(S_WS, f"s{S_CX}", C_L[3], 11)]
    after = {}
    def add(f, fn): after.setdefault(f, []).append(fn)
    inter = {}
    def addi(f, fn): inter.setdefault(f, []).append(fn)
    def capture(fn):
        keep = g.L; g.L = []; fn(); out = g.L; g.L = keep; return out
    assert PAR.wa >= 10
    for i in range(16 - PAR.wa): addi(i + 1, lambda i=i: dma_w(g, PAR.wa + i, PAR.wa + i + 1, "Wb"))
    for f, (x, y) in {10: (16, 18), 11: (18, 20), 12: (20, 21), 13: (21, 22), 14: (22, 23), 15: (23, 24), 16: (24, 25), 17: (25, 26)}.items():
        addi(f, lambda x=x, y=y: dma_w(g, x, y, "Wc" if x < 21 else "Wd"))
    SEG = [0, 10, 16, 21, 26]
    add(PAR.qpos - 3, lambda: presample(g, CK3, [196], "f3"))
    add(PAR.qpos, lambda: (lwait(g, "BFREE"), g.vmwait("f3"), poll1(g, CK3, "F3", pre=[196])))
    for i in range(0, 11, PAR.l3n): addi(PAR.qpos + 1 + i // PAR.l3n, lambda i=i: dma_img(g, "L3", 44, BUFB, part=(i, i + PAR.l3n)))
    add(PAR.qpos + 1 + 10 // PAR.l3n + PAR.qarr, lambda: (g.vmwait("L3"), arrive(g, "L3OK")))
    add(22, lambda: presample(g, CKQ, [197], "fq"))
    lwait(g, "W01")
    for c in range(4):
        k0 = 2 * SEG[c]; k1 = 2 * SEG[c + 1]
        bufs = {k0: wread(k0), k0 + 1: wread(k0 + 1)}
        for ks in range(k0, k1):
            f, hf = divmod(ks, 2)
            if hf == 0 and f in PAR.fst: g.stamp("f")
            if hf == 0:
                g.vmwait(f"x{f}")
                def gen_other():
                    for _ in range(2):
                        if nld[0] < min(26, f + NS): xload(nld[0]); nld[0] += 1
                    for fn in inter.get(f, []): fn()
                other = capture(gen_other)
            e(f"s_waitcnt lgkmcnt({4 if ks + 1 < k1 else 0})")
            rd = []
            if ks + 2 < k1: rd = capture(lambda: bufs.__setitem__(ks + 2, wread(ks + 2)))
            mf = [(a, sl) for a in range(2) for sl in range(4) if (2 * hf + a, sl) in UNITS[:PAR.nmf]]
            for i, (a, sl) in enumerate(mf):
                d = ac(2 * hf + a, sl)
                e(f"v_mfma_f32_16x16x32_bf16 {vr(d,4)}, {vr(bufs[ks]+4*a,4)}, {vr(xb(f,sl),4)}, {vr(d,4)}")
                n = PAR.il
                if rd and i >= 1: g.L.append(rd.pop(0)); n -= 1
                while other and n > 0: g.L.append(other.pop(0)); n -= 1
            g.L += rd
            if hf == 1:
                g.L += other
                for fn in after.get(f, []): fn()
        if c == 0:
            if PAR.wa < 16: g.vmwait("Wb")
            arrive(g, "C0"); lwait(g, "C0"); g.stamp()
        if c == 1: g.vmwait("Wc"); arrive(g, "C1"); lwait(g, "C1")
        if c == 2:
            g.vmwait("Wd"); arrive(g, "C2"); lwait(g, "C2")
    e("s_waitcnt vmcnt(0)")
    g.stamp()
    W2F = HX
    for i in range(8):
        e(f"v_lshlrev_b32 v{W2F+2*i}, 16, v{W2R+i}")
        e(f"v_and_b32 v{W2F+2*i+1}, 0xffff0000, v{W2R+i}")
    c0 = 2 * 0.7978845608028654 * 1.4426950408889634
    e(f"s_mov_b32 s{S_C1}, {f2u(c0*0.044715):#x}")
    e(f"v_mov_b32 v2, {f2u(c0):#x}")
    T = HX + 32; SUM = HX + 48
    def gelu(blk):
        a, sl = UNITS[blk]
        rs = [ac(a, sl) + i for i in range(4)]
        for i, r in enumerate(rs): e(f"v_mul_f32 v{T+i}, v{r}, v{r}")
        for i, r in enumerate(rs): e(f"v_fma_f32 v{T+i}, v{T+i}, s{S_C1}, v2")
        for i, r in enumerate(rs): e(f"v_mul_f32 v{T+i}, v{T+i}, v{r}")
        for i, r in enumerate(rs): e(f"v_exp_f32 v{T+i}, -v{T+i}")
        for i, r in enumerate(rs): e(f"v_mul_f32 v{r}, v{r}, v{W2F + 4*a + i}")
        for i, r in enumerate(rs): e(f"v_add_f32 v{T+i}, 1.0, v{T+i}")
        for i, r in enumerate(rs): e(f"v_rcp_f32 v{T+i}, v{T+i}")
        for i, r in enumerate(rs): e(f"v_{'mul' if a == 0 and i == 0 else 'fmac'}_f32 v{SUM + sl}, v{r}, v{T+i}")
    for blk in range(len(UNITS)):
        if blk == PAR.gsplit:
            poll1(g, CKQ, "FQ", pre=[197]); dma_img(g, "Q4", 28, QB)
        if blk == PAR.gsplit2:
            e("s_waitcnt vmcnt(0)"); arrive(g, "QOK")
        if blk == PAR.ghi: e("s_setprio 1")
        gelu(blk)
    e("s_setprio 3")
    e(f"v_permlane32_swap_b32 v{SUM}, v{SUM+2}"); e(f"v_permlane32_swap_b32 v{SUM+1}, v{SUM+3}")
    e(f"v_add_f32 v{SUM}, v{SUM}, v{SUM+2}"); e(f"v_add_f32 v{SUM+1}, v{SUM+1}, v{SUM+3}")
    e(f"v_permlane16_swap_b32 v{SUM}, v{SUM+1}")
    e(f"v_add_f32 v{SUM}, v{SUM}, v{SUM+1}")
    e(f"v_min_u32 v{SUM}, -2, v{SUM}")
    e(f"s_lshl_b32 s{S_T}, s{S_E0}, 7"); e("v_lshlrev_b32 v1, 2, v0"); e(f"v_xor_b32 v1, s{S_T}, v1")
    e(f"buffer_store_dword v{SUM}, v1, {sr(S_WS)}, s{S_PO} offen sc1")
    g.stamp()
    g.flush_stamps(4, 5)
    e("s_endpgm")

def gsignal(g, c, so):
    e = g.e; done = g.newlab("sg")
    if c: e("s_waitcnt vmcnt(0)"); arrive(g, c)
    e(f"s_cmp_lg_u32 s{S_J}, 0"); e(f"s_cbranch_scc1 {done}")
    if c: lwait(g, c)
    e(f"v_mul_u32_u24 v2, {PAR.cstr}, v0"); e("v_cmp_lt_u32 vcc, 15, v0"); e(f"v_mov_b32 v3, {OOB}"); e("v_cndmask_b32 v2, v2, v3, vcc")
    e("v_mov_b32 v1, 1")
    e(f"buffer_atomic_add v1, v2, {sr(S_WS)}, {so} offen sc1")
    g.lab(done)
SCN, FR, WV, WP, W1V, AQ, RW = 68, 104, 121, 122, 108, 44, 180
QAR = lambda i: (64 + i) if i < 4 else (240 + i)
S_E4, S_LW = 62, 63
def prod_early1(g):
    e = g.e
    g.lab("L_gsig")
    e("s_waitcnt vmcnt(0)"); arrive(g, "GST")
    e(f"s_cmp_lg_u32 s{S_J}, 0"); e("s_cbranch_scc1 L_xpub")
    lwait(g, "GST")
    e("v_mov_b32 v1, 1"); e(f"buffer_atomic_add v1, v{V_L0}, {sr(S_DBG)}, 0 offen offset:128 sc1")
    g.lab("L_xpub")
    XS = 180
    lwait(g, "RAW")
    for t in range(7): e(f"ds_read_b128 {vr(XS+4*t,4)}, v245 offset:{256*t}")
    e(f"s_cmp_ge_u32 s{S_J}, 2"); e(f"s_cselect_b32 s{S_T}, {OOB}, 0"); e(f"v_add_u32 v245, s{S_T}, v246")
    for t in range(7):
        e(f"s_waitcnt lgkmcnt({6-t})")
        g.vm(f"buffer_store_dwordx4 {vr(XS+4*t,4)}, v{246 if t < 6 else 245}, {sr(S_WS)}, s{S_XB} offen sc1", "xst")
        e(f"s_add_u32 s{S_XB}, s{S_XB}, 16384")
    arrive(g, "RB")
    e(f"s_cmp_ge_u32 s{S_R}, {NR}"); e(f"s_cselect_b32 s{S_T}, {OOB}, 0")
    e(f"v_lshl_add_u32 v1, v0, 2, s{S_T}"); e("v_mov_b32 v3, -1")
    g.vm(f"buffer_store_dword v3, v1, {sr(S_WS)}, s{S_PO} offen sc1", "sent")
    e(f"s_lshl_b32 s{S_T}, s{S_J}, 8"); e("v_lshrrev_b32 v29, 4, v0"); e(f"v_lshl_add_u32 v29, v29, 8, s{S_T}"); e("v_lshl_add_u32 v29, v0, 2, v29")
    g.vm(f"buffer_load_dword v28, v29, {sr(S_DBG)}, 0 offen offset:{C_RDY} sc1", "rdyl")
    colvec(g, S_B1, BT, "bias")
    e(RET)
    g.lab("L_pe1")
    e(f"s_mul_i32 s{S_L}, s{S_WP}, 94"); e(f"s_lshr_b32 s{S_L}, s{S_L}, 10")
    e(f"s_mul_i32 s{S_T}, s{S_L}, 11"); e(f"s_sub_u32 s{S_FR}, s{S_WP}, s{S_T}"); e(f"s_lshl_b32 s{S_FR}, s{S_FR}, 2"); e(f"s_add_u32 s{S_FR}, s{S_FR}, s{S_J}")
    e(f"s_add_u32 s{S_L}, s{S_L}, 2")
    e(f"s_mul_i32 s{S_E2}, s{S_L}, {LB}")
    e(f"s_add_u32 s{S_LC+2}, s{S_E2}, {LB}")
    e("v_lshlrev_b32 v1, 4, v0")
    e(f"s_mul_i32 s{S_T}, s{S_J}, 9216"); e(f"s_add_u32 s{S_T}, s{S_T}, s{S_E2}")
    for i in range(9):
        if i % 4 == 0 and i: e(f"s_add_u32 s{S_T}, s{S_T}, 4096")
        e(f"buffer_load_dwordx4 {vr(SCN+4*i,4)}, v1, {sr(S_LC)}, s{S_T} offen offset:{(i%4)*1024}")
    e(f"s_cmp_ge_u32 s{S_WP}, 22"); e("s_cbranch_scc1 L_ret")
    e(f"s_lshl_b32 s{S_T}, s{S_FR}, 4"); e(f"s_add_u32 s{S_T}, s{S_T}, s{S_E2}")
    e(f"buffer_load_dwordx4 {vr(FR,4)}, v243, {sr(S_LC)}, s{S_T} offen")
    e(f"v_lshlrev_b32 v1, 1, v{V_HROW}"); e(f"s_mul_i32 s{S_T}, s{S_L}, 52")
    e(f"buffer_load_ushort v{WV}, v1, {sr(S_WO)}, s{S_T} offen")
    e(f"buffer_load_ushort v{WP}, v1, {sr(S_WO)}, 52 offen")
    e("v_lshrrev_b32 v3, 5, v0"); e("v_mul_u32_u24 v3, 26, v3")
    for i in range(8):
        e(f"s_lshl_b32 s{S_T}, s{S_FR}, 3"); e(f"s_sub_u32 s{S_T}, s{S_T}, {8*42 + 2 - i}")
        e(f"s_lshl_b32 s{S_T+1}, s{S_T}, 1"); e(f"s_add_u32 s{S_T+1}, s{S_T+1}, 52")
        e(f"s_cmp_lt_u32 s{S_T}, 13"); e(f"s_cselect_b32 s{S_T+1}, s{S_T+1}, {OOB}")
        e(f"v_add_u32 v2, s{S_T+1}, v3")
        e(f"buffer_load_ushort v{W1V+i}, v2, {sr(S_WO)}, 0 offen")
    g.lab("L_ret")
    e(RET)
def prod_early2(g):
    e = g.e
    g.lab("L_pe2")
    e("s_waitcnt vmcnt(13)")
    e(f"v_mov_b32 v{V_CNT}, {M_CNT}")
    for i in range(36): e(f"v_and_b32 v{SCN+i}, s{S_MASK}, v{SCN+i}")
    pkmax(g, [SCN + i for i in range(36)])
    put_max(g, M_SC)
    e(f"s_add_u32 s{S_SCN}, s{S_SCN}, 4")
    arrive(g, "SCM"); lwait(g, "SCM", f"s{S_SCN}")
    get_max(g, M_SC)
    e(f"v_readfirstlane_b32 s{S_E0}, v1")
    e(f"s_bfe_u32 s{S_E0}, s{S_E0}, 0x80007")
    e(f"s_cmp_ge_u32 s{S_WP}, 22"); e("s_cbranch_scc1 L_ret")
    g.lab("L_gjob")
    e(f"s_min_u32 s{S_T+2}, s{S_E0}, 249"); e(f"s_sub_u32 s{S_T+3}, {127+124}, s{S_T+2}"); e(f"s_lshl_b32 s{S_T+3}, s{S_T+3}, 23")
    e(f"s_cmp_lt_u32 s{S_FR}, 42"); e(f"s_cselect_b32 s{S_T+1}, -1, 0")
    for i in range(1, 4): e(f"v_and_b32 v{FR+i}, s{S_T+1}, v{FR+i}")
    e(f"s_cmp_lt_u32 s{S_FR}, 43"); e(f"s_cselect_b32 s{S_T+1}, -1, 0"); e(f"v_and_b32 v{FR}, s{S_T+1}, v{FR}")
    for i in range(4): e(f"v_alignbit_b32 v{FR+i}, v{FR+i}, v{FR+i}, v{V_H16}")
    for i in range(4):
        e(f"v_lshlrev_b32 v{SCN+2*i}, 16, v{FR+i}"); e(f"v_and_b32 v{SCN+2*i+1}, 0xffff0000, v{FR+i}")
    for i in range(8): e(f"v_mul_f32 v{SCN+i}, s{S_T+3}, v{SCN+i}")
    for i in range(4): e(f"v_cvt_pk_f16_f32 v{FR+i}, v{SCN+2*i}, v{SCN+2*i+1}")
    e(f"v_lshlrev_b32 v{WV}, 16, v{WV}")
    e(f"v_and_b32 v1, 0x7fffffff, v{WV}")
    wavemax_exp(g, 1, S_E1)
    e(f"s_sub_u32 s{S_E1}, s{S_E1}, 13"); e(f"s_sub_u32 s{S_T}, 0, s{S_E1}")
    e(f"v_ldexp_f32 v{WV}, v{WV}, s{S_T}")
    for i in range(8): e(f"v_mul_f32 v{SCN+i}, v{SCN+i}, v{WV}")
    for sh in (1, 2, 4, 8):
        for i in range(8): e(f"v_add_f32_dpp v{SCN+i}, v{SCN+i}, v{SCN+i} row_shr:{sh} {DPPALL} bound_ctrl:0")
    for i in range(8): e(f"v_add_f32_dpp v{SCN+i}, v{SCN+i}, v{SCN+i} row_bcast:15 row_mask:0xa bank_mask:0xf")
    for i in range(4): e(f"v_cvt_pk_f16_f32 v{SCN+2*i}, v{SCN+2*i}, v{SCN+2*i+1}")
    e("v_and_b32 v2, 31, v0"); e("v_cmp_eq_u32 vcc, 31, v2")
    for i in range(4): e(f"v_cndmask_b32 v{FR+i}, v{FR+i}, v{SCN+2*i}, vcc")
    e(f"v_lshlrev_b32 v1, 16, v{WP}"); e("v_and_b32 v1, 0x7fffffff, v1")
    wavemax_exp(g, 1, S_E4)
    e(f"s_sub_u32 s{S_T}, 15, s{S_E4}")
    for i in range(8): e(f"v_lshlrev_b32 v{W1V+i}, 16, v{W1V+i}")
    for i in range(8): e(f"v_ldexp_f32 v{W1V+i}, v{W1V+i}, s{S_T}")
    for i in range(4): e(f"v_cvt_pk_f16_f32 v{W1V+2*i}, v{W1V+2*i}, v{W1V+2*i+1}")
    e("v_cmp_eq_u32 vcc, 30, v2")
    for i in range(4): e(f"v_cndmask_b32 v{FR+i}, v{FR+i}, v{W1V+2*i}, vcc")
    e(f"s_cmp_lg_u32 s{S_FR}, 0"); e("s_cbranch_scc1 L_nohdr")
    e(f"s_sub_u32 s{S_T+2}, s{S_T+2}, 124"); e(f"s_add_u32 s{S_E1}, s{S_E1}, s{S_T+2}"); e(f"s_sub_u32 s{S_E4}, s{S_E4}, 15")
    e(f"v_writelane_b32 v{FR}, s{S_T+2}, 29"); e(f"v_writelane_b32 v{FR+1}, s{S_E1}, 29"); e(f"v_writelane_b32 v{FR+2}, s{S_E4}, 29")
    g.lab("L_nohdr")
    e(f"s_mul_i32 s{S_T}, s{S_L}, {44*1024}"); e(f"s_lshl_b32 s{S_T+1}, s{S_FR}, 10"); e(f"s_add_u32 s{S_T}, s{S_T}, s{S_T+1}")
    e(f"s_sub_u32 s{S_T}, s{S_T}, {88*1024 - IMG['L2']}")
    e("v_lshlrev_b32 v1, 4, v0")
    e(f"buffer_store_dwordx4 {vr(FR,4)}, v1, {sr(S_WS)}, s{S_T} offen sc1")
    e("s_nop 0")
    e(RET)
def helper_prod(g):
    e = g.e
    e(f"s_add_u32 s{S_WP}, s{S_G}, 16")
    e(f"s_cmp_ge_u32 s{S_WP}, 31"); e("s_cbranch_scc1 L_j2d")
    call_if(g, [], "L_pe1")
    e(f"s_cmp_lt_u32 s{S_WP}, 22"); e("s_cbranch_scc1 L_noql")
    e("v_and_b32 v2, 31, v0"); e("v_lshrrev_b32 v3, 5, v0")
    e("v_mul_u32_u24 v1, 676, v3"); e("v_add_lshl_u32 v1, v1, v2, 1")
    e(f"s_mul_i32 s{S_T}, s{S_FR}, 52"); e(f"s_add_u32 s{S_T}, s{S_T}, {4*LB}")
    for s in range(13):
        e(f"buffer_load_ushort v{W1V+s}, v1, {sr(S_LC)}, s{S_T} offen")
        e(f"s_add_u32 s{S_T}, s{S_T}, 2704")
    e(f"s_cmp_eq_u32 s{S_WP}, 29"); e(f"s_cselect_b32 s{S_LW}, 4, 5"); e(f"s_cmp_eq_u32 s{S_WP}, 30"); e(f"s_cselect_b32 s{S_LW}, 0, s{S_LW}")
    e(f"s_mul_i32 s{S_E2}, s{S_LW}, {LB}"); e(f"s_add_u32 s{S_LC+2}, s{S_E2}, {LB}")
    e("v_lshlrev_b32 v1, 1, v0"); e("v_cmp_lt_u32 vcc, 25, v0"); e(f"v_mov_b32 v2, {OOB}"); e("v_cndmask_b32 v1, v1, v2, vcc")
    e(f"s_mul_i32 s{S_T}, s{S_LW}, 52")
    e(f"buffer_load_ushort v{WV}, v1, {sr(S_WO)}, s{S_T} offen")
    e("v_lshlrev_b32 v1, 4, v0")
    e(f"s_mul_i32 s{S_T}, s{S_J}, 1352"); e(f"s_add_u32 s{S_T}, s{S_T}, s{S_E2}")
    for t in range(7):
        for ps in range(2):
            e(f"buffer_load_dwordx4 {vr(RW+8*t+4*ps,4)}, v1, {sr(S_LC)}, s{S_T} offen offset:{1024*ps}")
        e(f"s_add_u32 s{S_T}, s{S_T}, {4*1352}")
    g.lab("L_noql")
    lwait(g, "XST")
    e("s_waitcnt vmcnt(0)")
    call_if(g, [], "L_pe2")
    g.lab("L_j2d")
    e(f"s_sub_u32 s{S_T}, s{S_G}, 6"); e(f"s_cmp_lt_u32 s{S_T}, 5"); e("s_cbranch_scc1 L_nol3")
    e(f"s_mov_b32 s{S_T+2}, {WS_CNT + C_L[3]}")
    gsignal(g, "F3", f"s{S_T+2}")
    g.lab("L_nol3")
    e(f"s_cmp_ge_u32 s{S_WP}, 31"); e("s_cbranch_scc1 L_idle")
    e(f"s_cmp_ge_u32 s{S_WP}, 22"); e("s_cbranch_scc1 L_nog")
    e("s_branch L_idle")
    g.lab("L_nog")
    lwait(g, "RB", 8)
    AC = HX; TU = HX + 16
    for t in range(6): e(f"v_lshl_or_b32 v{QAR(t)}, v{W1V+2*t+1}, 16, v{W1V+2*t}")
    e(f"v_mov_b32 v{QAR(6)}, v{W1V+12}"); e(f"v_mov_b32 v{QAR(7)}, 0")
    g.stamp("q")
    e(f"v_lshlrev_b32 v{WV}, 16, v{WV}"); e(f"v_and_b32 v1, 0x7fffffff, v{WV}")
    wavemax_exp(g, 1, S_E1)
    e(f"s_sub_u32 s{S_T}, 0, s{S_E1}"); e(f"v_ldexp_f32 v{WV}, v{WV}, s{S_T}")
    for i in range(16): e(f"v_mov_b32 v{AC+i}, 0")
    for t in range(7):
        e(f"s_add_u32 s{S_T}, s{S_J}, {4*t}")
        e(f"v_readlane_b32 s{S_T+1}, v{WV}, s{S_T}")
        for i in range(8):
            e(f"v_lshlrev_b32 v{TU+2*i}, 16, v{RW+8*t+i}"); e(f"v_and_b32 v{TU+2*i+1}, 0xffff0000, v{RW+8*t+i}")
        for i in range(16): e(f"v_fmac_f32 v{AC+i}, s{S_T+1}, v{TU+i}")
    PSTR = 4096
    e(f"s_mul_i32 s{S_T}, s{S_J}, {PSTR}"); e(f"s_add_u32 s{S_T}, s{S_T}, {D0}")
    e(f"v_lshl_add_u32 v1, v0, 5, s{S_T}")
    for ps in range(2):
        for hf in range(2): e(f"ds_write_b128 v1, {vr(AC+8*ps+4*hf,4)} offset:{2048*ps+16*hf}")
    g.stamp("q"); arrive(g, "WC"); lwait(g, "WC"); g.stamp("q")
    call_if(g, [], "L_l2")
    e(f"s_cmp_eq_u32 s{S_FR}, 28"); e("s_cbranch_scc1 L_lin")
    e(f"s_cmp_lt_u32 s{S_FR}, 26"); e("s_cbranch_scc1 L_q")
    e(f"s_cmp_lg_u32 s{S_FR}, 32"); e("s_cbranch_scc1 L_noq")
    g.lab("L_q")
    BQ, PT, DQ = HX + 16, HX + 32, HX + 96
    e("v_and_b32 v2, 31, v0"); e("v_lshrrev_b32 v3, 5, v0")
    e("v_mad_u32_u24 v1, v3, 26, v2"); e("v_lshlrev_b32 v1, 2, v1"); e(f"v_add_u32 v1, {D0}, v1")
    def readsum(stride):
        for pj in range(4):
            for s in range(13): e(f"ds_read_b32 v{PT+13*pj+s}, v1 offset:{PSTR*pj + stride*s}")
            if pj: e("s_waitcnt lgkmcnt(13)")
        e("s_waitcnt lgkmcnt(0)")
        for s in range(13):
            e(f"v_add_f32 v{PT+s}, v{PT+s}, v{PT+13+s}"); e(f"v_add_f32 v{PT+26+s}, v{PT+26+s}, v{PT+39+s}")
        for s in range(13): e(f"v_add_f32 v{BQ+s}, v{PT+s}, v{PT+26+s}")
    def max13():
        e(f"v_max3_f32 v1, |v{BQ}|, |v{BQ+1}|, |v{BQ+2}|")
        for s in range(3, 13, 2): e(f"v_max3_f32 v1, v1, |v{BQ+s}|, |v{BQ+s+1}|")
    readsum(208)
    e("v_cmp_gt_u32 vcc, 26, v2")
    for s in range(13): e(f"v_cndmask_b32 v{BQ+s}, 0, v{BQ+s}, vcc")
    max13()
    wavemax_exp(g, 1, S_E2)
    e(f"s_sub_u32 s{S_T}, 0, s{S_E2}")
    for s in range(13): e(f"v_ldexp_f32 v{BQ+s}, v{BQ+s}, s{S_T}")
    e(f"s_max_u32 s{S_E0}, s{S_E0}, 10"); e(f"s_sub_u32 s{S_E0}, s{S_E0}, 126")
    BH, BL = PT, PT + 8
    e(f"v_mov_b32 v{BQ+13}, 0"); e(f"v_mov_b32 v{BH+7}, 0"); e(f"v_mov_b32 v{BL+7}, 0")
    for t in range(7): e(f"v_cvt_pk_bf16_f32 v{BH+t}, v{BQ+2*t}, v{BQ+2*t+1}")
    for t in range(7):
        e(f"v_lshlrev_b32 v{PT+16+2*t}, 16, v{BH+t}"); e(f"v_and_b32 v{PT+17+2*t}, 0xffff0000, v{BH+t}")
    for t in range(14): e(f"v_sub_f32 v{BQ+t}, v{BQ+t}, v{PT+16+t}")
    for t in range(7): e(f"v_cvt_pk_bf16_f32 v{BL+t}, v{BQ+2*t}, v{BQ+2*t+1}")
    e(f"s_cmp_ge_u32 s{S_FR}, 13"); e(f"s_cselect_b32 s{S_T+1}, 13, 0"); e(f"s_cselect_b32 s{S_T+2}, 4, 0")
    e(f"s_sub_u32 s{S_T+1}, s{S_FR}, s{S_T+1}"); e(f"s_and_b32 s{S_T+3}, s{S_T+1}, 3"); e(f"s_add_u32 s{S_T+2}, s{S_T+2}, s{S_T+3}")
    e(f"s_lshr_b32 s{S_T+1}, s{S_T+1}, 2"); e(f"s_lshl_b32 s{S_T+1}, s{S_T+1}, 3"); e(f"s_add_u32 s{S_SB}, s{S_T+2}, s{S_T+1}")
    e(f"s_mov_b32 s{S_L}, 0")
    e(f"s_cmp_lg_u32 s{S_FR}, 32"); e("s_cbranch_scc1 L_q2")
    e("v_sub_u32 v1, v2, v3")
    for s in range(13):
        e(f"v_cmp_eq_u32 vcc, {2*s}, v1"); e(f"v_cndmask_b32 v{AQ+s}, 0, 1.0, vcc")
    e(f"v_mov_b32 v{AQ+13}, 0")
    for t in range(7): e(f"v_cvt_pk_bf16_f32 v{QAR(t)}, v{AQ+2*t}, v{AQ+2*t+1}")
    e(f"s_mov_b32 s{S_E0}, 0"); e(f"s_mov_b32 s{S_SB}, 31"); e(f"s_mov_b32 s{S_L}, 8")
    g.lab("L_q2")
    g.stamp("q")
    e("s_nop 1")
    first = True
    for bb in (BL, BH):
        for ks in range(2):
            e(f"v_mfma_f32_32x32x16_bf16 {vr(DQ,16)}, {vr(QAR(4*ks),4)}, {vr(bb+4*ks,4)}, {'0' if first else vr(DQ,16)}"); first = False
            e(f"v_mfma_f32_32x32x16_bf16 {vr(DQ,16)}, {vr(bb+4*ks,4)}, {vr(QAR(4*ks),4)}, {vr(DQ,16)}")
    e(f"v_max_f32 v1, v{QS}, v{QS+1}")
    e(f"s_sub_u32 s{S_T}, 137, s{S_E0}"); e(f"s_lshl_b32 s{S_T}, s{S_T}, 23"); e(f"v_mov_b32 v30, s{S_T}"); e("v_mul_f32 v31, 0.5, v30")
    for t in range(7):
        e(f"v_cmp_eq_f32 vcc, v1, v{QS+t}"); e(f"v_cndmask_b32 v{QS+t}, v31, v30, vcc")
    e(f"s_cmp_eq_u32 s{S_J}, 1"); e(f"s_cselect_b32 s{S_T}, 48, 0"); e(f"s_sub_u32 s{S_T}, {D1 - BUFA}, s{S_T}")
    for t in range(7): e(f"v_add_u32 v{QA+t}, s{S_T}, v{QA+t}")
    e(f"v_mul_u32_u24 v1, {S0STR}, v2"); e("v_lshl_add_u32 v1, v3, 9, v1"); e(f"s_lshl_b32 s{S_T}, s{S_J}, 4"); e(f"s_add_u32 s{S_T}, s{S_T}, {D1}")
    e(f"v_min_u32 v1, {22*S0STR+512}, v1")
    e(f"v_add_u32 v1, s{S_T}, v1")
    e(f"v_lshl_add_u32 v28, v3, 9, s{S_T}"); e("v_mov_b32 v29, 0")
    e(f"ds_write_b32 v28, v29 offset:{22*S0STR+12}")
    pack_round(g, DQ, 0, False)
    g.stamp("q")
    e("s_waitcnt lgkmcnt(0)")
    e(f"ds_read_b128 {vr(AQ,4)}, v1")
    e("v_lshlrev_b32 v1, 10, v2"); e("v_lshl_add_u32 v1, v3, 9, v1"); e("v_cmp_lt_u32 vcc, 22, v2"); e(f"v_mov_b32 v28, {OOB}"); e("v_cndmask_b32 v1, v1, v28, vcc")
    e(f"s_lshl_b32 s{S_T}, s{S_SB}, 4"); e(f"s_add_u32 s{S_T}, s{S_T}, {IMG['Q4']}")
    e("s_waitcnt lgkmcnt(0)")
    e(f"buffer_store_dwordx4 {vr(AQ,4)}, v1, {sr(S_WS)}, s{S_T} offen sc1")
    e(f"s_add_u32 s{S_E0}, s{S_E0}, s{S_E2}"); e(f"s_add_u32 s{S_E0}, s{S_E0}, s{S_E1}"); e(f"s_sub_u32 s{S_E0}, s{S_E0}, 10")
    e(f"s_and_b32 s{S_T}, s{S_FR}, 31"); e(f"s_cmp_lg_u32 s{S_T}, 0"); e("s_cbranch_scc1 L_noq")
    g.lab("L_qh")
    e(f"v_mov_b32 v1, s{S_E0}"); e(f"s_add_u32 s{S_T}, s{S_L}, {IMG['Q4'] + 23*1024}")
    e(f"buffer_store_dword v1, v{V_L0}, {sr(S_WS)}, s{S_T} offen sc1")
    e("s_branch L_noq")
    g.lab("L_lin")
    e("v_lshrrev_b32 v3, 5, v0"); e(f"v_min_u32 v2, 25, v{V_HROW}")
    e("v_mad_u32_u24 v1, v2, 26, v3"); e("v_lshlrev_b32 v1, 2, v1"); e(f"v_add_u32 v1, {D0}, v1")
    readsum(8)
    e(f"v_cmp_gt_u32 vcc, 26, v{V_HROW}")
    for s in range(13): e(f"v_cndmask_b32 v{BQ+s}, 0, v{BQ+s}, vcc")
    max13()
    wavemax_exp(g, 1, S_E2)
    e(f"s_sub_u32 s{S_T}, 15, s{S_E2}")
    for s in range(13): e(f"v_ldexp_f32 v{BQ+s}, v{BQ+s}, s{S_T}")
    e(f"v_mov_b32 v{BQ+13}, 0"); e(f"v_mov_b32 v{AQ+7}, 0")
    for t in range(7): e(f"v_cvt_pk_f16_f32 v{AQ+t}, v{BQ+2*t}, v{BQ+2*t+1}")
    e("v_lshlrev_b32 v1, 4, v0"); e(f"s_mov_b32 s{S_T}, {IMG['Q4'] + 24*1024}")
    for s in range(2): e(f"buffer_store_dwordx4 {vr(AQ+4*s,4)}, v1, {sr(S_WS)}, s{S_T} offen offset:{1024*s} sc1")
    e(f"s_add_u32 s{S_E0}, s{S_E2}, s{S_E1}"); e(f"s_sub_u32 s{S_E0}, s{S_E0}, 15"); e(f"s_mov_b32 s{S_L}, 4")
    e("s_branch L_qh")
    g.lab("L_noq")
    g.stamp("q")
    e(f"s_mov_b32 s{S_T+2}, {WS_CNT + C_Q}")
    gsignal(g, "QST", f"s{S_T+2}")
    g.stamp("q")
    lwait(g, "QST")
    e("s_branch L_idle2")
    g.lab("L_l2")
    lwait(g, "AFREE")
    poll1(g, [(S_DBG, "0", 128, 11)], "F2")
    dma_img(g, "L2", 44, BUFA)
    e("s_waitcnt vmcnt(0)"); arrive(g, "L2OK")
    e(RET)
    g.lab("L_idle")
    call_if(g, [], "L_l2")
    g.lab("L_idle2")
    g.stamp(); g.stamp()
    lwait(g, "BFREE")
    poll1(g, [(S_WS, f"s{S_CX}", C_L[3], 11)], "FX")
    dma_img(g, "L3", 44, BUFB)
    e("s_waitcnt vmcnt(0)"); arrive(g, "L3OK")
    g.stamp()
    poll1(g, [(S_WS, f"s{S_CX}", C_Q, 9), CHK_X()], "FQ")
    dma_img(g, "Q4", 28, QB)
    e("s_waitcnt vmcnt(0)"); arrive(g, "QOK")
    g.stamp()
    g.flush_stamps(4, 5)
    e("s_endpgm")

DOC = """; ---- design (generated by a script of my own) ----
;   g4 = L x + Q(x,x) with L = w4.W4, Q = W4.(w5.W5);  logit = sum_l w_l.u_{l+1} + g4.u4.
; MLP: 15 workgroups per 256 samples, 16x16x32 bf16 MFMA, x exchanged in fragment order through d_ws; the 16th workgroup
;   prepares the shared fp16 weight images. Hand-offs: write-through stores, drained, then counters reset inside this launch.
"""
def build(stamps=False):
    g = G(stamps)
    prologue(g); n0 = g.nst
    cin(g)
    g.h0 = len(g.L); g.lab("L_helper"); g.nst = n0
    helper_common(g); n1 = g.nst
    g.e(f"s_cmp_ge_u32 s{S_R}, {NR}"); g.e("s_cbranch_scc1 L_helper_n")
    helper_dnn(g)
    g.lab("L_helper_n"); g.nst = n1
    helper_prod(g)
    prod_early1(g); prod_early2(g)
    g.L += g.tail
    i = g.L.index("L_cin2:"); g.L[i:i] = g.hfirst
    g.lab("L_end"); g.e("s_endpgm")
    body, nops = fix_hazards(g.L)
    ref = open("standalone__deep_cross_xdeepfm__recsys.s.ref").read().split("\n")
    hdr = [l for l in ref if l.startswith(";") and "@launch" not in l and "Override" not in l and "grid=ceil" not in l]
    txt = "\n".join(hdr) + f"\n; @launch grid=(256,1,1) block=(512,1,1) lds={LDS_TOTAL}\n"
    txt += DOC
    txt += f'.amdgcn_target "amdgcn-amd-amdhsa--gfx950"\n.text\n.globl {KN}\n.p2align 8\n.type {KN},@function\n{KN}:\n'
    txt += "\n".join(body) + "\n"
    txt += f""".section .rodata,"a"
.p2align 6
.amdhsa_kernel {KN}
  .amdhsa_next_free_vgpr 256
  .amdhsa_next_free_sgpr 102
  .amdhsa_accum_offset 256
  .amdhsa_group_segment_fixed_size 0
  .amdhsa_kernarg_size 88
  .amdhsa_user_sgpr_count 2
  .amdhsa_user_sgpr_kernarg_segment_ptr 1
  .amdhsa_system_sgpr_workgroup_id_x 1
.end_amdhsa_kernel
"""
    return txt, nops
if __name__ == "__main__":
    for a in sys.argv[2:]:
        if "=" in a:
            k, v = a.split("="); setattr(PAR, k, eval(v))
    txt, nops = build(stamps="stamps" in sys.argv)
    open(sys.argv[1], "w").write(txt)
    print("nops inserted", nops, "lines", txt.count("\n"))
```

```python
import sys, struct
from asmlib import fix_hazards
KN = "standalone__deep_cross_xdeepfm__recsys_kernel"
def f2u(f): return struct.unpack('<I', struct.pack('<f', f))[0]
OOB = 0x40000000
SPIN = 200000
LB = 35152
IMG = {}
off = 0
for name, n in (("L2", 44), ("L3", 44), ("Q4", 28)):
    IMG[name] = off; off += n * 1024
XBS = 106496 + 128
NR = 15
WS_PART = off
WS_CNT = WS_PART + 16 * NR * 1024
WS_STAMP = 0x80000
WS_X = WS_STAMP + 256 * 8 * 64 + 128
C_L = {3: 512}; C_Q = 516; C_XR = 256; C_RDY = 0
BUFA, BUFB = 0, 45056
D0, D1 = 90112, 118784
QB = D0 + 10 * 4096
MISC = QB + 28672
LDS_TOTAL = MISC + 2560
M_S0, M_L1, M_SC, M_EW1, M_CNT = MISC, MISC + 64, MISC + 128, MISC + 192, MISC + 256
CNT = {n: M_CNT + 4 * i for i, n in enumerate(["XST", "L1M", "L1OK", "AFREE", "L2OK", "BFREE", "L3OK", "QOK", "W01", "C0", "C1", "C2", "SCM", "GST", "WC", "QST", "FX", "F2", "F3", "FQ", "S0OK", "S0M", "RAW", "RB"])}
CNT["AFREE"] = M_CNT + 4 * 28; CNT["BFREE"] = M_CNT + 4 * 29; CNT["RB"] = M_CNT + 4 * 30
S0STR = 1040
XSTR = 1680
QPAIRS = [(p, q) for p in range(13) for q in range(p, 13)]
S_IDX, S_TAB, S_WS, S_W1, S_B1, S_W2, S_OUT, S_DBG, S_BO, S_WC, S_WO = 4, 8, 12, 16, 20, 24, 28, 32, 36, 40, 44
S_G, S_R, S_WAVE, S_J = 70, 71, 83, 3
S_HDR = 48
S_EX = 60
S_K = 64
S_K1 = 4
S_KC = 76
S_T = 72
S_MASK = 80
S_C1 = 81
S_SB = 82
S_ST = 84
class P: pass
PAR = P()
PAR.chunks = [7, 7, 6, 6]
PAR.gsplit = 0
PAR.gsplit2 = 3
PAR.lnpos = 28
PAR.pload = 17
PAR.la = 12
PAR.urate = 5
PAR.xst = 2
PAR.l2pos = -1
PAR.nslot = 6
PAR.st = 'ad'
PAR.ld = 'sc1'
PAR.inv = 0
PAR.encb = 0
PAR.ttouch = 1
PAR.tset = [[S_TAB], [], [], []]
PAR.encsh = 1
PAR.wp = 3
PAR.dp = 3
PAR.otouch = 0
PAR.drop = ('Q4', 6)
PAR.cp2 = 1
PAR.sp = 1
PAR.barpos = 2
PAR.nxl = 4
PAR.noa = 0
PAR.il = 2
PAR.fst = (0, 3, 6, 10, 13, 17, 22)
PAR.xi = 3
PAR.wbn = 3
PAR.wpf3 = 0
PAR.wa = 10
PAR.l3n = 2
PAR.wbpos = 3
PAR.wmod = ''
PAR.w2 = 1
PAR.l1rate = 16
PAR.sclq = 0
PAR.x0 = 0
PAR.qpos = 13
PAR.m16 = 0
PAR.encsel = None
PAR.gmin = 0
PAR.qaearly = 0
PAR.gmod = 'nt'
PAR.imod = 'nt'
PAR.pkpack = 0
PAR.w0lin = 0
PAR.l3rate = 18
PAR.qarr = 3
PAR.gearly = 11
PAR.ngelu = 16
PAR.nmf = 14
PAR.npk = 4
PAR.lslp = 4
PAR.zpad = 1
PAR.skew = 1
PAR.cstr = 4352
PAR.l3late = 1
PAR.xp = 3
PAR.wearly = 0
PAR.wpf2 = 0
PAR.ghi = 1
PAR.qchk = 8
PAR.cp = 1
PAR.enc = None
PAR.rate = 20
PAR.qrate = 24
PAR.clk = 0
PAR.hp = 0
PAR.nost = 0
PAR.wpf = 1
PAR.rot = 2
PAR.pf = 4
PAR.qlate = 0
PAR.slp = 8
PAR.de = 2
PAR.touch = 0
PAR.dbg = None
class G:
    def __init__(self, stamps=False):
        self.L = []; self.stamps = stamps; self.nst = 0; self.nl = 0; self.vmq = []; self.tail = []
    def e(self, s): self.L.append("    " + s)
    def lab(self, s): self.L.append(s + ":")
    def vm(self, s, tag): self.e(s); self.vmq.append(tag)
    def vmwait(self, *tags):
        idx = max(i for i, t in enumerate(self.vmq) if t in tags)
        n = sum(1 for t in self.vmq[idx + 1:] if not t.startswith("f"))
        self.e(f"s_waitcnt vmcnt({min(n, 63)})")
    def newlab(self, s): self.nl += 1; return f"L_{s}_{self.nl}"
    def stamp(self, name=None):
        if self.stamps and (name or "d") in PAR.st:
            assert self.nst < 8
            self.e(f"{'s_memtime' if PAR.clk else 's_memrealtime'} s[{S_ST+2*self.nst}:{S_ST+2*self.nst+1}]"); self.nst += 1
    def flush_stamps(self, vt, va):
        if not self.stamps: return
        self.e("s_waitcnt lgkmcnt(0)")
        self.e(f"s_lshl_b32 s{S_T}, s2, 3"); self.e(f"s_add_u32 s{S_T}, s{S_T}, s{S_WAVE}"); self.e(f"s_lshl_b32 s{S_T}, s{S_T}, 6")
        self.e(f"s_add_u32 s{S_T}, s{S_T}, {WS_STAMP}")
        self.e(f"v_mov_b32 v{va}, 0")
        if PAR.dbg is not None:
            lb = self.newlab("nd")
            self.e(f"s_cmp_lg_u32 s{S_T}, {WS_STAMP + PAR.dbg*64}"); self.e(f"s_cbranch_scc1 {lb}")
            for i in range(self.nst):
                self.e(f"s_sub_u32 s{S_T+1}, s{S_ST+2*i}, s{S_ST}")
                self.e(f"v_mov_b32 v{vt}, s{S_T+1}")
                self.e(f"buffer_store_dword v{vt}, v{va}, s[{S_DBG}:{S_DBG+3}], 0 offen offset:{64+4*i}")
            self.lab(lb)
        for i in range(self.nst):
            self.e(f"v_mov_b32 v{vt}, s{S_ST+2*i}")
            self.e(f"buffer_store_dword v{vt}, v{va}, s[{S_WS}:{S_WS+3}], s{S_T} offen offset:{4*i}")
        self.nst = 0
def vr(a, n): return f"v[{a}:{a+n-1}]"
def sr(a, n=4): return f"s[{a}:{a+n-1}]"
DPPALL = "row_mask:0xf bank_mask:0xf"

def prologue(g):
    e = g.e
    e("s_cmp_ge_u32 s2, 256")
    e("s_cbranch_scc1 L_end")
    g.stamp("a")
    e("s_load_dwordx16 s[48:63], s[0:1], 0")
    e("s_load_dwordx4 s[64:67], s[0:1], 64")
    e("s_load_dwordx2 s[68:69], s[0:1], 80")
    if PAR.pf:
        e(f"s_getpc_b64 s[{S_KC}:{S_KC+1}]")
        g.lab("L_pfbase")
        e(f"s_mov_b32 s{S_KC+2}, L_end - L_pfbase"); e(f"s_mov_b32 s{S_KC+3}, 0x00020000")
        e(f"s_lshr_b32 s{S_T}, s2, 3"); e(f"s_lshl_b32 s{S_T}, s{S_T}, 7")
        e("v_xor_b32 v1, 0x1c0, v0"); e("v_lshlrev_b32 v1, 12, v1")
        e(f"buffer_load_dword v255, v1, {sr(S_KC)}, s{S_T} offen")
    e("v_lshrrev_b32 v1, 6, v0")
    e("v_and_b32 v0, 63, v0")
    e(f"v_readfirstlane_b32 s{S_WAVE}, v1")
    e(f"s_and_b32 s{S_T}, s2, 7")
    e(f"s_lshr_b32 s{S_T+1}, s2, 3")
    e(f"s_lshr_b32 s{S_G}, s{S_T+1}, 4")
    e(f"s_lshl_b32 s{S_T}, s{S_T}, 1")
    e(f"s_add_u32 s{S_G}, s{S_G}, s{S_T}")
    e(f"s_and_b32 s{S_R}, s{S_T+1}, 15")
    e(f"s_mov_b32 s{S_MASK}, 0x7fff7fff")
    e("v_and_b32 v25, 31, v0"); e("v_lshlrev_b32 v25, 2, v25"); e(f"v_add_u32 v25, {M_CNT}, v25"); e("v_mov_b32 v2, 0")
    e("ds_write_b32 v25, v2")
    if PAR.barpos == 2: e("s_waitcnt lgkmcnt(0)"); e("s_barrier")
    e(f"s_cmp_ge_u32 s{S_WAVE}, 4")
    e("s_cbranch_scc1 L_helper")

SRDS = {S_IDX: (48, 4096*104), S_TAB: (50, 6400000), S_WC: (52, LB), S_WO: (54, 312), S_W1: (56, 832*1664), S_B1: (58, 1664), S_W2: (60, 1664),
        S_BO: (62, 2), S_OUT: (64, 8192), S_DBG: (66, 256), S_WS: (68, 1 << 28)}
def srd_const(g, lst):
    for srd in lst: g.e(f"s_mov_b32 s{srd+2}, {SRDS[srd][1]}"); g.e(f"s_mov_b32 s{srd+3}, 0x00020000")
def srd_base(g, lst):
    for srd in lst: g.e(f"s_mov_b64 s[{srd}:{srd+1}], s[{SRDS[srd][0]}:{SRDS[srd][0]+1}]")
ACC, ACC2, XR, UR, BR, AR, SC, LG, TM = 4, 68, 132, 188, 216, 228, 244, 248, 252
def X(k, p): return XR + 14 * k + p
def EV(k): return XR + 14 * k + 13
def U(k, t): return UR + 7 * k + t
def cin(g):
    e = g.e
    e("s_setprio 3")
    e(f"s_lshl_b32 s{S_T}, s{S_G}, 8"); e(f"s_lshl_b32 s{S_T+1}, s{S_R}, 4"); e(f"s_add_u32 s{S_T}, s{S_T}, s{S_T+1}")
    e(f"s_lshl_b32 s{S_T+1}, s{S_WAVE}, 2"); e(f"s_add_u32 s{S_SB}, s{S_T}, s{S_T+1}")
    e("v_lshrrev_b32 v1, 4, v0")
    e("v_bfe_u32 v2, v0, 2, 2")
    e("v_and_b32 v3, 3, v0")
    e("v_mul_u32_u24 v4, 104, v1")
    e("v_mad_u32_u24 v4, v2, 28, v4")
    I = 8
    CS = [S_IDX, S_WC, S_TAB, S_WS, S_OUT] + ([S_DBG] if PAR.dbg is not None or PAR.gmin else [])
    srd_const(g, CS[:1])
    e(f"s_mul_i32 s{S_T}, s{S_SB}, 104")
    g.stamp("i")
    e("s_waitcnt lgkmcnt(0)")
    g.stamp("i")
    srd_base(g, CS[:1])
    e(f"buffer_load_dwordx4 {vr(I,4)}, v4, {sr(S_IDX)}, s{S_T} offen {PAR.imod}")
    e(f"buffer_load_dwordx3 {vr(I+4,3)}, v4, {sr(S_IDX)}, s{S_T} offen offset:16 {PAR.imod}")
    if PAR.ttouch:
        e("v_lshlrev_b32 v15, 20, v0")
        for w, lst in enumerate(PAR.tset):
            if not lst: continue
            lb = g.newlab("tt")
            e(f"s_cmp_lg_u32 s{S_WAVE}, {w}"); e(f"s_cbranch_scc1 {lb}")
            for srd in lst:
                srd_const(g, [srd]); srd_base(g, [srd])
                if srd == S_WS:
                    e(f"s_mul_i32 s{S_T}, s{S_G}, {4*XBS}"); e(f"s_add_u32 s{S_T}, s{S_T}, {WS_X - 128}")
                    e(f"v_mul_u32_u24 v17, {4*XBS}, v0"); e(f"v_add_u32 v17, s{S_T}, v17"); e(f"v_mov_b32 v18, {WS_X - 128}"); e("v_cmp_lt_u32 vcc, 1, v0"); e("v_cndmask_b32 v17, v17, v18, vcc")
                    e(f"buffer_load_ushort v19, v17, {sr(srd)}, 0 offen sc1")
                else: e(f"buffer_load_ushort v19, v15, {sr(srd)}, 0 offen" + (" sc1" if srd == S_DBG else ""))
            g.lab(lb)
    e(f"s_setprio {PAR.sp}")
    e("s_branch L_cin2")
    g.lab("L_cin2")
    srd_base(g, CS[1:])
    e(f"s_load_dword s{S_BO}, s[62:63], 0")
    srd_const(g, CS[1:])
    e(f"s_mov_b32 s{S_WC+2}, {2*LB}"); e(f"s_mov_b32 s{S_J}, s{S_WAVE}")
    e("v_lshlrev_b32 v5, 4, v3")
    e("v_cmp_eq_u32 vcc, 3, v2")
    e(f"v_mov_b32 v6, {OOB}")
    e("v_cndmask_b32 v6, 0, v6, vcc")
    e("v_add_u32 v6, v6, v5")
    e("v_lshlrev_b32 v26, 4, v0"); e("v_cmp_lt_u32 vcc, 42, v0"); e(f"v_mov_b32 v27, {OOB}"); e("v_cndmask_b32 v26, v26, v27, vcc")
    e("v_lshlrev_b32 v29, 4, v0"); e(f"v_add_u32 v29, {BUFA + 28*1024}, v29")
    e(f"s_lshl_b32 s{S_T}, s{S_J}, 4"); e(f"s_add_u32 s{S_T}, s{S_T}, {BUFB}")
    e(f"v_mul_u32_u24 v28, {S0STR}, v0"); e(f"v_add_u32 v28, s{S_T}, v28"); e("v_cndmask_b32 v28, v28, v29, vcc")
    e(f"s_mul_i32 s{S_T+1}, s{S_WAVE}, {4*XSTR}"); e(f"s_add_u32 s{S_T+1}, s{S_T+1}, {D0}")
    e(f"v_mul_u32_u24 v7, {XSTR}, v1")
    e("v_mad_u32_u24 v16, v2, 7, 0")
    e("v_lshl_add_u32 v7, v16, 6, v7")
    e(f"v_add3_u32 v7, v7, v5, s{S_T+1}")
    e("v_cmp_eq_u32 vcc, 3, v2")
    e(f"v_lshl_add_u32 v18, v0, 4, 0"); e(f"v_add_u32 v18, {D0 + 16*XSTR + 256 - 320}, v18"); e("v_cndmask_b32 v18, v7, v18, vcc")
    e("v_lshrrev_b32 v16, 1, v1")
    e("v_xor_b32 v16, v16, v2")
    e("v_lshlrev_b32 v16, 6, v16")
    e("v_and_b32 v17, 1, v1")
    e("v_lshl_add_u32 v16, v17, 5, v16")
    e("v_lshl_add_u32 v16, v3, 3, v16")
    e(f"v_add_u32 v16, s{S_T+1}, v16")
    for k in range(4): e(f"v_mov_b32 v{LG+k}, 0")
    PA, PS, DR = 32, 40, 184
    if PAR.zpad:
        for i in range(4): e(f"v_mov_b32 v{PS+i}, 0")
        e(f"s_and_b32 s{S_T}, s{S_J}, 1"); e(f"s_mul_i32 s{S_T}, s{S_T}, 48"); e(f"s_lshr_b32 s{S_T+1}, s{S_J}, 1"); e(f"s_mul_i32 s{S_T+1}, s{S_T+1}, 480")
        e(f"s_add_u32 s{S_T}, s{S_T}, s{S_T+1}"); e(f"v_add_u32 v30, s{S_T}, v28")
        e(f"v_subrev_u32 v31, {BUFB - BUFA}, v30"); e("v_cmp_lt_u32 vcc, 22, v0"); e("v_cndmask_b32 v31, v31, v29, vcc")
        for i in range(3):
            e(f"ds_write_b128 v30, {vr(PS,4)} offset:{25*16 + 16*i}"); e(f"ds_write_b128 v31, {vr(PS,4)} offset:{25*16 + 16*i}")
    unpack_mat(g, PA, 20)
    e("s_setprio 1")
    L1R = 132
    if not PAR.barpos: e("s_barrier")
    g.stamp("i")
    e(f"s_mul_i32 s{S_T}, s{S_J}, 1352")
    for i in range(13):
        if i < 12:
            t = i >> 1
            if i & 1 == 0: e(f"s_add_u32 s{S_T+1}, s{S_T}, {LB + (13*(t&1) + 4*(t>>1))*1352}")
            e(f"buffer_load_dwordx4 {vr(L1R+4*i,4)}, v26, {sr(S_WC)}, s{S_T+1} offen offset:{676*(i&1)}")
        else:
            e(f"s_lshr_b32 s{S_T+1}, s{S_J}, 1"); e(f"s_mul_i32 s{S_T+1}, s{S_T+1}, {13*1352}"); e(f"s_and_b32 s{S_T+2}, s{S_J}, 1"); e(f"s_mul_i32 s{S_T+2}, s{S_T+2}, 676")
            e(f"s_add_u32 s{S_T+1}, s{S_T+1}, s{S_T+2}"); e(f"s_add_u32 s{S_T+1}, s{S_T+1}, {LB + 12*1352}")
            e(f"buffer_load_dwordx4 {vr(L1R+4*i,4)}, v26, {sr(S_WC)}, s{S_T+1} offen")
    e("s_setprio 3")
    g.stamp("i")
    e("s_waitcnt vmcnt(13)")
    g.stamp("i")
    GR, MR = 68, 96
    for t in range(7):
        e(f"v_lshl_add_u32 v{I+t}, v{I+t}, 6, v{5 if t < 5 else 6}")
        e(f"buffer_load_dwordx4 {vr(GR+4*t,4)}, v{I+t}, {sr(S_TAB)}, 0 offen {PAR.gmod}")
    g.stamp(); g.stamp("i")
    e(f"s_setprio {PAR.cp}")
    if PAR.barpos == 1: e("s_barrier")
    def carrive(c):
        e("v_mov_b32 v2, 1"); e("s_mov_b64 exec, 1"); e(f"ds_add_u32 v25, v2 offset:{CNT[c]-M_CNT}"); e("s_mov_b64 exec, -1")
    for i in range(13):
        e(f"s_waitcnt vmcnt({7 + 12 - i})")
        unpack(g, DR, PA, L1R, i)
        if i & 1 and i >= 3: tmax(g, DR, (i >> 1) - 1, 16, i == 3)
    e(f"s_and_b32 s{S_T}, s{S_J}, 1"); e(f"s_lshl_b32 s{S_T}, s{S_T}, 4")
    tmax(g, DR, 5, 16, False)
    for r in range(4): e(f"v_alignbit_b32 v{L1R+48+r}, v{L1R+48+r}, v{L1R+48+r}, s{S_T}")
    tmax(g, DR, 6, 8, False)
    put_max(g, M_L1)
    carrive("L1M")
    for i in range(8): e(f"v_and_b32 v{PS+i}, 0x800080, v{PA+i}")
    g.stamp("s")
    e(f"s_setprio {PAR.cp2}")
    lwait(g, "L1M", 4, 25, 2)
    get_max(g, M_L1)
    e(f"v_readfirstlane_b32 s{S_T}, v1")
    e(f"s_lshr_b32 s{S_T}, s{S_T}, 23"); e(f"s_min_u32 s{S_T}, s{S_T}, 249"); e(f"s_sub_u32 s{S_HDR+2}, s{S_T}, 124")
    e(f"s_sub_u32 s{S_T}, {127+124}, s{S_T}")
    for i in range(8): e(f"v_mul_u32_u24 v{PS+i}, s{S_T}, v{PS+i}")
    def l1out(i):
        d = DR + 16 * ((i >> 1) & 3) + 8 * (i & 1)
        for r in range(4):
            lo, hi = (d + 2 * r + 1, d + 2 * r) if (i & 1) else (d + 2 * r, d + 2 * r + 1)
            e(f"v_cvt_pk_f16_f32 v{L1R+4*i+r}, v{lo}, v{hi}")
        if i < 12:
            t = i >> 1; o = 16 * (8 * (t >> 1) + 4 * (t & 1)) + 512 * (i & 1)
        else:
            e(f"s_lshr_b32 s{S_T}, s{S_J}, 1"); e(f"s_lshl_b32 s{S_T}, s{S_T}, 5"); e(f"s_and_b32 s{S_T+1}, s{S_J}, 1"); e(f"s_mul_i32 s{S_T+1}, s{S_T+1}, 496")
            e(f"s_add_u32 s{S_T}, s{S_T}, s{S_T+1}"); e(f"v_add_u32 v28, s{S_T}, v28"); o = 24 * 16
        e(f"ds_write_b128 v28, {vr(L1R+4*i,4)} offset:{o}")
    for i in range(13):
        unpack(g, DR, PS, L1R, i)
        if i >= 4: l1out(i - 4)
    for i in range(9, 13): l1out(i)
    g.stamp("s")
    e(f"ds_read_b32 v3, v25 offset:{CNT['S0OK']-M_CNT}")
    e("v_lshlrev_b32 v1, 4, v0")
    for i in range(2): e(f"ds_read_b128 {vr(AR+4*i,4)}, v1 offset:{BUFA + i*S0STR}")
    e("s_waitcnt lgkmcnt(2)")
    DR = 132
    e("v_mov_b32 v2, 1")
    e(f"s_setprio {PAR.xp}")
    for t in range(7):
        e(f"s_waitcnt vmcnt({6 - t})")
        unpack(g, DR, PA, GR, t)
        e(f"ds_write_b128 v{7 if t < 5 else 18}, {vr(GR+4*t,4)} offset:{64*t}")
        if t in (3, 5): tmax(g, DR, (t >> 1) - 1, 16, t == 3, 20)
    e("s_mov_b64 exec, 1"); e(f"ds_add_u32 v25, v2 offset:{CNT['RAW']-M_CNT}"); e("s_mov_b64 exec, -1")
    g.stamp(); g.stamp("s")
    tmax(g, DR, 2, 16, False, 20); tmax(g, DR, 3, 8, False, 20)
    for sh in (8, 4, 2, 1):
        e(f"v_max_u32_dpp v20, v20, v20 row_ror:{sh} {DPPALL}")
    e("v_lshrrev_b32 v20, 23, v20"); e("v_max_u32 v20, 4, v20")
    e(f"v_sub_u32 v22, {127+130}, v20"); e("v_lshlrev_b32 v22, 23, v22")
    for t in range(7):
        d = DR + 8 * t
        for i in range(8): e(f"v_mul_f32 v{d+i}, v{d+i}, v22")
        for i in range(4): e(f"v_cvt_pk_f16_f32 v{MR+4*t+i}, v{d+2*i}, v{d+2*i+1}")
        e(f"ds_write_b128 v{7 if t < 5 else 18}, {vr(MR+4*t,4)} offset:{D1 - D0 + 64*t}")
    for k in range(4):
        for t in range(7):
            e(f"ds_read_b64_tr_b16 {vr(X(k,2*t),2)}, v16 offset:{D1 - D0 + k*XSTR+t*256}")
    for k in range(4): e(f"v_readlane_b32 s{S_EX+k}, v20, {16*k}")
    HW = lambda l: S_HDR + 2 * l
    HD = lambda l: S_HDR + 2 * l + 1
    HQ, HL = S_HDR + 8, S_HDR + 9
    e("s_setprio 1")
    e(f"v_readfirstlane_b32 s{S_T}, v3"); e(f"s_cmp_ge_u32 s{S_T}, 4"); e("s_cbranch_scc1 L_s0ok")
    lwait(g, "S0OK", 4, 25, 2)
    for i in range(2): e(f"ds_read_b128 {vr(AR+4*i,4)}, v1 offset:{BUFA + i*S0STR}")
    g.lab("L_s0ok")
    e("s_waitcnt lgkmcnt(14)")
    g.stamp(); g.stamp("s")

    ready = set()
    def quad_prod(k, rho):
        p, q = QPAIRS[rho]
        return lambda d: f"v_pk_mul_f16 v{d}, v{X(k,p)}, v{X(k,q)} op_sel_hi:[0,1]"
    def gen_prod(l):
        def f(k, rho):
            r, p = divmod(rho, 13)
            def mk(d):
                if r == 13: return f"v_mov_b32 v{d}, v{U(k,p)}" if l == 2 else f"v_mov_b32 v{d}, 0"
                assert ('u', l, k, r) in ready, (l, k, r)
                if r & 1: return f"v_pk_mul_f16 v{d}, v{U(k,r>>1)}, v{X(k,p)} op_sel:[1,0] op_sel_hi:[1,1]"
                return f"v_pk_mul_f16 v{d}, v{U(k,r>>1)}, v{X(k,p)} op_sel_hi:[0,1]"
            return mk
        return f
    def lin_prod(k, t):
        b = 2 * t + 1 if 2 * t + 1 < 13 else 2 * t
        return lambda d: f"v_pack_b32_f16 v{d}, v{X(k,2*t)}, v{X(k,b)}"
    S_CL = S_C1
    e(f"s_mov_b32 s{S_CL}, {115 << 23}"); e(f"s_mov_b32 s{S_MASK}, 145"); e(f"s_lshl_b32 s{S_BO}, s{S_BO}, 16")
    def cvt1(acc, k, t): return f"v_cvt_pk_f16_f32 v{U(k,t)}, v{acc+16*k+2*t}, " + (f"v{acc+16*k+2*t+1}" if t < 6 else "0")
    def scl1(l, k, t): return [(f"v_pk_mul_f16 v{U(k,t)}, v{U(k,t)}, v{SC+k} op_sel_hi:[1,0]", ('u', l + 1, k, 2 * t)), (None, ('u', l + 1, k, 2 * t + 1))]
    def head(acc, l, k):
        a = acc + 16 * k; ef = EV(k) if l == 0 else TM + k
        return [f"v_max3_f32 v{SC+k}, |v{a}|, |v{a+1}|, |v{a+2}|", f"v_max3_f32 v{TM+k}, |v{a+3}|, |v{a+4}|, |v{a+5}|",
                f"v_max3_f32 v{SC+k}, v{SC+k}, |v{a+6}|, |v{a+7}|", f"v_max3_f32 v{TM+k}, v{TM+k}, |v{a+8}|, |v{a+9}|",
                f"v_max3_f32 v{SC+k}, v{SC+k}, |v{a+10}|, |v{a+11}|", f"v_max3_f32 v{SC+k}, v{SC+k}, v{TM+k}, |v{a+12}|",
                f"v_mov_b32 v{TM+k}, v{SC+k}", cvt1(acc, k, 0), cvt1(acc, k, 1),
                f"v_permlane32_swap_b32 v{SC+k}, v{TM+k}", f"v_max3_f32 v{SC+k}, v{SC+k}, v{TM+k}, s{S_CL}",
                f"v_lshrrev_b32 v{ef}, 23, v{SC+k}", f"v_sub_u32 v{SC+k}, s{S_MASK}, v{ef}", f"v_lshlrev_b32 v{SC+k}, 10, v{SC+k}"] + scl1(l, k, 0)
    def rest(acc, l):
        o = []
        for k in range(4): o += scl1(l, k, 1)
        for t in range(2, 7):
            o += [cvt1(acc, k, t) for k in range(4)]
            for k in range(4): o += scl1(l, k, t)
        return o
    def evup(l):
        return [(None, 'x', ('k', l))] + [f"v_add3_u32 v{EV(k)}, v{EV(k)}, v{TM+k}, s{S_K+k}" for k in range(4)] + [(None, ('ev', l))]
    state = dict(base=0, n=0)
    lq = []
    landed = set()
    def emit(x):
        if callable(x): return x() or 0
        if isinstance(x, tuple):
            if len(x) == 3: assert x[2] in ready, x
            ready.add(x[1]); x = x[0]
        if not x: return 0
        e(x)
        if x.startswith('ds_'): lq.append(['side', state['n']])
        return 2 if 'permlane' in x else 1
    GATE = 'GATE'
    import re
    def nbytes(x):
        if callable(x): return 0 if x.__name__ == '<lambda>' else 8
        if isinstance(x, tuple): x = x[0]
        if not x or x == GATE: return 0
        op = x.split()[0]
        lit = any(abs(int(t, 0)) > 64 for t in re.findall(r'(?<![\w\[:])(-?(?:0x[0-9a-f]+|\d+))(?![\w\]:.])', x.split(None, 1)[1]))
        short = op.startswith('s_') or op in ('v_mov_b32', 'v_mul_f32', 'v_add_f32', 'v_add_u32', 'v_sub_u32', 'v_lshrrev_b32', 'v_lshlrev_b32', 'v_and_b32',
                                              'v_permlane32_swap_b32', 'v_readfirstlane_b32', 'v_cmp_lt_u32', 'v_cndmask_b32', 'v_max_f32', 'v_fmac_f32')
        return 4 if short and not lit else 8
    jobs = []; frags = []; pos = {}
    def phase(name, nprod, prod, acc, base, stride=1024, ok=None, needs=None, skew0=False, skew1=False, extra=None):
        ns = (nprod + 3) // 4
        fr = [dict(lds=base + stride * s, ok=ok if s == 0 else None) for s in range(ns)]
        frags.extend(fr)
        order = [(s, k) for s in range(ns) for k in range(4)]
        if skew0: order[:8] = [(s, k) for k in range(4) for s in (0, 1)]
        if skew1: order[-8:] = [(s, k) for k in range(4) for s in (ns - 2, ns - 1)]
        for i, (s, k) in enumerate(order):
            if i % 4 == 0: pos[(name, i // 4)] = len(jobs)
            jobs.append(dict(acc=acc + 16 * k, fr=fr[s], zero=(s == 0), needs=needs if s == 0 else None, last=(name, k) if s == ns - 1 else None,
                             prods=[prod(k, rho) for rho in range(4 * s, min(4 * s + 4, nprod))], req=('u', int(name[1]), k, 0) if name[0] == 'L' and s == 0 else None))
            if extra and i % 4 == 3 and i // 4 in extra: jobs.extend(extra[i // 4])
    LT, LA = UR, UR + 16
    LP = [3, 8, 13, 18]
    LN = {LP[k]: [dict(acc=LT, a=LA + 4 * i, zero=(i == 0), needs=('lin', k - 1), last=('LN', k) if i else None, req=None,
                       prods=[lin_prod(k, t) for t in range(4 * i, min(4 * i + 4, 7))]) for i in range(2)] for k in range(4)}
    sk = PAR.skew
    phase("S0", 91, quad_prod, ACC, BUFA, stride=S0STR, skew1=sk)
    phase("L1", 172, gen_prod(1), ACC2, BUFB, stride=S0STR, ok="RAW", skew0=sk, skew1=sk)
    phase("L2", 176, gen_prod(2), ACC, BUFA, ok="L2OK", needs=('free', 0), skew0=sk, skew1=sk)
    phase("L3", 169, gen_prod(3), ACC2, BUFB, ok="L3OK", needs=('free', 1), skew0=sk)
    phase("Q4", 91, quad_prod, ACC, QB, ok="QOK", needs=('free', 2), skew1=sk, extra=LN)
    for i, f in enumerate(frags): f['id'] = i; f['a'] = AR + 4 * (i % 4)
    for n, j in enumerate(jobs):
        if 'fr' in j: j['fr'].setdefault('first', n); j['fr']['lastj'] = n
    def hdr(addr, sa, sb=None):
        return [f"v_mov_b32 v3, {addr}", "ds_read_b64 v[2:3], v3", GATE, f"v_readfirstlane_b32 s{sa}, v2"] + ([f"v_readfirstlane_b32 s{sb}, v3"] if sb else [])
    def arrive(c, after=None):
        def f():
            if after is not None: assert 'issued' in after
            e(f"v_add_u32 v3, {(CNT[c] - state['base']) & 0xffffffff}, v1"); return 1
        return ["v_mov_b32 v2, 1", f, "ds_add_u32 v3, v2"]
    def check(c):
        def f():
            slow = g.newlab("cs"); back = g.newlab("cb"); top = g.newlab("ct")
            if c != "RAW": g.stamp("w")
            e(f"s_cmp_lt_u32 s{S_T+2}, 4"); e(f"s_cbranch_scc1 {slow}")
            g.lab(back)
            if c != "RAW": g.stamp("w")
            g.tail += [slow + ":", f"    s_mov_b32 s{S_T+1}, {SPIN*8}", top + ":", "    s_sleep 1", "    ds_read_b32 v2, v3", "    s_waitcnt lgkmcnt(0)",
                       f"    v_readfirstlane_b32 s{S_T+2}, v2", f"    s_cmp_ge_u32 s{S_T+2}, 4", f"    s_cbranch_scc1 {back}",
                       f"    s_sub_u32 s{S_T+1}, s{S_T+1}, 1", f"    s_cbranch_scc0 {top}", f"    s_branch {back}"]
            ready.add(c); return 2
        return [f"v_mov_b32 v3, {CNT[c]}", "ds_read_b32 v2, v3", GATE, f"v_readfirstlane_b32 s{S_T+2}, v2", f]
    def stp(n=None): return [lambda: g.stamp(n)]
    HOFF = 29 * 16
    PV, PA = 2, 3
    def pload():
        e(f"buffer_load_dword v{PV}, v{PA}, {sr(S_WS)}, s{S_T+3} offen sc1"); return 1
    kc1 = [f"s_add_u32 s{S_T}, s{HW(0)}, s{HW(1)}", f"s_add_u32 s{S_T}, s{S_T}, s{HD(2)}", f"s_sub_u32 s{S_T}, s{S_T}, 780"]
    kc1 += [f"s_lshl2_add_u32 s{S_K+k}, s{S_EX+k}, s{S_T}" for k in range(4)] + [(None, ('k', 1))]
    k1 = [f"s_sub_u32 s{S_T}, s{HD(1)}, s{HD(2)}", f"s_add_u32 s{S_T}, s{S_T}, 130"] + [f"s_sub_u32 s{S_K1+k}, s{S_T}, s{S_EX+k}" for k in range(4)] + [(None, 'k1')]
    kc2 = [(None, 'x', ('ev', 1)), f"s_sub_u32 s{S_T}, s{HW(2)}, s{HD(2)}", f"s_add_u32 s{S_T}, s{S_T}, s{HD(3)}", f"s_sub_u32 s{S_T}, s{S_T}, 260"]
    kc2 += [f"s_add_u32 s{S_K+k}, s{S_T}, s{S_EX+k}" for k in range(4)] + [(None, ('k', 2))]
    dots = [(None, 'x', 'k1')]
    for k in range(4): dots.append(f"v_ldexp_f32 v{ACC+16*k+15}, v{ACC+16*k+15}, v{EV(k)}")
    for k in range(4): dots.append(f"v_add_u32 v{ACC+16*k+13}, s{S_K1+k}, v{EV(k)}")
    for k in range(4): dots.append(f"v_ldexp_f32 v{ACC+16*k+14}, v{ACC+16*k+14}, v{ACC+16*k+13}")
    for k in range(4): dots.append(f"v_add_f32 v{LG+k}, v{ACC+16*k+14}, v{ACC+16*k+15}")
    kf = [(None, 'x', ('ev', 2)), f"s_sub_u32 s{S_T}, s{HW(3)}, s{HD(3)}", f"s_sub_u32 s{S_T}, s{S_T}, 130", f"s_add_u32 s{HL}, s{HL}, s{S_T}", f"s_add_u32 s{HQ}, s{HQ}, s{S_T}",
          f"s_sub_u32 s{HQ}, s{HQ}, 130", f"s_sub_u32 s{HD(0)}, s{HD(0)}, 260"]
    for k in range(4):
        kf += [f"s_add_u32 s{S_K1+k}, s{HL}, s{S_EX+k}", f"s_lshl1_add_u32 s{S_K+k}, s{S_EX+k}, s{HQ}", f"s_lshl1_add_u32 s{S_KC+k}, s{S_EX+k}, s{HD(0)}"]
    kf.append((None, 'kf'))
    pre = ["v_bfe_u32 v2, v0, 4, 1", "v_lshrrev_b32 v3, 5, v0", "v_lshl_add_u32 v2, v2, 1, v3", "v_and_b32 v3, 15, v0", f"v_cmp_lt_u32 vcc, {NR-1}, v3",
           "v_lshlrev_b32 v3, 10, v3", "v_lshl_add_u32 v3, v2, 2, v3", f"v_mov_b32 v2, {OOB}", "v_cndmask_b32 v3, v3, v2, vcc",
           f"s_mul_i32 s{S_T+3}, s{S_G}, {NR*1024}", f"s_and_b32 s{S_T}, s{S_SB}, 255", f"s_lshl_b32 s{S_T}, s{S_T}, 2",
           f"s_add_u32 s{S_T+3}, s{S_T+3}, s{S_T}", f"s_add_u32 s{S_T+3}, s{S_T+3}, {WS_PART}"]
    def lread():
        for i in range(2): emit(f"ds_read_b128 {vr(LA+4*i,4)}, v1 offset:{QB + (24 + i)*1024 - state['base']}")
        return 2
    BO = ACC2 + 14
    d3 = [f"v_ldexp_f32 v{ACC2+16*k+15}, v{ACC2+16*k+15}, v{EV(k)}" for k in range(4)] + [f"v_add_f32 v{LG+k}, v{LG+k}, v{ACC2+16*k+15}" for k in range(4)]
    if PAR.otouch: d3 += [f"s_lshl_b32 s{S_J}, s{S_SB}, 1", f"buffer_load_ushort v{BO+16}, v{BO-1}, {sr(S_OUT)}, s{S_J} offen"]
    fill = {("L1", 2): rest(ACC, 0) + [(None, ('free', 0))], ("L2", 2): rest(ACC2, 1) + [(None, ('free', 1))], ("L2", 16): evup(1),
            ("L3", 2): rest(ACC, 2) + dots + [(None, ('free', 2))] + evup(2), ("Q4", 1): d3}
    for k in range(4):
        o = [f"v_mul_f32 v{SC+k}, v{LT}, v{ACC2+16*k}"] + [f"v_fmac_f32 v{SC+k}, v{LT+r}, v{ACC2+16*k+r}" for r in range(1, 13)] + [(None, ('lin', k)), (None, 'x', 'kf')]
        o += [f"v_add_u32 v{TM+k}, s{S_K1+k}, v{EV(k)}", f"v_ldexp_f32 v{SC+k}, v{SC+k}, v{TM+k}", f"v_add_u32 v{TM+k}, s{S_K+k}, v{EV(k)}", f"v_add_f32 v{LG+k}, v{LG+k}, v{SC+k}", (None, ('lind', k))]
        fill[("Q4", LP[k] + 2)] = o
    def final(k):
        return ([(None, 'x', ('lind', k)), f"v_mul_f32 v{SC+k}, v{ACC+16*k}, v{ACC2+16*k}", f"v_ldexp_f32 v{ACC+16*k+15}, v{ACC+16*k+15}, s{S_KC+k}"]
                + [f"v_fmac_f32 v{SC+k}, v{ACC+16*k+r}, v{ACC2+16*k+r}" for r in range(1, 13)]
                + [f"v_add_f32 v{LG+k}, v{LG+k}, v{ACC+16*k+15}", f"v_ldexp_f32 v{SC+k}, v{SC+k}, v{TM+k}", f"v_add_f32 v{LG+k}, v{LG+k}, v{SC+k}"])
    urgent = {}
    for k in range(4):
        urgent[("S0", k)] = head(ACC, 0, k); urgent[("L1", k)] = head(ACC2, 1, k); urgent[("L2", k)] = head(ACC, 2, k); urgent[("Q4", k)] = final(k)
    side = {("S0", 0): arrive("RB"), ("S0", 2): hdr(BUFA + 23 * S0STR + 512, HW(0)), ("S0", 14): check("RAW"), ("S0", 21): arrive("AFREE", frags[22]),
            ("S0", 8): ["s_setprio 2"], PAR.drop: ["s_setprio 0"],
            ("L1", 0): stp(), ("L1", 35): check("L2OK"), ("L1", 41): arrive("BFREE", frags[65]),
            ("L2", 0): stp(), ("L2", 4): hdr(BUFA + HOFF, HW(2), HD(2)) + kc1 + hdr(BUFA + HOFF + 8, HD(1)) + k1, ("L2", 36): check("L3OK"),
            ("L3", 12): hdr(BUFB + HOFF, HW(3), HD(3)) + kc2,
            ("L3", 43 - PAR.qchk): check("QOK") + hdr(QB + 23 * 1024, HQ, HL) + hdr(QB + 23 * 1024 + 8, HD(0)),
            ("Q4", 0): [lread, GATE, (None, ('lin', -1))] + kf, ("Q4", 9): pre[:7], ("Q4", 14): pre[7:], ("Q4", PAR.pload): [pload]}
    rates = {("S0", 0): PAR.rate, ("L1", 0): PAR.l1rate, ("L2", 0): 32, ("L3", 0): PAR.l3rate, ("Q4", 0): PAR.qrate}
    fill = {pos[k]: v for k, v in fill.items()}; side = {pos[k]: v for k, v in side.items()}; rates = {pos[k]: v for k, v in rates.items()}
    frags[0]['issued'] = frags[1]['issued'] = True
    nfr = 2; fq = []; sq = []; uq = []; credit = 0; gated = False
    def prods(n):
        job = jobs[n]; job['b'] = BR + 4 * (n % 3)
        while job['req'] and job['req'] not in ready: emit(uq.pop(0)[1])
        return [p(job['b'] + i) for i, p in enumerate(job['prods'])]
    for n in range(2):
        for x in prods(n): e(x)
    e("s_waitcnt lgkmcnt(0)"); landed |= {0, 1}
    for n, job in enumerate(jobs):
        state['n'] = n
        fq += fill.get(n, []); sq += side.get(n, []); rate = rates.get(n, rate if n else None)
        budget = 6
        if 'fr' in job and job['fr']['id'] not in landed:
            idx = max(i for i, (t, at) in enumerate(lq) if t == job['fr']['id'] or at <= n - 3)
            e(f"s_waitcnt lgkmcnt({len(lq) - 1 - idx})")
            landed |= {t for t, at in lq[:idx + 1]}; del lq[:idx + 1]
        if job['needs']: assert job['needs'] in ready, job['needs']
        c = "0" if job['zero'] else vr(job['acc'], 16)
        e(f"v_mfma_f32_32x32x16_f16 {vr(job['acc'],16)}, {vr(job['a'] if 'a' in job else job['fr']['a'],4)}, {vr(job['b'],4)}, {c}")
        if job['last'] in urgent: uq += [(n + 2, x) for x in urgent[job['last']]]
        if nfr < len(frags) and frags[nfr]['first'] - n <= PAR.la and (nfr < 4 or frags[nfr - 4]['lastj'] < n):
            f = frags[nfr]; nfr += 1; f['issued'] = True
            if f['ok']: assert f['ok'] in ready, f['ok']
            r = f['lds'] - state['base']
            if r < 0 or r > 65535:
                e(f"v_add_u32 v1, {r & 0xffffffff}, v1"); state['base'] = f['lds']; r = 0; budget -= 1
            e(f"ds_read_b128 {vr(f['a'],4)}, v1 offset:{r}"); lq.append([f['id'], n]); budget -= 1
        u = PAR.urate
        while uq and uq[0][0] <= n and u > 0: c = emit(uq.pop(0)[1]); u -= c; budget -= c
        if n + 2 < len(jobs):
            ps = prods(n + 2)
            for x in ps: e(x)
            budget -= len(ps)
            credit += sum(8 - nbytes(p) for p in ps) + 8 * (4 - len(ps))
        credit = min(credit + rate / 4, 16)
        while sq:
            if sq[0] == GATE:
                if any(t == 'side' for t, at in lq): break
                sq.pop(0); continue
            if not ((budget > 0 and credit >= nbytes(sq[0])) or nbytes(sq[0]) == 0): break
            x = sq.pop(0); budget -= emit(x); credit -= nbytes(x)
        while fq and ((budget > 0 and credit >= nbytes(fq[0])) or nbytes(fq[0]) == 0):
            x = fq.pop(0); budget -= emit(x); credit -= nbytes(x)
    assert not sq and not fq, (sq, fq)
    g.stamp()
    for at, x in uq: emit(x)
    e(f"v_permlane32_swap_b32 v{LG}, v{LG+1}"); e(f"v_permlane32_swap_b32 v{LG+2}, v{LG+3}")
    e(f"v_add_f32 v{LG}, v{LG}, v{LG+1}"); e(f"v_add_f32 v{LG+2}, v{LG+2}, v{LG+3}")
    e(f"v_permlane16_swap_b32 v{LG}, v{LG+2}")
    e(f"v_add_f32 v{LG}, v{LG}, v{LG+2}")
    e(f"s_mov_b32 s{S_T}, {SPIN}")
    g.lab("L_pcheck")
    e("s_waitcnt vmcnt(0)")
    e(f"v_cmp_eq_u32 vcc, -1, v{PV}")
    e("s_nop 1")
    e("s_cbranch_vccz L_pok")
    e("s_sleep 4")
    pload()
    e(f"s_sub_u32 s{S_T}, s{S_T}, 1")
    e("s_cbranch_scc0 L_pcheck")
    e("s_waitcnt vmcnt(0)")
    g.lab("L_pok")
    e(f"v_add_f32 v{LG}, v{LG}, v{PV}")
    for sh in (8, 4, 2, 1):
        e(f"v_add_f32_dpp v{LG}, v{LG}, v{LG} row_ror:{sh} {DPPALL}")
    e(f"v_add_f32 v{LG}, s{S_BO}, v{LG}")
    e(f"v_cvt_pk_bf16_f32 v{LG}, v{LG}, v{LG}")
    e(f"v_lshrrev_b32 v{PA}, 1, v{PA}")
    e(f"v_cmp_lt_u32 vcc, 7, v{PA}")
    e(f"v_mov_b32 v2, {OOB}")
    e(f"v_cndmask_b32 v{PA}, v{PA}, v2, vcc")
    e(f"s_lshl_b32 s{S_T}, s{S_SB}, 1")
    e(f"buffer_store_short v{LG}, v{PA}, {sr(S_OUT)}, s{S_T} offen")
    g.stamp(); g.stamp("e")
    if PAR.enc is not None:
        e("s_waitcnt lgkmcnt(0)")
        if PAR.gmin:
            e(f"s_not_b32 s{S_T}, s{S_ST}"); e(f"v_mov_b32 v4, s{S_T}"); e("v_mov_b32 v5, 0"); e("s_mov_b64 exec, 1")
            e(f"buffer_atomic_umax v4, v5, {sr(S_DBG)}, 0 offen offset:192 sc1"); e("s_waitcnt vmcnt(0)")
            g.lab("L_enc0")
            e(f"s_memrealtime s[{S_T+2}:{S_T+3}]"); e("s_waitcnt lgkmcnt(0)")
            e(f"s_sub_u32 s{S_T+2}, s{S_T+2}, s{S_ST}"); e(f"s_cmp_lt_u32 s{S_T+2}, 5000"); e("s_cbranch_scc1 L_enc0")
            e(f"buffer_load_dword v4, v5, {sr(S_DBG)}, 0 offen offset:192 sc1"); e("s_waitcnt vmcnt(0)"); e("s_mov_b64 exec, -1")
            if PAR.encsel: e(f"s_mov_b32 s{S_ST+2*PAR.enc}, s{S_ST}")
            e(f"v_readfirstlane_b32 s{S_ST}, v4"); e(f"s_not_b32 s{S_ST}, s{S_ST}")
        e(f"s_sub_u32 s{S_T}, s{S_ST+2*PAR.enc}, s{S_ST+2*PAR.encb}"); e(f"s_lshl_b32 s{S_T}, s{S_T}, {PAR.encsh}");
        if PAR.encsel:
            e(f"s_lshl_b32 s{S_T}, s{S_T}, 2"); e(f"s_and_b32 s{S_T+1}, s2, {PAR.encsel[0]}"); e(f"s_cmp_eq_u32 s{S_T+1}, {PAR.encsel[1]}")
        else: e(f"s_cmp_lt_u32 s{S_R}, {NR}")
        e(f"s_cselect_b32 s{S_T}, s{S_T}, 0"); e(f"s_add_u32 s{S_T}, s{S_T}, 6000")
        g.lab("L_enc")
        e(f"s_memrealtime s[{S_T+2}:{S_T+3}]"); e("s_waitcnt lgkmcnt(0)")
        e(f"s_sub_u32 s{S_T+2}, s{S_T+2}, s{S_ST}"); e(f"s_cmp_lt_u32 s{S_T+2}, s{S_T}"); e("s_cbranch_scc1 L_enc")
    g.flush_stamps(4, 5)
    e("s_endpgm")

HACC, HX, HW_ = 4, 68, 208
V_TR0, V_TR1, V_DMA, V_WSRC, V_H16, V_L0, V_HROW, V_CNT = 248, 249, 250, 251, 252, 253, 254, 255
ID, QA, QSH, QS, W0R, PK = 4, 12, 19, 20, 180, 236
L1R, BT = 180, 60
S_WP, S_L, S_FR, S_E0, S_E1, S_E2, S_PO, S_CX = 48, 49, 50, 51, 52, 53, 54, 55
S_LC = 56
S_E3, S_XB = 60, 61
def dma_img(g, name, nfr, lds, first=0, part=None):
    e = g.e; per = nfr // 4
    va = V_DMA
    if name == "Q4":
        va = 1
        e("v_and_b32 v1, 31, v0"); e("v_subrev_u32 v1, 29, v1"); e("v_cmp_gt_u32 vcc, 2, v1"); e(f"v_mov_b32 v1, {OOB}"); e(f"v_cndmask_b32 v1, v{V_DMA}, v1, vcc")
    e(f"s_mul_i32 s{S_T}, s{S_J}, {per*1024}")
    i0, i1 = part or (0, per)
    for i in range(i0, min(i1, per)):
        if (i - i0) % 4 == 0:
            e(f"s_add_u32 s{S_T+1}, s{S_T}, {IMG[name] + (first + i)*1024}")
            e(f"s_add_u32 m0, s{S_T}, {lds + i*1024}")
        g.vm(f"buffer_load_dwordx4 v{va}, {sr(S_WS)}, s{S_T+1} offen offset:{((i - i0)%4)*1024} {PAR.ld} lds", name)
def poll(g, checks, pre=None):
    e = g.e
    done = g.newlab("pd"); top = g.newlab("pt"); slp = g.newlab("ps"); tst = g.newlab("pc")
    regs = pre or [2 + i for i in range(len(checks))]
    e(f"s_mov_b32 s{S_T}, {SPIN}")
    if pre: e(f"s_branch {tst}")
    g.lab(top)
    for r, (srd, so, o, n) in zip(regs, checks):
        e(f"buffer_load_dword v{r}, v{V_L0}, {sr(srd)}, {so} offen offset:{o} sc1")
    e("s_waitcnt vmcnt(0)")
    g.lab(tst)
    for r, (srd, so, o, n) in zip(regs, checks):
        e(f"v_readfirstlane_b32 s{S_T+1}, v{r}")
        e(f"s_cmp_lt_u32 s{S_T+1}, {n}")
        e(f"s_cbranch_scc1 {slp}")
    g.lab(done)
    g.tail += [slp + ":", f"    s_sleep {PAR.slp}", f"    s_sub_u32 s{S_T}, s{S_T}, 1", f"    s_cbranch_scc0 {top}", f"    s_branch {done}"]
def poll1(g, checks, flag, pre=None):
    lb = g.newlab("p1")
    g.e(f"s_cmp_lg_u32 s{S_J}, 0"); g.e(f"s_cbranch_scc1 {lb}")
    poll(g, checks, pre)
    arrive(g, flag)
    g.lab(lb)
    lwait(g, flag, 1)
def presample(g, checks, regs, tag):
    for r, (srd, so, o, n) in zip(regs, checks):
        g.vm(f"buffer_load_dword v{r}, v{V_L0}, {sr(srd)}, {so} offen offset:{o} sc1", tag)
def arrive(g, *cs):
    e = g.e
    e("v_mov_b32 v1, 1"); e("s_mov_b64 exec, 1")
    for c in cs: e(f"ds_add_u32 v{V_CNT}, v1 offset:{CNT[c]-M_CNT}")
    e("s_mov_b64 exec, -1")
def unpack_mat(g, PA, t):
    e = g.e
    e(f"v_and_b32 v{t}, 1, v0"); e(f"v_lshlrev_b32 v{t}, 4, v{t}"); e(f"v_mov_b32 v{t+1}, 0x3f80"); e(f"v_lshlrev_b32 v{t+1}, v{t}, v{t+1}")
    e(f"v_lshrrev_b32 v{t+2}, 3, v0"); e(f"v_xor_b32 v{t+2}, v{t+2}, v0"); e(f"v_and_b32 v{t+2}, 4, v{t+2}")
    e(f"v_bfe_u32 v{t}, v0, 3, 2"); e(f"v_bfe_u32 v{t+3}, v0, 1, 1"); e(f"v_lshl_add_u32 v{t}, v{t}, 1, v{t+3}"); e(f"v_lshl_add_u32 v{t}, v{t+2}, 3, v{t}")
    for i in range(8):
        e(f"v_cmp_eq_u32 vcc, {i}, v{t}"); e(f"v_cndmask_b32 v{PA+i}, 0, v{t+1}, vcc")
def unpack(g, DR, pa, src, i):
    d = DR + 16 * ((i >> 1) & 3)
    g.e(f"v_mfma_f32_32x32x16_bf16 {vr(d,16)}, {vr(pa+4*(i&1),4)}, {vr(src+4*i,4)}, {vr(d,16) if i & 1 else '0'}")
def tmax(g, DR, tile, n, first, mv=1):
    d = DR + 16 * (tile & 3)
    for q in range(n // 2):
        if first and q == 0: g.e(f"v_max_f32 v{mv}, |v{d}|, |v{d+1}|")
        else: g.e(f"v_max3_f32 v{mv}, v{mv}, |v{d+2*q}|, |v{d+2*q+1}|")
def lwait(g, c, n=4, va=None, vd=1):
    e = g.e; top = g.newlab("lw"); done = g.newlab("ld")
    e(f"s_mov_b32 s{S_T}, {SPIN*8}")
    g.lab(top)
    e(f"ds_read_b32 v{vd}, v{va or V_CNT} offset:{CNT[c]-M_CNT}"); e("s_waitcnt lgkmcnt(0)")
    e(f"v_readfirstlane_b32 s{S_T+1}, v{vd}"); e(f"s_cmp_ge_u32 s{S_T+1}, {n}"); e(f"s_cbranch_scc1 {done}")
    e(f"s_sleep {PAR.lslp if c in ('FX', 'F2', 'F3', 'FQ', 'AFREE', 'BFREE', 'XST') else 1}"); e(f"s_sub_u32 s{S_T}, s{S_T}, 1"); e(f"s_cbranch_scc0 {top}")
    g.lab(done)
def rowmax(g, v, op="v_max_u32_dpp"):
    for sh in (8, 4, 2, 1): g.e(f"{op} v{v}, v{v}, v{v} row_ror:{sh} {DPPALL}")
def wavemax_exp(g, v, sdst):
    e = g.e
    rowmax(g, v)
    e(f"v_readlane_b32 s{sdst}, v{v}, 0"); e(f"v_readlane_b32 s{S_T}, v{v}, 16"); e(f"s_max_u32 s{sdst}, s{sdst}, s{S_T}")
    e(f"v_readlane_b32 s{S_T}, v{v}, 32"); e(f"s_max_u32 s{sdst}, s{sdst}, s{S_T}")
    e(f"v_readlane_b32 s{S_T}, v{v}, 48"); e(f"s_max_u32 s{sdst}, s{sdst}, s{S_T}")
    e(f"s_lshr_b32 s{sdst}, s{sdst}, 23"); e(f"s_sub_u32 s{sdst}, s{sdst}, 126")
def put_max(g, slot):
    e = g.e
    rowmax(g, 1)
    e("v_lshrrev_b32 v2, 4, v0"); e(f"s_lshl_b32 s{S_T}, s{S_J}, 4"); e(f"s_add_u32 s{S_T}, s{S_T}, {slot}")
    e(f"v_lshl_add_u32 v2, v2, 2, s{S_T}")
    e("ds_write_b32 v2, v1")
def get_max(g, slot):
    e = g.e
    e("v_and_b32 v2, 15, v0"); e("v_lshlrev_b32 v2, 2, v2"); e(f"v_add_u32 v2, {slot}, v2")
    e("ds_read_b32 v1, v2"); e("s_waitcnt lgkmcnt(0)")
    rowmax(g, 1)
def pkmax(g, regs):
    e = g.e
    e(f"v_pk_max_u16 v1, v{regs[0]}, v{regs[1]}"); e(f"v_pk_max_u16 v3, v{regs[2]}, v{regs[3]}")
    for i, r in enumerate(regs[4:]): e(f"v_pk_max_u16 v{1 + 2*(i&1)}, v{1 + 2*(i&1)}, v{r}")
    e("v_pk_max_u16 v1, v1, v3"); e("v_alignbit_b32 v3, v1, v1, 16"); e("v_pk_max_u16 v1, v1, v3")
def pack_round(g, acc, off, pk=True):
    e = g.e
    if PAR.pkpack and pk:
        for t in range(7):
            q = QS + t; sel = q & 1
            e(f"v_pk_mul_f32 {vr(acc+2*t,2)}, {vr(acc+2*t,2)}, {vr(q - sel,2)} op_sel:[0,{sel}] op_sel_hi:[1,{sel}]")
    else:
        for t in range(14): e(f"v_mul_f32 v{acc+t}, v{acc+t}, v{QS+(t>>1)}")
    for t in range(7): e(f"v_cvt_pk_f16_f32 v{PK+t}, v{acc+2*t}, v{acc+2*t+1}")
    for t in range(7): e(f"v_alignbit_b32 v{PK+t}, v{PK+t}, v{PK+t}, v{QSH}")
    for t in range(7): e(f"ds_write_b32 v{QA+t}, v{PK+t} offset:{off}")
def s0_max(g, t):
    a = HX + 16 * t
    for i in range(7):
        if t == 0 and i == 0: g.e(f"v_max_f32 v1, |v{a}|, |v{a+1}|")
        else: g.e(f"v_max3_f32 v1, v1, |v{a+2*i}|, |v{a+2*i+1}|")
F0 = lambda c: sum(PAR.chunks[:c])
S_ROT = 64
S_SCN, S_XC = 68, 69
S_RA = 66
def call_if(g, cond, target):
    lb = g.newlab('nc')
    for c in cond: g.e(c[0]); g.e(f'{c[1]} {lb}')
    g.e(f's_call_b64 s[{S_RA}:{S_RA+1}], {target}')
    g.lab(lb)
RET = f's_setpc_b64 s[{S_RA}:{S_RA+1}]'
def EARLY(): return [(f's_cmp_lt_u32 s{S_WP}, {PAR.gearly}', 's_cbranch_scc0')]
def LATE(): return [(f's_cmp_lt_u32 s{S_WP}, {PAR.gearly}', 's_cbranch_scc1'), (f's_cmp_ge_u32 s{S_WP}, 31', 's_cbranch_scc1')]
def rotf(g, f, sd):
    g.e(f"s_add_u32 s{sd}, s{S_ROT}, {f}"); g.e(f"s_sub_u32 s{S_ROT+1}, s{sd}, 26"); g.e(f"s_min_u32 s{sd}, s{sd}, s{S_ROT+1}")
def colvec(g, srd, dst, tag):
    g.e("v_lshrrev_b32 v1, 4, v0"); g.e("v_lshlrev_b32 v1, 3, v1")
    for a in range(4):
        g.e(f"s_xor_b32 s{S_T}, s{S_XC}, {32*a}"); g.e(f"s_add_u32 s{S_T}, s{S_T}, s{S_SB}")
        g.vm(f"buffer_load_dwordx2 {vr(dst+2*a,2)}, v1, {sr(srd)}, s{S_T} offen", tag)
def dma_w(g, f0, f1, tag):
    e = g.e
    e(f"s_lshl_b32 s{S_T}, s{S_J}, 10")
    for f in range(f0, f1):
        e(f"s_add_u32 m0, s{S_T}, {D0 + (f % 16)*4096}")
        rotf(g, f, S_T + 1); e(f"s_mul_i32 s{S_T+1}, s{S_T+1}, 53248")
        g.vm(f"buffer_load_dwordx4 v{V_WSRC}, {sr(S_W1)}, s{S_T+1} offen {PAR.wmod} lds", tag)
CHK_X = lambda: (S_WS, f"s{S_CX}", C_XR, 1)
def helper_common(g):
    e = g.e
    e("s_setprio 2")
    e(f"s_sub_u32 s{S_J}, s{S_WAVE}, 4")
    e("v_and_b32 v2, 31, v0"); e("v_lshrrev_b32 v3, 5, v0")
    e(f"v_lshlrev_b32 v{V_H16}, 4, v3")
    e("v_lshrrev_b32 v4, 3, v2"); e("v_and_b32 v6, 3, v2"); e("v_lshl_add_u32 v4, v4, 2, v6")
    e("v_bfe_u32 v6, v2, 2, 1"); e(f"v_mad_u32_u24 v{V_HROW}, v6, 13, v4")
    e("v_cmp_lt_u32 vcc, 12, v4"); e("v_mov_b32 v7, 0x100000"); e(f"v_cndmask_b32 v{V_HROW}, v{V_HROW}, v7, vcc")
    e("v_mul_u32_u24 v4, 676, v3"); e(f"s_movk_i32 s{S_T+1}, 1352"); e(f"v_mad_u32_u24 v243, v{V_HROW}, s{S_T+1}, v4")
    def qaset():
        e("v_lshrrev_b32 v27, 1, v2"); e("v_and_b32 v28, 1, v2"); e(f"v_lshlrev_b32 v{QSH}, 4, v28")
        e("v_sub_u32 v29, 25, v27"); e("v_mul_u32_u24 v29, v29, v27"); e("v_lshrrev_b32 v29, 1, v29")
        e(f"s_lshl_b32 s{S_T}, s{S_J}, 4")
        e(f"v_lshl_add_u32 v28, v28, 9, s{S_T}")
        e(f"v_lshl_add_u32 v30, v0, 2, s{S_T}"); e(f"v_add_u32 v30, {BUFA + 24*S0STR}, v30")
        e("v_mov_b32 v33, 0.5")
        for t in range(7):
            qb = 4 * (t >> 1) + (t & 1)
            e(f"v_lshl_add_u32 v31, v3, 1, {qb}")
            e("v_add_u32 v32, v29, v31")
            e(f"v_lshrrev_b32 v{QA+t}, 2, v32"); e(f"v_mul_u32_u24 v{QA+t}, {S0STR}, v{QA+t}")
            e("v_and_b32 v32, 3, v32"); e("v_lshl_add_u32 v32, v32, 2, v28"); e(f"v_add_u32 v{QA+t}, v{QA+t}, v32")
            e("v_cmp_lt_u32 vcc, v31, v27")
            if t == 6:
                e("v_cmp_lt_u32 s[72:73], 12, v31"); e("s_or_b64 vcc, vcc, s[72:73]")
            e(f"v_cndmask_b32 v{QA+t}, v{QA+t}, v30, vcc")
            e("v_cmp_eq_u32 vcc, v31, v27"); e(f"v_cndmask_b32 v{QS+t}, 1.0, v33, vcc")
        e("v_lshlrev_b32 v31, 3, v3"); e("v_sub_u32 v31, v2, v31")
        e("v_mov_b32 v32, 0x3f80"); e(f"v_lshlrev_b32 v32, v{QSH}, v32")
        e("v_lshrrev_b32 v31, 1, v31")
        for s in range(2):
            for i in range(4):
                e(f"v_cmp_eq_u32 vcc, {8*s+i}, v31"); e(f"v_cndmask_b32 v{ID+4*s+i}, 0, v32, vcc")
    if PAR.qaearly: qaset()
    HS = [S_WC, S_WS, S_WO, S_W1, S_B1, S_W2, S_DBG]
    srd_const(g, HS)
    e("s_waitcnt lgkmcnt(0)")
    srd_base(g, HS)
    e(f"s_mov_b64 s[{S_LC}:{S_LC+1}], s[{S_WC}:{S_WC+1}]"); e(f"s_mov_b32 s{S_LC+3}, 0x00020000"); e(f"s_mov_b32 s{S_LC+2}, {2*LB}")
    e(f"s_cmp_lt_u32 s{S_R}, {NR}"); e(f"s_cselect_b32 s{S_WP}, 63, s{S_G}"); e(f"s_mov_b32 s{S_SCN}, 0")
    e(f"s_mul_i32 s{S_CX}, s{S_G}, {PAR.cstr}"); e(f"s_add_u32 s{S_CX}, s{S_CX}, {WS_CNT}")
    if PAR.wpf:
        e(f"s_cmp_lg_u32 s{S_J}, 0"); e("s_cbranch_scc1 L_nowpf")
        e(f"s_mov_b32 s{S_WC+2}, {6*LB}"); e(f"s_lshr_b32 s{S_T}, s2, 3"); e(f"s_lshl_b32 s{S_T}, s{S_T}, 7")
        e("v_lshlrev_b32 v1, 12, v0")
        if PAR.wpf == 1: e(f"buffer_load_dword v247, v1, {sr(S_WC)}, s{S_T} offen")
        e(f"s_mov_b32 s{S_WC+2}, {LB}")
        e(f"s_cmp_lt_u32 s{S_R}, {NR}"); e("s_cbranch_scc1 L_nowpf")
        for i in range(4): e(f"v_mov_b32 v{36+i}, 0")
        e("v_lshlrev_b32 v35, 8, v0"); e("v_cmp_lt_u32 vcc, 2, v0"); e(f"v_mov_b32 v34, {OOB}"); e("v_cndmask_b32 v35, v35, v34, vcc")
        e(f"buffer_store_dwordx4 v[36:39], v35, {sr(S_WS)}, s{S_CX} offen sc1")
        g.lab("L_nowpf")
    g.stamp("g")
    call_if(g, EARLY(), "L_pe1")
    g.stamp("g")
    e("v_and_b32 v2, 31, v0"); e("v_lshrrev_b32 v3, 5, v0")
    e(f"v_mad_u32_u24 v1, v2, 52, v{V_H16}")
    if PAR.w0lin: e("v_lshlrev_b32 v1, 4, v0")
    e(f"s_mul_i32 s{S_T}, s{S_J}, 1352")
    for t in range(7):
        if t < 6: e(f"s_add_u32 s{S_T+1}, s{S_T}, {(13*(t&1) + 4*(t>>1))*1352}")
        else:
            e(f"s_mul_i32 s{S_T+1}, s{S_J}, {13*1352}"); e(f"s_add_u32 s{S_T+1}, s{S_T+1}, {12*1352}")
        for s in range(2):
            g.vm(f"buffer_load_dwordx4 {vr(W0R+8*t+4*s,4)}, v1, {sr(S_WC)}, s{S_T+1} offen offset:{(320 if PAR.w0lin else 32)*s}", f"w0_{t}")
    e("s_branch L_helper2")
    g.hfirst = g.L[g.h0:]; del g.L[g.h0:]
    g.lab("L_helper2")
    if not PAR.barpos: e("s_barrier")
    e(f"v_mov_b32 v61, {OOB}"); e(f"v_add_u32 v60, s{S_J}, v0"); e("v_cmp_eq_u32 vcc, 0, v60"); e(f"v_cndmask_b32 v{V_L0}, v61, 0, vcc")
    e(f"s_lshr_b32 s{S_SB}, s{S_R}, 1"); e(f"s_mul_i32 s{S_SB}, s{S_SB}, 224"); e(f"s_and_b32 s{S_XC}, s{S_R}, 1"); e(f"s_mul_i32 s{S_XC}, s{S_XC}, 96"); e(f"s_add_u32 s{S_SB}, s{S_SB}, s{S_XC}")
    if not PAR.qaearly: qaset()
    e(f"s_mul_i32 s{S_PO}, s{S_G}, {NR}"); e(f"s_add_u32 s{S_PO}, s{S_PO}, s{S_R}"); e(f"s_lshl_b32 s{S_PO}, s{S_PO}, 2"); e(f"s_add_u32 s{S_PO}, s{S_PO}, s{S_J}")
    e(f"s_lshl_b32 s{S_PO}, s{S_PO}, 8"); e(f"s_add_u32 s{S_PO}, s{S_PO}, {WS_PART}")
    e("v_and_b32 v60, 15, v0"); e(f"v_mul_u32_u24 v245, {XSTR}, v60"); e("v_and_b32 v60, 48, v0")
    e(f"s_lshl_b32 s{S_T}, s{S_J}, 6"); e(f"s_add_u32 s{S_T}, s{S_T}, {D0}"); e(f"v_add3_u32 v245, v245, v60, s{S_T}")
    e("v_lshlrev_b32 v246, 4, v0")
    e(f"s_lshl_b32 s{S_XB}, s{S_G}, 2"); e(f"s_lshr_b32 s{S_T}, s{S_R}, 2"); e(f"s_add_u32 s{S_XB}, s{S_XB}, s{S_T}"); e(f"s_mul_i32 s{S_XB}, s{S_XB}, {XBS}")
    e(f"s_and_b32 s{S_T}, s{S_R}, 3"); e(f"s_lshl_b32 s{S_T}, s{S_T}, 10"); e(f"s_add_u32 s{S_XB}, s{S_XB}, s{S_T}")
    e(f"s_lshl_b32 s{S_T}, s{S_J}, 12"); e(f"s_add_u32 s{S_XB}, s{S_XB}, s{S_T}"); e(f"s_add_u32 s{S_XB}, s{S_XB}, {WS_X}")
    g.stamp("g")
    e(f"s_cmp_lt_u32 s{S_R}, {NR}"); e("s_cbranch_scc1 L_nordy")
    e("s_waitcnt vmcnt(0)")
    e("v_mov_b32 v35, 1"); e(f"s_lshl_b32 s{S_E3}, s{S_G}, 2")
    e(f"buffer_store_dword v35, v{V_L0}, {sr(S_DBG)}, s{S_E3} offen offset:{C_RDY} sc1")
    g.lab("L_nordy")
    call_if(g, EARLY(), "L_pe2")
    g.stamp("g")
    for t in range(7):
        if t == 6: e(f"s_cmp_ge_u32 s{S_R}, {NR}"); e("s_cbranch_scc1 L_w0d")
        g.vmwait(f"w0_{t}")
        if t == 6: g.lab("L_w0d")
        a = HX + 16 * t; w = W0R + 8 * t
        e(f"v_mfma_f32_32x32x16_bf16 {vr(a,16)}, {vr(w,4)}, {vr(ID,4)}, 0")
        e(f"v_mfma_f32_32x32x16_bf16 {vr(a,16)}, {vr(w+4,4)}, {vr(ID+4,4)}, {vr(a,16)}")
        e(f"v_mfma_f32_32x32x16_bf16 {vr(a,16)}, {vr(ID,4)}, {vr(w,4)}, {vr(a,16)}")
        e(f"v_mfma_f32_32x32x16_bf16 {vr(a,16)}, {vr(ID+4,4)}, {vr(w+4,4)}, {vr(a,16)}")
        if t > 0: s0_max(g, t - 1)
    s0_max(g, 6)
    put_max(g, M_S0)
    e(f"v_mov_b32 v{V_CNT}, {M_CNT}")
    arrive(g, "S0M")
    g.stamp("g")
    if g.stamps and "g" in PAR.st: e("s_waitcnt vmcnt(0)"); g.stamp("g")
    if PAR.wpf3 == 2:
        e("v_lshlrev_b32 v1, 14, v0"); e(f"s_lshr_b32 s{S_T}, s2, 3"); e(f"s_lshl_b32 s{S_T}, s{S_T}, 7"); e(f"s_lshl_b32 s{S_T+1}, s{S_J}, 12"); e(f"s_add_u32 s{S_T}, s{S_T}, s{S_T+1}")
        e(f"buffer_load_dword v247, v1, {sr(S_W1)}, s{S_T} offen"); e("v_add_u32 v1, 0x100000, v1")
        e(f"buffer_load_dword v247, v1, {sr(S_W1)}, s{S_T} offen")
    call_if(g, EARLY(), "L_gsig")
    g.stamp("g")
    lwait(g, "S0M")
    g.stamp(); g.stamp("h")
    get_max(g, M_S0)
    e("v_lshlrev_b32 v3, 4, v0"); e(f"v_mov_b32 v{PK}, 0")
    e(f"ds_write_b32 v3, v{PK} offset:{BUFA + 22*S0STR + 12}")
    e("v_lshrrev_b32 v1, 23, v1")
    e("v_min_u32 v1, 249, v1")
    e("v_sub_u32 v2, 124, v1")
    e("v_subrev_u32 v1, 124, v1")
    e(f"ds_write_b32 v3, v1 offset:{BUFA + 23*S0STR + 512}")
    for t in range(7): e(f"v_ldexp_f32 v{QS+t}, v{QS+t}, v2")
    for t in range(7):
        if t == 6:
            e(f"s_cmp_eq_u32 s{S_J}, 1"); e(f"s_cselect_b32 s{S_T}, 48, 0")
            for i in range(7): e(f"v_add_u32 v{QA+i}, s{S_T}, v{QA+i}")
        if t in (0, 2, 4, 6): g.stamp("h")
        pack_round(g, HX + 16 * t, 16 * (8 * (t >> 1) + 4 * (t & 1)))
    arrive(g, "S0OK")
    g.stamp(); g.stamp("s"); g.stamp("h")
    e(f"v_cmp_lt_u32 vcc, 25, v{V_HROW}"); e("v_bfe_u32 v1, v0, 2, 1")
    e("v_cmp_eq_u32 s[72:73], 0, v1"); e("s_and_b64 vcc, vcc, s[72:73]")
    e(f"v_mov_b32 v2, {OOB}"); e(f"v_lshlrev_b32 v{V_DMA}, 4, v0"); e(f"v_cndmask_b32 v{V_DMA}, v{V_DMA}, v2, vcc")
    e(f"s_mul_i32 s{S_ROT}, s{S_R}, 7"); e(f"s_lshr_b32 s{S_ROT}, s{S_ROT}, 2")
    e("v_lshrrev_b32 v1, 3, v0"); e(f"s_lshl_b32 s{S_T}, s{S_J}, 3"); e(f"v_add_u32 v1, s{S_T}, v1")
    e("v_mul_u32_u24 v1, 1664, v1"); e("v_and_b32 v2, 1, v0"); e("v_lshl_add_u32 v1, v2, 4, v1")
    e(f"s_and_b32 s{S_T}, s{S_J}, 1"); e(f"s_lshl_b32 s{S_T}, s{S_T}, 1")
    e("v_bfe_u32 v2, v0, 4, 1"); e("v_bfe_u32 v3, v0, 1, 2"); e("v_xor_b32 v2, v2, v3"); e(f"v_xor_b32 v2, s{S_T}, v2")
    e(f"v_lshl_add_u32 v3, v2, 5, s{S_SB}")
    e(f"v_add_u32 v{V_WSRC}, v1, v3")
    e("v_lshrrev_b32 v1, 4, v0"); e("v_bfe_u32 v2, v0, 2, 2"); e("v_lshl_add_u32 v1, v1, 3, v2"); e("v_lshlrev_b32 v1, 7, v1")
    e("v_and_b32 v3, 3, v0"); e("v_lshl_add_u32 v1, v3, 3, v1"); e("v_bfe_u32 v2, v0, 3, 2"); e("v_lshl_add_u32 v1, v2, 5, v1")
    e(f"v_xor_b32 v1, s{S_XC}, v1"); e(f"v_add_u32 v{V_TR0}, {D0}, v1")
    if PAR.wpf3 == 1:
        e("v_lshlrev_b32 v1, 14, v0"); e(f"s_lshr_b32 s{S_T}, s2, 3"); e(f"s_lshl_b32 s{S_T}, s{S_T}, 7"); e(f"s_lshl_b32 s{S_T+1}, s{S_J}, 12"); e(f"s_add_u32 s{S_T}, s{S_T}, s{S_T+1}")
        e(f"buffer_load_dword v247, v1, {sr(S_W1)}, s{S_T} offen"); e("v_add_u32 v1, 0x100000, v1")
        e(f"buffer_load_dword v247, v1, {sr(S_W1)}, s{S_T} offen")
    call_if(g, LATE(), "L_pe1")
    call_if(g, LATE()[:1], "L_xpub")
    g.vmq += ["xst"] * 7 + ["sent", "rdyl"] + ["bias"] * 4
    g.stamp("s")
    call_if(g, LATE(), "L_pe2")
    e("s_waitcnt vmcnt(1)")
    e(f"s_sub_u32 s{S_T}, s{S_WP}, {PAR.gearly}"); e(f"s_cmp_lt_u32 s{S_T}, {31 - PAR.gearly}"); e("s_cbranch_scc1 L_pwr")
    e("s_waitcnt vmcnt(0)")
    g.lab("L_pwr")
    arrive(g, "XST")
    e(f"s_cmp_lg_u32 s{S_J}, 0"); e("s_cbranch_scc1 L_nosig")
    lwait(g, "XST")
    e(f"s_mov_b32 s{S_T}, {SPIN}")
    g.lab("L_rdy")
    e("v_cmp_ne_u32 vcc, 0, v28"); e(f"s_and_b32 s{S_T+1}, vcc_lo, 0xffff"); e(f"s_cmp_eq_u32 s{S_T+1}, 0xffff"); e("s_cbranch_scc0 L_rdys")
    g.lab("L_rdyd")
    g.tail += ["L_rdys:", "    s_sleep 8", f"    buffer_load_dword v28, v29, {sr(S_DBG)}, 0 offen offset:{C_RDY} sc1", "    s_waitcnt vmcnt(0)",
               f"    s_sub_u32 s{S_T}, s{S_T}, 1", "    s_cbranch_scc0 L_rdy", "    s_branch L_rdyd"]
    e("v_mov_b32 v1, 1")
    e(f"buffer_atomic_add v1, v{V_L0}, {sr(S_WS)}, s{S_CX} offen sc0 sc1")
    e(f"buffer_load_dword v197, v{V_L0}, {sr(S_DBG)}, 0 offen offset:128 sc1")
    e("s_waitcnt vmcnt(0)")
    e(f"v_readfirstlane_b32 s{S_T}, v1"); e(f"s_cmp_lg_u32 s{S_T}, 15"); e("s_cbranch_scc1 L_nosig")
    e(f"buffer_store_dword v1, v{V_L0}, {sr(S_WS)}, s{S_CX} offen offset:{C_XR} sc1")
    g.lab("L_nosig")
    e("s_setprio 3")
    g.stamp(); g.stamp("s")

def helper_dnn(g):
    e = g.e
    CH = PAR.chunks; NS = PAR.nslot
    UNITS = [(a, sl) for a in range(3) for sl in range(4)] + [(3, 0), (3, 1)]
    def ac(a, sl): return HACC + 4 * UNITS.index((a, sl))
    def xb(f, sl): return HX + 16 * (f % NS) + 4 * sl
    def xload(f):
        rotf(g, f, S_T + 2); e(f"s_lshl_b32 s{S_T+2}, s{S_T+2}, 12"); e(f"s_add_u32 s{S_T+2}, s{S_T+2}, s{S_XB}")
        for sl in range(4 if f < NS else PAR.nxl):
            g.vm(f"buffer_load_dwordx4 {vr(xb(f,sl),4)}, v{2 + (sl >> 1)}, {sr(S_WS)}, s{S_T+2} offen offset:{1024*(sl&1)} {PAR.ld}", f"x{f}")
    e(f"s_setprio {PAR.wp}")
    VTR = [V_TR0, V_TR1, 198, 199]
    for a in range(1, 4): e(f"v_xor_b32 v{VTR[a]}, {32*a}, v{V_TR0}")
    colvec(g, S_W2, 232, "w2")
    g.vmwait("bias")
    for a in range(4):
        for i in range(2):
            e(f"v_lshlrev_b32 v{ac(a,0)+2*i}, 16, v{BT+2*a+i}")
            e(f"v_and_b32 v{ac(a,0)+2*i+1}, 0xffff0000, v{BT+2*a+i}")
    for a, sl in UNITS:
        if sl:
            for i in range(4): e(f"v_mov_b32 v{ac(a,sl)+i}, v{ac(a,0)+i}")
    e(f"s_lshl_b32 s{S_XB}, s{S_G}, 2"); e(f"s_add_u32 s{S_XB}, s{S_XB}, s{S_J}"); e(f"s_mul_i32 s{S_XB}, s{S_XB}, {XBS}"); e(f"s_add_u32 s{S_XB}, s{S_XB}, {WS_X}")
    if PAR.wearly < 1: lwait(g, "RB", 8); dma_w(g, 0, PAR.wa, "Wa")
    if PAR.x0: poll1(g, [(S_DBG, "0", 128, 11), CHK_X()], "FX")
    else:
        poll1(g, [(S_DBG, "0", 128, 11)], "F2", pre=[197])
        lwait(g, "AFREE"); dma_img(g, "L2", 44, BUFA)
        presample(g, [CHK_X()], [196], "fx")
        g.vmwait("fx"); arrive(g, "L2OK", "W01")
        poll1(g, [CHK_X()], "FX", pre=[196])
    e(f"s_and_b32 s{S_E0}, s{S_R}, 1"); e(f"s_lshl_b32 s{S_T}, s{S_E0}, 11"); e(f"v_lshl_add_u32 v2, v0, 4, s{S_T}"); e("v_xor_b32 v3, 0x800, v2")
    g.stamp("s")
    g.stamp()
    e(f"s_setprio {PAR.dp}")
    for f in range(PAR.xi): xload(f)
    if PAR.x0:
        lwait(g, "AFREE"); dma_img(g, "L2", 44, BUFA)
        g.vmwait("W1"); arrive(g, "W01")
    nld = [PAR.xi]
    W2R = 232
    wring = [0]
    def wread(ks):
        f, hf = divmod(ks, 2)
        base = HW_ + 8 * (wring[0] % 3); wring[0] += 1
        for a in range(2):
            for rd in range(2):
                e(f"ds_read_b64_tr_b16 {vr(base+4*a+2*rd,2)}, v{VTR[2*hf+a]} offset:{(f % 16)*4096 + rd*512}")
        return base
    CKQ = [(S_WS, f"s{S_CX}", C_Q, 9)]; CK3 = [(S_WS, f"s{S_CX}", C_L[3], 11)]
    after = {}
    def add(f, fn): after.setdefault(f, []).append(fn)
    inter = {}
    def addi(f, fn): inter.setdefault(f, []).append(fn)
    def capture(fn):
        keep = g.L; g.L = []; fn(); out = g.L; g.L = keep; return out
    assert PAR.wa >= 10
    for i in range(16 - PAR.wa): addi(i + 1, lambda i=i: dma_w(g, PAR.wa + i, PAR.wa + i + 1, "Wb"))
    for f, (x, y) in {10: (16, 18), 11: (18, 20), 12: (20, 21), 13: (21, 22), 14: (22, 23), 15: (23, 24), 16: (24, 25), 17: (25, 26)}.items():
        addi(f, lambda x=x, y=y: dma_w(g, x, y, "Wc" if x < 21 else "Wd"))
    SEG = [0, 10, 16, 21, 26]
    add(PAR.qpos - 3, lambda: presample(g, CK3, [196], "f3"))
    add(PAR.qpos, lambda: (lwait(g, "BFREE"), g.vmwait("f3"), poll1(g, CK3, "F3", pre=[196])))
    for i in range(0, 11, PAR.l3n): addi(PAR.qpos + 1 + i // PAR.l3n, lambda i=i: dma_img(g, "L3", 44, BUFB, part=(i, i + PAR.l3n)))
    add(PAR.qpos + 1 + 10 // PAR.l3n + PAR.qarr, lambda: (g.vmwait("L3"), arrive(g, "L3OK")))
    add(22, lambda: presample(g, CKQ, [197], "fq"))
    lwait(g, "W01")
    for c in range(4):
        k0 = 2 * SEG[c]; k1 = 2 * SEG[c + 1]
        bufs = {k0: wread(k0), k0 + 1: wread(k0 + 1)}
        for ks in range(k0, k1):
            f, hf = divmod(ks, 2)
            if hf == 0 and f in PAR.fst: g.stamp("f")
            if hf == 0:
                g.vmwait(f"x{f}")
                def gen_other():
                    for _ in range(2):
                        if nld[0] < min(26, f + NS): xload(nld[0]); nld[0] += 1
                    for fn in inter.get(f, []): fn()
                other = capture(gen_other)
            e(f"s_waitcnt lgkmcnt({4 if ks + 1 < k1 else 0})")
            rd = []
            if ks + 2 < k1: rd = capture(lambda: bufs.__setitem__(ks + 2, wread(ks + 2)))
            mf = [(a, sl) for a in range(2) for sl in range(4) if (2 * hf + a, sl) in UNITS[:PAR.nmf]]
            for i, (a, sl) in enumerate(mf):
                d = ac(2 * hf + a, sl)
                e(f"v_mfma_f32_16x16x32_bf16 {vr(d,4)}, {vr(bufs[ks]+4*a,4)}, {vr(xb(f,sl),4)}, {vr(d,4)}")
                n = PAR.il
                if rd and i >= 1: g.L.append(rd.pop(0)); n -= 1
                while other and n > 0: g.L.append(other.pop(0)); n -= 1
            g.L += rd
            if hf == 1:
                g.L += other
                for fn in after.get(f, []): fn()
        if c == 0:
            if PAR.wa < 16: g.vmwait("Wb")
            arrive(g, "C0"); lwait(g, "C0"); g.stamp()
        if c == 1: g.vmwait("Wc"); arrive(g, "C1"); lwait(g, "C1")
        if c == 2:
            g.vmwait("Wd"); arrive(g, "C2"); lwait(g, "C2")
    e("s_waitcnt vmcnt(0)")
    g.stamp()
    W2F = HX
    for i in range(8):
        e(f"v_lshlrev_b32 v{W2F+2*i}, 16, v{W2R+i}")
        e(f"v_and_b32 v{W2F+2*i+1}, 0xffff0000, v{W2R+i}")
    c0 = 2 * 0.7978845608028654 * 1.4426950408889634
    e(f"s_mov_b32 s{S_C1}, {f2u(c0*0.044715):#x}")
    e(f"v_mov_b32 v2, {f2u(c0):#x}")
    T = HX + 32; SUM = HX + 48
    def gelu(blk):
        a, sl = UNITS[blk]
        rs = [ac(a, sl) + i for i in range(4)]
        for i, r in enumerate(rs): e(f"v_mul_f32 v{T+i}, v{r}, v{r}")
        for i, r in enumerate(rs): e(f"v_fma_f32 v{T+i}, v{T+i}, s{S_C1}, v2")
        for i, r in enumerate(rs): e(f"v_mul_f32 v{T+i}, v{T+i}, v{r}")
        for i, r in enumerate(rs): e(f"v_exp_f32 v{T+i}, -v{T+i}")
        for i, r in enumerate(rs): e(f"v_mul_f32 v{r}, v{r}, v{W2F + 4*a + i}")
        for i, r in enumerate(rs): e(f"v_add_f32 v{T+i}, 1.0, v{T+i}")
        for i, r in enumerate(rs): e(f"v_rcp_f32 v{T+i}, v{T+i}")
        for i, r in enumerate(rs): e(f"v_{'mul' if a == 0 and i == 0 else 'fmac'}_f32 v{SUM + sl}, v{r}, v{T+i}")
    for blk in range(len(UNITS)):
        if blk == PAR.gsplit:
            poll1(g, CKQ, "FQ", pre=[197]); dma_img(g, "Q4", 28, QB)
        if blk == PAR.gsplit2:
            e("s_waitcnt vmcnt(0)"); arrive(g, "QOK")
        if blk == PAR.ghi: e("s_setprio 1")
        gelu(blk)
    e("s_setprio 3")
    e(f"v_permlane32_swap_b32 v{SUM}, v{SUM+2}"); e(f"v_permlane32_swap_b32 v{SUM+1}, v{SUM+3}")
    e(f"v_add_f32 v{SUM}, v{SUM}, v{SUM+2}"); e(f"v_add_f32 v{SUM+1}, v{SUM+1}, v{SUM+3}")
    e(f"v_permlane16_swap_b32 v{SUM}, v{SUM+1}")
    e(f"v_add_f32 v{SUM}, v{SUM}, v{SUM+1}")
    e(f"v_min_u32 v{SUM}, -2, v{SUM}")
    e(f"s_lshl_b32 s{S_T}, s{S_E0}, 7"); e("v_lshlrev_b32 v1, 2, v0"); e(f"v_xor_b32 v1, s{S_T}, v1")
    e(f"buffer_store_dword v{SUM}, v1, {sr(S_WS)}, s{S_PO} offen sc1")
    g.stamp()
    g.flush_stamps(4, 5)
    e("s_endpgm")

def gsignal(g, c, so):
    e = g.e; done = g.newlab("sg")
    if c: e("s_waitcnt vmcnt(0)"); arrive(g, c)
    e(f"s_cmp_lg_u32 s{S_J}, 0"); e(f"s_cbranch_scc1 {done}")
    if c: lwait(g, c)
    e(f"v_mul_u32_u24 v2, {PAR.cstr}, v0"); e("v_cmp_lt_u32 vcc, 15, v0"); e(f"v_mov_b32 v3, {OOB}"); e("v_cndmask_b32 v2, v2, v3, vcc")
    e("v_mov_b32 v1, 1")
    e(f"buffer_atomic_add v1, v2, {sr(S_WS)}, {so} offen sc1")
    g.lab(done)
SCN, FR, WV, WP, W1V, AQ, RW = 68, 104, 121, 122, 108, 44, 180
QAR = lambda i: (64 + i) if i < 4 else (240 + i)
S_E4, S_LW = 62, 63
def prod_early1(g):
    e = g.e
    g.lab("L_gsig")
    e("s_waitcnt vmcnt(0)"); arrive(g, "GST")
    e(f"s_cmp_lg_u32 s{S_J}, 0"); e("s_cbranch_scc1 L_xpub")
    lwait(g, "GST")
    e("v_mov_b32 v1, 1"); e(f"buffer_atomic_add v1, v{V_L0}, {sr(S_DBG)}, 0 offen offset:128 sc1")
    g.lab("L_xpub")
    XS = 180
    lwait(g, "RAW")
    for t in range(7): e(f"ds_read_b128 {vr(XS+4*t,4)}, v245 offset:{256*t}")
    e(f"s_cmp_ge_u32 s{S_J}, 2"); e(f"s_cselect_b32 s{S_T}, {OOB}, 0"); e(f"v_add_u32 v245, s{S_T}, v246")
    for t in range(7):
        e(f"s_waitcnt lgkmcnt({6-t})")
        g.vm(f"buffer_store_dwordx4 {vr(XS+4*t,4)}, v{246 if t < 6 else 245}, {sr(S_WS)}, s{S_XB} offen sc1", "xst")
        e(f"s_add_u32 s{S_XB}, s{S_XB}, 16384")
    arrive(g, "RB")
    e(f"s_cmp_ge_u32 s{S_R}, {NR}"); e(f"s_cselect_b32 s{S_T}, {OOB}, 0")
    e(f"v_lshl_add_u32 v1, v0, 2, s{S_T}"); e("v_mov_b32 v3, -1")
    g.vm(f"buffer_store_dword v3, v1, {sr(S_WS)}, s{S_PO} offen sc1", "sent")
    e(f"s_lshl_b32 s{S_T}, s{S_J}, 8"); e("v_lshrrev_b32 v29, 4, v0"); e(f"v_lshl_add_u32 v29, v29, 8, s{S_T}"); e("v_lshl_add_u32 v29, v0, 2, v29")
    g.vm(f"buffer_load_dword v28, v29, {sr(S_DBG)}, 0 offen offset:{C_RDY} sc1", "rdyl")
    colvec(g, S_B1, BT, "bias")
    e(RET)
    g.lab("L_pe1")
    e(f"s_mul_i32 s{S_L}, s{S_WP}, 94"); e(f"s_lshr_b32 s{S_L}, s{S_L}, 10")
    e(f"s_mul_i32 s{S_T}, s{S_L}, 11"); e(f"s_sub_u32 s{S_FR}, s{S_WP}, s{S_T}"); e(f"s_lshl_b32 s{S_FR}, s{S_FR}, 2"); e(f"s_add_u32 s{S_FR}, s{S_FR}, s{S_J}")
    e(f"s_add_u32 s{S_L}, s{S_L}, 2")
    e(f"s_mul_i32 s{S_E2}, s{S_L}, {LB}")
    e(f"s_add_u32 s{S_LC+2}, s{S_E2}, {LB}")
    e("v_lshlrev_b32 v1, 4, v0")
    e(f"s_mul_i32 s{S_T}, s{S_J}, 9216"); e(f"s_add_u32 s{S_T}, s{S_T}, s{S_E2}")
    for i in range(9):
        if i % 4 == 0 and i: e(f"s_add_u32 s{S_T}, s{S_T}, 4096")
        e(f"buffer_load_dwordx4 {vr(SCN+4*i,4)}, v1, {sr(S_LC)}, s{S_T} offen offset:{(i%4)*1024}")
    e(f"s_cmp_ge_u32 s{S_WP}, 22"); e("s_cbranch_scc1 L_ret")
    e(f"s_lshl_b32 s{S_T}, s{S_FR}, 4"); e(f"s_add_u32 s{S_T}, s{S_T}, s{S_E2}")
    e(f"buffer_load_dwordx4 {vr(FR,4)}, v243, {sr(S_LC)}, s{S_T} offen")
    e(f"v_lshlrev_b32 v1, 1, v{V_HROW}"); e(f"s_mul_i32 s{S_T}, s{S_L}, 52")
    e(f"buffer_load_ushort v{WV}, v1, {sr(S_WO)}, s{S_T} offen")
    e(f"buffer_load_ushort v{WP}, v1, {sr(S_WO)}, 52 offen")
    e("v_lshrrev_b32 v3, 5, v0"); e("v_mul_u32_u24 v3, 26, v3")
    for i in range(8):
        e(f"s_lshl_b32 s{S_T}, s{S_FR}, 3"); e(f"s_sub_u32 s{S_T}, s{S_T}, {8*42 + 2 - i}")
        e(f"s_lshl_b32 s{S_T+1}, s{S_T}, 1"); e(f"s_add_u32 s{S_T+1}, s{S_T+1}, 52")
        e(f"s_cmp_lt_u32 s{S_T}, 13"); e(f"s_cselect_b32 s{S_T+1}, s{S_T+1}, {OOB}")
        e(f"v_add_u32 v2, s{S_T+1}, v3")
        e(f"buffer_load_ushort v{W1V+i}, v2, {sr(S_WO)}, 0 offen")
    g.lab("L_ret")
    e(RET)
def prod_early2(g):
    e = g.e
    g.lab("L_pe2")
    e("s_waitcnt vmcnt(13)")
    e(f"v_mov_b32 v{V_CNT}, {M_CNT}")
    for i in range(36): e(f"v_and_b32 v{SCN+i}, s{S_MASK}, v{SCN+i}")
    pkmax(g, [SCN + i for i in range(36)])
    put_max(g, M_SC)
    e(f"s_add_u32 s{S_SCN}, s{S_SCN}, 4")
    arrive(g, "SCM"); lwait(g, "SCM", f"s{S_SCN}")
    get_max(g, M_SC)
    e(f"v_readfirstlane_b32 s{S_E0}, v1")
    e(f"s_bfe_u32 s{S_E0}, s{S_E0}, 0x80007")
    e(f"s_cmp_ge_u32 s{S_WP}, 22"); e("s_cbranch_scc1 L_ret")
    g.lab("L_gjob")
    e(f"s_min_u32 s{S_T+2}, s{S_E0}, 249"); e(f"s_sub_u32 s{S_T+3}, {127+124}, s{S_T+2}"); e(f"s_lshl_b32 s{S_T+3}, s{S_T+3}, 23")
    e(f"s_cmp_lt_u32 s{S_FR}, 42"); e(f"s_cselect_b32 s{S_T+1}, -1, 0")
    for i in range(1, 4): e(f"v_and_b32 v{FR+i}, s{S_T+1}, v{FR+i}")
    e(f"s_cmp_lt_u32 s{S_FR}, 43"); e(f"s_cselect_b32 s{S_T+1}, -1, 0"); e(f"v_and_b32 v{FR}, s{S_T+1}, v{FR}")
    for i in range(4): e(f"v_alignbit_b32 v{FR+i}, v{FR+i}, v{FR+i}, v{V_H16}")
    for i in range(4):
        e(f"v_lshlrev_b32 v{SCN+2*i}, 16, v{FR+i}"); e(f"v_and_b32 v{SCN+2*i+1}, 0xffff0000, v{FR+i}")
    for i in range(8): e(f"v_mul_f32 v{SCN+i}, s{S_T+3}, v{SCN+i}")
    for i in range(4): e(f"v_cvt_pk_f16_f32 v{FR+i}, v{SCN+2*i}, v{SCN+2*i+1}")
    e(f"v_lshlrev_b32 v{WV}, 16, v{WV}")
    e(f"v_and_b32 v1, 0x7fffffff, v{WV}")
    wavemax_exp(g, 1, S_E1)
    e(f"s_sub_u32 s{S_E1}, s{S_E1}, 13"); e(f"s_sub_u32 s{S_T}, 0, s{S_E1}")
    e(f"v_ldexp_f32 v{WV}, v{WV}, s{S_T}")
    for i in range(8): e(f"v_mul_f32 v{SCN+i}, v{SCN+i}, v{WV}")
    for sh in (1, 2, 4, 8):
        for i in range(8): e(f"v_add_f32_dpp v{SCN+i}, v{SCN+i}, v{SCN+i} row_shr:{sh} {DPPALL} bound_ctrl:0")
    for i in range(8): e(f"v_add_f32_dpp v{SCN+i}, v{SCN+i}, v{SCN+i} row_bcast:15 row_mask:0xa bank_mask:0xf")
    for i in range(4): e(f"v_cvt_pk_f16_f32 v{SCN+2*i}, v{SCN+2*i}, v{SCN+2*i+1}")
    e("v_and_b32 v2, 31, v0"); e("v_cmp_eq_u32 vcc, 31, v2")
    for i in range(4): e(f"v_cndmask_b32 v{FR+i}, v{FR+i}, v{SCN+2*i}, vcc")
    e(f"v_lshlrev_b32 v1, 16, v{WP}"); e("v_and_b32 v1, 0x7fffffff, v1")
    wavemax_exp(g, 1, S_E4)
    e(f"s_sub_u32 s{S_T}, 15, s{S_E4}")
    for i in range(8): e(f"v_lshlrev_b32 v{W1V+i}, 16, v{W1V+i}")
    for i in range(8): e(f"v_ldexp_f32 v{W1V+i}, v{W1V+i}, s{S_T}")
    for i in range(4): e(f"v_cvt_pk_f16_f32 v{W1V+2*i}, v{W1V+2*i}, v{W1V+2*i+1}")
    e("v_cmp_eq_u32 vcc, 30, v2")
    for i in range(4): e(f"v_cndmask_b32 v{FR+i}, v{FR+i}, v{W1V+2*i}, vcc")
    e(f"s_cmp_lg_u32 s{S_FR}, 0"); e("s_cbranch_scc1 L_nohdr")
    e(f"s_sub_u32 s{S_T+2}, s{S_T+2}, 124"); e(f"s_add_u32 s{S_E1}, s{S_E1}, s{S_T+2}"); e(f"s_sub_u32 s{S_E4}, s{S_E4}, 15")
    e(f"v_writelane_b32 v{FR}, s{S_T+2}, 29"); e(f"v_writelane_b32 v{FR+1}, s{S_E1}, 29"); e(f"v_writelane_b32 v{FR+2}, s{S_E4}, 29")
    g.lab("L_nohdr")
    e(f"s_mul_i32 s{S_T}, s{S_L}, {44*1024}"); e(f"s_lshl_b32 s{S_T+1}, s{S_FR}, 10"); e(f"s_add_u32 s{S_T}, s{S_T}, s{S_T+1}")
    e(f"s_sub_u32 s{S_T}, s{S_T}, {88*1024 - IMG['L2']}")
    e("v_lshlrev_b32 v1, 4, v0")
    e(f"buffer_store_dwordx4 {vr(FR,4)}, v1, {sr(S_WS)}, s{S_T} offen sc1")
    e("s_nop 0")
    e(RET)
def helper_prod(g):
    e = g.e
    e(f"s_add_u32 s{S_WP}, s{S_G}, 16")
    e(f"s_cmp_ge_u32 s{S_WP}, 31"); e("s_cbranch_scc1 L_j2d")
    call_if(g, [], "L_pe1")
    e(f"s_cmp_lt_u32 s{S_WP}, 22"); e("s_cbranch_scc1 L_noql")
    e("v_and_b32 v2, 31, v0"); e("v_lshrrev_b32 v3, 5, v0")
    e("v_mul_u32_u24 v1, 676, v3"); e("v_add_lshl_u32 v1, v1, v2, 1")
    e(f"s_mul_i32 s{S_T}, s{S_FR}, 52"); e(f"s_add_u32 s{S_T}, s{S_T}, {4*LB}")
    for s in range(13):
        e(f"buffer_load_ushort v{W1V+s}, v1, {sr(S_LC)}, s{S_T} offen")
        e(f"s_add_u32 s{S_T}, s{S_T}, 2704")
    e(f"s_cmp_eq_u32 s{S_WP}, 29"); e(f"s_cselect_b32 s{S_LW}, 4, 5"); e(f"s_cmp_eq_u32 s{S_WP}, 30"); e(f"s_cselect_b32 s{S_LW}, 0, s{S_LW}")
    e(f"s_mul_i32 s{S_E2}, s{S_LW}, {LB}"); e(f"s_add_u32 s{S_LC+2}, s{S_E2}, {LB}")
    e("v_lshlrev_b32 v1, 1, v0"); e("v_cmp_lt_u32 vcc, 25, v0"); e(f"v_mov_b32 v2, {OOB}"); e("v_cndmask_b32 v1, v1, v2, vcc")
    e(f"s_mul_i32 s{S_T}, s{S_LW}, 52")
    e(f"buffer_load_ushort v{WV}, v1, {sr(S_WO)}, s{S_T} offen")
    e("v_lshlrev_b32 v1, 4, v0")
    e(f"s_mul_i32 s{S_T}, s{S_J}, 1352"); e(f"s_add_u32 s{S_T}, s{S_T}, s{S_E2}")
    for t in range(7):
        for ps in range(2):
            e(f"buffer_load_dwordx4 {vr(RW+8*t+4*ps,4)}, v1, {sr(S_LC)}, s{S_T} offen offset:{1024*ps}")
        e(f"s_add_u32 s{S_T}, s{S_T}, {4*1352}")
    g.lab("L_noql")
    lwait(g, "XST")
    e("s_waitcnt vmcnt(0)")
    call_if(g, [], "L_pe2")
    g.lab("L_j2d")
    e(f"s_sub_u32 s{S_T}, s{S_G}, 6"); e(f"s_cmp_lt_u32 s{S_T}, 5"); e("s_cbranch_scc1 L_nol3")
    e(f"s_mov_b32 s{S_T+2}, {WS_CNT + C_L[3]}")
    gsignal(g, "F3", f"s{S_T+2}")
    g.lab("L_nol3")
    e(f"s_cmp_ge_u32 s{S_WP}, 31"); e("s_cbranch_scc1 L_idle")
    e(f"s_cmp_ge_u32 s{S_WP}, 22"); e("s_cbranch_scc1 L_nog")
    e("s_branch L_idle")
    g.lab("L_nog")
    lwait(g, "RB", 8)
    AC = HX; TU = HX + 16
    for t in range(6): e(f"v_lshl_or_b32 v{QAR(t)}, v{W1V+2*t+1}, 16, v{W1V+2*t}")
    e(f"v_mov_b32 v{QAR(6)}, v{W1V+12}"); e(f"v_mov_b32 v{QAR(7)}, 0")
    g.stamp("q")
    e(f"v_lshlrev_b32 v{WV}, 16, v{WV}"); e(f"v_and_b32 v1, 0x7fffffff, v{WV}")
    wavemax_exp(g, 1, S_E1)
    e(f"s_sub_u32 s{S_T}, 0, s{S_E1}"); e(f"v_ldexp_f32 v{WV}, v{WV}, s{S_T}")
    for i in range(16): e(f"v_mov_b32 v{AC+i}, 0")
    for t in range(7):
        e(f"s_add_u32 s{S_T}, s{S_J}, {4*t}")
        e(f"v_readlane_b32 s{S_T+1}, v{WV}, s{S_T}")
        for i in range(8):
            e(f"v_lshlrev_b32 v{TU+2*i}, 16, v{RW+8*t+i}"); e(f"v_and_b32 v{TU+2*i+1}, 0xffff0000, v{RW+8*t+i}")
        for i in range(16): e(f"v_fmac_f32 v{AC+i}, s{S_T+1}, v{TU+i}")
    PSTR = 4096
    e(f"s_mul_i32 s{S_T}, s{S_J}, {PSTR}"); e(f"s_add_u32 s{S_T}, s{S_T}, {D0}")
    e(f"v_lshl_add_u32 v1, v0, 5, s{S_T}")
    for ps in range(2):
        for hf in range(2): e(f"ds_write_b128 v1, {vr(AC+8*ps+4*hf,4)} offset:{2048*ps+16*hf}")
    g.stamp("q"); arrive(g, "WC"); lwait(g, "WC"); g.stamp("q")
    call_if(g, [], "L_l2")
    e(f"s_cmp_eq_u32 s{S_FR}, 28"); e("s_cbranch_scc1 L_lin")
    e(f"s_cmp_lt_u32 s{S_FR}, 26"); e("s_cbranch_scc1 L_q")
    e(f"s_cmp_lg_u32 s{S_FR}, 32"); e("s_cbranch_scc1 L_noq")
    g.lab("L_q")
    BQ, PT, DQ = HX + 16, HX + 32, HX + 96
    e("v_and_b32 v2, 31, v0"); e("v_lshrrev_b32 v3, 5, v0")
    e("v_mad_u32_u24 v1, v3, 26, v2"); e("v_lshlrev_b32 v1, 2, v1"); e(f"v_add_u32 v1, {D0}, v1")
    def readsum(stride):
        for pj in range(4):
            for s in range(13): e(f"ds_read_b32 v{PT+13*pj+s}, v1 offset:{PSTR*pj + stride*s}")
            if pj: e("s_waitcnt lgkmcnt(13)")
        e("s_waitcnt lgkmcnt(0)")
        for s in range(13):
            e(f"v_add_f32 v{PT+s}, v{PT+s}, v{PT+13+s}"); e(f"v_add_f32 v{PT+26+s}, v{PT+26+s}, v{PT+39+s}")
        for s in range(13): e(f"v_add_f32 v{BQ+s}, v{PT+s}, v{PT+26+s}")
    def max13():
        e(f"v_max3_f32 v1, |v{BQ}|, |v{BQ+1}|, |v{BQ+2}|")
        for s in range(3, 13, 2): e(f"v_max3_f32 v1, v1, |v{BQ+s}|, |v{BQ+s+1}|")
    readsum(208)
    e("v_cmp_gt_u32 vcc, 26, v2")
    for s in range(13): e(f"v_cndmask_b32 v{BQ+s}, 0, v{BQ+s}, vcc")
    max13()
    wavemax_exp(g, 1, S_E2)
    e(f"s_sub_u32 s{S_T}, 0, s{S_E2}")
    for s in range(13): e(f"v_ldexp_f32 v{BQ+s}, v{BQ+s}, s{S_T}")
    e(f"s_max_u32 s{S_E0}, s{S_E0}, 10"); e(f"s_sub_u32 s{S_E0}, s{S_E0}, 126")
    BH, BL = PT, PT + 8
    e(f"v_mov_b32 v{BQ+13}, 0"); e(f"v_mov_b32 v{BH+7}, 0"); e(f"v_mov_b32 v{BL+7}, 0")
    for t in range(7): e(f"v_cvt_pk_bf16_f32 v{BH+t}, v{BQ+2*t}, v{BQ+2*t+1}")
    for t in range(7):
        e(f"v_lshlrev_b32 v{PT+16+2*t}, 16, v{BH+t}"); e(f"v_and_b32 v{PT+17+2*t}, 0xffff0000, v{BH+t}")
    for t in range(14): e(f"v_sub_f32 v{BQ+t}, v{BQ+t}, v{PT+16+t}")
    for t in range(7): e(f"v_cvt_pk_bf16_f32 v{BL+t}, v{BQ+2*t}, v{BQ+2*t+1}")
    e(f"s_cmp_ge_u32 s{S_FR}, 13"); e(f"s_cselect_b32 s{S_T+1}, 13, 0"); e(f"s_cselect_b32 s{S_T+2}, 4, 0")
    e(f"s_sub_u32 s{S_T+1}, s{S_FR}, s{S_T+1}"); e(f"s_and_b32 s{S_T+3}, s{S_T+1}, 3"); e(f"s_add_u32 s{S_T+2}, s{S_T+2}, s{S_T+3}")
    e(f"s_lshr_b32 s{S_T+1}, s{S_T+1}, 2"); e(f"s_lshl_b32 s{S_T+1}, s{S_T+1}, 3"); e(f"s_add_u32 s{S_SB}, s{S_T+2}, s{S_T+1}")
    e(f"s_mov_b32 s{S_L}, 0")
    e(f"s_cmp_lg_u32 s{S_FR}, 32"); e("s_cbranch_scc1 L_q2")
    e("v_sub_u32 v1, v2, v3")
    for s in range(13):
        e(f"v_cmp_eq_u32 vcc, {2*s}, v1"); e(f"v_cndmask_b32 v{AQ+s}, 0, 1.0, vcc")
    e(f"v_mov_b32 v{AQ+13}, 0")
    for t in range(7): e(f"v_cvt_pk_bf16_f32 v{QAR(t)}, v{AQ+2*t}, v{AQ+2*t+1}")
    e(f"s_mov_b32 s{S_E0}, 0"); e(f"s_mov_b32 s{S_SB}, 31"); e(f"s_mov_b32 s{S_L}, 8")
    g.lab("L_q2")
    g.stamp("q")
    e("s_nop 1")
    first = True
    for bb in (BL, BH):
        for ks in range(2):
            e(f"v_mfma_f32_32x32x16_bf16 {vr(DQ,16)}, {vr(QAR(4*ks),4)}, {vr(bb+4*ks,4)}, {'0' if first else vr(DQ,16)}"); first = False
            e(f"v_mfma_f32_32x32x16_bf16 {vr(DQ,16)}, {vr(bb+4*ks,4)}, {vr(QAR(4*ks),4)}, {vr(DQ,16)}")
    e(f"v_max_f32 v1, v{QS}, v{QS+1}")
    e(f"s_sub_u32 s{S_T}, 137, s{S_E0}"); e(f"s_lshl_b32 s{S_T}, s{S_T}, 23"); e(f"v_mov_b32 v30, s{S_T}"); e("v_mul_f32 v31, 0.5, v30")
    for t in range(7):
        e(f"v_cmp_eq_f32 vcc, v1, v{QS+t}"); e(f"v_cndmask_b32 v{QS+t}, v31, v30, vcc")
    e(f"s_cmp_eq_u32 s{S_J}, 1"); e(f"s_cselect_b32 s{S_T}, 48, 0"); e(f"s_sub_u32 s{S_T}, {D1 - BUFA}, s{S_T}")
    for t in range(7): e(f"v_add_u32 v{QA+t}, s{S_T}, v{QA+t}")
    e(f"v_mul_u32_u24 v1, {S0STR}, v2"); e("v_lshl_add_u32 v1, v3, 9, v1"); e(f"s_lshl_b32 s{S_T}, s{S_J}, 4"); e(f"s_add_u32 s{S_T}, s{S_T}, {D1}")
    e(f"v_min_u32 v1, {22*S0STR+512}, v1")
    e(f"v_add_u32 v1, s{S_T}, v1")
    e(f"v_lshl_add_u32 v28, v3, 9, s{S_T}"); e("v_mov_b32 v29, 0")
    e(f"ds_write_b32 v28, v29 offset:{22*S0STR+12}")
    pack_round(g, DQ, 0, False)
    g.stamp("q")
    e("s_waitcnt lgkmcnt(0)")
    e(f"ds_read_b128 {vr(AQ,4)}, v1")
    e("v_lshlrev_b32 v1, 10, v2"); e("v_lshl_add_u32 v1, v3, 9, v1"); e("v_cmp_lt_u32 vcc, 22, v2"); e(f"v_mov_b32 v28, {OOB}"); e("v_cndmask_b32 v1, v1, v28, vcc")
    e(f"s_lshl_b32 s{S_T}, s{S_SB}, 4"); e(f"s_add_u32 s{S_T}, s{S_T}, {IMG['Q4']}")
    e("s_waitcnt lgkmcnt(0)")
    e(f"buffer_store_dwordx4 {vr(AQ,4)}, v1, {sr(S_WS)}, s{S_T} offen sc1")
    e(f"s_add_u32 s{S_E0}, s{S_E0}, s{S_E2}"); e(f"s_add_u32 s{S_E0}, s{S_E0}, s{S_E1}"); e(f"s_sub_u32 s{S_E0}, s{S_E0}, 10")
    e(f"s_and_b32 s{S_T}, s{S_FR}, 31"); e(f"s_cmp_lg_u32 s{S_T}, 0"); e("s_cbranch_scc1 L_noq")
    g.lab("L_qh")
    e(f"v_mov_b32 v1, s{S_E0}"); e(f"s_add_u32 s{S_T}, s{S_L}, {IMG['Q4'] + 23*1024}")
    e(f"buffer_store_dword v1, v{V_L0}, {sr(S_WS)}, s{S_T} offen sc1")
    e("s_branch L_noq")
    g.lab("L_lin")
    e("v_lshrrev_b32 v3, 5, v0"); e(f"v_min_u32 v2, 25, v{V_HROW}")
    e("v_mad_u32_u24 v1, v2, 26, v3"); e("v_lshlrev_b32 v1, 2, v1"); e(f"v_add_u32 v1, {D0}, v1")
    readsum(8)
    e(f"v_cmp_gt_u32 vcc, 26, v{V_HROW}")
    for s in range(13): e(f"v_cndmask_b32 v{BQ+s}, 0, v{BQ+s}, vcc")
    max13()
    wavemax_exp(g, 1, S_E2)
    e(f"s_sub_u32 s{S_T}, 15, s{S_E2}")
    for s in range(13): e(f"v_ldexp_f32 v{BQ+s}, v{BQ+s}, s{S_T}")
    e(f"v_mov_b32 v{BQ+13}, 0"); e(f"v_mov_b32 v{AQ+7}, 0")
    for t in range(7): e(f"v_cvt_pk_f16_f32 v{AQ+t}, v{BQ+2*t}, v{BQ+2*t+1}")
    e("v_lshlrev_b32 v1, 4, v0"); e(f"s_mov_b32 s{S_T}, {IMG['Q4'] + 24*1024}")
    for s in range(2): e(f"buffer_store_dwordx4 {vr(AQ+4*s,4)}, v1, {sr(S_WS)}, s{S_T} offen offset:{1024*s} sc1")
    e(f"s_add_u32 s{S_E0}, s{S_E2}, s{S_E1}"); e(f"s_sub_u32 s{S_E0}, s{S_E0}, 15"); e(f"s_mov_b32 s{S_L}, 4")
    e("s_branch L_qh")
    g.lab("L_noq")
    g.stamp("q")
    e(f"s_mov_b32 s{S_T+2}, {WS_CNT + C_Q}")
    gsignal(g, "QST", f"s{S_T+2}")
    g.stamp("q")
    lwait(g, "QST")
    e("s_branch L_idle2")
    g.lab("L_l2")
    lwait(g, "AFREE")
    poll1(g, [(S_DBG, "0", 128, 11)], "F2")
    dma_img(g, "L2", 44, BUFA)
    e("s_waitcnt vmcnt(0)"); arrive(g, "L2OK")
    e(RET)
    g.lab("L_idle")
    call_if(g, [], "L_l2")
    g.lab("L_idle2")
    g.stamp(); g.stamp()
    lwait(g, "BFREE")
    poll1(g, [(S_WS, f"s{S_CX}", C_L[3], 11)], "FX")
    dma_img(g, "L3", 44, BUFB)
    e("s_waitcnt vmcnt(0)"); arrive(g, "L3OK")
    g.stamp()
    poll1(g, [(S_WS, f"s{S_CX}", C_Q, 9), CHK_X()], "FQ")
    dma_img(g, "Q4", 28, QB)
    e("s_waitcnt vmcnt(0)"); arrive(g, "QOK")
    g.stamp()
    g.flush_stamps(4, 5)
    e("s_endpgm")

DOC = """; ---- design (generated by a script of my own) ----
;   g4 = L x + Q(x,x) with L = w4.W4, Q = W4.(w5.W5);  logit = sum_l w_l.u_{l+1} + g4.u4.
; MLP: 15 workgroups per 256 samples, 16x16x32 bf16 MFMA, x exchanged in fragment order through d_ws; the 16th workgroup
;   prepares the shared fp16 weight images. Hand-offs: write-through stores, drained, then counters reset inside this launch.
"""
def build(stamps=False):
    g = G(stamps)
    prologue(g); n0 = g.nst
    cin(g)
    g.h0 = len(g.L); g.lab("L_helper"); g.nst = n0
    helper_common(g); n1 = g.nst
    g.e(f"s_cmp_ge_u32 s{S_R}, {NR}"); g.e("s_cbranch_scc1 L_helper_n")
    helper_dnn(g)
    g.lab("L_helper_n"); g.nst = n1
    helper_prod(g)
    prod_early1(g); prod_early2(g)
    g.L += g.tail
    i = g.L.index("L_cin2:"); g.L[i:i] = g.hfirst
    g.lab("L_end"); g.e("s_endpgm")
    body, nops = fix_hazards(g.L)
    ref = open("standalone__deep_cross_xdeepfm__recsys.s.ref").read().split("\n")
    hdr = [l for l in ref if l.startswith(";") and "@launch" not in l and "Override" not in l and "grid=ceil" not in l]
    txt = "\n".join(hdr) + f"\n; @launch grid=(256,1,1) block=(512,1,1) lds={LDS_TOTAL}\n"
    txt += DOC
    txt += f'.amdgcn_target "amdgcn-amd-amdhsa--gfx950"\n.text\n.globl {KN}\n.p2align 8\n.type {KN},@function\n{KN}:\n'
    txt += "\n".join(body) + "\n"
    txt += f""".section .rodata,"a"
.p2align 6
.amdhsa_kernel {KN}
  .amdhsa_next_free_vgpr 256
  .amdhsa_next_free_sgpr 102
  .amdhsa_accum_offset 256
  .amdhsa_group_segment_fixed_size 0
  .amdhsa_kernarg_size 88
  .amdhsa_user_sgpr_count 2
  .amdhsa_user_sgpr_kernarg_segment_ptr 1
  .amdhsa_system_sgpr_workgroup_id_x 1
.end_amdhsa_kernel
"""
    return txt, nops
if __name__ == "__main__":
    for a in sys.argv[2:]:
        if "=" in a:
            k, v = a.split("="); setattr(PAR, k, eval(v))
    txt, nops = build(stamps="stamps" in sys.argv)
    open(sys.argv[1], "w").write(txt)
    print("nops inserted", nops, "lines", txt.count("\n"))
```

```python
import sys, struct
from asmlib import fix_hazards
KN = "standalone__deep_cross_xdeepfm__recsys_kernel"
def f2u(f): return struct.unpack('<I', struct.pack('<f', f))[0]
OOB = 0x40000000
SPIN = 200000
LB = 35152
IMG = {}
off = 0
for name, n in (("L2", 44), ("L3", 44), ("Q4", 28)):
    IMG[name] = off; off += n * 1024
XBS = 106496 + 128
NR = 15
WS_PART = off
WS_CNT = WS_PART + 16 * NR * 1024
WS_STAMP = 0x80000
WS_X = WS_STAMP + 256 * 8 * 64 + 128
C_L = {3: 512}; C_Q = 516; C_XR = 256; C_RDY = 0
BUFA, BUFB = 0, 45056
D0, D1 = 90112, 118784
QB = D0 + 10 * 4096
MISC = QB + 28672
LDS_TOTAL = MISC + 2560
M_S0, M_L1, M_SC, M_EW1, M_CNT = MISC, MISC + 64, MISC + 128, MISC + 192, MISC + 256
CNT = {n: M_CNT + 4 * i for i, n in enumerate(["XST", "L1M", "L1OK", "AFREE", "L2OK", "BFREE", "L3OK", "QOK", "W01", "C0", "C1", "C2", "SCM", "GST", "WC", "QST", "FX", "F2", "F3", "FQ", "S0OK", "S0M", "RAW", "RB"])}
CNT["AFREE"] = M_CNT + 4 * 28; CNT["BFREE"] = M_CNT + 4 * 29; CNT["RB"] = M_CNT + 4 * 30
S0STR = 1040
XSTR = 1680
QPAIRS = [(p, q) for p in range(13) for q in range(p, 13)]
S_IDX, S_TAB, S_WS, S_W1, S_B1, S_W2, S_OUT, S_DBG, S_BO, S_WC, S_WO = 4, 8, 12, 16, 20, 24, 28, 32, 36, 40, 44
S_G, S_R, S_WAVE, S_J = 70, 71, 83, 3
S_HDR = 48
S_EX = 60
S_K = 64
S_K1 = 4
S_KC = 76
S_T = 72
S_MASK = 80
S_C1 = 81
S_SB = 82
S_ST = 84
class P: pass
PAR = P()
PAR.chunks = [7, 7, 6, 6]
PAR.gsplit = 0
PAR.gsplit2 = 3
PAR.lnpos = 28
PAR.pload = 17
PAR.la = 12
PAR.urate = 5
PAR.xst = 2
PAR.l2pos = -1
PAR.nslot = 6
PAR.st = 'ad'
PAR.ld = 'sc1'
PAR.inv = 0
PAR.encb = 0
PAR.ttouch = 1
PAR.tset = [[S_TAB], [], [], []]
PAR.encsh = 1
PAR.wp = 3
PAR.dp = 3
PAR.otouch = 0
PAR.drop = ('Q4', 6)
PAR.cp2 = 1
PAR.sp = 1
PAR.barpos = 0
PAR.nxl = 4
PAR.noa = 0
PAR.il = 2
PAR.fst = (0, 3, 6, 10, 13, 17, 22)
PAR.xi = 3
PAR.wbn = 3
PAR.wpf3 = 0
PAR.wa = 10
PAR.l3n = 3
PAR.wbpos = 3
PAR.wmod = ''
PAR.w2 = 1
PAR.l1rate = 16
PAR.sclq = 0
PAR.x0 = 0
PAR.qpos = 11
PAR.m16 = 0
PAR.encsel = None
PAR.gmin = 0
PAR.qaearly = 0
PAR.gmod = 'nt'
PAR.imod = 'nt'
PAR.pkpack = 0
PAR.w0lin = 0
PAR.l3rate = 18
PAR.qarr = 2
PAR.gearly = 11
PAR.ngelu = 16
PAR.nmf = 14
PAR.npk = 4
PAR.lslp = 4
PAR.zpad = 1
PAR.skew = 1
PAR.cstr = 4352
PAR.l3late = 1
PAR.xp = 3
PAR.wearly = 0
PAR.wpf2 = 0
PAR.ghi = 1
PAR.qchk = 8
PAR.cp = 1
PAR.enc = None
PAR.rate = 20
PAR.qrate = 24
PAR.clk = 0
PAR.hp = 0
PAR.nost = 0
PAR.wpf = 1
PAR.rot = 2
PAR.pf = 4
PAR.qlate = 0
PAR.slp = 8
PAR.de = 2
PAR.touch = 0
PAR.dbg = None
class G:
    def __init__(self, stamps=False):
        self.L = []; self.stamps = stamps; self.nst = 0; self.nl = 0; self.vmq = []; self.tail = []
    def e(self, s): self.L.append("    " + s)
    def lab(self, s): self.L.append(s + ":")
    def vm(self, s, tag): self.e(s); self.vmq.append(tag)
    def vmwait(self, *tags):
        idx = max(i for i, t in enumerate(self.vmq) if t in tags)
        n = sum(1 for t in self.vmq[idx + 1:] if not t.startswith("f"))
        self.e(f"s_waitcnt vmcnt({min(n, 63)})")
    def newlab(self, s): self.nl += 1; return f"L_{s}_{self.nl}"
    def stamp(self, name=None):
        if self.stamps and (name or "d") in PAR.st:
            assert self.nst < 8
            self.e(f"{'s_memtime' if PAR.clk else 's_memrealtime'} s[{S_ST+2*self.nst}:{S_ST+2*self.nst+1}]"); self.nst += 1
    def flush_stamps(self, vt, va):
        if not self.stamps: return
        self.e("s_waitcnt lgkmcnt(0)")
        self.e(f"s_lshl_b32 s{S_T}, s2, 3"); self.e(f"s_add_u32 s{S_T}, s{S_T}, s{S_WAVE}"); self.e(f"s_lshl_b32 s{S_T}, s{S_T}, 6")
        self.e(f"s_add_u32 s{S_T}, s{S_T}, {WS_STAMP}")
        self.e(f"v_mov_b32 v{va}, 0")
        if PAR.dbg is not None:
            lb = self.newlab("nd")
            self.e(f"s_cmp_lg_u32 s{S_T}, {WS_STAMP + PAR.dbg*64}"); self.e(f"s_cbranch_scc1 {lb}")
            for i in range(self.nst):
                self.e(f"s_sub_u32 s{S_T+1}, s{S_ST+2*i}, s{S_ST}")
                self.e(f"v_mov_b32 v{vt}, s{S_T+1}")
                self.e(f"buffer_store_dword v{vt}, v{va}, s[{S_DBG}:{S_DBG+3}], 0 offen offset:{64+4*i}")
            self.lab(lb)
        for i in range(self.nst):
            self.e(f"v_mov_b32 v{vt}, s{S_ST+2*i}")
            self.e(f"buffer_store_dword v{vt}, v{va}, s[{S_WS}:{S_WS+3}], s{S_T} offen offset:{4*i}")
        self.nst = 0
def vr(a, n): return f"v[{a}:{a+n-1}]"
def sr(a, n=4): return f"s[{a}:{a+n-1}]"
DPPALL = "row_mask:0xf bank_mask:0xf"

def prologue(g):
    e = g.e
    e("s_cmp_ge_u32 s2, 256")
    e("s_cbranch_scc1 L_end")
    g.stamp("a")
    e("s_load_dwordx16 s[48:63], s[0:1], 0")
    e("s_load_dwordx4 s[64:67], s[0:1], 64")
    e("s_load_dwordx2 s[68:69], s[0:1], 80")
    if PAR.pf:
        e(f"s_getpc_b64 s[{S_KC}:{S_KC+1}]")
        g.lab("L_pfbase")
        e(f"s_mov_b32 s{S_KC+2}, L_end - L_pfbase"); e(f"s_mov_b32 s{S_KC+3}, 0x00020000")
        e(f"s_lshr_b32 s{S_T}, s2, 3"); e(f"s_lshl_b32 s{S_T}, s{S_T}, 7")
        e("v_xor_b32 v1, 0x1c0, v0"); e("v_lshlrev_b32 v1, 12, v1")
        e(f"buffer_load_dword v255, v1, {sr(S_KC)}, s{S_T} offen")
    e("v_lshrrev_b32 v1, 6, v0")
    e("v_and_b32 v0, 63, v0")
    e(f"v_readfirstlane_b32 s{S_WAVE}, v1")
    e(f"s_and_b32 s{S_T}, s2, 7")
    e(f"s_lshr_b32 s{S_T+1}, s2, 3")
    e(f"s_lshr_b32 s{S_G}, s{S_T+1}, 4")
    e(f"s_lshl_b32 s{S_T}, s{S_T}, 1")
    e(f"s_add_u32 s{S_G}, s{S_G}, s{S_T}")
    e(f"s_and_b32 s{S_R}, s{S_T+1}, 15")
    e(f"s_mov_b32 s{S_MASK}, 0x7fff7fff")
    e("v_and_b32 v25, 31, v0"); e("v_lshlrev_b32 v25, 2, v25"); e(f"v_add_u32 v25, {M_CNT}, v25"); e("v_mov_b32 v2, 0")
    e("ds_write_b32 v25, v2")
    if PAR.barpos == 2: e("s_waitcnt lgkmcnt(0)"); e("s_barrier")
    e(f"s_cmp_ge_u32 s{S_WAVE}, 4")
    e("s_cbranch_scc1 L_helper")

SRDS = {S_IDX: (48, 4096*104), S_TAB: (50, 6400000), S_WC: (52, LB), S_WO: (54, 312), S_W1: (56, 832*1664), S_B1: (58, 1664), S_W2: (60, 1664),
        S_BO: (62, 2), S_OUT: (64, 8192), S_DBG: (66, 256), S_WS: (68, 1 << 28)}
def srd_const(g, lst):
    for srd in lst: g.e(f"s_mov_b32 s{srd+2}, {SRDS[srd][1]}"); g.e(f"s_mov_b32 s{srd+3}, 0x00020000")
def srd_base(g, lst):
    for srd in lst: g.e(f"s_mov_b64 s[{srd}:{srd+1}], s[{SRDS[srd][0]}:{SRDS[srd][0]+1}]")
ACC, ACC2, XR, UR, BR, AR, SC, LG, TM = 4, 68, 132, 188, 216, 228, 244, 248, 252
def X(k, p): return XR + 14 * k + p
def EV(k): return XR + 14 * k + 13
def U(k, t): return UR + 7 * k + t
def cin(g):
    e = g.e
    e("s_setprio 3")
    e(f"s_lshl_b32 s{S_T}, s{S_G}, 8"); e(f"s_lshl_b32 s{S_T+1}, s{S_R}, 4"); e(f"s_add_u32 s{S_T}, s{S_T}, s{S_T+1}")
    e(f"s_lshl_b32 s{S_T+1}, s{S_WAVE}, 2"); e(f"s_add_u32 s{S_SB}, s{S_T}, s{S_T+1}")
    e("v_lshrrev_b32 v1, 4, v0")
    e("v_bfe_u32 v2, v0, 2, 2")
    e("v_and_b32 v3, 3, v0")
    e("v_mul_u32_u24 v4, 104, v1")
    e("v_mad_u32_u24 v4, v2, 28, v4")
    I = 8
    CS = [S_IDX, S_WC, S_TAB, S_WS, S_OUT] + ([S_DBG] if PAR.dbg is not None or PAR.gmin else [])
    srd_const(g, CS[:1])
    e(f"s_mul_i32 s{S_T}, s{S_SB}, 104")
    g.stamp("i")
    e("s_waitcnt lgkmcnt(0)")
    g.stamp("i")
    srd_base(g, CS[:1])
    e(f"buffer_load_dwordx4 {vr(I,4)}, v4, {sr(S_IDX)}, s{S_T} offen {PAR.imod}")
    e(f"buffer_load_dwordx3 {vr(I+4,3)}, v4, {sr(S_IDX)}, s{S_T} offen offset:16 {PAR.imod}")
    if PAR.ttouch:
        e("v_lshlrev_b32 v15, 20, v0")
        for w, lst in enumerate(PAR.tset):
            if not lst: continue
            lb = g.newlab("tt")
            e(f"s_cmp_lg_u32 s{S_WAVE}, {w}"); e(f"s_cbranch_scc1 {lb}")
            for srd in lst:
                srd_const(g, [srd]); srd_base(g, [srd])
                if srd == S_WS:
                    e(f"s_mul_i32 s{S_T}, s{S_G}, {4*XBS}"); e(f"s_add_u32 s{S_T}, s{S_T}, {WS_X - 128}")
                    e(f"v_mul_u32_u24 v17, {4*XBS}, v0"); e(f"v_add_u32 v17, s{S_T}, v17"); e(f"v_mov_b32 v18, {WS_X - 128}"); e("v_cmp_lt_u32 vcc, 1, v0"); e("v_cndmask_b32 v17, v17, v18, vcc")
                    e(f"buffer_load_ushort v19, v17, {sr(srd)}, 0 offen sc1")
                else: e(f"buffer_load_ushort v19, v15, {sr(srd)}, 0 offen" + (" sc1" if srd == S_DBG else ""))
            g.lab(lb)
    e(f"s_setprio {PAR.sp}")
    e("s_branch L_cin2")
    g.lab("L_cin2")
    srd_base(g, CS[1:])
    e(f"s_load_dword s{S_BO}, s[62:63], 0")
    srd_const(g, CS[1:])
    e(f"s_mov_b32 s{S_WC+2}, {2*LB}"); e(f"s_mov_b32 s{S_J}, s{S_WAVE}")
    e("v_lshlrev_b32 v5, 4, v3")
    e("v_cmp_eq_u32 vcc, 3, v2")
    e(f"v_mov_b32 v6, {OOB}")
    e("v_cndmask_b32 v6, 0, v6, vcc")
    e("v_add_u32 v6, v6, v5")
    e("v_lshlrev_b32 v26, 4, v0"); e("v_cmp_lt_u32 vcc, 42, v0"); e(f"v_mov_b32 v27, {OOB}"); e("v_cndmask_b32 v26, v26, v27, vcc")
    e("v_lshlrev_b32 v29, 4, v0"); e(f"v_add_u32 v29, {BUFA + 28*1024}, v29")
    e(f"s_lshl_b32 s{S_T}, s{S_J}, 4"); e(f"s_add_u32 s{S_T}, s{S_T}, {BUFB}")
    e(f"v_mul_u32_u24 v28, {S0STR}, v0"); e(f"v_add_u32 v28, s{S_T}, v28"); e("v_cndmask_b32 v28, v28, v29, vcc")
    e(f"s_mul_i32 s{S_T+1}, s{S_WAVE}, {4*XSTR}"); e(f"s_add_u32 s{S_T+1}, s{S_T+1}, {D0}")
    e(f"v_mul_u32_u24 v7, {XSTR}, v1")
    e("v_mad_u32_u24 v16, v2, 7, 0")
    e("v_lshl_add_u32 v7, v16, 6, v7")
    e(f"v_add3_u32 v7, v7, v5, s{S_T+1}")
    e("v_cmp_eq_u32 vcc, 3, v2")
    e(f"v_lshl_add_u32 v18, v0, 4, 0"); e(f"v_add_u32 v18, {D0 + 16*XSTR + 256 - 320}, v18"); e("v_cndmask_b32 v18, v7, v18, vcc")
    e("v_lshrrev_b32 v16, 1, v1")
    e("v_xor_b32 v16, v16, v2")
    e("v_lshlrev_b32 v16, 6, v16")
    e("v_and_b32 v17, 1, v1")
    e("v_lshl_add_u32 v16, v17, 5, v16")
    e("v_lshl_add_u32 v16, v3, 3, v16")
    e(f"v_add_u32 v16, s{S_T+1}, v16")
    for k in range(4): e(f"v_mov_b32 v{LG+k}, 0")
    PA, PS, DR = 32, 40, 184
    if PAR.zpad:
        for i in range(4): e(f"v_mov_b32 v{PS+i}, 0")
        e(f"s_and_b32 s{S_T}, s{S_J}, 1"); e(f"s_mul_i32 s{S_T}, s{S_T}, 48"); e(f"s_lshr_b32 s{S_T+1}, s{S_J}, 1"); e(f"s_mul_i32 s{S_T+1}, s{S_T+1}, 480")
        e(f"s_add_u32 s{S_T}, s{S_T}, s{S_T+1}"); e(f"v_add_u32 v30, s{S_T}, v28")
        e(f"v_subrev_u32 v31, {BUFB - BUFA}, v30"); e("v_cmp_lt_u32 vcc, 22, v0"); e("v_cndmask_b32 v31, v31, v29, vcc")
        for i in range(3):
            e(f"ds_write_b128 v30, {vr(PS,4)} offset:{25*16 + 16*i}"); e(f"ds_write_b128 v31, {vr(PS,4)} offset:{25*16 + 16*i}")
    unpack_mat(g, PA, 20)
    e("s_setprio 1")
    L1R = 132
    if not PAR.barpos: e("s_barrier")
    g.stamp("i")
    e(f"s_mul_i32 s{S_T}, s{S_J}, 1352")
    for i in range(13):
        if i < 12:
            t = i >> 1
            if i & 1 == 0: e(f"s_add_u32 s{S_T+1}, s{S_T}, {LB + (13*(t&1) + 4*(t>>1))*1352}")
            e(f"buffer_load_dwordx4 {vr(L1R+4*i,4)}, v26, {sr(S_WC)}, s{S_T+1} offen offset:{676*(i&1)}")
        else:
            e(f"s_lshr_b32 s{S_T+1}, s{S_J}, 1"); e(f"s_mul_i32 s{S_T+1}, s{S_T+1}, {13*1352}"); e(f"s_and_b32 s{S_T+2}, s{S_J}, 1"); e(f"s_mul_i32 s{S_T+2}, s{S_T+2}, 676")
            e(f"s_add_u32 s{S_T+1}, s{S_T+1}, s{S_T+2}"); e(f"s_add_u32 s{S_T+1}, s{S_T+1}, {LB + 12*1352}")
            e(f"buffer_load_dwordx4 {vr(L1R+4*i,4)}, v26, {sr(S_WC)}, s{S_T+1} offen")
    e("s_setprio 3")
    g.stamp("i")
    e("s_waitcnt vmcnt(13)")
    g.stamp("i")
    GR, MR = 68, 96
    for t in range(7):
        e(f"v_lshl_add_u32 v{I+t}, v{I+t}, 6, v{5 if t < 5 else 6}")
        e(f"buffer_load_dwordx4 {vr(GR+4*t,4)}, v{I+t}, {sr(S_TAB)}, 0 offen {PAR.gmod}")
    g.stamp(); g.stamp("i")
    e(f"s_setprio {PAR.cp}")
    if PAR.barpos == 1: e("s_barrier")
    def carrive(c):
        e("v_mov_b32 v2, 1"); e("s_mov_b64 exec, 1"); e(f"ds_add_u32 v25, v2 offset:{CNT[c]-M_CNT}"); e("s_mov_b64 exec, -1")
    for i in range(13):
        e(f"s_waitcnt vmcnt({7 + 12 - i})")
        unpack(g, DR, PA, L1R, i)
        if i & 1 and i >= 3: tmax(g, DR, (i >> 1) - 1, 16, i == 3)
    e(f"s_and_b32 s{S_T}, s{S_J}, 1"); e(f"s_lshl_b32 s{S_T}, s{S_T}, 4")
    tmax(g, DR, 5, 16, False)
    for r in range(4): e(f"v_alignbit_b32 v{L1R+48+r}, v{L1R+48+r}, v{L1R+48+r}, s{S_T}")
    tmax(g, DR, 6, 8, False)
    put_max(g, M_L1)
    carrive("L1M")
    for i in range(8): e(f"v_and_b32 v{PS+i}, 0x800080, v{PA+i}")
    g.stamp("s")
    e(f"s_setprio {PAR.cp2}")
    lwait(g, "L1M", 4, 25, 2)
    get_max(g, M_L1)
    e(f"v_readfirstlane_b32 s{S_T}, v1")
    e(f"s_lshr_b32 s{S_T}, s{S_T}, 23"); e(f"s_min_u32 s{S_T}, s{S_T}, 249"); e(f"s_sub_u32 s{S_HDR+2}, s{S_T}, 124")
    e(f"s_sub_u32 s{S_T}, {127+124}, s{S_T}")
    for i in range(8): e(f"v_mul_u32_u24 v{PS+i}, s{S_T}, v{PS+i}")
    def l1out(i):
        d = DR + 16 * ((i >> 1) & 3) + 8 * (i & 1)
        for r in range(4):
            lo, hi = (d + 2 * r + 1, d + 2 * r) if (i & 1) else (d + 2 * r, d + 2 * r + 1)
            e(f"v_cvt_pk_f16_f32 v{L1R+4*i+r}, v{lo}, v{hi}")
        if i < 12:
            t = i >> 1; o = 16 * (8 * (t >> 1) + 4 * (t & 1)) + 512 * (i & 1)
        else:
            e(f"s_lshr_b32 s{S_T}, s{S_J}, 1"); e(f"s_lshl_b32 s{S_T}, s{S_T}, 5"); e(f"s_and_b32 s{S_T+1}, s{S_J}, 1"); e(f"s_mul_i32 s{S_T+1}, s{S_T+1}, 496")
            e(f"s_add_u32 s{S_T}, s{S_T}, s{S_T+1}"); e(f"v_add_u32 v28, s{S_T}, v28"); o = 24 * 16
        e(f"ds_write_b128 v28, {vr(L1R+4*i,4)} offset:{o}")
    for i in range(13):
        unpack(g, DR, PS, L1R, i)
        if i >= 4: l1out(i - 4)
    for i in range(9, 13): l1out(i)
    g.stamp("s")
    e(f"ds_read_b32 v3, v25 offset:{CNT['S0OK']-M_CNT}")
    e("v_lshlrev_b32 v1, 4, v0")
    for i in range(2): e(f"ds_read_b128 {vr(AR+4*i,4)}, v1 offset:{BUFA + i*S0STR}")
    e("s_waitcnt lgkmcnt(2)")
    DR = 132
    e("v_mov_b32 v2, 1")
    e(f"s_setprio {PAR.xp}")
    for t in range(7):
        e(f"s_waitcnt vmcnt({6 - t})")
        unpack(g, DR, PA, GR, t)
        e(f"ds_write_b128 v{7 if t < 5 else 18}, {vr(GR+4*t,4)} offset:{64*t}")
        if t in (3, 5): tmax(g, DR, (t >> 1) - 1, 16, t == 3, 20)
    e("s_mov_b64 exec, 1"); e(f"ds_add_u32 v25, v2 offset:{CNT['RAW']-M_CNT}"); e("s_mov_b64 exec, -1")
    g.stamp(); g.stamp("s")
    tmax(g, DR, 2, 16, False, 20); tmax(g, DR, 3, 8, False, 20)
    for sh in (8, 4, 2, 1):
        e(f"v_max_u32_dpp v20, v20, v20 row_ror:{sh} {DPPALL}")
    e("v_lshrrev_b32 v20, 23, v20"); e("v_max_u32 v20, 4, v20")
    e(f"v_sub_u32 v22, {127+130}, v20"); e("v_lshlrev_b32 v22, 23, v22")
    for t in range(7):
        d = DR + 8 * t
        for i in range(8): e(f"v_mul_f32 v{d+i}, v{d+i}, v22")
        for i in range(4): e(f"v_cvt_pk_f16_f32 v{MR+4*t+i}, v{d+2*i}, v{d+2*i+1}")
        e(f"ds_write_b128 v{7 if t < 5 else 18}, {vr(MR+4*t,4)} offset:{D1 - D0 + 64*t}")
    for k in range(4):
        for t in range(7):
            e(f"ds_read_b64_tr_b16 {vr(X(k,2*t),2)}, v16 offset:{D1 - D0 + k*XSTR+t*256}")
    for k in range(4): e(f"v_readlane_b32 s{S_EX+k}, v20, {16*k}")
    HW = lambda l: S_HDR + 2 * l
    HD = lambda l: S_HDR + 2 * l + 1
    HQ, HL = S_HDR + 8, S_HDR + 9
    e("s_setprio 1")
    e(f"v_readfirstlane_b32 s{S_T}, v3"); e(f"s_cmp_ge_u32 s{S_T}, 4"); e("s_cbranch_scc1 L_s0ok")
    lwait(g, "S0OK", 4, 25, 2)
    for i in range(2): e(f"ds_read_b128 {vr(AR+4*i,4)}, v1 offset:{BUFA + i*S0STR}")
    g.lab("L_s0ok")
    e("s_waitcnt lgkmcnt(14)")
    g.stamp(); g.stamp("s")

    ready = set()
    def quad_prod(k, rho):
        p, q = QPAIRS[rho]
        return lambda d: f"v_pk_mul_f16 v{d}, v{X(k,p)}, v{X(k,q)} op_sel_hi:[0,1]"
    def gen_prod(l):
        def f(k, rho):
            r, p = divmod(rho, 13)
            def mk(d):
                if r == 13: return f"v_mov_b32 v{d}, v{U(k,p)}" if l == 2 else f"v_mov_b32 v{d}, 0"
                assert ('u', l, k, r) in ready, (l, k, r)
                if r & 1: return f"v_pk_mul_f16 v{d}, v{U(k,r>>1)}, v{X(k,p)} op_sel:[1,0] op_sel_hi:[1,1]"
                return f"v_pk_mul_f16 v{d}, v{U(k,r>>1)}, v{X(k,p)} op_sel_hi:[0,1]"
            return mk
        return f
    def lin_prod(k, t):
        b = 2 * t + 1 if 2 * t + 1 < 13 else 2 * t
        return lambda d: f"v_pack_b32_f16 v{d}, v{X(k,2*t)}, v{X(k,b)}"
    S_CL = S_C1
    e(f"s_mov_b32 s{S_CL}, {115 << 23}"); e(f"s_mov_b32 s{S_MASK}, 145"); e(f"s_lshl_b32 s{S_BO}, s{S_BO}, 16")
    def cvt1(acc, k, t): return f"v_cvt_pk_f16_f32 v{U(k,t)}, v{acc+16*k+2*t}, " + (f"v{acc+16*k+2*t+1}" if t < 6 else "0")
    def scl1(l, k, t): return [(f"v_pk_mul_f16 v{U(k,t)}, v{U(k,t)}, v{SC+k} op_sel_hi:[1,0]", ('u', l + 1, k, 2 * t)), (None, ('u', l + 1, k, 2 * t + 1))]
    def head(acc, l, k):
        a = acc + 16 * k; ef = EV(k) if l == 0 else TM + k
        return [f"v_max3_f32 v{SC+k}, |v{a}|, |v{a+1}|, |v{a+2}|", f"v_max3_f32 v{TM+k}, |v{a+3}|, |v{a+4}|, |v{a+5}|",
                f"v_max3_f32 v{SC+k}, v{SC+k}, |v{a+6}|, |v{a+7}|", f"v_max3_f32 v{TM+k}, v{TM+k}, |v{a+8}|, |v{a+9}|",
                f"v_max3_f32 v{SC+k}, v{SC+k}, |v{a+10}|, |v{a+11}|", f"v_max3_f32 v{SC+k}, v{SC+k}, v{TM+k}, |v{a+12}|",
                f"v_mov_b32 v{TM+k}, v{SC+k}", cvt1(acc, k, 0), cvt1(acc, k, 1),
                f"v_permlane32_swap_b32 v{SC+k}, v{TM+k}", f"v_max3_f32 v{SC+k}, v{SC+k}, v{TM+k}, s{S_CL}",
                f"v_lshrrev_b32 v{ef}, 23, v{SC+k}", f"v_sub_u32 v{SC+k}, s{S_MASK}, v{ef}", f"v_lshlrev_b32 v{SC+k}, 10, v{SC+k}"] + scl1(l, k, 0)
    def rest(acc, l):
        o = []
        for k in range(4): o += scl1(l, k, 1)
        for t in range(2, 7):
            o += [cvt1(acc, k, t) for k in range(4)]
            for k in range(4): o += scl1(l, k, t)
        return o
    def evup(l):
        return [(None, 'x', ('k', l))] + [f"v_add3_u32 v{EV(k)}, v{EV(k)}, v{TM+k}, s{S_K+k}" for k in range(4)] + [(None, ('ev', l))]
    state = dict(base=0, n=0)
    lq = []
    landed = set()
    def emit(x):
        if callable(x): return x() or 0
        if isinstance(x, tuple):
            if len(x) == 3: assert x[2] in ready, x
            ready.add(x[1]); x = x[0]
        if not x: return 0
        e(x)
        if x.startswith('ds_'): lq.append(['side', state['n']])
        return 2 if 'permlane' in x else 1
    GATE = 'GATE'
    import re
    def nbytes(x):
        if callable(x): return 0 if x.__name__ == '<lambda>' else 8
        if isinstance(x, tuple): x = x[0]
        if not x or x == GATE: return 0
        op = x.split()[0]
        lit = any(abs(int(t, 0)) > 64 for t in re.findall(r'(?<![\w\[:])(-?(?:0x[0-9a-f]+|\d+))(?![\w\]:.])', x.split(None, 1)[1]))
        short = op.startswith('s_') or op in ('v_mov_b32', 'v_mul_f32', 'v_add_f32', 'v_add_u32', 'v_sub_u32', 'v_lshrrev_b32', 'v_lshlrev_b32', 'v_and_b32',
                                              'v_permlane32_swap_b32', 'v_readfirstlane_b32', 'v_cmp_lt_u32', 'v_cndmask_b32', 'v_max_f32', 'v_fmac_f32')
        return 4 if short and not lit else 8
    jobs = []; frags = []; pos = {}
    def phase(name, nprod, prod, acc, base, stride=1024, ok=None, needs=None, skew0=False, skew1=False, extra=None):
        ns = (nprod + 3) // 4
        fr = [dict(lds=base + stride * s, ok=ok if s == 0 else None) for s in range(ns)]
        frags.extend(fr)
        order = [(s, k) for s in range(ns) for k in range(4)]
        if skew0: order[:8] = [(s, k) for k in range(4) for s in (0, 1)]
        if skew1: order[-8:] = [(s, k) for k in range(4) for s in (ns - 2, ns - 1)]
        for i, (s, k) in enumerate(order):
            if i % 4 == 0: pos[(name, i // 4)] = len(jobs)
            jobs.append(dict(acc=acc + 16 * k, fr=fr[s], zero=(s == 0), needs=needs if s == 0 else None, last=(name, k) if s == ns - 1 else None,
                             prods=[prod(k, rho) for rho in range(4 * s, min(4 * s + 4, nprod))], req=('u', int(name[1]), k, 0) if name[0] == 'L' and s == 0 else None))
            if extra and i % 4 == 3 and i // 4 in extra: jobs.extend(extra[i // 4])
    LT, LA = UR, UR + 16
    LP = [3, 8, 13, 18]
    LN = {LP[k]: [dict(acc=LT, a=LA + 4 * i, zero=(i == 0), needs=('lin', k - 1), last=('LN', k) if i else None, req=None,
                       prods=[lin_prod(k, t) for t in range(4 * i, min(4 * i + 4, 7))]) for i in range(2)] for k in range(4)}
    sk = PAR.skew
    phase("S0", 91, quad_prod, ACC, BUFA, stride=S0STR, skew1=sk)
    phase("L1", 172, gen_prod(1), ACC2, BUFB, stride=S0STR, ok="RAW", skew0=sk, skew1=sk)
    phase("L2", 176, gen_prod(2), ACC, BUFA, ok="L2OK", needs=('free', 0), skew0=sk, skew1=sk)
    phase("L3", 169, gen_prod(3), ACC2, BUFB, ok="L3OK", needs=('free', 1), skew0=sk)
    phase("Q4", 91, quad_prod, ACC, QB, ok="QOK", needs=('free', 2), skew1=sk, extra=LN)
    for i, f in enumerate(frags): f['id'] = i; f['a'] = AR + 4 * (i % 4)
    for n, j in enumerate(jobs):
        if 'fr' in j: j['fr'].setdefault('first', n); j['fr']['lastj'] = n
    def hdr(addr, sa, sb=None):
        return [f"v_mov_b32 v3, {addr}", "ds_read_b64 v[2:3], v3", GATE, f"v_readfirstlane_b32 s{sa}, v2"] + ([f"v_readfirstlane_b32 s{sb}, v3"] if sb else [])
    def arrive(c, after=None):
        def f():
            if after is not None: assert 'issued' in after
            e(f"v_add_u32 v3, {(CNT[c] - state['base']) & 0xffffffff}, v1"); return 1
        return ["v_mov_b32 v2, 1", f, "ds_add_u32 v3, v2"]
    def check(c):
        def f():
            slow = g.newlab("cs"); back = g.newlab("cb"); top = g.newlab("ct")
            if c != "RAW": g.stamp("w")
            e(f"s_cmp_lt_u32 s{S_T+2}, 4"); e(f"s_cbranch_scc1 {slow}")
            g.lab(back)
            if c != "RAW": g.stamp("w")
            g.tail += [slow + ":", f"    s_mov_b32 s{S_T+1}, {SPIN*8}", top + ":", "    s_sleep 1", "    ds_read_b32 v2, v3", "    s_waitcnt lgkmcnt(0)",
                       f"    v_readfirstlane_b32 s{S_T+2}, v2", f"    s_cmp_ge_u32 s{S_T+2}, 4", f"    s_cbranch_scc1 {back}",
                       f"    s_sub_u32 s{S_T+1}, s{S_T+1}, 1", f"    s_cbranch_scc0 {top}", f"    s_branch {back}"]
            ready.add(c); return 2
        return [f"v_mov_b32 v3, {CNT[c]}", "ds_read_b32 v2, v3", GATE, f"v_readfirstlane_b32 s{S_T+2}, v2", f]
    def stp(n=None): return [lambda: g.stamp(n)]
    HOFF = 29 * 16
    PV, PA = 2, 3
    def pload():
        e(f"buffer_load_dword v{PV}, v{PA}, {sr(S_WS)}, s{S_T+3} offen sc1"); return 1
    kc1 = [f"s_add_u32 s{S_T}, s{HW(0)}, s{HW(1)}", f"s_add_u32 s{S_T}, s{S_T}, s{HD(2)}", f"s_sub_u32 s{S_T}, s{S_T}, 780"]
    kc1 += [f"s_lshl2_add_u32 s{S_K+k}, s{S_EX+k}, s{S_T}" for k in range(4)] + [(None, ('k', 1))]
    k1 = [f"s_sub_u32 s{S_T}, s{HD(1)}, s{HD(2)}", f"s_add_u32 s{S_T}, s{S_T}, 130"] + [f"s_sub_u32 s{S_K1+k}, s{S_T}, s{S_EX+k}" for k in range(4)] + [(None, 'k1')]
    kc2 = [(None, 'x', ('ev', 1)), f"s_sub_u32 s{S_T}, s{HW(2)}, s{HD(2)}", f"s_add_u32 s{S_T}, s{S_T}, s{HD(3)}", f"s_sub_u32 s{S_T}, s{S_T}, 260"]
    kc2 += [f"s_add_u32 s{S_K+k}, s{S_T}, s{S_EX+k}" for k in range(4)] + [(None, ('k', 2))]
    dots = [(None, 'x', 'k1')]
    for k in range(4): dots.append(f"v_ldexp_f32 v{ACC+16*k+15}, v{ACC+16*k+15}, v{EV(k)}")
    for k in range(4): dots.append(f"v_add_u32 v{ACC+16*k+13}, s{S_K1+k}, v{EV(k)}")
    for k in range(4): dots.append(f"v_ldexp_f32 v{ACC+16*k+14}, v{ACC+16*k+14}, v{ACC+16*k+13}")
    for k in range(4): dots.append(f"v_add_f32 v{LG+k}, v{ACC+16*k+14}, v{ACC+16*k+15}")
    kf = [(None, 'x', ('ev', 2)), f"s_sub_u32 s{S_T}, s{HW(3)}, s{HD(3)}", f"s_sub_u32 s{S_T}, s{S_T}, 130", f"s_add_u32 s{HL}, s{HL}, s{S_T}", f"s_add_u32 s{HQ}, s{HQ}, s{S_T}",
          f"s_sub_u32 s{HQ}, s{HQ}, 130", f"s_sub_u32 s{HD(0)}, s{HD(0)}, 260"]
    for k in range(4):
        kf += [f"s_add_u32 s{S_K1+k}, s{HL}, s{S_EX+k}", f"s_lshl1_add_u32 s{S_K+k}, s{S_EX+k}, s{HQ}", f"s_lshl1_add_u32 s{S_KC+k}, s{S_EX+k}, s{HD(0)}"]
    kf.append((None, 'kf'))
    pre = ["v_bfe_u32 v2, v0, 4, 1", "v_lshrrev_b32 v3, 5, v0", "v_lshl_add_u32 v2, v2, 1, v3", "v_and_b32 v3, 15, v0", f"v_cmp_lt_u32 vcc, {NR-1}, v3",
           "v_lshlrev_b32 v3, 10, v3", "v_lshl_add_u32 v3, v2, 2, v3", f"v_mov_b32 v2, {OOB}", "v_cndmask_b32 v3, v3, v2, vcc",
           f"s_mul_i32 s{S_T+3}, s{S_G}, {NR*1024}", f"s_and_b32 s{S_T}, s{S_SB}, 255", f"s_lshl_b32 s{S_T}, s{S_T}, 2",
           f"s_add_u32 s{S_T+3}, s{S_T+3}, s{S_T}", f"s_add_u32 s{S_T+3}, s{S_T+3}, {WS_PART}"]
    def lread():
        for i in range(2): emit(f"ds_read_b128 {vr(LA+4*i,4)}, v1 offset:{QB + (24 + i)*1024 - state['base']}")
        return 2
    BO = ACC2 + 14
    d3 = [f"v_ldexp_f32 v{ACC2+16*k+15}, v{ACC2+16*k+15}, v{EV(k)}" for k in range(4)] + [f"v_add_f32 v{LG+k}, v{LG+k}, v{ACC2+16*k+15}" for k in range(4)]
    if PAR.otouch: d3 += [f"s_lshl_b32 s{S_J}, s{S_SB}, 1", f"buffer_load_ushort v{BO+16}, v{BO-1}, {sr(S_OUT)}, s{S_J} offen"]
    fill = {("L1", 2): rest(ACC, 0) + [(None, ('free', 0))], ("L2", 2): rest(ACC2, 1) + [(None, ('free', 1))], ("L2", 16): evup(1),
            ("L3", 2): rest(ACC, 2) + dots + [(None, ('free', 2))] + evup(2), ("Q4", 1): d3}
    for k in range(4):
        o = [f"v_mul_f32 v{SC+k}, v{LT}, v{ACC2+16*k}"] + [f"v_fmac_f32 v{SC+k}, v{LT+r}, v{ACC2+16*k+r}" for r in range(1, 13)] + [(None, ('lin', k)), (None, 'x', 'kf')]
        o += [f"v_add_u32 v{TM+k}, s{S_K1+k}, v{EV(k)}", f"v_ldexp_f32 v{SC+k}, v{SC+k}, v{TM+k}", f"v_add_u32 v{TM+k}, s{S_K+k}, v{EV(k)}", f"v_add_f32 v{LG+k}, v{LG+k}, v{SC+k}", (None, ('lind', k))]
        fill[("Q4", LP[k] + 2)] = o
    def final(k):
        return ([(None, 'x', ('lind', k)), f"v_mul_f32 v{SC+k}, v{ACC+16*k}, v{ACC2+16*k}", f"v_ldexp_f32 v{ACC+16*k+15}, v{ACC+16*k+15}, s{S_KC+k}"]
                + [f"v_fmac_f32 v{SC+k}, v{ACC+16*k+r}, v{ACC2+16*k+r}" for r in range(1, 13)]
                + [f"v_add_f32 v{LG+k}, v{LG+k}, v{ACC+16*k+15}", f"v_ldexp_f32 v{SC+k}, v{SC+k}, v{TM+k}", f"v_add_f32 v{LG+k}, v{LG+k}, v{SC+k}"])
    urgent = {}
    for k in range(4):
        urgent[("S0", k)] = head(ACC, 0, k); urgent[("L1", k)] = head(ACC2, 1, k); urgent[("L2", k)] = head(ACC, 2, k); urgent[("Q4", k)] = final(k)
    side = {("S0", 0): arrive("RB"), ("S0", 2): hdr(BUFA + 23 * S0STR + 512, HW(0)), ("S0", 14): check("RAW"), ("S0", 21): arrive("AFREE", frags[22]),
            ("S0", 8): ["s_setprio 2"], PAR.drop: ["s_setprio 0"],
            ("L1", 0): stp(), ("L1", 35): check("L2OK"), ("L1", 41): arrive("BFREE", frags[65]),
            ("L2", 0): stp(), ("L2", 4): hdr(BUFA + HOFF, HW(2), HD(2)) + kc1 + hdr(BUFA + HOFF + 8, HD(1)) + k1, ("L2", 36): check("L3OK"),
            ("L3", 12): hdr(BUFB + HOFF, HW(3), HD(3)) + kc2,
            ("L3", 43 - PAR.qchk): check("QOK") + hdr(QB + 23 * 1024, HQ, HL) + hdr(QB + 23 * 1024 + 8, HD(0)),
            ("Q4", 0): [lread, GATE, (None, ('lin', -1))] + kf, ("Q4", 9): pre[:7], ("Q4", 14): pre[7:], ("Q4", PAR.pload): [pload]}
    rates = {("S0", 0): PAR.rate, ("L1", 0): PAR.l1rate, ("L2", 0): 32, ("L3", 0): PAR.l3rate, ("Q4", 0): PAR.qrate}
    fill = {pos[k]: v for k, v in fill.items()}; side = {pos[k]: v for k, v in side.items()}; rates = {pos[k]: v for k, v in rates.items()}
    frags[0]['issued'] = frags[1]['issued'] = True
    nfr = 2; fq = []; sq = []; uq = []; credit = 0; gated = False
    def prods(n):
        job = jobs[n]; job['b'] = BR + 4 * (n % 3)
        while job['req'] and job['req'] not in ready: emit(uq.pop(0)[1])
        return [p(job['b'] + i) for i, p in enumerate(job['prods'])]
    for n in range(2):
        for x in prods(n): e(x)
    e("s_waitcnt lgkmcnt(0)"); landed |= {0, 1}
    for n, job in enumerate(jobs):
        state['n'] = n
        fq += fill.get(n, []); sq += side.get(n, []); rate = rates.get(n, rate if n else None)
        budget = 6
        if 'fr' in job and job['fr']['id'] not in landed:
            idx = max(i for i, (t, at) in enumerate(lq) if t == job['fr']['id'] or at <= n - 3)
            e(f"s_waitcnt lgkmcnt({len(lq) - 1 - idx})")
            landed |= {t for t, at in lq[:idx + 1]}; del lq[:idx + 1]
        if job['needs']: assert job['needs'] in ready, job['needs']
        c = "0" if job['zero'] else vr(job['acc'], 16)
        e(f"v_mfma_f32_32x32x16_f16 {vr(job['acc'],16)}, {vr(job['a'] if 'a' in job else job['fr']['a'],4)}, {vr(job['b'],4)}, {c}")
        if job['last'] in urgent: uq += [(n + 2, x) for x in urgent[job['last']]]
        if nfr < len(frags) and frags[nfr]['first'] - n <= PAR.la and (nfr < 4 or frags[nfr - 4]['lastj'] < n):
            f = frags[nfr]; nfr += 1; f['issued'] = True
            if f['ok']: assert f['ok'] in ready, f['ok']
            r = f['lds'] - state['base']
            if r < 0 or r > 65535:
                e(f"v_add_u32 v1, {r & 0xffffffff}, v1"); state['base'] = f['lds']; r = 0; budget -= 1
            e(f"ds_read_b128 {vr(f['a'],4)}, v1 offset:{r}"); lq.append([f['id'], n]); budget -= 1
        u = PAR.urate
        while uq and uq[0][0] <= n and u > 0: c = emit(uq.pop(0)[1]); u -= c; budget -= c
        if n + 2 < len(jobs):
            ps = prods(n + 2)
            for x in ps: e(x)
            budget -= len(ps)
            credit += sum(8 - nbytes(p) for p in ps) + 8 * (4 - len(ps))
        credit = min(credit + rate / 4, 16)
        while sq:
            if sq[0] == GATE:
                if any(t == 'side' for t, at in lq): break
                sq.pop(0); continue
            if not ((budget > 0 and credit >= nbytes(sq[0])) or nbytes(sq[0]) == 0): break
            x = sq.pop(0); budget -= emit(x); credit -= nbytes(x)
        while fq and ((budget > 0 and credit >= nbytes(fq[0])) or nbytes(fq[0]) == 0):
            x = fq.pop(0); budget -= emit(x); credit -= nbytes(x)
    assert not sq and not fq, (sq, fq)
    g.stamp()
    for at, x in uq: emit(x)
    e(f"v_permlane32_swap_b32 v{LG}, v{LG+1}"); e(f"v_permlane32_swap_b32 v{LG+2}, v{LG+3}")
    e(f"v_add_f32 v{LG}, v{LG}, v{LG+1}"); e(f"v_add_f32 v{LG+2}, v{LG+2}, v{LG+3}")
    e(f"v_permlane16_swap_b32 v{LG}, v{LG+2}")
    e(f"v_add_f32 v{LG}, v{LG}, v{LG+2}")
    e(f"s_mov_b32 s{S_T}, {SPIN}")
    g.lab("L_pcheck")
    e("s_waitcnt vmcnt(0)")
    e(f"v_cmp_eq_u32 vcc, -1, v{PV}")
    e("s_nop 1")
    e("s_cbranch_vccz L_pok")
    e("s_sleep 4")
    pload()
    e(f"s_sub_u32 s{S_T}, s{S_T}, 1")
    e("s_cbranch_scc0 L_pcheck")
    e("s_waitcnt vmcnt(0)")
    g.lab("L_pok")
    e(f"v_add_f32 v{LG}, v{LG}, v{PV}")
    for sh in (8, 4, 2, 1):
        e(f"v_add_f32_dpp v{LG}, v{LG}, v{LG} row_ror:{sh} {DPPALL}")
    e(f"v_add_f32 v{LG}, s{S_BO}, v{LG}")
    e(f"v_cvt_pk_bf16_f32 v{LG}, v{LG}, v{LG}")
    e(f"v_lshrrev_b32 v{PA}, 1, v{PA}")
    e(f"v_cmp_lt_u32 vcc, 7, v{PA}")
    e(f"v_mov_b32 v2, {OOB}")
    e(f"v_cndmask_b32 v{PA}, v{PA}, v2, vcc")
    e(f"s_lshl_b32 s{S_T}, s{S_SB}, 1")
    e(f"buffer_store_short v{LG}, v{PA}, {sr(S_OUT)}, s{S_T} offen")
    g.stamp(); g.stamp("e")
    if PAR.enc is not None:
        e("s_waitcnt lgkmcnt(0)")
        if PAR.gmin:
            e(f"s_not_b32 s{S_T}, s{S_ST}"); e(f"v_mov_b32 v4, s{S_T}"); e("v_mov_b32 v5, 0"); e("s_mov_b64 exec, 1")
            e(f"buffer_atomic_umax v4, v5, {sr(S_DBG)}, 0 offen offset:192 sc1"); e("s_waitcnt vmcnt(0)")
            g.lab("L_enc0")
            e(f"s_memrealtime s[{S_T+2}:{S_T+3}]"); e("s_waitcnt lgkmcnt(0)")
            e(f"s_sub_u32 s{S_T+2}, s{S_T+2}, s{S_ST}"); e(f"s_cmp_lt_u32 s{S_T+2}, 5000"); e("s_cbranch_scc1 L_enc0")
            e(f"buffer_load_dword v4, v5, {sr(S_DBG)}, 0 offen offset:192 sc1"); e("s_waitcnt vmcnt(0)"); e("s_mov_b64 exec, -1")
            if PAR.encsel: e(f"s_mov_b32 s{S_ST+2*PAR.enc}, s{S_ST}")
            e(f"v_readfirstlane_b32 s{S_ST}, v4"); e(f"s_not_b32 s{S_ST}, s{S_ST}")
        e(f"s_sub_u32 s{S_T}, s{S_ST+2*PAR.enc}, s{S_ST+2*PAR.encb}"); e(f"s_lshl_b32 s{S_T}, s{S_T}, {PAR.encsh}");
        if PAR.encsel:
            e(f"s_lshl_b32 s{S_T}, s{S_T}, 2"); e(f"s_and_b32 s{S_T+1}, s2, {PAR.encsel[0]}"); e(f"s_cmp_eq_u32 s{S_T+1}, {PAR.encsel[1]}")
        else: e(f"s_cmp_lt_u32 s{S_R}, {NR}")
        e(f"s_cselect_b32 s{S_T}, s{S_T}, 0"); e(f"s_add_u32 s{S_T}, s{S_T}, 6000")
        g.lab("L_enc")
        e(f"s_memrealtime s[{S_T+2}:{S_T+3}]"); e("s_waitcnt lgkmcnt(0)")
        e(f"s_sub_u32 s{S_T+2}, s{S_T+2}, s{S_ST}"); e(f"s_cmp_lt_u32 s{S_T+2}, s{S_T}"); e("s_cbranch_scc1 L_enc")
    g.flush_stamps(4, 5)
    e("s_endpgm")

HACC, HX, HW_ = 4, 68, 208
V_TR0, V_TR1, V_DMA, V_WSRC, V_H16, V_L0, V_HROW, V_CNT = 248, 249, 250, 251, 252, 253, 254, 255
ID, QA, QSH, QS, W0R, PK = 4, 12, 19, 20, 180, 236
L1R, BT = 180, 60
S_WP, S_L, S_FR, S_E0, S_E1, S_E2, S_PO, S_CX = 48, 49, 50, 51, 52, 53, 54, 55
S_LC = 56
S_E3, S_XB = 60, 61
def dma_img(g, name, nfr, lds, first=0, part=None):
    e = g.e; per = nfr // 4
    va = V_DMA
    if name == "Q4":
        va = 1
        e("v_and_b32 v1, 31, v0"); e("v_subrev_u32 v1, 29, v1"); e("v_cmp_gt_u32 vcc, 2, v1"); e(f"v_mov_b32 v1, {OOB}"); e(f"v_cndmask_b32 v1, v{V_DMA}, v1, vcc")
    e(f"s_mul_i32 s{S_T}, s{S_J}, {per*1024}")
    i0, i1 = part or (0, per)
    for i in range(i0, min(i1, per)):
        if (i - i0) % 4 == 0:
            e(f"s_add_u32 s{S_T+1}, s{S_T}, {IMG[name] + (first + i)*1024}")
            e(f"s_add_u32 m0, s{S_T}, {lds + i*1024}")
        g.vm(f"buffer_load_dwordx4 v{va}, {sr(S_WS)}, s{S_T+1} offen offset:{((i - i0)%4)*1024} {PAR.ld} lds", name)
def poll(g, checks, pre=None):
    e = g.e
    done = g.newlab("pd"); top = g.newlab("pt"); slp = g.newlab("ps"); tst = g.newlab("pc")
    regs = pre or [2 + i for i in range(len(checks))]
    e(f"s_mov_b32 s{S_T}, {SPIN}")
    if pre: e(f"s_branch {tst}")
    g.lab(top)
    for r, (srd, so, o, n) in zip(regs, checks):
        e(f"buffer_load_dword v{r}, v{V_L0}, {sr(srd)}, {so} offen offset:{o} sc1")
    e("s_waitcnt vmcnt(0)")
    g.lab(tst)
    for r, (srd, so, o, n) in zip(regs, checks):
        e(f"v_readfirstlane_b32 s{S_T+1}, v{r}")
        e(f"s_cmp_lt_u32 s{S_T+1}, {n}")
        e(f"s_cbranch_scc1 {slp}")
    g.lab(done)
    g.tail += [slp + ":", f"    s_sleep {PAR.slp}", f"    s_sub_u32 s{S_T}, s{S_T}, 1", f"    s_cbranch_scc0 {top}", f"    s_branch {done}"]
def poll1(g, checks, flag, pre=None):
    lb = g.newlab("p1")
    g.e(f"s_cmp_lg_u32 s{S_J}, 0"); g.e(f"s_cbranch_scc1 {lb}")
    poll(g, checks, pre)
    arrive(g, flag)
    g.lab(lb)
    lwait(g, flag, 1)
def presample(g, checks, regs, tag):
    for r, (srd, so, o, n) in zip(regs, checks):
        g.vm(f"buffer_load_dword v{r}, v{V_L0}, {sr(srd)}, {so} offen offset:{o} sc1", tag)
def arrive(g, *cs):
    e = g.e
    e("v_mov_b32 v1, 1"); e("s_mov_b64 exec, 1")
    for c in cs: e(f"ds_add_u32 v{V_CNT}, v1 offset:{CNT[c]-M_CNT}")
    e("s_mov_b64 exec, -1")
def unpack_mat(g, PA, t):
    e = g.e
    e(f"v_and_b32 v{t}, 1, v0"); e(f"v_lshlrev_b32 v{t}, 4, v{t}"); e(f"v_mov_b32 v{t+1}, 0x3f80"); e(f"v_lshlrev_b32 v{t+1}, v{t}, v{t+1}")
    e(f"v_lshrrev_b32 v{t+2}, 3, v0"); e(f"v_xor_b32 v{t+2}, v{t+2}, v0"); e(f"v_and_b32 v{t+2}, 4, v{t+2}")
    e(f"v_bfe_u32 v{t}, v0, 3, 2"); e(f"v_bfe_u32 v{t+3}, v0, 1, 1"); e(f"v_lshl_add_u32 v{t}, v{t}, 1, v{t+3}"); e(f"v_lshl_add_u32 v{t}, v{t+2}, 3, v{t}")
    for i in range(8):
        e(f"v_cmp_eq_u32 vcc, {i}, v{t}"); e(f"v_cndmask_b32 v{PA+i}, 0, v{t+1}, vcc")
def unpack(g, DR, pa, src, i):
    d = DR + 16 * ((i >> 1) & 3)
    g.e(f"v_mfma_f32_32x32x16_bf16 {vr(d,16)}, {vr(pa+4*(i&1),4)}, {vr(src+4*i,4)}, {vr(d,16) if i & 1 else '0'}")
def tmax(g, DR, tile, n, first, mv=1):
    d = DR + 16 * (tile & 3)
    for q in range(n // 2):
        if first and q == 0: g.e(f"v_max_f32 v{mv}, |v{d}|, |v{d+1}|")
        else: g.e(f"v_max3_f32 v{mv}, v{mv}, |v{d+2*q}|, |v{d+2*q+1}|")
def lwait(g, c, n=4, va=None, vd=1):
    e = g.e; top = g.newlab("lw"); done = g.newlab("ld")
    e(f"s_mov_b32 s{S_T}, {SPIN*8}")
    g.lab(top)
    e(f"ds_read_b32 v{vd}, v{va or V_CNT} offset:{CNT[c]-M_CNT}"); e("s_waitcnt lgkmcnt(0)")
    e(f"v_readfirstlane_b32 s{S_T+1}, v{vd}"); e(f"s_cmp_ge_u32 s{S_T+1}, {n}"); e(f"s_cbranch_scc1 {done}")
    e(f"s_sleep {PAR.lslp if c in ('FX', 'F2', 'F3', 'FQ', 'AFREE', 'BFREE', 'XST') else 1}"); e(f"s_sub_u32 s{S_T}, s{S_T}, 1"); e(f"s_cbranch_scc0 {top}")
    g.lab(done)
def rowmax(g, v, op="v_max_u32_dpp"):
    for sh in (8, 4, 2, 1): g.e(f"{op} v{v}, v{v}, v{v} row_ror:{sh} {DPPALL}")
def wavemax_exp(g, v, sdst):
    e = g.e
    rowmax(g, v)
    e(f"v_readlane_b32 s{sdst}, v{v}, 0"); e(f"v_readlane_b32 s{S_T}, v{v}, 16"); e(f"s_max_u32 s{sdst}, s{sdst}, s{S_T}")
    e(f"v_readlane_b32 s{S_T}, v{v}, 32"); e(f"s_max_u32 s{sdst}, s{sdst}, s{S_T}")
    e(f"v_readlane_b32 s{S_T}, v{v}, 48"); e(f"s_max_u32 s{sdst}, s{sdst}, s{S_T}")
    e(f"s_lshr_b32 s{sdst}, s{sdst}, 23"); e(f"s_sub_u32 s{sdst}, s{sdst}, 126")
def put_max(g, slot):
    e = g.e
    rowmax(g, 1)
    e("v_lshrrev_b32 v2, 4, v0"); e(f"s_lshl_b32 s{S_T}, s{S_J}, 4"); e(f"s_add_u32 s{S_T}, s{S_T}, {slot}")
    e(f"v_lshl_add_u32 v2, v2, 2, s{S_T}")
    e("ds_write_b32 v2, v1")
def get_max(g, slot):
    e = g.e
    e("v_and_b32 v2, 15, v0"); e("v_lshlrev_b32 v2, 2, v2"); e(f"v_add_u32 v2, {slot}, v2")
    e("ds_read_b32 v1, v2"); e("s_waitcnt lgkmcnt(0)")
    rowmax(g, 1)
def pkmax(g, regs):
    e = g.e
    e(f"v_pk_max_u16 v1, v{regs[0]}, v{regs[1]}"); e(f"v_pk_max_u16 v3, v{regs[2]}, v{regs[3]}")
    for i, r in enumerate(regs[4:]): e(f"v_pk_max_u16 v{1 + 2*(i&1)}, v{1 + 2*(i&1)}, v{r}")
    e("v_pk_max_u16 v1, v1, v3"); e("v_alignbit_b32 v3, v1, v1, 16"); e("v_pk_max_u16 v1, v1, v3")
def pack_round(g, acc, off, pk=True):
    e = g.e
    if PAR.pkpack and pk:
        for t in range(7):
            q = QS + t; sel = q & 1
            e(f"v_pk_mul_f32 {vr(acc+2*t,2)}, {vr(acc+2*t,2)}, {vr(q - sel,2)} op_sel:[0,{sel}] op_sel_hi:[1,{sel}]")
    else:
        for t in range(14): e(f"v_mul_f32 v{acc+t}, v{acc+t}, v{QS+(t>>1)}")
    for t in range(7): e(f"v_cvt_pk_f16_f32 v{PK+t}, v{acc+2*t}, v{acc+2*t+1}")
    for t in range(7): e(f"v_alignbit_b32 v{PK+t}, v{PK+t}, v{PK+t}, v{QSH}")
    for t in range(7): e(f"ds_write_b32 v{QA+t}, v{PK+t} offset:{off}")
def s0_max(g, t):
    a = HX + 16 * t
    for i in range(7):
        if t == 0 and i == 0: g.e(f"v_max_f32 v1, |v{a}|, |v{a+1}|")
        else: g.e(f"v_max3_f32 v1, v1, |v{a+2*i}|, |v{a+2*i+1}|")
F0 = lambda c: sum(PAR.chunks[:c])
S_ROT = 64
S_SCN, S_XC = 68, 69
S_RA = 66
def call_if(g, cond, target):
    lb = g.newlab('nc')
    for c in cond: g.e(c[0]); g.e(f'{c[1]} {lb}')
    g.e(f's_call_b64 s[{S_RA}:{S_RA+1}], {target}')
    g.lab(lb)
RET = f's_setpc_b64 s[{S_RA}:{S_RA+1}]'
def EARLY(): return [(f's_cmp_lt_u32 s{S_WP}, {PAR.gearly}', 's_cbranch_scc0')]
def LATE(): return [(f's_cmp_lt_u32 s{S_WP}, {PAR.gearly}', 's_cbranch_scc1'), (f's_cmp_ge_u32 s{S_WP}, 31', 's_cbranch_scc1')]
def rotf(g, f, sd):
    g.e(f"s_add_u32 s{sd}, s{S_ROT}, {f}"); g.e(f"s_sub_u32 s{S_ROT+1}, s{sd}, 26"); g.e(f"s_min_u32 s{sd}, s{sd}, s{S_ROT+1}")
def colvec(g, srd, dst, tag):
    g.e("v_lshrrev_b32 v1, 4, v0"); g.e("v_lshlrev_b32 v1, 3, v1")
    for a in range(4):
        g.e(f"s_xor_b32 s{S_T}, s{S_XC}, {32*a}"); g.e(f"s_add_u32 s{S_T}, s{S_T}, s{S_SB}")
        g.vm(f"buffer_load_dwordx2 {vr(dst+2*a,2)}, v1, {sr(srd)}, s{S_T} offen", tag)
def dma_w(g, f0, f1, tag):
    e = g.e
    e(f"s_lshl_b32 s{S_T}, s{S_J}, 10")
    for f in range(f0, f1):
        e(f"s_add_u32 m0, s{S_T}, {D0 + (f % 16)*4096}")
        rotf(g, f, S_T + 1); e(f"s_mul_i32 s{S_T+1}, s{S_T+1}, 53248")
        g.vm(f"buffer_load_dwordx4 v{V_WSRC}, {sr(S_W1)}, s{S_T+1} offen {PAR.wmod} lds", tag)
CHK_X = lambda: (S_WS, f"s{S_CX}", C_XR, 1)
def helper_common(g):
    e = g.e
    e("s_setprio 2")
    e(f"s_sub_u32 s{S_J}, s{S_WAVE}, 4")
    e("v_and_b32 v2, 31, v0"); e("v_lshrrev_b32 v3, 5, v0")
    e(f"v_lshlrev_b32 v{V_H16}, 4, v3")
    e("v_lshrrev_b32 v4, 3, v2"); e("v_and_b32 v6, 3, v2"); e("v_lshl_add_u32 v4, v4, 2, v6")
    e("v_bfe_u32 v6, v2, 2, 1"); e(f"v_mad_u32_u24 v{V_HROW}, v6, 13, v4")
    e("v_cmp_lt_u32 vcc, 12, v4"); e("v_mov_b32 v7, 0x100000"); e(f"v_cndmask_b32 v{V_HROW}, v{V_HROW}, v7, vcc")
    e("v_mul_u32_u24 v4, 676, v3"); e(f"s_movk_i32 s{S_T+1}, 1352"); e(f"v_mad_u32_u24 v243, v{V_HROW}, s{S_T+1}, v4")
    def qaset():
        e("v_lshrrev_b32 v27, 1, v2"); e("v_and_b32 v28, 1, v2"); e(f"v_lshlrev_b32 v{QSH}, 4, v28")
        e("v_sub_u32 v29, 25, v27"); e("v_mul_u32_u24 v29, v29, v27"); e("v_lshrrev_b32 v29, 1, v29")
        e(f"s_lshl_b32 s{S_T}, s{S_J}, 4")
        e(f"v_lshl_add_u32 v28, v28, 9, s{S_T}")
        e(f"v_lshl_add_u32 v30, v0, 2, s{S_T}"); e(f"v_add_u32 v30, {BUFA + 24*S0STR}, v30")
        e("v_mov_b32 v33, 0.5")
        for t in range(7):
            qb = 4 * (t >> 1) + (t & 1)
            e(f"v_lshl_add_u32 v31, v3, 1, {qb}")
            e("v_add_u32 v32, v29, v31")
            e(f"v_lshrrev_b32 v{QA+t}, 2, v32"); e(f"v_mul_u32_u24 v{QA+t}, {S0STR}, v{QA+t}")
            e("v_and_b32 v32, 3, v32"); e("v_lshl_add_u32 v32, v32, 2, v28"); e(f"v_add_u32 v{QA+t}, v{QA+t}, v32")
            e("v_cmp_lt_u32 vcc, v31, v27")
            if t == 6:
                e("v_cmp_lt_u32 s[72:73], 12, v31"); e("s_or_b64 vcc, vcc, s[72:73]")
            e(f"v_cndmask_b32 v{QA+t}, v{QA+t}, v30, vcc")
            e("v_cmp_eq_u32 vcc, v31, v27"); e(f"v_cndmask_b32 v{QS+t}, 1.0, v33, vcc")
        e("v_lshlrev_b32 v31, 3, v3"); e("v_sub_u32 v31, v2, v31")
        e("v_mov_b32 v32, 0x3f80"); e(f"v_lshlrev_b32 v32, v{QSH}, v32")
        e("v_lshrrev_b32 v31, 1, v31")
        for s in range(2):
            for i in range(4):
                e(f"v_cmp_eq_u32 vcc, {8*s+i}, v31"); e(f"v_cndmask_b32 v{ID+4*s+i}, 0, v32, vcc")
    if PAR.qaearly: qaset()
    HS = [S_WC, S_WS, S_WO, S_W1, S_B1, S_W2, S_DBG]
    srd_const(g, HS)
    e("s_waitcnt lgkmcnt(0)")
    srd_base(g, HS)
    e(f"s_mov_b64 s[{S_LC}:{S_LC+1}], s[{S_WC}:{S_WC+1}]"); e(f"s_mov_b32 s{S_LC+3}, 0x00020000"); e(f"s_mov_b32 s{S_LC+2}, {2*LB}")
    e(f"s_cmp_lt_u32 s{S_R}, {NR}"); e(f"s_cselect_b32 s{S_WP}, 63, s{S_G}"); e(f"s_mov_b32 s{S_SCN}, 0")
    e(f"s_mul_i32 s{S_CX}, s{S_G}, {PAR.cstr}"); e(f"s_add_u32 s{S_CX}, s{S_CX}, {WS_CNT}")
    if PAR.wpf:
        e(f"s_cmp_lg_u32 s{S_J}, 0"); e("s_cbranch_scc1 L_nowpf")
        e(f"s_mov_b32 s{S_WC+2}, {6*LB}"); e(f"s_lshr_b32 s{S_T}, s2, 3"); e(f"s_lshl_b32 s{S_T}, s{S_T}, 7")
        e("v_lshlrev_b32 v1, 12, v0")
        if PAR.wpf == 1: e(f"buffer_load_dword v247, v1, {sr(S_WC)}, s{S_T} offen")
        e(f"s_mov_b32 s{S_WC+2}, {LB}")
        e(f"s_cmp_lt_u32 s{S_R}, {NR}"); e("s_cbranch_scc1 L_nowpf")
        for i in range(4): e(f"v_mov_b32 v{36+i}, 0")
        e("v_lshlrev_b32 v35, 8, v0"); e("v_cmp_lt_u32 vcc, 2, v0"); e(f"v_mov_b32 v34, {OOB}"); e("v_cndmask_b32 v35, v35, v34, vcc")
        e(f"buffer_store_dwordx4 v[36:39], v35, {sr(S_WS)}, s{S_CX} offen sc1")
        g.lab("L_nowpf")
    g.stamp("g")
    call_if(g, EARLY(), "L_pe1")
    g.stamp("g")
    e("v_and_b32 v2, 31, v0"); e("v_lshrrev_b32 v3, 5, v0")
    e(f"v_mad_u32_u24 v1, v2, 52, v{V_H16}")
    if PAR.w0lin: e("v_lshlrev_b32 v1, 4, v0")
    e(f"s_mul_i32 s{S_T}, s{S_J}, 1352")
    for t in range(7):
        if t < 6: e(f"s_add_u32 s{S_T+1}, s{S_T}, {(13*(t&1) + 4*(t>>1))*1352}")
        else:
            e(f"s_mul_i32 s{S_T+1}, s{S_J}, {13*1352}"); e(f"s_add_u32 s{S_T+1}, s{S_T+1}, {12*1352}")
        for s in range(2):
            g.vm(f"buffer_load_dwordx4 {vr(W0R+8*t+4*s,4)}, v1, {sr(S_WC)}, s{S_T+1} offen offset:{(320 if PAR.w0lin else 32)*s}", f"w0_{t}")
    e("s_branch L_helper2")
    g.hfirst = g.L[g.h0:]; del g.L[g.h0:]
    g.lab("L_helper2")
    if not PAR.barpos: e("s_barrier")
    e(f"v_mov_b32 v61, {OOB}"); e(f"v_add_u32 v60, s{S_J}, v0"); e("v_cmp_eq_u32 vcc, 0, v60"); e(f"v_cndmask_b32 v{V_L0}, v61, 0, vcc")
    e(f"s_lshr_b32 s{S_SB}, s{S_R}, 1"); e(f"s_mul_i32 s{S_SB}, s{S_SB}, 224"); e(f"s_and_b32 s{S_XC}, s{S_R}, 1"); e(f"s_mul_i32 s{S_XC}, s{S_XC}, 96"); e(f"s_add_u32 s{S_SB}, s{S_SB}, s{S_XC}")
    if not PAR.qaearly: qaset()
    e(f"s_mul_i32 s{S_PO}, s{S_G}, {NR}"); e(f"s_add_u32 s{S_PO}, s{S_PO}, s{S_R}"); e(f"s_lshl_b32 s{S_PO}, s{S_PO}, 2"); e(f"s_add_u32 s{S_PO}, s{S_PO}, s{S_J}")
    e(f"s_lshl_b32 s{S_PO}, s{S_PO}, 8"); e(f"s_add_u32 s{S_PO}, s{S_PO}, {WS_PART}")
    e("v_and_b32 v60, 15, v0"); e(f"v_mul_u32_u24 v245, {XSTR}, v60"); e("v_and_b32 v60, 48, v0")
    e(f"s_lshl_b32 s{S_T}, s{S_J}, 6"); e(f"s_add_u32 s{S_T}, s{S_T}, {D0}"); e(f"v_add3_u32 v245, v245, v60, s{S_T}")
    e("v_lshlrev_b32 v246, 4, v0")
    e(f"s_lshl_b32 s{S_XB}, s{S_G}, 2"); e(f"s_lshr_b32 s{S_T}, s{S_R}, 2"); e(f"s_add_u32 s{S_XB}, s{S_XB}, s{S_T}"); e(f"s_mul_i32 s{S_XB}, s{S_XB}, {XBS}")
    e(f"s_and_b32 s{S_T}, s{S_R}, 3"); e(f"s_lshl_b32 s{S_T}, s{S_T}, 10"); e(f"s_add_u32 s{S_XB}, s{S_XB}, s{S_T}")
    e(f"s_lshl_b32 s{S_T}, s{S_J}, 12"); e(f"s_add_u32 s{S_XB}, s{S_XB}, s{S_T}"); e(f"s_add_u32 s{S_XB}, s{S_XB}, {WS_X}")
    g.stamp("g")
    e(f"s_cmp_lt_u32 s{S_R}, {NR}"); e("s_cbranch_scc1 L_nordy")
    e("s_waitcnt vmcnt(0)")
    e("v_mov_b32 v35, 1"); e(f"s_lshl_b32 s{S_E3}, s{S_G}, 2")
    e(f"buffer_store_dword v35, v{V_L0}, {sr(S_DBG)}, s{S_E3} offen offset:{C_RDY} sc1")
    g.lab("L_nordy")
    call_if(g, EARLY(), "L_pe2")
    g.stamp("g")
    for t in range(7):
        if t == 6: e(f"s_cmp_ge_u32 s{S_R}, {NR}"); e("s_cbranch_scc1 L_w0d")
        g.vmwait(f"w0_{t}")
        if t == 6: g.lab("L_w0d")
        a = HX + 16 * t; w = W0R + 8 * t
        e(f"v_mfma_f32_32x32x16_bf16 {vr(a,16)}, {vr(w,4)}, {vr(ID,4)}, 0")
        e(f"v_mfma_f32_32x32x16_bf16 {vr(a,16)}, {vr(w+4,4)}, {vr(ID+4,4)}, {vr(a,16)}")
        e(f"v_mfma_f32_32x32x16_bf16 {vr(a,16)}, {vr(ID,4)}, {vr(w,4)}, {vr(a,16)}")
        e(f"v_mfma_f32_32x32x16_bf16 {vr(a,16)}, {vr(ID+4,4)}, {vr(w+4,4)}, {vr(a,16)}")
        if t > 0: s0_max(g, t - 1)
    s0_max(g, 6)
    put_max(g, M_S0)
    e(f"v_mov_b32 v{V_CNT}, {M_CNT}")
    arrive(g, "S0M")
    g.stamp("g")
    if g.stamps and "g" in PAR.st: e("s_waitcnt vmcnt(0)"); g.stamp("g")
    if PAR.wpf3 == 2:
        e("v_lshlrev_b32 v1, 14, v0"); e(f"s_lshr_b32 s{S_T}, s2, 3"); e(f"s_lshl_b32 s{S_T}, s{S_T}, 7"); e(f"s_lshl_b32 s{S_T+1}, s{S_J}, 12"); e(f"s_add_u32 s{S_T}, s{S_T}, s{S_T+1}")
        e(f"buffer_load_dword v247, v1, {sr(S_W1)}, s{S_T} offen"); e("v_add_u32 v1, 0x100000, v1")
        e(f"buffer_load_dword v247, v1, {sr(S_W1)}, s{S_T} offen")
    call_if(g, EARLY(), "L_gsig")
    g.stamp("g")
    lwait(g, "S0M")
    g.stamp(); g.stamp("h")
    get_max(g, M_S0)
    e("v_lshlrev_b32 v3, 4, v0"); e(f"v_mov_b32 v{PK}, 0")
    e(f"ds_write_b32 v3, v{PK} offset:{BUFA + 22*S0STR + 12}")
    e("v_lshrrev_b32 v1, 23, v1")
    e("v_min_u32 v1, 249, v1")
    e("v_sub_u32 v2, 124, v1")
    e("v_subrev_u32 v1, 124, v1")
    e(f"ds_write_b32 v3, v1 offset:{BUFA + 23*S0STR + 512}")
    for t in range(7): e(f"v_ldexp_f32 v{QS+t}, v{QS+t}, v2")
    for t in range(7):
        if t == 6:
            e(f"s_cmp_eq_u32 s{S_J}, 1"); e(f"s_cselect_b32 s{S_T}, 48, 0")
            for i in range(7): e(f"v_add_u32 v{QA+i}, s{S_T}, v{QA+i}")
        if t in (0, 2, 4, 6): g.stamp("h")
        pack_round(g, HX + 16 * t, 16 * (8 * (t >> 1) + 4 * (t & 1)))
    arrive(g, "S0OK")
    g.stamp(); g.stamp("s"); g.stamp("h")
    e(f"v_cmp_lt_u32 vcc, 25, v{V_HROW}"); e("v_bfe_u32 v1, v0, 2, 1")
    e("v_cmp_eq_u32 s[72:73], 0, v1"); e("s_and_b64 vcc, vcc, s[72:73]")
    e(f"v_mov_b32 v2, {OOB}"); e(f"v_lshlrev_b32 v{V_DMA}, 4, v0"); e(f"v_cndmask_b32 v{V_DMA}, v{V_DMA}, v2, vcc")
    e(f"s_mul_i32 s{S_ROT}, s{S_R}, 7"); e(f"s_lshr_b32 s{S_ROT}, s{S_ROT}, 2")
    e("v_lshrrev_b32 v1, 3, v0"); e(f"s_lshl_b32 s{S_T}, s{S_J}, 3"); e(f"v_add_u32 v1, s{S_T}, v1")
    e("v_mul_u32_u24 v1, 1664, v1"); e("v_and_b32 v2, 1, v0"); e("v_lshl_add_u32 v1, v2, 4, v1")
    e(f"s_and_b32 s{S_T}, s{S_J}, 1"); e(f"s_lshl_b32 s{S_T}, s{S_T}, 1")
    e("v_bfe_u32 v2, v0, 4, 1"); e("v_bfe_u32 v3, v0, 1, 2"); e("v_xor_b32 v2, v2, v3"); e(f"v_xor_b32 v2, s{S_T}, v2")
    e(f"v_lshl_add_u32 v3, v2, 5, s{S_SB}")
    e(f"v_add_u32 v{V_WSRC}, v1, v3")
    e("v_lshrrev_b32 v1, 4, v0"); e("v_bfe_u32 v2, v0, 2, 2"); e("v_lshl_add_u32 v1, v1, 3, v2"); e("v_lshlrev_b32 v1, 7, v1")
    e("v_and_b32 v3, 3, v0"); e("v_lshl_add_u32 v1, v3, 3, v1"); e("v_bfe_u32 v2, v0, 3, 2"); e("v_lshl_add_u32 v1, v2, 5, v1")
    e(f"v_xor_b32 v1, s{S_XC}, v1"); e(f"v_add_u32 v{V_TR0}, {D0}, v1")
    if PAR.wpf3 == 1:
        e("v_lshlrev_b32 v1, 14, v0"); e(f"s_lshr_b32 s{S_T}, s2, 3"); e(f"s_lshl_b32 s{S_T}, s{S_T}, 7"); e(f"s_lshl_b32 s{S_T+1}, s{S_J}, 12"); e(f"s_add_u32 s{S_T}, s{S_T}, s{S_T+1}")
        e(f"buffer_load_dword v247, v1, {sr(S_W1)}, s{S_T} offen"); e("v_add_u32 v1, 0x100000, v1")
        e(f"buffer_load_dword v247, v1, {sr(S_W1)}, s{S_T} offen")
    call_if(g, LATE(), "L_pe1")
    call_if(g, LATE()[:1], "L_xpub")
    g.vmq += ["xst"] * 7 + ["sent", "rdyl"] + ["bias"] * 4
    g.stamp("s")
    call_if(g, LATE(), "L_pe2")
    e("s_waitcnt vmcnt(1)")
    e(f"s_sub_u32 s{S_T}, s{S_WP}, {PAR.gearly}"); e(f"s_cmp_lt_u32 s{S_T}, {31 - PAR.gearly}"); e("s_cbranch_scc1 L_pwr")
    e("s_waitcnt vmcnt(0)")
    g.lab("L_pwr")
    arrive(g, "XST")
    e(f"s_cmp_lg_u32 s{S_J}, 0"); e("s_cbranch_scc1 L_nosig")
    lwait(g, "XST")
    e(f"s_mov_b32 s{S_T}, {SPIN}")
    g.lab("L_rdy")
    e("v_cmp_ne_u32 vcc, 0, v28"); e(f"s_and_b32 s{S_T+1}, vcc_lo, 0xffff"); e(f"s_cmp_eq_u32 s{S_T+1}, 0xffff"); e("s_cbranch_scc0 L_rdys")
    g.lab("L_rdyd")
    g.tail += ["L_rdys:", "    s_sleep 8", f"    buffer_load_dword v28, v29, {sr(S_DBG)}, 0 offen offset:{C_RDY} sc1", "    s_waitcnt vmcnt(0)",
               f"    s_sub_u32 s{S_T}, s{S_T}, 1", "    s_cbranch_scc0 L_rdy", "    s_branch L_rdyd"]
    e("v_mov_b32 v1, 1")
    e(f"buffer_atomic_add v1, v{V_L0}, {sr(S_WS)}, s{S_CX} offen sc0 sc1")
    e(f"buffer_load_dword v197, v{V_L0}, {sr(S_DBG)}, 0 offen offset:128 sc1")
    e("s_waitcnt vmcnt(0)")
    e(f"v_readfirstlane_b32 s{S_T}, v1"); e(f"s_cmp_lg_u32 s{S_T}, 15"); e("s_cbranch_scc1 L_nosig")
    e(f"buffer_store_dword v1, v{V_L0}, {sr(S_WS)}, s{S_CX} offen offset:{C_XR} sc1")
    g.lab("L_nosig")
    e("s_setprio 3")
    g.stamp(); g.stamp("s")

def helper_dnn(g):
    e = g.e
    CH = PAR.chunks; NS = PAR.nslot
    UNITS = [(a, sl) for a in range(3) for sl in range(4)] + [(3, 0), (3, 1)]
    def ac(a, sl): return HACC + 4 * UNITS.index((a, sl))
    def xb(f, sl): return HX + 16 * (f % NS) + 4 * sl
    def xload(f):
        rotf(g, f, S_T + 2); e(f"s_lshl_b32 s{S_T+2}, s{S_T+2}, 12"); e(f"s_add_u32 s{S_T+2}, s{S_T+2}, s{S_XB}")
        for sl in range(4 if f < NS else PAR.nxl):
            g.vm(f"buffer_load_dwordx4 {vr(xb(f,sl),4)}, v{2 + (sl >> 1)}, {sr(S_WS)}, s{S_T+2} offen offset:{1024*(sl&1)} {PAR.ld}", f"x{f}")
    e(f"s_setprio {PAR.wp}")
    VTR = [V_TR0, V_TR1, 198, 199]
    for a in range(1, 4): e(f"v_xor_b32 v{VTR[a]}, {32*a}, v{V_TR0}")
    colvec(g, S_W2, 232, "w2")
    g.vmwait("bias")
    for a in range(4):
        for i in range(2):
            e(f"v_lshlrev_b32 v{ac(a,0)+2*i}, 16, v{BT+2*a+i}")
            e(f"v_and_b32 v{ac(a,0)+2*i+1}, 0xffff0000, v{BT+2*a+i}")
    for a, sl in UNITS:
        if sl:
            for i in range(4): e(f"v_mov_b32 v{ac(a,sl)+i}, v{ac(a,0)+i}")
    e(f"s_lshl_b32 s{S_XB}, s{S_G}, 2"); e(f"s_add_u32 s{S_XB}, s{S_XB}, s{S_J}"); e(f"s_mul_i32 s{S_XB}, s{S_XB}, {XBS}"); e(f"s_add_u32 s{S_XB}, s{S_XB}, {WS_X}")
    if PAR.wearly < 1: lwait(g, "RB", 8); dma_w(g, 0, PAR.wa, "Wa")
    if PAR.x0: poll1(g, [(S_DBG, "0", 128, 11), CHK_X()], "FX")
    else:
        poll1(g, [(S_DBG, "0", 128, 11)], "F2", pre=[197])
        lwait(g, "AFREE"); dma_img(g, "L2", 44, BUFA)
        presample(g, [CHK_X()], [196], "fx")
        g.vmwait("fx"); arrive(g, "L2OK", "W01")
        poll1(g, [CHK_X()], "FX", pre=[196])
    e(f"s_and_b32 s{S_E0}, s{S_R}, 1"); e(f"s_lshl_b32 s{S_T}, s{S_E0}, 11"); e(f"v_lshl_add_u32 v2, v0, 4, s{S_T}"); e("v_xor_b32 v3, 0x800, v2")
    g.stamp("s")
    g.stamp()
    e(f"s_setprio {PAR.dp}")
    for f in range(PAR.xi): xload(f)
    if PAR.x0:
        lwait(g, "AFREE"); dma_img(g, "L2", 44, BUFA)
        g.vmwait("W1"); arrive(g, "W01")
    nld = [PAR.xi]
    W2R = 232
    wring = [0]
    def wread(ks):
        f, hf = divmod(ks, 2)
        base = HW_ + 8 * (wring[0] % 3); wring[0] += 1
        for a in range(2):
            for rd in range(2):
                e(f"ds_read_b64_tr_b16 {vr(base+4*a+2*rd,2)}, v{VTR[2*hf+a]} offset:{(f % 16)*4096 + rd*512}")
        return base
    CKQ = [(S_WS, f"s{S_CX}", C_Q, 9)]; CK3 = [(S_WS, f"s{S_CX}", C_L[3], 11)]
    after = {}
    def add(f, fn): after.setdefault(f, []).append(fn)
    inter = {}
    def addi(f, fn): inter.setdefault(f, []).append(fn)
    def capture(fn):
        keep = g.L; g.L = []; fn(); out = g.L; g.L = keep; return out
    assert PAR.wa >= 10
    for i in range(16 - PAR.wa): addi(i + 1, lambda i=i: dma_w(g, PAR.wa + i, PAR.wa + i + 1, "Wb"))
    for f, (x, y) in {10: (16, 18), 11: (18, 20), 12: (20, 21), 13: (21, 22), 14: (22, 23), 15: (23, 24), 16: (24, 25), 17: (25, 26)}.items():
        addi(f, lambda x=x, y=y: dma_w(g, x, y, "Wc" if x < 21 else "Wd"))
    SEG = [0, 10, 16, 21, 26]
    add(PAR.qpos - 3, lambda: presample(g, CK3, [196], "f3"))
    add(PAR.qpos, lambda: (lwait(g, "BFREE"), g.vmwait("f3"), poll1(g, CK3, "F3", pre=[196])))
    for i in range(0, 11, PAR.l3n): addi(PAR.qpos + 1 + i // PAR.l3n, lambda i=i: dma_img(g, "L3", 44, BUFB, part=(i, i + PAR.l3n)))
    add(PAR.qpos + 1 + 10 // PAR.l3n + PAR.qarr, lambda: (g.vmwait("L3"), arrive(g, "L3OK")))
    add(22, lambda: presample(g, CKQ, [197], "fq"))
    lwait(g, "W01")
    for c in range(4):
        k0 = 2 * SEG[c]; k1 = 2 * SEG[c + 1]
        bufs = {k0: wread(k0), k0 + 1: wread(k0 + 1)}
        for ks in range(k0, k1):
            f, hf = divmod(ks, 2)
            if hf == 0 and f in PAR.fst: g.stamp("f")
            if hf == 0:
                g.vmwait(f"x{f}")
                def gen_other():
                    for _ in range(2):
                        if nld[0] < min(26, f + NS): xload(nld[0]); nld[0] += 1
                    for fn in inter.get(f, []): fn()
                other = capture(gen_other)
            e(f"s_waitcnt lgkmcnt({4 if ks + 1 < k1 else 0})")
            rd = []
            if ks + 2 < k1: rd = capture(lambda: bufs.__setitem__(ks + 2, wread(ks + 2)))
            mf = [(a, sl) for a in range(2) for sl in range(4) if (2 * hf + a, sl) in UNITS[:PAR.nmf]]
            for i, (a, sl) in enumerate(mf):
                d = ac(2 * hf + a, sl)
                e(f"v_mfma_f32_16x16x32_bf16 {vr(d,4)}, {vr(bufs[ks]+4*a,4)}, {vr(xb(f,sl),4)}, {vr(d,4)}")
                n = PAR.il
                if rd and i >= 1: g.L.append(rd.pop(0)); n -= 1
                while other and n > 0: g.L.append(other.pop(0)); n -= 1
            g.L += rd
            if hf == 1:
                g.L += other
                for fn in after.get(f, []): fn()
        if c == 0:
            if PAR.wa < 16: g.vmwait("Wb")
            arrive(g, "C0"); lwait(g, "C0"); g.stamp()
        if c == 1: g.vmwait("Wc"); arrive(g, "C1"); lwait(g, "C1")
        if c == 2:
            g.vmwait("Wd"); arrive(g, "C2"); lwait(g, "C2")
    e("s_waitcnt vmcnt(0)")
    g.stamp()
    W2F = HX
    for i in range(8):
        e(f"v_lshlrev_b32 v{W2F+2*i}, 16, v{W2R+i}")
        e(f"v_and_b32 v{W2F+2*i+1}, 0xffff0000, v{W2R+i}")
    c0 = 2 * 0.7978845608028654 * 1.4426950408889634
    e(f"s_mov_b32 s{S_C1}, {f2u(c0*0.044715):#x}")
    e(f"v_mov_b32 v2, {f2u(c0):#x}")
    T = HX + 32; SUM = HX + 48
    def gelu(blk):
        a, sl = UNITS[blk]
        rs = [ac(a, sl) + i for i in range(4)]
        for i, r in enumerate(rs): e(f"v_mul_f32 v{T+i}, v{r}, v{r}")
        for i, r in enumerate(rs): e(f"v_fma_f32 v{T+i}, v{T+i}, s{S_C1}, v2")
        for i, r in enumerate(rs): e(f"v_mul_f32 v{T+i}, v{T+i}, v{r}")
        for i, r in enumerate(rs): e(f"v_exp_f32 v{T+i}, -v{T+i}")
        for i, r in enumerate(rs): e(f"v_mul_f32 v{r}, v{r}, v{W2F + 4*a + i}")
        for i, r in enumerate(rs): e(f"v_add_f32 v{T+i}, 1.0, v{T+i}")
        for i, r in enumerate(rs): e(f"v_rcp_f32 v{T+i}, v{T+i}")
        for i, r in enumerate(rs): e(f"v_{'mul' if a == 0 and i == 0 else 'fmac'}_f32 v{SUM + sl}, v{r}, v{T+i}")
    for blk in range(len(UNITS)):
        if blk == PAR.gsplit:
            poll1(g, CKQ, "FQ", pre=[197]); dma_img(g, "Q4", 28, QB)
        if blk == PAR.gsplit2:
            e("s_waitcnt vmcnt(0)"); arrive(g, "QOK")
        if blk == PAR.ghi: e("s_setprio 1")
        gelu(blk)
    e("s_setprio 3")
    e(f"v_permlane32_swap_b32 v{SUM}, v{SUM+2}"); e(f"v_permlane32_swap_b32 v{SUM+1}, v{SUM+3}")
    e(f"v_add_f32 v{SUM}, v{SUM}, v{SUM+2}"); e(f"v_add_f32 v{SUM+1}, v{SUM+1}, v{SUM+3}")
    e(f"v_permlane16_swap_b32 v{SUM}, v{SUM+1}")
    e(f"v_add_f32 v{SUM}, v{SUM}, v{SUM+1}")
    e(f"v_min_u32 v{SUM}, -2, v{SUM}")
    e(f"s_lshl_b32 s{S_T}, s{S_E0}, 7"); e("v_lshlrev_b32 v1, 2, v0"); e(f"v_xor_b32 v1, s{S_T}, v1")
    e(f"buffer_store_dword v{SUM}, v1, {sr(S_WS)}, s{S_PO} offen sc1")
    g.stamp()
    g.flush_stamps(4, 5)
    e("s_endpgm")

def gsignal(g, c, so):
    e = g.e; done = g.newlab("sg")
    if c: e("s_waitcnt vmcnt(0)"); arrive(g, c)
    e(f"s_cmp_lg_u32 s{S_J}, 0"); e(f"s_cbranch_scc1 {done}")
    if c: lwait(g, c)
    e(f"v_mul_u32_u24 v2, {PAR.cstr}, v0"); e("v_cmp_lt_u32 vcc, 15, v0"); e(f"v_mov_b32 v3, {OOB}"); e("v_cndmask_b32 v2, v2, v3, vcc")
    e("v_mov_b32 v1, 1")
    e(f"buffer_atomic_add v1, v2, {sr(S_WS)}, {so} offen sc1")
    g.lab(done)
SCN, FR, WV, WP, W1V, AQ, RW = 68, 104, 121, 122, 108, 44, 180
QAR = lambda i: (64 + i) if i < 4 else (240 + i)
S_E4, S_LW = 62, 63
def prod_early1(g):
    e = g.e
    g.lab("L_gsig")
    e("s_waitcnt vmcnt(0)"); arrive(g, "GST")
    e(f"s_cmp_lg_u32 s{S_J}, 0"); e("s_cbranch_scc1 L_xpub")
    lwait(g, "GST")
    e("v_mov_b32 v1, 1"); e(f"buffer_atomic_add v1, v{V_L0}, {sr(S_DBG)}, 0 offen offset:128 sc1")
    g.lab("L_xpub")
    XS = 180
    lwait(g, "RAW")
    for t in range(7): e(f"ds_read_b128 {vr(XS+4*t,4)}, v245 offset:{256*t}")
    e(f"s_cmp_ge_u32 s{S_J}, 2"); e(f"s_cselect_b32 s{S_T}, {OOB}, 0"); e(f"v_add_u32 v245, s{S_T}, v246")
    for t in range(7):
        e(f"s_waitcnt lgkmcnt({6-t})")
        g.vm(f"buffer_store_dwordx4 {vr(XS+4*t,4)}, v{246 if t < 6 else 245}, {sr(S_WS)}, s{S_XB} offen sc1", "xst")
        e(f"s_add_u32 s{S_XB}, s{S_XB}, 16384")
    arrive(g, "RB")
    e(f"s_cmp_ge_u32 s{S_R}, {NR}"); e(f"s_cselect_b32 s{S_T}, {OOB}, 0")
    e(f"v_lshl_add_u32 v1, v0, 2, s{S_T}"); e("v_mov_b32 v3, -1")
    g.vm(f"buffer_store_dword v3, v1, {sr(S_WS)}, s{S_PO} offen sc1", "sent")
    e(f"s_lshl_b32 s{S_T}, s{S_J}, 8"); e("v_lshrrev_b32 v29, 4, v0"); e(f"v_lshl_add_u32 v29, v29, 8, s{S_T}"); e("v_lshl_add_u32 v29, v0, 2, v29")
    g.vm(f"buffer_load_dword v28, v29, {sr(S_DBG)}, 0 offen offset:{C_RDY} sc1", "rdyl")
    colvec(g, S_B1, BT, "bias")
    e(RET)
    g.lab("L_pe1")
    e(f"s_mul_i32 s{S_L}, s{S_WP}, 94"); e(f"s_lshr_b32 s{S_L}, s{S_L}, 10")
    e(f"s_mul_i32 s{S_T}, s{S_L}, 11"); e(f"s_sub_u32 s{S_FR}, s{S_WP}, s{S_T}"); e(f"s_lshl_b32 s{S_FR}, s{S_FR}, 2"); e(f"s_add_u32 s{S_FR}, s{S_FR}, s{S_J}")
    e(f"s_add_u32 s{S_L}, s{S_L}, 2")
    e(f"s_mul_i32 s{S_E2}, s{S_L}, {LB}")
    e(f"s_add_u32 s{S_LC+2}, s{S_E2}, {LB}")
    e("v_lshlrev_b32 v1, 4, v0")
    e(f"s_mul_i32 s{S_T}, s{S_J}, 9216"); e(f"s_add_u32 s{S_T}, s{S_T}, s{S_E2}")
    for i in range(9):
        if i % 4 == 0 and i: e(f"s_add_u32 s{S_T}, s{S_T}, 4096")
        e(f"buffer_load_dwordx4 {vr(SCN+4*i,4)}, v1, {sr(S_LC)}, s{S_T} offen offset:{(i%4)*1024}")
    e(f"s_cmp_ge_u32 s{S_WP}, 22"); e("s_cbranch_scc1 L_ret")
    e(f"s_lshl_b32 s{S_T}, s{S_FR}, 4"); e(f"s_add_u32 s{S_T}, s{S_T}, s{S_E2}")
    e(f"buffer_load_dwordx4 {vr(FR,4)}, v243, {sr(S_LC)}, s{S_T} offen")
    e(f"v_lshlrev_b32 v1, 1, v{V_HROW}"); e(f"s_mul_i32 s{S_T}, s{S_L}, 52")
    e(f"buffer_load_ushort v{WV}, v1, {sr(S_WO)}, s{S_T} offen")
    e(f"buffer_load_ushort v{WP}, v1, {sr(S_WO)}, 52 offen")
    e("v_lshrrev_b32 v3, 5, v0"); e("v_mul_u32_u24 v3, 26, v3")
    for i in range(8):
        e(f"s_lshl_b32 s{S_T}, s{S_FR}, 3"); e(f"s_sub_u32 s{S_T}, s{S_T}, {8*42 + 2 - i}")
        e(f"s_lshl_b32 s{S_T+1}, s{S_T}, 1"); e(f"s_add_u32 s{S_T+1}, s{S_T+1}, 52")
        e(f"s_cmp_lt_u32 s{S_T}, 13"); e(f"s_cselect_b32 s{S_T+1}, s{S_T+1}, {OOB}")
        e(f"v_add_u32 v2, s{S_T+1}, v3")
        e(f"buffer_load_ushort v{W1V+i}, v2, {sr(S_WO)}, 0 offen")
    g.lab("L_ret")
    e(RET)
def prod_early2(g):
    e = g.e
    g.lab("L_pe2")
    e("s_waitcnt vmcnt(13)")
    e(f"v_mov_b32 v{V_CNT}, {M_CNT}")
    for i in range(36): e(f"v_and_b32 v{SCN+i}, s{S_MASK}, v{SCN+i}")
    pkmax(g, [SCN + i for i in range(36)])
    put_max(g, M_SC)
    e(f"s_add_u32 s{S_SCN}, s{S_SCN}, 4")
    arrive(g, "SCM"); lwait(g, "SCM", f"s{S_SCN}")
    get_max(g, M_SC)
    e(f"v_readfirstlane_b32 s{S_E0}, v1")
    e(f"s_bfe_u32 s{S_E0}, s{S_E0}, 0x80007")
    e(f"s_cmp_ge_u32 s{S_WP}, 22"); e("s_cbranch_scc1 L_ret")
    g.lab("L_gjob")
    e(f"s_min_u32 s{S_T+2}, s{S_E0}, 249"); e(f"s_sub_u32 s{S_T+3}, {127+124}, s{S_T+2}"); e(f"s_lshl_b32 s{S_T+3}, s{S_T+3}, 23")
    e(f"s_cmp_lt_u32 s{S_FR}, 42"); e(f"s_cselect_b32 s{S_T+1}, -1, 0")
    for i in range(1, 4): e(f"v_and_b32 v{FR+i}, s{S_T+1}, v{FR+i}")
    e(f"s_cmp_lt_u32 s{S_FR}, 43"); e(f"s_cselect_b32 s{S_T+1}, -1, 0"); e(f"v_and_b32 v{FR}, s{S_T+1}, v{FR}")
    for i in range(4): e(f"v_alignbit_b32 v{FR+i}, v{FR+i}, v{FR+i}, v{V_H16}")
    for i in range(4):
        e(f"v_lshlrev_b32 v{SCN+2*i}, 16, v{FR+i}"); e(f"v_and_b32 v{SCN+2*i+1}, 0xffff0000, v{FR+i}")
    for i in range(8): e(f"v_mul_f32 v{SCN+i}, s{S_T+3}, v{SCN+i}")
    for i in range(4): e(f"v_cvt_pk_f16_f32 v{FR+i}, v{SCN+2*i}, v{SCN+2*i+1}")
    e(f"v_lshlrev_b32 v{WV}, 16, v{WV}")
    e(f"v_and_b32 v1, 0x7fffffff, v{WV}")
    wavemax_exp(g, 1, S_E1)
    e(f"s_sub_u32 s{S_E1}, s{S_E1}, 13"); e(f"s_sub_u32 s{S_T}, 0, s{S_E1}")
    e(f"v_ldexp_f32 v{WV}, v{WV}, s{S_T}")
    for i in range(8): e(f"v_mul_f32 v{SCN+i}, v{SCN+i}, v{WV}")
    for sh in (1, 2, 4, 8):
        for i in range(8): e(f"v_add_f32_dpp v{SCN+i}, v{SCN+i}, v{SCN+i} row_shr:{sh} {DPPALL} bound_ctrl:0")
    for i in range(8): e(f"v_add_f32_dpp v{SCN+i}, v{SCN+i}, v{SCN+i} row_bcast:15 row_mask:0xa bank_mask:0xf")
    for i in range(4): e(f"v_cvt_pk_f16_f32 v{SCN+2*i}, v{SCN+2*i}, v{SCN+2*i+1}")
    e("v_and_b32 v2, 31, v0"); e("v_cmp_eq_u32 vcc, 31, v2")
    for i in range(4): e(f"v_cndmask_b32 v{FR+i}, v{FR+i}, v{SCN+2*i}, vcc")
    e(f"v_lshlrev_b32 v1, 16, v{WP}"); e("v_and_b32 v1, 0x7fffffff, v1")
    wavemax_exp(g, 1, S_E4)
    e(f"s_sub_u32 s{S_T}, 15, s{S_E4}")
    for i in range(8): e(f"v_lshlrev_b32 v{W1V+i}, 16, v{W1V+i}")
    for i in range(8): e(f"v_ldexp_f32 v{W1V+i}, v{W1V+i}, s{S_T}")
    for i in range(4): e(f"v_cvt_pk_f16_f32 v{W1V+2*i}, v{W1V+2*i}, v{W1V+2*i+1}")
    e("v_cmp_eq_u32 vcc, 30, v2")
    for i in range(4): e(f"v_cndmask_b32 v{FR+i}, v{FR+i}, v{W1V+2*i}, vcc")
    e(f"s_cmp_lg_u32 s{S_FR}, 0"); e("s_cbranch_scc1 L_nohdr")
    e(f"s_sub_u32 s{S_T+2}, s{S_T+2}, 124"); e(f"s_add_u32 s{S_E1}, s{S_E1}, s{S_T+2}"); e(f"s_sub_u32 s{S_E4}, s{S_E4}, 15")
    e(f"v_writelane_b32 v{FR}, s{S_T+2}, 29"); e(f"v_writelane_b32 v{FR+1}, s{S_E1}, 29"); e(f"v_writelane_b32 v{FR+2}, s{S_E4}, 29")
    g.lab("L_nohdr")
    e(f"s_mul_i32 s{S_T}, s{S_L}, {44*1024}"); e(f"s_lshl_b32 s{S_T+1}, s{S_FR}, 10"); e(f"s_add_u32 s{S_T}, s{S_T}, s{S_T+1}")
    e(f"s_sub_u32 s{S_T}, s{S_T}, {88*1024 - IMG['L2']}")
    e("v_lshlrev_b32 v1, 4, v0")
    e(f"buffer_store_dwordx4 {vr(FR,4)}, v1, {sr(S_WS)}, s{S_T} offen sc1")
    e("s_nop 0")
    e(RET)
def helper_prod(g):
    e = g.e
    e(f"s_add_u32 s{S_WP}, s{S_G}, 16")
    e(f"s_cmp_ge_u32 s{S_WP}, 31"); e("s_cbranch_scc1 L_j2d")
    call_if(g, [], "L_pe1")
    e(f"s_cmp_lt_u32 s{S_WP}, 22"); e("s_cbranch_scc1 L_noql")
    e("v_and_b32 v2, 31, v0"); e("v_lshrrev_b32 v3, 5, v0")
    e("v_mul_u32_u24 v1, 676, v3"); e("v_add_lshl_u32 v1, v1, v2, 1")
    e(f"s_mul_i32 s{S_T}, s{S_FR}, 52"); e(f"s_add_u32 s{S_T}, s{S_T}, {4*LB}")
    for s in range(13):
        e(f"buffer_load_ushort v{W1V+s}, v1, {sr(S_LC)}, s{S_T} offen")
        e(f"s_add_u32 s{S_T}, s{S_T}, 2704")
    e(f"s_cmp_eq_u32 s{S_WP}, 29"); e(f"s_cselect_b32 s{S_LW}, 4, 5"); e(f"s_cmp_eq_u32 s{S_WP}, 30"); e(f"s_cselect_b32 s{S_LW}, 0, s{S_LW}")
    e(f"s_mul_i32 s{S_E2}, s{S_LW}, {LB}"); e(f"s_add_u32 s{S_LC+2}, s{S_E2}, {LB}")
    e("v_lshlrev_b32 v1, 1, v0"); e("v_cmp_lt_u32 vcc, 25, v0"); e(f"v_mov_b32 v2, {OOB}"); e("v_cndmask_b32 v1, v1, v2, vcc")
    e(f"s_mul_i32 s{S_T}, s{S_LW}, 52")
    e(f"buffer_load_ushort v{WV}, v1, {sr(S_WO)}, s{S_T} offen")
    e("v_lshlrev_b32 v1, 4, v0")
    e(f"s_mul_i32 s{S_T}, s{S_J}, 1352"); e(f"s_add_u32 s{S_T}, s{S_T}, s{S_E2}")
    for t in range(7):
        for ps in range(2):
            e(f"buffer_load_dwordx4 {vr(RW+8*t+4*ps,4)}, v1, {sr(S_LC)}, s{S_T} offen offset:{1024*ps}")
        e(f"s_add_u32 s{S_T}, s{S_T}, {4*1352}")
    g.lab("L_noql")
    lwait(g, "XST")
    e("s_waitcnt vmcnt(0)")
    call_if(g, [], "L_pe2")
    g.lab("L_j2d")
    e(f"s_sub_u32 s{S_T}, s{S_G}, 6"); e(f"s_cmp_lt_u32 s{S_T}, 5"); e("s_cbranch_scc1 L_nol3")
    e(f"s_mov_b32 s{S_T+2}, {WS_CNT + C_L[3]}")
    gsignal(g, "F3", f"s{S_T+2}")
    g.lab("L_nol3")
    e(f"s_cmp_ge_u32 s{S_WP}, 31"); e("s_cbranch_scc1 L_idle")
    e(f"s_cmp_ge_u32 s{S_WP}, 22"); e("s_cbranch_scc1 L_nog")
    e("s_branch L_idle")
    g.lab("L_nog")
    lwait(g, "RB", 8)
    AC = HX; TU = HX + 16
    for t in range(6): e(f"v_lshl_or_b32 v{QAR(t)}, v{W1V+2*t+1}, 16, v{W1V+2*t}")
    e(f"v_mov_b32 v{QAR(6)}, v{W1V+12}"); e(f"v_mov_b32 v{QAR(7)}, 0")
    g.stamp("q")
    e(f"v_lshlrev_b32 v{WV}, 16, v{WV}"); e(f"v_and_b32 v1, 0x7fffffff, v{WV}")
    wavemax_exp(g, 1, S_E1)
    e(f"s_sub_u32 s{S_T}, 0, s{S_E1}"); e(f"v_ldexp_f32 v{WV}, v{WV}, s{S_T}")
    for i in range(16): e(f"v_mov_b32 v{AC+i}, 0")
    for t in range(7):
        e(f"s_add_u32 s{S_T}, s{S_J}, {4*t}")
        e(f"v_readlane_b32 s{S_T+1}, v{WV}, s{S_T}")
        for i in range(8):
            e(f"v_lshlrev_b32 v{TU+2*i}, 16, v{RW+8*t+i}"); e(f"v_and_b32 v{TU+2*i+1}, 0xffff0000, v{RW+8*t+i}")
        for i in range(16): e(f"v_fmac_f32 v{AC+i}, s{S_T+1}, v{TU+i}")
    PSTR = 4096
    e(f"s_mul_i32 s{S_T}, s{S_J}, {PSTR}"); e(f"s_add_u32 s{S_T}, s{S_T}, {D0}")
    e(f"v_lshl_add_u32 v1, v0, 5, s{S_T}")
    for ps in range(2):
        for hf in range(2): e(f"ds_write_b128 v1, {vr(AC+8*ps+4*hf,4)} offset:{2048*ps+16*hf}")
    g.stamp("q"); arrive(g, "WC"); lwait(g, "WC"); g.stamp("q")
    call_if(g, [], "L_l2")
    e(f"s_cmp_eq_u32 s{S_FR}, 28"); e("s_cbranch_scc1 L_lin")
    e(f"s_cmp_lt_u32 s{S_FR}, 26"); e("s_cbranch_scc1 L_q")
    e(f"s_cmp_lg_u32 s{S_FR}, 32"); e("s_cbranch_scc1 L_noq")
    g.lab("L_q")
    BQ, PT, DQ = HX + 16, HX + 32, HX + 96
    e("v_and_b32 v2, 31, v0"); e("v_lshrrev_b32 v3, 5, v0")
    e("v_mad_u32_u24 v1, v3, 26, v2"); e("v_lshlrev_b32 v1, 2, v1"); e(f"v_add_u32 v1, {D0}, v1")
    def readsum(stride):
        for pj in range(4):
            for s in range(13): e(f"ds_read_b32 v{PT+13*pj+s}, v1 offset:{PSTR*pj + stride*s}")
            if pj: e("s_waitcnt lgkmcnt(13)")
        e("s_waitcnt lgkmcnt(0)")
        for s in range(13):
            e(f"v_add_f32 v{PT+s}, v{PT+s}, v{PT+13+s}"); e(f"v_add_f32 v{PT+26+s}, v{PT+26+s}, v{PT+39+s}")
        for s in range(13): e(f"v_add_f32 v{BQ+s}, v{PT+s}, v{PT+26+s}")
    def max13():
        e(f"v_max3_f32 v1, |v{BQ}|, |v{BQ+1}|, |v{BQ+2}|")
        for s in range(3, 13, 2): e(f"v_max3_f32 v1, v1, |v{BQ+s}|, |v{BQ+s+1}|")
    readsum(208)
    e("v_cmp_gt_u32 vcc, 26, v2")
    for s in range(13): e(f"v_cndmask_b32 v{BQ+s}, 0, v{BQ+s}, vcc")
    max13()
    wavemax_exp(g, 1, S_E2)
    e(f"s_sub_u32 s{S_T}, 0, s{S_E2}")
    for s in range(13): e(f"v_ldexp_f32 v{BQ+s}, v{BQ+s}, s{S_T}")
    e(f"s_max_u32 s{S_E0}, s{S_E0}, 10"); e(f"s_sub_u32 s{S_E0}, s{S_E0}, 126")
    BH, BL = PT, PT + 8
    e(f"v_mov_b32 v{BQ+13}, 0"); e(f"v_mov_b32 v{BH+7}, 0"); e(f"v_mov_b32 v{BL+7}, 0")
    for t in range(7): e(f"v_cvt_pk_bf16_f32 v{BH+t}, v{BQ+2*t}, v{BQ+2*t+1}")
    for t in range(7):
        e(f"v_lshlrev_b32 v{PT+16+2*t}, 16, v{BH+t}"); e(f"v_and_b32 v{PT+17+2*t}, 0xffff0000, v{BH+t}")
    for t in range(14): e(f"v_sub_f32 v{BQ+t}, v{BQ+t}, v{PT+16+t}")
    for t in range(7): e(f"v_cvt_pk_bf16_f32 v{BL+t}, v{BQ+2*t}, v{BQ+2*t+1}")
    e(f"s_cmp_ge_u32 s{S_FR}, 13"); e(f"s_cselect_b32 s{S_T+1}, 13, 0"); e(f"s_cselect_b32 s{S_T+2}, 4, 0")
    e(f"s_sub_u32 s{S_T+1}, s{S_FR}, s{S_T+1}"); e(f"s_and_b32 s{S_T+3}, s{S_T+1}, 3"); e(f"s_add_u32 s{S_T+2}, s{S_T+2}, s{S_T+3}")
    e(f"s_lshr_b32 s{S_T+1}, s{S_T+1}, 2"); e(f"s_lshl_b32 s{S_T+1}, s{S_T+1}, 3"); e(f"s_add_u32 s{S_SB}, s{S_T+2}, s{S_T+1}")
    e(f"s_mov_b32 s{S_L}, 0")
    e(f"s_cmp_lg_u32 s{S_FR}, 32"); e("s_cbranch_scc1 L_q2")
    e("v_sub_u32 v1, v2, v3")
    for s in range(13):
        e(f"v_cmp_eq_u32 vcc, {2*s}, v1"); e(f"v_cndmask_b32 v{AQ+s}, 0, 1.0, vcc")
    e(f"v_mov_b32 v{AQ+13}, 0")
    for t in range(7): e(f"v_cvt_pk_bf16_f32 v{QAR(t)}, v{AQ+2*t}, v{AQ+2*t+1}")
    e(f"s_mov_b32 s{S_E0}, 0"); e(f"s_mov_b32 s{S_SB}, 31"); e(f"s_mov_b32 s{S_L}, 8")
    g.lab("L_q2")
    g.stamp("q")
    e("s_nop 1")
    first = True
    for bb in (BL, BH):
        for ks in range(2):
            e(f"v_mfma_f32_32x32x16_bf16 {vr(DQ,16)}, {vr(QAR(4*ks),4)}, {vr(bb+4*ks,4)}, {'0' if first else vr(DQ,16)}"); first = False
            e(f"v_mfma_f32_32x32x16_bf16 {vr(DQ,16)}, {vr(bb+4*ks,4)}, {vr(QAR(4*ks),4)}, {vr(DQ,16)}")
    e(f"v_max_f32 v1, v{QS}, v{QS+1}")
    e(f"s_sub_u32 s{S_T}, 137, s{S_E0}"); e(f"s_lshl_b32 s{S_T}, s{S_T}, 23"); e(f"v_mov_b32 v30, s{S_T}"); e("v_mul_f32 v31, 0.5, v30")
    for t in range(7):
        e(f"v_cmp_eq_f32 vcc, v1, v{QS+t}"); e(f"v_cndmask_b32 v{QS+t}, v31, v30, vcc")
    e(f"s_cmp_eq_u32 s{S_J}, 1"); e(f"s_cselect_b32 s{S_T}, 48, 0"); e(f"s_sub_u32 s{S_T}, {D1 - BUFA}, s{S_T}")
    for t in range(7): e(f"v_add_u32 v{QA+t}, s{S_T}, v{QA+t}")
    e(f"v_mul_u32_u24 v1, {S0STR}, v2"); e("v_lshl_add_u32 v1, v3, 9, v1"); e(f"s_lshl_b32 s{S_T}, s{S_J}, 4"); e(f"s_add_u32 s{S_T}, s{S_T}, {D1}")
    e(f"v_min_u32 v1, {22*S0STR+512}, v1")
    e(f"v_add_u32 v1, s{S_T}, v1")
    e(f"v_lshl_add_u32 v28, v3, 9, s{S_T}"); e("v_mov_b32 v29, 0")
    e(f"ds_write_b32 v28, v29 offset:{22*S0STR+12}")
    pack_round(g, DQ, 0, False)
    g.stamp("q")
    e("s_waitcnt lgkmcnt(0)")
    e(f"ds_read_b128 {vr(AQ,4)}, v1")
    e("v_lshlrev_b32 v1, 10, v2"); e("v_lshl_add_u32 v1, v3, 9, v1"); e("v_cmp_lt_u32 vcc, 22, v2"); e(f"v_mov_b32 v28, {OOB}"); e("v_cndmask_b32 v1, v1, v28, vcc")
    e(f"s_lshl_b32 s{S_T}, s{S_SB}, 4"); e(f"s_add_u32 s{S_T}, s{S_T}, {IMG['Q4']}")
    e("s_waitcnt lgkmcnt(0)")
    e(f"buffer_store_dwordx4 {vr(AQ,4)}, v1, {sr(S_WS)}, s{S_T} offen sc1")
    e(f"s_add_u32 s{S_E0}, s{S_E0}, s{S_E2}"); e(f"s_add_u32 s{S_E0}, s{S_E0}, s{S_E1}"); e(f"s_sub_u32 s{S_E0}, s{S_E0}, 10")
    e(f"s_and_b32 s{S_T}, s{S_FR}, 31"); e(f"s_cmp_lg_u32 s{S_T}, 0"); e("s_cbranch_scc1 L_noq")
    g.lab("L_qh")
    e(f"v_mov_b32 v1, s{S_E0}"); e(f"s_add_u32 s{S_T}, s{S_L}, {IMG['Q4'] + 23*1024}")
    e(f"buffer_store_dword v1, v{V_L0}, {sr(S_WS)}, s{S_T} offen sc1")
    e("s_branch L_noq")
    g.lab("L_lin")
    e("v_lshrrev_b32 v3, 5, v0"); e(f"v_min_u32 v2, 25, v{V_HROW}")
    e("v_mad_u32_u24 v1, v2, 26, v3"); e("v_lshlrev_b32 v1, 2, v1"); e(f"v_add_u32 v1, {D0}, v1")
    readsum(8)
    e(f"v_cmp_gt_u32 vcc, 26, v{V_HROW}")
    for s in range(13): e(f"v_cndmask_b32 v{BQ+s}, 0, v{BQ+s}, vcc")
    max13()
    wavemax_exp(g, 1, S_E2)
    e(f"s_sub_u32 s{S_T}, 15, s{S_E2}")
    for s in range(13): e(f"v_ldexp_f32 v{BQ+s}, v{BQ+s}, s{S_T}")
    e(f"v_mov_b32 v{BQ+13}, 0"); e(f"v_mov_b32 v{AQ+7}, 0")
    for t in range(7): e(f"v_cvt_pk_f16_f32 v{AQ+t}, v{BQ+2*t}, v{BQ+2*t+1}")
    e("v_lshlrev_b32 v1, 4, v0"); e(f"s_mov_b32 s{S_T}, {IMG['Q4'] + 24*1024}")
    for s in range(2): e(f"buffer_store_dwordx4 {vr(AQ+4*s,4)}, v1, {sr(S_WS)}, s{S_T} offen offset:{1024*s} sc1")
    e(f"s_add_u32 s{S_E0}, s{S_E2}, s{S_E1}"); e(f"s_sub_u32 s{S_E0}, s{S_E0}, 15"); e(f"s_mov_b32 s{S_L}, 4")
    e("s_branch L_qh")
    g.lab("L_noq")
    g.stamp("q")
    e(f"s_mov_b32 s{S_T+2}, {WS_CNT + C_Q}")
    gsignal(g, "QST", f"s{S_T+2}")
    g.stamp("q")
    lwait(g, "QST")
    e("s_branch L_idle2")
    g.lab("L_l2")
    lwait(g, "AFREE")
    poll1(g, [(S_DBG, "0", 128, 11)], "F2")
    dma_img(g, "L2", 44, BUFA)
    e("s_waitcnt vmcnt(0)"); arrive(g, "L2OK")
    e(RET)
    g.lab("L_idle")
    call_if(g, [], "L_l2")
    g.lab("L_idle2")
    g.stamp(); g.stamp()
    lwait(g, "BFREE")
    poll1(g, [(S_WS, f"s{S_CX}", C_L[3], 11)], "FX")
    dma_img(g, "L3", 44, BUFB)
    e("s_waitcnt vmcnt(0)"); arrive(g, "L3OK")
    g.stamp()
    poll1(g, [(S_WS, f"s{S_CX}", C_Q, 9), CHK_X()], "FQ")
    dma_img(g, "Q4", 28, QB)
    e("s_waitcnt vmcnt(0)"); arrive(g, "QOK")
    g.stamp()
    g.flush_stamps(4, 5)
    e("s_endpgm")

DOC = """; ---- design (generated by a script of my own) ----
;   g4 = L x + Q(x,x) with L = w4.W4, Q = W4.(w5.W5);  logit = sum_l w_l.u_{l+1} + g4.u4.
; MLP: 15 workgroups per 256 samples, 16x16x32 bf16 MFMA, x exchanged in fragment order through d_ws; the 16th workgroup
;   prepares the shared fp16 weight images. Hand-offs: write-through stores, drained, then counters reset inside this launch.
"""
def build(stamps=False):
    g = G(stamps)
    prologue(g); n0 = g.nst
    cin(g)
    g.h0 = len(g.L); g.lab("L_helper"); g.nst = n0
    helper_common(g); n1 = g.nst
    g.e(f"s_cmp_ge_u32 s{S_R}, {NR}"); g.e("s_cbranch_scc1 L_helper_n")
    helper_dnn(g)
    g.lab("L_helper_n"); g.nst = n1
    helper_prod(g)
    prod_early1(g); prod_early2(g)
    g.L += g.tail
    i = g.L.index("L_cin2:"); g.L[i:i] = g.hfirst
    g.lab("L_end"); g.e("s_endpgm")
    body, nops = fix_hazards(g.L)
    ref = open("standalone__deep_cross_xdeepfm__recsys.s.ref").read().split("\n")
    hdr = [l for l in ref if l.startswith(";") and "@launch" not in l and "Override" not in l and "grid=ceil" not in l]
    txt = "\n".join(hdr) + f"\n; @launch grid=(256,1,1) block=(512,1,1) lds={LDS_TOTAL}\n"
    txt += DOC
    txt += f'.amdgcn_target "amdgcn-amd-amdhsa--gfx950"\n.text\n.globl {KN}\n.p2align 8\n.type {KN},@function\n{KN}:\n'
    txt += "\n".join(body) + "\n"
    txt += f""".section .rodata,"a"
.p2align 6
.amdhsa_kernel {KN}
  .amdhsa_next_free_vgpr 256
  .amdhsa_next_free_sgpr 102
  .amdhsa_accum_offset 256
  .amdhsa_group_segment_fixed_size 0
  .amdhsa_kernarg_size 88
  .amdhsa_user_sgpr_count 2
  .amdhsa_user_sgpr_kernarg_segment_ptr 1
  .amdhsa_system_sgpr_workgroup_id_x 1
.end_amdhsa_kernel
"""
    return txt, nops
if __name__ == "__main__":
    for a in sys.argv[2:]:
        if "=" in a:
            k, v = a.split("="); setattr(PAR, k, eval(v))
    txt, nops = build(stamps="stamps" in sys.argv)
    open(sys.argv[1], "w").write(txt)
    print("nops inserted", nops, "lines", txt.count("\n"))
```

```python
import sys, struct
from asmlib import fix_hazards
KN = "standalone__deep_cross_xdeepfm__recsys_kernel"
def f2u(f): return struct.unpack('<I', struct.pack('<f', f))[0]
OOB = 0x40000000
SPIN = 200000
LB = 35152
IMG = {}
off = 0
for name, n in (("L2", 44), ("L3", 44), ("Q4", 28)):
    IMG[name] = off; off += n * 1024
XBS = 106496 + 128
NR = 15
WS_PART = off
WS_CNT = WS_PART + 16 * NR * 1024
WS_STAMP = 0x80000
WS_X = WS_STAMP + 256 * 8 * 64 + 128
C_L = {3: 512}; C_Q = 516; C_XR = 256; C_RDY = 0
BUFA, BUFB = 0, 45056
D0, D1 = 90112, 118784
QB = D0 + 10 * 4096
MISC = QB + 28672
LDS_TOTAL = MISC + 2560
M_S0, M_L1, M_SC, M_EW1, M_CNT = MISC, MISC + 64, MISC + 128, MISC + 192, MISC + 256
CNT = {n: M_CNT + 4 * i for i, n in enumerate(["XST", "L1M", "L1OK", "AFREE", "L2OK", "BFREE", "L3OK", "QOK", "W01", "C0", "C1", "C2", "SCM", "GST", "WC", "QST", "FX", "F2", "F3", "FQ", "S0OK", "S0M", "RAW", "RB"])}
CNT["AFREE"] = M_CNT + 4 * 28; CNT["BFREE"] = M_CNT + 4 * 29; CNT["RB"] = M_CNT + 4 * 30
S0STR = 1040
XSTR = 1680
QPAIRS = [(p, q) for p in range(13) for q in range(p, 13)]
S_IDX, S_TAB, S_WS, S_W1, S_B1, S_W2, S_OUT, S_DBG, S_BO, S_WC, S_WO = 4, 8, 12, 16, 20, 24, 28, 32, 36, 40, 44
S_G, S_R, S_WAVE, S_J = 70, 71, 83, 3
S_HDR = 48
S_EX = 60
S_K = 64
S_K1 = 4
S_KC = 76
S_T = 72
S_MASK = 80
S_C1 = 81
S_SB = 82
S_ST = 84
class P: pass
PAR = P()
PAR.chunks = [7, 7, 6, 6]
PAR.gsplit = 0
PAR.gsplit2 = 3
PAR.lnpos = 28
PAR.pload = 17
PAR.la = 12
PAR.urate = 5
PAR.xst = 2
PAR.l2pos = -1
PAR.nslot = 6
PAR.st = 'ad'
PAR.ld = 'sc1'
PAR.inv = 0
PAR.xfirst = 0
PAR.rawlate = 0
PAR.encb = 0
PAR.ttouch = 1
PAR.tset = [[S_TAB], [], [], []]
PAR.encsh = 1
PAR.wp = 3
PAR.dp = 3
PAR.otouch = 0
PAR.drop = ('Q4', 6)
PAR.cp2 = 1
PAR.sp = 1
PAR.barpos = 0
PAR.nxl = 4
PAR.noa = 0
PAR.il = 2
PAR.fst = (0, 3, 6, 10, 13, 17, 22)
PAR.xi = 3
PAR.wbn = 3
PAR.wpf3 = 0
PAR.wa = 10
PAR.l3n = 3
PAR.wbpos = 3
PAR.wmod = ''
PAR.w2 = 1
PAR.l1rate = 16
PAR.sclq = 0
PAR.x0 = 0
PAR.qpos = 11
PAR.m16 = 0
PAR.encsel = None
PAR.gmin = 0
PAR.qaearly = 0
PAR.gmod = 'nt'
PAR.imod = 'nt'
PAR.pkpack = 0
PAR.w0lin = 0
PAR.l3rate = 18
PAR.qarr = 2
PAR.gearly = 11
PAR.ngelu = 16
PAR.nmf = 14
PAR.npk = 4
PAR.lslp = 4
PAR.zpad = 1
PAR.skew = 1
PAR.cstr = 4352
PAR.l3late = 1
PAR.xp = 3
PAR.wearly = 0
PAR.wpf2 = 0
PAR.ghi = 1
PAR.qchk = 8
PAR.cp = 1
PAR.enc = None
PAR.rate = 20
PAR.qrate = 24
PAR.clk = 0
PAR.hp = 0
PAR.nost = 0
PAR.wpf = 1
PAR.rot = 2
PAR.pf = 4
PAR.qlate = 0
PAR.slp = 8
PAR.de = 2
PAR.touch = 0
PAR.dbg = None
class G:
    def __init__(self, stamps=False):
        self.L = []; self.stamps = stamps; self.nst = 0; self.nl = 0; self.vmq = []; self.tail = []
    def e(self, s): self.L.append("    " + s)
    def lab(self, s): self.L.append(s + ":")
    def vm(self, s, tag): self.e(s); self.vmq.append(tag)
    def vmwait(self, *tags):
        idx = max(i for i, t in enumerate(self.vmq) if t in tags)
        n = sum(1 for t in self.vmq[idx + 1:] if not t.startswith("f"))
        self.e(f"s_waitcnt vmcnt({min(n, 63)})")
    def newlab(self, s): self.nl += 1; return f"L_{s}_{self.nl}"
    def stamp(self, name=None):
        if self.stamps and (name or "d") in PAR.st:
            assert self.nst < 8
            self.e(f"{'s_memtime' if PAR.clk else 's_memrealtime'} s[{S_ST+2*self.nst}:{S_ST+2*self.nst+1}]"); self.nst += 1
    def flush_stamps(self, vt, va):
        if not self.stamps: return
        self.e("s_waitcnt lgkmcnt(0)")
        self.e(f"s_lshl_b32 s{S_T}, s2, 3"); self.e(f"s_add_u32 s{S_T}, s{S_T}, s{S_WAVE}"); self.e(f"s_lshl_b32 s{S_T}, s{S_T}, 6")
        self.e(f"s_add_u32 s{S_T}, s{S_T}, {WS_STAMP}")
        self.e(f"v_mov_b32 v{va}, 0")
        if PAR.dbg is not None:
            lb = self.newlab("nd")
            self.e(f"s_cmp_lg_u32 s{S_T}, {WS_STAMP + PAR.dbg*64}"); self.e(f"s_cbranch_scc1 {lb}")
            for i in range(self.nst):
                self.e(f"s_sub_u32 s{S_T+1}, s{S_ST+2*i}, s{S_ST}")
                self.e(f"v_mov_b32 v{vt}, s{S_T+1}")
                self.e(f"buffer_store_dword v{vt}, v{va}, s[{S_DBG}:{S_DBG+3}], 0 offen offset:{64+4*i}")
            self.lab(lb)
        for i in range(self.nst):
            self.e(f"v_mov_b32 v{vt}, s{S_ST+2*i}")
            self.e(f"buffer_store_dword v{vt}, v{va}, s[{S_WS}:{S_WS+3}], s{S_T} offen offset:{4*i}")
        self.nst = 0
def vr(a, n): return f"v[{a}:{a+n-1}]"
def sr(a, n=4): return f"s[{a}:{a+n-1}]"
DPPALL = "row_mask:0xf bank_mask:0xf"

def prologue(g):
    e = g.e
    e("s_cmp_ge_u32 s2, 256")
    e("s_cbranch_scc1 L_end")
    g.stamp("a")
    e("s_load_dwordx16 s[48:63], s[0:1], 0")
    e("s_load_dwordx4 s[64:67], s[0:1], 64")
    e("s_load_dwordx2 s[68:69], s[0:1], 80")
    if PAR.pf:
        e(f"s_getpc_b64 s[{S_KC}:{S_KC+1}]")
        g.lab("L_pfbase")
        e(f"s_mov_b32 s{S_KC+2}, L_end - L_pfbase"); e(f"s_mov_b32 s{S_KC+3}, 0x00020000")
        e(f"s_lshr_b32 s{S_T}, s2, 3"); e(f"s_lshl_b32 s{S_T}, s{S_T}, 7")
        e("v_xor_b32 v1, 0x1c0, v0"); e("v_lshlrev_b32 v1, 12, v1")
        e(f"buffer_load_dword v255, v1, {sr(S_KC)}, s{S_T} offen")
    e("v_lshrrev_b32 v1, 6, v0")
    e("v_and_b32 v0, 63, v0")
    e(f"v_readfirstlane_b32 s{S_WAVE}, v1")
    e(f"s_and_b32 s{S_T}, s2, 7")
    e(f"s_lshr_b32 s{S_T+1}, s2, 3")
    e(f"s_lshr_b32 s{S_G}, s{S_T+1}, 4")
    e(f"s_lshl_b32 s{S_T}, s{S_T}, 1")
    e(f"s_add_u32 s{S_G}, s{S_G}, s{S_T}")
    e(f"s_and_b32 s{S_R}, s{S_T+1}, 15")
    e(f"s_mov_b32 s{S_MASK}, 0x7fff7fff")
    e("v_and_b32 v25, 31, v0"); e("v_lshlrev_b32 v25, 2, v25"); e(f"v_add_u32 v25, {M_CNT}, v25"); e("v_mov_b32 v2, 0")
    e("ds_write_b32 v25, v2")
    if PAR.barpos == 2: e("s_waitcnt lgkmcnt(0)"); e("s_barrier")
    e(f"s_cmp_ge_u32 s{S_WAVE}, 4")
    e("s_cbranch_scc1 L_helper")

SRDS = {S_IDX: (48, 4096*104), S_TAB: (50, 6400000), S_WC: (52, LB), S_WO: (54, 312), S_W1: (56, 832*1664), S_B1: (58, 1664), S_W2: (60, 1664),
        S_BO: (62, 2), S_OUT: (64, 8192), S_DBG: (66, 256), S_WS: (68, 1 << 28)}
def srd_const(g, lst):
    for srd in lst: g.e(f"s_mov_b32 s{srd+2}, {SRDS[srd][1]}"); g.e(f"s_mov_b32 s{srd+3}, 0x00020000")
def srd_base(g, lst):
    for srd in lst: g.e(f"s_mov_b64 s[{srd}:{srd+1}], s[{SRDS[srd][0]}:{SRDS[srd][0]+1}]")
ACC, ACC2, XR, UR, BR, AR, SC, LG, TM = 4, 68, 132, 188, 216, 228, 244, 248, 252
def X(k, p): return XR + 14 * k + p
def EV(k): return XR + 14 * k + 13
def U(k, t): return UR + 7 * k + t
def cin(g):
    e = g.e
    e("s_setprio 3")
    e(f"s_lshl_b32 s{S_T}, s{S_G}, 8"); e(f"s_lshl_b32 s{S_T+1}, s{S_R}, 4"); e(f"s_add_u32 s{S_T}, s{S_T}, s{S_T+1}")
    e(f"s_lshl_b32 s{S_T+1}, s{S_WAVE}, 2"); e(f"s_add_u32 s{S_SB}, s{S_T}, s{S_T+1}")
    e("v_lshrrev_b32 v1, 4, v0")
    e("v_bfe_u32 v2, v0, 2, 2")
    e("v_and_b32 v3, 3, v0")
    e("v_mul_u32_u24 v4, 104, v1")
    e("v_mad_u32_u24 v4, v2, 28, v4")
    I = 8
    CS = [S_IDX, S_WC, S_TAB, S_WS, S_OUT] + ([S_DBG] if PAR.dbg is not None or PAR.gmin else [])
    srd_const(g, CS[:1])
    e(f"s_mul_i32 s{S_T}, s{S_SB}, 104")
    g.stamp("i")
    e("s_waitcnt lgkmcnt(0)")
    g.stamp("i")
    srd_base(g, CS[:1])
    e(f"buffer_load_dwordx4 {vr(I,4)}, v4, {sr(S_IDX)}, s{S_T} offen {PAR.imod}")
    e(f"buffer_load_dwordx3 {vr(I+4,3)}, v4, {sr(S_IDX)}, s{S_T} offen offset:16 {PAR.imod}")
    if PAR.ttouch:
        e("v_lshlrev_b32 v15, 20, v0")
        for w, lst in enumerate(PAR.tset):
            if not lst: continue
            lb = g.newlab("tt")
            e(f"s_cmp_lg_u32 s{S_WAVE}, {w}"); e(f"s_cbranch_scc1 {lb}")
            for srd in lst:
                srd_const(g, [srd]); srd_base(g, [srd])
                if srd == S_WS:
                    e(f"s_mul_i32 s{S_T}, s{S_G}, {4*XBS}"); e(f"s_add_u32 s{S_T}, s{S_T}, {WS_X - 128}")
                    e(f"v_mul_u32_u24 v17, {4*XBS}, v0"); e(f"v_add_u32 v17, s{S_T}, v17"); e(f"v_mov_b32 v18, {WS_X - 128}"); e("v_cmp_lt_u32 vcc, 1, v0"); e("v_cndmask_b32 v17, v17, v18, vcc")
                    e(f"buffer_load_ushort v19, v17, {sr(srd)}, 0 offen sc1")
                else: e(f"buffer_load_ushort v19, v15, {sr(srd)}, 0 offen" + (" sc1" if srd == S_DBG else ""))
            g.lab(lb)
    e(f"s_setprio {PAR.sp}")
    e("s_branch L_cin2")
    g.lab("L_cin2")
    srd_base(g, CS[1:])
    e(f"s_load_dword s{S_BO}, s[62:63], 0")
    srd_const(g, CS[1:])
    e(f"s_mov_b32 s{S_WC+2}, {2*LB}"); e(f"s_mov_b32 s{S_J}, s{S_WAVE}")
    e("v_lshlrev_b32 v5, 4, v3")
    e("v_cmp_eq_u32 vcc, 3, v2")
    e(f"v_mov_b32 v6, {OOB}")
    e("v_cndmask_b32 v6, 0, v6, vcc")
    e("v_add_u32 v6, v6, v5")
    e("v_lshlrev_b32 v26, 4, v0"); e("v_cmp_lt_u32 vcc, 42, v0"); e(f"v_mov_b32 v27, {OOB}"); e("v_cndmask_b32 v26, v26, v27, vcc")
    e("v_lshlrev_b32 v29, 4, v0"); e(f"v_add_u32 v29, {BUFA + 28*1024}, v29")
    e(f"s_lshl_b32 s{S_T}, s{S_J}, 4"); e(f"s_add_u32 s{S_T}, s{S_T}, {BUFB}")
    e(f"v_mul_u32_u24 v28, {S0STR}, v0"); e(f"v_add_u32 v28, s{S_T}, v28"); e("v_cndmask_b32 v28, v28, v29, vcc")
    e(f"s_mul_i32 s{S_T+1}, s{S_WAVE}, {4*XSTR}"); e(f"s_add_u32 s{S_T+1}, s{S_T+1}, {D0}")
    e(f"v_mul_u32_u24 v7, {XSTR}, v1")
    e("v_mad_u32_u24 v16, v2, 7, 0")
    e("v_lshl_add_u32 v7, v16, 6, v7")
    e(f"v_add3_u32 v7, v7, v5, s{S_T+1}")
    e("v_cmp_eq_u32 vcc, 3, v2")
    e(f"v_lshl_add_u32 v18, v0, 4, 0"); e(f"v_add_u32 v18, {D0 + 16*XSTR + 256 - 320}, v18"); e("v_cndmask_b32 v18, v7, v18, vcc")
    e("v_lshrrev_b32 v16, 1, v1")
    e("v_xor_b32 v16, v16, v2")
    e("v_lshlrev_b32 v16, 6, v16")
    e("v_and_b32 v17, 1, v1")
    e("v_lshl_add_u32 v16, v17, 5, v16")
    e("v_lshl_add_u32 v16, v3, 3, v16")
    e(f"v_add_u32 v16, s{S_T+1}, v16")
    for k in range(4): e(f"v_mov_b32 v{LG+k}, 0")
    PA, PS, DR = 32, 40, 184
    if PAR.zpad:
        for i in range(4): e(f"v_mov_b32 v{PS+i}, 0")
        e(f"s_and_b32 s{S_T}, s{S_J}, 1"); e(f"s_mul_i32 s{S_T}, s{S_T}, 48"); e(f"s_lshr_b32 s{S_T+1}, s{S_J}, 1"); e(f"s_mul_i32 s{S_T+1}, s{S_T+1}, 480")
        e(f"s_add_u32 s{S_T}, s{S_T}, s{S_T+1}"); e(f"v_add_u32 v30, s{S_T}, v28")
        e(f"v_subrev_u32 v31, {BUFB - BUFA}, v30"); e("v_cmp_lt_u32 vcc, 22, v0"); e("v_cndmask_b32 v31, v31, v29, vcc")
        for i in range(3):
            e(f"ds_write_b128 v30, {vr(PS,4)} offset:{25*16 + 16*i}"); e(f"ds_write_b128 v31, {vr(PS,4)} offset:{25*16 + 16*i}")
    unpack_mat(g, PA, 20)
    e("s_setprio 1")
    L1R = 132
    if not PAR.barpos: e("s_barrier")
    g.stamp("i")
    e(f"s_mul_i32 s{S_T}, s{S_J}, 1352")
    for i in range(13):
        if i < 12:
            t = i >> 1
            if i & 1 == 0: e(f"s_add_u32 s{S_T+1}, s{S_T}, {LB + (13*(t&1) + 4*(t>>1))*1352}")
            e(f"buffer_load_dwordx4 {vr(L1R+4*i,4)}, v26, {sr(S_WC)}, s{S_T+1} offen offset:{676*(i&1)}")
        else:
            e(f"s_lshr_b32 s{S_T+1}, s{S_J}, 1"); e(f"s_mul_i32 s{S_T+1}, s{S_T+1}, {13*1352}"); e(f"s_and_b32 s{S_T+2}, s{S_J}, 1"); e(f"s_mul_i32 s{S_T+2}, s{S_T+2}, 676")
            e(f"s_add_u32 s{S_T+1}, s{S_T+1}, s{S_T+2}"); e(f"s_add_u32 s{S_T+1}, s{S_T+1}, {LB + 12*1352}")
            e(f"buffer_load_dwordx4 {vr(L1R+4*i,4)}, v26, {sr(S_WC)}, s{S_T+1} offen")
    e("s_setprio 3")
    g.stamp("i")
    e("s_waitcnt vmcnt(13)")
    g.stamp("i")
    GR, MR = 68, 96
    for t in range(7):
        e(f"v_lshl_add_u32 v{I+t}, v{I+t}, 6, v{5 if t < 5 else 6}")
        e(f"buffer_load_dwordx4 {vr(GR+4*t,4)}, v{I+t}, {sr(S_TAB)}, 0 offen {PAR.gmod}")
    g.stamp(); g.stamp("i")
    e(f"s_setprio {PAR.cp}")
    if PAR.barpos == 1: e("s_barrier")
    def carrive(c):
        e("v_mov_b32 v2, 1"); e("s_mov_b64 exec, 1"); e(f"ds_add_u32 v25, v2 offset:{CNT[c]-M_CNT}"); e("s_mov_b64 exec, -1")
    for i in range(13):
        e(f"s_waitcnt vmcnt({7 + 12 - i})")
        unpack(g, DR, PA, L1R, i)
        if i & 1 and i >= 3: tmax(g, DR, (i >> 1) - 1, 16, i == 3)
    e(f"s_and_b32 s{S_T}, s{S_J}, 1"); e(f"s_lshl_b32 s{S_T}, s{S_T}, 4")
    tmax(g, DR, 5, 16, False)
    for r in range(4): e(f"v_alignbit_b32 v{L1R+48+r}, v{L1R+48+r}, v{L1R+48+r}, s{S_T}")
    tmax(g, DR, 6, 8, False)
    put_max(g, M_L1)
    carrive("L1M")
    for i in range(8): e(f"v_and_b32 v{PS+i}, 0x800080, v{PA+i}")
    g.stamp("s")
    e(f"s_setprio {PAR.cp2}")
    lwait(g, "L1M", 4, 25, 2)
    get_max(g, M_L1)
    e(f"v_readfirstlane_b32 s{S_T}, v1")
    e(f"s_lshr_b32 s{S_T}, s{S_T}, 23"); e(f"s_min_u32 s{S_T}, s{S_T}, 249"); e(f"s_sub_u32 s{S_HDR+2}, s{S_T}, 124")
    e(f"s_sub_u32 s{S_T}, {127+124}, s{S_T}")
    for i in range(8): e(f"v_mul_u32_u24 v{PS+i}, s{S_T}, v{PS+i}")
    def l1out(i):
        d = DR + 16 * ((i >> 1) & 3) + 8 * (i & 1)
        for r in range(4):
            lo, hi = (d + 2 * r + 1, d + 2 * r) if (i & 1) else (d + 2 * r, d + 2 * r + 1)
            e(f"v_cvt_pk_f16_f32 v{L1R+4*i+r}, v{lo}, v{hi}")
        if i < 12:
            t = i >> 1; o = 16 * (8 * (t >> 1) + 4 * (t & 1)) + 512 * (i & 1)
        else:
            e(f"s_lshr_b32 s{S_T}, s{S_J}, 1"); e(f"s_lshl_b32 s{S_T}, s{S_T}, 5"); e(f"s_and_b32 s{S_T+1}, s{S_J}, 1"); e(f"s_mul_i32 s{S_T+1}, s{S_T+1}, 496")
            e(f"s_add_u32 s{S_T}, s{S_T}, s{S_T+1}"); e(f"v_add_u32 v28, s{S_T}, v28"); o = 24 * 16
        e(f"ds_write_b128 v28, {vr(L1R+4*i,4)} offset:{o}")
    for i in range(13):
        unpack(g, DR, PS, L1R, i)
        if i >= 4: l1out(i - 4)
    for i in range(9, 13): l1out(i)
    g.stamp("s")
    e(f"ds_read_b32 v3, v25 offset:{CNT['S0OK']-M_CNT}")
    e("v_lshlrev_b32 v1, 4, v0")
    for i in range(2): e(f"ds_read_b128 {vr(AR+4*i,4)}, v1 offset:{BUFA + i*S0STR}")
    e("s_waitcnt lgkmcnt(2)")
    DR = 132
    e("v_mov_b32 v2, 1")
    e(f"s_setprio {PAR.xp}")
    for t in range(7):
        e(f"s_waitcnt vmcnt({6 - t})")
        unpack(g, DR, PA, GR, t)
        if not PAR.rawlate: e(f"ds_write_b128 v{7 if t < 5 else 18}, {vr(GR+4*t,4)} offset:{64*t}")
        if t in (3, 5): tmax(g, DR, (t >> 1) - 1, 16, t == 3, 20)
    def rawarr(): e("s_mov_b64 exec, 1"); e(f"ds_add_u32 v25, v2 offset:{CNT['RAW']-M_CNT}"); e("s_mov_b64 exec, -1")
    if not PAR.rawlate: rawarr()
    g.stamp(); g.stamp("s")
    tmax(g, DR, 2, 16, False, 20); tmax(g, DR, 3, 8, False, 20)
    for sh in (8, 4, 2, 1):
        e(f"v_max_u32_dpp v20, v20, v20 row_ror:{sh} {DPPALL}")
    e("v_lshrrev_b32 v20, 23, v20"); e("v_max_u32 v20, 4, v20")
    e(f"v_sub_u32 v22, {127+130}, v20"); e("v_lshlrev_b32 v22, 23, v22")
    for t in range(7):
        d = DR + 8 * t
        for i in range(8): e(f"v_mul_f32 v{d+i}, v{d+i}, v22")
        for i in range(4): e(f"v_cvt_pk_f16_f32 v{MR+4*t+i}, v{d+2*i}, v{d+2*i+1}")
        e(f"ds_write_b128 v{7 if t < 5 else 18}, {vr(MR+4*t,4)} offset:{D1 - D0 + 64*t}")
    for k in range(4):
        for t in range(7):
            e(f"ds_read_b64_tr_b16 {vr(X(k,2*t),2)}, v16 offset:{D1 - D0 + k*XSTR+t*256}")
    if PAR.rawlate:
        for t in range(7): e(f"ds_write_b128 v{7 if t < 5 else 18}, {vr(GR+4*t,4)} offset:{64*t}")
        rawarr()
    for k in range(4): e(f"v_readlane_b32 s{S_EX+k}, v20, {16*k}")
    HW = lambda l: S_HDR + 2 * l
    HD = lambda l: S_HDR + 2 * l + 1
    HQ, HL = S_HDR + 8, S_HDR + 9
    e("s_setprio 1")
    e(f"v_readfirstlane_b32 s{S_T}, v3"); e(f"s_cmp_ge_u32 s{S_T}, 4"); e("s_cbranch_scc1 L_s0ok")
    lwait(g, "S0OK", 4, 25, 2)
    for i in range(2): e(f"ds_read_b128 {vr(AR+4*i,4)}, v1 offset:{BUFA + i*S0STR}")
    g.lab("L_s0ok")
    e("s_waitcnt lgkmcnt(14)")
    g.stamp(); g.stamp("s")

    ready = set()
    def quad_prod(k, rho):
        p, q = QPAIRS[rho]
        return lambda d: f"v_pk_mul_f16 v{d}, v{X(k,p)}, v{X(k,q)} op_sel_hi:[0,1]"
    def gen_prod(l):
        def f(k, rho):
            r, p = divmod(rho, 13)
            def mk(d):
                if r == 13: return f"v_mov_b32 v{d}, v{U(k,p)}" if l == 2 else f"v_mov_b32 v{d}, 0"
                assert ('u', l, k, r) in ready, (l, k, r)
                if r & 1: return f"v_pk_mul_f16 v{d}, v{U(k,r>>1)}, v{X(k,p)} op_sel:[1,0] op_sel_hi:[1,1]"
                return f"v_pk_mul_f16 v{d}, v{U(k,r>>1)}, v{X(k,p)} op_sel_hi:[0,1]"
            return mk
        return f
    def lin_prod(k, t):
        b = 2 * t + 1 if 2 * t + 1 < 13 else 2 * t
        return lambda d: f"v_pack_b32_f16 v{d}, v{X(k,2*t)}, v{X(k,b)}"
    S_CL = S_C1
    e(f"s_mov_b32 s{S_CL}, {115 << 23}"); e(f"s_mov_b32 s{S_MASK}, 145"); e(f"s_lshl_b32 s{S_BO}, s{S_BO}, 16")
    def cvt1(acc, k, t): return f"v_cvt_pk_f16_f32 v{U(k,t)}, v{acc+16*k+2*t}, " + (f"v{acc+16*k+2*t+1}" if t < 6 else "0")
    def scl1(l, k, t): return [(f"v_pk_mul_f16 v{U(k,t)}, v{U(k,t)}, v{SC+k} op_sel_hi:[1,0]", ('u', l + 1, k, 2 * t)), (None, ('u', l + 1, k, 2 * t + 1))]
    def head(acc, l, k):
        a = acc + 16 * k; ef = EV(k) if l == 0 else TM + k
        return [f"v_max3_f32 v{SC+k}, |v{a}|, |v{a+1}|, |v{a+2}|", f"v_max3_f32 v{TM+k}, |v{a+3}|, |v{a+4}|, |v{a+5}|",
                f"v_max3_f32 v{SC+k}, v{SC+k}, |v{a+6}|, |v{a+7}|", f"v_max3_f32 v{TM+k}, v{TM+k}, |v{a+8}|, |v{a+9}|",
                f"v_max3_f32 v{SC+k}, v{SC+k}, |v{a+10}|, |v{a+11}|", f"v_max3_f32 v{SC+k}, v{SC+k}, v{TM+k}, |v{a+12}|",
                f"v_mov_b32 v{TM+k}, v{SC+k}", cvt1(acc, k, 0), cvt1(acc, k, 1),
                f"v_permlane32_swap_b32 v{SC+k}, v{TM+k}", f"v_max3_f32 v{SC+k}, v{SC+k}, v{TM+k}, s{S_CL}",
                f"v_lshrrev_b32 v{ef}, 23, v{SC+k}", f"v_sub_u32 v{SC+k}, s{S_MASK}, v{ef}", f"v_lshlrev_b32 v{SC+k}, 10, v{SC+k}"] + scl1(l, k, 0)
    def rest(acc, l):
        o = []
        for k in range(4): o += scl1(l, k, 1)
        for t in range(2, 7):
            o += [cvt1(acc, k, t) for k in range(4)]
            for k in range(4): o += scl1(l, k, t)
        return o
    def evup(l):
        return [(None, 'x', ('k', l))] + [f"v_add3_u32 v{EV(k)}, v{EV(k)}, v{TM+k}, s{S_K+k}" for k in range(4)] + [(None, ('ev', l))]
    state = dict(base=0, n=0)
    lq = []
    landed = set()
    def emit(x):
        if callable(x): return x() or 0
        if isinstance(x, tuple):
            if len(x) == 3: assert x[2] in ready, x
            ready.add(x[1]); x = x[0]
        if not x: return 0
        e(x)
        if x.startswith('ds_'): lq.append(['side', state['n']])
        return 2 if 'permlane' in x else 1
    GATE = 'GATE'
    import re
    def nbytes(x):
        if callable(x): return 0 if x.__name__ == '<lambda>' else 8
        if isinstance(x, tuple): x = x[0]
        if not x or x == GATE: return 0
        op = x.split()[0]
        lit = any(abs(int(t, 0)) > 64 for t in re.findall(r'(?<![\w\[:])(-?(?:0x[0-9a-f]+|\d+))(?![\w\]:.])', x.split(None, 1)[1]))
        short = op.startswith('s_') or op in ('v_mov_b32', 'v_mul_f32', 'v_add_f32', 'v_add_u32', 'v_sub_u32', 'v_lshrrev_b32', 'v_lshlrev_b32', 'v_and_b32',
                                              'v_permlane32_swap_b32', 'v_readfirstlane_b32', 'v_cmp_lt_u32', 'v_cndmask_b32', 'v_max_f32', 'v_fmac_f32')
        return 4 if short and not lit else 8
    jobs = []; frags = []; pos = {}
    def phase(name, nprod, prod, acc, base, stride=1024, ok=None, needs=None, skew0=False, skew1=False, extra=None):
        ns = (nprod + 3) // 4
        fr = [dict(lds=base + stride * s, ok=ok if s == 0 else None) for s in range(ns)]
        frags.extend(fr)
        order = [(s, k) for s in range(ns) for k in range(4)]
        if skew0: order[:8] = [(s, k) for k in range(4) for s in (0, 1)]
        if skew1: order[-8:] = [(s, k) for k in range(4) for s in (ns - 2, ns - 1)]
        for i, (s, k) in enumerate(order):
            if i % 4 == 0: pos[(name, i // 4)] = len(jobs)
            jobs.append(dict(acc=acc + 16 * k, fr=fr[s], zero=(s == 0), needs=needs if s == 0 else None, last=(name, k) if s == ns - 1 else None,
                             prods=[prod(k, rho) for rho in range(4 * s, min(4 * s + 4, nprod))], req=('u', int(name[1]), k, 0) if name[0] == 'L' and s == 0 else None))
            if extra and i % 4 == 3 and i // 4 in extra: jobs.extend(extra[i // 4])
    LT, LA = UR, UR + 16
    LP = [3, 8, 13, 18]
    LN = {LP[k]: [dict(acc=LT, a=LA + 4 * i, zero=(i == 0), needs=('lin', k - 1), last=('LN', k) if i else None, req=None,
                       prods=[lin_prod(k, t) for t in range(4 * i, min(4 * i + 4, 7))]) for i in range(2)] for k in range(4)}
    sk = PAR.skew
    phase("S0", 91, quad_prod, ACC, BUFA, stride=S0STR, skew1=sk)
    phase("L1", 172, gen_prod(1), ACC2, BUFB, stride=S0STR, ok="RAW", skew0=sk, skew1=sk)
    phase("L2", 176, gen_prod(2), ACC, BUFA, ok="L2OK", needs=('free', 0), skew0=sk, skew1=sk)
    phase("L3", 169, gen_prod(3), ACC2, BUFB, ok="L3OK", needs=('free', 1), skew0=sk)
    phase("Q4", 91, quad_prod, ACC, QB, ok="QOK", needs=('free', 2), skew1=sk, extra=LN)
    for i, f in enumerate(frags): f['id'] = i; f['a'] = AR + 4 * (i % 4)
    for n, j in enumerate(jobs):
        if 'fr' in j: j['fr'].setdefault('first', n); j['fr']['lastj'] = n
    def hdr(addr, sa, sb=None):
        return [f"v_mov_b32 v3, {addr}", "ds_read_b64 v[2:3], v3", GATE, f"v_readfirstlane_b32 s{sa}, v2"] + ([f"v_readfirstlane_b32 s{sb}, v3"] if sb else [])
    def arrive(c, after=None):
        def f():
            if after is not None: assert 'issued' in after
            e(f"v_add_u32 v3, {(CNT[c] - state['base']) & 0xffffffff}, v1"); return 1
        return ["v_mov_b32 v2, 1", f, "ds_add_u32 v3, v2"]
    def check(c):
        def f():
            slow = g.newlab("cs"); back = g.newlab("cb"); top = g.newlab("ct")
            if c != "RAW": g.stamp("w")
            e(f"s_cmp_lt_u32 s{S_T+2}, 4"); e(f"s_cbranch_scc1 {slow}")
            g.lab(back)
            if c != "RAW": g.stamp("w")
            g.tail += [slow + ":", f"    s_mov_b32 s{S_T+1}, {SPIN*8}", top + ":", "    s_sleep 1", "    ds_read_b32 v2, v3", "    s_waitcnt lgkmcnt(0)",
                       f"    v_readfirstlane_b32 s{S_T+2}, v2", f"    s_cmp_ge_u32 s{S_T+2}, 4", f"    s_cbranch_scc1 {back}",
                       f"    s_sub_u32 s{S_T+1}, s{S_T+1}, 1", f"    s_cbranch_scc0 {top}", f"    s_branch {back}"]
            ready.add(c); return 2
        return [f"v_mov_b32 v3, {CNT[c]}", "ds_read_b32 v2, v3", GATE, f"v_readfirstlane_b32 s{S_T+2}, v2", f]
    def stp(n=None): return [lambda: g.stamp(n)]
    HOFF = 29 * 16
    PV, PA = 2, 3
    def pload():
        e(f"buffer_load_dword v{PV}, v{PA}, {sr(S_WS)}, s{S_T+3} offen sc1"); return 1
    kc1 = [f"s_add_u32 s{S_T}, s{HW(0)}, s{HW(1)}", f"s_add_u32 s{S_T}, s{S_T}, s{HD(2)}", f"s_sub_u32 s{S_T}, s{S_T}, 780"]
    kc1 += [f"s_lshl2_add_u32 s{S_K+k}, s{S_EX+k}, s{S_T}" for k in range(4)] + [(None, ('k', 1))]
    k1 = [f"s_sub_u32 s{S_T}, s{HD(1)}, s{HD(2)}", f"s_add_u32 s{S_T}, s{S_T}, 130"] + [f"s_sub_u32 s{S_K1+k}, s{S_T}, s{S_EX+k}" for k in range(4)] + [(None, 'k1')]
    kc2 = [(None, 'x', ('ev', 1)), f"s_sub_u32 s{S_T}, s{HW(2)}, s{HD(2)}", f"s_add_u32 s{S_T}, s{S_T}, s{HD(3)}", f"s_sub_u32 s{S_T}, s{S_T}, 260"]
    kc2 += [f"s_add_u32 s{S_K+k}, s{S_T}, s{S_EX+k}" for k in range(4)] + [(None, ('k', 2))]
    dots = [(None, 'x', 'k1')]
    for k in range(4): dots.append(f"v_ldexp_f32 v{ACC+16*k+15}, v{ACC+16*k+15}, v{EV(k)}")
    for k in range(4): dots.append(f"v_add_u32 v{ACC+16*k+13}, s{S_K1+k}, v{EV(k)}")
    for k in range(4): dots.append(f"v_ldexp_f32 v{ACC+16*k+14}, v{ACC+16*k+14}, v{ACC+16*k+13}")
    for k in range(4): dots.append(f"v_add_f32 v{LG+k}, v{ACC+16*k+14}, v{ACC+16*k+15}")
    kf = [(None, 'x', ('ev', 2)), f"s_sub_u32 s{S_T}, s{HW(3)}, s{HD(3)}", f"s_sub_u32 s{S_T}, s{S_T}, 130", f"s_add_u32 s{HL}, s{HL}, s{S_T}", f"s_add_u32 s{HQ}, s{HQ}, s{S_T}",
          f"s_sub_u32 s{HQ}, s{HQ}, 130", f"s_sub_u32 s{HD(0)}, s{HD(0)}, 260"]
    for k in range(4):
        kf += [f"s_add_u32 s{S_K1+k}, s{HL}, s{S_EX+k}", f"s_lshl1_add_u32 s{S_K+k}, s{S_EX+k}, s{HQ}", f"s_lshl1_add_u32 s{S_KC+k}, s{S_EX+k}, s{HD(0)}"]
    kf.append((None, 'kf'))
    pre = ["v_bfe_u32 v2, v0, 4, 1", "v_lshrrev_b32 v3, 5, v0", "v_lshl_add_u32 v2, v2, 1, v3", "v_and_b32 v3, 15, v0", f"v_cmp_lt_u32 vcc, {NR-1}, v3",
           "v_lshlrev_b32 v3, 10, v3", "v_lshl_add_u32 v3, v2, 2, v3", f"v_mov_b32 v2, {OOB}", "v_cndmask_b32 v3, v3, v2, vcc",
           f"s_mul_i32 s{S_T+3}, s{S_G}, {NR*1024}", f"s_and_b32 s{S_T}, s{S_SB}, 255", f"s_lshl_b32 s{S_T}, s{S_T}, 2",
           f"s_add_u32 s{S_T+3}, s{S_T+3}, s{S_T}", f"s_add_u32 s{S_T+3}, s{S_T+3}, {WS_PART}"]
    def lread():
        for i in range(2): emit(f"ds_read_b128 {vr(LA+4*i,4)}, v1 offset:{QB + (24 + i)*1024 - state['base']}")
        return 2
    BO = ACC2 + 14
    d3 = [f"v_ldexp_f32 v{ACC2+16*k+15}, v{ACC2+16*k+15}, v{EV(k)}" for k in range(4)] + [f"v_add_f32 v{LG+k}, v{LG+k}, v{ACC2+16*k+15}" for k in range(4)]
    if PAR.otouch: d3 += [f"s_lshl_b32 s{S_J}, s{S_SB}, 1", f"buffer_load_ushort v{BO+16}, v{BO-1}, {sr(S_OUT)}, s{S_J} offen"]
    fill = {("L1", 2): rest(ACC, 0) + [(None, ('free', 0))], ("L2", 2): rest(ACC2, 1) + [(None, ('free', 1))], ("L2", 16): evup(1),
            ("L3", 2): rest(ACC, 2) + dots + [(None, ('free', 2))] + evup(2), ("Q4", 1): d3}
    for k in range(4):
        o = [f"v_mul_f32 v{SC+k}, v{LT}, v{ACC2+16*k}"] + [f"v_fmac_f32 v{SC+k}, v{LT+r}, v{ACC2+16*k+r}" for r in range(1, 13)] + [(None, ('lin', k)), (None, 'x', 'kf')]
        o += [f"v_add_u32 v{TM+k}, s{S_K1+k}, v{EV(k)}", f"v_ldexp_f32 v{SC+k}, v{SC+k}, v{TM+k}", f"v_add_u32 v{TM+k}, s{S_K+k}, v{EV(k)}", f"v_add_f32 v{LG+k}, v{LG+k}, v{SC+k}", (None, ('lind', k))]
        fill[("Q4", LP[k] + 2)] = o
    def final(k):
        return ([(None, 'x', ('lind', k)), f"v_mul_f32 v{SC+k}, v{ACC+16*k}, v{ACC2+16*k}", f"v_ldexp_f32 v{ACC+16*k+15}, v{ACC+16*k+15}, s{S_KC+k}"]
                + [f"v_fmac_f32 v{SC+k}, v{ACC+16*k+r}, v{ACC2+16*k+r}" for r in range(1, 13)]
                + [f"v_add_f32 v{LG+k}, v{LG+k}, v{ACC+16*k+15}", f"v_ldexp_f32 v{SC+k}, v{SC+k}, v{TM+k}", f"v_add_f32 v{LG+k}, v{LG+k}, v{SC+k}"])
    urgent = {}
    for k in range(4):
        urgent[("S0", k)] = head(ACC, 0, k); urgent[("L1", k)] = head(ACC2, 1, k); urgent[("L2", k)] = head(ACC, 2, k); urgent[("Q4", k)] = final(k)
    side = {("S0", 0): arrive("RB"), ("S0", 2): hdr(BUFA + 23 * S0STR + 512, HW(0)), ("S0", 14): check("RAW"), ("S0", 21): arrive("AFREE", frags[22]),
            ("S0", 8): ["s_setprio 2"], PAR.drop: ["s_setprio 0"],
            ("L1", 0): stp(), ("L1", 35): check("L2OK"), ("L1", 41): arrive("BFREE", frags[65]),
            ("L2", 0): stp(), ("L2", 4): hdr(BUFA + HOFF, HW(2), HD(2)) + kc1 + hdr(BUFA + HOFF + 8, HD(1)) + k1, ("L2", 36): check("L3OK"),
            ("L3", 12): hdr(BUFB + HOFF, HW(3), HD(3)) + kc2,
            ("L3", 43 - PAR.qchk): check("QOK") + hdr(QB + 23 * 1024, HQ, HL) + hdr(QB + 23 * 1024 + 8, HD(0)),
            ("Q4", 0): [lread, GATE, (None, ('lin', -1))] + kf, ("Q4", 9): pre[:7], ("Q4", 14): pre[7:], ("Q4", PAR.pload): [pload]}
    rates = {("S0", 0): PAR.rate, ("L1", 0): PAR.l1rate, ("L2", 0): 32, ("L3", 0): PAR.l3rate, ("Q4", 0): PAR.qrate}
    fill = {pos[k]: v for k, v in fill.items()}; side = {pos[k]: v for k, v in side.items()}; rates = {pos[k]: v for k, v in rates.items()}
    frags[0]['issued'] = frags[1]['issued'] = True
    nfr = 2; fq = []; sq = []; uq = []; credit = 0; gated = False
    def prods(n):
        job = jobs[n]; job['b'] = BR + 4 * (n % 3)
        while job['req'] and job['req'] not in ready: emit(uq.pop(0)[1])
        return [p(job['b'] + i) for i, p in enumerate(job['prods'])]
    for n in range(2):
        for x in prods(n): e(x)
    e(f"s_waitcnt lgkmcnt({0})"); landed |= {0, 1}
    for n, job in enumerate(jobs):
        state['n'] = n
        fq += fill.get(n, []); sq += side.get(n, []); rate = rates.get(n, rate if n else None)
        budget = 6
        if 'fr' in job and job['fr']['id'] not in landed:
            idx = max(i for i, (t, at) in enumerate(lq) if t == job['fr']['id'] or at <= n - 3)
            e(f"s_waitcnt lgkmcnt({len(lq) - 1 - idx})")
            landed |= {t for t, at in lq[:idx + 1]}; del lq[:idx + 1]
        if job['needs']: assert job['needs'] in ready, job['needs']
        c = "0" if job['zero'] else vr(job['acc'], 16)
        e(f"v_mfma_f32_32x32x16_f16 {vr(job['acc'],16)}, {vr(job['a'] if 'a' in job else job['fr']['a'],4)}, {vr(job['b'],4)}, {c}")
        if job['last'] in urgent: uq += [(n + 2, x) for x in urgent[job['last']]]
        if nfr < len(frags) and frags[nfr]['first'] - n <= PAR.la and (nfr < 4 or frags[nfr - 4]['lastj'] < n):
            f = frags[nfr]; nfr += 1; f['issued'] = True
            if f['ok']: assert f['ok'] in ready, f['ok']
            r = f['lds'] - state['base']
            if r < 0 or r > 65535:
                e(f"v_add_u32 v1, {r & 0xffffffff}, v1"); state['base'] = f['lds']; r = 0; budget -= 1
            e(f"ds_read_b128 {vr(f['a'],4)}, v1 offset:{r}"); lq.append([f['id'], n]); budget -= 1
        u = PAR.urate
        while uq and uq[0][0] <= n and u > 0: c = emit(uq.pop(0)[1]); u -= c; budget -= c
        if n + 2 < len(jobs):
            ps = prods(n + 2)
            for x in ps: e(x)
            budget -= len(ps)
            credit += sum(8 - nbytes(p) for p in ps) + 8 * (4 - len(ps))
        credit = min(credit + rate / 4, 16)
        while sq:
            if sq[0] == GATE:
                if any(t == 'side' for t, at in lq): break
                sq.pop(0); continue
            if not ((budget > 0 and credit >= nbytes(sq[0])) or nbytes(sq[0]) == 0): break
            x = sq.pop(0); budget -= emit(x); credit -= nbytes(x)
        while fq and ((budget > 0 and credit >= nbytes(fq[0])) or nbytes(fq[0]) == 0):
            x = fq.pop(0); budget -= emit(x); credit -= nbytes(x)
    assert not sq and not fq, (sq, fq)
    g.stamp()
    for at, x in uq: emit(x)
    e(f"v_permlane32_swap_b32 v{LG}, v{LG+1}"); e(f"v_permlane32_swap_b32 v{LG+2}, v{LG+3}")
    e(f"v_add_f32 v{LG}, v{LG}, v{LG+1}"); e(f"v_add_f32 v{LG+2}, v{LG+2}, v{LG+3}")
    e(f"v_permlane16_swap_b32 v{LG}, v{LG+2}")
    e(f"v_add_f32 v{LG}, v{LG}, v{LG+2}")
    e(f"s_mov_b32 s{S_T}, {SPIN}")
    g.lab("L_pcheck")
    e("s_waitcnt vmcnt(0)")
    e(f"v_cmp_eq_u32 vcc, -1, v{PV}")
    e("s_nop 1")
    e("s_cbranch_vccz L_pok")
    e("s_sleep 4")
    pload()
    e(f"s_sub_u32 s{S_T}, s{S_T}, 1")
    e("s_cbranch_scc0 L_pcheck")
    e("s_waitcnt vmcnt(0)")
    g.lab("L_pok")
    e(f"v_add_f32 v{LG}, v{LG}, v{PV}")
    for sh in (8, 4, 2, 1):
        e(f"v_add_f32_dpp v{LG}, v{LG}, v{LG} row_ror:{sh} {DPPALL}")
    e(f"v_add_f32 v{LG}, s{S_BO}, v{LG}")
    e(f"v_cvt_pk_bf16_f32 v{LG}, v{LG}, v{LG}")
    e(f"v_lshrrev_b32 v{PA}, 1, v{PA}")
    e(f"v_cmp_lt_u32 vcc, 7, v{PA}")
    e(f"v_mov_b32 v2, {OOB}")
    e(f"v_cndmask_b32 v{PA}, v{PA}, v2, vcc")
    e(f"s_lshl_b32 s{S_T}, s{S_SB}, 1")
    e(f"buffer_store_short v{LG}, v{PA}, {sr(S_OUT)}, s{S_T} offen")
    g.stamp(); g.stamp("e")
    if PAR.enc is not None:
        e("s_waitcnt lgkmcnt(0)")
        if PAR.gmin:
            e(f"s_not_b32 s{S_T}, s{S_ST}"); e(f"v_mov_b32 v4, s{S_T}"); e("v_mov_b32 v5, 0"); e("s_mov_b64 exec, 1")
            e(f"buffer_atomic_umax v4, v5, {sr(S_DBG)}, 0 offen offset:192 sc1"); e("s_waitcnt vmcnt(0)")
            g.lab("L_enc0")
            e(f"s_memrealtime s[{S_T+2}:{S_T+3}]"); e("s_waitcnt lgkmcnt(0)")
            e(f"s_sub_u32 s{S_T+2}, s{S_T+2}, s{S_ST}"); e(f"s_cmp_lt_u32 s{S_T+2}, 5000"); e("s_cbranch_scc1 L_enc0")
            e(f"buffer_load_dword v4, v5, {sr(S_DBG)}, 0 offen offset:192 sc1"); e("s_waitcnt vmcnt(0)"); e("s_mov_b64 exec, -1")
            if PAR.encsel: e(f"s_mov_b32 s{S_ST+2*PAR.enc}, s{S_ST}")
            e(f"v_readfirstlane_b32 s{S_ST}, v4"); e(f"s_not_b32 s{S_ST}, s{S_ST}")
        e(f"s_sub_u32 s{S_T}, s{S_ST+2*PAR.enc}, s{S_ST+2*PAR.encb}"); e(f"s_lshl_b32 s{S_T}, s{S_T}, {PAR.encsh}");
        if PAR.encsel:
            e(f"s_lshl_b32 s{S_T}, s{S_T}, 2"); e(f"s_and_b32 s{S_T+1}, s2, {PAR.encsel[0]}"); e(f"s_cmp_eq_u32 s{S_T+1}, {PAR.encsel[1]}")
        else: e(f"s_cmp_lt_u32 s{S_R}, {NR}")
        e(f"s_cselect_b32 s{S_T}, s{S_T}, 0"); e(f"s_add_u32 s{S_T}, s{S_T}, 6000")
        g.lab("L_enc")
        e(f"s_memrealtime s[{S_T+2}:{S_T+3}]"); e("s_waitcnt lgkmcnt(0)")
        e(f"s_sub_u32 s{S_T+2}, s{S_T+2}, s{S_ST}"); e(f"s_cmp_lt_u32 s{S_T+2}, s{S_T}"); e("s_cbranch_scc1 L_enc")
    g.flush_stamps(4, 5)
    e("s_endpgm")

HACC, HX, HW_ = 4, 68, 208
V_TR0, V_TR1, V_DMA, V_WSRC, V_H16, V_L0, V_HROW, V_CNT = 248, 249, 250, 251, 252, 253, 254, 255
ID, QA, QSH, QS, W0R, PK = 4, 12, 19, 20, 180, 236
L1R, BT = 180, 60
S_WP, S_L, S_FR, S_E0, S_E1, S_E2, S_PO, S_CX = 48, 49, 50, 51, 52, 53, 54, 55
S_LC = 56
S_E3, S_XB = 60, 61
def dma_img(g, name, nfr, lds, first=0, part=None):
    e = g.e; per = nfr // 4
    va = V_DMA
    if name == "Q4":
        va = 1
        e("v_and_b32 v1, 31, v0"); e("v_subrev_u32 v1, 29, v1"); e("v_cmp_gt_u32 vcc, 2, v1"); e(f"v_mov_b32 v1, {OOB}"); e(f"v_cndmask_b32 v1, v{V_DMA}, v1, vcc")
    e(f"s_mul_i32 s{S_T}, s{S_J}, {per*1024}")
    i0, i1 = part or (0, per)
    for i in range(i0, min(i1, per)):
        if (i - i0) % 4 == 0:
            e(f"s_add_u32 s{S_T+1}, s{S_T}, {IMG[name] + (first + i)*1024}")
            e(f"s_add_u32 m0, s{S_T}, {lds + i*1024}")
        g.vm(f"buffer_load_dwordx4 v{va}, {sr(S_WS)}, s{S_T+1} offen offset:{((i - i0)%4)*1024} {PAR.ld} lds", name)
def poll(g, checks, pre=None):
    e = g.e
    done = g.newlab("pd"); top = g.newlab("pt"); slp = g.newlab("ps"); tst = g.newlab("pc")
    regs = pre or [2 + i for i in range(len(checks))]
    e(f"s_mov_b32 s{S_T}, {SPIN}")
    if pre: e(f"s_branch {tst}")
    g.lab(top)
    for r, (srd, so, o, n) in zip(regs, checks):
        e(f"buffer_load_dword v{r}, v{V_L0}, {sr(srd)}, {so} offen offset:{o} sc1")
    e("s_waitcnt vmcnt(0)")
    g.lab(tst)
    for r, (srd, so, o, n) in zip(regs, checks):
        e(f"v_readfirstlane_b32 s{S_T+1}, v{r}")
        e(f"s_cmp_lt_u32 s{S_T+1}, {n}")
        e(f"s_cbranch_scc1 {slp}")
    g.lab(done)
    g.tail += [slp + ":", f"    s_sleep {PAR.slp}", f"    s_sub_u32 s{S_T}, s{S_T}, 1", f"    s_cbranch_scc0 {top}", f"    s_branch {done}"]
def poll1(g, checks, flag, pre=None):
    lb = g.newlab("p1")
    g.e(f"s_cmp_lg_u32 s{S_J}, 0"); g.e(f"s_cbranch_scc1 {lb}")
    poll(g, checks, pre)
    arrive(g, flag)
    g.lab(lb)
    lwait(g, flag, 1)
def presample(g, checks, regs, tag):
    for r, (srd, so, o, n) in zip(regs, checks):
        g.vm(f"buffer_load_dword v{r}, v{V_L0}, {sr(srd)}, {so} offen offset:{o} sc1", tag)
def arrive(g, *cs):
    e = g.e
    e("v_mov_b32 v1, 1"); e("s_mov_b64 exec, 1")
    for c in cs: e(f"ds_add_u32 v{V_CNT}, v1 offset:{CNT[c]-M_CNT}")
    e("s_mov_b64 exec, -1")
def unpack_mat(g, PA, t):
    e = g.e
    e(f"v_and_b32 v{t}, 1, v0"); e(f"v_lshlrev_b32 v{t}, 4, v{t}"); e(f"v_mov_b32 v{t+1}, 0x3f80"); e(f"v_lshlrev_b32 v{t+1}, v{t}, v{t+1}")
    e(f"v_lshrrev_b32 v{t+2}, 3, v0"); e(f"v_xor_b32 v{t+2}, v{t+2}, v0"); e(f"v_and_b32 v{t+2}, 4, v{t+2}")
    e(f"v_bfe_u32 v{t}, v0, 3, 2"); e(f"v_bfe_u32 v{t+3}, v0, 1, 1"); e(f"v_lshl_add_u32 v{t}, v{t}, 1, v{t+3}"); e(f"v_lshl_add_u32 v{t}, v{t+2}, 3, v{t}")
    for i in range(8):
        e(f"v_cmp_eq_u32 vcc, {i}, v{t}"); e(f"v_cndmask_b32 v{PA+i}, 0, v{t+1}, vcc")
def unpack(g, DR, pa, src, i):
    d = DR + 16 * ((i >> 1) & 3)
    g.e(f"v_mfma_f32_32x32x16_bf16 {vr(d,16)}, {vr(pa+4*(i&1),4)}, {vr(src+4*i,4)}, {vr(d,16) if i & 1 else '0'}")
def tmax(g, DR, tile, n, first, mv=1):
    d = DR + 16 * (tile & 3)
    for q in range(n // 2):
        if first and q == 0: g.e(f"v_max_f32 v{mv}, |v{d}|, |v{d+1}|")
        else: g.e(f"v_max3_f32 v{mv}, v{mv}, |v{d+2*q}|, |v{d+2*q+1}|")
def lwait(g, c, n=4, va=None, vd=1):
    e = g.e; top = g.newlab("lw"); done = g.newlab("ld")
    e(f"s_mov_b32 s{S_T}, {SPIN*8}")
    g.lab(top)
    e(f"ds_read_b32 v{vd}, v{va or V_CNT} offset:{CNT[c]-M_CNT}"); e("s_waitcnt lgkmcnt(0)")
    e(f"v_readfirstlane_b32 s{S_T+1}, v{vd}"); e(f"s_cmp_ge_u32 s{S_T+1}, {n}"); e(f"s_cbranch_scc1 {done}")
    e(f"s_sleep {PAR.lslp if c in ('FX', 'F2', 'F3', 'FQ', 'AFREE', 'BFREE', 'XST') else 1}"); e(f"s_sub_u32 s{S_T}, s{S_T}, 1"); e(f"s_cbranch_scc0 {top}")
    g.lab(done)
def rowmax(g, v, op="v_max_u32_dpp"):
    for sh in (8, 4, 2, 1): g.e(f"{op} v{v}, v{v}, v{v} row_ror:{sh} {DPPALL}")
def wavemax_exp(g, v, sdst):
    e = g.e
    rowmax(g, v)
    e(f"v_readlane_b32 s{sdst}, v{v}, 0"); e(f"v_readlane_b32 s{S_T}, v{v}, 16"); e(f"s_max_u32 s{sdst}, s{sdst}, s{S_T}")
    e(f"v_readlane_b32 s{S_T}, v{v}, 32"); e(f"s_max_u32 s{sdst}, s{sdst}, s{S_T}")
    e(f"v_readlane_b32 s{S_T}, v{v}, 48"); e(f"s_max_u32 s{sdst}, s{sdst}, s{S_T}")
    e(f"s_lshr_b32 s{sdst}, s{sdst}, 23"); e(f"s_sub_u32 s{sdst}, s{sdst}, 126")
def put_max(g, slot):
    e = g.e
    rowmax(g, 1)
    e("v_lshrrev_b32 v2, 4, v0"); e(f"s_lshl_b32 s{S_T}, s{S_J}, 4"); e(f"s_add_u32 s{S_T}, s{S_T}, {slot}")
    e(f"v_lshl_add_u32 v2, v2, 2, s{S_T}")
    e("ds_write_b32 v2, v1")
def get_max(g, slot):
    e = g.e
    e("v_and_b32 v2, 15, v0"); e("v_lshlrev_b32 v2, 2, v2"); e(f"v_add_u32 v2, {slot}, v2")
    e("ds_read_b32 v1, v2"); e("s_waitcnt lgkmcnt(0)")
    rowmax(g, 1)
def pkmax(g, regs):
    e = g.e
    e(f"v_pk_max_u16 v1, v{regs[0]}, v{regs[1]}"); e(f"v_pk_max_u16 v3, v{regs[2]}, v{regs[3]}")
    for i, r in enumerate(regs[4:]): e(f"v_pk_max_u16 v{1 + 2*(i&1)}, v{1 + 2*(i&1)}, v{r}")
    e("v_pk_max_u16 v1, v1, v3"); e("v_alignbit_b32 v3, v1, v1, 16"); e("v_pk_max_u16 v1, v1, v3")
def pack_round(g, acc, off, pk=True):
    e = g.e
    if PAR.pkpack and pk:
        for t in range(7):
            q = QS + t; sel = q & 1
            e(f"v_pk_mul_f32 {vr(acc+2*t,2)}, {vr(acc+2*t,2)}, {vr(q - sel,2)} op_sel:[0,{sel}] op_sel_hi:[1,{sel}]")
    else:
        for t in range(14): e(f"v_mul_f32 v{acc+t}, v{acc+t}, v{QS+(t>>1)}")
    for t in range(7): e(f"v_cvt_pk_f16_f32 v{PK+t}, v{acc+2*t}, v{acc+2*t+1}")
    for t in range(7): e(f"v_alignbit_b32 v{PK+t}, v{PK+t}, v{PK+t}, v{QSH}")
    for t in range(7): e(f"ds_write_b32 v{QA+t}, v{PK+t} offset:{off}")
def s0_max(g, t):
    a = HX + 16 * t
    for i in range(7):
        if t == 0 and i == 0: g.e(f"v_max_f32 v1, |v{a}|, |v{a+1}|")
        else: g.e(f"v_max3_f32 v1, v1, |v{a+2*i}|, |v{a+2*i+1}|")
F0 = lambda c: sum(PAR.chunks[:c])
S_ROT = 64
S_SCN, S_XC = 68, 69
S_RA = 66
def call_if(g, cond, target):
    lb = g.newlab('nc')
    for c in cond: g.e(c[0]); g.e(f'{c[1]} {lb}')
    g.e(f's_call_b64 s[{S_RA}:{S_RA+1}], {target}')
    g.lab(lb)
RET = f's_setpc_b64 s[{S_RA}:{S_RA+1}]'
def EARLY(): return [(f's_cmp_lt_u32 s{S_WP}, {PAR.gearly}', 's_cbranch_scc0')]
def LATE(): return [(f's_cmp_lt_u32 s{S_WP}, {PAR.gearly}', 's_cbranch_scc1'), (f's_cmp_ge_u32 s{S_WP}, 31', 's_cbranch_scc1')]
def rotf(g, f, sd):
    g.e(f"s_add_u32 s{sd}, s{S_ROT}, {f}"); g.e(f"s_sub_u32 s{S_ROT+1}, s{sd}, 26"); g.e(f"s_min_u32 s{sd}, s{sd}, s{S_ROT+1}")
def colvec(g, srd, dst, tag):
    g.e("v_lshrrev_b32 v1, 4, v0"); g.e("v_lshlrev_b32 v1, 3, v1")
    for a in range(4):
        g.e(f"s_xor_b32 s{S_T}, s{S_XC}, {32*a}"); g.e(f"s_add_u32 s{S_T}, s{S_T}, s{S_SB}")
        g.vm(f"buffer_load_dwordx2 {vr(dst+2*a,2)}, v1, {sr(srd)}, s{S_T} offen", tag)
def dma_w(g, f0, f1, tag):
    e = g.e
    e(f"s_lshl_b32 s{S_T}, s{S_J}, 10")
    for f in range(f0, f1):
        e(f"s_add_u32 m0, s{S_T}, {D0 + (f % 16)*4096}")
        rotf(g, f, S_T + 1); e(f"s_mul_i32 s{S_T+1}, s{S_T+1}, 53248")
        g.vm(f"buffer_load_dwordx4 v{V_WSRC}, {sr(S_W1)}, s{S_T+1} offen {PAR.wmod} lds", tag)
CHK_X = lambda: (S_WS, f"s{S_CX}", C_XR, 1)
def helper_common(g):
    e = g.e
    e("s_setprio 2")
    e(f"s_sub_u32 s{S_J}, s{S_WAVE}, 4")
    e("v_and_b32 v2, 31, v0"); e("v_lshrrev_b32 v3, 5, v0")
    e(f"v_lshlrev_b32 v{V_H16}, 4, v3")
    e("v_lshrrev_b32 v4, 3, v2"); e("v_and_b32 v6, 3, v2"); e("v_lshl_add_u32 v4, v4, 2, v6")
    e("v_bfe_u32 v6, v2, 2, 1"); e(f"v_mad_u32_u24 v{V_HROW}, v6, 13, v4")
    e("v_cmp_lt_u32 vcc, 12, v4"); e("v_mov_b32 v7, 0x100000"); e(f"v_cndmask_b32 v{V_HROW}, v{V_HROW}, v7, vcc")
    e("v_mul_u32_u24 v4, 676, v3"); e(f"s_movk_i32 s{S_T+1}, 1352"); e(f"v_mad_u32_u24 v243, v{V_HROW}, s{S_T+1}, v4")
    def qaset():
        e("v_lshrrev_b32 v27, 1, v2"); e("v_and_b32 v28, 1, v2"); e(f"v_lshlrev_b32 v{QSH}, 4, v28")
        e("v_sub_u32 v29, 25, v27"); e("v_mul_u32_u24 v29, v29, v27"); e("v_lshrrev_b32 v29, 1, v29")
        e(f"s_lshl_b32 s{S_T}, s{S_J}, 4")
        e(f"v_lshl_add_u32 v28, v28, 9, s{S_T}")
        e(f"v_lshl_add_u32 v30, v0, 2, s{S_T}"); e(f"v_add_u32 v30, {BUFA + 24*S0STR}, v30")
        e("v_mov_b32 v33, 0.5")
        for t in range(7):
            qb = 4 * (t >> 1) + (t & 1)
            e(f"v_lshl_add_u32 v31, v3, 1, {qb}")
            e("v_add_u32 v32, v29, v31")
            e(f"v_lshrrev_b32 v{QA+t}, 2, v32"); e(f"v_mul_u32_u24 v{QA+t}, {S0STR}, v{QA+t}")
            e("v_and_b32 v32, 3, v32"); e("v_lshl_add_u32 v32, v32, 2, v28"); e(f"v_add_u32 v{QA+t}, v{QA+t}, v32")
            e("v_cmp_lt_u32 vcc, v31, v27")
            if t == 6:
                e("v_cmp_lt_u32 s[72:73], 12, v31"); e("s_or_b64 vcc, vcc, s[72:73]")
            e(f"v_cndmask_b32 v{QA+t}, v{QA+t}, v30, vcc")
            e("v_cmp_eq_u32 vcc, v31, v27"); e(f"v_cndmask_b32 v{QS+t}, 1.0, v33, vcc")
        e("v_lshlrev_b32 v31, 3, v3"); e("v_sub_u32 v31, v2, v31")
        e("v_mov_b32 v32, 0x3f80"); e(f"v_lshlrev_b32 v32, v{QSH}, v32")
        e("v_lshrrev_b32 v31, 1, v31")
        for s in range(2):
            for i in range(4):
                e(f"v_cmp_eq_u32 vcc, {8*s+i}, v31"); e(f"v_cndmask_b32 v{ID+4*s+i}, 0, v32, vcc")
    if PAR.qaearly: qaset()
    HS = [S_WC, S_WS, S_WO, S_W1, S_B1, S_W2, S_DBG]
    srd_const(g, HS)
    e("s_waitcnt lgkmcnt(0)")
    srd_base(g, HS)
    e(f"s_mov_b64 s[{S_LC}:{S_LC+1}], s[{S_WC}:{S_WC+1}]"); e(f"s_mov_b32 s{S_LC+3}, 0x00020000"); e(f"s_mov_b32 s{S_LC+2}, {2*LB}")
    e(f"s_cmp_lt_u32 s{S_R}, {NR}"); e(f"s_cselect_b32 s{S_WP}, 63, s{S_G}"); e(f"s_mov_b32 s{S_SCN}, 0")
    e(f"s_mul_i32 s{S_CX}, s{S_G}, {PAR.cstr}"); e(f"s_add_u32 s{S_CX}, s{S_CX}, {WS_CNT}")
    if PAR.wpf:
        e(f"s_cmp_lg_u32 s{S_J}, 0"); e("s_cbranch_scc1 L_nowpf")
        e(f"s_mov_b32 s{S_WC+2}, {6*LB}"); e(f"s_lshr_b32 s{S_T}, s2, 3"); e(f"s_lshl_b32 s{S_T}, s{S_T}, 7")
        e("v_lshlrev_b32 v1, 12, v0")
        if PAR.wpf == 1: e(f"buffer_load_dword v247, v1, {sr(S_WC)}, s{S_T} offen")
        e(f"s_mov_b32 s{S_WC+2}, {LB}")
        e(f"s_cmp_lt_u32 s{S_R}, {NR}"); e("s_cbranch_scc1 L_nowpf")
        for i in range(4): e(f"v_mov_b32 v{36+i}, 0")
        e("v_lshlrev_b32 v35, 8, v0"); e("v_cmp_lt_u32 vcc, 2, v0"); e(f"v_mov_b32 v34, {OOB}"); e("v_cndmask_b32 v35, v35, v34, vcc")
        e(f"buffer_store_dwordx4 v[36:39], v35, {sr(S_WS)}, s{S_CX} offen sc1")
        g.lab("L_nowpf")
    g.stamp("g")
    call_if(g, EARLY(), "L_pe1")
    g.stamp("g")
    e("v_and_b32 v2, 31, v0"); e("v_lshrrev_b32 v3, 5, v0")
    e(f"v_mad_u32_u24 v1, v2, 52, v{V_H16}")
    if PAR.w0lin: e("v_lshlrev_b32 v1, 4, v0")
    e(f"s_mul_i32 s{S_T}, s{S_J}, 1352")
    for t in range(7):
        if t < 6: e(f"s_add_u32 s{S_T+1}, s{S_T}, {(13*(t&1) + 4*(t>>1))*1352}")
        else:
            e(f"s_mul_i32 s{S_T+1}, s{S_J}, {13*1352}"); e(f"s_add_u32 s{S_T+1}, s{S_T+1}, {12*1352}")
        for s in range(2):
            g.vm(f"buffer_load_dwordx4 {vr(W0R+8*t+4*s,4)}, v1, {sr(S_WC)}, s{S_T+1} offen offset:{(320 if PAR.w0lin else 32)*s}", f"w0_{t}")
    e("s_branch L_helper2")
    g.hfirst = g.L[g.h0:]; del g.L[g.h0:]
    g.lab("L_helper2")
    if not PAR.barpos: e("s_barrier")
    e(f"v_mov_b32 v61, {OOB}"); e(f"v_add_u32 v60, s{S_J}, v0"); e("v_cmp_eq_u32 vcc, 0, v60"); e(f"v_cndmask_b32 v{V_L0}, v61, 0, vcc")
    e(f"s_lshr_b32 s{S_SB}, s{S_R}, 1"); e(f"s_mul_i32 s{S_SB}, s{S_SB}, 224"); e(f"s_and_b32 s{S_XC}, s{S_R}, 1"); e(f"s_mul_i32 s{S_XC}, s{S_XC}, 96"); e(f"s_add_u32 s{S_SB}, s{S_SB}, s{S_XC}")
    if not PAR.qaearly: qaset()
    e(f"s_mul_i32 s{S_PO}, s{S_G}, {NR}"); e(f"s_add_u32 s{S_PO}, s{S_PO}, s{S_R}"); e(f"s_lshl_b32 s{S_PO}, s{S_PO}, 2"); e(f"s_add_u32 s{S_PO}, s{S_PO}, s{S_J}")
    e(f"s_lshl_b32 s{S_PO}, s{S_PO}, 8"); e(f"s_add_u32 s{S_PO}, s{S_PO}, {WS_PART}")
    e("v_and_b32 v60, 15, v0"); e(f"v_mul_u32_u24 v245, {XSTR}, v60"); e("v_and_b32 v60, 48, v0")
    e(f"s_lshl_b32 s{S_T}, s{S_J}, 6"); e(f"s_add_u32 s{S_T}, s{S_T}, {D0}"); e(f"v_add3_u32 v245, v245, v60, s{S_T}")
    e("v_lshlrev_b32 v246, 4, v0")
    e(f"s_lshl_b32 s{S_XB}, s{S_G}, 2"); e(f"s_lshr_b32 s{S_T}, s{S_R}, 2"); e(f"s_add_u32 s{S_XB}, s{S_XB}, s{S_T}"); e(f"s_mul_i32 s{S_XB}, s{S_XB}, {XBS}")
    e(f"s_and_b32 s{S_T}, s{S_R}, 3"); e(f"s_lshl_b32 s{S_T}, s{S_T}, 10"); e(f"s_add_u32 s{S_XB}, s{S_XB}, s{S_T}")
    e(f"s_lshl_b32 s{S_T}, s{S_J}, 12"); e(f"s_add_u32 s{S_XB}, s{S_XB}, s{S_T}"); e(f"s_add_u32 s{S_XB}, s{S_XB}, {WS_X}")
    g.stamp("g")
    e(f"s_cmp_lt_u32 s{S_R}, {NR}"); e("s_cbranch_scc1 L_nordy")
    e("s_waitcnt vmcnt(0)")
    e("v_mov_b32 v35, 1"); e(f"s_lshl_b32 s{S_E3}, s{S_G}, 2")
    e(f"buffer_store_dword v35, v{V_L0}, {sr(S_DBG)}, s{S_E3} offen offset:{C_RDY} sc1")
    g.lab("L_nordy")
    call_if(g, EARLY(), "L_pe2")
    g.stamp("g")
    for t in range(7):
        if t == 6: e(f"s_cmp_ge_u32 s{S_R}, {NR}"); e("s_cbranch_scc1 L_w0d")
        g.vmwait(f"w0_{t}")
        if t == 6: g.lab("L_w0d")
        a = HX + 16 * t; w = W0R + 8 * t
        e(f"v_mfma_f32_32x32x16_bf16 {vr(a,16)}, {vr(w,4)}, {vr(ID,4)}, 0")
        e(f"v_mfma_f32_32x32x16_bf16 {vr(a,16)}, {vr(w+4,4)}, {vr(ID+4,4)}, {vr(a,16)}")
        e(f"v_mfma_f32_32x32x16_bf16 {vr(a,16)}, {vr(ID,4)}, {vr(w,4)}, {vr(a,16)}")
        e(f"v_mfma_f32_32x32x16_bf16 {vr(a,16)}, {vr(ID+4,4)}, {vr(w+4,4)}, {vr(a,16)}")
        if t > 0: s0_max(g, t - 1)
    s0_max(g, 6)
    put_max(g, M_S0)
    e(f"v_mov_b32 v{V_CNT}, {M_CNT}")
    arrive(g, "S0M")
    g.stamp("g")
    if g.stamps and "g" in PAR.st: e("s_waitcnt vmcnt(0)"); g.stamp("g")
    if PAR.wpf3 == 2:
        e("v_lshlrev_b32 v1, 14, v0"); e(f"s_lshr_b32 s{S_T}, s2, 3"); e(f"s_lshl_b32 s{S_T}, s{S_T}, 7"); e(f"s_lshl_b32 s{S_T+1}, s{S_J}, 12"); e(f"s_add_u32 s{S_T}, s{S_T}, s{S_T+1}")
        e(f"buffer_load_dword v247, v1, {sr(S_W1)}, s{S_T} offen"); e("v_add_u32 v1, 0x100000, v1")
        e(f"buffer_load_dword v247, v1, {sr(S_W1)}, s{S_T} offen")
    if PAR.xfirst: call_if(g, EARLY(), "L_xpub")
    call_if(g, EARLY(), "L_gsig")
    g.stamp("g")
    lwait(g, "S0M")
    g.stamp(); g.stamp("h")
    get_max(g, M_S0)
    e("v_lshlrev_b32 v3, 4, v0"); e(f"v_mov_b32 v{PK}, 0")
    e(f"ds_write_b32 v3, v{PK} offset:{BUFA + 22*S0STR + 12}")
    e("v_lshrrev_b32 v1, 23, v1")
    e("v_min_u32 v1, 249, v1")
    e("v_sub_u32 v2, 124, v1")
    e("v_subrev_u32 v1, 124, v1")
    e(f"ds_write_b32 v3, v1 offset:{BUFA + 23*S0STR + 512}")
    for t in range(7): e(f"v_ldexp_f32 v{QS+t}, v{QS+t}, v2")
    for t in range(7):
        if t == 6:
            e(f"s_cmp_eq_u32 s{S_J}, 1"); e(f"s_cselect_b32 s{S_T}, 48, 0")
            for i in range(7): e(f"v_add_u32 v{QA+i}, s{S_T}, v{QA+i}")
        if t in (0, 2, 4, 6): g.stamp("h")
        pack_round(g, HX + 16 * t, 16 * (8 * (t >> 1) + 4 * (t & 1)))
    arrive(g, "S0OK")
    g.stamp(); g.stamp("s"); g.stamp("h")
    e(f"v_cmp_lt_u32 vcc, 25, v{V_HROW}"); e("v_bfe_u32 v1, v0, 2, 1")
    e("v_cmp_eq_u32 s[72:73], 0, v1"); e("s_and_b64 vcc, vcc, s[72:73]")
    e(f"v_mov_b32 v2, {OOB}"); e(f"v_lshlrev_b32 v{V_DMA}, 4, v0"); e(f"v_cndmask_b32 v{V_DMA}, v{V_DMA}, v2, vcc")
    e(f"s_mul_i32 s{S_ROT}, s{S_R}, 7"); e(f"s_lshr_b32 s{S_ROT}, s{S_ROT}, 2")
    e("v_lshrrev_b32 v1, 3, v0"); e(f"s_lshl_b32 s{S_T}, s{S_J}, 3"); e(f"v_add_u32 v1, s{S_T}, v1")
    e("v_mul_u32_u24 v1, 1664, v1"); e("v_and_b32 v2, 1, v0"); e("v_lshl_add_u32 v1, v2, 4, v1")
    e(f"s_and_b32 s{S_T}, s{S_J}, 1"); e(f"s_lshl_b32 s{S_T}, s{S_T}, 1")
    e("v_bfe_u32 v2, v0, 4, 1"); e("v_bfe_u32 v3, v0, 1, 2"); e("v_xor_b32 v2, v2, v3"); e(f"v_xor_b32 v2, s{S_T}, v2")
    e(f"v_lshl_add_u32 v3, v2, 5, s{S_SB}")
    e(f"v_add_u32 v{V_WSRC}, v1, v3")
    e("v_lshrrev_b32 v1, 4, v0"); e("v_bfe_u32 v2, v0, 2, 2"); e("v_lshl_add_u32 v1, v1, 3, v2"); e("v_lshlrev_b32 v1, 7, v1")
    e("v_and_b32 v3, 3, v0"); e("v_lshl_add_u32 v1, v3, 3, v1"); e("v_bfe_u32 v2, v0, 3, 2"); e("v_lshl_add_u32 v1, v2, 5, v1")
    e(f"v_xor_b32 v1, s{S_XC}, v1"); e(f"v_add_u32 v{V_TR0}, {D0}, v1")
    if PAR.wpf3 == 1:
        e("v_lshlrev_b32 v1, 14, v0"); e(f"s_lshr_b32 s{S_T}, s2, 3"); e(f"s_lshl_b32 s{S_T}, s{S_T}, 7"); e(f"s_lshl_b32 s{S_T+1}, s{S_J}, 12"); e(f"s_add_u32 s{S_T}, s{S_T}, s{S_T+1}")
        e(f"buffer_load_dword v247, v1, {sr(S_W1)}, s{S_T} offen"); e("v_add_u32 v1, 0x100000, v1")
        e(f"buffer_load_dword v247, v1, {sr(S_W1)}, s{S_T} offen")
    call_if(g, LATE(), "L_pe1")
    call_if(g, LATE()[:1], "L_xpub")
    g.vmq += ["xst"] * 7 + ["sent", "rdyl"] + ["bias"] * 4
    g.stamp("s")
    call_if(g, LATE(), "L_pe2")
    e("s_waitcnt vmcnt(1)")
    e(f"s_sub_u32 s{S_T}, s{S_WP}, {PAR.gearly}"); e(f"s_cmp_lt_u32 s{S_T}, {31 - PAR.gearly}"); e("s_cbranch_scc1 L_pwr")
    e("s_waitcnt vmcnt(0)")
    g.lab("L_pwr")
    arrive(g, "XST")
    e(f"s_cmp_lg_u32 s{S_J}, 0"); e("s_cbranch_scc1 L_nosig")
    lwait(g, "XST")
    e(f"s_mov_b32 s{S_T}, {SPIN}")
    g.lab("L_rdy")
    e("v_cmp_ne_u32 vcc, 0, v28"); e(f"s_and_b32 s{S_T+1}, vcc_lo, 0xffff"); e(f"s_cmp_eq_u32 s{S_T+1}, 0xffff"); e("s_cbranch_scc0 L_rdys")
    g.lab("L_rdyd")
    g.tail += ["L_rdys:", "    s_sleep 8", f"    buffer_load_dword v28, v29, {sr(S_DBG)}, 0 offen offset:{C_RDY} sc1", "    s_waitcnt vmcnt(0)",
               f"    s_sub_u32 s{S_T}, s{S_T}, 1", "    s_cbranch_scc0 L_rdy", "    s_branch L_rdyd"]
    e("v_mov_b32 v1, 1")
    e(f"buffer_atomic_add v1, v{V_L0}, {sr(S_WS)}, s{S_CX} offen sc0 sc1")
    e(f"buffer_load_dword v197, v{V_L0}, {sr(S_DBG)}, 0 offen offset:128 sc1")
    e("s_waitcnt vmcnt(0)")
    e(f"v_readfirstlane_b32 s{S_T}, v1"); e(f"s_cmp_lg_u32 s{S_T}, 15"); e("s_cbranch_scc1 L_nosig")
    e(f"buffer_store_dword v1, v{V_L0}, {sr(S_WS)}, s{S_CX} offen offset:{C_XR} sc1")
    g.lab("L_nosig")
    e("s_setprio 3")
    g.stamp(); g.stamp("s")

def helper_dnn(g):
    e = g.e
    CH = PAR.chunks; NS = PAR.nslot
    UNITS = [(a, sl) for a in range(3) for sl in range(4)] + [(3, 0), (3, 1)]
    def ac(a, sl): return HACC + 4 * UNITS.index((a, sl))
    def xb(f, sl): return HX + 16 * (f % NS) + 4 * sl
    def xload(f):
        rotf(g, f, S_T + 2); e(f"s_lshl_b32 s{S_T+2}, s{S_T+2}, 12"); e(f"s_add_u32 s{S_T+2}, s{S_T+2}, s{S_XB}")
        for sl in range(4 if f < NS else PAR.nxl):
            g.vm(f"buffer_load_dwordx4 {vr(xb(f,sl),4)}, v{2 + (sl >> 1)}, {sr(S_WS)}, s{S_T+2} offen offset:{1024*(sl&1)} {PAR.ld}", f"x{f}")
    e(f"s_setprio {PAR.wp}")
    VTR = [V_TR0, V_TR1, 198, 199]
    for a in range(1, 4): e(f"v_xor_b32 v{VTR[a]}, {32*a}, v{V_TR0}")
    colvec(g, S_W2, 232, "w2")
    g.vmwait("bias")
    for a in range(4):
        for i in range(2):
            e(f"v_lshlrev_b32 v{ac(a,0)+2*i}, 16, v{BT+2*a+i}")
            e(f"v_and_b32 v{ac(a,0)+2*i+1}, 0xffff0000, v{BT+2*a+i}")
    for a, sl in UNITS:
        if sl:
            for i in range(4): e(f"v_mov_b32 v{ac(a,sl)+i}, v{ac(a,0)+i}")
    e(f"s_lshl_b32 s{S_XB}, s{S_G}, 2"); e(f"s_add_u32 s{S_XB}, s{S_XB}, s{S_J}"); e(f"s_mul_i32 s{S_XB}, s{S_XB}, {XBS}"); e(f"s_add_u32 s{S_XB}, s{S_XB}, {WS_X}")
    if PAR.wearly < 1: lwait(g, "RB", 8); dma_w(g, 0, PAR.wa, "Wa")
    if PAR.x0: poll1(g, [(S_DBG, "0", 128, 11), CHK_X()], "FX")
    else:
        poll1(g, [(S_DBG, "0", 128, 11)], "F2", pre=[197])
        lwait(g, "AFREE"); dma_img(g, "L2", 44, BUFA)
        presample(g, [CHK_X()], [196], "fx")
        g.vmwait("fx"); arrive(g, "L2OK", "W01")
        poll1(g, [CHK_X()], "FX", pre=[196])
    e(f"s_and_b32 s{S_E0}, s{S_R}, 1"); e(f"s_lshl_b32 s{S_T}, s{S_E0}, 11"); e(f"v_lshl_add_u32 v2, v0, 4, s{S_T}"); e("v_xor_b32 v3, 0x800, v2")
    g.stamp("s")
    g.stamp()
    e(f"s_setprio {PAR.dp}")
    for f in range(PAR.xi): xload(f)
    if PAR.x0:
        lwait(g, "AFREE"); dma_img(g, "L2", 44, BUFA)
        g.vmwait("W1"); arrive(g, "W01")
    nld = [PAR.xi]
    W2R = 232
    wring = [0]
    def wread(ks):
        f, hf = divmod(ks, 2)
        base = HW_ + 8 * (wring[0] % 3); wring[0] += 1
        for a in range(2):
            for rd in range(2):
                e(f"ds_read_b64_tr_b16 {vr(base+4*a+2*rd,2)}, v{VTR[2*hf+a]} offset:{(f % 16)*4096 + rd*512}")
        return base
    CKQ = [(S_WS, f"s{S_CX}", C_Q, 9)]; CK3 = [(S_WS, f"s{S_CX}", C_L[3], 11)]
    after = {}
    def add(f, fn): after.setdefault(f, []).append(fn)
    inter = {}
    def addi(f, fn): inter.setdefault(f, []).append(fn)
    def capture(fn):
        keep = g.L; g.L = []; fn(); out = g.L; g.L = keep; return out
    if PAR.wa >= 10:
        for i in range(16 - PAR.wa): addi(i + 1, lambda i=i: dma_w(g, PAR.wa + i, PAR.wa + i + 1, "Wb"))
    else:
        for i in range(PAR.wa, 10): addi((i - PAR.wa) // 2, lambda i=i: dma_w(g, i, i + 1, "Wx"))
        for i in range(10, 16): addi(i - 8, lambda i=i: dma_w(g, i, i + 1, "Wb"))
    for f, (x, y) in {10: (16, 18), 11: (18, 20), 12: (20, 21), 13: (21, 22), 14: (22, 23), 15: (23, 24), 16: (24, 25), 17: (25, 26)}.items():
        addi(f, lambda x=x, y=y: dma_w(g, x, y, "Wc" if x < 21 else "Wd"))
    SEG = [0, 10, 16, 21, 26]
    if PAR.wa < 10: SEG.insert(1, PAR.wa)
    add(PAR.qpos - 3, lambda: presample(g, CK3, [196], "f3"))
    add(PAR.qpos, lambda: (lwait(g, "BFREE"), g.vmwait("f3"), poll1(g, CK3, "F3", pre=[196])))
    for i in range(0, 11, PAR.l3n): addi(PAR.qpos + 1 + i // PAR.l3n, lambda i=i: dma_img(g, "L3", 44, BUFB, part=(i, i + PAR.l3n)))
    add(PAR.qpos + 1 + 10 // PAR.l3n + PAR.qarr, lambda: (g.vmwait("L3"), arrive(g, "L3OK")))
    add(22, lambda: presample(g, CKQ, [197], "fq"))
    lwait(g, "W01")
    for c in range(len(SEG) - 1):
        k0 = 2 * SEG[c]; k1 = 2 * SEG[c + 1]
        bufs = {k0: wread(k0), k0 + 1: wread(k0 + 1)}
        for ks in range(k0, k1):
            f, hf = divmod(ks, 2)
            if hf == 0 and f in PAR.fst: g.stamp("f")
            if hf == 0:
                g.vmwait(f"x{f}")
                def gen_other():
                    for _ in range(2):
                        if nld[0] < min(26, f + NS): xload(nld[0]); nld[0] += 1
                    for fn in inter.get(f, []): fn()
                other = capture(gen_other)
            e(f"s_waitcnt lgkmcnt({4 if ks + 1 < k1 else 0})")
            rd = []
            if ks + 2 < k1: rd = capture(lambda: bufs.__setitem__(ks + 2, wread(ks + 2)))
            mf = [(a, sl) for a in range(2) for sl in range(4) if (2 * hf + a, sl) in UNITS[:PAR.nmf]]
            for i, (a, sl) in enumerate(mf):
                d = ac(2 * hf + a, sl)
                e(f"v_mfma_f32_16x16x32_bf16 {vr(d,4)}, {vr(bufs[ks]+4*a,4)}, {vr(xb(f,sl),4)}, {vr(d,4)}")
                n = PAR.il
                if rd and i >= 1: g.L.append(rd.pop(0)); n -= 1
                while other and n > 0: g.L.append(other.pop(0)); n -= 1
            g.L += rd
            if hf == 1:
                g.L += other
                for fn in after.get(f, []): fn()
        c = {10: 0, 16: 1, 21: 2, 26: 3}.get(SEG[c + 1], -1)
        if c == -1: g.vmwait("Wx"); arrive(g, "L1OK"); lwait(g, "L1OK")
        if c == 0:
            if PAR.wa < 16: g.vmwait("Wb")
            arrive(g, "C0"); lwait(g, "C0"); g.stamp()
        if c == 1: g.vmwait("Wc"); arrive(g, "C1"); lwait(g, "C1")
        if c == 2:
            g.vmwait("Wd"); arrive(g, "C2"); lwait(g, "C2")
    e("s_waitcnt vmcnt(0)")
    g.stamp()
    W2F = HX
    for i in range(8):
        e(f"v_lshlrev_b32 v{W2F+2*i}, 16, v{W2R+i}")
        e(f"v_and_b32 v{W2F+2*i+1}, 0xffff0000, v{W2R+i}")
    c0 = 2 * 0.7978845608028654 * 1.4426950408889634
    e(f"s_mov_b32 s{S_C1}, {f2u(c0*0.044715):#x}")
    e(f"v_mov_b32 v2, {f2u(c0):#x}")
    T = HX + 32; SUM = HX + 48
    def gelu(blk):
        a, sl = UNITS[blk]
        rs = [ac(a, sl) + i for i in range(4)]
        for i, r in enumerate(rs): e(f"v_mul_f32 v{T+i}, v{r}, v{r}")
        for i, r in enumerate(rs): e(f"v_fma_f32 v{T+i}, v{T+i}, s{S_C1}, v2")
        for i, r in enumerate(rs): e(f"v_mul_f32 v{T+i}, v{T+i}, v{r}")
        for i, r in enumerate(rs): e(f"v_exp_f32 v{T+i}, -v{T+i}")
        for i, r in enumerate(rs): e(f"v_mul_f32 v{r}, v{r}, v{W2F + 4*a + i}")
        for i, r in enumerate(rs): e(f"v_add_f32 v{T+i}, 1.0, v{T+i}")
        for i, r in enumerate(rs): e(f"v_rcp_f32 v{T+i}, v{T+i}")
        for i, r in enumerate(rs): e(f"v_{'mul' if a == 0 and i == 0 else 'fmac'}_f32 v{SUM + sl}, v{r}, v{T+i}")
    for blk in range(len(UNITS)):
        if blk == PAR.gsplit:
            poll1(g, CKQ, "FQ", pre=[197]); dma_img(g, "Q4", 28, QB)
        if blk == PAR.gsplit2:
            e("s_waitcnt vmcnt(0)"); arrive(g, "QOK")
        if blk == PAR.ghi: e("s_setprio 1")
        gelu(blk)
    e("s_setprio 3")
    e(f"v_permlane32_swap_b32 v{SUM}, v{SUM+2}"); e(f"v_permlane32_swap_b32 v{SUM+1}, v{SUM+3}")
    e(f"v_add_f32 v{SUM}, v{SUM}, v{SUM+2}"); e(f"v_add_f32 v{SUM+1}, v{SUM+1}, v{SUM+3}")
    e(f"v_permlane16_swap_b32 v{SUM}, v{SUM+1}")
    e(f"v_add_f32 v{SUM}, v{SUM}, v{SUM+1}")
    e(f"v_min_u32 v{SUM}, -2, v{SUM}")
    e(f"s_lshl_b32 s{S_T}, s{S_E0}, 7"); e("v_lshlrev_b32 v1, 2, v0"); e(f"v_xor_b32 v1, s{S_T}, v1")
    e(f"buffer_store_dword v{SUM}, v1, {sr(S_WS)}, s{S_PO} offen sc1")
    g.stamp()
    g.flush_stamps(4, 5)
    e("s_endpgm")

def gsignal(g, c, so):
    e = g.e; done = g.newlab("sg")
    if c: e("s_waitcnt vmcnt(0)"); arrive(g, c)
    e(f"s_cmp_lg_u32 s{S_J}, 0"); e(f"s_cbranch_scc1 {done}")
    if c: lwait(g, c)
    e(f"v_mul_u32_u24 v2, {PAR.cstr}, v0"); e("v_cmp_lt_u32 vcc, 15, v0"); e(f"v_mov_b32 v3, {OOB}"); e("v_cndmask_b32 v2, v2, v3, vcc")
    e("v_mov_b32 v1, 1")
    e(f"buffer_atomic_add v1, v2, {sr(S_WS)}, {so} offen sc1")
    g.lab(done)
SCN, FR, WV, WP, W1V, AQ, RW = 68, 104, 121, 122, 108, 44, 180
QAR = lambda i: (64 + i) if i < 4 else (240 + i)
S_E4, S_LW = 62, 63
def prod_early1(g):
    e = g.e
    g.lab("L_gsig")
    if not PAR.xfirst: e("s_waitcnt vmcnt(0)")
    arrive(g, "GST")
    e(f"s_cmp_lg_u32 s{S_J}, 0"); e(f"s_cbranch_scc1 {'L_ret' if PAR.xfirst else 'L_xpub'}")
    lwait(g, "GST")
    e("v_mov_b32 v1, 1"); e(f"buffer_atomic_add v1, v{V_L0}, {sr(S_DBG)}, 0 offen offset:128 sc1")
    if PAR.xfirst: e(RET)
    g.lab("L_xpub")
    XS = 180
    lwait(g, "RAW")
    for t in range(7): e(f"ds_read_b128 {vr(XS+4*t,4)}, v245 offset:{256*t}")
    e(f"s_cmp_ge_u32 s{S_J}, 2"); e(f"s_cselect_b32 s{S_T}, {OOB}, 0"); e(f"v_add_u32 v245, s{S_T}, v246")
    if PAR.xfirst:
        e(f"s_cmp_ge_u32 s{S_WP}, {PAR.gearly}"); e("s_cbranch_scc1 L_xp2"); e("s_waitcnt vmcnt(0)"); g.lab("L_xp2")
    for t in range(7):
        e(f"s_waitcnt lgkmcnt({6-t})")
        g.vm(f"buffer_store_dwordx4 {vr(XS+4*t,4)}, v{246 if t < 6 else 245}, {sr(S_WS)}, s{S_XB} offen sc1", "xst")
        e(f"s_add_u32 s{S_XB}, s{S_XB}, 16384")
    arrive(g, "RB")
    e(f"s_cmp_ge_u32 s{S_R}, {NR}"); e(f"s_cselect_b32 s{S_T}, {OOB}, 0")
    e(f"v_lshl_add_u32 v1, v0, 2, s{S_T}"); e("v_mov_b32 v3, -1")
    g.vm(f"buffer_store_dword v3, v1, {sr(S_WS)}, s{S_PO} offen sc1", "sent")
    e(f"s_lshl_b32 s{S_T}, s{S_J}, 8"); e("v_lshrrev_b32 v29, 4, v0"); e(f"v_lshl_add_u32 v29, v29, 8, s{S_T}"); e("v_lshl_add_u32 v29, v0, 2, v29")
    g.vm(f"buffer_load_dword v28, v29, {sr(S_DBG)}, 0 offen offset:{C_RDY} sc1", "rdyl")
    colvec(g, S_B1, BT, "bias")
    e(RET)
    g.lab("L_pe1")
    e(f"s_mul_i32 s{S_L}, s{S_WP}, 94"); e(f"s_lshr_b32 s{S_L}, s{S_L}, 10")
    e(f"s_mul_i32 s{S_T}, s{S_L}, 11"); e(f"s_sub_u32 s{S_FR}, s{S_WP}, s{S_T}"); e(f"s_lshl_b32 s{S_FR}, s{S_FR}, 2"); e(f"s_add_u32 s{S_FR}, s{S_FR}, s{S_J}")
    e(f"s_add_u32 s{S_L}, s{S_L}, 2")
    e(f"s_mul_i32 s{S_E2}, s{S_L}, {LB}")
    e(f"s_add_u32 s{S_LC+2}, s{S_E2}, {LB}")
    e("v_lshlrev_b32 v1, 4, v0")
    e(f"s_mul_i32 s{S_T}, s{S_J}, 9216"); e(f"s_add_u32 s{S_T}, s{S_T}, s{S_E2}")
    for i in range(9):
        if i % 4 == 0 and i: e(f"s_add_u32 s{S_T}, s{S_T}, 4096")
        e(f"buffer_load_dwordx4 {vr(SCN+4*i,4)}, v1, {sr(S_LC)}, s{S_T} offen offset:{(i%4)*1024}")
    e(f"s_cmp_ge_u32 s{S_WP}, 22"); e("s_cbranch_scc1 L_ret")
    e(f"s_lshl_b32 s{S_T}, s{S_FR}, 4"); e(f"s_add_u32 s{S_T}, s{S_T}, s{S_E2}")
    e(f"buffer_load_dwordx4 {vr(FR,4)}, v243, {sr(S_LC)}, s{S_T} offen")
    e(f"v_lshlrev_b32 v1, 1, v{V_HROW}"); e(f"s_mul_i32 s{S_T}, s{S_L}, 52")
    e(f"buffer_load_ushort v{WV}, v1, {sr(S_WO)}, s{S_T} offen")
    e(f"buffer_load_ushort v{WP}, v1, {sr(S_WO)}, 52 offen")
    e("v_lshrrev_b32 v3, 5, v0"); e("v_mul_u32_u24 v3, 26, v3")
    for i in range(8):
        e(f"s_lshl_b32 s{S_T}, s{S_FR}, 3"); e(f"s_sub_u32 s{S_T}, s{S_T}, {8*42 + 2 - i}")
        e(f"s_lshl_b32 s{S_T+1}, s{S_T}, 1"); e(f"s_add_u32 s{S_T+1}, s{S_T+1}, 52")
        e(f"s_cmp_lt_u32 s{S_T}, 13"); e(f"s_cselect_b32 s{S_T+1}, s{S_T+1}, {OOB}")
        e(f"v_add_u32 v2, s{S_T+1}, v3")
        e(f"buffer_load_ushort v{W1V+i}, v2, {sr(S_WO)}, 0 offen")
    g.lab("L_ret")
    e(RET)
def prod_early2(g):
    e = g.e
    g.lab("L_pe2")
    e("s_waitcnt vmcnt(13)")
    e(f"v_mov_b32 v{V_CNT}, {M_CNT}")
    for i in range(36): e(f"v_and_b32 v{SCN+i}, s{S_MASK}, v{SCN+i}")
    pkmax(g, [SCN + i for i in range(36)])
    put_max(g, M_SC)
    e(f"s_add_u32 s{S_SCN}, s{S_SCN}, 4")
    arrive(g, "SCM"); lwait(g, "SCM", f"s{S_SCN}")
    get_max(g, M_SC)
    e(f"v_readfirstlane_b32 s{S_E0}, v1")
    e(f"s_bfe_u32 s{S_E0}, s{S_E0}, 0x80007")
    e(f"s_cmp_ge_u32 s{S_WP}, 22"); e("s_cbranch_scc1 L_ret")
    g.lab("L_gjob")
    e(f"s_min_u32 s{S_T+2}, s{S_E0}, 249"); e(f"s_sub_u32 s{S_T+3}, {127+124}, s{S_T+2}"); e(f"s_lshl_b32 s{S_T+3}, s{S_T+3}, 23")
    e(f"s_cmp_lt_u32 s{S_FR}, 42"); e(f"s_cselect_b32 s{S_T+1}, -1, 0")
    for i in range(1, 4): e(f"v_and_b32 v{FR+i}, s{S_T+1}, v{FR+i}")
    e(f"s_cmp_lt_u32 s{S_FR}, 43"); e(f"s_cselect_b32 s{S_T+1}, -1, 0"); e(f"v_and_b32 v{FR}, s{S_T+1}, v{FR}")
    for i in range(4): e(f"v_alignbit_b32 v{FR+i}, v{FR+i}, v{FR+i}, v{V_H16}")
    for i in range(4):
        e(f"v_lshlrev_b32 v{SCN+2*i}, 16, v{FR+i}"); e(f"v_and_b32 v{SCN+2*i+1}, 0xffff0000, v{FR+i}")
    for i in range(8): e(f"v_mul_f32 v{SCN+i}, s{S_T+3}, v{SCN+i}")
    for i in range(4): e(f"v_cvt_pk_f16_f32 v{FR+i}, v{SCN+2*i}, v{SCN+2*i+1}")
    e(f"v_lshlrev_b32 v{WV}, 16, v{WV}")
    e(f"v_and_b32 v1, 0x7fffffff, v{WV}")
    wavemax_exp(g, 1, S_E1)
    e(f"s_sub_u32 s{S_E1}, s{S_E1}, 13"); e(f"s_sub_u32 s{S_T}, 0, s{S_E1}")
    e(f"v_ldexp_f32 v{WV}, v{WV}, s{S_T}")
    for i in range(8): e(f"v_mul_f32 v{SCN+i}, v{SCN+i}, v{WV}")
    for sh in (1, 2, 4, 8):
        for i in range(8): e(f"v_add_f32_dpp v{SCN+i}, v{SCN+i}, v{SCN+i} row_shr:{sh} {DPPALL} bound_ctrl:0")
    for i in range(8): e(f"v_add_f32_dpp v{SCN+i}, v{SCN+i}, v{SCN+i} row_bcast:15 row_mask:0xa bank_mask:0xf")
    for i in range(4): e(f"v_cvt_pk_f16_f32 v{SCN+2*i}, v{SCN+2*i}, v{SCN+2*i+1}")
    e("v_and_b32 v2, 31, v0"); e("v_cmp_eq_u32 vcc, 31, v2")
    for i in range(4): e(f"v_cndmask_b32 v{FR+i}, v{FR+i}, v{SCN+2*i}, vcc")
    e(f"v_lshlrev_b32 v1, 16, v{WP}"); e("v_and_b32 v1, 0x7fffffff, v1")
    wavemax_exp(g, 1, S_E4)
    e(f"s_sub_u32 s{S_T}, 15, s{S_E4}")
    for i in range(8): e(f"v_lshlrev_b32 v{W1V+i}, 16, v{W1V+i}")
    for i in range(8): e(f"v_ldexp_f32 v{W1V+i}, v{W1V+i}, s{S_T}")
    for i in range(4): e(f"v_cvt_pk_f16_f32 v{W1V+2*i}, v{W1V+2*i}, v{W1V+2*i+1}")
    e("v_cmp_eq_u32 vcc, 30, v2")
    for i in range(4): e(f"v_cndmask_b32 v{FR+i}, v{FR+i}, v{W1V+2*i}, vcc")
    e(f"s_cmp_lg_u32 s{S_FR}, 0"); e("s_cbranch_scc1 L_nohdr")
    e(f"s_sub_u32 s{S_T+2}, s{S_T+2}, 124"); e(f"s_add_u32 s{S_E1}, s{S_E1}, s{S_T+2}"); e(f"s_sub_u32 s{S_E4}, s{S_E4}, 15")
    e(f"v_writelane_b32 v{FR}, s{S_T+2}, 29"); e(f"v_writelane_b32 v{FR+1}, s{S_E1}, 29"); e(f"v_writelane_b32 v{FR+2}, s{S_E4}, 29")
    g.lab("L_nohdr")
    e(f"s_mul_i32 s{S_T}, s{S_L}, {44*1024}"); e(f"s_lshl_b32 s{S_T+1}, s{S_FR}, 10"); e(f"s_add_u32 s{S_T}, s{S_T}, s{S_T+1}")
    e(f"s_sub_u32 s{S_T}, s{S_T}, {88*1024 - IMG['L2']}")
    e("v_lshlrev_b32 v1, 4, v0")
    e(f"buffer_store_dwordx4 {vr(FR,4)}, v1, {sr(S_WS)}, s{S_T} offen sc1")
    e("s_nop 0")
    e(RET)
def helper_prod(g):
    e = g.e
    e(f"s_add_u32 s{S_WP}, s{S_G}, 16")
    e(f"s_cmp_ge_u32 s{S_WP}, 31"); e("s_cbranch_scc1 L_j2d")
    call_if(g, [], "L_pe1")
    e(f"s_cmp_lt_u32 s{S_WP}, 22"); e("s_cbranch_scc1 L_noql")
    e("v_and_b32 v2, 31, v0"); e("v_lshrrev_b32 v3, 5, v0")
    e("v_mul_u32_u24 v1, 676, v3"); e("v_add_lshl_u32 v1, v1, v2, 1")
    e(f"s_mul_i32 s{S_T}, s{S_FR}, 52"); e(f"s_add_u32 s{S_T}, s{S_T}, {4*LB}")
    for s in range(13):
        e(f"buffer_load_ushort v{W1V+s}, v1, {sr(S_LC)}, s{S_T} offen")
        e(f"s_add_u32 s{S_T}, s{S_T}, 2704")
    e(f"s_cmp_eq_u32 s{S_WP}, 29"); e(f"s_cselect_b32 s{S_LW}, 4, 5"); e(f"s_cmp_eq_u32 s{S_WP}, 30"); e(f"s_cselect_b32 s{S_LW}, 0, s{S_LW}")
    e(f"s_mul_i32 s{S_E2}, s{S_LW}, {LB}"); e(f"s_add_u32 s{S_LC+2}, s{S_E2}, {LB}")
    e("v_lshlrev_b32 v1, 1, v0"); e("v_cmp_lt_u32 vcc, 25, v0"); e(f"v_mov_b32 v2, {OOB}"); e("v_cndmask_b32 v1, v1, v2, vcc")
    e(f"s_mul_i32 s{S_T}, s{S_LW}, 52")
    e(f"buffer_load_ushort v{WV}, v1, {sr(S_WO)}, s{S_T} offen")
    e("v_lshlrev_b32 v1, 4, v0")
    e(f"s_mul_i32 s{S_T}, s{S_J}, 1352"); e(f"s_add_u32 s{S_T}, s{S_T}, s{S_E2}")
    for t in range(7):
        for ps in range(2):
            e(f"buffer_load_dwordx4 {vr(RW+8*t+4*ps,4)}, v1, {sr(S_LC)}, s{S_T} offen offset:{1024*ps}")
        e(f"s_add_u32 s{S_T}, s{S_T}, {4*1352}")
    g.lab("L_noql")
    lwait(g, "XST")
    e("s_waitcnt vmcnt(0)")
    call_if(g, [], "L_pe2")
    g.lab("L_j2d")
    e(f"s_sub_u32 s{S_T}, s{S_G}, 6"); e(f"s_cmp_lt_u32 s{S_T}, 5"); e("s_cbranch_scc1 L_nol3")
    e(f"s_mov_b32 s{S_T+2}, {WS_CNT + C_L[3]}")
    gsignal(g, "F3", f"s{S_T+2}")
    g.lab("L_nol3")
    e(f"s_cmp_ge_u32 s{S_WP}, 31"); e("s_cbranch_scc1 L_idle")
    e(f"s_cmp_ge_u32 s{S_WP}, 22"); e("s_cbranch_scc1 L_nog")
    e("s_branch L_idle")
    g.lab("L_nog")
    lwait(g, "RB", 8)
    AC = HX; TU = HX + 16
    for t in range(6): e(f"v_lshl_or_b32 v{QAR(t)}, v{W1V+2*t+1}, 16, v{W1V+2*t}")
    e(f"v_mov_b32 v{QAR(6)}, v{W1V+12}"); e(f"v_mov_b32 v{QAR(7)}, 0")
    g.stamp("q")
    e(f"v_lshlrev_b32 v{WV}, 16, v{WV}"); e(f"v_and_b32 v1, 0x7fffffff, v{WV}")
    wavemax_exp(g, 1, S_E1)
    e(f"s_sub_u32 s{S_T}, 0, s{S_E1}"); e(f"v_ldexp_f32 v{WV}, v{WV}, s{S_T}")
    for i in range(16): e(f"v_mov_b32 v{AC+i}, 0")
    for t in range(7):
        e(f"s_add_u32 s{S_T}, s{S_J}, {4*t}")
        e(f"v_readlane_b32 s{S_T+1}, v{WV}, s{S_T}")
        for i in range(8):
            e(f"v_lshlrev_b32 v{TU+2*i}, 16, v{RW+8*t+i}"); e(f"v_and_b32 v{TU+2*i+1}, 0xffff0000, v{RW+8*t+i}")
        for i in range(16): e(f"v_fmac_f32 v{AC+i}, s{S_T+1}, v{TU+i}")
    PSTR = 4096
    e(f"s_mul_i32 s{S_T}, s{S_J}, {PSTR}"); e(f"s_add_u32 s{S_T}, s{S_T}, {D0}")
    e(f"v_lshl_add_u32 v1, v0, 5, s{S_T}")
    for ps in range(2):
        for hf in range(2): e(f"ds_write_b128 v1, {vr(AC+8*ps+4*hf,4)} offset:{2048*ps+16*hf}")
    g.stamp("q"); arrive(g, "WC"); lwait(g, "WC"); g.stamp("q")
    call_if(g, [], "L_l2")
    e(f"s_cmp_eq_u32 s{S_FR}, 28"); e("s_cbranch_scc1 L_lin")
    e(f"s_cmp_lt_u32 s{S_FR}, 26"); e("s_cbranch_scc1 L_q")
    e(f"s_cmp_lg_u32 s{S_FR}, 32"); e("s_cbranch_scc1 L_noq")
    g.lab("L_q")
    BQ, PT, DQ = HX + 16, HX + 32, HX + 96
    e("v_and_b32 v2, 31, v0"); e("v_lshrrev_b32 v3, 5, v0")
    e("v_mad_u32_u24 v1, v3, 26, v2"); e("v_lshlrev_b32 v1, 2, v1"); e(f"v_add_u32 v1, {D0}, v1")
    def readsum(stride):
        for pj in range(4):
            for s in range(13): e(f"ds_read_b32 v{PT+13*pj+s}, v1 offset:{PSTR*pj + stride*s}")
            if pj: e("s_waitcnt lgkmcnt(13)")
        e("s_waitcnt lgkmcnt(0)")
        for s in range(13):
            e(f"v_add_f32 v{PT+s}, v{PT+s}, v{PT+13+s}"); e(f"v_add_f32 v{PT+26+s}, v{PT+26+s}, v{PT+39+s}")
        for s in range(13): e(f"v_add_f32 v{BQ+s}, v{PT+s}, v{PT+26+s}")
    def max13():
        e(f"v_max3_f32 v1, |v{BQ}|, |v{BQ+1}|, |v{BQ+2}|")
        for s in range(3, 13, 2): e(f"v_max3_f32 v1, v1, |v{BQ+s}|, |v{BQ+s+1}|")
    readsum(208)
    e("v_cmp_gt_u32 vcc, 26, v2")
    for s in range(13): e(f"v_cndmask_b32 v{BQ+s}, 0, v{BQ+s}, vcc")
    max13()
    wavemax_exp(g, 1, S_E2)
    e(f"s_sub_u32 s{S_T}, 0, s{S_E2}")
    for s in range(13): e(f"v_ldexp_f32 v{BQ+s}, v{BQ+s}, s{S_T}")
    e(f"s_max_u32 s{S_E0}, s{S_E0}, 10"); e(f"s_sub_u32 s{S_E0}, s{S_E0}, 126")
    BH, BL = PT, PT + 8
    e(f"v_mov_b32 v{BQ+13}, 0"); e(f"v_mov_b32 v{BH+7}, 0"); e(f"v_mov_b32 v{BL+7}, 0")
    for t in range(7): e(f"v_cvt_pk_bf16_f32 v{BH+t}, v{BQ+2*t}, v{BQ+2*t+1}")
    for t in range(7):
        e(f"v_lshlrev_b32 v{PT+16+2*t}, 16, v{BH+t}"); e(f"v_and_b32 v{PT+17+2*t}, 0xffff0000, v{BH+t}")
    for t in range(14): e(f"v_sub_f32 v{BQ+t}, v{BQ+t}, v{PT+16+t}")
    for t in range(7): e(f"v_cvt_pk_bf16_f32 v{BL+t}, v{BQ+2*t}, v{BQ+2*t+1}")
    e(f"s_cmp_ge_u32 s{S_FR}, 13"); e(f"s_cselect_b32 s{S_T+1}, 13, 0"); e(f"s_cselect_b32 s{S_T+2}, 4, 0")
    e(f"s_sub_u32 s{S_T+1}, s{S_FR}, s{S_T+1}"); e(f"s_and_b32 s{S_T+3}, s{S_T+1}, 3"); e(f"s_add_u32 s{S_T+2}, s{S_T+2}, s{S_T+3}")
    e(f"s_lshr_b32 s{S_T+1}, s{S_T+1}, 2"); e(f"s_lshl_b32 s{S_T+1}, s{S_T+1}, 3"); e(f"s_add_u32 s{S_SB}, s{S_T+2}, s{S_T+1}")
    e(f"s_mov_b32 s{S_L}, 0")
    e(f"s_cmp_lg_u32 s{S_FR}, 32"); e("s_cbranch_scc1 L_q2")
    e("v_sub_u32 v1, v2, v3")
    for s in range(13):
        e(f"v_cmp_eq_u32 vcc, {2*s}, v1"); e(f"v_cndmask_b32 v{AQ+s}, 0, 1.0, vcc")
    e(f"v_mov_b32 v{AQ+13}, 0")
    for t in range(7): e(f"v_cvt_pk_bf16_f32 v{QAR(t)}, v{AQ+2*t}, v{AQ+2*t+1}")
    e(f"s_mov_b32 s{S_E0}, 0"); e(f"s_mov_b32 s{S_SB}, 31"); e(f"s_mov_b32 s{S_L}, 8")
    g.lab("L_q2")
    g.stamp("q")
    e("s_nop 1")
    first = True
    for bb in (BL, BH):
        for ks in range(2):
            e(f"v_mfma_f32_32x32x16_bf16 {vr(DQ,16)}, {vr(QAR(4*ks),4)}, {vr(bb+4*ks,4)}, {'0' if first else vr(DQ,16)}"); first = False
            e(f"v_mfma_f32_32x32x16_bf16 {vr(DQ,16)}, {vr(bb+4*ks,4)}, {vr(QAR(4*ks),4)}, {vr(DQ,16)}")
    e(f"v_max_f32 v1, v{QS}, v{QS+1}")
    e(f"s_sub_u32 s{S_T}, 137, s{S_E0}"); e(f"s_lshl_b32 s{S_T}, s{S_T}, 23"); e(f"v_mov_b32 v30, s{S_T}"); e("v_mul_f32 v31, 0.5, v30")
    for t in range(7):
        e(f"v_cmp_eq_f32 vcc, v1, v{QS+t}"); e(f"v_cndmask_b32 v{QS+t}, v31, v30, vcc")
    e(f"s_cmp_eq_u32 s{S_J}, 1"); e(f"s_cselect_b32 s{S_T}, 48, 0"); e(f"s_sub_u32 s{S_T}, {D1 - BUFA}, s{S_T}")
    for t in range(7): e(f"v_add_u32 v{QA+t}, s{S_T}, v{QA+t}")
    e(f"v_mul_u32_u24 v1, {S0STR}, v2"); e("v_lshl_add_u32 v1, v3, 9, v1"); e(f"s_lshl_b32 s{S_T}, s{S_J}, 4"); e(f"s_add_u32 s{S_T}, s{S_T}, {D1}")
    e(f"v_min_u32 v1, {22*S0STR+512}, v1")
    e(f"v_add_u32 v1, s{S_T}, v1")
    e(f"v_lshl_add_u32 v28, v3, 9, s{S_T}"); e("v_mov_b32 v29, 0")
    e(f"ds_write_b32 v28, v29 offset:{22*S0STR+12}")
    pack_round(g, DQ, 0, False)
    g.stamp("q")
    e("s_waitcnt lgkmcnt(0)")
    e(f"ds_read_b128 {vr(AQ,4)}, v1")
    e("v_lshlrev_b32 v1, 10, v2"); e("v_lshl_add_u32 v1, v3, 9, v1"); e("v_cmp_lt_u32 vcc, 22, v2"); e(f"v_mov_b32 v28, {OOB}"); e("v_cndmask_b32 v1, v1, v28, vcc")
    e(f"s_lshl_b32 s{S_T}, s{S_SB}, 4"); e(f"s_add_u32 s{S_T}, s{S_T}, {IMG['Q4']}")
    e("s_waitcnt lgkmcnt(0)")
    e(f"buffer_store_dwordx4 {vr(AQ,4)}, v1, {sr(S_WS)}, s{S_T} offen sc1")
    e(f"s_add_u32 s{S_E0}, s{S_E0}, s{S_E2}"); e(f"s_add_u32 s{S_E0}, s{S_E0}, s{S_E1}"); e(f"s_sub_u32 s{S_E0}, s{S_E0}, 10")
    e(f"s_and_b32 s{S_T}, s{S_FR}, 31"); e(f"s_cmp_lg_u32 s{S_T}, 0"); e("s_cbranch_scc1 L_noq")
    g.lab("L_qh")
    e(f"v_mov_b32 v1, s{S_E0}"); e(f"s_add_u32 s{S_T}, s{S_L}, {IMG['Q4'] + 23*1024}")
    e(f"buffer_store_dword v1, v{V_L0}, {sr(S_WS)}, s{S_T} offen sc1")
    e("s_branch L_noq")
    g.lab("L_lin")
    e("v_lshrrev_b32 v3, 5, v0"); e(f"v_min_u32 v2, 25, v{V_HROW}")
    e("v_mad_u32_u24 v1, v2, 26, v3"); e("v_lshlrev_b32 v1, 2, v1"); e(f"v_add_u32 v1, {D0}, v1")
    readsum(8)
    e(f"v_cmp_gt_u32 vcc, 26, v{V_HROW}")
    for s in range(13): e(f"v_cndmask_b32 v{BQ+s}, 0, v{BQ+s}, vcc")
    max13()
    wavemax_exp(g, 1, S_E2)
    e(f"s_sub_u32 s{S_T}, 15, s{S_E2}")
    for s in range(13): e(f"v_ldexp_f32 v{BQ+s}, v{BQ+s}, s{S_T}")
    e(f"v_mov_b32 v{BQ+13}, 0"); e(f"v_mov_b32 v{AQ+7}, 0")
    for t in range(7): e(f"v_cvt_pk_f16_f32 v{AQ+t}, v{BQ+2*t}, v{BQ+2*t+1}")
    e("v_lshlrev_b32 v1, 4, v0"); e(f"s_mov_b32 s{S_T}, {IMG['Q4'] + 24*1024}")
    for s in range(2): e(f"buffer_store_dwordx4 {vr(AQ+4*s,4)}, v1, {sr(S_WS)}, s{S_T} offen offset:{1024*s} sc1")
    e(f"s_add_u32 s{S_E0}, s{S_E2}, s{S_E1}"); e(f"s_sub_u32 s{S_E0}, s{S_E0}, 15"); e(f"s_mov_b32 s{S_L}, 4")
    e("s_branch L_qh")
    g.lab("L_noq")
    g.stamp("q")
    e(f"s_mov_b32 s{S_T+2}, {WS_CNT + C_Q}")
    gsignal(g, "QST", f"s{S_T+2}")
    g.stamp("q")
    lwait(g, "QST")
    e("s_branch L_idle2")
    g.lab("L_l2")
    lwait(g, "AFREE")
    poll1(g, [(S_DBG, "0", 128, 11)], "F2")
    dma_img(g, "L2", 44, BUFA)
    e("s_waitcnt vmcnt(0)"); arrive(g, "L2OK")
    e(RET)
    g.lab("L_idle")
    call_if(g, [], "L_l2")
    g.lab("L_idle2")
    g.stamp(); g.stamp()
    lwait(g, "BFREE")
    poll1(g, [(S_WS, f"s{S_CX}", C_L[3], 11)], "FX")
    dma_img(g, "L3", 44, BUFB)
    e("s_waitcnt vmcnt(0)"); arrive(g, "L3OK")
    g.stamp()
    poll1(g, [(S_WS, f"s{S_CX}", C_Q, 9), CHK_X()], "FQ")
    dma_img(g, "Q4", 28, QB)
    e("s_waitcnt vmcnt(0)"); arrive(g, "QOK")
    g.stamp()
    g.flush_stamps(4, 5)
    e("s_endpgm")

DOC = """; ---- design (generated by a script of my own) ----
;   g4 = L x + Q(x,x) with L = w4.W4, Q = W4.(w5.W5);  logit = sum_l w_l.u_{l+1} + g4.u4.
; MLP: 15 workgroups per 256 samples, 16x16x32 bf16 MFMA, x exchanged in fragment order through d_ws; the 16th workgroup
;   prepares the shared fp16 weight images. Hand-offs: write-through stores, drained, then counters reset inside this launch.
"""
def build(stamps=False):
    g = G(stamps)
    prologue(g); n0 = g.nst
    cin(g)
    g.h0 = len(g.L); g.lab("L_helper"); g.nst = n0
    helper_common(g); n1 = g.nst
    g.e(f"s_cmp_ge_u32 s{S_R}, {NR}"); g.e("s_cbranch_scc1 L_helper_n")
    helper_dnn(g)
    g.lab("L_helper_n"); g.nst = n1
    helper_prod(g)
    prod_early1(g); prod_early2(g)
    g.L += g.tail
    i = g.L.index("L_cin2:"); g.L[i:i] = g.hfirst
    g.lab("L_end"); g.e("s_endpgm")
    body, nops = fix_hazards(g.L)
    ref = open("standalone__deep_cross_xdeepfm__recsys.s.ref").read().split("\n")
    hdr = [l for l in ref if l.startswith(";") and "@launch" not in l and "Override" not in l and "grid=ceil" not in l]
    txt = "\n".join(hdr) + f"\n; @launch grid=(256,1,1) block=(512,1,1) lds={LDS_TOTAL}\n"
    txt += DOC
    txt += f'.amdgcn_target "amdgcn-amd-amdhsa--gfx950"\n.text\n.globl {KN}\n.p2align 8\n.type {KN},@function\n{KN}:\n'
    txt += "\n".join(body) + "\n"
    txt += f""".section .rodata,"a"
.p2align 6
.amdhsa_kernel {KN}
  .amdhsa_next_free_vgpr 256
  .amdhsa_next_free_sgpr 102
  .amdhsa_accum_offset 256
  .amdhsa_group_segment_fixed_size 0
  .amdhsa_kernarg_size 88
  .amdhsa_user_sgpr_count 2
  .amdhsa_user_sgpr_kernarg_segment_ptr 1
  .amdhsa_system_sgpr_workgroup_id_x 1
.end_amdhsa_kernel
"""
    return txt, nops
if __name__ == "__main__":
    for a in sys.argv[2:]:
        if "=" in a:
            k, v = a.split("="); setattr(PAR, k, eval(v))
    txt, nops = build(stamps="stamps" in sys.argv)
    open(sys.argv[1], "w").write(txt)
    print("nops inserted", nops, "lines", txt.count("\n"))
```
